```python
import torch

def _softmax(x, axis=-1):
    return torch.softmax(x, dim=axis)
def _gelu(x):
    return torch.nn.functional.gelu(x, approximate="tanh")
def _silu(x):
    return torch.nn.functional.silu(x)
def _sigmoid(x):
    return torch.sigmoid(x)
def _layernorm(x, axis=-1, eps=1e-5):
    m = x.mean(dim=axis, keepdim=True)
    v = x.var(dim=axis, keepdim=True, unbiased=False)
    return (x - m) / torch.sqrt(v + eps)
def _scatter_add(tgt, idx, src, axis=0):
    return tgt.clone().index_add_(axis, idx, src)
def _segment_sum(src, seg, n):
    out = torch.zeros((n,) + src.shape[1:], dtype=src.dtype)
    return out.index_add_(0, seg, src)
def _pad(x, pw):
    flat = tuple(v for pair in reversed(pw) for v in pair)
    return torch.nn.functional.pad(x, flat)

kernel_name = 'sequential_preLN__sliding_local_dilated__glu_gated_bilinear__prompt'

def setup_inputs():

    _w = (lambda a: (lambda t: t.to(torch.bfloat16) if t.is_floating_point() else t)(torch.as_tensor(a)))
    def _A_setup():
        B, S, D = 1, 2048, 640
        return {
            "x": _w((lambda *s: torch.randn(*s, dtype=torch.bfloat16) * 0.05)(B, S, D)),
            "wqkv": _w((lambda *s: torch.randn(*s, dtype=torch.bfloat16) * 0.05)(D, 3 * D)),
            "wo": _w((lambda *s: torch.randn(*s, dtype=torch.bfloat16) * 0.05)(D, D)),
        }
    _A_in = _A_setup()

    def _B_setup():
        B, S, D, F = 1, 2048, 640, 1728
        return {
            "x": _w((lambda *s: torch.randn(*s, dtype=torch.bfloat16) * 0.05)(B, S, D)),
            "w_gate": _w((lambda *s: torch.randn(*s, dtype=torch.bfloat16) * 0.8)(D, F) * (D ** -0.5)),
            "w_up": _w((lambda *s: torch.randn(*s, dtype=torch.bfloat16) * 0.8)(D, F) * (D ** -0.5)),
            "w_down": _w((lambda *s: torch.randn(*s, dtype=torch.bfloat16) * 0.8)(F, D) * (F ** -0.5)),
        }
    _B_in = _B_setup()

    return {
        "A_x": _A_in["x"],
        "A_wqkv": _A_in["wqkv"],
        "A_wo": _A_in["wo"],
        "B_x": _B_in["x"],
        "B_w_gate": _B_in["w_gate"],
        "B_w_up": _B_in["w_up"],
        "B_w_down": _B_in["w_down"],
    }

def reference(A_x, A_wqkv, A_wo, B_x, B_w_gate, B_w_up, B_w_down):
    def _A_ref(x, wqkv, wo):
        B, S, D = x.shape
        H = 32; Dh = D // H
        W, dil = 8, 2
        qkv = (lambda x, *d: x.permute(*d))((x @ wqkv).reshape(B, S, 3, H, Dh), 2, 0, 3, 1, 4)
        q, k, v = qkv[0], qkv[1], qkv[2]
        scale = Dh ** -0.5
        pos = torch.arange(S)
        off = torch.arange(W) * dil
        idx = pos[:, None] - off[None, :]
        mask = idx >= 0
        idx_c = torch.where(mask, idx, 0).reshape(-1)
        kg = k[:, :, idx_c, :].reshape(B, H, S, W, Dh)
        vg = v[:, :, idx_c, :].reshape(B, H, S, W, Dh)
        logits = torch.einsum("bhsd,bhswd->bhsw", q, kg) * scale
        logits = torch.where(mask[None, None, :, :], logits, -1e9)
        attn = _softmax(logits, axis=-1)
        o = torch.einsum("bhsw,bhswd->bhsd", attn, vg)
        return (lambda x, *d: x.permute(*d))(o, 0, 2, 1, 3).reshape(B, S, D) @ wo

    def _B_ref(x, w_gate, w_up, w_down):
        g = torch.einsum("bsd,df->bsf", x, w_gate)
        u = torch.einsum("bsd,df->bsf", x, w_up)
        h = g * u
        return torch.einsum("bsf,fd->bsd", h, w_down)

    x = A_x
    h = x + _A_ref(_layernorm(x, axis=-1), A_wqkv, A_wo)
    h2 = h + _B_ref(_layernorm(h, axis=-1), B_w_gate, B_w_up, B_w_down)
    return h2
```

```python
import sys

S_TOK, D, NQKV, F = 2048, 640, 1920, 1728
WS_QKV, WS_O, WS_H, WS_HH, WS_ST = 0, 0x800000, 0xB00000, 0x1000000, 0x1800000
KA_X, KA_WQKV, KA_WO, KA_BX, KA_WG, KA_WU, KA_WD, KA_OUT, KA_DBG, KA_WS = [8*i for i in range(10)]
ONES = 0x3F803F80

class Asm:
    def __init__(self):
        self.L = []
    def __call__(self, s):
        for line in s.split("\n"):
            line = line.strip()
            if line:
                self.L.append("  " + line)
    def label(self, n):
        self.L.append(n + ":")
    def raw(self, s):
        self.L.append(s)
    def text(self):
        return "\n".join(self.L) + "\n"

def set_exec(a, mask):
    if mask == (1 << 64) - 1:
        a("s_mov_b64 exec, -1")
    else:
        a(f"s_mov_b32 exec_lo, {hex(mask & 0xffffffff)}")
        a(f"s_mov_b32 exec_hi, {hex(mask >> 32)}")

def srd(a, s, ptr, off, nbytes):
    if off:
        a(f"s_add_u32 s{s}, s{ptr}, {hex(off)}")
        a(f"s_addc_u32 s{s+1}, s{ptr+1}, 0")
    else:
        a(f"s_mov_b32 s{s}, s{ptr}")
        a(f"s_mov_b32 s{s+1}, s{ptr+1}")
    a(f"s_and_b32 s{s+1}, s{s+1}, 0xffff")
    a(f"s_mov_b32 s{s+2}, {hex(nbytes)}")
    a(f"s_mov_b32 s{s+3}, 0x20000")

def divc(a, dst, src, d, tmp=None):
    m = (65536 + d - 1) // d
    for x in range(0, 300):
        assert (x * m) >> 16 == x // d, (x, d)
    a(f"s_mul_i32 s{dst}, s{src}, {m}")
    a(f"s_lshr_b32 s{dst}, s{dst}, 16")

def kernel_header(a, name):
    a.raw(f".globl {name}")
    a.raw(".p2align 8")
    a.raw(f".type {name},@function")
    a.label(name)

def kernel_desc(name, vgpr=256, accum=160, sgpr=102):
    return f""".amdhsa_kernel {name}
  .amdhsa_next_free_vgpr {vgpr}
  .amdhsa_next_free_sgpr {sgpr}
  .amdhsa_accum_offset {accum}
  .amdhsa_group_segment_fixed_size 0
  .amdhsa_kernarg_size 80
  .amdhsa_user_sgpr_count 2
  .amdhsa_user_sgpr_kernarg_segment_ptr 1
  .amdhsa_system_sgpr_workgroup_id_x 1
  .amdhsa_float_denorm_mode_32 3
.end_amdhsa_kernel
"""

SRD_A, SRD_B0, SRD_B1, SRD_OUT, SRD_AUX, SRD_ST = 8, 12, 16, 20, 24, 28
S_RT, S_CT, S_R0, S_C0, S_WAVE, S_SLOT, S_CNT, S_T0, S_T1, S_T2 = 32, 33, 34, 35, 36, 37, 38, 39, 40, 41
S_AOFF, S_BOFF = 42, 43
S_PTR = 44
S_EX = 64
S_I, S_J = 66, 67

class Phase:
    pass

def load_ptrs(a):
    a(f"s_load_dwordx16 s[{S_PTR}:{S_PTR+15}], s[0:1], 0")
    a(f"s_load_dwordx4 s[{S_PTR+16}:{S_PTR+19}], s[0:1], 64")

def ptr(k): return S_PTR + k // 4

def tile_map(a, name, NT, kind):
    PER = 32
    a(f"s_and_b32 s{S_T0}, s2, 7")
    a(f"s_lshr_b32 s{S_T1}, s2, 3")
    a(f"s_cmp_ge_u32 s{S_T1}, {PER}")
    a(f"s_cbranch_scc1 {name}_exit")
    a(f"s_mul_i32 s{S_T0}, s{S_T0}, {PER}")
    a(f"s_add_u32 s{S_T0}, s{S_T0}, s{S_T1}   ; t")
    a(f"s_cmp_ge_u32 s{S_T0}, {NT}")
    a(f"s_cbranch_scc1 {name}_exit")
    if kind == "p1":
        divc(a, S_T1, S_T0, 60)
        a(f"s_min_u32 s{S_T1}, s{S_T1}, 3      ; band")
        a(f"s_mul_i32 s{S_T2}, s{S_T1}, 60")
        a(f"s_sub_u32 s{S_T2}, s{S_T0}, s{S_T2}")
        divc(a, S_CT, S_T2, 4)
        divc(a, S_RT, S_T2, 5)
        a(f"s_cmp_eq_u32 s{S_T1}, 3")
        a(f"s_cselect_b32 s{S_CT}, s{S_RT}, s{S_CT}")
        a(f"s_cselect_b32 s{S_RT}, 5, 4")
        a(f"s_mul_i32 s{S_RT}, s{S_RT}, s{S_CT}")
        a(f"s_sub_u32 s{S_RT}, s{S_T2}, s{S_RT}")
        a(f"s_lshl_b32 s{S_T1}, s{S_T1}, 2")
        a(f"s_add_u32 s{S_RT}, s{S_RT}, s{S_T1}")
    elif kind == "p3":
        divc(a, S_T1, S_T0, 81)
        a(f"s_mul_i32 s{S_T2}, s{S_T1}, 81")
        a(f"s_sub_u32 s{S_T2}, s{S_T0}, s{S_T2}")
        divc(a, S_CT, S_T2, 3)
        a(f"s_mul_i32 s{S_RT}, s{S_CT}, 3")
        a(f"s_sub_u32 s{S_RT}, s{S_T2}, s{S_RT}")
        a(f"s_mul_i32 s{S_T1}, s{S_T1}, 3")
        a(f"s_add_u32 s{S_RT}, s{S_RT}, s{S_T1}")
    else:
        divc(a, S_RT, S_T0, 10)
        a(f"s_mul_i32 s{S_CT}, s{S_RT}, 10")
        a(f"s_sub_u32 s{S_CT}, s{S_T0}, s{S_CT}")

def gemm_kernel(P):
    a = Asm()
    name = P.name
    kernel_header(a, name)
    load_ptrs(a)
    tile_map(a, name, P.NT, P.kind)
    a(f"s_mul_i32 s{S_R0}, s{S_RT}, {P.MV}")
    a(f"s_mul_i32 s{S_C0}, s{S_CT}, {P.NC}")
    a("v_lshrrev_b32 v1, 6, v0")
    a("v_and_b32 v2, 63, v0      ; lane")
    a("s_nop 0")
    a(f"v_readfirstlane_b32 s{S_WAVE}, v1")
    a("s_waitcnt lgkmcnt(0)")
    P.build_srds(a)
    a(f"s_cmp_ge_u32 s{S_WAVE}, 4")
    a(f"s_cbranch_scc1 {name}_loader")
    consumer(a, P)
    a("s_endpgm")
    a.label(f"{name}_loader")
    loader(a, P)
    a.label(f"{name}_exit")
    a("s_endpgm")
    return a

def loader(a, P):
    name = P.name
    a("v_lshrrev_b32 v3, 3, v2")
    a("v_and_b32 v4, 7, v2")
    a("v_lshrrev_b32 v5, 1, v3      ; r8>>1")
    a("v_xor_b32 v6, v4, v5")
    a("v_lshlrev_b32 v6, 4, v6")
    a(f"v_add_u32 v7, s{S_R0}, v3")
    a(f"s_mov_b32 s{S_T0}, {P.lda}")
    a(f"v_mul_lo_u32 v7, v7, s{S_T0}")
    a("v_add_u32 v7, v7, v6")
    a("v_and_b32 v8, 1, v5")
    a("v_lshlrev_b32 v8, 1, v8")
    a("v_xor_b32 v8, v4, v8")
    a("v_lshlrev_b32 v8, 4, v8")
    a(f"s_mov_b32 s{S_T0}, {P.ldb}")
    a(f"v_mul_lo_u32 v9, v3, s{S_T0}")
    a("v_add_u32 v9, v9, v8")
    a(f"s_lshl_b32 s{S_T1}, s{S_C0}, 1")
    a(f"v_add_u32 v9, s{S_T1}, v9")
    for w in range(4):
        a(f"s_cmp_eq_u32 s{S_WAVE}, {4+w}")
        a(f"s_cbranch_scc1 {name}_ld{w}")
    for w in range(4):
        a.label(f"{name}_ld{w}")
        loader_wave(a, P, w)
        a("s_endpgm")

def loader_wave(a, P, w):
    name = P.name
    ins = P.dma[w]
    n = len(ins)
    VB = 32
    for t, it in enumerate(ins):
        if it[0] == 'A':
            i = it[1]
            off = i * 8 * P.lda
            a(f"v_add_u32 v{VB+t}, {off}, v7")
            if i & 1:
                a(f"v_xor_b32 v{VB+t}, 64, v{VB+t}")
        else:
            pn, i = it[1], it[2]
            off = i * 8 * P.ldb + P.panel_coloff[pn]
            a(f"v_add_u32 v{VB+t}, {off}, v9")
            if i & 1:
                a(f"v_xor_b32 v{VB+t}, 64, v{VB+t}")
    P.loader_pre(a, w)
    def issue(slot_sgpr_or_const):
        for t, it in enumerate(ins):
            if it[0] == 'A':
                ldsoff = it[1] * 1024
                sr, so = SRD_A, S_AOFF
                mask = it[2]
            else:
                ldsoff = P.ABYTES + it[1] * 8192 + it[2] * 1024
                sr = P.panel_srd[it[1]]
                so = S_BOFF
                mask = None
            a(f"s_add_u32 m0, s{S_SLOT}, {ldsoff}")
            if mask is not None:
                set_exec(a, mask)
            else:
                a("s_nop 0")
            a(f"buffer_load_dwordx4 v{VB+t}, s[{sr}:{sr+3}], s{so} offen lds")
            if mask is not None:
                a("s_mov_b64 exec, -1")
        a(f"s_add_u32 s{S_AOFF}, s{S_AOFF}, 128")
        a(f"s_add_u32 s{S_BOFF}, s{S_BOFF}, {64*P.ldb}")
        a(f"s_add_u32 s{S_SLOT}, s{S_SLOT}, {P.STAGE}")
        a(f"s_cmp_ge_u32 s{S_SLOT}, {P.STAGE*P.NS}")
        a(f"s_cselect_b32 s{S_SLOT}, 0, s{S_SLOT}")
    a(f"s_mov_b32 s{S_SLOT}, 0")
    a(f"s_mov_b32 s{S_AOFF}, 0")
    a(f"s_mov_b32 s{S_BOFF}, 0")
    NS, S = P.NS, P.S
    a(f"s_mov_b32 s{S_CNT}, {NS}")
    a.label(f"{name}_ld{w}_pro")
    issue(None)
    a(f"s_sub_u32 s{S_CNT}, s{S_CNT}, 1")
    a(f"s_cmp_lg_u32 s{S_CNT}, 0")
    a(f"s_cbranch_scc1 {name}_ld{w}_pro")
    P.loader_post_issue(a, w, NS * n)
    a(f"s_waitcnt vmcnt({(NS-1)*n})")
    a("s_waitcnt lgkmcnt(0)")
    a("s_barrier")
    P.loader_stage_work(a, w)
    if S - NS >= 1:
        a(f"s_mov_b32 s{S_CNT}, {S-NS}")
        a.label(f"{name}_ld{w}_main")
        a(f"s_waitcnt vmcnt({(NS-2)*n})")
        a("s_waitcnt lgkmcnt(0)")
        a("s_barrier")
        issue(None)
        P.loader_stage_work(a, w)
        a(f"s_sub_u32 s{S_CNT}, s{S_CNT}, 1")
        a(f"s_cmp_lg_u32 s{S_CNT}, 0")
        a(f"s_cbranch_scc1 {name}_ld{w}_main")
    if P.has_stage_work:
        for s in range(S-NS+1, S):
            a(f"s_waitcnt vmcnt({(S-1-s)*n})")
            a("s_waitcnt lgkmcnt(0)")
            a("s_barrier")
            P.loader_stage_work(a, w)
    else:
        for s in range(S-NS+1, S):
            a(f"s_waitcnt vmcnt({(S-1-s)*n})")
            a("s_barrier")
    P.loader_final(a, w)

def consumer(a, P):
    name = P.name
    if P.idle_wave is not None:
        a(f"s_cmp_eq_u32 s{S_WAVE}, {P.idle_wave}")
        a(f"s_cbranch_scc0 {name}_cons")
        a(f"s_mov_b32 s{S_CNT}, {P.S}")
        a.label(f"{name}_idle")
        a("s_barrier")
        a(f"s_sub_u32 s{S_CNT}, s{S_CNT}, 1")
        a(f"s_cmp_lg_u32 s{S_CNT}, 0")
        a(f"s_cbranch_scc1 {name}_idle")
        a("s_endpgm")
        a.label(f"{name}_cons")
    P.consumer_setup(a)
    NX, NW = len(P.xlist), len(P.wlist)
    XF = [0, 4*P.NXMAX]
    WF = [8*P.NXMAX, 8*P.NXMAX + 4*NW]
    def reads(kk, buf):
        r = []
        for wi, (areg, off) in enumerate(P.wlist):
            base = WF[buf] + 4*wi
            r.append(f"ds_read_b64_tr_b16 a[{base}:{base+1}], v{areg} offset:{off + kk*4096}")
            r.append(f"ds_read_b64_tr_b16 a[{base+2}:{base+3}], v{areg} offset:{off + kk*4096 + 512}")
        for xi, (areg0, areg1, off) in enumerate(P.xlist):
            base = XF[buf] + 4*xi
            areg = areg0 if kk == 0 else areg1
            r.append(f"ds_read_b128 a[{base}:{base+3}], v{areg} offset:{off}")
        return r
    def mfmas(buf, first=False):
        m = []
        for (xi, wi, acc) in P.mf:
            c = "0" if first else f"v[{acc}:{acc+3}]"
            m.append(f"v_mfma_f32_16x16x32_bf16 v[{acc}:{acc+3}], a[{WF[buf]+4*wi}:{WF[buf]+4*wi+3}], a[{XF[buf]+4*xi}:{XF[buf]+4*xi+3}], {c}")
        return m
    def block(m, r):
        k = 0
        nm, nr = len(m), len(r)
        per = -(-nr // nm) if nr > nm else 1
        ri = 0
        for i, x in enumerate(m):
            a(x)
            for _ in range(per):
                if ri < nr:
                    a(r[ri]); ri += 1
        while ri < nr:
            a(r[ri]); ri += 1
    def addr_update():
        P.addr_update(a)
    a(f"s_mov_b32 s{S_SLOT}, 0")
    a("s_barrier")
    addr_update()
    for x in reads(0, 0): a(x)
    a("s_waitcnt lgkmcnt(0)")
    block(mfmas(0, first=True), reads(1, 1))
    a(f"s_mov_b32 s{S_CNT}, {P.S-1}")
    a.label(f"{name}_cloop")
    a(f"s_add_u32 s{S_SLOT}, s{S_SLOT}, {P.STAGE}")
    a(f"s_cmp_ge_u32 s{S_SLOT}, {P.STAGE*P.NS}")
    a(f"s_cselect_b32 s{S_SLOT}, 0, s{S_SLOT}")
    a("s_waitcnt lgkmcnt(0)")
    a("s_barrier")
    addr_update()
    block(mfmas(1), reads(0, 0))
    a("s_waitcnt lgkmcnt(0)")
    block(mfmas(0), reads(1, 1))
    a(f"s_sub_u32 s{S_CNT}, s{S_CNT}, 1")
    a(f"s_cmp_lg_u32 s{S_CNT}, 0")
    a(f"s_cbranch_scc1 {name}_cloop")
    a("s_waitcnt lgkmcnt(0)")
    block(mfmas(1), [])
    a("s_nop 7")
    a("s_nop 1")
    P.epilogue(a)

def cons_lane(a):
    a("v_and_b32 v3, 15, v2")
    a("v_lshrrev_b32 v4, 4, v2")

def x_addr_const(a, dst, rowbase_sgpr_or_none, rowbase_const=0):
    a("v_lshrrev_b32 v5, 1, v3")
    a("v_xor_b32 v5, v4, v5")
    a("v_lshlrev_b32 v5, 4, v5")
    a(f"v_lshl_add_u32 v{dst}, v3, 7, v5")
    if rowbase_sgpr_or_none is not None:
        a(f"s_lshl_b32 s{S_T0}, s{rowbase_sgpr_or_none}, 7")
        a(f"v_add_u32 v{dst}, s{S_T0}, v{dst}")
    if rowbase_const:
        a(f"v_add_u32 v{dst}, {rowbase_const*128}, v{dst}")

def w_addr_const(a, dst):
    a("v_lshrrev_b32 v5, 2, v3        ; r")
    a("v_lshl_add_u32 v6, v4, 3, v5   ; 8g+r")
    a("v_lshlrev_b32 v6, 7, v6")
    a("v_lshrrev_b32 v5, 1, v5        ; r>>1")
    a("v_and_b32 v7, 1, v4")
    a("v_lshl_or_b32 v5, v7, 1, v5    ; h")
    a("v_lshl_add_u32 v6, v5, 5, v6")
    a("v_and_b32 v5, 3, v3")
    a(f"v_lshl_add_u32 v{dst}, v5, 3, v6")

class P1(Phase):
    name = "p1_kernel"; kind = "p1"; NT = 255
    MV = 121; NC = 128; lda = 1280; ldb = 3840
    ABYTES = 16384; STAGE = 32768; NS = 4; S = 10
    NXMAX = 4
    idle_wave = None
    has_stage_work = True
    panel_coloff = [0, 128]; panel_srd = [SRD_B0, SRD_B0]
    LDS_ST = 131072; LDS_CS = 131072 + 1024; LDS = 131072 + 1024 + 512
    def __init__(self):
        self.dma = []
        for w in range(4):
            l = []
            for t in range(4):
                i = 4*w + t
                l.append(('A', i, 0xFF if i == 15 else None))
            for t in range(4):
                l.append(('B', w >> 1, 4*(w & 1) + t))
            self.dma.append(l)
        self.vXc, self.vWc = 8, 9
        self.vXa, self.vXb = 10, 11
        self.vW = [12, 13, 14, 15]
        self.xlist = [(self.vXa, self.vXb, 2048*x) for x in range(4)]
        self.wlist = [(self.vW[f], self.ABYTES) for f in range(4)]
        self.ACC = 32
        self.mf = [(x, f, self.ACC + 4*(4*x + f)) for x in range(4) for f in range(4)]
    def build_srds(self, a):
        srd(a, SRD_A, ptr(KA_X), 0, S_TOK*D*2)
        srd(a, SRD_B0, ptr(KA_WQKV), 0, D*NQKV*2)
        srd(a, SRD_OUT, ptr(KA_WS), WS_QKV, S_TOK*NQKV*2)
    def loader_pre(self, a, w):
        a(f"v_mov_b32 v10, {hex(ONES)}")
        a(f"v_lshlrev_b32 v11, 2, v2")
        a(f"v_add_u32 v11, {w*self.STAGE + 127*128}, v11")
        set_exec(a, 0xffffffff)
        a("ds_write_b32 v11, v10")
        a("s_mov_b64 exec, -1")
        a("v_lshrrev_b32 v12, 1, v2")
        a(f"v_add_u32 v12, {32*w}, v12        ; row")
        a("v_lshlrev_b32 v12, 7, v12")
        a("v_and_b32 v13, 1, v2")
        a("v_lshl_add_u32 v12, v13, 6, v12")
        a("v_lshrrev_b32 v13, 2, v2")
        for t in range(4):
            a(f"v_add_u32 v14, {t}, v13")
            a("v_and_b32 v14, 3, v14")
            a(f"v_lshl_add_u32 v{16+t}, v14, 4, v12")
        a("v_mov_b32 v24, 0"); a("v_mov_b32 v25, 0"); a("v_mov_b32 v26, 0"); a("v_mov_b32 v27, 0")
        a(f"s_mov_b32 s{S_T2}, 0")
    def loader_post_issue(self, a, w, n): pass
    def loader_stage_work(self, a, w):
        for t in range(4):
            a(f"v_add_u32 v{20+t}, s{S_T2}, v{16+t}")
        for t in range(4):
            a(f"ds_read_b128 v[{64+4*t}:{67+4*t}], v{20+t}")
        a(f"s_add_u32 s{S_T2}, s{S_T2}, {self.STAGE}")
        a(f"s_cmp_ge_u32 s{S_T2}, {self.STAGE*self.NS}")
        a(f"s_cselect_b32 s{S_T2}, 0, s{S_T2}")
        for t in range(4):
            a(f"s_waitcnt lgkmcnt({3-t})")
            for d in range(4):
                r = 64 + 4*t + d
                s_, q_ = (24, 25) if d & 1 == 0 else (26, 27)
                a(f"v_dot2_f32_bf16 v{s_}, v{r}, v10, v{s_}")
                a(f"v_dot2_f32_bf16 v{q_}, v{r}, v{r}, v{q_}")
    def loader_final(self, a, w):
        a("s_nop 3")
        a("v_add_f32 v24, v24, v26")
        a("v_add_f32 v25, v25, v27")
        a("s_nop 1")
        a("v_add_f32_dpp v24, v24, v24 quad_perm:[1,0,3,2] row_mask:0xf bank_mask:0xf")
        a("v_add_f32_dpp v25, v25, v25 quad_perm:[1,0,3,2] row_mask:0xf bank_mask:0xf")
        a(f"v_mul_f32 v24, {1.0/D!r}, v24" .replace(repr(1.0/D), hex(f2u(1.0/D))))
        a(f"v_mul_f32 v25, {hex(f2u(1.0/D))}, v25")
        a("v_fma_f32 v25, -v24, v24, v25      ; var")
        a(f"v_add_f32 v25, {hex(f2u(1e-5))}, v25")
        a("v_rsq_f32 v25, v25")
        a("v_lshrrev_b32 v12, 1, v2")
        a(f"v_add_u32 v12, {32*w}, v12")
        a("v_lshlrev_b32 v12, 3, v12")
        a(f"v_add_u32 v12, {self.LDS_ST}, v12")
        set_exec(a, 0x5555555555555555)
        a("ds_write_b64 v12, v[24:25]")
        a("s_mov_b64 exec, -1")
        a("s_waitcnt lgkmcnt(0)")
        a("s_barrier")
    def consumer_setup(self, a):
        cons_lane(a)
        a(f"s_lshr_b32 s{S_I}, s{S_WAVE}, 1")
        a(f"s_and_b32 s{S_J}, s{S_WAVE}, 1")
        a(f"s_lshl_b32 s{S_T1}, s{S_I}, 6")
        x_addr_const(a, self.vXc, S_T1)
        w_addr_const(a, self.vWc)
        a(f"s_lshl_b32 s{S_T0}, s{S_J}, 13")
        a(f"v_add_u32 v{self.vWc}, s{S_T0}, v{self.vWc}")
    def addr_update(self, a):
        a(f"v_add_u32 v{self.vXa}, s{S_SLOT}, v{self.vXc}")
        a(f"v_add_u32 v{self.vW[0]}, s{S_SLOT}, v{self.vWc}")
        a(f"v_xor_b32 v{self.vXb}, 64, v{self.vXa}")
        for f in range(1, 4):
            a(f"v_xor_b32 v{self.vW[f]}, {32*f}, v{self.vW[0]}")
    def epilogue(self, a):
        name = self.name
        a(f"s_lshl_b32 s{S_T0}, s{S_J}, 8       ; j*64*4")
        a(f"v_lshlrev_b32 v5, 4, v4             ; g*16 bytes")
        a(f"v_add_u32 v5, s{S_T0}, v5")
        a(f"v_add_u32 v5, {self.LDS_CS}, v5")
        a(f"s_cmp_eq_u32 s{S_I}, 1")
        a(f"s_cbranch_scc0 {name}_nocs")
        set_exec(a, 0x8000800080008000)
        for f in range(4):
            acc = self.ACC + 4*(4*3 + f)
            a(f"ds_write_b128 v5, v[{acc}:{acc+3}] offset:{64*f}")
        a("s_mov_b64 exec, -1")
        a.label(f"{name}_nocs")
        a("s_waitcnt lgkmcnt(0)")
        a("s_barrier")
        CS = 96
        ST = 112
        for f in range(4):
            a(f"ds_read_b128 v[{CS+4*f}:{CS+4*f+3}], v5 offset:{64*f}")
        a(f"s_lshl_b32 s{S_T0}, s{S_I}, 9       ; i*64*8")
        a(f"v_lshlrev_b32 v6, 3, v3")
        a(f"v_add_u32 v6, s{S_T0}, v6")
        a(f"v_add_u32 v6, {self.LDS_ST}, v6")
        for x in range(4):
            a(f"ds_read_b64 v[{ST+2*x}:{ST+2*x+1}], v6 offset:{128*x}")
        a(f"s_lshl_b32 s{S_T0}, s{S_I}, 6")
        a(f"v_add_u32 v7, s{S_T0}, v3")
        a(f"v_add_u32 v8, s{S_R0}, v7")
        a(f"s_mov_b32 s{S_T1}, 3840")
        a(f"v_mul_lo_u32 v8, v8, s{S_T1}")
        a(f"s_lshl_b32 s{S_T0}, s{S_J}, 6")
        a(f"s_add_u32 s{S_T0}, s{S_T0}, s{S_C0}")
        a(f"s_lshl_b32 s{S_T0}, s{S_T0}, 1")
        a(f"v_lshl_add_u32 v8, v4, 3, v8")
        a(f"v_add_u32 v8, s{S_T0}, v8")
        a("v_mov_b32 v11, 0x80000000")
        a("s_waitcnt lgkmcnt(0)")
        for x in range(4):
            a(f"v_add_u32 v9, {x*16*3840}, v8")
            a(f"v_add_u32 v10, {16*x}, v7")
            a(f"v_cmp_gt_u32 vcc, {self.MV}, v10")
            a("s_nop 1")
            a("v_cndmask_b32 v9, v11, v9, vcc")
            for f in range(4):
                acc = self.ACC + 4*(4*x + f)
                st = ST + 2*x
                for hh in (0, 2):
                    a(f"v_pk_fma_f32 v[{acc+hh}:{acc+hh+1}], v[{CS+4*f+hh}:{CS+4*f+hh+1}], v[{st}:{st+1}], v[{acc+hh}:{acc+hh+1}] op_sel_hi:[1,0,1] neg_lo:[0,1,0] neg_hi:[0,1,0]")
                for hh in (0, 2):
                    a(f"v_pk_mul_f32 v[{acc+hh}:{acc+hh+1}], v[{acc+hh}:{acc+hh+1}], v[{st}:{st+1}] op_sel:[0,1] op_sel_hi:[1,1]")
                a(f"v_cvt_pk_bf16_f32 v{acc}, v{acc}, v{acc+1}")
                a(f"v_cvt_pk_bf16_f32 v{acc+1}, v{acc+2}, v{acc+3}")
                a(f"buffer_store_dwordx2 v[{acc}:{acc+1}], v9, s[{SRD_OUT}:{SRD_OUT+3}], 0 offen offset:{32*f}")
        a("s_waitcnt vmcnt(0)")

import struct
def f2u(x):
    return struct.unpack("<I", struct.pack("<f", x))[0]

class P24(Phase):
    kind = "rm"; NT = 250
    MV = 82; NC = 64; ldb = 1280
    ABYTES = 12288; STAGE = 20480; NS = 7
    NXMAX = 2
    idle_wave = 3
    has_stage_work = False
    panel_coloff = [0]; panel_srd = [SRD_B0]
    LDS = 20480*7
    def __init__(self, which):
        self.which = which
        if which == 2:
            self.name = "p2_kernel"; self.lda = 1280; self.S = 10
        else:
            self.name = "p4_kernel"; self.lda = 3456; self.S = 27
        allins = [('A', i, (0xFFFF if i == 10 else None)) for i in range(11)] + [('B', 0, i) for i in range(8)]
        self.dma = [allins[w::4] for w in range(4)]
        self.vXc, self.vWc = 8, 9
        self.vXa, self.vXb = 10, 11
        self.vW = [12, 13, 14, 15]
        self.xlist = [(self.vXa, self.vXb, 2048*x) for x in range(2)]
        self.wlist = [(self.vW[f], self.ABYTES) for f in range(4)]
        self.ACC = 32
        self.mf = [(x, f, self.ACC + 4*(4*x + f)) for x in range(2) for f in range(4)]
    def build_srds(self, a):
        if self.which == 2:
            srd(a, SRD_A, ptr(KA_WS), WS_O, S_TOK*D*2)
            srd(a, SRD_B0, ptr(KA_WO), 0, D*D*2)
            srd(a, SRD_OUT, ptr(KA_WS), WS_H, S_TOK*D*2)
            srd(a, SRD_AUX, ptr(KA_X), 0, S_TOK*D*2)
            srd(a, SRD_ST, ptr(KA_WS), WS_ST, 10*S_TOK*8)
        else:
            srd(a, SRD_A, ptr(KA_WS), WS_HH, S_TOK*F*2)
            srd(a, SRD_B0, ptr(KA_WD), 0, F*D*2)
            srd(a, SRD_OUT, ptr(KA_OUT), 0, S_TOK*D*2)
            srd(a, SRD_AUX, ptr(KA_WS), WS_H, S_TOK*D*2)
    def loader_pre(self, a, w): pass
    def loader_post_issue(self, a, w, n): pass
    def loader_stage_work(self, a, w): pass
    def loader_final(self, a, w): pass
    def consumer_setup(self, a):
        cons_lane(a)
        a(f"s_lshl_b32 s{S_T1}, s{S_WAVE}, 5")
        x_addr_const(a, self.vXc, S_T1)
        w_addr_const(a, self.vWc)
        a(f"s_lshl_b32 s{S_T1}, s{S_WAVE}, 5")
        a(f"v_add_u32 v16, s{S_T1}, v3")
        a(f"v_add_u32 v17, s{S_R0}, v16")
        a(f"s_mov_b32 s{S_T0}, 1280")
        a(f"v_mul_lo_u32 v17, v17, s{S_T0}")
        a(f"s_lshl_b32 s{S_T0}, s{S_C0}, 1")
        a(f"v_lshl_add_u32 v17, v4, 3, v17")
        a(f"v_add_u32 v17, s{S_T0}, v17")
        a(f"v_add_u32 v18, {16*1280}, v17        ; x=1")
        a("v_mov_b32 v30, 0x80000000")
        for x in range(2):
            a(f"v_add_u32 v19, {16*x}, v16")
            a(f"v_cmp_gt_u32 vcc, {self.MV}, v19")
            a("s_nop 1")
            a(f"v_cndmask_b32 v{17+x}, v30, v{17+x}, vcc")
        for x in range(2):
            for f in range(4):
                r = 64 + 2*(4*x + f)
                a(f"buffer_load_dwordx2 v[{r}:{r+1}], v{17+x}, s[{SRD_AUX}:{SRD_AUX+3}], 0 offen offset:{32*f}")
    def addr_update(self, a):
        P1.addr_update(self, a)
    def epilogue(self, a):
        a("s_waitcnt vmcnt(0)")
        for x in range(2):
            if self.which == 2:
                a("v_mov_b32 v24, 0"); a("v_mov_b32 v25, 0")
                a(f"v_mov_b32 v26, {hex(ONES)}")
            for f in range(4):
                acc = self.ACC + 4*(4*x + f)
                r = 64 + 2*(4*x + f)
                a(f"v_lshlrev_b32 v20, 16, v{r}")
                a(f"v_and_b32 v21, 0xffff0000, v{r}")
                a(f"v_lshlrev_b32 v22, 16, v{r+1}")
                a(f"v_and_b32 v23, 0xffff0000, v{r+1}")
                a(f"v_pk_add_f32 v[{acc}:{acc+1}], v[{acc}:{acc+1}], v[20:21]")
                a(f"v_pk_add_f32 v[{acc+2}:{acc+3}], v[{acc+2}:{acc+3}], v[22:23]")
                a(f"v_cvt_pk_bf16_f32 v{acc}, v{acc}, v{acc+1}")
                a(f"v_cvt_pk_bf16_f32 v{acc+1}, v{acc+2}, v{acc+3}")
                a(f"buffer_store_dwordx2 v[{acc}:{acc+1}], v{17+x}, s[{SRD_OUT}:{SRD_OUT+3}], 0 offen offset:{32*f}")
                if self.which == 2:
                    for d in range(2):
                        a(f"v_dot2_f32_bf16 v24, v{acc+d}, v26, v24")
                        a(f"v_dot2_f32_bf16 v25, v{acc+d}, v{acc+d}, v25")
            if self.which == 2:
                a("s_nop 2")
                for (sw) in ("v_permlane16_swap_b32", "v_permlane32_swap_b32"):
                    a("v_mov_b32 v27, v24"); a("v_mov_b32 v28, v25")
                    a("s_nop 1")
                    a(f"{sw} v24, v27"); a(f"{sw} v25, v28")
                    a("s_nop 1")
                    a("v_add_f32 v24, v24, v27"); a("v_add_f32 v25, v25, v28")
                a(f"s_add_u32 s{S_T1}, s{S_R0}, {self.MV}")
                a(f"s_min_u32 s{S_T1}, s{S_T1}, {S_TOK}")
                a(f"v_add_u32 v19, {16*x}, v16")
                a(f"v_add_u32 v19, s{S_R0}, v19")
                a(f"v_cmp_gt_u32 vcc, s{S_T1}, v19")
                a(f"s_mul_i32 s{S_T0}, s{S_CT}, {S_TOK}")
                a(f"v_add_u32 v19, s{S_T0}, v19")
                a("v_lshlrev_b32 v19, 3, v19")
                a("v_cndmask_b32 v19, v30, v19, vcc")
                set_exec(a, 0xffff)
                a(f"buffer_store_dwordx2 v[24:25], v19, s[{SRD_ST}:{SRD_ST+3}], 0 offen")
                a("s_mov_b64 exec, -1")
        a("s_waitcnt vmcnt(0)")

class P3(Phase):
    name = "p3_kernel"; kind = "p3"; NT = 243
    MV = 228; NC = 64; lda = 1280; ldb = 3456
    ABYTES = 30720; STAGE = 47104; NS = 3; S = 10
    NXMAX = 8
    idle_wave = None
    has_stage_work = False
    panel_coloff = [0, 0]; panel_srd = [SRD_B0, SRD_B1]
    LDS_ST = 47104*3; LDS_CS = 47104*3 + 1920; LDS = 47104*3 + 1920 + 512
    def __init__(self):
        allins = [('A', i, (0xFFFFFFFF if i == 28 else None)) for i in range(29)] + [('B', pn, i) for pn in range(2) for i in range(8)]
        self.dma = [allins[w::4] for w in range(4)]
        self.vXc, self.vXsc, self.vWc = 8, 9, 10
        self.vXa, self.vXb, self.vXsa, self.vXsb = 11, 12, 13, 14
        self.vW = [15, 16]
        self.xlist = [(self.vXa, self.vXb, 2048*x) for x in range(7)] + [(self.vXsa, self.vXsb, 0)]
        G, U = self.ABYTES, self.ABYTES + 8192
        self.wlist = [(self.vW[0], G), (self.vW[0], U), (self.vW[1], G), (self.vW[1], U)]
        self.ACC = 32
        self.mf = []
        acc = self.ACC
        self.accmap = {}
        for x in range(8):
            for wi in range(4):
                if x == 7 and wi >= 2: continue
                self.mf.append((x, wi, acc)); self.accmap[(x, wi)] = acc; acc += 4
        assert acc == 32 + 120
    def build_srds(self, a):
        srd(a, SRD_A, ptr(KA_WS), WS_H, S_TOK*D*2)
        srd(a, SRD_B0, ptr(KA_WG), 0, D*F*2)
        srd(a, SRD_B1, ptr(KA_WU), 0, D*F*2)
        srd(a, SRD_OUT, ptr(KA_WS), WS_HH, S_TOK*F*2)
        srd(a, SRD_ST, ptr(KA_WS), WS_ST, 10*S_TOK*8)
    def loader_pre(self, a, w):
        if w < 3:
            a(f"v_mov_b32 v10, {hex(ONES)}")
            a(f"v_lshlrev_b32 v11, 2, v2")
            a(f"v_add_u32 v11, {w*self.STAGE + 239*128}, v11")
            set_exec(a, 0xffffffff)
            a("ds_write_b32 v11, v10")
            a("s_mov_b64 exec, -1")
        a(f"v_add_u32 v12, {64*w}, v2")
        a(f"v_add_u32 v13, s{S_R0}, v12")
        a("v_lshlrev_b32 v13, 3, v13")
        a(f"v_cmp_gt_u32 vcc, {self.MV}, v12")
        a("v_mov_b32 v14, 0x80000000")
        a("s_nop 0")
        a("v_cndmask_b32 v13, v14, v13, vcc")
        for c in range(10):
            a(f"s_mov_b32 s{S_T0}, {c*S_TOK*8}")
            a(f"buffer_load_dwordx2 v[{64+2*c}:{65+2*c}], v13, s[{SRD_ST}:{SRD_ST+3}], s{S_T0} offen")
    def loader_post_issue(self, a, w, n):
        a(f"s_waitcnt vmcnt({n})")
        for c in range(1, 10):
            a(f"v_pk_add_f32 v[64:65], v[64:65], v[{64+2*c}:{65+2*c}]")
        a(f"v_mul_f32 v64, {hex(f2u(1.0/D))}, v64")
        a(f"v_mul_f32 v65, {hex(f2u(1.0/D))}, v65")
        a("v_fma_f32 v65, -v64, v64, v65")
        a(f"v_add_f32 v65, {hex(f2u(1e-5))}, v65")
        a("v_rsq_f32 v65, v65")
        a("v_lshlrev_b32 v12, 3, v12")
        a(f"v_add_u32 v12, {self.LDS_ST}, v12")
        set_exec(a, (1 << 64) - 1 if w < 3 else (1 << (240 - 192)) - 1)
        a("ds_write_b64 v12, v[64:65]")
        a("s_mov_b64 exec, -1")
    def loader_stage_work(self, a, w): pass
    def loader_final(self, a, w):
        a("s_barrier")
    def consumer_setup(self, a):
        cons_lane(a)
        a(f"s_lshr_b32 s{S_I}, s{S_WAVE}, 1")
        a(f"s_and_b32 s{S_J}, s{S_WAVE}, 1")
        a(f"s_lshl_b32 s{S_T1}, s{S_I}, 7")
        x_addr_const(a, self.vXc, S_T1)
        x_addr_const(a, self.vXsc, None, 112)
        w_addr_const(a, self.vWc)
        a(f"s_lshl_b32 s{S_T0}, s{S_J}, 1")
        a(f"s_add_u32 s{S_T0}, s{S_T0}, s{S_I}")
        a(f"s_lshl_b32 s{S_T0}, s{S_T0}, 5")
        a(f"v_xor_b32 v{self.vWc}, s{S_T0}, v{self.vWc}")
    def addr_update(self, a):
        a(f"v_add_u32 v{self.vXa}, s{S_SLOT}, v{self.vXc}")
        a(f"v_add_u32 v{self.vW[0]}, s{S_SLOT}, v{self.vWc}")
        a(f"v_add_u32 v{self.vXsa}, s{S_SLOT}, v{self.vXsc}")
        a(f"v_xor_b32 v{self.vXb}, 64, v{self.vXa}")
        a(f"v_xor_b32 v{self.vW[1]}, 32, v{self.vW[0]}")
        a(f"v_xor_b32 v{self.vXsb}, 64, v{self.vXsa}")
    def epilogue(self, a):
        name = self.name
        a(f"s_lshl_b32 s{S_T0}, s{S_J}, 1")
        a(f"s_add_u32 s{S_T2}, s{S_T0}, s{S_I}     ; f0")
        a(f"s_lshl_b32 s{S_T0}, s{S_T2}, 6         ; f0*16*4 bytes")
        a(f"v_lshlrev_b32 v5, 4, v4")
        a(f"v_add_u32 v5, s{S_T0}, v5")
        a(f"v_add_u32 v5, {self.LDS_CS}, v5")
        a(f"v_xor_b32 v6, 64, v5")
        assert self.LDS_CS % 128 == 0
        a(f"s_cmp_eq_u32 s{S_I}, 1")
        a(f"s_cbranch_scc0 {name}_nocs")
        set_exec(a, 0x8000800080008000)
        for wi, (areg, poff) in enumerate([(5, 0), (5, 256), (6, 0), (6, 256)]):
            acc = self.accmap[(6, wi)]
            a(f"ds_write_b128 v{areg}, v[{acc}:{acc+3}] offset:{poff}")
        a("s_mov_b64 exec, -1")
        a.label(f"{name}_nocs")
        a("s_waitcnt lgkmcnt(0)")
        a("s_barrier")
        CS = 8
        for wi, (areg, poff) in enumerate([(5, 0), (5, 256), (6, 0), (6, 256)]):
            a(f"ds_read_b128 v[{CS+4*wi}:{CS+4*wi+3}], v{areg} offset:{poff}")
        a(f"s_lshl_b32 s{S_T0}, s{S_I}, 7")
        a(f"v_add_u32 v24, s{S_T0}, v3")
        a(f"v_add_u32 v25, 112, v3")
        a(f"v_lshlrev_b32 v26, 3, v24")
        a(f"v_add_u32 v26, {self.LDS_ST}, v26")
        a(f"v_lshlrev_b32 v27, 3, v25")
        a(f"v_add_u32 v27, {self.LDS_ST}, v27")
        a(f"s_lshl_b32 s{S_T0}, s{S_T2}, 4         ; f0*16")
        a(f"s_add_u32 s{S_T0}, s{S_T0}, s{S_C0}")
        a(f"s_lshl_b32 s{S_T0}, s{S_T0}, 1")
        a(f"v_lshlrev_b32 v28, 3, v4")
        a(f"v_add_u32 v28, s{S_T0}, v28")
        a(f"s_mov_b32 s{S_T1}, 3456")
        a("v_mov_b32 v7, 0x80000000")
        for x in range(8):
            st = 152 + 2*(x & 1)
            if x < 7:
                a(f"ds_read_b64 v[{st}:{st+1}], v26 offset:{128*x}")
                a(f"v_add_u32 v29, {16*x}, v24")
            else:
                a(f"ds_read_b64 v[{st}:{st+1}], v27")
                a(f"v_mov_b32 v29, v25")
            a(f"v_cmp_gt_u32 vcc, {self.MV}, v29")
            a(f"v_add_u32 v29, s{S_R0}, v29")
            a(f"v_mul_lo_u32 v29, v29, s{S_T1}")
            a(f"v_add_u32 v29, v29, v28")
            a(f"v_cndmask_b32 v30, v7, v29, vcc    ; f0 addr")
            a(f"v_xor_b32 v29, 32, v29")
            a(f"v_cndmask_b32 v31, v7, v29, vcc    ; f1 addr")
            a("s_waitcnt lgkmcnt(0)")
            a(f"v_mul_f32 v{st+1}, v{st+1}, v{st+1}")
            for p in range(2):
                if x == 7 and p == 1: continue
                g = self.accmap[(x, 2*p)]; u = self.accmap[(x, 2*p+1)]
                cg = CS + 8*p; cu = CS + 8*p + 4
                for hh in (0, 2):
                    a(f"v_pk_fma_f32 v[{g+hh}:{g+hh+1}], v[{cg+hh}:{cg+hh+1}], v[{st}:{st+1}], v[{g+hh}:{g+hh+1}] op_sel_hi:[1,0,1] neg_lo:[0,1,0] neg_hi:[0,1,0]")
                    a(f"v_pk_fma_f32 v[{u+hh}:{u+hh+1}], v[{cu+hh}:{cu+hh+1}], v[{st}:{st+1}], v[{u+hh}:{u+hh+1}] op_sel_hi:[1,0,1] neg_lo:[0,1,0] neg_hi:[0,1,0]")
                for hh in (0, 2):
                    a(f"v_pk_mul_f32 v[{g+hh}:{g+hh+1}], v[{g+hh}:{g+hh+1}], v[{u+hh}:{u+hh+1}]")
                for hh in (0, 2):
                    a(f"v_pk_mul_f32 v[{g+hh}:{g+hh+1}], v[{g+hh}:{g+hh+1}], v[{st}:{st+1}] op_sel:[0,1] op_sel_hi:[1,1]")
                a(f"v_cvt_pk_bf16_f32 v{g}, v{g}, v{g+1}")
                a(f"v_cvt_pk_bf16_f32 v{g+1}, v{g+2}, v{g+3}")
                a(f"buffer_store_dwordx2 v[{g}:{g+1}], v{30+p}, s[{SRD_OUT}:{SRD_OUT+3}], 0 offen")
        a("s_waitcnt vmcnt(0)")

def att_kernel():
    a = Asm()
    name = "att_kernel"
    kernel_header(a, name)
    LQ, LK, LV = 0, 10240, 10240 + 28160
    load_ptrs(a)
    a("s_cmp_ge_u32 s2, 256")
    a(f"s_cbranch_scc1 {name}_exit")
    a("v_lshrrev_b32 v1, 6, v0")
    a("v_and_b32 v2, 63, v0")
    a("s_nop 0")
    a(f"v_readfirstlane_b32 s{S_WAVE}, v1")
    a("s_lshl_b32 s34, s2, 3      ; T0")
    a("s_waitcnt lgkmcnt(0)")
    srd(a, SRD_A, ptr(KA_WS), WS_QKV, S_TOK*NQKV*2)
    srd(a, SRD_OUT, ptr(KA_WS), WS_O, S_TOK*D*2)
    a(f"s_mov_b32 s{S_CNT}, s{S_WAVE}")
    a.label(f"{name}_dma")
    a(f"s_lshl_b32 s{S_T0}, s{S_CNT}, 6")
    a(f"v_add_u32 v3, s{S_T0}, v2           ; c")
    a(f"v_mul_u32_u24 v4, 52429, v3")
    a("v_lshrrev_b32 v4, 22, v4              ; rho = c/80")
    a("v_mul_u32_u24 v5, 80, v4")
    a("v_sub_u32 v5, v3, v5                  ; kap")
    a("v_cmp_le_u32 vcc, 8, v4")
    a("v_mov_b32 v6, 0")
    a("v_mov_b32 v7, 0")
    a("v_cndmask_b32 v6, v6, 1, vcc" .replace("v6, v6, 1", "v6, 0, 1"))
    a("v_cmp_le_u32 vcc, 30, v4")
    a("s_nop 1")
    a("v_cndmask_b32 v7, 0, 1, vcc")
    a("v_add_u32 v6, v6, v7                  ; seg 0,1,2")
    a("v_mul_u32_u24 v7, 22, v6")
    a("v_sub_u32 v7, v4, v7")
    a("v_add_u32 v7, s34, v7")
    a("v_mul_lo_u32 v7, v7, s35" .replace("s35", "s35"))
    a("v_mul_u32_u24 v6, 1280, v6")
    a("v_add_u32 v7, v7, v6")
    a("v_lshl_add_u32 v7, v5, 4, v7          ; voffset")
    a(f"s_lshl_b32 s{S_T0}, s{S_CNT}, 10")
    a(f"s_mov_b32 m0, s{S_T0}")
    a("s_nop 0")
    a(f"buffer_load_dwordx4 v7, s[{SRD_A}:{SRD_A+3}], 0 offen lds")
    a(f"s_add_u32 s{S_CNT}, s{S_CNT}, 4")
    a(f"s_cmp_lt_u32 s{S_CNT}, 65")
    a(f"s_cbranch_scc1 {name}_dma")
    a("s_waitcnt vmcnt(0)")
    a("s_barrier")
    a("v_lshrrev_b32 v3, 5, v0       ; tl")
    a("v_and_b32 v4, 31, v0          ; h")
    a("v_mul_u32_u24 v5, 40, v4")
    a("v_mul_u32_u24 v6, 1280, v3")
    a("v_add_u32 v6, v6, v5")
    Q = 16
    for i in range(5):
        a(f"ds_read_b64 v[{Q+2*i}:{Q+2*i+1}], v6 offset:{LQ + 8*i}")
    KV = 32
    LG = 120
    for w in range(8):
        off = LK + (14 - 2*w)*1280
        for i in range(5):
            a(f"ds_read_b64 v[{KV+10*w+2*i}:{KV+10*w+2*i+1}], v6 offset:{off + 8*i}")
        if w == 0 or w == 4:
            pass
    a("s_waitcnt lgkmcnt(0)")
    for w in range(8):
        a(f"v_mov_b32 v{LG+w}, 0")
    for i in range(10):
        for w in range(8):
            a(f"v_dot2_f32_bf16 v{LG+w}, v{Q+i}, v{KV+10*w+i}, v{LG+w}")
    a("s_nop 2")
    for w in range(8):
        off = LV + (14 - 2*w)*1280
        for i in range(5):
            a(f"ds_read_b64 v[{KV+10*w+2*i}:{KV+10*w+2*i+1}], v6 offset:{off + 8*i}")
    a("v_add_u32 v7, s34, v3         ; token")
    scale = (D // 32) ** -0.5
    c1 = scale * 1.4426950408889634
    a(f"s_mov_b32 s{S_T0}, {hex(f2u(c1))}")
    a(f"v_mov_b32 v8, {hex(f2u(-1e30))}")
    for w in range(8):
        a(f"v_mul_f32 v{LG+w}, s{S_T0}, v{LG+w}")
    for w in range(1, 8):
        a(f"v_cmp_le_u32 vcc, {2*w}, v7")
        a("s_nop 1")
        a(f"v_cndmask_b32 v{LG+w}, v8, v{LG+w}, vcc")
    a(f"v_max3_f32 v9, v{LG}, v{LG+1}, v{LG+2}")
    a(f"v_max3_f32 v9, v9, v{LG+3}, v{LG+4}")
    a(f"v_max3_f32 v9, v9, v{LG+5}, v{LG+6}")
    a(f"v_max_f32 v9, v9, v{LG+7}")
    for w in range(8):
        a(f"v_sub_f32 v{LG+w}, v{LG+w}, v9")
    for w in range(8):
        a(f"v_exp_f32 v{LG+w}, v{LG+w}")
    a("s_nop 0")
    a(f"v_add_f32 v9, v{LG}, v{LG+1}")
    for w in range(2, 8):
        a(f"v_add_f32 v9, v9, v{LG+w}")
    a("v_rcp_f32 v9, v9")
    a("s_nop 0")
    for w in range(8):
        a(f"v_mul_f32 v{LG+w}, v{LG+w}, v9")
    O = 128
    a("s_waitcnt lgkmcnt(0)")
    for i in range(10):
        for w in range(8):
            r = KV + 10*w + i
            a(f"v_lshlrev_b32 v10, 16, v{r}")
            a(f"v_and_b32 v11, 0xffff0000, v{r}")
            if w == 0:
                a(f"v_mul_f32 v{O+2*i}, v10, v{LG+w}")
                a(f"v_mul_f32 v{O+2*i+1}, v11, v{LG+w}")
            else:
                a(f"v_fmac_f32 v{O+2*i}, v10, v{LG+w}")
                a(f"v_fmac_f32 v{O+2*i+1}, v11, v{LG+w}")
    for i in range(10):
        a(f"v_cvt_pk_bf16_f32 v{Q+i}, v{O+2*i}, v{O+2*i+1}")
    a("v_mul_u32_u24 v7, 1280, v7")
    a("v_add_u32 v7, v7, v5")
    for i in range(5):
        a(f"buffer_store_dwordx2 v[{Q+2*i}:{Q+2*i+1}], v7, s[{SRD_OUT}:{SRD_OUT+3}], 0 offen offset:{8*i}")
    a("s_waitcnt vmcnt(0)")
    a.label(f"{name}_exit")
    a("s_endpgm")
    txt = a.L
    idx = [i for i, l in enumerate(txt) if "_dma:" in l][0]
    txt.insert(idx, "  s_mov_b32 s35, 3840")
    return a

HEADER = open("sequential_preLN__sliding_local_dilated__glu_gated_bilinear__prompt.s.ref").read().split("; Override")[0]

def main(out, only=None):
    phases = [P1(), None, P24(2), P3(), P24(4)]
    launches = [("p1_kernel", 256, 512, P1.LDS), ("att_kernel", 256, 256, 66560), ("p2_kernel", 256, 512, P24.LDS), ("p3_kernel", 256, 512, P3.LDS), ("p4_kernel", 256, 512, P24.LDS)]
    s = HEADER
    for (k, g, b, l) in launches:
        s += f"; @launch kernel={k} grid=({g},1,1) block=({b},1,1) lds={l}\n"
    s += '.amdgcn_target "amdgcn-amd-amdhsa--gfx950"\n.text\n'
    s += gemm_kernel(phases[0]).text()
    s += att_kernel().text()
    s += gemm_kernel(phases[2]).text()
    s += gemm_kernel(phases[3]).text()
    s += gemm_kernel(phases[4]).text()
    s += '.section .rodata,"a"\n.p2align 6\n'
    for (k, g, b, l) in launches:
        s += kernel_desc(k) + ".p2align 6\n"
    open(out, "w").write(s)

if __name__ == "__main__":
    main(sys.argv[1] if len(sys.argv) > 1 else "v1.s")
```

```python
import sys, struct

S_TOK, D, NQKV, F = 2048, 640, 1920, 1728
WS_QKV, WS_O, WS_H, WS_HH, WS_ST = 0, 0x800000, 0xB00000, 0x1000000, 0x1800000
KA_X, KA_WQKV, KA_WO, KA_BX, KA_WG, KA_WU, KA_WD, KA_OUT, KA_DBG, KA_WS = [8*i for i in range(10)]
ONES = 0x3F803F80
PROF = False
STAMP = 's_memrealtime'
WS_PROF = 0x1A00000
KIDX = {'p1_kernel': 0, 'att_kernel': 1, 'p2_kernel': 2, 'p3_kernel': 3, 'p4_kernel': 4}

def f2u(x):
    return struct.unpack("<I", struct.pack("<f", x))[0]

class Asm:
    def __init__(self):
        self.L = []
    def __call__(self, s):
        for line in s.split("\n"):
            line = line.strip()
            if line:
                self.L.append("  " + line)
    def label(self, n):
        self.L.append(n + ":")
    def raw(self, s):
        self.L.append(s)
    def text(self):
        return "\n".join(self.L) + "\n"

SRD_A, SRD_B0, SRD_B1, SRD_OUT, SRD_AUX, SRD_ST = 8, 12, 16, 20, 24, 28
S_RT, S_CT, S_R0, S_C0, S_WAVE, S_SLOT, S_CNT, S_T0, S_T1, S_T2 = 32, 33, 34, 35, 36, 37, 38, 39, 40, 41
S_AOFF, S_BOFF = 42, 43
S_PTR = 44
S_I, S_J, S_REND, S_K = 66, 67, 68, 69
ROT = True

def ptr(k): return S_PTR + k // 4

def stamp(a, i):
    if PROF:
        a(f'{STAMP} s[{70+2*i}:{71+2*i}]')

def prof_store(a, name):
    if not PROF: return
    a('s_waitcnt lgkmcnt(0) vmcnt(0)')
    stamp(a, 3)
    a('s_waitcnt lgkmcnt(0)')
    a(f's_add_u32 s80, s{ptr(KA_WS)}, {hex(WS_PROF + KIDX[name]*0x10000)}')
    a(f's_addc_u32 s81, s{ptr(KA_WS)+1}, 0')
    a('s_and_b32 s81, s81, 0xffff')
    a('s_mov_b32 s82, 0x10000')
    a('s_mov_b32 s83, 0x20000')
    a('s_lshl_b32 s84, s2, 3')
    a(f's_add_u32 s84, s84, s{S_WAVE}')
    a('s_lshl_b32 s84, s84, 5')
    for i in range(8): a(f'v_mov_b32 v{150+i}, s{70+i}')
    a('v_mov_b32 v149, s84')
    a('s_mov_b64 exec, 1')
    a('buffer_store_dwordx4 v[150:153], v149, s[80:83], 0 offen')
    a('buffer_store_dwordx4 v[154:157], v149, s[80:83], 0 offen offset:16')
    a('s_waitcnt vmcnt(0)')

def set_exec(a, mask):
    if mask == (1 << 64) - 1:
        a("s_mov_b64 exec, -1")
    else:
        a(f"s_mov_b32 exec_lo, {hex(mask & 0xffffffff)}")
        a(f"s_mov_b32 exec_hi, {hex(mask >> 32)}")

def srd(a, s, p, off, nbytes):
    if off:
        a(f"s_add_u32 s{s}, s{p}, {hex(off)}")
        a(f"s_addc_u32 s{s+1}, s{p+1}, 0")
    else:
        a(f"s_mov_b32 s{s}, s{p}")
        a(f"s_mov_b32 s{s+1}, s{p+1}")
    a(f"s_and_b32 s{s+1}, s{s+1}, 0xffff")
    a(f"s_mov_b32 s{s+2}, {hex(nbytes)}")
    a(f"s_mov_b32 s{s+3}, 0x20000")

def divc(a, dst, src, d):
    m = (65536 + d - 1) // d
    for x in range(0, 300):
        assert (x * m) >> 16 == x // d, (x, d)
    a(f"s_mul_i32 s{dst}, s{src}, {m}")
    a(f"s_lshr_b32 s{dst}, s{dst}, 16")

def kernel_header(a, name):
    a.raw(f".globl {name}")
    a.raw(".p2align 8")
    a.raw(f".type {name},@function")
    a.label(name)

def kernel_desc(name, vgpr=256, accum=160, sgpr=102):
    return f""".amdhsa_kernel {name}
  .amdhsa_next_free_vgpr {vgpr}
  .amdhsa_next_free_sgpr {sgpr}
  .amdhsa_accum_offset {accum}
  .amdhsa_group_segment_fixed_size 0
  .amdhsa_kernarg_size 80
  .amdhsa_user_sgpr_count 2
  .amdhsa_user_sgpr_kernarg_segment_ptr 1
  .amdhsa_system_sgpr_workgroup_id_x 1
  .amdhsa_float_denorm_mode_32 3
.end_amdhsa_kernel
"""

def load_ptrs(a):
    a(f"s_load_dwordx16 s[{S_PTR}:{S_PTR+15}], s[0:1], 0")
    a(f"s_load_dwordx4 s[{S_PTR+16}:{S_PTR+19}], s[0:1], 64")

def tile_map(a, name, NT, kind):
    PER = 32
    a(f"s_and_b32 s{S_T0}, s2, 7")
    a(f"s_lshr_b32 s{S_T1}, s2, 3")
    a(f"s_cmp_ge_u32 s{S_T1}, {PER}")
    a(f"s_cbranch_scc1 {name}_exit")
    a(f"s_mul_i32 s{S_T0}, s{S_T0}, {PER}")
    a(f"s_add_u32 s{S_T0}, s{S_T0}, s{S_T1}   ; t")
    a(f"s_cmp_ge_u32 s{S_T0}, {NT}")
    a(f"s_cbranch_scc1 {name}_exit")
    if kind == "p1":
        divc(a, S_T1, S_T0, 60)
        a(f"s_min_u32 s{S_T1}, s{S_T1}, 3      ; band")
        a(f"s_mul_i32 s{S_T2}, s{S_T1}, 60")
        a(f"s_sub_u32 s{S_T2}, s{S_T0}, s{S_T2}")
        divc(a, S_CT, S_T2, 4)
        divc(a, S_RT, S_T2, 5)
        a(f"s_cmp_eq_u32 s{S_T1}, 3")
        a(f"s_cselect_b32 s{S_CT}, s{S_RT}, s{S_CT}")
        a(f"s_cselect_b32 s{S_RT}, 5, 4")
        a(f"s_mul_i32 s{S_RT}, s{S_RT}, s{S_CT}")
        a(f"s_sub_u32 s{S_RT}, s{S_T2}, s{S_RT}")
        a(f"s_lshl_b32 s{S_T1}, s{S_T1}, 2")
        a(f"s_add_u32 s{S_RT}, s{S_RT}, s{S_T1}")
    elif kind == "p3":
        divc(a, S_T1, S_T0, 81)
        a(f"s_mul_i32 s{S_T2}, s{S_T1}, 81")
        a(f"s_sub_u32 s{S_T2}, s{S_T0}, s{S_T2}")
        divc(a, S_CT, S_T2, 3)
        a(f"s_mul_i32 s{S_RT}, s{S_CT}, 3")
        a(f"s_sub_u32 s{S_RT}, s{S_T2}, s{S_RT}")
        a(f"s_mul_i32 s{S_T1}, s{S_T1}, 3")
        a(f"s_add_u32 s{S_RT}, s{S_RT}, s{S_T1}")
    else:
        divc(a, S_RT, S_T0, 10)
        a(f"s_mul_i32 s{S_CT}, s{S_RT}, 10")
        a(f"s_sub_u32 s{S_CT}, s{S_T0}, s{S_CT}")

class Phase:
    has_e1 = False
    has_stage_work = False
    def loader_pre(self, a, w): pass
    def loader_post_first(self, a, w, n): pass
    def loader_stage_work(self, a, w): pass
    def loader_final(self, a, w): pass
    def store_pre(self, a): pass
    def rot_start(self, a):
        ca, cb, den = self.rot
        a(f"s_mul_i32 s{S_K}, s{S_CT}, {ca}")
        a(f"s_mul_i32 s{S_T0}, s{S_RT}, {cb}")
        a(f"s_add_u32 s{S_K}, s{S_K}, s{S_T0}")
        a(f"s_lshr_b32 s{S_K}, s{S_K}, {den}")
        m = (65536 + self.S - 1) // self.S
        for x in range(1024): assert (x*m) >> 16 == x // self.S
        a(f"s_mul_i32 s{S_T0}, s{S_K}, {m}")
        a(f"s_lshr_b32 s{S_T0}, s{S_T0}, 16")
        a(f"s_mul_i32 s{S_T0}, s{S_T0}, {self.S}")
        a(f"s_sub_u32 s{S_K}, s{S_K}, s{S_T0}")

def gemm_kernel(P):
    a = Asm()
    name = P.name
    kernel_header(a, name)
    stamp(a, 0)
    load_ptrs(a)
    a("v_lshrrev_b32 v1, 6, v0")
    a("v_and_b32 v2, 63, v0      ; lane")
    tile_map(a, name, P.NT, P.kind)
    a(f"v_readfirstlane_b32 s{S_WAVE}, v1")
    a(f"s_mul_i32 s{S_R0}, s{S_RT}, {P.MV}")
    a(f"s_mul_i32 s{S_C0}, s{S_CT}, {P.NC}")
    a(f"s_add_u32 s{S_REND}, s{S_R0}, {P.MV}")
    a(f"s_min_u32 s{S_REND}, s{S_REND}, {S_TOK}")
    a(f"s_cmp_ge_u32 s{S_WAVE}, 4")
    a(f"s_cbranch_scc1 {name}_loader")
    consumer(a, P)
    a(f"s_branch {name}_store")
    a.label(f"{name}_loader")
    loader(a, P)
    a.label(f"{name}_store")
    store_pass(a, P)
    prof_store(a, name)
    a.label(f"{name}_exit")
    a("s_endpgm")
    return a

def wait_ptrs_and_srds(a, P):
    a("s_waitcnt lgkmcnt(0)")
    P.build_srds(a)

def loader(a, P):
    name = P.name
    a("v_lshrrev_b32 v3, 3, v2      ; r8")
    a("v_and_b32 v4, 7, v2          ; p")
    a("v_lshrrev_b32 v5, 1, v3      ; r8>>1")
    a("v_xor_b32 v6, v4, v5")
    a("v_lshlrev_b32 v6, 4, v6")
    a(f"v_add_u32 v7, s{S_R0}, v3")
    a(f"s_mov_b32 s{S_T0}, {P.lda}")
    a(f"v_mul_lo_u32 v7, v7, s{S_T0}")
    a("v_add_u32 v7, v7, v6")
    a("v_and_b32 v8, 1, v5")
    a("v_lshlrev_b32 v8, 1, v8")
    a("v_xor_b32 v8, v4, v8")
    a("v_lshlrev_b32 v8, 4, v8")
    a(f"s_mov_b32 s{S_T0}, {P.ldb}")
    a(f"v_mul_lo_u32 v9, v3, s{S_T0}")
    a("v_add_u32 v9, v9, v8")
    a(f"s_lshl_b32 s{S_T1}, s{S_C0}, 1")
    a(f"v_add_u32 v9, s{S_T1}, v9")
    for w in range(3):
        a(f"s_cmp_eq_u32 s{S_WAVE}, {5+w}")
        a(f"s_cbranch_scc1 {name}_ld{w+1}")
    for w in range(4):
        a.label(f"{name}_ld{w}")
        loader_wave(a, P, w)
        if w < 3:
            a(f"s_branch {name}_store")

def loader_wave(a, P, w):
    name = P.name
    ins = P.dma[w]
    n = len(ins)
    VB = 32
    for t, it in enumerate(ins):
        if it[0] == 'A':
            i = it[1]
            a(f"v_add_u32 v{VB+t}, {i * 8 * P.lda}, v7")
            if i & 1: a(f"v_xor_b32 v{VB+t}, 64, v{VB+t}")
        else:
            pn, i = it[1], it[2]
            a(f"v_add_u32 v{VB+t}, {i * 8 * P.ldb + P.panel_coloff[pn]}, v9")
            if i & 1: a(f"v_xor_b32 v{VB+t}, 64, v{VB+t}")
    a(f"s_mov_b32 s{S_SLOT}, 0")
    if ROT:
        P.rot_start(a)
    else:
        a(f"s_mov_b32 s{S_K}, 0")
    a(f"s_lshl_b32 s{S_AOFF}, s{S_K}, 7")
    a(f"s_mul_i32 s{S_BOFF}, s{S_K}, {64*P.ldb}")
    wait_ptrs_and_srds(a, P)
    def issue():
        for t, it in enumerate(ins):
            if it[0] == 'A':
                ldsoff = it[1] * 1024; sr, so = SRD_A, S_AOFF; mask = it[2]
            else:
                ldsoff = P.ABYTES + it[1] * 8192 + it[2] * 1024
                sr = P.panel_srd[it[1]]; so = S_BOFF; mask = None
            a(f"s_add_u32 m0, s{S_SLOT}, {ldsoff}")
            if mask is not None: set_exec(a, mask)
            else: a("s_nop 0")
            a(f"buffer_load_dwordx4 v{VB+t}, s[{sr}:{sr+3}], s{so} offen lds")
            if mask is not None: a("s_mov_b64 exec, -1")
        a(f"s_add_u32 s{S_K}, s{S_K}, 1")
        a(f"s_cmp_ge_u32 s{S_K}, {P.S}")
        a(f"s_cselect_b32 s{S_K}, 0, s{S_K}")
        a(f"s_lshl_b32 s{S_AOFF}, s{S_K}, 7")
        a(f"s_mul_i32 s{S_BOFF}, s{S_K}, {64*P.ldb}")
        a(f"s_add_u32 s{S_SLOT}, s{S_SLOT}, {P.STAGE}")
        a(f"s_cmp_ge_u32 s{S_SLOT}, {P.STAGE*P.NS}")
        a(f"s_cselect_b32 s{S_SLOT}, 0, s{S_SLOT}")
    NS, S = P.NS, P.S
    L = []
    for s in range(S):
        cap = (NS - 1) if s == 0 else s + NS - 2
        prev = L[-1] if L else -1
        L.append(min(S - 1, cap, prev + 2))
    extra = P.loader_pre(a, w)
    prev = -1
    s = 0
    uid = 0
    while s < S:
        k = L[s] - prev
        e = s
        while e + 1 < S and k == 1 and L[e+1] - L[e] == 1 and (L[e+1] - (e+1)) == (L[s] - s): e += 1
        if k == 1 and e - s >= 2:
            cnt = e - s + 1
            a(f"s_mov_b32 s{S_CNT}, {cnt}")
            a.label(f"{name}_ld{w}_main{uid}")
            issue()
            if P.has_stage_work and s > 0: P.loader_stage_work(a, w)
            a(f"s_waitcnt vmcnt({(L[s]-s)*n})")
            if P.has_stage_work or s == 0: a("s_waitcnt lgkmcnt(0)")
            a("s_barrier")
            a(f"s_sub_u32 s{S_CNT}, s{S_CNT}, 1")
            a(f"s_cmp_lg_u32 s{S_CNT}, 0")
            a(f"s_cbranch_scc1 {name}_ld{w}_main{uid}")
            uid += 1
            prev = L[e]; s = e + 1
            continue
        for _ in range(k): issue()
        extra = 0
        if s == 0:
            stamp(a, 1)
            extra = P.loader_post_first(a, w, (L[0]+1)*n) or 0
        if P.has_stage_work and s > 0: P.loader_stage_work(a, w)
        a(f"s_waitcnt vmcnt({(L[s]-s)*n + extra})")
        if P.has_stage_work or s == 0: a("s_waitcnt lgkmcnt(0)")
        a("s_barrier")
        prev = L[s]; s += 1
    stamp(a, 2)
    if P.has_stage_work: P.loader_stage_work(a, w)
    P.loader_final(a, w)
    if P.has_e1:
        a("s_waitcnt lgkmcnt(0)")
        a("s_barrier")
    P.store_pre(a)
    a("s_barrier")

def consumer(a, P):
    name = P.name
    P.consumer_setup(a)
    NW = len(P.wlist)
    XF = [0, 4*P.NXMAX]
    WF = [8*P.NXMAX, 8*P.NXMAX + 4*NW]
    def reads(kk, buf):
        r = []
        for wi, (areg, off) in enumerate(P.wlist):
            base = WF[buf] + 4*wi
            r.append(f"ds_read_b64_tr_b16 a[{base}:{base+1}], v{areg} offset:{off + kk*4096}")
            r.append(f"ds_read_b64_tr_b16 a[{base+2}:{base+3}], v{areg} offset:{off + kk*4096 + 512}")
        for xi, (areg0, areg1, off) in enumerate(P.xlist):
            base = XF[buf] + 4*xi
            areg = areg0 if kk == 0 else areg1
            r.append(f"ds_read_b128 a[{base}:{base+3}], v{areg} offset:{off}")
        return r
    def mfmas(buf, first=False):
        m = []
        for (xi, wi, acc) in P.mf:
            c = "0" if first else f"v[{acc}:{acc+3}]"
            m.append(f"v_mfma_f32_16x16x32_bf16 v[{acc}:{acc+3}], a[{WF[buf]+4*wi}:{WF[buf]+4*wi+3}], a[{XF[buf]+4*xi}:{XF[buf]+4*xi+3}], {c}")
        return m
    def block(m, r, fill=()):
        q = list(r)
        fl = list(fill)
        for i, x in enumerate(m):
            a(x)
            k = 0
            while q and k < P.RPM:
                a(q.pop(0)); k += 1
            if not q and k == 0 or (not q and k < 2):
                while fl and k < 2:
                    a(fl.pop(0)); k += 1
        for x in q: a(x)
        for x in fl: a(x)
    def slot_adv():
        return [f"s_add_u32 s{S_SLOT}, s{S_SLOT}, {P.STAGE}",
                f"s_cmp_ge_u32 s{S_SLOT}, {P.STAGE*P.NS}",
                f"s_cselect_b32 s{S_SLOT}, 0, s{S_SLOT}"]
    a(f"s_mov_b32 s{S_SLOT}, 0")
    for x in P.addr_update(): a(x)
    wait_ptrs_and_srds(a, P)
    P.consumer_pre(a)
    a("s_barrier")
    stamp(a, 1)
    for x in reads(0, 0): a(x)
    a(f"s_mov_b32 s{S_CNT}, {P.S-1}")
    a("s_waitcnt lgkmcnt(0)")
    block(mfmas(0, first=True), reads(1, 1), slot_adv() + P.addr_update())
    a.label(f"{name}_cloop")
    a("s_waitcnt lgkmcnt(0)")
    a("s_barrier")
    block(mfmas(1), reads(0, 0), [f"s_sub_u32 s{S_CNT}, s{S_CNT}, 1"])
    a("s_waitcnt lgkmcnt(0)")
    block(mfmas(0), reads(1, 1), slot_adv() + P.addr_update() + [f"s_cmp_lg_u32 s{S_CNT}, 0"])
    a(f"s_cbranch_scc1 {name}_cloop")
    a("s_waitcnt lgkmcnt(0)")
    block(mfmas(1), [])
    stamp(a, 2)
    a("s_nop 7")
    P.epilogue(a)
    a("s_waitcnt lgkmcnt(0)")
    P.store_pre(a)
    a("s_barrier")

def cons_lane(a):
    a("v_and_b32 v3, 15, v2")
    a("v_lshrrev_b32 v4, 4, v2")

def x_addr_const(a, dst, rowbase_sgpr, rowbase_const=0):
    a("v_lshrrev_b32 v5, 1, v3")
    a("v_xor_b32 v5, v4, v5")
    a("v_lshlrev_b32 v5, 4, v5")
    a(f"v_lshl_add_u32 v{dst}, v3, 7, v5")
    if rowbase_sgpr is not None:
        a(f"s_lshl_b32 s{S_T0}, s{rowbase_sgpr}, 7")
        a(f"v_add_u32 v{dst}, s{S_T0}, v{dst}")
    if rowbase_const:
        a(f"v_add_u32 v{dst}, {rowbase_const*128}, v{dst}")

def w_addr_const(a, dst):
    a("v_lshrrev_b32 v5, 2, v3        ; r")
    a("v_lshl_add_u32 v6, v4, 3, v5   ; 8g+r")
    a("v_lshlrev_b32 v6, 7, v6")
    a("v_lshrrev_b32 v5, 1, v5        ; r>>1")
    a("v_and_b32 v7, 1, v4")
    a("v_lshl_or_b32 v5, v7, 1, v5    ; h")
    a("v_lshl_add_u32 v6, v5, 5, v6")
    a("v_and_b32 v5, 3, v3")
    a(f"v_lshl_add_u32 v{dst}, v5, 3, v6")

def t_write_addr(a, dst, base_const):
    a("v_lshrrev_b32 v5, 1, v4")
    a("v_and_b32 v6, 7, v3")
    a("v_xor_b32 v5, v5, v6")
    a("v_lshlrev_b32 v5, 4, v5")
    a("v_and_b32 v6, 1, v4")
    a("v_lshl_add_u32 v5, v6, 3, v5")
    a(f"v_lshl_add_u32 v{dst}, v3, 7, v5")
    a(f"v_add_u32 v{dst}, {base_const}, v{dst}")

def pad_init(a, w, P, row0, nzero_rows, ones_row):
    a("v_mov_b32 v12, 0"); a("v_mov_b32 v13, 0"); a("v_mov_b32 v14, 0"); a("v_mov_b32 v15, 0")
    a(f"v_mov_b32 v10, {hex(ONES)}")
    a("v_lshlrev_b32 v11, 4, v2        ; lane*16")
    for sl in range(w, P.NS, 4):
        base = sl*P.STAGE + row0*128
        nb = nzero_rows*128
        off = 0
        while off < nb:
            lanes = min(64, (nb - off)//16)
            if lanes < 64: set_exec(a, (1 << lanes) - 1)
            a(f"v_add_u32 v16, {base + off}, v11")
            a("ds_write_b128 v16, v[12:15]")
            if lanes < 64: a("s_mov_b64 exec, -1")
            off += lanes*16
        if ones_row is not None:
            a(f"v_lshlrev_b32 v16, 2, v2")
            a(f"v_add_u32 v16, {sl*P.STAGE + ones_row*128}, v16")
            set_exec(a, 0xffffffff)
            a("ds_write_b32 v16, v10")
            a("s_mov_b64 exec, -1")

def store_pass(a, P):
    name = P.name
    a("v_lshrrev_b32 v3, 3, v2")
    a("v_and_b32 v4, 7, v2")
    a("v_xor_b32 v5, v4, v3")
    a("v_lshlrev_b32 v5, 4, v5")
    a("v_lshl_add_u32 v5, v3, 7, v5")
    a(f"s_lshl_b32 s{S_T0}, s{S_WAVE}, 10")
    a(f"v_add_u32 v5, s{S_T0}, v5")
    a(f"v_add_u32 v5, {P.TBASE}, v5")
    a(f"s_lshl_b32 s{S_T0}, s{S_WAVE}, 3")
    a(f"s_add_u32 s{S_T0}, s{S_T0}, s{S_R0}")
    a(f"v_add_u32 v6, s{S_T0}, v3")
    a(f"s_mov_b32 s{S_T1}, {P.ldo}")
    a(f"v_mul_lo_u32 v7, v6, s{S_T1}")
    a(f"s_lshl_b32 s{S_T0}, s{S_C0}, 1")
    a(f"v_lshl_add_u32 v7, v4, 4, v7")
    a(f"v_add_u32 v7, s{S_T0}, v7")
    a("v_mov_b32 v8, 0x80000000")
    P.store_body(a)

def store_addr(a, k, dst, P, coloff=0):
    a(f"v_add_u32 v9, {64*k}, v6")
    a(f"v_cmp_gt_u32 vcc, s{S_REND}, v9")
    a(f"v_add_u32 v{dst}, {64*k*P.ldo + coloff}, v7")
    a("s_nop 0")
    a(f"v_cndmask_b32 v{dst}, v8, v{dst}, vcc")

class P1(Phase):
    name = "p1_kernel"; kind = "p1"; NT = 255
    MV = 121; NC = 128; lda = 1280; ldb = 3840; ldo = 3840
    ABYTES = 16384; STAGE = 32768; NS = 4; S = 10
    NXMAX = 4; RPM = 2
    has_stage_work = True; has_e1 = True
    panel_coloff = [0, 128]; panel_srd = [SRD_B0, SRD_B0]
    LDS_ST = 131072; LDS_CS = 131072 + 1024; LDS = 131072 + 1024 + 512
    TBASE = 2*32768
    rot = (5, 10, 2)
    def __init__(self):
        self.dma = []
        for w in range(4):
            l = []
            for t in range(4):
                i = 4*w + t
                l.append(('A', i, 0xFF if i == 15 else None))
            for t in range(4):
                l.append(('B', w >> 1, 4*(w & 1) + t))
            self.dma.append(l)
        self.vXc, self.vWc = 8, 9
        self.vXa, self.vXb = 10, 11
        self.vW = [12, 13, 14, 15]
        self.xlist = [(self.vXa, self.vXb, 2048*x) for x in range(4)]
        self.wlist = [(self.vW[f], self.ABYTES) for f in range(4)]
        self.ACC = 32
        self.mf = [(x, f, self.ACC + 4*(4*x + f)) for x in range(4) for f in range(4)]
    def build_srds(self, a):
        srd(a, SRD_A, ptr(KA_X), 0, S_TOK*D*2)
        srd(a, SRD_B0, ptr(KA_WQKV), 0, D*NQKV*2)
        srd(a, SRD_OUT, ptr(KA_WS), WS_QKV, S_TOK*NQKV*2)
    def loader_pre(self, a, w):
        return 0
    def loader_post_first(self, a, w, n):
        pad_init(a, w, self, 121, 6, 127)
        a("v_lshrrev_b32 v12, 1, v2")
        a(f"v_add_u32 v12, {32*w}, v12        ; row")
        a("v_lshlrev_b32 v12, 7, v12")
        a("v_and_b32 v13, 1, v2")
        a("v_lshl_add_u32 v12, v13, 6, v12")
        a("v_lshrrev_b32 v13, 2, v2")
        for t in range(4):
            a(f"v_add_u32 v14, {t}, v13")
            a("v_and_b32 v14, 3, v14")
            a(f"v_lshl_add_u32 v{16+t}, v14, 4, v12")
        a("v_mov_b32 v24, 0"); a("v_mov_b32 v25, 0"); a("v_mov_b32 v26, 0"); a("v_mov_b32 v27, 0")
        a(f"s_mov_b32 s{S_T2}, 0")
    def loader_stage_work(self, a, w):
        for t in range(4):
            a(f"v_add_u32 v{20+t}, s{S_T2}, v{16+t}")
        for t in range(4):
            a(f"ds_read_b128 v[{64+4*t}:{67+4*t}], v{20+t}")
        a(f"s_add_u32 s{S_T2}, s{S_T2}, {self.STAGE}")
        a(f"s_cmp_ge_u32 s{S_T2}, {self.STAGE*self.NS}")
        a(f"s_cselect_b32 s{S_T2}, 0, s{S_T2}")
        for t in range(4):
            a(f"s_waitcnt lgkmcnt({3-t})")
            for d in range(4):
                r = 64 + 4*t + d
                s_, q_ = (24, 25) if d & 1 == 0 else (26, 27)
                a(f"v_dot2_f32_bf16 v{s_}, v{r}, v10, v{s_}")
                a(f"v_dot2_f32_bf16 v{q_}, v{r}, v{r}, v{q_}")
    def loader_final(self, a, w):
        a("s_nop 3")
        a("v_add_f32 v24, v24, v26")
        a("v_add_f32 v25, v25, v27")
        a("s_nop 1")
        a("v_add_f32_dpp v24, v24, v24 quad_perm:[1,0,3,2] row_mask:0xf bank_mask:0xf")
        a("v_add_f32_dpp v25, v25, v25 quad_perm:[1,0,3,2] row_mask:0xf bank_mask:0xf")
        a(f"v_mul_f32 v24, {hex(f2u(1.0/D))}, v24")
        a(f"v_mul_f32 v25, {hex(f2u(1.0/D))}, v25")
        a("v_fma_f32 v25, -v24, v24, v25      ; var")
        a(f"v_add_f32 v25, {hex(f2u(1e-5))}, v25")
        a("v_rsq_f32 v25, v25")
        a("v_lshrrev_b32 v12, 1, v2")
        a(f"v_add_u32 v12, {32*w}, v12")
        a("v_lshlrev_b32 v12, 3, v12")
        a(f"v_add_u32 v12, {self.LDS_ST}, v12")
        set_exec(a, 0x5555555555555555)
        a("ds_write_b64 v12, v[24:25]")
        a("s_mov_b64 exec, -1")
    def consumer_setup(self, a):
        cons_lane(a)
        a(f"s_lshr_b32 s{S_I}, s{S_WAVE}, 1")
        a(f"s_and_b32 s{S_J}, s{S_WAVE}, 1")
        a(f"s_lshl_b32 s{S_T1}, s{S_I}, 6")
        x_addr_const(a, self.vXc, S_T1)
        w_addr_const(a, self.vWc)
        a(f"s_lshl_b32 s{S_T0}, s{S_J}, 13")
        a(f"v_add_u32 v{self.vWc}, s{S_T0}, v{self.vWc}")
    def consumer_pre(self, a): pass
    def addr_update(self):
        r = [f"v_add_u32 v{self.vXa}, s{S_SLOT}, v{self.vXc}",
             f"v_add_u32 v{self.vW[0]}, s{S_SLOT}, v{self.vWc}",
             f"v_xor_b32 v{self.vXb}, 64, v{self.vXa}"]
        for f in range(1, len(self.vW)):
            r.append(f"v_xor_b32 v{self.vW[f]}, {32*f}, v{self.vW[0]}")
        return r
    def epilogue(self, a):
        name = self.name
        a(f"s_lshl_b32 s{S_T0}, s{S_J}, 8       ; j*64*4")
        a(f"v_lshlrev_b32 v16, 4, v4            ; g*16 bytes")
        a(f"v_add_u32 v16, s{S_T0}, v16")
        a(f"v_add_u32 v16, {self.LDS_CS}, v16")
        a(f"s_cmp_eq_u32 s{S_I}, 1")
        a(f"s_cbranch_scc0 {name}_nocs")
        set_exec(a, 0x8000800080008000)
        for f in range(4):
            acc = self.ACC + 4*(4*3 + f)
            a(f"ds_write_b128 v16, v[{acc}:{acc+3}] offset:{64*f}")
        a("s_mov_b64 exec, -1")
        a.label(f"{name}_nocs")
        t_write_addr(a, 17, self.TBASE)
        a(f"s_lshl_b32 s{S_T0}, s{S_J}, 14")
        a(f"s_lshl_b32 s{S_T1}, s{S_I}, 13")
        a(f"s_add_u32 s{S_T0}, s{S_T0}, s{S_T1}")
        a(f"v_add_u32 v17, s{S_T0}, v17")
        for f in range(1, 4): a(f"v_xor_b32 v{17+f}, {32*f}, v17")
        a(f"s_lshl_b32 s{S_T0}, s{S_I}, 9       ; i*64*8")
        a(f"v_lshlrev_b32 v6, 3, v3")
        a(f"v_add_u32 v6, s{S_T0}, v6")
        a(f"v_add_u32 v6, {self.LDS_ST}, v6")
        a("s_waitcnt lgkmcnt(0)")
        a("s_barrier")
        CS = 96; ST = 112
        for f in range(4):
            a(f"ds_read_b128 v[{CS+4*f}:{CS+4*f+3}], v16 offset:{64*f}")
        for x in range(4):
            a(f"ds_read_b64 v[{ST+2*x}:{ST+2*x+1}], v6 offset:{128*x}")
        a("s_waitcnt lgkmcnt(0)")
        for x in range(4):
            st = ST + 2*x
            for f in range(4):
                acc = self.ACC + 4*(4*x + f)
                for hh in (0, 2):
                    a(f"v_pk_fma_f32 v[{acc+hh}:{acc+hh+1}], v[{CS+4*f+hh}:{CS+4*f+hh+1}], v[{st}:{st+1}], v[{acc+hh}:{acc+hh+1}] op_sel_hi:[1,0,1] neg_lo:[0,1,0] neg_hi:[0,1,0]")
                for hh in (0, 2):
                    a(f"v_pk_mul_f32 v[{acc+hh}:{acc+hh+1}], v[{acc+hh}:{acc+hh+1}], v[{st}:{st+1}] op_sel:[0,1] op_sel_hi:[1,1]")
                a(f"v_cvt_pk_bf16_f32 v{acc}, v{acc}, v{acc+1}")
                a(f"v_cvt_pk_bf16_f32 v{acc+1}, v{acc+2}, v{acc+3}")
                a(f"ds_write_b64 v{17+f}, v[{acc}:{acc+1}] offset:{2048*x}")
    def store_body(self, a):
        for k in range(2):
            for pn in range(2):
                r = 16 + 4*(2*k + pn)
                a(f"ds_read_b128 v[{r}:{r+3}], v5 offset:{pn*16384 + k*8192}")
        for k in range(2):
            store_addr(a, k, 10 + k, self)
        for k in range(2):
            for pn in range(2):
                r = 16 + 4*(2*k + pn)
                a(f"s_waitcnt lgkmcnt({3 - (2*k+pn)})")
                a(f"buffer_store_dwordx4 v[{r}:{r+3}], v{10+k}, s[{SRD_OUT}:{SRD_OUT+3}], 0 offen offset:{128*pn}")
        a("s_waitcnt vmcnt(0)")

class P24(Phase):
    kind = "rm"; NT = 250
    MV = 82; NC = 64; ldb = 1280; ldo = 1280
    ABYTES = 12288; STAGE = 20480; NS = 7
    NXMAX = 3; RPM = 2
    panel_coloff = [0]; panel_srd = [SRD_B0]
    LDS = 20480*7
    TBASE = 0
    def __init__(self, which):
        self.which = which
        if which == 2:
            self.name = "p2_kernel"; self.lda = 1280; self.S = 10; self.rot = (4, 13, 2)
        else:
            self.name = "p4_kernel"; self.lda = 3456; self.S = 27; self.rot = (11, 36, 2)
        assert (self.S - 1) % self.NS != 0
        allins = [('A', i, (0xFFFF if i == 10 else None)) for i in range(11)] + [('B', 0, i) for i in range(8)]
        self.dma = [allins[w::4] for w in range(4)]
        self.vXc, self.vWc = 8, 9
        self.vXa, self.vXb = 10, 11
        self.vW = [12, 13]
        self.xlist = [(self.vXa, self.vXb, 2048*x) for x in range(3)]
        self.wlist = [(self.vW[f], self.ABYTES) for f in range(2)]
        self.ACC = 32
        self.mf = [(x, f, self.ACC + 4*(2*x + f)) for x in range(3) for f in range(2)]
    def build_srds(self, a):
        if self.which == 2:
            srd(a, SRD_A, ptr(KA_WS), WS_O, S_TOK*D*2)
            srd(a, SRD_B0, ptr(KA_WO), 0, D*D*2)
            srd(a, SRD_OUT, ptr(KA_WS), WS_H, S_TOK*D*2)
            srd(a, SRD_AUX, ptr(KA_X), 0, S_TOK*D*2)
            srd(a, SRD_ST, ptr(KA_WS), WS_ST, 10*S_TOK*8)
        else:
            srd(a, SRD_A, ptr(KA_WS), WS_HH, S_TOK*F*2)
            srd(a, SRD_B0, ptr(KA_WD), 0, F*D*2)
            srd(a, SRD_OUT, ptr(KA_OUT), 0, S_TOK*D*2)
            srd(a, SRD_AUX, ptr(KA_WS), WS_H, S_TOK*D*2)
    def loader_pre(self, a, w): return 0
    def loader_post_first(self, a, w, n):
        pad_init(a, w, self, 82, 14, None)
    def consumer_setup(self, a):
        cons_lane(a)
        a(f"s_lshr_b32 s{S_I}, s{S_WAVE}, 1")
        a(f"s_and_b32 s{S_J}, s{S_WAVE}, 1")
        a(f"s_mul_i32 s{S_T1}, s{S_I}, 48")
        x_addr_const(a, self.vXc, S_T1)
        w_addr_const(a, self.vWc)
        a(f"s_lshl_b32 s{S_T0}, s{S_J}, 6      ; f0 = 2j -> xor 64j")
        a(f"v_xor_b32 v{self.vWc}, s{S_T0}, v{self.vWc}")
    def consumer_pre(self, a): pass
    def addr_update(self):
        return P1.addr_update(self)
    def epilogue(self, a):
        t_write_addr(a, 17, self.TBASE)
        a(f"s_mul_i32 s{S_T0}, s{S_I}, {48*128}")
        a(f"v_add_u32 v17, s{S_T0}, v17")
        a(f"s_lshl_b32 s{S_T0}, s{S_J}, 6")
        a(f"v_xor_b32 v17, s{S_T0}, v17        ; f0 = 2j")
        a(f"v_xor_b32 v18, 32, v17")
        for x in range(3):
            for f in range(2):
                acc = self.ACC + 4*(2*x + f)
                a(f"v_cvt_pk_bf16_f32 v{acc}, v{acc}, v{acc+1}")
                a(f"v_cvt_pk_bf16_f32 v{acc+1}, v{acc+2}, v{acc+3}")
                a(f"ds_write_b64 v{17+f}, v[{acc}:{acc+1}] offset:{2048*x}")
    RES = 100
    def store_pre(self, a):
        a("v_lshrrev_b32 v20, 3, v2")
        a("v_and_b32 v21, 7, v2")
        a(f"s_lshl_b32 s{S_T0}, s{S_WAVE}, 3")
        a(f"s_add_u32 s{S_T0}, s{S_T0}, s{S_R0}")
        a(f"v_add_u32 v20, s{S_T0}, v20")
        a("v_mul_u32_u24 v20, 1280, v20")
        a(f"s_lshl_b32 s{S_T0}, s{S_C0}, 1")
        a("v_lshl_add_u32 v20, v21, 4, v20")
        a(f"v_add_u32 v20, s{S_T0}, v20")
        a(f"buffer_load_dwordx4 v[{self.RES}:{self.RES+3}], v20, s[{SRD_AUX}:{SRD_AUX+3}], 0 offen")
        a(f"v_add_u32 v20, {64*1280}, v20")
        a(f"buffer_load_dwordx4 v[{self.RES+4}:{self.RES+7}], v20, s[{SRD_AUX}:{SRD_AUX+3}], 0 offen")
    def store_body(self, a):
        name = self.name
        for k in range(2):
            a(f"ds_read_b128 v[{16+4*k}:{19+4*k}], v5 offset:{k*8192}")
        for k in range(2):
            store_addr(a, k, 10 + k, self)
        if self.which == 2:
            a(f"v_mov_b32 v26, {hex(ONES)}")
        for k in range(2):
            if k == 1:
                a(f"s_cmp_ge_u32 s{S_WAVE}, 3")
                a(f"s_cbranch_scc1 {name}_sdone")
            if k == 0: a(f"s_waitcnt vmcnt(0) lgkmcnt(0)")
            T = 16 + 4*k; R = self.RES + 4*k
            for d in range(4):
                a(f"v_lshlrev_b32 v28, 16, v{T+d}")
                a(f"v_and_b32 v29, 0xffff0000, v{T+d}")
                a(f"v_lshlrev_b32 v30, 16, v{R+d}")
                a(f"v_and_b32 v31, 0xffff0000, v{R+d}")
                a(f"v_pk_add_f32 v[28:29], v[28:29], v[30:31]")
                a(f"v_cvt_pk_bf16_f32 v{T+d}, v28, v29")
            a(f"buffer_store_dwordx4 v[{T}:{T+3}], v{10+k}, s[{SRD_OUT}:{SRD_OUT+3}], 0 offen")
            if self.which == 2:
                a("v_mov_b32 v24, 0"); a("v_mov_b32 v25, 0")
                a("s_nop 0")
                for d in range(4):
                    a(f"v_dot2_f32_bf16 v24, v{T+d}, v26, v24")
                    a(f"v_dot2_f32_bf16 v25, v{T+d}, v{T+d}, v25")
                a("s_nop 2")
                for dpp in ("quad_perm:[1,0,3,2]", "quad_perm:[2,3,0,1]", "row_half_mirror"):
                    a(f"v_add_f32_dpp v24, v24, v24 {dpp} row_mask:0xf bank_mask:0xf")
                    a(f"v_add_f32_dpp v25, v25, v25 {dpp} row_mask:0xf bank_mask:0xf")
                    a("s_nop 0")
                a(f"v_add_u32 v9, {64*k}, v6")
                a(f"v_cmp_gt_u32 vcc, s{S_REND}, v9")
                a(f"s_mul_i32 s{S_T0}, s{S_CT}, {S_TOK}")
                a(f"v_add_u32 v9, s{S_T0}, v9")
                a("v_lshlrev_b32 v9, 3, v9")
                a("v_cndmask_b32 v9, v8, v9, vcc")
                set_exec(a, 0x0101010101010101)
                a(f"buffer_store_dwordx2 v[24:25], v9, s[{SRD_ST}:{SRD_ST+3}], 0 offen")
                a("s_mov_b64 exec, -1")
        a.label(f"{name}_sdone")
        a("s_waitcnt vmcnt(0)")

class P3(Phase):
    name = "p3_kernel"; kind = "p3"; NT = 243
    MV = 228; NC = 64; lda = 1280; ldb = 3456; ldo = 3456
    ABYTES = 30720; STAGE = 47104; NS = 3; S = 10
    NXMAX = 8; RPM = 1
    has_e1 = True
    panel_coloff = [0, 0]; panel_srd = [SRD_B0, SRD_B1]
    LDS_ST = 47104*3; LDS_CS = 47104*3 + 1920; LDS = 47104*3 + 1920 + 512
    TBASE = 47104
    rot = (4, 13, 2)
    def __init__(self):
        allins = [('A', i, (0xFFFFFFFF if i == 28 else None)) for i in range(29)] + [('B', pn, i) for pn in range(2) for i in range(8)]
        self.dma = [allins[w::4] for w in range(4)]
        self.vXc, self.vXsc, self.vWc = 8, 9, 10
        self.vXa, self.vXb, self.vXsa, self.vXsb = 11, 12, 13, 14
        self.vW = [15, 16]
        self.xlist = [(self.vXa, self.vXb, 2048*x) for x in range(7)] + [(self.vXsa, self.vXsb, 0)]
        G, U = self.ABYTES, self.ABYTES + 8192
        self.wlist = [(self.vW[0], G), (self.vW[0], U), (self.vW[1], G), (self.vW[1], U)]
        self.ACC = 32
        self.mf = []
        acc = self.ACC
        self.accmap = {}
        for x in range(8):
            for wi in range(4):
                if x == 7 and wi >= 2: continue
                self.mf.append((x, wi, acc)); self.accmap[(x, wi)] = acc; acc += 4
        assert acc == 32 + 120
    def build_srds(self, a):
        srd(a, SRD_A, ptr(KA_WS), WS_H, S_TOK*D*2)
        srd(a, SRD_B0, ptr(KA_WG), 0, D*F*2)
        srd(a, SRD_B1, ptr(KA_WU), 0, D*F*2)
        srd(a, SRD_OUT, ptr(KA_WS), WS_HH, S_TOK*F*2)
        srd(a, SRD_ST, ptr(KA_WS), WS_ST, 10*S_TOK*8)
    def loader_pre(self, a, w): return 0
    def loader_post_first(self, a, w, n):
        pad_init(a, w, self, 228, 11, 239)
        a(f"v_add_u32 v12, {64*w}, v2")
        a(f"v_add_u32 v13, s{S_R0}, v12")
        a("v_lshlrev_b32 v13, 3, v13")
        a(f"v_cmp_gt_u32 vcc, {self.MV}, v12")
        a("v_mov_b32 v14, 0x80000000")
        a("s_nop 0")
        a("v_cndmask_b32 v13, v14, v13, vcc")
        for c in range(10):
            a(f"s_mov_b32 s{S_T0}, {c*S_TOK*8}")
            a(f"buffer_load_dwordx2 v[{64+2*c}:{65+2*c}], v13, s[{SRD_ST}:{SRD_ST+3}], s{S_T0} offen")
        return 10
    def loader_final(self, a, w):
        for c in range(1, 10):
            a(f"v_pk_add_f32 v[64:65], v[64:65], v[{64+2*c}:{65+2*c}]")
        a(f"v_mul_f32 v64, {hex(f2u(1.0/D))}, v64")
        a(f"v_mul_f32 v65, {hex(f2u(1.0/D))}, v65")
        a("v_fma_f32 v65, -v64, v64, v65")
        a(f"v_add_f32 v65, {hex(f2u(1e-5))}, v65")
        a("v_rsq_f32 v65, v65")
        a("v_lshlrev_b32 v12, 3, v12")
        a(f"v_add_u32 v12, {self.LDS_ST}, v12")
        set_exec(a, (1 << 64) - 1 if w < 3 else (1 << (240 - 192)) - 1)
        a("ds_write_b64 v12, v[64:65]")
        a("s_mov_b64 exec, -1")
    def consumer_setup(self, a):
        cons_lane(a)
        a(f"s_lshr_b32 s{S_I}, s{S_WAVE}, 1")
        a(f"s_and_b32 s{S_J}, s{S_WAVE}, 1")
        a(f"s_lshl_b32 s{S_T1}, s{S_I}, 7")
        x_addr_const(a, self.vXc, S_T1)
        x_addr_const(a, self.vXsc, None, 112)
        w_addr_const(a, self.vWc)
        a(f"s_lshl_b32 s{S_T0}, s{S_J}, 1")
        a(f"s_add_u32 s{S_T0}, s{S_T0}, s{S_I}")
        a(f"s_lshl_b32 s{S_T0}, s{S_T0}, 5")
        a(f"v_xor_b32 v{self.vWc}, s{S_T0}, v{self.vWc}")
    def consumer_pre(self, a): pass
    def addr_update(self):
        return [f"v_add_u32 v{self.vXa}, s{S_SLOT}, v{self.vXc}",
                f"v_add_u32 v{self.vW[0]}, s{S_SLOT}, v{self.vWc}",
                f"v_add_u32 v{self.vXsa}, s{S_SLOT}, v{self.vXsc}",
                f"v_xor_b32 v{self.vXb}, 64, v{self.vXa}",
                f"v_xor_b32 v{self.vW[1]}, 32, v{self.vW[0]}",
                f"v_xor_b32 v{self.vXsb}, 64, v{self.vXsa}"]
    def epilogue(self, a):
        name = self.name
        a(f"s_lshl_b32 s{S_T0}, s{S_J}, 1")
        a(f"s_add_u32 s{S_T2}, s{S_T0}, s{S_I}     ; f0")
        a(f"s_lshl_b32 s{S_T0}, s{S_T2}, 6         ; f0*16*4 bytes")
        a(f"v_lshlrev_b32 v24, 4, v4")
        a(f"v_add_u32 v24, s{S_T0}, v24")
        a(f"v_add_u32 v24, {self.LDS_CS}, v24")
        a(f"v_xor_b32 v25, 64, v24                 ; f1")
        assert self.LDS_CS % 128 == 0
        a(f"s_cmp_eq_u32 s{S_I}, 1")
        a(f"s_cbranch_scc0 {name}_nocs")
        set_exec(a, 0x8000800080008000)
        for wi, (areg, poff) in enumerate([(24, 0), (24, 256), (25, 0), (25, 256)]):
            acc = self.accmap[(6, wi)]
            a(f"ds_write_b128 v{areg}, v[{acc}:{acc+3}] offset:{poff}")
        a("s_mov_b64 exec, -1")
        a.label(f"{name}_nocs")
        t_write_addr(a, 26, self.TBASE)
        a(f"s_lshl_b32 s{S_T0}, s{S_T2}, 5")
        a(f"v_xor_b32 v26, s{S_T0}, v26")
        a(f"v_add_u32 v28, {112*128}, v26")
        a(f"s_lshl_b32 s{S_T0}, s{S_I}, 14")
        a(f"v_add_u32 v26, s{S_T0}, v26")
        a(f"v_xor_b32 v27, 32, v26")
        a(f"s_lshl_b32 s{S_T0}, s{S_I}, 10         ; 128*i*8")
        a(f"v_lshlrev_b32 v29, 3, v3")
        a(f"v_add_u32 v30, {self.LDS_ST + 112*8}, v29")
        a(f"v_add_u32 v29, s{S_T0}, v29")
        a(f"v_add_u32 v29, {self.LDS_ST}, v29")
        a("s_waitcnt lgkmcnt(0)")
        a("s_barrier")
        CS = 8
        for wi, (areg, poff) in enumerate([(24, 0), (24, 256), (25, 0), (25, 256)]):
            a(f"ds_read_b128 v[{CS+4*wi}:{CS+4*wi+3}], v{areg} offset:{poff}")
        def rdst(x):
            st = 152 + 2*(x & 3)
            if x < 7: a(f"ds_read_b64 v[{st}:{st+1}], v29 offset:{128*x}")
            else: a(f"ds_read_b64 v[{st}:{st+1}], v30")
        for x in range(4): rdst(x)
        for x in range(8):
            st = 152 + 2*(x & 3)
            if x == 0: a("s_waitcnt lgkmcnt(0)")
            elif x == 4: a("s_waitcnt lgkmcnt(0)")
            a(f"v_mul_f32 v{st+1}, v{st+1}, v{st+1}")
            for p in range(2):
                if x == 7 and p == 1: continue
                g = self.accmap[(x, 2*p)]; u = self.accmap[(x, 2*p+1)]
                cg = CS + 8*p; cu = CS + 8*p + 4
                for hh in (0, 2):
                    a(f"v_pk_fma_f32 v[{g+hh}:{g+hh+1}], v[{cg+hh}:{cg+hh+1}], v[{st}:{st+1}], v[{g+hh}:{g+hh+1}] op_sel_hi:[1,0,1] neg_lo:[0,1,0] neg_hi:[0,1,0]")
                    a(f"v_pk_fma_f32 v[{u+hh}:{u+hh+1}], v[{cu+hh}:{cu+hh+1}], v[{st}:{st+1}], v[{u+hh}:{u+hh+1}] op_sel_hi:[1,0,1] neg_lo:[0,1,0] neg_hi:[0,1,0]")
                for hh in (0, 2):
                    a(f"v_pk_mul_f32 v[{g+hh}:{g+hh+1}], v[{g+hh}:{g+hh+1}], v[{u+hh}:{u+hh+1}]")
                for hh in (0, 2):
                    a(f"v_pk_mul_f32 v[{g+hh}:{g+hh+1}], v[{g+hh}:{g+hh+1}], v[{st}:{st+1}] op_sel:[0,1] op_sel_hi:[1,1]")
                a(f"v_cvt_pk_bf16_f32 v{g}, v{g}, v{g+1}")
                a(f"v_cvt_pk_bf16_f32 v{g+1}, v{g+2}, v{g+3}")
                if x < 7: a(f"ds_write_b64 v{26+p}, v[{g}:{g+1}] offset:{2048*x}")
                else: a(f"ds_write_b64 v28, v[{g}:{g+1}]")
            if x < 4:
                rdst(x + 4)
    def store_body(self, a):
        for k in range(4):
            a(f"ds_read_b128 v[{16+4*k}:{19+4*k}], v5 offset:{k*8192}")
        for k in range(4):
            store_addr(a, k, 10 + k, self)
        for k in range(4):
            a(f"s_waitcnt lgkmcnt({3-k})")
            a(f"buffer_store_dwordx4 v[{16+4*k}:{19+4*k}], v{10+k}, s[{SRD_OUT}:{SRD_OUT+3}], 0 offen")
        a("s_waitcnt vmcnt(0)")

def att_kernel():
    a = Asm()
    name = "att_kernel"
    kernel_header(a, name)
    LQ, LK, LV = 0, 10240, 10240 + 28160
    stamp(a, 0)
    load_ptrs(a)
    a("s_cmp_ge_u32 s2, 256")
    a(f"s_cbranch_scc1 {name}_exit")
    a("v_lshrrev_b32 v1, 6, v0")
    a("v_and_b32 v2, 63, v0")
    a("s_nop 0")
    a(f"v_readfirstlane_b32 s{S_WAVE}, v1")
    a("s_lshl_b32 s34, s2, 3      ; T0")
    a("s_waitcnt lgkmcnt(0)")
    srd(a, SRD_A, ptr(KA_WS), WS_QKV, S_TOK*NQKV*2)
    srd(a, SRD_OUT, ptr(KA_WS), WS_O, S_TOK*D*2)
    a(f"s_mov_b32 s{S_CNT}, s{S_WAVE}")
    a("s_mov_b32 s35, 3840")
    a.label(f"{name}_dma")
    a(f"s_lshl_b32 s{S_T0}, s{S_CNT}, 6")
    a(f"v_add_u32 v3, s{S_T0}, v2           ; c")
    a(f"v_mul_u32_u24 v4, 52429, v3")
    a("v_lshrrev_b32 v4, 22, v4              ; rho = c/80")
    a("v_mul_u32_u24 v5, 80, v4")
    a("v_sub_u32 v5, v3, v5                  ; kap")
    a("v_cmp_le_u32 vcc, 8, v4")
    a("v_mov_b32 v6, 0")
    a("v_mov_b32 v7, 0")
    a("v_cndmask_b32 v6, 0, 1, vcc")
    a("v_cmp_le_u32 vcc, 30, v4")
    a("s_nop 1")
    a("v_cndmask_b32 v7, 0, 1, vcc")
    a("v_add_u32 v6, v6, v7                  ; seg 0,1,2")
    a("v_mul_u32_u24 v7, 22, v6")
    a("v_sub_u32 v7, v4, v7")
    a("v_add_u32 v7, s34, v7")
    a("v_mul_lo_u32 v7, v7, s35")
    a("v_mul_u32_u24 v6, 1280, v6")
    a("v_add_u32 v7, v7, v6")
    a("v_lshl_add_u32 v7, v5, 4, v7          ; voffset")
    a(f"s_lshl_b32 s{S_T0}, s{S_CNT}, 10")
    a(f"s_mov_b32 m0, s{S_T0}")
    a("s_nop 0")
    a(f"buffer_load_dwordx4 v7, s[{SRD_A}:{SRD_A+3}], 0 offen lds")
    a(f"s_add_u32 s{S_CNT}, s{S_CNT}, 4")
    a(f"s_cmp_lt_u32 s{S_CNT}, 65")
    a(f"s_cbranch_scc1 {name}_dma")
    a("s_waitcnt vmcnt(0)")
    a("s_barrier")
    stamp(a, 1)
    a("v_lshrrev_b32 v3, 5, v0       ; tl")
    a("v_and_b32 v4, 31, v0          ; h")
    a("v_mul_u32_u24 v5, 40, v4")
    a("v_mul_u32_u24 v6, 1280, v3")
    a("v_add_u32 v6, v6, v5")
    Q = 16; KV = 32; LG = 120
    for i in range(5):
        a(f"ds_read_b64 v[{Q+2*i}:{Q+2*i+1}], v6 offset:{LQ + 8*i}")
    for w in range(8):
        off = LK + (14 - 2*w)*1280
        for i in range(5):
            a(f"ds_read_b64 v[{KV+10*w+2*i}:{KV+10*w+2*i+1}], v6 offset:{off + 8*i}")
    a("s_waitcnt lgkmcnt(0)")
    for w in range(8):
        a(f"v_mov_b32 v{LG+w}, 0")
    for i in range(10):
        for w in range(8):
            a(f"v_dot2_f32_bf16 v{LG+w}, v{Q+i}, v{KV+10*w+i}, v{LG+w}")
    a("s_nop 2")
    for w in range(8):
        off = LV + (14 - 2*w)*1280
        for i in range(5):
            a(f"ds_read_b64 v[{KV+10*w+2*i}:{KV+10*w+2*i+1}], v6 offset:{off + 8*i}")
    a("v_add_u32 v7, s34, v3         ; token")
    scale = (D // 32) ** -0.5
    c1 = scale * 1.4426950408889634
    a(f"s_mov_b32 s{S_T0}, {hex(f2u(c1))}")
    a(f"v_mov_b32 v8, {hex(f2u(-1e30))}")
    for w in range(8):
        a(f"v_mul_f32 v{LG+w}, s{S_T0}, v{LG+w}")
    for w in range(1, 8):
        a(f"v_cmp_le_u32 vcc, {2*w}, v7")
        a("s_nop 1")
        a(f"v_cndmask_b32 v{LG+w}, v8, v{LG+w}, vcc")
    a(f"v_max3_f32 v9, v{LG}, v{LG+1}, v{LG+2}")
    a(f"v_max3_f32 v9, v9, v{LG+3}, v{LG+4}")
    a(f"v_max3_f32 v9, v9, v{LG+5}, v{LG+6}")
    a(f"v_max_f32 v9, v9, v{LG+7}")
    for w in range(8):
        a(f"v_sub_f32 v{LG+w}, v{LG+w}, v9")
    for w in range(8):
        a(f"v_exp_f32 v{LG+w}, v{LG+w}")
    a("s_nop 0")
    a(f"v_add_f32 v9, v{LG}, v{LG+1}")
    for w in range(2, 8):
        a(f"v_add_f32 v9, v9, v{LG+w}")
    a("v_rcp_f32 v9, v9")
    a("s_nop 0")
    for w in range(8):
        a(f"v_mul_f32 v{LG+w}, v{LG+w}, v9")
    O = 128
    a("s_waitcnt lgkmcnt(0)")
    for i in range(10):
        for w in range(8):
            r = KV + 10*w + i
            a(f"v_lshlrev_b32 v10, 16, v{r}")
            a(f"v_and_b32 v11, 0xffff0000, v{r}")
            if w == 0:
                a(f"v_mul_f32 v{O+2*i}, v10, v{LG+w}")
                a(f"v_mul_f32 v{O+2*i+1}, v11, v{LG+w}")
            else:
                a(f"v_fmac_f32 v{O+2*i}, v10, v{LG+w}")
                a(f"v_fmac_f32 v{O+2*i+1}, v11, v{LG+w}")
    stamp(a, 2)
    for i in range(10):
        a(f"v_cvt_pk_bf16_f32 v{Q+i}, v{O+2*i}, v{O+2*i+1}")
    a("v_mul_u32_u24 v7, 1280, v7")
    a("v_add_u32 v7, v7, v5")
    for i in range(5):
        a(f"buffer_store_dwordx2 v[{Q+2*i}:{Q+2*i+1}], v7, s[{SRD_OUT}:{SRD_OUT+3}], 0 offen offset:{8*i}")
    a("s_waitcnt vmcnt(0)")
    prof_store(a, name)
    a.label(f"{name}_exit")
    a("s_endpgm")
    return a

HEADER = open("sequential_preLN__sliding_local_dilated__glu_gated_bilinear__prompt.s.ref").read().split("; Override")[0]

def main(out):
    launches = [("p1_kernel", 256, 512, P1.LDS), ("att_kernel", 256, 256, 66560), ("p2_kernel", 256, 512, P24.LDS), ("p3_kernel", 256, 512, P3.LDS), ("p4_kernel", 256, 512, P24.LDS)]
    s = HEADER
    for (k, g, b, l) in launches:
        s += f"; @launch kernel={k} grid=({g},1,1) block=({b},1,1) lds={l}\n"
    s += '.amdgcn_target "amdgcn-amd-amdhsa--gfx950"\n.text\n'
    s += gemm_kernel(P1()).text()
    s += att_kernel().text()
    s += gemm_kernel(P24(2)).text()
    s += gemm_kernel(P3()).text()
    s += gemm_kernel(P24(4)).text()
    s += '.section .rodata,"a"\n.p2align 6\n'
    for (k, g, b, l) in launches:
        s += kernel_desc(k) + ".p2align 6\n"
    open(out, "w").write(s)

if __name__ == "__main__":
    if "-prof" in sys.argv: PROF = True
    if "-cyc" in sys.argv: STAMP = "s_memtime"
    if "-norot" in sys.argv: ROT = False
    main(sys.argv[1] if len(sys.argv) > 1 else "v2.s")
```

```python
import sys, struct

KNAME = "sequential_preLN__sliding_local_dilated__glu_gated_bilinear__prompt_kernel"
S_TOK, D, NQKV, F = 2048, 640, 1920, 1728
WS_QKV, WS_O, WS_H, WS_HH, WS_ST, WS_FLAG = 0, 0x800000, 0xB00000, 0x1000000, 0x1800000, 0x1900000
WS_PROF = 0x1A00000
KA_X, KA_WQKV, KA_WO, KA_BX, KA_WG, KA_WU, KA_WD, KA_OUT, KA_DBG, KA_WS = [8*i for i in range(10)]
ONES = 0x3F803F80
PROF = False
PROFDBG = False
STAMP = 's_memrealtime'
SC1 = " sc1"
LDS_TOTAL = 163840

def f2u(x):
    return struct.unpack("<I", struct.pack("<f", x))[0]

class Asm:
    def __init__(self):
        self.L = []
        self.uid = 0
    def __call__(self, s):
        for line in s.split("\n"):
            line = line.strip()
            if line:
                self.L.append("  " + line)
    def label(self, n):
        self.L.append(n + ":")
    def raw(self, s):
        self.L.append(s)
    def new(self, base):
        self.uid += 1
        return f"L{base}_{self.uid}"
    def text(self):
        return "\n".join(self.L) + "\n"

SRD_A, SRD_B0, SRD_B1, SRD_OUT, SRD_AUX, SRD_ST = 8, 12, 16, 20, 24, 28
S_RT, S_CT, S_R0, S_C0, S_WAVE, S_SLOT, S_CNT, S_T0, S_T1, S_T2 = 32, 33, 34, 35, 36, 37, 38, 39, 40, 41
S_AOFF, S_BOFF = 42, 43
S_PTR = 44
S_MASK = 64
S_I, S_J, S_REND, S_K = 66, 67, 68, 69
S_STAMP = 70
S_NONCE = 78
S_FIDX, S_LW, S_VALID, S_KB = 85, 86, 87, 92
SRD_FLAG = 88
S_SLOTB, S_T3, S_T4, S_W = 93, 94, 95, 96
S_P0 = 97

def ptr(k): return S_PTR + k // 4

PH_IDX = {'p1': 0, 'att': 1, 'p2': 2, 'p3': 3, 'p4': 4}

def stamp(a, i):
    if i >= 4:
        if PROF: a(f'{STAMP} s[{98+2*(i-4)}:{99+2*(i-4)}]')
        return
    if PROF or PROFDBG:
        a(f'{STAMP} s[{S_STAMP+2*i}:{S_STAMP+2*i+1}]')

def prof_store(a, ph, role):
    if not (PROF or PROFDBG): return
    skip = a.new("pskip")
    a(f"s_cmp_eq_u32 s{S_WAVE}, {0 if role == 'c' else 4}")
    a(f"s_cbranch_scc0 {skip}")
    a('s_waitcnt lgkmcnt(0)')
    if PROF:
        a(f's_add_u32 s80, s{ptr(KA_WS)}, {hex(WS_PROF + PH_IDX[ph]*0x20000)}')
        a(f's_addc_u32 s81, s{ptr(KA_WS)+1}, 0')
        a('s_and_b32 s81, s81, 0xffff')
        a('s_mov_b32 s82, 0x20000')
        a('s_mov_b32 s83, 0x20000')
        a('s_lshl_b32 s84, s2, 3')
        a(f's_add_u32 s84, s84, s{S_WAVE}')
        a('s_lshl_b32 s84, s84, 6')
        for i in range(8): a(f'v_mov_b32 v{128+i}, s{S_STAMP+i}')
        for i in range(4): a(f'v_mov_b32 v{136+i}, s{98+i}')
        a('v_mov_b32 v148, s84')
        a('s_mov_b64 exec, 1')
        a('buffer_store_dwordx4 v[128:131], v148, s[80:83], 0 offen')
        a('buffer_store_dwordx4 v[132:135], v148, s[80:83], 0 offen offset:16')
        a('buffer_store_dwordx4 v[136:139], v148, s[80:83], 0 offen offset:32')
        a('s_mov_b64 exec, -1')
    if PROFDBG and role == 'c':
        sk2 = a.new("pskip")
        a(f"s_cmp_eq_u32 s2, {PROFDBG_WG}")
        a(f"s_cbranch_scc0 {sk2}")
        a(f's_mov_b32 s80, s{ptr(KA_DBG)}')
        a(f's_and_b32 s81, s{ptr(KA_DBG)+1}, 0xffff')
        a('s_mov_b32 s82, 0x100')
        a('s_mov_b32 s83, 0x20000')
        sel = DBG_SEL[ph]
        for j, (i, slot) in enumerate(sel):
            a(f's_sub_u32 s84, s{S_STAMP+2*i}, s{S_P0}')
            a(f'v_mov_b32 v140, s84')
            a(f'v_mov_b32 v141, {4*slot}')
            a('s_mov_b64 exec, 1')
            a('buffer_store_dword v140, v141, s[80:83], 0 offen')
            a('s_mov_b64 exec, -1')
        a.label(sk2)
    a.label(skip)

PROFDBG_WG = 9
DBG_SEL = {'p1': [(1, 2), (2, 3), (3, 4)], 'att': [(0, 5), (1, 6), (3, 7)], 'p2': [(0, 8), (2, 9)], 'p3': [(0, 10), (1, 11), (2, 12)], 'p4': [(0, 13), (2, 14), (3, 15)]}

def set_exec(a, mask):
    if mask == (1 << 64) - 1:
        a("s_mov_b64 exec, -1")
    else:
        a(f"s_mov_b32 exec_lo, {hex(mask & 0xffffffff)}")
        a(f"s_mov_b32 exec_hi, {hex(mask >> 32)}")

def srd(a, s, p, off, nbytes):
    if off:
        a(f"s_add_u32 s{s}, s{p}, {hex(off)}")
        a(f"s_addc_u32 s{s+1}, s{p+1}, 0")
    else:
        a(f"s_mov_b32 s{s}, s{p}")
        a(f"s_mov_b32 s{s+1}, s{p+1}")
    a(f"s_and_b32 s{s+1}, s{s+1}, 0xffff")
    a(f"s_mov_b32 s{s+2}, {hex(nbytes)}")
    a(f"s_mov_b32 s{s+3}, 0x20000")

def divc(a, dst, src, d, rng=300):
    m = (65536 + d - 1) // d
    for x in range(0, rng):
        assert (x * m) >> 16 == x // d, (x, d)
    a(f"s_mul_i32 s{dst}, s{src}, {m}")
    a(f"s_lshr_b32 s{dst}, s{dst}, 16")

def magic(d, N):
    for sh in range(8, 24):
        m = ((1 << sh) + d - 1) // d
        if m >= (1 << 24) or m * (N - 1) >= (1 << 32): continue
        if all((x * m) >> sh == x // d for x in range(N)): return m, sh
    raise Exception("no magic")

def sdiv(a, dst, src, d, N):
    m, sh = magic(d, N)
    a(f"s_mul_i32 s{dst}, s{src}, {m}")
    a(f"s_lshr_b32 s{dst}, s{dst}, {sh}")

def vdiv(a, dst, src, d, N):
    m, sh = magic(d, N)
    a(f"v_mul_u32_u24 v{dst}, {m}, v{src}")
    a(f"v_lshrrev_b32 v{dst}, {sh}, v{dst}")

def tile_map(a, NT, kind):
    a(f"s_and_b32 s{S_T0}, s2, 7")
    a(f"s_lshr_b32 s{S_T1}, s2, 3")
    a(f"s_lshl_b32 s{S_T0}, s{S_T0}, 5")
    a(f"s_add_u32 s{S_T0}, s{S_T0}, s{S_T1}   ; t")
    a(f"s_cmp_lt_u32 s{S_T0}, {NT}")
    a(f"s_cselect_b32 s{S_VALID}, 1, 0")
    if kind == "p1":
        divc(a, S_T1, S_T0, 60)
        a(f"s_min_u32 s{S_T1}, s{S_T1}, 3      ; band")
        a(f"s_mul_i32 s{S_T2}, s{S_T1}, 60")
        a(f"s_sub_u32 s{S_T2}, s{S_T0}, s{S_T2}")
        divc(a, S_CT, S_T2, 4)
        divc(a, S_RT, S_T2, 5)
        a(f"s_cmp_eq_u32 s{S_T1}, 3")
        a(f"s_cselect_b32 s{S_CT}, s{S_RT}, s{S_CT}")
        a(f"s_cselect_b32 s{S_RT}, 5, 4")
        a(f"s_mul_i32 s{S_RT}, s{S_RT}, s{S_CT}")
        a(f"s_sub_u32 s{S_RT}, s{S_T2}, s{S_RT}")
        a(f"s_lshl_b32 s{S_T1}, s{S_T1}, 2")
        a(f"s_add_u32 s{S_RT}, s{S_RT}, s{S_T1}")
    elif kind == "p3":
        divc(a, S_T1, S_T0, 81)
        a(f"s_mul_i32 s{S_T2}, s{S_T1}, 81")
        a(f"s_sub_u32 s{S_T2}, s{S_T0}, s{S_T2}")
        divc(a, S_CT, S_T2, 3)
        a(f"s_mul_i32 s{S_RT}, s{S_CT}, 3")
        a(f"s_sub_u32 s{S_RT}, s{S_T2}, s{S_RT}")
        a(f"s_mul_i32 s{S_T1}, s{S_T1}, 3")
        a(f"s_add_u32 s{S_RT}, s{S_RT}, s{S_T1}")
    elif kind == "att":
        a(f"s_lshr_b32 s{S_RT}, s{S_T0}, 1")
        a(f"s_and_b32 s{S_CT}, s{S_T0}, 1")
    else:
        divc(a, S_RT, S_T0, 10)
        a(f"s_mul_i32 s{S_CT}, s{S_RT}, 10")
        a(f"s_sub_u32 s{S_CT}, s{S_T0}, s{S_CT}")

def publish(a):
    skip = a.new("pub")
    a(f"s_cmp_eq_u32 s{S_WAVE}, 0")
    a(f"s_cbranch_scc0 {skip}")
    a(f"s_cmp_eq_u32 s{S_FIDX}, -1")
    a(f"s_cbranch_scc1 {skip}")
    a(f"v_mov_b32 v140, s{S_NONCE}")
    a(f"v_mov_b32 v141, s{S_NONCE+1}")
    a(f"v_mov_b32 v142, s{S_FIDX}")
    a("s_mov_b64 exec, 1")
    a(f"buffer_store_dwordx2 v[140:141], v142, s[{SRD_FLAG}:{SRD_FLAG+3}], 0 offen{SC1}")
    a("s_mov_b64 exec, -1")
    a.label(skip)

def poll(a, lo_sgpr, hi_sgpr, base):
    skip = a.new("pollskip"); loop = a.new("poll"); done = a.new("polldone")
    a(f"s_cmp_eq_u32 s{S_WAVE}, 0")
    a(f"s_cbranch_scc0 {skip}")
    a(f"v_add_u32 v140, s{lo_sgpr}, v2")
    a(f"v_cmp_gt_u32 vcc, s{hi_sgpr}, v140")
    a(f"v_lshlrev_b32 v140, 3, v140")
    a(f"v_add_u32 v140, {base}, v140")
    a(f"s_and_saveexec_b64 s[80:81], vcc")
    a(f"s_mov_b32 s{S_CNT}, 0x40000")
    a.label(loop)
    a(f"buffer_load_dwordx2 v[142:143], v140, s[{SRD_FLAG}:{SRD_FLAG+3}], 0 offen{SC1}")
    a("s_waitcnt vmcnt(0)")
    a(f"v_cmp_ne_u64 vcc, s[{S_NONCE}:{S_NONCE+1}], v[142:143]")
    a(f"s_cbranch_vccz {done}")
    a(f"s_sub_u32 s{S_CNT}, s{S_CNT}, 1")
    a(f"s_cmp_lg_u32 s{S_CNT}, 0")
    a(f"s_cbranch_scc1 {loop}")
    a.label(done)
    a("s_mov_b64 exec, s[80:81]")
    a.label(skip)

def nonce_setup(a):
    skip = a.new("nonce"); loop = a.new("nloop"); done = a.new("ndone"); nopub = a.new("nopub")
    a(f"s_cmp_eq_u32 s{S_WAVE}, 0")
    a(f"s_cbranch_scc0 {skip}")
    a(f"s_mov_b32 s80, s{ptr(KA_DBG)}")
    a(f"s_and_b32 s81, s{ptr(KA_DBG)+1}, 0xffff")
    a("s_mov_b32 s82, 0x100")
    a("s_mov_b32 s83, 0x20000")
    a("v_mov_b32 v142, 0")
    a("s_cmp_eq_u32 s2, 0")
    a(f"s_cbranch_scc0 {nopub}")
    a(f"s_memrealtime s[{S_NONCE}:{S_NONCE+1}]")
    a("s_waitcnt lgkmcnt(0)")
    a(f"s_or_b32 s{S_NONCE}, s{S_NONCE}, 1")
    a(f"v_mov_b32 v140, s{S_NONCE}")
    a(f"v_mov_b32 v141, s{S_NONCE+1}")
    a("s_mov_b64 exec, 1")
    a(f"buffer_store_dwordx2 v[140:141], v142, s[80:83], 0 offen{SC1}")
    a("s_mov_b64 exec, -1")
    a.label(nopub)
    a(f"s_mov_b32 s{S_CNT}, 0x40000")
    a.label(loop)
    a(f"buffer_load_dwordx2 v[140:141], v142, s[80:83], 0 offen{SC1}")
    a("s_waitcnt vmcnt(0)")
    a("v_readfirstlane_b32 s" + str(S_NONCE) + ", v140")
    a("v_readfirstlane_b32 s" + str(S_NONCE+1) + ", v141")
    a("s_nop 3")
    a(f"s_cmp_lg_u32 s{S_NONCE}, 0")
    a(f"s_cbranch_scc1 {done}")
    a(f"s_sub_u32 s{S_CNT}, s{S_CNT}, 1")
    a(f"s_cmp_lg_u32 s{S_CNT}, 0")
    a(f"s_cbranch_scc1 {loop}")
    a.label(done)
    a.label(skip)

class Phase:
    has_e1 = False
    has_stage_work = False
    prefetchB = 0
    def loader_post_first(self, a): return 0
    def loader_stage_work_parts(self): return []
    def loader_final(self, a): pass
    def store_pre(self, a): pass
    def rot_start(self, a):
        ca, cb, den = self.rot
        a(f"s_mul_i32 s{S_K}, s{S_CT}, {ca}")
        a(f"s_mul_i32 s{S_T0}, s{S_RT}, {cb}")
        a(f"s_add_u32 s{S_K}, s{S_K}, s{S_T0}")
        a(f"s_lshr_b32 s{S_K}, s{S_K}, {den}")
        m = (65536 + self.S - 1) // self.S
        for x in range(1024): assert (x*m) >> 16 == x // self.S
        a(f"s_mul_i32 s{S_T0}, s{S_K}, {m}")
        a(f"s_lshr_b32 s{S_T0}, s{S_T0}, 16")
        a(f"s_mul_i32 s{S_T0}, s{S_T0}, {self.S}")
        a(f"s_sub_u32 s{S_K}, s{S_K}, s{S_T0}")
    def tile_consts(self, a):
        a(f"s_mul_i32 s{S_R0}, s{S_RT}, {self.MV}")
        a(f"s_mul_i32 s{S_C0}, s{S_CT}, {self.NC}")
        a(f"s_add_u32 s{S_REND}, s{S_R0}, {self.MV}")
        a(f"s_min_u32 s{S_REND}, s{S_REND}, {S_TOK}")

def transition(a, first):
    pass

def loader_phase(a, P, first):
    NS, S = P.NS, P.S
    nA, nB = len(P.Ains), len(P.Bins)
    VB = 32
    a("v_lshrrev_b32 v3, 3, v2      ; r8")
    a("v_and_b32 v4, 7, v2          ; p")
    a("v_lshrrev_b32 v5, 1, v3      ; r8>>1")
    a("v_xor_b32 v6, v4, v5")
    a("v_lshlrev_b32 v6, 4, v6")
    a(f"s_lshl_b32 s{S_T0}, s{S_W}, 3")
    a(f"s_add_u32 s{S_T0}, s{S_T0}, s{S_R0}")
    a(f"v_add_u32 v7, s{S_T0}, v3")
    a(f"s_mov_b32 s{S_T0}, {P.lda}")
    a(f"v_mul_lo_u32 v7, v7, s{S_T0}")
    a("v_add_u32 v7, v7, v6")
    a(f"s_and_b32 s{S_T0}, s{S_W}, 1")
    a(f"s_lshl_b32 s{S_T0}, s{S_T0}, 6")
    a(f"v_xor_b32 v7, s{S_T0}, v7")
    for t in range(nA):
        a(f"v_add_u32 v{VB+t}, {t*32*P.lda}, v7")
    a("v_and_b32 v8, 1, v5")
    a("v_lshlrev_b32 v8, 1, v8")
    a("v_xor_b32 v8, v4, v8")
    a("v_lshlrev_b32 v8, 4, v8")
    a(f"s_lshl_b32 s{S_T0}, s{S_W}, 3")
    a(f"v_add_u32 v9, s{S_T0}, v3         ; k = 8w + r8")
    a(f"s_mov_b32 s{S_T0}, {P.ldb}")
    a(f"v_mul_lo_u32 v9, v9, s{S_T0}")
    a("v_add_u32 v9, v9, v8")
    a(f"s_and_b32 s{S_T0}, s{S_W}, 1")
    a(f"s_lshl_b32 s{S_T0}, s{S_T0}, 6")
    a(f"v_xor_b32 v9, s{S_T0}, v9")
    a(f"s_lshl_b32 s{S_T1}, s{S_C0}, 1")
    a(f"v_add_u32 v9, s{S_T1}, v9")
    for t, (pn, ib) in enumerate(P.Bins):
        a(f"v_add_u32 v{VB+nA+t}, {ib*8*P.ldb + P.panel_coloff[pn]}, v9")
    a(f"s_lshl_b32 s{S_LW}, s{S_W}, 10")
    P.mask_setup(a)
    P.rot_start(a)
    a(f"s_mov_b32 s{S_KB}, s{S_K}")
    P.build_srds(a, 'l')

    def adv(kreg, offreg, mul, slotreg):
        a(f"s_add_u32 s{kreg}, s{kreg}, 1")
        a(f"s_cmp_ge_u32 s{kreg}, {S}")
        a(f"s_cselect_b32 s{kreg}, 0, s{kreg}")
        a(f"s_mul_i32 s{offreg}, s{kreg}, {mul}")
        a(f"s_add_u32 s{slotreg}, s{slotreg}, {P.STAGE}")
        a(f"s_cmp_ge_u32 s{slotreg}, {P.STAGE*NS}")
        a(f"s_cselect_b32 s{slotreg}, 0, s{slotreg}")
    def issueA(fill=None):
        a(f"s_add_u32 s{S_T3}, s{S_SLOT}, s{S_LW}")
        for t in range(nA):
            special = P.Ains[t]
            sk = None
            if special == 'skip':
                sk = a.new("sk")
                a(f"s_cmp_eq_u64 s[{S_MASK}:{S_MASK+1}], 0")
                a(f"s_cbranch_scc1 {sk}")
            a(f"s_add_u32 m0, s{S_T3}, {t*4096}")
            if special: a(f"s_mov_b64 exec, s[{S_MASK}:{S_MASK+1}]")
            else: a("s_nop 0")
            a(f"buffer_load_dwordx4 v{VB+t}, s[{SRD_A}:{SRD_A+3}], s{S_AOFF} offen{P.scA} lds")
            if special: a("s_mov_b64 exec, -1")
            if sk: a.label(sk)
            if fill:
                for x in fill.pop(0) if fill else []: a(x)
        adv(S_K, S_AOFF, 128, S_SLOT)
    def issueB(fill=None):
        a(f"s_add_u32 s{S_T4}, s{S_SLOTB}, s{S_LW}")
        for t, (pn, ib) in enumerate(P.Bins):
            sr = P.panel_srd[pn]
            a(f"s_add_u32 m0, s{S_T4}, {P.ABYTES + pn*8192 + ib*1024}")
            a("s_nop 0")
            a(f"buffer_load_dwordx4 v{VB+nA+t}, s[{sr}:{sr+3}], s{S_BOFF} offen lds")
            if fill:
                for x in fill.pop(0) if fill else []: a(x)
        adv(S_KB, S_BOFF, 64*P.ldb, S_SLOTB)
    minA = nA - (1 if 'skip' in P.Ains else 0)
    a(f"s_mov_b32 s{S_SLOT}, 0")
    a(f"s_mov_b32 s{S_SLOTB}, 0")
    a(f"s_lshl_b32 s{S_AOFF}, s{S_K}, 7")
    a(f"s_mul_i32 s{S_BOFF}, s{S_KB}, {64*P.ldb}")
    pB = P.prefetchB if not first else 0
    if pB:
        lp = a.new("bpre")
        a(f"s_mov_b32 s{S_CNT}, {pB}")
        a.label(lp)
        issueB()
        a(f"s_sub_u32 s{S_CNT}, s{S_CNT}, 1")
        a(f"s_cmp_lg_u32 s{S_CNT}, 0")
        a(f"s_cbranch_scc1 {lp}")
    if not first:
        a("s_barrier      ; B_dep")
    stamp(a, 0)
    L = []
    for s in range(S):
        cap = (NS - 1) if s == 0 else s + NS - 2
        prev = L[-1] if L else -1
        L.append(min(S - 1, cap, prev + 2))
    seq = [('B', j) for j in range(pB)]
    def cnt_after(s):
        last = max(i for i, (k, j) in enumerate(seq) if j == s and k in 'AB')
        n = 0
        for (k, j) in seq[last+1:]:
            n += minA if k == 'A' else (nB if k == 'B' else j)
        return n
    def issue_stage(j, fill=None):
        if j >= pB:
            issueA(fill); seq.append(('A', j))
            issueB(fill); seq.append(('B', j))
        else:
            issueA(fill); seq.append(('A', j))
    prev = -1
    s = 0
    while s < S:
        k = L[s] - prev
        e = s
        if k == 1 and L[s] >= pB and s > 0:
            while e + 1 < S and L[e+1] - L[e] == 1 and (L[e+1] - (e+1)) == (L[s] - s): e += 1
        if e - s >= 2 and s - 0 >= 0 and min(range(s, e+1)) >= 0 and s >= pB - (L[s] - s) and all(j >= pB for j in range(s, s+1)):
            cnt = e - s + 1
            lp = a.new("lmain")
            a(f"s_mov_b32 s{S_CNT}, {cnt}")
            a.label(lp)
            parts = P.loader_stage_work_parts() if P.has_stage_work else None
            issue_stage(L[s], parts)
            if parts:
                for grp in parts:
                    for x in grp: a(x)
            n = cnt_after(s)
            a(f"s_waitcnt vmcnt({n})")
            if P.has_stage_work: a("s_waitcnt lgkmcnt(0)")
            a("s_barrier")
            a(f"s_sub_u32 s{S_CNT}, s{S_CNT}, 1")
            a(f"s_cmp_lg_u32 s{S_CNT}, 0")
            a(f"s_cbranch_scc1 {lp}")
            for j in range(s+1, e+1):
                seq.append(('A', L[j])); seq.append(('B', L[j]))
            prev = L[e]; s = e + 1
            continue
        parts = P.loader_stage_work_parts() if (P.has_stage_work and s > 0) else None
        for j in range(prev+1, L[s]+1):
            issue_stage(j, parts if j == prev+1 else None)
        if s == 0:
            stamp(a, 1)
            ex = P.loader_post_first(a) or 0
            if ex: seq.append(('X', ex))
        if parts:
            for grp in parts:
                for x in grp: a(x)
        a(f"s_waitcnt vmcnt({cnt_after(s)})")
        if P.has_stage_work or s == 0: a("s_waitcnt lgkmcnt(0)")
        a("s_barrier")
        prev = L[s]; s += 1
    stamp(a, 2)
    if P.has_stage_work:
        for grp in P.loader_stage_work_parts():
            for x in grp: a(x)
    P.loader_final(a)
    if P.has_e1:
        a("s_waitcnt lgkmcnt(0)")
        a("s_barrier      ; E1")
    P.store_pre(a)
    a("s_barrier          ; E2")
    store_pass(a, P)

def consumer_phase(a, P, first):
    P.consumer_setup(a)
    NW = len(P.wlist)
    XF = [0, 4*P.NXMAX]
    WF = [8*P.NXMAX, 8*P.NXMAX + 4*NW]
    def reads(kk, buf):
        r = []
        for wi, (areg, off) in enumerate(P.wlist):
            base = WF[buf] + 4*wi
            r.append(f"ds_read_b64_tr_b16 a[{base}:{base+1}], v{areg} offset:{off + kk*4096}")
            r.append(f"ds_read_b64_tr_b16 a[{base+2}:{base+3}], v{areg} offset:{off + kk*4096 + 512}")
        for xi, (areg0, areg1, off) in enumerate(P.xlist):
            base = XF[buf] + 4*xi
            areg = areg0 if kk == 0 else areg1
            r.append(f"ds_read_b128 a[{base}:{base+3}], v{areg} offset:{off}")
        return r
    def mfmas(buf, first_=False):
        m = []
        for (xi, wi, acc) in P.mf:
            c = "0" if first_ else f"v[{acc}:{acc+3}]"
            m.append(f"v_mfma_f32_16x16x32_bf16 v[{acc}:{acc+3}], a[{WF[buf]+4*wi}:{WF[buf]+4*wi+3}], a[{XF[buf]+4*xi}:{XF[buf]+4*xi+3}], {c}")
        return m
    def block(m, r, fill=()):
        q = list(r); fl = list(fill)
        for i, x in enumerate(m):
            a(x)
            k = 0
            while q and k < P.RPM:
                a(q.pop(0)); k += 1
            if not q:
                while fl and k < 2:
                    a(fl.pop(0)); k += 1
        for x in q: a(x)
        for x in fl: a(x)
    def slot_adv():
        return [f"s_add_u32 s{S_SLOT}, s{S_SLOT}, {P.STAGE}",
                f"s_cmp_ge_u32 s{S_SLOT}, {P.STAGE*P.NS}",
                f"s_cselect_b32 s{S_SLOT}, 0, s{S_SLOT}"]
    a(f"s_mov_b32 s{S_SLOT}, 0")
    for x in P.addr_update(): a(x)
    P.build_srds(a, 'c')
    if not first:
        P.deps(a)
        a("s_barrier      ; B_dep")
    else:
        nonce_setup(a)
    stamp(a, 0)
    a("s_barrier          ; B_0")
    stamp(a, 1)
    for x in reads(0, 0): a(x)
    a(f"s_mov_b32 s{S_CNT}, {P.S-1}")
    a("s_waitcnt lgkmcnt(0)")
    block(mfmas(0, True), reads(1, 1), slot_adv() + P.addr_update())
    lp = a.new("cloop")
    a.label(lp)
    a("s_waitcnt lgkmcnt(0)")
    a("s_barrier")
    block(mfmas(1), reads(0, 0), [f"s_sub_u32 s{S_CNT}, s{S_CNT}, 1"])
    a("s_waitcnt lgkmcnt(0)")
    block(mfmas(0), reads(1, 1), slot_adv() + P.addr_update() + [f"s_cmp_lg_u32 s{S_CNT}, 0"])
    a(f"s_cbranch_scc1 {lp}")
    a("s_waitcnt lgkmcnt(0)")
    block(mfmas(1), [])
    stamp(a, 2)
    a("s_nop 7")
    P.epilogue(a)
    a("s_waitcnt lgkmcnt(0)")
    P.store_pre(a)
    a("s_barrier          ; E2")
    store_pass(a, P)

def cons_lane(a):
    a("v_and_b32 v3, 15, v2")
    a("v_lshrrev_b32 v4, 4, v2")

def x_addr_const(a, dst, rowbase_sgpr, rowbase_const=0):
    a("v_lshrrev_b32 v5, 1, v3")
    a("v_xor_b32 v5, v4, v5")
    a("v_lshlrev_b32 v5, 4, v5")
    a(f"v_lshl_add_u32 v{dst}, v3, 7, v5")
    if rowbase_sgpr is not None:
        a(f"s_lshl_b32 s{S_T0}, s{rowbase_sgpr}, 7")
        a(f"v_add_u32 v{dst}, s{S_T0}, v{dst}")
    if rowbase_const:
        a(f"v_add_u32 v{dst}, {rowbase_const*128}, v{dst}")

def w_addr_const(a, dst):
    a("v_lshrrev_b32 v5, 2, v3        ; r")
    a("v_lshl_add_u32 v6, v4, 3, v5   ; 8g+r")
    a("v_lshlrev_b32 v6, 7, v6")
    a("v_lshrrev_b32 v5, 1, v5        ; r>>1")
    a("v_and_b32 v7, 1, v4")
    a("v_lshl_or_b32 v5, v7, 1, v5    ; h")
    a("v_lshl_add_u32 v6, v5, 5, v6")
    a("v_and_b32 v5, 3, v3")
    a(f"v_lshl_add_u32 v{dst}, v5, 3, v6")

def t_write_addr(a, dst, base_const):
    a("v_lshrrev_b32 v5, 1, v4")
    a("v_and_b32 v6, 7, v3")
    a("v_xor_b32 v5, v5, v6")
    a("v_lshlrev_b32 v5, 4, v5")
    a("v_and_b32 v6, 1, v4")
    a("v_lshl_add_u32 v5, v6, 3, v5")
    a(f"v_lshl_add_u32 v{dst}, v3, 7, v5")
    a(f"v_add_u32 v{dst}, {base_const}, v{dst}")

def pad_init(a, P, row0, nzero_rows, ones_row):
    a("v_mov_b32 v12, 0"); a("v_mov_b32 v13, 0"); a("v_mov_b32 v14, 0"); a("v_mov_b32 v15, 0")
    a(f"v_mov_b32 v10, {hex(ONES)}")
    a("v_lshlrev_b32 v11, 4, v2        ; lane*16")
    for rep in range((P.NS + 3)//4):
        sk = a.new("pad")
        a(f"s_add_u32 s{S_T0}, s{S_W}, {4*rep}")
        a(f"s_cmp_ge_u32 s{S_T0}, {P.NS}")
        a(f"s_cbranch_scc1 {sk}")
        a(f"s_mul_i32 s{S_T0}, s{S_T0}, {P.STAGE}")
        nb = nzero_rows*128; off = 0
        while off < nb:
            lanes = min(64, (nb - off)//16)
            a(f"v_add_u32 v16, s{S_T0}, v11")
            if lanes < 64: set_exec(a, (1 << lanes) - 1)
            a(f"ds_write_b128 v16, v[12:15] offset:{row0*128 + off}")
            if lanes < 64: a("s_mov_b64 exec, -1")
            off += lanes*16
        if ones_row is not None:
            a(f"v_lshlrev_b32 v16, 2, v2")
            a(f"v_add_u32 v16, s{S_T0}, v16")
            set_exec(a, 0xffffffff)
            a(f"ds_write_b32 v16, v10 offset:{ones_row*128}")
            a("s_mov_b64 exec, -1")
        a.label(sk)

def store_pass(a, P):
    a("v_lshrrev_b32 v3, 3, v2")
    a("v_and_b32 v4, 7, v2")
    a("v_xor_b32 v5, v4, v3")
    a("v_lshlrev_b32 v5, 4, v5")
    a("v_lshl_add_u32 v5, v3, 7, v5")
    a(f"s_lshl_b32 s{S_T0}, s{S_WAVE}, 10")
    a(f"v_add_u32 v5, s{S_T0}, v5")
    a(f"v_add_u32 v5, {P.TBASE}, v5")
    a(f"s_lshl_b32 s{S_T0}, s{S_WAVE}, 3")
    a(f"s_add_u32 s{S_T0}, s{S_T0}, s{S_R0}")
    a(f"v_add_u32 v6, s{S_T0}, v3")
    a(f"s_mov_b32 s{S_T1}, {P.ldo}")
    a(f"v_mul_lo_u32 v7, v6, s{S_T1}")
    a(f"s_lshl_b32 s{S_T0}, s{S_C0}, 1")
    a(f"v_lshl_add_u32 v7, v4, 4, v7")
    a(f"v_add_u32 v7, s{S_T0}, v7")
    a("v_mov_b32 v8, 0x80000000")
    P.store_body(a)
    P.set_fidx(a)

def store_addr(a, k, dst, P, coloff=0):
    a(f"v_add_u32 v9, {64*k}, v6")
    a(f"v_cmp_gt_u32 vcc, s{S_REND}, v9")
    a(f"v_add_u32 v{dst}, {64*k*P.ldo + coloff}, v7")
    a("s_nop 0")
    a(f"v_cndmask_b32 v{dst}, v8, v{dst}, vcc")

class P1(Phase):
    key = 'p1'; kind = "p1"; NT = 255
    MV = 121; NC = 128; lda = 1280; ldb = 3840; ldo = 3840
    ABYTES = 16384; STAGE = 32768; NS = 4; S = 10
    NXMAX = 4; RPM = 2
    has_stage_work = True; has_e1 = True
    scA = ""
    panel_coloff = [0, 128]; panel_srd = [SRD_B0, SRD_B0]
    LDS_ST = 131072; LDS_CS = 131072 + 1024
    TBASE = 2*32768
    rot = (5, 10, 2)
    Ains = [None, None, None, 'mask']
    Bins = [(0, 0), (0, 4), (1, 0), (1, 4)]
    def __init__(self):
        self.vXc, self.vWc = 8, 9
        self.vXa, self.vXb = 10, 11
        self.vW = [12, 13, 14, 15]
        self.xlist = [(self.vXa, self.vXb, 2048*x) for x in range(4)]
        self.wlist = [(self.vW[f], self.ABYTES) for f in range(4)]
        self.ACC = 32
        self.mf = [(x, f, self.ACC + 4*(4*x + f)) for x in range(4) for f in range(4)]
    def mask_setup(self, a):
        a(f"s_cmp_eq_u32 s{S_W}, 3")
        a(f"s_cselect_b32 s{S_MASK}, 0xff, -1")
        a(f"s_cselect_b32 s{S_MASK+1}, 0, -1")
    def build_srds(self, a, role):
        if role == 'l':
            srd(a, SRD_A, ptr(KA_X), 0, S_TOK*D*2)
            srd(a, SRD_B0, ptr(KA_WQKV), 0, D*NQKV*2)
        srd(a, SRD_OUT, ptr(KA_WS), WS_QKV, S_TOK*NQKV*2)
    def set_fidx(self, a):
        a(f"s_mul_i32 s{S_FIDX}, s{S_RT}, 15")
        a(f"s_add_u32 s{S_FIDX}, s{S_FIDX}, s{S_CT}")
        a(f"s_lshl_b32 s{S_FIDX}, s{S_FIDX}, 3")
    def loader_post_first(self, a):
        pad_init(a, self, 121, 6, 127)
        a("v_lshrrev_b32 v12, 1, v2")
        a(f"s_lshl_b32 s{S_T0}, s{S_W}, 5")
        a(f"v_add_u32 v12, s{S_T0}, v12        ; row")
        a("v_lshlrev_b32 v12, 7, v12")
        a("v_and_b32 v13, 1, v2")
        a("v_lshl_add_u32 v12, v13, 6, v12")
        a("v_lshrrev_b32 v13, 2, v2")
        for t in range(4):
            a(f"v_add_u32 v14, {t}, v13")
            a("v_and_b32 v14, 3, v14")
            a(f"v_lshl_add_u32 v{16+t}, v14, 4, v12")
        a("v_mov_b32 v24, 0"); a("v_mov_b32 v25, 0"); a("v_mov_b32 v26, 0"); a("v_mov_b32 v27, 0")
        a(f"s_mov_b32 s{S_T2}, 0")
        return 0
    def loader_stage_work_parts(self):
        g0 = [f"v_add_u32 v{20+t}, s{S_T2}, v{16+t}" for t in range(4)]
        g0 += [f"ds_read_b128 v[{64+4*t}:{67+4*t}], v{20+t}" for t in range(4)]
        g1 = [f"s_add_u32 s{S_T2}, s{S_T2}, {self.STAGE}", f"s_cmp_ge_u32 s{S_T2}, {self.STAGE*self.NS}", f"s_cselect_b32 s{S_T2}, 0, s{S_T2}"]
        gs = [g0, g1]
        for t in range(4):
            g = [f"s_waitcnt lgkmcnt({3-t})"]
            for d in range(4):
                r = 64 + 4*t + d
                s_, q_ = (24, 25) if d & 1 == 0 else (26, 27)
                g.append(f"v_dot2_f32_bf16 v{s_}, v{r}, v10, v{s_}")
                g.append(f"v_dot2_f32_bf16 v{q_}, v{r}, v{r}, v{q_}")
            gs.append(g)
        return gs
    def loader_final(self, a):
        a("s_nop 3")
        a("v_add_f32 v24, v24, v26")
        a("v_add_f32 v25, v25, v27")
        a("s_nop 1")
        a("v_add_f32_dpp v24, v24, v24 quad_perm:[1,0,3,2] row_mask:0xf bank_mask:0xf")
        a("v_add_f32_dpp v25, v25, v25 quad_perm:[1,0,3,2] row_mask:0xf bank_mask:0xf")
        a(f"v_mul_f32 v24, {hex(f2u(1.0/D))}, v24")
        a(f"v_mul_f32 v25, {hex(f2u(1.0/D))}, v25")
        a("v_fma_f32 v25, -v24, v24, v25      ; var")
        a(f"v_add_f32 v25, {hex(f2u(1e-5))}, v25")
        a("v_rsq_f32 v25, v25")
        a("v_lshrrev_b32 v12, 1, v2")
        a(f"s_lshl_b32 s{S_T0}, s{S_W}, 5")
        a(f"v_add_u32 v12, s{S_T0}, v12")
        a("v_lshlrev_b32 v12, 3, v12")
        a(f"v_add_u32 v12, {self.LDS_ST}, v12")
        set_exec(a, 0x5555555555555555)
        a("ds_write_b64 v12, v[24:25]")
        a("s_mov_b64 exec, -1")
    def consumer_setup(self, a):
        cons_lane(a)
        a(f"s_lshr_b32 s{S_I}, s{S_WAVE}, 1")
        a(f"s_and_b32 s{S_J}, s{S_WAVE}, 1")
        a(f"s_lshl_b32 s{S_T1}, s{S_I}, 6")
        x_addr_const(a, self.vXc, S_T1)
        w_addr_const(a, self.vWc)
        a(f"s_lshl_b32 s{S_T0}, s{S_J}, 13")
        a(f"v_add_u32 v{self.vWc}, s{S_T0}, v{self.vWc}")
    def addr_update(self):
        r = [f"v_add_u32 v{self.vXa}, s{S_SLOT}, v{self.vXc}",
             f"v_add_u32 v{self.vW[0]}, s{S_SLOT}, v{self.vWc}",
             f"v_xor_b32 v{self.vXb}, 64, v{self.vXa}"]
        for f in range(1, len(self.vW)):
            r.append(f"v_xor_b32 v{self.vW[f]}, {32*f}, v{self.vW[0]}")
        return r
    def epilogue(self, a):
        nocs = a.new("nocs")
        a(f"s_lshl_b32 s{S_T0}, s{S_J}, 8       ; j*64*4")
        a(f"v_lshlrev_b32 v16, 4, v4            ; g*16 bytes")
        a(f"v_add_u32 v16, s{S_T0}, v16")
        a(f"v_add_u32 v16, {self.LDS_CS}, v16")
        a(f"s_cmp_eq_u32 s{S_I}, 1")
        a(f"s_cbranch_scc0 {nocs}")
        set_exec(a, 0x8000800080008000)
        for f in range(4):
            acc = self.ACC + 4*(4*3 + f)
            a(f"ds_write_b128 v16, v[{acc}:{acc+3}] offset:{64*f}")
        a("s_mov_b64 exec, -1")
        a.label(nocs)
        t_write_addr(a, 17, self.TBASE)
        a(f"s_lshl_b32 s{S_T0}, s{S_J}, 14")
        a(f"s_lshl_b32 s{S_T1}, s{S_I}, 13")
        a(f"s_add_u32 s{S_T0}, s{S_T0}, s{S_T1}")
        a(f"v_add_u32 v17, s{S_T0}, v17")
        for f in range(1, 4): a(f"v_xor_b32 v{17+f}, {32*f}, v17")
        a(f"s_lshl_b32 s{S_T0}, s{S_I}, 9       ; i*64*8")
        a(f"v_lshlrev_b32 v6, 3, v3")
        a(f"v_add_u32 v6, s{S_T0}, v6")
        a(f"v_add_u32 v6, {self.LDS_ST}, v6")
        a("s_waitcnt lgkmcnt(0)")
        a("s_barrier      ; E1")
        CS = 96; ST = 112
        for f in range(4):
            a(f"ds_read_b128 v[{CS+4*f}:{CS+4*f+3}], v16 offset:{64*f}")
        for x in range(4):
            a(f"ds_read_b64 v[{ST+2*x}:{ST+2*x+1}], v6 offset:{128*x}")
        a("s_waitcnt lgkmcnt(0)")
        for x in range(4):
            st = ST + 2*x
            for f in range(4):
                acc = self.ACC + 4*(4*x + f)
                for hh in (0, 2):
                    a(f"v_pk_fma_f32 v[{acc+hh}:{acc+hh+1}], v[{CS+4*f+hh}:{CS+4*f+hh+1}], v[{st}:{st+1}], v[{acc+hh}:{acc+hh+1}] op_sel_hi:[1,0,1] neg_lo:[0,1,0] neg_hi:[0,1,0]")
                for hh in (0, 2):
                    a(f"v_pk_mul_f32 v[{acc+hh}:{acc+hh+1}], v[{acc+hh}:{acc+hh+1}], v[{st}:{st+1}] op_sel:[0,1] op_sel_hi:[1,1]")
                a(f"v_cvt_pk_bf16_f32 v{acc}, v{acc}, v{acc+1}")
                a(f"v_cvt_pk_bf16_f32 v{acc+1}, v{acc+2}, v{acc+3}")
                a(f"ds_write_b64 v{17+f}, v[{acc}:{acc+1}] offset:{2048*x}")
    def store_body(self, a):
        for k in range(2):
            for pn in range(2):
                r = 16 + 4*(2*k + pn)
                a(f"ds_read_b128 v[{r}:{r+3}], v5 offset:{pn*16384 + k*8192}")
        for k in range(2):
            store_addr(a, k, 10 + k, self)
        for k in range(2):
            for pn in range(2):
                r = 16 + 4*(2*k + pn)
                a(f"s_waitcnt lgkmcnt({3 - (2*k+pn)})")
                a(f"buffer_store_dwordx4 v[{r}:{r+3}], v{10+k}, s[{SRD_OUT}:{SRD_OUT+3}], 0 offen offset:{128*pn}{SC1}")

class P24(Phase):
    kind = "rm"; NT = 250
    MV = 82; NC = 64; ldb = 1280; ldo = 1280
    ABYTES = 12288; STAGE = 20480; NS = 7
    NXMAX = 3; RPM = 2
    scA = SC1
    panel_coloff = [0]; panel_srd = [SRD_B0]
    TBASE = 0
    Ains = [None, None, 'skip']
    Bins = [(0, 0), (0, 4)]
    prefetchB = 7
    def __init__(self, which):
        self.which = which
        if which == 2:
            self.key = 'p2'; self.lda = 1280; self.S = 10; self.rot = (4, 13, 2)
        else:
            self.key = 'p4'; self.lda = 3456; self.S = 27; self.rot = (11, 36, 2)
        assert (self.S - 1) % self.NS != 0
        self.vXc, self.vWc = 8, 9
        self.vXa, self.vXb = 10, 11
        self.vW = [12, 13]
        self.xlist = [(self.vXa, self.vXb, 2048*x) for x in range(3)]
        self.wlist = [(self.vW[f], self.ABYTES) for f in range(2)]
        self.ACC = 32
        self.mf = [(x, f, self.ACC + 4*(2*x + f)) for x in range(3) for f in range(2)]
    def mask_setup(self, a):
        a(f"s_cmp_lt_u32 s{S_W}, 2")
        a(f"s_cselect_b32 s{S_MASK}, -1, 0xffff")
        a(f"s_cselect_b32 s{S_MASK+1}, -1, 0")
        a(f"s_cmp_eq_u32 s{S_W}, 3")
        a(f"s_cselect_b32 s{S_MASK}, 0, s{S_MASK}")
    def build_srds(self, a, role):
        if self.which == 2:
            if role == 'l':
                srd(a, SRD_A, ptr(KA_WS), WS_O, S_TOK*D*2)
                srd(a, SRD_B0, ptr(KA_WO), 0, D*D*2)
            srd(a, SRD_OUT, ptr(KA_WS), WS_H, S_TOK*D*2)
            srd(a, SRD_AUX, ptr(KA_X), 0, S_TOK*D*2)
            srd(a, SRD_ST, ptr(KA_WS), WS_ST, 10*S_TOK*8)
        else:
            if role == 'l':
                srd(a, SRD_A, ptr(KA_WS), WS_HH, S_TOK*F*2)
                srd(a, SRD_B0, ptr(KA_WD), 0, F*D*2)
            srd(a, SRD_OUT, ptr(KA_OUT), 0, S_TOK*D*2)
            srd(a, SRD_AUX, ptr(KA_WS), WS_H, S_TOK*D*2)
    def deps(self, a):
        if self.which == 2:
            a(f"s_lshr_b32 s{S_T0}, s{S_R0}, 4")
            a(f"s_lshl_b32 s{S_T0}, s{S_T0}, 1")
            a(f"s_sub_u32 s{S_T1}, s{S_REND}, 1")
            a(f"s_lshr_b32 s{S_T1}, s{S_T1}, 4")
            a(f"s_lshl_b32 s{S_T1}, s{S_T1}, 1")
            a(f"s_add_u32 s{S_T1}, s{S_T1}, 2")
            poll(a, S_T0, S_T1, 0x1000)
        else:
            sdiv(a, S_T0, S_R0, 228, 2100)
            a(f"s_sub_u32 s{S_T1}, s{S_REND}, 1")
            sdiv(a, S_T1, S_T1, 228, 2100)
            a(f"s_mul_i32 s{S_T0}, s{S_T0}, 27")
            a(f"s_add_u32 s{S_T1}, s{S_T1}, 1")
            a(f"s_mul_i32 s{S_T1}, s{S_T1}, 27")
            poll(a, S_T0, S_T1, 0x3000)
    def set_fidx(self, a):
        if self.which == 2:
            a(f"s_mul_i32 s{S_FIDX}, s{S_RT}, 10")
            a(f"s_add_u32 s{S_FIDX}, s{S_FIDX}, s{S_CT}")
            a(f"s_lshl_b32 s{S_FIDX}, s{S_FIDX}, 3")
            a(f"s_add_u32 s{S_FIDX}, s{S_FIDX}, 0x2000")
        else:
            a(f"s_mov_b32 s{S_FIDX}, -1")
    def loader_post_first(self, a):
        pad_init(a, self, 82, 14, None)
        return 0
    def consumer_setup(self, a):
        cons_lane(a)
        a(f"s_lshr_b32 s{S_I}, s{S_WAVE}, 1")
        a(f"s_and_b32 s{S_J}, s{S_WAVE}, 1")
        a(f"s_mul_i32 s{S_T1}, s{S_I}, 48")
        x_addr_const(a, self.vXc, S_T1)
        w_addr_const(a, self.vWc)
        a(f"s_lshl_b32 s{S_T0}, s{S_J}, 6      ; f0 = 2j -> xor 64j")
        a(f"v_xor_b32 v{self.vWc}, s{S_T0}, v{self.vWc}")
    def addr_update(self):
        return P1.addr_update(self)
    def epilogue(self, a):
        t_write_addr(a, 17, self.TBASE)
        a(f"s_mul_i32 s{S_T0}, s{S_I}, {48*128}")
        a(f"v_add_u32 v17, s{S_T0}, v17")
        a(f"s_lshl_b32 s{S_T0}, s{S_J}, 6")
        a(f"v_xor_b32 v17, s{S_T0}, v17        ; f0 = 2j")
        a(f"v_xor_b32 v18, 32, v17")
        for x in range(3):
            for f in range(2):
                acc = self.ACC + 4*(2*x + f)
                a(f"v_cvt_pk_bf16_f32 v{acc}, v{acc}, v{acc+1}")
                a(f"v_cvt_pk_bf16_f32 v{acc+1}, v{acc+2}, v{acc+3}")
                a(f"ds_write_b64 v{17+f}, v[{acc}:{acc+1}] offset:{2048*x}")
    RES = 100
    def store_pre(self, a):
        a("v_lshrrev_b32 v20, 3, v2")
        a("v_and_b32 v21, 7, v2")
        a(f"s_lshl_b32 s{S_T0}, s{S_WAVE}, 3")
        a(f"s_add_u32 s{S_T0}, s{S_T0}, s{S_R0}")
        a(f"v_add_u32 v20, s{S_T0}, v20")
        a("v_mul_u32_u24 v20, 1280, v20")
        a(f"s_lshl_b32 s{S_T0}, s{S_C0}, 1")
        a("v_lshl_add_u32 v20, v21, 4, v20")
        a(f"v_add_u32 v20, s{S_T0}, v20")
        sc = SC1 if self.which == 4 else ""
        a(f"buffer_load_dwordx4 v[{self.RES}:{self.RES+3}], v20, s[{SRD_AUX}:{SRD_AUX+3}], 0 offen{sc}")
        a(f"v_add_u32 v20, {64*1280}, v20")
        a(f"buffer_load_dwordx4 v[{self.RES+4}:{self.RES+7}], v20, s[{SRD_AUX}:{SRD_AUX+3}], 0 offen{sc}")
    def store_body(self, a):
        sdone = a.new("sdone")
        sc = SC1 if self.which == 2 else ""
        for k in range(2):
            a(f"ds_read_b128 v[{16+4*k}:{19+4*k}], v5 offset:{k*8192}")
        for k in range(2):
            store_addr(a, k, 10 + k, self)
        if self.which == 2:
            a(f"v_mov_b32 v26, {hex(ONES)}")
        a(f"s_waitcnt vmcnt(0) lgkmcnt(0)")
        for k in range(2):
            if k == 1:
                a(f"s_cmp_ge_u32 s{S_WAVE}, 3")
                a(f"s_cbranch_scc1 {sdone}")
            T = 16 + 4*k; R = self.RES + 4*k
            for d in range(4):
                a(f"v_lshlrev_b32 v28, 16, v{T+d}")
                a(f"v_and_b32 v29, 0xffff0000, v{T+d}")
                a(f"v_lshlrev_b32 v30, 16, v{R+d}")
                a(f"v_and_b32 v31, 0xffff0000, v{R+d}")
                a(f"v_pk_add_f32 v[28:29], v[28:29], v[30:31]")
                a(f"v_cvt_pk_bf16_f32 v{T+d}, v28, v29")
            a(f"buffer_store_dwordx4 v[{T}:{T+3}], v{10+k}, s[{SRD_OUT}:{SRD_OUT+3}], 0 offen{sc}")
            if self.which == 2:
                a("v_mov_b32 v24, 0"); a("v_mov_b32 v25, 0")
                a("s_nop 0")
                for d in range(4):
                    a(f"v_dot2_f32_bf16 v24, v{T+d}, v26, v24")
                    a(f"v_dot2_f32_bf16 v25, v{T+d}, v{T+d}, v25")
                a("s_nop 2")
                for dpp in ("quad_perm:[1,0,3,2]", "quad_perm:[2,3,0,1]", "row_half_mirror"):
                    a(f"v_add_f32_dpp v24, v24, v24 {dpp} row_mask:0xf bank_mask:0xf")
                    a(f"v_add_f32_dpp v25, v25, v25 {dpp} row_mask:0xf bank_mask:0xf")
                    a("s_nop 0")
                a(f"v_add_u32 v9, {64*k}, v6")
                a(f"v_cmp_gt_u32 vcc, s{S_REND}, v9")
                a(f"s_mul_i32 s{S_T0}, s{S_CT}, {S_TOK}")
                a(f"v_add_u32 v9, s{S_T0}, v9")
                a("v_lshlrev_b32 v9, 3, v9")
                a("v_cndmask_b32 v9, v8, v9, vcc")
                set_exec(a, 0x0101010101010101)
                a(f"buffer_store_dwordx2 v[24:25], v9, s[{SRD_ST}:{SRD_ST+3}], 0 offen{SC1}")
                a("s_mov_b64 exec, -1")
        a.label(sdone)

class P3(Phase):
    key = 'p3'; kind = "p3"; NT = 243
    MV = 228; NC = 64; lda = 1280; ldb = 3456; ldo = 3456
    ABYTES = 30720; STAGE = 47104; NS = 3; S = 10
    NXMAX = 8; RPM = 1
    has_e1 = True
    scA = SC1
    panel_coloff = [0, 0]; panel_srd = [SRD_B0, SRD_B1]
    LDS_ST = 47104*3; LDS_CS = 47104*3 + 1920
    TBASE = 47104
    rot = (4, 13, 2)
    Ains = [None]*7 + ['skip']
    Bins = [(0, 0), (0, 4), (1, 0), (1, 4)]
    prefetchB = 3
    def __init__(self):
        self.vXc, self.vXsc, self.vWc = 8, 9, 10
        self.vXa, self.vXb, self.vXsa, self.vXsb = 11, 12, 13, 14
        self.vW = [15, 16]
        self.xlist = [(self.vXa, self.vXb, 2048*x) for x in range(7)] + [(self.vXsa, self.vXsb, 0)]
        G, U = self.ABYTES, self.ABYTES + 8192
        self.wlist = [(self.vW[0], G), (self.vW[0], U), (self.vW[1], G), (self.vW[1], U)]
        self.ACC = 32
        self.mf = []
        acc = self.ACC
        self.accmap = {}
        for x in range(8):
            for wi in range(4):
                if x == 7 and wi >= 2: continue
                self.mf.append((x, wi, acc)); self.accmap[(x, wi)] = acc; acc += 4
        assert acc == 32 + 120
    def mask_setup(self, a):
        a(f"s_cmp_eq_u32 s{S_W}, 0")
        a(f"s_cselect_b32 s{S_MASK}, -1, 0")
        a(f"s_mov_b32 s{S_MASK+1}, 0")
    def build_srds(self, a, role):
        if role == 'l':
            srd(a, SRD_A, ptr(KA_WS), WS_H, S_TOK*D*2)
            srd(a, SRD_B0, ptr(KA_WG), 0, D*F*2)
            srd(a, SRD_B1, ptr(KA_WU), 0, D*F*2)
            srd(a, SRD_ST, ptr(KA_WS), WS_ST, 10*S_TOK*8)
        srd(a, SRD_OUT, ptr(KA_WS), WS_HH, S_TOK*F*2)
    def deps(self, a):
        sdiv(a, S_T0, S_R0, 82, 2100)
        a(f"s_sub_u32 s{S_T1}, s{S_REND}, 1")
        sdiv(a, S_T1, S_T1, 82, 2100)
        a(f"s_mul_i32 s{S_T0}, s{S_T0}, 10")
        a(f"s_add_u32 s{S_T1}, s{S_T1}, 1")
        a(f"s_mul_i32 s{S_T1}, s{S_T1}, 10")
        poll(a, S_T0, S_T1, 0x2000)
    def set_fidx(self, a):
        a(f"s_mul_i32 s{S_FIDX}, s{S_RT}, 27")
        a(f"s_add_u32 s{S_FIDX}, s{S_FIDX}, s{S_CT}")
        a(f"s_lshl_b32 s{S_FIDX}, s{S_FIDX}, 3")
        a(f"s_add_u32 s{S_FIDX}, s{S_FIDX}, 0x3000")
    def loader_post_first(self, a):
        pad_init(a, self, 228, 11, 239)
        a(f"s_lshl_b32 s{S_T0}, s{S_W}, 6")
        a(f"v_add_u32 v12, s{S_T0}, v2")
        a(f"v_add_u32 v13, s{S_R0}, v12")
        a("v_lshlrev_b32 v13, 3, v13")
        a(f"v_cmp_gt_u32 vcc, {self.MV}, v12")
        a("v_mov_b32 v14, 0x80000000")
        a("s_nop 0")
        a("v_cndmask_b32 v13, v14, v13, vcc")
        for c in range(10):
            a(f"s_mov_b32 s{S_T0}, {c*S_TOK*8}")
            a(f"buffer_load_dwordx2 v[{64+2*c}:{65+2*c}], v13, s[{SRD_ST}:{SRD_ST+3}], s{S_T0} offen{SC1}")
        return 10
    def loader_final(self, a):
        for c in range(1, 10):
            a(f"v_pk_add_f32 v[64:65], v[64:65], v[{64+2*c}:{65+2*c}]")
        a(f"v_mul_f32 v64, {hex(f2u(1.0/D))}, v64")
        a(f"v_mul_f32 v65, {hex(f2u(1.0/D))}, v65")
        a("v_fma_f32 v65, -v64, v64, v65")
        a(f"v_add_f32 v65, {hex(f2u(1e-5))}, v65")
        a("v_rsq_f32 v65, v65")
        a("v_lshlrev_b32 v12, 3, v12")
        a(f"v_add_u32 v12, {self.LDS_ST}, v12")
        a(f"s_cmp_eq_u32 s{S_W}, 3")
        a(f"s_cselect_b32 exec_hi, 0xffff, -1")
        a("ds_write_b64 v12, v[64:65]")
        a("s_mov_b64 exec, -1")
    def consumer_setup(self, a):
        cons_lane(a)
        a(f"s_lshr_b32 s{S_I}, s{S_WAVE}, 1")
        a(f"s_and_b32 s{S_J}, s{S_WAVE}, 1")
        a(f"s_lshl_b32 s{S_T1}, s{S_I}, 7")
        x_addr_const(a, self.vXc, S_T1)
        x_addr_const(a, self.vXsc, None, 112)
        w_addr_const(a, self.vWc)
        a(f"s_lshl_b32 s{S_T0}, s{S_J}, 1")
        a(f"s_add_u32 s{S_T0}, s{S_T0}, s{S_I}")
        a(f"s_lshl_b32 s{S_T0}, s{S_T0}, 5")
        a(f"v_xor_b32 v{self.vWc}, s{S_T0}, v{self.vWc}")
    def addr_update(self):
        return [f"v_add_u32 v{self.vXa}, s{S_SLOT}, v{self.vXc}",
                f"v_add_u32 v{self.vW[0]}, s{S_SLOT}, v{self.vWc}",
                f"v_add_u32 v{self.vXsa}, s{S_SLOT}, v{self.vXsc}",
                f"v_xor_b32 v{self.vXb}, 64, v{self.vXa}",
                f"v_xor_b32 v{self.vW[1]}, 32, v{self.vW[0]}",
                f"v_xor_b32 v{self.vXsb}, 64, v{self.vXsa}"]
    def epilogue(self, a):
        nocs = a.new("nocs")
        a(f"s_lshl_b32 s{S_T0}, s{S_J}, 1")
        a(f"s_add_u32 s{S_T2}, s{S_T0}, s{S_I}     ; f0")
        a(f"s_lshl_b32 s{S_T0}, s{S_T2}, 6         ; f0*16*4 bytes")
        a(f"v_lshlrev_b32 v24, 4, v4")
        a(f"v_add_u32 v24, s{S_T0}, v24")
        a(f"v_add_u32 v24, {self.LDS_CS}, v24")
        a(f"v_xor_b32 v25, 64, v24                 ; f1")
        assert self.LDS_CS % 128 == 0
        a(f"s_cmp_eq_u32 s{S_I}, 1")
        a(f"s_cbranch_scc0 {nocs}")
        set_exec(a, 0x8000800080008000)
        for wi, (areg, poff) in enumerate([(24, 0), (24, 256), (25, 0), (25, 256)]):
            acc = self.accmap[(6, wi)]
            a(f"ds_write_b128 v{areg}, v[{acc}:{acc+3}] offset:{poff}")
        a("s_mov_b64 exec, -1")
        a.label(nocs)
        t_write_addr(a, 26, self.TBASE)
        a(f"s_lshl_b32 s{S_T0}, s{S_T2}, 5")
        a(f"v_xor_b32 v26, s{S_T0}, v26")
        a(f"v_add_u32 v28, {112*128}, v26")
        a(f"s_lshl_b32 s{S_T0}, s{S_I}, 14")
        a(f"v_add_u32 v26, s{S_T0}, v26")
        a(f"v_xor_b32 v27, 32, v26")
        a(f"s_lshl_b32 s{S_T0}, s{S_I}, 10         ; 128*i*8")
        a(f"v_lshlrev_b32 v29, 3, v3")
        a(f"v_add_u32 v30, {self.LDS_ST + 112*8}, v29")
        a(f"v_add_u32 v29, s{S_T0}, v29")
        a(f"v_add_u32 v29, {self.LDS_ST}, v29")
        a("s_waitcnt lgkmcnt(0)")
        a("s_barrier      ; E1")
        CS = 8
        for wi, (areg, poff) in enumerate([(24, 0), (24, 256), (25, 0), (25, 256)]):
            a(f"ds_read_b128 v[{CS+4*wi}:{CS+4*wi+3}], v{areg} offset:{poff}")
        def rdst(x):
            st = 152 + 2*(x & 3)
            if x < 7: a(f"ds_read_b64 v[{st}:{st+1}], v29 offset:{128*x}")
            else: a(f"ds_read_b64 v[{st}:{st+1}], v30")
        for x in range(4): rdst(x)
        for x in range(8):
            st = 152 + 2*(x & 3)
            if x == 0 or x == 4: a("s_waitcnt lgkmcnt(0)")
            a(f"v_mul_f32 v{st+1}, v{st+1}, v{st+1}")
            for p in range(2):
                if x == 7 and p == 1: continue
                g = self.accmap[(x, 2*p)]; u = self.accmap[(x, 2*p+1)]
                cg = CS + 8*p; cu = CS + 8*p + 4
                for hh in (0, 2):
                    a(f"v_pk_fma_f32 v[{g+hh}:{g+hh+1}], v[{cg+hh}:{cg+hh+1}], v[{st}:{st+1}], v[{g+hh}:{g+hh+1}] op_sel_hi:[1,0,1] neg_lo:[0,1,0] neg_hi:[0,1,0]")
                    a(f"v_pk_fma_f32 v[{u+hh}:{u+hh+1}], v[{cu+hh}:{cu+hh+1}], v[{st}:{st+1}], v[{u+hh}:{u+hh+1}] op_sel_hi:[1,0,1] neg_lo:[0,1,0] neg_hi:[0,1,0]")
                for hh in (0, 2):
                    a(f"v_pk_mul_f32 v[{g+hh}:{g+hh+1}], v[{g+hh}:{g+hh+1}], v[{u+hh}:{u+hh+1}]")
                for hh in (0, 2):
                    a(f"v_pk_mul_f32 v[{g+hh}:{g+hh+1}], v[{g+hh}:{g+hh+1}], v[{st}:{st+1}] op_sel:[0,1] op_sel_hi:[1,1]")
                a(f"v_cvt_pk_bf16_f32 v{g}, v{g}, v{g+1}")
                a(f"v_cvt_pk_bf16_f32 v{g+1}, v{g+2}, v{g+3}")
                if x < 7: a(f"ds_write_b64 v{26+p}, v[{g}:{g+1}] offset:{2048*x}")
                else: a(f"ds_write_b64 v28, v[{g}:{g+1}]")
            if x < 4: rdst(x + 4)
    def store_body(self, a):
        for k in range(4):
            a(f"ds_read_b128 v[{16+4*k}:{19+4*k}], v5 offset:{k*8192}")
        for k in range(4):
            store_addr(a, k, 10 + k, self)
        for k in range(4):
            a(f"s_waitcnt lgkmcnt({3-k})")
            a(f"buffer_store_dwordx4 v[{16+4*k}:{19+4*k}], v{10+k}, s[{SRD_OUT}:{SRD_OUT+3}], 0 offen{SC1}")

ROWB = 656
LQ, LK, LV, LO = 16384, 16384 + 16*ROWB, 16384 + 46*ROWB, 0
def att_phase(a, role):
    a(f"s_lshl_b32 s{S_R0}, s{S_RT}, 4       ; T0")
    srd(a, SRD_A, ptr(KA_WS), WS_QKV, S_TOK*NQKV*2)
    srd(a, SRD_OUT, ptr(KA_WS), WS_O, S_TOK*D*2)
    NI = 49
    nper = (NI + 7)//8
    a(f"s_mov_b32 s{S_T2}, 3840")
    a(f"s_mul_i32 s{S_T3}, s{S_CT}, 640")
    for j in range(nper):
        r = 32 + j
        a(f"s_add_u32 s{S_T0}, s{S_WAVE}, {8*j}")
        a(f"s_lshl_b32 s{S_T0}, s{S_T0}, 6")
        a(f"v_add_u32 v3, s{S_T0}, v2           ; c")
        vdiv(a, 4, 3, 41, 64*56)
        a("v_mul_u32_u24 v5, 41, v4")
        a("v_sub_u32 v5, v3, v5                  ; kap")
        a("v_cmp_le_u32 vcc, 16, v4")
        a("v_mov_b32 v8, 0x80000000")
        a("s_nop 0")
        a("v_cndmask_b32 v6, 0, 1, vcc")
        a("v_cmp_le_u32 vcc, 46, v4")
        a("s_nop 1")
        a("v_cndmask_b32 v7, 0, 1, vcc")
        a("v_add_u32 v6, v6, v7                  ; seg")
        a("v_mul_u32_u24 v7, 30, v6")
        a("v_sub_u32 v7, v4, v7")
        a(f"v_add_u32 v7, s{S_R0}, v7            ; token")
        a(f"v_mul_lo_u32 v7, v7, s{S_T2}")
        a("v_mul_u32_u24 v6, 1280, v6")
        a("v_add_u32 v7, v7, v6")
        a("v_lshl_add_u32 v7, v5, 4, v7")
        a(f"v_add_u32 v7, s{S_T3}, v7")
        a("v_cmp_gt_u32 vcc, 40, v5")
        a("s_nop 1")
        a("v_cndmask_b32 v7, v8, v7, vcc")
        a("v_cmp_gt_u32 vcc, 76, v4")
        a("s_nop 1")
        a(f"v_cndmask_b32 v{r}, v8, v7, vcc")
    if role == 'c':
        a(f"s_sub_u32 s{S_T0}, s{S_R0}, 14")
        a(f"s_max_i32 s{S_T0}, s{S_T0}, 0")
        sdiv(a, S_T0, S_T0, 121, 2100)
        a(f"s_add_u32 s{S_T1}, s{S_R0}, 15")
        sdiv(a, S_T1, S_T1, 121, 2100)
        a(f"s_mul_i32 s{S_T0}, s{S_T0}, 15")
        a(f"s_add_u32 s{S_T1}, s{S_T1}, 1")
        a(f"s_mul_i32 s{S_T1}, s{S_T1}, 15")
        poll(a, S_T0, S_T1, 0)
        a("s_barrier      ; B_dep")
    else:
        a("s_barrier      ; B_dep")
    stamp(a, 0)
    for j in range(nper):
        sk = None
        if 8*j + 7 >= NI:
            sk = a.new("attsk")
            a(f"s_cmp_ge_u32 s{S_WAVE}, {NI - 8*j}")
            a(f"s_cbranch_scc1 {sk}")
        a(f"s_add_u32 s{S_T0}, s{S_WAVE}, {8*j}")
        a(f"s_lshl_b32 s{S_T0}, s{S_T0}, 10")
        a(f"s_add_u32 m0, s{S_T0}, {LQ}")
        a("s_nop 0")
        a(f"buffer_load_dwordx4 v{32+j}, s[{SRD_A}:{SRD_A+3}], 0 offen{SC1} lds")
        if sk: a.label(sk)
    a("v_and_b32 v3, 1, v2            ; sub")
    a("v_bfe_u32 v4, v2, 1, 4         ; head")
    a("v_lshrrev_b32 v5, 5, v2")
    a(f"s_lshl_b32 s{S_T0}, s{S_WAVE}, 1")
    a(f"v_add_u32 v5, s{S_T0}, v5")
    a(f"v_mul_u32_u24 v6, {ROWB}, v5")
    a("v_mul_u32_u24 v7, 40, v4")
    a("v_add_u32 v6, v6, v7")
    a(f"v_mul_u32_u24 v7, {8*ROWB}, v3")
    a("v_sub_u32 v7, v6, v7")
    a(f"v_add_u32 v7, {LK}, v7")
    a("v_mul_u32_u24 v8, 24, v3       ; sub*24 -> X1 = 0/24, X2 = 8/32")
    a("v_add_u32 v8, v6, v8")
    a(f"v_add_u32 v8, {LV}, v8         ; b64 base")
    a("v_lshlrev_b32 v9, 2, v3        ; sub*4 -> X0 = 16/20")
    a("v_add_u32 v9, v6, v9")
    a(f"v_add_u32 v9, {LV + 16}, v9    ; b32 base")
    a(f"v_add_u32 v6, {LQ}, v6")
    a("s_waitcnt vmcnt(0)")
    a("s_barrier")
    stamp(a, 1)
    Q = 16; KR = 32; LG = 100; VR = 32
    for i in range(5):
        a(f"ds_read_b64 v[{Q+2*i}:{Q+2*i+1}], v6 offset:{8*i}")
    for w in range(4):
        for i in range(5):
            a(f"ds_read_b64 v[{KR+10*w+2*i}:{KR+10*w+2*i+1}], v7 offset:{(14 - 2*w)*ROWB + 8*i}")
    for w in range(4): a(f"v_mov_b32 v{LG+w}, 0")
    a(f"v_add_u32 v10, s{S_R0}, v5")
    a("v_lshlrev_b32 v11, 3, v3       ; sub*8")
    a("v_sub_u32 v10, v10, v11")
    a("s_waitcnt lgkmcnt(0)")
    for i in range(10):
        for w in range(4):
            a(f"v_dot2_f32_bf16 v{LG+w}, v{Q+i}, v{KR+10*w+i}, v{LG+w}")
    for w in range(8):
        off = (14 - 2*w)*ROWB
        a(f"ds_read_b64 v[{VR+6*w}:{VR+6*w+1}], v8 offset:{off}")
        a(f"ds_read_b64 v[{VR+6*w+2}:{VR+6*w+3}], v8 offset:{off + 8}")
        a(f"ds_read_b32 v{VR+6*w+4}, v9 offset:{off}")
    scale = (D // 32) ** -0.5
    c1 = scale * 1.4426950408889634
    a(f"s_mov_b32 s{S_T0}, {hex(f2u(c1))}")
    a(f"v_mov_b32 v12, {hex(f2u(-1e30))}")
    for w in range(4):
        a(f"v_mul_f32 v{LG+w}, s{S_T0}, v{LG+w}")
    for w in range(4):
        a(f"v_cmp_le_i32 vcc, {2*w}, v10")
        a("s_nop 1")
        a(f"v_cndmask_b32 v{LG+w}, v12, v{LG+w}, vcc")
    a(f"v_max3_f32 v13, v{LG}, v{LG+1}, v{LG+2}")
    a(f"v_max_f32 v13, v13, v{LG+3}")
    a("s_nop 1")
    a("v_max_f32_dpp v13, v13, v13 quad_perm:[1,0,3,2] row_mask:0xf bank_mask:0xf")
    for w in range(4):
        a(f"v_sub_f32 v{LG+w}, v{LG+w}, v13")
    for w in range(4):
        a(f"v_exp_f32 v{LG+w}, v{LG+w}")
    a("s_nop 0")
    a(f"v_add_f32 v13, v{LG}, v{LG+1}")
    a(f"v_add_f32 v14, v{LG+2}, v{LG+3}")
    a("v_add_f32 v13, v13, v14")
    a("s_nop 1")
    a("v_add_f32_dpp v13, v13, v13 quad_perm:[1,0,3,2] row_mask:0xf bank_mask:0xf")
    a("v_rcp_f32 v13, v13")
    a("s_nop 0")
    for w in range(4):
        a(f"v_mul_f32 v{LG+w}, v{LG+w}, v13")
    a(f"v_cvt_pk_bf16_f32 v{LG+4}, v{LG}, v{LG+1}")
    a(f"v_cvt_pk_bf16_f32 v{LG+5}, v{LG+2}, v{LG+3}")
    a("s_nop 1")
    a(f"v_mov_b32_dpp v{LG+6}, v{LG+4} quad_perm:[0,0,2,2] row_mask:0xf bank_mask:0xf")
    a(f"v_mov_b32_dpp v{LG+7}, v{LG+5} quad_perm:[0,0,2,2] row_mask:0xf bank_mask:0xf   ; keys 2,3")
    a(f"v_mov_b32_dpp v{LG+8}, v{LG+4} quad_perm:[1,1,3,3] row_mask:0xf bank_mask:0xf")
    a(f"v_mov_b32_dpp v{LG+9}, v{LG+5} quad_perm:[1,1,3,3] row_mask:0xf bank_mask:0xf   ; keys 6,7")
    O = 112
    for i in range(10): a(f"v_mov_b32 v{O+i}, 0")
    a(f"s_mov_b32 s{S_T0}, 0x05040100")
    a(f"s_mov_b32 s{S_T1}, 0x07060302")
    a("s_waitcnt lgkmcnt(0)")
    for kp in range(4):
        for d in range(5):
            ra = VR + 6*(2*kp) + d; rb = VR + 6*(2*kp+1) + d
            a(f"v_perm_b32 v14, v{rb}, v{ra}, s{S_T0}")
            a(f"v_perm_b32 v15, v{rb}, v{ra}, s{S_T1}")
            a(f"v_dot2_f32_bf16 v{O+2*d}, v14, v{LG+6+kp}, v{O+2*d}")
            a(f"v_dot2_f32_bf16 v{O+2*d+1}, v15, v{LG+6+kp}, v{O+2*d+1}")
    a("s_nop 2")
    for d in range(5):
        a(f"v_cvt_pk_bf16_f32 v{Q+d}, v{O+2*d}, v{O+2*d+1}")
    a(f"v_subrev_u32 v8, {LV - LO}, v8")
    a(f"v_subrev_u32 v9, {LV - LO}, v9")
    a(f"ds_write_b64 v8, v[{Q}:{Q+1}]")
    a(f"ds_write_b64 v8, v[{Q+2}:{Q+3}] offset:8")
    a(f"ds_write_b32 v9, v{Q+4}")
    a("s_waitcnt lgkmcnt(0)")
    stamp(a, 2)
    a("s_barrier")
    for j in range(2):
        sk = None
        if j == 1:
            sk = a.new("attst")
            a(f"s_cmp_ge_u32 s{S_WAVE}, 2")
            a(f"s_cbranch_scc1 {sk}")
        a(f"s_add_u32 s{S_T0}, s{S_WAVE}, {8*j}")
        a(f"s_lshl_b32 s{S_T0}, s{S_T0}, 6")
        a(f"v_add_u32 v3, s{S_T0}, v2           ; chunk c 0..639")
        vdiv(a, 4, 3, 40, 640)
        a("v_mul_u32_u24 v5, 40, v4")
        a("v_sub_u32 v5, v3, v5                  ; kap")
        a(f"v_mul_u32_u24 v6, {ROWB}, v4")
        a("v_lshl_add_u32 v6, v5, 4, v6")
        a(f"ds_read_b128 v[20:23], v6 offset:{LO}")
        a(f"v_add_u32 v4, s{S_R0}, v4")
        a("v_mul_u32_u24 v4, 1280, v4")
        a("v_lshl_add_u32 v4, v5, 4, v4")
        a(f"v_add_u32 v4, s{S_T3}, v4")
        a("s_waitcnt lgkmcnt(0)")
        a(f"buffer_store_dwordx4 v[20:23], v4, s[{SRD_OUT}:{SRD_OUT+3}], 0 offen{SC1}")
        if sk: a.label(sk)
    a(f"s_lshl_b32 s{S_FIDX}, s{S_RT}, 1")
    a(f"s_add_u32 s{S_FIDX}, s{S_FIDX}, s{S_CT}")
    a(f"s_lshl_b32 s{S_FIDX}, s{S_FIDX}, 3")
    a(f"s_add_u32 s{S_FIDX}, s{S_FIDX}, 0x1000")

def finish_phase(a, role):
    a("s_waitcnt vmcnt(0)")
    stamp(a, 4)
    a("s_barrier      ; E3")
    if role == 'c': publish(a)
    stamp(a, 5)

def role_program(a, role):
    phases = [P1(), 'att', P24(2), P3(), P24(4)]
    for n, P in enumerate(phases):
        first = (n == 0)
        nxt = a.new("next"); inv = a.new("inv")
        if P == 'att':
            tile_map(a, 256, 'att')
            att_phase(a, role)
            stamp(a, 3)
            finish_phase(a, role)
            prof_store(a, 'att', role)
            continue
        tile_map(a, P.NT, P.kind)
        a(f"s_cmp_eq_u32 s{S_VALID}, 0")
        a(f"s_cbranch_scc1 {inv}")
        P.tile_consts(a)
        if role == 'c': consumer_phase(a, P, first)
        else: loader_phase(a, P, first)
        stamp(a, 3)
        if P.key != 'p4': finish_phase(a, role)
        prof_store(a, P.key, role)
        if first and role == 'c':
            a(f"s_branch {nxt}")
            a.label(inv)
            nonce_setup(a)
            a.label(nxt)
        else:
            a.label(inv)

def main(out):
    a = Asm()
    a.raw(f".globl {KNAME}")
    a.raw(".p2align 8")
    a.raw(f".type {KNAME},@function")
    a.label(KNAME)
    if PROFDBG:
        a(f"s_memrealtime s[{S_P0+1}:{S_P0+2}]") if False else None
    a("s_cmp_ge_u32 s2, 256")
    a("s_cbranch_scc1 L_exit")
    a(f"s_load_dwordx16 s[{S_PTR}:{S_PTR+15}], s[0:1], 0")
    a(f"s_load_dwordx4 s[{S_PTR+16}:{S_PTR+19}], s[0:1], 64")
    if PROFDBG:
        a(f"{STAMP} s[98:99]")
    a("v_lshrrev_b32 v1, 6, v0")
    a("v_and_b32 v2, 63, v0      ; lane")
    a(f"s_mov_b32 s{S_FIDX}, -1")
    a(f"v_readfirstlane_b32 s{S_WAVE}, v1")
    a("s_waitcnt lgkmcnt(0)")
    if PROFDBG: a(f"s_mov_b32 s{S_P0}, s98")
    srd(a, SRD_FLAG, ptr(KA_WS), WS_FLAG, 0x4000)
    a(f"s_sub_u32 s{S_W}, s{S_WAVE}, 4")
    a(f"s_cmp_ge_u32 s{S_WAVE}, 4")
    a("s_cbranch_scc1 L_loader")
    role_program(a, 'c')
    a("s_waitcnt vmcnt(0)")
    a("s_endpgm")
    a.label("L_loader")
    role_program(a, 'l')
    a("s_waitcnt vmcnt(0)")
    a.label("L_exit")
    a("s_endpgm")
    HEADER = open("sequential_preLN__sliding_local_dilated__glu_gated_bilinear__prompt.s.ref").read().split("; Override")[0]
    s = HEADER
    s += f"; @launch grid=(256,1,1) block=(512,1,1) lds={LDS_TOTAL}\n"
    s += '.amdgcn_target "amdgcn-amd-amdhsa--gfx950"\n.text\n'
    s += a.text()
    s += f""".section .rodata,"a"
.p2align 6
.amdhsa_kernel {KNAME}
  .amdhsa_next_free_vgpr 256
  .amdhsa_next_free_sgpr 102
  .amdhsa_accum_offset 160
  .amdhsa_group_segment_fixed_size 0
  .amdhsa_kernarg_size 80
  .amdhsa_user_sgpr_count 2
  .amdhsa_user_sgpr_kernarg_segment_ptr 1
  .amdhsa_system_sgpr_workgroup_id_x 1
  .amdhsa_float_denorm_mode_32 3
.end_amdhsa_kernel
"""
    open(out, "w").write(s)

if __name__ == "__main__":
    if "-prof" in sys.argv: PROF = True
    if "-profdbg" in sys.argv: PROFDBG = True
    if "-cyc" in sys.argv: STAMP = "s_memtime"
    main(sys.argv[1] if len(sys.argv) > 1 else "v3.s")
```

```python
import sys, struct

KNAME = "sequential_preLN__sliding_local_dilated__glu_gated_bilinear__prompt_kernel"
S_TOK, D, NQKV, F = 2048, 640, 1920, 1728
WS_QKV, WS_O, WS_H, WS_HH, WS_ST, WS_FLAG = 0, 0x800000, 0xB00000, 0x1000000, 0x1800000, 0x1900000
WS_PROF = 0x1A00000
KA_X, KA_WQKV, KA_WO, KA_BX, KA_WG, KA_WU, KA_WD, KA_OUT, KA_DBG, KA_WS = [8*i for i in range(10)]
ONES = 0x3F803F80
PROF = False
PROFDBG = False
STAMP = 's_memrealtime'
SC1 = " sc1"
LDS_TOTAL = 163840

def f2u(x):
    return struct.unpack("<I", struct.pack("<f", x))[0]

class Asm:
    def __init__(self):
        self.L = []
        self.uid = 0
    def __call__(self, s):
        for line in s.split("\n"):
            line = line.strip()
            if line:
                self.L.append("  " + line)
    def label(self, n):
        self.L.append(n + ":")
    def raw(self, s):
        self.L.append(s)
    def new(self, base):
        self.uid += 1
        return f"L{base}_{self.uid}"
    def text(self):
        return "\n".join(self.L) + "\n"

SRD_A, SRD_B0, SRD_B1, SRD_OUT, SRD_AUX, SRD_ST = 8, 12, 16, 20, 24, 28
S_RT, S_CT, S_R0, S_C0, S_WAVE, S_SLOT, S_CNT, S_T0, S_T1, S_T2 = 32, 33, 34, 35, 36, 37, 38, 39, 40, 41
S_AOFF, S_BOFF = 42, 43
S_PTR = 44
S_MASK = 64
S_I, S_J, S_REND, S_K = 66, 67, 68, 69
S_STAMP = 70
S_NONCE = 78
S_FIDX, S_LW, S_VALID, S_KB = 85, 86, 87, 92
SRD_FLAG = 88
S_SLOTB, S_T3, S_T4, S_W = 93, 94, 95, 96
S_P0 = 97

def ptr(k): return S_PTR + k // 4

PH_IDX = {'p1': 0, 'att': 1, 'p2': 2, 'p3': 3, 'p4': 4}

def stamp(a, i):
    if i >= 4:
        if PROF: a(f'{STAMP} s[{98+2*(i-4)}:{99+2*(i-4)}]')
        return
    if PROF or PROFDBG:
        a(f'{STAMP} s[{S_STAMP+2*i}:{S_STAMP+2*i+1}]')

def prof_store(a, ph, role):
    if not (PROF or PROFDBG): return
    skip = a.new("pskip")
    a(f"s_cmp_eq_u32 s{S_WAVE}, {0 if role == 'c' else 4}")
    a(f"s_cbranch_scc0 {skip}")
    a('s_waitcnt lgkmcnt(0)')
    if PROF:
        a(f's_add_u32 s80, s{ptr(KA_WS)}, {hex(WS_PROF + PH_IDX[ph]*0x20000)}')
        a(f's_addc_u32 s81, s{ptr(KA_WS)+1}, 0')
        a('s_and_b32 s81, s81, 0xffff')
        a('s_mov_b32 s82, 0x20000')
        a('s_mov_b32 s83, 0x20000')
        a('s_lshl_b32 s84, s2, 3')
        a(f's_add_u32 s84, s84, s{S_WAVE}')
        a('s_lshl_b32 s84, s84, 6')
        for i in range(8): a(f'v_mov_b32 v{128+i}, s{S_STAMP+i}')
        for i in range(4): a(f'v_mov_b32 v{136+i}, s{98+i}')
        a('v_mov_b32 v148, s84')
        a('s_mov_b64 exec, 1')
        a('buffer_store_dwordx4 v[128:131], v148, s[80:83], 0 offen')
        a('buffer_store_dwordx4 v[132:135], v148, s[80:83], 0 offen offset:16')
        a('buffer_store_dwordx4 v[136:139], v148, s[80:83], 0 offen offset:32')
        a('s_mov_b64 exec, -1')
    if PROFDBG and role == 'c':
        sk2 = a.new("pskip")
        a(f"s_cmp_eq_u32 s2, {PROFDBG_WG}")
        a(f"s_cbranch_scc0 {sk2}")
        a(f's_mov_b32 s80, s{ptr(KA_DBG)}')
        a(f's_and_b32 s81, s{ptr(KA_DBG)+1}, 0xffff')
        a('s_mov_b32 s82, 0x100')
        a('s_mov_b32 s83, 0x20000')
        sel = DBG_SEL[ph]
        for j, (i, slot) in enumerate(sel):
            a(f's_sub_u32 s84, s{S_STAMP+2*i}, s{S_P0}')
            a(f'v_mov_b32 v140, s84')
            a(f'v_mov_b32 v141, {4*slot}')
            a('s_mov_b64 exec, 1')
            a('buffer_store_dword v140, v141, s[80:83], 0 offen')
            a('s_mov_b64 exec, -1')
        a.label(sk2)
    a.label(skip)

PROFDBG_WG = 9
DBG_SEL = {'p1': [(1, 2), (2, 3), (3, 4)], 'att': [(0, 5), (1, 6), (3, 7)], 'p2': [(0, 8), (2, 9)], 'p3': [(0, 10), (1, 11), (2, 12)], 'p4': [(0, 13), (2, 14), (3, 15)]}

def set_exec(a, mask):
    if mask == (1 << 64) - 1:
        a("s_mov_b64 exec, -1")
    else:
        a(f"s_mov_b32 exec_lo, {hex(mask & 0xffffffff)}")
        a(f"s_mov_b32 exec_hi, {hex(mask >> 32)}")

def srd(a, s, p, off, nbytes):
    if off:
        a(f"s_add_u32 s{s}, s{p}, {hex(off)}")
        a(f"s_addc_u32 s{s+1}, s{p+1}, 0")
    else:
        a(f"s_mov_b32 s{s}, s{p}")
        a(f"s_mov_b32 s{s+1}, s{p+1}")
    a(f"s_and_b32 s{s+1}, s{s+1}, 0xffff")
    a(f"s_mov_b32 s{s+2}, {hex(nbytes)}")
    a(f"s_mov_b32 s{s+3}, 0x20000")

def divc(a, dst, src, d, rng=300):
    m = (65536 + d - 1) // d
    for x in range(0, rng):
        assert (x * m) >> 16 == x // d, (x, d)
    a(f"s_mul_i32 s{dst}, s{src}, {m}")
    a(f"s_lshr_b32 s{dst}, s{dst}, 16")

def magic(d, N):
    for sh in range(8, 24):
        m = ((1 << sh) + d - 1) // d
        if m >= (1 << 24) or m * (N - 1) >= (1 << 32): continue
        if all((x * m) >> sh == x // d for x in range(N)): return m, sh
    raise Exception("no magic")

def sdiv(a, dst, src, d, N):
    m, sh = magic(d, N)
    a(f"s_mul_i32 s{dst}, s{src}, {m}")
    a(f"s_lshr_b32 s{dst}, s{dst}, {sh}")

def vdiv(a, dst, src, d, N):
    m, sh = magic(d, N)
    a(f"v_mul_u32_u24 v{dst}, {m}, v{src}")
    a(f"v_lshrrev_b32 v{dst}, {sh}, v{dst}")

def tile_map(a, NT, kind):
    a(f"s_and_b32 s{S_T0}, s2, 7")
    a(f"s_lshr_b32 s{S_T1}, s2, 3")
    a(f"s_lshl_b32 s{S_T0}, s{S_T0}, 5")
    a(f"s_add_u32 s{S_T0}, s{S_T0}, s{S_T1}   ; t")
    a(f"s_cmp_lt_u32 s{S_T0}, {NT}")
    a(f"s_cselect_b32 s{S_VALID}, 1, 0")
    if kind == "p1":
        divc(a, S_T1, S_T0, 90)
        a(f"s_mul_i32 s{S_T2}, s{S_T1}, 90")
        a(f"s_sub_u32 s{S_T2}, s{S_T0}, s{S_T2}")
        divc(a, S_CT, S_T2, 6)
        divc(a, S_RT, S_T2, 5)
        a(f"s_cmp_eq_u32 s{S_T1}, 2")
        a(f"s_cselect_b32 s{S_CT}, s{S_RT}, s{S_CT}")
        a(f"s_cselect_b32 s{S_RT}, 5, 6")
        a(f"s_mul_i32 s{S_RT}, s{S_RT}, s{S_CT}")
        a(f"s_sub_u32 s{S_RT}, s{S_T2}, s{S_RT}")
        a(f"s_mul_i32 s{S_T1}, s{S_T1}, 6")
        a(f"s_add_u32 s{S_RT}, s{S_RT}, s{S_T1}")
    elif kind == "p3":
        divc(a, S_T1, S_T0, 81)
        a(f"s_mul_i32 s{S_T2}, s{S_T1}, 81")
        a(f"s_sub_u32 s{S_T2}, s{S_T0}, s{S_T2}")
        divc(a, S_CT, S_T2, 3)
        a(f"s_mul_i32 s{S_RT}, s{S_CT}, 3")
        a(f"s_sub_u32 s{S_RT}, s{S_T2}, s{S_RT}")
        a(f"s_mul_i32 s{S_T1}, s{S_T1}, 3")
        a(f"s_add_u32 s{S_RT}, s{S_RT}, s{S_T1}")
    elif kind == "att":
        a(f"s_lshr_b32 s{S_RT}, s{S_T0}, 1")
        a(f"s_and_b32 s{S_CT}, s{S_T0}, 1")
    else:
        divc(a, S_RT, S_T0, 10)
        a(f"s_mul_i32 s{S_CT}, s{S_RT}, 10")
        a(f"s_sub_u32 s{S_CT}, s{S_T0}, s{S_CT}")

def publish(a):
    skip = a.new("pub")
    a(f"s_cmp_eq_u32 s{S_WAVE}, 0")
    a(f"s_cbranch_scc0 {skip}")
    a(f"s_cmp_eq_u32 s{S_FIDX}, -1")
    a(f"s_cbranch_scc1 {skip}")
    a(f"v_mov_b32 v140, s{S_NONCE}")
    a(f"v_mov_b32 v141, s{S_NONCE+1}")
    a(f"v_mov_b32 v142, s{S_FIDX}")
    a("s_mov_b64 exec, 1")
    a(f"buffer_store_dwordx2 v[140:141], v142, s[{SRD_FLAG}:{SRD_FLAG+3}], 0 offen{SC1}")
    a("s_mov_b64 exec, -1")
    a.label(skip)

def poll(a, lo_sgpr, hi_sgpr, base):
    skip = a.new("pollskip"); loop = a.new("poll"); done = a.new("polldone")
    a(f"s_cmp_eq_u32 s{S_WAVE}, 0")
    a(f"s_cbranch_scc0 {skip}")
    a(f"v_add_u32 v140, s{lo_sgpr}, v2")
    a(f"v_cmp_gt_u32 vcc, s{hi_sgpr}, v140")
    a(f"v_lshlrev_b32 v140, 7, v140")
    a(f"v_add_u32 v140, {base}, v140")
    a(f"s_and_saveexec_b64 s[80:81], vcc")
    a(f"s_mov_b32 s{S_CNT}, 0x40000")
    a.label(loop)
    a(f"buffer_load_dwordx2 v[142:143], v140, s[{SRD_FLAG}:{SRD_FLAG+3}], 0 offen{SC1}")
    a("s_waitcnt vmcnt(0)")
    a(f"v_cmp_ne_u64 vcc, s[{S_NONCE}:{S_NONCE+1}], v[142:143]")
    a(f"s_cbranch_vccz {done}")
    a(f"s_sub_u32 s{S_CNT}, s{S_CNT}, 1")
    a(f"s_cmp_lg_u32 s{S_CNT}, 0")
    a(f"s_cbranch_scc1 {loop}")
    a.label(done)
    a("s_mov_b64 exec, s[80:81]")
    a.label(skip)

def dbg_srd(a):
    a(f"s_mov_b32 s80, s{ptr(KA_DBG)}")
    a(f"s_and_b32 s81, s{ptr(KA_DBG)+1}, 0xffff")
    a("s_mov_b32 s82, 0x100")
    a("s_mov_b32 s83, 0x20000")

def nonce_publish(a):
    skip = a.new("nonce")
    a(f"s_cmp_eq_u32 s{S_WAVE}, 0")
    a(f"s_cbranch_scc0 {skip}")
    a("s_cmp_eq_u32 s2, 0")
    a(f"s_cbranch_scc0 {skip}")
    dbg_srd(a)
    a(f"s_memrealtime s[{S_NONCE}:{S_NONCE+1}]")
    a("v_mov_b32 v142, 0")
    a("s_waitcnt lgkmcnt(0)")
    a(f"s_or_b32 s{S_NONCE}, s{S_NONCE}, 1")
    a(f"v_mov_b32 v140, s{S_NONCE}")
    a(f"v_mov_b32 v141, s{S_NONCE+1}")
    a("s_mov_b64 exec, 1")
    a(f"buffer_store_dwordx2 v[140:141], v142, s[80:83], 0 offen{SC1}")
    a("s_mov_b64 exec, -1")
    a.label(skip)

def nonce_issue(a):
    skip = a.new("nonce")
    a(f"s_cmp_eq_u32 s{S_WAVE}, 0")
    a(f"s_cbranch_scc0 {skip}")
    dbg_srd(a)
    a("v_mov_b32 v158, 0")
    a("s_nop 3")
    a(f"buffer_load_dwordx2 v[156:157], v158, s[80:83], 0 offen{SC1}")
    a.label(skip)

def nonce_check(a, issued=True):
    skip = a.new("nonce"); loop = a.new("nloop"); done = a.new("ndone"); chk = a.new("nchk")
    a(f"s_cmp_eq_u32 s{S_WAVE}, 0")
    a(f"s_cbranch_scc0 {skip}")
    dbg_srd(a)
    a("v_mov_b32 v158, 0")
    a(f"s_mov_b32 s{S_CNT}, 0x40000")
    if issued: a(f"s_branch {chk}")
    a.label(loop)
    a(f"buffer_load_dwordx2 v[156:157], v158, s[80:83], 0 offen{SC1}")
    a("s_waitcnt vmcnt(0)")
    a.label(chk)
    a("v_readfirstlane_b32 s" + str(S_NONCE) + ", v156")
    a("v_readfirstlane_b32 s" + str(S_NONCE+1) + ", v157")
    a("s_nop 3")
    a(f"s_cmp_lg_u32 s{S_NONCE}, 0")
    a(f"s_cbranch_scc1 {done}")
    a(f"s_sub_u32 s{S_CNT}, s{S_CNT}, 1")
    a(f"s_cmp_lg_u32 s{S_CNT}, 0")
    a(f"s_cbranch_scc1 {loop}")
    a.label(done)
    a.label(skip)

class Phase:
    has_e1 = False
    has_stage_work = False
    prefetchB = 0
    def loader_post_first(self, a): return 0
    def loader_stage_work_parts(self): return []
    def loader_final(self, a): pass
    def store_pre(self, a): pass
    def tail_prefetch(self, a, part): return 0
    def rot_start(self, a):
        ca, cb, den = self.rot
        a(f"s_mul_i32 s{S_K}, s{S_CT}, {ca}")
        a(f"s_mul_i32 s{S_T0}, s{S_RT}, {cb}")
        a(f"s_add_u32 s{S_K}, s{S_K}, s{S_T0}")
        a(f"s_lshr_b32 s{S_K}, s{S_K}, {den}")
        m = (65536 + self.S - 1) // self.S
        for x in range(1024): assert (x*m) >> 16 == x // self.S
        a(f"s_mul_i32 s{S_T0}, s{S_K}, {m}")
        a(f"s_lshr_b32 s{S_T0}, s{S_T0}, 16")
        a(f"s_mul_i32 s{S_T0}, s{S_T0}, {self.S}")
        a(f"s_sub_u32 s{S_K}, s{S_K}, s{S_T0}")
    def tile_consts(self, a):
        a(f"s_mul_i32 s{S_R0}, s{S_RT}, {self.MV}")
        a(f"s_mul_i32 s{S_C0}, s{S_CT}, {self.NC}")
        a(f"s_add_u32 s{S_REND}, s{S_R0}, {self.MV}")
        a(f"s_min_u32 s{S_REND}, s{S_REND}, {S_TOK}")

def transition(a, first):
    pass

def loader_phase(a, P, first):
    NS, S = P.NS, P.S
    nA, nB = len(P.Ains), len(P.Bins)
    VB = 32
    a("v_lshrrev_b32 v3, 3, v2      ; r8")
    a("v_and_b32 v4, 7, v2          ; p")
    a("v_lshrrev_b32 v5, 1, v3      ; r8>>1")
    a("v_xor_b32 v6, v4, v5")
    a("v_lshlrev_b32 v6, 4, v6")
    a(f"s_lshl_b32 s{S_T0}, s{S_W}, 3")
    a(f"s_add_u32 s{S_T0}, s{S_T0}, s{S_R0}")
    a(f"v_add_u32 v7, s{S_T0}, v3")
    a(f"s_mov_b32 s{S_T0}, {P.lda}")
    a(f"v_mul_lo_u32 v7, v7, s{S_T0}")
    a("v_add_u32 v7, v7, v6")
    a(f"s_and_b32 s{S_T0}, s{S_W}, 1")
    a(f"s_lshl_b32 s{S_T0}, s{S_T0}, 6")
    a(f"v_xor_b32 v7, s{S_T0}, v7")
    for t in range(nA):
        a(f"v_add_u32 v{VB+t}, {t*32*P.lda}, v7")
    a("v_and_b32 v8, 1, v5")
    a("v_lshlrev_b32 v8, 1, v8")
    a("v_xor_b32 v8, v4, v8")
    a("v_lshlrev_b32 v8, 4, v8")
    a(f"s_lshl_b32 s{S_T0}, s{S_W}, 3")
    a(f"v_add_u32 v9, s{S_T0}, v3         ; k = 8w + r8")
    a(f"s_mov_b32 s{S_T0}, {P.ldb}")
    a(f"v_mul_lo_u32 v9, v9, s{S_T0}")
    a("v_add_u32 v9, v9, v8")
    a(f"s_and_b32 s{S_T0}, s{S_W}, 1")
    a(f"s_lshl_b32 s{S_T0}, s{S_T0}, 6")
    a(f"v_xor_b32 v9, s{S_T0}, v9")
    a(f"s_lshl_b32 s{S_T1}, s{S_C0}, 1")
    a(f"v_add_u32 v9, s{S_T1}, v9")
    for t, (pn, ib) in enumerate(P.Bins):
        a(f"v_add_u32 v{VB+nA+t}, {ib*8*P.ldb + P.panel_coloff[pn]}, v9")
    a(f"s_lshl_b32 s{S_LW}, s{S_W}, 10")
    P.mask_setup(a)
    P.rot_start(a)
    a(f"s_mov_b32 s{S_KB}, s{S_K}")
    if first: ptr_wait(a)
    P.build_srds(a, 'l')

    def adv(kreg, offreg, mul, slotreg):
        a(f"s_add_u32 s{kreg}, s{kreg}, 1")
        a(f"s_cmp_ge_u32 s{kreg}, {S}")
        a(f"s_cselect_b32 s{kreg}, 0, s{kreg}")
        a(f"s_mul_i32 s{offreg}, s{kreg}, {mul}")
        a(f"s_add_u32 s{slotreg}, s{slotreg}, {P.STAGE}")
        a(f"s_cmp_ge_u32 s{slotreg}, {P.STAGE*NS}")
        a(f"s_cselect_b32 s{slotreg}, 0, s{slotreg}")
    def issueA(fill=None):
        a(f"s_add_u32 s{S_T3}, s{S_SLOT}, s{S_LW}")
        for t in range(nA):
            special = P.Ains[t]
            sk = None
            if special == 'skip':
                sk = a.new("sk")
                a(f"s_cmp_eq_u64 s[{S_MASK}:{S_MASK+1}], 0")
                a(f"s_cbranch_scc1 {sk}")
            a(f"s_add_u32 m0, s{S_T3}, {t*4096}")
            if special: a(f"s_mov_b64 exec, s[{S_MASK}:{S_MASK+1}]")
            else: a("s_nop 0")
            a(f"buffer_load_dwordx4 v{VB+t}, s[{SRD_A}:{SRD_A+3}], s{S_AOFF} offen{P.scA} lds")
            if special: a("s_mov_b64 exec, -1")
            if sk: a.label(sk)
            if fill:
                for x in fill.pop(0) if fill else []: a(x)
        adv(S_K, S_AOFF, 128, S_SLOT)
    def issueB(fill=None):
        a(f"s_add_u32 s{S_T4}, s{S_SLOTB}, s{S_LW}")
        for t, (pn, ib) in enumerate(P.Bins):
            sr = P.panel_srd[pn]
            a(f"s_add_u32 m0, s{S_T4}, {P.ABYTES + pn*8192 + ib*1024}")
            a("s_nop 0")
            a(f"buffer_load_dwordx4 v{VB+nA+t}, s[{sr}:{sr+3}], s{S_BOFF} offen lds")
            if fill:
                for x in fill.pop(0) if fill else []: a(x)
        adv(S_KB, S_BOFF, 64*P.ldb, S_SLOTB)
    minA = nA - (1 if 'skip' in P.Ains else 0)
    a(f"s_mov_b32 s{S_SLOT}, 0")
    a(f"s_mov_b32 s{S_SLOTB}, 0")
    a(f"s_lshl_b32 s{S_AOFF}, s{S_K}, 7")
    a(f"s_mul_i32 s{S_BOFF}, s{S_KB}, {64*P.ldb}")
    pB = P.prefetchB if not first else 0
    if pB:
        lp = a.new("bpre")
        a(f"s_mov_b32 s{S_CNT}, {pB}")
        a.label(lp)
        issueB()
        a(f"s_sub_u32 s{S_CNT}, s{S_CNT}, 1")
        a(f"s_cmp_lg_u32 s{S_CNT}, 0")
        a(f"s_cbranch_scc1 {lp}")
    if not first:
        a("s_barrier      ; B_dep")
    stamp(a, 0)
    L = []
    for s in range(S):
        cap = (NS - 1) if s == 0 else s + NS - 2
        prev = L[-1] if L else -1
        L.append(min(S - 1, cap, prev + 2))
    seq = [('B', j) for j in range(pB)]
    def cnt_after(s):
        last = max(i for i, (k, j) in enumerate(seq) if j == s and k in 'AB')
        n = 0
        for (k, j) in seq[last+1:]:
            n += minA if k == 'A' else (nB if k == 'B' else j)
        return n
    def issue_stage(j, fill=None):
        if j >= pB:
            issueA(fill); seq.append(('A', j))
            issueB(fill); seq.append(('B', j))
        else:
            issueA(fill); seq.append(('A', j))
    prev = -1
    s = 0
    while s < S:
        k = L[s] - prev
        e = s
        if k == 1 and L[s] >= pB and s > 0:
            while e + 1 < S and L[e+1] - L[e] == 1 and (L[e+1] - (e+1)) == (L[s] - s): e += 1
        if e - s >= 2 and s - 0 >= 0 and min(range(s, e+1)) >= 0 and s >= pB - (L[s] - s) and all(j >= pB for j in range(s, s+1)):
            cnt = e - s + 1
            lp = a.new("lmain")
            a(f"s_mov_b32 s{S_CNT}, {cnt}")
            a.label(lp)
            parts = P.loader_stage_work_parts() if P.has_stage_work else None
            issue_stage(L[s], parts)
            if parts:
                for grp in parts:
                    for x in grp: a(x)
            n = cnt_after(s)
            a(f"s_waitcnt vmcnt({n})")
            if P.has_stage_work: a("s_waitcnt lgkmcnt(0)")
            a("s_barrier")
            a(f"s_sub_u32 s{S_CNT}, s{S_CNT}, 1")
            a(f"s_cmp_lg_u32 s{S_CNT}, 0")
            a(f"s_cbranch_scc1 {lp}")
            for j in range(s+1, e+1):
                seq.append(('A', L[j])); seq.append(('B', L[j]))
            prev = L[e]; s = e + 1
            continue
        parts = P.loader_stage_work_parts() if (P.has_stage_work and s > 0) else None
        for j in range(prev+1, L[s]+1):
            issue_stage(j, parts if j == prev+1 else None)
        if s == 0:
            stamp(a, 1)
            ex = P.loader_post_first(a) or 0
            if ex: seq.append(('X', ex))
        if parts:
            for grp in parts:
                for x in grp: a(x)
        a(f"s_waitcnt vmcnt({cnt_after(s)})")
        if P.has_stage_work or s == 0: a("s_waitcnt lgkmcnt(0)")
        a("s_barrier")
        prev = L[s]; s += 1
    stamp(a, 2)
    if P.has_stage_work:
        for grp in P.loader_stage_work_parts():
            for x in grp: a(x)
    P.loader_final(a)
    P.store_pre(a)
    ny = P.tail_prefetch(a, 0) or 0
    if P.has_e1:
        a("s_waitcnt lgkmcnt(0)")
        a("s_barrier      ; E1")
        ny += P.tail_prefetch(a, 1) or 0
    a("s_barrier          ; E2")
    store_pass(a, P, ny)

def consumer_phase(a, P, first):
    P.consumer_setup(a)
    NW = len(P.wlist)
    XF = [0, 4*P.NXMAX]
    WF = [8*P.NXMAX, 8*P.NXMAX + 4*NW]
    def reads(kk, buf):
        r = []
        for wi, (areg, off) in enumerate(P.wlist):
            base = WF[buf] + 4*wi
            r.append(f"ds_read_b64_tr_b16 a[{base}:{base+1}], v{areg} offset:{off + kk*4096}")
            r.append(f"ds_read_b64_tr_b16 a[{base+2}:{base+3}], v{areg} offset:{off + kk*4096 + 512}")
        for xi, (areg0, areg1, off) in enumerate(P.xlist):
            base = XF[buf] + 4*xi
            areg = areg0 if kk == 0 else areg1
            r.append(f"ds_read_b128 a[{base}:{base+3}], v{areg} offset:{off}")
        return r
    def mfmas(buf, first_=False):
        m = []
        for (xi, wi, acc) in P.mf:
            c = "0" if first_ else f"v[{acc}:{acc+3}]"
            m.append(f"v_mfma_f32_16x16x32_bf16 v[{acc}:{acc+3}], a[{WF[buf]+4*wi}:{WF[buf]+4*wi+3}], a[{XF[buf]+4*xi}:{XF[buf]+4*xi+3}], {c}")
        return m
    def block(m, r, fill=()):
        q = list(r); fl = list(fill)
        for i, x in enumerate(m):
            a(x)
            k = 0
            while q and k < P.RPM:
                a(q.pop(0)); k += 1
            if not q:
                while fl and k < 2:
                    a(fl.pop(0)); k += 1
        for x in q: a(x)
        for x in fl: a(x)
    def slot_adv():
        return [f"s_add_u32 s{S_SLOT}, s{S_SLOT}, {P.STAGE}",
                f"s_cmp_ge_u32 s{S_SLOT}, {P.STAGE*P.NS}",
                f"s_cselect_b32 s{S_SLOT}, 0, s{S_SLOT}"]
    a(f"s_mov_b32 s{S_SLOT}, 0")
    for x in P.addr_update(): a(x)
    if first: ptr_wait(a)
    P.build_srds(a, 'c')
    if not first:
        P.deps(a)
        a("s_barrier      ; B_dep")
    else:
        nonce_publish(a)
    stamp(a, 0)
    a("s_barrier          ; B_0")
    stamp(a, 1)
    for x in reads(0, 0): a(x)
    a(f"s_mov_b32 s{S_CNT}, {P.S-1}")
    a("s_waitcnt lgkmcnt(0)")
    block(mfmas(0, True), reads(1, 1), slot_adv() + P.addr_update())
    lp = a.new("cloop")
    a.label(lp)
    a("s_waitcnt lgkmcnt(0)")
    a("s_barrier")
    block(mfmas(1), reads(0, 0), [f"s_sub_u32 s{S_CNT}, s{S_CNT}, 1"])
    a("s_waitcnt lgkmcnt(0)")
    block(mfmas(0), reads(1, 1), slot_adv() + P.addr_update() + [f"s_cmp_lg_u32 s{S_CNT}, 0"])
    a(f"s_cbranch_scc1 {lp}")
    a("s_waitcnt lgkmcnt(0)")
    block(mfmas(1), [])
    stamp(a, 2)
    if first: nonce_issue(a)
    a("s_nop 7")
    P.epilogue(a)
    a("s_waitcnt lgkmcnt(0)")
    P.store_pre(a)
    a("s_barrier          ; E2")
    store_pass(a, P)

def ptr_wait(a):
    a("s_waitcnt lgkmcnt(0)")
    if PROFDBG: a(f"s_mov_b32 s{S_P0}, s98")
    srd(a, SRD_FLAG, ptr(KA_WS), WS_FLAG, 0x20000)

def cons_lane(a):
    a("v_and_b32 v3, 15, v2")
    a("v_lshrrev_b32 v4, 4, v2")

def x_addr_const(a, dst, rowbase_sgpr, rowbase_const=0):
    a("v_lshrrev_b32 v5, 1, v3")
    a("v_xor_b32 v5, v4, v5")
    a("v_lshlrev_b32 v5, 4, v5")
    a(f"v_lshl_add_u32 v{dst}, v3, 7, v5")
    if rowbase_sgpr is not None:
        a(f"s_lshl_b32 s{S_T0}, s{rowbase_sgpr}, 7")
        a(f"v_add_u32 v{dst}, s{S_T0}, v{dst}")
    if rowbase_const:
        a(f"v_add_u32 v{dst}, {rowbase_const*128}, v{dst}")

def w_addr_const(a, dst):
    a("v_lshrrev_b32 v5, 2, v3        ; r")
    a("v_lshl_add_u32 v6, v4, 3, v5   ; 8g+r")
    a("v_lshlrev_b32 v6, 7, v6")
    a("v_lshrrev_b32 v5, 1, v5        ; r>>1")
    a("v_and_b32 v7, 1, v4")
    a("v_lshl_or_b32 v5, v7, 1, v5    ; h")
    a("v_lshl_add_u32 v6, v5, 5, v6")
    a("v_and_b32 v5, 3, v3")
    a(f"v_lshl_add_u32 v{dst}, v5, 3, v6")

def t_write_addr(a, dst, base_const):
    a("v_lshrrev_b32 v5, 1, v4")
    a("v_and_b32 v6, 7, v3")
    a("v_xor_b32 v5, v5, v6")
    a("v_lshlrev_b32 v5, 4, v5")
    a("v_and_b32 v6, 1, v4")
    a("v_lshl_add_u32 v5, v6, 3, v5")
    a(f"v_lshl_add_u32 v{dst}, v3, 7, v5")
    a(f"v_add_u32 v{dst}, {base_const}, v{dst}")

def pad_init(a, P, row0, nzero_rows, ones_row):
    a("v_mov_b32 v12, 0"); a("v_mov_b32 v13, 0"); a("v_mov_b32 v14, 0"); a("v_mov_b32 v15, 0")
    a(f"v_mov_b32 v10, {hex(ONES)}")
    a("v_lshlrev_b32 v11, 4, v2        ; lane*16")
    for rep in range((P.NS + 3)//4):
        sk = a.new("pad")
        a(f"s_add_u32 s{S_T0}, s{S_W}, {4*rep}")
        a(f"s_cmp_ge_u32 s{S_T0}, {P.NS}")
        a(f"s_cbranch_scc1 {sk}")
        a(f"s_mul_i32 s{S_T0}, s{S_T0}, {P.STAGE}")
        nb = nzero_rows*128; off = 0
        while off < nb:
            lanes = min(64, (nb - off)//16)
            a(f"v_add_u32 v16, s{S_T0}, v11")
            if lanes < 64: set_exec(a, (1 << lanes) - 1)
            a(f"ds_write_b128 v16, v[12:15] offset:{row0*128 + off}")
            if lanes < 64: a("s_mov_b64 exec, -1")
            off += lanes*16
        if ones_row is not None:
            a(f"v_lshlrev_b32 v16, 2, v2")
            a(f"v_add_u32 v16, s{S_T0}, v16")
            set_exec(a, 0xffffffff)
            a(f"ds_write_b32 v16, v10 offset:{ones_row*128}")
            a("s_mov_b64 exec, -1")
        a.label(sk)

def store_pass(a, P, ny=0):
    a("v_lshrrev_b32 v3, 3, v2")
    a("v_and_b32 v4, 7, v2")
    a("v_xor_b32 v5, v4, v3")
    a("v_lshlrev_b32 v5, 4, v5")
    a("v_lshl_add_u32 v5, v3, 7, v5")
    a(f"s_lshl_b32 s{S_T0}, s{S_WAVE}, 10")
    a(f"v_add_u32 v5, s{S_T0}, v5")
    a(f"v_add_u32 v5, {P.TBASE}, v5")
    a(f"s_lshl_b32 s{S_T0}, s{S_WAVE}, 3")
    a(f"s_add_u32 s{S_T0}, s{S_T0}, s{S_R0}")
    a(f"v_add_u32 v6, s{S_T0}, v3")
    a(f"s_mov_b32 s{S_T1}, {P.ldo}")
    a(f"v_mul_lo_u32 v7, v6, s{S_T1}")
    a(f"s_lshl_b32 s{S_T0}, s{S_C0}, 1")
    a(f"v_lshl_add_u32 v7, v4, 4, v7")
    a(f"v_add_u32 v7, s{S_T0}, v7")
    a("v_mov_b32 v8, 0x80000000")
    P.ny = ny
    P.store_body(a)
    P.set_fidx(a)

def store_addr(a, k, dst, P, coloff=0):
    a(f"v_add_u32 v9, {64*k}, v6")
    a(f"v_cmp_gt_u32 vcc, s{S_REND}, v9")
    a(f"v_add_u32 v{dst}, {64*k*P.ldo + coloff}, v7")
    a("s_nop 0")
    a(f"v_cndmask_b32 v{dst}, v8, v{dst}, vcc")

class P1(Phase):
    key = 'p1'; kind = "p1"; NT = 255
    MV = 121; NC = 128; lda = 1280; ldb = 3840; ldo = 3840
    ABYTES = 16384; STAGE = 32768; NS = 4; S = 10
    NXMAX = 4; RPM = 2
    has_stage_work = True; has_e1 = True
    scA = ""
    panel_coloff = [0, 128]; panel_srd = [SRD_B0, SRD_B0]
    LDS_ST = 131072; LDS_CS = 131072 + 1024
    TBASE = 2*32768
    rot = (5, 10, 2)
    Ains = [None, None, None, 'mask']
    Bins = [(0, 0), (0, 4), (1, 0), (1, 4)]
    def __init__(self):
        self.vXc, self.vWc = 8, 9
        self.vXa, self.vXb = 10, 11
        self.vW = [12, 13, 14, 15]
        self.xlist = [(self.vXa, self.vXb, 2048*x) for x in range(4)]
        self.wlist = [(self.vW[f], self.ABYTES) for f in range(4)]
        self.ACC = 32
        self.mf = [(x, f, self.ACC + 4*(4*x + f)) for x in range(4) for f in range(4)]
    def rot_start(self, a):
        a(f"s_add_u32 s{S_K}, s{S_RT}, s{S_CT}")
        divc(a, S_T0, S_K, 5)
        a(f"s_mul_i32 s{S_T0}, s{S_T0}, 5")
        a(f"s_sub_u32 s{S_K}, s{S_K}, s{S_T0}")
        a(f"s_lshl_b32 s{S_K}, s{S_K}, 1")
    def tail_prefetch(self, a, part):
        if part == 1: return l2_prefetch(a, "rm", 250, 64, KA_WO, D*D*2, 1280, D)
    def mask_setup(self, a):
        a(f"s_cmp_eq_u32 s{S_W}, 3")
        a(f"s_cselect_b32 s{S_MASK}, 0xff, -1")
        a(f"s_cselect_b32 s{S_MASK+1}, 0, -1")
    def build_srds(self, a, role):
        if role == 'l':
            srd(a, SRD_A, ptr(KA_X), 0, S_TOK*D*2)
            srd(a, SRD_B0, ptr(KA_WQKV), 0, D*NQKV*2)
        srd(a, SRD_OUT, ptr(KA_WS), WS_QKV, S_TOK*NQKV*2)
    def set_fidx(self, a):
        a(f"s_mul_i32 s{S_FIDX}, s{S_RT}, 15")
        a(f"s_add_u32 s{S_FIDX}, s{S_FIDX}, s{S_CT}")
        a(f"s_lshl_b32 s{S_FIDX}, s{S_FIDX}, 7")
    def loader_post_first(self, a):
        pad_init(a, self, 121, 6, 127)
        a("v_lshrrev_b32 v12, 1, v2")
        a(f"s_lshl_b32 s{S_T0}, s{S_W}, 5")
        a(f"v_add_u32 v12, s{S_T0}, v12        ; row")
        a("v_lshlrev_b32 v12, 7, v12")
        a("v_and_b32 v13, 1, v2")
        a("v_lshl_add_u32 v12, v13, 6, v12")
        a("v_lshrrev_b32 v13, 2, v2")
        for t in range(4):
            a(f"v_add_u32 v14, {t}, v13")
            a("v_and_b32 v14, 3, v14")
            a(f"v_lshl_add_u32 v{16+t}, v14, 4, v12")
        a("v_mov_b32 v24, 0"); a("v_mov_b32 v25, 0"); a("v_mov_b32 v26, 0"); a("v_mov_b32 v27, 0")
        a(f"s_mov_b32 s{S_T2}, 0")
        return 0
    def loader_stage_work_parts(self):
        g0 = [f"v_add_u32 v{20+t}, s{S_T2}, v{16+t}" for t in range(4)]
        g0 += [f"ds_read_b128 v[{64+4*t}:{67+4*t}], v{20+t}" for t in range(4)]
        g1 = [f"s_add_u32 s{S_T2}, s{S_T2}, {self.STAGE}", f"s_cmp_ge_u32 s{S_T2}, {self.STAGE*self.NS}", f"s_cselect_b32 s{S_T2}, 0, s{S_T2}"]
        gs = [g0, g1]
        for t in range(4):
            g = [f"s_waitcnt lgkmcnt({3-t})"]
            for d in range(4):
                r = 64 + 4*t + d
                s_, q_ = (24, 25) if d & 1 == 0 else (26, 27)
                g.append(f"v_dot2_f32_bf16 v{s_}, v{r}, v10, v{s_}")
                g.append(f"v_dot2_f32_bf16 v{q_}, v{r}, v{r}, v{q_}")
            gs.append(g)
        return gs
    def loader_final(self, a):
        a("s_nop 3")
        a("v_add_f32 v24, v24, v26")
        a("v_add_f32 v25, v25, v27")
        a("s_nop 1")
        a("v_add_f32_dpp v24, v24, v24 quad_perm:[1,0,3,2] row_mask:0xf bank_mask:0xf")
        a("v_add_f32_dpp v25, v25, v25 quad_perm:[1,0,3,2] row_mask:0xf bank_mask:0xf")
        a(f"v_mul_f32 v24, {hex(f2u(1.0/D))}, v24")
        a(f"v_mul_f32 v25, {hex(f2u(1.0/D))}, v25")
        a("v_fma_f32 v25, -v24, v24, v25      ; var")
        a(f"v_add_f32 v25, {hex(f2u(1e-5))}, v25")
        a("v_rsq_f32 v25, v25")
        a("v_lshrrev_b32 v12, 1, v2")
        a(f"s_lshl_b32 s{S_T0}, s{S_W}, 5")
        a(f"v_add_u32 v12, s{S_T0}, v12")
        a("v_lshlrev_b32 v12, 3, v12")
        a(f"v_add_u32 v12, {self.LDS_ST}, v12")
        set_exec(a, 0x5555555555555555)
        a("ds_write_b64 v12, v[24:25]")
        a("s_mov_b64 exec, -1")
    def consumer_setup(self, a):
        cons_lane(a)
        a(f"s_lshr_b32 s{S_I}, s{S_WAVE}, 1")
        a(f"s_and_b32 s{S_J}, s{S_WAVE}, 1")
        a(f"s_lshl_b32 s{S_T1}, s{S_I}, 6")
        x_addr_const(a, self.vXc, S_T1)
        w_addr_const(a, self.vWc)
        a(f"s_lshl_b32 s{S_T0}, s{S_J}, 13")
        a(f"v_add_u32 v{self.vWc}, s{S_T0}, v{self.vWc}")
    def addr_update(self):
        r = [f"v_add_u32 v{self.vXa}, s{S_SLOT}, v{self.vXc}",
             f"v_add_u32 v{self.vW[0]}, s{S_SLOT}, v{self.vWc}",
             f"v_xor_b32 v{self.vXb}, 64, v{self.vXa}"]
        for f in range(1, len(self.vW)):
            r.append(f"v_xor_b32 v{self.vW[f]}, {32*f}, v{self.vW[0]}")
        return r
    def epilogue(self, a):
        nocs = a.new("nocs")
        a(f"s_lshl_b32 s{S_T0}, s{S_J}, 8       ; j*64*4")
        a(f"v_lshlrev_b32 v16, 4, v4            ; g*16 bytes")
        a(f"v_add_u32 v16, s{S_T0}, v16")
        a(f"v_add_u32 v16, {self.LDS_CS}, v16")
        a(f"s_cmp_eq_u32 s{S_I}, 1")
        a(f"s_cbranch_scc0 {nocs}")
        set_exec(a, 0x8000800080008000)
        for f in range(4):
            acc = self.ACC + 4*(4*3 + f)
            a(f"ds_write_b128 v16, v[{acc}:{acc+3}] offset:{64*f}")
        a("s_mov_b64 exec, -1")
        a.label(nocs)
        t_write_addr(a, 17, self.TBASE)
        a(f"s_lshl_b32 s{S_T0}, s{S_J}, 14")
        a(f"s_lshl_b32 s{S_T1}, s{S_I}, 13")
        a(f"s_add_u32 s{S_T0}, s{S_T0}, s{S_T1}")
        a(f"v_add_u32 v17, s{S_T0}, v17")
        for f in range(1, 4): a(f"v_xor_b32 v{17+f}, {32*f}, v17")
        a(f"s_lshl_b32 s{S_T0}, s{S_I}, 9       ; i*64*8")
        a(f"v_lshlrev_b32 v6, 3, v3")
        a(f"v_add_u32 v6, s{S_T0}, v6")
        a(f"v_add_u32 v6, {self.LDS_ST}, v6")
        a("s_waitcnt lgkmcnt(0)")
        a("s_barrier      ; E1")
        CS = 96; ST = 112
        for f in range(4):
            a(f"ds_read_b128 v[{CS+4*f}:{CS+4*f+3}], v16 offset:{64*f}")
        for x in range(4):
            a(f"ds_read_b64 v[{ST+2*x}:{ST+2*x+1}], v6 offset:{128*x}")
        a("s_waitcnt lgkmcnt(0)")
        for x in range(4):
            st = ST + 2*x
            for f in range(4):
                acc = self.ACC + 4*(4*x + f)
                for hh in (0, 2):
                    a(f"v_pk_fma_f32 v[{acc+hh}:{acc+hh+1}], v[{CS+4*f+hh}:{CS+4*f+hh+1}], v[{st}:{st+1}], v[{acc+hh}:{acc+hh+1}] op_sel_hi:[1,0,1] neg_lo:[0,1,0] neg_hi:[0,1,0]")
                for hh in (0, 2):
                    a(f"v_pk_mul_f32 v[{acc+hh}:{acc+hh+1}], v[{acc+hh}:{acc+hh+1}], v[{st}:{st+1}] op_sel:[0,1] op_sel_hi:[1,1]")
                a(f"v_cvt_pk_bf16_f32 v{acc}, v{acc}, v{acc+1}")
                a(f"v_cvt_pk_bf16_f32 v{acc+1}, v{acc+2}, v{acc+3}")
                a(f"ds_write_b64 v{17+f}, v[{acc}:{acc+1}] offset:{2048*x}")
    def store_body(self, a):
        for k in range(2):
            for pn in range(2):
                r = 16 + 4*(2*k + pn)
                a(f"ds_read_b128 v[{r}:{r+3}], v5 offset:{pn*16384 + k*8192}")
        for k in range(2):
            store_addr(a, k, 10 + k, self)
        for k in range(2):
            for pn in range(2):
                r = 16 + 4*(2*k + pn)
                a(f"s_waitcnt lgkmcnt({3 - (2*k+pn)})")
                a(f"buffer_store_dwordx4 v[{r}:{r+3}], v{10+k}, s[{SRD_OUT}:{SRD_OUT+3}], 0 offen offset:{128*pn}{SC1}")

class P24(Phase):
    kind = "rm"; NT = 250
    MV = 82; NC = 64; ldb = 1280; ldo = 1280
    ABYTES = 12288; STAGE = 20480; NS = 7
    NXMAX = 3; RPM = 2
    scA = SC1
    panel_coloff = [0]; panel_srd = [SRD_B0]
    TBASE = 0
    Ains = [None, None, 'skip']
    Bins = [(0, 0), (0, 4)]
    prefetchB = 7
    def __init__(self, which):
        self.which = which
        if which == 2:
            self.key = 'p2'; self.lda = 1280; self.S = 10; self.rot = (4, 13, 2)
        else:
            self.key = 'p4'; self.lda = 3456; self.S = 27; self.rot = (11, 36, 2)
        assert (self.S - 1) % self.NS != 0
        self.vXc, self.vWc = 8, 9
        self.vXa, self.vXb = 10, 11
        self.vW = [12, 13]
        self.xlist = [(self.vXa, self.vXb, 2048*x) for x in range(3)]
        self.wlist = [(self.vW[f], self.ABYTES) for f in range(2)]
        self.ACC = 32
        self.mf = [(x, f, self.ACC + 4*(2*x + f)) for x in range(3) for f in range(2)]
    def tail_prefetch(self, a, part):
        if self.which == 2: return l2_prefetch(a, "p3", 243, 64, KA_WU, D*F*2, 3456, D)
    def mask_setup(self, a):
        a(f"s_cmp_lt_u32 s{S_W}, 2")
        a(f"s_cselect_b32 s{S_MASK}, -1, 0xffff")
        a(f"s_cselect_b32 s{S_MASK+1}, -1, 0")
        a(f"s_cmp_eq_u32 s{S_W}, 3")
        a(f"s_cselect_b32 s{S_MASK}, 0, s{S_MASK}")
    def build_srds(self, a, role):
        if self.which == 2:
            if role == 'l':
                srd(a, SRD_A, ptr(KA_WS), WS_O, S_TOK*D*2)
                srd(a, SRD_B0, ptr(KA_WO), 0, D*D*2)
            srd(a, SRD_OUT, ptr(KA_WS), WS_H, S_TOK*D*2)
            srd(a, SRD_AUX, ptr(KA_X), 0, S_TOK*D*2)
            srd(a, SRD_ST, ptr(KA_WS), WS_ST, 10*S_TOK*8)
        else:
            if role == 'l':
                srd(a, SRD_A, ptr(KA_WS), WS_HH, S_TOK*F*2)
                srd(a, SRD_B0, ptr(KA_WD), 0, F*D*2)
            srd(a, SRD_OUT, ptr(KA_OUT), 0, S_TOK*D*2)
            srd(a, SRD_AUX, ptr(KA_WS), WS_H, S_TOK*D*2)
    def deps(self, a):
        if self.which == 2:
            a(f"s_lshr_b32 s{S_T0}, s{S_R0}, 4")
            a(f"s_lshl_b32 s{S_T0}, s{S_T0}, 1")
            a(f"s_sub_u32 s{S_T1}, s{S_REND}, 1")
            a(f"s_lshr_b32 s{S_T1}, s{S_T1}, 4")
            a(f"s_lshl_b32 s{S_T1}, s{S_T1}, 1")
            a(f"s_add_u32 s{S_T1}, s{S_T1}, 2")
            poll(a, S_T0, S_T1, 0x8000)
        else:
            sdiv(a, S_T0, S_R0, 228, 2100)
            a(f"s_sub_u32 s{S_T1}, s{S_REND}, 1")
            sdiv(a, S_T1, S_T1, 228, 2100)
            a(f"s_mul_i32 s{S_T0}, s{S_T0}, 27")
            a(f"s_add_u32 s{S_T1}, s{S_T1}, 1")
            a(f"s_mul_i32 s{S_T1}, s{S_T1}, 27")
            poll(a, S_T0, S_T1, 0x18000)
    def set_fidx(self, a):
        if self.which == 2:
            a(f"s_mul_i32 s{S_FIDX}, s{S_RT}, 10")
            a(f"s_add_u32 s{S_FIDX}, s{S_FIDX}, s{S_CT}")
            a(f"s_lshl_b32 s{S_FIDX}, s{S_FIDX}, 7")
            a(f"s_add_u32 s{S_FIDX}, s{S_FIDX}, 0x10000")
        else:
            a(f"s_mov_b32 s{S_FIDX}, -1")
    def loader_post_first(self, a):
        pad_init(a, self, 82, 14, None)
        return 0
    def consumer_setup(self, a):
        cons_lane(a)
        a(f"s_lshr_b32 s{S_I}, s{S_WAVE}, 1")
        a(f"s_and_b32 s{S_J}, s{S_WAVE}, 1")
        a(f"s_mul_i32 s{S_T1}, s{S_I}, 48")
        x_addr_const(a, self.vXc, S_T1)
        w_addr_const(a, self.vWc)
        a(f"s_lshl_b32 s{S_T0}, s{S_J}, 6      ; f0 = 2j -> xor 64j")
        a(f"v_xor_b32 v{self.vWc}, s{S_T0}, v{self.vWc}")
    def addr_update(self):
        return P1.addr_update(self)
    def epilogue(self, a):
        t_write_addr(a, 17, self.TBASE)
        a(f"s_mul_i32 s{S_T0}, s{S_I}, {48*128}")
        a(f"v_add_u32 v17, s{S_T0}, v17")
        a(f"s_lshl_b32 s{S_T0}, s{S_J}, 6")
        a(f"v_xor_b32 v17, s{S_T0}, v17        ; f0 = 2j")
        a(f"v_xor_b32 v18, 32, v17")
        for x in range(3):
            for f in range(2):
                acc = self.ACC + 4*(2*x + f)
                a(f"v_cvt_pk_bf16_f32 v{acc}, v{acc}, v{acc+1}")
                a(f"v_cvt_pk_bf16_f32 v{acc+1}, v{acc+2}, v{acc+3}")
                a(f"ds_write_b64 v{17+f}, v[{acc}:{acc+1}] offset:{2048*x}")
    RES = 100
    def store_pre(self, a):
        a("v_lshrrev_b32 v20, 3, v2")
        a("v_and_b32 v21, 7, v2")
        a(f"s_lshl_b32 s{S_T0}, s{S_WAVE}, 3")
        a(f"s_add_u32 s{S_T0}, s{S_T0}, s{S_R0}")
        a(f"v_add_u32 v20, s{S_T0}, v20")
        a("v_mul_u32_u24 v20, 1280, v20")
        a(f"s_lshl_b32 s{S_T0}, s{S_C0}, 1")
        a("v_lshl_add_u32 v20, v21, 4, v20")
        a(f"v_add_u32 v20, s{S_T0}, v20")
        sc = SC1 if self.which == 4 else ""
        a(f"buffer_load_dwordx4 v[{self.RES}:{self.RES+3}], v20, s[{SRD_AUX}:{SRD_AUX+3}], 0 offen{sc}")
        a(f"v_add_u32 v20, {64*1280}, v20")
        a(f"buffer_load_dwordx4 v[{self.RES+4}:{self.RES+7}], v20, s[{SRD_AUX}:{SRD_AUX+3}], 0 offen{sc}")
    def store_body(self, a):
        sdone = a.new("sdone")
        sc = SC1 if self.which == 2 else ""
        for k in range(2):
            a(f"ds_read_b128 v[{16+4*k}:{19+4*k}], v5 offset:{k*8192}")
        for k in range(2):
            store_addr(a, k, 10 + k, self)
        if self.which == 2:
            a(f"v_mov_b32 v26, {hex(ONES)}")
        a(f"s_waitcnt vmcnt({self.ny}) lgkmcnt(0)")
        for k in range(2):
            if k == 1:
                a(f"s_cmp_ge_u32 s{S_WAVE}, 3")
                a(f"s_cbranch_scc1 {sdone}")
            T = 16 + 4*k; R = self.RES + 4*k
            for d in range(4):
                a(f"v_lshlrev_b32 v28, 16, v{T+d}")
                a(f"v_and_b32 v29, 0xffff0000, v{T+d}")
                a(f"v_lshlrev_b32 v30, 16, v{R+d}")
                a(f"v_and_b32 v31, 0xffff0000, v{R+d}")
                a(f"v_pk_add_f32 v[28:29], v[28:29], v[30:31]")
                a(f"v_cvt_pk_bf16_f32 v{T+d}, v28, v29")
            a(f"buffer_store_dwordx4 v[{T}:{T+3}], v{10+k}, s[{SRD_OUT}:{SRD_OUT+3}], 0 offen{sc}")
            if self.which == 2:
                a("v_mov_b32 v24, 0"); a("v_mov_b32 v25, 0")
                a("s_nop 0")
                for d in range(4):
                    a(f"v_dot2_f32_bf16 v24, v{T+d}, v26, v24")
                    a(f"v_dot2_f32_bf16 v25, v{T+d}, v{T+d}, v25")
                a("s_nop 2")
                for dpp in ("quad_perm:[1,0,3,2]", "quad_perm:[2,3,0,1]", "row_half_mirror"):
                    a(f"v_add_f32_dpp v24, v24, v24 {dpp} row_mask:0xf bank_mask:0xf")
                    a(f"v_add_f32_dpp v25, v25, v25 {dpp} row_mask:0xf bank_mask:0xf")
                    a("s_nop 0")
                a(f"v_add_u32 v9, {64*k}, v6")
                a(f"v_cmp_gt_u32 vcc, s{S_REND}, v9")
                a(f"s_mul_i32 s{S_T0}, s{S_CT}, {S_TOK}")
                a(f"v_add_u32 v9, s{S_T0}, v9")
                a("v_lshlrev_b32 v9, 3, v9")
                a("v_cndmask_b32 v9, v8, v9, vcc")
                set_exec(a, 0x0101010101010101)
                a(f"buffer_store_dwordx2 v[24:25], v9, s[{SRD_ST}:{SRD_ST+3}], 0 offen{SC1}")
                a("s_mov_b64 exec, -1")
        a.label(sdone)

class P3(Phase):
    key = 'p3'; kind = "p3"; NT = 243
    MV = 228; NC = 64; lda = 1280; ldb = 3456; ldo = 3456
    ABYTES = 30720; STAGE = 47104; NS = 3; S = 10
    NXMAX = 8; RPM = 1
    has_e1 = True
    scA = SC1
    panel_coloff = [0, 0]; panel_srd = [SRD_B0, SRD_B1]
    LDS_ST = 47104*3; LDS_CS = 47104*3 + 1920
    TBASE = 47104
    rot = (4, 13, 2)
    Ains = [None]*7 + ['skip']
    Bins = [(0, 0), (0, 4), (1, 0), (1, 4)]
    prefetchB = 3
    def __init__(self):
        self.vXc, self.vXsc, self.vWc = 8, 9, 10
        self.vXa, self.vXb, self.vXsa, self.vXsb = 11, 12, 13, 14
        self.vW = [15, 16]
        self.xlist = [(self.vXa, self.vXb, 2048*x) for x in range(7)] + [(self.vXsa, self.vXsb, 0)]
        G, U = self.ABYTES, self.ABYTES + 8192
        self.wlist = [(self.vW[0], G), (self.vW[0], U), (self.vW[1], G), (self.vW[1], U)]
        self.ACC = 32
        self.mf = []
        acc = self.ACC
        self.accmap = {}
        for x in range(8):
            for wi in range(4):
                if x == 7 and wi >= 2: continue
                self.mf.append((x, wi, acc)); self.accmap[(x, wi)] = acc; acc += 4
        assert acc == 32 + 120
    def tail_prefetch(self, a, part):
        if part == 0: return l2_prefetch(a, "rm", 250, 64, KA_WD, F*D*2, 1280, F, 0, 8)
        return l2_prefetch(a, "rm", 250, 64, KA_WD, F*D*2, 1280, F, 8, None)
    def mask_setup(self, a):
        a(f"s_cmp_eq_u32 s{S_W}, 0")
        a(f"s_cselect_b32 s{S_MASK}, -1, 0")
        a(f"s_mov_b32 s{S_MASK+1}, 0")
    def build_srds(self, a, role):
        if role == 'l':
            srd(a, SRD_A, ptr(KA_WS), WS_H, S_TOK*D*2)
            srd(a, SRD_B0, ptr(KA_WG), 0, D*F*2)
            srd(a, SRD_B1, ptr(KA_WU), 0, D*F*2)
            srd(a, SRD_ST, ptr(KA_WS), WS_ST, 10*S_TOK*8)
        srd(a, SRD_OUT, ptr(KA_WS), WS_HH, S_TOK*F*2)
    def deps(self, a):
        sdiv(a, S_T0, S_R0, 82, 2100)
        a(f"s_sub_u32 s{S_T1}, s{S_REND}, 1")
        sdiv(a, S_T1, S_T1, 82, 2100)
        a(f"s_mul_i32 s{S_T0}, s{S_T0}, 10")
        a(f"s_add_u32 s{S_T1}, s{S_T1}, 1")
        a(f"s_mul_i32 s{S_T1}, s{S_T1}, 10")
        poll(a, S_T0, S_T1, 0x10000)
    def set_fidx(self, a):
        a(f"s_mul_i32 s{S_FIDX}, s{S_RT}, 27")
        a(f"s_add_u32 s{S_FIDX}, s{S_FIDX}, s{S_CT}")
        a(f"s_lshl_b32 s{S_FIDX}, s{S_FIDX}, 7")
        a(f"s_add_u32 s{S_FIDX}, s{S_FIDX}, 0x18000")
    def loader_post_first(self, a):
        pad_init(a, self, 228, 11, 239)
        a(f"s_lshl_b32 s{S_T0}, s{S_W}, 6")
        a(f"v_add_u32 v12, s{S_T0}, v2")
        a(f"v_add_u32 v13, s{S_R0}, v12")
        a("v_lshlrev_b32 v13, 3, v13")
        a(f"v_cmp_gt_u32 vcc, {self.MV}, v12")
        a("v_mov_b32 v14, 0x80000000")
        a("s_nop 0")
        a("v_cndmask_b32 v13, v14, v13, vcc")
        for c in range(10):
            a(f"s_mov_b32 s{S_T0}, {c*S_TOK*8}")
            a(f"buffer_load_dwordx2 v[{64+2*c}:{65+2*c}], v13, s[{SRD_ST}:{SRD_ST+3}], s{S_T0} offen{SC1}")
        return 10
    def loader_final(self, a):
        for c in range(1, 10):
            a(f"v_pk_add_f32 v[64:65], v[64:65], v[{64+2*c}:{65+2*c}]")
        a(f"v_mul_f32 v64, {hex(f2u(1.0/D))}, v64")
        a(f"v_mul_f32 v65, {hex(f2u(1.0/D))}, v65")
        a("v_fma_f32 v65, -v64, v64, v65")
        a(f"v_add_f32 v65, {hex(f2u(1e-5))}, v65")
        a("v_rsq_f32 v65, v65")
        a("v_lshlrev_b32 v12, 3, v12")
        a(f"v_add_u32 v12, {self.LDS_ST}, v12")
        a(f"s_cmp_eq_u32 s{S_W}, 3")
        a(f"s_cselect_b32 exec_hi, 0xffff, -1")
        a("ds_write_b64 v12, v[64:65]")
        a("s_mov_b64 exec, -1")
    def consumer_setup(self, a):
        cons_lane(a)
        a(f"s_lshr_b32 s{S_I}, s{S_WAVE}, 1")
        a(f"s_and_b32 s{S_J}, s{S_WAVE}, 1")
        a(f"s_lshl_b32 s{S_T1}, s{S_I}, 7")
        x_addr_const(a, self.vXc, S_T1)
        x_addr_const(a, self.vXsc, None, 112)
        w_addr_const(a, self.vWc)
        a(f"s_lshl_b32 s{S_T0}, s{S_J}, 1")
        a(f"s_add_u32 s{S_T0}, s{S_T0}, s{S_I}")
        a(f"s_lshl_b32 s{S_T0}, s{S_T0}, 5")
        a(f"v_xor_b32 v{self.vWc}, s{S_T0}, v{self.vWc}")
    def addr_update(self):
        return [f"v_add_u32 v{self.vXa}, s{S_SLOT}, v{self.vXc}",
                f"v_add_u32 v{self.vW[0]}, s{S_SLOT}, v{self.vWc}",
                f"v_add_u32 v{self.vXsa}, s{S_SLOT}, v{self.vXsc}",
                f"v_xor_b32 v{self.vXb}, 64, v{self.vXa}",
                f"v_xor_b32 v{self.vW[1]}, 32, v{self.vW[0]}",
                f"v_xor_b32 v{self.vXsb}, 64, v{self.vXsa}"]
    def epilogue(self, a):
        nocs = a.new("nocs")
        a(f"s_lshl_b32 s{S_T0}, s{S_J}, 1")
        a(f"s_add_u32 s{S_T2}, s{S_T0}, s{S_I}     ; f0")
        a(f"s_lshl_b32 s{S_T0}, s{S_T2}, 6         ; f0*16*4 bytes")
        a(f"v_lshlrev_b32 v24, 4, v4")
        a(f"v_add_u32 v24, s{S_T0}, v24")
        a(f"v_add_u32 v24, {self.LDS_CS}, v24")
        a(f"v_xor_b32 v25, 64, v24                 ; f1")
        assert self.LDS_CS % 128 == 0
        a(f"s_cmp_eq_u32 s{S_I}, 1")
        a(f"s_cbranch_scc0 {nocs}")
        set_exec(a, 0x8000800080008000)
        for wi, (areg, poff) in enumerate([(24, 0), (24, 256), (25, 0), (25, 256)]):
            acc = self.accmap[(6, wi)]
            a(f"ds_write_b128 v{areg}, v[{acc}:{acc+3}] offset:{poff}")
        a("s_mov_b64 exec, -1")
        a.label(nocs)
        t_write_addr(a, 26, self.TBASE)
        a(f"s_lshl_b32 s{S_T0}, s{S_T2}, 5")
        a(f"v_xor_b32 v26, s{S_T0}, v26")
        a(f"v_add_u32 v28, {112*128}, v26")
        a(f"s_lshl_b32 s{S_T0}, s{S_I}, 14")
        a(f"v_add_u32 v26, s{S_T0}, v26")
        a(f"v_xor_b32 v27, 32, v26")
        a(f"s_lshl_b32 s{S_T0}, s{S_I}, 10         ; 128*i*8")
        a(f"v_lshlrev_b32 v29, 3, v3")
        a(f"v_add_u32 v30, {self.LDS_ST + 112*8}, v29")
        a(f"v_add_u32 v29, s{S_T0}, v29")
        a(f"v_add_u32 v29, {self.LDS_ST}, v29")
        a("s_waitcnt lgkmcnt(0)")
        a("s_barrier      ; E1")
        CS = 8
        for wi, (areg, poff) in enumerate([(24, 0), (24, 256), (25, 0), (25, 256)]):
            a(f"ds_read_b128 v[{CS+4*wi}:{CS+4*wi+3}], v{areg} offset:{poff}")
        def rdst(x):
            st = 152 + 2*(x & 3)
            if x < 7: a(f"ds_read_b64 v[{st}:{st+1}], v29 offset:{128*x}")
            else: a(f"ds_read_b64 v[{st}:{st+1}], v30")
        for x in range(4): rdst(x)
        for x in range(8):
            st = 152 + 2*(x & 3)
            if x == 0 or x == 4: a("s_waitcnt lgkmcnt(0)")
            a(f"v_mul_f32 v{st+1}, v{st+1}, v{st+1}")
            for p in range(2):
                if x == 7 and p == 1: continue
                g = self.accmap[(x, 2*p)]; u = self.accmap[(x, 2*p+1)]
                cg = CS + 8*p; cu = CS + 8*p + 4
                for hh in (0, 2):
                    a(f"v_pk_fma_f32 v[{g+hh}:{g+hh+1}], v[{cg+hh}:{cg+hh+1}], v[{st}:{st+1}], v[{g+hh}:{g+hh+1}] op_sel_hi:[1,0,1] neg_lo:[0,1,0] neg_hi:[0,1,0]")
                    a(f"v_pk_fma_f32 v[{u+hh}:{u+hh+1}], v[{cu+hh}:{cu+hh+1}], v[{st}:{st+1}], v[{u+hh}:{u+hh+1}] op_sel_hi:[1,0,1] neg_lo:[0,1,0] neg_hi:[0,1,0]")
                for hh in (0, 2):
                    a(f"v_pk_mul_f32 v[{g+hh}:{g+hh+1}], v[{g+hh}:{g+hh+1}], v[{u+hh}:{u+hh+1}]")
                for hh in (0, 2):
                    a(f"v_pk_mul_f32 v[{g+hh}:{g+hh+1}], v[{g+hh}:{g+hh+1}], v[{st}:{st+1}] op_sel:[0,1] op_sel_hi:[1,1]")
                a(f"v_cvt_pk_bf16_f32 v{g}, v{g}, v{g+1}")
                a(f"v_cvt_pk_bf16_f32 v{g+1}, v{g+2}, v{g+3}")
                if x < 7: a(f"ds_write_b64 v{26+p}, v[{g}:{g+1}] offset:{2048*x}")
                else: a(f"ds_write_b64 v28, v[{g}:{g+1}]")
            if x < 4: rdst(x + 4)
    def store_body(self, a):
        for k in range(4):
            a(f"ds_read_b128 v[{16+4*k}:{19+4*k}], v5 offset:{k*8192}")
        for k in range(4):
            store_addr(a, k, 10 + k, self)
        for k in range(4):
            a(f"s_waitcnt lgkmcnt({3-k})")
            a(f"buffer_store_dwordx4 v[{16+4*k}:{19+4*k}], v{10+k}, s[{SRD_OUT}:{SRD_OUT+3}], 0 offen{SC1}")

ROWB = 656
LQ, LK, LV, LO = 16384, 16384 + 16*ROWB, 16384 + 46*ROWB, 0
WPF = False
WPF_OFF = set()
def l2_prefetch(a, kind, NT, NC, kptr, nbytes, ldb, K, i0=0, i1=None):
    if not WPF or kptr in WPF_OFF: return 0
    R3 = ((K + 2)//3 + 7)//8*8
    ng = R3//8
    n = (ng + 3)//4
    a(f"s_mov_b32 s4, s{S_RT}"); a(f"s_mov_b32 s5, s{S_CT}")
    tile_map(a, NT, kind)
    divc(a, S_T0, S_RT, 3)
    a(f"s_mul_i32 s{S_T0}, s{S_T0}, 3")
    a(f"s_sub_u32 s{S_T0}, s{S_RT}, s{S_T0}")
    a(f"s_mul_i32 s{S_T0}, s{S_T0}, {R3}")
    a(f"s_lshl_b32 s{S_T1}, s{S_W}, 3")
    a(f"s_add_u32 s{S_T0}, s{S_T0}, s{S_T1}")
    a("v_lshrrev_b32 v150, 3, v2")
    a(f"v_add_u32 v150, s{S_T0}, v150")
    a(f"s_mov_b32 s{S_T1}, {ldb}")
    a(f"v_mul_lo_u32 v150, v150, s{S_T1}")
    a("v_and_b32 v151, 7, v2")
    a("v_lshl_add_u32 v150, v151, 4, v150")
    a(f"s_mul_i32 s{S_T1}, s{S_CT}, {NC*2}")
    a(f"v_add_u32 v150, s{S_T1}, v150")
    a(f"s_cmp_eq_u32 s{S_VALID}, 0")
    a(f"s_cselect_b32 s{S_T1}, 0x80000000, 0")
    a(f"v_or_b32 v150, s{S_T1}, v150")
    srd(a, 80, ptr(kptr), 0, nbytes)
    if i1 is None: i1 = n
    if i0: a(f"v_add_u32 v150, {32*ldb*i0}, v150")
    for i in range(i0, min(i1, n)):
        a(f"buffer_load_dwordx4 v[152:155], v150, s[80:83], 0 offen")
        if i + 1 < n: a(f"v_add_u32 v150, {32*ldb}, v150")
    a(f"s_mov_b32 s{S_RT}, s4"); a(f"s_mov_b32 s{S_CT}, s5")
    return min(i1, n) - i0

def att_phase(a, role):
    a(f"s_lshl_b32 s{S_R0}, s{S_RT}, 4       ; T0")
    srd(a, SRD_A, ptr(KA_WS), WS_QKV, S_TOK*NQKV*2)
    srd(a, SRD_OUT, ptr(KA_WS), WS_O, S_TOK*D*2)
    NI = 49
    nper = (NI + 7)//8
    a(f"s_mov_b32 s{S_T2}, 3840")
    a(f"s_mul_i32 s{S_T3}, s{S_CT}, 640")
    for j in range(nper):
        r = 32 + j
        a(f"s_add_u32 s{S_T0}, s{S_WAVE}, {8*j}")
        a(f"s_lshl_b32 s{S_T0}, s{S_T0}, 6")
        a(f"v_add_u32 v3, s{S_T0}, v2           ; c")
        vdiv(a, 4, 3, 41, 64*56)
        a("v_mul_u32_u24 v5, 41, v4")
        a("v_sub_u32 v5, v3, v5                  ; kap")
        a("v_cmp_le_u32 vcc, 16, v4")
        a("v_mov_b32 v8, 0x80000000")
        a("s_nop 0")
        a("v_cndmask_b32 v6, 0, 1, vcc")
        a("v_cmp_le_u32 vcc, 46, v4")
        a("s_nop 1")
        a("v_cndmask_b32 v7, 0, 1, vcc")
        a("v_add_u32 v6, v6, v7                  ; seg")
        a("v_mul_u32_u24 v7, 30, v6")
        a("v_sub_u32 v7, v4, v7")
        a(f"v_add_u32 v7, s{S_R0}, v7            ; token")
        a(f"v_mul_lo_u32 v7, v7, s{S_T2}")
        a("v_mul_u32_u24 v6, 1280, v6")
        a("v_add_u32 v7, v7, v6")
        a("v_lshl_add_u32 v7, v5, 4, v7")
        a(f"v_add_u32 v7, s{S_T3}, v7")
        a("v_cmp_gt_u32 vcc, 40, v5")
        a("s_nop 1")
        a("v_cndmask_b32 v7, v8, v7, vcc")
        a("v_cmp_gt_u32 vcc, 76, v4")
        a("s_nop 1")
        a(f"v_cndmask_b32 v{r}, v8, v7, vcc")
    if role == 'c':
        a(f"s_sub_u32 s{S_T0}, s{S_R0}, 14")
        a(f"s_max_i32 s{S_T0}, s{S_T0}, 0")
        sdiv(a, S_T0, S_T0, 121, 2100)
        a(f"s_add_u32 s{S_T1}, s{S_R0}, 15")
        sdiv(a, S_T1, S_T1, 121, 2100)
        a(f"s_mul_i32 s{S_T0}, s{S_T0}, 15")
        a(f"s_add_u32 s{S_T1}, s{S_T1}, 1")
        a(f"s_mul_i32 s{S_T1}, s{S_T1}, 15")
        poll(a, S_T0, S_T1, 0)
        a("s_barrier      ; B_dep")
    else:
        a("s_barrier      ; B_dep")
    stamp(a, 0)
    for j in range(nper):
        sk = None
        if 8*j + 7 >= NI:
            sk = a.new("attsk")
            a(f"s_cmp_ge_u32 s{S_WAVE}, {NI - 8*j}")
            a(f"s_cbranch_scc1 {sk}")
        a(f"s_add_u32 s{S_T0}, s{S_WAVE}, {8*j}")
        a(f"s_lshl_b32 s{S_T0}, s{S_T0}, 10")
        a(f"s_add_u32 m0, s{S_T0}, {LQ}")
        a("s_nop 0")
        a(f"buffer_load_dwordx4 v{32+j}, s[{SRD_A}:{SRD_A+3}], 0 offen{SC1} lds")
        if sk: a.label(sk)
    a("v_and_b32 v3, 1, v2            ; sub")
    a("v_bfe_u32 v4, v2, 1, 4         ; head")
    a("v_lshrrev_b32 v5, 5, v2")
    a(f"s_lshl_b32 s{S_T0}, s{S_WAVE}, 1")
    a(f"v_add_u32 v5, s{S_T0}, v5")
    a(f"v_mul_u32_u24 v6, {ROWB}, v5")
    a("v_mul_u32_u24 v7, 40, v4")
    a("v_add_u32 v6, v6, v7")
    a(f"v_mul_u32_u24 v7, {8*ROWB}, v3")
    a("v_sub_u32 v7, v6, v7")
    a(f"v_add_u32 v7, {LK}, v7")
    a("v_mul_u32_u24 v8, 24, v3       ; sub*24 -> X1 = 0/24, X2 = 8/32")
    a("v_add_u32 v8, v6, v8")
    a(f"v_add_u32 v8, {LV}, v8         ; b64 base")
    a("v_lshlrev_b32 v9, 2, v3        ; sub*4 -> X0 = 16/20")
    a("v_add_u32 v9, v6, v9")
    a(f"v_add_u32 v9, {LV + 16}, v9    ; b32 base")
    a(f"v_add_u32 v6, {LQ}, v6")
    a("s_waitcnt vmcnt(0)")
    a("s_barrier")
    stamp(a, 1)
    if role == 'l': l2_prefetch(a, "p3", 243, 64, KA_WG, D*F*2, 3456, D)
    Q = 16; KR = 32; LG = 100; VR = 32
    for i in range(5):
        a(f"ds_read_b64 v[{Q+2*i}:{Q+2*i+1}], v6 offset:{8*i}")
    for w in range(4):
        for i in range(5):
            a(f"ds_read_b64 v[{KR+10*w+2*i}:{KR+10*w+2*i+1}], v7 offset:{(14 - 2*w)*ROWB + 8*i}")
    for w in range(4): a(f"v_mov_b32 v{LG+w}, 0")
    a(f"v_add_u32 v10, s{S_R0}, v5")
    a("v_lshlrev_b32 v11, 3, v3       ; sub*8")
    a("v_sub_u32 v10, v10, v11")
    a("s_waitcnt lgkmcnt(0)")
    for i in range(10):
        for w in range(4):
            a(f"v_dot2_f32_bf16 v{LG+w}, v{Q+i}, v{KR+10*w+i}, v{LG+w}")
    for w in range(8):
        off = (14 - 2*w)*ROWB
        a(f"ds_read_b64 v[{VR+6*w}:{VR+6*w+1}], v8 offset:{off}")
        a(f"ds_read_b64 v[{VR+6*w+2}:{VR+6*w+3}], v8 offset:{off + 8}")
        a(f"ds_read_b32 v{VR+6*w+4}, v9 offset:{off}")
    scale = (D // 32) ** -0.5
    c1 = scale * 1.4426950408889634
    a(f"s_mov_b32 s{S_T0}, {hex(f2u(c1))}")
    a(f"v_mov_b32 v12, {hex(f2u(-1e30))}")
    for w in range(4):
        a(f"v_mul_f32 v{LG+w}, s{S_T0}, v{LG+w}")
    for w in range(4):
        a(f"v_cmp_le_i32 vcc, {2*w}, v10")
        a("s_nop 1")
        a(f"v_cndmask_b32 v{LG+w}, v12, v{LG+w}, vcc")
    a(f"v_max3_f32 v13, v{LG}, v{LG+1}, v{LG+2}")
    a(f"v_max_f32 v13, v13, v{LG+3}")
    a("s_nop 1")
    a("v_max_f32_dpp v13, v13, v13 quad_perm:[1,0,3,2] row_mask:0xf bank_mask:0xf")
    for w in range(4):
        a(f"v_sub_f32 v{LG+w}, v{LG+w}, v13")
    for w in range(4):
        a(f"v_exp_f32 v{LG+w}, v{LG+w}")
    a("s_nop 0")
    a(f"v_add_f32 v13, v{LG}, v{LG+1}")
    a(f"v_add_f32 v14, v{LG+2}, v{LG+3}")
    a("v_add_f32 v13, v13, v14")
    a("s_nop 1")
    a("v_add_f32_dpp v13, v13, v13 quad_perm:[1,0,3,2] row_mask:0xf bank_mask:0xf")
    a("v_rcp_f32 v13, v13")
    a("s_nop 0")
    for w in range(4):
        a(f"v_mul_f32 v{LG+w}, v{LG+w}, v13")
    a(f"v_cvt_pk_bf16_f32 v{LG+4}, v{LG}, v{LG+1}")
    a(f"v_cvt_pk_bf16_f32 v{LG+5}, v{LG+2}, v{LG+3}")
    a("s_nop 1")
    a(f"v_mov_b32_dpp v{LG+6}, v{LG+4} quad_perm:[0,0,2,2] row_mask:0xf bank_mask:0xf")
    a(f"v_mov_b32_dpp v{LG+7}, v{LG+5} quad_perm:[0,0,2,2] row_mask:0xf bank_mask:0xf   ; keys 2,3")
    a(f"v_mov_b32_dpp v{LG+8}, v{LG+4} quad_perm:[1,1,3,3] row_mask:0xf bank_mask:0xf")
    a(f"v_mov_b32_dpp v{LG+9}, v{LG+5} quad_perm:[1,1,3,3] row_mask:0xf bank_mask:0xf   ; keys 6,7")
    O = 112
    for i in range(10): a(f"v_mov_b32 v{O+i}, 0")
    a(f"s_mov_b32 s{S_T0}, 0x05040100")
    a(f"s_mov_b32 s{S_T1}, 0x07060302")
    a("s_waitcnt lgkmcnt(0)")
    for kp in range(4):
        for d in range(5):
            ra = VR + 6*(2*kp) + d; rb = VR + 6*(2*kp+1) + d
            a(f"v_perm_b32 v14, v{rb}, v{ra}, s{S_T0}")
            a(f"v_perm_b32 v15, v{rb}, v{ra}, s{S_T1}")
            a(f"v_dot2_f32_bf16 v{O+2*d}, v14, v{LG+6+kp}, v{O+2*d}")
            a(f"v_dot2_f32_bf16 v{O+2*d+1}, v15, v{LG+6+kp}, v{O+2*d+1}")
    a("s_nop 2")
    for d in range(5):
        a(f"v_cvt_pk_bf16_f32 v{Q+d}, v{O+2*d}, v{O+2*d+1}")
    a(f"v_subrev_u32 v8, {LV - LO}, v8")
    a(f"v_subrev_u32 v9, {LV - LO}, v9")
    a(f"ds_write_b64 v8, v[{Q}:{Q+1}]")
    a(f"ds_write_b64 v8, v[{Q+2}:{Q+3}] offset:8")
    a(f"ds_write_b32 v9, v{Q+4}")
    a("s_waitcnt lgkmcnt(0)")
    stamp(a, 2)
    a("s_barrier")
    for j in range(2):
        sk = None
        if j == 1:
            sk = a.new("attst")
            a(f"s_cmp_ge_u32 s{S_WAVE}, 2")
            a(f"s_cbranch_scc1 {sk}")
        a(f"s_add_u32 s{S_T0}, s{S_WAVE}, {8*j}")
        a(f"s_lshl_b32 s{S_T0}, s{S_T0}, 6")
        a(f"v_add_u32 v3, s{S_T0}, v2           ; chunk c 0..639")
        vdiv(a, 4, 3, 40, 640)
        a("v_mul_u32_u24 v5, 40, v4")
        a("v_sub_u32 v5, v3, v5                  ; kap")
        a(f"v_mul_u32_u24 v6, {ROWB}, v4")
        a("v_lshl_add_u32 v6, v5, 4, v6")
        a(f"ds_read_b128 v[20:23], v6 offset:{LO}")
        a(f"v_add_u32 v4, s{S_R0}, v4")
        a("v_mul_u32_u24 v4, 1280, v4")
        a("v_lshl_add_u32 v4, v5, 4, v4")
        a(f"v_add_u32 v4, s{S_T3}, v4")
        a("s_waitcnt lgkmcnt(0)")
        a(f"buffer_store_dwordx4 v[20:23], v4, s[{SRD_OUT}:{SRD_OUT+3}], 0 offen{SC1}")
        if sk: a.label(sk)
    a(f"s_lshl_b32 s{S_FIDX}, s{S_RT}, 1")
    a(f"s_add_u32 s{S_FIDX}, s{S_FIDX}, s{S_CT}")
    a(f"s_lshl_b32 s{S_FIDX}, s{S_FIDX}, 7")
    a(f"s_add_u32 s{S_FIDX}, s{S_FIDX}, 0x8000")

def finish_phase(a, role, first=False):
    a("s_waitcnt vmcnt(0)")
    stamp(a, 4)
    if role == 'c' and first: nonce_check(a)
    a("s_barrier      ; E3")
    if role == 'c': publish(a)
    stamp(a, 5)

def role_program(a, role):
    phases = [P1(), 'att', P24(2), P3(), P24(4)]
    for n, P in enumerate(phases):
        first = (n == 0)
        nxt = a.new("next"); inv = a.new("inv")
        if P == 'att':
            tile_map(a, 256, 'att')
            att_phase(a, role)
            stamp(a, 3)
            finish_phase(a, role)
            prof_store(a, 'att', role)
            continue
        tile_map(a, P.NT, P.kind)
        a(f"s_cmp_eq_u32 s{S_VALID}, 0")
        a(f"s_cbranch_scc1 {inv}")
        P.tile_consts(a)
        if role == 'c': consumer_phase(a, P, first)
        else: loader_phase(a, P, first)
        stamp(a, 3)
        if P.key != 'p4': finish_phase(a, role, first)
        prof_store(a, P.key, role)
        if first:
            a(f"s_branch {nxt}")
            a.label(inv)
            ptr_wait(a)
            if role == 'c': nonce_check(a, issued=False)
            a.label(nxt)
        else:
            a.label(inv)

def main(out):
    a = Asm()
    a.raw(f".globl {KNAME}")
    a.raw(".p2align 8")
    a.raw(f".type {KNAME},@function")
    a.label(KNAME)
    if PROFDBG:
        a(f"s_memrealtime s[{S_P0+1}:{S_P0+2}]") if False else None
    a("s_cmp_ge_u32 s2, 256")
    a("s_cbranch_scc1 L_exit")
    a(f"s_load_dwordx16 s[{S_PTR}:{S_PTR+15}], s[0:1], 0")
    a(f"s_load_dwordx4 s[{S_PTR+16}:{S_PTR+19}], s[0:1], 64")
    if PROFDBG:
        a(f"{STAMP} s[98:99]")
    a("v_lshrrev_b32 v1, 6, v0")
    a("v_and_b32 v2, 63, v0      ; lane")
    a(f"s_mov_b32 s{S_FIDX}, -1")
    a(f"v_readfirstlane_b32 s{S_WAVE}, v1")
    a("s_nop 3")
    a(f"s_sub_u32 s{S_W}, s{S_WAVE}, 4")
    a(f"s_cmp_ge_u32 s{S_WAVE}, 4")
    a("s_cbranch_scc1 L_loader")
    role_program(a, 'c')
    a("s_waitcnt vmcnt(0)")
    a("s_endpgm")
    a.label("L_loader")
    role_program(a, 'l')
    a("s_waitcnt vmcnt(0)")
    a.label("L_exit")
    a("s_endpgm")
    HEADER = open("sequential_preLN__sliding_local_dilated__glu_gated_bilinear__prompt.s.ref").read().split("; Override")[0]
    s = HEADER
    s += f"; @launch grid=(256,1,1) block=(512,1,1) lds={LDS_TOTAL}\n"
    s += '.amdgcn_target "amdgcn-amd-amdhsa--gfx950"\n.text\n'
    s += a.text()
    s += f""".section .rodata,"a"
.p2align 6
.amdhsa_kernel {KNAME}
  .amdhsa_next_free_vgpr 256
  .amdhsa_next_free_sgpr 102
  .amdhsa_accum_offset 160
  .amdhsa_group_segment_fixed_size 0
  .amdhsa_kernarg_size 80
  .amdhsa_user_sgpr_count 2
  .amdhsa_user_sgpr_kernarg_segment_ptr 1
  .amdhsa_system_sgpr_workgroup_id_x 1
  .amdhsa_float_denorm_mode_32 3
.end_amdhsa_kernel
"""
    open(out, "w").write(s)

if __name__ == "__main__":
    if "-prof" in sys.argv: PROF = True
    if "-profdbg" in sys.argv: PROFDBG = True
    if "-cyc" in sys.argv: STAMP = "s_memtime"
    if "-wpf" in sys.argv: WPF = True
    for x in sys.argv:
        if x.startswith("-off="):
            for k in x[5:].split(","): WPF_OFF.add({'wo': KA_WO, 'wg': KA_WG, 'wu': KA_WU, 'wd': KA_WD}[k])
    main(sys.argv[1] if len(sys.argv) > 1 else "v3.s")
```

```python
import sys, struct

KNAME = "sequential_preLN__sliding_local_dilated__glu_gated_bilinear__prompt_kernel"
S_TOK, D, NQKV, F = 2048, 640, 1920, 1728
WS_QKV, WS_O, WS_H, WS_HH, WS_ST, WS_FLAG = 0, 0x800000, 0xB00000, 0x1000000, 0x1800000, 0x1900000
WS_PROF = 0x1A00000
KA_X, KA_WQKV, KA_WO, KA_BX, KA_WG, KA_WU, KA_WD, KA_OUT, KA_DBG, KA_WS = [8*i for i in range(10)]
ONES = 0x3F803F80
PROF = False
PROFDBG = False
STAMP = 's_memrealtime'
SC1 = " sc1"
LDS_TOTAL = 163840
ALIGN = 6
TWOSTEP = True
EXP = set()
NOXCD = False

def f2u(x):
    return struct.unpack("<I", struct.pack("<f", x))[0]

class Asm:
    def __init__(self):
        self.L = []
        self.uid = 0
    def __call__(self, s):
        for line in s.split("\n"):
            line = line.strip()
            if line:
                self.L.append("  " + line)
    def label(self, n):
        self.L.append(n + ":")
    def raw(self, s):
        self.L.append(s)
    def new(self, base):
        self.uid += 1
        return f"L{base}_{self.uid}"
    def text(self):
        return "\n".join(self.L) + "\n"

SRD_A, SRD_B0, SRD_B1, SRD_OUT, SRD_AUX, SRD_ST = 8, 12, 16, 20, 24, 28
S_RT, S_CT, S_R0, S_C0, S_WAVE, S_SLOT, S_CNT, S_T0, S_T1, S_T2 = 32, 33, 34, 35, 36, 37, 38, 39, 40, 41
S_AOFF, S_BOFF = 42, 43
S_PTR = 44
S_MASK = 64
S_I, S_J, S_REND, S_K = 66, 67, 68, 69
S_STAMP = 70
S_NONCE = 78
S_FIDX, S_LW, S_VALID, S_KB = 85, 86, 87, 92
SRD_FLAG = 88
S_SLOTB, S_T3, S_T4, S_W = 93, 94, 95, 96
S_P0 = 97
S_N1, S_N2 = 6, 7

def ptr(k): return S_PTR + k // 4

PH_IDX = {'p1': 0, 'att': 1, 'p2': 2, 'p3': 3, 'p4': 4}

def stamp(a, i):
    if i >= 4:
        if PROF: a(f'{STAMP} s[{98+2*(i-4)}:{99+2*(i-4)}]')
        return
    if PROF or PROFDBG:
        a(f'{STAMP} s[{S_STAMP+2*i}:{S_STAMP+2*i+1}]')

def prof_store(a, ph, role):
    if not (PROF or PROFDBG): return
    skip = a.new("pskip")
    a(f"s_cmp_eq_u32 s{S_WAVE}, {0 if role == 'c' else 4}")
    a(f"s_cbranch_scc0 {skip}")
    a('s_waitcnt lgkmcnt(0)')
    if PROF:
        a(f's_add_u32 s80, s{ptr(KA_WS)}, {hex(WS_PROF + PH_IDX[ph]*0x20000)}')
        a(f's_addc_u32 s81, s{ptr(KA_WS)+1}, 0')
        a('s_and_b32 s81, s81, 0xffff')
        a('s_mov_b32 s82, 0x20000')
        a('s_mov_b32 s83, 0x20000')
        a('s_lshl_b32 s84, s2, 3')
        a(f's_add_u32 s84, s84, s{S_WAVE}')
        a('s_lshl_b32 s84, s84, 6')
        for i in range(8): a(f'v_mov_b32 v{128+i}, s{S_STAMP+i}')
        for i in range(4): a(f'v_mov_b32 v{136+i}, s{98+i}')
        a('v_mov_b32 v148, s84')
        a('s_mov_b64 exec, 1')
        a('buffer_store_dwordx4 v[128:131], v148, s[80:83], 0 offen')
        a('buffer_store_dwordx4 v[132:135], v148, s[80:83], 0 offen offset:16')
        a('buffer_store_dwordx4 v[136:139], v148, s[80:83], 0 offen offset:32')
        a('s_mov_b64 exec, -1')
    if PROFDBG and role == 'c':
        sk2 = a.new("pskip")
        a(f"s_cmp_eq_u32 s2, {PROFDBG_WG}")
        a(f"s_cbranch_scc0 {sk2}")
        a(f's_mov_b32 s80, s{ptr(KA_DBG)}')
        a(f's_and_b32 s81, s{ptr(KA_DBG)+1}, 0xffff')
        a('s_mov_b32 s82, 0x100')
        a('s_mov_b32 s83, 0x20000')
        sel = DBG_SEL[ph]
        for j, (i, slot) in enumerate(sel):
            a(f's_sub_u32 s84, s{S_STAMP+2*i}, s{S_P0}')
            a(f'v_mov_b32 v140, s84')
            a(f'v_mov_b32 v141, {4*slot}')
            a('s_mov_b64 exec, 1')
            a('buffer_store_dword v140, v141, s[80:83], 0 offen')
            a('s_mov_b64 exec, -1')
        a.label(sk2)
    a.label(skip)

PROFDBG_WG = 9
DBG_SEL = {'p1': [(1, 2), (2, 3), (3, 4)], 'att': [(0, 5), (1, 6), (3, 7)], 'p2': [(0, 8), (2, 9)], 'p3': [(0, 10), (1, 11), (2, 12)], 'p4': [(0, 13), (2, 14), (3, 15)]}

def set_exec(a, mask):
    if mask == (1 << 64) - 1:
        a("s_mov_b64 exec, -1")
    else:
        a(f"s_mov_b32 exec_lo, {hex(mask & 0xffffffff)}")
        a(f"s_mov_b32 exec_hi, {hex(mask >> 32)}")

def srd(a, s, p, off, nbytes):
    if off:
        a(f"s_add_u32 s{s}, s{p}, {hex(off)}")
        a(f"s_addc_u32 s{s+1}, s{p+1}, 0")
    else:
        a(f"s_mov_b32 s{s}, s{p}")
        a(f"s_mov_b32 s{s+1}, s{p+1}")
    a(f"s_and_b32 s{s+1}, s{s+1}, 0xffff")
    a(f"s_mov_b32 s{s+2}, {hex(nbytes)}")
    a(f"s_mov_b32 s{s+3}, 0x20000")

def divc(a, dst, src, d, rng=300):
    m = (65536 + d - 1) // d
    for x in range(0, rng):
        assert (x * m) >> 16 == x // d, (x, d)
    a(f"s_mul_i32 s{dst}, s{src}, {m}")
    a(f"s_lshr_b32 s{dst}, s{dst}, 16")

def magic(d, N):
    for sh in range(8, 24):
        m = ((1 << sh) + d - 1) // d
        if m >= (1 << 24) or m * (N - 1) >= (1 << 32): continue
        if all((x * m) >> sh == x // d for x in range(N)): return m, sh
    raise Exception("no magic")

def sdiv(a, dst, src, d, N):
    m, sh = magic(d, N)
    a(f"s_mul_i32 s{dst}, s{src}, {m}")
    a(f"s_lshr_b32 s{dst}, s{dst}, {sh}")

def vdiv(a, dst, src, d, N):
    m, sh = magic(d, N)
    a(f"v_mul_u32_u24 v{dst}, {m}, v{src}")
    a(f"v_lshrrev_b32 v{dst}, {sh}, v{dst}")

def tile_map(a, NT, kind):
    if NOXCD:
        a(f"s_mov_b32 s{S_T0}, s2")
    else:
        a(f"s_and_b32 s{S_T0}, s2, 7")
        a(f"s_lshr_b32 s{S_T1}, s2, 3")
        a(f"s_lshl_b32 s{S_T0}, s{S_T0}, 5")
        a(f"s_add_u32 s{S_T0}, s{S_T0}, s{S_T1}   ; t")
    a(f"s_cmp_lt_u32 s{S_T0}, {NT}")
    a(f"s_cselect_b32 s{S_VALID}, 1, 0")
    if kind == "p1":
        divc(a, S_T1, S_T0, 90)
        a(f"s_mul_i32 s{S_T2}, s{S_T1}, 90")
        a(f"s_sub_u32 s{S_T2}, s{S_T0}, s{S_T2}")
        divc(a, S_CT, S_T2, 6)
        divc(a, S_RT, S_T2, 5)
        a(f"s_cmp_eq_u32 s{S_T1}, 2")
        a(f"s_cselect_b32 s{S_CT}, s{S_RT}, s{S_CT}")
        a(f"s_cselect_b32 s{S_RT}, 5, 6")
        a(f"s_mul_i32 s{S_RT}, s{S_RT}, s{S_CT}")
        a(f"s_sub_u32 s{S_RT}, s{S_T2}, s{S_RT}")
        a(f"s_mul_i32 s{S_T1}, s{S_T1}, 6")
        a(f"s_add_u32 s{S_RT}, s{S_RT}, s{S_T1}")
    elif kind == "p3":
        divc(a, S_T1, S_T0, 81)
        a(f"s_mul_i32 s{S_T2}, s{S_T1}, 81")
        a(f"s_sub_u32 s{S_T2}, s{S_T0}, s{S_T2}")
        divc(a, S_CT, S_T2, 3)
        a(f"s_mul_i32 s{S_RT}, s{S_CT}, 3")
        a(f"s_sub_u32 s{S_RT}, s{S_T2}, s{S_RT}")
        a(f"s_mul_i32 s{S_T1}, s{S_T1}, 3")
        a(f"s_add_u32 s{S_RT}, s{S_RT}, s{S_T1}")
    elif kind == "att":
        a(f"s_lshr_b32 s{S_RT}, s{S_T0}, 1")
        a(f"s_and_b32 s{S_CT}, s{S_T0}, 1")
    else:
        divc(a, S_RT, S_T0, 10)
        a(f"s_mul_i32 s{S_CT}, s{S_RT}, 10")
        a(f"s_sub_u32 s{S_CT}, s{S_T0}, s{S_CT}")

def publish(a):
    skip = a.new("pub")
    a(f"s_cmp_eq_u32 s{S_WAVE}, 0")
    a(f"s_cbranch_scc0 {skip}")
    a(f"s_cmp_eq_u32 s{S_FIDX}, -1")
    a(f"s_cbranch_scc1 {skip}")
    a(f"v_mov_b32 v140, s{S_NONCE}")
    a(f"v_mov_b32 v141, s{S_NONCE+1}")
    a(f"v_mov_b32 v142, s{S_FIDX}")
    a("s_mov_b64 exec, 1")
    a(f"buffer_store_dwordx2 v[140:141], v142, s[{SRD_FLAG}:{SRD_FLAG+3}], 0 offen{SC1}")
    a("s_mov_b64 exec, -1")
    a.label(skip)

def poll_core(a):
    loop = a.new("poll"); done = a.new("polldone")
    a(f"s_and_saveexec_b64 s[80:81], vcc")
    a(f"s_mov_b32 s{S_CNT}, 0x40000")
    a.label(loop)
    a(f"buffer_load_dwordx2 v[142:143], v140, s[{SRD_FLAG}:{SRD_FLAG+3}], 0 offen{SC1}")
    a("s_waitcnt vmcnt(0)")
    a(f"v_cmp_ne_u64 vcc, s[{S_NONCE}:{S_NONCE+1}], v[142:143]")
    a(f"s_cbranch_vccz {done}")
    a(f"s_sub_u32 s{S_CNT}, s{S_CNT}, 1")
    a(f"s_cmp_lg_u32 s{S_CNT}, 0")
    a(f"s_cbranch_scc1 {loop}")
    a.label(done)
    a("s_mov_b64 exec, s[80:81]")

def poll(a, lo_sgpr, hi_sgpr, base):
    skip = a.new("pollskip")
    a(f"s_cmp_eq_u32 s{S_WAVE}, 0")
    a(f"s_cbranch_scc0 {skip}")
    a(f"v_add_u32 v140, s{lo_sgpr}, v2")
    a(f"v_cmp_gt_u32 vcc, s{hi_sgpr}, v140")
    a(f"v_lshlrev_b32 v140, 7, v140")
    a(f"v_add_u32 v140, {base}, v140")
    poll_core(a)
    a.label(skip)

def poll_first(a, lo_sgpr, hi_sgpr, W, k0, k1, base):
    skip = a.new("pollskip")
    a(f"s_cmp_eq_u32 s{S_WAVE}, 0")
    a(f"s_cbranch_scc0 {skip}")
    a("v_lshrrev_b32 v140, 1, v2")
    a(f"v_add_u32 v140, s{lo_sgpr}, v140")
    a(f"v_cmp_ge_u32 vcc, s{hi_sgpr}, v140")
    a(f"v_mul_u32_u24 v140, {W}, v140")
    a("v_and_b32 v141, 1, v2")
    a(f"s_sub_u32 s{S_T2}, s{k1}, s{k0}")
    a(f"v_mul_lo_u32 v141, v141, s{S_T2}")
    a(f"v_add_u32 v141, s{k0}, v141")
    a("v_add_u32 v140, v140, v141")
    a(f"v_lshlrev_b32 v140, 7, v140")
    a(f"v_add_u32 v140, {base}, v140")
    poll_core(a)
    a.label(skip)

def first_ks(a, P):
    P.rot_start(a)
    a(f"s_add_u32 s{S_KB}, s{S_K}, 1")
    a(f"s_cmp_ge_u32 s{S_KB}, {P.S}")
    a(f"s_cselect_b32 s{S_KB}, 0, s{S_KB}")

def dbg_srd(a):
    a(f"s_mov_b32 s80, s{ptr(KA_DBG)}")
    a(f"s_and_b32 s81, s{ptr(KA_DBG)+1}, 0xffff")
    a("s_mov_b32 s82, 0x100")
    a("s_mov_b32 s83, 0x20000")

def nonce_publish(a):
    skip = a.new("nonce")
    a(f"s_cmp_eq_u32 s{S_WAVE}, 0")
    a(f"s_cbranch_scc0 {skip}")
    a("s_cmp_eq_u32 s2, 0")
    a(f"s_cbranch_scc0 {skip}")
    dbg_srd(a)
    a(f"s_memrealtime s[{S_NONCE}:{S_NONCE+1}]")
    a("v_mov_b32 v142, 0")
    a("s_waitcnt lgkmcnt(0)")
    a(f"s_or_b32 s{S_NONCE}, s{S_NONCE}, 1")
    a(f"v_mov_b32 v140, s{S_NONCE}")
    a(f"v_mov_b32 v141, s{S_NONCE+1}")
    a("s_mov_b64 exec, 1")
    a(f"buffer_store_dwordx2 v[140:141], v142, s[80:83], 0 offen{SC1}")
    a("s_mov_b64 exec, -1")
    a.label(skip)

def nonce_issue(a):
    skip = a.new("nonce")
    a(f"s_cmp_eq_u32 s{S_WAVE}, 0")
    a(f"s_cbranch_scc0 {skip}")
    dbg_srd(a)
    a("v_mov_b32 v158, 0")
    a("s_nop 3")
    a(f"buffer_load_dwordx2 v[156:157], v158, s[80:83], 0 offen{SC1}")
    a.label(skip)

def nonce_check(a, issued=True):
    skip = a.new("nonce"); loop = a.new("nloop"); done = a.new("ndone"); chk = a.new("nchk")
    a(f"s_cmp_eq_u32 s{S_WAVE}, 0")
    a(f"s_cbranch_scc0 {skip}")
    dbg_srd(a)
    a("v_mov_b32 v158, 0")
    a(f"s_mov_b32 s{S_CNT}, 0x40000")
    if issued: a(f"s_branch {chk}")
    a.label(loop)
    a(f"buffer_load_dwordx2 v[156:157], v158, s[80:83], 0 offen{SC1}")
    a("s_waitcnt vmcnt(0)")
    a.label(chk)
    a("v_readfirstlane_b32 s" + str(S_NONCE) + ", v156")
    a("v_readfirstlane_b32 s" + str(S_NONCE+1) + ", v157")
    a("s_nop 3")
    a(f"s_cmp_lg_u32 s{S_NONCE}, 0")
    a(f"s_cbranch_scc1 {done}")
    a(f"s_sub_u32 s{S_CNT}, s{S_CNT}, 1")
    a(f"s_cmp_lg_u32 s{S_CNT}, 0")
    a(f"s_cbranch_scc1 {loop}")
    a.label(done)
    a.label(skip)

class Phase:
    has_e1 = False
    has_stage_work = False
    prefetchB = 0
    def loader_post_first(self, a): return 0
    def loader_post_b0(self, a): return 0
    def loader_stage_work_parts(self): return []
    def loader_final(self, a): pass
    def store_pre(self, a): pass
    def tail_prefetch(self, a, part): return 0
    def mid_prefetch(self, a, s): return 0
    def l2_prep(self, a): pass
    def rot_start(self, a):
        if self.key in ROTOFF:
            a(f"s_mov_b32 s{S_K}, 0"); return
        ca, cb, den = self.rot
        a(f"s_mul_i32 s{S_K}, s{S_CT}, {ca}")
        a(f"s_mul_i32 s{S_T0}, s{S_RT}, {cb}")
        a(f"s_add_u32 s{S_K}, s{S_K}, s{S_T0}")
        a(f"s_lshr_b32 s{S_K}, s{S_K}, {den}")
        m = (65536 + self.S - 1) // self.S
        for x in range(1024): assert (x*m) >> 16 == x // self.S
        a(f"s_mul_i32 s{S_T0}, s{S_K}, {m}")
        a(f"s_lshr_b32 s{S_T0}, s{S_T0}, 16")
        a(f"s_mul_i32 s{S_T0}, s{S_T0}, {self.S}")
        a(f"s_sub_u32 s{S_K}, s{S_K}, s{S_T0}")
    def tile_consts(self, a):
        a(f"s_mul_i32 s{S_R0}, s{S_RT}, {self.MV}")
        a(f"s_mul_i32 s{S_C0}, s{S_CT}, {self.NC}")
        a(f"s_add_u32 s{S_REND}, s{S_R0}, {self.MV}")
        a(f"s_min_u32 s{S_REND}, s{S_REND}, {S_TOK}")

def transition(a, first):
    pass

def loader_phase(a, P, first):
    NS, S = P.NS, P.S
    nA, nB = len(P.Ains), len(P.Bins)
    VB = 32
    a("v_lshrrev_b32 v3, 3, v2      ; r8")
    a("v_and_b32 v4, 7, v2          ; p")
    a("v_lshrrev_b32 v5, 1, v3      ; r8>>1")
    a("v_xor_b32 v6, v4, v5")
    a("v_lshlrev_b32 v6, 4, v6")
    a(f"s_lshl_b32 s{S_T0}, s{S_W}, 3")
    a(f"s_add_u32 s{S_T0}, s{S_T0}, s{S_R0}")
    a(f"v_add_u32 v7, s{S_T0}, v3")
    a(f"s_mov_b32 s{S_T0}, {P.lda}")
    a(f"v_mul_lo_u32 v7, v7, s{S_T0}")
    a("v_add_u32 v7, v7, v6")
    a(f"s_and_b32 s{S_T0}, s{S_W}, 1")
    a(f"s_lshl_b32 s{S_T0}, s{S_T0}, 6")
    a(f"v_xor_b32 v7, s{S_T0}, v7")
    for t in range(nA):
        a(f"v_add_u32 v{VB+t}, {t*32*P.lda}, v7")
    a("v_and_b32 v8, 1, v5")
    a("v_lshlrev_b32 v8, 1, v8")
    a("v_xor_b32 v8, v4, v8")
    a("v_lshlrev_b32 v8, 4, v8")
    a(f"s_lshl_b32 s{S_T0}, s{S_W}, 3")
    a(f"v_add_u32 v9, s{S_T0}, v3         ; k = 8w + r8")
    a(f"s_mov_b32 s{S_T0}, {P.ldb}")
    a(f"v_mul_lo_u32 v9, v9, s{S_T0}")
    a("v_add_u32 v9, v9, v8")
    a(f"s_and_b32 s{S_T0}, s{S_W}, 1")
    a(f"s_lshl_b32 s{S_T0}, s{S_T0}, 6")
    a(f"v_xor_b32 v9, s{S_T0}, v9")
    a(f"s_lshl_b32 s{S_T1}, s{S_C0}, 1")
    a(f"v_add_u32 v9, s{S_T1}, v9")
    for t, (pn, ib) in enumerate(P.Bins):
        a(f"v_add_u32 v{VB+nA+t}, {ib*8*P.ldb + P.panel_coloff[pn]}, v9")
    a(f"s_lshl_b32 s{S_LW}, s{S_W}, 10")
    P.mask_setup(a)
    P.rot_start(a)
    a(f"s_mov_b32 s{S_KB}, s{S_K}")
    a(f"s_mov_b32 s{S_N1}, 0"); a(f"s_mov_b32 s{S_N2}, 0")
    if first: ptr_wait(a)
    P.build_srds(a, 'l')

    def adv(kreg, offreg, mul, slotreg):
        if getattr(P, 'order2', False) and P1ROT == 'latin2':
            cnt = S_N1 if kreg == S_K else S_N2
            a(f"s_add_u32 s{kreg}, s{kreg}, 2")
            a(f"s_cmp_ge_u32 s{kreg}, {S}")
            a(f"s_cselect_b32 s{S_T0}, {S}, 0")
            a(f"s_sub_u32 s{kreg}, s{kreg}, s{S_T0}")
            a(f"s_add_u32 s{cnt}, s{cnt}, 1")
            a(f"s_cmp_eq_u32 s{cnt}, 5")
            a(f"s_addc_u32 s{kreg}, s{kreg}, 0")
        else:
            a(f"s_add_u32 s{kreg}, s{kreg}, 1")
            a(f"s_cmp_ge_u32 s{kreg}, {S}")
            a(f"s_cselect_b32 s{kreg}, 0, s{kreg}")
        a(f"s_mul_i32 s{offreg}, s{kreg}, {mul}")
        a(f"s_add_u32 s{slotreg}, s{slotreg}, {P.STAGE}")
        a(f"s_cmp_ge_u32 s{slotreg}, {P.STAGE*NS}")
        a(f"s_cselect_b32 s{slotreg}, 0, s{slotreg}")
    def issueA(fill=None):
        a(f"s_add_u32 s{S_T3}, s{S_SLOT}, s{S_LW}")
        for t in range(nA):
            special = P.Ains[t]
            sk = None
            if special == 'skip':
                sk = a.new("sk")
                a(f"s_cmp_eq_u64 s[{S_MASK}:{S_MASK+1}], 0")
                a(f"s_cbranch_scc1 {sk}")
            a(f"s_add_u32 m0, s{S_T3}, {t*4096}")
            if special: a(f"s_mov_b64 exec, s[{S_MASK}:{S_MASK+1}]")
            else: a("s_nop 0")
            a(f"buffer_load_dwordx4 v{VB+t}, s[{SRD_A}:{SRD_A+3}], s{S_AOFF} offen{P.scA} lds")
            if special: a("s_mov_b64 exec, -1")
            if sk: a.label(sk)
            if fill:
                for x in fill.pop(0) if fill else []: a(x)
        adv(S_K, S_AOFF, 128, S_SLOT)
    def issueB(fill=None):
        a(f"s_add_u32 s{S_T4}, s{S_SLOTB}, s{S_LW}")
        for t, (pn, ib) in enumerate(P.Bins):
            sr = P.panel_srd[pn]
            a(f"s_add_u32 m0, s{S_T4}, {P.ABYTES + pn*8192 + ib*1024}")
            a("s_nop 0")
            a(f"buffer_load_dwordx4 v{VB+nA+t}, s[{sr}:{sr+3}], s{S_BOFF} offen lds")
            if fill:
                for x in fill.pop(0) if fill else []: a(x)
        adv(S_KB, S_BOFF, 64*P.ldb, S_SLOTB)
    minA = nA - (1 if 'skip' in P.Ains else 0)
    a(f"s_mov_b32 s{S_SLOT}, 0")
    a(f"s_mov_b32 s{S_SLOTB}, 0")
    a(f"s_lshl_b32 s{S_AOFF}, s{S_K}, 7")
    a(f"s_mul_i32 s{S_BOFF}, s{S_KB}, {64*P.ldb}")
    pB = P.prefetchB if not first else 0
    if pB:
        lp = a.new("bpre")
        a(f"s_mov_b32 s{S_CNT}, {pB}")
        a.label(lp)
        issueB()
        a(f"s_sub_u32 s{S_CNT}, s{S_CNT}, 1")
        a(f"s_cmp_lg_u32 s{S_CNT}, 0")
        a(f"s_cbranch_scc1 {lp}")
    if not first:
        a("s_barrier      ; B_dep")
    stamp(a, 0)
    L = []
    for s in range(S):
        cap = (NS - 1) if s == 0 else s + NS - 2
        prev = L[-1] if L else -1
        L.append(min(S - 1, cap, prev + 2))
    seq = [('B', j) for j in range(pB)]
    def cnt_after(s):
        last = max(i for i, (k, j) in enumerate(seq) if j == s and k in 'AB')
        n = 0
        for (k, j) in seq[last+1:]:
            n += minA if k == 'A' else (nB if k == 'B' else j)
        return n
    def issue_stage(j, fill=None):
        if j >= pB:
            issueA(fill); seq.append(('A', j))
            issueB(fill); seq.append(('B', j))
        else:
            issueA(fill); seq.append(('A', j))
    prev = -1
    s = 0
    while s < S:
        k = L[s] - prev
        e = s
        if k == 1 and L[s] >= pB and s > 0 and not (WPF and getattr(P, 'unroll', False)):
            while e + 1 < S and L[e+1] - L[e] == 1 and (L[e+1] - (e+1)) == (L[s] - s): e += 1
        if e - s >= 2 and s - 0 >= 0 and min(range(s, e+1)) >= 0 and s >= pB - (L[s] - s) and all(j >= pB for j in range(s, s+1)):
            cnt = e - s + 1
            lp = a.new("lmain")
            a(f"s_mov_b32 s{S_CNT}, {cnt}")
            a.label(lp)
            parts = P.loader_stage_work_parts() if P.has_stage_work else None
            issue_stage(L[s], parts)
            if parts:
                for grp in parts:
                    for x in grp: a(x)
            n = cnt_after(s)
            a(f"s_waitcnt vmcnt({n})")
            if P.has_stage_work: a("s_waitcnt lgkmcnt(0)")
            a("s_barrier")
            a(f"s_sub_u32 s{S_CNT}, s{S_CNT}, 1")
            a(f"s_cmp_lg_u32 s{S_CNT}, 0")
            a(f"s_cbranch_scc1 {lp}")
            for j in range(s+1, e+1):
                seq.append(('A', L[j])); seq.append(('B', L[j]))
            prev = L[e]; s = e + 1
            continue
        parts = P.loader_stage_work_parts() if (P.has_stage_work and s > 0) else None
        for j in range(prev+1, L[s]+1):
            issue_stage(j, parts if j == prev+1 else None)
        if s == 0:
            stamp(a, 1)
            ex = P.loader_post_first(a) or 0
            P.l2_prep(a)
            if getattr(P, 'early_pre', False): ex += P.early_setup(a)
            if ex: seq.append(('X', ex))
        if parts:
            for grp in parts:
                for x in grp: a(x)
        nw = P.mid_prefetch(a, s) or 0
        if nw: seq.append(('X', nw))
        a(f"s_waitcnt vmcnt({cnt_after(s)})")
        if P.has_stage_work or s == 0: a("s_waitcnt lgkmcnt(0)")
        a("s_barrier")
        if s == 0:
            ex = P.loader_post_b0(a) or 0
            if ex: seq.append(('X', ex))
        prev = L[s]; s += 1
    stamp(a, 2)
    if P.has_stage_work:
        for grp in P.loader_stage_work_parts():
            for x in grp: a(x)
    P.loader_final(a)
    if getattr(P, 'chunk_epi', False): P.loader_store_setup(a)
    if getattr(P, 'early_pre', False):
        a("s_barrier          ; E2")
        P.store_fast(a)
        P.set_fidx(a)
        return
    P.store_pre(a)
    ny = 0
    if P.has_e1:
        a("s_waitcnt lgkmcnt(0)")
        a("s_barrier      ; E1")
    if getattr(P, 'stream_epi', False):
        P.set_fidx(a)
        return
    if getattr(P, 'chunk_epi', False):
        P.loader_epilogue(a)
        P.set_fidx(a)
        return
    a("s_barrier          ; E2")
    store_pass(a, P, ny)

def consumer_phase(a, P, first):
    if getattr(P, 'modeS', False): return consumer_phase_S(a, P, first)
    P.consumer_setup(a)
    NW = len(P.wlist)
    XF = [0, 4*P.NXMAX]
    WF = [8*P.NXMAX, 8*P.NXMAX + 4*NW]
    def reads(kk, buf):
        r = []
        for wi, (areg, off) in enumerate(P.wlist):
            base = WF[buf] + 4*wi
            r.append(f"ds_read_b64_tr_b16 a[{base}:{base+1}], v{areg} offset:{off + kk*4096}")
            r.append(f"ds_read_b64_tr_b16 a[{base+2}:{base+3}], v{areg} offset:{off + kk*4096 + 512}")
        for xi, (areg0, areg1, off) in enumerate(P.xlist):
            base = XF[buf] + 4*xi
            areg = areg0 if kk == 0 else areg1
            r.append(f"ds_read_b128 a[{base}:{base+3}], v{areg} offset:{off}")
        return r
    def mfmas(buf, first_=False):
        m = []
        for (xi, wi, acc) in P.mf:
            c = "0" if first_ else f"v[{acc}:{acc+3}]"
            m.append(f"v_mfma_f32_16x16x32_bf16 v[{acc}:{acc+3}], a[{WF[buf]+4*wi}:{WF[buf]+4*wi+3}], a[{XF[buf]+4*xi}:{XF[buf]+4*xi+3}], {c}")
        return m
    block = make_block(a, P.RPM)
    cons_prologue(a, P, first)
    for x in reads(0, 0): a(x)
    a(f"s_mov_b32 s{S_CNT}, {P.S-1}")
    a("s_waitcnt lgkmcnt(0)")
    block(mfmas(0, True), reads(1, 1), slot_adv(P) + P.addr_update())
    lp = a.new("cloop")
    if ALIGN: a.raw(f".p2align {ALIGN}")
    a.label(lp)
    a("s_waitcnt lgkmcnt(0)")
    a("s_barrier")
    block(mfmas(1), reads(0, 0), [f"s_sub_u32 s{S_CNT}, s{S_CNT}, 1"])
    a("s_waitcnt lgkmcnt(0)")
    block(mfmas(0), reads(1, 1), slot_adv(P) + P.addr_update() + [f"s_cmp_lg_u32 s{S_CNT}, 0"])
    a(f"s_cbranch_scc1 {lp}")
    a("s_waitcnt lgkmcnt(0)")
    block(mfmas(1), [])
    cons_tail(a, P, first)

def make_block(a, RPM):
    def block(m, r, fill=()):
        q = list(r); fl = list(fill)
        for i, x in enumerate(m):
            a(x)
            k = 0
            while q and k < RPM:
                a(q.pop(0)); k += 1
            if not q:
                while fl and k < 2:
                    a(fl.pop(0)); k += 1
        for x in q: a(x)
        for x in fl: a(x)
    return block

def slot_adv(P):
    return [f"s_add_u32 s{S_SLOT}, s{S_SLOT}, {P.STAGE}",
            f"s_cmp_ge_u32 s{S_SLOT}, {P.STAGE*P.NS}",
            f"s_cselect_b32 s{S_SLOT}, 0, s{S_SLOT}"]

def cons_prologue(a, P, first):
    a(f"s_mov_b32 s{S_SLOT}, 0")
    for x in P.addr_update(): a(x)
    if first: ptr_wait(a)
    P.build_srds(a, 'c')
    if not first:
        if TWOSTEP: P.deps_first(a)
        else: P.deps(a)
        a("s_barrier      ; B_dep")
        if getattr(P, 'early_pre', False): P.early_setup(a)
        if TWOSTEP: P.deps(a)
    else:
        nonce_publish(a)
    stamp(a, 0)
    a("s_barrier          ; B_0")
    stamp(a, 1)

def cons_tail(a, P, first):
    stamp(a, 2)
    if first: nonce_issue(a)
    a("s_nop 7")
    P.epilogue(a)
    if getattr(P, 'stream_epi', False) or getattr(P, 'chunk_epi', False):
        P.set_fidx(a)
        return
    a("s_waitcnt lgkmcnt(0)")
    if getattr(P, 'early_pre', False):
        a("s_barrier          ; E2")
        P.store_fast(a)
        P.set_fidx(a)
        return
    P.store_pre(a)
    a("s_barrier          ; E2")
    store_pass(a, P)

def consumer_phase_S(a, P, first):
    P.consumer_setup(a)
    for r in range(P.ACC, P.ACC + P.NACC): a(f"v_mov_b32 v{r}, 0")
    def rng(t):
        k, i = t
        return f"{k}[{i}:{i+3}]"
    def half(t, h):
        k, i = t
        return f"{k}[{i+2*h}:{i+2*h+1}]"
    def reads(buf):
        r = []
        for kk in range(2):
            for wi, (areg, off) in enumerate(P.wlist):
                t = P.fragW(buf, kk, wi)
                r.append(f"ds_read_b64_tr_b16 {half(t,0)}, v{areg} offset:{off + kk*4096}")
                r.append(f"ds_read_b64_tr_b16 {half(t,1)}, v{areg} offset:{off + kk*4096 + 512}")
            for xi, (areg0, areg1, off) in enumerate(P.xlist):
                areg = areg0 if kk == 0 else areg1
                r.append(f"ds_read_b128 {rng(P.fragX(buf, kk, xi))}, v{areg} offset:{off}")
        return r
    def mfmas(buf):
        m = []
        for kk in range(2):
            for (xi, wi, acc) in P.mf:
                m.append(f"v_mfma_f32_16x16x32_bf16 v[{acc}:{acc+3}], {rng(P.fragW(buf, kk, wi))}, {rng(P.fragX(buf, kk, xi))}, v[{acc}:{acc+3}]")
        return m
    def stats(buf):
        if not getattr(P, 'mfma_stats', False) or 'nostats' in EXP: return
        l1 = a.new("st"); l2 = a.new("st")
        a(f"s_cmp_eq_u32 s{S_J}, 1")
        a(f"s_cbranch_scc1 {l1}")
        for x in P.stats_mfmas([rng(P.fragX(buf, 0, xi)) for xi in range(4)]): a(x)
        a(f"s_branch {l2}")
        a.label(l1)
        for x in P.stats_mfmas([rng(P.fragX(buf, 1, xi)) for xi in range(4)]): a(x)
        a.label(l2)
    block = make_block(a, P.RPM)
    cons_prologue(a, P, first)
    for x in reads(0): a(x)
    for x in slot_adv(P) + P.addr_update(): a(x)
    S = P.S
    npair = (S - 1)//2
    def step(cur, fill_extra=()):
        a("s_waitcnt lgkmcnt(0)")
        a("s_barrier")
        block(mfmas(cur), reads(1 - cur), slot_adv(P) + P.addr_update() + list(fill_extra))
        stats(cur)
    a(f"s_mov_b32 s{S_CNT}, {npair}")
    lp = a.new("cloop")
    if ALIGN: a.raw(f".p2align {ALIGN}")
    a.label(lp)
    step(0, [f"s_sub_u32 s{S_CNT}, s{S_CNT}, 1"])
    step(1)
    a(f"s_cmp_lg_u32 s{S_CNT}, 0")
    a(f"s_cbranch_scc1 {lp}")
    last = 0
    if (S - 1) % 2 == 1:
        step(0); last = 1
    a("s_waitcnt lgkmcnt(0)")
    block(mfmas(last), [])
    stats(last)
    cons_tail(a, P, first)

def ptr_wait(a):
    a("s_waitcnt lgkmcnt(0)")
    if PROFDBG: a(f"s_mov_b32 s{S_P0}, s98")
    srd(a, SRD_FLAG, ptr(KA_WS), WS_FLAG, 0x20000)

def cons_lane(a):
    a("v_and_b32 v3, 15, v2")
    a("v_lshrrev_b32 v4, 4, v2")

def x_addr_const(a, dst, rowbase_sgpr, rowbase_const=0):
    a("v_lshrrev_b32 v5, 1, v3")
    a("v_xor_b32 v5, v4, v5")
    a("v_lshlrev_b32 v5, 4, v5")
    a(f"v_lshl_add_u32 v{dst}, v3, 7, v5")
    if rowbase_sgpr is not None:
        a(f"s_lshl_b32 s{S_T0}, s{rowbase_sgpr}, 7")
        a(f"v_add_u32 v{dst}, s{S_T0}, v{dst}")
    if rowbase_const:
        a(f"v_add_u32 v{dst}, {rowbase_const*128}, v{dst}")

def w_addr_const(a, dst):
    a("v_lshrrev_b32 v5, 2, v3        ; r")
    a("v_lshl_add_u32 v6, v4, 3, v5   ; 8g+r")
    a("v_lshlrev_b32 v6, 7, v6")
    a("v_lshrrev_b32 v5, 1, v5        ; r>>1")
    a("v_and_b32 v7, 1, v4")
    a("v_lshl_or_b32 v5, v7, 1, v5    ; h")
    a("v_lshl_add_u32 v6, v5, 5, v6")
    a("v_and_b32 v5, 3, v3")
    a(f"v_lshl_add_u32 v{dst}, v5, 3, v6")

def t_write_addr(a, dst, base_const):
    a("v_lshrrev_b32 v5, 1, v4")
    a("v_and_b32 v6, 7, v3")
    a("v_xor_b32 v5, v5, v6")
    a("v_lshlrev_b32 v5, 4, v5")
    a("v_and_b32 v6, 1, v4")
    a("v_lshl_add_u32 v5, v6, 3, v5")
    a(f"v_lshl_add_u32 v{dst}, v3, 7, v5")
    a(f"v_add_u32 v{dst}, {base_const}, v{dst}")

def pad_init(a, P, row0, nzero_rows, ones_row):
    a("v_mov_b32 v12, 0"); a("v_mov_b32 v13, 0"); a("v_mov_b32 v14, 0"); a("v_mov_b32 v15, 0")
    a(f"v_mov_b32 v10, {hex(ONES)}")
    a("v_lshlrev_b32 v11, 4, v2        ; lane*16")
    for rep in range((P.NS + 3)//4):
        sk = a.new("pad")
        a(f"s_add_u32 s{S_T0}, s{S_W}, {4*rep}")
        a(f"s_cmp_ge_u32 s{S_T0}, {P.NS}")
        a(f"s_cbranch_scc1 {sk}")
        a(f"s_mul_i32 s{S_T0}, s{S_T0}, {P.STAGE}")
        nb = nzero_rows*128; off = 0
        while off < nb:
            lanes = min(64, (nb - off)//16)
            a(f"v_add_u32 v16, s{S_T0}, v11")
            if lanes < 64: set_exec(a, (1 << lanes) - 1)
            a(f"ds_write_b128 v16, v[12:15] offset:{row0*128 + off}")
            if lanes < 64: a("s_mov_b64 exec, -1")
            off += lanes*16
        if ones_row is not None:
            a(f"v_lshlrev_b32 v16, 2, v2")
            a(f"v_add_u32 v16, s{S_T0}, v16")
            set_exec(a, 0xffffffff)
            a(f"ds_write_b32 v16, v10 offset:{ones_row*128}")
            a("s_mov_b64 exec, -1")
        a.label(sk)

def store_pass(a, P, ny=0):
    a("v_lshrrev_b32 v3, 3, v2")
    a("v_and_b32 v4, 7, v2")
    a("v_xor_b32 v5, v4, v3")
    a("v_lshlrev_b32 v5, 4, v5")
    a("v_lshl_add_u32 v5, v3, 7, v5")
    a(f"s_lshl_b32 s{S_T0}, s{S_WAVE}, 10")
    a(f"v_add_u32 v5, s{S_T0}, v5")
    a(f"v_add_u32 v5, {P.TBASE}, v5")
    a(f"s_lshl_b32 s{S_T0}, s{S_WAVE}, 3")
    a(f"s_add_u32 s{S_T0}, s{S_T0}, s{S_R0}")
    a(f"v_add_u32 v6, s{S_T0}, v3")
    a(f"s_mov_b32 s{S_T1}, {P.ldo}")
    a(f"v_mul_lo_u32 v7, v6, s{S_T1}")
    a(f"s_lshl_b32 s{S_T0}, s{S_C0}, 1")
    a(f"v_lshl_add_u32 v7, v4, 4, v7")
    a(f"v_add_u32 v7, s{S_T0}, v7")
    a("v_mov_b32 v8, 0x80000000")
    P.ny = ny
    P.store_body(a)
    P.set_fidx(a)

def store_addr(a, k, dst, P, coloff=0):
    a(f"v_add_u32 v9, {64*k}, v6")
    a(f"v_cmp_gt_u32 vcc, s{S_REND}, v9")
    a(f"v_add_u32 v{dst}, {64*k*P.ldo + coloff}, v7")
    a("s_nop 0")
    a(f"v_cndmask_b32 v{dst}, v8, v{dst}, vcc")

class P1(Phase):
    key = 'p1'; kind = "p1"; NT = 255
    MV = 121; NC = 128; lda = 1280; ldb = 3840; ldo = 3840
    ABYTES = 16384; STAGE = 32768; NS = 4; S = 10
    NXMAX = 4; RPM = 1
    has_stage_work = False; has_e1 = True
    mfma_stats = True
    order2 = True
    GRAM = 96; SUMA = 112; VONES = 24
    modeS = True; NACC = 64
    def fragW(self, buf, kk, wi): return ('a', 64*buf + 16*kk + 4*wi)
    def fragX(self, buf, kk, xi):
        if buf == 0: return ('a', 32 + 16*kk + 4*xi)
        return ('v', 128 + 16*kk + 4*xi)
    scA = ""
    panel_coloff = [0, 128]; panel_srd = [SRD_B0, SRD_B0]
    LDS_ST = 131072; LDS_CS = 131072 + 2048
    TBASE = 2*32768
    rot = (5, 10, 2)
    Ains = [None, None, None, 'mask']
    Bins = [(0, 0), (0, 4), (1, 0), (1, 4)]
    def __init__(self):
        self.vXc, self.vWc = 8, 9
        self.vXa, self.vXb = 10, 11
        self.vW = [12, 13, 14, 15]
        self.xlist = [(self.vXa, self.vXb, 2048*x) for x in range(4)]
        self.wlist = [(self.vW[f], self.ABYTES) for f in range(4)]
        self.ACC = 32
        self.mf = [(x, f, self.ACC + 4*(4*x + f)) for x in range(4) for f in range(4)]
    def rot_start(self, a):
        if P1ROT == "lock":
            a(f"s_mov_b32 s{S_K}, 0"); return
        if P1ROT == "two":
            a(f"s_add_u32 s{S_K}, s{S_RT}, s{S_CT}")
            a(f"s_and_b32 s{S_K}, s{S_K}, 1")
            a(f"s_mul_i32 s{S_K}, s{S_K}, 5"); return
        if P1ROT == "ten":
            a(f"s_mul_i32 s{S_K}, s{S_RT}, 3")
            a(f"s_add_u32 s{S_K}, s{S_K}, s{S_CT}")
            divc(a, S_T0, S_K, 10)
            a(f"s_mul_i32 s{S_T0}, s{S_T0}, 10")
            a(f"s_sub_u32 s{S_K}, s{S_K}, s{S_T0}"); return
        a(f"s_add_u32 s{S_K}, s{S_RT}, s{S_CT}")
        divc(a, S_T0, S_K, 5)
        a(f"s_mul_i32 s{S_T0}, s{S_T0}, 5")
        a(f"s_sub_u32 s{S_K}, s{S_K}, s{S_T0}")
        a(f"s_lshl_b32 s{S_K}, s{S_K}, 1")
    def l2_prep(self, a): l2_setup(a, "rm", 250, 64, KA_WO, D*D*2, 1280, D)
    def mid_prefetch(self, a, s):
        if s == 8: return l2_issue(a, KA_WO, 1280, D)
    def mask_setup(self, a):
        a(f"s_cmp_eq_u32 s{S_W}, 3")
        a(f"s_cselect_b32 s{S_MASK}, 0xff, -1")
        a(f"s_cselect_b32 s{S_MASK+1}, 0, -1")
    def build_srds(self, a, role):
        if role == 'l':
            srd(a, SRD_A, ptr(KA_X), 0, S_TOK*D*2)
            srd(a, SRD_B0, ptr(KA_WQKV), 0, D*NQKV*2)
        srd(a, SRD_OUT, ptr(KA_WS), WS_QKV, S_TOK*NQKV*2)
    def set_fidx(self, a):
        a(f"s_mul_i32 s{S_FIDX}, s{S_RT}, 15")
        a(f"s_add_u32 s{S_FIDX}, s{S_FIDX}, s{S_CT}")
        a(f"s_lshl_b32 s{S_FIDX}, s{S_FIDX}, 7")
    def loader_post_first(self, a):
        pad_init(a, self, 121, 6, 127)
        return 0
    def stats_mfmas(self, xregs):
        m = []
        for x in range(4):
            xa = xregs[x]
            g = self.GRAM + 4*x; sm = self.SUMA + 4*x
            m.append(f"v_mfma_f32_16x16x32_bf16 v[{g}:{g+3}], {xa}, {xa}, v[{g}:{g+3}]")
            m.append(f"v_mfma_f32_16x16x32_bf16 v[{sm}:{sm+3}], v[{self.VONES}:{self.VONES+3}], {xa}, v[{sm}:{sm+3}]")
        return m
    def consumer_setup(self, a):
        cons_lane(a)
        a(f"s_lshr_b32 s{S_I}, s{S_WAVE}, 1")
        a(f"s_and_b32 s{S_J}, s{S_WAVE}, 1")
        a(f"s_lshl_b32 s{S_T1}, s{S_I}, 6")
        x_addr_const(a, self.vXc, S_T1)
        w_addr_const(a, self.vWc)
        a(f"s_lshl_b32 s{S_T0}, s{S_J}, 13")
        a(f"v_add_u32 v{self.vWc}, s{S_T0}, v{self.vWc}")
        for r in range(4): a(f"v_mov_b32 v{self.VONES+r}, {hex(ONES)}")
        for r in range(32): a(f"v_mov_b32 v{self.GRAM+r}, 0")
        a(f"s_lshl_b32 s{S_T0}, s{S_J}, 8       ; j*64*4")
        a(f"v_lshlrev_b32 v16, 4, v4            ; g*16 bytes")
        a(f"v_add_u32 v16, s{S_T0}, v16")
        a(f"v_add_u32 v16, {self.LDS_CS}, v16")
        t_write_addr(a, 17, self.TBASE)
        a(f"s_lshl_b32 s{S_T0}, s{S_WAVE}, 13")
        a(f"v_add_u32 v17, s{S_T0}, v17")
        for f in range(1, 4): a(f"v_xor_b32 v{17+f}, {32*f}, v17")
        a(f"s_lshl_b32 s{S_T0}, s{S_I}, 9       ; i*64*8")
        a(f"s_lshl_b32 s{S_T1}, s{S_J}, 10      ; j*128*8")
        a(f"s_add_u32 s{S_T1}, s{S_T1}, s{S_T0}")
        a(f"v_lshlrev_b32 v7, 3, v3")
        a(f"v_add_u32 v21, s{S_T1}, v7")
        a(f"v_add_u32 v21, {self.LDS_ST}, v21")
        a(f"v_add_u32 v22, s{S_T0}, v7")
        a(f"v_add_u32 v22, {self.LDS_ST}, v22")
        a("v_lshrrev_b32 v5, 3, v2             ; r8")
        a("v_and_b32 v6, 7, v2                 ; c")
        a("v_xor_b32 v7, v6, v5")
        a("v_lshlrev_b32 v7, 4, v7")
        a("v_lshl_add_u32 v23, v5, 7, v7")
        a(f"s_lshl_b32 s{S_T0}, s{S_WAVE}, 13")
        a(f"s_add_u32 s{S_T0}, s{S_T0}, {self.TBASE}")
        a(f"v_add_u32 v23, s{S_T0}, v23")
        a(f"s_lshl_b32 s{S_T0}, s{S_I}, 6")
        a(f"s_add_u32 s{S_T0}, s{S_T0}, s{S_R0}")
        a(f"v_add_u32 v28, s{S_T0}, v5")
        a(f"s_mov_b32 s{S_T1}, 3840")
        a(f"v_mul_lo_u32 v28, v28, s{S_T1}")
        a("v_lshl_add_u32 v28, v6, 4, v28")
        a(f"s_lshl_b32 s{S_T0}, s{S_J}, 6")
        a(f"s_add_u32 s{S_T0}, s{S_T0}, s{S_C0}")
        a(f"s_lshl_b32 s{S_T0}, s{S_T0}, 1")
        a(f"v_add_u32 v28, s{S_T0}, v28")
    def addr_update(self):
        r = [f"v_add_u32 v{self.vXa}, s{S_SLOT}, v{self.vXc}",
             f"v_add_u32 v{self.vW[0]}, s{S_SLOT}, v{self.vWc}",
             f"v_xor_b32 v{self.vXb}, 64, v{self.vXa}"]
        for f in range(1, len(self.vW)):
            r.append(f"v_xor_b32 v{self.vW[f]}, {32*f}, v{self.vW[0]}")
        return r
    stream_epi = True
    def epilogue(self, a):
        nocs = a.new("nocs")
        a(f"s_cmp_eq_u32 s{S_I}, 1")
        a(f"s_cbranch_scc0 {nocs}")
        set_exec(a, 0x8000800080008000)
        for f in range(4):
            acc = self.ACC + 4*(4*3 + f)
            a(f"ds_write_b128 v16, v[{acc}:{acc+3}] offset:{64*f}")
        a("s_mov_b64 exec, -1")
        a.label(nocs)
        for i_, m_ in enumerate((0x22222222, 0x44444444, 0x88888888)):
            a(f"s_mov_b32 s{80+2*i_}, {hex(m_)}"); a(f"s_mov_b32 s{81+2*i_}, {hex(m_)}")
        for x in range(4):
            g = self.GRAM + 4*x
            a(f"v_cndmask_b32 v{g+1}, v{g}, v{g+1}, s[80:81]")
            a(f"v_cndmask_b32 v{g+1}, v{g+1}, v{g+2}, s[82:83]")
            a(f"v_cndmask_b32 v{g+1}, v{g+1}, v{g+3}, s[84:85]")
            a(f"v_mov_b32 v{g}, v{self.SUMA+4*x}           ; sum")
        set_exec(a, 0xF | (0xF << 20) | (0xF << 40) | (0xF << 60))
        for x in range(4):
            g = self.GRAM + 4*x
            a(f"ds_write_b64 v21, v[{g}:{g+1}] offset:{128*x}")
        a("s_mov_b64 exec, -1")
        a("s_waitcnt lgkmcnt(0)")
        a("s_barrier      ; E1")
        CS = 128; ST = 144
        for x in range(4):
            a(f"ds_read_b64 v[{ST+2*x}:{ST+2*x+1}], v22 offset:{128*x}")
            a(f"ds_read_b64 v[{96+2*x}:{97+2*x}], v22 offset:{1024 + 128*x}")
        for f in range(4):
            a(f"ds_read_b128 v[{CS+4*f}:{CS+4*f+3}], v16 offset:{64*f}")
        a("s_waitcnt lgkmcnt(4)")
        for x in range(4):
            st = ST + 2*x
            a(f"v_pk_add_f32 v[{st}:{st+1}], v[{st}:{st+1}], v[{96+2*x}:{97+2*x}]")
            a(f"v_mul_f32 v{st}, {hex(f2u(1.0/D))}, v{st}          ; mean")
            a(f"v_mul_f32 v{st+1}, {hex(f2u(1.0/D))}, v{st+1}")
            a(f"v_fma_f32 v{st+1}, -v{st}, v{st}, v{st+1}      ; var")
            a(f"v_add_f32 v{st+1}, {hex(f2u(1e-5))}, v{st+1}")
            a(f"v_rsq_f32 v{st+1}, v{st+1}")
        a("s_waitcnt lgkmcnt(0)")
        RB = [96, 104]
        def stores(x):
            rb = RB[x & 1]
            for u in range(2):
                a(f"v_add_u32 v{29+u}, {(16*x + 8*u)*3840}, v28")
            for u in range(2):
                if x == 3 and u == 1:
                    a(f"s_cmp_eq_u32 s{S_I}, 1")
                    a("s_cselect_b32 exec_lo, 0xff, -1")
                    a("s_cselect_b32 exec_hi, 0, -1")
                a(f"buffer_store_dwordx4 v[{rb+4*u}:{rb+4*u+3}], v{29+u}, s[{SRD_OUT}:{SRD_OUT+3}], 0 offen{SC1}")
            if x == 3: a("s_mov_b64 exec, -1")
        for x in range(4):
            st = ST + 2*x
            for f in range(4):
                acc = self.ACC + 4*(4*x + f)
                for hh in (0, 2):
                    a(f"v_pk_fma_f32 v[{acc+hh}:{acc+hh+1}], v[{CS+4*f+hh}:{CS+4*f+hh+1}], v[{st}:{st+1}], v[{acc+hh}:{acc+hh+1}] op_sel_hi:[1,0,1] neg_lo:[0,1,0] neg_hi:[0,1,0]")
                for hh in (0, 2):
                    a(f"v_pk_mul_f32 v[{acc+hh}:{acc+hh+1}], v[{acc+hh}:{acc+hh+1}], v[{st}:{st+1}] op_sel:[0,1] op_sel_hi:[1,1]")
                a(f"v_cvt_pk_bf16_f32 v{acc}, v{acc}, v{acc+1}")
                a(f"v_cvt_pk_bf16_f32 v{acc+1}, v{acc+2}, v{acc+3}")
                a(f"ds_write_b64 v{17+f}, v[{acc}:{acc+1}] offset:{2048*x}")
            rb = RB[x & 1]
            if x >= 1:
                a("s_waitcnt lgkmcnt(4)")
                stores(x - 1)
            for u in range(2):
                a(f"ds_read_b128 v[{rb+4*u}:{rb+4*u+3}], v23 offset:{2048*x + 1024*u}")
        a("s_waitcnt lgkmcnt(0)")
        stores(3)

class P24(Phase):
    kind = "rm"; NT = 250
    MV = 82; NC = 64; ldb = 1280; ldo = 1280
    ABYTES = 12288; STAGE = 20480; NS = 7
    NXMAX = 3; RPM = 2
    modeS = True; NACC = 24
    def fragW(self, buf, kk, wi): return ('a', 40*buf + 8*kk + 4*wi)
    def fragX(self, buf, kk, xi): return ('a', 40*buf + 16 + 12*kk + 4*xi)
    scA = SC1
    panel_coloff = [0]; panel_srd = [SRD_B0]
    TBASE = 0
    Ains = [None, None, 'skip']
    Bins = [(0, 0), (0, 4)]
    prefetchB = 7
    def __init__(self, which):
        self.which = which
        if which == 2:
            self.key = 'p2'; self.lda = 1280; self.S = 10; self.rot = (4, 13, 2)
        else:
            self.key = 'p4'; self.lda = 3456; self.S = 27; self.rot = (11, 36, 2)
        assert (self.S - 1) % self.NS != 0
        self.vXc, self.vWc = 8, 9
        self.vXa, self.vXb = 10, 11
        self.vW = [12, 13]
        self.xlist = [(self.vXa, self.vXb, 2048*x) for x in range(3)]
        self.wlist = [(self.vW[f], self.ABYTES) for f in range(2)]
        self.ACC = 32
        self.mf = [(x, f, self.ACC + 4*(2*x + f)) for x in range(3) for f in range(2)]
    def l2_prep(self, a):
        if self.which == 2: l2_setup(a, "p3", 243, 64, KA_WU, D*F*2, 3456, D)
    def mid_prefetch(self, a, s):
        if self.which == 2 and s == 8: return l2_issue(a, KA_WU, 3456, D)
    def mask_setup(self, a):
        a(f"s_cmp_lt_u32 s{S_W}, 2")
        a(f"s_cselect_b32 s{S_MASK}, -1, 0xffff")
        a(f"s_cselect_b32 s{S_MASK+1}, -1, 0")
        a(f"s_cmp_eq_u32 s{S_W}, 3")
        a(f"s_cselect_b32 s{S_MASK}, 0, s{S_MASK}")
    def build_srds(self, a, role):
        if self.which == 2:
            if role == 'l':
                srd(a, SRD_A, ptr(KA_WS), WS_O, S_TOK*D*2)
                srd(a, SRD_B0, ptr(KA_WO), 0, D*D*2)
            srd(a, SRD_OUT, ptr(KA_WS), WS_H, S_TOK*D*2)
            srd(a, SRD_AUX, ptr(KA_X), 0, S_TOK*D*2)
            srd(a, SRD_ST, ptr(KA_WS), WS_ST, 10*S_TOK*8)
        else:
            if role == 'l':
                srd(a, SRD_A, ptr(KA_WS), WS_HH, S_TOK*F*2)
                srd(a, SRD_B0, ptr(KA_WD), 0, F*D*2)
            srd(a, SRD_OUT, ptr(KA_OUT), 0, S_TOK*D*2)
            srd(a, SRD_AUX, ptr(KA_WS), WS_H, S_TOK*D*2)
    def dep_range(self, a):
        if self.which == 2:
            a(f"s_lshr_b32 s{S_T0}, s{S_R0}, 4")
            a(f"s_sub_u32 s{S_T1}, s{S_REND}, 1")
            a(f"s_lshr_b32 s{S_T1}, s{S_T1}, 4")
        else:
            sdiv(a, S_T0, S_R0, 228, 2100)
            a(f"s_sub_u32 s{S_T1}, s{S_REND}, 1")
            sdiv(a, S_T1, S_T1, 228, 2100)
    def deps_first(self, a):
        first_ks(a, self)
        if self.which == 2:
            for r in (S_K, S_KB):
                a(f"s_cmp_ge_u32 s{r}, 5")
                a(f"s_cselect_b32 s{r}, 1, 0")
        self.dep_range(a)
        poll_first(a, S_T0, S_T1, 2 if self.which == 2 else 27, S_K, S_KB, 0x8000 if self.which == 2 else 0x18000)
    def deps(self, a):
        W = 2 if self.which == 2 else 27
        self.dep_range(a)
        a(f"s_mul_i32 s{S_T0}, s{S_T0}, {W}")
        a(f"s_add_u32 s{S_T1}, s{S_T1}, 1")
        a(f"s_mul_i32 s{S_T1}, s{S_T1}, {W}")
        poll(a, S_T0, S_T1, 0x8000 if self.which == 2 else 0x18000)
    def set_fidx(self, a):
        if self.which == 2:
            a(f"s_mul_i32 s{S_FIDX}, s{S_RT}, 10")
            a(f"s_add_u32 s{S_FIDX}, s{S_FIDX}, s{S_CT}")
            a(f"s_lshl_b32 s{S_FIDX}, s{S_FIDX}, 7")
            a(f"s_add_u32 s{S_FIDX}, s{S_FIDX}, 0x10000")
        else:
            a(f"s_mov_b32 s{S_FIDX}, -1")
    def loader_post_first(self, a):
        pad_init(a, self, 82, 14, None)
        return 0
    def consumer_setup(self, a):
        cons_lane(a)
        a(f"s_lshr_b32 s{S_I}, s{S_WAVE}, 1")
        a(f"s_and_b32 s{S_J}, s{S_WAVE}, 1")
        a(f"s_mul_i32 s{S_T1}, s{S_I}, 48")
        x_addr_const(a, self.vXc, S_T1)
        w_addr_const(a, self.vWc)
        a(f"s_lshl_b32 s{S_T0}, s{S_J}, 6      ; f0 = 2j -> xor 64j")
        a(f"v_xor_b32 v{self.vWc}, s{S_T0}, v{self.vWc}")
        t_write_addr(a, 17, self.TBASE)
        a(f"s_mul_i32 s{S_T0}, s{S_I}, {48*128}")
        a(f"v_add_u32 v17, s{S_T0}, v17")
        a(f"s_lshl_b32 s{S_T0}, s{S_J}, 6")
        a(f"v_xor_b32 v17, s{S_T0}, v17        ; f0 = 2j")
        a(f"v_xor_b32 v18, 32, v17")
    def addr_update(self):
        return P1.addr_update(self)
    def epilogue(self, a):
        for x in range(3):
            for f in range(2):
                acc = self.ACC + 4*(2*x + f)
                a(f"v_cvt_pk_bf16_f32 v{acc}, v{acc}, v{acc+1}")
                a(f"v_cvt_pk_bf16_f32 v{acc+1}, v{acc+2}, v{acc+3}")
                a(f"ds_write_b64 v{17+f}, v[{acc}:{acc+1}] offset:{2048*x}")
    RES = 100
    early_pre = True
    def early_setup(self, a):
        a("v_lshrrev_b32 v112, 3, v2")
        a("v_and_b32 v113, 7, v2")
        a("v_xor_b32 v108, v113, v112")
        a("v_lshlrev_b32 v108, 4, v108")
        a("v_lshl_add_u32 v108, v112, 7, v108")
        a(f"s_lshl_b32 s{S_T0}, s{S_WAVE}, 10")
        a(f"s_add_u32 s{S_T0}, s{S_T0}, {self.TBASE}")
        a(f"v_add_u32 v108, s{S_T0}, v108")
        a(f"s_lshl_b32 s{S_T0}, s{S_WAVE}, 3")
        a(f"s_add_u32 s{S_T0}, s{S_T0}, s{S_R0}")
        a(f"v_add_u32 v111, s{S_T0}, v112")
        a("v_mul_u32_u24 v109, 1280, v111")
        a(f"s_lshl_b32 s{S_T0}, s{S_C0}, 1")
        a("v_lshl_add_u32 v109, v113, 4, v109")
        a(f"v_add_u32 v109, s{S_T0}, v109")
        a(f"v_add_u32 v110, {64*1280}, v109")
        a("v_mov_b32 v114, 0x80000000")
        a(f"v_cmp_gt_u32 vcc, s{S_REND}, v111")
        a(f"v_add_u32 v115, 64, v111")
        a("s_nop 0")
        a("v_cndmask_b32 v109, v114, v109, vcc")
        a(f"v_cmp_gt_u32 vcc, s{S_REND}, v115")
        a("s_nop 1")
        a("v_cndmask_b32 v110, v114, v110, vcc")
        sc = SC1 if self.which == 4 else ""
        a(f"buffer_load_dwordx4 v[{self.RES}:{self.RES+3}], v109, s[{SRD_AUX}:{SRD_AUX+3}], 0 offen{sc}")
        a(f"buffer_load_dwordx4 v[{self.RES+4}:{self.RES+7}], v110, s[{SRD_AUX}:{SRD_AUX+3}], 0 offen{sc}")
        return 2
    def store_fast(self, a):
        sdone = a.new("sdone")
        sc = SC1 if self.which == 2 else ""
        for k in range(2):
            a(f"ds_read_b128 v[{16+4*k}:{19+4*k}], v108 offset:{k*8192}")
        if self.which == 2:
            a(f"v_mov_b32 v26, {hex(ONES)}")
        a(f"s_waitcnt vmcnt(0) lgkmcnt(0)")
        for k in range(2):
            if k == 1:
                a(f"s_cmp_ge_u32 s{S_WAVE}, 3")
                a(f"s_cbranch_scc1 {sdone}")
            T = 16 + 4*k; R = self.RES + 4*k
            for d in range(4):
                a(f"v_lshlrev_b32 v28, 16, v{T+d}")
                a(f"v_and_b32 v29, 0xffff0000, v{T+d}")
                a(f"v_lshlrev_b32 v30, 16, v{R+d}")
                a(f"v_and_b32 v31, 0xffff0000, v{R+d}")
                a(f"v_pk_add_f32 v[28:29], v[28:29], v[30:31]")
                a(f"v_cvt_pk_bf16_f32 v{T+d}, v28, v29")
            a(f"buffer_store_dwordx4 v[{T}:{T+3}], v{109+k}, s[{SRD_OUT}:{SRD_OUT+3}], 0 offen{sc}")
            if self.which == 2:
                a("v_mov_b32 v24, 0"); a("v_mov_b32 v25, 0")
                a("s_nop 0")
                for d in range(4):
                    a(f"v_dot2_f32_bf16 v24, v{T+d}, v26, v24")
                    a(f"v_dot2_f32_bf16 v25, v{T+d}, v{T+d}, v25")
                a("s_nop 2")
                for dpp in ("quad_perm:[1,0,3,2]", "quad_perm:[2,3,0,1]", "row_half_mirror"):
                    a(f"v_add_f32_dpp v24, v24, v24 {dpp} row_mask:0xf bank_mask:0xf")
                    a(f"v_add_f32_dpp v25, v25, v25 {dpp} row_mask:0xf bank_mask:0xf")
                    a("s_nop 0")
                a(f"v_add_u32 v9, {64*k}, v111")
                a(f"v_cmp_gt_u32 vcc, s{S_REND}, v9")
                a(f"s_mul_i32 s{S_T0}, s{S_CT}, {S_TOK}")
                a(f"v_add_u32 v9, s{S_T0}, v9")
                a("v_lshlrev_b32 v9, 3, v9")
                a("v_cndmask_b32 v9, v114, v9, vcc")
                set_exec(a, 0x0101010101010101)
                a(f"buffer_store_dwordx2 v[24:25], v9, s[{SRD_ST}:{SRD_ST+3}], 0 offen{SC1}")
                a("s_mov_b64 exec, -1")
        a.label(sdone)

class P3(Phase):
    key = 'p3'; kind = "p3"; NT = 243
    MV = 228; NC = 64; lda = 1280; ldb = 3456; ldo = 3456
    ABYTES = 30720; STAGE = 47104; NS = 3; S = 10
    NXMAX = 8; RPM = 1
    has_e1 = True
    scA = SC1
    panel_coloff = [0, 0]; panel_srd = [SRD_B0, SRD_B1]
    LDS_ST = 47104*3; LDS_CS = 47104*3 + 1920
    TBASE = 47104
    rot = (4, 13, 2)
    Ains = [None]*7 + ['skip']
    Bins = [(0, 0), (0, 4), (1, 0), (1, 4)]
    prefetchB = 3
    def __init__(self):
        self.vXc, self.vXsc, self.vWc = 8, 9, 10
        self.vXa, self.vXb, self.vXsa, self.vXsb = 11, 12, 13, 14
        self.vW = [15, 16]
        self.xlist = [(self.vXa, self.vXb, 2048*x) for x in range(7)] + [(self.vXsa, self.vXsb, 0)]
        G, U = self.ABYTES, self.ABYTES + 8192
        self.wlist = [(self.vW[0], G), (self.vW[0], U), (self.vW[1], G), (self.vW[1], U)]
        self.ACC = 32
        self.mf = []
        acc = self.ACC
        self.accmap = {}
        for x in range(8):
            for wi in range(4):
                if x == 7 and wi >= 2: continue
                self.mf.append((x, wi, acc)); self.accmap[(x, wi)] = acc; acc += 4
        assert acc == 32 + 120
    @property
    def unroll(self): return l2_on(KA_WD)
    def l2_prep(self, a): l2_setup(a, "rm", 250, 64, KA_WD, F*D*2, 1280, F)
    def mid_prefetch(self, a, s):
        if s == 3: return l2_issue(a, KA_WD, 1280, F, 0, 9)
        if s == 6: return l2_issue(a, KA_WD, 1280, F, 9, None)
        if s == 9: return self.stats_loads(a)
    def mask_setup(self, a):
        a(f"s_cmp_eq_u32 s{S_W}, 0")
        a(f"s_cselect_b32 s{S_MASK}, -1, 0")
        a(f"s_mov_b32 s{S_MASK+1}, 0")
    def build_srds(self, a, role):
        if role == 'l':
            srd(a, SRD_A, ptr(KA_WS), WS_H, S_TOK*D*2)
            srd(a, SRD_B0, ptr(KA_WG), 0, D*F*2)
            srd(a, SRD_B1, ptr(KA_WU), 0, D*F*2)
            srd(a, SRD_ST, ptr(KA_WS), WS_ST, 10*S_TOK*8)
        srd(a, SRD_OUT, ptr(KA_WS), WS_HH, S_TOK*F*2)
    def dep_range(self, a):
        sdiv(a, S_T0, S_R0, 82, 2100)
        a(f"s_sub_u32 s{S_T1}, s{S_REND}, 1")
        sdiv(a, S_T1, S_T1, 82, 2100)
    def deps_first(self, a):
        first_ks(a, self)
        self.dep_range(a)
        poll_first(a, S_T0, S_T1, 10, S_K, S_KB, 0x10000)
    def deps(self, a):
        self.dep_range(a)
        a(f"s_mul_i32 s{S_T0}, s{S_T0}, 10")
        a(f"s_add_u32 s{S_T1}, s{S_T1}, 1")
        a(f"s_mul_i32 s{S_T1}, s{S_T1}, 10")
        poll(a, S_T0, S_T1, 0x10000)
    def set_fidx(self, a):
        a(f"s_mul_i32 s{S_FIDX}, s{S_RT}, 27")
        a(f"s_add_u32 s{S_FIDX}, s{S_FIDX}, s{S_CT}")
        a(f"s_lshl_b32 s{S_FIDX}, s{S_FIDX}, 7")
        a(f"s_add_u32 s{S_FIDX}, s{S_FIDX}, 0x18000")
    def loader_post_first(self, a):
        pad_init(a, self, 228, 11, 239)
        return 0
    def stats_loads(self, a):
        a(f"s_lshl_b32 s{S_T0}, s{S_W}, 6")
        a(f"v_add_u32 v12, s{S_T0}, v2")
        a(f"v_add_u32 v13, s{S_R0}, v12")
        a("v_lshlrev_b32 v13, 3, v13")
        a(f"v_cmp_gt_u32 vcc, {self.MV}, v12")
        a("v_mov_b32 v14, 0x80000000")
        a("s_nop 0")
        a("v_cndmask_b32 v13, v14, v13, vcc")
        for c in range(10):
            a(f"s_mov_b32 s{S_T0}, {c*S_TOK*8}")
            a(f"buffer_load_dwordx2 v[{64+2*c}:{65+2*c}], v13, s[{SRD_ST}:{SRD_ST+3}], s{S_T0} offen{SC1}")
        return 10
    def loader_final(self, a):
        a("s_waitcnt vmcnt(0)")
        for c in range(1, 10):
            a(f"v_pk_add_f32 v[64:65], v[64:65], v[{64+2*c}:{65+2*c}]")
        a(f"v_mul_f32 v64, {hex(f2u(1.0/D))}, v64")
        a(f"v_mul_f32 v65, {hex(f2u(1.0/D))}, v65")
        a("v_fma_f32 v65, -v64, v64, v65")
        a(f"v_add_f32 v65, {hex(f2u(1e-5))}, v65")
        a("v_rsq_f32 v65, v65")
        a("v_lshlrev_b32 v12, 3, v12")
        a(f"v_add_u32 v12, {self.LDS_ST}, v12")
        a(f"s_cmp_eq_u32 s{S_W}, 3")
        a(f"s_cselect_b32 exec_hi, 0xffff, -1")
        a("ds_write_b64 v12, v[64:65]")
        a("s_mov_b64 exec, -1")
    def consumer_setup(self, a):
        cons_lane(a)
        a(f"s_lshr_b32 s{S_I}, s{S_WAVE}, 1")
        a(f"s_and_b32 s{S_J}, s{S_WAVE}, 1")
        a(f"s_lshl_b32 s{S_T1}, s{S_I}, 7")
        x_addr_const(a, self.vXc, S_T1)
        x_addr_const(a, self.vXsc, None, 112)
        w_addr_const(a, self.vWc)
        a(f"s_lshl_b32 s{S_T0}, s{S_J}, 1")
        a(f"s_add_u32 s{S_T0}, s{S_T0}, s{S_I}")
        a(f"s_lshl_b32 s{S_T0}, s{S_T0}, 5")
        a(f"v_xor_b32 v{self.vWc}, s{S_T0}, v{self.vWc}")
        a(f"s_lshl_b32 s{S_T0}, s{S_J}, 1")
        a(f"s_add_u32 s{S_T2}, s{S_T0}, s{S_I}     ; f0")
        a(f"s_lshl_b32 s{S_T0}, s{S_T2}, 6")
        a(f"v_lshlrev_b32 v24, 4, v4")
        a(f"v_add_u32 v24, s{S_T0}, v24")
        a(f"v_add_u32 v24, {self.LDS_CS}, v24")
        a(f"v_xor_b32 v25, 64, v24")
        t_write_addr(a, 26, self.TBASE)
        a(f"s_lshl_b32 s{S_T0}, s{S_T2}, 5")
        a(f"v_xor_b32 v26, s{S_T0}, v26")
        a(f"v_add_u32 v28, {112*128}, v26")
        a(f"s_lshl_b32 s{S_T0}, s{S_I}, 14")
        a(f"v_add_u32 v26, s{S_T0}, v26")
        a(f"v_xor_b32 v27, 32, v26")
        a(f"s_lshl_b32 s{S_T0}, s{S_I}, 10         ; 128*i*8")
        a(f"v_lshlrev_b32 v29, 3, v3")
        a(f"v_add_u32 v30, {self.LDS_ST + 112*8}, v29")
        a(f"v_add_u32 v29, s{S_T0}, v29")
        a(f"v_add_u32 v29, {self.LDS_ST}, v29")
    def addr_update(self):
        return [f"v_add_u32 v{self.vXa}, s{S_SLOT}, v{self.vXc}",
                f"v_add_u32 v{self.vW[0]}, s{S_SLOT}, v{self.vWc}",
                f"v_add_u32 v{self.vXsa}, s{S_SLOT}, v{self.vXsc}",
                f"v_xor_b32 v{self.vXb}, 64, v{self.vXa}",
                f"v_xor_b32 v{self.vW[1]}, 32, v{self.vW[0]}",
                f"v_xor_b32 v{self.vXsb}, 64, v{self.vXsa}"]
    chunk_epi = True
    def epilogue(self, a):
        nocs = a.new("nocs")
        assert self.LDS_CS % 128 == 0
        a(f"s_cmp_eq_u32 s{S_I}, 1")
        a(f"s_cbranch_scc0 {nocs}")
        set_exec(a, 0x8000800080008000)
        for wi, (areg, poff) in enumerate([(24, 0), (24, 256), (25, 0), (25, 256)]):
            acc = self.accmap[(6, wi)]
            a(f"ds_write_b128 v{areg}, v[{acc}:{acc+3}] offset:{poff}")
        a("s_mov_b64 exec, -1")
        a.label(nocs)
        a("s_waitcnt lgkmcnt(0)")
        a("s_barrier      ; E1")
        CSR = [8, 12, 152, 156]
        for wi, (areg, poff) in enumerate([(24, 0), (24, 256), (25, 0), (25, 256)]):
            a(f"ds_read_b128 v[{CSR[wi]}:{CSR[wi]+3}], v{areg} offset:{poff}")
        STR = [16, 18, 20, 22]
        def rdst(x):
            st = STR[x & 3]
            if x < 7: a(f"ds_read_b64 v[{st}:{st+1}], v29 offset:{128*x}")
            else: a(f"ds_read_b64 v[{st}:{st+1}], v30")
        for x in range(4): rdst(x)
        a("s_waitcnt lgkmcnt(0)")
        for x in range(8):
            st = STR[x & 3]
            npair = 1 if x == 7 else 2
            if x == 4:
                a("s_waitcnt lgkmcnt(0)")
                a("s_barrier      ; E2a")
            a(f"v_mul_f32 v{st+1}, v{st+1}, v{st+1}")
            for p in range(npair):
                g = self.accmap[(x, 2*p)]; u = self.accmap[(x, 2*p+1)]
                cg = CSR[2*p]; cu = CSR[2*p+1]
                for hh in (0, 2):
                    a(f"v_pk_fma_f32 v[{g+hh}:{g+hh+1}], v[{cg+hh}:{cg+hh+1}], v[{st}:{st+1}], v[{g+hh}:{g+hh+1}] op_sel_hi:[1,0,1] neg_lo:[0,1,0] neg_hi:[0,1,0]")
                    a(f"v_pk_fma_f32 v[{u+hh}:{u+hh+1}], v[{cu+hh}:{cu+hh+1}], v[{st}:{st+1}], v[{u+hh}:{u+hh+1}] op_sel_hi:[1,0,1] neg_lo:[0,1,0] neg_hi:[0,1,0]")
                for hh in (0, 2):
                    a(f"v_pk_mul_f32 v[{g+hh}:{g+hh+1}], v[{g+hh}:{g+hh+1}], v[{u+hh}:{u+hh+1}]")
                for hh in (0, 2):
                    a(f"v_pk_mul_f32 v[{g+hh}:{g+hh+1}], v[{g+hh}:{g+hh+1}], v[{st}:{st+1}] op_sel:[0,1] op_sel_hi:[1,1]")
                a(f"v_cvt_pk_bf16_f32 v{g}, v{g}, v{g+1}")
                a(f"v_cvt_pk_bf16_f32 v{g+1}, v{g+2}, v{g+3}")
                if x < 7: a(f"ds_write_b64 v{26+p}, v[{g}:{g+1}] offset:{2048*x}")
                else: a(f"ds_write_b64 v28, v[{g}:{g+1}]")
            if x < 4: rdst(x + 4)
        a("s_waitcnt lgkmcnt(0)")
        a("s_barrier      ; E2b")
    def loader_store_setup(self, a):
        a("v_lshrrev_b32 v3, 3, v2")
        a("v_and_b32 v4, 7, v2")
        a("v_xor_b32 v5, v4, v3")
        a("v_lshlrev_b32 v5, 4, v5")
        a("v_lshl_add_u32 v50, v3, 7, v5")
        a(f"s_lshl_b32 s{S_T0}, s{S_W}, 10")
        a(f"s_add_u32 s{S_T0}, s{S_T0}, {self.TBASE}")
        a(f"v_add_u32 v50, s{S_T0}, v50")
        a(f"s_lshl_b32 s{S_T0}, s{S_W}, 3")
        a(f"s_add_u32 s{S_T0}, s{S_T0}, s{S_R0}")
        a(f"v_add_u32 v51, s{S_T0}, v3")
        a(f"s_mov_b32 s{S_T1}, 3456")
        a(f"v_mul_lo_u32 v52, v51, s{S_T1}")
        a(f"s_lshl_b32 s{S_T0}, s{S_C0}, 1")
        a("v_lshl_add_u32 v52, v4, 4, v52")
        a(f"v_add_u32 v52, s{S_T0}, v52")
    def loader_stores(self, a, units):
        for n, u0 in enumerate(units):
            a(f"ds_read_b128 v[{56+4*n}:{59+4*n}], v50 offset:{u0*1024}")
        for n, u0 in enumerate(units):
            a(f"v_add_u32 v{53 if n & 1 else 54}, {u0*8*3456}, v52")
            special = (u0 + 3)*8 + 7 >= self.MV
            if special:
                a(f"v_add_u32 v55, {u0*8}, v51")
                a(f"s_add_u32 s{S_T0}, s{S_R0}, {self.MV}")
                a(f"v_cmp_gt_u32 vcc, s{S_T0}, v55")
                a(f"s_and_saveexec_b64 s[80:81], vcc")
            a(f"s_waitcnt lgkmcnt({len(units) - 1 - n})")
            a(f"buffer_store_dwordx4 v[{56+4*n}:{59+4*n}], v{53 if n & 1 else 54}, s[{SRD_OUT}:{SRD_OUT+3}], 0 offen{SC1}")
            if special: a("s_mov_b64 exec, s[80:81]")
    def loader_epilogue(self, a):
        a("s_barrier      ; E2a")
        self.loader_stores(a, [0, 4, 16, 20])
        a("s_barrier      ; E2b")
        self.loader_stores(a, [8, 12, 24, 28])

ROWB = 656
LQ, LK, LV, LO = 16384, 16384 + 16*ROWB, 16384 + 46*ROWB, 0
WPF = True
P1ROT = 'latin2'
ROTOFF = set()
WPF_OFF = {KA_WD}
def l2_on(kptr): return WPF and kptr not in WPF_OFF
def l2_setup(a, kind, NT, NC, kptr, nbytes, ldb, K):
    if not l2_on(kptr): return
    R3 = ((K + 2)//3 + 7)//8*8
    a(f"s_mov_b32 s4, s{S_RT}"); a(f"s_mov_b32 s5, s{S_CT}")
    tile_map(a, NT, kind)
    divc(a, S_T0, S_RT, 3)
    a(f"s_mul_i32 s{S_T0}, s{S_T0}, 3")
    a(f"s_sub_u32 s{S_T0}, s{S_RT}, s{S_T0}")
    a(f"s_mul_i32 s{S_T0}, s{S_T0}, {R3}")
    a(f"s_lshl_b32 s{S_T1}, s{S_W}, 3")
    a(f"s_add_u32 s{S_T0}, s{S_T0}, s{S_T1}")
    a("v_lshrrev_b32 v150, 3, v2")
    a(f"v_add_u32 v150, s{S_T0}, v150")
    a(f"s_mov_b32 s{S_T1}, {ldb}")
    a(f"v_mul_lo_u32 v150, v150, s{S_T1}")
    a("v_and_b32 v151, 7, v2")
    a("v_lshl_add_u32 v150, v151, 4, v150")
    a(f"s_mul_i32 s{S_T1}, s{S_CT}, {NC*2}")
    a(f"v_add_u32 v150, s{S_T1}, v150")
    a(f"s_cmp_eq_u32 s{S_VALID}, 0")
    a(f"s_cselect_b32 s{S_T1}, 0x80000000, 0")
    a(f"v_or_b32 v150, s{S_T1}, v150")
    srd(a, 80, ptr(kptr), 0, nbytes)
    a(f"s_mov_b32 s{S_RT}, s4"); a(f"s_mov_b32 s{S_CT}, s5")
def l2_issue(a, kptr, ldb, K, i0=0, i1=None):
    if not l2_on(kptr): return 0
    R3 = ((K + 2)//3 + 7)//8*8
    n = (R3//8 + 3)//4
    if i1 is None: i1 = n
    for i in range(i0, min(i1, n)):
        a(f"buffer_load_dwordx4 v[152:155], v150, s[80:83], 0 offen")
        if i + 1 < n: a(f"v_add_u32 v150, {32*ldb}, v150")
    return min(i1, n) - i0

def att_phase(a, role):
    a(f"s_lshl_b32 s{S_R0}, s{S_RT}, 4       ; T0")
    srd(a, SRD_A, ptr(KA_WS), WS_QKV, S_TOK*NQKV*2)
    srd(a, SRD_OUT, ptr(KA_WS), WS_O, S_TOK*D*2)
    NI = 49
    nper = (NI + 7)//8
    a(f"s_mov_b32 s{S_T2}, 3840")
    a(f"s_mul_i32 s{S_T3}, s{S_CT}, 640")
    for j in range(nper):
        r = 32 + j
        a(f"s_add_u32 s{S_T0}, s{S_WAVE}, {8*j}")
        a(f"s_lshl_b32 s{S_T0}, s{S_T0}, 6")
        a(f"v_add_u32 v3, s{S_T0}, v2           ; c")
        vdiv(a, 4, 3, 41, 64*56)
        a("v_mul_u32_u24 v5, 41, v4")
        a("v_sub_u32 v5, v3, v5                  ; kap")
        a("v_cmp_le_u32 vcc, 16, v4")
        a("v_mov_b32 v8, 0x80000000")
        a("s_nop 0")
        a("v_cndmask_b32 v6, 0, 1, vcc")
        a("v_cmp_le_u32 vcc, 46, v4")
        a("s_nop 1")
        a("v_cndmask_b32 v7, 0, 1, vcc")
        a("v_add_u32 v6, v6, v7                  ; seg")
        a("v_mul_u32_u24 v7, 30, v6")
        a("v_sub_u32 v7, v4, v7")
        a(f"v_add_u32 v7, s{S_R0}, v7            ; token")
        a(f"v_mul_lo_u32 v7, v7, s{S_T2}")
        a("v_mul_u32_u24 v6, 1280, v6")
        a("v_add_u32 v7, v7, v6")
        a("v_lshl_add_u32 v7, v5, 4, v7")
        a(f"v_add_u32 v7, s{S_T3}, v7")
        a("v_cmp_gt_u32 vcc, 40, v5")
        a("s_nop 1")
        a("v_cndmask_b32 v7, v8, v7, vcc")
        a("v_cmp_gt_u32 vcc, 76, v4")
        a("s_nop 1")
        a(f"v_cndmask_b32 v{r}, v8, v7, vcc")
    if role == 'c':
        a(f"s_sub_u32 s{S_T0}, s{S_R0}, 14")
        a(f"s_max_i32 s{S_T0}, s{S_T0}, 0")
        sdiv(a, S_T0, S_T0, 121, 2100)
        a(f"s_add_u32 s{S_T1}, s{S_R0}, 15")
        sdiv(a, S_T1, S_T1, 121, 2100)
        a(f"s_mul_i32 s{S_T0}, s{S_T0}, 15")
        a(f"s_add_u32 s{S_T1}, s{S_T1}, 1")
        a(f"s_mul_i32 s{S_T1}, s{S_T1}, 15")
        poll(a, S_T0, S_T1, 0)
        a("s_barrier      ; B_dep")
    else:
        l2_setup(a, "p3", 243, 64, KA_WG, D*F*2, 3456, D)
        a("s_barrier      ; B_dep")
    stamp(a, 0)
    for j in range(nper):
        sk = None
        if 8*j + 7 >= NI:
            sk = a.new("attsk")
            a(f"s_cmp_ge_u32 s{S_WAVE}, {NI - 8*j}")
            a(f"s_cbranch_scc1 {sk}")
        a(f"s_add_u32 s{S_T0}, s{S_WAVE}, {8*j}")
        a(f"s_lshl_b32 s{S_T0}, s{S_T0}, 10")
        a(f"s_add_u32 m0, s{S_T0}, {LQ}")
        a("s_nop 0")
        a(f"buffer_load_dwordx4 v{32+j}, s[{SRD_A}:{SRD_A+3}], 0 offen{SC1} lds")
        if sk: a.label(sk)
    a("v_and_b32 v3, 1, v2            ; sub")
    a("v_bfe_u32 v4, v2, 1, 4         ; head")
    a("v_lshrrev_b32 v5, 5, v2")
    a(f"s_lshl_b32 s{S_T0}, s{S_WAVE}, 1")
    a(f"v_add_u32 v5, s{S_T0}, v5")
    a(f"v_mul_u32_u24 v6, {ROWB}, v5")
    a("v_mul_u32_u24 v7, 40, v4")
    a("v_add_u32 v6, v6, v7")
    a(f"v_mul_u32_u24 v7, {8*ROWB}, v3")
    a("v_sub_u32 v7, v6, v7")
    a(f"v_add_u32 v7, {LK}, v7")
    a("v_mul_u32_u24 v8, 24, v3       ; sub*24 -> X1 = 0/24, X2 = 8/32")
    a("v_add_u32 v8, v6, v8")
    a(f"v_add_u32 v8, {LV}, v8         ; b64 base")
    a("v_lshlrev_b32 v9, 2, v3        ; sub*4 -> X0 = 16/20")
    a("v_add_u32 v9, v6, v9")
    a(f"v_add_u32 v9, {LV + 16}, v9    ; b32 base")
    a(f"v_add_u32 v6, {LQ}, v6")
    a("s_waitcnt vmcnt(0)")
    a("s_barrier")
    stamp(a, 1)
    if role == 'l': l2_issue(a, KA_WG, 3456, D)
    Q = 16; KR = 32; LG = 100; VR = 32
    for i in range(5):
        a(f"ds_read_b64 v[{Q+2*i}:{Q+2*i+1}], v6 offset:{8*i}")
    for w in range(4):
        for i in range(5):
            a(f"ds_read_b64 v[{KR+10*w+2*i}:{KR+10*w+2*i+1}], v7 offset:{(14 - 2*w)*ROWB + 8*i}")
    for w in range(4): a(f"v_mov_b32 v{LG+w}, 0")
    a(f"v_add_u32 v10, s{S_R0}, v5")
    a("v_lshlrev_b32 v11, 3, v3       ; sub*8")
    a("v_sub_u32 v10, v10, v11")
    a("s_waitcnt lgkmcnt(0)")
    for i in range(10):
        for w in range(4):
            a(f"v_dot2_f32_bf16 v{LG+w}, v{Q+i}, v{KR+10*w+i}, v{LG+w}")
    for w in range(8):
        off = (14 - 2*w)*ROWB
        a(f"ds_read_b64 v[{VR+6*w}:{VR+6*w+1}], v8 offset:{off}")
        a(f"ds_read_b64 v[{VR+6*w+2}:{VR+6*w+3}], v8 offset:{off + 8}")
        a(f"ds_read_b32 v{VR+6*w+4}, v9 offset:{off}")
    scale = (D // 32) ** -0.5
    c1 = scale * 1.4426950408889634
    a(f"s_mov_b32 s{S_T0}, {hex(f2u(c1))}")
    a(f"v_mov_b32 v12, {hex(f2u(-1e30))}")
    for w in range(4):
        a(f"v_mul_f32 v{LG+w}, s{S_T0}, v{LG+w}")
    for w in range(4):
        a(f"v_cmp_le_i32 vcc, {2*w}, v10")
        a("s_nop 1")
        a(f"v_cndmask_b32 v{LG+w}, v12, v{LG+w}, vcc")
    a(f"v_max3_f32 v13, v{LG}, v{LG+1}, v{LG+2}")
    a(f"v_max_f32 v13, v13, v{LG+3}")
    a("s_nop 1")
    a("v_max_f32_dpp v13, v13, v13 quad_perm:[1,0,3,2] row_mask:0xf bank_mask:0xf")
    for w in range(4):
        a(f"v_sub_f32 v{LG+w}, v{LG+w}, v13")
    for w in range(4):
        a(f"v_exp_f32 v{LG+w}, v{LG+w}")
    a("s_nop 0")
    a(f"v_add_f32 v13, v{LG}, v{LG+1}")
    a(f"v_add_f32 v14, v{LG+2}, v{LG+3}")
    a("v_add_f32 v13, v13, v14")
    a("s_nop 1")
    a("v_add_f32_dpp v13, v13, v13 quad_perm:[1,0,3,2] row_mask:0xf bank_mask:0xf")
    a("v_rcp_f32 v13, v13")
    a("s_nop 0")
    for w in range(4):
        a(f"v_mul_f32 v{LG+w}, v{LG+w}, v13")
    a(f"v_cvt_pk_bf16_f32 v{LG+4}, v{LG}, v{LG+1}")
    a(f"v_cvt_pk_bf16_f32 v{LG+5}, v{LG+2}, v{LG+3}")
    a("s_nop 1")
    a(f"v_mov_b32_dpp v{LG+6}, v{LG+4} quad_perm:[0,0,2,2] row_mask:0xf bank_mask:0xf")
    a(f"v_mov_b32_dpp v{LG+7}, v{LG+5} quad_perm:[0,0,2,2] row_mask:0xf bank_mask:0xf   ; keys 2,3")
    a(f"v_mov_b32_dpp v{LG+8}, v{LG+4} quad_perm:[1,1,3,3] row_mask:0xf bank_mask:0xf")
    a(f"v_mov_b32_dpp v{LG+9}, v{LG+5} quad_perm:[1,1,3,3] row_mask:0xf bank_mask:0xf   ; keys 6,7")
    O = 112
    for i in range(10): a(f"v_mov_b32 v{O+i}, 0")
    a(f"s_mov_b32 s{S_T0}, 0x05040100")
    a(f"s_mov_b32 s{S_T1}, 0x07060302")
    a("s_waitcnt lgkmcnt(0)")
    for kp in range(4):
        for d in range(5):
            ra = VR + 6*(2*kp) + d; rb = VR + 6*(2*kp+1) + d
            a(f"v_perm_b32 v14, v{rb}, v{ra}, s{S_T0}")
            a(f"v_perm_b32 v15, v{rb}, v{ra}, s{S_T1}")
            a(f"v_dot2_f32_bf16 v{O+2*d}, v14, v{LG+6+kp}, v{O+2*d}")
            a(f"v_dot2_f32_bf16 v{O+2*d+1}, v15, v{LG+6+kp}, v{O+2*d+1}")
    a("s_nop 2")
    for d in range(5):
        a(f"v_cvt_pk_bf16_f32 v{Q+d}, v{O+2*d}, v{O+2*d+1}")
    a(f"v_subrev_u32 v8, {LV - LO}, v8")
    a(f"v_subrev_u32 v9, {LV - LO}, v9")
    a(f"ds_write_b64 v8, v[{Q}:{Q+1}]")
    a(f"ds_write_b64 v8, v[{Q+2}:{Q+3}] offset:8")
    a(f"ds_write_b32 v9, v{Q+4}")
    a("s_waitcnt lgkmcnt(0)")
    stamp(a, 2)
    a("s_barrier")
    for j in range(2):
        sk = None
        if j == 1:
            sk = a.new("attst")
            a(f"s_cmp_ge_u32 s{S_WAVE}, 2")
            a(f"s_cbranch_scc1 {sk}")
        a(f"s_add_u32 s{S_T0}, s{S_WAVE}, {8*j}")
        a(f"s_lshl_b32 s{S_T0}, s{S_T0}, 6")
        a(f"v_add_u32 v3, s{S_T0}, v2           ; chunk c 0..639")
        vdiv(a, 4, 3, 40, 640)
        a("v_mul_u32_u24 v5, 40, v4")
        a("v_sub_u32 v5, v3, v5                  ; kap")
        a(f"v_mul_u32_u24 v6, {ROWB}, v4")
        a("v_lshl_add_u32 v6, v5, 4, v6")
        a(f"ds_read_b128 v[20:23], v6 offset:{LO}")
        a(f"v_add_u32 v4, s{S_R0}, v4")
        a("v_mul_u32_u24 v4, 1280, v4")
        a("v_lshl_add_u32 v4, v5, 4, v4")
        a(f"v_add_u32 v4, s{S_T3}, v4")
        a("s_waitcnt lgkmcnt(0)")
        a(f"buffer_store_dwordx4 v[20:23], v4, s[{SRD_OUT}:{SRD_OUT+3}], 0 offen{SC1}")
        if sk: a.label(sk)
    a(f"s_lshl_b32 s{S_FIDX}, s{S_RT}, 1")
    a(f"s_add_u32 s{S_FIDX}, s{S_FIDX}, s{S_CT}")
    a(f"s_lshl_b32 s{S_FIDX}, s{S_FIDX}, 7")
    a(f"s_add_u32 s{S_FIDX}, s{S_FIDX}, 0x8000")

def finish_phase(a, role, first=False):
    a("s_waitcnt vmcnt(0)")
    stamp(a, 4)
    if role == 'c' and first: nonce_check(a)
    a("s_barrier      ; E3")
    if role == 'c': publish(a)
    stamp(a, 5)

def role_program(a, role):
    phases = [P1(), 'att', P24(2), P3(), P24(4)]
    if 'p1twice' in EXP:
        P = P1(); inv = a.new("inv")
        tile_map(a, P.NT, P.kind)
        a(f"s_cmp_eq_u32 s{S_VALID}, 0")
        a(f"s_cbranch_scc1 {inv}")
        P.tile_consts(a)
        if role == 'c': consumer_phase(a, P, True)
        else: loader_phase(a, P, True)
        a("s_waitcnt vmcnt(0)")
        a("s_barrier")
        a.label(inv)
    for n, P in enumerate(phases):
        first = (n == 0)
        nxt = a.new("next"); inv = a.new("inv")
        if P == 'att':
            tile_map(a, 256, 'att')
            att_phase(a, role)
            stamp(a, 3)
            finish_phase(a, role)
            prof_store(a, 'att', role)
            continue
        tile_map(a, P.NT, P.kind)
        a(f"s_cmp_eq_u32 s{S_VALID}, 0")
        a(f"s_cbranch_scc1 {inv}")
        P.tile_consts(a)
        if role == 'c': consumer_phase(a, P, first)
        else: loader_phase(a, P, first)
        stamp(a, 3)
        if P.key != 'p4': finish_phase(a, role, first)
        prof_store(a, P.key, role)
        if first:
            a(f"s_branch {nxt}")
            a.label(inv)
            ptr_wait(a)
            if role == 'c': nonce_check(a, issued=False)
            a.label(nxt)
        else:
            a.label(inv)

def main(out):
    a = Asm()
    a.raw(f".globl {KNAME}")
    a.raw(".p2align 8")
    a.raw(f".type {KNAME},@function")
    a.label(KNAME)
    if PROFDBG:
        a(f"s_memrealtime s[{S_P0+1}:{S_P0+2}]") if False else None
    a("s_cmp_ge_u32 s2, 256")
    a("s_cbranch_scc1 L_exit")
    a(f"s_load_dwordx16 s[{S_PTR}:{S_PTR+15}], s[0:1], 0")
    a(f"s_load_dwordx4 s[{S_PTR+16}:{S_PTR+19}], s[0:1], 64")
    if PROFDBG:
        a(f"{STAMP} s[98:99]")
    a("v_lshrrev_b32 v1, 6, v0")
    a("v_and_b32 v2, 63, v0      ; lane")
    a(f"s_mov_b32 s{S_FIDX}, -1")
    a(f"v_readfirstlane_b32 s{S_WAVE}, v1")
    a("s_nop 3")
    a(f"s_sub_u32 s{S_W}, s{S_WAVE}, 4")
    a(f"s_cmp_ge_u32 s{S_WAVE}, 4")
    a("s_cbranch_scc1 L_loader")
    role_program(a, 'c')
    a("s_waitcnt vmcnt(0)")
    a("s_endpgm")
    a.label("L_loader")
    role_program(a, 'l')
    a("s_waitcnt vmcnt(0)")
    a.label("L_exit")
    a("s_endpgm")
    HEADER = open("sequential_preLN__sliding_local_dilated__glu_gated_bilinear__prompt.s.ref").read().split("; Override")[0]
    s = HEADER
    s += f"; @launch grid=(256,1,1) block=(512,1,1) lds={LDS_TOTAL}\n"
    s += '.amdgcn_target "amdgcn-amd-amdhsa--gfx950"\n.text\n'
    s += a.text()
    s += f""".section .rodata,"a"
.p2align 6
.amdhsa_kernel {KNAME}
  .amdhsa_next_free_vgpr 256
  .amdhsa_next_free_sgpr 102
  .amdhsa_accum_offset 160
  .amdhsa_group_segment_fixed_size 0
  .amdhsa_kernarg_size 80
  .amdhsa_user_sgpr_count 2
  .amdhsa_user_sgpr_kernarg_segment_ptr 1
  .amdhsa_system_sgpr_workgroup_id_x 1
  .amdhsa_float_denorm_mode_32 3
.end_amdhsa_kernel
"""
    open(out, "w").write(s)

if __name__ == "__main__":
    if "-prof" in sys.argv: PROF = True
    if "-profdbg" in sys.argv: PROFDBG = True
    if "-cyc" in sys.argv: STAMP = "s_memtime"
    if "-wpf" in sys.argv: WPF = True
    for x in sys.argv:
        if x.startswith("-align="): ALIGN = int(x[7:])
    if "-nowpf" in sys.argv: WPF = False
    if "-onestep" in sys.argv: TWOSTEP = False
    for x in sys.argv:
        if x.startswith("-exp="): EXP = set(x[5:].split(","))
    if "-noxcd" in sys.argv: NOXCD = True
    for x in sys.argv:
        if x.startswith("-p1rot="): P1ROT = x[7:]
        if x.startswith("-rotoff="): ROTOFF = set(x[8:].split(","))
    for x in sys.argv:
        if x.startswith("-off="):
            for k in x[5:].split(","): WPF_OFF.add({'wo': KA_WO, 'wg': KA_WG, 'wu': KA_WU, 'wd': KA_WD}[k])
    main(sys.argv[1] if len(sys.argv) > 1 else "v3.s")
```

```python
import sys, struct

KNAME = "sequential_preLN__sliding_local_dilated__glu_gated_bilinear__prompt_kernel"
S_TOK, D, NQKV, F = 2048, 640, 1920, 1728
WS_QKV, WS_O, WS_H, WS_HH, WS_ST, WS_FLAG = 0, 0x800000, 0xB00000, 0x1000000, 0x1800000, 0x1900000
WS_PROF = 0x1A00000
KA_X, KA_WQKV, KA_WO, KA_BX, KA_WG, KA_WU, KA_WD, KA_OUT, KA_DBG, KA_WS = [8*i for i in range(10)]
ONES = 0x3F803F80
PROF = False
PROFDBG = False
STAMP = 's_memrealtime'
SC1 = " sc1"
LDS_TOTAL = 163840
OSC = ' sc1'
FUSE = True
ALIGN = 6
TWOSTEP = True
EXP = set()
NOXCD = False

def f2u(x):
    return struct.unpack("<I", struct.pack("<f", x))[0]

class Asm:
    def __init__(self):
        self.L = []
        self.uid = 0
    def __call__(self, s):
        for line in s.split("\n"):
            line = line.strip()
            if line:
                self.L.append("  " + line)
    def label(self, n):
        self.L.append(n + ":")
    def raw(self, s):
        self.L.append(s)
    def new(self, base):
        self.uid += 1
        return f"L{base}_{self.uid}"
    def text(self):
        return "\n".join(self.L) + "\n"

SRD_A, SRD_B0, SRD_B1, SRD_OUT, SRD_AUX, SRD_ST = 8, 12, 16, 20, 24, 28
S_RT, S_CT, S_R0, S_C0, S_WAVE, S_SLOT, S_CNT, S_T0, S_T1, S_T2 = 32, 33, 34, 35, 36, 37, 38, 39, 40, 41
S_AOFF, S_BOFF = 42, 43
S_PTR = 44
S_MASK = 64
S_I, S_J, S_REND, S_K = 66, 67, 68, 69
S_STAMP = 70
S_NONCE = 78
S_FIDX, S_LW, S_VALID, S_KB = 85, 86, 87, 92
SRD_FLAG = 88
S_SLOTB, S_T3, S_T4, S_W = 93, 94, 95, 96
S_P0 = 97
S_N1, S_N2 = 6, 7

def ptr(k): return S_PTR + k // 4

PH_IDX = {'p1': 0, 'att': 1, 'p2': 2, 'p3': 3, 'p4': 4}

def stamp(a, i):
    if i >= 4:
        if PROF: a(f'{STAMP} s[{98+2*(i-4)}:{99+2*(i-4)}]')
        return
    if PROF or PROFDBG:
        a(f'{STAMP} s[{S_STAMP+2*i}:{S_STAMP+2*i+1}]')

def prof_store(a, ph, role):
    if not (PROF or PROFDBG): return
    skip = a.new("pskip")
    a(f"s_cmp_eq_u32 s{S_WAVE}, {0 if role == 'c' else 4}")
    a(f"s_cbranch_scc0 {skip}")
    a('s_waitcnt lgkmcnt(0)')
    if PROF:
        a(f's_add_u32 s80, s{ptr(KA_WS)}, {hex(WS_PROF + PH_IDX[ph]*0x20000)}')
        a(f's_addc_u32 s81, s{ptr(KA_WS)+1}, 0')
        a('s_and_b32 s81, s81, 0xffff')
        a('s_mov_b32 s82, 0x20000')
        a('s_mov_b32 s83, 0x20000')
        a('s_lshl_b32 s84, s2, 3')
        a(f's_add_u32 s84, s84, s{S_WAVE}')
        a('s_lshl_b32 s84, s84, 6')
        for i in range(8): a(f'v_mov_b32 v{128+i}, s{S_STAMP+i}')
        for i in range(4): a(f'v_mov_b32 v{136+i}, s{98+i}')
        a('v_mov_b32 v148, s84')
        a('s_mov_b64 exec, 1')
        a('buffer_store_dwordx4 v[128:131], v148, s[80:83], 0 offen')
        a('buffer_store_dwordx4 v[132:135], v148, s[80:83], 0 offen offset:16')
        a('buffer_store_dwordx4 v[136:139], v148, s[80:83], 0 offen offset:32')
        a('s_mov_b64 exec, -1')
    if PROFDBG and role == 'c':
        sk2 = a.new("pskip")
        a(f"s_cmp_eq_u32 s2, {PROFDBG_WG}")
        a(f"s_cbranch_scc0 {sk2}")
        a(f's_mov_b32 s80, s{ptr(KA_DBG)}')
        a(f's_and_b32 s81, s{ptr(KA_DBG)+1}, 0xffff')
        a('s_mov_b32 s82, 0x100')
        a('s_mov_b32 s83, 0x20000')
        sel = DBG_SEL[ph]
        for j, (i, slot) in enumerate(sel):
            a(f's_sub_u32 s84, s{S_STAMP+2*i}, s{S_P0}')
            a(f'v_mov_b32 v140, s84')
            a(f'v_mov_b32 v141, {4*slot}')
            a('s_mov_b64 exec, 1')
            a('buffer_store_dword v140, v141, s[80:83], 0 offen')
            a('s_mov_b64 exec, -1')
        a.label(sk2)
    a.label(skip)

PROFDBG_WG = 9
DBG_SEL = {'p1': [(1, 2), (2, 3), (3, 4)], 'att': [(0, 5), (1, 6), (3, 7)], 'p2': [(0, 8), (2, 9)], 'p3': [(0, 10), (1, 11), (2, 12)], 'p4': [(0, 13), (2, 14), (3, 15)]}

def set_exec(a, mask):
    if mask == (1 << 64) - 1:
        a("s_mov_b64 exec, -1")
    else:
        a(f"s_mov_b32 exec_lo, {hex(mask & 0xffffffff)}")
        a(f"s_mov_b32 exec_hi, {hex(mask >> 32)}")

def srd(a, s, p, off, nbytes):
    if off:
        a(f"s_add_u32 s{s}, s{p}, {hex(off)}")
        a(f"s_addc_u32 s{s+1}, s{p+1}, 0")
    else:
        a(f"s_mov_b32 s{s}, s{p}")
        a(f"s_mov_b32 s{s+1}, s{p+1}")
    a(f"s_and_b32 s{s+1}, s{s+1}, 0xffff")
    a(f"s_mov_b32 s{s+2}, {hex(nbytes)}")
    a(f"s_mov_b32 s{s+3}, 0x20000")

def divc(a, dst, src, d, rng=300):
    m = (65536 + d - 1) // d
    for x in range(0, rng):
        assert (x * m) >> 16 == x // d, (x, d)
    a(f"s_mul_i32 s{dst}, s{src}, {m}")
    a(f"s_lshr_b32 s{dst}, s{dst}, 16")

def magic(d, N):
    for sh in range(8, 24):
        m = ((1 << sh) + d - 1) // d
        if m >= (1 << 24) or m * (N - 1) >= (1 << 32): continue
        if all((x * m) >> sh == x // d for x in range(N)): return m, sh
    raise Exception("no magic")

def sdiv(a, dst, src, d, N):
    m, sh = magic(d, N)
    a(f"s_mul_i32 s{dst}, s{src}, {m}")
    a(f"s_lshr_b32 s{dst}, s{dst}, {sh}")

def vdiv(a, dst, src, d, N):
    m, sh = magic(d, N)
    a(f"v_mul_u32_u24 v{dst}, {m}, v{src}")
    a(f"v_lshrrev_b32 v{dst}, {sh}, v{dst}")

def tile_map(a, NT, kind):
    if NOXCD:
        a(f"s_mov_b32 s{S_T0}, s2")
    else:
        a(f"s_and_b32 s{S_T0}, s2, 7")
        a(f"s_lshr_b32 s{S_T1}, s2, 3")
        a(f"s_lshl_b32 s{S_T0}, s{S_T0}, 5")
        a(f"s_add_u32 s{S_T0}, s{S_T0}, s{S_T1}   ; t")
    a(f"s_cmp_lt_u32 s{S_T0}, {NT}")
    a(f"s_cselect_b32 s{S_VALID}, 1, 0")
    if kind == "p1":
        divc(a, S_T1, S_T0, 90)
        a(f"s_mul_i32 s{S_T2}, s{S_T1}, 90")
        a(f"s_sub_u32 s{S_T2}, s{S_T0}, s{S_T2}")
        divc(a, S_CT, S_T2, 6)
        divc(a, S_RT, S_T2, 5)
        a(f"s_cmp_eq_u32 s{S_T1}, 2")
        a(f"s_cselect_b32 s{S_CT}, s{S_RT}, s{S_CT}")
        a(f"s_cselect_b32 s{S_RT}, 5, 6")
        a(f"s_mul_i32 s{S_RT}, s{S_RT}, s{S_CT}")
        a(f"s_sub_u32 s{S_RT}, s{S_T2}, s{S_RT}")
        a(f"s_mul_i32 s{S_T1}, s{S_T1}, 6")
        a(f"s_add_u32 s{S_RT}, s{S_RT}, s{S_T1}")
    elif kind == "p3":
        divc(a, S_T1, S_T0, 81)
        a(f"s_mul_i32 s{S_T2}, s{S_T1}, 81")
        a(f"s_sub_u32 s{S_T2}, s{S_T0}, s{S_T2}")
        divc(a, S_CT, S_T2, 3)
        a(f"s_mul_i32 s{S_RT}, s{S_CT}, 3")
        a(f"s_sub_u32 s{S_RT}, s{S_T2}, s{S_RT}")
        a(f"s_mul_i32 s{S_T1}, s{S_T1}, 3")
        a(f"s_add_u32 s{S_RT}, s{S_RT}, s{S_T1}")
    elif kind == "p1f":
        a(f"s_lshr_b32 s{S_T1}, s{S_T0}, 6")
        a(f"s_lshl_b32 s{S_RT}, s{S_T1}, 3")
        a(f"s_bfe_u32 s{S_T2}, s{S_T0}, {2 | (3 << 16)}")
        a(f"s_add_u32 s{S_RT}, s{S_RT}, s{S_T2}")
        a(f"s_bfe_u32 s{S_T1}, s{S_T0}, {5 | (1 << 16)}")
        a(f"s_lshl_b32 s{S_T1}, s{S_T1}, 2")
        a(f"s_and_b32 s{S_CT}, s{S_T0}, 3")
        a(f"s_add_u32 s{S_CT}, s{S_CT}, s{S_T1}")
    elif kind == "att":
        a(f"s_lshr_b32 s{S_RT}, s{S_T0}, 1")
        a(f"s_and_b32 s{S_CT}, s{S_T0}, 1")
    else:
        divc(a, S_RT, S_T0, 10)
        a(f"s_mul_i32 s{S_CT}, s{S_RT}, 10")
        a(f"s_sub_u32 s{S_CT}, s{S_T0}, s{S_CT}")

def publish(a):
    skip = a.new("pub")
    a(f"s_cmp_eq_u32 s{S_WAVE}, 0")
    a(f"s_cbranch_scc0 {skip}")
    a(f"s_cmp_eq_u32 s{S_FIDX}, -1")
    a(f"s_cbranch_scc1 {skip}")
    a(f"v_mov_b32 v140, s{S_NONCE}")
    a(f"v_mov_b32 v141, s{S_NONCE+1}")
    a(f"v_mov_b32 v142, s{S_FIDX}")
    a("s_mov_b64 exec, 1")
    a(f"buffer_store_dwordx2 v[140:141], v142, s[{SRD_FLAG}:{SRD_FLAG+3}], 0 offen{SC1}")
    a("s_mov_b64 exec, -1")
    a.label(skip)

def poll_core(a):
    loop = a.new("poll"); done = a.new("polldone")
    a(f"s_and_saveexec_b64 s[80:81], vcc")
    a(f"s_mov_b32 s{S_CNT}, 0x40000")
    a.label(loop)
    a(f"buffer_load_dwordx2 v[142:143], v140, s[{SRD_FLAG}:{SRD_FLAG+3}], 0 offen{SC1}")
    a("s_waitcnt vmcnt(0)")
    a(f"v_cmp_ne_u64 vcc, s[{S_NONCE}:{S_NONCE+1}], v[142:143]")
    a(f"s_cbranch_vccz {done}")
    a(f"s_sub_u32 s{S_CNT}, s{S_CNT}, 1")
    a(f"s_cmp_lg_u32 s{S_CNT}, 0")
    a(f"s_cbranch_scc1 {loop}")
    a.label(done)
    a("s_mov_b64 exec, s[80:81]")

def poll(a, lo_sgpr, hi_sgpr, base):
    skip = a.new("pollskip")
    a(f"s_cmp_eq_u32 s{S_WAVE}, 0")
    a(f"s_cbranch_scc0 {skip}")
    a(f"v_add_u32 v140, s{lo_sgpr}, v2")
    a(f"v_cmp_gt_u32 vcc, s{hi_sgpr}, v140")
    a(f"v_lshlrev_b32 v140, 7, v140")
    a(f"v_add_u32 v140, {base}, v140")
    poll_core(a)
    a.label(skip)

def poll_first(a, lo_sgpr, hi_sgpr, W, k0, k1, base):
    skip = a.new("pollskip")
    a(f"s_cmp_eq_u32 s{S_WAVE}, 0")
    a(f"s_cbranch_scc0 {skip}")
    a("v_lshrrev_b32 v140, 1, v2")
    a(f"v_add_u32 v140, s{lo_sgpr}, v140")
    a(f"v_cmp_ge_u32 vcc, s{hi_sgpr}, v140")
    a(f"v_mul_u32_u24 v140, {W}, v140")
    a("v_and_b32 v141, 1, v2")
    a(f"s_sub_u32 s{S_T2}, s{k1}, s{k0}")
    a(f"v_mul_lo_u32 v141, v141, s{S_T2}")
    a(f"v_add_u32 v141, s{k0}, v141")
    a("v_add_u32 v140, v140, v141")
    a(f"v_lshlrev_b32 v140, 7, v140")
    a(f"v_add_u32 v140, {base}, v140")
    poll_core(a)
    a.label(skip)

def first_ks(a, P):
    P.rot_start(a)
    a(f"s_add_u32 s{S_KB}, s{S_K}, 1")
    a(f"s_cmp_ge_u32 s{S_KB}, {P.S}")
    a(f"s_cselect_b32 s{S_KB}, 0, s{S_KB}")

def dbg_srd(a):
    a(f"s_mov_b32 s80, s{ptr(KA_DBG)}")
    a(f"s_and_b32 s81, s{ptr(KA_DBG)+1}, 0xffff")
    a("s_mov_b32 s82, 0x100")
    a("s_mov_b32 s83, 0x20000")

def nonce_publish(a):
    skip = a.new("nonce")
    a(f"s_cmp_eq_u32 s{S_WAVE}, 0")
    a(f"s_cbranch_scc0 {skip}")
    a("s_cmp_eq_u32 s2, 0")
    a(f"s_cbranch_scc0 {skip}")
    dbg_srd(a)
    a(f"s_memrealtime s[{S_NONCE}:{S_NONCE+1}]")
    a("v_mov_b32 v5, 0")
    a("s_waitcnt lgkmcnt(0)")
    a(f"s_or_b32 s{S_NONCE}, s{S_NONCE}, 1")
    a(f"v_mov_b32 v6, s{S_NONCE}")
    a(f"v_mov_b32 v7, s{S_NONCE+1}")
    a("s_mov_b64 exec, 1")
    a(f"buffer_store_dwordx2 v[6:7], v5, s[80:83], 0 offen{SC1}")
    a("s_mov_b64 exec, -1")
    a.label(skip)

def nonce_issue(a):
    skip = a.new("nonce")
    a(f"s_cmp_eq_u32 s{S_WAVE}, 0")
    a(f"s_cbranch_scc0 {skip}")
    dbg_srd(a)
    a("v_mov_b32 v158, 0")
    a("s_nop 3")
    a(f"buffer_load_dwordx2 v[156:157], v158, s[80:83], 0 offen{SC1}")
    a.label(skip)

def nonce_check(a, issued=True):
    skip = a.new("nonce"); loop = a.new("nloop"); done = a.new("ndone"); chk = a.new("nchk")
    a(f"s_cmp_eq_u32 s{S_WAVE}, 0")
    a(f"s_cbranch_scc0 {skip}")
    dbg_srd(a)
    a("v_mov_b32 v158, 0")
    a(f"s_mov_b32 s{S_CNT}, 0x40000")
    if issued: a(f"s_branch {chk}")
    a.label(loop)
    a(f"buffer_load_dwordx2 v[156:157], v158, s[80:83], 0 offen{SC1}")
    a("s_waitcnt vmcnt(0)")
    a.label(chk)
    a("v_readfirstlane_b32 s" + str(S_NONCE) + ", v156")
    a("v_readfirstlane_b32 s" + str(S_NONCE+1) + ", v157")
    a("s_nop 3")
    a(f"s_cmp_lg_u32 s{S_NONCE}, 0")
    a(f"s_cbranch_scc1 {done}")
    a(f"s_sub_u32 s{S_CNT}, s{S_CNT}, 1")
    a(f"s_cmp_lg_u32 s{S_CNT}, 0")
    a(f"s_cbranch_scc1 {loop}")
    a.label(done)
    a.label(skip)

class Phase:
    has_e1 = False
    has_stage_work = False
    prefetchB = 0
    def loader_post_first(self, a): return 0
    def loader_post_b0(self, a): return 0
    def loader_stage_work_parts(self): return []
    def loader_final(self, a): pass
    def store_pre(self, a): pass
    def tail_prefetch(self, a, part): return 0
    def mid_prefetch(self, a, s): return 0
    def l2_prep(self, a): pass
    def rot_start(self, a):
        if self.key in ROTOFF:
            a(f"s_mov_b32 s{S_K}, 0"); return
        ca, cb, den = self.rot
        a(f"s_mul_i32 s{S_K}, s{S_CT}, {ca}")
        a(f"s_mul_i32 s{S_T0}, s{S_RT}, {cb}")
        a(f"s_add_u32 s{S_K}, s{S_K}, s{S_T0}")
        a(f"s_lshr_b32 s{S_K}, s{S_K}, {den}")
        m = (65536 + self.S - 1) // self.S
        for x in range(1024): assert (x*m) >> 16 == x // self.S
        a(f"s_mul_i32 s{S_T0}, s{S_K}, {m}")
        a(f"s_lshr_b32 s{S_T0}, s{S_T0}, 16")
        a(f"s_mul_i32 s{S_T0}, s{S_T0}, {self.S}")
        a(f"s_sub_u32 s{S_K}, s{S_K}, s{S_T0}")
    def tile_consts(self, a):
        a(f"s_mul_i32 s{S_R0}, s{S_RT}, {self.MV}")
        a(f"s_mul_i32 s{S_C0}, s{S_CT}, {self.NC}")
        a(f"s_add_u32 s{S_REND}, s{S_R0}, {self.MV}")
        a(f"s_min_u32 s{S_REND}, s{S_REND}, {S_TOK}")

def transition(a, first):
    pass

def loader_phase(a, P, first):
    NS, S = P.NS, P.S
    nA, nB = len(P.Ains), len(P.Bins)
    VB = 32
    customB = getattr(P, 'custom_B', False)
    a("v_lshrrev_b32 v3, 3, v2      ; r8")
    a("v_and_b32 v4, 7, v2          ; p")
    a("v_lshrrev_b32 v5, 1, v3      ; r8>>1")
    a("v_xor_b32 v6, v4, v5")
    a("v_lshlrev_b32 v6, 4, v6")
    a(f"s_lshl_b32 s{S_T0}, s{S_W}, 3")
    a(f"s_add_u32 s{S_T0}, s{S_T0}, s{S_R0}")
    a(f"v_add_u32 v7, s{S_T0}, v3")
    a(f"s_mov_b32 s{S_T0}, {P.lda}")
    a(f"v_mul_lo_u32 v7, v7, s{S_T0}")
    a("v_add_u32 v7, v7, v6")
    a(f"s_and_b32 s{S_T0}, s{S_W}, 1")
    a(f"s_lshl_b32 s{S_T0}, s{S_T0}, 6")
    a(f"v_xor_b32 v7, s{S_T0}, v7")
    for t in range(nA):
        a(f"v_add_u32 v{VB+t}, {t*32*P.lda}, v7")
    if customB: P.custom_B_setup(a, VB + nA)
    else: std_B_setup(a, P, VB, nA)
    if getattr(P, 'oprime', False): oprime_alt_setup(a, P)
    a(f"s_lshl_b32 s{S_LW}, s{S_W}, 10")
    P.mask_setup(a)
    P.rot_start(a)
    a(f"s_mov_b32 s{S_KB}, s{S_K}")
    a(f"s_mov_b32 s{S_N1}, 0"); a(f"s_mov_b32 s{S_N2}, 0")
    if first: ptr_wait(a)
    P.build_srds(a, 'l')
    loader_rest(a, P, first, VB, nA, nB, NS, S)

def oprime_alt_setup(a, P):
    a(f"s_and_b32 s{S_T0}, s{S_W}, 1")
    a(f"s_lshl_b32 s{S_T0}, s{S_T0}, 6")
    a(f"v_xor_b32 v10, s{S_T0}, v6")
    a("v_lshrrev_b32 v11, 5, v10             ; q = c>>1")
    a("v_lshlrev_b32 v11, 7, v11             ; q*128")
    a("v_and_b32 v12, 16, v10                ; half*16")
    a("v_add_u32 v11, v11, v12")
    a(f"s_lshl_b32 s{S_T0}, s{S_W}, 3")
    a(f"s_add_u32 s{S_T0}, s{S_T0}, s{S_R0}")
    a(f"v_add_u32 v12, s{S_T0}, v3            ; row (t=0)")
    for t in range(3):
        a(f"v_add_u32 v13, {32*t}, v12")
        a("v_lshrrev_b32 v14, 2, v13")
        a("v_lshlrev_b32 v14, 10, v14")
        a("v_and_b32 v13, 3, v13")
        a("v_lshl_add_u32 v14, v13, 5, v14")
        a("v_add_u32 v14, v14, v11")
        a(f"v_add_u32 v{44+t}, 0x200000, v14")
    a(f"s_and_b32 s{S_T0}, s{S_W}, 1")
    a(f"s_lshl_b32 s{S_T0}, s{S_T0}, 6")
    a(f"v_xor_b32 v10, s{S_T0}, v8")
    a(f"s_lshl_b32 s{S_T1}, s{S_C0}, 1")
    a(f"v_add_u32 v10, s{S_T1}, v10")
    a(f"s_lshl_b32 s{S_T0}, s{S_W}, 3")
    for t, ib in enumerate((0, 4)):
        a(f"v_add_u32 v12, s{S_T0}, v3")
        a(f"v_add_u32 v12, {8*ib}, v12          ; r")
        a("v_lshrrev_b32 v13, 4, v12")
        a("v_mul_u32_u24 v13, 80, v13")
        a("v_and_b32 v12, 15, v12")
        a("v_add_u32 v13, v13, v12")
        a("v_add_u32 v13, 64, v13")
        a("v_mul_u32_u24 v13, 1280, v13")
        a(f"v_add_u32 v{47+t}, v13, v10")

def std_B_setup(a, P, VB, nA):
    a("v_and_b32 v8, 1, v5")
    a("v_lshlrev_b32 v8, 1, v8")
    a("v_xor_b32 v8, v4, v8")
    a("v_lshlrev_b32 v8, 4, v8")
    a(f"s_lshl_b32 s{S_T0}, s{S_W}, 3")
    a(f"v_add_u32 v9, s{S_T0}, v3         ; k = 8w + r8")
    a(f"s_mov_b32 s{S_T0}, {P.ldb}")
    a(f"v_mul_lo_u32 v9, v9, s{S_T0}")
    a("v_add_u32 v9, v9, v8")
    a(f"s_and_b32 s{S_T0}, s{S_W}, 1")
    a(f"s_lshl_b32 s{S_T0}, s{S_T0}, 6")
    a(f"v_xor_b32 v9, s{S_T0}, v9")
    a(f"s_lshl_b32 s{S_T1}, s{S_C0}, 1")
    a(f"v_add_u32 v9, s{S_T1}, v9")
    for t, (pn, ib) in enumerate(P.Bins):
        a(f"v_add_u32 v{VB+nA+t}, {ib*8*P.ldb + P.panel_coloff[pn]}, v9")

def loader_rest(a, P, first, VB, nA, nB, NS, S):

    opr = getattr(P, 'oprime', False)
    def soff(kreg, offreg, mul):
        if not opr:
            a(f"s_mul_i32 s{offreg}, s{kreg}, {mul}")
            return
        mm, mt_ = (128, 512) if offreg == S_AOFF else (102400, 409600)
        a(f"s_mul_i32 s{offreg}, s{kreg}, {mm}")
        a(f"s_sub_u32 s{S_T0}, s{kreg}, 8")
        a(f"s_mul_i32 s{S_T0}, s{S_T0}, {mt_}")
        a(f"s_cmp_ge_u32 s{kreg}, 8")
        a(f"s_cselect_b32 s{offreg}, s{S_T0}, s{offreg}")
    def adv(kreg, offreg, mul, slotreg):
        if getattr(P, 'order2', False) and P1ROT == 'latin2':
            cnt = S_N1 if kreg == S_K else S_N2
            a(f"s_add_u32 s{kreg}, s{kreg}, 2")
            a(f"s_cmp_ge_u32 s{kreg}, {S}")
            a(f"s_cselect_b32 s{S_T0}, {S}, 0")
            a(f"s_sub_u32 s{kreg}, s{kreg}, s{S_T0}")
            a(f"s_add_u32 s{cnt}, s{cnt}, 1")
            a(f"s_cmp_eq_u32 s{cnt}, 5")
            a(f"s_addc_u32 s{kreg}, s{kreg}, 0")
        else:
            a(f"s_add_u32 s{kreg}, s{kreg}, 1")
            a(f"s_cmp_ge_u32 s{kreg}, {S}")
            a(f"s_cselect_b32 s{kreg}, 0, s{kreg}")
        soff(kreg, offreg, mul)
        a(f"s_add_u32 s{slotreg}, s{slotreg}, {P.STAGE}")
        a(f"s_cmp_ge_u32 s{slotreg}, {P.STAGE*NS}")
        a(f"s_cselect_b32 s{slotreg}, 0, s{slotreg}")
    def issueA(fill=None):
        a(f"s_add_u32 s{S_T3}, s{S_SLOT}, s{S_LW}")
        if opr:
            lt_ = a.new("atail"); le_ = a.new("aend")
            a(f"s_cmp_ge_u32 s{S_K}, 8")
            a(f"s_cbranch_scc1 {lt_}")
            issueA_body(VB, None)
            a(f"s_branch {le_}")
            a.label(lt_)
            issueA_body(44, None)
            a.label(le_)
        else:
            issueA_body(VB, fill)
        adv(S_K, S_AOFF, 128, S_SLOT)
    def issueA_body(vb, fill):
        for t in range(nA):
            special = P.Ains[t]
            sk = None
            if special == 'skip':
                sk = a.new("sk")
                a(f"s_cmp_eq_u64 s[{S_MASK}:{S_MASK+1}], 0")
                a(f"s_cbranch_scc1 {sk}")
            a(f"s_add_u32 m0, s{S_T3}, {t*4096}")
            if special: a(f"s_mov_b64 exec, s[{S_MASK}:{S_MASK+1}]")
            else: a("s_nop 0")
            a(f"buffer_load_dwordx4 v{vb+t}, s[{SRD_A}:{SRD_A+3}], s{S_AOFF} offen{P.scA} lds")
            if special: a("s_mov_b64 exec, -1")
            if sk: a.label(sk)
            if fill:
                for x in fill.pop(0) if fill else []: a(x)
    def issueB(fill=None):
        a(f"s_add_u32 s{S_T4}, s{S_SLOTB}, s{S_LW}")
        if opr:
            lt_ = a.new("btail"); le_ = a.new("bend")
            a(f"s_cmp_ge_u32 s{S_KB}, 8")
            a(f"s_cbranch_scc1 {lt_}")
            issueB_body(VB + nA, None)
            a(f"s_branch {le_}")
            a.label(lt_)
            issueB_body(47, None)
            a.label(le_)
        else:
            issueB_body(VB + nA, fill)
        adv(S_KB, S_BOFF, 64*P.ldb, S_SLOTB)
    def issueB_body(vb, fill):
        for t, ent in enumerate(P.Bins):
            if isinstance(ent, dict):
                sr = SRD_B0; ldsoff = ent['lds']; skp = ent.get('skip')
            else:
                pn, ib = ent
                sr = P.panel_srd[pn]; ldsoff = P.ABYTES + pn*8192 + ib*1024; skp = None
            sk = None
            if skp:
                sk = a.new("skb")
                a(f"s_cmp_ge_u32 s{S_W}, {skp}")
                a(f"s_cbranch_scc1 {sk}")
            a(f"s_add_u32 m0, s{S_T4}, {ldsoff}")
            a("s_nop 0")
            a(f"buffer_load_dwordx4 v{vb+t}, s[{sr}:{sr+3}], s{S_BOFF} offen lds")
            if sk: a.label(sk)
            if fill:
                for x in fill.pop(0) if fill else []: a(x)
    minA = nA - (1 if 'skip' in P.Ains else 0)
    minB = nB - sum(1 for e_ in P.Bins if isinstance(e_, dict) and e_.get('skip'))
    a(f"s_mov_b32 s{S_SLOT}, 0")
    a(f"s_mov_b32 s{S_SLOTB}, 0")
    soff(S_K, S_AOFF, 128)
    soff(S_KB, S_BOFF, 64*P.ldb)
    pB = P.prefetchB if not first else 0
    if pB:
        lp = a.new("bpre")
        a(f"s_mov_b32 s{S_CNT}, {pB}")
        a.label(lp)
        issueB()
        a(f"s_sub_u32 s{S_CNT}, s{S_CNT}, 1")
        a(f"s_cmp_lg_u32 s{S_CNT}, 0")
        a(f"s_cbranch_scc1 {lp}")
    if not first:
        a("s_barrier      ; B_dep")
    stamp(a, 0)
    L = []
    for s in range(S):
        cap = (NS - 1) if s == 0 else s + NS - 2
        prev = L[-1] if L else -1
        L.append(min(S - 1, cap, prev + 2))
    seq = [('B', j) for j in range(pB)]
    def cnt_after(s):
        last = max(i for i, (k, j) in enumerate(seq) if j == s and k in 'AB')
        n = 0
        for (k, j) in seq[last+1:]:
            n += minA if k == 'A' else (minB if k == 'B' else j)
        return n
    def issue_stage(j, fill=None):
        if j >= pB:
            issueA(fill); seq.append(('A', j))
            issueB(fill); seq.append(('B', j))
        else:
            issueA(fill); seq.append(('A', j))
    prev = -1
    s = 0
    while s < S:
        k = L[s] - prev
        e = s
        if k == 1 and L[s] >= pB and s > 0 and not (WPF and getattr(P, 'unroll', False)):
            while e + 1 < S and L[e+1] - L[e] == 1 and (L[e+1] - (e+1)) == (L[s] - s): e += 1
        if e - s >= 2 and s - 0 >= 0 and min(range(s, e+1)) >= 0 and s >= pB - (L[s] - s) and all(j >= pB for j in range(s, s+1)):
            cnt = e - s + 1
            lp = a.new("lmain")
            a(f"s_mov_b32 s{S_CNT}, {cnt}")
            a.label(lp)
            parts = P.loader_stage_work_parts() if P.has_stage_work else None
            issue_stage(L[s], parts)
            if parts:
                for grp in parts:
                    for x in grp: a(x)
            n = cnt_after(s)
            a(f"s_waitcnt vmcnt({n})")
            if P.has_stage_work: a("s_waitcnt lgkmcnt(0)")
            a("s_barrier")
            a(f"s_sub_u32 s{S_CNT}, s{S_CNT}, 1")
            a(f"s_cmp_lg_u32 s{S_CNT}, 0")
            a(f"s_cbranch_scc1 {lp}")
            for j in range(s+1, e+1):
                seq.append(('A', L[j])); seq.append(('B', L[j]))
            prev = L[e]; s = e + 1
            continue
        parts = P.loader_stage_work_parts() if (P.has_stage_work and s > 0) else None
        for j in range(prev+1, L[s]+1):
            issue_stage(j, parts if j == prev+1 else None)
        if s == 0:
            stamp(a, 1)
            ex = P.loader_post_first(a) or 0
            P.l2_prep(a)
            if getattr(P, 'early_pre', False): ex += P.early_setup(a)
            if ex: seq.append(('X', ex))
        if parts:
            for grp in parts:
                for x in grp: a(x)
        nw = P.mid_prefetch(a, s) or 0
        if nw: seq.append(('X', nw))
        a(f"s_waitcnt vmcnt({cnt_after(s)})")
        if P.has_stage_work or s == 0: a("s_waitcnt lgkmcnt(0)")
        a("s_barrier")
        if s == 0:
            ex = P.loader_post_b0(a) or 0
            if ex: seq.append(('X', ex))
        prev = L[s]; s += 1
    stamp(a, 2)
    if P.has_stage_work:
        for grp in P.loader_stage_work_parts():
            for x in grp: a(x)
    if getattr(P, 'fused', False):
        P.loader_fused_tail(a)
        return
    P.loader_final(a)
    if getattr(P, 'chunk_epi', False): P.loader_store_setup(a)
    if getattr(P, 'early_pre', False):
        a("s_barrier          ; E2")
        P.store_fast(a)
        P.set_fidx(a)
        return
    P.store_pre(a)
    ny = 0
    if P.has_e1:
        a("s_waitcnt lgkmcnt(0)")
        a("s_barrier      ; E1")
    if getattr(P, 'stream_epi', False):
        P.set_fidx(a)
        return
    if getattr(P, 'chunk_epi', False):
        P.loader_epilogue(a)
        P.set_fidx(a)
        return
    a("s_barrier          ; E2")
    store_pass(a, P, ny)

def consumer_phase(a, P, first):
    if getattr(P, 'modeS', False): return consumer_phase_S(a, P, first)
    P.consumer_setup(a)
    NW = len(P.wlist)
    XF = [0, 4*P.NXMAX]
    WF = [8*P.NXMAX, 8*P.NXMAX + 4*NW]
    wk, wt = getattr(P, 'wstep', (4096, 512))
    def reads(kk, buf):
        r = []
        for wi, (areg, off) in enumerate(P.wlist):
            base = WF[buf] + 4*wi
            r.append(f"ds_read_b64_tr_b16 a[{base}:{base+1}], v{areg} offset:{off + kk*wk}")
            r.append(f"ds_read_b64_tr_b16 a[{base+2}:{base+3}], v{areg} offset:{off + kk*wk + wt}")
        for xi, (areg0, areg1, off) in enumerate(P.xlist):
            base = XF[buf] + 4*xi
            areg = areg0 if kk == 0 else areg1
            r.append(f"ds_read_b128 a[{base}:{base+3}], v{areg} offset:{off}")
        return r
    def mfmas(buf, first_=False):
        m = []
        for (xi, wi, acc) in P.mf:
            c = "0" if first_ else f"v[{acc}:{acc+3}]"
            m.append(f"v_mfma_f32_16x16x32_bf16 v[{acc}:{acc+3}], a[{WF[buf]+4*wi}:{WF[buf]+4*wi+3}], a[{XF[buf]+4*xi}:{XF[buf]+4*xi+3}], {c}")
        return m
    block = make_block(a, P.RPM)
    cons_prologue(a, P, first)
    for x in reads(0, 0): a(x)
    a(f"s_mov_b32 s{S_CNT}, {P.S-1}")
    a("s_waitcnt lgkmcnt(0)")
    def stats4(buf):
        if not getattr(P, 'mfma_stats4', False): return
        sk = a.new("st4")
        a(f"s_and_b32 s{S_T0}, s{S_N1}, 3")
        a(f"s_add_u32 s{S_N1}, s{S_N1}, 1")
        a(f"s_cmp_eq_u32 s{S_T0}, s{S_WAVE}")
        a(f"s_cbranch_scc0 {sk}")
        for x in P.stats_mfmas([f"a[{XF[buf]+4*xi}:{XF[buf]+4*xi+3}]" for xi in range(len(P.xlist))]): a(x)
        a.label(sk)
    st4 = getattr(P, 'mfma_stats4', False)
    block(mfmas(0, True), reads(1, 1), slot_adv(P) + P.addr_update())
    stats4(0)
    lp = a.new("cloop")
    if ALIGN: a.raw(f".p2align {ALIGN}")
    a.label(lp)
    a("s_waitcnt lgkmcnt(0)")
    a("s_barrier")
    block(mfmas(1), reads(0, 0), [f"s_sub_u32 s{S_CNT}, s{S_CNT}, 1"])
    stats4(1)
    a("s_waitcnt lgkmcnt(0)")
    block(mfmas(0), reads(1, 1), slot_adv(P) + P.addr_update() + ([] if st4 else [f"s_cmp_lg_u32 s{S_CNT}, 0"]))
    stats4(0)
    if st4: a(f"s_cmp_lg_u32 s{S_CNT}, 0")
    a(f"s_cbranch_scc1 {lp}")
    a("s_waitcnt lgkmcnt(0)")
    block(mfmas(1), [])
    stats4(1)
    cons_tail(a, P, first)

def make_block(a, RPM):
    def block(m, r, fill=()):
        q = list(r); fl = list(fill)
        for i, x in enumerate(m):
            a(x)
            k = 0
            while q and k < RPM:
                a(q.pop(0)); k += 1
            if not q:
                while fl and k < 2:
                    a(fl.pop(0)); k += 1
        for x in q: a(x)
        for x in fl: a(x)
    return block

def slot_adv(P):
    return [f"s_add_u32 s{S_SLOT}, s{S_SLOT}, {P.STAGE}",
            f"s_cmp_ge_u32 s{S_SLOT}, {P.STAGE*P.NS}",
            f"s_cselect_b32 s{S_SLOT}, 0, s{S_SLOT}"]

def cons_prologue(a, P, first):
    a(f"s_mov_b32 s{S_SLOT}, 0")
    for x in P.addr_update(): a(x)
    if first: ptr_wait(a)
    P.build_srds(a, 'c')
    if not first:
        if TWOSTEP: P.deps_first(a)
        else: P.deps(a)
        a("s_barrier      ; B_dep")
        if getattr(P, 'early_pre', False): P.early_setup(a)
        if TWOSTEP: P.deps(a)
    else:
        nonce_publish(a)
    stamp(a, 0)
    a("s_barrier          ; B_0")
    stamp(a, 1)

def cons_tail(a, P, first):
    stamp(a, 2)
    if first: nonce_issue(a)
    a("s_nop 7")
    P.epilogue(a)
    if getattr(P, 'stream_epi', False) or getattr(P, 'chunk_epi', False):
        P.set_fidx(a)
        return
    a("s_waitcnt lgkmcnt(0)")
    if getattr(P, 'early_pre', False):
        a("s_barrier          ; E2")
        P.store_fast(a)
        P.set_fidx(a)
        return
    P.store_pre(a)
    a("s_barrier          ; E2")
    store_pass(a, P)

def consumer_phase_S(a, P, first):
    P.consumer_setup(a)
    for r in range(P.ACC, P.ACC + P.NACC): a(f"v_mov_b32 v{r}, 0")
    def rng(t):
        k, i = t
        return f"{k}[{i}:{i+3}]"
    def half(t, h):
        k, i = t
        return f"{k}[{i+2*h}:{i+2*h+1}]"
    def reads(buf):
        r = []
        for kk in range(2):
            for wi, (areg, off) in enumerate(P.wlist):
                t = P.fragW(buf, kk, wi)
                r.append(f"ds_read_b64_tr_b16 {half(t,0)}, v{areg} offset:{off + kk*4096}")
                r.append(f"ds_read_b64_tr_b16 {half(t,1)}, v{areg} offset:{off + kk*4096 + 512}")
            for xi, (areg0, areg1, off) in enumerate(P.xlist):
                areg = areg0 if kk == 0 else areg1
                r.append(f"ds_read_b128 {rng(P.fragX(buf, kk, xi))}, v{areg} offset:{off}")
        return r
    def mfmas(buf):
        m = []
        for kk in range(2):
            for (xi, wi, acc) in P.mf:
                m.append(f"v_mfma_f32_16x16x32_bf16 v[{acc}:{acc+3}], {rng(P.fragW(buf, kk, wi))}, {rng(P.fragX(buf, kk, xi))}, v[{acc}:{acc+3}]")
        return m
    def stats(buf):
        if not getattr(P, 'mfma_stats', False) or 'nostats' in EXP: return
        l1 = a.new("st"); l2 = a.new("st")
        a(f"s_cmp_eq_u32 s{S_J}, 1")
        a(f"s_cbranch_scc1 {l1}")
        for x in P.stats_mfmas([rng(P.fragX(buf, 0, xi)) for xi in range(4)]): a(x)
        a(f"s_branch {l2}")
        a.label(l1)
        for x in P.stats_mfmas([rng(P.fragX(buf, 1, xi)) for xi in range(4)]): a(x)
        a.label(l2)
    block = make_block(a, P.RPM)
    cons_prologue(a, P, first)
    for x in reads(0): a(x)
    for x in slot_adv(P) + P.addr_update(): a(x)
    S = P.S
    npair = (S - 1)//2
    def step(cur, fill_extra=()):
        a("s_waitcnt lgkmcnt(0)")
        a("s_barrier")
        block(mfmas(cur), reads(1 - cur), slot_adv(P) + P.addr_update() + list(fill_extra))
        stats(cur)
    a(f"s_mov_b32 s{S_CNT}, {npair}")
    lp = a.new("cloop")
    if ALIGN: a.raw(f".p2align {ALIGN}")
    a.label(lp)
    step(0, [f"s_sub_u32 s{S_CNT}, s{S_CNT}, 1"])
    step(1)
    a(f"s_cmp_lg_u32 s{S_CNT}, 0")
    a(f"s_cbranch_scc1 {lp}")
    last = 0
    if (S - 1) % 2 == 1:
        step(0); last = 1
    a("s_waitcnt lgkmcnt(0)")
    block(mfmas(last), [])
    stats(last)
    cons_tail(a, P, first)

def ptr_wait(a):
    a("s_waitcnt lgkmcnt(0)")
    if PROFDBG: a(f"s_mov_b32 s{S_P0}, s98")
    srd(a, SRD_FLAG, ptr(KA_WS), WS_FLAG, 0x20000)

def cons_lane(a):
    a("v_and_b32 v3, 15, v2")
    a("v_lshrrev_b32 v4, 4, v2")

def x_addr_const(a, dst, rowbase_sgpr, rowbase_const=0):
    a("v_lshrrev_b32 v5, 1, v3")
    a("v_xor_b32 v5, v4, v5")
    a("v_lshlrev_b32 v5, 4, v5")
    a(f"v_lshl_add_u32 v{dst}, v3, 7, v5")
    if rowbase_sgpr is not None:
        a(f"s_lshl_b32 s{S_T0}, s{rowbase_sgpr}, 7")
        a(f"v_add_u32 v{dst}, s{S_T0}, v{dst}")
    if rowbase_const:
        a(f"v_add_u32 v{dst}, {rowbase_const*128}, v{dst}")

def w_addr_const(a, dst):
    a("v_lshrrev_b32 v5, 2, v3        ; r")
    a("v_lshl_add_u32 v6, v4, 3, v5   ; 8g+r")
    a("v_lshlrev_b32 v6, 7, v6")
    a("v_lshrrev_b32 v5, 1, v5        ; r>>1")
    a("v_and_b32 v7, 1, v4")
    a("v_lshl_or_b32 v5, v7, 1, v5    ; h")
    a("v_lshl_add_u32 v6, v5, 5, v6")
    a("v_and_b32 v5, 3, v3")
    a(f"v_lshl_add_u32 v{dst}, v5, 3, v6")

def t_write_addr(a, dst, base_const):
    a("v_lshrrev_b32 v5, 1, v4")
    a("v_and_b32 v6, 7, v3")
    a("v_xor_b32 v5, v5, v6")
    a("v_lshlrev_b32 v5, 4, v5")
    a("v_and_b32 v6, 1, v4")
    a("v_lshl_add_u32 v5, v6, 3, v5")
    a(f"v_lshl_add_u32 v{dst}, v3, 7, v5")
    a(f"v_add_u32 v{dst}, {base_const}, v{dst}")

def pad_init(a, P, row0, nzero_rows, ones_row):
    a("v_mov_b32 v12, 0"); a("v_mov_b32 v13, 0"); a("v_mov_b32 v14, 0"); a("v_mov_b32 v15, 0")
    a(f"v_mov_b32 v10, {hex(ONES)}")
    a("v_lshlrev_b32 v11, 4, v2        ; lane*16")
    for rep in range((P.NS + 3)//4):
        sk = a.new("pad")
        a(f"s_add_u32 s{S_T0}, s{S_W}, {4*rep}")
        a(f"s_cmp_ge_u32 s{S_T0}, {P.NS}")
        a(f"s_cbranch_scc1 {sk}")
        a(f"s_mul_i32 s{S_T0}, s{S_T0}, {P.STAGE}")
        nb = nzero_rows*128; off = 0
        while off < nb:
            lanes = min(64, (nb - off)//16)
            a(f"v_add_u32 v16, s{S_T0}, v11")
            if lanes < 64: set_exec(a, (1 << lanes) - 1)
            a(f"ds_write_b128 v16, v[12:15] offset:{row0*128 + off}")
            if lanes < 64: a("s_mov_b64 exec, -1")
            off += lanes*16
        if ones_row is not None:
            a(f"v_lshlrev_b32 v16, 2, v2")
            a(f"v_add_u32 v16, s{S_T0}, v16")
            set_exec(a, 0xffffffff)
            a(f"ds_write_b32 v16, v10 offset:{ones_row*128}")
            a("s_mov_b64 exec, -1")
        a.label(sk)

def store_pass(a, P, ny=0):
    a("v_lshrrev_b32 v3, 3, v2")
    a("v_and_b32 v4, 7, v2")
    a("v_xor_b32 v5, v4, v3")
    a("v_lshlrev_b32 v5, 4, v5")
    a("v_lshl_add_u32 v5, v3, 7, v5")
    a(f"s_lshl_b32 s{S_T0}, s{S_WAVE}, 10")
    a(f"v_add_u32 v5, s{S_T0}, v5")
    a(f"v_add_u32 v5, {P.TBASE}, v5")
    a(f"s_lshl_b32 s{S_T0}, s{S_WAVE}, 3")
    a(f"s_add_u32 s{S_T0}, s{S_T0}, s{S_R0}")
    a(f"v_add_u32 v6, s{S_T0}, v3")
    a(f"s_mov_b32 s{S_T1}, {P.ldo}")
    a(f"v_mul_lo_u32 v7, v6, s{S_T1}")
    a(f"s_lshl_b32 s{S_T0}, s{S_C0}, 1")
    a(f"v_lshl_add_u32 v7, v4, 4, v7")
    a(f"v_add_u32 v7, s{S_T0}, v7")
    a("v_mov_b32 v8, 0x80000000")
    P.ny = ny
    P.store_body(a)
    P.set_fidx(a)

def store_addr(a, k, dst, P, coloff=0):
    a(f"v_add_u32 v9, {64*k}, v6")
    a(f"v_cmp_gt_u32 vcc, s{S_REND}, v9")
    a(f"v_add_u32 v{dst}, {64*k*P.ldo + coloff}, v7")
    a("s_nop 0")
    a(f"v_cndmask_b32 v{dst}, v8, v{dst}, vcc")

class P1(Phase):
    key = 'p1'; kind = "p1"; NT = 255
    MV = 121; NC = 128; lda = 1280; ldb = 3840; ldo = 3840
    ABYTES = 16384; STAGE = 32768; NS = 4; S = 10
    NXMAX = 4; RPM = 1
    has_stage_work = False; has_e1 = True
    mfma_stats = True
    order2 = True
    GRAM = 96; SUMA = 112; VONES = 24
    modeS = True; NACC = 64
    def fragW(self, buf, kk, wi): return ('a', 64*buf + 16*kk + 4*wi)
    def fragX(self, buf, kk, xi):
        if buf == 0: return ('a', 32 + 16*kk + 4*xi)
        return ('v', 128 + 16*kk + 4*xi)
    scA = ""
    panel_coloff = [0, 128]; panel_srd = [SRD_B0, SRD_B0]
    LDS_ST = 131072; LDS_CS = 131072 + 2048
    TBASE = 2*32768
    rot = (5, 10, 2)
    Ains = [None, None, None, 'mask']
    Bins = [(0, 0), (0, 4), (1, 0), (1, 4)]
    def __init__(self):
        self.vXc, self.vWc = 8, 9
        self.vXa, self.vXb = 10, 11
        self.vW = [12, 13, 14, 15]
        self.xlist = [(self.vXa, self.vXb, 2048*x) for x in range(4)]
        self.wlist = [(self.vW[f], self.ABYTES) for f in range(4)]
        self.ACC = 32
        self.mf = [(x, f, self.ACC + 4*(4*x + f)) for x in range(4) for f in range(4)]
    def rot_start(self, a):
        if P1ROT == "lock":
            a(f"s_mov_b32 s{S_K}, 0"); return
        if P1ROT == "two":
            a(f"s_add_u32 s{S_K}, s{S_RT}, s{S_CT}")
            a(f"s_and_b32 s{S_K}, s{S_K}, 1")
            a(f"s_mul_i32 s{S_K}, s{S_K}, 5"); return
        if P1ROT == "ten":
            a(f"s_mul_i32 s{S_K}, s{S_RT}, 3")
            a(f"s_add_u32 s{S_K}, s{S_K}, s{S_CT}")
            divc(a, S_T0, S_K, 10)
            a(f"s_mul_i32 s{S_T0}, s{S_T0}, 10")
            a(f"s_sub_u32 s{S_K}, s{S_K}, s{S_T0}"); return
        a(f"s_add_u32 s{S_K}, s{S_RT}, s{S_CT}")
        divc(a, S_T0, S_K, 5)
        a(f"s_mul_i32 s{S_T0}, s{S_T0}, 5")
        a(f"s_sub_u32 s{S_K}, s{S_K}, s{S_T0}")
        a(f"s_lshl_b32 s{S_K}, s{S_K}, 1")
    def l2_prep(self, a): l2_setup(a, "rm", 250, 64, KA_WO, D*D*2, 1280, D)
    def mid_prefetch(self, a, s):
        if s == 8: return l2_issue(a, KA_WO, 1280, D)
    def mask_setup(self, a):
        a(f"s_cmp_eq_u32 s{S_W}, 3")
        a(f"s_cselect_b32 s{S_MASK}, 0xff, -1")
        a(f"s_cselect_b32 s{S_MASK+1}, 0, -1")
    def build_srds(self, a, role):
        if role == 'l':
            srd(a, SRD_A, ptr(KA_X), 0, S_TOK*D*2)
            srd(a, SRD_B0, ptr(KA_WQKV), 0, D*NQKV*2)
        srd(a, SRD_OUT, ptr(KA_WS), WS_QKV, S_TOK*NQKV*2)
    def set_fidx(self, a):
        a(f"s_mul_i32 s{S_FIDX}, s{S_RT}, 15")
        a(f"s_add_u32 s{S_FIDX}, s{S_FIDX}, s{S_CT}")
        a(f"s_lshl_b32 s{S_FIDX}, s{S_FIDX}, 7")
    def loader_post_first(self, a):
        pad_init(a, self, 121, 6, 127)
        return 0
    def stats_mfmas(self, xregs):
        m = []
        for x in range(4):
            xa = xregs[x]
            g = self.GRAM + 4*x; sm = self.SUMA + 4*x
            m.append(f"v_mfma_f32_16x16x32_bf16 v[{g}:{g+3}], {xa}, {xa}, v[{g}:{g+3}]")
            m.append(f"v_mfma_f32_16x16x32_bf16 v[{sm}:{sm+3}], v[{self.VONES}:{self.VONES+3}], {xa}, v[{sm}:{sm+3}]")
        return m
    def consumer_setup(self, a):
        cons_lane(a)
        a(f"s_lshr_b32 s{S_I}, s{S_WAVE}, 1")
        a(f"s_and_b32 s{S_J}, s{S_WAVE}, 1")
        a(f"s_lshl_b32 s{S_T1}, s{S_I}, 6")
        x_addr_const(a, self.vXc, S_T1)
        w_addr_const(a, self.vWc)
        a(f"s_lshl_b32 s{S_T0}, s{S_J}, 13")
        a(f"v_add_u32 v{self.vWc}, s{S_T0}, v{self.vWc}")
        for r in range(4): a(f"v_mov_b32 v{self.VONES+r}, {hex(ONES)}")
        for r in range(32): a(f"v_mov_b32 v{self.GRAM+r}, 0")
        a(f"s_lshl_b32 s{S_T0}, s{S_J}, 8       ; j*64*4")
        a(f"v_lshlrev_b32 v16, 4, v4            ; g*16 bytes")
        a(f"v_add_u32 v16, s{S_T0}, v16")
        a(f"v_add_u32 v16, {self.LDS_CS}, v16")
        t_write_addr(a, 17, self.TBASE)
        a(f"s_lshl_b32 s{S_T0}, s{S_WAVE}, 13")
        a(f"v_add_u32 v17, s{S_T0}, v17")
        for f in range(1, 4): a(f"v_xor_b32 v{17+f}, {32*f}, v17")
        a(f"s_lshl_b32 s{S_T0}, s{S_I}, 9       ; i*64*8")
        a(f"s_lshl_b32 s{S_T1}, s{S_J}, 10      ; j*128*8")
        a(f"s_add_u32 s{S_T1}, s{S_T1}, s{S_T0}")
        a(f"v_lshlrev_b32 v7, 3, v3")
        a(f"v_add_u32 v21, s{S_T1}, v7")
        a(f"v_add_u32 v21, {self.LDS_ST}, v21")
        a(f"v_add_u32 v22, s{S_T0}, v7")
        a(f"v_add_u32 v22, {self.LDS_ST}, v22")
        a("v_lshrrev_b32 v5, 3, v2             ; r8")
        a("v_and_b32 v6, 7, v2                 ; c")
        a("v_xor_b32 v7, v6, v5")
        a("v_lshlrev_b32 v7, 4, v7")
        a("v_lshl_add_u32 v23, v5, 7, v7")
        a(f"s_lshl_b32 s{S_T0}, s{S_WAVE}, 13")
        a(f"s_add_u32 s{S_T0}, s{S_T0}, {self.TBASE}")
        a(f"v_add_u32 v23, s{S_T0}, v23")
        a(f"s_lshl_b32 s{S_T0}, s{S_I}, 6")
        a(f"s_add_u32 s{S_T0}, s{S_T0}, s{S_R0}")
        a(f"v_add_u32 v28, s{S_T0}, v5")
        a(f"s_mov_b32 s{S_T1}, 3840")
        a(f"v_mul_lo_u32 v28, v28, s{S_T1}")
        a("v_lshl_add_u32 v28, v6, 4, v28")
        a(f"s_lshl_b32 s{S_T0}, s{S_J}, 6")
        a(f"s_add_u32 s{S_T0}, s{S_T0}, s{S_C0}")
        a(f"s_lshl_b32 s{S_T0}, s{S_T0}, 1")
        a(f"v_add_u32 v28, s{S_T0}, v28")
    def addr_update(self):
        r = [f"v_add_u32 v{self.vXa}, s{S_SLOT}, v{self.vXc}",
             f"v_add_u32 v{self.vW[0]}, s{S_SLOT}, v{self.vWc}",
             f"v_xor_b32 v{self.vXb}, 64, v{self.vXa}"]
        for f in range(1, len(self.vW)):
            r.append(f"v_xor_b32 v{self.vW[f]}, {32*f}, v{self.vW[0]}")
        return r
    stream_epi = True
    def epilogue(self, a):
        nocs = a.new("nocs")
        a(f"s_cmp_eq_u32 s{S_I}, 1")
        a(f"s_cbranch_scc0 {nocs}")
        set_exec(a, 0x8000800080008000)
        for f in range(4):
            acc = self.ACC + 4*(4*3 + f)
            a(f"ds_write_b128 v16, v[{acc}:{acc+3}] offset:{64*f}")
        a("s_mov_b64 exec, -1")
        a.label(nocs)
        for i_, m_ in enumerate((0x22222222, 0x44444444, 0x88888888)):
            a(f"s_mov_b32 s{80+2*i_}, {hex(m_)}"); a(f"s_mov_b32 s{81+2*i_}, {hex(m_)}")
        for x in range(4):
            g = self.GRAM + 4*x
            a(f"v_cndmask_b32 v{g+1}, v{g}, v{g+1}, s[80:81]")
            a(f"v_cndmask_b32 v{g+1}, v{g+1}, v{g+2}, s[82:83]")
            a(f"v_cndmask_b32 v{g+1}, v{g+1}, v{g+3}, s[84:85]")
            a(f"v_mov_b32 v{g}, v{self.SUMA+4*x}           ; sum")
        set_exec(a, 0xF | (0xF << 20) | (0xF << 40) | (0xF << 60))
        for x in range(4):
            g = self.GRAM + 4*x
            a(f"ds_write_b64 v21, v[{g}:{g+1}] offset:{128*x}")
        a("s_mov_b64 exec, -1")
        a("s_waitcnt lgkmcnt(0)")
        a("s_barrier      ; E1")
        CS = 128; ST = 144
        for x in range(4):
            a(f"ds_read_b64 v[{ST+2*x}:{ST+2*x+1}], v22 offset:{128*x}")
            a(f"ds_read_b64 v[{96+2*x}:{97+2*x}], v22 offset:{1024 + 128*x}")
        for f in range(4):
            a(f"ds_read_b128 v[{CS+4*f}:{CS+4*f+3}], v16 offset:{64*f}")
        a("s_waitcnt lgkmcnt(4)")
        for x in range(4):
            st = ST + 2*x
            a(f"v_pk_add_f32 v[{st}:{st+1}], v[{st}:{st+1}], v[{96+2*x}:{97+2*x}]")
            a(f"v_mul_f32 v{st}, {hex(f2u(1.0/D))}, v{st}          ; mean")
            a(f"v_mul_f32 v{st+1}, {hex(f2u(1.0/D))}, v{st+1}")
            a(f"v_fma_f32 v{st+1}, -v{st}, v{st}, v{st+1}      ; var")
            a(f"v_add_f32 v{st+1}, {hex(f2u(1e-5))}, v{st+1}")
            a(f"v_rsq_f32 v{st+1}, v{st+1}")
        a("s_waitcnt lgkmcnt(0)")
        RB = [96, 104]
        def stores(x):
            rb = RB[x & 1]
            for u in range(2):
                a(f"v_add_u32 v{29+u}, {(16*x + 8*u)*3840}, v28")
            for u in range(2):
                if x == 3 and u == 1:
                    a(f"s_cmp_eq_u32 s{S_I}, 1")
                    a("s_cselect_b32 exec_lo, 0xff, -1")
                    a("s_cselect_b32 exec_hi, 0, -1")
                a(f"buffer_store_dwordx4 v[{rb+4*u}:{rb+4*u+3}], v{29+u}, s[{SRD_OUT}:{SRD_OUT+3}], 0 offen{SC1}")
            if x == 3: a("s_mov_b64 exec, -1")
        for x in range(4):
            st = ST + 2*x
            for f in range(4):
                acc = self.ACC + 4*(4*x + f)
                for hh in (0, 2):
                    a(f"v_pk_fma_f32 v[{acc+hh}:{acc+hh+1}], v[{CS+4*f+hh}:{CS+4*f+hh+1}], v[{st}:{st+1}], v[{acc+hh}:{acc+hh+1}] op_sel_hi:[1,0,1] neg_lo:[0,1,0] neg_hi:[0,1,0]")
                for hh in (0, 2):
                    a(f"v_pk_mul_f32 v[{acc+hh}:{acc+hh+1}], v[{acc+hh}:{acc+hh+1}], v[{st}:{st+1}] op_sel:[0,1] op_sel_hi:[1,1]")
                a(f"v_cvt_pk_bf16_f32 v{acc}, v{acc}, v{acc+1}")
                a(f"v_cvt_pk_bf16_f32 v{acc+1}, v{acc+2}, v{acc+3}")
                a(f"ds_write_b64 v{17+f}, v[{acc}:{acc+1}] offset:{2048*x}")
            rb = RB[x & 1]
            if x >= 1:
                a("s_waitcnt lgkmcnt(4)")
                stores(x - 1)
            for u in range(2):
                a(f"ds_read_b128 v[{rb+4*u}:{rb+4*u+3}], v23 offset:{2048*x + 1024*u}")
        a("s_waitcnt lgkmcnt(0)")
        stores(3)


class P1F(Phase):
    key = 'p1'; kind = "p1f"; NT = 256
    MV = 64; NC = 80; lda = 1280; ldb = 3840
    ABYTES = 10240; STAGE = 40960; NS = 3; S = 10
    NXMAX = 5; RPM = 1
    has_e1 = True; fused = True; custom_B = True; order2 = True
    scA = ""
    Ains = [None, None, 'skip']
    Bins = [dict(lds=10240 + 4096*t) for t in range(7)] + [dict(lds=10240 + 4096*7, skip=2)]
    panel_srd = [SRD_B0]
    LDS_STP = 122880
    QT = 40960; QROW = 488
    OT = 81920; OROW = 176
    ACC = 32; GRAM = 112; SUMA = 132; VONES = 152
    mfma_stats4 = True
    def __init__(self):
        self.vXc = 8; self.vXa, self.vXb = 9, 10
        self.vWc = [11, 12, 13, 14]; self.vW = [15, 16, 17, 18]
        self.xlist = [(self.vXa, self.vXb, 2048*x) for x in range(5)]
        self.wlist = None
        self.mf = [(x, j, self.ACC + 4*(4*x + j)) for x in range(5) for j in range(4)]
    def rot_start(self, a):
        a(f"s_add_u32 s{S_K}, s{S_RT}, s{S_CT}")
        divc(a, S_T0, S_K, 5)
        a(f"s_mul_i32 s{S_T0}, s{S_T0}, 5")
        a(f"s_sub_u32 s{S_K}, s{S_K}, s{S_T0}")
        a(f"s_lshl_b32 s{S_K}, s{S_K}, 1")
    def tile_consts(self, a):
        a(f"s_lshl_b32 s{S_R0}, s{S_RT}, 6")
        a(f"s_sub_u32 s{S_R0}, s{S_R0}, 14")
        a(f"s_mul_i32 s{S_C0}, s{S_CT}, 160")
    def mask_setup(self, a):
        a(f"s_cmp_eq_u32 s{S_W}, 0")
        a(f"s_cselect_b32 s{S_MASK+1}, -1, 0xffff")
        a(f"s_cmp_lt_u32 s{S_W}, 2")
        a(f"s_cselect_b32 s{S_MASK}, -1, 0")
        a(f"s_cselect_b32 s{S_MASK+1}, s{S_MASK+1}, 0")
    def custom_B_setup(self, a, vb):
        a(f"s_lshl_b32 s{S_T0}, s{S_W}, 6")
        a(f"v_add_u32 v8, s{S_T0}, v2            ; c0")
        vdiv(a, 9, 8, 10, 256)
        a("v_mul_u32_u24 v10, 10, v9")
        a("v_sub_u32 v10, v8, v10                ; ch")
        a("v_mul_u32_u24 v11, 3840, v9")
        a("v_lshl_add_u32 v11, v10, 4, v11")
        a(f"v_add_u32 v{vb}, s{S_C0}, v11         ; voff t=0")
        for t in range(1, 8):
            a("v_add_u32 v10, 6, v10")
            a("v_add_u32 v9, 25, v9")
            a("v_cmp_le_u32 vcc, 10, v10")
            a(f"v_add_u32 v{vb+t}, {25*3840 + 96}, v{vb+t-1}")
            a("v_subrev_u32 v12, 10, v10")
            a("v_cndmask_b32 v10, v10, v12, vcc")
            a("v_addc_co_u32 v9, vcc, 0, v9, vcc") if False else None
            a(f"v_add_u32 v12, {3840 - 160}, v{vb+t}")
            a(f"v_cndmask_b32 v{vb+t}, v{vb+t}, v12, vcc")
            a("v_add_u32 v12, 1, v9")
            a("v_cndmask_b32 v9, v9, v12, vcc")
            a("v_cmp_le_u32 vcc, 64, v9")
            a(f"v_add_u32 v12, {(1280 - 64*3840) & 0xffffffff}, v{vb+t}")
            a("v_subrev_u32 v13, 64, v9")
            a(f"v_cndmask_b32 v{vb+t}, v{vb+t}, v12, vcc")
            a("v_cndmask_b32 v9, v9, v13, vcc")
    def build_srds(self, a, role):
        if role == 'l':
            srd(a, SRD_A, ptr(KA_X), 0, S_TOK*D*2)
            srd(a, SRD_B0, ptr(KA_WQKV), 0, D*NQKV*2)
        srd(a, SRD_OUT, ptr(KA_WS), WS_O, 0x280000)
    def set_fidx(self, a):
        a(f"s_lshl_b32 s{S_FIDX}, s{S_RT}, 3")
        a(f"s_add_u32 s{S_FIDX}, s{S_FIDX}, s{S_CT}")
        a(f"s_lshl_b32 s{S_FIDX}, s{S_FIDX}, 7")
        a(f"s_add_u32 s{S_FIDX}, s{S_FIDX}, 0x8000")
    def l2_prep(self, a): l2_setup(a, "rm", 250, 64, KA_WO, D*D*2, 1280, D)
    def mid_prefetch(self, a, s):
        if s == 9: return l2_issue(a, KA_WO, 1280, D)
    def loader_post_first(self, a):
        pad_init(a, self, 78, 1, 79)
        self.att_setup(a)
        return 0
    def att_setup(self, a):
        QT, QROW = self.QT, self.QROW
        a("v_and_b32 v3, 3, v2             ; i")
        a("v_bfe_u32 v4, v2, 2, 2          ; head")
        a("v_lshrrev_b32 v5, 4, v2         ; grp")
        a("v_lshrrev_b32 v6, 1, v5")
        a("v_lshlrev_b32 v6, 3, v6")
        a("v_and_b32 v7, 1, v5")
        a("v_add_u32 v6, v6, v7")
        a(f"s_lshl_b32 s{S_T0}, s{S_W}, 4")
        a(f"v_add_u32 v6, s{S_T0}, v6")
        a("v_lshlrev_b32 v7, 1, v3")
        a("v_add_u32 v7, v6, v7            ; rb + 2i")
        a(f"v_mul_u32_u24 v8, {QROW}, v7")
        a("v_mul_u32_u24 v9, 40, v4")
        a("v_add_u32 v8, v8, v9")
        a(f"v_add_u32 v144, {QT + 14*QROW}, v8")
        a(f"v_add_u32 v145, {QT + 160}, v8")
        a("v_cmp_eq_u32 vcc, 3, v3")
        a(f"v_mov_b32 v10, {16*QROW}")
        a(f"v_mov_b32 v11, {14*QROW}")
        a("v_cndmask_b32 v10, v10, v11, vcc")
        a("v_add_u32 v146, v145, v10")
        a(f"v_mul_u32_u24 v12, {self.OROW}, v7")
        a("v_add_u32 v12, v12, v9")
        a(f"v_add_u32 v118, {self.OT}, v12")
        a("v_lshlrev_b32 v12, 1, v4               ; 2r")
        a("v_add_u32 v12, v6, v12")
        a(f"v_mul_u32_u24 v12, {QROW}, v12")
        a("v_mul_u32_u24 v13, 40, v3")
        a("v_add_u32 v12, v12, v13")
        a(f"v_add_u32 v147, {QT + 320}, v12")
        a("v_cmp_eq_u32 vcc, 3, v4")
        a(f"v_mov_b32 v10, {16*QROW}")
        a("s_nop 0")
        a("v_cndmask_b32 v10, v10, v11, vcc")
        a("v_add_u32 v119, v147, v10")
        a(f"v_mov_b32 v12, {hex(f2u(-1e30))}")
        a("v_mov_b32 v13, 0")
        a(f"v_add_u32 v14, s{S_R0}, v6")
        for m in range(12):
            a(f"v_sub_u32 v15, {m}, v3")
            a("v_cmp_gt_u32 vcc, 8, v15")
            a(f"v_add_u32 v16, {2*m}, v14")
            a("v_cmp_le_i32 s[4:5], 0, v16")
            a("s_nop 1")
            a("s_and_b64 vcc, vcc, s[4:5]")
            a(f"v_cndmask_b32 v{120+m}, v12, v13, vcc")
        self.store_addr_setup(a)
    def store_addr_setup(self, a, regs=(148, 149, 156, 157), tmp=3):
        lm, lt, gm, gt = regs
        t0, t1, t2 = tmp, tmp + 1, tmp + 2
        a(f"v_lshrrev_b32 v{t0}, 3, v2             ; r8")
        a(f"v_and_b32 v{t1}, 7, v2                 ; p")
        a(f"s_lshl_b32 s{S_T0}, s{S_WAVE}, 3")
        a(f"v_add_u32 v{t2}, s{S_T0}, v{t0}")
        a(f"v_mul_u32_u24 v{lm}, {self.OROW}, v{t2}")
        a(f"v_lshl_add_u32 v{lm}, v{t1}, 4, v{lm}")
        a(f"v_add_u32 v{lm}, {self.OT}, v{lm}")
        a(f"s_add_u32 s{S_T0}, s{S_R0}, 14          ; T0")
        a(f"v_add_u32 v{gm}, s{S_T0}, v{t2}")
        a(f"v_lshlrev_b32 v{gm}, 10, v{gm}")
        a(f"v_lshl_add_u32 v{gm}, v{t1}, 4, v{gm}")
        a(f"s_lshl_b32 s{S_T1}, s{S_CT}, 7          ; hg*128")
        a(f"v_add_u32 v{gm}, s{S_T1}, v{gm}")
        a(f"v_lshrrev_b32 v{t0}, 1, v{t1}")
        a(f"v_lshl_add_u32 v{t0}, v{t2}, 2, v{t0}   ; token")
        a(f"v_mul_u32_u24 v{lt}, {self.OROW}, v{t0}")
        a(f"v_and_b32 v{t0}, 1, v{t1}")
        a(f"v_lshl_add_u32 v{lt}, v{t0}, 4, v{lt}")
        a(f"v_add_u32 v{lt}, {self.OT + 128}, v{lt}")
        a(f"s_lshr_b32 s{S_T0}, s{S_T0}, 2          ; T0/4")
        a(f"v_add_u32 v{gt}, s{S_T0}, v{t2}")
        a(f"v_lshlrev_b32 v{gt}, 10, v{gt}")
        a(f"v_lshl_add_u32 v{gt}, v{t1}, 4, v{gt}")
        a(f"s_add_u32 s{S_T1}, s{S_T1}, 0x200000")
        a(f"v_add_u32 v{gt}, s{S_T1}, v{gt}")
    def o_stores(self, a):
        a(f"ds_read_b128 v[20:23], v148")
        sk = a.new("ost")
        a(f"s_cmp_ge_u32 s{S_WAVE}, 2")
        a(f"s_cbranch_scc1 {sk}")
        a(f"ds_read_b128 v[24:27], v149")
        a("s_waitcnt lgkmcnt(0)")
        a(f"buffer_store_dwordx4 v[24:27], v157, s[{SRD_OUT}:{SRD_OUT+3}], 0 offen{OSC}")
        a.label(sk)
        a("s_waitcnt lgkmcnt(0)")
        a(f"buffer_store_dwordx4 v[20:23], v156, s[{SRD_OUT}:{SRD_OUT+3}], 0 offen{OSC}")
    def loader_fused_tail(self, a):
        a("s_barrier      ; E1")
        a("s_barrier")
        Q = 16; KR = 32; VR = 62; SC = 92; BIAS = 120; PB = 104
        QROW = self.QROW
        for dg in range(5):
            a(f"ds_read_b64 v[{Q+2*dg}:{Q+2*dg+1}], v144 offset:{8*dg}")
        for kb in range(3):
            for dg in range(5):
                r = KR + 2*(5*kb + dg)
                if kb < 2: a(f"ds_read_b64 v[{r}:{r+1}], v145 offset:{8*QROW*kb + 8*dg}")
                else: a(f"ds_read_b64 v[{r}:{r+1}], v146 offset:{8*dg}")
        scale = (D // 32) ** -0.5
        c1 = scale * 1.4426950408889634
        a(f"s_mov_b32 s{S_T2}, {hex(f2u(c1))}")
        a("s_waitcnt lgkmcnt(0)")
        for kb in range(3):
            for dg in range(5):
                r = VR + 2*(5*kb + dg)
                if kb < 2: a(f"ds_read_b64_tr_b16 v[{r}:{r+1}], v147 offset:{8*QROW*kb + 8*dg}")
                else: a(f"ds_read_b64_tr_b16 v[{r}:{r+1}], v119 offset:{8*dg}")
        for dg in range(5):
            for kb in range(3):
                r = KR + 2*(5*kb + dg); sc = SC + 4*kb
                c = "0" if dg == 0 else f"v[{sc}:{sc+3}]"
                a(f"v_mfma_f32_4x4x4_16b_bf16 v[{sc}:{sc+3}], v[{r}:{r+1}], v[{Q+2*dg}:{Q+2*dg+1}], {c}")
        a("s_nop 4")
        for m in range(12):
            a(f"v_fma_f32 v{SC+m}, v{SC+m}, s{S_T2}, v{BIAS+m}")
        a(f"v_max3_f32 v14, v{SC}, v{SC+1}, v{SC+2}")
        a(f"v_max3_f32 v15, v{SC+3}, v{SC+4}, v{SC+5}")
        a(f"v_max3_f32 v14, v14, v{SC+6}, v{SC+7}")
        a(f"v_max3_f32 v15, v15, v{SC+8}, v{SC+9}")
        a(f"v_max3_f32 v14, v14, v{SC+10}, v{SC+11}")
        a("v_max_f32 v14, v14, v15")
        for m in range(12):
            a(f"v_sub_f32 v{SC+m}, v{SC+m}, v14")
        for m in range(12):
            a(f"v_exp_f32 v{SC+m}, v{SC+m}")
        a(f"v_add_f32 v14, v{SC}, v{SC+1}")
        a(f"v_add_f32 v15, v{SC+2}, v{SC+3}")
        for m in range(4, 12, 2):
            a(f"v_add_f32 v14, v14, v{SC+m}")
            a(f"v_add_f32 v15, v15, v{SC+m+1}")
        a("v_add_f32 v14, v14, v15")
        a("v_rcp_f32 v14, v14")
        a("s_nop 0")
        for m in range(12):
            a(f"v_mul_f32 v{SC+m}, v{SC+m}, v14")
        for m in range(0, 12, 2):
            a(f"v_cvt_pk_bf16_f32 v{PB+m//2}, v{SC+m}, v{SC+m+1}")
        a("s_waitcnt lgkmcnt(0)")
        a("s_nop 0")
        OA = 32
        for kb in range(3):
            for dg in range(5):
                r = VR + 2*(5*kb + dg); o = OA + 4*dg
                c = "0" if kb == 0 else f"v[{o}:{o+3}]"
                a(f"v_mfma_f32_4x4x4_16b_bf16 v[{o}:{o+3}], v[{r}:{r+1}], v[{PB+2*kb}:{PB+2*kb+1}], {c}")
        a("s_nop 5")
        for dg in range(5):
            o = OA + 4*dg
            a(f"v_cvt_pk_bf16_f32 v{Q+2*dg}, v{o}, v{o+1}")
            a(f"v_cvt_pk_bf16_f32 v{Q+2*dg+1}, v{o+2}, v{o+3}")
            a(f"ds_write_b64 v118, v[{Q+2*dg}:{Q+2*dg+1}] offset:{8*dg}")
        a("s_waitcnt lgkmcnt(0)")
        a("s_barrier")
        self.o_stores(a)
        self.set_fidx(a)
    def consumer_setup(self, a):
        cons_lane(a)
        x_addr_const(a, self.vXc, None)
        a("v_lshrrev_b32 v5, 2, v3        ; r")
        a("v_lshl_add_u32 v5, v4, 3, v5   ; 8g + r")
        a("v_mul_u32_u24 v5, 160, v5")
        a("v_and_b32 v6, 3, v3")
        a("v_lshl_add_u32 v5, v6, 3, v5")
        for j in range(4):
            a(f"s_lshl_b32 s{S_T0}, s{S_WAVE}, 2")
            a(f"s_add_u32 s{S_T0}, s{S_T0}, {j}")
            a(f"s_min_u32 s{S_T0}, s{S_T0}, 14")
            divc(a, S_T1, S_T0, 5)
            a(f"s_mul_i32 s{S_T2}, s{S_T1}, 5")
            a(f"s_sub_u32 s{S_T2}, s{S_T0}, s{S_T2}       ; f%5")
            a(f"s_lshl_b32 s{S_T2}, s{S_T2}, 5")
            a(f"s_mul_i32 s{S_T3}, s{S_T1}, 10240")
            a(f"s_add_u32 s{S_T3}, s{S_T3}, s{S_T2}")
            a(f"s_add_u32 s{S_T3}, s{S_T3}, {self.ABYTES}")
            a(f"v_add_u32 v{self.vWc[j]}, s{S_T3}, v5")
            a(f"s_mul_i32 s{S_T3}, s{S_T1}, 160")
            a(f"s_add_u32 s{S_T3}, s{S_T3}, s{S_T2}")
            a(f"s_add_u32 s{S_T3}, s{S_T3}, {self.QT}")
            a(f"v_mul_u32_u24 v6, {self.QROW}, v3")
            a("v_lshl_add_u32 v6, v4, 3, v6")
            a(f"v_add_u32 v{20+j}, s{S_T3}, v6")
        for r in range(4): a(f"v_mov_b32 v{self.VONES+r}, {hex(ONES)}")
        for r in range(40): a(f"v_mov_b32 v{self.GRAM+r}, 0")
        a("v_lshlrev_b32 v25, 3, v3")
        a(f"v_add_u32 v25, {self.LDS_STP}, v25")
        a(f"s_mul_i32 s{S_T0}, s{S_WAVE}, 640")
        a(f"v_add_u32 v24, s{S_T0}, v25")
        a(f"s_mov_b32 s{S_N1}, 0")
        self.store_addr_setup_c(a)
        NW = 4
        self.wlist = [(self.vW[j], 0) for j in range(4)]
        self.wstep = (5120, 640)
    def store_addr_setup_c(self, a):
        self.store_addr_setup(a, regs=(26, 27, 28, 29), tmp=5)
    def addr_update(self):
        r = [f"v_add_u32 v{self.vXa}, s{S_SLOT}, v{self.vXc}"]
        r += [f"v_add_u32 v{self.vW[j]}, s{S_SLOT}, v{self.vWc[j]}" for j in range(4)]
        r += [f"v_xor_b32 v{self.vXb}, 64, v{self.vXa}"]
        return r
    def stats_mfmas(self, xregs):
        m = []
        for x in range(5):
            xa = xregs[x]
            g = self.GRAM + 4*x; sm = self.SUMA + 4*x
            m.append(f"v_mfma_f32_16x16x32_bf16 v[{g}:{g+3}], {xa}, {xa}, v[{g}:{g+3}]")
            m.append(f"v_mfma_f32_16x16x32_bf16 v[{sm}:{sm+3}], v[{self.VONES}:{self.VONES+3}], {xa}, v[{sm}:{sm+3}]")
        return m
    def epilogue(self, a):
        for i_, m_ in enumerate((0x22222222, 0x44444444, 0x88888888)):
            a(f"s_mov_b32 s{80+2*i_}, {hex(m_)}"); a(f"s_mov_b32 s{81+2*i_}, {hex(m_)}")
        for x in range(5):
            g = self.GRAM + 4*x
            a(f"v_cndmask_b32 v{g+1}, v{g}, v{g+1}, s[80:81]")
            a(f"v_cndmask_b32 v{g+1}, v{g+1}, v{g+2}, s[82:83]")
            a(f"v_cndmask_b32 v{g+1}, v{g+1}, v{g+3}, s[84:85]")
            a(f"v_mov_b32 v{g}, v{self.SUMA+4*x}")
        set_exec(a, 0xF | (0xF << 20) | (0xF << 40) | (0xF << 60))
        for x in range(5):
            g = self.GRAM + 4*x
            a(f"ds_write_b64 v24, v[{g}:{g+1}] offset:{128*x}")
        a("s_mov_b64 exec, -1")
        CS = 132
        for j in range(4):
            acc = self.ACC + 4*(4*4 + j)
            for r in range(4):
                a(f"v_mov_b32_dpp v{CS+4*j+r}, v{acc+r} row_newbcast:15 row_mask:0xf bank_mask:0xf")
        a("s_waitcnt lgkmcnt(0)")
        a("s_barrier      ; E1")
        ST = 8
        TM = 112
        for x in range(5):
            for wv in range(4):
                if x < 5:
                    pass
        for x in range(5):
            base = TM + 4*x if False else None
        regs = {0: 112, 1: 120, 2: 112, 3: 120, 4: 112}
        def rd(x):
            for wv in range(4):
                r = regs[x] + 2*wv
                a(f"ds_read_b64 v[{r}:{r+1}], v25 offset:{640*wv + 128*x}")
        def fin(x):
            r = regs[x]; st = ST + 2*x
            a(f"v_pk_add_f32 v[{r}:{r+1}], v[{r}:{r+1}], v[{r+2}:{r+3}]")
            a(f"v_pk_add_f32 v[{r+4}:{r+5}], v[{r+4}:{r+5}], v[{r+6}:{r+7}]")
            a(f"v_pk_add_f32 v[{st}:{st+1}], v[{r}:{r+1}], v[{r+4}:{r+5}]")
            a(f"v_mul_f32 v{st}, {hex(f2u(1.0/D))}, v{st}")
            a(f"v_mul_f32 v{st+1}, {hex(f2u(1.0/D))}, v{st+1}")
            a(f"v_fma_f32 v{st+1}, -v{st}, v{st}, v{st+1}")
            a(f"v_add_f32 v{st+1}, {hex(f2u(1e-5))}, v{st+1}")
            a(f"v_rsq_f32 v{st+1}, v{st+1}")
        rd(0); rd(1)
        a("s_waitcnt lgkmcnt(4)"); fin(0); rd(2)
        a("s_waitcnt lgkmcnt(4)"); fin(1); rd(3)
        a("s_waitcnt lgkmcnt(4)"); fin(2); rd(4)
        a("s_waitcnt lgkmcnt(4)"); fin(3)
        a("s_waitcnt lgkmcnt(0)"); fin(4)
        a("s_nop 0")
        for x in range(5):
            st = ST + 2*x
            for j in range(4):
                acc = self.ACC + 4*(4*x + j)
                for hh in (0, 2):
                    a(f"v_pk_fma_f32 v[{acc+hh}:{acc+hh+1}], v[{CS+4*j+hh}:{CS+4*j+hh+1}], v[{st}:{st+1}], v[{acc+hh}:{acc+hh+1}] op_sel_hi:[1,0,1] neg_lo:[0,1,0] neg_hi:[0,1,0]")
                for hh in (0, 2):
                    a(f"v_pk_mul_f32 v[{acc+hh}:{acc+hh+1}], v[{acc+hh}:{acc+hh+1}], v[{st}:{st+1}] op_sel:[0,1] op_sel_hi:[1,1]")
                a(f"v_cvt_pk_bf16_f32 v{acc}, v{acc}, v{acc+1}")
                a(f"v_cvt_pk_bf16_f32 v{acc+1}, v{acc+2}, v{acc+3}")
                a(f"ds_write_b64 v{20+j}, v[{acc}:{acc+1}] offset:{16*x*self.QROW}")
        a("s_waitcnt lgkmcnt(0)")
        a("s_barrier")
        a("s_barrier")
        a(f"ds_read_b128 v[32:35], v26")
        sk = a.new("ost")
        a(f"s_cmp_ge_u32 s{S_WAVE}, 2")
        a(f"s_cbranch_scc1 {sk}")
        a(f"ds_read_b128 v[36:39], v27")
        a("s_waitcnt lgkmcnt(0)")
        a(f"buffer_store_dwordx4 v[36:39], v29, s[{SRD_OUT}:{SRD_OUT+3}], 0 offen{OSC}")
        a.label(sk)
        a("s_waitcnt lgkmcnt(0)")
        a(f"buffer_store_dwordx4 v[32:35], v28, s[{SRD_OUT}:{SRD_OUT+3}], 0 offen{OSC}")
    stream_epi = True

class P24(Phase):
    kind = "rm"; NT = 250
    MV = 82; NC = 64; ldb = 1280; ldo = 1280
    ABYTES = 12288; STAGE = 20480; NS = 7
    NXMAX = 3; RPM = 2
    modeS = True; NACC = 24
    def fragW(self, buf, kk, wi): return ('a', 40*buf + 8*kk + 4*wi)
    def fragX(self, buf, kk, xi): return ('a', 40*buf + 16 + 12*kk + 4*xi)
    scA = SC1
    panel_coloff = [0]; panel_srd = [SRD_B0]
    TBASE = 0
    Ains = [None, None, 'skip']
    Bins = [(0, 0), (0, 4)]
    prefetchB = 7
    def __init__(self, which):
        self.which = which
        if which == 2:
            self.key = 'p2'; self.lda = 1024 if FUSE else 1280; self.S = 10; self.rot = (4, 13, 2)
            self.oprime = FUSE
        else:
            self.key = 'p4'; self.lda = 3456; self.S = 27; self.rot = (11, 36, 2)
        assert (self.S - 1) % self.NS != 0
        self.vXc, self.vWc = 8, 9
        self.vXa, self.vXb = 10, 11
        self.vW = [12, 13]
        self.xlist = [(self.vXa, self.vXb, 2048*x) for x in range(3)]
        self.wlist = [(self.vW[f], self.ABYTES) for f in range(2)]
        self.ACC = 32
        self.mf = [(x, f, self.ACC + 4*(2*x + f)) for x in range(3) for f in range(2)]
    def l2_prep(self, a):
        if self.which == 2: l2_setup(a, "p3", 243, 64, KA_WU, D*F*2, 3456, D)
    def mid_prefetch(self, a, s):
        if self.which == 2 and s == 8: return l2_issue(a, KA_WU, 3456, D)
    def mask_setup(self, a):
        a(f"s_cmp_lt_u32 s{S_W}, 2")
        a(f"s_cselect_b32 s{S_MASK}, -1, 0xffff")
        a(f"s_cselect_b32 s{S_MASK+1}, -1, 0")
        a(f"s_cmp_eq_u32 s{S_W}, 3")
        a(f"s_cselect_b32 s{S_MASK}, 0, s{S_MASK}")
    def build_srds(self, a, role):
        if self.which == 2:
            if role == 'l':
                srd(a, SRD_A, ptr(KA_WS), WS_O, 0x280000 if FUSE else S_TOK*D*2)
                srd(a, SRD_B0, ptr(KA_WO), 0, D*D*2)
            srd(a, SRD_OUT, ptr(KA_WS), WS_H, S_TOK*D*2)
            srd(a, SRD_AUX, ptr(KA_X), 0, S_TOK*D*2)
            srd(a, SRD_ST, ptr(KA_WS), WS_ST, 250*1536)
        else:
            if role == 'l':
                srd(a, SRD_A, ptr(KA_WS), WS_HH, S_TOK*F*2)
                srd(a, SRD_B0, ptr(KA_WD), 0, F*D*2)
            srd(a, SRD_OUT, ptr(KA_OUT), 0, S_TOK*D*2)
            srd(a, SRD_AUX, ptr(KA_WS), WS_H, S_TOK*D*2)
    def dep_range(self, a):
        if self.which == 2:
            sh = 6 if FUSE else 4
            a(f"s_lshr_b32 s{S_T0}, s{S_R0}, {sh}")
            a(f"s_sub_u32 s{S_T1}, s{S_REND}, 1")
            a(f"s_lshr_b32 s{S_T1}, s{S_T1}, {sh}")
        else:
            sdiv(a, S_T0, S_R0, 228, 2100)
            a(f"s_sub_u32 s{S_T1}, s{S_REND}, 1")
            sdiv(a, S_T1, S_T1, 228, 2100)
    def deps_first(self, a):
        first_ks(a, self)
        if self.which == 2 and FUSE:
            for src, dst in ((S_K, S_T2), (S_KB, S_T3)):
                a(f"s_lshl_b32 s{dst}, 1, s{src}")
                a(f"s_sub_u32 s{S_T4}, s{src}, 8")
                a(f"s_lshl_b32 s{S_T4}, s{S_T4}, 2")
                a(f"s_lshl_b32 s{S_T4}, 15, s{S_T4}")
                a(f"s_cmp_ge_u32 s{src}, 8")
                a(f"s_cselect_b32 s{dst}, s{S_T4}, s{dst}")
            a(f"s_or_b32 s{S_T2}, s{S_T2}, s{S_T3}")
            self.dep_range(a)
            skip = a.new("pollskip")
            a(f"s_cmp_eq_u32 s{S_WAVE}, 0")
            a(f"s_cbranch_scc0 {skip}")
            a("v_and_b32 v141, 7, v2                 ; group j")
            a(f"v_lshrrev_b32 v142, v141, s{S_T2}") if False else None
            a(f"v_mov_b32 v142, s{S_T2}")
            a("v_lshrrev_b32 v142, v141, v142")
            a("v_and_b32 v142, 1, v142")
            a("v_lshrrev_b32 v140, 3, v2")
            a(f"v_add_u32 v140, s{S_T0}, v140")
            a(f"v_cmp_ge_u32 vcc, s{S_T1}, v140")
            a("v_cmp_eq_u32 s[82:83], 1, v142")
            a("v_lshl_add_u32 v140, v140, 3, v141")
            a("v_lshlrev_b32 v140, 7, v140")
            a("v_add_u32 v140, 0x8000, v140")
            a("s_and_b64 vcc, vcc, s[82:83]")
            poll_core(a)
            a.label(skip)
            return
        if self.which == 2:
            for r in (S_K, S_KB):
                a(f"s_cmp_ge_u32 s{r}, 5")
                a(f"s_cselect_b32 s{r}, 1, 0")
        self.dep_range(a)
        poll_first(a, S_T0, S_T1, 2 if self.which == 2 else 27, S_K, S_KB, 0x8000 if self.which == 2 else 0x18000)
    def deps(self, a):
        W = (8 if FUSE else 2) if self.which == 2 else 27
        self.dep_range(a)
        a(f"s_mul_i32 s{S_T0}, s{S_T0}, {W}")
        a(f"s_add_u32 s{S_T1}, s{S_T1}, 1")
        a(f"s_mul_i32 s{S_T1}, s{S_T1}, {W}")
        poll(a, S_T0, S_T1, 0x8000 if self.which == 2 else 0x18000)
    def set_fidx(self, a):
        if self.which == 2:
            a(f"s_mul_i32 s{S_FIDX}, s{S_RT}, 10")
            a(f"s_add_u32 s{S_FIDX}, s{S_FIDX}, s{S_CT}")
            a(f"s_lshl_b32 s{S_FIDX}, s{S_FIDX}, 7")
            a(f"s_add_u32 s{S_FIDX}, s{S_FIDX}, 0x10000")
        else:
            a(f"s_mov_b32 s{S_FIDX}, -1")
    def loader_post_first(self, a):
        pad_init(a, self, 82, 14, None)
        return 0
    def consumer_setup(self, a):
        cons_lane(a)
        a(f"s_lshr_b32 s{S_I}, s{S_WAVE}, 1")
        a(f"s_and_b32 s{S_J}, s{S_WAVE}, 1")
        a(f"s_mul_i32 s{S_T1}, s{S_I}, 48")
        x_addr_const(a, self.vXc, S_T1)
        w_addr_const(a, self.vWc)
        a(f"s_lshl_b32 s{S_T0}, s{S_J}, 6      ; f0 = 2j -> xor 64j")
        a(f"v_xor_b32 v{self.vWc}, s{S_T0}, v{self.vWc}")
        t_write_addr(a, 17, self.TBASE)
        a(f"s_mul_i32 s{S_T0}, s{S_I}, {48*128}")
        a(f"v_add_u32 v17, s{S_T0}, v17")
        a(f"s_lshl_b32 s{S_T0}, s{S_J}, 6")
        a(f"v_xor_b32 v17, s{S_T0}, v17        ; f0 = 2j")
        a(f"v_xor_b32 v18, 32, v17")
    def addr_update(self):
        return P1.addr_update(self)
    def epilogue(self, a):
        for x in range(3):
            for f in range(2):
                acc = self.ACC + 4*(2*x + f)
                a(f"v_cvt_pk_bf16_f32 v{acc}, v{acc}, v{acc+1}")
                a(f"v_cvt_pk_bf16_f32 v{acc+1}, v{acc+2}, v{acc+3}")
                a(f"ds_write_b64 v{17+f}, v[{acc}:{acc+1}] offset:{2048*x}")
    RES = 100
    early_pre = True
    def early_setup(self, a):
        a("v_lshrrev_b32 v112, 3, v2")
        a("v_and_b32 v113, 7, v2")
        a("v_xor_b32 v108, v113, v112")
        a("v_lshlrev_b32 v108, 4, v108")
        a("v_lshl_add_u32 v108, v112, 7, v108")
        a(f"s_lshl_b32 s{S_T0}, s{S_WAVE}, 10")
        a(f"s_add_u32 s{S_T0}, s{S_T0}, {self.TBASE}")
        a(f"v_add_u32 v108, s{S_T0}, v108")
        a(f"s_lshl_b32 s{S_T0}, s{S_WAVE}, 3")
        a(f"s_add_u32 s{S_T0}, s{S_T0}, s{S_R0}")
        a(f"v_add_u32 v111, s{S_T0}, v112")
        a("v_mul_u32_u24 v109, 1280, v111")
        a(f"s_lshl_b32 s{S_T0}, s{S_C0}, 1")
        a("v_lshl_add_u32 v109, v113, 4, v109")
        a(f"v_add_u32 v109, s{S_T0}, v109")
        a(f"v_add_u32 v110, {64*1280}, v109")
        a("v_mov_b32 v114, 0x80000000")
        a(f"v_cmp_gt_u32 vcc, s{S_REND}, v111")
        a(f"v_add_u32 v115, 64, v111")
        a("s_nop 0")
        a("v_cndmask_b32 v109, v114, v109, vcc")
        a(f"v_cmp_gt_u32 vcc, s{S_REND}, v115")
        a("s_nop 1")
        a("v_cndmask_b32 v110, v114, v110, vcc")
        sc = SC1 if self.which == 4 else ""
        a(f"buffer_load_dwordx4 v[{self.RES}:{self.RES+3}], v109, s[{SRD_AUX}:{SRD_AUX+3}], 0 offen{sc}")
        a(f"buffer_load_dwordx4 v[{self.RES+4}:{self.RES+7}], v110, s[{SRD_AUX}:{SRD_AUX+3}], 0 offen{sc}")
        return 2
    def store_fast(self, a):
        sdone = a.new("sdone")
        sc = SC1 if self.which == 2 else ""
        for k in range(2):
            a(f"ds_read_b128 v[{16+4*k}:{19+4*k}], v108 offset:{k*8192}")
        if self.which == 2:
            a(f"v_mov_b32 v26, {hex(ONES)}")
        a(f"s_waitcnt vmcnt(0) lgkmcnt(0)")
        for k in range(2):
            if k == 1:
                a(f"s_cmp_ge_u32 s{S_WAVE}, 3")
                a(f"s_cbranch_scc1 {sdone}")
            T = 16 + 4*k; R = self.RES + 4*k
            for d in range(4):
                a(f"v_lshlrev_b32 v28, 16, v{T+d}")
                a(f"v_and_b32 v29, 0xffff0000, v{T+d}")
                a(f"v_lshlrev_b32 v30, 16, v{R+d}")
                a(f"v_and_b32 v31, 0xffff0000, v{R+d}")
                a(f"v_pk_add_f32 v[28:29], v[28:29], v[30:31]")
                a(f"v_cvt_pk_bf16_f32 v{T+d}, v28, v29")
            a(f"buffer_store_dwordx4 v[{T}:{T+3}], v{109+k}, s[{SRD_OUT}:{SRD_OUT+3}], 0 offen{sc}")
            if self.which == 2:
                a("v_mov_b32 v24, 0"); a("v_mov_b32 v25, 0")
                a("s_nop 0")
                for d in range(4):
                    a(f"v_dot2_f32_bf16 v24, v{T+d}, v26, v24")
                    a(f"v_dot2_f32_bf16 v25, v{T+d}, v{T+d}, v25")
                a("s_nop 2")
                for dpp in ("quad_perm:[1,0,3,2]", "quad_perm:[2,3,0,1]", "row_half_mirror"):
                    a(f"v_add_f32_dpp v24, v24, v24 {dpp} row_mask:0xf bank_mask:0xf")
                    a(f"v_add_f32_dpp v25, v25, v25 {dpp} row_mask:0xf bank_mask:0xf")
                    a("s_nop 0")
                a(f"s_mul_i32 s{S_T0}, s{S_RT}, 10")
                a(f"s_add_u32 s{S_T0}, s{S_T0}, s{S_CT}")
                a(f"s_mul_i32 s{S_T0}, s{S_T0}, 1536")
                a(f"s_lshl_b32 s{S_T1}, s{S_WAVE}, 7")
                a(f"s_add_u32 s{S_T0}, s{S_T0}, s{S_T1}")
                a(f"v_lshrrev_b32 v9, 3, v2")
                a(f"v_lshlrev_b32 v9, 4, v9")
                a(f"v_add_u32 v9, s{S_T0}, v9")
                a("v_mov_b32 v12, v24"); a("v_mov_b32 v13, v25"); a("v_mov_b32 v14, 0"); a("v_mov_b32 v15, 0")
                set_exec(a, 0x0101010101010101)
                a(f"buffer_store_dwordx4 v[12:15], v9, s[{SRD_ST}:{SRD_ST+3}], 0 offen offset:{1024*k}{SC1}")
                a("s_mov_b64 exec, -1")
        a.label(sdone)

class P3(Phase):
    key = 'p3'; kind = "p3"; NT = 243
    MV = 228; NC = 64; lda = 1280; ldb = 3456; ldo = 3456
    ABYTES = 30720; STAGE = 47104; NS = 3; S = 10
    NXMAX = 8; RPM = 1
    has_e1 = True
    scA = SC1
    panel_coloff = [0, 0]; panel_srd = [SRD_B0, SRD_B1]
    LDS_ST = 47104*3; LDS_CS = 47104*3 + 1920
    TBASE = 47104
    rot = (4, 13, 2)
    Ains = [None]*7 + ['skip']
    Bins = [(0, 0), (0, 4), (1, 0), (1, 4)]
    prefetchB = 3
    def __init__(self):
        self.vXc, self.vXsc, self.vWc = 8, 9, 10
        self.vXa, self.vXb, self.vXsa, self.vXsb = 11, 12, 13, 14
        self.vW = [15, 16]
        self.xlist = [(self.vXa, self.vXb, 2048*x) for x in range(7)] + [(self.vXsa, self.vXsb, 0)]
        G, U = self.ABYTES, self.ABYTES + 8192
        self.wlist = [(self.vW[0], G), (self.vW[0], U), (self.vW[1], G), (self.vW[1], U)]
        self.ACC = 32
        self.mf = []
        acc = self.ACC
        self.accmap = {}
        for x in range(8):
            for wi in range(4):
                if x == 7 and wi >= 2: continue
                self.mf.append((x, wi, acc)); self.accmap[(x, wi)] = acc; acc += 4
        assert acc == 32 + 120
    @property
    def unroll(self): return l2_on(KA_WD)
    def l2_prep(self, a): l2_setup(a, "rm", 250, 64, KA_WD, F*D*2, 1280, F)
    def mid_prefetch(self, a, s):
        if s == 3: return l2_issue(a, KA_WD, 1280, F, 0, 9)
        if s == 6: return l2_issue(a, KA_WD, 1280, F, 9, None)
        if s == 9: return self.stats_loads(a)
    def mask_setup(self, a):
        a(f"s_cmp_eq_u32 s{S_W}, 0")
        a(f"s_cselect_b32 s{S_MASK}, -1, 0")
        a(f"s_mov_b32 s{S_MASK+1}, 0")
    def build_srds(self, a, role):
        if role == 'l':
            srd(a, SRD_A, ptr(KA_WS), WS_H, S_TOK*D*2)
            srd(a, SRD_B0, ptr(KA_WG), 0, D*F*2)
            srd(a, SRD_B1, ptr(KA_WU), 0, D*F*2)
            srd(a, SRD_ST, ptr(KA_WS), WS_ST, 250*1536)
        srd(a, SRD_OUT, ptr(KA_WS), WS_HH, S_TOK*F*2)
    def dep_range(self, a):
        sdiv(a, S_T0, S_R0, 82, 2100)
        a(f"s_sub_u32 s{S_T1}, s{S_REND}, 1")
        sdiv(a, S_T1, S_T1, 82, 2100)
    def deps_first(self, a):
        first_ks(a, self)
        self.dep_range(a)
        poll_first(a, S_T0, S_T1, 10, S_K, S_KB, 0x10000)
    def deps(self, a):
        self.dep_range(a)
        a(f"s_mul_i32 s{S_T0}, s{S_T0}, 10")
        a(f"s_add_u32 s{S_T1}, s{S_T1}, 1")
        a(f"s_mul_i32 s{S_T1}, s{S_T1}, 10")
        poll(a, S_T0, S_T1, 0x10000)
    def set_fidx(self, a):
        a(f"s_mul_i32 s{S_FIDX}, s{S_RT}, 27")
        a(f"s_add_u32 s{S_FIDX}, s{S_FIDX}, s{S_CT}")
        a(f"s_lshl_b32 s{S_FIDX}, s{S_FIDX}, 7")
        a(f"s_add_u32 s{S_FIDX}, s{S_FIDX}, 0x18000")
    def loader_post_first(self, a):
        pad_init(a, self, 228, 11, 239)
        return 0
    def stats_loads(self, a):
        a(f"s_lshl_b32 s{S_T0}, s{S_W}, 6")
        a(f"v_add_u32 v12, s{S_T0}, v2")
        a(f"v_add_u32 v13, s{S_R0}, v12")
        vdiv(a, 15, 13, 82, 2300)
        a("v_mul_u32_u24 v16, 82, v15")
        a("v_sub_u32 v16, v13, v16")
        a("v_mul_u32_u24 v15, 15360, v15")
        a("v_lshl_add_u32 v13, v16, 4, v15")
        a(f"v_add_u32 v15, s{S_R0}, v12")
        a(f"v_cmp_gt_u32 vcc, s{S_REND}, v15")
        a("v_mov_b32 v14, 0x80000000")
        a("s_nop 0")
        a("v_cndmask_b32 v13, v14, v13, vcc")
        for c in range(10):
            a(f"s_mov_b32 s{S_T0}, {c*1536}")
            a(f"buffer_load_dwordx2 v[{64+2*c}:{65+2*c}], v13, s[{SRD_ST}:{SRD_ST+3}], s{S_T0} offen{SC1}")
        return 10
    def loader_final(self, a):
        a("s_waitcnt vmcnt(0)")
        for c in range(1, 10):
            a(f"v_pk_add_f32 v[64:65], v[64:65], v[{64+2*c}:{65+2*c}]")
        a(f"v_mul_f32 v64, {hex(f2u(1.0/D))}, v64")
        a(f"v_mul_f32 v65, {hex(f2u(1.0/D))}, v65")
        a("v_fma_f32 v65, -v64, v64, v65")
        a(f"v_add_f32 v65, {hex(f2u(1e-5))}, v65")
        a("v_rsq_f32 v65, v65")
        a("v_lshlrev_b32 v12, 3, v12")
        a(f"v_add_u32 v12, {self.LDS_ST}, v12")
        a(f"s_cmp_eq_u32 s{S_W}, 3")
        a(f"s_cselect_b32 exec_hi, 0xffff, -1")
        a("ds_write_b64 v12, v[64:65]")
        a("s_mov_b64 exec, -1")
    def consumer_setup(self, a):
        cons_lane(a)
        a(f"s_lshr_b32 s{S_I}, s{S_WAVE}, 1")
        a(f"s_and_b32 s{S_J}, s{S_WAVE}, 1")
        a(f"s_lshl_b32 s{S_T1}, s{S_I}, 7")
        x_addr_const(a, self.vXc, S_T1)
        x_addr_const(a, self.vXsc, None, 112)
        w_addr_const(a, self.vWc)
        a(f"s_lshl_b32 s{S_T0}, s{S_J}, 1")
        a(f"s_add_u32 s{S_T0}, s{S_T0}, s{S_I}")
        a(f"s_lshl_b32 s{S_T0}, s{S_T0}, 5")
        a(f"v_xor_b32 v{self.vWc}, s{S_T0}, v{self.vWc}")
        a(f"s_lshl_b32 s{S_T0}, s{S_J}, 1")
        a(f"s_add_u32 s{S_T2}, s{S_T0}, s{S_I}     ; f0")
        a(f"s_lshl_b32 s{S_T0}, s{S_T2}, 6")
        a(f"v_lshlrev_b32 v24, 4, v4")
        a(f"v_add_u32 v24, s{S_T0}, v24")
        a(f"v_add_u32 v24, {self.LDS_CS}, v24")
        a(f"v_xor_b32 v25, 64, v24")
        t_write_addr(a, 26, self.TBASE)
        a(f"s_lshl_b32 s{S_T0}, s{S_T2}, 5")
        a(f"v_xor_b32 v26, s{S_T0}, v26")
        a(f"v_add_u32 v28, {112*128}, v26")
        a(f"s_lshl_b32 s{S_T0}, s{S_I}, 14")
        a(f"v_add_u32 v26, s{S_T0}, v26")
        a(f"v_xor_b32 v27, 32, v26")
        a(f"s_lshl_b32 s{S_T0}, s{S_I}, 10         ; 128*i*8")
        a(f"v_lshlrev_b32 v29, 3, v3")
        a(f"v_add_u32 v30, {self.LDS_ST + 112*8}, v29")
        a(f"v_add_u32 v29, s{S_T0}, v29")
        a(f"v_add_u32 v29, {self.LDS_ST}, v29")
    def addr_update(self):
        return [f"v_add_u32 v{self.vXa}, s{S_SLOT}, v{self.vXc}",
                f"v_add_u32 v{self.vW[0]}, s{S_SLOT}, v{self.vWc}",
                f"v_add_u32 v{self.vXsa}, s{S_SLOT}, v{self.vXsc}",
                f"v_xor_b32 v{self.vXb}, 64, v{self.vXa}",
                f"v_xor_b32 v{self.vW[1]}, 32, v{self.vW[0]}",
                f"v_xor_b32 v{self.vXsb}, 64, v{self.vXsa}"]
    chunk_epi = True
    def epilogue(self, a):
        nocs = a.new("nocs")
        assert self.LDS_CS % 128 == 0
        a(f"s_cmp_eq_u32 s{S_I}, 1")
        a(f"s_cbranch_scc0 {nocs}")
        set_exec(a, 0x8000800080008000)
        for wi, (areg, poff) in enumerate([(24, 0), (24, 256), (25, 0), (25, 256)]):
            acc = self.accmap[(6, wi)]
            a(f"ds_write_b128 v{areg}, v[{acc}:{acc+3}] offset:{poff}")
        a("s_mov_b64 exec, -1")
        a.label(nocs)
        a("s_waitcnt lgkmcnt(0)")
        a("s_barrier      ; E1")
        CSR = [8, 12, 152, 156]
        for wi, (areg, poff) in enumerate([(24, 0), (24, 256), (25, 0), (25, 256)]):
            a(f"ds_read_b128 v[{CSR[wi]}:{CSR[wi]+3}], v{areg} offset:{poff}")
        STR = [16, 18, 20, 22]
        def rdst(x):
            st = STR[x & 3]
            if x < 7: a(f"ds_read_b64 v[{st}:{st+1}], v29 offset:{128*x}")
            else: a(f"ds_read_b64 v[{st}:{st+1}], v30")
        for x in range(4): rdst(x)
        a("s_waitcnt lgkmcnt(0)")
        for x in range(8):
            st = STR[x & 3]
            npair = 1 if x == 7 else 2
            if x == 4:
                a("s_waitcnt lgkmcnt(0)")
                a("s_barrier      ; E2a")
            a(f"v_mul_f32 v{st+1}, v{st+1}, v{st+1}")
            for p in range(npair):
                g = self.accmap[(x, 2*p)]; u = self.accmap[(x, 2*p+1)]
                cg = CSR[2*p]; cu = CSR[2*p+1]
                for hh in (0, 2):
                    a(f"v_pk_fma_f32 v[{g+hh}:{g+hh+1}], v[{cg+hh}:{cg+hh+1}], v[{st}:{st+1}], v[{g+hh}:{g+hh+1}] op_sel_hi:[1,0,1] neg_lo:[0,1,0] neg_hi:[0,1,0]")
                    a(f"v_pk_fma_f32 v[{u+hh}:{u+hh+1}], v[{cu+hh}:{cu+hh+1}], v[{st}:{st+1}], v[{u+hh}:{u+hh+1}] op_sel_hi:[1,0,1] neg_lo:[0,1,0] neg_hi:[0,1,0]")
                for hh in (0, 2):
                    a(f"v_pk_mul_f32 v[{g+hh}:{g+hh+1}], v[{g+hh}:{g+hh+1}], v[{u+hh}:{u+hh+1}]")
                for hh in (0, 2):
                    a(f"v_pk_mul_f32 v[{g+hh}:{g+hh+1}], v[{g+hh}:{g+hh+1}], v[{st}:{st+1}] op_sel:[0,1] op_sel_hi:[1,1]")
                a(f"v_cvt_pk_bf16_f32 v{g}, v{g}, v{g+1}")
                a(f"v_cvt_pk_bf16_f32 v{g+1}, v{g+2}, v{g+3}")
                if x < 7: a(f"ds_write_b64 v{26+p}, v[{g}:{g+1}] offset:{2048*x}")
                else: a(f"ds_write_b64 v28, v[{g}:{g+1}]")
            if x < 4: rdst(x + 4)
        a("s_waitcnt lgkmcnt(0)")
        a("s_barrier      ; E2b")
    def loader_store_setup(self, a):
        a("v_lshrrev_b32 v3, 3, v2")
        a("v_and_b32 v4, 7, v2")
        a("v_xor_b32 v5, v4, v3")
        a("v_lshlrev_b32 v5, 4, v5")
        a("v_lshl_add_u32 v50, v3, 7, v5")
        a(f"s_lshl_b32 s{S_T0}, s{S_W}, 10")
        a(f"s_add_u32 s{S_T0}, s{S_T0}, {self.TBASE}")
        a(f"v_add_u32 v50, s{S_T0}, v50")
        a(f"s_lshl_b32 s{S_T0}, s{S_W}, 3")
        a(f"s_add_u32 s{S_T0}, s{S_T0}, s{S_R0}")
        a(f"v_add_u32 v51, s{S_T0}, v3")
        a(f"s_mov_b32 s{S_T1}, 3456")
        a(f"v_mul_lo_u32 v52, v51, s{S_T1}")
        a(f"s_lshl_b32 s{S_T0}, s{S_C0}, 1")
        a("v_lshl_add_u32 v52, v4, 4, v52")
        a(f"v_add_u32 v52, s{S_T0}, v52")
    def loader_stores(self, a, units):
        for n, u0 in enumerate(units):
            a(f"ds_read_b128 v[{56+4*n}:{59+4*n}], v50 offset:{u0*1024}")
        for n, u0 in enumerate(units):
            a(f"v_add_u32 v{53 if n & 1 else 54}, {u0*8*3456}, v52")
            special = (u0 + 3)*8 + 7 >= self.MV
            if special:
                a(f"v_add_u32 v55, {u0*8}, v51")
                a(f"s_add_u32 s{S_T0}, s{S_R0}, {self.MV}")
                a(f"v_cmp_gt_u32 vcc, s{S_T0}, v55")
                a(f"s_and_saveexec_b64 s[80:81], vcc")
            a(f"s_waitcnt lgkmcnt({len(units) - 1 - n})")
            a(f"buffer_store_dwordx4 v[{56+4*n}:{59+4*n}], v{53 if n & 1 else 54}, s[{SRD_OUT}:{SRD_OUT+3}], 0 offen{SC1}")
            if special: a("s_mov_b64 exec, s[80:81]")
    def loader_epilogue(self, a):
        a("s_barrier      ; E2a")
        self.loader_stores(a, [0, 4, 16, 20])
        a("s_barrier      ; E2b")
        self.loader_stores(a, [8, 12, 24, 28])

ROWB = 656
LQ, LK, LV, LO = 16384, 16384 + 16*ROWB, 16384 + 46*ROWB, 0
WPF = True
P1ROT = 'latin2'
ROTOFF = set()
WPF_OFF = {KA_WD}
def l2_on(kptr): return WPF and kptr not in WPF_OFF
def l2_setup(a, kind, NT, NC, kptr, nbytes, ldb, K):
    if not l2_on(kptr): return
    R3 = ((K + 2)//3 + 7)//8*8
    a(f"s_mov_b32 s4, s{S_RT}"); a(f"s_mov_b32 s5, s{S_CT}")
    tile_map(a, NT, kind)
    divc(a, S_T0, S_RT, 3)
    a(f"s_mul_i32 s{S_T0}, s{S_T0}, 3")
    a(f"s_sub_u32 s{S_T0}, s{S_RT}, s{S_T0}")
    a(f"s_mul_i32 s{S_T0}, s{S_T0}, {R3}")
    a(f"s_lshl_b32 s{S_T1}, s{S_W}, 3")
    a(f"s_add_u32 s{S_T0}, s{S_T0}, s{S_T1}")
    a("v_lshrrev_b32 v150, 3, v2")
    a(f"v_add_u32 v150, s{S_T0}, v150")
    a(f"s_mov_b32 s{S_T1}, {ldb}")
    a(f"v_mul_lo_u32 v150, v150, s{S_T1}")
    a("v_and_b32 v151, 7, v2")
    a("v_lshl_add_u32 v150, v151, 4, v150")
    a(f"s_mul_i32 s{S_T1}, s{S_CT}, {NC*2}")
    a(f"v_add_u32 v150, s{S_T1}, v150")
    a(f"s_cmp_eq_u32 s{S_VALID}, 0")
    a(f"s_cselect_b32 s{S_T1}, 0x80000000, 0")
    a(f"v_or_b32 v150, s{S_T1}, v150")
    srd(a, 80, ptr(kptr), 0, nbytes)
    a(f"s_mov_b32 s{S_RT}, s4"); a(f"s_mov_b32 s{S_CT}, s5")
def l2_issue(a, kptr, ldb, K, i0=0, i1=None):
    if not l2_on(kptr): return 0
    R3 = ((K + 2)//3 + 7)//8*8
    n = (R3//8 + 3)//4
    if i1 is None: i1 = n
    for i in range(i0, min(i1, n)):
        a(f"buffer_load_dwordx4 v[152:155], v150, s[80:83], 0 offen")
        if i + 1 < n: a(f"v_add_u32 v150, {32*ldb}, v150")
    return min(i1, n) - i0

def att_phase(a, role):
    a(f"s_lshl_b32 s{S_R0}, s{S_RT}, 4       ; T0")
    srd(a, SRD_A, ptr(KA_WS), WS_QKV, S_TOK*NQKV*2)
    srd(a, SRD_OUT, ptr(KA_WS), WS_O, S_TOK*D*2)
    NI = 49
    nper = (NI + 7)//8
    a(f"s_mov_b32 s{S_T2}, 3840")
    a(f"s_mul_i32 s{S_T3}, s{S_CT}, 640")
    for j in range(nper):
        r = 32 + j
        a(f"s_add_u32 s{S_T0}, s{S_WAVE}, {8*j}")
        a(f"s_lshl_b32 s{S_T0}, s{S_T0}, 6")
        a(f"v_add_u32 v3, s{S_T0}, v2           ; c")
        vdiv(a, 4, 3, 41, 64*56)
        a("v_mul_u32_u24 v5, 41, v4")
        a("v_sub_u32 v5, v3, v5                  ; kap")
        a("v_cmp_le_u32 vcc, 16, v4")
        a("v_mov_b32 v8, 0x80000000")
        a("s_nop 0")
        a("v_cndmask_b32 v6, 0, 1, vcc")
        a("v_cmp_le_u32 vcc, 46, v4")
        a("s_nop 1")
        a("v_cndmask_b32 v7, 0, 1, vcc")
        a("v_add_u32 v6, v6, v7                  ; seg")
        a("v_mul_u32_u24 v7, 30, v6")
        a("v_sub_u32 v7, v4, v7")
        a(f"v_add_u32 v7, s{S_R0}, v7            ; token")
        a(f"v_mul_lo_u32 v7, v7, s{S_T2}")
        a("v_mul_u32_u24 v6, 1280, v6")
        a("v_add_u32 v7, v7, v6")
        a("v_lshl_add_u32 v7, v5, 4, v7")
        a(f"v_add_u32 v7, s{S_T3}, v7")
        a("v_cmp_gt_u32 vcc, 40, v5")
        a("s_nop 1")
        a("v_cndmask_b32 v7, v8, v7, vcc")
        a("v_cmp_gt_u32 vcc, 76, v4")
        a("s_nop 1")
        a(f"v_cndmask_b32 v{r}, v8, v7, vcc")
    if role == 'c':
        a(f"s_lshr_b32 s{S_T0}, s{S_WAVE}, 1")
        a(f"s_lshl_b32 s{S_T0}, s{S_T0}, 3")
        a(f"s_and_b32 s{S_T1}, s{S_WAVE}, 1")
        a(f"s_add_u32 s{S_I}, s{S_T0}, s{S_T1}      ; rb")
        a("v_and_b32 v3, 3, v2             ; i")
        a("v_lshrrev_b32 v4, 2, v2         ; b")
        a("v_lshlrev_b32 v5, 1, v3")
        a(f"v_add_u32 v5, s{S_I}, v5        ; rb + 2i")
        a(f"v_mul_u32_u24 v5, {ROWB}, v5")
        a("v_mul_u32_u24 v6, 40, v4")
        a("v_add_u32 v5, v5, v6")
        a(f"v_add_u32 v144, {LQ}, v5")
        a(f"v_add_u32 v145, {LK}, v5")
        a("v_cmp_eq_u32 vcc, 3, v3")
        a(f"v_mov_b32 v7, {16*ROWB}")
        a(f"v_mov_b32 v8, {14*ROWB}")
        a("v_cndmask_b32 v7, v7, v8, vcc")
        a("v_add_u32 v146, v145, v7")
        a("v_bfe_u32 v9, v2, 2, 2            ; r")
        a("v_lshlrev_b32 v10, 1, v9")
        a(f"v_add_u32 v10, s{S_I}, v10")
        a(f"v_mul_u32_u24 v10, {ROWB}, v10")
        a("v_lshrrev_b32 v11, 4, v2")
        a("v_lshl_add_u32 v11, v11, 2, v3     ; 4G + c")
        a("v_mul_u32_u24 v11, 40, v11")
        a("v_add_u32 v10, v10, v11")
        a(f"v_add_u32 v147, {LV}, v10")
        a("v_cmp_eq_u32 vcc, 3, v9")
        a(f"v_mov_b32 v7, {16*ROWB}")
        a("s_nop 0")
        a("v_cndmask_b32 v7, v7, v8, vcc")
        a("v_add_u32 v119, v147, v7")
        a(f"v_mov_b32 v12, {hex(f2u(-1e30))}")
        a("v_mov_b32 v13, 0")
        a(f"s_add_u32 s{S_T2}, s{S_R0}, s{S_I}")
        a(f"s_sub_u32 s{S_T2}, s{S_T2}, 14        ; pos(0)")
        for m in range(12):
            a(f"v_sub_u32 v14, {m}, v3            ; m - i")
            a("v_cmp_gt_u32 vcc, 8, v14")
            a(f"s_add_u32 s{S_T0}, s{S_T2}, {2*m}")
            a(f"s_cmp_ge_i32 s{S_T0}, 0")
            a("s_cselect_b64 s[80:81], -1, 0")
            a("s_and_b64 vcc, vcc, s[80:81]")
            a(f"v_cndmask_b32 v{120+m}, v12, v13, vcc")
    for j in range(2):
        a(f"s_add_u32 s{S_T0}, s{S_WAVE}, {8*j}")
        a(f"s_lshl_b32 s{S_T0}, s{S_T0}, 6")
        a(f"v_add_u32 v3, s{S_T0}, v2")
        vdiv(a, 4, 3, 40, 1024)
        a("v_mul_u32_u24 v5, 40, v4")
        a("v_sub_u32 v5, v3, v5")
        a(f"v_mul_u32_u24 v6, {ROWB}, v4")
        a(f"v_lshl_add_u32 v{148+j}, v5, 4, v6")
        a(f"v_add_u32 v4, s{S_R0}, v4")
        a("v_mul_u32_u24 v4, 1280, v4")
        a("v_lshl_add_u32 v4, v5, 4, v4")
        a(f"v_add_u32 v{156+j}, s{S_T3}, v4")
    if role == 'c':
        a(f"s_sub_u32 s{S_T0}, s{S_R0}, 14")
        a(f"s_max_i32 s{S_T0}, s{S_T0}, 0")
        sdiv(a, S_T0, S_T0, 121, 2100)
        a(f"s_add_u32 s{S_T1}, s{S_R0}, 15")
        sdiv(a, S_T1, S_T1, 121, 2100)
        skp = a.new("attpoll")
        a(f"s_cmp_eq_u32 s{S_WAVE}, 0")
        a(f"s_cbranch_scc0 {skp}")
        vdiv(a, 140, 2, 9, 64)
        a("v_mul_u32_u24 v141, 9, v140")
        a("v_sub_u32 v141, v2, v141                  ; j = l%9")
        vdiv(a, 142, 141, 3, 16)
        a("v_mul_u32_u24 v143, 3, v142")
        a("v_sub_u32 v143, v141, v143                ; j%3")
        a("v_mul_u32_u24 v142, 5, v142")
        a("v_add_u32 v142, v142, v143")
        a(f"s_lshl_b32 s{S_T2}, s{S_CT}, 1")
        a(f"v_add_u32 v142, s{S_T2}, v142            ; ct")
        a(f"v_add_u32 v140, s{S_T0}, v140            ; rt")
        a(f"v_cmp_ge_u32 vcc, s{S_T1}, v140")
        a("v_mul_u32_u24 v140, 15, v140")
        a("v_add_u32 v140, v140, v142")
        a("v_lshlrev_b32 v140, 7, v140")
        poll_core(a)
        a.label(skp)
        a("s_barrier      ; B_dep")
    else:
        l2_setup(a, "p3", 243, 64, KA_WG, D*F*2, 3456, D)
        a("s_barrier      ; B_dep")
    stamp(a, 0)
    for j in range(nper):
        sk = None
        if 8*j + 7 >= NI:
            sk = a.new("attsk")
            a(f"s_cmp_ge_u32 s{S_WAVE}, {NI - 8*j}")
            a(f"s_cbranch_scc1 {sk}")
        a(f"s_add_u32 s{S_T0}, s{S_WAVE}, {8*j}")
        a(f"s_lshl_b32 s{S_T0}, s{S_T0}, 10")
        a(f"s_add_u32 m0, s{S_T0}, {LQ}")
        a("s_nop 0")
        a(f"buffer_load_dwordx4 v{32+j}, s[{SRD_A}:{SRD_A+3}], 0 offen{SC1} lds")
        if sk: a.label(sk)
    a("s_waitcnt vmcnt(0)")
    a("s_barrier")
    stamp(a, 1)
    if role == 'l': l2_issue(a, KA_WG, 3456, D)
    if role == 'c':
        Q = 16; KR = 32; VR = 62; SC = 92; BIAS = 120; PB = 104; O = 4
        for dg in range(5):
            a(f"ds_read_b64 v[{Q+2*dg}:{Q+2*dg+1}], v144 offset:{8*dg}")
        for kb in range(3):
            for dg in range(5):
                r = KR + 2*(5*kb + dg)
                if kb < 2: a(f"ds_read_b64 v[{r}:{r+1}], v145 offset:{8*ROWB*kb + 8*dg}")
                else: a(f"ds_read_b64 v[{r}:{r+1}], v146 offset:{8*dg}")
        scale = (D // 32) ** -0.5
        c1 = scale * 1.4426950408889634
        a(f"s_mov_b32 s{S_T2}, {hex(f2u(c1))}")
        a("s_waitcnt lgkmcnt(0)")
        for kb in range(3):
            for dg in range(5):
                r = VR + 2*(5*kb + dg)
                if kb < 2: a(f"ds_read_b64_tr_b16 v[{r}:{r+1}], v147 offset:{8*ROWB*kb + 8*dg}")
                else: a(f"ds_read_b64_tr_b16 v[{r}:{r+1}], v119 offset:{8*dg}")
        for dg in range(5):
            for kb in range(3):
                r = KR + 2*(5*kb + dg); sc = SC + 4*kb
                c = "0" if dg == 0 else f"v[{sc}:{sc+3}]"
                a(f"v_mfma_f32_4x4x4_16b_bf16 v[{sc}:{sc+3}], v[{r}:{r+1}], v[{Q+2*dg}:{Q+2*dg+1}], {c}")
        a("s_nop 4")
        for m in range(12):
            a(f"v_fma_f32 v{SC+m}, v{SC+m}, s{S_T2}, v{BIAS+m}")
        a(f"v_max3_f32 v14, v{SC}, v{SC+1}, v{SC+2}")
        a(f"v_max3_f32 v15, v{SC+3}, v{SC+4}, v{SC+5}")
        a(f"v_max3_f32 v14, v14, v{SC+6}, v{SC+7}")
        a(f"v_max3_f32 v15, v15, v{SC+8}, v{SC+9}")
        a(f"v_max3_f32 v14, v14, v{SC+10}, v{SC+11}")
        a("v_max_f32 v14, v14, v15")
        for m in range(12):
            a(f"v_sub_f32 v{SC+m}, v{SC+m}, v14")
        for m in range(12):
            a(f"v_exp_f32 v{SC+m}, v{SC+m}")
        a(f"v_add_f32 v14, v{SC}, v{SC+1}")
        a(f"v_add_f32 v15, v{SC+2}, v{SC+3}")
        for m in range(4, 12, 2):
            a(f"v_add_f32 v14, v14, v{SC+m}")
            a(f"v_add_f32 v15, v15, v{SC+m+1}")
        a("v_add_f32 v14, v14, v15")
        a("v_rcp_f32 v14, v14")
        a("s_nop 0")
        for m in range(12):
            a(f"v_mul_f32 v{SC+m}, v{SC+m}, v14")
        for m in range(0, 12, 2):
            a(f"v_cvt_pk_bf16_f32 v{PB+m//2}, v{SC+m}, v{SC+m+1}")
        a("s_waitcnt lgkmcnt(0)")
        a("s_nop 0")
        OA = 32
        for kb in range(3):
            for dg in range(5):
                r = VR + 2*(5*kb + dg); o = OA + 4*dg
                c = "0" if kb == 0 else f"v[{o}:{o+3}]"
                a(f"v_mfma_f32_4x4x4_16b_bf16 v[{o}:{o+3}], v[{r}:{r+1}], v[{PB+2*kb}:{PB+2*kb+1}], {c}")
        a(f"v_subrev_u32 v144, {LQ - LO}, v144")
        a("s_nop 4")
        for dg in range(5):
            o = OA + 4*dg
            a(f"v_cvt_pk_bf16_f32 v{Q+2*dg}, v{o}, v{o+1}")
            a(f"v_cvt_pk_bf16_f32 v{Q+2*dg+1}, v{o+2}, v{o+3}")
            a(f"ds_write_b64 v144, v[{Q+2*dg}:{Q+2*dg+1}] offset:{8*dg}")
    a("s_waitcnt lgkmcnt(0)")
    stamp(a, 2)
    a("s_barrier")
    a(f"ds_read_b128 v[20:23], v148 offset:{LO}")
    sk = a.new("attst")
    a(f"s_cmp_ge_u32 s{S_WAVE}, 2")
    a(f"s_cbranch_scc1 {sk}")
    a(f"ds_read_b128 v[24:27], v149 offset:{LO}")
    a("s_waitcnt lgkmcnt(0)")
    a(f"buffer_store_dwordx4 v[24:27], v157, s[{SRD_OUT}:{SRD_OUT+3}], 0 offen{SC1}")
    a.label(sk)
    a("s_waitcnt lgkmcnt(0)")
    a(f"buffer_store_dwordx4 v[20:23], v156, s[{SRD_OUT}:{SRD_OUT+3}], 0 offen{SC1}")
    a(f"s_lshl_b32 s{S_FIDX}, s{S_RT}, 1")
    a(f"s_add_u32 s{S_FIDX}, s{S_FIDX}, s{S_CT}")
    a(f"s_lshl_b32 s{S_FIDX}, s{S_FIDX}, 7")
    a(f"s_add_u32 s{S_FIDX}, s{S_FIDX}, 0x8000")

def finish_phase(a, role, first=False):
    a("s_waitcnt vmcnt(0)")
    stamp(a, 4)
    if role == 'c' and first: nonce_check(a)
    a("s_barrier      ; E3")
    if role == 'c': publish(a)
    stamp(a, 5)

def role_program(a, role):
    phases = [P1F(), P24(2), P3(), P24(4)] if FUSE else [P1(), 'att', P24(2), P3(), P24(4)]
    if 'p1twice' in EXP:
        P = P1(); inv = a.new("inv")
        tile_map(a, P.NT, P.kind)
        a(f"s_cmp_eq_u32 s{S_VALID}, 0")
        a(f"s_cbranch_scc1 {inv}")
        P.tile_consts(a)
        if role == 'c': consumer_phase(a, P, True)
        else: loader_phase(a, P, True)
        a("s_waitcnt vmcnt(0)")
        a("s_barrier")
        a.label(inv)
    for n, P in enumerate(phases):
        first = (n == 0)
        nxt = a.new("next"); inv = a.new("inv")
        if P == 'att':
            tile_map(a, 256, 'att')
            att_phase(a, role)
            stamp(a, 3)
            finish_phase(a, role)
            prof_store(a, 'att', role)
            continue
        tile_map(a, P.NT, P.kind)
        a(f"s_cmp_eq_u32 s{S_VALID}, 0")
        a(f"s_cbranch_scc1 {inv}")
        P.tile_consts(a)
        if role == 'c': consumer_phase(a, P, first)
        else: loader_phase(a, P, first)
        stamp(a, 3)
        if P.key != 'p4': finish_phase(a, role, first)
        prof_store(a, P.key, role)
        if first:
            a(f"s_branch {nxt}")
            a.label(inv)
            ptr_wait(a)
            if role == 'c': nonce_check(a, issued=False)
            a.label(nxt)
        else:
            a.label(inv)

def main(out):
    a = Asm()
    a.raw(f".globl {KNAME}")
    a.raw(".p2align 8")
    a.raw(f".type {KNAME},@function")
    a.label(KNAME)
    if PROFDBG:
        a(f"s_memrealtime s[{S_P0+1}:{S_P0+2}]") if False else None
    a("s_cmp_ge_u32 s2, 256")
    a("s_cbranch_scc1 L_exit")
    a(f"s_load_dwordx16 s[{S_PTR}:{S_PTR+15}], s[0:1], 0")
    a(f"s_load_dwordx4 s[{S_PTR+16}:{S_PTR+19}], s[0:1], 64")
    if PROFDBG:
        a(f"{STAMP} s[98:99]")
    a("v_lshrrev_b32 v1, 6, v0")
    a("v_and_b32 v2, 63, v0      ; lane")
    a(f"s_mov_b32 s{S_FIDX}, -1")
    a(f"v_readfirstlane_b32 s{S_WAVE}, v1")
    a("s_nop 3")
    a(f"s_sub_u32 s{S_W}, s{S_WAVE}, 4")
    a(f"s_cmp_ge_u32 s{S_WAVE}, 4")
    a("s_cbranch_scc1 L_loader")
    role_program(a, 'c')
    a("s_waitcnt vmcnt(0)")
    a("s_endpgm")
    a.label("L_loader")
    role_program(a, 'l')
    a("s_waitcnt vmcnt(0)")
    a.label("L_exit")
    a("s_endpgm")
    HEADER = open("sequential_preLN__sliding_local_dilated__glu_gated_bilinear__prompt.s.ref").read().split("; Override")[0]
    s = HEADER
    s += f"; @launch grid=(256,1,1) block=(512,1,1) lds={LDS_TOTAL}\n"
    s += '.amdgcn_target "amdgcn-amd-amdhsa--gfx950"\n.text\n'
    s += a.text()
    s += f""".section .rodata,"a"
.p2align 6
.amdhsa_kernel {KNAME}
  .amdhsa_next_free_vgpr 256
  .amdhsa_next_free_sgpr 102
  .amdhsa_accum_offset 160
  .amdhsa_group_segment_fixed_size 0
  .amdhsa_kernarg_size 80
  .amdhsa_user_sgpr_count 2
  .amdhsa_user_sgpr_kernarg_segment_ptr 1
  .amdhsa_system_sgpr_workgroup_id_x 1
  .amdhsa_float_denorm_mode_32 3
.end_amdhsa_kernel
"""
    open(out, "w").write(s)

if __name__ == "__main__":
    if "-prof" in sys.argv: PROF = True
    if "-profdbg" in sys.argv: PROFDBG = True
    if "-cyc" in sys.argv: STAMP = "s_memtime"
    if "-wpf" in sys.argv: WPF = True
    if "-nofuse" in sys.argv: FUSE = False
    for x in sys.argv:
        if x.startswith("-osc="): OSC = " " + x[5:].replace("+", " ")
    for x in sys.argv:
        if x.startswith("-align="): ALIGN = int(x[7:])
    if "-nowpf" in sys.argv: WPF = False
    if "-onestep" in sys.argv: TWOSTEP = False
    for x in sys.argv:
        if x.startswith("-exp="): EXP = set(x[5:].split(","))
    if "-noxcd" in sys.argv: NOXCD = True
    for x in sys.argv:
        if x.startswith("-p1rot="): P1ROT = x[7:]
        if x.startswith("-rotoff="): ROTOFF = set(x[8:].split(","))
    for x in sys.argv:
        if x.startswith("-off="):
            for k in x[5:].split(","): WPF_OFF.add({'wo': KA_WO, 'wg': KA_WG, 'wu': KA_WU, 'wd': KA_WD}[k])
    main(sys.argv[1] if len(sys.argv) > 1 else "v3.s")
```

```python
import sys, struct

KNAME = "sequential_preLN__sliding_local_dilated__glu_gated_bilinear__prompt_kernel"
S_TOK, D, NQKV, F = 2048, 640, 1920, 1728
WS_QKV, WS_O, WS_H, WS_HH, WS_ST, WS_FLAG = 0, 0x800000, 0xB00000, 0x1000000, 0x1800000, 0x1900000
WS_PROF = 0x1A00000
KA_X, KA_WQKV, KA_WO, KA_BX, KA_WG, KA_WU, KA_WD, KA_OUT, KA_DBG, KA_WS = [8*i for i in range(10)]
ONES = 0x3F803F80
PROF = False
PROFDBG = False
STAMP = 's_memrealtime'
SC1 = " sc1"
LDS_TOTAL = 163840
NONCE_LDS = 163832
OUTSC = ' sc0 sc1'
GATE = False
GATE4 = (6, 3)
OSC = ' sc1'
FUSE = True
ALIGN = 6
TWOSTEP = True
EXP = set()
NOXCD = False

def f2u(x):
    return struct.unpack("<I", struct.pack("<f", x))[0]

class Asm:
    def __init__(self):
        self.L = []
        self.uid = 0
    def __call__(self, s):
        for line in s.split("\n"):
            line = line.strip()
            if line:
                self.L.append("  " + line)
    def label(self, n):
        self.L.append(n + ":")
    def raw(self, s):
        self.L.append(s)
    def new(self, base):
        self.uid += 1
        return f"L{base}_{self.uid}"
    def text(self):
        return "\n".join(self.L) + "\n"

SRD_A, SRD_B0, SRD_B1, SRD_OUT, SRD_AUX, SRD_ST = 8, 12, 16, 20, 24, 28
S_RT, S_CT, S_R0, S_C0, S_WAVE, S_SLOT, S_CNT, S_T0, S_T1, S_T2 = 32, 33, 34, 35, 36, 37, 38, 39, 40, 41
S_AOFF, S_BOFF = 42, 43
S_PTR = 44
S_MASK = 64
S_I, S_J, S_REND, S_K = 66, 67, 68, 69
S_STAMP = 70
S_NONCE = 78
S_FIDX, S_LW, S_VALID, S_KB = 85, 86, 87, 92
SRD_FLAG = 88
S_SLOTB, S_T3, S_T4, S_W = 93, 94, 95, 96
S_P0 = 97
S_N1, S_N2 = 6, 7

def ptr(k): return S_PTR + k // 4

PH_IDX = {'p1': 0, 'att': 1, 'p2': 2, 'p3': 3, 'p4': 4}

def stamp(a, i):
    if i >= 4:
        if PROF: a(f'{STAMP} s[{98+2*(i-4)}:{99+2*(i-4)}]')
        return
    if PROF or PROFDBG:
        a(f'{STAMP} s[{S_STAMP+2*i}:{S_STAMP+2*i+1}]')

def prof_store(a, ph, role):
    if not (PROF or PROFDBG): return
    skip = a.new("pskip")
    a(f"s_cmp_eq_u32 s{S_WAVE}, {0 if role == 'c' else 4}")
    a(f"s_cbranch_scc0 {skip}")
    a('s_waitcnt lgkmcnt(0)')
    if PROF:
        a(f's_add_u32 s80, s{ptr(KA_WS)}, {hex(WS_PROF + PH_IDX[ph]*0x20000)}')
        a(f's_addc_u32 s81, s{ptr(KA_WS)+1}, 0')
        a('s_and_b32 s81, s81, 0xffff')
        a('s_mov_b32 s82, 0x20000')
        a('s_mov_b32 s83, 0x20000')
        a('s_lshl_b32 s84, s2, 3')
        a(f's_add_u32 s84, s84, s{S_WAVE}')
        a('s_lshl_b32 s84, s84, 6')
        for i in range(8): a(f'v_mov_b32 v{128+i}, s{S_STAMP+i}')
        for i in range(4): a(f'v_mov_b32 v{136+i}, s{98+i}')
        a('v_mov_b32 v148, s84')
        a('s_mov_b64 exec, 1')
        a('buffer_store_dwordx4 v[128:131], v148, s[80:83], 0 offen')
        a('buffer_store_dwordx4 v[132:135], v148, s[80:83], 0 offen offset:16')
        a('buffer_store_dwordx4 v[136:139], v148, s[80:83], 0 offen offset:32')
        a('s_mov_b64 exec, -1')
    if PROFDBG and role == 'c':
        sk2 = a.new("pskip")
        a(f"s_cmp_eq_u32 s2, {PROFDBG_WG}")
        a(f"s_cbranch_scc0 {sk2}")
        a(f's_mov_b32 s80, s{ptr(KA_DBG)}')
        a(f's_and_b32 s81, s{ptr(KA_DBG)+1}, 0xffff')
        a('s_mov_b32 s82, 0x100')
        a('s_mov_b32 s83, 0x20000')
        sel = DBG_SEL[ph]
        for j, (i, slot) in enumerate(sel):
            a(f's_sub_u32 s84, s{S_STAMP+2*i}, s{S_P0}')
            a(f'v_mov_b32 v140, s84')
            a(f'v_mov_b32 v141, {4*slot}')
            a('s_mov_b64 exec, 1')
            a('buffer_store_dword v140, v141, s[80:83], 0 offen')
            a('s_mov_b64 exec, -1')
        a.label(sk2)
    a.label(skip)

PROFDBG_WG = 9
DBG_SEL = {'p1': [(1, 2), (2, 3), (3, 4)], 'att': [(0, 5), (1, 6), (3, 7)], 'p2': [(0, 8), (2, 9)], 'p3': [(0, 10), (1, 11), (2, 12)], 'p4': [(0, 13), (2, 14), (3, 15)]}

def set_exec(a, mask):
    if mask == (1 << 64) - 1:
        a("s_mov_b64 exec, -1")
    else:
        a(f"s_mov_b32 exec_lo, {hex(mask & 0xffffffff)}")
        a(f"s_mov_b32 exec_hi, {hex(mask >> 32)}")

def srd(a, s, p, off, nbytes):
    if off:
        a(f"s_add_u32 s{s}, s{p}, {hex(off)}")
        a(f"s_addc_u32 s{s+1}, s{p+1}, 0")
    else:
        a(f"s_mov_b32 s{s}, s{p}")
        a(f"s_mov_b32 s{s+1}, s{p+1}")
    a(f"s_and_b32 s{s+1}, s{s+1}, 0xffff")
    a(f"s_mov_b32 s{s+2}, {hex(nbytes)}")
    a(f"s_mov_b32 s{s+3}, 0x20000")

def divc(a, dst, src, d, rng=300):
    m = (65536 + d - 1) // d
    for x in range(0, rng):
        assert (x * m) >> 16 == x // d, (x, d)
    a(f"s_mul_i32 s{dst}, s{src}, {m}")
    a(f"s_lshr_b32 s{dst}, s{dst}, 16")

def magic(d, N):
    for sh in range(8, 24):
        m = ((1 << sh) + d - 1) // d
        if m >= (1 << 24) or m * (N - 1) >= (1 << 32): continue
        if all((x * m) >> sh == x // d for x in range(N)): return m, sh
    raise Exception("no magic")

def sdiv(a, dst, src, d, N):
    m, sh = magic(d, N)
    a(f"s_mul_i32 s{dst}, s{src}, {m}")
    a(f"s_lshr_b32 s{dst}, s{dst}, {sh}")

def vdiv(a, dst, src, d, N):
    m, sh = magic(d, N)
    a(f"v_mul_u32_u24 v{dst}, {m}, v{src}")
    a(f"v_lshrrev_b32 v{dst}, {sh}, v{dst}")

def tile_map(a, NT, kind):
    if NOXCD:
        a(f"s_mov_b32 s{S_T0}, s2")
    else:
        a(f"s_and_b32 s{S_T0}, s2, 7")
        a(f"s_lshr_b32 s{S_T1}, s2, 3")
        a(f"s_lshl_b32 s{S_T0}, s{S_T0}, 5")
        a(f"s_add_u32 s{S_T0}, s{S_T0}, s{S_T1}   ; t")
    a(f"s_cmp_lt_u32 s{S_T0}, {NT}")
    a(f"s_cselect_b32 s{S_VALID}, 1, 0")
    if kind == "p1":
        divc(a, S_T1, S_T0, 90)
        a(f"s_mul_i32 s{S_T2}, s{S_T1}, 90")
        a(f"s_sub_u32 s{S_T2}, s{S_T0}, s{S_T2}")
        divc(a, S_CT, S_T2, 6)
        divc(a, S_RT, S_T2, 5)
        a(f"s_cmp_eq_u32 s{S_T1}, 2")
        a(f"s_cselect_b32 s{S_CT}, s{S_RT}, s{S_CT}")
        a(f"s_cselect_b32 s{S_RT}, 5, 6")
        a(f"s_mul_i32 s{S_RT}, s{S_RT}, s{S_CT}")
        a(f"s_sub_u32 s{S_RT}, s{S_T2}, s{S_RT}")
        a(f"s_mul_i32 s{S_T1}, s{S_T1}, 6")
        a(f"s_add_u32 s{S_RT}, s{S_RT}, s{S_T1}")
    elif kind == "p3":
        divc(a, S_T1, S_T0, 81)
        a(f"s_mul_i32 s{S_T2}, s{S_T1}, 81")
        a(f"s_sub_u32 s{S_T2}, s{S_T0}, s{S_T2}")
        divc(a, S_CT, S_T2, 3)
        a(f"s_mul_i32 s{S_RT}, s{S_CT}, 3")
        a(f"s_sub_u32 s{S_RT}, s{S_T2}, s{S_RT}")
        a(f"s_mul_i32 s{S_T1}, s{S_T1}, 3")
        a(f"s_add_u32 s{S_RT}, s{S_RT}, s{S_T1}")
    elif kind == "p1f":
        a(f"s_lshr_b32 s{S_T1}, s{S_T0}, 6")
        a(f"s_lshl_b32 s{S_RT}, s{S_T1}, 3")
        a(f"s_bfe_u32 s{S_T2}, s{S_T0}, {2 | (3 << 16)}")
        a(f"s_add_u32 s{S_RT}, s{S_RT}, s{S_T2}")
        a(f"s_bfe_u32 s{S_T1}, s{S_T0}, {5 | (1 << 16)}")
        a(f"s_lshl_b32 s{S_T1}, s{S_T1}, 2")
        a(f"s_and_b32 s{S_CT}, s{S_T0}, 3")
        a(f"s_add_u32 s{S_CT}, s{S_CT}, s{S_T1}")
    elif kind == "att":
        a(f"s_lshr_b32 s{S_RT}, s{S_T0}, 1")
        a(f"s_and_b32 s{S_CT}, s{S_T0}, 1")
    else:
        divc(a, S_RT, S_T0, 10)
        a(f"s_mul_i32 s{S_CT}, s{S_RT}, 10")
        a(f"s_sub_u32 s{S_CT}, s{S_T0}, s{S_CT}")

def publish(a):
    skip = a.new("pub")
    a(f"s_cmp_eq_u32 s{S_WAVE}, 0")
    a(f"s_cbranch_scc0 {skip}")
    a(f"s_cmp_eq_u32 s{S_FIDX}, -1")
    a(f"s_cbranch_scc1 {skip}")
    a(f"v_mov_b32 v140, s{S_NONCE}")
    a(f"v_mov_b32 v141, s{S_NONCE+1}")
    a(f"v_mov_b32 v142, s{S_FIDX}")
    a("s_mov_b64 exec, 1")
    a(f"buffer_store_dwordx2 v[140:141], v142, s[{SRD_FLAG}:{SRD_FLAG+3}], 0 offen{SC1}")
    a("s_mov_b64 exec, -1")
    a.label(skip)

def poll_core(a, sv=80):
    loop = a.new("poll"); done = a.new("polldone")
    a(f"s_and_saveexec_b64 s[{sv}:{sv+1}], vcc")
    a(f"s_mov_b32 s{S_CNT}, 0x40000")
    a.label(loop)
    a(f"buffer_load_dwordx2 v[142:143], v140, s[{SRD_FLAG}:{SRD_FLAG+3}], 0 offen{SC1}")
    a("s_waitcnt vmcnt(0)")
    a(f"v_cmp_ne_u64 vcc, s[{S_NONCE}:{S_NONCE+1}], v[142:143]")
    a(f"s_cbranch_vccz {done}")
    a(f"s_sub_u32 s{S_CNT}, s{S_CNT}, 1")
    a(f"s_cmp_lg_u32 s{S_CNT}, 0")
    a(f"s_cbranch_scc1 {loop}")
    a.label(done)
    a(f"s_mov_b64 exec, s[{sv}:{sv+1}]")

def poll(a, lo_sgpr, hi_sgpr, base, wave=0):
    skip = a.new("pollskip")
    a(f"s_cmp_eq_u32 s{S_WAVE}, {wave}")
    a(f"s_cbranch_scc0 {skip}")
    a(f"v_add_u32 v140, s{lo_sgpr}, v2")
    a(f"v_cmp_gt_u32 vcc, s{hi_sgpr}, v140")
    a(f"v_lshlrev_b32 v140, 7, v140")
    a(f"v_add_u32 v140, {base}, v140")
    poll_core(a, 80 if wave == 0 else 4)
    a.label(skip)

def poll_first_g(a, lo_sgpr, hi_sgpr, W, k0, S, G, base):
    skip = a.new("pollskip")
    lg = 2 if G <= 4 else 3
    a(f"s_cmp_eq_u32 s{S_WAVE}, 0")
    a(f"s_cbranch_scc0 {skip}")
    a(f"v_lshrrev_b32 v140, {lg}, v2")
    a(f"v_add_u32 v140, s{lo_sgpr}, v140")
    a(f"v_cmp_ge_u32 vcc, s{hi_sgpr}, v140")
    a(f"v_and_b32 v141, {(1 << lg) - 1}, v2")
    a(f"v_cmp_gt_u32 s[82:83], {G}, v141")
    a(f"v_add_u32 v141, s{k0}, v141")
    a(f"v_subrev_u32 v142, {S}, v141")
    a(f"s_and_b64 s[82:83], s[82:83], vcc")
    a(f"v_cmp_le_u32 vcc, {S}, v141")
    a(f"v_mul_u32_u24 v140, {W}, v140")
    a("s_nop 0")
    a("v_cndmask_b32 v141, v141, v142, vcc")
    a("v_add_u32 v140, v140, v141")
    a(f"v_lshlrev_b32 v140, 7, v140")
    a(f"v_add_u32 v140, {base}, v140")
    a("s_mov_b64 vcc, s[82:83]")
    poll_core(a)
    a.label(skip)

def poll_first(a, lo_sgpr, hi_sgpr, W, k0, k1, base):
    skip = a.new("pollskip")
    a(f"s_cmp_eq_u32 s{S_WAVE}, 0")
    a(f"s_cbranch_scc0 {skip}")
    a("v_lshrrev_b32 v140, 1, v2")
    a(f"v_add_u32 v140, s{lo_sgpr}, v140")
    a(f"v_cmp_ge_u32 vcc, s{hi_sgpr}, v140")
    a(f"v_mul_u32_u24 v140, {W}, v140")
    a("v_and_b32 v141, 1, v2")
    a(f"s_sub_u32 s{S_T2}, s{k1}, s{k0}")
    a(f"v_mul_lo_u32 v141, v141, s{S_T2}")
    a(f"v_add_u32 v141, s{k0}, v141")
    a("v_add_u32 v140, v140, v141")
    a(f"v_lshlrev_b32 v140, 7, v140")
    a(f"v_add_u32 v140, {base}, v140")
    poll_core(a)
    a.label(skip)

def first_ks(a, P):
    P.rot_start(a)
    a(f"s_add_u32 s{S_KB}, s{S_K}, 1")
    a(f"s_cmp_ge_u32 s{S_KB}, {P.S}")
    a(f"s_cselect_b32 s{S_KB}, 0, s{S_KB}")

def dbg_srd(a):
    a(f"s_mov_b32 s80, s{ptr(KA_DBG)}")
    a(f"s_and_b32 s81, s{ptr(KA_DBG)+1}, 0xffff")
    a("s_mov_b32 s82, 0x100")
    a("s_mov_b32 s83, 0x20000")

def nonce_publish(a):
    skip = a.new("nonce")
    a(f"s_cmp_eq_u32 s{S_WAVE}, 0")
    a(f"s_cbranch_scc0 {skip}")
    a("s_cmp_eq_u32 s2, 0")
    a(f"s_cbranch_scc0 {skip}")
    dbg_srd(a)
    a(f"s_memrealtime s[{S_NONCE}:{S_NONCE+1}]")
    a("v_mov_b32 v5, 0")
    a("s_waitcnt lgkmcnt(0)")
    a(f"s_or_b32 s{S_NONCE}, s{S_NONCE}, 1")
    a(f"v_mov_b32 v6, s{S_NONCE}")
    a(f"v_mov_b32 v7, s{S_NONCE+1}")
    a("s_mov_b64 exec, 1")
    a(f"buffer_store_dwordx2 v[6:7], v5, s[80:83], 0 offen{SC1}")
    a("s_mov_b64 exec, -1")
    a.label(skip)

def nonce_issue(a):
    skip = a.new("nonce")
    a(f"s_cmp_eq_u32 s{S_WAVE}, 0")
    a(f"s_cbranch_scc0 {skip}")
    dbg_srd(a)
    a("v_mov_b32 v158, 0")
    a("s_nop 3")
    a(f"buffer_load_dwordx2 v[156:157], v158, s[80:83], 0 offen{SC1}")
    a.label(skip)

def nonce_check(a, issued=True):
    skip = a.new("nonce"); loop = a.new("nloop"); done = a.new("ndone"); chk = a.new("nchk")
    a(f"s_cmp_eq_u32 s{S_WAVE}, 0")
    a(f"s_cbranch_scc0 {skip}")
    dbg_srd(a)
    a("v_mov_b32 v158, 0")
    a(f"s_mov_b32 s{S_CNT}, 0x40000")
    if issued: a(f"s_branch {chk}")
    a.label(loop)
    a(f"buffer_load_dwordx2 v[156:157], v158, s[80:83], 0 offen{SC1}")
    a("s_waitcnt vmcnt(0)")
    a.label(chk)
    a("v_readfirstlane_b32 s" + str(S_NONCE) + ", v156")
    a("v_readfirstlane_b32 s" + str(S_NONCE+1) + ", v157")
    a("s_nop 3")
    a(f"s_cmp_lg_u32 s{S_NONCE}, 0")
    a(f"s_cbranch_scc1 {done}")
    a(f"s_sub_u32 s{S_CNT}, s{S_CNT}, 1")
    a(f"s_cmp_lg_u32 s{S_CNT}, 0")
    a(f"s_cbranch_scc1 {loop}")
    a.label(done)
    a(f"v_mov_b32 v158, {NONCE_LDS}")
    a("s_mov_b64 exec, 1")
    a("ds_write_b64 v158, v[156:157]")
    a("s_mov_b64 exec, -1")
    a("s_waitcnt lgkmcnt(0)")
    a.label(skip)

def nonce_from_lds(a):
    skip = a.new("nlds")
    a(f"s_cmp_eq_u32 s{S_WAVE}, 7")
    a(f"s_cbranch_scc0 {skip}")
    a(f"v_mov_b32 v140, {NONCE_LDS}")
    a("ds_read_b64 v[142:143], v140")
    a("s_waitcnt lgkmcnt(0)")
    a(f"v_readfirstlane_b32 s{S_NONCE}, v142")
    a(f"v_readfirstlane_b32 s{S_NONCE+1}, v143")
    a.label(skip)

class Phase:
    has_e1 = False
    has_stage_work = False
    prefetchB = 0
    def loader_post_first(self, a): return 0
    def loader_post_b0(self, a): return 0
    def loader_stage_work_parts(self): return []
    def loader_final(self, a): pass
    def store_pre(self, a): pass
    def tail_prefetch(self, a, part): return 0
    def mid_prefetch(self, a, s): return 0
    def l2_prep(self, a): pass
    def rot_start(self, a):
        if self.key in ROTOFF:
            a(f"s_mov_b32 s{S_K}, 0"); return
        ca, cb, den = self.rot
        a(f"s_mul_i32 s{S_K}, s{S_CT}, {ca}")
        a(f"s_mul_i32 s{S_T0}, s{S_RT}, {cb}")
        a(f"s_add_u32 s{S_K}, s{S_K}, s{S_T0}")
        a(f"s_lshr_b32 s{S_K}, s{S_K}, {den}")
        m = (65536 + self.S - 1) // self.S
        for x in range(1024): assert (x*m) >> 16 == x // self.S
        a(f"s_mul_i32 s{S_T0}, s{S_K}, {m}")
        a(f"s_lshr_b32 s{S_T0}, s{S_T0}, 16")
        a(f"s_mul_i32 s{S_T0}, s{S_T0}, {self.S}")
        a(f"s_sub_u32 s{S_K}, s{S_K}, s{S_T0}")
    def tile_consts(self, a):
        a(f"s_mul_i32 s{S_R0}, s{S_RT}, {self.MV}")
        a(f"s_mul_i32 s{S_C0}, s{S_CT}, {self.NC}")
        a(f"s_add_u32 s{S_REND}, s{S_R0}, {self.MV}")
        a(f"s_min_u32 s{S_REND}, s{S_REND}, {S_TOK}")

def transition(a, first):
    pass

def loader_phase(a, P, first):
    NS, S = P.NS, P.S
    nA, nB = len(P.Ains), len(P.Bins)
    VB = 32
    customB = getattr(P, 'custom_B', False)
    a("v_lshrrev_b32 v3, 3, v2      ; r8")
    a("v_and_b32 v4, 7, v2          ; p")
    a("v_lshrrev_b32 v5, 1, v3      ; r8>>1")
    a("v_xor_b32 v6, v4, v5")
    a("v_lshlrev_b32 v6, 4, v6")
    a(f"s_lshl_b32 s{S_T0}, s{S_W}, 3")
    a(f"s_add_u32 s{S_T0}, s{S_T0}, s{S_R0}")
    a(f"v_add_u32 v7, s{S_T0}, v3")
    a(f"s_mov_b32 s{S_T0}, {P.lda}")
    a(f"v_mul_lo_u32 v7, v7, s{S_T0}")
    a("v_add_u32 v7, v7, v6")
    a(f"s_and_b32 s{S_T0}, s{S_W}, 1")
    a(f"s_lshl_b32 s{S_T0}, s{S_T0}, 6")
    a(f"v_xor_b32 v7, s{S_T0}, v7")
    for t in range(nA):
        a(f"v_add_u32 v{VB+t}, {t*32*P.lda}, v7")
    if customB: P.lazyB = True
    else: std_B_setup(a, P, VB, nA)
    if getattr(P, 'oprime', False): oprime_alt_setup(a, P)
    a(f"s_lshl_b32 s{S_LW}, s{S_W}, 10")
    P.mask_setup(a)
    P.rot_start(a)
    a(f"s_mov_b32 s{S_KB}, s{S_K}")
    a(f"s_mov_b32 s{S_N1}, 0"); a(f"s_mov_b32 s{S_N2}, 0")
    if first: ptr_wait(a)
    P.build_srds(a, 'l')
    loader_rest(a, P, first, VB, nA, nB, NS, S)

def oprime_alt_setup(a, P):
    a(f"s_and_b32 s{S_T0}, s{S_W}, 1")
    a(f"s_lshl_b32 s{S_T0}, s{S_T0}, 6")
    a(f"v_xor_b32 v10, s{S_T0}, v6")
    a("v_lshrrev_b32 v11, 5, v10             ; q = c>>1")
    a("v_lshlrev_b32 v11, 7, v11             ; q*128")
    a("v_and_b32 v12, 16, v10                ; half*16")
    a("v_add_u32 v11, v11, v12")
    a(f"s_lshl_b32 s{S_T0}, s{S_W}, 3")
    a(f"s_add_u32 s{S_T0}, s{S_T0}, s{S_R0}")
    a(f"v_add_u32 v12, s{S_T0}, v3            ; row (t=0)")
    for t in range(3):
        a(f"v_add_u32 v13, {32*t}, v12")
        a("v_lshrrev_b32 v14, 2, v13")
        a("v_lshlrev_b32 v14, 10, v14")
        a("v_and_b32 v13, 3, v13")
        a("v_lshl_add_u32 v14, v13, 5, v14")
        a("v_add_u32 v14, v14, v11")
        a(f"v_add_u32 v{44+t}, 0x200000, v14")
    a(f"s_and_b32 s{S_T0}, s{S_W}, 1")
    a(f"s_lshl_b32 s{S_T0}, s{S_T0}, 6")
    a(f"v_xor_b32 v10, s{S_T0}, v8")
    a(f"s_lshl_b32 s{S_T1}, s{S_C0}, 1")
    a(f"v_add_u32 v10, s{S_T1}, v10")
    a(f"s_lshl_b32 s{S_T0}, s{S_W}, 3")
    for t, ib in enumerate((0, 4)):
        a(f"v_add_u32 v12, s{S_T0}, v3")
        a(f"v_add_u32 v12, {8*ib}, v12          ; r")
        a("v_lshrrev_b32 v13, 4, v12")
        a("v_mul_u32_u24 v13, 80, v13")
        a("v_and_b32 v12, 15, v12")
        a("v_add_u32 v13, v13, v12")
        a("v_add_u32 v13, 64, v13")
        a("v_mul_u32_u24 v13, 1280, v13")
        a(f"v_add_u32 v{47+t}, v13, v10")

def std_B_setup(a, P, VB, nA):
    a("v_and_b32 v8, 1, v5")
    a("v_lshlrev_b32 v8, 1, v8")
    a("v_xor_b32 v8, v4, v8")
    a("v_lshlrev_b32 v8, 4, v8")
    a(f"s_lshl_b32 s{S_T0}, s{S_W}, 3")
    a(f"v_add_u32 v9, s{S_T0}, v3         ; k = 8w + r8")
    a(f"s_mov_b32 s{S_T0}, {P.ldb}")
    a(f"v_mul_lo_u32 v9, v9, s{S_T0}")
    a("v_add_u32 v9, v9, v8")
    a(f"s_and_b32 s{S_T0}, s{S_W}, 1")
    a(f"s_lshl_b32 s{S_T0}, s{S_T0}, 6")
    a(f"v_xor_b32 v9, s{S_T0}, v9")
    a(f"s_lshl_b32 s{S_T1}, s{S_C0}, 1")
    a(f"v_add_u32 v9, s{S_T1}, v9")
    for t, (pn, ib) in enumerate(P.Bins):
        a(f"v_add_u32 v{VB+nA+t}, {ib*8*P.ldb + P.panel_coloff[pn]}, v9")

def loader_rest(a, P, first, VB, nA, nB, NS, S):

    opr = getattr(P, 'oprime', False)
    def soff(kreg, offreg, mul):
        if not opr:
            a(f"s_mul_i32 s{offreg}, s{kreg}, {mul}")
            return
        mm, mt_ = (128, 512) if offreg == S_AOFF else (102400, 409600)
        a(f"s_mul_i32 s{offreg}, s{kreg}, {mm}")
        a(f"s_sub_u32 s{S_T0}, s{kreg}, 8")
        a(f"s_mul_i32 s{S_T0}, s{S_T0}, {mt_}")
        a(f"s_cmp_ge_u32 s{kreg}, 8")
        a(f"s_cselect_b32 s{offreg}, s{S_T0}, s{offreg}")
    def adv(kreg, offreg, mul, slotreg):
        if getattr(P, 'order2', False) and P1ROT == 'latin2':
            cnt = S_N1 if kreg == S_K else S_N2
            a(f"s_add_u32 s{kreg}, s{kreg}, 2")
            a(f"s_cmp_ge_u32 s{kreg}, {S}")
            a(f"s_cselect_b32 s{S_T0}, {S}, 0")
            a(f"s_sub_u32 s{kreg}, s{kreg}, s{S_T0}")
            a(f"s_add_u32 s{cnt}, s{cnt}, 1")
            a(f"s_cmp_eq_u32 s{cnt}, 5")
            a(f"s_addc_u32 s{kreg}, s{kreg}, 0")
        else:
            a(f"s_add_u32 s{kreg}, s{kreg}, 1")
            a(f"s_cmp_ge_u32 s{kreg}, {S}")
            a(f"s_cselect_b32 s{kreg}, 0, s{kreg}")
        soff(kreg, offreg, mul)
        a(f"s_add_u32 s{slotreg}, s{slotreg}, {P.STAGE}")
        a(f"s_cmp_ge_u32 s{slotreg}, {P.STAGE*NS}")
        a(f"s_cselect_b32 s{slotreg}, 0, s{slotreg}")
    def issueA(fill=None):
        a(f"s_add_u32 s{S_T3}, s{S_SLOT}, s{S_LW}")
        if opr:
            lt_ = a.new("atail"); le_ = a.new("aend")
            a(f"s_cmp_ge_u32 s{S_K}, 8")
            a(f"s_cbranch_scc1 {lt_}")
            issueA_body(VB, None)
            a(f"s_branch {le_}")
            a.label(lt_)
            issueA_body(44, None)
            a.label(le_)
        else:
            issueA_body(VB, fill)
        adv(S_K, S_AOFF, 128, S_SLOT)
    def issueA_body(vb, fill):
        for t in range(nA):
            special = P.Ains[t]
            sk = None
            if special == 'skip':
                sk = a.new("sk")
                a(f"s_cmp_eq_u64 s[{S_MASK}:{S_MASK+1}], 0")
                a(f"s_cbranch_scc1 {sk}")
            a(f"s_add_u32 m0, s{S_T3}, {t*4096}")
            if special: a(f"s_mov_b64 exec, s[{S_MASK}:{S_MASK+1}]")
            else: a("s_nop 0")
            a(f"buffer_load_dwordx4 v{vb+t}, s[{SRD_A}:{SRD_A+3}], s{S_AOFF} offen{P.scA} lds")
            if special: a("s_mov_b64 exec, -1")
            if sk: a.label(sk)
            if fill:
                for x in fill.pop(0) if fill else []: a(x)
    def issueB(fill=None):
        if getattr(P, 'lazyB', False):
            P.lazyB = False
            P.custom_B_setup(a, VB + nA)
        a(f"s_add_u32 s{S_T4}, s{S_SLOTB}, s{S_LW}")
        if opr:
            lt_ = a.new("btail"); le_ = a.new("bend")
            a(f"s_cmp_ge_u32 s{S_KB}, 8")
            a(f"s_cbranch_scc1 {lt_}")
            issueB_body(VB + nA, None)
            a(f"s_branch {le_}")
            a.label(lt_)
            issueB_body(47, None)
            a.label(le_)
        else:
            issueB_body(VB + nA, fill)
        adv(S_KB, S_BOFF, 64*P.ldb, S_SLOTB)
    def issueB_body(vb, fill):
        for t, ent in enumerate(P.Bins):
            if isinstance(ent, dict):
                sr = SRD_B0; ldsoff = ent['lds']; skp = ent.get('skip')
            else:
                pn, ib = ent
                sr = P.panel_srd[pn]; ldsoff = P.ABYTES + pn*8192 + ib*1024; skp = None
            sk = None
            if skp:
                sk = a.new("skb")
                a(f"s_cmp_ge_u32 s{S_W}, {skp}")
                a(f"s_cbranch_scc1 {sk}")
            a(f"s_add_u32 m0, s{S_T4}, {ldsoff}")
            a("s_nop 0")
            a(f"buffer_load_dwordx4 v{vb+t}, s[{sr}:{sr+3}], s{S_BOFF} offen lds")
            if sk: a.label(sk)
            if fill:
                for x in fill.pop(0) if fill else []: a(x)
    minA = nA - (1 if 'skip' in P.Ains else 0)
    minB = nB - sum(1 for e_ in P.Bins if isinstance(e_, dict) and e_.get('skip'))
    a(f"s_mov_b32 s{S_SLOT}, 0")
    a(f"s_mov_b32 s{S_SLOTB}, 0")
    soff(S_K, S_AOFF, 128)
    soff(S_KB, S_BOFF, 64*P.ldb)
    pB = P.prefetchB if not first else 0
    if pB:
        lp = a.new("bpre")
        a(f"s_mov_b32 s{S_CNT}, {pB}")
        a.label(lp)
        issueB()
        a(f"s_sub_u32 s{S_CNT}, s{S_CNT}, 1")
        a(f"s_cmp_lg_u32 s{S_CNT}, 0")
        a(f"s_cbranch_scc1 {lp}")
    if not first:
        a("s_barrier      ; B_dep")
    stamp(a, 0)
    L = []
    gate = getattr(P, 'gate', None) if not first else None
    for s in range(S):
        cap = (NS - 1) if s == 0 else s + NS - 2
        prev = L[-1] if L else -1
        if gate and s <= gate[1]:
            L.append(min(gate[0] - 1, cap, prev + 2))
        else:
            L.append(min(S - 1, cap, prev + (3 if gate else 2)))
    if gate:
        assert gate[0] <= pB and gate[0] - 1 <= NS - 1
        nonce_from_lds(a)
    seq = [('B', j) for j in range(pB)]
    def cnt_after(s):
        last = max(i for i, (k, j) in enumerate(seq) if j == s and k in 'AB')
        n = 0
        for (k, j) in seq[last+1:]:
            n += minA if k == 'A' else (minB if k == 'B' else j)
        return n
    def issue_stage(j, fill=None):
        if j >= pB:
            issueA(fill); seq.append(('A', j))
            issueB(fill); seq.append(('B', j))
        else:
            issueA(fill); seq.append(('A', j))
    prev = -1
    s = 0
    while s < S:
        k = L[s] - prev
        e = s
        if k == 1 and L[s] >= pB and s > 0 and not (WPF and getattr(P, 'unroll', False)):
            while e + 1 < S and L[e+1] - L[e] == 1 and (L[e+1] - (e+1)) == (L[s] - s): e += 1
        if e - s >= 2 and s - 0 >= 0 and min(range(s, e+1)) >= 0 and s >= pB - (L[s] - s) and all(j >= pB for j in range(s, s+1)):
            cnt = e - s + 1
            lp = a.new("lmain")
            a(f"s_mov_b32 s{S_CNT}, {cnt}")
            a.label(lp)
            parts = P.loader_stage_work_parts() if P.has_stage_work else None
            issue_stage(L[s], parts)
            if parts:
                for grp in parts:
                    for x in grp: a(x)
            n = cnt_after(s)
            a(f"s_waitcnt vmcnt({n})")
            if P.has_stage_work: a("s_waitcnt lgkmcnt(0)")
            a("s_barrier")
            a(f"s_sub_u32 s{S_CNT}, s{S_CNT}, 1")
            a(f"s_cmp_lg_u32 s{S_CNT}, 0")
            a(f"s_cbranch_scc1 {lp}")
            for j in range(s+1, e+1):
                seq.append(('A', L[j])); seq.append(('B', L[j]))
            prev = L[e]; s = e + 1
            continue
        parts = P.loader_stage_work_parts() if (P.has_stage_work and s > 0) else None
        for j in range(prev+1, L[s]+1):
            issue_stage(j, parts if j == prev+1 else None)
        if s == 0:
            stamp(a, 1)
            ex = P.loader_post_first(a) or 0
            P.l2_prep(a)
            if getattr(P, 'early_pre', False): ex += P.early_setup(a)
            if ex: seq.append(('X', ex))
        if parts:
            for grp in parts:
                for x in grp: a(x)
        nw = P.mid_prefetch(a, s) or 0
        if nw: seq.append(('X', nw))
        if gate and s == gate[1]: P.deps(a, wave=7)
        a(f"s_waitcnt vmcnt({cnt_after(s)})")
        if P.has_stage_work or s == 0: a("s_waitcnt lgkmcnt(0)")
        a("s_barrier")
        if s == 0:
            ex = P.loader_post_b0(a) or 0
            if ex: seq.append(('X', ex))
        prev = L[s]; s += 1
    stamp(a, 2)
    if P.has_stage_work:
        for grp in P.loader_stage_work_parts():
            for x in grp: a(x)
    if getattr(P, 'fused', False):
        P.loader_fused_tail(a)
        return
    P.loader_final(a)
    if getattr(P, 'chunk_epi', False): P.loader_store_setup(a)
    if getattr(P, 'early_pre', False):
        a("s_barrier          ; E2")
        P.store_fast(a)
        P.set_fidx(a)
        return
    P.store_pre(a)
    ny = 0
    if P.has_e1:
        a("s_waitcnt lgkmcnt(0)")
        a("s_barrier      ; E1")
    if getattr(P, 'stream_epi', False):
        P.set_fidx(a)
        return
    if getattr(P, 'chunk_epi', False):
        P.loader_epilogue(a)
        P.set_fidx(a)
        return
    a("s_barrier          ; E2")
    store_pass(a, P, ny)

def consumer_phase(a, P, first):
    if getattr(P, 'modeS', False): return consumer_phase_S(a, P, first)
    P.consumer_setup(a)
    NW = len(P.wlist)
    XF = [0, 4*P.NXMAX]
    WF = [8*P.NXMAX, 8*P.NXMAX + 4*NW]
    wk, wt = getattr(P, 'wstep', (4096, 512))
    def reads(kk, buf):
        r = []
        for wi, (areg, off) in enumerate(P.wlist):
            base = WF[buf] + 4*wi
            r.append(f"ds_read_b64_tr_b16 a[{base}:{base+1}], v{areg} offset:{off + kk*wk}")
            r.append(f"ds_read_b64_tr_b16 a[{base+2}:{base+3}], v{areg} offset:{off + kk*wk + wt}")
        for xi, (areg0, areg1, off) in enumerate(P.xlist):
            base = XF[buf] + 4*xi
            areg = areg0 if kk == 0 else areg1
            r.append(f"ds_read_b128 a[{base}:{base+3}], v{areg} offset:{off}")
        return r
    def mfmas(buf, first_=False):
        m = []
        for (xi, wi, acc) in P.mf:
            c = "0" if first_ else f"v[{acc}:{acc+3}]"
            m.append(f"v_mfma_f32_16x16x32_bf16 v[{acc}:{acc+3}], a[{WF[buf]+4*wi}:{WF[buf]+4*wi+3}], a[{XF[buf]+4*xi}:{XF[buf]+4*xi+3}], {c}")
        return m
    block = make_block(a, P.RPM)
    cons_prologue(a, P, first)
    for x in reads(0, 0): a(x)
    a(f"s_mov_b32 s{S_CNT}, {P.S-1}")
    a("s_waitcnt lgkmcnt(0)")
    def stats4(buf):
        if not getattr(P, 'mfma_stats4', False): return
        sk = a.new("st4")
        a(f"s_and_b32 s{S_T0}, s{S_N1}, 3")
        a(f"s_add_u32 s{S_N1}, s{S_N1}, 1")
        a(f"s_cmp_eq_u32 s{S_T0}, s{S_WAVE}")
        a(f"s_cbranch_scc0 {sk}")
        for x in P.stats_mfmas([f"a[{XF[buf]+4*xi}:{XF[buf]+4*xi+3}]" for xi in range(len(P.xlist))]): a(x)
        a.label(sk)
    st4 = getattr(P, 'mfma_stats4', False)
    block(mfmas(0, True), reads(1, 1), slot_adv(P) + P.addr_update())
    stats4(0)
    lp = a.new("cloop")
    if ALIGN: a.raw(f".p2align {ALIGN}")
    a.label(lp)
    a("s_waitcnt lgkmcnt(0)")
    a("s_barrier")
    block(mfmas(1), reads(0, 0), [f"s_sub_u32 s{S_CNT}, s{S_CNT}, 1"])
    stats4(1)
    a("s_waitcnt lgkmcnt(0)")
    block(mfmas(0), reads(1, 1), slot_adv(P) + P.addr_update() + ([] if st4 else [f"s_cmp_lg_u32 s{S_CNT}, 0"]))
    stats4(0)
    if st4: a(f"s_cmp_lg_u32 s{S_CNT}, 0")
    a(f"s_cbranch_scc1 {lp}")
    a("s_waitcnt lgkmcnt(0)")
    block(mfmas(1), [])
    stats4(1)
    cons_tail(a, P, first)

def make_block(a, RPM):
    def block(m, r, fill=()):
        q = list(r); fl = list(fill)
        for i, x in enumerate(m):
            a(x)
            k = 0
            while q and k < RPM:
                a(q.pop(0)); k += 1
            if not q:
                while fl and k < 2:
                    a(fl.pop(0)); k += 1
        for x in q: a(x)
        for x in fl: a(x)
    return block

def slot_adv(P):
    return [f"s_add_u32 s{S_SLOT}, s{S_SLOT}, {P.STAGE}",
            f"s_cmp_ge_u32 s{S_SLOT}, {P.STAGE*P.NS}",
            f"s_cselect_b32 s{S_SLOT}, 0, s{S_SLOT}"]

def cons_prologue(a, P, first):
    a(f"s_mov_b32 s{S_SLOT}, 0")
    for x in P.addr_update(): a(x)
    if first: ptr_wait(a)
    P.build_srds(a, 'c')
    if not first:
        if TWOSTEP: P.deps_first(a)
        else: P.deps(a)
        a("s_barrier      ; B_dep")
        if getattr(P, 'early_pre', False): P.early_setup(a)
        if TWOSTEP and not getattr(P, 'gate', None): P.deps(a)
    else:
        nonce_publish(a)
    stamp(a, 0)
    a("s_barrier          ; B_0")
    stamp(a, 1)

def cons_tail(a, P, first):
    stamp(a, 2)
    if first: nonce_issue(a)
    a("s_nop 7")
    P.epilogue(a)
    if getattr(P, 'stream_epi', False) or getattr(P, 'chunk_epi', False):
        P.set_fidx(a)
        return
    a("s_waitcnt lgkmcnt(0)")
    if getattr(P, 'early_pre', False):
        a("s_barrier          ; E2")
        P.store_fast(a)
        P.set_fidx(a)
        return
    P.store_pre(a)
    a("s_barrier          ; E2")
    store_pass(a, P)

def consumer_phase_S(a, P, first):
    P.consumer_setup(a)
    for r in range(P.ACC, P.ACC + P.NACC): a(f"v_mov_b32 v{r}, 0")
    def rng(t):
        k, i = t
        return f"{k}[{i}:{i+3}]"
    def half(t, h):
        k, i = t
        return f"{k}[{i+2*h}:{i+2*h+1}]"
    def reads(buf):
        r = []
        for kk in range(2):
            for wi, (areg, off) in enumerate(P.wlist):
                t = P.fragW(buf, kk, wi)
                r.append(f"ds_read_b64_tr_b16 {half(t,0)}, v{areg} offset:{off + kk*4096}")
                r.append(f"ds_read_b64_tr_b16 {half(t,1)}, v{areg} offset:{off + kk*4096 + 512}")
            for xi, (areg0, areg1, off) in enumerate(P.xlist):
                areg = areg0 if kk == 0 else areg1
                r.append(f"ds_read_b128 {rng(P.fragX(buf, kk, xi))}, v{areg} offset:{off}")
        return r
    def mfmas(buf):
        m = []
        for kk in range(2):
            for (xi, wi, acc) in P.mf:
                m.append(f"v_mfma_f32_16x16x32_bf16 v[{acc}:{acc+3}], {rng(P.fragW(buf, kk, wi))}, {rng(P.fragX(buf, kk, xi))}, v[{acc}:{acc+3}]")
        return m
    def stats(buf):
        if not getattr(P, 'mfma_stats', False) or 'nostats' in EXP: return
        l1 = a.new("st"); l2 = a.new("st")
        a(f"s_cmp_eq_u32 s{S_J}, 1")
        a(f"s_cbranch_scc1 {l1}")
        for x in P.stats_mfmas([rng(P.fragX(buf, 0, xi)) for xi in range(4)]): a(x)
        a(f"s_branch {l2}")
        a.label(l1)
        for x in P.stats_mfmas([rng(P.fragX(buf, 1, xi)) for xi in range(4)]): a(x)
        a.label(l2)
    block = make_block(a, P.RPM)
    cons_prologue(a, P, first)
    for x in reads(0): a(x)
    for x in slot_adv(P) + P.addr_update(): a(x)
    S = P.S
    npair = (S - 1)//2
    def step(cur, fill_extra=()):
        a("s_waitcnt lgkmcnt(0)")
        a("s_barrier")
        block(mfmas(cur), reads(1 - cur), slot_adv(P) + P.addr_update() + list(fill_extra))
        stats(cur)
    a(f"s_mov_b32 s{S_CNT}, {npair}")
    lp = a.new("cloop")
    if ALIGN: a.raw(f".p2align {ALIGN}")
    a.label(lp)
    step(0, [f"s_sub_u32 s{S_CNT}, s{S_CNT}, 1"])
    step(1)
    a(f"s_cmp_lg_u32 s{S_CNT}, 0")
    a(f"s_cbranch_scc1 {lp}")
    last = 0
    if (S - 1) % 2 == 1:
        step(0); last = 1
    a("s_waitcnt lgkmcnt(0)")
    block(mfmas(last), [])
    stats(last)
    cons_tail(a, P, first)

def ptr_wait(a):
    a("s_waitcnt lgkmcnt(0)")
    if PROFDBG: a(f"s_mov_b32 s{S_P0}, s98")
    srd(a, SRD_FLAG, ptr(KA_WS), WS_FLAG, 0x20000)

def cons_lane(a):
    a("v_and_b32 v3, 15, v2")
    a("v_lshrrev_b32 v4, 4, v2")

def x_addr_const(a, dst, rowbase_sgpr, rowbase_const=0):
    a("v_lshrrev_b32 v5, 1, v3")
    a("v_xor_b32 v5, v4, v5")
    a("v_lshlrev_b32 v5, 4, v5")
    a(f"v_lshl_add_u32 v{dst}, v3, 7, v5")
    if rowbase_sgpr is not None:
        a(f"s_lshl_b32 s{S_T0}, s{rowbase_sgpr}, 7")
        a(f"v_add_u32 v{dst}, s{S_T0}, v{dst}")
    if rowbase_const:
        a(f"v_add_u32 v{dst}, {rowbase_const*128}, v{dst}")

def w_addr_const(a, dst):
    a("v_lshrrev_b32 v5, 2, v3        ; r")
    a("v_lshl_add_u32 v6, v4, 3, v5   ; 8g+r")
    a("v_lshlrev_b32 v6, 7, v6")
    a("v_lshrrev_b32 v5, 1, v5        ; r>>1")
    a("v_and_b32 v7, 1, v4")
    a("v_lshl_or_b32 v5, v7, 1, v5    ; h")
    a("v_lshl_add_u32 v6, v5, 5, v6")
    a("v_and_b32 v5, 3, v3")
    a(f"v_lshl_add_u32 v{dst}, v5, 3, v6")

def t_write_addr(a, dst, base_const):
    a("v_lshrrev_b32 v5, 1, v4")
    a("v_and_b32 v6, 7, v3")
    a("v_xor_b32 v5, v5, v6")
    a("v_lshlrev_b32 v5, 4, v5")
    a("v_and_b32 v6, 1, v4")
    a("v_lshl_add_u32 v5, v6, 3, v5")
    a(f"v_lshl_add_u32 v{dst}, v3, 7, v5")
    a(f"v_add_u32 v{dst}, {base_const}, v{dst}")

def pad_init(a, P, row0, nzero_rows, ones_row):
    a("v_mov_b32 v12, 0"); a("v_mov_b32 v13, 0"); a("v_mov_b32 v14, 0"); a("v_mov_b32 v15, 0")
    a(f"v_mov_b32 v10, {hex(ONES)}")
    a("v_lshlrev_b32 v11, 4, v2        ; lane*16")
    for rep in range((P.NS + 3)//4):
        sk = a.new("pad")
        a(f"s_add_u32 s{S_T0}, s{S_W}, {4*rep}")
        a(f"s_cmp_ge_u32 s{S_T0}, {P.NS}")
        a(f"s_cbranch_scc1 {sk}")
        a(f"s_mul_i32 s{S_T0}, s{S_T0}, {P.STAGE}")
        nb = nzero_rows*128; off = 0
        while off < nb:
            lanes = min(64, (nb - off)//16)
            a(f"v_add_u32 v16, s{S_T0}, v11")
            if lanes < 64: set_exec(a, (1 << lanes) - 1)
            a(f"ds_write_b128 v16, v[12:15] offset:{row0*128 + off}")
            if lanes < 64: a("s_mov_b64 exec, -1")
            off += lanes*16
        if ones_row is not None:
            a(f"v_lshlrev_b32 v16, 2, v2")
            a(f"v_add_u32 v16, s{S_T0}, v16")
            set_exec(a, 0xffffffff)
            a(f"ds_write_b32 v16, v10 offset:{ones_row*128}")
            a("s_mov_b64 exec, -1")
        a.label(sk)

def store_pass(a, P, ny=0):
    a("v_lshrrev_b32 v3, 3, v2")
    a("v_and_b32 v4, 7, v2")
    a("v_xor_b32 v5, v4, v3")
    a("v_lshlrev_b32 v5, 4, v5")
    a("v_lshl_add_u32 v5, v3, 7, v5")
    a(f"s_lshl_b32 s{S_T0}, s{S_WAVE}, 10")
    a(f"v_add_u32 v5, s{S_T0}, v5")
    a(f"v_add_u32 v5, {P.TBASE}, v5")
    a(f"s_lshl_b32 s{S_T0}, s{S_WAVE}, 3")
    a(f"s_add_u32 s{S_T0}, s{S_T0}, s{S_R0}")
    a(f"v_add_u32 v6, s{S_T0}, v3")
    a(f"s_mov_b32 s{S_T1}, {P.ldo}")
    a(f"v_mul_lo_u32 v7, v6, s{S_T1}")
    a(f"s_lshl_b32 s{S_T0}, s{S_C0}, 1")
    a(f"v_lshl_add_u32 v7, v4, 4, v7")
    a(f"v_add_u32 v7, s{S_T0}, v7")
    a("v_mov_b32 v8, 0x80000000")
    P.ny = ny
    P.store_body(a)
    P.set_fidx(a)

def store_addr(a, k, dst, P, coloff=0):
    a(f"v_add_u32 v9, {64*k}, v6")
    a(f"v_cmp_gt_u32 vcc, s{S_REND}, v9")
    a(f"v_add_u32 v{dst}, {64*k*P.ldo + coloff}, v7")
    a("s_nop 0")
    a(f"v_cndmask_b32 v{dst}, v8, v{dst}, vcc")

class P1(Phase):
    key = 'p1'; kind = "p1"; NT = 255
    MV = 121; NC = 128; lda = 1280; ldb = 3840; ldo = 3840
    ABYTES = 16384; STAGE = 32768; NS = 4; S = 10
    NXMAX = 4; RPM = 1
    has_stage_work = False; has_e1 = True
    mfma_stats = True
    order2 = True
    GRAM = 96; SUMA = 112; VONES = 24
    modeS = True; NACC = 64
    def fragW(self, buf, kk, wi): return ('a', 64*buf + 16*kk + 4*wi)
    def fragX(self, buf, kk, xi):
        if buf == 0: return ('a', 32 + 16*kk + 4*xi)
        return ('v', 128 + 16*kk + 4*xi)
    scA = ""
    panel_coloff = [0, 128]; panel_srd = [SRD_B0, SRD_B0]
    LDS_ST = 131072; LDS_CS = 131072 + 2048
    TBASE = 2*32768
    rot = (5, 10, 2)
    Ains = [None, None, None, 'mask']
    Bins = [(0, 0), (0, 4), (1, 0), (1, 4)]
    def __init__(self):
        self.vXc, self.vWc = 8, 9
        self.vXa, self.vXb = 10, 11
        self.vW = [12, 13, 14, 15]
        self.xlist = [(self.vXa, self.vXb, 2048*x) for x in range(4)]
        self.wlist = [(self.vW[f], self.ABYTES) for f in range(4)]
        self.ACC = 32
        self.mf = [(x, f, self.ACC + 4*(4*x + f)) for x in range(4) for f in range(4)]
    def rot_start(self, a):
        if P1ROT == "lock":
            a(f"s_mov_b32 s{S_K}, 0"); return
        if P1ROT == "two":
            a(f"s_add_u32 s{S_K}, s{S_RT}, s{S_CT}")
            a(f"s_and_b32 s{S_K}, s{S_K}, 1")
            a(f"s_mul_i32 s{S_K}, s{S_K}, 5"); return
        if P1ROT == "ten":
            a(f"s_mul_i32 s{S_K}, s{S_RT}, 3")
            a(f"s_add_u32 s{S_K}, s{S_K}, s{S_CT}")
            divc(a, S_T0, S_K, 10)
            a(f"s_mul_i32 s{S_T0}, s{S_T0}, 10")
            a(f"s_sub_u32 s{S_K}, s{S_K}, s{S_T0}"); return
        a(f"s_add_u32 s{S_K}, s{S_RT}, s{S_CT}")
        divc(a, S_T0, S_K, 5)
        a(f"s_mul_i32 s{S_T0}, s{S_T0}, 5")
        a(f"s_sub_u32 s{S_K}, s{S_K}, s{S_T0}")
        a(f"s_lshl_b32 s{S_K}, s{S_K}, 1")
    def l2_prep(self, a): l2_setup(a, "rm", 250, 64, KA_WO, D*D*2, 1280, D)
    def mid_prefetch(self, a, s):
        if s == 8: return l2_issue(a, KA_WO, 1280, D)
    def mask_setup(self, a):
        a(f"s_cmp_eq_u32 s{S_W}, 3")
        a(f"s_cselect_b32 s{S_MASK}, 0xff, -1")
        a(f"s_cselect_b32 s{S_MASK+1}, 0, -1")
    def build_srds(self, a, role):
        if role == 'l':
            srd(a, SRD_A, ptr(KA_X), 0, S_TOK*D*2)
            srd(a, SRD_B0, ptr(KA_WQKV), 0, D*NQKV*2)
        srd(a, SRD_OUT, ptr(KA_WS), WS_QKV, S_TOK*NQKV*2)
    def set_fidx(self, a):
        a(f"s_mul_i32 s{S_FIDX}, s{S_RT}, 15")
        a(f"s_add_u32 s{S_FIDX}, s{S_FIDX}, s{S_CT}")
        a(f"s_lshl_b32 s{S_FIDX}, s{S_FIDX}, 7")
    def loader_post_first(self, a):
        pad_init(a, self, 121, 6, 127)
        return 0
    def stats_mfmas(self, xregs):
        m = []
        for x in range(4):
            xa = xregs[x]
            g = self.GRAM + 4*x; sm = self.SUMA + 4*x
            m.append(f"v_mfma_f32_16x16x32_bf16 v[{g}:{g+3}], {xa}, {xa}, v[{g}:{g+3}]")
            m.append(f"v_mfma_f32_16x16x32_bf16 v[{sm}:{sm+3}], v[{self.VONES}:{self.VONES+3}], {xa}, v[{sm}:{sm+3}]")
        return m
    def consumer_setup(self, a):
        cons_lane(a)
        a(f"s_lshr_b32 s{S_I}, s{S_WAVE}, 1")
        a(f"s_and_b32 s{S_J}, s{S_WAVE}, 1")
        a(f"s_lshl_b32 s{S_T1}, s{S_I}, 6")
        x_addr_const(a, self.vXc, S_T1)
        w_addr_const(a, self.vWc)
        a(f"s_lshl_b32 s{S_T0}, s{S_J}, 13")
        a(f"v_add_u32 v{self.vWc}, s{S_T0}, v{self.vWc}")
        for r in range(4): a(f"v_mov_b32 v{self.VONES+r}, {hex(ONES)}")
        for r in range(32): a(f"v_mov_b32 v{self.GRAM+r}, 0")
        a(f"s_lshl_b32 s{S_T0}, s{S_J}, 8       ; j*64*4")
        a(f"v_lshlrev_b32 v16, 4, v4            ; g*16 bytes")
        a(f"v_add_u32 v16, s{S_T0}, v16")
        a(f"v_add_u32 v16, {self.LDS_CS}, v16")
        t_write_addr(a, 17, self.TBASE)
        a(f"s_lshl_b32 s{S_T0}, s{S_WAVE}, 13")
        a(f"v_add_u32 v17, s{S_T0}, v17")
        for f in range(1, 4): a(f"v_xor_b32 v{17+f}, {32*f}, v17")
        a(f"s_lshl_b32 s{S_T0}, s{S_I}, 9       ; i*64*8")
        a(f"s_lshl_b32 s{S_T1}, s{S_J}, 10      ; j*128*8")
        a(f"s_add_u32 s{S_T1}, s{S_T1}, s{S_T0}")
        a(f"v_lshlrev_b32 v7, 3, v3")
        a(f"v_add_u32 v21, s{S_T1}, v7")
        a(f"v_add_u32 v21, {self.LDS_ST}, v21")
        a(f"v_add_u32 v22, s{S_T0}, v7")
        a(f"v_add_u32 v22, {self.LDS_ST}, v22")
        a("v_lshrrev_b32 v5, 3, v2             ; r8")
        a("v_and_b32 v6, 7, v2                 ; c")
        a("v_xor_b32 v7, v6, v5")
        a("v_lshlrev_b32 v7, 4, v7")
        a("v_lshl_add_u32 v23, v5, 7, v7")
        a(f"s_lshl_b32 s{S_T0}, s{S_WAVE}, 13")
        a(f"s_add_u32 s{S_T0}, s{S_T0}, {self.TBASE}")
        a(f"v_add_u32 v23, s{S_T0}, v23")
        a(f"s_lshl_b32 s{S_T0}, s{S_I}, 6")
        a(f"s_add_u32 s{S_T0}, s{S_T0}, s{S_R0}")
        a(f"v_add_u32 v28, s{S_T0}, v5")
        a(f"s_mov_b32 s{S_T1}, 3840")
        a(f"v_mul_lo_u32 v28, v28, s{S_T1}")
        a("v_lshl_add_u32 v28, v6, 4, v28")
        a(f"s_lshl_b32 s{S_T0}, s{S_J}, 6")
        a(f"s_add_u32 s{S_T0}, s{S_T0}, s{S_C0}")
        a(f"s_lshl_b32 s{S_T0}, s{S_T0}, 1")
        a(f"v_add_u32 v28, s{S_T0}, v28")
    def addr_update(self):
        r = [f"v_add_u32 v{self.vXa}, s{S_SLOT}, v{self.vXc}",
             f"v_add_u32 v{self.vW[0]}, s{S_SLOT}, v{self.vWc}",
             f"v_xor_b32 v{self.vXb}, 64, v{self.vXa}"]
        for f in range(1, len(self.vW)):
            r.append(f"v_xor_b32 v{self.vW[f]}, {32*f}, v{self.vW[0]}")
        return r
    stream_epi = True
    def epilogue(self, a):
        nocs = a.new("nocs")
        a(f"s_cmp_eq_u32 s{S_I}, 1")
        a(f"s_cbranch_scc0 {nocs}")
        set_exec(a, 0x8000800080008000)
        for f in range(4):
            acc = self.ACC + 4*(4*3 + f)
            a(f"ds_write_b128 v16, v[{acc}:{acc+3}] offset:{64*f}")
        a("s_mov_b64 exec, -1")
        a.label(nocs)
        for i_, m_ in enumerate((0x22222222, 0x44444444, 0x88888888)):
            a(f"s_mov_b32 s{80+2*i_}, {hex(m_)}"); a(f"s_mov_b32 s{81+2*i_}, {hex(m_)}")
        for x in range(4):
            g = self.GRAM + 4*x
            a(f"v_cndmask_b32 v{g+1}, v{g}, v{g+1}, s[80:81]")
            a(f"v_cndmask_b32 v{g+1}, v{g+1}, v{g+2}, s[82:83]")
            a(f"v_cndmask_b32 v{g+1}, v{g+1}, v{g+3}, s[84:85]")
            a(f"v_mov_b32 v{g}, v{self.SUMA+4*x}           ; sum")
        set_exec(a, 0xF | (0xF << 20) | (0xF << 40) | (0xF << 60))
        for x in range(4):
            g = self.GRAM + 4*x
            a(f"ds_write_b64 v21, v[{g}:{g+1}] offset:{128*x}")
        a("s_mov_b64 exec, -1")
        a("s_waitcnt lgkmcnt(0)")
        a("s_barrier      ; E1")
        CS = 128; ST = 144
        for x in range(4):
            a(f"ds_read_b64 v[{ST+2*x}:{ST+2*x+1}], v22 offset:{128*x}")
            a(f"ds_read_b64 v[{96+2*x}:{97+2*x}], v22 offset:{1024 + 128*x}")
        for f in range(4):
            a(f"ds_read_b128 v[{CS+4*f}:{CS+4*f+3}], v16 offset:{64*f}")
        a("s_waitcnt lgkmcnt(4)")
        for x in range(4):
            st = ST + 2*x
            a(f"v_pk_add_f32 v[{st}:{st+1}], v[{st}:{st+1}], v[{96+2*x}:{97+2*x}]")
            a(f"v_mul_f32 v{st}, {hex(f2u(1.0/D))}, v{st}          ; mean")
            a(f"v_mul_f32 v{st+1}, {hex(f2u(1.0/D))}, v{st+1}")
            a(f"v_fma_f32 v{st+1}, -v{st}, v{st}, v{st+1}      ; var")
            a(f"v_add_f32 v{st+1}, {hex(f2u(1e-5))}, v{st+1}")
            a(f"v_rsq_f32 v{st+1}, v{st+1}")
        a("s_waitcnt lgkmcnt(0)")
        RB = [96, 104]
        def stores(x):
            rb = RB[x & 1]
            for u in range(2):
                a(f"v_add_u32 v{29+u}, {(16*x + 8*u)*3840}, v28")
            for u in range(2):
                if x == 3 and u == 1:
                    a(f"s_cmp_eq_u32 s{S_I}, 1")
                    a("s_cselect_b32 exec_lo, 0xff, -1")
                    a("s_cselect_b32 exec_hi, 0, -1")
                a(f"buffer_store_dwordx4 v[{rb+4*u}:{rb+4*u+3}], v{29+u}, s[{SRD_OUT}:{SRD_OUT+3}], 0 offen{SC1}")
            if x == 3: a("s_mov_b64 exec, -1")
        for x in range(4):
            st = ST + 2*x
            for f in range(4):
                acc = self.ACC + 4*(4*x + f)
                for hh in (0, 2):
                    a(f"v_pk_fma_f32 v[{acc+hh}:{acc+hh+1}], v[{CS+4*f+hh}:{CS+4*f+hh+1}], v[{st}:{st+1}], v[{acc+hh}:{acc+hh+1}] op_sel_hi:[1,0,1] neg_lo:[0,1,0] neg_hi:[0,1,0]")
                for hh in (0, 2):
                    a(f"v_pk_mul_f32 v[{acc+hh}:{acc+hh+1}], v[{acc+hh}:{acc+hh+1}], v[{st}:{st+1}] op_sel:[0,1] op_sel_hi:[1,1]")
                a(f"v_cvt_pk_bf16_f32 v{acc}, v{acc}, v{acc+1}")
                a(f"v_cvt_pk_bf16_f32 v{acc+1}, v{acc+2}, v{acc+3}")
                a(f"ds_write_b64 v{17+f}, v[{acc}:{acc+1}] offset:{2048*x}")
            rb = RB[x & 1]
            if x >= 1:
                a("s_waitcnt lgkmcnt(4)")
                stores(x - 1)
            for u in range(2):
                a(f"ds_read_b128 v[{rb+4*u}:{rb+4*u+3}], v23 offset:{2048*x + 1024*u}")
        a("s_waitcnt lgkmcnt(0)")
        stores(3)


class P1F(Phase):
    key = 'p1'; kind = "p1f"; NT = 256
    MV = 64; NC = 80; lda = 1280; ldb = 3840
    ABYTES = 10240; STAGE = 40960; NS = 3; S = 10
    NXMAX = 5; RPM = 1
    has_e1 = True; fused = True; custom_B = True; order2 = True
    scA = ""
    Ains = [None, None, 'skip']
    Bins = [dict(lds=10240 + 4096*t) for t in range(7)] + [dict(lds=10240 + 4096*7, skip=2)]
    panel_srd = [SRD_B0]
    LDS_STP = 122880
    QT = 40960; QROW = 488
    OT = 81920; OROW = 176
    ACC = 32; GRAM = 112; SUMA = 132; VONES = 152
    mfma_stats4 = True
    def __init__(self):
        self.vXc = 8; self.vXa, self.vXb = 9, 10
        self.vWc = [11, 12, 13, 14]; self.vW = [15, 16, 17, 18]
        self.xlist = [(self.vXa, self.vXb, 2048*x) for x in range(5)]
        self.wlist = None
        self.mf = [(x, j, self.ACC + 4*(4*x + j)) for x in range(5) for j in range(4)]
    def rot_start(self, a):
        a(f"s_add_u32 s{S_K}, s{S_RT}, s{S_CT}")
        divc(a, S_T0, S_K, 5)
        a(f"s_mul_i32 s{S_T0}, s{S_T0}, 5")
        a(f"s_sub_u32 s{S_K}, s{S_K}, s{S_T0}")
        a(f"s_lshl_b32 s{S_K}, s{S_K}, 1")
    def tile_consts(self, a):
        a(f"s_lshl_b32 s{S_R0}, s{S_RT}, 6")
        a(f"s_sub_u32 s{S_R0}, s{S_R0}, 14")
        a(f"s_mul_i32 s{S_C0}, s{S_CT}, 160")
    def mask_setup(self, a):
        a(f"s_cmp_eq_u32 s{S_W}, 0")
        a(f"s_cselect_b32 s{S_MASK+1}, -1, 0xffff")
        a(f"s_cmp_lt_u32 s{S_W}, 2")
        a(f"s_cselect_b32 s{S_MASK}, -1, 0")
        a(f"s_cselect_b32 s{S_MASK+1}, s{S_MASK+1}, 0")
    def custom_B_setup(self, a, vb):
        a(f"s_lshl_b32 s{S_T0}, s{S_W}, 6")
        a(f"v_add_u32 v8, s{S_T0}, v2            ; c0")
        vdiv(a, 9, 8, 10, 256)
        a("v_mul_u32_u24 v10, 10, v9")
        a("v_sub_u32 v10, v8, v10                ; ch")
        a("v_mul_u32_u24 v11, 3840, v9")
        a("v_lshl_add_u32 v11, v10, 4, v11")
        a(f"v_add_u32 v{vb}, s{S_C0}, v11         ; voff t=0")
        for t in range(1, 8):
            a("v_add_u32 v10, 6, v10")
            a("v_add_u32 v9, 25, v9")
            a("v_cmp_le_u32 vcc, 10, v10")
            a(f"v_add_u32 v{vb+t}, {25*3840 + 96}, v{vb+t-1}")
            a("v_subrev_u32 v12, 10, v10")
            a("v_cndmask_b32 v10, v10, v12, vcc")
            a("v_addc_co_u32 v9, vcc, 0, v9, vcc") if False else None
            a(f"v_add_u32 v12, {3840 - 160}, v{vb+t}")
            a(f"v_cndmask_b32 v{vb+t}, v{vb+t}, v12, vcc")
            a("v_add_u32 v12, 1, v9")
            a("v_cndmask_b32 v9, v9, v12, vcc")
            a("v_cmp_le_u32 vcc, 64, v9")
            a(f"v_add_u32 v12, {(1280 - 64*3840) & 0xffffffff}, v{vb+t}")
            a("v_subrev_u32 v13, 64, v9")
            a(f"v_cndmask_b32 v{vb+t}, v{vb+t}, v12, vcc")
            a("v_cndmask_b32 v9, v9, v13, vcc")
    def build_srds(self, a, role):
        if role == 'l':
            srd(a, SRD_A, ptr(KA_X), 0, S_TOK*D*2)
            srd(a, SRD_B0, ptr(KA_WQKV), 0, D*NQKV*2)
        srd(a, SRD_OUT, ptr(KA_WS), WS_O, 0x280000)
    def set_fidx(self, a):
        a(f"s_lshl_b32 s{S_FIDX}, s{S_RT}, 3")
        a(f"s_add_u32 s{S_FIDX}, s{S_FIDX}, s{S_CT}")
        a(f"s_lshl_b32 s{S_FIDX}, s{S_FIDX}, 7")
        a(f"s_add_u32 s{S_FIDX}, s{S_FIDX}, 0x8000")
    def l2_prep(self, a): l2_setup(a, "rm", 250, 64, KA_WO, D*D*2, 1280, D)
    def mid_prefetch(self, a, s):
        if s == 9: return l2_issue(a, KA_WO, 1280, D)
    def loader_post_first(self, a):
        pad_init(a, self, 78, 1, 79)
        self.att_setup(a)
        return 0
    def att_setup(self, a):
        QT, QROW = self.QT, self.QROW
        a("v_and_b32 v3, 3, v2             ; i")
        a("v_bfe_u32 v4, v2, 2, 2          ; head")
        a("v_lshrrev_b32 v5, 4, v2         ; grp")
        a("v_lshrrev_b32 v6, 1, v5")
        a("v_lshlrev_b32 v6, 3, v6")
        a("v_and_b32 v7, 1, v5")
        a("v_add_u32 v6, v6, v7")
        a(f"s_lshl_b32 s{S_T0}, s{S_W}, 4")
        a(f"v_add_u32 v6, s{S_T0}, v6")
        a("v_lshlrev_b32 v7, 1, v3")
        a("v_add_u32 v7, v6, v7            ; rb + 2i")
        a(f"v_mul_u32_u24 v8, {QROW}, v7")
        a("v_mul_u32_u24 v9, 40, v4")
        a("v_add_u32 v8, v8, v9")
        a(f"v_add_u32 v144, {QT + 14*QROW}, v8")
        a(f"v_add_u32 v145, {QT + 160}, v8")
        a("v_cmp_eq_u32 vcc, 3, v3")
        a(f"v_mov_b32 v10, {16*QROW}")
        a(f"v_mov_b32 v11, {14*QROW}")
        a("v_cndmask_b32 v10, v10, v11, vcc")
        a("v_add_u32 v146, v145, v10")
        a(f"v_mul_u32_u24 v12, {self.OROW}, v7")
        a("v_add_u32 v12, v12, v9")
        a(f"v_add_u32 v118, {self.OT}, v12")
        a("v_lshlrev_b32 v12, 1, v4               ; 2r")
        a("v_add_u32 v12, v6, v12")
        a(f"v_mul_u32_u24 v12, {QROW}, v12")
        a("v_mul_u32_u24 v13, 40, v3")
        a("v_add_u32 v12, v12, v13")
        a(f"v_add_u32 v147, {QT + 320}, v12")
        a("v_cmp_eq_u32 vcc, 3, v4")
        a(f"v_mov_b32 v10, {16*QROW}")
        a("s_nop 0")
        a("v_cndmask_b32 v10, v10, v11, vcc")
        a("v_add_u32 v119, v147, v10")
        a(f"v_mov_b32 v12, {hex(f2u(-1e30))}")
        a("v_mov_b32 v13, 0")
        a(f"v_add_u32 v14, s{S_R0}, v6")
        for m in range(12):
            a(f"v_sub_u32 v15, {m}, v3")
            a("v_cmp_gt_u32 vcc, 8, v15")
            a(f"v_add_u32 v16, {2*m}, v14")
            a("v_cmp_le_i32 s[4:5], 0, v16")
            a("s_nop 1")
            a("s_and_b64 vcc, vcc, s[4:5]")
            a(f"v_cndmask_b32 v{120+m}, v12, v13, vcc")
        self.store_addr_setup(a)
    def store_addr_setup(self, a, regs=(148, 149, 156, 157), tmp=3):
        lm, lt, gm, gt = regs
        t0, t1, t2 = tmp, tmp + 1, tmp + 2
        a(f"v_lshrrev_b32 v{t0}, 3, v2             ; r8")
        a(f"v_and_b32 v{t1}, 7, v2                 ; p")
        a(f"s_lshl_b32 s{S_T0}, s{S_WAVE}, 3")
        a(f"v_add_u32 v{t2}, s{S_T0}, v{t0}")
        a(f"v_mul_u32_u24 v{lm}, {self.OROW}, v{t2}")
        a(f"v_lshl_add_u32 v{lm}, v{t1}, 4, v{lm}")
        a(f"v_add_u32 v{lm}, {self.OT}, v{lm}")
        a(f"s_add_u32 s{S_T0}, s{S_R0}, 14          ; T0")
        a(f"v_add_u32 v{gm}, s{S_T0}, v{t2}")
        a(f"v_lshlrev_b32 v{gm}, 10, v{gm}")
        a(f"v_lshl_add_u32 v{gm}, v{t1}, 4, v{gm}")
        a(f"s_lshl_b32 s{S_T1}, s{S_CT}, 7          ; hg*128")
        a(f"v_add_u32 v{gm}, s{S_T1}, v{gm}")
        a(f"v_lshrrev_b32 v{t0}, 1, v{t1}")
        a(f"v_lshl_add_u32 v{t0}, v{t2}, 2, v{t0}   ; token")
        a(f"v_mul_u32_u24 v{lt}, {self.OROW}, v{t0}")
        a(f"v_and_b32 v{t0}, 1, v{t1}")
        a(f"v_lshl_add_u32 v{lt}, v{t0}, 4, v{lt}")
        a(f"v_add_u32 v{lt}, {self.OT + 128}, v{lt}")
        a(f"s_lshr_b32 s{S_T0}, s{S_T0}, 2          ; T0/4")
        a(f"v_add_u32 v{gt}, s{S_T0}, v{t2}")
        a(f"v_lshlrev_b32 v{gt}, 10, v{gt}")
        a(f"v_lshl_add_u32 v{gt}, v{t1}, 4, v{gt}")
        a(f"s_add_u32 s{S_T1}, s{S_T1}, 0x200000")
        a(f"v_add_u32 v{gt}, s{S_T1}, v{gt}")
    def o_stores(self, a):
        a(f"ds_read_b128 v[20:23], v148")
        sk = a.new("ost")
        a(f"s_cmp_ge_u32 s{S_WAVE}, 2")
        a(f"s_cbranch_scc1 {sk}")
        a(f"ds_read_b128 v[24:27], v149")
        a("s_waitcnt lgkmcnt(0)")
        a(f"buffer_store_dwordx4 v[24:27], v157, s[{SRD_OUT}:{SRD_OUT+3}], 0 offen{OSC}")
        a.label(sk)
        a("s_waitcnt lgkmcnt(0)")
        a(f"buffer_store_dwordx4 v[20:23], v156, s[{SRD_OUT}:{SRD_OUT+3}], 0 offen{OSC}")
    def loader_fused_tail(self, a):
        l2_setup(a, "p3", 243, 64, KA_WG, D*F*2, 3456, D)
        a("s_barrier      ; E1")
        l2_issue(a, KA_WG, 3456, D)
        a("s_barrier")
        Q = 16; KR = 32; VR = 62; SC = 92; BIAS = 120; PB = 104
        QROW = self.QROW
        for dg in range(5):
            a(f"ds_read_b64 v[{Q+2*dg}:{Q+2*dg+1}], v144 offset:{8*dg}")
        for kb in range(3):
            for dg in range(5):
                r = KR + 2*(5*kb + dg)
                if kb < 2: a(f"ds_read_b64 v[{r}:{r+1}], v145 offset:{8*QROW*kb + 8*dg}")
                else: a(f"ds_read_b64 v[{r}:{r+1}], v146 offset:{8*dg}")
        scale = (D // 32) ** -0.5
        c1 = scale * 1.4426950408889634
        a(f"s_mov_b32 s{S_T2}, {hex(f2u(c1))}")
        a("s_waitcnt lgkmcnt(0)")
        for kb in range(3):
            for dg in range(5):
                r = VR + 2*(5*kb + dg)
                if kb < 2: a(f"ds_read_b64_tr_b16 v[{r}:{r+1}], v147 offset:{8*QROW*kb + 8*dg}")
                else: a(f"ds_read_b64_tr_b16 v[{r}:{r+1}], v119 offset:{8*dg}")
        for dg in range(5):
            for kb in range(3):
                r = KR + 2*(5*kb + dg); sc = SC + 4*kb
                c = "0" if dg == 0 else f"v[{sc}:{sc+3}]"
                a(f"v_mfma_f32_4x4x4_16b_bf16 v[{sc}:{sc+3}], v[{r}:{r+1}], v[{Q+2*dg}:{Q+2*dg+1}], {c}")
        a("s_nop 4")
        for m in range(12):
            a(f"v_fma_f32 v{SC+m}, v{SC+m}, s{S_T2}, v{BIAS+m}")
        a(f"v_max3_f32 v14, v{SC}, v{SC+1}, v{SC+2}")
        a(f"v_max3_f32 v15, v{SC+3}, v{SC+4}, v{SC+5}")
        a(f"v_max3_f32 v14, v14, v{SC+6}, v{SC+7}")
        a(f"v_max3_f32 v15, v15, v{SC+8}, v{SC+9}")
        a(f"v_max3_f32 v14, v14, v{SC+10}, v{SC+11}")
        a("v_max_f32 v14, v14, v15")
        for m in range(12):
            a(f"v_sub_f32 v{SC+m}, v{SC+m}, v14")
        for m in range(12):
            a(f"v_exp_f32 v{SC+m}, v{SC+m}")
        a(f"v_add_f32 v14, v{SC}, v{SC+1}")
        a(f"v_add_f32 v15, v{SC+2}, v{SC+3}")
        for m in range(4, 12, 2):
            a(f"v_add_f32 v14, v14, v{SC+m}")
            a(f"v_add_f32 v15, v15, v{SC+m+1}")
        a("v_add_f32 v14, v14, v15")
        a("v_rcp_f32 v14, v14")
        a("s_nop 0")
        for m in range(12):
            a(f"v_mul_f32 v{SC+m}, v{SC+m}, v14")
        for m in range(0, 12, 2):
            a(f"v_cvt_pk_bf16_f32 v{PB+m//2}, v{SC+m}, v{SC+m+1}")
        a("s_waitcnt lgkmcnt(0)")
        a("s_nop 0")
        OA = 32
        for kb in range(3):
            for dg in range(5):
                r = VR + 2*(5*kb + dg); o = OA + 4*dg
                c = "0" if kb == 0 else f"v[{o}:{o+3}]"
                a(f"v_mfma_f32_4x4x4_16b_bf16 v[{o}:{o+3}], v[{r}:{r+1}], v[{PB+2*kb}:{PB+2*kb+1}], {c}")
        a("s_nop 5")
        for dg in range(5):
            o = OA + 4*dg
            a(f"v_cvt_pk_bf16_f32 v{Q+2*dg}, v{o}, v{o+1}")
            a(f"v_cvt_pk_bf16_f32 v{Q+2*dg+1}, v{o+2}, v{o+3}")
            a(f"ds_write_b64 v118, v[{Q+2*dg}:{Q+2*dg+1}] offset:{8*dg}")
        a("s_waitcnt lgkmcnt(0)")
        a("s_barrier")
        self.o_stores(a)
        self.set_fidx(a)
    def consumer_setup(self, a):
        cons_lane(a)
        x_addr_const(a, self.vXc, None)
        a("v_lshrrev_b32 v5, 2, v3        ; r")
        a("v_lshl_add_u32 v5, v4, 3, v5   ; 8g + r")
        a("v_mul_u32_u24 v5, 160, v5")
        a("v_and_b32 v6, 3, v3")
        a("v_lshl_add_u32 v5, v6, 3, v5")
        for j in range(4):
            a(f"s_lshl_b32 s{S_T0}, s{S_WAVE}, 2")
            a(f"s_add_u32 s{S_T0}, s{S_T0}, {j}")
            a(f"s_min_u32 s{S_T0}, s{S_T0}, 14")
            divc(a, S_T1, S_T0, 5)
            a(f"s_mul_i32 s{S_T2}, s{S_T1}, 5")
            a(f"s_sub_u32 s{S_T2}, s{S_T0}, s{S_T2}       ; f%5")
            a(f"s_lshl_b32 s{S_T2}, s{S_T2}, 5")
            a(f"s_mul_i32 s{S_T3}, s{S_T1}, 10240")
            a(f"s_add_u32 s{S_T3}, s{S_T3}, s{S_T2}")
            a(f"s_add_u32 s{S_T3}, s{S_T3}, {self.ABYTES}")
            a(f"v_add_u32 v{self.vWc[j]}, s{S_T3}, v5")
            a(f"s_mul_i32 s{S_T3}, s{S_T1}, 160")
            a(f"s_add_u32 s{S_T3}, s{S_T3}, s{S_T2}")
            a(f"s_add_u32 s{S_T3}, s{S_T3}, {self.QT}")
            a(f"v_mul_u32_u24 v6, {self.QROW}, v3")
            a("v_lshl_add_u32 v6, v4, 3, v6")
            a(f"v_add_u32 v{20+j}, s{S_T3}, v6")
        for r in range(4): a(f"v_mov_b32 v{self.VONES+r}, {hex(ONES)}")
        for r in range(40): a(f"v_mov_b32 v{self.GRAM+r}, 0")
        a("v_lshlrev_b32 v25, 3, v3")
        a(f"v_add_u32 v25, {self.LDS_STP}, v25")
        a(f"s_mul_i32 s{S_T0}, s{S_WAVE}, 640")
        a(f"v_add_u32 v24, s{S_T0}, v25")
        a(f"s_mov_b32 s{S_N1}, 0")
        self.store_addr_setup_c(a)
        NW = 4
        self.wlist = [(self.vW[j], 0) for j in range(4)]
        self.wstep = (5120, 640)
    def store_addr_setup_c(self, a):
        self.store_addr_setup(a, regs=(26, 27, 28, 29), tmp=5)
    def addr_update(self):
        r = [f"v_add_u32 v{self.vXa}, s{S_SLOT}, v{self.vXc}"]
        r += [f"v_add_u32 v{self.vW[j]}, s{S_SLOT}, v{self.vWc[j]}" for j in range(4)]
        r += [f"v_xor_b32 v{self.vXb}, 64, v{self.vXa}"]
        return r
    def stats_mfmas(self, xregs):
        m = []
        for x in range(5):
            xa = xregs[x]
            g = self.GRAM + 4*x; sm = self.SUMA + 4*x
            m.append(f"v_mfma_f32_16x16x32_bf16 v[{g}:{g+3}], {xa}, {xa}, v[{g}:{g+3}]")
            m.append(f"v_mfma_f32_16x16x32_bf16 v[{sm}:{sm+3}], v[{self.VONES}:{self.VONES+3}], {xa}, v[{sm}:{sm+3}]")
        return m
    def epilogue(self, a):
        for i_, m_ in enumerate((0x22222222, 0x44444444, 0x88888888)):
            a(f"s_mov_b32 s{80+2*i_}, {hex(m_)}"); a(f"s_mov_b32 s{81+2*i_}, {hex(m_)}")
        for x in range(5):
            g = self.GRAM + 4*x
            a(f"v_cndmask_b32 v{g+1}, v{g}, v{g+1}, s[80:81]")
            a(f"v_cndmask_b32 v{g+1}, v{g+1}, v{g+2}, s[82:83]")
            a(f"v_cndmask_b32 v{g+1}, v{g+1}, v{g+3}, s[84:85]")
            a(f"v_mov_b32 v{g}, v{self.SUMA+4*x}")
        set_exec(a, 0xF | (0xF << 20) | (0xF << 40) | (0xF << 60))
        for x in range(5):
            g = self.GRAM + 4*x
            a(f"ds_write_b64 v24, v[{g}:{g+1}] offset:{128*x}")
        a("s_mov_b64 exec, -1")
        CS = 132
        for j in range(4):
            acc = self.ACC + 4*(4*4 + j)
            for r in range(4):
                a(f"v_mov_b32_dpp v{CS+4*j+r}, v{acc+r} row_newbcast:15 row_mask:0xf bank_mask:0xf")
        a("s_waitcnt lgkmcnt(0)")
        a("s_barrier      ; E1")
        ST = 8
        TM = 112
        for x in range(5):
            for wv in range(4):
                if x < 5:
                    pass
        for x in range(5):
            base = TM + 4*x if False else None
        regs = {0: 112, 1: 120, 2: 112, 3: 120, 4: 112}
        def rd(x):
            for wv in range(4):
                r = regs[x] + 2*wv
                a(f"ds_read_b64 v[{r}:{r+1}], v25 offset:{640*wv + 128*x}")
        def fin(x):
            r = regs[x]; st = ST + 2*x
            a(f"v_pk_add_f32 v[{r}:{r+1}], v[{r}:{r+1}], v[{r+2}:{r+3}]")
            a(f"v_pk_add_f32 v[{r+4}:{r+5}], v[{r+4}:{r+5}], v[{r+6}:{r+7}]")
            a(f"v_pk_add_f32 v[{st}:{st+1}], v[{r}:{r+1}], v[{r+4}:{r+5}]")
            a(f"v_mul_f32 v{st}, {hex(f2u(1.0/D))}, v{st}")
            a(f"v_mul_f32 v{st+1}, {hex(f2u(1.0/D))}, v{st+1}")
            a(f"v_fma_f32 v{st+1}, -v{st}, v{st}, v{st+1}")
            a(f"v_add_f32 v{st+1}, {hex(f2u(1e-5))}, v{st+1}")
            a(f"v_rsq_f32 v{st+1}, v{st+1}")
        rd(0); rd(1)
        a("s_waitcnt lgkmcnt(4)"); fin(0); rd(2)
        a("s_waitcnt lgkmcnt(4)"); fin(1); rd(3)
        a("s_waitcnt lgkmcnt(4)"); fin(2); rd(4)
        a("s_waitcnt lgkmcnt(4)"); fin(3)
        a("s_waitcnt lgkmcnt(0)"); fin(4)
        a("s_nop 0")
        for x in range(5):
            st = ST + 2*x
            for j in range(4):
                acc = self.ACC + 4*(4*x + j)
                for hh in (0, 2):
                    a(f"v_pk_fma_f32 v[{acc+hh}:{acc+hh+1}], v[{CS+4*j+hh}:{CS+4*j+hh+1}], v[{st}:{st+1}], v[{acc+hh}:{acc+hh+1}] op_sel_hi:[1,0,1] neg_lo:[0,1,0] neg_hi:[0,1,0]")
                for hh in (0, 2):
                    a(f"v_pk_mul_f32 v[{acc+hh}:{acc+hh+1}], v[{acc+hh}:{acc+hh+1}], v[{st}:{st+1}] op_sel:[0,1] op_sel_hi:[1,1]")
                a(f"v_cvt_pk_bf16_f32 v{acc}, v{acc}, v{acc+1}")
                a(f"v_cvt_pk_bf16_f32 v{acc+1}, v{acc+2}, v{acc+3}")
                a(f"ds_write_b64 v{20+j}, v[{acc}:{acc+1}] offset:{16*x*self.QROW}")
        a("s_waitcnt lgkmcnt(0)")
        a("s_barrier")
        a("s_barrier")
        a(f"ds_read_b128 v[32:35], v26")
        sk = a.new("ost")
        a(f"s_cmp_ge_u32 s{S_WAVE}, 2")
        a(f"s_cbranch_scc1 {sk}")
        a(f"ds_read_b128 v[36:39], v27")
        a("s_waitcnt lgkmcnt(0)")
        a(f"buffer_store_dwordx4 v[36:39], v29, s[{SRD_OUT}:{SRD_OUT+3}], 0 offen{OSC}")
        a.label(sk)
        a("s_waitcnt lgkmcnt(0)")
        a(f"buffer_store_dwordx4 v[32:35], v28, s[{SRD_OUT}:{SRD_OUT+3}], 0 offen{OSC}")
    stream_epi = True

class P24(Phase):
    kind = "rm"; NT = 250
    MV = 82; NC = 64; ldb = 1280; ldo = 1280
    ABYTES = 12288; STAGE = 20480; NS = 7
    NXMAX = 3; RPM = 2
    modeS = True; NACC = 24
    def fragW(self, buf, kk, wi): return ('a', 40*buf + 8*kk + 4*wi)
    def fragX(self, buf, kk, xi): return ('a', 40*buf + 16 + 12*kk + 4*xi)
    scA = SC1
    panel_coloff = [0]; panel_srd = [SRD_B0]
    TBASE = 0
    Ains = [None, None, 'skip']
    Bins = [(0, 0), (0, 4)]
    prefetchB = 7
    def __init__(self, which):
        self.which = which
        if which == 2:
            self.key = 'p2'; self.lda = 1024 if FUSE else 1280; self.S = 10; self.rot = (4, 13, 2)
            self.oprime = FUSE
        else:
            self.key = 'p4'; self.lda = 3456; self.S = 27; self.rot = (11, 36, 2)
        assert (self.S - 1) % self.NS != 0
        self.vXc, self.vWc = 8, 9
        self.vXa, self.vXb = 10, 11
        self.vW = [12, 13]
        self.xlist = [(self.vXa, self.vXb, 2048*x) for x in range(3)]
        self.wlist = [(self.vW[f], self.ABYTES) for f in range(2)]
        self.ACC = 32
        self.mf = [(x, f, self.ACC + 4*(2*x + f)) for x in range(3) for f in range(2)]
    def l2_prep(self, a):
        if self.which == 2: l2_setup(a, "p3", 243, 64, KA_WU, D*F*2, 3456, D)
    @property
    def gate(self): return GATE4 if (GATE and self.which == 4) else None
    def mid_prefetch(self, a, s):
        if self.which == 2 and s == 8: return l2_issue(a, KA_WU, 3456, D)
    def mask_setup(self, a):
        a(f"s_cmp_lt_u32 s{S_W}, 2")
        a(f"s_cselect_b32 s{S_MASK}, -1, 0xffff")
        a(f"s_cselect_b32 s{S_MASK+1}, -1, 0")
        a(f"s_cmp_eq_u32 s{S_W}, 3")
        a(f"s_cselect_b32 s{S_MASK}, 0, s{S_MASK}")
    def build_srds(self, a, role):
        if self.which == 2:
            if role == 'l':
                srd(a, SRD_A, ptr(KA_WS), WS_O, 0x280000 if FUSE else S_TOK*D*2)
                srd(a, SRD_B0, ptr(KA_WO), 0, D*D*2)
            srd(a, SRD_OUT, ptr(KA_WS), WS_H, S_TOK*D*2)
            srd(a, SRD_AUX, ptr(KA_X), 0, S_TOK*D*2)
            srd(a, SRD_ST, ptr(KA_WS), WS_ST, 250*1536)
        else:
            if role == 'l':
                srd(a, SRD_A, ptr(KA_WS), WS_HH, S_TOK*F*2)
                srd(a, SRD_B0, ptr(KA_WD), 0, F*D*2)
            srd(a, SRD_OUT, ptr(KA_OUT), 0, S_TOK*D*2)
            srd(a, SRD_AUX, ptr(KA_WS), WS_H, S_TOK*D*2)
    def dep_range(self, a):
        if self.which == 2:
            sh = 6 if FUSE else 4
            a(f"s_lshr_b32 s{S_T0}, s{S_R0}, {sh}")
            a(f"s_sub_u32 s{S_T1}, s{S_REND}, 1")
            a(f"s_lshr_b32 s{S_T1}, s{S_T1}, {sh}")
        else:
            sdiv(a, S_T0, S_R0, 228, 2100)
            a(f"s_sub_u32 s{S_T1}, s{S_REND}, 1")
            sdiv(a, S_T1, S_T1, 228, 2100)
    def deps_first(self, a):
        first_ks(a, self)
        if self.which == 2 and FUSE:
            for src, dst in ((S_K, S_T2), (S_KB, S_T3)):
                a(f"s_lshl_b32 s{dst}, 1, s{src}")
                a(f"s_sub_u32 s{S_T4}, s{src}, 8")
                a(f"s_lshl_b32 s{S_T4}, s{S_T4}, 2")
                a(f"s_lshl_b32 s{S_T4}, 15, s{S_T4}")
                a(f"s_cmp_ge_u32 s{src}, 8")
                a(f"s_cselect_b32 s{dst}, s{S_T4}, s{dst}")
            a(f"s_or_b32 s{S_T2}, s{S_T2}, s{S_T3}")
            self.dep_range(a)
            skip = a.new("pollskip")
            a(f"s_cmp_eq_u32 s{S_WAVE}, 0")
            a(f"s_cbranch_scc0 {skip}")
            a("v_and_b32 v141, 7, v2                 ; group j")
            a(f"v_lshrrev_b32 v142, v141, s{S_T2}") if False else None
            a(f"v_mov_b32 v142, s{S_T2}")
            a("v_lshrrev_b32 v142, v141, v142")
            a("v_and_b32 v142, 1, v142")
            a("v_lshrrev_b32 v140, 3, v2")
            a(f"v_add_u32 v140, s{S_T0}, v140")
            a(f"v_cmp_ge_u32 vcc, s{S_T1}, v140")
            a("v_cmp_eq_u32 s[82:83], 1, v142")
            a("v_lshl_add_u32 v140, v140, 3, v141")
            a("v_lshlrev_b32 v140, 7, v140")
            a("v_add_u32 v140, 0x8000, v140")
            a("s_and_b64 vcc, vcc, s[82:83]")
            poll_core(a)
            a.label(skip)
            return
        if self.which == 2:
            for r in (S_K, S_KB):
                a(f"s_cmp_ge_u32 s{r}, 5")
                a(f"s_cselect_b32 s{r}, 1, 0")
        self.dep_range(a)
        if self.gate: poll_first_g(a, S_T0, S_T1, 27, S_K, self.S, self.gate[0], 0x18000)
        else: poll_first(a, S_T0, S_T1, 2 if self.which == 2 else 27, S_K, S_KB, 0x8000 if self.which == 2 else 0x18000)
    def deps(self, a, wave=0):
        W = (8 if FUSE else 2) if self.which == 2 else 27
        self.dep_range(a)
        a(f"s_mul_i32 s{S_T0}, s{S_T0}, {W}")
        a(f"s_add_u32 s{S_T1}, s{S_T1}, 1")
        a(f"s_mul_i32 s{S_T1}, s{S_T1}, {W}")
        poll(a, S_T0, S_T1, 0x8000 if self.which == 2 else 0x18000, wave)
    def set_fidx(self, a):
        if self.which == 2:
            a(f"s_mul_i32 s{S_FIDX}, s{S_RT}, 10")
            a(f"s_add_u32 s{S_FIDX}, s{S_FIDX}, s{S_CT}")
            a(f"s_lshl_b32 s{S_FIDX}, s{S_FIDX}, 7")
            a(f"s_add_u32 s{S_FIDX}, s{S_FIDX}, 0x10000")
        else:
            a(f"s_mov_b32 s{S_FIDX}, -1")
    def loader_post_first(self, a):
        pad_init(a, self, 82, 14, None)
        return 0
    def consumer_setup(self, a):
        cons_lane(a)
        a(f"s_lshr_b32 s{S_I}, s{S_WAVE}, 1")
        a(f"s_and_b32 s{S_J}, s{S_WAVE}, 1")
        a(f"s_mul_i32 s{S_T1}, s{S_I}, 48")
        x_addr_const(a, self.vXc, S_T1)
        w_addr_const(a, self.vWc)
        a(f"s_lshl_b32 s{S_T0}, s{S_J}, 6      ; f0 = 2j -> xor 64j")
        a(f"v_xor_b32 v{self.vWc}, s{S_T0}, v{self.vWc}")
        t_write_addr(a, 17, self.TBASE)
        a(f"s_mul_i32 s{S_T0}, s{S_I}, {48*128}")
        a(f"v_add_u32 v17, s{S_T0}, v17")
        a(f"s_lshl_b32 s{S_T0}, s{S_J}, 6")
        a(f"v_xor_b32 v17, s{S_T0}, v17        ; f0 = 2j")
        a(f"v_xor_b32 v18, 32, v17")
    def addr_update(self):
        return P1.addr_update(self)
    def epilogue(self, a):
        for x in range(3):
            for f in range(2):
                acc = self.ACC + 4*(2*x + f)
                a(f"v_cvt_pk_bf16_f32 v{acc}, v{acc}, v{acc+1}")
                a(f"v_cvt_pk_bf16_f32 v{acc+1}, v{acc+2}, v{acc+3}")
                a(f"ds_write_b64 v{17+f}, v[{acc}:{acc+1}] offset:{2048*x}")
    RES = 100
    early_pre = True
    def early_setup(self, a):
        a("v_lshrrev_b32 v112, 3, v2")
        a("v_and_b32 v113, 7, v2")
        a("v_xor_b32 v108, v113, v112")
        a("v_lshlrev_b32 v108, 4, v108")
        a("v_lshl_add_u32 v108, v112, 7, v108")
        a(f"s_lshl_b32 s{S_T0}, s{S_WAVE}, 10")
        a(f"s_add_u32 s{S_T0}, s{S_T0}, {self.TBASE}")
        a(f"v_add_u32 v108, s{S_T0}, v108")
        a(f"s_lshl_b32 s{S_T0}, s{S_WAVE}, 3")
        a(f"s_add_u32 s{S_T0}, s{S_T0}, s{S_R0}")
        a(f"v_add_u32 v111, s{S_T0}, v112")
        a("v_mul_u32_u24 v109, 1280, v111")
        a(f"s_lshl_b32 s{S_T0}, s{S_C0}, 1")
        a("v_lshl_add_u32 v109, v113, 4, v109")
        a(f"v_add_u32 v109, s{S_T0}, v109")
        a(f"v_add_u32 v110, {64*1280}, v109")
        a("v_mov_b32 v114, 0x80000000")
        a(f"v_cmp_gt_u32 vcc, s{S_REND}, v111")
        a(f"v_add_u32 v115, 64, v111")
        a("s_nop 0")
        a("v_cndmask_b32 v109, v114, v109, vcc")
        a(f"v_cmp_gt_u32 vcc, s{S_REND}, v115")
        a("s_nop 1")
        a("v_cndmask_b32 v110, v114, v110, vcc")
        sc = SC1 if self.which == 4 else ""
        a(f"buffer_load_dwordx4 v[{self.RES}:{self.RES+3}], v109, s[{SRD_AUX}:{SRD_AUX+3}], 0 offen{sc}")
        a(f"buffer_load_dwordx4 v[{self.RES+4}:{self.RES+7}], v110, s[{SRD_AUX}:{SRD_AUX+3}], 0 offen{sc}")
        return 2
    def store_fast(self, a):
        sdone = a.new("sdone")
        sc = SC1 if self.which == 2 else OUTSC
        for k in range(2):
            a(f"ds_read_b128 v[{16+4*k}:{19+4*k}], v108 offset:{k*8192}")
        if self.which == 2:
            a(f"v_mov_b32 v26, {hex(ONES)}")
        a(f"s_waitcnt vmcnt(0) lgkmcnt(0)")
        for k in range(2):
            if k == 1:
                a(f"s_cmp_ge_u32 s{S_WAVE}, 3")
                a(f"s_cbranch_scc1 {sdone}")
            T = 16 + 4*k; R = self.RES + 4*k
            for d in range(4):
                a(f"v_lshlrev_b32 v28, 16, v{T+d}")
                a(f"v_and_b32 v29, 0xffff0000, v{T+d}")
                a(f"v_lshlrev_b32 v30, 16, v{R+d}")
                a(f"v_and_b32 v31, 0xffff0000, v{R+d}")
                a(f"v_pk_add_f32 v[28:29], v[28:29], v[30:31]")
                a(f"v_cvt_pk_bf16_f32 v{T+d}, v28, v29")
            a(f"buffer_store_dwordx4 v[{T}:{T+3}], v{109+k}, s[{SRD_OUT}:{SRD_OUT+3}], 0 offen{sc}")
            if self.which == 2:
                a("v_mov_b32 v24, 0"); a("v_mov_b32 v25, 0")
                a("s_nop 0")
                for d in range(4):
                    a(f"v_dot2_f32_bf16 v24, v{T+d}, v26, v24")
                    a(f"v_dot2_f32_bf16 v25, v{T+d}, v{T+d}, v25")
                a("s_nop 2")
                for dpp in ("quad_perm:[1,0,3,2]", "quad_perm:[2,3,0,1]", "row_half_mirror"):
                    a(f"v_add_f32_dpp v24, v24, v24 {dpp} row_mask:0xf bank_mask:0xf")
                    a(f"v_add_f32_dpp v25, v25, v25 {dpp} row_mask:0xf bank_mask:0xf")
                    a("s_nop 0")
                a(f"s_mul_i32 s{S_T0}, s{S_RT}, 10")
                a(f"s_add_u32 s{S_T0}, s{S_T0}, s{S_CT}")
                a(f"s_mul_i32 s{S_T0}, s{S_T0}, 1536")
                a(f"s_lshl_b32 s{S_T1}, s{S_WAVE}, 7")
                a(f"s_add_u32 s{S_T0}, s{S_T0}, s{S_T1}")
                a(f"v_lshrrev_b32 v9, 3, v2")
                a(f"v_lshlrev_b32 v9, 4, v9")
                a(f"v_add_u32 v9, s{S_T0}, v9")
                a("v_mov_b32 v12, v24"); a("v_mov_b32 v13, v25"); a("v_mov_b32 v14, 0"); a("v_mov_b32 v15, 0")
                set_exec(a, 0x0101010101010101)
                a(f"buffer_store_dwordx4 v[12:15], v9, s[{SRD_ST}:{SRD_ST+3}], 0 offen offset:{1024*k}{SC1}")
                a("s_mov_b64 exec, -1")
        a.label(sdone)

class P3(Phase):
    key = 'p3'; kind = "p3"; NT = 243
    MV = 228; NC = 64; lda = 1280; ldb = 3456; ldo = 3456
    ABYTES = 30720; STAGE = 47104; NS = 3; S = 10
    NXMAX = 8; RPM = 1
    has_e1 = True
    scA = SC1
    panel_coloff = [0, 0]; panel_srd = [SRD_B0, SRD_B1]
    LDS_ST = 47104*3; LDS_CS = 47104*3 + 1920
    TBASE = 47104
    rot = (4, 13, 2)
    Ains = [None]*7 + ['skip']
    Bins = [(0, 0), (0, 4), (1, 0), (1, 4)]
    prefetchB = 3
    def __init__(self):
        self.vXc, self.vXsc, self.vWc = 8, 9, 10
        self.vXa, self.vXb, self.vXsa, self.vXsb = 11, 12, 13, 14
        self.vW = [15, 16]
        self.xlist = [(self.vXa, self.vXb, 2048*x) for x in range(7)] + [(self.vXsa, self.vXsb, 0)]
        G, U = self.ABYTES, self.ABYTES + 8192
        self.wlist = [(self.vW[0], G), (self.vW[0], U), (self.vW[1], G), (self.vW[1], U)]
        self.ACC = 32
        self.mf = []
        acc = self.ACC
        self.accmap = {}
        for x in range(8):
            for wi in range(4):
                if x == 7 and wi >= 2: continue
                self.mf.append((x, wi, acc)); self.accmap[(x, wi)] = acc; acc += 4
        assert acc == 32 + 120
    @property
    def unroll(self): return l2_on(KA_WD)
    def l2_prep(self, a): l2_setup(a, "rm", 250, 64, KA_WD, F*D*2, 1280, F)
    def mid_prefetch(self, a, s):
        if s == 3: return l2_issue(a, KA_WD, 1280, F, 0, 9)
        if s == 6: return l2_issue(a, KA_WD, 1280, F, 9, None)
        if s == 9: return self.stats_loads(a)
    def mask_setup(self, a):
        a(f"s_cmp_eq_u32 s{S_W}, 0")
        a(f"s_cselect_b32 s{S_MASK}, -1, 0")
        a(f"s_mov_b32 s{S_MASK+1}, 0")
    def build_srds(self, a, role):
        if role == 'l':
            srd(a, SRD_A, ptr(KA_WS), WS_H, S_TOK*D*2)
            srd(a, SRD_B0, ptr(KA_WG), 0, D*F*2)
            srd(a, SRD_B1, ptr(KA_WU), 0, D*F*2)
            srd(a, SRD_ST, ptr(KA_WS), WS_ST, 250*1536)
        srd(a, SRD_OUT, ptr(KA_WS), WS_HH, S_TOK*F*2)
    def dep_range(self, a):
        sdiv(a, S_T0, S_R0, 82, 2100)
        a(f"s_sub_u32 s{S_T1}, s{S_REND}, 1")
        sdiv(a, S_T1, S_T1, 82, 2100)
    @property
    def gate(self): return (3, 2) if GATE else None
    def deps_first(self, a):
        first_ks(a, self)
        self.dep_range(a)
        if self.gate: poll_first_g(a, S_T0, S_T1, 10, S_K, self.S, self.gate[0], 0x10000)
        else: poll_first(a, S_T0, S_T1, 10, S_K, S_KB, 0x10000)
    def deps(self, a, wave=0):
        self.dep_range(a)
        a(f"s_mul_i32 s{S_T0}, s{S_T0}, 10")
        a(f"s_add_u32 s{S_T1}, s{S_T1}, 1")
        a(f"s_mul_i32 s{S_T1}, s{S_T1}, 10")
        poll(a, S_T0, S_T1, 0x10000, wave)
    def set_fidx(self, a):
        a(f"s_mul_i32 s{S_FIDX}, s{S_RT}, 27")
        a(f"s_add_u32 s{S_FIDX}, s{S_FIDX}, s{S_CT}")
        a(f"s_lshl_b32 s{S_FIDX}, s{S_FIDX}, 7")
        a(f"s_add_u32 s{S_FIDX}, s{S_FIDX}, 0x18000")
    def loader_post_first(self, a):
        pad_init(a, self, 228, 11, 239)
        return 0
    def stats_loads(self, a):
        a(f"s_lshl_b32 s{S_T0}, s{S_W}, 6")
        a(f"v_add_u32 v12, s{S_T0}, v2")
        a(f"v_add_u32 v13, s{S_R0}, v12")
        vdiv(a, 15, 13, 82, 2300)
        a("v_mul_u32_u24 v16, 82, v15")
        a("v_sub_u32 v16, v13, v16")
        a("v_mul_u32_u24 v15, 15360, v15")
        a("v_lshl_add_u32 v13, v16, 4, v15")
        a(f"v_add_u32 v15, s{S_R0}, v12")
        a(f"v_cmp_gt_u32 vcc, s{S_REND}, v15")
        a("v_mov_b32 v14, 0x80000000")
        a("s_nop 0")
        a("v_cndmask_b32 v13, v14, v13, vcc")
        for c in range(10):
            a(f"s_mov_b32 s{S_T0}, {c*1536}")
            a(f"buffer_load_dwordx2 v[{64+2*c}:{65+2*c}], v13, s[{SRD_ST}:{SRD_ST+3}], s{S_T0} offen{SC1}")
        return 10
    def loader_final(self, a):
        a("s_waitcnt vmcnt(0)")
        for c in range(1, 10):
            a(f"v_pk_add_f32 v[64:65], v[64:65], v[{64+2*c}:{65+2*c}]")
        a(f"v_mul_f32 v64, {hex(f2u(1.0/D))}, v64")
        a(f"v_mul_f32 v65, {hex(f2u(1.0/D))}, v65")
        a("v_fma_f32 v65, -v64, v64, v65")
        a(f"v_add_f32 v65, {hex(f2u(1e-5))}, v65")
        a("v_rsq_f32 v65, v65")
        a("v_lshlrev_b32 v12, 3, v12")
        a(f"v_add_u32 v12, {self.LDS_ST}, v12")
        a(f"s_cmp_eq_u32 s{S_W}, 3")
        a(f"s_cselect_b32 exec_hi, 0xffff, -1")
        a("ds_write_b64 v12, v[64:65]")
        a("s_mov_b64 exec, -1")
    def consumer_setup(self, a):
        cons_lane(a)
        a(f"s_lshr_b32 s{S_I}, s{S_WAVE}, 1")
        a(f"s_and_b32 s{S_J}, s{S_WAVE}, 1")
        a(f"s_lshl_b32 s{S_T1}, s{S_I}, 7")
        x_addr_const(a, self.vXc, S_T1)
        x_addr_const(a, self.vXsc, None, 112)
        w_addr_const(a, self.vWc)
        a(f"s_lshl_b32 s{S_T0}, s{S_J}, 1")
        a(f"s_add_u32 s{S_T0}, s{S_T0}, s{S_I}")
        a(f"s_lshl_b32 s{S_T0}, s{S_T0}, 5")
        a(f"v_xor_b32 v{self.vWc}, s{S_T0}, v{self.vWc}")
        a(f"s_lshl_b32 s{S_T0}, s{S_J}, 1")
        a(f"s_add_u32 s{S_T2}, s{S_T0}, s{S_I}     ; f0")
        a(f"s_lshl_b32 s{S_T0}, s{S_T2}, 6")
        a(f"v_lshlrev_b32 v24, 4, v4")
        a(f"v_add_u32 v24, s{S_T0}, v24")
        a(f"v_add_u32 v24, {self.LDS_CS}, v24")
        a(f"v_xor_b32 v25, 64, v24")
        t_write_addr(a, 26, self.TBASE)
        a(f"s_lshl_b32 s{S_T0}, s{S_T2}, 5")
        a(f"v_xor_b32 v26, s{S_T0}, v26")
        a(f"v_add_u32 v28, {112*128}, v26")
        a(f"s_lshl_b32 s{S_T0}, s{S_I}, 14")
        a(f"v_add_u32 v26, s{S_T0}, v26")
        a(f"v_xor_b32 v27, 32, v26")
        a(f"s_lshl_b32 s{S_T0}, s{S_I}, 10         ; 128*i*8")
        a(f"v_lshlrev_b32 v29, 3, v3")
        a(f"v_add_u32 v30, {self.LDS_ST + 112*8}, v29")
        a(f"v_add_u32 v29, s{S_T0}, v29")
        a(f"v_add_u32 v29, {self.LDS_ST}, v29")
    def addr_update(self):
        return [f"v_add_u32 v{self.vXa}, s{S_SLOT}, v{self.vXc}",
                f"v_add_u32 v{self.vW[0]}, s{S_SLOT}, v{self.vWc}",
                f"v_add_u32 v{self.vXsa}, s{S_SLOT}, v{self.vXsc}",
                f"v_xor_b32 v{self.vXb}, 64, v{self.vXa}",
                f"v_xor_b32 v{self.vW[1]}, 32, v{self.vW[0]}",
                f"v_xor_b32 v{self.vXsb}, 64, v{self.vXsa}"]
    chunk_epi = True
    def epilogue(self, a):
        nocs = a.new("nocs")
        assert self.LDS_CS % 128 == 0
        a(f"s_cmp_eq_u32 s{S_I}, 1")
        a(f"s_cbranch_scc0 {nocs}")
        set_exec(a, 0x8000800080008000)
        for wi, (areg, poff) in enumerate([(24, 0), (24, 256), (25, 0), (25, 256)]):
            acc = self.accmap[(6, wi)]
            a(f"ds_write_b128 v{areg}, v[{acc}:{acc+3}] offset:{poff}")
        a("s_mov_b64 exec, -1")
        a.label(nocs)
        a("s_waitcnt lgkmcnt(0)")
        a("s_barrier      ; E1")
        CSR = [8, 12, 152, 156]
        for wi, (areg, poff) in enumerate([(24, 0), (24, 256), (25, 0), (25, 256)]):
            a(f"ds_read_b128 v[{CSR[wi]}:{CSR[wi]+3}], v{areg} offset:{poff}")
        STR = [16, 18, 20, 22]
        def rdst(x):
            st = STR[x & 3]
            if x < 7: a(f"ds_read_b64 v[{st}:{st+1}], v29 offset:{128*x}")
            else: a(f"ds_read_b64 v[{st}:{st+1}], v30")
        for x in range(4): rdst(x)
        a("s_waitcnt lgkmcnt(0)")
        for x in range(8):
            st = STR[x & 3]
            npair = 1 if x == 7 else 2
            if x == 4:
                a("s_waitcnt lgkmcnt(0)")
                a("s_barrier      ; E2a")
            a(f"v_mul_f32 v{st+1}, v{st+1}, v{st+1}")
            for p in range(npair):
                g = self.accmap[(x, 2*p)]; u = self.accmap[(x, 2*p+1)]
                cg = CSR[2*p]; cu = CSR[2*p+1]
                for hh in (0, 2):
                    a(f"v_pk_fma_f32 v[{g+hh}:{g+hh+1}], v[{cg+hh}:{cg+hh+1}], v[{st}:{st+1}], v[{g+hh}:{g+hh+1}] op_sel_hi:[1,0,1] neg_lo:[0,1,0] neg_hi:[0,1,0]")
                    a(f"v_pk_fma_f32 v[{u+hh}:{u+hh+1}], v[{cu+hh}:{cu+hh+1}], v[{st}:{st+1}], v[{u+hh}:{u+hh+1}] op_sel_hi:[1,0,1] neg_lo:[0,1,0] neg_hi:[0,1,0]")
                for hh in (0, 2):
                    a(f"v_pk_mul_f32 v[{g+hh}:{g+hh+1}], v[{g+hh}:{g+hh+1}], v[{u+hh}:{u+hh+1}]")
                for hh in (0, 2):
                    a(f"v_pk_mul_f32 v[{g+hh}:{g+hh+1}], v[{g+hh}:{g+hh+1}], v[{st}:{st+1}] op_sel:[0,1] op_sel_hi:[1,1]")
                a(f"v_cvt_pk_bf16_f32 v{g}, v{g}, v{g+1}")
                a(f"v_cvt_pk_bf16_f32 v{g+1}, v{g+2}, v{g+3}")
                if x < 7: a(f"ds_write_b64 v{26+p}, v[{g}:{g+1}] offset:{2048*x}")
                else: a(f"ds_write_b64 v28, v[{g}:{g+1}]")
            if x < 4: rdst(x + 4)
        a("s_waitcnt lgkmcnt(0)")
        a("s_barrier      ; E2b")
    def loader_store_setup(self, a):
        a("v_lshrrev_b32 v3, 3, v2")
        a("v_and_b32 v4, 7, v2")
        a("v_xor_b32 v5, v4, v3")
        a("v_lshlrev_b32 v5, 4, v5")
        a("v_lshl_add_u32 v50, v3, 7, v5")
        a(f"s_lshl_b32 s{S_T0}, s{S_W}, 10")
        a(f"s_add_u32 s{S_T0}, s{S_T0}, {self.TBASE}")
        a(f"v_add_u32 v50, s{S_T0}, v50")
        a(f"s_lshl_b32 s{S_T0}, s{S_W}, 3")
        a(f"s_add_u32 s{S_T0}, s{S_T0}, s{S_R0}")
        a(f"v_add_u32 v51, s{S_T0}, v3")
        a(f"s_mov_b32 s{S_T1}, 3456")
        a(f"v_mul_lo_u32 v52, v51, s{S_T1}")
        a(f"s_lshl_b32 s{S_T0}, s{S_C0}, 1")
        a("v_lshl_add_u32 v52, v4, 4, v52")
        a(f"v_add_u32 v52, s{S_T0}, v52")
    def loader_stores(self, a, units):
        for n, u0 in enumerate(units):
            a(f"ds_read_b128 v[{56+4*n}:{59+4*n}], v50 offset:{u0*1024}")
        for n, u0 in enumerate(units):
            a(f"v_add_u32 v{53 if n & 1 else 54}, {u0*8*3456}, v52")
            special = (u0 + 3)*8 + 7 >= self.MV
            if special:
                a(f"v_add_u32 v55, {u0*8}, v51")
                a(f"s_add_u32 s{S_T0}, s{S_R0}, {self.MV}")
                a(f"v_cmp_gt_u32 vcc, s{S_T0}, v55")
                a(f"s_and_saveexec_b64 s[80:81], vcc")
            a(f"s_waitcnt lgkmcnt({len(units) - 1 - n})")
            a(f"buffer_store_dwordx4 v[{56+4*n}:{59+4*n}], v{53 if n & 1 else 54}, s[{SRD_OUT}:{SRD_OUT+3}], 0 offen{SC1}")
            if special: a("s_mov_b64 exec, s[80:81]")
    def loader_epilogue(self, a):
        a("s_barrier      ; E2a")
        self.loader_stores(a, [0, 4, 16, 20])
        a("s_barrier      ; E2b")
        self.loader_stores(a, [8, 12, 24, 28])

ROWB = 656
LQ, LK, LV, LO = 16384, 16384 + 16*ROWB, 16384 + 46*ROWB, 0
WPF = True
P1ROT = 'latin2'
ROTOFF = set()
WPF_OFF = {KA_WD}
def l2_on(kptr): return WPF and kptr not in WPF_OFF
def l2_setup(a, kind, NT, NC, kptr, nbytes, ldb, K):
    if not l2_on(kptr): return
    R3 = ((K + 2)//3 + 7)//8*8
    a(f"s_mov_b32 s4, s{S_RT}"); a(f"s_mov_b32 s5, s{S_CT}")
    tile_map(a, NT, kind)
    divc(a, S_T0, S_RT, 3)
    a(f"s_mul_i32 s{S_T0}, s{S_T0}, 3")
    a(f"s_sub_u32 s{S_T0}, s{S_RT}, s{S_T0}")
    a(f"s_mul_i32 s{S_T0}, s{S_T0}, {R3}")
    a(f"s_lshl_b32 s{S_T1}, s{S_W}, 3")
    a(f"s_add_u32 s{S_T0}, s{S_T0}, s{S_T1}")
    a("v_lshrrev_b32 v150, 3, v2")
    a(f"v_add_u32 v150, s{S_T0}, v150")
    a(f"s_mov_b32 s{S_T1}, {ldb}")
    a(f"v_mul_lo_u32 v150, v150, s{S_T1}")
    a("v_and_b32 v151, 7, v2")
    a("v_lshl_add_u32 v150, v151, 4, v150")
    a(f"s_mul_i32 s{S_T1}, s{S_CT}, {NC*2}")
    a(f"v_add_u32 v150, s{S_T1}, v150")
    a(f"s_cmp_eq_u32 s{S_VALID}, 0")
    a(f"s_cselect_b32 s{S_T1}, 0x80000000, 0")
    a(f"v_or_b32 v150, s{S_T1}, v150")
    srd(a, 80, ptr(kptr), 0, nbytes)
    a(f"s_mov_b32 s{S_RT}, s4"); a(f"s_mov_b32 s{S_CT}, s5")
def l2_issue(a, kptr, ldb, K, i0=0, i1=None):
    if not l2_on(kptr): return 0
    R3 = ((K + 2)//3 + 7)//8*8
    n = (R3//8 + 3)//4
    if i1 is None: i1 = n
    for i in range(i0, min(i1, n)):
        a(f"buffer_load_dwordx4 v[152:155], v150, s[80:83], 0 offen")
        if i + 1 < n: a(f"v_add_u32 v150, {32*ldb}, v150")
    return min(i1, n) - i0

def att_phase(a, role):
    a(f"s_lshl_b32 s{S_R0}, s{S_RT}, 4       ; T0")
    srd(a, SRD_A, ptr(KA_WS), WS_QKV, S_TOK*NQKV*2)
    srd(a, SRD_OUT, ptr(KA_WS), WS_O, S_TOK*D*2)
    NI = 49
    nper = (NI + 7)//8
    a(f"s_mov_b32 s{S_T2}, 3840")
    a(f"s_mul_i32 s{S_T3}, s{S_CT}, 640")
    for j in range(nper):
        r = 32 + j
        a(f"s_add_u32 s{S_T0}, s{S_WAVE}, {8*j}")
        a(f"s_lshl_b32 s{S_T0}, s{S_T0}, 6")
        a(f"v_add_u32 v3, s{S_T0}, v2           ; c")
        vdiv(a, 4, 3, 41, 64*56)
        a("v_mul_u32_u24 v5, 41, v4")
        a("v_sub_u32 v5, v3, v5                  ; kap")
        a("v_cmp_le_u32 vcc, 16, v4")
        a("v_mov_b32 v8, 0x80000000")
        a("s_nop 0")
        a("v_cndmask_b32 v6, 0, 1, vcc")
        a("v_cmp_le_u32 vcc, 46, v4")
        a("s_nop 1")
        a("v_cndmask_b32 v7, 0, 1, vcc")
        a("v_add_u32 v6, v6, v7                  ; seg")
        a("v_mul_u32_u24 v7, 30, v6")
        a("v_sub_u32 v7, v4, v7")
        a(f"v_add_u32 v7, s{S_R0}, v7            ; token")
        a(f"v_mul_lo_u32 v7, v7, s{S_T2}")
        a("v_mul_u32_u24 v6, 1280, v6")
        a("v_add_u32 v7, v7, v6")
        a("v_lshl_add_u32 v7, v5, 4, v7")
        a(f"v_add_u32 v7, s{S_T3}, v7")
        a("v_cmp_gt_u32 vcc, 40, v5")
        a("s_nop 1")
        a("v_cndmask_b32 v7, v8, v7, vcc")
        a("v_cmp_gt_u32 vcc, 76, v4")
        a("s_nop 1")
        a(f"v_cndmask_b32 v{r}, v8, v7, vcc")
    if role == 'c':
        a(f"s_lshr_b32 s{S_T0}, s{S_WAVE}, 1")
        a(f"s_lshl_b32 s{S_T0}, s{S_T0}, 3")
        a(f"s_and_b32 s{S_T1}, s{S_WAVE}, 1")
        a(f"s_add_u32 s{S_I}, s{S_T0}, s{S_T1}      ; rb")
        a("v_and_b32 v3, 3, v2             ; i")
        a("v_lshrrev_b32 v4, 2, v2         ; b")
        a("v_lshlrev_b32 v5, 1, v3")
        a(f"v_add_u32 v5, s{S_I}, v5        ; rb + 2i")
        a(f"v_mul_u32_u24 v5, {ROWB}, v5")
        a("v_mul_u32_u24 v6, 40, v4")
        a("v_add_u32 v5, v5, v6")
        a(f"v_add_u32 v144, {LQ}, v5")
        a(f"v_add_u32 v145, {LK}, v5")
        a("v_cmp_eq_u32 vcc, 3, v3")
        a(f"v_mov_b32 v7, {16*ROWB}")
        a(f"v_mov_b32 v8, {14*ROWB}")
        a("v_cndmask_b32 v7, v7, v8, vcc")
        a("v_add_u32 v146, v145, v7")
        a("v_bfe_u32 v9, v2, 2, 2            ; r")
        a("v_lshlrev_b32 v10, 1, v9")
        a(f"v_add_u32 v10, s{S_I}, v10")
        a(f"v_mul_u32_u24 v10, {ROWB}, v10")
        a("v_lshrrev_b32 v11, 4, v2")
        a("v_lshl_add_u32 v11, v11, 2, v3     ; 4G + c")
        a("v_mul_u32_u24 v11, 40, v11")
        a("v_add_u32 v10, v10, v11")
        a(f"v_add_u32 v147, {LV}, v10")
        a("v_cmp_eq_u32 vcc, 3, v9")
        a(f"v_mov_b32 v7, {16*ROWB}")
        a("s_nop 0")
        a("v_cndmask_b32 v7, v7, v8, vcc")
        a("v_add_u32 v119, v147, v7")
        a(f"v_mov_b32 v12, {hex(f2u(-1e30))}")
        a("v_mov_b32 v13, 0")
        a(f"s_add_u32 s{S_T2}, s{S_R0}, s{S_I}")
        a(f"s_sub_u32 s{S_T2}, s{S_T2}, 14        ; pos(0)")
        for m in range(12):
            a(f"v_sub_u32 v14, {m}, v3            ; m - i")
            a("v_cmp_gt_u32 vcc, 8, v14")
            a(f"s_add_u32 s{S_T0}, s{S_T2}, {2*m}")
            a(f"s_cmp_ge_i32 s{S_T0}, 0")
            a("s_cselect_b64 s[80:81], -1, 0")
            a("s_and_b64 vcc, vcc, s[80:81]")
            a(f"v_cndmask_b32 v{120+m}, v12, v13, vcc")
    for j in range(2):
        a(f"s_add_u32 s{S_T0}, s{S_WAVE}, {8*j}")
        a(f"s_lshl_b32 s{S_T0}, s{S_T0}, 6")
        a(f"v_add_u32 v3, s{S_T0}, v2")
        vdiv(a, 4, 3, 40, 1024)
        a("v_mul_u32_u24 v5, 40, v4")
        a("v_sub_u32 v5, v3, v5")
        a(f"v_mul_u32_u24 v6, {ROWB}, v4")
        a(f"v_lshl_add_u32 v{148+j}, v5, 4, v6")
        a(f"v_add_u32 v4, s{S_R0}, v4")
        a("v_mul_u32_u24 v4, 1280, v4")
        a("v_lshl_add_u32 v4, v5, 4, v4")
        a(f"v_add_u32 v{156+j}, s{S_T3}, v4")
    if role == 'c':
        a(f"s_sub_u32 s{S_T0}, s{S_R0}, 14")
        a(f"s_max_i32 s{S_T0}, s{S_T0}, 0")
        sdiv(a, S_T0, S_T0, 121, 2100)
        a(f"s_add_u32 s{S_T1}, s{S_R0}, 15")
        sdiv(a, S_T1, S_T1, 121, 2100)
        skp = a.new("attpoll")
        a(f"s_cmp_eq_u32 s{S_WAVE}, 0")
        a(f"s_cbranch_scc0 {skp}")
        vdiv(a, 140, 2, 9, 64)
        a("v_mul_u32_u24 v141, 9, v140")
        a("v_sub_u32 v141, v2, v141                  ; j = l%9")
        vdiv(a, 142, 141, 3, 16)
        a("v_mul_u32_u24 v143, 3, v142")
        a("v_sub_u32 v143, v141, v143                ; j%3")
        a("v_mul_u32_u24 v142, 5, v142")
        a("v_add_u32 v142, v142, v143")
        a(f"s_lshl_b32 s{S_T2}, s{S_CT}, 1")
        a(f"v_add_u32 v142, s{S_T2}, v142            ; ct")
        a(f"v_add_u32 v140, s{S_T0}, v140            ; rt")
        a(f"v_cmp_ge_u32 vcc, s{S_T1}, v140")
        a("v_mul_u32_u24 v140, 15, v140")
        a("v_add_u32 v140, v140, v142")
        a("v_lshlrev_b32 v140, 7, v140")
        poll_core(a)
        a.label(skp)
        a("s_barrier      ; B_dep")
    else:
        l2_setup(a, "p3", 243, 64, KA_WG, D*F*2, 3456, D)
        a("s_barrier      ; B_dep")
    stamp(a, 0)
    for j in range(nper):
        sk = None
        if 8*j + 7 >= NI:
            sk = a.new("attsk")
            a(f"s_cmp_ge_u32 s{S_WAVE}, {NI - 8*j}")
            a(f"s_cbranch_scc1 {sk}")
        a(f"s_add_u32 s{S_T0}, s{S_WAVE}, {8*j}")
        a(f"s_lshl_b32 s{S_T0}, s{S_T0}, 10")
        a(f"s_add_u32 m0, s{S_T0}, {LQ}")
        a("s_nop 0")
        a(f"buffer_load_dwordx4 v{32+j}, s[{SRD_A}:{SRD_A+3}], 0 offen{SC1} lds")
        if sk: a.label(sk)
    a("s_waitcnt vmcnt(0)")
    a("s_barrier")
    stamp(a, 1)
    if role == 'l': l2_issue(a, KA_WG, 3456, D)
    if role == 'c':
        Q = 16; KR = 32; VR = 62; SC = 92; BIAS = 120; PB = 104; O = 4
        for dg in range(5):
            a(f"ds_read_b64 v[{Q+2*dg}:{Q+2*dg+1}], v144 offset:{8*dg}")
        for kb in range(3):
            for dg in range(5):
                r = KR + 2*(5*kb + dg)
                if kb < 2: a(f"ds_read_b64 v[{r}:{r+1}], v145 offset:{8*ROWB*kb + 8*dg}")
                else: a(f"ds_read_b64 v[{r}:{r+1}], v146 offset:{8*dg}")
        scale = (D // 32) ** -0.5
        c1 = scale * 1.4426950408889634
        a(f"s_mov_b32 s{S_T2}, {hex(f2u(c1))}")
        a("s_waitcnt lgkmcnt(0)")
        for kb in range(3):
            for dg in range(5):
                r = VR + 2*(5*kb + dg)
                if kb < 2: a(f"ds_read_b64_tr_b16 v[{r}:{r+1}], v147 offset:{8*ROWB*kb + 8*dg}")
                else: a(f"ds_read_b64_tr_b16 v[{r}:{r+1}], v119 offset:{8*dg}")
        for dg in range(5):
            for kb in range(3):
                r = KR + 2*(5*kb + dg); sc = SC + 4*kb
                c = "0" if dg == 0 else f"v[{sc}:{sc+3}]"
                a(f"v_mfma_f32_4x4x4_16b_bf16 v[{sc}:{sc+3}], v[{r}:{r+1}], v[{Q+2*dg}:{Q+2*dg+1}], {c}")
        a("s_nop 4")
        for m in range(12):
            a(f"v_fma_f32 v{SC+m}, v{SC+m}, s{S_T2}, v{BIAS+m}")
        a(f"v_max3_f32 v14, v{SC}, v{SC+1}, v{SC+2}")
        a(f"v_max3_f32 v15, v{SC+3}, v{SC+4}, v{SC+5}")
        a(f"v_max3_f32 v14, v14, v{SC+6}, v{SC+7}")
        a(f"v_max3_f32 v15, v15, v{SC+8}, v{SC+9}")
        a(f"v_max3_f32 v14, v14, v{SC+10}, v{SC+11}")
        a("v_max_f32 v14, v14, v15")
        for m in range(12):
            a(f"v_sub_f32 v{SC+m}, v{SC+m}, v14")
        for m in range(12):
            a(f"v_exp_f32 v{SC+m}, v{SC+m}")
        a(f"v_add_f32 v14, v{SC}, v{SC+1}")
        a(f"v_add_f32 v15, v{SC+2}, v{SC+3}")
        for m in range(4, 12, 2):
            a(f"v_add_f32 v14, v14, v{SC+m}")
            a(f"v_add_f32 v15, v15, v{SC+m+1}")
        a("v_add_f32 v14, v14, v15")
        a("v_rcp_f32 v14, v14")
        a("s_nop 0")
        for m in range(12):
            a(f"v_mul_f32 v{SC+m}, v{SC+m}, v14")
        for m in range(0, 12, 2):
            a(f"v_cvt_pk_bf16_f32 v{PB+m//2}, v{SC+m}, v{SC+m+1}")
        a("s_waitcnt lgkmcnt(0)")
        a("s_nop 0")
        OA = 32
        for kb in range(3):
            for dg in range(5):
                r = VR + 2*(5*kb + dg); o = OA + 4*dg
                c = "0" if kb == 0 else f"v[{o}:{o+3}]"
                a(f"v_mfma_f32_4x4x4_16b_bf16 v[{o}:{o+3}], v[{r}:{r+1}], v[{PB+2*kb}:{PB+2*kb+1}], {c}")
        a(f"v_subrev_u32 v144, {LQ - LO}, v144")
        a("s_nop 4")
        for dg in range(5):
            o = OA + 4*dg
            a(f"v_cvt_pk_bf16_f32 v{Q+2*dg}, v{o}, v{o+1}")
            a(f"v_cvt_pk_bf16_f32 v{Q+2*dg+1}, v{o+2}, v{o+3}")
            a(f"ds_write_b64 v144, v[{Q+2*dg}:{Q+2*dg+1}] offset:{8*dg}")
    a("s_waitcnt lgkmcnt(0)")
    stamp(a, 2)
    a("s_barrier")
    a(f"ds_read_b128 v[20:23], v148 offset:{LO}")
    sk = a.new("attst")
    a(f"s_cmp_ge_u32 s{S_WAVE}, 2")
    a(f"s_cbranch_scc1 {sk}")
    a(f"ds_read_b128 v[24:27], v149 offset:{LO}")
    a("s_waitcnt lgkmcnt(0)")
    a(f"buffer_store_dwordx4 v[24:27], v157, s[{SRD_OUT}:{SRD_OUT+3}], 0 offen{SC1}")
    a.label(sk)
    a("s_waitcnt lgkmcnt(0)")
    a(f"buffer_store_dwordx4 v[20:23], v156, s[{SRD_OUT}:{SRD_OUT+3}], 0 offen{SC1}")
    a(f"s_lshl_b32 s{S_FIDX}, s{S_RT}, 1")
    a(f"s_add_u32 s{S_FIDX}, s{S_FIDX}, s{S_CT}")
    a(f"s_lshl_b32 s{S_FIDX}, s{S_FIDX}, 7")
    a(f"s_add_u32 s{S_FIDX}, s{S_FIDX}, 0x8000")

def finish_phase(a, role, first=False):
    a("s_waitcnt vmcnt(0)")
    stamp(a, 4)
    if role == 'c' and first: nonce_check(a)
    a("s_barrier      ; E3")
    if role == 'c': publish(a)
    stamp(a, 5)

def role_program(a, role):
    phases = [P1F(), P24(2), P3(), P24(4)] if FUSE else [P1(), 'att', P24(2), P3(), P24(4)]
    if 'p1twice' in EXP:
        P = P1(); inv = a.new("inv")
        tile_map(a, P.NT, P.kind)
        a(f"s_cmp_eq_u32 s{S_VALID}, 0")
        a(f"s_cbranch_scc1 {inv}")
        P.tile_consts(a)
        if role == 'c': consumer_phase(a, P, True)
        else: loader_phase(a, P, True)
        a("s_waitcnt vmcnt(0)")
        a("s_barrier")
        a.label(inv)
    for n, P in enumerate(phases):
        first = (n == 0)
        nxt = a.new("next"); inv = a.new("inv")
        if P == 'att':
            tile_map(a, 256, 'att')
            att_phase(a, role)
            stamp(a, 3)
            finish_phase(a, role)
            prof_store(a, 'att', role)
            continue
        tile_map(a, P.NT, P.kind)
        a(f"s_cmp_eq_u32 s{S_VALID}, 0")
        a(f"s_cbranch_scc1 {inv}")
        P.tile_consts(a)
        if role == 'c': consumer_phase(a, P, first)
        else: loader_phase(a, P, first)
        stamp(a, 3)
        if P.key != 'p4': finish_phase(a, role, first)
        prof_store(a, P.key, role)
        if first:
            a(f"s_branch {nxt}")
            a.label(inv)
            ptr_wait(a)
            if role == 'c': nonce_check(a, issued=False)
            a.label(nxt)
        else:
            a.label(inv)

def main(out):
    a = Asm()
    a.raw(f".globl {KNAME}")
    a.raw(".p2align 8")
    a.raw(f".type {KNAME},@function")
    a.label(KNAME)
    if PROFDBG:
        a(f"s_memrealtime s[{S_P0+1}:{S_P0+2}]") if False else None
    a("s_cmp_ge_u32 s2, 256")
    a("s_cbranch_scc1 L_exit")
    a(f"s_load_dwordx16 s[{S_PTR}:{S_PTR+15}], s[0:1], 0")
    a(f"s_load_dwordx4 s[{S_PTR+16}:{S_PTR+19}], s[0:1], 64")
    if PROFDBG:
        a(f"{STAMP} s[98:99]")
    a("v_lshrrev_b32 v1, 6, v0")
    a("v_and_b32 v2, 63, v0      ; lane")
    a(f"s_mov_b32 s{S_FIDX}, -1")
    a(f"v_readfirstlane_b32 s{S_WAVE}, v1")
    a("s_nop 3")
    a(f"s_sub_u32 s{S_W}, s{S_WAVE}, 4")
    a(f"s_cmp_ge_u32 s{S_WAVE}, 4")
    a("s_cbranch_scc1 L_loader")
    role_program(a, 'c')
    a("s_waitcnt vmcnt(0)")
    a("s_endpgm")
    a.label("L_loader")
    role_program(a, 'l')
    a("s_waitcnt vmcnt(0)")
    a.label("L_exit")
    a("s_endpgm")
    HEADER = open("sequential_preLN__sliding_local_dilated__glu_gated_bilinear__prompt.s.ref").read().split("; Override")[0]
    s = HEADER
    s += f"; @launch grid=(256,1,1) block=(512,1,1) lds={LDS_TOTAL}\n"
    s += '.amdgcn_target "amdgcn-amd-amdhsa--gfx950"\n.text\n'
    s += a.text()
    s += f""".section .rodata,"a"
.p2align 6
.amdhsa_kernel {KNAME}
  .amdhsa_next_free_vgpr 256
  .amdhsa_next_free_sgpr 102
  .amdhsa_accum_offset 160
  .amdhsa_group_segment_fixed_size 0
  .amdhsa_kernarg_size 80
  .amdhsa_user_sgpr_count 2
  .amdhsa_user_sgpr_kernarg_segment_ptr 1
  .amdhsa_system_sgpr_workgroup_id_x 1
  .amdhsa_float_denorm_mode_32 3
.end_amdhsa_kernel
"""
    open(out, "w").write(s)

if __name__ == "__main__":
    if "-prof" in sys.argv: PROF = True
    if "-profdbg" in sys.argv: PROFDBG = True
    if "-cyc" in sys.argv: STAMP = "s_memtime"
    if "-wpf" in sys.argv: WPF = True
    if "-nofuse" in sys.argv: FUSE = False
    if "-gate" in sys.argv: GATE = True
    for x in sys.argv:
        if x.startswith("-outsc="): OUTSC = " " + x[7:].replace("+", " ")
    for x in sys.argv:
        if x.startswith("-gate4="): GATE4 = tuple(int(y) for y in x[7:].split(","))
    for x in sys.argv:
        if x.startswith("-osc="): OSC = " " + x[5:].replace("+", " ")
    for x in sys.argv:
        if x.startswith("-align="): ALIGN = int(x[7:])
    if "-nowpf" in sys.argv: WPF = False
    if "-onestep" in sys.argv: TWOSTEP = False
    for x in sys.argv:
        if x.startswith("-exp="): EXP = set(x[5:].split(","))
    if "-noxcd" in sys.argv: NOXCD = True
    for x in sys.argv:
        if x.startswith("-p1rot="): P1ROT = x[7:]
        if x.startswith("-rotoff="): ROTOFF = set(x[8:].split(","))
    for x in sys.argv:
        if x.startswith("-off="):
            for k in x[5:].split(","): WPF_OFF.add({'wo': KA_WO, 'wg': KA_WG, 'wu': KA_WU, 'wd': KA_WD}[k])
    main(sys.argv[1] if len(sys.argv) > 1 else "v3.s")
```

```python
import sys, struct

KNAME = "sequential_preLN__sliding_local_dilated__glu_gated_bilinear__prompt_kernel"
S_TOK, D, NQKV, F = 2048, 640, 1920, 1728
WS_QKV, WS_O, WS_H, WS_HH, WS_ST, WS_FLAG = 0, 0x800000, 0xB00000, 0x1000000, 0x1800000, 0x1900000
WS_PROF = 0x1A00000
KA_X, KA_WQKV, KA_WO, KA_BX, KA_WG, KA_WU, KA_WD, KA_OUT, KA_DBG, KA_WS = [8*i for i in range(10)]
ONES = 0x3F803F80
PROF = False
PROFDBG = False
STAMP = 's_memrealtime'
SC1 = " sc1"
LDS_TOTAL = 163840
NONCE_LDS = 163832
OUTSC = ' sc0 sc1'
P1FROT = 'latin2'
APF = False
GATE = False
GATE4 = (6, 3)
OSC = ' sc1'
FUSE = True
ALIGN = 6
TWOSTEP = True
EXP = set()
NOXCD = False

def f2u(x):
    return struct.unpack("<I", struct.pack("<f", x))[0]

class Asm:
    def __init__(self):
        self.L = []
        self.uid = 0
    def __call__(self, s):
        for line in s.split("\n"):
            line = line.strip()
            if line:
                self.L.append("  " + line)
    def label(self, n):
        self.L.append(n + ":")
    def raw(self, s):
        self.L.append(s)
    def new(self, base):
        self.uid += 1
        return f"L{base}_{self.uid}"
    def text(self):
        return "\n".join(self.L) + "\n"

SRD_A, SRD_B0, SRD_B1, SRD_OUT, SRD_AUX, SRD_ST = 8, 12, 16, 20, 24, 28
S_RT, S_CT, S_R0, S_C0, S_WAVE, S_SLOT, S_CNT, S_T0, S_T1, S_T2 = 32, 33, 34, 35, 36, 37, 38, 39, 40, 41
S_AOFF, S_BOFF = 42, 43
S_PTR = 44
S_MASK = 64
S_I, S_J, S_REND, S_K = 66, 67, 68, 69
S_STAMP = 70
S_NONCE = 78
S_FIDX, S_LW, S_VALID, S_KB = 85, 86, 87, 92
SRD_FLAG = 88
S_SLOTB, S_T3, S_T4, S_W = 93, 94, 95, 96
S_P0 = 97
S_N1, S_N2 = 6, 7

def ptr(k): return S_PTR + k // 4

PH_IDX = {'p1': 0, 'att': 1, 'p2': 2, 'p3': 3, 'p4': 4}

def stamp(a, i):
    if i >= 4:
        if PROF: a(f'{STAMP} s[{98+2*(i-4)}:{99+2*(i-4)}]')
        return
    if PROF or PROFDBG or SPIN:
        a(f'{STAMP} s[{S_STAMP+2*i}:{S_STAMP+2*i+1}]')

SPIN = None
def spin_capture(a, ph, role):
    if not SPIN or SPIN[0] != ph or role != 'c': return
    a("s_waitcnt lgkmcnt(0)")
    A_ = "s98" if SPIN[1] < 0 else f"s{S_STAMP+2*SPIN[1]}"
    a(f"s_sub_u32 s100, s{S_STAMP+2*SPIN[2]}, {A_}")
def spin_end(a):
    if not SPIN: return
    sk = a.new("spin"); lp = a.new("spinl")
    a("s_cmp_eq_u32 s2, 9")
    a(f"s_cbranch_scc0 {sk}")
    a(f"s_cmp_eq_u32 s{S_WAVE}, 0")
    a(f"s_cbranch_scc0 {sk}")
    a("s_mul_i32 s100, s100, 20")
    a("s_memrealtime s[4:5]")
    a("s_waitcnt lgkmcnt(0)")
    a("s_add_u32 s100, s100, s4")
    a.label(lp)
    a("s_memrealtime s[4:5]")
    a("s_waitcnt lgkmcnt(0)")
    a("s_sub_u32 s6, s4, s100")
    a("s_cmp_lt_i32 s6, 0")
    a(f"s_cbranch_scc1 {lp}")
    a.label(sk)

def prof_store(a, ph, role):
    if not (PROF or PROFDBG): return
    skip = a.new("pskip")
    a(f"s_cmp_eq_u32 s{S_WAVE}, {0 if role == 'c' else 4}")
    a(f"s_cbranch_scc0 {skip}")
    a('s_waitcnt lgkmcnt(0)')
    if PROF:
        a(f's_add_u32 s80, s{ptr(KA_WS)}, {hex(WS_PROF + PH_IDX[ph]*0x20000)}')
        a(f's_addc_u32 s81, s{ptr(KA_WS)+1}, 0')
        a('s_and_b32 s81, s81, 0xffff')
        a('s_mov_b32 s82, 0x20000')
        a('s_mov_b32 s83, 0x20000')
        a('s_lshl_b32 s84, s2, 3')
        a(f's_add_u32 s84, s84, s{S_WAVE}')
        a('s_lshl_b32 s84, s84, 6')
        for i in range(8): a(f'v_mov_b32 v{128+i}, s{S_STAMP+i}')
        for i in range(4): a(f'v_mov_b32 v{136+i}, s{98+i}')
        a('v_mov_b32 v148, s84')
        a('s_mov_b64 exec, 1')
        a('buffer_store_dwordx4 v[128:131], v148, s[80:83], 0 offen')
        a('buffer_store_dwordx4 v[132:135], v148, s[80:83], 0 offen offset:16')
        a('buffer_store_dwordx4 v[136:139], v148, s[80:83], 0 offen offset:32')
        a('s_mov_b64 exec, -1')
    if PROFDBG and role == 'c':
        sk2 = a.new("pskip")
        a(f"s_cmp_eq_u32 s2, {PROFDBG_WG}")
        a(f"s_cbranch_scc0 {sk2}")
        a(f's_mov_b32 s80, s{ptr(KA_DBG)}')
        a(f's_and_b32 s81, s{ptr(KA_DBG)+1}, 0xffff')
        a('s_mov_b32 s82, 0x100')
        a('s_mov_b32 s83, 0x20000')
        sel = DBG_SEL[ph]
        for j, (i, slot) in enumerate(sel):
            a(f's_sub_u32 s84, s{S_STAMP+2*i}, s{S_P0}')
            a(f'v_mov_b32 v140, s84')
            a(f'v_mov_b32 v141, {4*slot}')
            a('s_mov_b64 exec, 1')
            a('buffer_store_dword v140, v141, s[80:83], 0 offen')
            a('s_mov_b64 exec, -1')
        a.label(sk2)
    a.label(skip)

PROFDBG_WG = 9
DBG_SEL = {'p1': [(1, 2), (2, 3), (3, 4)], 'att': [(0, 5), (1, 6), (3, 7)], 'p2': [(0, 8), (2, 9)], 'p3': [(0, 10), (1, 11), (2, 12)], 'p4': [(0, 13), (2, 14), (3, 15)]}

def set_exec(a, mask):
    if mask == (1 << 64) - 1:
        a("s_mov_b64 exec, -1")
    else:
        a(f"s_mov_b32 exec_lo, {hex(mask & 0xffffffff)}")
        a(f"s_mov_b32 exec_hi, {hex(mask >> 32)}")

def srd(a, s, p, off, nbytes):
    if off:
        a(f"s_add_u32 s{s}, s{p}, {hex(off)}")
        a(f"s_addc_u32 s{s+1}, s{p+1}, 0")
    else:
        a(f"s_mov_b32 s{s}, s{p}")
        a(f"s_mov_b32 s{s+1}, s{p+1}")
    a(f"s_and_b32 s{s+1}, s{s+1}, 0xffff")
    a(f"s_mov_b32 s{s+2}, {hex(nbytes)}")
    a(f"s_mov_b32 s{s+3}, 0x20000")

def divc(a, dst, src, d, rng=300):
    m = (65536 + d - 1) // d
    for x in range(0, rng):
        assert (x * m) >> 16 == x // d, (x, d)
    a(f"s_mul_i32 s{dst}, s{src}, {m}")
    a(f"s_lshr_b32 s{dst}, s{dst}, 16")

def magic(d, N):
    for sh in range(8, 24):
        m = ((1 << sh) + d - 1) // d
        if m >= (1 << 24) or m * (N - 1) >= (1 << 32): continue
        if all((x * m) >> sh == x // d for x in range(N)): return m, sh
    raise Exception("no magic")

def sdiv(a, dst, src, d, N):
    m, sh = magic(d, N)
    a(f"s_mul_i32 s{dst}, s{src}, {m}")
    a(f"s_lshr_b32 s{dst}, s{dst}, {sh}")

def vdiv(a, dst, src, d, N):
    m, sh = magic(d, N)
    a(f"v_mul_u32_u24 v{dst}, {m}, v{src}")
    a(f"v_lshrrev_b32 v{dst}, {sh}, v{dst}")

def tile_map(a, NT, kind):
    if NOXCD:
        a(f"s_mov_b32 s{S_T0}, s2")
    else:
        a(f"s_and_b32 s{S_T0}, s2, 7")
        a(f"s_lshr_b32 s{S_T1}, s2, 3")
        a(f"s_lshl_b32 s{S_T0}, s{S_T0}, 5")
        a(f"s_add_u32 s{S_T0}, s{S_T0}, s{S_T1}   ; t")
    a(f"s_cmp_lt_u32 s{S_T0}, {NT}")
    a(f"s_cselect_b32 s{S_VALID}, 1, 0")
    if kind == "p1":
        divc(a, S_T1, S_T0, 90)
        a(f"s_mul_i32 s{S_T2}, s{S_T1}, 90")
        a(f"s_sub_u32 s{S_T2}, s{S_T0}, s{S_T2}")
        divc(a, S_CT, S_T2, 6)
        divc(a, S_RT, S_T2, 5)
        a(f"s_cmp_eq_u32 s{S_T1}, 2")
        a(f"s_cselect_b32 s{S_CT}, s{S_RT}, s{S_CT}")
        a(f"s_cselect_b32 s{S_RT}, 5, 6")
        a(f"s_mul_i32 s{S_RT}, s{S_RT}, s{S_CT}")
        a(f"s_sub_u32 s{S_RT}, s{S_T2}, s{S_RT}")
        a(f"s_mul_i32 s{S_T1}, s{S_T1}, 6")
        a(f"s_add_u32 s{S_RT}, s{S_RT}, s{S_T1}")
    elif kind == "p3":
        divc(a, S_T1, S_T0, 81)
        a(f"s_mul_i32 s{S_T2}, s{S_T1}, 81")
        a(f"s_sub_u32 s{S_T2}, s{S_T0}, s{S_T2}")
        divc(a, S_CT, S_T2, 3)
        a(f"s_mul_i32 s{S_RT}, s{S_CT}, 3")
        a(f"s_sub_u32 s{S_RT}, s{S_T2}, s{S_RT}")
        a(f"s_mul_i32 s{S_T1}, s{S_T1}, 3")
        a(f"s_add_u32 s{S_RT}, s{S_RT}, s{S_T1}")
    elif kind == "p1f":
        a(f"s_lshr_b32 s{S_T1}, s{S_T0}, 6")
        a(f"s_lshl_b32 s{S_RT}, s{S_T1}, 3")
        a(f"s_bfe_u32 s{S_T2}, s{S_T0}, {2 | (3 << 16)}")
        a(f"s_add_u32 s{S_RT}, s{S_RT}, s{S_T2}")
        a(f"s_bfe_u32 s{S_T1}, s{S_T0}, {5 | (1 << 16)}")
        a(f"s_lshl_b32 s{S_T1}, s{S_T1}, 2")
        a(f"s_and_b32 s{S_CT}, s{S_T0}, 3")
        a(f"s_add_u32 s{S_CT}, s{S_CT}, s{S_T1}")
    elif kind == "att":
        a(f"s_lshr_b32 s{S_RT}, s{S_T0}, 1")
        a(f"s_and_b32 s{S_CT}, s{S_T0}, 1")
    else:
        divc(a, S_RT, S_T0, 10)
        a(f"s_mul_i32 s{S_CT}, s{S_RT}, 10")
        a(f"s_sub_u32 s{S_CT}, s{S_T0}, s{S_CT}")

def publish(a):
    skip = a.new("pub")
    a(f"s_cmp_eq_u32 s{S_WAVE}, 0")
    a(f"s_cbranch_scc0 {skip}")
    a(f"s_cmp_eq_u32 s{S_FIDX}, -1")
    a(f"s_cbranch_scc1 {skip}")
    a(f"v_mov_b32 v140, s{S_NONCE}")
    a(f"v_mov_b32 v141, s{S_NONCE+1}")
    a(f"v_mov_b32 v142, s{S_FIDX}")
    a("s_mov_b64 exec, 1")
    a(f"buffer_store_dwordx2 v[140:141], v142, s[{SRD_FLAG}:{SRD_FLAG+3}], 0 offen{SC1}")
    a("s_mov_b64 exec, -1")
    a.label(skip)

def poll_core(a, sv=80):
    loop = a.new("poll"); done = a.new("polldone")
    a(f"s_and_saveexec_b64 s[{sv}:{sv+1}], vcc")
    a(f"s_mov_b32 s{S_CNT}, 0x40000")
    a.label(loop)
    a(f"buffer_load_dwordx2 v[142:143], v140, s[{SRD_FLAG}:{SRD_FLAG+3}], 0 offen{SC1}")
    a("s_waitcnt vmcnt(0)")
    a(f"v_cmp_ne_u64 vcc, s[{S_NONCE}:{S_NONCE+1}], v[142:143]")
    a(f"s_cbranch_vccz {done}")
    a(f"s_sub_u32 s{S_CNT}, s{S_CNT}, 1")
    a(f"s_cmp_lg_u32 s{S_CNT}, 0")
    a(f"s_cbranch_scc1 {loop}")
    a.label(done)
    a(f"s_mov_b64 exec, s[{sv}:{sv+1}]")

def poll(a, lo_sgpr, hi_sgpr, base, wave=0):
    skip = a.new("pollskip")
    a(f"s_cmp_eq_u32 s{S_WAVE}, {wave}")
    a(f"s_cbranch_scc0 {skip}")
    a(f"v_add_u32 v140, s{lo_sgpr}, v2")
    a(f"v_cmp_gt_u32 vcc, s{hi_sgpr}, v140")
    a(f"v_lshlrev_b32 v140, 7, v140")
    a(f"v_add_u32 v140, {base}, v140")
    poll_core(a, 80 if wave == 0 else 4)
    a.label(skip)

def poll_first_g(a, lo_sgpr, hi_sgpr, W, k0, S, G, base):
    skip = a.new("pollskip")
    lg = 2 if G <= 4 else 3
    a(f"s_cmp_eq_u32 s{S_WAVE}, 0")
    a(f"s_cbranch_scc0 {skip}")
    a(f"v_lshrrev_b32 v140, {lg}, v2")
    a(f"v_add_u32 v140, s{lo_sgpr}, v140")
    a(f"v_cmp_ge_u32 vcc, s{hi_sgpr}, v140")
    a(f"v_and_b32 v141, {(1 << lg) - 1}, v2")
    a(f"v_cmp_gt_u32 s[82:83], {G}, v141")
    a(f"v_add_u32 v141, s{k0}, v141")
    a(f"v_subrev_u32 v142, {S}, v141")
    a(f"s_and_b64 s[82:83], s[82:83], vcc")
    a(f"v_cmp_le_u32 vcc, {S}, v141")
    a(f"v_mul_u32_u24 v140, {W}, v140")
    a("s_nop 0")
    a("v_cndmask_b32 v141, v141, v142, vcc")
    a("v_add_u32 v140, v140, v141")
    a(f"v_lshlrev_b32 v140, 7, v140")
    a(f"v_add_u32 v140, {base}, v140")
    a("s_mov_b64 vcc, s[82:83]")
    poll_core(a)
    a.label(skip)

def poll_first(a, lo_sgpr, hi_sgpr, W, k0, k1, base):
    skip = a.new("pollskip")
    a(f"s_cmp_eq_u32 s{S_WAVE}, 0")
    a(f"s_cbranch_scc0 {skip}")
    a("v_lshrrev_b32 v140, 1, v2")
    a(f"v_add_u32 v140, s{lo_sgpr}, v140")
    a(f"v_cmp_ge_u32 vcc, s{hi_sgpr}, v140")
    a(f"v_mul_u32_u24 v140, {W}, v140")
    a("v_and_b32 v141, 1, v2")
    a(f"s_sub_u32 s{S_T2}, s{k1}, s{k0}")
    a(f"v_mul_lo_u32 v141, v141, s{S_T2}")
    a(f"v_add_u32 v141, s{k0}, v141")
    a("v_add_u32 v140, v140, v141")
    a(f"v_lshlrev_b32 v140, 7, v140")
    a(f"v_add_u32 v140, {base}, v140")
    poll_core(a)
    a.label(skip)

def first_ks(a, P):
    P.rot_start(a)
    a(f"s_add_u32 s{S_KB}, s{S_K}, 1")
    a(f"s_cmp_ge_u32 s{S_KB}, {P.S}")
    a(f"s_cselect_b32 s{S_KB}, 0, s{S_KB}")

def dbg_srd(a):
    a(f"s_mov_b32 s80, s{ptr(KA_DBG)}")
    a(f"s_and_b32 s81, s{ptr(KA_DBG)+1}, 0xffff")
    a("s_mov_b32 s82, 0x100")
    a("s_mov_b32 s83, 0x20000")

def nonce_publish(a):
    skip = a.new("nonce")
    a(f"s_cmp_eq_u32 s{S_WAVE}, 0")
    a(f"s_cbranch_scc0 {skip}")
    a("s_cmp_eq_u32 s2, 0")
    a(f"s_cbranch_scc0 {skip}")
    dbg_srd(a)
    a(f"s_memrealtime s[{S_NONCE}:{S_NONCE+1}]")
    a("v_mov_b32 v5, 0")
    a("s_waitcnt lgkmcnt(0)")
    a(f"s_or_b32 s{S_NONCE}, s{S_NONCE}, 1")
    a(f"v_mov_b32 v6, s{S_NONCE}")
    a(f"v_mov_b32 v7, s{S_NONCE+1}")
    a("s_mov_b64 exec, 1")
    a(f"buffer_store_dwordx2 v[6:7], v5, s[80:83], 0 offen{SC1}")
    a("s_mov_b64 exec, -1")
    a.label(skip)

def nonce_issue(a):
    skip = a.new("nonce")
    a(f"s_cmp_eq_u32 s{S_WAVE}, 0")
    a(f"s_cbranch_scc0 {skip}")
    dbg_srd(a)
    a("v_mov_b32 v158, 0")
    a("s_nop 3")
    a(f"buffer_load_dwordx2 v[156:157], v158, s[80:83], 0 offen{SC1}")
    a.label(skip)

def nonce_check(a, issued=True):
    skip = a.new("nonce"); loop = a.new("nloop"); done = a.new("ndone"); chk = a.new("nchk")
    a(f"s_cmp_eq_u32 s{S_WAVE}, 0")
    a(f"s_cbranch_scc0 {skip}")
    dbg_srd(a)
    a("v_mov_b32 v158, 0")
    a(f"s_mov_b32 s{S_CNT}, 0x40000")
    if issued: a(f"s_branch {chk}")
    a.label(loop)
    a(f"buffer_load_dwordx2 v[156:157], v158, s[80:83], 0 offen{SC1}")
    a("s_waitcnt vmcnt(0)")
    a.label(chk)
    a("v_readfirstlane_b32 s" + str(S_NONCE) + ", v156")
    a("v_readfirstlane_b32 s" + str(S_NONCE+1) + ", v157")
    a("s_nop 3")
    a(f"s_cmp_lg_u32 s{S_NONCE}, 0")
    a(f"s_cbranch_scc1 {done}")
    a(f"s_sub_u32 s{S_CNT}, s{S_CNT}, 1")
    a(f"s_cmp_lg_u32 s{S_CNT}, 0")
    a(f"s_cbranch_scc1 {loop}")
    a.label(done)
    a(f"v_mov_b32 v158, {NONCE_LDS}")
    a("s_mov_b64 exec, 1")
    a("ds_write_b64 v158, v[156:157]")
    a("s_mov_b64 exec, -1")
    a("s_waitcnt lgkmcnt(0)")
    a.label(skip)

def nonce_from_lds(a):
    skip = a.new("nlds")
    a(f"s_cmp_eq_u32 s{S_WAVE}, 7")
    a(f"s_cbranch_scc0 {skip}")
    a(f"v_mov_b32 v140, {NONCE_LDS}")
    a("ds_read_b64 v[142:143], v140")
    a("s_waitcnt lgkmcnt(0)")
    a(f"v_readfirstlane_b32 s{S_NONCE}, v142")
    a(f"v_readfirstlane_b32 s{S_NONCE+1}, v143")
    a.label(skip)

class Phase:
    has_e1 = False
    has_stage_work = False
    prefetchB = 0
    def loader_post_first(self, a): return 0
    def loader_post_b0(self, a): return 0
    def loader_stage_work_parts(self): return []
    def loader_final(self, a): pass
    def store_pre(self, a): pass
    def tail_prefetch(self, a, part): return 0
    def mid_prefetch(self, a, s): return 0
    def l2_prep(self, a): pass
    def rot_start(self, a):
        if self.key in ROTOFF:
            a(f"s_mov_b32 s{S_K}, 0"); return
        ca, cb, den = self.rot
        a(f"s_mul_i32 s{S_K}, s{S_CT}, {ca}")
        a(f"s_mul_i32 s{S_T0}, s{S_RT}, {cb}")
        a(f"s_add_u32 s{S_K}, s{S_K}, s{S_T0}")
        a(f"s_lshr_b32 s{S_K}, s{S_K}, {den}")
        m = (65536 + self.S - 1) // self.S
        for x in range(1024): assert (x*m) >> 16 == x // self.S
        a(f"s_mul_i32 s{S_T0}, s{S_K}, {m}")
        a(f"s_lshr_b32 s{S_T0}, s{S_T0}, 16")
        a(f"s_mul_i32 s{S_T0}, s{S_T0}, {self.S}")
        a(f"s_sub_u32 s{S_K}, s{S_K}, s{S_T0}")
    def tile_consts(self, a):
        a(f"s_mul_i32 s{S_R0}, s{S_RT}, {self.MV}")
        a(f"s_mul_i32 s{S_C0}, s{S_CT}, {self.NC}")
        a(f"s_add_u32 s{S_REND}, s{S_R0}, {self.MV}")
        a(f"s_min_u32 s{S_REND}, s{S_REND}, {S_TOK}")

def transition(a, first):
    pass

def loader_phase(a, P, first):
    NS, S = P.NS, P.S
    nA, nB = len(P.Ains), len(P.Bins)
    VB = 32
    customB = getattr(P, 'custom_B', False)
    a("v_lshrrev_b32 v3, 3, v2      ; r8")
    a("v_and_b32 v4, 7, v2          ; p")
    a("v_lshrrev_b32 v5, 1, v3      ; r8>>1")
    a("v_xor_b32 v6, v4, v5")
    a("v_lshlrev_b32 v6, 4, v6")
    a(f"s_lshl_b32 s{S_T0}, s{S_W}, 3")
    a(f"s_add_u32 s{S_T0}, s{S_T0}, s{S_R0}")
    a(f"v_add_u32 v7, s{S_T0}, v3")
    a(f"s_mov_b32 s{S_T0}, {P.lda}")
    a(f"v_mul_lo_u32 v7, v7, s{S_T0}")
    a("v_add_u32 v7, v7, v6")
    a(f"s_and_b32 s{S_T0}, s{S_W}, 1")
    a(f"s_lshl_b32 s{S_T0}, s{S_T0}, 6")
    a(f"v_xor_b32 v7, s{S_T0}, v7")
    for t in range(nA):
        a(f"v_add_u32 v{VB+t}, {t*32*P.lda}, v7")
    if customB: P.lazyB = True
    else: std_B_setup(a, P, VB, nA)
    if getattr(P, 'oprime', False): oprime_alt_setup(a, P)
    a(f"s_lshl_b32 s{S_LW}, s{S_W}, 10")
    P.mask_setup(a)
    P.rot_start(a)
    a(f"s_mov_b32 s{S_KB}, s{S_K}")
    a(f"s_mov_b32 s{S_N1}, 0"); a(f"s_mov_b32 s{S_N2}, 0")
    if first: ptr_wait(a)
    P.build_srds(a, 'l')
    loader_rest(a, P, first, VB, nA, nB, NS, S)

def oprime_alt_setup(a, P):
    a(f"s_and_b32 s{S_T0}, s{S_W}, 1")
    a(f"s_lshl_b32 s{S_T0}, s{S_T0}, 6")
    a(f"v_xor_b32 v10, s{S_T0}, v6")
    a("v_lshrrev_b32 v11, 5, v10             ; q = c>>1")
    a("v_lshlrev_b32 v11, 7, v11             ; q*128")
    a("v_and_b32 v12, 16, v10                ; half*16")
    a("v_add_u32 v11, v11, v12")
    a(f"s_lshl_b32 s{S_T0}, s{S_W}, 3")
    a(f"s_add_u32 s{S_T0}, s{S_T0}, s{S_R0}")
    a(f"v_add_u32 v12, s{S_T0}, v3            ; row (t=0)")
    for t in range(3):
        a(f"v_add_u32 v13, {32*t}, v12")
        a("v_lshrrev_b32 v14, 2, v13")
        a("v_lshlrev_b32 v14, 10, v14")
        a("v_and_b32 v13, 3, v13")
        a("v_lshl_add_u32 v14, v13, 5, v14")
        a("v_add_u32 v14, v14, v11")
        a(f"v_add_u32 v{44+t}, 0x200000, v14")
    a(f"s_and_b32 s{S_T0}, s{S_W}, 1")
    a(f"s_lshl_b32 s{S_T0}, s{S_T0}, 6")
    a(f"v_xor_b32 v10, s{S_T0}, v8")
    a(f"s_lshl_b32 s{S_T1}, s{S_C0}, 1")
    a(f"v_add_u32 v10, s{S_T1}, v10")
    a(f"s_lshl_b32 s{S_T0}, s{S_W}, 3")
    for t, ib in enumerate((0, 4)):
        a(f"v_add_u32 v12, s{S_T0}, v3")
        a(f"v_add_u32 v12, {8*ib}, v12          ; r")
        a("v_lshrrev_b32 v13, 4, v12")
        a("v_mul_u32_u24 v13, 80, v13")
        a("v_and_b32 v12, 15, v12")
        a("v_add_u32 v13, v13, v12")
        a("v_add_u32 v13, 64, v13")
        a("v_mul_u32_u24 v13, 1280, v13")
        a(f"v_add_u32 v{47+t}, v13, v10")

def std_B_setup(a, P, VB, nA):
    a("v_and_b32 v8, 1, v5")
    a("v_lshlrev_b32 v8, 1, v8")
    a("v_xor_b32 v8, v4, v8")
    a("v_lshlrev_b32 v8, 4, v8")
    a(f"s_lshl_b32 s{S_T0}, s{S_W}, 3")
    a(f"v_add_u32 v9, s{S_T0}, v3         ; k = 8w + r8")
    a(f"s_mov_b32 s{S_T0}, {P.ldb}")
    a(f"v_mul_lo_u32 v9, v9, s{S_T0}")
    a("v_add_u32 v9, v9, v8")
    a(f"s_and_b32 s{S_T0}, s{S_W}, 1")
    a(f"s_lshl_b32 s{S_T0}, s{S_T0}, 6")
    a(f"v_xor_b32 v9, s{S_T0}, v9")
    a(f"s_lshl_b32 s{S_T1}, s{S_C0}, 1")
    a(f"v_add_u32 v9, s{S_T1}, v9")
    for t, (pn, ib) in enumerate(P.Bins):
        a(f"v_add_u32 v{VB+nA+t}, {ib*8*P.ldb + P.panel_coloff[pn]}, v9")

def loader_rest(a, P, first, VB, nA, nB, NS, S):

    opr = getattr(P, 'oprime', False)
    def soff(kreg, offreg, mul):
        if not opr:
            a(f"s_mul_i32 s{offreg}, s{kreg}, {mul}")
            return
        mm, mt_ = (128, 512) if offreg == S_AOFF else (102400, 409600)
        a(f"s_mul_i32 s{offreg}, s{kreg}, {mm}")
        a(f"s_sub_u32 s{S_T0}, s{kreg}, 8")
        a(f"s_mul_i32 s{S_T0}, s{S_T0}, {mt_}")
        a(f"s_cmp_ge_u32 s{kreg}, 8")
        a(f"s_cselect_b32 s{offreg}, s{S_T0}, s{offreg}")
    def adv(kreg, offreg, mul, slotreg):
        if getattr(P, 'order2', False) and P1ROT == 'latin2':
            cnt = S_N1 if kreg == S_K else S_N2
            a(f"s_add_u32 s{kreg}, s{kreg}, 2")
            a(f"s_cmp_ge_u32 s{kreg}, {S}")
            a(f"s_cselect_b32 s{S_T0}, {S}, 0")
            a(f"s_sub_u32 s{kreg}, s{kreg}, s{S_T0}")
            a(f"s_add_u32 s{cnt}, s{cnt}, 1")
            a(f"s_cmp_eq_u32 s{cnt}, 5")
            a(f"s_addc_u32 s{kreg}, s{kreg}, 0")
        else:
            a(f"s_add_u32 s{kreg}, s{kreg}, 1")
            a(f"s_cmp_ge_u32 s{kreg}, {S}")
            a(f"s_cselect_b32 s{kreg}, 0, s{kreg}")
        soff(kreg, offreg, mul)
        a(f"s_add_u32 s{slotreg}, s{slotreg}, {P.STAGE}")
        a(f"s_cmp_ge_u32 s{slotreg}, {P.STAGE*NS}")
        a(f"s_cselect_b32 s{slotreg}, 0, s{slotreg}")
    def issueA(fill=None):
        a(f"s_add_u32 s{S_T3}, s{S_SLOT}, s{S_LW}")
        if opr:
            lt_ = a.new("atail"); le_ = a.new("aend")
            a(f"s_cmp_ge_u32 s{S_K}, 8")
            a(f"s_cbranch_scc1 {lt_}")
            issueA_body(VB, None)
            a(f"s_branch {le_}")
            a.label(lt_)
            issueA_body(44, None)
            a.label(le_)
        else:
            issueA_body(VB, fill)
        adv(S_K, S_AOFF, 128, S_SLOT)
    def issueA_body(vb, fill):
        for t in range(nA):
            special = P.Ains[t]
            sk = None
            if special == 'skip':
                sk = a.new("sk")
                a(f"s_cmp_eq_u64 s[{S_MASK}:{S_MASK+1}], 0")
                a(f"s_cbranch_scc1 {sk}")
            a(f"s_add_u32 m0, s{S_T3}, {t*4096}")
            if special: a(f"s_mov_b64 exec, s[{S_MASK}:{S_MASK+1}]")
            else: a("s_nop 0")
            a(f"buffer_load_dwordx4 v{vb+t}, s[{SRD_A}:{SRD_A+3}], s{S_AOFF} offen{P.scA} lds")
            if special: a("s_mov_b64 exec, -1")
            if sk: a.label(sk)
            if fill:
                for x in fill.pop(0) if fill else []: a(x)
    def issueB(fill=None):
        if getattr(P, 'lazyB', False):
            P.lazyB = False
            P.custom_B_setup(a, VB + nA)
        a(f"s_add_u32 s{S_T4}, s{S_SLOTB}, s{S_LW}")
        if opr:
            lt_ = a.new("btail"); le_ = a.new("bend")
            a(f"s_cmp_ge_u32 s{S_KB}, 8")
            a(f"s_cbranch_scc1 {lt_}")
            issueB_body(VB + nA, None)
            a(f"s_branch {le_}")
            a.label(lt_)
            issueB_body(47, None)
            a.label(le_)
        else:
            issueB_body(VB + nA, fill)
        adv(S_KB, S_BOFF, 64*P.ldb, S_SLOTB)
    def issueB_body(vb, fill):
        for t, ent in enumerate(P.Bins):
            if isinstance(ent, dict):
                sr = SRD_B0; ldsoff = ent['lds']; skp = ent.get('skip')
            else:
                pn, ib = ent
                sr = P.panel_srd[pn]; ldsoff = P.ABYTES + pn*8192 + ib*1024; skp = None
            sk = None
            if skp:
                sk = a.new("skb")
                a(f"s_cmp_ge_u32 s{S_W}, {skp}")
                a(f"s_cbranch_scc1 {sk}")
            a(f"s_add_u32 m0, s{S_T4}, {ldsoff}")
            a("s_nop 0")
            a(f"buffer_load_dwordx4 v{vb+t}, s[{sr}:{sr+3}], s{S_BOFF} offen lds")
            if sk: a.label(sk)
            if fill:
                for x in fill.pop(0) if fill else []: a(x)
    minA = nA - (1 if 'skip' in P.Ains else 0)
    minB = nB - sum(1 for e_ in P.Bins if isinstance(e_, dict) and e_.get('skip'))
    a(f"s_mov_b32 s{S_SLOT}, 0")
    a(f"s_mov_b32 s{S_SLOTB}, 0")
    soff(S_K, S_AOFF, 128)
    soff(S_KB, S_BOFF, 64*P.ldb)
    pB = P.prefetchB if not first else 0
    if pB:
        lp = a.new("bpre")
        a(f"s_mov_b32 s{S_CNT}, {pB}")
        a.label(lp)
        issueB()
        a(f"s_sub_u32 s{S_CNT}, s{S_CNT}, 1")
        a(f"s_cmp_lg_u32 s{S_CNT}, 0")
        a(f"s_cbranch_scc1 {lp}")
    if not first:
        a("s_barrier      ; B_dep")
    stamp(a, 0)
    L = []
    gate = getattr(P, 'gate', None) if not first else None
    for s in range(S):
        cap = (NS - 1) if s == 0 else s + NS - 2
        prev = L[-1] if L else -1
        if gate and s <= gate[1]:
            L.append(min(gate[0] - 1, cap, prev + 2))
        else:
            L.append(min(S - 1, cap, prev + (3 if gate else 2)))
    if gate:
        assert gate[0] <= pB and gate[0] - 1 <= NS - 1
        nonce_from_lds(a)
    seq = [('B', j) for j in range(pB)]
    if hasattr(P, 'pre_issue'):
        npre = P.pre_issue(a)
    def cnt_after(s):
        last = max(i for i, (k, j) in enumerate(seq) if j == s and k in 'AB')
        n = 0
        for (k, j) in seq[last+1:]:
            n += minA if k == 'A' else (minB if k == 'B' else j)
        return n
    def issue_stage(j, fill=None):
        if j >= pB:
            issueA(fill); seq.append(('A', j))
            issueB(fill); seq.append(('B', j))
        else:
            issueA(fill); seq.append(('A', j))
    prev = -1
    s = 0
    while s < S:
        k = L[s] - prev
        e = s
        if k == 1 and L[s] >= pB and s > 0 and not (WPF and getattr(P, 'unroll', False)):
            while e + 1 < S and L[e+1] - L[e] == 1 and (L[e+1] - (e+1)) == (L[s] - s): e += 1
        if e - s >= 2 and s - 0 >= 0 and min(range(s, e+1)) >= 0 and s >= pB - (L[s] - s) and all(j >= pB for j in range(s, s+1)):
            cnt = e - s + 1
            lp = a.new("lmain")
            a(f"s_mov_b32 s{S_CNT}, {cnt}")
            a.label(lp)
            parts = P.loader_stage_work_parts() if P.has_stage_work else None
            issue_stage(L[s], parts)
            if parts:
                for grp in parts:
                    for x in grp: a(x)
            n = cnt_after(s)
            a(f"s_waitcnt vmcnt({n})")
            if P.has_stage_work: a("s_waitcnt lgkmcnt(0)")
            a("s_barrier")
            a(f"s_sub_u32 s{S_CNT}, s{S_CNT}, 1")
            a(f"s_cmp_lg_u32 s{S_CNT}, 0")
            a(f"s_cbranch_scc1 {lp}")
            for j in range(s+1, e+1):
                seq.append(('A', L[j])); seq.append(('B', L[j]))
            prev = L[e]; s = e + 1
            continue
        parts = P.loader_stage_work_parts() if (P.has_stage_work and s > 0) else None
        for j in range(prev+1, L[s]+1):
            issue_stage(j, parts if j == prev+1 else None)
        if s == 0:
            stamp(a, 1)
            ex = P.loader_post_first(a) or 0
            P.l2_prep(a)
            if getattr(P, 'early_pre', False): ex += P.early_setup(a)
            if ex: seq.append(('X', ex))
        if parts:
            for grp in parts:
                for x in grp: a(x)
        nw = P.mid_prefetch(a, s) or 0
        if nw: seq.append(('X', nw))
        if gate and s == gate[1]: P.deps(a, wave=7)
        a(f"s_waitcnt vmcnt({cnt_after(s)})")
        if P.has_stage_work or s == 0: a("s_waitcnt lgkmcnt(0)")
        a("s_barrier")
        if s == 0:
            ex = P.loader_post_b0(a) or 0
            if ex: seq.append(('X', ex))
        prev = L[s]; s += 1
    stamp(a, 2)
    if P.has_stage_work:
        for grp in P.loader_stage_work_parts():
            for x in grp: a(x)
    if getattr(P, 'fused', False):
        P.loader_fused_tail(a)
        return
    P.loader_final(a)
    if getattr(P, 'chunk_epi', False): P.loader_store_setup(a)
    if getattr(P, 'early_pre', False):
        a("s_barrier          ; E2")
        P.store_fast(a)
        P.set_fidx(a)
        return
    P.store_pre(a)
    ny = 0
    if P.has_e1:
        a("s_waitcnt lgkmcnt(0)")
        a("s_barrier      ; E1")
    if getattr(P, 'stream_epi', False):
        P.set_fidx(a)
        return
    if getattr(P, 'chunk_epi', False):
        P.loader_epilogue(a)
        P.set_fidx(a)
        return
    a("s_barrier          ; E2")
    store_pass(a, P, ny)

def consumer_phase(a, P, first):
    if getattr(P, 'modeS', False): return consumer_phase_S(a, P, first)
    P.consumer_setup(a)
    NW = len(P.wlist)
    XF = [0, 4*P.NXMAX]
    WF = [8*P.NXMAX, 8*P.NXMAX + 4*NW]
    wk, wt = getattr(P, 'wstep', (4096, 512))
    def reads(kk, buf):
        r = []
        for wi, (areg, off) in enumerate(P.wlist):
            base = WF[buf] + 4*wi
            r.append(f"ds_read_b64_tr_b16 a[{base}:{base+1}], v{areg} offset:{off + kk*wk}")
            r.append(f"ds_read_b64_tr_b16 a[{base+2}:{base+3}], v{areg} offset:{off + kk*wk + wt}")
        for xi, (areg0, areg1, off) in enumerate(P.xlist):
            base = XF[buf] + 4*xi
            areg = areg0 if kk == 0 else areg1
            r.append(f"ds_read_b128 a[{base}:{base+3}], v{areg} offset:{off}")
        return r
    def mfmas(buf, first_=False):
        m = []
        for (xi, wi, acc) in P.mf:
            c = "0" if first_ else f"v[{acc}:{acc+3}]"
            m.append(f"v_mfma_f32_16x16x32_bf16 v[{acc}:{acc+3}], a[{WF[buf]+4*wi}:{WF[buf]+4*wi+3}], a[{XF[buf]+4*xi}:{XF[buf]+4*xi+3}], {c}")
        return m
    block = make_block(a, P.RPM)
    cons_prologue(a, P, first)
    for x in reads(0, 0): a(x)
    a(f"s_mov_b32 s{S_CNT}, {P.S-1}")
    a("s_waitcnt lgkmcnt(0)")
    def stats4(buf):
        if not getattr(P, 'mfma_stats4', False): return
        sk = a.new("st4")
        a(f"s_and_b32 s{S_T0}, s{S_N1}, 3")
        a(f"s_add_u32 s{S_N1}, s{S_N1}, 1")
        a(f"s_cmp_eq_u32 s{S_T0}, s{S_WAVE}")
        a(f"s_cbranch_scc0 {sk}")
        for x in P.stats_mfmas([f"a[{XF[buf]+4*xi}:{XF[buf]+4*xi+3}]" for xi in range(len(P.xlist))]): a(x)
        a.label(sk)
    st4 = getattr(P, 'mfma_stats4', False)
    block(mfmas(0, True), reads(1, 1), slot_adv(P) + P.addr_update())
    stats4(0)
    lp = a.new("cloop")
    if ALIGN: a.raw(f".p2align {ALIGN}")
    a.label(lp)
    a("s_waitcnt lgkmcnt(0)")
    a("s_barrier")
    block(mfmas(1), reads(0, 0), [f"s_sub_u32 s{S_CNT}, s{S_CNT}, 1"])
    stats4(1)
    a("s_waitcnt lgkmcnt(0)")
    block(mfmas(0), reads(1, 1), slot_adv(P) + P.addr_update() + ([] if st4 else [f"s_cmp_lg_u32 s{S_CNT}, 0"]))
    stats4(0)
    if st4: a(f"s_cmp_lg_u32 s{S_CNT}, 0")
    a(f"s_cbranch_scc1 {lp}")
    a("s_waitcnt lgkmcnt(0)")
    block(mfmas(1), [])
    stats4(1)
    cons_tail(a, P, first)

def make_block(a, RPM):
    def block(m, r, fill=()):
        q = list(r); fl = list(fill)
        for i, x in enumerate(m):
            a(x)
            k = 0
            while q and k < RPM:
                a(q.pop(0)); k += 1
            if not q:
                while fl and k < 2:
                    a(fl.pop(0)); k += 1
        for x in q: a(x)
        for x in fl: a(x)
    return block

def slot_adv(P):
    return [f"s_add_u32 s{S_SLOT}, s{S_SLOT}, {P.STAGE}",
            f"s_cmp_ge_u32 s{S_SLOT}, {P.STAGE*P.NS}",
            f"s_cselect_b32 s{S_SLOT}, 0, s{S_SLOT}"]

def cons_prologue(a, P, first):
    a(f"s_mov_b32 s{S_SLOT}, 0")
    for x in P.addr_update(): a(x)
    if first: ptr_wait(a)
    P.build_srds(a, 'c')
    if not first:
        if TWOSTEP: P.deps_first(a)
        else: P.deps(a)
        a("s_barrier      ; B_dep")
        if getattr(P, 'early_pre', False): P.early_setup(a)
        if TWOSTEP and not getattr(P, 'gate', None): P.deps(a)
    else:
        nonce_publish(a)
    stamp(a, 0)
    a("s_barrier          ; B_0")
    stamp(a, 1)

def cons_tail(a, P, first):
    stamp(a, 2)
    if first: nonce_issue(a)
    a("s_nop 7")
    P.epilogue(a)
    if getattr(P, 'stream_epi', False) or getattr(P, 'chunk_epi', False):
        P.set_fidx(a)
        return
    a("s_waitcnt lgkmcnt(0)")
    if getattr(P, 'early_pre', False):
        a("s_barrier          ; E2")
        P.store_fast(a)
        P.set_fidx(a)
        return
    P.store_pre(a)
    a("s_barrier          ; E2")
    store_pass(a, P)

def consumer_phase_S(a, P, first):
    P.consumer_setup(a)
    for r in range(P.ACC, P.ACC + P.NACC): a(f"v_mov_b32 v{r}, 0")
    def rng(t):
        k, i = t
        return f"{k}[{i}:{i+3}]"
    def half(t, h):
        k, i = t
        return f"{k}[{i+2*h}:{i+2*h+1}]"
    def reads(buf):
        r = []
        for kk in range(2):
            for wi, (areg, off) in enumerate(P.wlist):
                t = P.fragW(buf, kk, wi)
                r.append(f"ds_read_b64_tr_b16 {half(t,0)}, v{areg} offset:{off + kk*4096}")
                r.append(f"ds_read_b64_tr_b16 {half(t,1)}, v{areg} offset:{off + kk*4096 + 512}")
            for xi, (areg0, areg1, off) in enumerate(P.xlist):
                areg = areg0 if kk == 0 else areg1
                r.append(f"ds_read_b128 {rng(P.fragX(buf, kk, xi))}, v{areg} offset:{off}")
        return r
    def mfmas(buf):
        m = []
        for kk in range(2):
            for (xi, wi, acc) in P.mf:
                m.append(f"v_mfma_f32_16x16x32_bf16 v[{acc}:{acc+3}], {rng(P.fragW(buf, kk, wi))}, {rng(P.fragX(buf, kk, xi))}, v[{acc}:{acc+3}]")
        return m
    def stats(buf):
        if not getattr(P, 'mfma_stats', False) or 'nostats' in EXP: return
        l1 = a.new("st"); l2 = a.new("st")
        a(f"s_cmp_eq_u32 s{S_J}, 1")
        a(f"s_cbranch_scc1 {l1}")
        for x in P.stats_mfmas([rng(P.fragX(buf, 0, xi)) for xi in range(4)]): a(x)
        a(f"s_branch {l2}")
        a.label(l1)
        for x in P.stats_mfmas([rng(P.fragX(buf, 1, xi)) for xi in range(4)]): a(x)
        a.label(l2)
    block = make_block(a, P.RPM)
    cons_prologue(a, P, first)
    for x in reads(0): a(x)
    for x in slot_adv(P) + P.addr_update(): a(x)
    S = P.S
    npair = (S - 1)//2
    def step(cur, fill_extra=()):
        a("s_waitcnt lgkmcnt(0)")
        a("s_barrier")
        block(mfmas(cur), reads(1 - cur), slot_adv(P) + P.addr_update() + list(fill_extra))
        stats(cur)
    a(f"s_mov_b32 s{S_CNT}, {npair}")
    lp = a.new("cloop")
    if ALIGN: a.raw(f".p2align {ALIGN}")
    a.label(lp)
    step(0, [f"s_sub_u32 s{S_CNT}, s{S_CNT}, 1"])
    step(1)
    a(f"s_cmp_lg_u32 s{S_CNT}, 0")
    a(f"s_cbranch_scc1 {lp}")
    last = 0
    if (S - 1) % 2 == 1:
        step(0); last = 1
    a("s_waitcnt lgkmcnt(0)")
    block(mfmas(last), [])
    stats(last)
    cons_tail(a, P, first)

def ptr_wait(a):
    a("s_waitcnt lgkmcnt(0)")
    if PROFDBG: a(f"s_mov_b32 s{S_P0}, s98")
    srd(a, SRD_FLAG, ptr(KA_WS), WS_FLAG, 0x20000)

def cons_lane(a):
    a("v_and_b32 v3, 15, v2")
    a("v_lshrrev_b32 v4, 4, v2")

def x_addr_const(a, dst, rowbase_sgpr, rowbase_const=0):
    a("v_lshrrev_b32 v5, 1, v3")
    a("v_xor_b32 v5, v4, v5")
    a("v_lshlrev_b32 v5, 4, v5")
    a(f"v_lshl_add_u32 v{dst}, v3, 7, v5")
    if rowbase_sgpr is not None:
        a(f"s_lshl_b32 s{S_T0}, s{rowbase_sgpr}, 7")
        a(f"v_add_u32 v{dst}, s{S_T0}, v{dst}")
    if rowbase_const:
        a(f"v_add_u32 v{dst}, {rowbase_const*128}, v{dst}")

def w_addr_const(a, dst):
    a("v_lshrrev_b32 v5, 2, v3        ; r")
    a("v_lshl_add_u32 v6, v4, 3, v5   ; 8g+r")
    a("v_lshlrev_b32 v6, 7, v6")
    a("v_lshrrev_b32 v5, 1, v5        ; r>>1")
    a("v_and_b32 v7, 1, v4")
    a("v_lshl_or_b32 v5, v7, 1, v5    ; h")
    a("v_lshl_add_u32 v6, v5, 5, v6")
    a("v_and_b32 v5, 3, v3")
    a(f"v_lshl_add_u32 v{dst}, v5, 3, v6")

def t_write_addr(a, dst, base_const):
    a("v_lshrrev_b32 v5, 1, v4")
    a("v_and_b32 v6, 7, v3")
    a("v_xor_b32 v5, v5, v6")
    a("v_lshlrev_b32 v5, 4, v5")
    a("v_and_b32 v6, 1, v4")
    a("v_lshl_add_u32 v5, v6, 3, v5")
    a(f"v_lshl_add_u32 v{dst}, v3, 7, v5")
    a(f"v_add_u32 v{dst}, {base_const}, v{dst}")

def pad_init(a, P, row0, nzero_rows, ones_row):
    a("v_mov_b32 v12, 0"); a("v_mov_b32 v13, 0"); a("v_mov_b32 v14, 0"); a("v_mov_b32 v15, 0")
    a(f"v_mov_b32 v10, {hex(ONES)}")
    a("v_lshlrev_b32 v11, 4, v2        ; lane*16")
    for rep in range((P.NS + 3)//4):
        sk = a.new("pad")
        a(f"s_add_u32 s{S_T0}, s{S_W}, {4*rep}")
        a(f"s_cmp_ge_u32 s{S_T0}, {P.NS}")
        a(f"s_cbranch_scc1 {sk}")
        a(f"s_mul_i32 s{S_T0}, s{S_T0}, {P.STAGE}")
        nb = nzero_rows*128; off = 0
        while off < nb:
            lanes = min(64, (nb - off)//16)
            a(f"v_add_u32 v16, s{S_T0}, v11")
            if lanes < 64: set_exec(a, (1 << lanes) - 1)
            a(f"ds_write_b128 v16, v[12:15] offset:{row0*128 + off}")
            if lanes < 64: a("s_mov_b64 exec, -1")
            off += lanes*16
        if ones_row is not None:
            a(f"v_lshlrev_b32 v16, 2, v2")
            a(f"v_add_u32 v16, s{S_T0}, v16")
            set_exec(a, 0xffffffff)
            a(f"ds_write_b32 v16, v10 offset:{ones_row*128}")
            a("s_mov_b64 exec, -1")
        a.label(sk)

def store_pass(a, P, ny=0):
    a("v_lshrrev_b32 v3, 3, v2")
    a("v_and_b32 v4, 7, v2")
    a("v_xor_b32 v5, v4, v3")
    a("v_lshlrev_b32 v5, 4, v5")
    a("v_lshl_add_u32 v5, v3, 7, v5")
    a(f"s_lshl_b32 s{S_T0}, s{S_WAVE}, 10")
    a(f"v_add_u32 v5, s{S_T0}, v5")
    a(f"v_add_u32 v5, {P.TBASE}, v5")
    a(f"s_lshl_b32 s{S_T0}, s{S_WAVE}, 3")
    a(f"s_add_u32 s{S_T0}, s{S_T0}, s{S_R0}")
    a(f"v_add_u32 v6, s{S_T0}, v3")
    a(f"s_mov_b32 s{S_T1}, {P.ldo}")
    a(f"v_mul_lo_u32 v7, v6, s{S_T1}")
    a(f"s_lshl_b32 s{S_T0}, s{S_C0}, 1")
    a(f"v_lshl_add_u32 v7, v4, 4, v7")
    a(f"v_add_u32 v7, s{S_T0}, v7")
    a("v_mov_b32 v8, 0x80000000")
    P.ny = ny
    P.store_body(a)
    P.set_fidx(a)

def store_addr(a, k, dst, P, coloff=0):
    a(f"v_add_u32 v9, {64*k}, v6")
    a(f"v_cmp_gt_u32 vcc, s{S_REND}, v9")
    a(f"v_add_u32 v{dst}, {64*k*P.ldo + coloff}, v7")
    a("s_nop 0")
    a(f"v_cndmask_b32 v{dst}, v8, v{dst}, vcc")

class P1(Phase):
    key = 'p1'; kind = "p1"; NT = 255
    MV = 121; NC = 128; lda = 1280; ldb = 3840; ldo = 3840
    ABYTES = 16384; STAGE = 32768; NS = 4; S = 10
    NXMAX = 4; RPM = 1
    has_stage_work = False; has_e1 = True
    mfma_stats = True
    order2 = True
    GRAM = 96; SUMA = 112; VONES = 24
    modeS = True; NACC = 64
    def fragW(self, buf, kk, wi): return ('a', 64*buf + 16*kk + 4*wi)
    def fragX(self, buf, kk, xi):
        if buf == 0: return ('a', 32 + 16*kk + 4*xi)
        return ('v', 128 + 16*kk + 4*xi)
    scA = ""
    panel_coloff = [0, 128]; panel_srd = [SRD_B0, SRD_B0]
    LDS_ST = 131072; LDS_CS = 131072 + 2048
    TBASE = 2*32768
    rot = (5, 10, 2)
    Ains = [None, None, None, 'mask']
    Bins = [(0, 0), (0, 4), (1, 0), (1, 4)]
    def __init__(self):
        self.vXc, self.vWc = 8, 9
        self.vXa, self.vXb = 10, 11
        self.vW = [12, 13, 14, 15]
        self.xlist = [(self.vXa, self.vXb, 2048*x) for x in range(4)]
        self.wlist = [(self.vW[f], self.ABYTES) for f in range(4)]
        self.ACC = 32
        self.mf = [(x, f, self.ACC + 4*(4*x + f)) for x in range(4) for f in range(4)]
    def rot_start(self, a):
        if P1ROT == "lock":
            a(f"s_mov_b32 s{S_K}, 0"); return
        if P1ROT == "two":
            a(f"s_add_u32 s{S_K}, s{S_RT}, s{S_CT}")
            a(f"s_and_b32 s{S_K}, s{S_K}, 1")
            a(f"s_mul_i32 s{S_K}, s{S_K}, 5"); return
        if P1ROT == "ten":
            a(f"s_mul_i32 s{S_K}, s{S_RT}, 3")
            a(f"s_add_u32 s{S_K}, s{S_K}, s{S_CT}")
            divc(a, S_T0, S_K, 10)
            a(f"s_mul_i32 s{S_T0}, s{S_T0}, 10")
            a(f"s_sub_u32 s{S_K}, s{S_K}, s{S_T0}"); return
        a(f"s_add_u32 s{S_K}, s{S_RT}, s{S_CT}")
        divc(a, S_T0, S_K, 5)
        a(f"s_mul_i32 s{S_T0}, s{S_T0}, 5")
        a(f"s_sub_u32 s{S_K}, s{S_K}, s{S_T0}")
        a(f"s_lshl_b32 s{S_K}, s{S_K}, 1")
    def l2_prep(self, a): l2_setup(a, "rm", 250, 64, KA_WO, D*D*2, 1280, D)
    def mid_prefetch(self, a, s):
        if s == 8: return l2_issue(a, KA_WO, 1280, D)
    def mask_setup(self, a):
        a(f"s_cmp_eq_u32 s{S_W}, 3")
        a(f"s_cselect_b32 s{S_MASK}, 0xff, -1")
        a(f"s_cselect_b32 s{S_MASK+1}, 0, -1")
    def build_srds(self, a, role):
        if role == 'l':
            srd(a, SRD_A, ptr(KA_X), 0, S_TOK*D*2)
            srd(a, SRD_B0, ptr(KA_WQKV), 0, D*NQKV*2)
        srd(a, SRD_OUT, ptr(KA_WS), WS_QKV, S_TOK*NQKV*2)
    def set_fidx(self, a):
        a(f"s_mul_i32 s{S_FIDX}, s{S_RT}, 15")
        a(f"s_add_u32 s{S_FIDX}, s{S_FIDX}, s{S_CT}")
        a(f"s_lshl_b32 s{S_FIDX}, s{S_FIDX}, 7")
    def loader_post_first(self, a):
        pad_init(a, self, 121, 6, 127)
        return 0
    def stats_mfmas(self, xregs):
        m = []
        for x in range(4):
            xa = xregs[x]
            g = self.GRAM + 4*x; sm = self.SUMA + 4*x
            m.append(f"v_mfma_f32_16x16x32_bf16 v[{g}:{g+3}], {xa}, {xa}, v[{g}:{g+3}]")
            m.append(f"v_mfma_f32_16x16x32_bf16 v[{sm}:{sm+3}], v[{self.VONES}:{self.VONES+3}], {xa}, v[{sm}:{sm+3}]")
        return m
    def consumer_setup(self, a):
        cons_lane(a)
        a(f"s_lshr_b32 s{S_I}, s{S_WAVE}, 1")
        a(f"s_and_b32 s{S_J}, s{S_WAVE}, 1")
        a(f"s_lshl_b32 s{S_T1}, s{S_I}, 6")
        x_addr_const(a, self.vXc, S_T1)
        w_addr_const(a, self.vWc)
        a(f"s_lshl_b32 s{S_T0}, s{S_J}, 13")
        a(f"v_add_u32 v{self.vWc}, s{S_T0}, v{self.vWc}")
        for r in range(4): a(f"v_mov_b32 v{self.VONES+r}, {hex(ONES)}")
        for r in range(32): a(f"v_mov_b32 v{self.GRAM+r}, 0")
        a(f"s_lshl_b32 s{S_T0}, s{S_J}, 8       ; j*64*4")
        a(f"v_lshlrev_b32 v16, 4, v4            ; g*16 bytes")
        a(f"v_add_u32 v16, s{S_T0}, v16")
        a(f"v_add_u32 v16, {self.LDS_CS}, v16")
        t_write_addr(a, 17, self.TBASE)
        a(f"s_lshl_b32 s{S_T0}, s{S_WAVE}, 13")
        a(f"v_add_u32 v17, s{S_T0}, v17")
        for f in range(1, 4): a(f"v_xor_b32 v{17+f}, {32*f}, v17")
        a(f"s_lshl_b32 s{S_T0}, s{S_I}, 9       ; i*64*8")
        a(f"s_lshl_b32 s{S_T1}, s{S_J}, 10      ; j*128*8")
        a(f"s_add_u32 s{S_T1}, s{S_T1}, s{S_T0}")
        a(f"v_lshlrev_b32 v7, 3, v3")
        a(f"v_add_u32 v21, s{S_T1}, v7")
        a(f"v_add_u32 v21, {self.LDS_ST}, v21")
        a(f"v_add_u32 v22, s{S_T0}, v7")
        a(f"v_add_u32 v22, {self.LDS_ST}, v22")
        a("v_lshrrev_b32 v5, 3, v2             ; r8")
        a("v_and_b32 v6, 7, v2                 ; c")
        a("v_xor_b32 v7, v6, v5")
        a("v_lshlrev_b32 v7, 4, v7")
        a("v_lshl_add_u32 v23, v5, 7, v7")
        a(f"s_lshl_b32 s{S_T0}, s{S_WAVE}, 13")
        a(f"s_add_u32 s{S_T0}, s{S_T0}, {self.TBASE}")
        a(f"v_add_u32 v23, s{S_T0}, v23")
        a(f"s_lshl_b32 s{S_T0}, s{S_I}, 6")
        a(f"s_add_u32 s{S_T0}, s{S_T0}, s{S_R0}")
        a(f"v_add_u32 v28, s{S_T0}, v5")
        a(f"s_mov_b32 s{S_T1}, 3840")
        a(f"v_mul_lo_u32 v28, v28, s{S_T1}")
        a("v_lshl_add_u32 v28, v6, 4, v28")
        a(f"s_lshl_b32 s{S_T0}, s{S_J}, 6")
        a(f"s_add_u32 s{S_T0}, s{S_T0}, s{S_C0}")
        a(f"s_lshl_b32 s{S_T0}, s{S_T0}, 1")
        a(f"v_add_u32 v28, s{S_T0}, v28")
    def addr_update(self):
        r = [f"v_add_u32 v{self.vXa}, s{S_SLOT}, v{self.vXc}",
             f"v_add_u32 v{self.vW[0]}, s{S_SLOT}, v{self.vWc}",
             f"v_xor_b32 v{self.vXb}, 64, v{self.vXa}"]
        for f in range(1, len(self.vW)):
            r.append(f"v_xor_b32 v{self.vW[f]}, {32*f}, v{self.vW[0]}")
        return r
    stream_epi = True
    def epilogue(self, a):
        nocs = a.new("nocs")
        a(f"s_cmp_eq_u32 s{S_I}, 1")
        a(f"s_cbranch_scc0 {nocs}")
        set_exec(a, 0x8000800080008000)
        for f in range(4):
            acc = self.ACC + 4*(4*3 + f)
            a(f"ds_write_b128 v16, v[{acc}:{acc+3}] offset:{64*f}")
        a("s_mov_b64 exec, -1")
        a.label(nocs)
        for i_, m_ in enumerate((0x22222222, 0x44444444, 0x88888888)):
            a(f"s_mov_b32 s{80+2*i_}, {hex(m_)}"); a(f"s_mov_b32 s{81+2*i_}, {hex(m_)}")
        for x in range(4):
            g = self.GRAM + 4*x
            a(f"v_cndmask_b32 v{g+1}, v{g}, v{g+1}, s[80:81]")
            a(f"v_cndmask_b32 v{g+1}, v{g+1}, v{g+2}, s[82:83]")
            a(f"v_cndmask_b32 v{g+1}, v{g+1}, v{g+3}, s[84:85]")
            a(f"v_mov_b32 v{g}, v{self.SUMA+4*x}           ; sum")
        set_exec(a, 0xF | (0xF << 20) | (0xF << 40) | (0xF << 60))
        for x in range(4):
            g = self.GRAM + 4*x
            a(f"ds_write_b64 v21, v[{g}:{g+1}] offset:{128*x}")
        a("s_mov_b64 exec, -1")
        a("s_waitcnt lgkmcnt(0)")
        a("s_barrier      ; E1")
        CS = 128; ST = 144
        for x in range(4):
            a(f"ds_read_b64 v[{ST+2*x}:{ST+2*x+1}], v22 offset:{128*x}")
            a(f"ds_read_b64 v[{96+2*x}:{97+2*x}], v22 offset:{1024 + 128*x}")
        for f in range(4):
            a(f"ds_read_b128 v[{CS+4*f}:{CS+4*f+3}], v16 offset:{64*f}")
        a("s_waitcnt lgkmcnt(4)")
        for x in range(4):
            st = ST + 2*x
            a(f"v_pk_add_f32 v[{st}:{st+1}], v[{st}:{st+1}], v[{96+2*x}:{97+2*x}]")
            a(f"v_mul_f32 v{st}, {hex(f2u(1.0/D))}, v{st}          ; mean")
            a(f"v_mul_f32 v{st+1}, {hex(f2u(1.0/D))}, v{st+1}")
            a(f"v_fma_f32 v{st+1}, -v{st}, v{st}, v{st+1}      ; var")
            a(f"v_add_f32 v{st+1}, {hex(f2u(1e-5))}, v{st+1}")
            a(f"v_rsq_f32 v{st+1}, v{st+1}")
        a("s_waitcnt lgkmcnt(0)")
        RB = [96, 104]
        def stores(x):
            rb = RB[x & 1]
            for u in range(2):
                a(f"v_add_u32 v{29+u}, {(16*x + 8*u)*3840}, v28")
            for u in range(2):
                if x == 3 and u == 1:
                    a(f"s_cmp_eq_u32 s{S_I}, 1")
                    a("s_cselect_b32 exec_lo, 0xff, -1")
                    a("s_cselect_b32 exec_hi, 0, -1")
                a(f"buffer_store_dwordx4 v[{rb+4*u}:{rb+4*u+3}], v{29+u}, s[{SRD_OUT}:{SRD_OUT+3}], 0 offen{SC1}")
            if x == 3: a("s_mov_b64 exec, -1")
        for x in range(4):
            st = ST + 2*x
            for f in range(4):
                acc = self.ACC + 4*(4*x + f)
                for hh in (0, 2):
                    a(f"v_pk_fma_f32 v[{acc+hh}:{acc+hh+1}], v[{CS+4*f+hh}:{CS+4*f+hh+1}], v[{st}:{st+1}], v[{acc+hh}:{acc+hh+1}] op_sel_hi:[1,0,1] neg_lo:[0,1,0] neg_hi:[0,1,0]")
                for hh in (0, 2):
                    a(f"v_pk_mul_f32 v[{acc+hh}:{acc+hh+1}], v[{acc+hh}:{acc+hh+1}], v[{st}:{st+1}] op_sel:[0,1] op_sel_hi:[1,1]")
                a(f"v_cvt_pk_bf16_f32 v{acc}, v{acc}, v{acc+1}")
                a(f"v_cvt_pk_bf16_f32 v{acc+1}, v{acc+2}, v{acc+3}")
                a(f"ds_write_b64 v{17+f}, v[{acc}:{acc+1}] offset:{2048*x}")
            rb = RB[x & 1]
            if x >= 1:
                a("s_waitcnt lgkmcnt(4)")
                stores(x - 1)
            for u in range(2):
                a(f"ds_read_b128 v[{rb+4*u}:{rb+4*u+3}], v23 offset:{2048*x + 1024*u}")
        a("s_waitcnt lgkmcnt(0)")
        stores(3)


class P1F(Phase):
    key = 'p1'; kind = "p1f"; NT = 256
    MV = 64; NC = 80; lda = 1280; ldb = 3840
    ABYTES = 10240; STAGE = 40960; NS = 3; S = 10
    NXMAX = 5; RPM = 1
    has_e1 = True; fused = True; custom_B = True
    scA = ""
    Ains = [None, None, 'skip']
    Bins = [dict(lds=10240 + 4096*t) for t in range(7)] + [dict(lds=10240 + 4096*7, skip=2)]
    panel_srd = [SRD_B0]
    LDS_STP = 122880
    QT = 40960; QROW = 488
    OT = 81920; OROW = 176
    ACC = 32; GRAM = 112; SUMA = 132; VONES = 152
    mfma_stats4 = True
    def __init__(self):
        self.vXc = 8; self.vXa, self.vXb = 9, 10
        self.vWc = [11, 12, 13, 14]; self.vW = [15, 16, 17, 18]
        self.xlist = [(self.vXa, self.vXb, 2048*x) for x in range(5)]
        self.wlist = None
        self.mf = [(x, j, self.ACC + 4*(4*x + j)) for x in range(5) for j in range(4)]
    def rot_start(self, a):
        if P1FROT == 'rot8':
            a(f"s_and_b32 s{S_K}, s{S_RT}, 7")
            a(f"s_mul_i32 s{S_K}, s{S_K}, 5")
            a(f"s_lshr_b32 s{S_K}, s{S_K}, 2")
            return
        a(f"s_add_u32 s{S_K}, s{S_RT}, s{S_CT}")
        divc(a, S_T0, S_K, 5)
        a(f"s_mul_i32 s{S_T0}, s{S_T0}, 5")
        a(f"s_sub_u32 s{S_K}, s{S_K}, s{S_T0}")
        a(f"s_lshl_b32 s{S_K}, s{S_K}, 1")
    @property
    def order2(self): return P1FROT != 'rot8'
    def pre_issue(self, a):
        if not APF: return 0
        a(f"s_and_b32 s{S_T0}, s{S_CT}, 3")
        a(f"s_mul_i32 s{S_T0}, s{S_T0}, 20")
        a(f"s_add_u32 s{S_T0}, s{S_T0}, s{S_R0}")
        a(f"s_mul_i32 s{S_T0}, s{S_T0}, 1280")
        a(f"s_lshl_b32 s{S_T1}, s{S_W}, 10")
        a(f"s_add_u32 s{S_T0}, s{S_T0}, s{S_T1}")
        a("v_lshlrev_b32 v60, 4, v2")
        a(f"v_add_u32 v60, s{S_T0}, v60")
        n = 7
        for i in range(n):
            a(f"buffer_load_dwordx4 v[152:155], v60, s[{SRD_A}:{SRD_A+3}], 0 offen")
            if i + 1 < n: a("v_add_u32 v60, 4096, v60")
        return n
    def tile_consts(self, a):
        a(f"s_lshl_b32 s{S_R0}, s{S_RT}, 6")
        a(f"s_sub_u32 s{S_R0}, s{S_R0}, 14")
        a(f"s_mul_i32 s{S_C0}, s{S_CT}, 160")
    def mask_setup(self, a):
        a(f"s_cmp_eq_u32 s{S_W}, 0")
        a(f"s_cselect_b32 s{S_MASK+1}, -1, 0xffff")
        a(f"s_cmp_lt_u32 s{S_W}, 2")
        a(f"s_cselect_b32 s{S_MASK}, -1, 0")
        a(f"s_cselect_b32 s{S_MASK+1}, s{S_MASK+1}, 0")
    def custom_B_setup(self, a, vb):
        a(f"s_lshl_b32 s{S_T0}, s{S_W}, 6")
        a(f"v_add_u32 v8, s{S_T0}, v2            ; c0")
        vdiv(a, 9, 8, 10, 256)
        a("v_mul_u32_u24 v10, 10, v9")
        a("v_sub_u32 v10, v8, v10                ; ch")
        a("v_mul_u32_u24 v11, 3840, v9")
        a("v_lshl_add_u32 v11, v10, 4, v11")
        a(f"v_add_u32 v{vb}, s{S_C0}, v11         ; voff t=0")
        for t in range(1, 8):
            a("v_add_u32 v10, 6, v10")
            a("v_add_u32 v9, 25, v9")
            a("v_cmp_le_u32 vcc, 10, v10")
            a(f"v_add_u32 v{vb+t}, {25*3840 + 96}, v{vb+t-1}")
            a("v_subrev_u32 v12, 10, v10")
            a("v_cndmask_b32 v10, v10, v12, vcc")
            a("v_addc_co_u32 v9, vcc, 0, v9, vcc") if False else None
            a(f"v_add_u32 v12, {3840 - 160}, v{vb+t}")
            a(f"v_cndmask_b32 v{vb+t}, v{vb+t}, v12, vcc")
            a("v_add_u32 v12, 1, v9")
            a("v_cndmask_b32 v9, v9, v12, vcc")
            a("v_cmp_le_u32 vcc, 64, v9")
            a(f"v_add_u32 v12, {(1280 - 64*3840) & 0xffffffff}, v{vb+t}")
            a("v_subrev_u32 v13, 64, v9")
            a(f"v_cndmask_b32 v{vb+t}, v{vb+t}, v12, vcc")
            a("v_cndmask_b32 v9, v9, v13, vcc")
    def build_srds(self, a, role):
        if role == 'l':
            srd(a, SRD_A, ptr(KA_X), 0, S_TOK*D*2)
            srd(a, SRD_B0, ptr(KA_WQKV), 0, D*NQKV*2)
        srd(a, SRD_OUT, ptr(KA_WS), WS_O, 0x280000)
    def set_fidx(self, a):
        a(f"s_lshl_b32 s{S_FIDX}, s{S_RT}, 3")
        a(f"s_add_u32 s{S_FIDX}, s{S_FIDX}, s{S_CT}")
        a(f"s_lshl_b32 s{S_FIDX}, s{S_FIDX}, 7")
        a(f"s_add_u32 s{S_FIDX}, s{S_FIDX}, 0x8000")
    def l2_prep(self, a): l2_setup(a, "rm", 250, 64, KA_WO, D*D*2, 1280, D)
    def mid_prefetch(self, a, s):
        if s == 9: return l2_issue(a, KA_WO, 1280, D)
    def loader_post_first(self, a):
        pad_init(a, self, 78, 1, 79)
        self.att_setup(a)
        return 0
    def att_setup(self, a):
        QT, QROW = self.QT, self.QROW
        a("v_and_b32 v3, 3, v2             ; i")
        a("v_bfe_u32 v4, v2, 2, 2          ; head")
        a("v_lshrrev_b32 v5, 4, v2         ; grp")
        a("v_lshrrev_b32 v6, 1, v5")
        a("v_lshlrev_b32 v6, 3, v6")
        a("v_and_b32 v7, 1, v5")
        a("v_add_u32 v6, v6, v7")
        a(f"s_lshl_b32 s{S_T0}, s{S_W}, 4")
        a(f"v_add_u32 v6, s{S_T0}, v6")
        a("v_lshlrev_b32 v7, 1, v3")
        a("v_add_u32 v7, v6, v7            ; rb + 2i")
        a(f"v_mul_u32_u24 v8, {QROW}, v7")
        a("v_mul_u32_u24 v9, 40, v4")
        a("v_add_u32 v8, v8, v9")
        a(f"v_add_u32 v144, {QT + 14*QROW}, v8")
        a(f"v_add_u32 v145, {QT + 160}, v8")
        a("v_cmp_eq_u32 vcc, 3, v3")
        a(f"v_mov_b32 v10, {16*QROW}")
        a(f"v_mov_b32 v11, {14*QROW}")
        a("v_cndmask_b32 v10, v10, v11, vcc")
        a("v_add_u32 v146, v145, v10")
        a(f"v_mul_u32_u24 v12, {self.OROW}, v7")
        a("v_add_u32 v12, v12, v9")
        a(f"v_add_u32 v118, {self.OT}, v12")
        a("v_lshlrev_b32 v12, 1, v4               ; 2r")
        a("v_add_u32 v12, v6, v12")
        a(f"v_mul_u32_u24 v12, {QROW}, v12")
        a("v_mul_u32_u24 v13, 40, v3")
        a("v_add_u32 v12, v12, v13")
        a(f"v_add_u32 v147, {QT + 320}, v12")
        a("v_cmp_eq_u32 vcc, 3, v4")
        a(f"v_mov_b32 v10, {16*QROW}")
        a("s_nop 0")
        a("v_cndmask_b32 v10, v10, v11, vcc")
        a("v_add_u32 v119, v147, v10")
        a(f"v_mov_b32 v12, {hex(f2u(-1e30))}")
        a("v_mov_b32 v13, 0")
        a(f"v_add_u32 v14, s{S_R0}, v6")
        for m in range(12):
            a(f"v_sub_u32 v15, {m}, v3")
            a("v_cmp_gt_u32 vcc, 8, v15")
            a(f"v_add_u32 v16, {2*m}, v14")
            a("v_cmp_le_i32 s[4:5], 0, v16")
            a("s_nop 1")
            a("s_and_b64 vcc, vcc, s[4:5]")
            a(f"v_cndmask_b32 v{120+m}, v12, v13, vcc")
        self.store_addr_setup(a)
    def store_addr_setup(self, a, regs=(148, 149, 156, 157), tmp=3):
        lm, lt, gm, gt = regs
        t0, t1, t2 = tmp, tmp + 1, tmp + 2
        a(f"v_lshrrev_b32 v{t0}, 3, v2             ; r8")
        a(f"v_and_b32 v{t1}, 7, v2                 ; p")
        a(f"s_lshl_b32 s{S_T0}, s{S_WAVE}, 3")
        a(f"v_add_u32 v{t2}, s{S_T0}, v{t0}")
        a(f"v_mul_u32_u24 v{lm}, {self.OROW}, v{t2}")
        a(f"v_lshl_add_u32 v{lm}, v{t1}, 4, v{lm}")
        a(f"v_add_u32 v{lm}, {self.OT}, v{lm}")
        a(f"s_add_u32 s{S_T0}, s{S_R0}, 14          ; T0")
        a(f"v_add_u32 v{gm}, s{S_T0}, v{t2}")
        a(f"v_lshlrev_b32 v{gm}, 10, v{gm}")
        a(f"v_lshl_add_u32 v{gm}, v{t1}, 4, v{gm}")
        a(f"s_lshl_b32 s{S_T1}, s{S_CT}, 7          ; hg*128")
        a(f"v_add_u32 v{gm}, s{S_T1}, v{gm}")
        a(f"v_lshrrev_b32 v{t0}, 1, v{t1}")
        a(f"v_lshl_add_u32 v{t0}, v{t2}, 2, v{t0}   ; token")
        a(f"v_mul_u32_u24 v{lt}, {self.OROW}, v{t0}")
        a(f"v_and_b32 v{t0}, 1, v{t1}")
        a(f"v_lshl_add_u32 v{lt}, v{t0}, 4, v{lt}")
        a(f"v_add_u32 v{lt}, {self.OT + 128}, v{lt}")
        a(f"s_lshr_b32 s{S_T0}, s{S_T0}, 2          ; T0/4")
        a(f"v_add_u32 v{gt}, s{S_T0}, v{t2}")
        a(f"v_lshlrev_b32 v{gt}, 10, v{gt}")
        a(f"v_lshl_add_u32 v{gt}, v{t1}, 4, v{gt}")
        a(f"s_add_u32 s{S_T1}, s{S_T1}, 0x200000")
        a(f"v_add_u32 v{gt}, s{S_T1}, v{gt}")
    def o_stores(self, a):
        a(f"ds_read_b128 v[20:23], v148")
        sk = a.new("ost")
        a(f"s_cmp_ge_u32 s{S_WAVE}, 2")
        a(f"s_cbranch_scc1 {sk}")
        a(f"ds_read_b128 v[24:27], v149")
        a("s_waitcnt lgkmcnt(0)")
        a(f"buffer_store_dwordx4 v[24:27], v157, s[{SRD_OUT}:{SRD_OUT+3}], 0 offen{OSC}")
        a.label(sk)
        a("s_waitcnt lgkmcnt(0)")
        a(f"buffer_store_dwordx4 v[20:23], v156, s[{SRD_OUT}:{SRD_OUT+3}], 0 offen{OSC}")
    def loader_fused_tail(self, a):
        l2_setup(a, "p3", 243, 64, KA_WG, D*F*2, 3456, D)
        a("s_barrier      ; E1")
        l2_issue(a, KA_WG, 3456, D)
        a("s_barrier")
        Q = 16; KR = 32; VR = 62; SC = 92; BIAS = 120; PB = 104
        QROW = self.QROW
        for dg in range(5):
            a(f"ds_read_b64 v[{Q+2*dg}:{Q+2*dg+1}], v144 offset:{8*dg}")
        for kb in range(3):
            for dg in range(5):
                r = KR + 2*(5*kb + dg)
                if kb < 2: a(f"ds_read_b64 v[{r}:{r+1}], v145 offset:{8*QROW*kb + 8*dg}")
                else: a(f"ds_read_b64 v[{r}:{r+1}], v146 offset:{8*dg}")
        scale = (D // 32) ** -0.5
        c1 = scale * 1.4426950408889634
        a(f"s_mov_b32 s{S_T2}, {hex(f2u(c1))}")
        a("s_waitcnt lgkmcnt(0)")
        for kb in range(3):
            for dg in range(5):
                r = VR + 2*(5*kb + dg)
                if kb < 2: a(f"ds_read_b64_tr_b16 v[{r}:{r+1}], v147 offset:{8*QROW*kb + 8*dg}")
                else: a(f"ds_read_b64_tr_b16 v[{r}:{r+1}], v119 offset:{8*dg}")
        for dg in range(5):
            for kb in range(3):
                r = KR + 2*(5*kb + dg); sc = SC + 4*kb
                c = "0" if dg == 0 else f"v[{sc}:{sc+3}]"
                a(f"v_mfma_f32_4x4x4_16b_bf16 v[{sc}:{sc+3}], v[{r}:{r+1}], v[{Q+2*dg}:{Q+2*dg+1}], {c}")
        a("s_nop 4")
        for m in range(12):
            a(f"v_fma_f32 v{SC+m}, v{SC+m}, s{S_T2}, v{BIAS+m}")
        a(f"v_max3_f32 v14, v{SC}, v{SC+1}, v{SC+2}")
        a(f"v_max3_f32 v15, v{SC+3}, v{SC+4}, v{SC+5}")
        a(f"v_max3_f32 v14, v14, v{SC+6}, v{SC+7}")
        a(f"v_max3_f32 v15, v15, v{SC+8}, v{SC+9}")
        a(f"v_max3_f32 v14, v14, v{SC+10}, v{SC+11}")
        a("v_max_f32 v14, v14, v15")
        for m in range(12):
            a(f"v_sub_f32 v{SC+m}, v{SC+m}, v14")
        for m in range(12):
            a(f"v_exp_f32 v{SC+m}, v{SC+m}")
        a(f"v_add_f32 v14, v{SC}, v{SC+1}")
        a(f"v_add_f32 v15, v{SC+2}, v{SC+3}")
        for m in range(4, 12, 2):
            a(f"v_add_f32 v14, v14, v{SC+m}")
            a(f"v_add_f32 v15, v15, v{SC+m+1}")
        a("v_add_f32 v14, v14, v15")
        a("v_rcp_f32 v14, v14")
        a("s_nop 0")
        for m in range(12):
            a(f"v_mul_f32 v{SC+m}, v{SC+m}, v14")
        for m in range(0, 12, 2):
            a(f"v_cvt_pk_bf16_f32 v{PB+m//2}, v{SC+m}, v{SC+m+1}")
        a("s_waitcnt lgkmcnt(0)")
        a("s_nop 0")
        OA = 32
        for kb in range(3):
            for dg in range(5):
                r = VR + 2*(5*kb + dg); o = OA + 4*dg
                c = "0" if kb == 0 else f"v[{o}:{o+3}]"
                a(f"v_mfma_f32_4x4x4_16b_bf16 v[{o}:{o+3}], v[{r}:{r+1}], v[{PB+2*kb}:{PB+2*kb+1}], {c}")
        a("s_nop 5")
        for dg in range(5):
            o = OA + 4*dg
            a(f"v_cvt_pk_bf16_f32 v{Q+2*dg}, v{o}, v{o+1}")
            a(f"v_cvt_pk_bf16_f32 v{Q+2*dg+1}, v{o+2}, v{o+3}")
            a(f"ds_write_b64 v118, v[{Q+2*dg}:{Q+2*dg+1}] offset:{8*dg}")
        a("s_waitcnt lgkmcnt(0)")
        a("s_barrier")
        self.o_stores(a)
        self.set_fidx(a)
    def consumer_setup(self, a):
        cons_lane(a)
        x_addr_const(a, self.vXc, None)
        a("v_lshrrev_b32 v5, 2, v3        ; r")
        a("v_lshl_add_u32 v5, v4, 3, v5   ; 8g + r")
        a("v_mul_u32_u24 v5, 160, v5")
        a("v_and_b32 v6, 3, v3")
        a("v_lshl_add_u32 v5, v6, 3, v5")
        for j in range(4):
            a(f"s_lshl_b32 s{S_T0}, s{S_WAVE}, 2")
            a(f"s_add_u32 s{S_T0}, s{S_T0}, {j}")
            a(f"s_min_u32 s{S_T0}, s{S_T0}, 14")
            divc(a, S_T1, S_T0, 5)
            a(f"s_mul_i32 s{S_T2}, s{S_T1}, 5")
            a(f"s_sub_u32 s{S_T2}, s{S_T0}, s{S_T2}       ; f%5")
            a(f"s_lshl_b32 s{S_T2}, s{S_T2}, 5")
            a(f"s_mul_i32 s{S_T3}, s{S_T1}, 10240")
            a(f"s_add_u32 s{S_T3}, s{S_T3}, s{S_T2}")
            a(f"s_add_u32 s{S_T3}, s{S_T3}, {self.ABYTES}")
            a(f"v_add_u32 v{self.vWc[j]}, s{S_T3}, v5")
            a(f"s_mul_i32 s{S_T3}, s{S_T1}, 160")
            a(f"s_add_u32 s{S_T3}, s{S_T3}, s{S_T2}")
            a(f"s_add_u32 s{S_T3}, s{S_T3}, {self.QT}")
            a(f"v_mul_u32_u24 v6, {self.QROW}, v3")
            a("v_lshl_add_u32 v6, v4, 3, v6")
            a(f"v_add_u32 v{20+j}, s{S_T3}, v6")
        for r in range(4): a(f"v_mov_b32 v{self.VONES+r}, {hex(ONES)}")
        for r in range(40): a(f"v_mov_b32 v{self.GRAM+r}, 0")
        a("v_lshlrev_b32 v25, 3, v3")
        a(f"v_add_u32 v25, {self.LDS_STP}, v25")
        a(f"s_mul_i32 s{S_T0}, s{S_WAVE}, 640")
        a(f"v_add_u32 v24, s{S_T0}, v25")
        a(f"s_mov_b32 s{S_N1}, 0")
        self.store_addr_setup_c(a)
        NW = 4
        self.wlist = [(self.vW[j], 0) for j in range(4)]
        self.wstep = (5120, 640)
    def store_addr_setup_c(self, a):
        self.store_addr_setup(a, regs=(26, 27, 28, 29), tmp=5)
    def addr_update(self):
        r = [f"v_add_u32 v{self.vXa}, s{S_SLOT}, v{self.vXc}"]
        r += [f"v_add_u32 v{self.vW[j]}, s{S_SLOT}, v{self.vWc[j]}" for j in range(4)]
        r += [f"v_xor_b32 v{self.vXb}, 64, v{self.vXa}"]
        return r
    def stats_mfmas(self, xregs):
        m = []
        for x in range(5):
            xa = xregs[x]
            g = self.GRAM + 4*x; sm = self.SUMA + 4*x
            m.append(f"v_mfma_f32_16x16x32_bf16 v[{g}:{g+3}], {xa}, {xa}, v[{g}:{g+3}]")
            m.append(f"v_mfma_f32_16x16x32_bf16 v[{sm}:{sm+3}], v[{self.VONES}:{self.VONES+3}], {xa}, v[{sm}:{sm+3}]")
        return m
    def epilogue(self, a):
        for i_, m_ in enumerate((0x22222222, 0x44444444, 0x88888888)):
            a(f"s_mov_b32 s{80+2*i_}, {hex(m_)}"); a(f"s_mov_b32 s{81+2*i_}, {hex(m_)}")
        for x in range(5):
            g = self.GRAM + 4*x
            a(f"v_cndmask_b32 v{g+1}, v{g}, v{g+1}, s[80:81]")
            a(f"v_cndmask_b32 v{g+1}, v{g+1}, v{g+2}, s[82:83]")
            a(f"v_cndmask_b32 v{g+1}, v{g+1}, v{g+3}, s[84:85]")
            a(f"v_mov_b32 v{g}, v{self.SUMA+4*x}")
        set_exec(a, 0xF | (0xF << 20) | (0xF << 40) | (0xF << 60))
        for x in range(5):
            g = self.GRAM + 4*x
            a(f"ds_write_b64 v24, v[{g}:{g+1}] offset:{128*x}")
        a("s_mov_b64 exec, -1")
        CS = 132
        for j in range(4):
            acc = self.ACC + 4*(4*4 + j)
            for r in range(4):
                a(f"v_mov_b32_dpp v{CS+4*j+r}, v{acc+r} row_newbcast:15 row_mask:0xf bank_mask:0xf")
        a("s_waitcnt lgkmcnt(0)")
        a("s_barrier      ; E1")
        ST = 8
        TM = 112
        for x in range(5):
            for wv in range(4):
                if x < 5:
                    pass
        for x in range(5):
            base = TM + 4*x if False else None
        regs = {0: 112, 1: 120, 2: 112, 3: 120, 4: 112}
        def rd(x):
            for wv in range(4):
                r = regs[x] + 2*wv
                a(f"ds_read_b64 v[{r}:{r+1}], v25 offset:{640*wv + 128*x}")
        def fin(x):
            r = regs[x]; st = ST + 2*x
            a(f"v_pk_add_f32 v[{r}:{r+1}], v[{r}:{r+1}], v[{r+2}:{r+3}]")
            a(f"v_pk_add_f32 v[{r+4}:{r+5}], v[{r+4}:{r+5}], v[{r+6}:{r+7}]")
            a(f"v_pk_add_f32 v[{st}:{st+1}], v[{r}:{r+1}], v[{r+4}:{r+5}]")
            a(f"v_mul_f32 v{st}, {hex(f2u(1.0/D))}, v{st}")
            a(f"v_mul_f32 v{st+1}, {hex(f2u(1.0/D))}, v{st+1}")
            a(f"v_fma_f32 v{st+1}, -v{st}, v{st}, v{st+1}")
            a(f"v_add_f32 v{st+1}, {hex(f2u(1e-5))}, v{st+1}")
            a(f"v_rsq_f32 v{st+1}, v{st+1}")
        rd(0); rd(1)
        a("s_waitcnt lgkmcnt(4)"); fin(0); rd(2)
        a("s_waitcnt lgkmcnt(4)"); fin(1); rd(3)
        a("s_waitcnt lgkmcnt(4)"); fin(2); rd(4)
        a("s_waitcnt lgkmcnt(4)"); fin(3)
        a("s_waitcnt lgkmcnt(0)"); fin(4)
        a("s_nop 0")
        for x in range(5):
            st = ST + 2*x
            for j in range(4):
                acc = self.ACC + 4*(4*x + j)
                for hh in (0, 2):
                    a(f"v_pk_fma_f32 v[{acc+hh}:{acc+hh+1}], v[{CS+4*j+hh}:{CS+4*j+hh+1}], v[{st}:{st+1}], v[{acc+hh}:{acc+hh+1}] op_sel_hi:[1,0,1] neg_lo:[0,1,0] neg_hi:[0,1,0]")
                for hh in (0, 2):
                    a(f"v_pk_mul_f32 v[{acc+hh}:{acc+hh+1}], v[{acc+hh}:{acc+hh+1}], v[{st}:{st+1}] op_sel:[0,1] op_sel_hi:[1,1]")
                a(f"v_cvt_pk_bf16_f32 v{acc}, v{acc}, v{acc+1}")
                a(f"v_cvt_pk_bf16_f32 v{acc+1}, v{acc+2}, v{acc+3}")
                a(f"ds_write_b64 v{20+j}, v[{acc}:{acc+1}] offset:{16*x*self.QROW}")
        a("s_waitcnt lgkmcnt(0)")
        a("s_barrier")
        a("s_barrier")
        a(f"ds_read_b128 v[32:35], v26")
        sk = a.new("ost")
        a(f"s_cmp_ge_u32 s{S_WAVE}, 2")
        a(f"s_cbranch_scc1 {sk}")
        a(f"ds_read_b128 v[36:39], v27")
        a("s_waitcnt lgkmcnt(0)")
        a(f"buffer_store_dwordx4 v[36:39], v29, s[{SRD_OUT}:{SRD_OUT+3}], 0 offen{OSC}")
        a.label(sk)
        a("s_waitcnt lgkmcnt(0)")
        a(f"buffer_store_dwordx4 v[32:35], v28, s[{SRD_OUT}:{SRD_OUT+3}], 0 offen{OSC}")
    stream_epi = True

class P24(Phase):
    kind = "rm"; NT = 250
    MV = 82; NC = 64; ldb = 1280; ldo = 1280
    ABYTES = 12288; STAGE = 20480; NS = 7
    NXMAX = 3; RPM = 2
    modeS = True; NACC = 24
    def fragW(self, buf, kk, wi): return ('a', 40*buf + 8*kk + 4*wi)
    def fragX(self, buf, kk, xi): return ('a', 40*buf + 16 + 12*kk + 4*xi)
    scA = SC1
    panel_coloff = [0]; panel_srd = [SRD_B0]
    TBASE = 0
    Ains = [None, None, 'skip']
    Bins = [(0, 0), (0, 4)]
    prefetchB = 7
    def __init__(self, which):
        self.which = which
        if which == 2:
            self.key = 'p2'; self.lda = 1024 if FUSE else 1280; self.S = 10; self.rot = (4, 13, 2)
            self.oprime = FUSE
        else:
            self.key = 'p4'; self.lda = 3456; self.S = 27; self.rot = (11, 36, 2)
        assert (self.S - 1) % self.NS != 0
        self.vXc, self.vWc = 8, 9
        self.vXa, self.vXb = 10, 11
        self.vW = [12, 13]
        self.xlist = [(self.vXa, self.vXb, 2048*x) for x in range(3)]
        self.wlist = [(self.vW[f], self.ABYTES) for f in range(2)]
        self.ACC = 32
        self.mf = [(x, f, self.ACC + 4*(2*x + f)) for x in range(3) for f in range(2)]
    def l2_prep(self, a):
        if self.which == 2: l2_setup(a, "p3", 243, 64, KA_WU, D*F*2, 3456, D)
    @property
    def gate(self): return GATE4 if (GATE and self.which == 4) else None
    def mid_prefetch(self, a, s):
        if self.which == 2 and s == 8: return l2_issue(a, KA_WU, 3456, D)
    def mask_setup(self, a):
        a(f"s_cmp_lt_u32 s{S_W}, 2")
        a(f"s_cselect_b32 s{S_MASK}, -1, 0xffff")
        a(f"s_cselect_b32 s{S_MASK+1}, -1, 0")
        a(f"s_cmp_eq_u32 s{S_W}, 3")
        a(f"s_cselect_b32 s{S_MASK}, 0, s{S_MASK}")
    def build_srds(self, a, role):
        if self.which == 2:
            if role == 'l':
                srd(a, SRD_A, ptr(KA_WS), WS_O, 0x280000 if FUSE else S_TOK*D*2)
                srd(a, SRD_B0, ptr(KA_WO), 0, D*D*2)
            srd(a, SRD_OUT, ptr(KA_WS), WS_H, S_TOK*D*2)
            srd(a, SRD_AUX, ptr(KA_X), 0, S_TOK*D*2)
            srd(a, SRD_ST, ptr(KA_WS), WS_ST, 250*1536)
        else:
            if role == 'l':
                srd(a, SRD_A, ptr(KA_WS), WS_HH, S_TOK*F*2)
                srd(a, SRD_B0, ptr(KA_WD), 0, F*D*2)
            srd(a, SRD_OUT, ptr(KA_OUT), 0, S_TOK*D*2)
            srd(a, SRD_AUX, ptr(KA_WS), WS_H, S_TOK*D*2)
    def dep_range(self, a):
        if self.which == 2:
            sh = 6 if FUSE else 4
            a(f"s_lshr_b32 s{S_T0}, s{S_R0}, {sh}")
            a(f"s_sub_u32 s{S_T1}, s{S_REND}, 1")
            a(f"s_lshr_b32 s{S_T1}, s{S_T1}, {sh}")
        else:
            sdiv(a, S_T0, S_R0, 228, 2100)
            a(f"s_sub_u32 s{S_T1}, s{S_REND}, 1")
            sdiv(a, S_T1, S_T1, 228, 2100)
    def deps_first(self, a):
        first_ks(a, self)
        if self.which == 2 and FUSE:
            for src, dst in ((S_K, S_T2), (S_KB, S_T3)):
                a(f"s_lshl_b32 s{dst}, 1, s{src}")
                a(f"s_sub_u32 s{S_T4}, s{src}, 8")
                a(f"s_lshl_b32 s{S_T4}, s{S_T4}, 2")
                a(f"s_lshl_b32 s{S_T4}, 15, s{S_T4}")
                a(f"s_cmp_ge_u32 s{src}, 8")
                a(f"s_cselect_b32 s{dst}, s{S_T4}, s{dst}")
            a(f"s_or_b32 s{S_T2}, s{S_T2}, s{S_T3}")
            self.dep_range(a)
            skip = a.new("pollskip")
            a(f"s_cmp_eq_u32 s{S_WAVE}, 0")
            a(f"s_cbranch_scc0 {skip}")
            a("v_and_b32 v141, 7, v2                 ; group j")
            a(f"v_lshrrev_b32 v142, v141, s{S_T2}") if False else None
            a(f"v_mov_b32 v142, s{S_T2}")
            a("v_lshrrev_b32 v142, v141, v142")
            a("v_and_b32 v142, 1, v142")
            a("v_lshrrev_b32 v140, 3, v2")
            a(f"v_add_u32 v140, s{S_T0}, v140")
            a(f"v_cmp_ge_u32 vcc, s{S_T1}, v140")
            a("v_cmp_eq_u32 s[82:83], 1, v142")
            a("v_lshl_add_u32 v140, v140, 3, v141")
            a("v_lshlrev_b32 v140, 7, v140")
            a("v_add_u32 v140, 0x8000, v140")
            a("s_and_b64 vcc, vcc, s[82:83]")
            poll_core(a)
            a.label(skip)
            return
        if self.which == 2:
            for r in (S_K, S_KB):
                a(f"s_cmp_ge_u32 s{r}, 5")
                a(f"s_cselect_b32 s{r}, 1, 0")
        self.dep_range(a)
        if self.gate: poll_first_g(a, S_T0, S_T1, 27, S_K, self.S, self.gate[0], 0x18000)
        else: poll_first(a, S_T0, S_T1, 2 if self.which == 2 else 27, S_K, S_KB, 0x8000 if self.which == 2 else 0x18000)
    def deps(self, a, wave=0):
        W = (8 if FUSE else 2) if self.which == 2 else 27
        self.dep_range(a)
        a(f"s_mul_i32 s{S_T0}, s{S_T0}, {W}")
        a(f"s_add_u32 s{S_T1}, s{S_T1}, 1")
        a(f"s_mul_i32 s{S_T1}, s{S_T1}, {W}")
        poll(a, S_T0, S_T1, 0x8000 if self.which == 2 else 0x18000, wave)
    def set_fidx(self, a):
        if self.which == 2:
            a(f"s_mul_i32 s{S_FIDX}, s{S_RT}, 10")
            a(f"s_add_u32 s{S_FIDX}, s{S_FIDX}, s{S_CT}")
            a(f"s_lshl_b32 s{S_FIDX}, s{S_FIDX}, 7")
            a(f"s_add_u32 s{S_FIDX}, s{S_FIDX}, 0x10000")
        else:
            a(f"s_mov_b32 s{S_FIDX}, -1")
    def loader_post_first(self, a):
        pad_init(a, self, 82, 14, None)
        return 0
    def consumer_setup(self, a):
        cons_lane(a)
        a(f"s_lshr_b32 s{S_I}, s{S_WAVE}, 1")
        a(f"s_and_b32 s{S_J}, s{S_WAVE}, 1")
        a(f"s_mul_i32 s{S_T1}, s{S_I}, 48")
        x_addr_const(a, self.vXc, S_T1)
        w_addr_const(a, self.vWc)
        a(f"s_lshl_b32 s{S_T0}, s{S_J}, 6      ; f0 = 2j -> xor 64j")
        a(f"v_xor_b32 v{self.vWc}, s{S_T0}, v{self.vWc}")
        t_write_addr(a, 17, self.TBASE)
        a(f"s_mul_i32 s{S_T0}, s{S_I}, {48*128}")
        a(f"v_add_u32 v17, s{S_T0}, v17")
        a(f"s_lshl_b32 s{S_T0}, s{S_J}, 6")
        a(f"v_xor_b32 v17, s{S_T0}, v17        ; f0 = 2j")
        a(f"v_xor_b32 v18, 32, v17")
    def addr_update(self):
        return P1.addr_update(self)
    def epilogue(self, a):
        for x in range(3):
            for f in range(2):
                acc = self.ACC + 4*(2*x + f)
                a(f"v_cvt_pk_bf16_f32 v{acc}, v{acc}, v{acc+1}")
                a(f"v_cvt_pk_bf16_f32 v{acc+1}, v{acc+2}, v{acc+3}")
                a(f"ds_write_b64 v{17+f}, v[{acc}:{acc+1}] offset:{2048*x}")
    RES = 100
    early_pre = True
    def early_setup(self, a):
        a("v_lshrrev_b32 v112, 3, v2")
        a("v_and_b32 v113, 7, v2")
        a("v_xor_b32 v108, v113, v112")
        a("v_lshlrev_b32 v108, 4, v108")
        a("v_lshl_add_u32 v108, v112, 7, v108")
        a(f"s_lshl_b32 s{S_T0}, s{S_WAVE}, 10")
        a(f"s_add_u32 s{S_T0}, s{S_T0}, {self.TBASE}")
        a(f"v_add_u32 v108, s{S_T0}, v108")
        a(f"s_lshl_b32 s{S_T0}, s{S_WAVE}, 3")
        a(f"s_add_u32 s{S_T0}, s{S_T0}, s{S_R0}")
        a(f"v_add_u32 v111, s{S_T0}, v112")
        a("v_mul_u32_u24 v109, 1280, v111")
        a(f"s_lshl_b32 s{S_T0}, s{S_C0}, 1")
        a("v_lshl_add_u32 v109, v113, 4, v109")
        a(f"v_add_u32 v109, s{S_T0}, v109")
        a(f"v_add_u32 v110, {64*1280}, v109")
        a("v_mov_b32 v114, 0x80000000")
        a(f"v_cmp_gt_u32 vcc, s{S_REND}, v111")
        a(f"v_add_u32 v115, 64, v111")
        a("s_nop 0")
        a("v_cndmask_b32 v109, v114, v109, vcc")
        a(f"v_cmp_gt_u32 vcc, s{S_REND}, v115")
        a("s_nop 1")
        a("v_cndmask_b32 v110, v114, v110, vcc")
        sc = SC1 if self.which == 4 else ""
        a(f"buffer_load_dwordx4 v[{self.RES}:{self.RES+3}], v109, s[{SRD_AUX}:{SRD_AUX+3}], 0 offen{sc}")
        a(f"buffer_load_dwordx4 v[{self.RES+4}:{self.RES+7}], v110, s[{SRD_AUX}:{SRD_AUX+3}], 0 offen{sc}")
        return 2
    def store_fast(self, a):
        sdone = a.new("sdone")
        sc = SC1 if self.which == 2 else OUTSC
        for k in range(2):
            a(f"ds_read_b128 v[{16+4*k}:{19+4*k}], v108 offset:{k*8192}")
        if self.which == 2:
            a(f"v_mov_b32 v26, {hex(ONES)}")
        a(f"s_waitcnt vmcnt(0) lgkmcnt(0)")
        for k in range(2):
            if k == 1:
                a(f"s_cmp_ge_u32 s{S_WAVE}, 3")
                a(f"s_cbranch_scc1 {sdone}")
            T = 16 + 4*k; R = self.RES + 4*k
            for d in range(4):
                a(f"v_lshlrev_b32 v28, 16, v{T+d}")
                a(f"v_and_b32 v29, 0xffff0000, v{T+d}")
                a(f"v_lshlrev_b32 v30, 16, v{R+d}")
                a(f"v_and_b32 v31, 0xffff0000, v{R+d}")
                a(f"v_pk_add_f32 v[28:29], v[28:29], v[30:31]")
                a(f"v_cvt_pk_bf16_f32 v{T+d}, v28, v29")
            a(f"buffer_store_dwordx4 v[{T}:{T+3}], v{109+k}, s[{SRD_OUT}:{SRD_OUT+3}], 0 offen{sc}")
            if self.which == 2:
                a("v_mov_b32 v24, 0"); a("v_mov_b32 v25, 0")
                a("s_nop 0")
                for d in range(4):
                    a(f"v_dot2_f32_bf16 v24, v{T+d}, v26, v24")
                    a(f"v_dot2_f32_bf16 v25, v{T+d}, v{T+d}, v25")
                a("s_nop 2")
                for dpp in ("quad_perm:[1,0,3,2]", "quad_perm:[2,3,0,1]", "row_half_mirror"):
                    a(f"v_add_f32_dpp v24, v24, v24 {dpp} row_mask:0xf bank_mask:0xf")
                    a(f"v_add_f32_dpp v25, v25, v25 {dpp} row_mask:0xf bank_mask:0xf")
                    a("s_nop 0")
                a(f"s_mul_i32 s{S_T0}, s{S_RT}, 10")
                a(f"s_add_u32 s{S_T0}, s{S_T0}, s{S_CT}")
                a(f"s_mul_i32 s{S_T0}, s{S_T0}, 1536")
                a(f"s_lshl_b32 s{S_T1}, s{S_WAVE}, 7")
                a(f"s_add_u32 s{S_T0}, s{S_T0}, s{S_T1}")
                a(f"v_lshrrev_b32 v9, 3, v2")
                a(f"v_lshlrev_b32 v9, 4, v9")
                a(f"v_add_u32 v9, s{S_T0}, v9")
                a("v_mov_b32 v12, v24"); a("v_mov_b32 v13, v25"); a("v_mov_b32 v14, 0"); a("v_mov_b32 v15, 0")
                set_exec(a, 0x0101010101010101)
                a(f"buffer_store_dwordx4 v[12:15], v9, s[{SRD_ST}:{SRD_ST+3}], 0 offen offset:{1024*k}{SC1}")
                a("s_mov_b64 exec, -1")
        a.label(sdone)

class P3(Phase):
    key = 'p3'; kind = "p3"; NT = 243
    MV = 228; NC = 64; lda = 1280; ldb = 3456; ldo = 3456
    ABYTES = 30720; STAGE = 47104; NS = 3; S = 10
    NXMAX = 8; RPM = 1
    has_e1 = True
    scA = SC1
    panel_coloff = [0, 0]; panel_srd = [SRD_B0, SRD_B1]
    LDS_ST = 47104*3; LDS_CS = 47104*3 + 1920
    TBASE = 47104
    rot = (4, 13, 2)
    Ains = [None]*7 + ['skip']
    Bins = [(0, 0), (0, 4), (1, 0), (1, 4)]
    prefetchB = 3
    def __init__(self):
        self.vXc, self.vXsc, self.vWc = 8, 9, 10
        self.vXa, self.vXb, self.vXsa, self.vXsb = 11, 12, 13, 14
        self.vW = [15, 16]
        self.xlist = [(self.vXa, self.vXb, 2048*x) for x in range(7)] + [(self.vXsa, self.vXsb, 0)]
        G, U = self.ABYTES, self.ABYTES + 8192
        self.wlist = [(self.vW[0], G), (self.vW[0], U), (self.vW[1], G), (self.vW[1], U)]
        self.ACC = 32
        self.mf = []
        acc = self.ACC
        self.accmap = {}
        for x in range(8):
            for wi in range(4):
                if x == 7 and wi >= 2: continue
                self.mf.append((x, wi, acc)); self.accmap[(x, wi)] = acc; acc += 4
        assert acc == 32 + 120
    @property
    def unroll(self): return l2_on(KA_WD)
    def l2_prep(self, a): l2_setup(a, "rm", 250, 64, KA_WD, F*D*2, 1280, F)
    def mid_prefetch(self, a, s):
        if s == 3: return l2_issue(a, KA_WD, 1280, F, 0, 9)
        if s == 6: return l2_issue(a, KA_WD, 1280, F, 9, None)
        if s == 9: return self.stats_loads(a)
    def mask_setup(self, a):
        a(f"s_cmp_eq_u32 s{S_W}, 0")
        a(f"s_cselect_b32 s{S_MASK}, -1, 0")
        a(f"s_mov_b32 s{S_MASK+1}, 0")
    def build_srds(self, a, role):
        if role == 'l':
            srd(a, SRD_A, ptr(KA_WS), WS_H, S_TOK*D*2)
            srd(a, SRD_B0, ptr(KA_WG), 0, D*F*2)
            srd(a, SRD_B1, ptr(KA_WU), 0, D*F*2)
            srd(a, SRD_ST, ptr(KA_WS), WS_ST, 250*1536)
        srd(a, SRD_OUT, ptr(KA_WS), WS_HH, S_TOK*F*2)
    def dep_range(self, a):
        sdiv(a, S_T0, S_R0, 82, 2100)
        a(f"s_sub_u32 s{S_T1}, s{S_REND}, 1")
        sdiv(a, S_T1, S_T1, 82, 2100)
    @property
    def gate(self): return (3, 2) if GATE else None
    def deps_first(self, a):
        first_ks(a, self)
        self.dep_range(a)
        if self.gate: poll_first_g(a, S_T0, S_T1, 10, S_K, self.S, self.gate[0], 0x10000)
        else: poll_first(a, S_T0, S_T1, 10, S_K, S_KB, 0x10000)
    def deps(self, a, wave=0):
        self.dep_range(a)
        a(f"s_mul_i32 s{S_T0}, s{S_T0}, 10")
        a(f"s_add_u32 s{S_T1}, s{S_T1}, 1")
        a(f"s_mul_i32 s{S_T1}, s{S_T1}, 10")
        poll(a, S_T0, S_T1, 0x10000, wave)
    def set_fidx(self, a):
        a(f"s_mul_i32 s{S_FIDX}, s{S_RT}, 27")
        a(f"s_add_u32 s{S_FIDX}, s{S_FIDX}, s{S_CT}")
        a(f"s_lshl_b32 s{S_FIDX}, s{S_FIDX}, 7")
        a(f"s_add_u32 s{S_FIDX}, s{S_FIDX}, 0x18000")
    def loader_post_first(self, a):
        pad_init(a, self, 228, 11, 239)
        return 0
    def stats_loads(self, a):
        a(f"s_lshl_b32 s{S_T0}, s{S_W}, 6")
        a(f"v_add_u32 v12, s{S_T0}, v2")
        a(f"v_add_u32 v13, s{S_R0}, v12")
        vdiv(a, 15, 13, 82, 2300)
        a("v_mul_u32_u24 v16, 82, v15")
        a("v_sub_u32 v16, v13, v16")
        a("v_mul_u32_u24 v15, 15360, v15")
        a("v_lshl_add_u32 v13, v16, 4, v15")
        a(f"v_add_u32 v15, s{S_R0}, v12")
        a(f"v_cmp_gt_u32 vcc, s{S_REND}, v15")
        a("v_mov_b32 v14, 0x80000000")
        a("s_nop 0")
        a("v_cndmask_b32 v13, v14, v13, vcc")
        for c in range(10):
            a(f"s_mov_b32 s{S_T0}, {c*1536}")
            a(f"buffer_load_dwordx2 v[{64+2*c}:{65+2*c}], v13, s[{SRD_ST}:{SRD_ST+3}], s{S_T0} offen{SC1}")
        return 10
    def loader_final(self, a):
        a("s_waitcnt vmcnt(0)")
        for c in range(1, 10):
            a(f"v_pk_add_f32 v[64:65], v[64:65], v[{64+2*c}:{65+2*c}]")
        a(f"v_mul_f32 v64, {hex(f2u(1.0/D))}, v64")
        a(f"v_mul_f32 v65, {hex(f2u(1.0/D))}, v65")
        a("v_fma_f32 v65, -v64, v64, v65")
        a(f"v_add_f32 v65, {hex(f2u(1e-5))}, v65")
        a("v_rsq_f32 v65, v65")
        a("v_lshlrev_b32 v12, 3, v12")
        a(f"v_add_u32 v12, {self.LDS_ST}, v12")
        a(f"s_cmp_eq_u32 s{S_W}, 3")
        a(f"s_cselect_b32 exec_hi, 0xffff, -1")
        a("ds_write_b64 v12, v[64:65]")
        a("s_mov_b64 exec, -1")
    def consumer_setup(self, a):
        cons_lane(a)
        a(f"s_lshr_b32 s{S_I}, s{S_WAVE}, 1")
        a(f"s_and_b32 s{S_J}, s{S_WAVE}, 1")
        a(f"s_lshl_b32 s{S_T1}, s{S_I}, 7")
        x_addr_const(a, self.vXc, S_T1)
        x_addr_const(a, self.vXsc, None, 112)
        w_addr_const(a, self.vWc)
        a(f"s_lshl_b32 s{S_T0}, s{S_J}, 1")
        a(f"s_add_u32 s{S_T0}, s{S_T0}, s{S_I}")
        a(f"s_lshl_b32 s{S_T0}, s{S_T0}, 5")
        a(f"v_xor_b32 v{self.vWc}, s{S_T0}, v{self.vWc}")
        a(f"s_lshl_b32 s{S_T0}, s{S_J}, 1")
        a(f"s_add_u32 s{S_T2}, s{S_T0}, s{S_I}     ; f0")
        a(f"s_lshl_b32 s{S_T0}, s{S_T2}, 6")
        a(f"v_lshlrev_b32 v24, 4, v4")
        a(f"v_add_u32 v24, s{S_T0}, v24")
        a(f"v_add_u32 v24, {self.LDS_CS}, v24")
        a(f"v_xor_b32 v25, 64, v24")
        t_write_addr(a, 26, self.TBASE)
        a(f"s_lshl_b32 s{S_T0}, s{S_T2}, 5")
        a(f"v_xor_b32 v26, s{S_T0}, v26")
        a(f"v_add_u32 v28, {112*128}, v26")
        a(f"s_lshl_b32 s{S_T0}, s{S_I}, 14")
        a(f"v_add_u32 v26, s{S_T0}, v26")
        a(f"v_xor_b32 v27, 32, v26")
        a(f"s_lshl_b32 s{S_T0}, s{S_I}, 10         ; 128*i*8")
        a(f"v_lshlrev_b32 v29, 3, v3")
        a(f"v_add_u32 v30, {self.LDS_ST + 112*8}, v29")
        a(f"v_add_u32 v29, s{S_T0}, v29")
        a(f"v_add_u32 v29, {self.LDS_ST}, v29")
    def addr_update(self):
        return [f"v_add_u32 v{self.vXa}, s{S_SLOT}, v{self.vXc}",
                f"v_add_u32 v{self.vW[0]}, s{S_SLOT}, v{self.vWc}",
                f"v_add_u32 v{self.vXsa}, s{S_SLOT}, v{self.vXsc}",
                f"v_xor_b32 v{self.vXb}, 64, v{self.vXa}",
                f"v_xor_b32 v{self.vW[1]}, 32, v{self.vW[0]}",
                f"v_xor_b32 v{self.vXsb}, 64, v{self.vXsa}"]
    chunk_epi = True
    def epilogue(self, a):
        nocs = a.new("nocs")
        assert self.LDS_CS % 128 == 0
        a(f"s_cmp_eq_u32 s{S_I}, 1")
        a(f"s_cbranch_scc0 {nocs}")
        set_exec(a, 0x8000800080008000)
        for wi, (areg, poff) in enumerate([(24, 0), (24, 256), (25, 0), (25, 256)]):
            acc = self.accmap[(6, wi)]
            a(f"ds_write_b128 v{areg}, v[{acc}:{acc+3}] offset:{poff}")
        a("s_mov_b64 exec, -1")
        a.label(nocs)
        a("s_waitcnt lgkmcnt(0)")
        a("s_barrier      ; E1")
        CSR = [8, 12, 152, 156]
        for wi, (areg, poff) in enumerate([(24, 0), (24, 256), (25, 0), (25, 256)]):
            a(f"ds_read_b128 v[{CSR[wi]}:{CSR[wi]+3}], v{areg} offset:{poff}")
        STR = [16, 18, 20, 22]
        def rdst(x):
            st = STR[x & 3]
            if x < 7: a(f"ds_read_b64 v[{st}:{st+1}], v29 offset:{128*x}")
            else: a(f"ds_read_b64 v[{st}:{st+1}], v30")
        for x in range(4): rdst(x)
        a("s_waitcnt lgkmcnt(0)")
        for x in range(8):
            st = STR[x & 3]
            npair = 1 if x == 7 else 2
            if x == 4:
                a("s_waitcnt lgkmcnt(0)")
                a("s_barrier      ; E2a")
            a(f"v_mul_f32 v{st+1}, v{st+1}, v{st+1}")
            for p in range(npair):
                g = self.accmap[(x, 2*p)]; u = self.accmap[(x, 2*p+1)]
                cg = CSR[2*p]; cu = CSR[2*p+1]
                for hh in (0, 2):
                    a(f"v_pk_fma_f32 v[{g+hh}:{g+hh+1}], v[{cg+hh}:{cg+hh+1}], v[{st}:{st+1}], v[{g+hh}:{g+hh+1}] op_sel_hi:[1,0,1] neg_lo:[0,1,0] neg_hi:[0,1,0]")
                    a(f"v_pk_fma_f32 v[{u+hh}:{u+hh+1}], v[{cu+hh}:{cu+hh+1}], v[{st}:{st+1}], v[{u+hh}:{u+hh+1}] op_sel_hi:[1,0,1] neg_lo:[0,1,0] neg_hi:[0,1,0]")
                for hh in (0, 2):
                    a(f"v_pk_mul_f32 v[{g+hh}:{g+hh+1}], v[{g+hh}:{g+hh+1}], v[{u+hh}:{u+hh+1}]")
                for hh in (0, 2):
                    a(f"v_pk_mul_f32 v[{g+hh}:{g+hh+1}], v[{g+hh}:{g+hh+1}], v[{st}:{st+1}] op_sel:[0,1] op_sel_hi:[1,1]")
                a(f"v_cvt_pk_bf16_f32 v{g}, v{g}, v{g+1}")
                a(f"v_cvt_pk_bf16_f32 v{g+1}, v{g+2}, v{g+3}")
                if x < 7: a(f"ds_write_b64 v{26+p}, v[{g}:{g+1}] offset:{2048*x}")
                else: a(f"ds_write_b64 v28, v[{g}:{g+1}]")
            if x < 4: rdst(x + 4)
        a("s_waitcnt lgkmcnt(0)")
        a("s_barrier      ; E2b")
    def loader_store_setup(self, a):
        a("v_lshrrev_b32 v3, 3, v2")
        a("v_and_b32 v4, 7, v2")
        a("v_xor_b32 v5, v4, v3")
        a("v_lshlrev_b32 v5, 4, v5")
        a("v_lshl_add_u32 v50, v3, 7, v5")
        a(f"s_lshl_b32 s{S_T0}, s{S_W}, 10")
        a(f"s_add_u32 s{S_T0}, s{S_T0}, {self.TBASE}")
        a(f"v_add_u32 v50, s{S_T0}, v50")
        a(f"s_lshl_b32 s{S_T0}, s{S_W}, 3")
        a(f"s_add_u32 s{S_T0}, s{S_T0}, s{S_R0}")
        a(f"v_add_u32 v51, s{S_T0}, v3")
        a(f"s_mov_b32 s{S_T1}, 3456")
        a(f"v_mul_lo_u32 v52, v51, s{S_T1}")
        a(f"s_lshl_b32 s{S_T0}, s{S_C0}, 1")
        a("v_lshl_add_u32 v52, v4, 4, v52")
        a(f"v_add_u32 v52, s{S_T0}, v52")
    def loader_stores(self, a, units):
        for n, u0 in enumerate(units):
            a(f"ds_read_b128 v[{56+4*n}:{59+4*n}], v50 offset:{u0*1024}")
        for n, u0 in enumerate(units):
            a(f"v_add_u32 v{53 if n & 1 else 54}, {u0*8*3456}, v52")
            special = (u0 + 3)*8 + 7 >= self.MV
            if special:
                a(f"v_add_u32 v55, {u0*8}, v51")
                a(f"s_add_u32 s{S_T0}, s{S_R0}, {self.MV}")
                a(f"v_cmp_gt_u32 vcc, s{S_T0}, v55")
                a(f"s_and_saveexec_b64 s[80:81], vcc")
            a(f"s_waitcnt lgkmcnt({len(units) - 1 - n})")
            a(f"buffer_store_dwordx4 v[{56+4*n}:{59+4*n}], v{53 if n & 1 else 54}, s[{SRD_OUT}:{SRD_OUT+3}], 0 offen{SC1}")
            if special: a("s_mov_b64 exec, s[80:81]")
    def loader_epilogue(self, a):
        a("s_barrier      ; E2a")
        self.loader_stores(a, [0, 4, 16, 20])
        a("s_barrier      ; E2b")
        self.loader_stores(a, [8, 12, 24, 28])

ROWB = 656
LQ, LK, LV, LO = 16384, 16384 + 16*ROWB, 16384 + 46*ROWB, 0
WPF = True
P1ROT = 'latin2'
ROTOFF = set()
WPF_OFF = {KA_WD}
def l2_on(kptr): return WPF and kptr not in WPF_OFF
def l2_setup(a, kind, NT, NC, kptr, nbytes, ldb, K):
    if not l2_on(kptr): return
    R3 = ((K + 2)//3 + 7)//8*8
    a(f"s_mov_b32 s4, s{S_RT}"); a(f"s_mov_b32 s5, s{S_CT}")
    tile_map(a, NT, kind)
    divc(a, S_T0, S_RT, 3)
    a(f"s_mul_i32 s{S_T0}, s{S_T0}, 3")
    a(f"s_sub_u32 s{S_T0}, s{S_RT}, s{S_T0}")
    a(f"s_mul_i32 s{S_T0}, s{S_T0}, {R3}")
    a(f"s_lshl_b32 s{S_T1}, s{S_W}, 3")
    a(f"s_add_u32 s{S_T0}, s{S_T0}, s{S_T1}")
    a("v_lshrrev_b32 v150, 3, v2")
    a(f"v_add_u32 v150, s{S_T0}, v150")
    a(f"s_mov_b32 s{S_T1}, {ldb}")
    a(f"v_mul_lo_u32 v150, v150, s{S_T1}")
    a("v_and_b32 v151, 7, v2")
    a("v_lshl_add_u32 v150, v151, 4, v150")
    a(f"s_mul_i32 s{S_T1}, s{S_CT}, {NC*2}")
    a(f"v_add_u32 v150, s{S_T1}, v150")
    a(f"s_cmp_eq_u32 s{S_VALID}, 0")
    a(f"s_cselect_b32 s{S_T1}, 0x80000000, 0")
    a(f"v_or_b32 v150, s{S_T1}, v150")
    srd(a, 80, ptr(kptr), 0, nbytes)
    a(f"s_mov_b32 s{S_RT}, s4"); a(f"s_mov_b32 s{S_CT}, s5")
def l2_issue(a, kptr, ldb, K, i0=0, i1=None):
    if not l2_on(kptr): return 0
    R3 = ((K + 2)//3 + 7)//8*8
    n = (R3//8 + 3)//4
    if i1 is None: i1 = n
    for i in range(i0, min(i1, n)):
        a(f"buffer_load_dwordx4 v[152:155], v150, s[80:83], 0 offen")
        if i + 1 < n: a(f"v_add_u32 v150, {32*ldb}, v150")
    return min(i1, n) - i0

def att_phase(a, role):
    a(f"s_lshl_b32 s{S_R0}, s{S_RT}, 4       ; T0")
    srd(a, SRD_A, ptr(KA_WS), WS_QKV, S_TOK*NQKV*2)
    srd(a, SRD_OUT, ptr(KA_WS), WS_O, S_TOK*D*2)
    NI = 49
    nper = (NI + 7)//8
    a(f"s_mov_b32 s{S_T2}, 3840")
    a(f"s_mul_i32 s{S_T3}, s{S_CT}, 640")
    for j in range(nper):
        r = 32 + j
        a(f"s_add_u32 s{S_T0}, s{S_WAVE}, {8*j}")
        a(f"s_lshl_b32 s{S_T0}, s{S_T0}, 6")
        a(f"v_add_u32 v3, s{S_T0}, v2           ; c")
        vdiv(a, 4, 3, 41, 64*56)
        a("v_mul_u32_u24 v5, 41, v4")
        a("v_sub_u32 v5, v3, v5                  ; kap")
        a("v_cmp_le_u32 vcc, 16, v4")
        a("v_mov_b32 v8, 0x80000000")
        a("s_nop 0")
        a("v_cndmask_b32 v6, 0, 1, vcc")
        a("v_cmp_le_u32 vcc, 46, v4")
        a("s_nop 1")
        a("v_cndmask_b32 v7, 0, 1, vcc")
        a("v_add_u32 v6, v6, v7                  ; seg")
        a("v_mul_u32_u24 v7, 30, v6")
        a("v_sub_u32 v7, v4, v7")
        a(f"v_add_u32 v7, s{S_R0}, v7            ; token")
        a(f"v_mul_lo_u32 v7, v7, s{S_T2}")
        a("v_mul_u32_u24 v6, 1280, v6")
        a("v_add_u32 v7, v7, v6")
        a("v_lshl_add_u32 v7, v5, 4, v7")
        a(f"v_add_u32 v7, s{S_T3}, v7")
        a("v_cmp_gt_u32 vcc, 40, v5")
        a("s_nop 1")
        a("v_cndmask_b32 v7, v8, v7, vcc")
        a("v_cmp_gt_u32 vcc, 76, v4")
        a("s_nop 1")
        a(f"v_cndmask_b32 v{r}, v8, v7, vcc")
    if role == 'c':
        a(f"s_lshr_b32 s{S_T0}, s{S_WAVE}, 1")
        a(f"s_lshl_b32 s{S_T0}, s{S_T0}, 3")
        a(f"s_and_b32 s{S_T1}, s{S_WAVE}, 1")
        a(f"s_add_u32 s{S_I}, s{S_T0}, s{S_T1}      ; rb")
        a("v_and_b32 v3, 3, v2             ; i")
        a("v_lshrrev_b32 v4, 2, v2         ; b")
        a("v_lshlrev_b32 v5, 1, v3")
        a(f"v_add_u32 v5, s{S_I}, v5        ; rb + 2i")
        a(f"v_mul_u32_u24 v5, {ROWB}, v5")
        a("v_mul_u32_u24 v6, 40, v4")
        a("v_add_u32 v5, v5, v6")
        a(f"v_add_u32 v144, {LQ}, v5")
        a(f"v_add_u32 v145, {LK}, v5")
        a("v_cmp_eq_u32 vcc, 3, v3")
        a(f"v_mov_b32 v7, {16*ROWB}")
        a(f"v_mov_b32 v8, {14*ROWB}")
        a("v_cndmask_b32 v7, v7, v8, vcc")
        a("v_add_u32 v146, v145, v7")
        a("v_bfe_u32 v9, v2, 2, 2            ; r")
        a("v_lshlrev_b32 v10, 1, v9")
        a(f"v_add_u32 v10, s{S_I}, v10")
        a(f"v_mul_u32_u24 v10, {ROWB}, v10")
        a("v_lshrrev_b32 v11, 4, v2")
        a("v_lshl_add_u32 v11, v11, 2, v3     ; 4G + c")
        a("v_mul_u32_u24 v11, 40, v11")
        a("v_add_u32 v10, v10, v11")
        a(f"v_add_u32 v147, {LV}, v10")
        a("v_cmp_eq_u32 vcc, 3, v9")
        a(f"v_mov_b32 v7, {16*ROWB}")
        a("s_nop 0")
        a("v_cndmask_b32 v7, v7, v8, vcc")
        a("v_add_u32 v119, v147, v7")
        a(f"v_mov_b32 v12, {hex(f2u(-1e30))}")
        a("v_mov_b32 v13, 0")
        a(f"s_add_u32 s{S_T2}, s{S_R0}, s{S_I}")
        a(f"s_sub_u32 s{S_T2}, s{S_T2}, 14        ; pos(0)")
        for m in range(12):
            a(f"v_sub_u32 v14, {m}, v3            ; m - i")
            a("v_cmp_gt_u32 vcc, 8, v14")
            a(f"s_add_u32 s{S_T0}, s{S_T2}, {2*m}")
            a(f"s_cmp_ge_i32 s{S_T0}, 0")
            a("s_cselect_b64 s[80:81], -1, 0")
            a("s_and_b64 vcc, vcc, s[80:81]")
            a(f"v_cndmask_b32 v{120+m}, v12, v13, vcc")
    for j in range(2):
        a(f"s_add_u32 s{S_T0}, s{S_WAVE}, {8*j}")
        a(f"s_lshl_b32 s{S_T0}, s{S_T0}, 6")
        a(f"v_add_u32 v3, s{S_T0}, v2")
        vdiv(a, 4, 3, 40, 1024)
        a("v_mul_u32_u24 v5, 40, v4")
        a("v_sub_u32 v5, v3, v5")
        a(f"v_mul_u32_u24 v6, {ROWB}, v4")
        a(f"v_lshl_add_u32 v{148+j}, v5, 4, v6")
        a(f"v_add_u32 v4, s{S_R0}, v4")
        a("v_mul_u32_u24 v4, 1280, v4")
        a("v_lshl_add_u32 v4, v5, 4, v4")
        a(f"v_add_u32 v{156+j}, s{S_T3}, v4")
    if role == 'c':
        a(f"s_sub_u32 s{S_T0}, s{S_R0}, 14")
        a(f"s_max_i32 s{S_T0}, s{S_T0}, 0")
        sdiv(a, S_T0, S_T0, 121, 2100)
        a(f"s_add_u32 s{S_T1}, s{S_R0}, 15")
        sdiv(a, S_T1, S_T1, 121, 2100)
        skp = a.new("attpoll")
        a(f"s_cmp_eq_u32 s{S_WAVE}, 0")
        a(f"s_cbranch_scc0 {skp}")
        vdiv(a, 140, 2, 9, 64)
        a("v_mul_u32_u24 v141, 9, v140")
        a("v_sub_u32 v141, v2, v141                  ; j = l%9")
        vdiv(a, 142, 141, 3, 16)
        a("v_mul_u32_u24 v143, 3, v142")
        a("v_sub_u32 v143, v141, v143                ; j%3")
        a("v_mul_u32_u24 v142, 5, v142")
        a("v_add_u32 v142, v142, v143")
        a(f"s_lshl_b32 s{S_T2}, s{S_CT}, 1")
        a(f"v_add_u32 v142, s{S_T2}, v142            ; ct")
        a(f"v_add_u32 v140, s{S_T0}, v140            ; rt")
        a(f"v_cmp_ge_u32 vcc, s{S_T1}, v140")
        a("v_mul_u32_u24 v140, 15, v140")
        a("v_add_u32 v140, v140, v142")
        a("v_lshlrev_b32 v140, 7, v140")
        poll_core(a)
        a.label(skp)
        a("s_barrier      ; B_dep")
    else:
        l2_setup(a, "p3", 243, 64, KA_WG, D*F*2, 3456, D)
        a("s_barrier      ; B_dep")
    stamp(a, 0)
    for j in range(nper):
        sk = None
        if 8*j + 7 >= NI:
            sk = a.new("attsk")
            a(f"s_cmp_ge_u32 s{S_WAVE}, {NI - 8*j}")
            a(f"s_cbranch_scc1 {sk}")
        a(f"s_add_u32 s{S_T0}, s{S_WAVE}, {8*j}")
        a(f"s_lshl_b32 s{S_T0}, s{S_T0}, 10")
        a(f"s_add_u32 m0, s{S_T0}, {LQ}")
        a("s_nop 0")
        a(f"buffer_load_dwordx4 v{32+j}, s[{SRD_A}:{SRD_A+3}], 0 offen{SC1} lds")
        if sk: a.label(sk)
    a("s_waitcnt vmcnt(0)")
    a("s_barrier")
    stamp(a, 1)
    if role == 'l': l2_issue(a, KA_WG, 3456, D)
    if role == 'c':
        Q = 16; KR = 32; VR = 62; SC = 92; BIAS = 120; PB = 104; O = 4
        for dg in range(5):
            a(f"ds_read_b64 v[{Q+2*dg}:{Q+2*dg+1}], v144 offset:{8*dg}")
        for kb in range(3):
            for dg in range(5):
                r = KR + 2*(5*kb + dg)
                if kb < 2: a(f"ds_read_b64 v[{r}:{r+1}], v145 offset:{8*ROWB*kb + 8*dg}")
                else: a(f"ds_read_b64 v[{r}:{r+1}], v146 offset:{8*dg}")
        scale = (D // 32) ** -0.5
        c1 = scale * 1.4426950408889634
        a(f"s_mov_b32 s{S_T2}, {hex(f2u(c1))}")
        a("s_waitcnt lgkmcnt(0)")
        for kb in range(3):
            for dg in range(5):
                r = VR + 2*(5*kb + dg)
                if kb < 2: a(f"ds_read_b64_tr_b16 v[{r}:{r+1}], v147 offset:{8*ROWB*kb + 8*dg}")
                else: a(f"ds_read_b64_tr_b16 v[{r}:{r+1}], v119 offset:{8*dg}")
        for dg in range(5):
            for kb in range(3):
                r = KR + 2*(5*kb + dg); sc = SC + 4*kb
                c = "0" if dg == 0 else f"v[{sc}:{sc+3}]"
                a(f"v_mfma_f32_4x4x4_16b_bf16 v[{sc}:{sc+3}], v[{r}:{r+1}], v[{Q+2*dg}:{Q+2*dg+1}], {c}")
        a("s_nop 4")
        for m in range(12):
            a(f"v_fma_f32 v{SC+m}, v{SC+m}, s{S_T2}, v{BIAS+m}")
        a(f"v_max3_f32 v14, v{SC}, v{SC+1}, v{SC+2}")
        a(f"v_max3_f32 v15, v{SC+3}, v{SC+4}, v{SC+5}")
        a(f"v_max3_f32 v14, v14, v{SC+6}, v{SC+7}")
        a(f"v_max3_f32 v15, v15, v{SC+8}, v{SC+9}")
        a(f"v_max3_f32 v14, v14, v{SC+10}, v{SC+11}")
        a("v_max_f32 v14, v14, v15")
        for m in range(12):
            a(f"v_sub_f32 v{SC+m}, v{SC+m}, v14")
        for m in range(12):
            a(f"v_exp_f32 v{SC+m}, v{SC+m}")
        a(f"v_add_f32 v14, v{SC}, v{SC+1}")
        a(f"v_add_f32 v15, v{SC+2}, v{SC+3}")
        for m in range(4, 12, 2):
            a(f"v_add_f32 v14, v14, v{SC+m}")
            a(f"v_add_f32 v15, v15, v{SC+m+1}")
        a("v_add_f32 v14, v14, v15")
        a("v_rcp_f32 v14, v14")
        a("s_nop 0")
        for m in range(12):
            a(f"v_mul_f32 v{SC+m}, v{SC+m}, v14")
        for m in range(0, 12, 2):
            a(f"v_cvt_pk_bf16_f32 v{PB+m//2}, v{SC+m}, v{SC+m+1}")
        a("s_waitcnt lgkmcnt(0)")
        a("s_nop 0")
        OA = 32
        for kb in range(3):
            for dg in range(5):
                r = VR + 2*(5*kb + dg); o = OA + 4*dg
                c = "0" if kb == 0 else f"v[{o}:{o+3}]"
                a(f"v_mfma_f32_4x4x4_16b_bf16 v[{o}:{o+3}], v[{r}:{r+1}], v[{PB+2*kb}:{PB+2*kb+1}], {c}")
        a(f"v_subrev_u32 v144, {LQ - LO}, v144")
        a("s_nop 4")
        for dg in range(5):
            o = OA + 4*dg
            a(f"v_cvt_pk_bf16_f32 v{Q+2*dg}, v{o}, v{o+1}")
            a(f"v_cvt_pk_bf16_f32 v{Q+2*dg+1}, v{o+2}, v{o+3}")
            a(f"ds_write_b64 v144, v[{Q+2*dg}:{Q+2*dg+1}] offset:{8*dg}")
    a("s_waitcnt lgkmcnt(0)")
    stamp(a, 2)
    a("s_barrier")
    a(f"ds_read_b128 v[20:23], v148 offset:{LO}")
    sk = a.new("attst")
    a(f"s_cmp_ge_u32 s{S_WAVE}, 2")
    a(f"s_cbranch_scc1 {sk}")
    a(f"ds_read_b128 v[24:27], v149 offset:{LO}")
    a("s_waitcnt lgkmcnt(0)")
    a(f"buffer_store_dwordx4 v[24:27], v157, s[{SRD_OUT}:{SRD_OUT+3}], 0 offen{SC1}")
    a.label(sk)
    a("s_waitcnt lgkmcnt(0)")
    a(f"buffer_store_dwordx4 v[20:23], v156, s[{SRD_OUT}:{SRD_OUT+3}], 0 offen{SC1}")
    a(f"s_lshl_b32 s{S_FIDX}, s{S_RT}, 1")
    a(f"s_add_u32 s{S_FIDX}, s{S_FIDX}, s{S_CT}")
    a(f"s_lshl_b32 s{S_FIDX}, s{S_FIDX}, 7")
    a(f"s_add_u32 s{S_FIDX}, s{S_FIDX}, 0x8000")

def finish_phase(a, role, first=False):
    a("s_waitcnt vmcnt(0)")
    stamp(a, 4)
    if role == 'c' and first: nonce_check(a)
    a("s_barrier      ; E3")
    if role == 'c': publish(a)
    stamp(a, 5)

def role_program(a, role):
    phases = [P1F(), P24(2), P3(), P24(4)] if FUSE else [P1(), 'att', P24(2), P3(), P24(4)]
    if 'p1twice' in EXP:
        P = P1F() if FUSE else P1(); inv = a.new("inv")
        tile_map(a, P.NT, P.kind)
        a(f"s_cmp_eq_u32 s{S_VALID}, 0")
        a(f"s_cbranch_scc1 {inv}")
        P.tile_consts(a)
        if role == 'c': consumer_phase(a, P, True)
        else: loader_phase(a, P, True)
        a("s_waitcnt vmcnt(0)")
        a("s_barrier")
        a.label(inv)
    for n, P in enumerate(phases):
        first = (n == 0)
        nxt = a.new("next"); inv = a.new("inv")
        if P == 'att':
            tile_map(a, 256, 'att')
            att_phase(a, role)
            stamp(a, 3)
            finish_phase(a, role)
            prof_store(a, 'att', role)
            continue
        tile_map(a, P.NT, P.kind)
        a(f"s_cmp_eq_u32 s{S_VALID}, 0")
        a(f"s_cbranch_scc1 {inv}")
        P.tile_consts(a)
        if role == 'c': consumer_phase(a, P, first)
        else: loader_phase(a, P, first)
        stamp(a, 3)
        if P.key != 'p4': finish_phase(a, role, first)
        spin_capture(a, P.key, role)
        prof_store(a, P.key, role)
        if first:
            a(f"s_branch {nxt}")
            a.label(inv)
            ptr_wait(a)
            if role == 'c': nonce_check(a, issued=False)
            a.label(nxt)
        else:
            a.label(inv)

def main(out):
    a = Asm()
    a.raw(f".globl {KNAME}")
    a.raw(".p2align 8")
    a.raw(f".type {KNAME},@function")
    a.label(KNAME)
    if PROFDBG:
        a(f"s_memrealtime s[{S_P0+1}:{S_P0+2}]") if False else None
    a("s_cmp_ge_u32 s2, 256")
    a("s_cbranch_scc1 L_exit")
    a(f"s_load_dwordx16 s[{S_PTR}:{S_PTR+15}], s[0:1], 0")
    a(f"s_load_dwordx4 s[{S_PTR+16}:{S_PTR+19}], s[0:1], 64")
    if PROFDBG or SPIN:
        a(f"{STAMP} s[98:99]")
    a("v_lshrrev_b32 v1, 6, v0")
    a("v_and_b32 v2, 63, v0      ; lane")
    a(f"s_mov_b32 s{S_FIDX}, -1")
    a(f"v_readfirstlane_b32 s{S_WAVE}, v1")
    a("s_nop 3")
    a(f"s_sub_u32 s{S_W}, s{S_WAVE}, 4")
    a(f"s_cmp_ge_u32 s{S_WAVE}, 4")
    a("s_cbranch_scc1 L_loader")
    role_program(a, 'c')
    a("s_waitcnt vmcnt(0)")
    spin_end(a)
    a("s_endpgm")
    a.label("L_loader")
    role_program(a, 'l')
    a("s_waitcnt vmcnt(0)")
    a.label("L_exit")
    a("s_endpgm")
    HEADER = open("sequential_preLN__sliding_local_dilated__glu_gated_bilinear__prompt.s.ref").read().split("; Override")[0]
    s = HEADER
    s += f"; @launch grid=(256,1,1) block=(512,1,1) lds={LDS_TOTAL}\n"
    s += '.amdgcn_target "amdgcn-amd-amdhsa--gfx950"\n.text\n'
    s += a.text()
    s += f""".section .rodata,"a"
.p2align 6
.amdhsa_kernel {KNAME}
  .amdhsa_next_free_vgpr 256
  .amdhsa_next_free_sgpr 102
  .amdhsa_accum_offset 160
  .amdhsa_group_segment_fixed_size 0
  .amdhsa_kernarg_size 80
  .amdhsa_user_sgpr_count 2
  .amdhsa_user_sgpr_kernarg_segment_ptr 1
  .amdhsa_system_sgpr_workgroup_id_x 1
  .amdhsa_float_denorm_mode_32 3
.end_amdhsa_kernel
"""
    open(out, "w").write(s)

if __name__ == "__main__":
    if "-prof" in sys.argv: PROF = True
    if "-profdbg" in sys.argv: PROFDBG = True
    if "-cyc" in sys.argv: STAMP = "s_memtime"
    if "-wpf" in sys.argv: WPF = True
    if "-nofuse" in sys.argv: FUSE = False
    if "-gate" in sys.argv: GATE = True
    for x in sys.argv:
        if x.startswith("-spin="):
            p_, a_, b_ = x[6:].split(","); SPIN = (p_, int(a_), int(b_))
    if "-apf" in sys.argv: APF = True
    for x in sys.argv:
        if x.startswith("-p1frot="): P1FROT = x[8:]
    for x in sys.argv:
        if x.startswith("-outsc="): OUTSC = " " + x[7:].replace("+", " ")
    for x in sys.argv:
        if x.startswith("-gate4="): GATE4 = tuple(int(y) for y in x[7:].split(","))
    for x in sys.argv:
        if x.startswith("-osc="): OSC = " " + x[5:].replace("+", " ")
    for x in sys.argv:
        if x.startswith("-align="): ALIGN = int(x[7:])
    if "-nowpf" in sys.argv: WPF = False
    if "-onestep" in sys.argv: TWOSTEP = False
    for x in sys.argv:
        if x.startswith("-exp="): EXP = set(x[5:].split(","))
    if "-noxcd" in sys.argv: NOXCD = True
    for x in sys.argv:
        if x.startswith("-p1rot="): P1ROT = x[7:]
        if x.startswith("-rotoff="): ROTOFF = set(x[8:].split(","))
    for x in sys.argv:
        if x.startswith("-off="):
            for k in x[5:].split(","): WPF_OFF.add({'wo': KA_WO, 'wg': KA_WG, 'wu': KA_WU, 'wd': KA_WD}[k])
    main(sys.argv[1] if len(sys.argv) > 1 else "v3.s")
```

```python
import sys, struct

KNAME = "sequential_preLN__sliding_local_dilated__glu_gated_bilinear__prompt_kernel"
S_TOK, D, NQKV, F = 2048, 640, 1920, 1728
WS_QKV, WS_O, WS_H, WS_HH, WS_ST, WS_FLAG = 0, 0x800000, 0xB00000, 0x1000000, 0x1800000, 0x1900000
WS_PROF = 0x1A00000
KA_X, KA_WQKV, KA_WO, KA_BX, KA_WG, KA_WU, KA_WD, KA_OUT, KA_DBG, KA_WS = [8*i for i in range(10)]
ONES = 0x3F803F80
PROF = False
PROFDBG = False
STAMP = 's_memrealtime'
SC1 = " sc1"
LDS_TOTAL = 163840
NONCE_LDS = 163832
OUTSC = ' sc0 sc1'
SPF = 10
SPF2 = None
P1FROT = 'latin2'
APF = False
GATE = False
GATE4 = (6, 3)
OSC = ' sc1'
FUSE = True
ALIGN = 6
TWOSTEP = True
EXP = set()
NOXCD = False

def f2u(x):
    return struct.unpack("<I", struct.pack("<f", x))[0]

class Asm:
    def __init__(self):
        self.L = []
        self.uid = 0
    def __call__(self, s):
        for line in s.split("\n"):
            line = line.strip()
            if line:
                self.L.append("  " + line)
    def label(self, n):
        self.L.append(n + ":")
    def raw(self, s):
        self.L.append(s)
    def new(self, base):
        self.uid += 1
        return f"L{base}_{self.uid}"
    def text(self):
        return "\n".join(self.L) + "\n"

SRD_A, SRD_B0, SRD_B1, SRD_OUT, SRD_AUX, SRD_ST = 8, 12, 16, 20, 24, 28
S_RT, S_CT, S_R0, S_C0, S_WAVE, S_SLOT, S_CNT, S_T0, S_T1, S_T2 = 32, 33, 34, 35, 36, 37, 38, 39, 40, 41
S_AOFF, S_BOFF = 42, 43
S_PTR = 44
S_MASK = 64
S_I, S_J, S_REND, S_K = 66, 67, 68, 69
S_STAMP = 70
S_NONCE = 78
S_FIDX, S_LW, S_VALID, S_KB = 85, 86, 87, 92
SRD_FLAG = 88
S_SLOTB, S_T3, S_T4, S_W = 93, 94, 95, 96
S_P0 = 97
S_N1, S_N2 = 6, 7

def ptr(k): return S_PTR + k // 4

PH_IDX = {'p1': 0, 'att': 1, 'p2': 2, 'p3': 3, 'p4': 4}

def stamp(a, i):
    if i >= 4:
        if PROF: a(f'{STAMP} s[{98+2*(i-4)}:{99+2*(i-4)}]')
        return
    if PROF or PROFDBG or SPIN:
        a(f'{STAMP} s[{S_STAMP+2*i}:{S_STAMP+2*i+1}]')

SPIN = None
def spin_capture(a, ph, role):
    if not SPIN or SPIN[0] != ph or role != 'c': return
    a("s_waitcnt lgkmcnt(0)")
    A_ = "s98" if SPIN[1] < 0 else f"s{S_STAMP+2*SPIN[1]}"
    a(f"s_sub_u32 s100, s{S_STAMP+2*SPIN[2]}, {A_}")
def spin_end(a):
    if not SPIN: return
    sk = a.new("spin"); lp = a.new("spinl")
    a("s_cmp_eq_u32 s2, 9")
    a(f"s_cbranch_scc0 {sk}")
    a(f"s_cmp_eq_u32 s{S_WAVE}, 0")
    a(f"s_cbranch_scc0 {sk}")
    a("s_mul_i32 s100, s100, 20")
    a("s_memrealtime s[4:5]")
    a("s_waitcnt lgkmcnt(0)")
    a("s_add_u32 s100, s100, s4")
    a.label(lp)
    a("s_memrealtime s[4:5]")
    a("s_waitcnt lgkmcnt(0)")
    a("s_sub_u32 s6, s4, s100")
    a("s_cmp_lt_i32 s6, 0")
    a(f"s_cbranch_scc1 {lp}")
    a.label(sk)

def prof_store(a, ph, role):
    if not (PROF or PROFDBG): return
    skip = a.new("pskip")
    a(f"s_cmp_eq_u32 s{S_WAVE}, {0 if role == 'c' else 4}")
    a(f"s_cbranch_scc0 {skip}")
    a('s_waitcnt lgkmcnt(0)')
    if PROF:
        a(f's_add_u32 s80, s{ptr(KA_WS)}, {hex(WS_PROF + PH_IDX[ph]*0x20000)}')
        a(f's_addc_u32 s81, s{ptr(KA_WS)+1}, 0')
        a('s_and_b32 s81, s81, 0xffff')
        a('s_mov_b32 s82, 0x20000')
        a('s_mov_b32 s83, 0x20000')
        a('s_lshl_b32 s84, s2, 3')
        a(f's_add_u32 s84, s84, s{S_WAVE}')
        a('s_lshl_b32 s84, s84, 6')
        for i in range(8): a(f'v_mov_b32 v{128+i}, s{S_STAMP+i}')
        for i in range(4): a(f'v_mov_b32 v{136+i}, s{98+i}')
        a('v_mov_b32 v148, s84')
        a('s_mov_b64 exec, 1')
        a('buffer_store_dwordx4 v[128:131], v148, s[80:83], 0 offen')
        a('buffer_store_dwordx4 v[132:135], v148, s[80:83], 0 offen offset:16')
        a('buffer_store_dwordx4 v[136:139], v148, s[80:83], 0 offen offset:32')
        a('s_mov_b64 exec, -1')
    if PROFDBG and role == 'c':
        sk2 = a.new("pskip")
        a(f"s_cmp_eq_u32 s2, {PROFDBG_WG}")
        a(f"s_cbranch_scc0 {sk2}")
        a(f's_mov_b32 s80, s{ptr(KA_DBG)}')
        a(f's_and_b32 s81, s{ptr(KA_DBG)+1}, 0xffff')
        a('s_mov_b32 s82, 0x100')
        a('s_mov_b32 s83, 0x20000')
        sel = DBG_SEL[ph]
        for j, (i, slot) in enumerate(sel):
            a(f's_sub_u32 s84, s{S_STAMP+2*i}, s{S_P0}')
            a(f'v_mov_b32 v140, s84')
            a(f'v_mov_b32 v141, {4*slot}')
            a('s_mov_b64 exec, 1')
            a('buffer_store_dword v140, v141, s[80:83], 0 offen')
            a('s_mov_b64 exec, -1')
        a.label(sk2)
    a.label(skip)

PROFDBG_WG = 9
DBG_SEL = {'p1': [(1, 2), (2, 3), (3, 4)], 'att': [(0, 5), (1, 6), (3, 7)], 'p2': [(0, 8), (2, 9)], 'p3': [(0, 10), (1, 11), (2, 12)], 'p4': [(0, 13), (2, 14), (3, 15)]}

def set_exec(a, mask):
    if mask == (1 << 64) - 1:
        a("s_mov_b64 exec, -1")
    else:
        a(f"s_mov_b32 exec_lo, {hex(mask & 0xffffffff)}")
        a(f"s_mov_b32 exec_hi, {hex(mask >> 32)}")

def srd(a, s, p, off, nbytes):
    if off:
        a(f"s_add_u32 s{s}, s{p}, {hex(off)}")
        a(f"s_addc_u32 s{s+1}, s{p+1}, 0")
    else:
        a(f"s_mov_b32 s{s}, s{p}")
        a(f"s_mov_b32 s{s+1}, s{p+1}")
    a(f"s_and_b32 s{s+1}, s{s+1}, 0xffff")
    a(f"s_mov_b32 s{s+2}, {hex(nbytes)}")
    a(f"s_mov_b32 s{s+3}, 0x20000")

def divc(a, dst, src, d, rng=300):
    m = (65536 + d - 1) // d
    for x in range(0, rng):
        assert (x * m) >> 16 == x // d, (x, d)
    a(f"s_mul_i32 s{dst}, s{src}, {m}")
    a(f"s_lshr_b32 s{dst}, s{dst}, 16")

def magic(d, N):
    for sh in range(8, 24):
        m = ((1 << sh) + d - 1) // d
        if m >= (1 << 24) or m * (N - 1) >= (1 << 32): continue
        if all((x * m) >> sh == x // d for x in range(N)): return m, sh
    raise Exception("no magic")

def sdiv(a, dst, src, d, N):
    m, sh = magic(d, N)
    a(f"s_mul_i32 s{dst}, s{src}, {m}")
    a(f"s_lshr_b32 s{dst}, s{dst}, {sh}")

def vdiv(a, dst, src, d, N):
    m, sh = magic(d, N)
    a(f"v_mul_u32_u24 v{dst}, {m}, v{src}")
    a(f"v_lshrrev_b32 v{dst}, {sh}, v{dst}")

def tile_map(a, NT, kind):
    if NOXCD:
        a(f"s_mov_b32 s{S_T0}, s2")
    else:
        a(f"s_and_b32 s{S_T0}, s2, 7")
        a(f"s_lshr_b32 s{S_T1}, s2, 3")
        a(f"s_lshl_b32 s{S_T0}, s{S_T0}, 5")
        a(f"s_add_u32 s{S_T0}, s{S_T0}, s{S_T1}   ; t")
    a(f"s_cmp_lt_u32 s{S_T0}, {NT}")
    a(f"s_cselect_b32 s{S_VALID}, 1, 0")
    if kind == "p1":
        divc(a, S_T1, S_T0, 90)
        a(f"s_mul_i32 s{S_T2}, s{S_T1}, 90")
        a(f"s_sub_u32 s{S_T2}, s{S_T0}, s{S_T2}")
        divc(a, S_CT, S_T2, 6)
        divc(a, S_RT, S_T2, 5)
        a(f"s_cmp_eq_u32 s{S_T1}, 2")
        a(f"s_cselect_b32 s{S_CT}, s{S_RT}, s{S_CT}")
        a(f"s_cselect_b32 s{S_RT}, 5, 6")
        a(f"s_mul_i32 s{S_RT}, s{S_RT}, s{S_CT}")
        a(f"s_sub_u32 s{S_RT}, s{S_T2}, s{S_RT}")
        a(f"s_mul_i32 s{S_T1}, s{S_T1}, 6")
        a(f"s_add_u32 s{S_RT}, s{S_RT}, s{S_T1}")
    elif kind == "p3":
        divc(a, S_T1, S_T0, 81)
        a(f"s_mul_i32 s{S_T2}, s{S_T1}, 81")
        a(f"s_sub_u32 s{S_T2}, s{S_T0}, s{S_T2}")
        divc(a, S_CT, S_T2, 3)
        a(f"s_mul_i32 s{S_RT}, s{S_CT}, 3")
        a(f"s_sub_u32 s{S_RT}, s{S_T2}, s{S_RT}")
        a(f"s_mul_i32 s{S_T1}, s{S_T1}, 3")
        a(f"s_add_u32 s{S_RT}, s{S_RT}, s{S_T1}")
    elif kind == "p1f":
        a(f"s_lshr_b32 s{S_T1}, s{S_T0}, 6")
        a(f"s_lshl_b32 s{S_RT}, s{S_T1}, 3")
        a(f"s_bfe_u32 s{S_T2}, s{S_T0}, {2 | (3 << 16)}")
        a(f"s_add_u32 s{S_RT}, s{S_RT}, s{S_T2}")
        a(f"s_bfe_u32 s{S_T1}, s{S_T0}, {5 | (1 << 16)}")
        a(f"s_lshl_b32 s{S_T1}, s{S_T1}, 2")
        a(f"s_and_b32 s{S_CT}, s{S_T0}, 3")
        a(f"s_add_u32 s{S_CT}, s{S_CT}, s{S_T1}")
    elif kind == "att":
        a(f"s_lshr_b32 s{S_RT}, s{S_T0}, 1")
        a(f"s_and_b32 s{S_CT}, s{S_T0}, 1")
    else:
        divc(a, S_RT, S_T0, 10)
        a(f"s_mul_i32 s{S_CT}, s{S_RT}, 10")
        a(f"s_sub_u32 s{S_CT}, s{S_T0}, s{S_CT}")

def publish(a):
    skip = a.new("pub")
    a(f"s_cmp_eq_u32 s{S_WAVE}, 0")
    a(f"s_cbranch_scc0 {skip}")
    a(f"s_cmp_eq_u32 s{S_FIDX}, -1")
    a(f"s_cbranch_scc1 {skip}")
    a(f"v_mov_b32 v140, s{S_NONCE}")
    a(f"v_mov_b32 v141, s{S_NONCE+1}")
    a(f"v_mov_b32 v142, s{S_FIDX}")
    a("s_mov_b64 exec, 1")
    a(f"buffer_store_dwordx2 v[140:141], v142, s[{SRD_FLAG}:{SRD_FLAG+3}], 0 offen{SC1}")
    a("s_mov_b64 exec, -1")
    a.label(skip)

def poll_core(a, sv=80):
    loop = a.new("poll"); done = a.new("polldone")
    a(f"s_and_saveexec_b64 s[{sv}:{sv+1}], vcc")
    a(f"s_mov_b32 s{S_CNT}, 0x40000")
    a.label(loop)
    a(f"buffer_load_dwordx2 v[142:143], v140, s[{SRD_FLAG}:{SRD_FLAG+3}], 0 offen{SC1}")
    a("s_waitcnt vmcnt(0)")
    a(f"v_cmp_ne_u64 vcc, s[{S_NONCE}:{S_NONCE+1}], v[142:143]")
    a(f"s_cbranch_vccz {done}")
    a(f"s_sub_u32 s{S_CNT}, s{S_CNT}, 1")
    a(f"s_cmp_lg_u32 s{S_CNT}, 0")
    a(f"s_cbranch_scc1 {loop}")
    a.label(done)
    a(f"s_mov_b64 exec, s[{sv}:{sv+1}]")

def poll(a, lo_sgpr, hi_sgpr, base, wave=0):
    skip = a.new("pollskip")
    a(f"s_cmp_eq_u32 s{S_WAVE}, {wave}")
    a(f"s_cbranch_scc0 {skip}")
    a(f"v_add_u32 v140, s{lo_sgpr}, v2")
    a(f"v_cmp_gt_u32 vcc, s{hi_sgpr}, v140")
    a(f"v_lshlrev_b32 v140, 7, v140")
    a(f"v_add_u32 v140, {base}, v140")
    poll_core(a, 80 if wave == 0 else 4)
    a.label(skip)

def poll_first_g(a, lo_sgpr, hi_sgpr, W, k0, S, G, base):
    skip = a.new("pollskip")
    lg = 2 if G <= 4 else 3
    a(f"s_cmp_eq_u32 s{S_WAVE}, 0")
    a(f"s_cbranch_scc0 {skip}")
    a(f"v_lshrrev_b32 v140, {lg}, v2")
    a(f"v_add_u32 v140, s{lo_sgpr}, v140")
    a(f"v_cmp_ge_u32 vcc, s{hi_sgpr}, v140")
    a(f"v_and_b32 v141, {(1 << lg) - 1}, v2")
    a(f"v_cmp_gt_u32 s[82:83], {G}, v141")
    a(f"v_add_u32 v141, s{k0}, v141")
    a(f"v_subrev_u32 v142, {S}, v141")
    a(f"s_and_b64 s[82:83], s[82:83], vcc")
    a(f"v_cmp_le_u32 vcc, {S}, v141")
    a(f"v_mul_u32_u24 v140, {W}, v140")
    a("s_nop 0")
    a("v_cndmask_b32 v141, v141, v142, vcc")
    a("v_add_u32 v140, v140, v141")
    a(f"v_lshlrev_b32 v140, 7, v140")
    a(f"v_add_u32 v140, {base}, v140")
    a("s_mov_b64 vcc, s[82:83]")
    poll_core(a)
    a.label(skip)

def poll_first(a, lo_sgpr, hi_sgpr, W, k0, k1, base):
    skip = a.new("pollskip")
    a(f"s_cmp_eq_u32 s{S_WAVE}, 0")
    a(f"s_cbranch_scc0 {skip}")
    a("v_lshrrev_b32 v140, 1, v2")
    a(f"v_add_u32 v140, s{lo_sgpr}, v140")
    a(f"v_cmp_ge_u32 vcc, s{hi_sgpr}, v140")
    a(f"v_mul_u32_u24 v140, {W}, v140")
    a("v_and_b32 v141, 1, v2")
    a(f"s_sub_u32 s{S_T2}, s{k1}, s{k0}")
    a(f"v_mul_lo_u32 v141, v141, s{S_T2}")
    a(f"v_add_u32 v141, s{k0}, v141")
    a("v_add_u32 v140, v140, v141")
    a(f"v_lshlrev_b32 v140, 7, v140")
    a(f"v_add_u32 v140, {base}, v140")
    poll_core(a)
    a.label(skip)

def first_ks(a, P):
    P.rot_start(a)
    a(f"s_add_u32 s{S_KB}, s{S_K}, 1")
    a(f"s_cmp_ge_u32 s{S_KB}, {P.S}")
    a(f"s_cselect_b32 s{S_KB}, 0, s{S_KB}")

def dbg_srd(a):
    a(f"s_mov_b32 s80, s{ptr(KA_DBG)}")
    a(f"s_and_b32 s81, s{ptr(KA_DBG)+1}, 0xffff")
    a("s_mov_b32 s82, 0x100")
    a("s_mov_b32 s83, 0x20000")

def nonce_publish(a):
    skip = a.new("nonce")
    a(f"s_cmp_eq_u32 s{S_WAVE}, 0")
    a(f"s_cbranch_scc0 {skip}")
    a("s_cmp_eq_u32 s2, 0")
    a(f"s_cbranch_scc0 {skip}")
    dbg_srd(a)
    a(f"s_memrealtime s[{S_NONCE}:{S_NONCE+1}]")
    a("v_mov_b32 v5, 0")
    a("s_waitcnt lgkmcnt(0)")
    a(f"s_or_b32 s{S_NONCE}, s{S_NONCE}, 1")
    a(f"v_mov_b32 v6, s{S_NONCE}")
    a(f"v_mov_b32 v7, s{S_NONCE+1}")
    a("s_mov_b64 exec, 1")
    a(f"buffer_store_dwordx2 v[6:7], v5, s[80:83], 0 offen{SC1}")
    a("s_mov_b64 exec, -1")
    a.label(skip)

def nonce_issue(a):
    skip = a.new("nonce")
    a(f"s_cmp_eq_u32 s{S_WAVE}, 0")
    a(f"s_cbranch_scc0 {skip}")
    dbg_srd(a)
    a("v_mov_b32 v158, 0")
    a("s_nop 3")
    a(f"buffer_load_dwordx2 v[156:157], v158, s[80:83], 0 offen{SC1}")
    a.label(skip)

def nonce_check(a, issued=True):
    skip = a.new("nonce"); loop = a.new("nloop"); done = a.new("ndone"); chk = a.new("nchk")
    a(f"s_cmp_eq_u32 s{S_WAVE}, 0")
    a(f"s_cbranch_scc0 {skip}")
    dbg_srd(a)
    a("v_mov_b32 v158, 0")
    a(f"s_mov_b32 s{S_CNT}, 0x40000")
    if issued: a(f"s_branch {chk}")
    a.label(loop)
    a(f"buffer_load_dwordx2 v[156:157], v158, s[80:83], 0 offen{SC1}")
    a("s_waitcnt vmcnt(0)")
    a.label(chk)
    a("v_readfirstlane_b32 s" + str(S_NONCE) + ", v156")
    a("v_readfirstlane_b32 s" + str(S_NONCE+1) + ", v157")
    a("s_nop 3")
    a(f"s_cmp_lg_u32 s{S_NONCE}, 0")
    a(f"s_cbranch_scc1 {done}")
    a(f"s_sub_u32 s{S_CNT}, s{S_CNT}, 1")
    a(f"s_cmp_lg_u32 s{S_CNT}, 0")
    a(f"s_cbranch_scc1 {loop}")
    a.label(done)
    a(f"v_mov_b32 v158, {NONCE_LDS}")
    a("s_mov_b64 exec, 1")
    a("ds_write_b64 v158, v[156:157]")
    a("s_mov_b64 exec, -1")
    a("s_waitcnt lgkmcnt(0)")
    a.label(skip)

def nonce_from_lds(a):
    skip = a.new("nlds")
    a(f"s_cmp_eq_u32 s{S_WAVE}, 7")
    a(f"s_cbranch_scc0 {skip}")
    a(f"v_mov_b32 v140, {NONCE_LDS}")
    a("ds_read_b64 v[142:143], v140")
    a("s_waitcnt lgkmcnt(0)")
    a(f"v_readfirstlane_b32 s{S_NONCE}, v142")
    a(f"v_readfirstlane_b32 s{S_NONCE+1}, v143")
    a.label(skip)

class Phase:
    has_e1 = False
    has_stage_work = False
    prefetchB = 0
    def loader_post_first(self, a): return 0
    def loader_post_b0(self, a): return 0
    def loader_stage_work_parts(self): return []
    def loader_final(self, a): pass
    def store_pre(self, a): pass
    def tail_prefetch(self, a, part): return 0
    def mid_prefetch(self, a, s): return 0
    def l2_prep(self, a): pass
    def rot_start(self, a):
        if self.key in ROTOFF:
            a(f"s_mov_b32 s{S_K}, 0"); return
        ca, cb, den = self.rot
        a(f"s_mul_i32 s{S_K}, s{S_CT}, {ca}")
        a(f"s_mul_i32 s{S_T0}, s{S_RT}, {cb}")
        a(f"s_add_u32 s{S_K}, s{S_K}, s{S_T0}")
        a(f"s_lshr_b32 s{S_K}, s{S_K}, {den}")
        m = (65536 + self.S - 1) // self.S
        for x in range(1024): assert (x*m) >> 16 == x // self.S
        a(f"s_mul_i32 s{S_T0}, s{S_K}, {m}")
        a(f"s_lshr_b32 s{S_T0}, s{S_T0}, 16")
        a(f"s_mul_i32 s{S_T0}, s{S_T0}, {self.S}")
        a(f"s_sub_u32 s{S_K}, s{S_K}, s{S_T0}")
    def tile_consts(self, a):
        a(f"s_mul_i32 s{S_R0}, s{S_RT}, {self.MV}")
        a(f"s_mul_i32 s{S_C0}, s{S_CT}, {self.NC}")
        a(f"s_add_u32 s{S_REND}, s{S_R0}, {self.MV}")
        a(f"s_min_u32 s{S_REND}, s{S_REND}, {S_TOK}")

def transition(a, first):
    pass

def loader_phase(a, P, first):
    NS, S = P.NS, P.S
    nA, nB = len(P.Ains), len(P.Bins)
    VB = 32
    customB = getattr(P, 'custom_B', False)
    a("v_lshrrev_b32 v3, 3, v2      ; r8")
    a("v_and_b32 v4, 7, v2          ; p")
    a("v_lshrrev_b32 v5, 1, v3      ; r8>>1")
    a("v_xor_b32 v6, v4, v5")
    a("v_lshlrev_b32 v6, 4, v6")
    a(f"s_lshl_b32 s{S_T0}, s{S_W}, 3")
    a(f"s_add_u32 s{S_T0}, s{S_T0}, s{S_R0}")
    a(f"v_add_u32 v7, s{S_T0}, v3")
    a(f"s_mov_b32 s{S_T0}, {P.lda}")
    a(f"v_mul_lo_u32 v7, v7, s{S_T0}")
    a("v_add_u32 v7, v7, v6")
    a(f"s_and_b32 s{S_T0}, s{S_W}, 1")
    a(f"s_lshl_b32 s{S_T0}, s{S_T0}, 6")
    a(f"v_xor_b32 v7, s{S_T0}, v7")
    for t in range(nA):
        a(f"v_add_u32 v{VB+t}, {t*32*P.lda}, v7")
    if customB: P.lazyB = True
    else: std_B_setup(a, P, VB, nA)
    if getattr(P, 'oprime', False): oprime_alt_setup(a, P)
    a(f"s_lshl_b32 s{S_LW}, s{S_W}, 10")
    P.mask_setup(a)
    P.rot_start(a)
    a(f"s_mov_b32 s{S_KB}, s{S_K}")
    a(f"s_mov_b32 s{S_N1}, 0"); a(f"s_mov_b32 s{S_N2}, 0")
    if first: ptr_wait(a)
    P.build_srds(a, 'l')
    loader_rest(a, P, first, VB, nA, nB, NS, S)

def oprime_alt_setup(a, P):
    a(f"s_and_b32 s{S_T0}, s{S_W}, 1")
    a(f"s_lshl_b32 s{S_T0}, s{S_T0}, 6")
    a(f"v_xor_b32 v10, s{S_T0}, v6")
    a("v_lshrrev_b32 v11, 5, v10             ; q = c>>1")
    a("v_lshlrev_b32 v11, 7, v11             ; q*128")
    a("v_and_b32 v12, 16, v10                ; half*16")
    a("v_add_u32 v11, v11, v12")
    a(f"s_lshl_b32 s{S_T0}, s{S_W}, 3")
    a(f"s_add_u32 s{S_T0}, s{S_T0}, s{S_R0}")
    a(f"v_add_u32 v12, s{S_T0}, v3            ; row (t=0)")
    for t in range(3):
        a(f"v_add_u32 v13, {32*t}, v12")
        a("v_lshrrev_b32 v14, 2, v13")
        a("v_lshlrev_b32 v14, 10, v14")
        a("v_and_b32 v13, 3, v13")
        a("v_lshl_add_u32 v14, v13, 5, v14")
        a("v_add_u32 v14, v14, v11")
        a(f"v_add_u32 v{44+t}, 0x200000, v14")
    a(f"s_and_b32 s{S_T0}, s{S_W}, 1")
    a(f"s_lshl_b32 s{S_T0}, s{S_T0}, 6")
    a(f"v_xor_b32 v10, s{S_T0}, v8")
    a(f"s_lshl_b32 s{S_T1}, s{S_C0}, 1")
    a(f"v_add_u32 v10, s{S_T1}, v10")
    a(f"s_lshl_b32 s{S_T0}, s{S_W}, 3")
    for t, ib in enumerate((0, 4)):
        a(f"v_add_u32 v12, s{S_T0}, v3")
        a(f"v_add_u32 v12, {8*ib}, v12          ; r")
        a("v_lshrrev_b32 v13, 4, v12")
        a("v_mul_u32_u24 v13, 80, v13")
        a("v_and_b32 v12, 15, v12")
        a("v_add_u32 v13, v13, v12")
        a("v_add_u32 v13, 64, v13")
        a("v_mul_u32_u24 v13, 1280, v13")
        a(f"v_add_u32 v{47+t}, v13, v10")

def std_B_setup(a, P, VB, nA):
    a("v_and_b32 v8, 1, v5")
    a("v_lshlrev_b32 v8, 1, v8")
    a("v_xor_b32 v8, v4, v8")
    a("v_lshlrev_b32 v8, 4, v8")
    a(f"s_lshl_b32 s{S_T0}, s{S_W}, 3")
    a(f"v_add_u32 v9, s{S_T0}, v3         ; k = 8w + r8")
    a(f"s_mov_b32 s{S_T0}, {P.ldb}")
    a(f"v_mul_lo_u32 v9, v9, s{S_T0}")
    a("v_add_u32 v9, v9, v8")
    a(f"s_and_b32 s{S_T0}, s{S_W}, 1")
    a(f"s_lshl_b32 s{S_T0}, s{S_T0}, 6")
    a(f"v_xor_b32 v9, s{S_T0}, v9")
    a(f"s_lshl_b32 s{S_T1}, s{S_C0}, 1")
    a(f"v_add_u32 v9, s{S_T1}, v9")
    for t, (pn, ib) in enumerate(P.Bins):
        a(f"v_add_u32 v{VB+nA+t}, {ib*8*P.ldb + P.panel_coloff[pn]}, v9")

def loader_rest(a, P, first, VB, nA, nB, NS, S):

    opr = getattr(P, 'oprime', False)
    def soff(kreg, offreg, mul):
        if not opr:
            a(f"s_mul_i32 s{offreg}, s{kreg}, {mul}")
            return
        mm, mt_ = (128, 512) if offreg == S_AOFF else (102400, 409600)
        a(f"s_mul_i32 s{offreg}, s{kreg}, {mm}")
        a(f"s_sub_u32 s{S_T0}, s{kreg}, 8")
        a(f"s_mul_i32 s{S_T0}, s{S_T0}, {mt_}")
        a(f"s_cmp_ge_u32 s{kreg}, 8")
        a(f"s_cselect_b32 s{offreg}, s{S_T0}, s{offreg}")
    def adv(kreg, offreg, mul, slotreg):
        if getattr(P, 'order2', False) and P1ROT == 'latin2':
            cnt = S_N1 if kreg == S_K else S_N2
            a(f"s_add_u32 s{kreg}, s{kreg}, 2")
            a(f"s_cmp_ge_u32 s{kreg}, {S}")
            a(f"s_cselect_b32 s{S_T0}, {S}, 0")
            a(f"s_sub_u32 s{kreg}, s{kreg}, s{S_T0}")
            a(f"s_add_u32 s{cnt}, s{cnt}, 1")
            a(f"s_cmp_eq_u32 s{cnt}, 5")
            a(f"s_addc_u32 s{kreg}, s{kreg}, 0")
        else:
            a(f"s_add_u32 s{kreg}, s{kreg}, 1")
            a(f"s_cmp_ge_u32 s{kreg}, {S}")
            a(f"s_cselect_b32 s{kreg}, 0, s{kreg}")
        soff(kreg, offreg, mul)
        a(f"s_add_u32 s{slotreg}, s{slotreg}, {P.STAGE}")
        a(f"s_cmp_ge_u32 s{slotreg}, {P.STAGE*NS}")
        a(f"s_cselect_b32 s{slotreg}, 0, s{slotreg}")
    def issueA(fill=None):
        a(f"s_add_u32 s{S_T3}, s{S_SLOT}, s{S_LW}")
        if opr:
            lt_ = a.new("atail"); le_ = a.new("aend")
            a(f"s_cmp_ge_u32 s{S_K}, 8")
            a(f"s_cbranch_scc1 {lt_}")
            issueA_body(VB, None)
            a(f"s_branch {le_}")
            a.label(lt_)
            issueA_body(44, None)
            a.label(le_)
        else:
            issueA_body(VB, fill)
        adv(S_K, S_AOFF, 128, S_SLOT)
    def issueA_body(vb, fill):
        for t in range(nA):
            special = P.Ains[t]
            sk = None
            if special == 'skip':
                sk = a.new("sk")
                a(f"s_cmp_eq_u64 s[{S_MASK}:{S_MASK+1}], 0")
                a(f"s_cbranch_scc1 {sk}")
            a(f"s_add_u32 m0, s{S_T3}, {t*4096}")
            if special: a(f"s_mov_b64 exec, s[{S_MASK}:{S_MASK+1}]")
            else: a("s_nop 0")
            a(f"buffer_load_dwordx4 v{vb+t}, s[{SRD_A}:{SRD_A+3}], s{S_AOFF} offen{P.scA} lds")
            if special: a("s_mov_b64 exec, -1")
            if sk: a.label(sk)
            if fill:
                for x in fill.pop(0) if fill else []: a(x)
    def issueB(fill=None):
        if getattr(P, 'lazyB', False):
            P.lazyB = False
            P.custom_B_setup(a, VB + nA)
        a(f"s_add_u32 s{S_T4}, s{S_SLOTB}, s{S_LW}")
        if opr:
            lt_ = a.new("btail"); le_ = a.new("bend")
            a(f"s_cmp_ge_u32 s{S_KB}, 8")
            a(f"s_cbranch_scc1 {lt_}")
            issueB_body(VB + nA, None)
            a(f"s_branch {le_}")
            a.label(lt_)
            issueB_body(47, None)
            a.label(le_)
        else:
            issueB_body(VB + nA, fill)
        adv(S_KB, S_BOFF, 64*P.ldb, S_SLOTB)
    def issueB_body(vb, fill):
        for t, ent in enumerate(P.Bins):
            if isinstance(ent, dict):
                sr = SRD_B0; ldsoff = ent['lds']; skp = ent.get('skip')
            else:
                pn, ib = ent
                sr = P.panel_srd[pn]; ldsoff = P.ABYTES + pn*8192 + ib*1024; skp = None
            sk = None
            if skp:
                sk = a.new("skb")
                a(f"s_cmp_ge_u32 s{S_W}, {skp}")
                a(f"s_cbranch_scc1 {sk}")
            a(f"s_add_u32 m0, s{S_T4}, {ldsoff}")
            a("s_nop 0")
            a(f"buffer_load_dwordx4 v{vb+t}, s[{sr}:{sr+3}], s{S_BOFF} offen lds")
            if sk: a.label(sk)
            if fill:
                for x in fill.pop(0) if fill else []: a(x)
    minA = nA - (1 if 'skip' in P.Ains else 0)
    minB = nB - sum(1 for e_ in P.Bins if isinstance(e_, dict) and e_.get('skip'))
    a(f"s_mov_b32 s{S_SLOT}, 0")
    a(f"s_mov_b32 s{S_SLOTB}, 0")
    soff(S_K, S_AOFF, 128)
    soff(S_KB, S_BOFF, 64*P.ldb)
    pB = P.prefetchB if not first else 0
    if pB:
        lp = a.new("bpre")
        a(f"s_mov_b32 s{S_CNT}, {pB}")
        a.label(lp)
        issueB()
        a(f"s_sub_u32 s{S_CNT}, s{S_CNT}, 1")
        a(f"s_cmp_lg_u32 s{S_CNT}, 0")
        a(f"s_cbranch_scc1 {lp}")
    if not first:
        a("s_barrier      ; B_dep")
    stamp(a, 0)
    L = []
    gate = getattr(P, 'gate', None) if not first else None
    for s in range(S):
        cap = (NS - 1) if s == 0 else s + NS - 2
        prev = L[-1] if L else -1
        if gate and s <= gate[1]:
            L.append(min(gate[0] - 1, cap, prev + 2))
        else:
            L.append(min(S - 1, cap, prev + (3 if gate else 2)))
    if gate:
        assert gate[0] <= pB and gate[0] - 1 <= NS - 1
        nonce_from_lds(a)
    seq = [('B', j) for j in range(pB)]
    if hasattr(P, 'pre_issue'):
        npre = P.pre_issue(a)
    def cnt_after(s):
        last = max(i for i, (k, j) in enumerate(seq) if j == s and k in 'AB')
        n = 0
        for (k, j) in seq[last+1:]:
            n += minA if k == 'A' else (minB if k == 'B' else j)
        return n
    def issue_stage(j, fill=None):
        if j >= pB:
            issueA(fill); seq.append(('A', j))
            issueB(fill); seq.append(('B', j))
        else:
            issueA(fill); seq.append(('A', j))
    prev = -1
    s = 0
    while s < S:
        k = L[s] - prev
        e = s
        if k == 1 and L[s] >= pB and s > 0 and not getattr(P, 'unroll', False):
            while e + 1 < S and L[e+1] - L[e] == 1 and (L[e+1] - (e+1)) == (L[s] - s): e += 1
        if e - s >= 2 and s - 0 >= 0 and min(range(s, e+1)) >= 0 and s >= pB - (L[s] - s) and all(j >= pB for j in range(s, s+1)):
            cnt = e - s + 1
            lp = a.new("lmain")
            a(f"s_mov_b32 s{S_CNT}, {cnt}")
            a.label(lp)
            parts = P.loader_stage_work_parts() if P.has_stage_work else None
            issue_stage(L[s], parts)
            if parts:
                for grp in parts:
                    for x in grp: a(x)
            n = cnt_after(s)
            a(f"s_waitcnt vmcnt({n})")
            if P.has_stage_work: a("s_waitcnt lgkmcnt(0)")
            a("s_barrier")
            a(f"s_sub_u32 s{S_CNT}, s{S_CNT}, 1")
            a(f"s_cmp_lg_u32 s{S_CNT}, 0")
            a(f"s_cbranch_scc1 {lp}")
            for j in range(s+1, e+1):
                seq.append(('A', L[j])); seq.append(('B', L[j]))
            prev = L[e]; s = e + 1
            continue
        parts = P.loader_stage_work_parts() if (P.has_stage_work and s > 0) else None
        for j in range(prev+1, L[s]+1):
            issue_stage(j, parts if j == prev+1 else None)
        if s == 0:
            stamp(a, 1)
            ex = P.loader_post_first(a) or 0
            P.l2_prep(a)
            if getattr(P, 'early_pre', False): ex += P.early_setup(a)
            if ex: seq.append(('X', ex))
        if parts:
            for grp in parts:
                for x in grp: a(x)
        nw = P.mid_prefetch(a, s) or 0
        if nw: seq.append(('X', nw))
        if gate and s == gate[1]: P.deps(a, wave=7)
        a(f"s_waitcnt vmcnt({cnt_after(s)})")
        if P.has_stage_work or s == 0: a("s_waitcnt lgkmcnt(0)")
        a("s_barrier")
        if s == 0:
            ex = P.loader_post_b0(a) or 0
            if ex: seq.append(('X', ex))
        prev = L[s]; s += 1
    stamp(a, 2)
    if P.has_stage_work:
        for grp in P.loader_stage_work_parts():
            for x in grp: a(x)
    if getattr(P, 'fused', False):
        P.loader_fused_tail(a)
        return
    P.loader_final(a)
    if getattr(P, 'chunk_epi', False): P.loader_store_setup(a)
    if getattr(P, 'early_pre', False):
        a("s_barrier          ; E2")
        P.store_fast(a)
        P.set_fidx(a)
        return
    P.store_pre(a)
    ny = 0
    if P.has_e1:
        a("s_waitcnt lgkmcnt(0)")
        a("s_barrier      ; E1")
    if getattr(P, 'stream_epi', False):
        P.set_fidx(a)
        return
    if getattr(P, 'chunk_epi', False):
        P.loader_epilogue(a)
        P.set_fidx(a)
        return
    a("s_barrier          ; E2")
    store_pass(a, P, ny)

def consumer_phase(a, P, first):
    if getattr(P, 'modeS', False): return consumer_phase_S(a, P, first)
    P.consumer_setup(a)
    NW = len(P.wlist)
    XF = [0, 4*P.NXMAX]
    WF = [8*P.NXMAX, 8*P.NXMAX + 4*NW]
    wk, wt = getattr(P, 'wstep', (4096, 512))
    def reads(kk, buf):
        r = []
        for wi, (areg, off) in enumerate(P.wlist):
            base = WF[buf] + 4*wi
            r.append(f"ds_read_b64_tr_b16 a[{base}:{base+1}], v{areg} offset:{off + kk*wk}")
            r.append(f"ds_read_b64_tr_b16 a[{base+2}:{base+3}], v{areg} offset:{off + kk*wk + wt}")
        for xi, (areg0, areg1, off) in enumerate(P.xlist):
            base = XF[buf] + 4*xi
            areg = areg0 if kk == 0 else areg1
            r.append(f"ds_read_b128 a[{base}:{base+3}], v{areg} offset:{off}")
        return r
    def mfmas(buf, first_=False):
        m = []
        for (xi, wi, acc) in P.mf:
            c = "0" if first_ else f"v[{acc}:{acc+3}]"
            m.append(f"v_mfma_f32_16x16x32_bf16 v[{acc}:{acc+3}], a[{WF[buf]+4*wi}:{WF[buf]+4*wi+3}], a[{XF[buf]+4*xi}:{XF[buf]+4*xi+3}], {c}")
        return m
    block = make_block(a, P.RPM)
    cons_prologue(a, P, first)
    for x in reads(0, 0): a(x)
    a(f"s_mov_b32 s{S_CNT}, {P.S-1}")
    a("s_waitcnt lgkmcnt(0)")
    def stats4(buf):
        if not getattr(P, 'mfma_stats4', False): return
        sk = a.new("st4")
        a(f"s_and_b32 s{S_T0}, s{S_N1}, 3")
        a(f"s_add_u32 s{S_N1}, s{S_N1}, 1")
        a(f"s_cmp_eq_u32 s{S_T0}, s{S_WAVE}")
        a(f"s_cbranch_scc0 {sk}")
        for x in P.stats_mfmas([f"a[{XF[buf]+4*xi}:{XF[buf]+4*xi+3}]" for xi in range(len(P.xlist))]): a(x)
        a.label(sk)
    st4 = getattr(P, 'mfma_stats4', False)
    block(mfmas(0, True), reads(1, 1), slot_adv(P) + P.addr_update())
    stats4(0)
    lp = a.new("cloop")
    if ALIGN: a.raw(f".p2align {ALIGN}")
    a.label(lp)
    a("s_waitcnt lgkmcnt(0)")
    a("s_barrier")
    block(mfmas(1), reads(0, 0), [f"s_sub_u32 s{S_CNT}, s{S_CNT}, 1"])
    stats4(1)
    a("s_waitcnt lgkmcnt(0)")
    block(mfmas(0), reads(1, 1), slot_adv(P) + P.addr_update() + ([] if st4 else [f"s_cmp_lg_u32 s{S_CNT}, 0"]))
    stats4(0)
    if st4: a(f"s_cmp_lg_u32 s{S_CNT}, 0")
    a(f"s_cbranch_scc1 {lp}")
    a("s_waitcnt lgkmcnt(0)")
    block(mfmas(1), [])
    stats4(1)
    cons_tail(a, P, first)

def make_block(a, RPM):
    def block(m, r, fill=()):
        q = list(r); fl = list(fill)
        for i, x in enumerate(m):
            a(x)
            k = 0
            while q and k < RPM:
                a(q.pop(0)); k += 1
            if not q:
                while fl and k < 2:
                    a(fl.pop(0)); k += 1
        for x in q: a(x)
        for x in fl: a(x)
    return block

def slot_adv(P):
    return [f"s_add_u32 s{S_SLOT}, s{S_SLOT}, {P.STAGE}",
            f"s_cmp_ge_u32 s{S_SLOT}, {P.STAGE*P.NS}",
            f"s_cselect_b32 s{S_SLOT}, 0, s{S_SLOT}"]

def cons_prologue(a, P, first):
    a(f"s_mov_b32 s{S_SLOT}, 0")
    for x in P.addr_update(): a(x)
    if first: ptr_wait(a)
    P.build_srds(a, 'c')
    if not first:
        if TWOSTEP: P.deps_first(a)
        else: P.deps(a)
        a("s_barrier      ; B_dep")
        if getattr(P, 'early_pre', False): P.early_setup(a)
        if TWOSTEP and not getattr(P, 'gate', None): P.deps(a)
    else:
        nonce_publish(a)
    stamp(a, 0)
    a("s_barrier          ; B_0")
    stamp(a, 1)

def cons_tail(a, P, first):
    stamp(a, 2)
    if first: nonce_issue(a)
    a("s_nop 7")
    P.epilogue(a)
    if getattr(P, 'stream_epi', False) or getattr(P, 'chunk_epi', False):
        P.set_fidx(a)
        return
    a("s_waitcnt lgkmcnt(0)")
    if getattr(P, 'early_pre', False):
        a("s_barrier          ; E2")
        P.store_fast(a)
        P.set_fidx(a)
        return
    P.store_pre(a)
    a("s_barrier          ; E2")
    store_pass(a, P)

def consumer_phase_S(a, P, first):
    P.consumer_setup(a)
    for r in range(P.ACC, P.ACC + P.NACC): a(f"v_mov_b32 v{r}, 0")
    def rng(t):
        k, i = t
        return f"{k}[{i}:{i+3}]"
    def half(t, h):
        k, i = t
        return f"{k}[{i+2*h}:{i+2*h+1}]"
    def reads(buf):
        r = []
        for kk in range(2):
            for wi, (areg, off) in enumerate(P.wlist):
                t = P.fragW(buf, kk, wi)
                r.append(f"ds_read_b64_tr_b16 {half(t,0)}, v{areg} offset:{off + kk*4096}")
                r.append(f"ds_read_b64_tr_b16 {half(t,1)}, v{areg} offset:{off + kk*4096 + 512}")
            for xi, (areg0, areg1, off) in enumerate(P.xlist):
                areg = areg0 if kk == 0 else areg1
                r.append(f"ds_read_b128 {rng(P.fragX(buf, kk, xi))}, v{areg} offset:{off}")
        return r
    def mfmas(buf):
        m = []
        for kk in range(2):
            for (xi, wi, acc) in P.mf:
                m.append(f"v_mfma_f32_16x16x32_bf16 v[{acc}:{acc+3}], {rng(P.fragW(buf, kk, wi))}, {rng(P.fragX(buf, kk, xi))}, v[{acc}:{acc+3}]")
        return m
    def stats(buf):
        if not getattr(P, 'mfma_stats', False) or 'nostats' in EXP: return
        l1 = a.new("st"); l2 = a.new("st")
        a(f"s_cmp_eq_u32 s{S_J}, 1")
        a(f"s_cbranch_scc1 {l1}")
        for x in P.stats_mfmas([rng(P.fragX(buf, 0, xi)) for xi in range(4)]): a(x)
        a(f"s_branch {l2}")
        a.label(l1)
        for x in P.stats_mfmas([rng(P.fragX(buf, 1, xi)) for xi in range(4)]): a(x)
        a.label(l2)
    block = make_block(a, P.RPM)
    cons_prologue(a, P, first)
    for x in reads(0): a(x)
    for x in slot_adv(P) + P.addr_update(): a(x)
    S = P.S
    npair = (S - 1)//2
    def step(cur, fill_extra=()):
        a("s_waitcnt lgkmcnt(0)")
        a("s_barrier")
        block(mfmas(cur), reads(1 - cur), slot_adv(P) + P.addr_update() + list(fill_extra))
        stats(cur)
    a(f"s_mov_b32 s{S_CNT}, {npair}")
    lp = a.new("cloop")
    if ALIGN: a.raw(f".p2align {ALIGN}")
    a.label(lp)
    step(0, [f"s_sub_u32 s{S_CNT}, s{S_CNT}, 1"])
    step(1)
    a(f"s_cmp_lg_u32 s{S_CNT}, 0")
    a(f"s_cbranch_scc1 {lp}")
    last = 0
    if (S - 1) % 2 == 1:
        step(0); last = 1
    a("s_waitcnt lgkmcnt(0)")
    block(mfmas(last), [])
    stats(last)
    cons_tail(a, P, first)

def ptr_wait(a):
    a("s_waitcnt lgkmcnt(0)")
    if PROFDBG: a(f"s_mov_b32 s{S_P0}, s98")
    srd(a, SRD_FLAG, ptr(KA_WS), WS_FLAG, 0x20000)

def cons_lane(a):
    a("v_and_b32 v3, 15, v2")
    a("v_lshrrev_b32 v4, 4, v2")

def x_addr_const(a, dst, rowbase_sgpr, rowbase_const=0):
    a("v_lshrrev_b32 v5, 1, v3")
    a("v_xor_b32 v5, v4, v5")
    a("v_lshlrev_b32 v5, 4, v5")
    a(f"v_lshl_add_u32 v{dst}, v3, 7, v5")
    if rowbase_sgpr is not None:
        a(f"s_lshl_b32 s{S_T0}, s{rowbase_sgpr}, 7")
        a(f"v_add_u32 v{dst}, s{S_T0}, v{dst}")
    if rowbase_const:
        a(f"v_add_u32 v{dst}, {rowbase_const*128}, v{dst}")

def w_addr_const(a, dst):
    a("v_lshrrev_b32 v5, 2, v3        ; r")
    a("v_lshl_add_u32 v6, v4, 3, v5   ; 8g+r")
    a("v_lshlrev_b32 v6, 7, v6")
    a("v_lshrrev_b32 v5, 1, v5        ; r>>1")
    a("v_and_b32 v7, 1, v4")
    a("v_lshl_or_b32 v5, v7, 1, v5    ; h")
    a("v_lshl_add_u32 v6, v5, 5, v6")
    a("v_and_b32 v5, 3, v3")
    a(f"v_lshl_add_u32 v{dst}, v5, 3, v6")

def t_write_addr(a, dst, base_const):
    a("v_lshrrev_b32 v5, 1, v4")
    a("v_and_b32 v6, 7, v3")
    a("v_xor_b32 v5, v5, v6")
    a("v_lshlrev_b32 v5, 4, v5")
    a("v_and_b32 v6, 1, v4")
    a("v_lshl_add_u32 v5, v6, 3, v5")
    a(f"v_lshl_add_u32 v{dst}, v3, 7, v5")
    a(f"v_add_u32 v{dst}, {base_const}, v{dst}")

def pad_init(a, P, row0, nzero_rows, ones_row):
    a("v_mov_b32 v12, 0"); a("v_mov_b32 v13, 0"); a("v_mov_b32 v14, 0"); a("v_mov_b32 v15, 0")
    a(f"v_mov_b32 v10, {hex(ONES)}")
    a("v_lshlrev_b32 v11, 4, v2        ; lane*16")
    for rep in range((P.NS + 3)//4):
        sk = a.new("pad")
        a(f"s_add_u32 s{S_T0}, s{S_W}, {4*rep}")
        a(f"s_cmp_ge_u32 s{S_T0}, {P.NS}")
        a(f"s_cbranch_scc1 {sk}")
        a(f"s_mul_i32 s{S_T0}, s{S_T0}, {P.STAGE}")
        nb = nzero_rows*128; off = 0
        while off < nb:
            lanes = min(64, (nb - off)//16)
            a(f"v_add_u32 v16, s{S_T0}, v11")
            if lanes < 64: set_exec(a, (1 << lanes) - 1)
            a(f"ds_write_b128 v16, v[12:15] offset:{row0*128 + off}")
            if lanes < 64: a("s_mov_b64 exec, -1")
            off += lanes*16
        if ones_row is not None:
            a(f"v_lshlrev_b32 v16, 2, v2")
            a(f"v_add_u32 v16, s{S_T0}, v16")
            set_exec(a, 0xffffffff)
            a(f"ds_write_b32 v16, v10 offset:{ones_row*128}")
            a("s_mov_b64 exec, -1")
        a.label(sk)

def store_pass(a, P, ny=0):
    a("v_lshrrev_b32 v3, 3, v2")
    a("v_and_b32 v4, 7, v2")
    a("v_xor_b32 v5, v4, v3")
    a("v_lshlrev_b32 v5, 4, v5")
    a("v_lshl_add_u32 v5, v3, 7, v5")
    a(f"s_lshl_b32 s{S_T0}, s{S_WAVE}, 10")
    a(f"v_add_u32 v5, s{S_T0}, v5")
    a(f"v_add_u32 v5, {P.TBASE}, v5")
    a(f"s_lshl_b32 s{S_T0}, s{S_WAVE}, 3")
    a(f"s_add_u32 s{S_T0}, s{S_T0}, s{S_R0}")
    a(f"v_add_u32 v6, s{S_T0}, v3")
    a(f"s_mov_b32 s{S_T1}, {P.ldo}")
    a(f"v_mul_lo_u32 v7, v6, s{S_T1}")
    a(f"s_lshl_b32 s{S_T0}, s{S_C0}, 1")
    a(f"v_lshl_add_u32 v7, v4, 4, v7")
    a(f"v_add_u32 v7, s{S_T0}, v7")
    a("v_mov_b32 v8, 0x80000000")
    P.ny = ny
    P.store_body(a)
    P.set_fidx(a)

def store_addr(a, k, dst, P, coloff=0):
    a(f"v_add_u32 v9, {64*k}, v6")
    a(f"v_cmp_gt_u32 vcc, s{S_REND}, v9")
    a(f"v_add_u32 v{dst}, {64*k*P.ldo + coloff}, v7")
    a("s_nop 0")
    a(f"v_cndmask_b32 v{dst}, v8, v{dst}, vcc")

class P1(Phase):
    key = 'p1'; kind = "p1"; NT = 255
    MV = 121; NC = 128; lda = 1280; ldb = 3840; ldo = 3840
    ABYTES = 16384; STAGE = 32768; NS = 4; S = 10
    NXMAX = 4; RPM = 1
    has_stage_work = False; has_e1 = True
    mfma_stats = True
    order2 = True
    GRAM = 96; SUMA = 112; VONES = 24
    modeS = True; NACC = 64
    def fragW(self, buf, kk, wi): return ('a', 64*buf + 16*kk + 4*wi)
    def fragX(self, buf, kk, xi):
        if buf == 0: return ('a', 32 + 16*kk + 4*xi)
        return ('v', 128 + 16*kk + 4*xi)
    scA = ""
    panel_coloff = [0, 128]; panel_srd = [SRD_B0, SRD_B0]
    LDS_ST = 131072; LDS_CS = 131072 + 2048
    TBASE = 2*32768
    rot = (5, 10, 2)
    Ains = [None, None, None, 'mask']
    Bins = [(0, 0), (0, 4), (1, 0), (1, 4)]
    def __init__(self):
        self.vXc, self.vWc = 8, 9
        self.vXa, self.vXb = 10, 11
        self.vW = [12, 13, 14, 15]
        self.xlist = [(self.vXa, self.vXb, 2048*x) for x in range(4)]
        self.wlist = [(self.vW[f], self.ABYTES) for f in range(4)]
        self.ACC = 32
        self.mf = [(x, f, self.ACC + 4*(4*x + f)) for x in range(4) for f in range(4)]
    def rot_start(self, a):
        if P1ROT == "lock":
            a(f"s_mov_b32 s{S_K}, 0"); return
        if P1ROT == "two":
            a(f"s_add_u32 s{S_K}, s{S_RT}, s{S_CT}")
            a(f"s_and_b32 s{S_K}, s{S_K}, 1")
            a(f"s_mul_i32 s{S_K}, s{S_K}, 5"); return
        if P1ROT == "ten":
            a(f"s_mul_i32 s{S_K}, s{S_RT}, 3")
            a(f"s_add_u32 s{S_K}, s{S_K}, s{S_CT}")
            divc(a, S_T0, S_K, 10)
            a(f"s_mul_i32 s{S_T0}, s{S_T0}, 10")
            a(f"s_sub_u32 s{S_K}, s{S_K}, s{S_T0}"); return
        a(f"s_add_u32 s{S_K}, s{S_RT}, s{S_CT}")
        divc(a, S_T0, S_K, 5)
        a(f"s_mul_i32 s{S_T0}, s{S_T0}, 5")
        a(f"s_sub_u32 s{S_K}, s{S_K}, s{S_T0}")
        a(f"s_lshl_b32 s{S_K}, s{S_K}, 1")
    def l2_prep(self, a): l2_setup(a, "rm", 250, 64, KA_WO, D*D*2, 1280, D)
    def mid_prefetch(self, a, s):
        if s == 8: return l2_issue(a, KA_WO, 1280, D)
    def mask_setup(self, a):
        a(f"s_cmp_eq_u32 s{S_W}, 3")
        a(f"s_cselect_b32 s{S_MASK}, 0xff, -1")
        a(f"s_cselect_b32 s{S_MASK+1}, 0, -1")
    def build_srds(self, a, role):
        if role == 'l':
            srd(a, SRD_A, ptr(KA_X), 0, S_TOK*D*2)
            srd(a, SRD_B0, ptr(KA_WQKV), 0, D*NQKV*2)
        srd(a, SRD_OUT, ptr(KA_WS), WS_QKV, S_TOK*NQKV*2)
    def set_fidx(self, a):
        a(f"s_mul_i32 s{S_FIDX}, s{S_RT}, 15")
        a(f"s_add_u32 s{S_FIDX}, s{S_FIDX}, s{S_CT}")
        a(f"s_lshl_b32 s{S_FIDX}, s{S_FIDX}, 7")
    def loader_post_first(self, a):
        pad_init(a, self, 121, 6, 127)
        return 0
    def stats_mfmas(self, xregs):
        m = []
        for x in range(4):
            xa = xregs[x]
            g = self.GRAM + 4*x; sm = self.SUMA + 4*x
            m.append(f"v_mfma_f32_16x16x32_bf16 v[{g}:{g+3}], {xa}, {xa}, v[{g}:{g+3}]")
            m.append(f"v_mfma_f32_16x16x32_bf16 v[{sm}:{sm+3}], v[{self.VONES}:{self.VONES+3}], {xa}, v[{sm}:{sm+3}]")
        return m
    def consumer_setup(self, a):
        cons_lane(a)
        a(f"s_lshr_b32 s{S_I}, s{S_WAVE}, 1")
        a(f"s_and_b32 s{S_J}, s{S_WAVE}, 1")
        a(f"s_lshl_b32 s{S_T1}, s{S_I}, 6")
        x_addr_const(a, self.vXc, S_T1)
        w_addr_const(a, self.vWc)
        a(f"s_lshl_b32 s{S_T0}, s{S_J}, 13")
        a(f"v_add_u32 v{self.vWc}, s{S_T0}, v{self.vWc}")
        for r in range(4): a(f"v_mov_b32 v{self.VONES+r}, {hex(ONES)}")
        for r in range(32): a(f"v_mov_b32 v{self.GRAM+r}, 0")
        a(f"s_lshl_b32 s{S_T0}, s{S_J}, 8       ; j*64*4")
        a(f"v_lshlrev_b32 v16, 4, v4            ; g*16 bytes")
        a(f"v_add_u32 v16, s{S_T0}, v16")
        a(f"v_add_u32 v16, {self.LDS_CS}, v16")
        t_write_addr(a, 17, self.TBASE)
        a(f"s_lshl_b32 s{S_T0}, s{S_WAVE}, 13")
        a(f"v_add_u32 v17, s{S_T0}, v17")
        for f in range(1, 4): a(f"v_xor_b32 v{17+f}, {32*f}, v17")
        a(f"s_lshl_b32 s{S_T0}, s{S_I}, 9       ; i*64*8")
        a(f"s_lshl_b32 s{S_T1}, s{S_J}, 10      ; j*128*8")
        a(f"s_add_u32 s{S_T1}, s{S_T1}, s{S_T0}")
        a(f"v_lshlrev_b32 v7, 3, v3")
        a(f"v_add_u32 v21, s{S_T1}, v7")
        a(f"v_add_u32 v21, {self.LDS_ST}, v21")
        a(f"v_add_u32 v22, s{S_T0}, v7")
        a(f"v_add_u32 v22, {self.LDS_ST}, v22")
        a("v_lshrrev_b32 v5, 3, v2             ; r8")
        a("v_and_b32 v6, 7, v2                 ; c")
        a("v_xor_b32 v7, v6, v5")
        a("v_lshlrev_b32 v7, 4, v7")
        a("v_lshl_add_u32 v23, v5, 7, v7")
        a(f"s_lshl_b32 s{S_T0}, s{S_WAVE}, 13")
        a(f"s_add_u32 s{S_T0}, s{S_T0}, {self.TBASE}")
        a(f"v_add_u32 v23, s{S_T0}, v23")
        a(f"s_lshl_b32 s{S_T0}, s{S_I}, 6")
        a(f"s_add_u32 s{S_T0}, s{S_T0}, s{S_R0}")
        a(f"v_add_u32 v28, s{S_T0}, v5")
        a(f"s_mov_b32 s{S_T1}, 3840")
        a(f"v_mul_lo_u32 v28, v28, s{S_T1}")
        a("v_lshl_add_u32 v28, v6, 4, v28")
        a(f"s_lshl_b32 s{S_T0}, s{S_J}, 6")
        a(f"s_add_u32 s{S_T0}, s{S_T0}, s{S_C0}")
        a(f"s_lshl_b32 s{S_T0}, s{S_T0}, 1")
        a(f"v_add_u32 v28, s{S_T0}, v28")
    def addr_update(self):
        r = [f"v_add_u32 v{self.vXa}, s{S_SLOT}, v{self.vXc}",
             f"v_add_u32 v{self.vW[0]}, s{S_SLOT}, v{self.vWc}",
             f"v_xor_b32 v{self.vXb}, 64, v{self.vXa}"]
        for f in range(1, len(self.vW)):
            r.append(f"v_xor_b32 v{self.vW[f]}, {32*f}, v{self.vW[0]}")
        return r
    stream_epi = True
    def epilogue(self, a):
        nocs = a.new("nocs")
        a(f"s_cmp_eq_u32 s{S_I}, 1")
        a(f"s_cbranch_scc0 {nocs}")
        set_exec(a, 0x8000800080008000)
        for f in range(4):
            acc = self.ACC + 4*(4*3 + f)
            a(f"ds_write_b128 v16, v[{acc}:{acc+3}] offset:{64*f}")
        a("s_mov_b64 exec, -1")
        a.label(nocs)
        for i_, m_ in enumerate((0x22222222, 0x44444444, 0x88888888)):
            a(f"s_mov_b32 s{80+2*i_}, {hex(m_)}"); a(f"s_mov_b32 s{81+2*i_}, {hex(m_)}")
        for x in range(4):
            g = self.GRAM + 4*x
            a(f"v_cndmask_b32 v{g+1}, v{g}, v{g+1}, s[80:81]")
            a(f"v_cndmask_b32 v{g+1}, v{g+1}, v{g+2}, s[82:83]")
            a(f"v_cndmask_b32 v{g+1}, v{g+1}, v{g+3}, s[84:85]")
            a(f"v_mov_b32 v{g}, v{self.SUMA+4*x}           ; sum")
        set_exec(a, 0xF | (0xF << 20) | (0xF << 40) | (0xF << 60))
        for x in range(4):
            g = self.GRAM + 4*x
            a(f"ds_write_b64 v21, v[{g}:{g+1}] offset:{128*x}")
        a("s_mov_b64 exec, -1")
        a("s_waitcnt lgkmcnt(0)")
        a("s_barrier      ; E1")
        CS = 128; ST = 144
        for x in range(4):
            a(f"ds_read_b64 v[{ST+2*x}:{ST+2*x+1}], v22 offset:{128*x}")
            a(f"ds_read_b64 v[{96+2*x}:{97+2*x}], v22 offset:{1024 + 128*x}")
        for f in range(4):
            a(f"ds_read_b128 v[{CS+4*f}:{CS+4*f+3}], v16 offset:{64*f}")
        a("s_waitcnt lgkmcnt(4)")
        for x in range(4):
            st = ST + 2*x
            a(f"v_pk_add_f32 v[{st}:{st+1}], v[{st}:{st+1}], v[{96+2*x}:{97+2*x}]")
            a(f"v_mul_f32 v{st}, {hex(f2u(1.0/D))}, v{st}          ; mean")
            a(f"v_mul_f32 v{st+1}, {hex(f2u(1.0/D))}, v{st+1}")
            a(f"v_fma_f32 v{st+1}, -v{st}, v{st}, v{st+1}      ; var")
            a(f"v_add_f32 v{st+1}, {hex(f2u(1e-5))}, v{st+1}")
            a(f"v_rsq_f32 v{st+1}, v{st+1}")
        a("s_waitcnt lgkmcnt(0)")
        RB = [96, 104]
        def stores(x):
            rb = RB[x & 1]
            for u in range(2):
                a(f"v_add_u32 v{29+u}, {(16*x + 8*u)*3840}, v28")
            for u in range(2):
                if x == 3 and u == 1:
                    a(f"s_cmp_eq_u32 s{S_I}, 1")
                    a("s_cselect_b32 exec_lo, 0xff, -1")
                    a("s_cselect_b32 exec_hi, 0, -1")
                a(f"buffer_store_dwordx4 v[{rb+4*u}:{rb+4*u+3}], v{29+u}, s[{SRD_OUT}:{SRD_OUT+3}], 0 offen{SC1}")
            if x == 3: a("s_mov_b64 exec, -1")
        for x in range(4):
            st = ST + 2*x
            for f in range(4):
                acc = self.ACC + 4*(4*x + f)
                for hh in (0, 2):
                    a(f"v_pk_fma_f32 v[{acc+hh}:{acc+hh+1}], v[{CS+4*f+hh}:{CS+4*f+hh+1}], v[{st}:{st+1}], v[{acc+hh}:{acc+hh+1}] op_sel_hi:[1,0,1] neg_lo:[0,1,0] neg_hi:[0,1,0]")
                for hh in (0, 2):
                    a(f"v_pk_mul_f32 v[{acc+hh}:{acc+hh+1}], v[{acc+hh}:{acc+hh+1}], v[{st}:{st+1}] op_sel:[0,1] op_sel_hi:[1,1]")
                a(f"v_cvt_pk_bf16_f32 v{acc}, v{acc}, v{acc+1}")
                a(f"v_cvt_pk_bf16_f32 v{acc+1}, v{acc+2}, v{acc+3}")
                a(f"ds_write_b64 v{17+f}, v[{acc}:{acc+1}] offset:{2048*x}")
            rb = RB[x & 1]
            if x >= 1:
                a("s_waitcnt lgkmcnt(4)")
                stores(x - 1)
            for u in range(2):
                a(f"ds_read_b128 v[{rb+4*u}:{rb+4*u+3}], v23 offset:{2048*x + 1024*u}")
        a("s_waitcnt lgkmcnt(0)")
        stores(3)


class P1F(Phase):
    key = 'p1'; kind = "p1f"; NT = 256
    MV = 64; NC = 80; lda = 1280; ldb = 3840
    ABYTES = 10240; STAGE = 40960; NS = 3; S = 10
    NXMAX = 5; RPM = 1
    has_e1 = True; fused = True; custom_B = True
    scA = ""
    Ains = [None, None, 'skip']
    Bins = [dict(lds=10240 + 4096*t) for t in range(7)] + [dict(lds=10240 + 4096*7, skip=2)]
    panel_srd = [SRD_B0]
    LDS_STP = 122880
    QT = 40960; QROW = 488
    OT = 81920; OROW = 176
    ACC = 32; GRAM = 112; SUMA = 132; VONES = 152
    mfma_stats4 = True
    def __init__(self):
        self.vXc = 8; self.vXa, self.vXb = 9, 10
        self.vWc = [11, 12, 13, 14]; self.vW = [15, 16, 17, 18]
        self.xlist = [(self.vXa, self.vXb, 2048*x) for x in range(5)]
        self.wlist = None
        self.mf = [(x, j, self.ACC + 4*(4*x + j)) for x in range(5) for j in range(4)]
    def rot_start(self, a):
        if P1FROT == 'rot8':
            a(f"s_and_b32 s{S_K}, s{S_RT}, 7")
            a(f"s_mul_i32 s{S_K}, s{S_K}, 5")
            a(f"s_lshr_b32 s{S_K}, s{S_K}, 2")
            return
        a(f"s_add_u32 s{S_K}, s{S_RT}, s{S_CT}")
        divc(a, S_T0, S_K, 5)
        a(f"s_mul_i32 s{S_T0}, s{S_T0}, 5")
        a(f"s_sub_u32 s{S_K}, s{S_K}, s{S_T0}")
        a(f"s_lshl_b32 s{S_K}, s{S_K}, 1")
    @property
    def order2(self): return P1FROT != 'rot8'
    def pre_issue(self, a):
        if not APF: return 0
        a(f"s_and_b32 s{S_T0}, s{S_CT}, 3")
        a(f"s_mul_i32 s{S_T0}, s{S_T0}, 20")
        a(f"s_add_u32 s{S_T0}, s{S_T0}, s{S_R0}")
        a(f"s_mul_i32 s{S_T0}, s{S_T0}, 1280")
        a(f"s_lshl_b32 s{S_T1}, s{S_W}, 10")
        a(f"s_add_u32 s{S_T0}, s{S_T0}, s{S_T1}")
        a("v_lshlrev_b32 v60, 4, v2")
        a(f"v_add_u32 v60, s{S_T0}, v60")
        n = 7
        for i in range(n):
            a(f"buffer_load_dwordx4 v[152:155], v60, s[{SRD_A}:{SRD_A+3}], 0 offen")
            if i + 1 < n: a("v_add_u32 v60, 4096, v60")
        return n
    def tile_consts(self, a):
        a(f"s_lshl_b32 s{S_R0}, s{S_RT}, 6")
        a(f"s_sub_u32 s{S_R0}, s{S_R0}, 14")
        a(f"s_mul_i32 s{S_C0}, s{S_CT}, 160")
    def mask_setup(self, a):
        a(f"s_cmp_eq_u32 s{S_W}, 0")
        a(f"s_cselect_b32 s{S_MASK+1}, -1, 0xffff")
        a(f"s_cmp_lt_u32 s{S_W}, 2")
        a(f"s_cselect_b32 s{S_MASK}, -1, 0")
        a(f"s_cselect_b32 s{S_MASK+1}, s{S_MASK+1}, 0")
    def custom_B_setup(self, a, vb):
        a(f"s_lshl_b32 s{S_T0}, s{S_W}, 6")
        a(f"v_add_u32 v8, s{S_T0}, v2            ; c0")
        vdiv(a, 9, 8, 10, 256)
        a("v_mul_u32_u24 v10, 10, v9")
        a("v_sub_u32 v10, v8, v10                ; ch")
        a("v_mul_u32_u24 v11, 3840, v9")
        a("v_lshl_add_u32 v11, v10, 4, v11")
        a(f"v_add_u32 v{vb}, s{S_C0}, v11         ; voff t=0")
        for t in range(1, 8):
            a("v_add_u32 v10, 6, v10")
            a("v_add_u32 v9, 25, v9")
            a("v_cmp_le_u32 vcc, 10, v10")
            a(f"v_add_u32 v{vb+t}, {25*3840 + 96}, v{vb+t-1}")
            a("v_subrev_u32 v12, 10, v10")
            a("v_cndmask_b32 v10, v10, v12, vcc")
            a("v_addc_co_u32 v9, vcc, 0, v9, vcc") if False else None
            a(f"v_add_u32 v12, {3840 - 160}, v{vb+t}")
            a(f"v_cndmask_b32 v{vb+t}, v{vb+t}, v12, vcc")
            a("v_add_u32 v12, 1, v9")
            a("v_cndmask_b32 v9, v9, v12, vcc")
            a("v_cmp_le_u32 vcc, 64, v9")
            a(f"v_add_u32 v12, {(1280 - 64*3840) & 0xffffffff}, v{vb+t}")
            a("v_subrev_u32 v13, 64, v9")
            a(f"v_cndmask_b32 v{vb+t}, v{vb+t}, v12, vcc")
            a("v_cndmask_b32 v9, v9, v13, vcc")
    def build_srds(self, a, role):
        if role == 'l':
            srd(a, SRD_A, ptr(KA_X), 0, S_TOK*D*2)
            srd(a, SRD_B0, ptr(KA_WQKV), 0, D*NQKV*2)
        srd(a, SRD_OUT, ptr(KA_WS), WS_O, 0x280000)
    def set_fidx(self, a):
        a(f"s_lshl_b32 s{S_FIDX}, s{S_RT}, 3")
        a(f"s_add_u32 s{S_FIDX}, s{S_FIDX}, s{S_CT}")
        a(f"s_lshl_b32 s{S_FIDX}, s{S_FIDX}, 7")
        a(f"s_add_u32 s{S_FIDX}, s{S_FIDX}, 0x8000")
    def l2_prep(self, a): l2_setup(a, "rm", 250, 64, KA_WO, D*D*2, 1280, D)
    @property
    def unroll(self): return SPF != 0
    def spf_setup(self, a):
        a(f"s_lshl_b32 s{S_T0}, s2, 2")
        a(f"s_add_u32 s{S_T0}, s{S_T0}, s{S_W}        ; q")
        a(f"s_mul_i32 s{S_T1}, s{S_T0}, 2560")
        a(f"s_add_u32 s98, s{ptr(KA_X)}, s{S_T1}")
        a(f"s_addc_u32 s99, s{ptr(KA_X)+1}, 0")
        sdiv(a, S_T1, S_T0, 205, 1100)
        a(f"s_mul_i32 s{S_T2}, s{S_T1}, 205")
        a(f"s_sub_u32 s{S_T2}, s{S_T0}, s{S_T2}")
        a(f"s_min_u32 s{S_T2}, s{S_T2}, 201")
        a(f"s_mul_i32 s{S_T2}, s{S_T2}, 1216")
        a(f"s_lshl_b32 s{S_T1}, s{S_T1}, 1")
        a(f"s_add_u32 s{S_T1}, s{S_T1}, 1")
        a(f"s_mul_i32 s{S_T1}, s{S_T1}, 245760")
        a(f"s_add_u32 s{S_T1}, s{S_T1}, s{S_T2}")
        a(f"s_add_u32 s100, s{ptr(KA_WQKV)}, s{S_T1}")
        a(f"s_addc_u32 s101, s{ptr(KA_WQKV)+1}, 0")
    def spf_list(self):
        L_ = []
        for i in range(19): L_.append(("s[100:101]", 64*i))
        for k in (1, 3, 5, 7, 9):
            for r in range(2):
                for h in range(2): L_.append(("s[98:99]", r*1280 + k*128 + h*64))
        return L_
    def mid_prefetch(self, a, s):
        if SPF:
            if s == 0: self.spf_setup(a)
            L_ = self.spf_list()
            per = SPF
            if s >= 1 and s <= 4:
                for base, off in L_[per*(s-1): per*s]:
                    a(f"s_load_dword s3, {base}, {off}")
            if SPF2 and s >= 5:
                if s == 5:
                    a(f"s_lshl_b32 s{S_T0}, s2, 2")
                    a(f"s_add_u32 s{S_T0}, s{S_T0}, s{S_W}")
                    a(f"s_mul_i32 s{S_T1}, s{S_T0}, 800")
                    a(f"s_add_u32 s98, s{ptr(KA_WO)}, s{S_T1}")
                    a(f"s_addc_u32 s99, s{ptr(KA_WO)+1}, 0")
                    a(f"s_mul_i32 s{S_T1}, s{S_T0}, 2160")
                    a(f"s_add_u32 s100, s{ptr(SPF2)}, s{S_T1}")
                    a(f"s_addc_u32 s101, s{ptr(SPF2)+1}, 0")
                L2 = [("s[98:99]", 64*i) for i in range(13)] + [("s[100:101]", 64*i) for i in range(34)]
                for base, off in L2[10*(s-5): 10*(s-4)]:
                    a(f"s_load_dword s3, {base}, {off}")
        if s == 9: return l2_issue(a, KA_WO, 1280, D)
    def loader_post_first(self, a):
        pad_init(a, self, 78, 1, 79)
        self.att_setup(a)
        return 0
    def att_setup(self, a):
        QT, QROW = self.QT, self.QROW
        a("v_and_b32 v3, 3, v2             ; i")
        a("v_bfe_u32 v4, v2, 2, 2          ; head")
        a("v_lshrrev_b32 v5, 4, v2         ; grp")
        a("v_lshrrev_b32 v6, 1, v5")
        a("v_lshlrev_b32 v6, 3, v6")
        a("v_and_b32 v7, 1, v5")
        a("v_add_u32 v6, v6, v7")
        a(f"s_lshl_b32 s{S_T0}, s{S_W}, 4")
        a(f"v_add_u32 v6, s{S_T0}, v6")
        a("v_lshlrev_b32 v7, 1, v3")
        a("v_add_u32 v7, v6, v7            ; rb + 2i")
        a(f"v_mul_u32_u24 v8, {QROW}, v7")
        a("v_mul_u32_u24 v9, 40, v4")
        a("v_add_u32 v8, v8, v9")
        a(f"v_add_u32 v144, {QT + 14*QROW}, v8")
        a(f"v_add_u32 v145, {QT + 160}, v8")
        a("v_cmp_eq_u32 vcc, 3, v3")
        a(f"v_mov_b32 v10, {16*QROW}")
        a(f"v_mov_b32 v11, {14*QROW}")
        a("v_cndmask_b32 v10, v10, v11, vcc")
        a("v_add_u32 v146, v145, v10")
        a(f"v_mul_u32_u24 v12, {self.OROW}, v7")
        a("v_add_u32 v12, v12, v9")
        a(f"v_add_u32 v118, {self.OT}, v12")
        a("v_lshlrev_b32 v12, 1, v4               ; 2r")
        a("v_add_u32 v12, v6, v12")
        a(f"v_mul_u32_u24 v12, {QROW}, v12")
        a("v_mul_u32_u24 v13, 40, v3")
        a("v_add_u32 v12, v12, v13")
        a(f"v_add_u32 v147, {QT + 320}, v12")
        a("v_cmp_eq_u32 vcc, 3, v4")
        a(f"v_mov_b32 v10, {16*QROW}")
        a("s_nop 0")
        a("v_cndmask_b32 v10, v10, v11, vcc")
        a("v_add_u32 v119, v147, v10")
        a(f"v_mov_b32 v12, {hex(f2u(-1e30))}")
        a("v_mov_b32 v13, 0")
        a(f"v_add_u32 v14, s{S_R0}, v6")
        for m in range(12):
            a(f"v_sub_u32 v15, {m}, v3")
            a("v_cmp_gt_u32 vcc, 8, v15")
            a(f"v_add_u32 v16, {2*m}, v14")
            a("v_cmp_le_i32 s[4:5], 0, v16")
            a("s_nop 1")
            a("s_and_b64 vcc, vcc, s[4:5]")
            a(f"v_cndmask_b32 v{120+m}, v12, v13, vcc")
        self.store_addr_setup(a)
    def store_addr_setup(self, a, regs=(148, 149, 156, 157), tmp=3):
        lm, lt, gm, gt = regs
        t0, t1, t2 = tmp, tmp + 1, tmp + 2
        a(f"v_lshrrev_b32 v{t0}, 3, v2             ; r8")
        a(f"v_and_b32 v{t1}, 7, v2                 ; p")
        a(f"s_lshl_b32 s{S_T0}, s{S_WAVE}, 3")
        a(f"v_add_u32 v{t2}, s{S_T0}, v{t0}")
        a(f"v_mul_u32_u24 v{lm}, {self.OROW}, v{t2}")
        a(f"v_lshl_add_u32 v{lm}, v{t1}, 4, v{lm}")
        a(f"v_add_u32 v{lm}, {self.OT}, v{lm}")
        a(f"s_add_u32 s{S_T0}, s{S_R0}, 14          ; T0")
        a(f"v_add_u32 v{gm}, s{S_T0}, v{t2}")
        a(f"v_lshlrev_b32 v{gm}, 10, v{gm}")
        a(f"v_lshl_add_u32 v{gm}, v{t1}, 4, v{gm}")
        a(f"s_lshl_b32 s{S_T1}, s{S_CT}, 7          ; hg*128")
        a(f"v_add_u32 v{gm}, s{S_T1}, v{gm}")
        a(f"v_lshrrev_b32 v{t0}, 1, v{t1}")
        a(f"v_lshl_add_u32 v{t0}, v{t2}, 2, v{t0}   ; token")
        a(f"v_mul_u32_u24 v{lt}, {self.OROW}, v{t0}")
        a(f"v_and_b32 v{t0}, 1, v{t1}")
        a(f"v_lshl_add_u32 v{lt}, v{t0}, 4, v{lt}")
        a(f"v_add_u32 v{lt}, {self.OT + 128}, v{lt}")
        a(f"s_lshr_b32 s{S_T0}, s{S_T0}, 2          ; T0/4")
        a(f"v_add_u32 v{gt}, s{S_T0}, v{t2}")
        a(f"v_lshlrev_b32 v{gt}, 10, v{gt}")
        a(f"v_lshl_add_u32 v{gt}, v{t1}, 4, v{gt}")
        a(f"s_add_u32 s{S_T1}, s{S_T1}, 0x200000")
        a(f"v_add_u32 v{gt}, s{S_T1}, v{gt}")
    def o_stores(self, a):
        a(f"ds_read_b128 v[20:23], v148")
        sk = a.new("ost")
        a(f"s_cmp_ge_u32 s{S_WAVE}, 2")
        a(f"s_cbranch_scc1 {sk}")
        a(f"ds_read_b128 v[24:27], v149")
        a("s_waitcnt lgkmcnt(0)")
        a(f"buffer_store_dwordx4 v[24:27], v157, s[{SRD_OUT}:{SRD_OUT+3}], 0 offen{OSC}")
        a.label(sk)
        a("s_waitcnt lgkmcnt(0)")
        a(f"buffer_store_dwordx4 v[20:23], v156, s[{SRD_OUT}:{SRD_OUT+3}], 0 offen{OSC}")
    def loader_fused_tail(self, a):
        l2_setup(a, "p3", 243, 64, KA_WG, D*F*2, 3456, D)
        a("s_barrier      ; E1")
        l2_issue(a, KA_WG, 3456, D)
        a("s_barrier")
        Q = 16; KR = 32; VR = 62; SC = 92; BIAS = 120; PB = 104
        QROW = self.QROW
        for dg in range(5):
            a(f"ds_read_b64 v[{Q+2*dg}:{Q+2*dg+1}], v144 offset:{8*dg}")
        for kb in range(3):
            for dg in range(5):
                r = KR + 2*(5*kb + dg)
                if kb < 2: a(f"ds_read_b64 v[{r}:{r+1}], v145 offset:{8*QROW*kb + 8*dg}")
                else: a(f"ds_read_b64 v[{r}:{r+1}], v146 offset:{8*dg}")
        scale = (D // 32) ** -0.5
        c1 = scale * 1.4426950408889634
        a(f"s_mov_b32 s{S_T2}, {hex(f2u(c1))}")
        a("s_waitcnt lgkmcnt(0)")
        for kb in range(3):
            for dg in range(5):
                r = VR + 2*(5*kb + dg)
                if kb < 2: a(f"ds_read_b64_tr_b16 v[{r}:{r+1}], v147 offset:{8*QROW*kb + 8*dg}")
                else: a(f"ds_read_b64_tr_b16 v[{r}:{r+1}], v119 offset:{8*dg}")
        for dg in range(5):
            for kb in range(3):
                r = KR + 2*(5*kb + dg); sc = SC + 4*kb
                c = "0" if dg == 0 else f"v[{sc}:{sc+3}]"
                a(f"v_mfma_f32_4x4x4_16b_bf16 v[{sc}:{sc+3}], v[{r}:{r+1}], v[{Q+2*dg}:{Q+2*dg+1}], {c}")
        a("s_nop 4")
        for m in range(12):
            a(f"v_fma_f32 v{SC+m}, v{SC+m}, s{S_T2}, v{BIAS+m}")
        a(f"v_max3_f32 v14, v{SC}, v{SC+1}, v{SC+2}")
        a(f"v_max3_f32 v15, v{SC+3}, v{SC+4}, v{SC+5}")
        a(f"v_max3_f32 v14, v14, v{SC+6}, v{SC+7}")
        a(f"v_max3_f32 v15, v15, v{SC+8}, v{SC+9}")
        a(f"v_max3_f32 v14, v14, v{SC+10}, v{SC+11}")
        a("v_max_f32 v14, v14, v15")
        for m in range(12):
            a(f"v_sub_f32 v{SC+m}, v{SC+m}, v14")
        for m in range(12):
            a(f"v_exp_f32 v{SC+m}, v{SC+m}")
        a(f"v_add_f32 v14, v{SC}, v{SC+1}")
        a(f"v_add_f32 v15, v{SC+2}, v{SC+3}")
        for m in range(4, 12, 2):
            a(f"v_add_f32 v14, v14, v{SC+m}")
            a(f"v_add_f32 v15, v15, v{SC+m+1}")
        a("v_add_f32 v14, v14, v15")
        a("v_rcp_f32 v14, v14")
        a("s_nop 0")
        for m in range(12):
            a(f"v_mul_f32 v{SC+m}, v{SC+m}, v14")
        for m in range(0, 12, 2):
            a(f"v_cvt_pk_bf16_f32 v{PB+m//2}, v{SC+m}, v{SC+m+1}")
        a("s_waitcnt lgkmcnt(0)")
        a("s_nop 0")
        OA = 32
        for kb in range(3):
            for dg in range(5):
                r = VR + 2*(5*kb + dg); o = OA + 4*dg
                c = "0" if kb == 0 else f"v[{o}:{o+3}]"
                a(f"v_mfma_f32_4x4x4_16b_bf16 v[{o}:{o+3}], v[{r}:{r+1}], v[{PB+2*kb}:{PB+2*kb+1}], {c}")
        a("s_nop 5")
        for dg in range(5):
            o = OA + 4*dg
            a(f"v_cvt_pk_bf16_f32 v{Q+2*dg}, v{o}, v{o+1}")
            a(f"v_cvt_pk_bf16_f32 v{Q+2*dg+1}, v{o+2}, v{o+3}")
            a(f"ds_write_b64 v118, v[{Q+2*dg}:{Q+2*dg+1}] offset:{8*dg}")
        a("s_waitcnt lgkmcnt(0)")
        a("s_barrier")
        self.o_stores(a)
        self.set_fidx(a)
    def consumer_setup(self, a):
        cons_lane(a)
        x_addr_const(a, self.vXc, None)
        a("v_lshrrev_b32 v5, 2, v3        ; r")
        a("v_lshl_add_u32 v5, v4, 3, v5   ; 8g + r")
        a("v_mul_u32_u24 v5, 160, v5")
        a("v_and_b32 v6, 3, v3")
        a("v_lshl_add_u32 v5, v6, 3, v5")
        for j in range(4):
            a(f"s_lshl_b32 s{S_T0}, s{S_WAVE}, 2")
            a(f"s_add_u32 s{S_T0}, s{S_T0}, {j}")
            a(f"s_min_u32 s{S_T0}, s{S_T0}, 14")
            divc(a, S_T1, S_T0, 5)
            a(f"s_mul_i32 s{S_T2}, s{S_T1}, 5")
            a(f"s_sub_u32 s{S_T2}, s{S_T0}, s{S_T2}       ; f%5")
            a(f"s_lshl_b32 s{S_T2}, s{S_T2}, 5")
            a(f"s_mul_i32 s{S_T3}, s{S_T1}, 10240")
            a(f"s_add_u32 s{S_T3}, s{S_T3}, s{S_T2}")
            a(f"s_add_u32 s{S_T3}, s{S_T3}, {self.ABYTES}")
            a(f"v_add_u32 v{self.vWc[j]}, s{S_T3}, v5")
            a(f"s_mul_i32 s{S_T3}, s{S_T1}, 160")
            a(f"s_add_u32 s{S_T3}, s{S_T3}, s{S_T2}")
            a(f"s_add_u32 s{S_T3}, s{S_T3}, {self.QT}")
            a(f"v_mul_u32_u24 v6, {self.QROW}, v3")
            a("v_lshl_add_u32 v6, v4, 3, v6")
            a(f"v_add_u32 v{20+j}, s{S_T3}, v6")
        for r in range(4): a(f"v_mov_b32 v{self.VONES+r}, {hex(ONES)}")
        for r in range(40): a(f"v_mov_b32 v{self.GRAM+r}, 0")
        a("v_lshlrev_b32 v25, 3, v3")
        a(f"v_add_u32 v25, {self.LDS_STP}, v25")
        a(f"s_mul_i32 s{S_T0}, s{S_WAVE}, 640")
        a(f"v_add_u32 v24, s{S_T0}, v25")
        a(f"s_mov_b32 s{S_N1}, 0")
        self.store_addr_setup_c(a)
        NW = 4
        self.wlist = [(self.vW[j], 0) for j in range(4)]
        self.wstep = (5120, 640)
    def store_addr_setup_c(self, a):
        self.store_addr_setup(a, regs=(26, 27, 28, 29), tmp=5)
    def addr_update(self):
        r = [f"v_add_u32 v{self.vXa}, s{S_SLOT}, v{self.vXc}"]
        r += [f"v_add_u32 v{self.vW[j]}, s{S_SLOT}, v{self.vWc[j]}" for j in range(4)]
        r += [f"v_xor_b32 v{self.vXb}, 64, v{self.vXa}"]
        return r
    def stats_mfmas(self, xregs):
        m = []
        for x in range(5):
            xa = xregs[x]
            g = self.GRAM + 4*x; sm = self.SUMA + 4*x
            m.append(f"v_mfma_f32_16x16x32_bf16 v[{g}:{g+3}], {xa}, {xa}, v[{g}:{g+3}]")
            m.append(f"v_mfma_f32_16x16x32_bf16 v[{sm}:{sm+3}], v[{self.VONES}:{self.VONES+3}], {xa}, v[{sm}:{sm+3}]")
        return m
    def epilogue(self, a):
        for i_, m_ in enumerate((0x22222222, 0x44444444, 0x88888888)):
            a(f"s_mov_b32 s{80+2*i_}, {hex(m_)}"); a(f"s_mov_b32 s{81+2*i_}, {hex(m_)}")
        for x in range(5):
            g = self.GRAM + 4*x
            a(f"v_cndmask_b32 v{g+1}, v{g}, v{g+1}, s[80:81]")
            a(f"v_cndmask_b32 v{g+1}, v{g+1}, v{g+2}, s[82:83]")
            a(f"v_cndmask_b32 v{g+1}, v{g+1}, v{g+3}, s[84:85]")
            a(f"v_mov_b32 v{g}, v{self.SUMA+4*x}")
        set_exec(a, 0xF | (0xF << 20) | (0xF << 40) | (0xF << 60))
        for x in range(5):
            g = self.GRAM + 4*x
            a(f"ds_write_b64 v24, v[{g}:{g+1}] offset:{128*x}")
        a("s_mov_b64 exec, -1")
        CS = 132
        for j in range(4):
            acc = self.ACC + 4*(4*4 + j)
            for r in range(4):
                a(f"v_mov_b32_dpp v{CS+4*j+r}, v{acc+r} row_newbcast:15 row_mask:0xf bank_mask:0xf")
        a("s_waitcnt lgkmcnt(0)")
        a("s_barrier      ; E1")
        ST = 8
        TM = 112
        for x in range(5):
            for wv in range(4):
                if x < 5:
                    pass
        for x in range(5):
            base = TM + 4*x if False else None
        regs = {0: 112, 1: 120, 2: 112, 3: 120, 4: 112}
        def rd(x):
            for wv in range(4):
                r = regs[x] + 2*wv
                a(f"ds_read_b64 v[{r}:{r+1}], v25 offset:{640*wv + 128*x}")
        def fin(x):
            r = regs[x]; st = ST + 2*x
            a(f"v_pk_add_f32 v[{r}:{r+1}], v[{r}:{r+1}], v[{r+2}:{r+3}]")
            a(f"v_pk_add_f32 v[{r+4}:{r+5}], v[{r+4}:{r+5}], v[{r+6}:{r+7}]")
            a(f"v_pk_add_f32 v[{st}:{st+1}], v[{r}:{r+1}], v[{r+4}:{r+5}]")
            a(f"v_mul_f32 v{st}, {hex(f2u(1.0/D))}, v{st}")
            a(f"v_mul_f32 v{st+1}, {hex(f2u(1.0/D))}, v{st+1}")
            a(f"v_fma_f32 v{st+1}, -v{st}, v{st}, v{st+1}")
            a(f"v_add_f32 v{st+1}, {hex(f2u(1e-5))}, v{st+1}")
            a(f"v_rsq_f32 v{st+1}, v{st+1}")
        rd(0); rd(1)
        a("s_waitcnt lgkmcnt(4)"); fin(0); rd(2)
        a("s_waitcnt lgkmcnt(4)"); fin(1); rd(3)
        a("s_waitcnt lgkmcnt(4)"); fin(2); rd(4)
        a("s_waitcnt lgkmcnt(4)"); fin(3)
        a("s_waitcnt lgkmcnt(0)"); fin(4)
        a("s_nop 0")
        for x in range(5):
            st = ST + 2*x
            for j in range(4):
                acc = self.ACC + 4*(4*x + j)
                for hh in (0, 2):
                    a(f"v_pk_fma_f32 v[{acc+hh}:{acc+hh+1}], v[{CS+4*j+hh}:{CS+4*j+hh+1}], v[{st}:{st+1}], v[{acc+hh}:{acc+hh+1}] op_sel_hi:[1,0,1] neg_lo:[0,1,0] neg_hi:[0,1,0]")
                for hh in (0, 2):
                    a(f"v_pk_mul_f32 v[{acc+hh}:{acc+hh+1}], v[{acc+hh}:{acc+hh+1}], v[{st}:{st+1}] op_sel:[0,1] op_sel_hi:[1,1]")
                a(f"v_cvt_pk_bf16_f32 v{acc}, v{acc}, v{acc+1}")
                a(f"v_cvt_pk_bf16_f32 v{acc+1}, v{acc+2}, v{acc+3}")
                a(f"ds_write_b64 v{20+j}, v[{acc}:{acc+1}] offset:{16*x*self.QROW}")
        a("s_waitcnt lgkmcnt(0)")
        a("s_barrier")
        a("s_barrier")
        a(f"ds_read_b128 v[32:35], v26")
        sk = a.new("ost")
        a(f"s_cmp_ge_u32 s{S_WAVE}, 2")
        a(f"s_cbranch_scc1 {sk}")
        a(f"ds_read_b128 v[36:39], v27")
        a("s_waitcnt lgkmcnt(0)")
        a(f"buffer_store_dwordx4 v[36:39], v29, s[{SRD_OUT}:{SRD_OUT+3}], 0 offen{OSC}")
        a.label(sk)
        a("s_waitcnt lgkmcnt(0)")
        a(f"buffer_store_dwordx4 v[32:35], v28, s[{SRD_OUT}:{SRD_OUT+3}], 0 offen{OSC}")
    stream_epi = True

class P24(Phase):
    kind = "rm"; NT = 250
    MV = 82; NC = 64; ldb = 1280; ldo = 1280
    ABYTES = 12288; STAGE = 20480; NS = 7
    NXMAX = 3; RPM = 2
    modeS = True; NACC = 24
    def fragW(self, buf, kk, wi): return ('a', 40*buf + 8*kk + 4*wi)
    def fragX(self, buf, kk, xi): return ('a', 40*buf + 16 + 12*kk + 4*xi)
    scA = SC1
    panel_coloff = [0]; panel_srd = [SRD_B0]
    TBASE = 0
    Ains = [None, None, 'skip']
    Bins = [(0, 0), (0, 4)]
    prefetchB = 7
    def __init__(self, which):
        self.which = which
        if which == 2:
            self.key = 'p2'; self.lda = 1024 if FUSE else 1280; self.S = 10; self.rot = (4, 13, 2)
            self.oprime = FUSE
        else:
            self.key = 'p4'; self.lda = 3456; self.S = 27; self.rot = (11, 36, 2)
        assert (self.S - 1) % self.NS != 0
        self.vXc, self.vWc = 8, 9
        self.vXa, self.vXb = 10, 11
        self.vW = [12, 13]
        self.xlist = [(self.vXa, self.vXb, 2048*x) for x in range(3)]
        self.wlist = [(self.vW[f], self.ABYTES) for f in range(2)]
        self.ACC = 32
        self.mf = [(x, f, self.ACC + 4*(2*x + f)) for x in range(3) for f in range(2)]
    def l2_prep(self, a):
        if self.which == 2: l2_setup(a, "p3", 243, 64, KA_WU, D*F*2, 3456, D)
    @property
    def gate(self): return GATE4 if (GATE and self.which == 4) else None
    def mid_prefetch(self, a, s):
        if self.which == 2 and s == 8: return l2_issue(a, KA_WU, 3456, D)
    def mask_setup(self, a):
        a(f"s_cmp_lt_u32 s{S_W}, 2")
        a(f"s_cselect_b32 s{S_MASK}, -1, 0xffff")
        a(f"s_cselect_b32 s{S_MASK+1}, -1, 0")
        a(f"s_cmp_eq_u32 s{S_W}, 3")
        a(f"s_cselect_b32 s{S_MASK}, 0, s{S_MASK}")
    def build_srds(self, a, role):
        if self.which == 2:
            if role == 'l':
                srd(a, SRD_A, ptr(KA_WS), WS_O, 0x280000 if FUSE else S_TOK*D*2)
                srd(a, SRD_B0, ptr(KA_WO), 0, D*D*2)
            srd(a, SRD_OUT, ptr(KA_WS), WS_H, S_TOK*D*2)
            srd(a, SRD_AUX, ptr(KA_X), 0, S_TOK*D*2)
            srd(a, SRD_ST, ptr(KA_WS), WS_ST, 250*1536)
        else:
            if role == 'l':
                srd(a, SRD_A, ptr(KA_WS), WS_HH, S_TOK*F*2)
                srd(a, SRD_B0, ptr(KA_WD), 0, F*D*2)
            srd(a, SRD_OUT, ptr(KA_OUT), 0, S_TOK*D*2)
            srd(a, SRD_AUX, ptr(KA_WS), WS_H, S_TOK*D*2)
    def dep_range(self, a):
        if self.which == 2:
            sh = 6 if FUSE else 4
            a(f"s_lshr_b32 s{S_T0}, s{S_R0}, {sh}")
            a(f"s_sub_u32 s{S_T1}, s{S_REND}, 1")
            a(f"s_lshr_b32 s{S_T1}, s{S_T1}, {sh}")
        else:
            sdiv(a, S_T0, S_R0, 228, 2100)
            a(f"s_sub_u32 s{S_T1}, s{S_REND}, 1")
            sdiv(a, S_T1, S_T1, 228, 2100)
    def deps_first(self, a):
        first_ks(a, self)
        if self.which == 2 and FUSE:
            for src, dst in ((S_K, S_T2), (S_KB, S_T3)):
                a(f"s_lshl_b32 s{dst}, 1, s{src}")
                a(f"s_sub_u32 s{S_T4}, s{src}, 8")
                a(f"s_lshl_b32 s{S_T4}, s{S_T4}, 2")
                a(f"s_lshl_b32 s{S_T4}, 15, s{S_T4}")
                a(f"s_cmp_ge_u32 s{src}, 8")
                a(f"s_cselect_b32 s{dst}, s{S_T4}, s{dst}")
            a(f"s_or_b32 s{S_T2}, s{S_T2}, s{S_T3}")
            self.dep_range(a)
            skip = a.new("pollskip")
            a(f"s_cmp_eq_u32 s{S_WAVE}, 0")
            a(f"s_cbranch_scc0 {skip}")
            a("v_and_b32 v141, 7, v2                 ; group j")
            a(f"v_lshrrev_b32 v142, v141, s{S_T2}") if False else None
            a(f"v_mov_b32 v142, s{S_T2}")
            a("v_lshrrev_b32 v142, v141, v142")
            a("v_and_b32 v142, 1, v142")
            a("v_lshrrev_b32 v140, 3, v2")
            a(f"v_add_u32 v140, s{S_T0}, v140")
            a(f"v_cmp_ge_u32 vcc, s{S_T1}, v140")
            a("v_cmp_eq_u32 s[82:83], 1, v142")
            a("v_lshl_add_u32 v140, v140, 3, v141")
            a("v_lshlrev_b32 v140, 7, v140")
            a("v_add_u32 v140, 0x8000, v140")
            a("s_and_b64 vcc, vcc, s[82:83]")
            poll_core(a)
            a.label(skip)
            return
        if self.which == 2:
            for r in (S_K, S_KB):
                a(f"s_cmp_ge_u32 s{r}, 5")
                a(f"s_cselect_b32 s{r}, 1, 0")
        self.dep_range(a)
        if self.gate: poll_first_g(a, S_T0, S_T1, 27, S_K, self.S, self.gate[0], 0x18000)
        else: poll_first(a, S_T0, S_T1, 2 if self.which == 2 else 27, S_K, S_KB, 0x8000 if self.which == 2 else 0x18000)
    def deps(self, a, wave=0):
        W = (8 if FUSE else 2) if self.which == 2 else 27
        self.dep_range(a)
        a(f"s_mul_i32 s{S_T0}, s{S_T0}, {W}")
        a(f"s_add_u32 s{S_T1}, s{S_T1}, 1")
        a(f"s_mul_i32 s{S_T1}, s{S_T1}, {W}")
        poll(a, S_T0, S_T1, 0x8000 if self.which == 2 else 0x18000, wave)
    def set_fidx(self, a):
        if self.which == 2:
            a(f"s_mul_i32 s{S_FIDX}, s{S_RT}, 10")
            a(f"s_add_u32 s{S_FIDX}, s{S_FIDX}, s{S_CT}")
            a(f"s_lshl_b32 s{S_FIDX}, s{S_FIDX}, 7")
            a(f"s_add_u32 s{S_FIDX}, s{S_FIDX}, 0x10000")
        else:
            a(f"s_mov_b32 s{S_FIDX}, -1")
    def loader_post_first(self, a):
        pad_init(a, self, 82, 14, None)
        return 0
    def consumer_setup(self, a):
        cons_lane(a)
        a(f"s_lshr_b32 s{S_I}, s{S_WAVE}, 1")
        a(f"s_and_b32 s{S_J}, s{S_WAVE}, 1")
        a(f"s_mul_i32 s{S_T1}, s{S_I}, 48")
        x_addr_const(a, self.vXc, S_T1)
        w_addr_const(a, self.vWc)
        a(f"s_lshl_b32 s{S_T0}, s{S_J}, 6      ; f0 = 2j -> xor 64j")
        a(f"v_xor_b32 v{self.vWc}, s{S_T0}, v{self.vWc}")
        t_write_addr(a, 17, self.TBASE)
        a(f"s_mul_i32 s{S_T0}, s{S_I}, {48*128}")
        a(f"v_add_u32 v17, s{S_T0}, v17")
        a(f"s_lshl_b32 s{S_T0}, s{S_J}, 6")
        a(f"v_xor_b32 v17, s{S_T0}, v17        ; f0 = 2j")
        a(f"v_xor_b32 v18, 32, v17")
    def addr_update(self):
        return P1.addr_update(self)
    def epilogue(self, a):
        for x in range(3):
            for f in range(2):
                acc = self.ACC + 4*(2*x + f)
                a(f"v_cvt_pk_bf16_f32 v{acc}, v{acc}, v{acc+1}")
                a(f"v_cvt_pk_bf16_f32 v{acc+1}, v{acc+2}, v{acc+3}")
                a(f"ds_write_b64 v{17+f}, v[{acc}:{acc+1}] offset:{2048*x}")
    RES = 100
    early_pre = True
    def early_setup(self, a):
        a("v_lshrrev_b32 v112, 3, v2")
        a("v_and_b32 v113, 7, v2")
        a("v_xor_b32 v108, v113, v112")
        a("v_lshlrev_b32 v108, 4, v108")
        a("v_lshl_add_u32 v108, v112, 7, v108")
        a(f"s_lshl_b32 s{S_T0}, s{S_WAVE}, 10")
        a(f"s_add_u32 s{S_T0}, s{S_T0}, {self.TBASE}")
        a(f"v_add_u32 v108, s{S_T0}, v108")
        a(f"s_lshl_b32 s{S_T0}, s{S_WAVE}, 3")
        a(f"s_add_u32 s{S_T0}, s{S_T0}, s{S_R0}")
        a(f"v_add_u32 v111, s{S_T0}, v112")
        a("v_mul_u32_u24 v109, 1280, v111")
        a(f"s_lshl_b32 s{S_T0}, s{S_C0}, 1")
        a("v_lshl_add_u32 v109, v113, 4, v109")
        a(f"v_add_u32 v109, s{S_T0}, v109")
        a(f"v_add_u32 v110, {64*1280}, v109")
        a("v_mov_b32 v114, 0x80000000")
        a(f"v_cmp_gt_u32 vcc, s{S_REND}, v111")
        a(f"v_add_u32 v115, 64, v111")
        a("s_nop 0")
        a("v_cndmask_b32 v109, v114, v109, vcc")
        a(f"v_cmp_gt_u32 vcc, s{S_REND}, v115")
        a("s_nop 1")
        a("v_cndmask_b32 v110, v114, v110, vcc")
        sc = SC1 if self.which == 4 else ""
        a(f"buffer_load_dwordx4 v[{self.RES}:{self.RES+3}], v109, s[{SRD_AUX}:{SRD_AUX+3}], 0 offen{sc}")
        a(f"buffer_load_dwordx4 v[{self.RES+4}:{self.RES+7}], v110, s[{SRD_AUX}:{SRD_AUX+3}], 0 offen{sc}")
        return 2
    def store_fast(self, a):
        sdone = a.new("sdone")
        sc = SC1 if self.which == 2 else OUTSC
        for k in range(2):
            a(f"ds_read_b128 v[{16+4*k}:{19+4*k}], v108 offset:{k*8192}")
        if self.which == 2:
            a(f"v_mov_b32 v26, {hex(ONES)}")
        a(f"s_waitcnt vmcnt(0) lgkmcnt(0)")
        for k in range(2):
            if k == 1:
                a(f"s_cmp_ge_u32 s{S_WAVE}, 3")
                a(f"s_cbranch_scc1 {sdone}")
            T = 16 + 4*k; R = self.RES + 4*k
            for d in range(4):
                a(f"v_lshlrev_b32 v28, 16, v{T+d}")
                a(f"v_and_b32 v29, 0xffff0000, v{T+d}")
                a(f"v_lshlrev_b32 v30, 16, v{R+d}")
                a(f"v_and_b32 v31, 0xffff0000, v{R+d}")
                a(f"v_pk_add_f32 v[28:29], v[28:29], v[30:31]")
                a(f"v_cvt_pk_bf16_f32 v{T+d}, v28, v29")
            a(f"buffer_store_dwordx4 v[{T}:{T+3}], v{109+k}, s[{SRD_OUT}:{SRD_OUT+3}], 0 offen{sc}")
            if self.which == 2:
                a("v_mov_b32 v24, 0"); a("v_mov_b32 v25, 0")
                a("s_nop 0")
                for d in range(4):
                    a(f"v_dot2_f32_bf16 v24, v{T+d}, v26, v24")
                    a(f"v_dot2_f32_bf16 v25, v{T+d}, v{T+d}, v25")
                a("s_nop 2")
                for dpp in ("quad_perm:[1,0,3,2]", "quad_perm:[2,3,0,1]", "row_half_mirror"):
                    a(f"v_add_f32_dpp v24, v24, v24 {dpp} row_mask:0xf bank_mask:0xf")
                    a(f"v_add_f32_dpp v25, v25, v25 {dpp} row_mask:0xf bank_mask:0xf")
                    a("s_nop 0")
                a(f"s_mul_i32 s{S_T0}, s{S_RT}, 10")
                a(f"s_add_u32 s{S_T0}, s{S_T0}, s{S_CT}")
                a(f"s_mul_i32 s{S_T0}, s{S_T0}, 1536")
                a(f"s_lshl_b32 s{S_T1}, s{S_WAVE}, 7")
                a(f"s_add_u32 s{S_T0}, s{S_T0}, s{S_T1}")
                a(f"v_lshrrev_b32 v9, 3, v2")
                a(f"v_lshlrev_b32 v9, 4, v9")
                a(f"v_add_u32 v9, s{S_T0}, v9")
                a("v_mov_b32 v12, v24"); a("v_mov_b32 v13, v25"); a("v_mov_b32 v14, 0"); a("v_mov_b32 v15, 0")
                set_exec(a, 0x0101010101010101)
                a(f"buffer_store_dwordx4 v[12:15], v9, s[{SRD_ST}:{SRD_ST+3}], 0 offen offset:{1024*k}{SC1}")
                a("s_mov_b64 exec, -1")
        a.label(sdone)

class P3(Phase):
    key = 'p3'; kind = "p3"; NT = 243
    MV = 228; NC = 64; lda = 1280; ldb = 3456; ldo = 3456
    ABYTES = 30720; STAGE = 47104; NS = 3; S = 10
    NXMAX = 8; RPM = 1
    has_e1 = True
    scA = SC1
    panel_coloff = [0, 0]; panel_srd = [SRD_B0, SRD_B1]
    LDS_ST = 47104*3; LDS_CS = 47104*3 + 1920
    TBASE = 47104
    rot = (4, 13, 2)
    Ains = [None]*7 + ['skip']
    Bins = [(0, 0), (0, 4), (1, 0), (1, 4)]
    prefetchB = 3
    def __init__(self):
        self.vXc, self.vXsc, self.vWc = 8, 9, 10
        self.vXa, self.vXb, self.vXsa, self.vXsb = 11, 12, 13, 14
        self.vW = [15, 16]
        self.xlist = [(self.vXa, self.vXb, 2048*x) for x in range(7)] + [(self.vXsa, self.vXsb, 0)]
        G, U = self.ABYTES, self.ABYTES + 8192
        self.wlist = [(self.vW[0], G), (self.vW[0], U), (self.vW[1], G), (self.vW[1], U)]
        self.ACC = 32
        self.mf = []
        acc = self.ACC
        self.accmap = {}
        for x in range(8):
            for wi in range(4):
                if x == 7 and wi >= 2: continue
                self.mf.append((x, wi, acc)); self.accmap[(x, wi)] = acc; acc += 4
        assert acc == 32 + 120
    @property
    def unroll(self): return l2_on(KA_WD)
    def l2_prep(self, a): l2_setup(a, "rm", 250, 64, KA_WD, F*D*2, 1280, F)
    def mid_prefetch(self, a, s):
        if s == 3: return l2_issue(a, KA_WD, 1280, F, 0, 9)
        if s == 6: return l2_issue(a, KA_WD, 1280, F, 9, None)
        if s == 9: return self.stats_loads(a)
    def mask_setup(self, a):
        a(f"s_cmp_eq_u32 s{S_W}, 0")
        a(f"s_cselect_b32 s{S_MASK}, -1, 0")
        a(f"s_mov_b32 s{S_MASK+1}, 0")
    def build_srds(self, a, role):
        if role == 'l':
            srd(a, SRD_A, ptr(KA_WS), WS_H, S_TOK*D*2)
            srd(a, SRD_B0, ptr(KA_WG), 0, D*F*2)
            srd(a, SRD_B1, ptr(KA_WU), 0, D*F*2)
            srd(a, SRD_ST, ptr(KA_WS), WS_ST, 250*1536)
        srd(a, SRD_OUT, ptr(KA_WS), WS_HH, S_TOK*F*2)
    def dep_range(self, a):
        sdiv(a, S_T0, S_R0, 82, 2100)
        a(f"s_sub_u32 s{S_T1}, s{S_REND}, 1")
        sdiv(a, S_T1, S_T1, 82, 2100)
    @property
    def gate(self): return (3, 2) if GATE else None
    def deps_first(self, a):
        first_ks(a, self)
        self.dep_range(a)
        if self.gate: poll_first_g(a, S_T0, S_T1, 10, S_K, self.S, self.gate[0], 0x10000)
        else: poll_first(a, S_T0, S_T1, 10, S_K, S_KB, 0x10000)
    def deps(self, a, wave=0):
        self.dep_range(a)
        a(f"s_mul_i32 s{S_T0}, s{S_T0}, 10")
        a(f"s_add_u32 s{S_T1}, s{S_T1}, 1")
        a(f"s_mul_i32 s{S_T1}, s{S_T1}, 10")
        poll(a, S_T0, S_T1, 0x10000, wave)
    def set_fidx(self, a):
        a(f"s_mul_i32 s{S_FIDX}, s{S_RT}, 27")
        a(f"s_add_u32 s{S_FIDX}, s{S_FIDX}, s{S_CT}")
        a(f"s_lshl_b32 s{S_FIDX}, s{S_FIDX}, 7")
        a(f"s_add_u32 s{S_FIDX}, s{S_FIDX}, 0x18000")
    def loader_post_first(self, a):
        pad_init(a, self, 228, 11, 239)
        return 0
    def stats_loads(self, a):
        a(f"s_lshl_b32 s{S_T0}, s{S_W}, 6")
        a(f"v_add_u32 v12, s{S_T0}, v2")
        a(f"v_add_u32 v13, s{S_R0}, v12")
        vdiv(a, 15, 13, 82, 2300)
        a("v_mul_u32_u24 v16, 82, v15")
        a("v_sub_u32 v16, v13, v16")
        a("v_mul_u32_u24 v15, 15360, v15")
        a("v_lshl_add_u32 v13, v16, 4, v15")
        a(f"v_add_u32 v15, s{S_R0}, v12")
        a(f"v_cmp_gt_u32 vcc, s{S_REND}, v15")
        a("v_mov_b32 v14, 0x80000000")
        a("s_nop 0")
        a("v_cndmask_b32 v13, v14, v13, vcc")
        for c in range(10):
            a(f"s_mov_b32 s{S_T0}, {c*1536}")
            a(f"buffer_load_dwordx2 v[{64+2*c}:{65+2*c}], v13, s[{SRD_ST}:{SRD_ST+3}], s{S_T0} offen{SC1}")
        return 10
    def loader_final(self, a):
        a("s_waitcnt vmcnt(0)")
        for c in range(1, 10):
            a(f"v_pk_add_f32 v[64:65], v[64:65], v[{64+2*c}:{65+2*c}]")
        a(f"v_mul_f32 v64, {hex(f2u(1.0/D))}, v64")
        a(f"v_mul_f32 v65, {hex(f2u(1.0/D))}, v65")
        a("v_fma_f32 v65, -v64, v64, v65")
        a(f"v_add_f32 v65, {hex(f2u(1e-5))}, v65")
        a("v_rsq_f32 v65, v65")
        a("v_lshlrev_b32 v12, 3, v12")
        a(f"v_add_u32 v12, {self.LDS_ST}, v12")
        a(f"s_cmp_eq_u32 s{S_W}, 3")
        a(f"s_cselect_b32 exec_hi, 0xffff, -1")
        a("ds_write_b64 v12, v[64:65]")
        a("s_mov_b64 exec, -1")
    def consumer_setup(self, a):
        cons_lane(a)
        a(f"s_lshr_b32 s{S_I}, s{S_WAVE}, 1")
        a(f"s_and_b32 s{S_J}, s{S_WAVE}, 1")
        a(f"s_lshl_b32 s{S_T1}, s{S_I}, 7")
        x_addr_const(a, self.vXc, S_T1)
        x_addr_const(a, self.vXsc, None, 112)
        w_addr_const(a, self.vWc)
        a(f"s_lshl_b32 s{S_T0}, s{S_J}, 1")
        a(f"s_add_u32 s{S_T0}, s{S_T0}, s{S_I}")
        a(f"s_lshl_b32 s{S_T0}, s{S_T0}, 5")
        a(f"v_xor_b32 v{self.vWc}, s{S_T0}, v{self.vWc}")
        a(f"s_lshl_b32 s{S_T0}, s{S_J}, 1")
        a(f"s_add_u32 s{S_T2}, s{S_T0}, s{S_I}     ; f0")
        a(f"s_lshl_b32 s{S_T0}, s{S_T2}, 6")
        a(f"v_lshlrev_b32 v24, 4, v4")
        a(f"v_add_u32 v24, s{S_T0}, v24")
        a(f"v_add_u32 v24, {self.LDS_CS}, v24")
        a(f"v_xor_b32 v25, 64, v24")
        t_write_addr(a, 26, self.TBASE)
        a(f"s_lshl_b32 s{S_T0}, s{S_T2}, 5")
        a(f"v_xor_b32 v26, s{S_T0}, v26")
        a(f"v_add_u32 v28, {112*128}, v26")
        a(f"s_lshl_b32 s{S_T0}, s{S_I}, 14")
        a(f"v_add_u32 v26, s{S_T0}, v26")
        a(f"v_xor_b32 v27, 32, v26")
        a(f"s_lshl_b32 s{S_T0}, s{S_I}, 10         ; 128*i*8")
        a(f"v_lshlrev_b32 v29, 3, v3")
        a(f"v_add_u32 v30, {self.LDS_ST + 112*8}, v29")
        a(f"v_add_u32 v29, s{S_T0}, v29")
        a(f"v_add_u32 v29, {self.LDS_ST}, v29")
    def addr_update(self):
        return [f"v_add_u32 v{self.vXa}, s{S_SLOT}, v{self.vXc}",
                f"v_add_u32 v{self.vW[0]}, s{S_SLOT}, v{self.vWc}",
                f"v_add_u32 v{self.vXsa}, s{S_SLOT}, v{self.vXsc}",
                f"v_xor_b32 v{self.vXb}, 64, v{self.vXa}",
                f"v_xor_b32 v{self.vW[1]}, 32, v{self.vW[0]}",
                f"v_xor_b32 v{self.vXsb}, 64, v{self.vXsa}"]
    chunk_epi = True
    def epilogue(self, a):
        nocs = a.new("nocs")
        assert self.LDS_CS % 128 == 0
        a(f"s_cmp_eq_u32 s{S_I}, 1")
        a(f"s_cbranch_scc0 {nocs}")
        set_exec(a, 0x8000800080008000)
        for wi, (areg, poff) in enumerate([(24, 0), (24, 256), (25, 0), (25, 256)]):
            acc = self.accmap[(6, wi)]
            a(f"ds_write_b128 v{areg}, v[{acc}:{acc+3}] offset:{poff}")
        a("s_mov_b64 exec, -1")
        a.label(nocs)
        a("s_waitcnt lgkmcnt(0)")
        a("s_barrier      ; E1")
        CSR = [8, 12, 152, 156]
        for wi, (areg, poff) in enumerate([(24, 0), (24, 256), (25, 0), (25, 256)]):
            a(f"ds_read_b128 v[{CSR[wi]}:{CSR[wi]+3}], v{areg} offset:{poff}")
        STR = [16, 18, 20, 22]
        def rdst(x):
            st = STR[x & 3]
            if x < 7: a(f"ds_read_b64 v[{st}:{st+1}], v29 offset:{128*x}")
            else: a(f"ds_read_b64 v[{st}:{st+1}], v30")
        for x in range(4): rdst(x)
        a("s_waitcnt lgkmcnt(0)")
        for x in range(8):
            st = STR[x & 3]
            npair = 1 if x == 7 else 2
            if x == 4:
                a("s_waitcnt lgkmcnt(0)")
                a("s_barrier      ; E2a")
            a(f"v_mul_f32 v{st+1}, v{st+1}, v{st+1}")
            for p in range(npair):
                g = self.accmap[(x, 2*p)]; u = self.accmap[(x, 2*p+1)]
                cg = CSR[2*p]; cu = CSR[2*p+1]
                for hh in (0, 2):
                    a(f"v_pk_fma_f32 v[{g+hh}:{g+hh+1}], v[{cg+hh}:{cg+hh+1}], v[{st}:{st+1}], v[{g+hh}:{g+hh+1}] op_sel_hi:[1,0,1] neg_lo:[0,1,0] neg_hi:[0,1,0]")
                    a(f"v_pk_fma_f32 v[{u+hh}:{u+hh+1}], v[{cu+hh}:{cu+hh+1}], v[{st}:{st+1}], v[{u+hh}:{u+hh+1}] op_sel_hi:[1,0,1] neg_lo:[0,1,0] neg_hi:[0,1,0]")
                for hh in (0, 2):
                    a(f"v_pk_mul_f32 v[{g+hh}:{g+hh+1}], v[{g+hh}:{g+hh+1}], v[{u+hh}:{u+hh+1}]")
                for hh in (0, 2):
                    a(f"v_pk_mul_f32 v[{g+hh}:{g+hh+1}], v[{g+hh}:{g+hh+1}], v[{st}:{st+1}] op_sel:[0,1] op_sel_hi:[1,1]")
                a(f"v_cvt_pk_bf16_f32 v{g}, v{g}, v{g+1}")
                a(f"v_cvt_pk_bf16_f32 v{g+1}, v{g+2}, v{g+3}")
                if x < 7: a(f"ds_write_b64 v{26+p}, v[{g}:{g+1}] offset:{2048*x}")
                else: a(f"ds_write_b64 v28, v[{g}:{g+1}]")
            if x < 4: rdst(x + 4)
        a("s_waitcnt lgkmcnt(0)")
        a("s_barrier      ; E2b")
    def loader_store_setup(self, a):
        a("v_lshrrev_b32 v3, 3, v2")
        a("v_and_b32 v4, 7, v2")
        a("v_xor_b32 v5, v4, v3")
        a("v_lshlrev_b32 v5, 4, v5")
        a("v_lshl_add_u32 v50, v3, 7, v5")
        a(f"s_lshl_b32 s{S_T0}, s{S_W}, 10")
        a(f"s_add_u32 s{S_T0}, s{S_T0}, {self.TBASE}")
        a(f"v_add_u32 v50, s{S_T0}, v50")
        a(f"s_lshl_b32 s{S_T0}, s{S_W}, 3")
        a(f"s_add_u32 s{S_T0}, s{S_T0}, s{S_R0}")
        a(f"v_add_u32 v51, s{S_T0}, v3")
        a(f"s_mov_b32 s{S_T1}, 3456")
        a(f"v_mul_lo_u32 v52, v51, s{S_T1}")
        a(f"s_lshl_b32 s{S_T0}, s{S_C0}, 1")
        a("v_lshl_add_u32 v52, v4, 4, v52")
        a(f"v_add_u32 v52, s{S_T0}, v52")
    def loader_stores(self, a, units):
        for n, u0 in enumerate(units):
            a(f"ds_read_b128 v[{56+4*n}:{59+4*n}], v50 offset:{u0*1024}")
        for n, u0 in enumerate(units):
            a(f"v_add_u32 v{53 if n & 1 else 54}, {u0*8*3456}, v52")
            special = (u0 + 3)*8 + 7 >= self.MV
            if special:
                a(f"v_add_u32 v55, {u0*8}, v51")
                a(f"s_add_u32 s{S_T0}, s{S_R0}, {self.MV}")
                a(f"v_cmp_gt_u32 vcc, s{S_T0}, v55")
                a(f"s_and_saveexec_b64 s[80:81], vcc")
            a(f"s_waitcnt lgkmcnt({len(units) - 1 - n})")
            a(f"buffer_store_dwordx4 v[{56+4*n}:{59+4*n}], v{53 if n & 1 else 54}, s[{SRD_OUT}:{SRD_OUT+3}], 0 offen{SC1}")
            if special: a("s_mov_b64 exec, s[80:81]")
    def loader_epilogue(self, a):
        a("s_barrier      ; E2a")
        self.loader_stores(a, [0, 4, 16, 20])
        a("s_barrier      ; E2b")
        self.loader_stores(a, [8, 12, 24, 28])

ROWB = 656
LQ, LK, LV, LO = 16384, 16384 + 16*ROWB, 16384 + 46*ROWB, 0
WPF = True
P1ROT = 'latin2'
ROTOFF = set()
WPF_OFF = {KA_WD}
def l2_on(kptr): return WPF and kptr not in WPF_OFF
def l2_setup(a, kind, NT, NC, kptr, nbytes, ldb, K):
    if not l2_on(kptr): return
    R3 = ((K + 2)//3 + 7)//8*8
    a(f"s_mov_b32 s4, s{S_RT}"); a(f"s_mov_b32 s5, s{S_CT}")
    tile_map(a, NT, kind)
    divc(a, S_T0, S_RT, 3)
    a(f"s_mul_i32 s{S_T0}, s{S_T0}, 3")
    a(f"s_sub_u32 s{S_T0}, s{S_RT}, s{S_T0}")
    a(f"s_mul_i32 s{S_T0}, s{S_T0}, {R3}")
    a(f"s_lshl_b32 s{S_T1}, s{S_W}, 3")
    a(f"s_add_u32 s{S_T0}, s{S_T0}, s{S_T1}")
    a("v_lshrrev_b32 v150, 3, v2")
    a(f"v_add_u32 v150, s{S_T0}, v150")
    a(f"s_mov_b32 s{S_T1}, {ldb}")
    a(f"v_mul_lo_u32 v150, v150, s{S_T1}")
    a("v_and_b32 v151, 7, v2")
    a("v_lshl_add_u32 v150, v151, 4, v150")
    a(f"s_mul_i32 s{S_T1}, s{S_CT}, {NC*2}")
    a(f"v_add_u32 v150, s{S_T1}, v150")
    a(f"s_cmp_eq_u32 s{S_VALID}, 0")
    a(f"s_cselect_b32 s{S_T1}, 0x80000000, 0")
    a(f"v_or_b32 v150, s{S_T1}, v150")
    srd(a, 80, ptr(kptr), 0, nbytes)
    a(f"s_mov_b32 s{S_RT}, s4"); a(f"s_mov_b32 s{S_CT}, s5")
def l2_issue(a, kptr, ldb, K, i0=0, i1=None):
    if not l2_on(kptr): return 0
    R3 = ((K + 2)//3 + 7)//8*8
    n = (R3//8 + 3)//4
    if i1 is None: i1 = n
    for i in range(i0, min(i1, n)):
        a(f"buffer_load_dwordx4 v[152:155], v150, s[80:83], 0 offen")
        if i + 1 < n: a(f"v_add_u32 v150, {32*ldb}, v150")
    return min(i1, n) - i0

def att_phase(a, role):
    a(f"s_lshl_b32 s{S_R0}, s{S_RT}, 4       ; T0")
    srd(a, SRD_A, ptr(KA_WS), WS_QKV, S_TOK*NQKV*2)
    srd(a, SRD_OUT, ptr(KA_WS), WS_O, S_TOK*D*2)
    NI = 49
    nper = (NI + 7)//8
    a(f"s_mov_b32 s{S_T2}, 3840")
    a(f"s_mul_i32 s{S_T3}, s{S_CT}, 640")
    for j in range(nper):
        r = 32 + j
        a(f"s_add_u32 s{S_T0}, s{S_WAVE}, {8*j}")
        a(f"s_lshl_b32 s{S_T0}, s{S_T0}, 6")
        a(f"v_add_u32 v3, s{S_T0}, v2           ; c")
        vdiv(a, 4, 3, 41, 64*56)
        a("v_mul_u32_u24 v5, 41, v4")
        a("v_sub_u32 v5, v3, v5                  ; kap")
        a("v_cmp_le_u32 vcc, 16, v4")
        a("v_mov_b32 v8, 0x80000000")
        a("s_nop 0")
        a("v_cndmask_b32 v6, 0, 1, vcc")
        a("v_cmp_le_u32 vcc, 46, v4")
        a("s_nop 1")
        a("v_cndmask_b32 v7, 0, 1, vcc")
        a("v_add_u32 v6, v6, v7                  ; seg")
        a("v_mul_u32_u24 v7, 30, v6")
        a("v_sub_u32 v7, v4, v7")
        a(f"v_add_u32 v7, s{S_R0}, v7            ; token")
        a(f"v_mul_lo_u32 v7, v7, s{S_T2}")
        a("v_mul_u32_u24 v6, 1280, v6")
        a("v_add_u32 v7, v7, v6")
        a("v_lshl_add_u32 v7, v5, 4, v7")
        a(f"v_add_u32 v7, s{S_T3}, v7")
        a("v_cmp_gt_u32 vcc, 40, v5")
        a("s_nop 1")
        a("v_cndmask_b32 v7, v8, v7, vcc")
        a("v_cmp_gt_u32 vcc, 76, v4")
        a("s_nop 1")
        a(f"v_cndmask_b32 v{r}, v8, v7, vcc")
    if role == 'c':
        a(f"s_lshr_b32 s{S_T0}, s{S_WAVE}, 1")
        a(f"s_lshl_b32 s{S_T0}, s{S_T0}, 3")
        a(f"s_and_b32 s{S_T1}, s{S_WAVE}, 1")
        a(f"s_add_u32 s{S_I}, s{S_T0}, s{S_T1}      ; rb")
        a("v_and_b32 v3, 3, v2             ; i")
        a("v_lshrrev_b32 v4, 2, v2         ; b")
        a("v_lshlrev_b32 v5, 1, v3")
        a(f"v_add_u32 v5, s{S_I}, v5        ; rb + 2i")
        a(f"v_mul_u32_u24 v5, {ROWB}, v5")
        a("v_mul_u32_u24 v6, 40, v4")
        a("v_add_u32 v5, v5, v6")
        a(f"v_add_u32 v144, {LQ}, v5")
        a(f"v_add_u32 v145, {LK}, v5")
        a("v_cmp_eq_u32 vcc, 3, v3")
        a(f"v_mov_b32 v7, {16*ROWB}")
        a(f"v_mov_b32 v8, {14*ROWB}")
        a("v_cndmask_b32 v7, v7, v8, vcc")
        a("v_add_u32 v146, v145, v7")
        a("v_bfe_u32 v9, v2, 2, 2            ; r")
        a("v_lshlrev_b32 v10, 1, v9")
        a(f"v_add_u32 v10, s{S_I}, v10")
        a(f"v_mul_u32_u24 v10, {ROWB}, v10")
        a("v_lshrrev_b32 v11, 4, v2")
        a("v_lshl_add_u32 v11, v11, 2, v3     ; 4G + c")
        a("v_mul_u32_u24 v11, 40, v11")
        a("v_add_u32 v10, v10, v11")
        a(f"v_add_u32 v147, {LV}, v10")
        a("v_cmp_eq_u32 vcc, 3, v9")
        a(f"v_mov_b32 v7, {16*ROWB}")
        a("s_nop 0")
        a("v_cndmask_b32 v7, v7, v8, vcc")
        a("v_add_u32 v119, v147, v7")
        a(f"v_mov_b32 v12, {hex(f2u(-1e30))}")
        a("v_mov_b32 v13, 0")
        a(f"s_add_u32 s{S_T2}, s{S_R0}, s{S_I}")
        a(f"s_sub_u32 s{S_T2}, s{S_T2}, 14        ; pos(0)")
        for m in range(12):
            a(f"v_sub_u32 v14, {m}, v3            ; m - i")
            a("v_cmp_gt_u32 vcc, 8, v14")
            a(f"s_add_u32 s{S_T0}, s{S_T2}, {2*m}")
            a(f"s_cmp_ge_i32 s{S_T0}, 0")
            a("s_cselect_b64 s[80:81], -1, 0")
            a("s_and_b64 vcc, vcc, s[80:81]")
            a(f"v_cndmask_b32 v{120+m}, v12, v13, vcc")
    for j in range(2):
        a(f"s_add_u32 s{S_T0}, s{S_WAVE}, {8*j}")
        a(f"s_lshl_b32 s{S_T0}, s{S_T0}, 6")
        a(f"v_add_u32 v3, s{S_T0}, v2")
        vdiv(a, 4, 3, 40, 1024)
        a("v_mul_u32_u24 v5, 40, v4")
        a("v_sub_u32 v5, v3, v5")
        a(f"v_mul_u32_u24 v6, {ROWB}, v4")
        a(f"v_lshl_add_u32 v{148+j}, v5, 4, v6")
        a(f"v_add_u32 v4, s{S_R0}, v4")
        a("v_mul_u32_u24 v4, 1280, v4")
        a("v_lshl_add_u32 v4, v5, 4, v4")
        a(f"v_add_u32 v{156+j}, s{S_T3}, v4")
    if role == 'c':
        a(f"s_sub_u32 s{S_T0}, s{S_R0}, 14")
        a(f"s_max_i32 s{S_T0}, s{S_T0}, 0")
        sdiv(a, S_T0, S_T0, 121, 2100)
        a(f"s_add_u32 s{S_T1}, s{S_R0}, 15")
        sdiv(a, S_T1, S_T1, 121, 2100)
        skp = a.new("attpoll")
        a(f"s_cmp_eq_u32 s{S_WAVE}, 0")
        a(f"s_cbranch_scc0 {skp}")
        vdiv(a, 140, 2, 9, 64)
        a("v_mul_u32_u24 v141, 9, v140")
        a("v_sub_u32 v141, v2, v141                  ; j = l%9")
        vdiv(a, 142, 141, 3, 16)
        a("v_mul_u32_u24 v143, 3, v142")
        a("v_sub_u32 v143, v141, v143                ; j%3")
        a("v_mul_u32_u24 v142, 5, v142")
        a("v_add_u32 v142, v142, v143")
        a(f"s_lshl_b32 s{S_T2}, s{S_CT}, 1")
        a(f"v_add_u32 v142, s{S_T2}, v142            ; ct")
        a(f"v_add_u32 v140, s{S_T0}, v140            ; rt")
        a(f"v_cmp_ge_u32 vcc, s{S_T1}, v140")
        a("v_mul_u32_u24 v140, 15, v140")
        a("v_add_u32 v140, v140, v142")
        a("v_lshlrev_b32 v140, 7, v140")
        poll_core(a)
        a.label(skp)
        a("s_barrier      ; B_dep")
    else:
        l2_setup(a, "p3", 243, 64, KA_WG, D*F*2, 3456, D)
        a("s_barrier      ; B_dep")
    stamp(a, 0)
    for j in range(nper):
        sk = None
        if 8*j + 7 >= NI:
            sk = a.new("attsk")
            a(f"s_cmp_ge_u32 s{S_WAVE}, {NI - 8*j}")
            a(f"s_cbranch_scc1 {sk}")
        a(f"s_add_u32 s{S_T0}, s{S_WAVE}, {8*j}")
        a(f"s_lshl_b32 s{S_T0}, s{S_T0}, 10")
        a(f"s_add_u32 m0, s{S_T0}, {LQ}")
        a("s_nop 0")
        a(f"buffer_load_dwordx4 v{32+j}, s[{SRD_A}:{SRD_A+3}], 0 offen{SC1} lds")
        if sk: a.label(sk)
    a("s_waitcnt vmcnt(0)")
    a("s_barrier")
    stamp(a, 1)
    if role == 'l': l2_issue(a, KA_WG, 3456, D)
    if role == 'c':
        Q = 16; KR = 32; VR = 62; SC = 92; BIAS = 120; PB = 104; O = 4
        for dg in range(5):
            a(f"ds_read_b64 v[{Q+2*dg}:{Q+2*dg+1}], v144 offset:{8*dg}")
        for kb in range(3):
            for dg in range(5):
                r = KR + 2*(5*kb + dg)
                if kb < 2: a(f"ds_read_b64 v[{r}:{r+1}], v145 offset:{8*ROWB*kb + 8*dg}")
                else: a(f"ds_read_b64 v[{r}:{r+1}], v146 offset:{8*dg}")
        scale = (D // 32) ** -0.5
        c1 = scale * 1.4426950408889634
        a(f"s_mov_b32 s{S_T2}, {hex(f2u(c1))}")
        a("s_waitcnt lgkmcnt(0)")
        for kb in range(3):
            for dg in range(5):
                r = VR + 2*(5*kb + dg)
                if kb < 2: a(f"ds_read_b64_tr_b16 v[{r}:{r+1}], v147 offset:{8*ROWB*kb + 8*dg}")
                else: a(f"ds_read_b64_tr_b16 v[{r}:{r+1}], v119 offset:{8*dg}")
        for dg in range(5):
            for kb in range(3):
                r = KR + 2*(5*kb + dg); sc = SC + 4*kb
                c = "0" if dg == 0 else f"v[{sc}:{sc+3}]"
                a(f"v_mfma_f32_4x4x4_16b_bf16 v[{sc}:{sc+3}], v[{r}:{r+1}], v[{Q+2*dg}:{Q+2*dg+1}], {c}")
        a("s_nop 4")
        for m in range(12):
            a(f"v_fma_f32 v{SC+m}, v{SC+m}, s{S_T2}, v{BIAS+m}")
        a(f"v_max3_f32 v14, v{SC}, v{SC+1}, v{SC+2}")
        a(f"v_max3_f32 v15, v{SC+3}, v{SC+4}, v{SC+5}")
        a(f"v_max3_f32 v14, v14, v{SC+6}, v{SC+7}")
        a(f"v_max3_f32 v15, v15, v{SC+8}, v{SC+9}")
        a(f"v_max3_f32 v14, v14, v{SC+10}, v{SC+11}")
        a("v_max_f32 v14, v14, v15")
        for m in range(12):
            a(f"v_sub_f32 v{SC+m}, v{SC+m}, v14")
        for m in range(12):
            a(f"v_exp_f32 v{SC+m}, v{SC+m}")
        a(f"v_add_f32 v14, v{SC}, v{SC+1}")
        a(f"v_add_f32 v15, v{SC+2}, v{SC+3}")
        for m in range(4, 12, 2):
            a(f"v_add_f32 v14, v14, v{SC+m}")
            a(f"v_add_f32 v15, v15, v{SC+m+1}")
        a("v_add_f32 v14, v14, v15")
        a("v_rcp_f32 v14, v14")
        a("s_nop 0")
        for m in range(12):
            a(f"v_mul_f32 v{SC+m}, v{SC+m}, v14")
        for m in range(0, 12, 2):
            a(f"v_cvt_pk_bf16_f32 v{PB+m//2}, v{SC+m}, v{SC+m+1}")
        a("s_waitcnt lgkmcnt(0)")
        a("s_nop 0")
        OA = 32
        for kb in range(3):
            for dg in range(5):
                r = VR + 2*(5*kb + dg); o = OA + 4*dg
                c = "0" if kb == 0 else f"v[{o}:{o+3}]"
                a(f"v_mfma_f32_4x4x4_16b_bf16 v[{o}:{o+3}], v[{r}:{r+1}], v[{PB+2*kb}:{PB+2*kb+1}], {c}")
        a(f"v_subrev_u32 v144, {LQ - LO}, v144")
        a("s_nop 4")
        for dg in range(5):
            o = OA + 4*dg
            a(f"v_cvt_pk_bf16_f32 v{Q+2*dg}, v{o}, v{o+1}")
            a(f"v_cvt_pk_bf16_f32 v{Q+2*dg+1}, v{o+2}, v{o+3}")
            a(f"ds_write_b64 v144, v[{Q+2*dg}:{Q+2*dg+1}] offset:{8*dg}")
    a("s_waitcnt lgkmcnt(0)")
    stamp(a, 2)
    a("s_barrier")
    a(f"ds_read_b128 v[20:23], v148 offset:{LO}")
    sk = a.new("attst")
    a(f"s_cmp_ge_u32 s{S_WAVE}, 2")
    a(f"s_cbranch_scc1 {sk}")
    a(f"ds_read_b128 v[24:27], v149 offset:{LO}")
    a("s_waitcnt lgkmcnt(0)")
    a(f"buffer_store_dwordx4 v[24:27], v157, s[{SRD_OUT}:{SRD_OUT+3}], 0 offen{SC1}")
    a.label(sk)
    a("s_waitcnt lgkmcnt(0)")
    a(f"buffer_store_dwordx4 v[20:23], v156, s[{SRD_OUT}:{SRD_OUT+3}], 0 offen{SC1}")
    a(f"s_lshl_b32 s{S_FIDX}, s{S_RT}, 1")
    a(f"s_add_u32 s{S_FIDX}, s{S_FIDX}, s{S_CT}")
    a(f"s_lshl_b32 s{S_FIDX}, s{S_FIDX}, 7")
    a(f"s_add_u32 s{S_FIDX}, s{S_FIDX}, 0x8000")

def finish_phase(a, role, first=False):
    a("s_waitcnt vmcnt(0)")
    stamp(a, 4)
    if role == 'c' and first: nonce_check(a)
    a("s_barrier      ; E3")
    if role == 'c': publish(a)
    stamp(a, 5)

IDLEPF = True
def idle_prefetch(a, NT, kptr, nbytes):
    nidle = 256 - NT
    nw = nidle * 8
    npieces = (nbytes + 1023)//1024
    n = (npieces + nw - 1)//nw
    a(f"s_and_b32 s{S_T0}, s2, 7")
    a(f"s_lshr_b32 s{S_T1}, s2, 3")
    a(f"s_lshl_b32 s{S_T0}, s{S_T0}, 5")
    a(f"s_add_u32 s{S_T0}, s{S_T0}, s{S_T1}")
    a(f"s_sub_u32 s{S_T0}, s{S_T0}, {NT}")
    a(f"s_lshl_b32 s{S_T0}, s{S_T0}, 3")
    a(f"s_add_u32 s{S_T0}, s{S_T0}, s{S_WAVE}      ; q")
    a(f"s_lshl_b32 s{S_T0}, s{S_T0}, 10")
    a("v_lshlrev_b32 v150, 4, v2")
    a(f"v_add_u32 v150, s{S_T0}, v150")
    srd(a, 80, ptr(kptr), 0, nbytes)
    lp = a.new("ipf")
    a(f"s_mov_b32 s{S_CNT}, {n}")
    a.label(lp)
    a("buffer_load_dwordx4 v[152:155], v150, s[80:83], 0 offen")
    a(f"v_add_u32 v150, {nw*1024}, v150")
    a(f"s_sub_u32 s{S_CNT}, s{S_CNT}, 1")
    a(f"s_cmp_lg_u32 s{S_CNT}, 0")
    a(f"s_cbranch_scc1 {lp}")
    a("s_waitcnt vmcnt(0)")

def role_program(a, role):
    phases = [P1F(), P24(2), P3(), P24(4)] if FUSE else [P1(), 'att', P24(2), P3(), P24(4)]
    if 'p1twice' in EXP:
        P = P1F() if FUSE else P1(); inv = a.new("inv")
        tile_map(a, P.NT, P.kind)
        a(f"s_cmp_eq_u32 s{S_VALID}, 0")
        a(f"s_cbranch_scc1 {inv}")
        P.tile_consts(a)
        if role == 'c': consumer_phase(a, P, True)
        else: loader_phase(a, P, True)
        a("s_waitcnt vmcnt(0)")
        a("s_barrier")
        a.label(inv)
    for n, P in enumerate(phases):
        first = (n == 0)
        nxt = a.new("next"); inv = a.new("inv")
        if P == 'att':
            tile_map(a, 256, 'att')
            att_phase(a, role)
            stamp(a, 3)
            finish_phase(a, role)
            prof_store(a, 'att', role)
            continue
        tile_map(a, P.NT, P.kind)
        a(f"s_cmp_eq_u32 s{S_VALID}, 0")
        a(f"s_cbranch_scc1 {inv}")
        P.tile_consts(a)
        if role == 'c': consumer_phase(a, P, first)
        else: loader_phase(a, P, first)
        stamp(a, 3)
        if P.key != 'p4': finish_phase(a, role, first)
        spin_capture(a, P.key, role)
        prof_store(a, P.key, role)
        if first:
            a(f"s_branch {nxt}")
            a.label(inv)
            ptr_wait(a)
            if role == 'c': nonce_check(a, issued=False)
            a.label(nxt)
        elif P.key == 'p3' and IDLEPF:
            a(f"s_branch {nxt}")
            a.label(inv)
            idle_prefetch(a, P.NT, KA_WD, F*D*2)
            a.label(nxt)
        else:
            a.label(inv)

def main(out):
    a = Asm()
    a.raw(f".globl {KNAME}")
    a.raw(".p2align 8")
    a.raw(f".type {KNAME},@function")
    a.label(KNAME)
    if PROFDBG:
        a(f"s_memrealtime s[{S_P0+1}:{S_P0+2}]") if False else None
    a("s_cmp_ge_u32 s2, 256")
    a("s_cbranch_scc1 L_exit")
    a(f"s_load_dwordx16 s[{S_PTR}:{S_PTR+15}], s[0:1], 0")
    a(f"s_load_dwordx4 s[{S_PTR+16}:{S_PTR+19}], s[0:1], 64")
    if PROFDBG or SPIN:
        a(f"{STAMP} s[98:99]")
    a("v_lshrrev_b32 v1, 6, v0")
    a("v_and_b32 v2, 63, v0      ; lane")
    a(f"s_mov_b32 s{S_FIDX}, -1")
    a(f"v_readfirstlane_b32 s{S_WAVE}, v1")
    a("s_nop 3")
    a(f"s_sub_u32 s{S_W}, s{S_WAVE}, 4")
    a(f"s_cmp_ge_u32 s{S_WAVE}, 4")
    a("s_cbranch_scc1 L_loader")
    role_program(a, 'c')
    a("s_waitcnt vmcnt(0)")
    spin_end(a)
    a("s_endpgm")
    a.label("L_loader")
    role_program(a, 'l')
    a("s_waitcnt vmcnt(0)")
    a.label("L_exit")
    a("s_endpgm")
    HEADER = open("sequential_preLN__sliding_local_dilated__glu_gated_bilinear__prompt.s.ref").read().split("; Override")[0]
    s = HEADER
    s += f"; @launch grid=(256,1,1) block=(512,1,1) lds={LDS_TOTAL}\n"
    s += '.amdgcn_target "amdgcn-amd-amdhsa--gfx950"\n.text\n'
    s += a.text()
    s += f""".section .rodata,"a"
.p2align 6
.amdhsa_kernel {KNAME}
  .amdhsa_next_free_vgpr 256
  .amdhsa_next_free_sgpr 102
  .amdhsa_accum_offset 160
  .amdhsa_group_segment_fixed_size 0
  .amdhsa_kernarg_size 80
  .amdhsa_user_sgpr_count 2
  .amdhsa_user_sgpr_kernarg_segment_ptr 1
  .amdhsa_system_sgpr_workgroup_id_x 1
  .amdhsa_float_denorm_mode_32 3
.end_amdhsa_kernel
"""
    open(out, "w").write(s)

if __name__ == "__main__":
    if "-prof" in sys.argv: PROF = True
    if "-profdbg" in sys.argv: PROFDBG = True
    if "-cyc" in sys.argv: STAMP = "s_memtime"
    if "-wpf" in sys.argv: WPF = True
    if "-nofuse" in sys.argv: FUSE = False
    if "-gate" in sys.argv: GATE = True
    for x in sys.argv:
        if x.startswith("-spf="): SPF = int(x[5:])
        if x.startswith("-spf2="): SPF2 = {'wg': KA_WG, 'wu': KA_WU}[x[6:]]
    if "-noidle" in sys.argv: IDLEPF = False
    for x in sys.argv:
        if x.startswith("-spin="):
            p_, a_, b_ = x[6:].split(","); SPIN = (p_, int(a_), int(b_))
    if "-apf" in sys.argv: APF = True
    for x in sys.argv:
        if x.startswith("-p1frot="): P1FROT = x[8:]
    for x in sys.argv:
        if x.startswith("-outsc="): OUTSC = " " + x[7:].replace("+", " ")
    for x in sys.argv:
        if x.startswith("-gate4="): GATE4 = tuple(int(y) for y in x[7:].split(","))
    for x in sys.argv:
        if x.startswith("-osc="): OSC = " " + x[5:].replace("+", " ")
    for x in sys.argv:
        if x.startswith("-align="): ALIGN = int(x[7:])
    if "-nowpf" in sys.argv: WPF = False
    if "-onestep" in sys.argv: TWOSTEP = False
    for x in sys.argv:
        if x.startswith("-exp="): EXP = set(x[5:].split(","))
    if "-noxcd" in sys.argv: NOXCD = True
    for x in sys.argv:
        if x.startswith("-p1rot="): P1ROT = x[7:]
        if x.startswith("-rotoff="): ROTOFF = set(x[8:].split(","))
    for x in sys.argv:
        if x.startswith("-off="):
            for k in x[5:].split(","): WPF_OFF.add({'wo': KA_WO, 'wg': KA_WG, 'wu': KA_WU, 'wd': KA_WD}[k])
    main(sys.argv[1] if len(sys.argv) > 1 else "v3.s")
```

```python
import sys, struct

KNAME = "sequential_preLN__sliding_local_dilated__glu_gated_bilinear__prompt_kernel"
S_TOK, D, NQKV, F = 2048, 640, 1920, 1728
WS_QKV, WS_O, WS_H, WS_HH, WS_ST, WS_FLAG = 0, 0x800000, 0xB00000, 0x1000000, 0x1800000, 0x1900000
WS_PROF = 0x1A00000
KA_X, KA_WQKV, KA_WO, KA_BX, KA_WG, KA_WU, KA_WD, KA_OUT, KA_DBG, KA_WS = [8*i for i in range(10)]
ONES = 0x3F803F80
PROF = False
PROFDBG = False
STAMP = 's_memrealtime'
SC1 = " sc1"
LDS_TOTAL = 163840
NONCE_LDS = 163832
OUTSC = ' sc0 sc1'
SPF = 0
SPF2 = None
EXTRAB = 0
P4ROT = (4, 32, 2)
P3ROT = (2, 13, 2)
P2ROT = (2, 13, 2)
P1FROT = 'latin2'
APF = False
GATE = False
GATE4 = (6, 3)
OSC = ' sc1'
FUSE = True
ALIGN = 6
TWOSTEP = True
EXP = set()
NOXCD = False

def f2u(x):
    return struct.unpack("<I", struct.pack("<f", x))[0]

class Asm:
    def __init__(self):
        self.L = []
        self.uid = 0
    def __call__(self, s):
        for line in s.split("\n"):
            line = line.strip()
            if line:
                self.L.append("  " + line)
    def label(self, n):
        self.L.append(n + ":")
    def raw(self, s):
        self.L.append(s)
    def new(self, base):
        self.uid += 1
        return f"L{base}_{self.uid}"
    def text(self):
        return "\n".join(self.L) + "\n"

SRD_A, SRD_B0, SRD_B1, SRD_OUT, SRD_AUX, SRD_ST = 8, 12, 16, 20, 24, 28
S_RT, S_CT, S_R0, S_C0, S_WAVE, S_SLOT, S_CNT, S_T0, S_T1, S_T2 = 32, 33, 34, 35, 36, 37, 38, 39, 40, 41
S_AOFF, S_BOFF = 42, 43
S_PTR = 44
S_MASK = 64
S_I, S_J, S_REND, S_K = 66, 67, 68, 69
S_STAMP = 70
S_NONCE = 78
S_FIDX, S_LW, S_VALID, S_KB = 85, 86, 87, 92
SRD_FLAG = 88
S_SLOTB, S_T3, S_T4, S_W = 93, 94, 95, 96
S_P0 = 97
S_N1, S_N2 = 6, 7

def ptr(k): return S_PTR + k // 4

PH_IDX = {'p1': 0, 'att': 1, 'p2': 2, 'p3': 3, 'p4': 4}

def stamp(a, i):
    if i >= 4:
        if PROF: a(f'{STAMP} s[{98+2*(i-4)}:{99+2*(i-4)}]')
        return
    if PROF or PROFDBG or SPIN:
        a(f'{STAMP} s[{S_STAMP+2*i}:{S_STAMP+2*i+1}]')

SPIN = None
def spin_capture(a, ph, role):
    if not SPIN or SPIN[0] != ph or role != 'c': return
    a("s_waitcnt lgkmcnt(0)")
    A_ = "s98" if SPIN[1] < 0 else f"s{S_STAMP+2*SPIN[1]}"
    a(f"s_sub_u32 s100, s{S_STAMP+2*SPIN[2]}, {A_}")
def spin_end(a):
    if not SPIN: return
    sk = a.new("spin"); lp = a.new("spinl")
    a("s_cmp_eq_u32 s2, 9")
    a(f"s_cbranch_scc0 {sk}")
    a(f"s_cmp_eq_u32 s{S_WAVE}, 0")
    a(f"s_cbranch_scc0 {sk}")
    a("s_mul_i32 s100, s100, 20")
    a("s_memrealtime s[4:5]")
    a("s_waitcnt lgkmcnt(0)")
    a("s_add_u32 s100, s100, s4")
    a.label(lp)
    a("s_memrealtime s[4:5]")
    a("s_waitcnt lgkmcnt(0)")
    a("s_sub_u32 s6, s4, s100")
    a("s_cmp_lt_i32 s6, 0")
    a(f"s_cbranch_scc1 {lp}")
    a.label(sk)

def prof_store(a, ph, role):
    if not (PROF or PROFDBG): return
    skip = a.new("pskip")
    a(f"s_cmp_eq_u32 s{S_WAVE}, {0 if role == 'c' else 4}")
    a(f"s_cbranch_scc0 {skip}")
    a('s_waitcnt lgkmcnt(0)')
    if PROF:
        a(f's_add_u32 s80, s{ptr(KA_WS)}, {hex(WS_PROF + PH_IDX[ph]*0x20000)}')
        a(f's_addc_u32 s81, s{ptr(KA_WS)+1}, 0')
        a('s_and_b32 s81, s81, 0xffff')
        a('s_mov_b32 s82, 0x20000')
        a('s_mov_b32 s83, 0x20000')
        a('s_lshl_b32 s84, s2, 3')
        a(f's_add_u32 s84, s84, s{S_WAVE}')
        a('s_lshl_b32 s84, s84, 6')
        for i in range(8): a(f'v_mov_b32 v{128+i}, s{S_STAMP+i}')
        for i in range(4): a(f'v_mov_b32 v{136+i}, s{98+i}')
        a('v_mov_b32 v148, s84')
        a('s_mov_b64 exec, 1')
        a('buffer_store_dwordx4 v[128:131], v148, s[80:83], 0 offen')
        a('buffer_store_dwordx4 v[132:135], v148, s[80:83], 0 offen offset:16')
        a('buffer_store_dwordx4 v[136:139], v148, s[80:83], 0 offen offset:32')
        a('s_mov_b64 exec, -1')
    if PROFDBG and role == 'c':
        sk2 = a.new("pskip")
        a(f"s_cmp_eq_u32 s2, {PROFDBG_WG}")
        a(f"s_cbranch_scc0 {sk2}")
        a(f's_mov_b32 s80, s{ptr(KA_DBG)}')
        a(f's_and_b32 s81, s{ptr(KA_DBG)+1}, 0xffff')
        a('s_mov_b32 s82, 0x100')
        a('s_mov_b32 s83, 0x20000')
        sel = DBG_SEL[ph]
        for j, (i, slot) in enumerate(sel):
            a(f's_sub_u32 s84, s{S_STAMP+2*i}, s{S_P0}')
            a(f'v_mov_b32 v140, s84')
            a(f'v_mov_b32 v141, {4*slot}')
            a('s_mov_b64 exec, 1')
            a('buffer_store_dword v140, v141, s[80:83], 0 offen')
            a('s_mov_b64 exec, -1')
        a.label(sk2)
    a.label(skip)

PROFDBG_WG = 9
DBG_SEL = {'p1': [(1, 2), (2, 3), (3, 4)], 'att': [(0, 5), (1, 6), (3, 7)], 'p2': [(0, 8), (2, 9)], 'p3': [(0, 10), (1, 11), (2, 12)], 'p4': [(0, 13), (2, 14), (3, 15)]}

def set_exec(a, mask):
    if mask == (1 << 64) - 1:
        a("s_mov_b64 exec, -1")
    else:
        a(f"s_mov_b32 exec_lo, {hex(mask & 0xffffffff)}")
        a(f"s_mov_b32 exec_hi, {hex(mask >> 32)}")

def srd(a, s, p, off, nbytes):
    if off:
        a(f"s_add_u32 s{s}, s{p}, {hex(off)}")
        a(f"s_addc_u32 s{s+1}, s{p+1}, 0")
    else:
        a(f"s_mov_b32 s{s}, s{p}")
        a(f"s_mov_b32 s{s+1}, s{p+1}")
    a(f"s_and_b32 s{s+1}, s{s+1}, 0xffff")
    a(f"s_mov_b32 s{s+2}, {hex(nbytes)}")
    a(f"s_mov_b32 s{s+3}, 0x20000")

def divc(a, dst, src, d, rng=300):
    m = (65536 + d - 1) // d
    for x in range(0, rng):
        assert (x * m) >> 16 == x // d, (x, d)
    a(f"s_mul_i32 s{dst}, s{src}, {m}")
    a(f"s_lshr_b32 s{dst}, s{dst}, 16")

def magic(d, N):
    for sh in range(8, 24):
        m = ((1 << sh) + d - 1) // d
        if m >= (1 << 24) or m * (N - 1) >= (1 << 32): continue
        if all((x * m) >> sh == x // d for x in range(N)): return m, sh
    raise Exception("no magic")

def sdiv(a, dst, src, d, N):
    m, sh = magic(d, N)
    a(f"s_mul_i32 s{dst}, s{src}, {m}")
    a(f"s_lshr_b32 s{dst}, s{dst}, {sh}")

def vdiv(a, dst, src, d, N):
    m, sh = magic(d, N)
    a(f"v_mul_u32_u24 v{dst}, {m}, v{src}")
    a(f"v_lshrrev_b32 v{dst}, {sh}, v{dst}")

def tile_map(a, NT, kind):
    if NOXCD:
        a(f"s_mov_b32 s{S_T0}, s2")
    else:
        a(f"s_and_b32 s{S_T0}, s2, 7")
        a(f"s_lshr_b32 s{S_T1}, s2, 3")
        a(f"s_lshl_b32 s{S_T0}, s{S_T0}, 5")
        a(f"s_add_u32 s{S_T0}, s{S_T0}, s{S_T1}   ; t")
    a(f"s_cmp_lt_u32 s{S_T0}, {NT}")
    a(f"s_cselect_b32 s{S_VALID}, 1, 0")
    if kind == "p1":
        divc(a, S_T1, S_T0, 90)
        a(f"s_mul_i32 s{S_T2}, s{S_T1}, 90")
        a(f"s_sub_u32 s{S_T2}, s{S_T0}, s{S_T2}")
        divc(a, S_CT, S_T2, 6)
        divc(a, S_RT, S_T2, 5)
        a(f"s_cmp_eq_u32 s{S_T1}, 2")
        a(f"s_cselect_b32 s{S_CT}, s{S_RT}, s{S_CT}")
        a(f"s_cselect_b32 s{S_RT}, 5, 6")
        a(f"s_mul_i32 s{S_RT}, s{S_RT}, s{S_CT}")
        a(f"s_sub_u32 s{S_RT}, s{S_T2}, s{S_RT}")
        a(f"s_mul_i32 s{S_T1}, s{S_T1}, 6")
        a(f"s_add_u32 s{S_RT}, s{S_RT}, s{S_T1}")
    elif kind == "p3":
        divc(a, S_T1, S_T0, 81)
        a(f"s_mul_i32 s{S_T2}, s{S_T1}, 81")
        a(f"s_sub_u32 s{S_T2}, s{S_T0}, s{S_T2}")
        divc(a, S_CT, S_T2, 3)
        a(f"s_mul_i32 s{S_RT}, s{S_CT}, 3")
        a(f"s_sub_u32 s{S_RT}, s{S_T2}, s{S_RT}")
        a(f"s_mul_i32 s{S_T1}, s{S_T1}, 3")
        a(f"s_add_u32 s{S_RT}, s{S_RT}, s{S_T1}")
    elif kind == "p1f":
        a(f"s_lshr_b32 s{S_T1}, s{S_T0}, 6")
        a(f"s_lshl_b32 s{S_RT}, s{S_T1}, 3")
        a(f"s_bfe_u32 s{S_T2}, s{S_T0}, {2 | (3 << 16)}")
        a(f"s_add_u32 s{S_RT}, s{S_RT}, s{S_T2}")
        a(f"s_bfe_u32 s{S_T1}, s{S_T0}, {5 | (1 << 16)}")
        a(f"s_lshl_b32 s{S_T1}, s{S_T1}, 2")
        a(f"s_and_b32 s{S_CT}, s{S_T0}, 3")
        a(f"s_add_u32 s{S_CT}, s{S_CT}, s{S_T1}")
    elif kind == "att":
        a(f"s_lshr_b32 s{S_RT}, s{S_T0}, 1")
        a(f"s_and_b32 s{S_CT}, s{S_T0}, 1")
    else:
        divc(a, S_RT, S_T0, 10)
        a(f"s_mul_i32 s{S_CT}, s{S_RT}, 10")
        a(f"s_sub_u32 s{S_CT}, s{S_T0}, s{S_CT}")

def publish(a):
    skip = a.new("pub")
    a(f"s_cmp_eq_u32 s{S_WAVE}, 0")
    a(f"s_cbranch_scc0 {skip}")
    a(f"s_cmp_eq_u32 s{S_FIDX}, -1")
    a(f"s_cbranch_scc1 {skip}")
    a(f"v_mov_b32 v140, s{S_NONCE}")
    a(f"v_mov_b32 v141, s{S_NONCE+1}")
    a(f"v_mov_b32 v142, s{S_FIDX}")
    a("s_mov_b64 exec, 1")
    a(f"buffer_store_dwordx2 v[140:141], v142, s[{SRD_FLAG}:{SRD_FLAG+3}], 0 offen{SC1}")
    a("s_mov_b64 exec, -1")
    a.label(skip)

def poll_core(a, sv=80):
    loop = a.new("poll"); done = a.new("polldone")
    a(f"s_and_saveexec_b64 s[{sv}:{sv+1}], vcc")
    a(f"s_mov_b32 s{S_CNT}, 0x40000")
    a.label(loop)
    a(f"buffer_load_dwordx2 v[142:143], v140, s[{SRD_FLAG}:{SRD_FLAG+3}], 0 offen{SC1}")
    a("s_waitcnt vmcnt(0)")
    a(f"v_cmp_ne_u64 vcc, s[{S_NONCE}:{S_NONCE+1}], v[142:143]")
    a(f"s_cbranch_vccz {done}")
    a(f"s_sub_u32 s{S_CNT}, s{S_CNT}, 1")
    a(f"s_cmp_lg_u32 s{S_CNT}, 0")
    a(f"s_cbranch_scc1 {loop}")
    a.label(done)
    a(f"s_mov_b64 exec, s[{sv}:{sv+1}]")

def poll(a, lo_sgpr, hi_sgpr, base, wave=0):
    skip = a.new("pollskip")
    a(f"s_cmp_eq_u32 s{S_WAVE}, {wave}")
    a(f"s_cbranch_scc0 {skip}")
    a(f"v_add_u32 v140, s{lo_sgpr}, v2")
    a(f"v_cmp_gt_u32 vcc, s{hi_sgpr}, v140")
    a(f"v_lshlrev_b32 v140, 7, v140")
    a(f"v_add_u32 v140, {base}, v140")
    poll_core(a, 80 if wave == 0 else 4)
    a.label(skip)

def poll_first_g(a, lo_sgpr, hi_sgpr, W, k0, S, G, base):
    skip = a.new("pollskip")
    lg = 2 if G <= 4 else 3
    a(f"s_cmp_eq_u32 s{S_WAVE}, 0")
    a(f"s_cbranch_scc0 {skip}")
    a(f"v_lshrrev_b32 v140, {lg}, v2")
    a(f"v_add_u32 v140, s{lo_sgpr}, v140")
    a(f"v_cmp_ge_u32 vcc, s{hi_sgpr}, v140")
    a(f"v_and_b32 v141, {(1 << lg) - 1}, v2")
    a(f"v_cmp_gt_u32 s[82:83], {G}, v141")
    a(f"v_add_u32 v141, s{k0}, v141")
    a(f"v_subrev_u32 v142, {S}, v141")
    a(f"s_and_b64 s[82:83], s[82:83], vcc")
    a(f"v_cmp_le_u32 vcc, {S}, v141")
    a(f"v_mul_u32_u24 v140, {W}, v140")
    a("s_nop 0")
    a("v_cndmask_b32 v141, v141, v142, vcc")
    a("v_add_u32 v140, v140, v141")
    a(f"v_lshlrev_b32 v140, 7, v140")
    a(f"v_add_u32 v140, {base}, v140")
    a("s_mov_b64 vcc, s[82:83]")
    poll_core(a)
    a.label(skip)

def poll_first(a, lo_sgpr, hi_sgpr, W, k0, k1, base):
    skip = a.new("pollskip")
    a(f"s_cmp_eq_u32 s{S_WAVE}, 0")
    a(f"s_cbranch_scc0 {skip}")
    a("v_lshrrev_b32 v140, 1, v2")
    a(f"v_add_u32 v140, s{lo_sgpr}, v140")
    a(f"v_cmp_ge_u32 vcc, s{hi_sgpr}, v140")
    a(f"v_mul_u32_u24 v140, {W}, v140")
    a("v_and_b32 v141, 1, v2")
    a(f"s_sub_u32 s{S_T2}, s{k1}, s{k0}")
    a(f"v_mul_lo_u32 v141, v141, s{S_T2}")
    a(f"v_add_u32 v141, s{k0}, v141")
    a("v_add_u32 v140, v140, v141")
    a(f"v_lshlrev_b32 v140, 7, v140")
    a(f"v_add_u32 v140, {base}, v140")
    poll_core(a)
    a.label(skip)

def first_ks(a, P):
    P.rot_start(a)
    a(f"s_add_u32 s{S_KB}, s{S_K}, 1")
    a(f"s_cmp_ge_u32 s{S_KB}, {P.S}")
    a(f"s_cselect_b32 s{S_KB}, 0, s{S_KB}")

def dbg_srd(a):
    a(f"s_mov_b32 s80, s{ptr(KA_DBG)}")
    a(f"s_and_b32 s81, s{ptr(KA_DBG)+1}, 0xffff")
    a("s_mov_b32 s82, 0x100")
    a("s_mov_b32 s83, 0x20000")

def nonce_publish(a):
    skip = a.new("nonce")
    a(f"s_cmp_eq_u32 s{S_WAVE}, 0")
    a(f"s_cbranch_scc0 {skip}")
    a("s_cmp_eq_u32 s2, 0")
    a(f"s_cbranch_scc0 {skip}")
    dbg_srd(a)
    a(f"s_memrealtime s[{S_NONCE}:{S_NONCE+1}]")
    a("v_mov_b32 v5, 0")
    a("s_waitcnt lgkmcnt(0)")
    a(f"s_or_b32 s{S_NONCE}, s{S_NONCE}, 1")
    a(f"v_mov_b32 v6, s{S_NONCE}")
    a(f"v_mov_b32 v7, s{S_NONCE+1}")
    a("s_mov_b64 exec, 1")
    a(f"buffer_store_dwordx2 v[6:7], v5, s[80:83], 0 offen{SC1}")
    a("s_mov_b64 exec, -1")
    a.label(skip)

def nonce_issue(a):
    skip = a.new("nonce")
    a(f"s_cmp_eq_u32 s{S_WAVE}, 0")
    a(f"s_cbranch_scc0 {skip}")
    dbg_srd(a)
    a("v_mov_b32 v158, 0")
    a("s_nop 3")
    a(f"buffer_load_dwordx2 v[156:157], v158, s[80:83], 0 offen{SC1}")
    a.label(skip)

def nonce_check(a, issued=True):
    skip = a.new("nonce"); loop = a.new("nloop"); done = a.new("ndone"); chk = a.new("nchk")
    a(f"s_cmp_eq_u32 s{S_WAVE}, 0")
    a(f"s_cbranch_scc0 {skip}")
    dbg_srd(a)
    a("v_mov_b32 v158, 0")
    a(f"s_mov_b32 s{S_CNT}, 0x40000")
    if issued: a(f"s_branch {chk}")
    a.label(loop)
    a(f"buffer_load_dwordx2 v[156:157], v158, s[80:83], 0 offen{SC1}")
    a("s_waitcnt vmcnt(0)")
    a.label(chk)
    a("v_readfirstlane_b32 s" + str(S_NONCE) + ", v156")
    a("v_readfirstlane_b32 s" + str(S_NONCE+1) + ", v157")
    a("s_nop 3")
    a(f"s_cmp_lg_u32 s{S_NONCE}, 0")
    a(f"s_cbranch_scc1 {done}")
    a(f"s_sub_u32 s{S_CNT}, s{S_CNT}, 1")
    a(f"s_cmp_lg_u32 s{S_CNT}, 0")
    a(f"s_cbranch_scc1 {loop}")
    a.label(done)
    a(f"v_mov_b32 v158, {NONCE_LDS}")
    a("s_mov_b64 exec, 1")
    a("ds_write_b64 v158, v[156:157]")
    a("s_mov_b64 exec, -1")
    a("s_waitcnt lgkmcnt(0)")
    a.label(skip)

def nonce_from_lds(a):
    skip = a.new("nlds")
    a(f"s_cmp_eq_u32 s{S_WAVE}, 7")
    a(f"s_cbranch_scc0 {skip}")
    a(f"v_mov_b32 v140, {NONCE_LDS}")
    a("ds_read_b64 v[142:143], v140")
    a("s_waitcnt lgkmcnt(0)")
    a(f"v_readfirstlane_b32 s{S_NONCE}, v142")
    a(f"v_readfirstlane_b32 s{S_NONCE+1}, v143")
    a.label(skip)

class Phase:
    has_e1 = False
    has_stage_work = False
    prefetchB = 0
    def loader_post_first(self, a): return 0
    def loader_post_b0(self, a): return 0
    def loader_stage_work_parts(self): return []
    def loader_final(self, a): pass
    def store_pre(self, a): pass
    def tail_prefetch(self, a, part): return 0
    def mid_prefetch(self, a, s): return 0
    def l2_prep(self, a): pass
    def rot_start(self, a):
        if self.key in ROTOFF:
            a(f"s_mov_b32 s{S_K}, 0"); return
        ca, cb, den = self.rot
        a(f"s_mul_i32 s{S_K}, s{S_CT}, {ca}")
        a(f"s_mul_i32 s{S_T0}, s{S_RT}, {cb}")
        a(f"s_add_u32 s{S_K}, s{S_K}, s{S_T0}")
        a(f"s_lshr_b32 s{S_K}, s{S_K}, {den}")
        m = (65536 + self.S - 1) // self.S
        for x in range(1024): assert (x*m) >> 16 == x // self.S
        a(f"s_mul_i32 s{S_T0}, s{S_K}, {m}")
        a(f"s_lshr_b32 s{S_T0}, s{S_T0}, 16")
        a(f"s_mul_i32 s{S_T0}, s{S_T0}, {self.S}")
        a(f"s_sub_u32 s{S_K}, s{S_K}, s{S_T0}")
    def tile_consts(self, a):
        a(f"s_mul_i32 s{S_R0}, s{S_RT}, {self.MV}")
        a(f"s_mul_i32 s{S_C0}, s{S_CT}, {self.NC}")
        a(f"s_add_u32 s{S_REND}, s{S_R0}, {self.MV}")
        a(f"s_min_u32 s{S_REND}, s{S_REND}, {S_TOK}")

def transition(a, first):
    pass

def loader_phase(a, P, first):
    NS, S = P.NS, P.S
    nA, nB = len(P.Ains), len(P.Bins)
    VB = 32
    customB = getattr(P, 'custom_B', False)
    a("v_lshrrev_b32 v3, 3, v2      ; r8")
    a("v_and_b32 v4, 7, v2          ; p")
    a("v_lshrrev_b32 v5, 1, v3      ; r8>>1")
    a("v_xor_b32 v6, v4, v5")
    a("v_lshlrev_b32 v6, 4, v6")
    a(f"s_lshl_b32 s{S_T0}, s{S_W}, 3")
    a(f"s_add_u32 s{S_T0}, s{S_T0}, s{S_R0}")
    a(f"v_add_u32 v7, s{S_T0}, v3")
    a(f"s_mov_b32 s{S_T0}, {P.lda}")
    a(f"v_mul_lo_u32 v7, v7, s{S_T0}")
    a("v_add_u32 v7, v7, v6")
    a(f"s_and_b32 s{S_T0}, s{S_W}, 1")
    a(f"s_lshl_b32 s{S_T0}, s{S_T0}, 6")
    a(f"v_xor_b32 v7, s{S_T0}, v7")
    for t in range(nA):
        a(f"v_add_u32 v{VB+t}, {t*32*P.lda}, v7")
    if customB: P.lazyB = True
    else: std_B_setup(a, P, VB, nA)
    if getattr(P, 'oprime', False): oprime_alt_setup(a, P)
    a(f"s_lshl_b32 s{S_LW}, s{S_W}, 10")
    P.mask_setup(a)
    P.rot_start(a)
    a(f"s_mov_b32 s{S_KB}, s{S_K}")
    a(f"s_mov_b32 s{S_N1}, 0"); a(f"s_mov_b32 s{S_N2}, 0")
    if first: ptr_wait(a)
    P.build_srds(a, 'l')
    loader_rest(a, P, first, VB, nA, nB, NS, S)

def oprime_alt_setup(a, P):
    a(f"s_and_b32 s{S_T0}, s{S_W}, 1")
    a(f"s_lshl_b32 s{S_T0}, s{S_T0}, 6")
    a(f"v_xor_b32 v10, s{S_T0}, v6")
    a("v_lshrrev_b32 v11, 5, v10             ; q = c>>1")
    a("v_lshlrev_b32 v11, 7, v11             ; q*128")
    a("v_and_b32 v12, 16, v10                ; half*16")
    a("v_add_u32 v11, v11, v12")
    a(f"s_lshl_b32 s{S_T0}, s{S_W}, 3")
    a(f"s_add_u32 s{S_T0}, s{S_T0}, s{S_R0}")
    a(f"v_add_u32 v12, s{S_T0}, v3            ; row (t=0)")
    for t in range(3):
        a(f"v_add_u32 v13, {32*t}, v12")
        a("v_lshrrev_b32 v14, 2, v13")
        a("v_lshlrev_b32 v14, 10, v14")
        a("v_and_b32 v13, 3, v13")
        a("v_lshl_add_u32 v14, v13, 5, v14")
        a("v_add_u32 v14, v14, v11")
        a(f"v_add_u32 v{44+t}, 0x200000, v14")
    a(f"s_and_b32 s{S_T0}, s{S_W}, 1")
    a(f"s_lshl_b32 s{S_T0}, s{S_T0}, 6")
    a(f"v_xor_b32 v10, s{S_T0}, v8")
    a(f"s_lshl_b32 s{S_T1}, s{S_C0}, 1")
    a(f"v_add_u32 v10, s{S_T1}, v10")
    a(f"s_lshl_b32 s{S_T0}, s{S_W}, 3")
    for t, ib in enumerate((0, 4)):
        a(f"v_add_u32 v12, s{S_T0}, v3")
        a(f"v_add_u32 v12, {8*ib}, v12          ; r")
        a("v_lshrrev_b32 v13, 4, v12")
        a("v_mul_u32_u24 v13, 80, v13")
        a("v_and_b32 v12, 15, v12")
        a("v_add_u32 v13, v13, v12")
        a("v_add_u32 v13, 64, v13")
        a("v_mul_u32_u24 v13, 1280, v13")
        a(f"v_add_u32 v{47+t}, v13, v10")

def std_B_setup(a, P, VB, nA):
    a("v_and_b32 v8, 1, v5")
    a("v_lshlrev_b32 v8, 1, v8")
    a("v_xor_b32 v8, v4, v8")
    a("v_lshlrev_b32 v8, 4, v8")
    a(f"s_lshl_b32 s{S_T0}, s{S_W}, 3")
    a(f"v_add_u32 v9, s{S_T0}, v3         ; k = 8w + r8")
    a(f"s_mov_b32 s{S_T0}, {P.ldb}")
    a(f"v_mul_lo_u32 v9, v9, s{S_T0}")
    a("v_add_u32 v9, v9, v8")
    a(f"s_and_b32 s{S_T0}, s{S_W}, 1")
    a(f"s_lshl_b32 s{S_T0}, s{S_T0}, 6")
    a(f"v_xor_b32 v9, s{S_T0}, v9")
    a(f"s_lshl_b32 s{S_T1}, s{S_C0}, 1")
    a(f"v_add_u32 v9, s{S_T1}, v9")
    for t, (pn, ib) in enumerate(P.Bins):
        a(f"v_add_u32 v{VB+nA+t}, {ib*8*P.ldb + P.panel_coloff[pn]}, v9")

def loader_rest(a, P, first, VB, nA, nB, NS, S):

    opr = getattr(P, 'oprime', False)
    def soff(kreg, offreg, mul):
        if not opr:
            a(f"s_mul_i32 s{offreg}, s{kreg}, {mul}")
            return
        mm, mt_ = (128, 512) if offreg == S_AOFF else (102400, 409600)
        a(f"s_mul_i32 s{offreg}, s{kreg}, {mm}")
        a(f"s_sub_u32 s{S_T0}, s{kreg}, 8")
        a(f"s_mul_i32 s{S_T0}, s{S_T0}, {mt_}")
        a(f"s_cmp_ge_u32 s{kreg}, 8")
        a(f"s_cselect_b32 s{offreg}, s{S_T0}, s{offreg}")
    def adv(kreg, offreg, mul, slotreg):
        if getattr(P, 'order2', False) and P1ROT == 'latin2':
            cnt = S_N1 if kreg == S_K else S_N2
            a(f"s_add_u32 s{kreg}, s{kreg}, 2")
            a(f"s_cmp_ge_u32 s{kreg}, {S}")
            a(f"s_cselect_b32 s{S_T0}, {S}, 0")
            a(f"s_sub_u32 s{kreg}, s{kreg}, s{S_T0}")
            a(f"s_add_u32 s{cnt}, s{cnt}, 1")
            a(f"s_cmp_eq_u32 s{cnt}, 5")
            a(f"s_addc_u32 s{kreg}, s{kreg}, 0")
        else:
            a(f"s_add_u32 s{kreg}, s{kreg}, 1")
            a(f"s_cmp_ge_u32 s{kreg}, {S}")
            a(f"s_cselect_b32 s{kreg}, 0, s{kreg}")
        soff(kreg, offreg, mul)
        a(f"s_add_u32 s{slotreg}, s{slotreg}, {P.STAGE}")
        a(f"s_cmp_ge_u32 s{slotreg}, {P.STAGE*NS}")
        a(f"s_cselect_b32 s{slotreg}, 0, s{slotreg}")
    def issueA(fill=None):
        a(f"s_add_u32 s{S_T3}, s{S_SLOT}, s{S_LW}")
        if opr:
            lt_ = a.new("atail"); le_ = a.new("aend")
            a(f"s_cmp_ge_u32 s{S_K}, 8")
            a(f"s_cbranch_scc1 {lt_}")
            issueA_body(VB, None)
            a(f"s_branch {le_}")
            a.label(lt_)
            issueA_body(44, None)
            a.label(le_)
        else:
            issueA_body(VB, fill)
        adv(S_K, S_AOFF, 128, S_SLOT)
    def issueA_body(vb, fill):
        for t in range(nA):
            special = P.Ains[t]
            sk = None
            if special == 'skip':
                sk = a.new("sk")
                a(f"s_cmp_eq_u64 s[{S_MASK}:{S_MASK+1}], 0")
                a(f"s_cbranch_scc1 {sk}")
            a(f"s_add_u32 m0, s{S_T3}, {t*4096}")
            if special: a(f"s_mov_b64 exec, s[{S_MASK}:{S_MASK+1}]")
            else: a("s_nop 0")
            a(f"buffer_load_dwordx4 v{vb+t}, s[{SRD_A}:{SRD_A+3}], s{S_AOFF} offen{P.scA} lds")
            if special: a("s_mov_b64 exec, -1")
            if sk: a.label(sk)
            if fill:
                for x in fill.pop(0) if fill else []: a(x)
    def issueB(fill=None):
        if getattr(P, 'lazyB', False):
            P.lazyB = False
            P.custom_B_setup(a, VB + nA)
        a(f"s_add_u32 s{S_T4}, s{S_SLOTB}, s{S_LW}")
        if opr:
            lt_ = a.new("btail"); le_ = a.new("bend")
            a(f"s_cmp_ge_u32 s{S_KB}, 8")
            a(f"s_cbranch_scc1 {lt_}")
            issueB_body(VB + nA, None)
            a(f"s_branch {le_}")
            a.label(lt_)
            issueB_body(47, None)
            a.label(le_)
        else:
            issueB_body(VB + nA, fill)
        adv(S_KB, S_BOFF, 64*P.ldb, S_SLOTB)
    def issueB_body(vb, fill):
        for t, ent in enumerate(P.Bins):
            if isinstance(ent, dict):
                sr = SRD_B0; ldsoff = ent['lds']; skp = ent.get('skip')
            else:
                pn, ib = ent
                sr = P.panel_srd[pn]; ldsoff = P.ABYTES + pn*8192 + ib*1024; skp = None
            sk = None
            if skp:
                sk = a.new("skb")
                a(f"s_cmp_ge_u32 s{S_W}, {skp}")
                a(f"s_cbranch_scc1 {sk}")
            a(f"s_add_u32 m0, s{S_T4}, {ldsoff}")
            a("s_nop 0")
            a(f"buffer_load_dwordx4 v{vb+t}, s[{sr}:{sr+3}], s{S_BOFF} offen lds")
            if sk: a.label(sk)
            if fill:
                for x in fill.pop(0) if fill else []: a(x)
    minA = nA - (1 if 'skip' in P.Ains else 0)
    minB = nB - sum(1 for e_ in P.Bins if isinstance(e_, dict) and e_.get('skip'))
    a(f"s_mov_b32 s{S_SLOT}, 0")
    a(f"s_mov_b32 s{S_SLOTB}, 0")
    soff(S_K, S_AOFF, 128)
    soff(S_KB, S_BOFF, 64*P.ldb)
    pB = P.prefetchB if not first else 0
    if pB:
        lp = a.new("bpre")
        a(f"s_mov_b32 s{S_CNT}, {pB}")
        a.label(lp)
        issueB()
        a(f"s_sub_u32 s{S_CNT}, s{S_CNT}, 1")
        a(f"s_cmp_lg_u32 s{S_CNT}, 0")
        a(f"s_cbranch_scc1 {lp}")
    nextra = 0
    if pB and getattr(P, 'extraB', 0) and EXTRAB:
        a(f"s_mov_b32 s4, s{S_KB}")
        for e_ in range(EXTRAB):
            for t in range(nB):
                a(f"buffer_load_dwordx4 v[152:155], v{VB+nA+t}, s[{SRD_B0}:{SRD_B0+3}], s{S_BOFF} offen")
                nextra += 1
            a(f"s_add_u32 s{S_KB}, s{S_KB}, 1")
            a(f"s_cmp_ge_u32 s{S_KB}, {S}")
            a(f"s_cselect_b32 s{S_KB}, 0, s{S_KB}")
            a(f"s_mul_i32 s{S_BOFF}, s{S_KB}, {64*P.ldb}")
        a(f"s_mov_b32 s{S_KB}, s4")
        a(f"s_mul_i32 s{S_BOFF}, s{S_KB}, {64*P.ldb}")
    if not first:
        a("s_barrier      ; B_dep")
    stamp(a, 0)
    L = []
    gate = getattr(P, 'gate', None) if not first else None
    for s in range(S):
        cap = (NS - 1) if s == 0 else s + NS - 2
        prev = L[-1] if L else -1
        if gate and s <= gate[1]:
            L.append(min(gate[0] - 1, cap, prev + 2))
        else:
            L.append(min(S - 1, cap, prev + (3 if gate else 2)))
    if gate:
        assert gate[0] <= pB and gate[0] - 1 <= NS - 1
        nonce_from_lds(a)
    seq = [('B', j) for j in range(pB)]
    if nextra: seq.append(('X', nextra))
    if hasattr(P, 'pre_issue'):
        npre = P.pre_issue(a)
    def cnt_after(s):
        last = max(i for i, (k, j) in enumerate(seq) if j == s and k in 'AB')
        n = 0
        for (k, j) in seq[last+1:]:
            n += minA if k == 'A' else (minB if k == 'B' else j)
        return n
    def issue_stage(j, fill=None):
        if j >= pB:
            issueA(fill); seq.append(('A', j))
            issueB(fill); seq.append(('B', j))
        else:
            issueA(fill); seq.append(('A', j))
    prev = -1
    s = 0
    while s < S:
        k = L[s] - prev
        e = s
        if k == 1 and L[s] >= pB and s > 0 and not getattr(P, 'unroll', False):
            while e + 1 < S and L[e+1] - L[e] == 1 and (L[e+1] - (e+1)) == (L[s] - s): e += 1
        if e - s >= 2 and s - 0 >= 0 and min(range(s, e+1)) >= 0 and s >= pB - (L[s] - s) and all(j >= pB for j in range(s, s+1)):
            cnt = e - s + 1
            lp = a.new("lmain")
            a(f"s_mov_b32 s{S_CNT}, {cnt}")
            a.label(lp)
            parts = P.loader_stage_work_parts() if P.has_stage_work else None
            issue_stage(L[s], parts)
            if parts:
                for grp in parts:
                    for x in grp: a(x)
            n = cnt_after(s)
            a(f"s_waitcnt vmcnt({n})")
            if P.has_stage_work: a("s_waitcnt lgkmcnt(0)")
            a("s_barrier")
            a(f"s_sub_u32 s{S_CNT}, s{S_CNT}, 1")
            a(f"s_cmp_lg_u32 s{S_CNT}, 0")
            a(f"s_cbranch_scc1 {lp}")
            for j in range(s+1, e+1):
                seq.append(('A', L[j])); seq.append(('B', L[j]))
            prev = L[e]; s = e + 1
            continue
        parts = P.loader_stage_work_parts() if (P.has_stage_work and s > 0) else None
        for j in range(prev+1, L[s]+1):
            issue_stage(j, parts if j == prev+1 else None)
        if s == 0:
            stamp(a, 1)
            ex = P.loader_post_first(a) or 0
            P.l2_prep(a)
            if getattr(P, 'early_pre', False): ex += P.early_setup(a)
            if ex: seq.append(('X', ex))
        if parts:
            for grp in parts:
                for x in grp: a(x)
        nw = P.mid_prefetch(a, s) or 0
        if nw: seq.append(('X', nw))
        if gate and s == gate[1]: P.deps(a, wave=7)
        a(f"s_waitcnt vmcnt({cnt_after(s)})")
        if P.has_stage_work or s == 0: a("s_waitcnt lgkmcnt(0)")
        a("s_barrier")
        if s == 0:
            ex = P.loader_post_b0(a) or 0
            if ex: seq.append(('X', ex))
        prev = L[s]; s += 1
    stamp(a, 2)
    if P.has_stage_work:
        for grp in P.loader_stage_work_parts():
            for x in grp: a(x)
    if getattr(P, 'fused', False):
        P.loader_fused_tail(a)
        return
    P.loader_final(a)
    if getattr(P, 'chunk_epi', False): P.loader_store_setup(a)
    if getattr(P, 'early_pre', False):
        a("s_barrier          ; E2")
        P.store_fast(a)
        P.set_fidx(a)
        return
    P.store_pre(a)
    ny = 0
    if P.has_e1:
        a("s_waitcnt lgkmcnt(0)")
        a("s_barrier      ; E1")
    if getattr(P, 'stream_epi', False):
        P.set_fidx(a)
        return
    if getattr(P, 'chunk_epi', False):
        P.loader_epilogue(a)
        P.set_fidx(a)
        return
    a("s_barrier          ; E2")
    store_pass(a, P, ny)

def consumer_phase(a, P, first):
    if getattr(P, 'modeS', False): return consumer_phase_S(a, P, first)
    P.consumer_setup(a)
    NW = len(P.wlist)
    XF = [0, 4*P.NXMAX]
    WF = [8*P.NXMAX, 8*P.NXMAX + 4*NW]
    wk, wt = getattr(P, 'wstep', (4096, 512))
    def reads(kk, buf):
        r = []
        for wi, (areg, off) in enumerate(P.wlist):
            base = WF[buf] + 4*wi
            r.append(f"ds_read_b64_tr_b16 a[{base}:{base+1}], v{areg} offset:{off + kk*wk}")
            r.append(f"ds_read_b64_tr_b16 a[{base+2}:{base+3}], v{areg} offset:{off + kk*wk + wt}")
        for xi, (areg0, areg1, off) in enumerate(P.xlist):
            base = XF[buf] + 4*xi
            areg = areg0 if kk == 0 else areg1
            r.append(f"ds_read_b128 a[{base}:{base+3}], v{areg} offset:{off}")
        return r
    def mfmas(buf, first_=False):
        m = []
        for (xi, wi, acc) in P.mf:
            c = "0" if first_ else f"v[{acc}:{acc+3}]"
            m.append(f"v_mfma_f32_16x16x32_bf16 v[{acc}:{acc+3}], a[{WF[buf]+4*wi}:{WF[buf]+4*wi+3}], a[{XF[buf]+4*xi}:{XF[buf]+4*xi+3}], {c}")
        return m
    block = make_block(a, P.RPM)
    cons_prologue(a, P, first)
    for x in reads(0, 0): a(x)
    a(f"s_mov_b32 s{S_CNT}, {P.S-1}")
    a("s_waitcnt lgkmcnt(0)")
    def stats4(buf):
        if not getattr(P, 'mfma_stats4', False): return
        sk = a.new("st4")
        a(f"s_and_b32 s{S_T0}, s{S_N1}, 3")
        a(f"s_add_u32 s{S_N1}, s{S_N1}, 1")
        a(f"s_cmp_eq_u32 s{S_T0}, s{S_WAVE}")
        a(f"s_cbranch_scc0 {sk}")
        for x in P.stats_mfmas([f"a[{XF[buf]+4*xi}:{XF[buf]+4*xi+3}]" for xi in range(len(P.xlist))]): a(x)
        a.label(sk)
    st4 = getattr(P, 'mfma_stats4', False)
    block(mfmas(0, True), reads(1, 1), slot_adv(P) + P.addr_update())
    stats4(0)
    lp = a.new("cloop")
    if ALIGN: a.raw(f".p2align {ALIGN}")
    a.label(lp)
    a("s_waitcnt lgkmcnt(0)")
    a("s_barrier")
    block(mfmas(1), reads(0, 0), [f"s_sub_u32 s{S_CNT}, s{S_CNT}, 1"])
    stats4(1)
    a("s_waitcnt lgkmcnt(0)")
    block(mfmas(0), reads(1, 1), slot_adv(P) + P.addr_update() + ([] if st4 else [f"s_cmp_lg_u32 s{S_CNT}, 0"]))
    stats4(0)
    if st4: a(f"s_cmp_lg_u32 s{S_CNT}, 0")
    a(f"s_cbranch_scc1 {lp}")
    a("s_waitcnt lgkmcnt(0)")
    block(mfmas(1), [])
    stats4(1)
    cons_tail(a, P, first)

def make_block(a, RPM):
    def block(m, r, fill=()):
        q = list(r); fl = list(fill)
        for i, x in enumerate(m):
            a(x)
            k = 0
            while q and k < RPM:
                a(q.pop(0)); k += 1
            if not q:
                while fl and k < 2:
                    a(fl.pop(0)); k += 1
        for x in q: a(x)
        for x in fl: a(x)
    return block

def slot_adv(P):
    return [f"s_add_u32 s{S_SLOT}, s{S_SLOT}, {P.STAGE}",
            f"s_cmp_ge_u32 s{S_SLOT}, {P.STAGE*P.NS}",
            f"s_cselect_b32 s{S_SLOT}, 0, s{S_SLOT}"]

def cons_prologue(a, P, first):
    a(f"s_mov_b32 s{S_SLOT}, 0")
    for x in P.addr_update(): a(x)
    if first: ptr_wait(a)
    P.build_srds(a, 'c')
    if not first:
        if TWOSTEP: P.deps_first(a)
        else: P.deps(a)
        a("s_barrier      ; B_dep")
        if getattr(P, 'early_pre', False): P.early_setup(a)
        if TWOSTEP and not getattr(P, 'gate', None): P.deps(a)
    else:
        nonce_publish(a)
    stamp(a, 0)
    a("s_barrier          ; B_0")
    stamp(a, 1)

def cons_tail(a, P, first):
    stamp(a, 2)
    if first: nonce_issue(a)
    a("s_nop 7")
    P.epilogue(a)
    if getattr(P, 'stream_epi', False) or getattr(P, 'chunk_epi', False):
        P.set_fidx(a)
        return
    a("s_waitcnt lgkmcnt(0)")
    if getattr(P, 'early_pre', False):
        a("s_barrier          ; E2")
        P.store_fast(a)
        P.set_fidx(a)
        return
    P.store_pre(a)
    a("s_barrier          ; E2")
    store_pass(a, P)

def consumer_phase_S(a, P, first):
    P.consumer_setup(a)
    for r in range(P.ACC, P.ACC + P.NACC): a(f"v_mov_b32 v{r}, 0")
    def rng(t):
        k, i = t
        return f"{k}[{i}:{i+3}]"
    def half(t, h):
        k, i = t
        return f"{k}[{i+2*h}:{i+2*h+1}]"
    def reads(buf):
        r = []
        for kk in range(2):
            for wi, (areg, off) in enumerate(P.wlist):
                t = P.fragW(buf, kk, wi)
                r.append(f"ds_read_b64_tr_b16 {half(t,0)}, v{areg} offset:{off + kk*4096}")
                r.append(f"ds_read_b64_tr_b16 {half(t,1)}, v{areg} offset:{off + kk*4096 + 512}")
            for xi, (areg0, areg1, off) in enumerate(P.xlist):
                areg = areg0 if kk == 0 else areg1
                r.append(f"ds_read_b128 {rng(P.fragX(buf, kk, xi))}, v{areg} offset:{off}")
        return r
    def mfmas(buf):
        m = []
        for kk in range(2):
            for (xi, wi, acc) in P.mf:
                m.append(f"v_mfma_f32_16x16x32_bf16 v[{acc}:{acc+3}], {rng(P.fragW(buf, kk, wi))}, {rng(P.fragX(buf, kk, xi))}, v[{acc}:{acc+3}]")
        return m
    def stats(buf):
        if not getattr(P, 'mfma_stats', False) or 'nostats' in EXP: return
        l1 = a.new("st"); l2 = a.new("st")
        a(f"s_cmp_eq_u32 s{S_J}, 1")
        a(f"s_cbranch_scc1 {l1}")
        for x in P.stats_mfmas([rng(P.fragX(buf, 0, xi)) for xi in range(4)]): a(x)
        a(f"s_branch {l2}")
        a.label(l1)
        for x in P.stats_mfmas([rng(P.fragX(buf, 1, xi)) for xi in range(4)]): a(x)
        a.label(l2)
    block = make_block(a, P.RPM)
    cons_prologue(a, P, first)
    for x in reads(0): a(x)
    for x in slot_adv(P) + P.addr_update(): a(x)
    S = P.S
    npair = (S - 1)//2
    def step(cur, fill_extra=()):
        a("s_waitcnt lgkmcnt(0)")
        a("s_barrier")
        block(mfmas(cur), reads(1 - cur), slot_adv(P) + P.addr_update() + list(fill_extra))
        stats(cur)
    a(f"s_mov_b32 s{S_CNT}, {npair}")
    lp = a.new("cloop")
    if ALIGN: a.raw(f".p2align {ALIGN}")
    a.label(lp)
    step(0, [f"s_sub_u32 s{S_CNT}, s{S_CNT}, 1"])
    step(1)
    a(f"s_cmp_lg_u32 s{S_CNT}, 0")
    a(f"s_cbranch_scc1 {lp}")
    last = 0
    if (S - 1) % 2 == 1:
        step(0); last = 1
    a("s_waitcnt lgkmcnt(0)")
    block(mfmas(last), [])
    stats(last)
    cons_tail(a, P, first)

def ptr_wait(a):
    a("s_waitcnt lgkmcnt(0)")
    if PROFDBG: a(f"s_mov_b32 s{S_P0}, s98")
    srd(a, SRD_FLAG, ptr(KA_WS), WS_FLAG, 0x20000)

def cons_lane(a):
    a("v_and_b32 v3, 15, v2")
    a("v_lshrrev_b32 v4, 4, v2")

def x_addr_const(a, dst, rowbase_sgpr, rowbase_const=0):
    a("v_lshrrev_b32 v5, 1, v3")
    a("v_xor_b32 v5, v4, v5")
    a("v_lshlrev_b32 v5, 4, v5")
    a(f"v_lshl_add_u32 v{dst}, v3, 7, v5")
    if rowbase_sgpr is not None:
        a(f"s_lshl_b32 s{S_T0}, s{rowbase_sgpr}, 7")
        a(f"v_add_u32 v{dst}, s{S_T0}, v{dst}")
    if rowbase_const:
        a(f"v_add_u32 v{dst}, {rowbase_const*128}, v{dst}")

def w_addr_const(a, dst):
    a("v_lshrrev_b32 v5, 2, v3        ; r")
    a("v_lshl_add_u32 v6, v4, 3, v5   ; 8g+r")
    a("v_lshlrev_b32 v6, 7, v6")
    a("v_lshrrev_b32 v5, 1, v5        ; r>>1")
    a("v_and_b32 v7, 1, v4")
    a("v_lshl_or_b32 v5, v7, 1, v5    ; h")
    a("v_lshl_add_u32 v6, v5, 5, v6")
    a("v_and_b32 v5, 3, v3")
    a(f"v_lshl_add_u32 v{dst}, v5, 3, v6")

def t_write_addr(a, dst, base_const):
    a("v_lshrrev_b32 v5, 1, v4")
    a("v_and_b32 v6, 7, v3")
    a("v_xor_b32 v5, v5, v6")
    a("v_lshlrev_b32 v5, 4, v5")
    a("v_and_b32 v6, 1, v4")
    a("v_lshl_add_u32 v5, v6, 3, v5")
    a(f"v_lshl_add_u32 v{dst}, v3, 7, v5")
    a(f"v_add_u32 v{dst}, {base_const}, v{dst}")

def pad_init(a, P, row0, nzero_rows, ones_row):
    a("v_mov_b32 v12, 0"); a("v_mov_b32 v13, 0"); a("v_mov_b32 v14, 0"); a("v_mov_b32 v15, 0")
    a(f"v_mov_b32 v10, {hex(ONES)}")
    a("v_lshlrev_b32 v11, 4, v2        ; lane*16")
    for rep in range((P.NS + 3)//4):
        sk = a.new("pad")
        a(f"s_add_u32 s{S_T0}, s{S_W}, {4*rep}")
        a(f"s_cmp_ge_u32 s{S_T0}, {P.NS}")
        a(f"s_cbranch_scc1 {sk}")
        a(f"s_mul_i32 s{S_T0}, s{S_T0}, {P.STAGE}")
        nb = nzero_rows*128; off = 0
        while off < nb:
            lanes = min(64, (nb - off)//16)
            a(f"v_add_u32 v16, s{S_T0}, v11")
            if lanes < 64: set_exec(a, (1 << lanes) - 1)
            a(f"ds_write_b128 v16, v[12:15] offset:{row0*128 + off}")
            if lanes < 64: a("s_mov_b64 exec, -1")
            off += lanes*16
        if ones_row is not None:
            a(f"v_lshlrev_b32 v16, 2, v2")
            a(f"v_add_u32 v16, s{S_T0}, v16")
            set_exec(a, 0xffffffff)
            a(f"ds_write_b32 v16, v10 offset:{ones_row*128}")
            a("s_mov_b64 exec, -1")
        a.label(sk)

def store_pass(a, P, ny=0):
    a("v_lshrrev_b32 v3, 3, v2")
    a("v_and_b32 v4, 7, v2")
    a("v_xor_b32 v5, v4, v3")
    a("v_lshlrev_b32 v5, 4, v5")
    a("v_lshl_add_u32 v5, v3, 7, v5")
    a(f"s_lshl_b32 s{S_T0}, s{S_WAVE}, 10")
    a(f"v_add_u32 v5, s{S_T0}, v5")
    a(f"v_add_u32 v5, {P.TBASE}, v5")
    a(f"s_lshl_b32 s{S_T0}, s{S_WAVE}, 3")
    a(f"s_add_u32 s{S_T0}, s{S_T0}, s{S_R0}")
    a(f"v_add_u32 v6, s{S_T0}, v3")
    a(f"s_mov_b32 s{S_T1}, {P.ldo}")
    a(f"v_mul_lo_u32 v7, v6, s{S_T1}")
    a(f"s_lshl_b32 s{S_T0}, s{S_C0}, 1")
    a(f"v_lshl_add_u32 v7, v4, 4, v7")
    a(f"v_add_u32 v7, s{S_T0}, v7")
    a("v_mov_b32 v8, 0x80000000")
    P.ny = ny
    P.store_body(a)
    P.set_fidx(a)

def store_addr(a, k, dst, P, coloff=0):
    a(f"v_add_u32 v9, {64*k}, v6")
    a(f"v_cmp_gt_u32 vcc, s{S_REND}, v9")
    a(f"v_add_u32 v{dst}, {64*k*P.ldo + coloff}, v7")
    a("s_nop 0")
    a(f"v_cndmask_b32 v{dst}, v8, v{dst}, vcc")

class P1(Phase):
    key = 'p1'; kind = "p1"; NT = 255
    MV = 121; NC = 128; lda = 1280; ldb = 3840; ldo = 3840
    ABYTES = 16384; STAGE = 32768; NS = 4; S = 10
    NXMAX = 4; RPM = 1
    has_stage_work = False; has_e1 = True
    mfma_stats = True
    order2 = True
    GRAM = 96; SUMA = 112; VONES = 24
    modeS = True; NACC = 64
    def fragW(self, buf, kk, wi): return ('a', 64*buf + 16*kk + 4*wi)
    def fragX(self, buf, kk, xi):
        if buf == 0: return ('a', 32 + 16*kk + 4*xi)
        return ('v', 128 + 16*kk + 4*xi)
    scA = ""
    panel_coloff = [0, 128]; panel_srd = [SRD_B0, SRD_B0]
    LDS_ST = 131072; LDS_CS = 131072 + 2048
    TBASE = 2*32768
    rot = (5, 10, 2)
    Ains = [None, None, None, 'mask']
    Bins = [(0, 0), (0, 4), (1, 0), (1, 4)]
    def __init__(self):
        self.vXc, self.vWc = 8, 9
        self.vXa, self.vXb = 10, 11
        self.vW = [12, 13, 14, 15]
        self.xlist = [(self.vXa, self.vXb, 2048*x) for x in range(4)]
        self.wlist = [(self.vW[f], self.ABYTES) for f in range(4)]
        self.ACC = 32
        self.mf = [(x, f, self.ACC + 4*(4*x + f)) for x in range(4) for f in range(4)]
    def rot_start(self, a):
        if P1ROT == "lock":
            a(f"s_mov_b32 s{S_K}, 0"); return
        if P1ROT == "two":
            a(f"s_add_u32 s{S_K}, s{S_RT}, s{S_CT}")
            a(f"s_and_b32 s{S_K}, s{S_K}, 1")
            a(f"s_mul_i32 s{S_K}, s{S_K}, 5"); return
        if P1ROT == "ten":
            a(f"s_mul_i32 s{S_K}, s{S_RT}, 3")
            a(f"s_add_u32 s{S_K}, s{S_K}, s{S_CT}")
            divc(a, S_T0, S_K, 10)
            a(f"s_mul_i32 s{S_T0}, s{S_T0}, 10")
            a(f"s_sub_u32 s{S_K}, s{S_K}, s{S_T0}"); return
        a(f"s_add_u32 s{S_K}, s{S_RT}, s{S_CT}")
        divc(a, S_T0, S_K, 5)
        a(f"s_mul_i32 s{S_T0}, s{S_T0}, 5")
        a(f"s_sub_u32 s{S_K}, s{S_K}, s{S_T0}")
        a(f"s_lshl_b32 s{S_K}, s{S_K}, 1")
    def l2_prep(self, a): l2_setup(a, "rm", 250, 64, KA_WO, D*D*2, 1280, D)
    def mid_prefetch(self, a, s):
        if s == 8: return l2_issue(a, KA_WO, 1280, D)
    def mask_setup(self, a):
        a(f"s_cmp_eq_u32 s{S_W}, 3")
        a(f"s_cselect_b32 s{S_MASK}, 0xff, -1")
        a(f"s_cselect_b32 s{S_MASK+1}, 0, -1")
    def build_srds(self, a, role):
        if role == 'l':
            srd(a, SRD_A, ptr(KA_X), 0, S_TOK*D*2)
            srd(a, SRD_B0, ptr(KA_WQKV), 0, D*NQKV*2)
        srd(a, SRD_OUT, ptr(KA_WS), WS_QKV, S_TOK*NQKV*2)
    def set_fidx(self, a):
        a(f"s_mul_i32 s{S_FIDX}, s{S_RT}, 15")
        a(f"s_add_u32 s{S_FIDX}, s{S_FIDX}, s{S_CT}")
        a(f"s_lshl_b32 s{S_FIDX}, s{S_FIDX}, 7")
    def loader_post_first(self, a):
        pad_init(a, self, 121, 6, 127)
        return 0
    def stats_mfmas(self, xregs):
        m = []
        for x in range(4):
            xa = xregs[x]
            g = self.GRAM + 4*x; sm = self.SUMA + 4*x
            m.append(f"v_mfma_f32_16x16x32_bf16 v[{g}:{g+3}], {xa}, {xa}, v[{g}:{g+3}]")
            m.append(f"v_mfma_f32_16x16x32_bf16 v[{sm}:{sm+3}], v[{self.VONES}:{self.VONES+3}], {xa}, v[{sm}:{sm+3}]")
        return m
    def consumer_setup(self, a):
        cons_lane(a)
        a(f"s_lshr_b32 s{S_I}, s{S_WAVE}, 1")
        a(f"s_and_b32 s{S_J}, s{S_WAVE}, 1")
        a(f"s_lshl_b32 s{S_T1}, s{S_I}, 6")
        x_addr_const(a, self.vXc, S_T1)
        w_addr_const(a, self.vWc)
        a(f"s_lshl_b32 s{S_T0}, s{S_J}, 13")
        a(f"v_add_u32 v{self.vWc}, s{S_T0}, v{self.vWc}")
        for r in range(4): a(f"v_mov_b32 v{self.VONES+r}, {hex(ONES)}")
        for r in range(32): a(f"v_mov_b32 v{self.GRAM+r}, 0")
        a(f"s_lshl_b32 s{S_T0}, s{S_J}, 8       ; j*64*4")
        a(f"v_lshlrev_b32 v16, 4, v4            ; g*16 bytes")
        a(f"v_add_u32 v16, s{S_T0}, v16")
        a(f"v_add_u32 v16, {self.LDS_CS}, v16")
        t_write_addr(a, 17, self.TBASE)
        a(f"s_lshl_b32 s{S_T0}, s{S_WAVE}, 13")
        a(f"v_add_u32 v17, s{S_T0}, v17")
        for f in range(1, 4): a(f"v_xor_b32 v{17+f}, {32*f}, v17")
        a(f"s_lshl_b32 s{S_T0}, s{S_I}, 9       ; i*64*8")
        a(f"s_lshl_b32 s{S_T1}, s{S_J}, 10      ; j*128*8")
        a(f"s_add_u32 s{S_T1}, s{S_T1}, s{S_T0}")
        a(f"v_lshlrev_b32 v7, 3, v3")
        a(f"v_add_u32 v21, s{S_T1}, v7")
        a(f"v_add_u32 v21, {self.LDS_ST}, v21")
        a(f"v_add_u32 v22, s{S_T0}, v7")
        a(f"v_add_u32 v22, {self.LDS_ST}, v22")
        a("v_lshrrev_b32 v5, 3, v2             ; r8")
        a("v_and_b32 v6, 7, v2                 ; c")
        a("v_xor_b32 v7, v6, v5")
        a("v_lshlrev_b32 v7, 4, v7")
        a("v_lshl_add_u32 v23, v5, 7, v7")
        a(f"s_lshl_b32 s{S_T0}, s{S_WAVE}, 13")
        a(f"s_add_u32 s{S_T0}, s{S_T0}, {self.TBASE}")
        a(f"v_add_u32 v23, s{S_T0}, v23")
        a(f"s_lshl_b32 s{S_T0}, s{S_I}, 6")
        a(f"s_add_u32 s{S_T0}, s{S_T0}, s{S_R0}")
        a(f"v_add_u32 v28, s{S_T0}, v5")
        a(f"s_mov_b32 s{S_T1}, 3840")
        a(f"v_mul_lo_u32 v28, v28, s{S_T1}")
        a("v_lshl_add_u32 v28, v6, 4, v28")
        a(f"s_lshl_b32 s{S_T0}, s{S_J}, 6")
        a(f"s_add_u32 s{S_T0}, s{S_T0}, s{S_C0}")
        a(f"s_lshl_b32 s{S_T0}, s{S_T0}, 1")
        a(f"v_add_u32 v28, s{S_T0}, v28")
    def addr_update(self):
        r = [f"v_add_u32 v{self.vXa}, s{S_SLOT}, v{self.vXc}",
             f"v_add_u32 v{self.vW[0]}, s{S_SLOT}, v{self.vWc}",
             f"v_xor_b32 v{self.vXb}, 64, v{self.vXa}"]
        for f in range(1, len(self.vW)):
            r.append(f"v_xor_b32 v{self.vW[f]}, {32*f}, v{self.vW[0]}")
        return r
    stream_epi = True
    def epilogue(self, a):
        nocs = a.new("nocs")
        a(f"s_cmp_eq_u32 s{S_I}, 1")
        a(f"s_cbranch_scc0 {nocs}")
        set_exec(a, 0x8000800080008000)
        for f in range(4):
            acc = self.ACC + 4*(4*3 + f)
            a(f"ds_write_b128 v16, v[{acc}:{acc+3}] offset:{64*f}")
        a("s_mov_b64 exec, -1")
        a.label(nocs)
        for i_, m_ in enumerate((0x22222222, 0x44444444, 0x88888888)):
            a(f"s_mov_b32 s{80+2*i_}, {hex(m_)}"); a(f"s_mov_b32 s{81+2*i_}, {hex(m_)}")
        for x in range(4):
            g = self.GRAM + 4*x
            a(f"v_cndmask_b32 v{g+1}, v{g}, v{g+1}, s[80:81]")
            a(f"v_cndmask_b32 v{g+1}, v{g+1}, v{g+2}, s[82:83]")
            a(f"v_cndmask_b32 v{g+1}, v{g+1}, v{g+3}, s[84:85]")
            a(f"v_mov_b32 v{g}, v{self.SUMA+4*x}           ; sum")
        set_exec(a, 0xF | (0xF << 20) | (0xF << 40) | (0xF << 60))
        for x in range(4):
            g = self.GRAM + 4*x
            a(f"ds_write_b64 v21, v[{g}:{g+1}] offset:{128*x}")
        a("s_mov_b64 exec, -1")
        a("s_waitcnt lgkmcnt(0)")
        a("s_barrier      ; E1")
        CS = 128; ST = 144
        for x in range(4):
            a(f"ds_read_b64 v[{ST+2*x}:{ST+2*x+1}], v22 offset:{128*x}")
            a(f"ds_read_b64 v[{96+2*x}:{97+2*x}], v22 offset:{1024 + 128*x}")
        for f in range(4):
            a(f"ds_read_b128 v[{CS+4*f}:{CS+4*f+3}], v16 offset:{64*f}")
        a("s_waitcnt lgkmcnt(4)")
        for x in range(4):
            st = ST + 2*x
            a(f"v_pk_add_f32 v[{st}:{st+1}], v[{st}:{st+1}], v[{96+2*x}:{97+2*x}]")
            a(f"v_mul_f32 v{st}, {hex(f2u(1.0/D))}, v{st}          ; mean")
            a(f"v_mul_f32 v{st+1}, {hex(f2u(1.0/D))}, v{st+1}")
            a(f"v_fma_f32 v{st+1}, -v{st}, v{st}, v{st+1}      ; var")
            a(f"v_add_f32 v{st+1}, {hex(f2u(1e-5))}, v{st+1}")
            a(f"v_rsq_f32 v{st+1}, v{st+1}")
        a("s_waitcnt lgkmcnt(0)")
        RB = [96, 104]
        def stores(x):
            rb = RB[x & 1]
            for u in range(2):
                a(f"v_add_u32 v{29+u}, {(16*x + 8*u)*3840}, v28")
            for u in range(2):
                if x == 3 and u == 1:
                    a(f"s_cmp_eq_u32 s{S_I}, 1")
                    a("s_cselect_b32 exec_lo, 0xff, -1")
                    a("s_cselect_b32 exec_hi, 0, -1")
                a(f"buffer_store_dwordx4 v[{rb+4*u}:{rb+4*u+3}], v{29+u}, s[{SRD_OUT}:{SRD_OUT+3}], 0 offen{SC1}")
            if x == 3: a("s_mov_b64 exec, -1")
        for x in range(4):
            st = ST + 2*x
            for f in range(4):
                acc = self.ACC + 4*(4*x + f)
                for hh in (0, 2):
                    a(f"v_pk_fma_f32 v[{acc+hh}:{acc+hh+1}], v[{CS+4*f+hh}:{CS+4*f+hh+1}], v[{st}:{st+1}], v[{acc+hh}:{acc+hh+1}] op_sel_hi:[1,0,1] neg_lo:[0,1,0] neg_hi:[0,1,0]")
                for hh in (0, 2):
                    a(f"v_pk_mul_f32 v[{acc+hh}:{acc+hh+1}], v[{acc+hh}:{acc+hh+1}], v[{st}:{st+1}] op_sel:[0,1] op_sel_hi:[1,1]")
                a(f"v_cvt_pk_bf16_f32 v{acc}, v{acc}, v{acc+1}")
                a(f"v_cvt_pk_bf16_f32 v{acc+1}, v{acc+2}, v{acc+3}")
                a(f"ds_write_b64 v{17+f}, v[{acc}:{acc+1}] offset:{2048*x}")
            rb = RB[x & 1]
            if x >= 1:
                a("s_waitcnt lgkmcnt(4)")
                stores(x - 1)
            for u in range(2):
                a(f"ds_read_b128 v[{rb+4*u}:{rb+4*u+3}], v23 offset:{2048*x + 1024*u}")
        a("s_waitcnt lgkmcnt(0)")
        stores(3)


class P1F(Phase):
    key = 'p1'; kind = "p1f"; NT = 256
    MV = 64; NC = 80; lda = 1280; ldb = 3840
    ABYTES = 10240; STAGE = 40960; NS = 3; S = 10
    NXMAX = 5; RPM = 1
    has_e1 = True; fused = True; custom_B = True
    scA = ""
    Ains = [None, None, 'skip']
    Bins = [dict(lds=10240 + 4096*t) for t in range(7)] + [dict(lds=10240 + 4096*7, skip=2)]
    panel_srd = [SRD_B0]
    LDS_STP = 122880
    QT = 40960; QROW = 488
    OT = 81920; OROW = 176
    ACC = 32; GRAM = 112; SUMA = 132; VONES = 152
    mfma_stats4 = True
    def __init__(self):
        self.vXc = 8; self.vXa, self.vXb = 9, 10
        self.vWc = [11, 12, 13, 14]; self.vW = [15, 16, 17, 18]
        self.xlist = [(self.vXa, self.vXb, 2048*x) for x in range(5)]
        self.wlist = None
        self.mf = [(x, j, self.ACC + 4*(4*x + j)) for x in range(5) for j in range(4)]
    def rot_start(self, a):
        if P1FROT == 'lock':
            a(f"s_mov_b32 s{S_K}, 0"); return
        if P1FROT == 'rot4':
            a(f"s_and_b32 s{S_K}, s{S_RT}, 3")
            a(f"s_and_b32 s{S_T0}, s{S_CT}, 1")
            a(f"s_lshl_b32 s{S_T0}, s{S_T0}, 2")
            a(f"s_add_u32 s{S_K}, s{S_K}, s{S_T0}"); return
        if P1FROT == 'rot8':
            a(f"s_and_b32 s{S_K}, s{S_RT}, 7")
            a(f"s_mul_i32 s{S_K}, s{S_K}, 5")
            a(f"s_lshr_b32 s{S_K}, s{S_K}, 2")
            return
        a(f"s_add_u32 s{S_K}, s{S_RT}, s{S_CT}")
        divc(a, S_T0, S_K, 5)
        a(f"s_mul_i32 s{S_T0}, s{S_T0}, 5")
        a(f"s_sub_u32 s{S_K}, s{S_K}, s{S_T0}")
        a(f"s_lshl_b32 s{S_K}, s{S_K}, 1")
    @property
    def order2(self): return P1FROT == 'latin2'
    def pre_issue(self, a):
        if not APF: return 0
        a(f"s_and_b32 s{S_T0}, s{S_CT}, 3")
        a(f"s_mul_i32 s{S_T0}, s{S_T0}, 20")
        a(f"s_add_u32 s{S_T0}, s{S_T0}, s{S_R0}")
        a(f"s_mul_i32 s{S_T0}, s{S_T0}, 1280")
        a(f"s_lshl_b32 s{S_T1}, s{S_W}, 10")
        a(f"s_add_u32 s{S_T0}, s{S_T0}, s{S_T1}")
        a("v_lshlrev_b32 v60, 4, v2")
        a(f"v_add_u32 v60, s{S_T0}, v60")
        n = 7
        for i in range(n):
            a(f"buffer_load_dwordx4 v[152:155], v60, s[{SRD_A}:{SRD_A+3}], 0 offen")
            if i + 1 < n: a("v_add_u32 v60, 4096, v60")
        return n
    def tile_consts(self, a):
        a(f"s_lshl_b32 s{S_R0}, s{S_RT}, 6")
        a(f"s_sub_u32 s{S_R0}, s{S_R0}, 14")
        a(f"s_mul_i32 s{S_C0}, s{S_CT}, 160")
    def mask_setup(self, a):
        a(f"s_cmp_eq_u32 s{S_W}, 0")
        a(f"s_cselect_b32 s{S_MASK+1}, -1, 0xffff")
        a(f"s_cmp_lt_u32 s{S_W}, 2")
        a(f"s_cselect_b32 s{S_MASK}, -1, 0")
        a(f"s_cselect_b32 s{S_MASK+1}, s{S_MASK+1}, 0")
    def custom_B_setup(self, a, vb):
        a(f"s_lshl_b32 s{S_T0}, s{S_W}, 6")
        a(f"v_add_u32 v8, s{S_T0}, v2            ; c0")
        vdiv(a, 9, 8, 10, 256)
        a("v_mul_u32_u24 v10, 10, v9")
        a("v_sub_u32 v10, v8, v10                ; ch")
        a("v_mul_u32_u24 v11, 3840, v9")
        a("v_lshl_add_u32 v11, v10, 4, v11")
        a(f"v_add_u32 v{vb}, s{S_C0}, v11         ; voff t=0")
        for t in range(1, 8):
            a("v_add_u32 v10, 6, v10")
            a("v_add_u32 v9, 25, v9")
            a("v_cmp_le_u32 vcc, 10, v10")
            a(f"v_add_u32 v{vb+t}, {25*3840 + 96}, v{vb+t-1}")
            a("v_subrev_u32 v12, 10, v10")
            a("v_cndmask_b32 v10, v10, v12, vcc")
            a("v_addc_co_u32 v9, vcc, 0, v9, vcc") if False else None
            a(f"v_add_u32 v12, {3840 - 160}, v{vb+t}")
            a(f"v_cndmask_b32 v{vb+t}, v{vb+t}, v12, vcc")
            a("v_add_u32 v12, 1, v9")
            a("v_cndmask_b32 v9, v9, v12, vcc")
            a("v_cmp_le_u32 vcc, 64, v9")
            a(f"v_add_u32 v12, {(1280 - 64*3840) & 0xffffffff}, v{vb+t}")
            a("v_subrev_u32 v13, 64, v9")
            a(f"v_cndmask_b32 v{vb+t}, v{vb+t}, v12, vcc")
            a("v_cndmask_b32 v9, v9, v13, vcc")
    def build_srds(self, a, role):
        if role == 'l':
            srd(a, SRD_A, ptr(KA_X), 0, S_TOK*D*2)
            srd(a, SRD_B0, ptr(KA_WQKV), 0, D*NQKV*2)
        srd(a, SRD_OUT, ptr(KA_WS), WS_O, 0x280000)
    def set_fidx(self, a):
        a(f"s_lshl_b32 s{S_FIDX}, s{S_RT}, 3")
        a(f"s_add_u32 s{S_FIDX}, s{S_FIDX}, s{S_CT}")
        a(f"s_lshl_b32 s{S_FIDX}, s{S_FIDX}, 7")
        a(f"s_add_u32 s{S_FIDX}, s{S_FIDX}, 0x8000")
    def l2_prep(self, a): l2_setup(a, "rm", 250, 64, KA_WO, D*D*2, 1280, D)
    @property
    def unroll(self): return SPF != 0
    def spf_setup(self, a):
        a(f"s_lshl_b32 s{S_T0}, s2, 2")
        a(f"s_add_u32 s{S_T0}, s{S_T0}, s{S_W}        ; q")
        a(f"s_mul_i32 s{S_T1}, s{S_T0}, 2560")
        a(f"s_add_u32 s98, s{ptr(KA_X)}, s{S_T1}")
        a(f"s_addc_u32 s99, s{ptr(KA_X)+1}, 0")
        sdiv(a, S_T1, S_T0, 205, 1100)
        a(f"s_mul_i32 s{S_T2}, s{S_T1}, 205")
        a(f"s_sub_u32 s{S_T2}, s{S_T0}, s{S_T2}")
        a(f"s_min_u32 s{S_T2}, s{S_T2}, 201")
        a(f"s_mul_i32 s{S_T2}, s{S_T2}, 1216")
        a(f"s_lshl_b32 s{S_T1}, s{S_T1}, 1")
        a(f"s_add_u32 s{S_T1}, s{S_T1}, 1")
        a(f"s_mul_i32 s{S_T1}, s{S_T1}, 245760")
        a(f"s_add_u32 s{S_T1}, s{S_T1}, s{S_T2}")
        a(f"s_add_u32 s100, s{ptr(KA_WQKV)}, s{S_T1}")
        a(f"s_addc_u32 s101, s{ptr(KA_WQKV)+1}, 0")
    def spf_list(self):
        L_ = []
        for i in range(19): L_.append(("s[100:101]", 64*i))
        for k in (1, 3, 5, 7, 9):
            for r in range(2):
                for h in range(2): L_.append(("s[98:99]", r*1280 + k*128 + h*64))
        return L_
    def mid_prefetch(self, a, s):
        if SPF:
            if s == 0: self.spf_setup(a)
            L_ = self.spf_list()
            per = SPF
            if s >= 1 and s <= 4:
                for base, off in L_[per*(s-1): per*s]:
                    a(f"s_load_dword s3, {base}, {off}")
            if SPF2 and s >= 5:
                if s == 5:
                    a(f"s_lshl_b32 s{S_T0}, s2, 2")
                    a(f"s_add_u32 s{S_T0}, s{S_T0}, s{S_W}")
                    a(f"s_mul_i32 s{S_T1}, s{S_T0}, 800")
                    a(f"s_add_u32 s98, s{ptr(KA_WO)}, s{S_T1}")
                    a(f"s_addc_u32 s99, s{ptr(KA_WO)+1}, 0")
                    a(f"s_mul_i32 s{S_T1}, s{S_T0}, 2160")
                    a(f"s_add_u32 s100, s{ptr(SPF2)}, s{S_T1}")
                    a(f"s_addc_u32 s101, s{ptr(SPF2)+1}, 0")
                L2 = [("s[98:99]", 64*i) for i in range(13)] + [("s[100:101]", 64*i) for i in range(34)]
                for base, off in L2[10*(s-5): 10*(s-4)]:
                    a(f"s_load_dword s3, {base}, {off}")
        if s == 9: return l2_issue(a, KA_WO, 1280, D)
    def loader_post_first(self, a):
        pad_init(a, self, 78, 1, 79)
        self.att_setup(a)
        return 0
    def att_setup(self, a):
        QT, QROW = self.QT, self.QROW
        a("v_and_b32 v3, 3, v2             ; i")
        a("v_bfe_u32 v4, v2, 2, 2          ; head")
        a("v_lshrrev_b32 v5, 4, v2         ; grp")
        a("v_lshrrev_b32 v6, 1, v5")
        a("v_lshlrev_b32 v6, 3, v6")
        a("v_and_b32 v7, 1, v5")
        a("v_add_u32 v6, v6, v7")
        a(f"s_lshl_b32 s{S_T0}, s{S_W}, 4")
        a(f"v_add_u32 v6, s{S_T0}, v6")
        a("v_lshlrev_b32 v7, 1, v3")
        a("v_add_u32 v7, v6, v7            ; rb + 2i")
        a(f"v_mul_u32_u24 v8, {QROW}, v7")
        a("v_mul_u32_u24 v9, 40, v4")
        a("v_add_u32 v8, v8, v9")
        a(f"v_add_u32 v144, {QT + 14*QROW}, v8")
        a(f"v_add_u32 v145, {QT + 160}, v8")
        a("v_cmp_eq_u32 vcc, 3, v3")
        a(f"v_mov_b32 v10, {16*QROW}")
        a(f"v_mov_b32 v11, {14*QROW}")
        a("v_cndmask_b32 v10, v10, v11, vcc")
        a("v_add_u32 v146, v145, v10")
        a(f"v_mul_u32_u24 v12, {self.OROW}, v7")
        a("v_add_u32 v12, v12, v9")
        a(f"v_add_u32 v118, {self.OT}, v12")
        a("v_lshlrev_b32 v12, 1, v4               ; 2r")
        a("v_add_u32 v12, v6, v12")
        a(f"v_mul_u32_u24 v12, {QROW}, v12")
        a("v_mul_u32_u24 v13, 40, v3")
        a("v_add_u32 v12, v12, v13")
        a(f"v_add_u32 v147, {QT + 320}, v12")
        a("v_cmp_eq_u32 vcc, 3, v4")
        a(f"v_mov_b32 v10, {16*QROW}")
        a("s_nop 0")
        a("v_cndmask_b32 v10, v10, v11, vcc")
        a("v_add_u32 v119, v147, v10")
        a(f"v_mov_b32 v12, {hex(f2u(-1e30))}")
        a("v_mov_b32 v13, 0")
        a(f"v_add_u32 v14, s{S_R0}, v6")
        for m in range(12):
            a(f"v_sub_u32 v15, {m}, v3")
            a("v_cmp_gt_u32 vcc, 8, v15")
            a(f"v_add_u32 v16, {2*m}, v14")
            a("v_cmp_le_i32 s[4:5], 0, v16")
            a("s_nop 1")
            a("s_and_b64 vcc, vcc, s[4:5]")
            a(f"v_cndmask_b32 v{120+m}, v12, v13, vcc")
        self.store_addr_setup(a)
    def store_addr_setup(self, a, regs=(148, 149, 156, 157), tmp=3):
        lm, lt, gm, gt = regs
        t0, t1, t2 = tmp, tmp + 1, tmp + 2
        a(f"v_lshrrev_b32 v{t0}, 3, v2             ; r8")
        a(f"v_and_b32 v{t1}, 7, v2                 ; p")
        a(f"s_lshl_b32 s{S_T0}, s{S_WAVE}, 3")
        a(f"v_add_u32 v{t2}, s{S_T0}, v{t0}")
        a(f"v_mul_u32_u24 v{lm}, {self.OROW}, v{t2}")
        a(f"v_lshl_add_u32 v{lm}, v{t1}, 4, v{lm}")
        a(f"v_add_u32 v{lm}, {self.OT}, v{lm}")
        a(f"s_add_u32 s{S_T0}, s{S_R0}, 14          ; T0")
        a(f"v_add_u32 v{gm}, s{S_T0}, v{t2}")
        a(f"v_lshlrev_b32 v{gm}, 10, v{gm}")
        a(f"v_lshl_add_u32 v{gm}, v{t1}, 4, v{gm}")
        a(f"s_lshl_b32 s{S_T1}, s{S_CT}, 7          ; hg*128")
        a(f"v_add_u32 v{gm}, s{S_T1}, v{gm}")
        a(f"v_lshrrev_b32 v{t0}, 1, v{t1}")
        a(f"v_lshl_add_u32 v{t0}, v{t2}, 2, v{t0}   ; token")
        a(f"v_mul_u32_u24 v{lt}, {self.OROW}, v{t0}")
        a(f"v_and_b32 v{t0}, 1, v{t1}")
        a(f"v_lshl_add_u32 v{lt}, v{t0}, 4, v{lt}")
        a(f"v_add_u32 v{lt}, {self.OT + 128}, v{lt}")
        a(f"s_lshr_b32 s{S_T0}, s{S_T0}, 2          ; T0/4")
        a(f"v_add_u32 v{gt}, s{S_T0}, v{t2}")
        a(f"v_lshlrev_b32 v{gt}, 10, v{gt}")
        a(f"v_lshl_add_u32 v{gt}, v{t1}, 4, v{gt}")
        a(f"s_add_u32 s{S_T1}, s{S_T1}, 0x200000")
        a(f"v_add_u32 v{gt}, s{S_T1}, v{gt}")
    def o_stores(self, a):
        a(f"ds_read_b128 v[20:23], v148")
        sk = a.new("ost")
        a(f"s_cmp_ge_u32 s{S_WAVE}, 2")
        a(f"s_cbranch_scc1 {sk}")
        a(f"ds_read_b128 v[24:27], v149")
        a("s_waitcnt lgkmcnt(0)")
        a(f"buffer_store_dwordx4 v[24:27], v157, s[{SRD_OUT}:{SRD_OUT+3}], 0 offen{OSC}")
        a.label(sk)
        a("s_waitcnt lgkmcnt(0)")
        a(f"buffer_store_dwordx4 v[20:23], v156, s[{SRD_OUT}:{SRD_OUT+3}], 0 offen{OSC}")
    def loader_fused_tail(self, a):
        l2_setup(a, "p3", 243, 64, KA_WG, D*F*2, 3456, D)
        a("s_barrier      ; E1")
        l2_issue(a, KA_WG, 3456, D)
        a("s_barrier")
        Q = 16; KR = 32; VR = 62; SC = 92; BIAS = 120; PB = 104
        QROW = self.QROW
        for dg in range(5):
            a(f"ds_read_b64 v[{Q+2*dg}:{Q+2*dg+1}], v144 offset:{8*dg}")
        for kb in range(3):
            for dg in range(5):
                r = KR + 2*(5*kb + dg)
                if kb < 2: a(f"ds_read_b64 v[{r}:{r+1}], v145 offset:{8*QROW*kb + 8*dg}")
                else: a(f"ds_read_b64 v[{r}:{r+1}], v146 offset:{8*dg}")
        scale = (D // 32) ** -0.5
        c1 = scale * 1.4426950408889634
        a(f"s_mov_b32 s{S_T2}, {hex(f2u(c1))}")
        a("s_waitcnt lgkmcnt(0)")
        for kb in range(3):
            for dg in range(5):
                r = VR + 2*(5*kb + dg)
                if kb < 2: a(f"ds_read_b64_tr_b16 v[{r}:{r+1}], v147 offset:{8*QROW*kb + 8*dg}")
                else: a(f"ds_read_b64_tr_b16 v[{r}:{r+1}], v119 offset:{8*dg}")
        for dg in range(5):
            for kb in range(3):
                r = KR + 2*(5*kb + dg); sc = SC + 4*kb
                c = "0" if dg == 0 else f"v[{sc}:{sc+3}]"
                a(f"v_mfma_f32_4x4x4_16b_bf16 v[{sc}:{sc+3}], v[{r}:{r+1}], v[{Q+2*dg}:{Q+2*dg+1}], {c}")
        a("s_nop 4")
        for m in range(12):
            a(f"v_fma_f32 v{SC+m}, v{SC+m}, s{S_T2}, v{BIAS+m}")
        a(f"v_max3_f32 v14, v{SC}, v{SC+1}, v{SC+2}")
        a(f"v_max3_f32 v15, v{SC+3}, v{SC+4}, v{SC+5}")
        a(f"v_max3_f32 v14, v14, v{SC+6}, v{SC+7}")
        a(f"v_max3_f32 v15, v15, v{SC+8}, v{SC+9}")
        a(f"v_max3_f32 v14, v14, v{SC+10}, v{SC+11}")
        a("v_max_f32 v14, v14, v15")
        for m in range(12):
            a(f"v_sub_f32 v{SC+m}, v{SC+m}, v14")
        for m in range(12):
            a(f"v_exp_f32 v{SC+m}, v{SC+m}")
        a(f"v_add_f32 v14, v{SC}, v{SC+1}")
        a(f"v_add_f32 v15, v{SC+2}, v{SC+3}")
        for m in range(4, 12, 2):
            a(f"v_add_f32 v14, v14, v{SC+m}")
            a(f"v_add_f32 v15, v15, v{SC+m+1}")
        a("v_add_f32 v14, v14, v15")
        a("v_rcp_f32 v14, v14")
        a("s_nop 0")
        for m in range(12):
            a(f"v_mul_f32 v{SC+m}, v{SC+m}, v14")
        for m in range(0, 12, 2):
            a(f"v_cvt_pk_bf16_f32 v{PB+m//2}, v{SC+m}, v{SC+m+1}")
        a("s_waitcnt lgkmcnt(0)")
        a("s_nop 0")
        OA = 32
        for kb in range(3):
            for dg in range(5):
                r = VR + 2*(5*kb + dg); o = OA + 4*dg
                c = "0" if kb == 0 else f"v[{o}:{o+3}]"
                a(f"v_mfma_f32_4x4x4_16b_bf16 v[{o}:{o+3}], v[{r}:{r+1}], v[{PB+2*kb}:{PB+2*kb+1}], {c}")
        a("s_nop 5")
        for dg in range(5):
            o = OA + 4*dg
            a(f"v_cvt_pk_bf16_f32 v{Q+2*dg}, v{o}, v{o+1}")
            a(f"v_cvt_pk_bf16_f32 v{Q+2*dg+1}, v{o+2}, v{o+3}")
            a(f"ds_write_b64 v118, v[{Q+2*dg}:{Q+2*dg+1}] offset:{8*dg}")
        a("s_waitcnt lgkmcnt(0)")
        a("s_barrier")
        self.o_stores(a)
        self.set_fidx(a)
    def consumer_setup(self, a):
        cons_lane(a)
        x_addr_const(a, self.vXc, None)
        a("v_lshrrev_b32 v5, 2, v3        ; r")
        a("v_lshl_add_u32 v5, v4, 3, v5   ; 8g + r")
        a("v_mul_u32_u24 v5, 160, v5")
        a("v_and_b32 v6, 3, v3")
        a("v_lshl_add_u32 v5, v6, 3, v5")
        for j in range(4):
            a(f"s_lshl_b32 s{S_T0}, s{S_WAVE}, 2")
            a(f"s_add_u32 s{S_T0}, s{S_T0}, {j}")
            a(f"s_min_u32 s{S_T0}, s{S_T0}, 14")
            divc(a, S_T1, S_T0, 5)
            a(f"s_mul_i32 s{S_T2}, s{S_T1}, 5")
            a(f"s_sub_u32 s{S_T2}, s{S_T0}, s{S_T2}       ; f%5")
            a(f"s_lshl_b32 s{S_T2}, s{S_T2}, 5")
            a(f"s_mul_i32 s{S_T3}, s{S_T1}, 10240")
            a(f"s_add_u32 s{S_T3}, s{S_T3}, s{S_T2}")
            a(f"s_add_u32 s{S_T3}, s{S_T3}, {self.ABYTES}")
            a(f"v_add_u32 v{self.vWc[j]}, s{S_T3}, v5")
            a(f"s_mul_i32 s{S_T3}, s{S_T1}, 160")
            a(f"s_add_u32 s{S_T3}, s{S_T3}, s{S_T2}")
            a(f"s_add_u32 s{S_T3}, s{S_T3}, {self.QT}")
            a(f"v_mul_u32_u24 v6, {self.QROW}, v3")
            a("v_lshl_add_u32 v6, v4, 3, v6")
            a(f"v_add_u32 v{20+j}, s{S_T3}, v6")
        for r in range(4): a(f"v_mov_b32 v{self.VONES+r}, {hex(ONES)}")
        for r in range(40): a(f"v_mov_b32 v{self.GRAM+r}, 0")
        a("v_lshlrev_b32 v25, 3, v3")
        a(f"v_add_u32 v25, {self.LDS_STP}, v25")
        a(f"s_mul_i32 s{S_T0}, s{S_WAVE}, 640")
        a(f"v_add_u32 v24, s{S_T0}, v25")
        a(f"s_mov_b32 s{S_N1}, 0")
        self.store_addr_setup_c(a)
        NW = 4
        self.wlist = [(self.vW[j], 0) for j in range(4)]
        self.wstep = (5120, 640)
    def store_addr_setup_c(self, a):
        self.store_addr_setup(a, regs=(26, 27, 28, 29), tmp=5)
    def addr_update(self):
        r = [f"v_add_u32 v{self.vXa}, s{S_SLOT}, v{self.vXc}"]
        r += [f"v_add_u32 v{self.vW[j]}, s{S_SLOT}, v{self.vWc[j]}" for j in range(4)]
        r += [f"v_xor_b32 v{self.vXb}, 64, v{self.vXa}"]
        return r
    def stats_mfmas(self, xregs):
        m = []
        for x in range(5):
            xa = xregs[x]
            g = self.GRAM + 4*x; sm = self.SUMA + 4*x
            m.append(f"v_mfma_f32_16x16x32_bf16 v[{g}:{g+3}], {xa}, {xa}, v[{g}:{g+3}]")
            m.append(f"v_mfma_f32_16x16x32_bf16 v[{sm}:{sm+3}], v[{self.VONES}:{self.VONES+3}], {xa}, v[{sm}:{sm+3}]")
        return m
    def epilogue(self, a):
        for i_, m_ in enumerate((0x22222222, 0x44444444, 0x88888888)):
            a(f"s_mov_b32 s{80+2*i_}, {hex(m_)}"); a(f"s_mov_b32 s{81+2*i_}, {hex(m_)}")
        for x in range(5):
            g = self.GRAM + 4*x
            a(f"v_cndmask_b32 v{g+1}, v{g}, v{g+1}, s[80:81]")
            a(f"v_cndmask_b32 v{g+1}, v{g+1}, v{g+2}, s[82:83]")
            a(f"v_cndmask_b32 v{g+1}, v{g+1}, v{g+3}, s[84:85]")
            a(f"v_mov_b32 v{g}, v{self.SUMA+4*x}")
        set_exec(a, 0xF | (0xF << 20) | (0xF << 40) | (0xF << 60))
        for x in range(5):
            g = self.GRAM + 4*x
            a(f"ds_write_b64 v24, v[{g}:{g+1}] offset:{128*x}")
        a("s_mov_b64 exec, -1")
        CS = 132
        for j in range(4):
            acc = self.ACC + 4*(4*4 + j)
            for r in range(4):
                a(f"v_mov_b32_dpp v{CS+4*j+r}, v{acc+r} row_newbcast:15 row_mask:0xf bank_mask:0xf")
        a("s_waitcnt lgkmcnt(0)")
        a("s_barrier      ; E1")
        ST = 8
        TM = 112
        for x in range(5):
            for wv in range(4):
                if x < 5:
                    pass
        for x in range(5):
            base = TM + 4*x if False else None
        regs = {0: 112, 1: 120, 2: 112, 3: 120, 4: 112}
        def rd(x):
            for wv in range(4):
                r = regs[x] + 2*wv
                a(f"ds_read_b64 v[{r}:{r+1}], v25 offset:{640*wv + 128*x}")
        def fin(x):
            r = regs[x]; st = ST + 2*x
            a(f"v_pk_add_f32 v[{r}:{r+1}], v[{r}:{r+1}], v[{r+2}:{r+3}]")
            a(f"v_pk_add_f32 v[{r+4}:{r+5}], v[{r+4}:{r+5}], v[{r+6}:{r+7}]")
            a(f"v_pk_add_f32 v[{st}:{st+1}], v[{r}:{r+1}], v[{r+4}:{r+5}]")
            a(f"v_mul_f32 v{st}, {hex(f2u(1.0/D))}, v{st}")
            a(f"v_mul_f32 v{st+1}, {hex(f2u(1.0/D))}, v{st+1}")
            a(f"v_fma_f32 v{st+1}, -v{st}, v{st}, v{st+1}")
            a(f"v_add_f32 v{st+1}, {hex(f2u(1e-5))}, v{st+1}")
            a(f"v_rsq_f32 v{st+1}, v{st+1}")
        rd(0); rd(1)
        a("s_waitcnt lgkmcnt(4)"); fin(0); rd(2)
        a("s_waitcnt lgkmcnt(4)"); fin(1); rd(3)
        a("s_waitcnt lgkmcnt(4)"); fin(2); rd(4)
        a("s_waitcnt lgkmcnt(4)"); fin(3)
        a("s_waitcnt lgkmcnt(0)"); fin(4)
        a("s_nop 0")
        for x in range(5):
            st = ST + 2*x
            for j in range(4):
                acc = self.ACC + 4*(4*x + j)
                for hh in (0, 2):
                    a(f"v_pk_fma_f32 v[{acc+hh}:{acc+hh+1}], v[{CS+4*j+hh}:{CS+4*j+hh+1}], v[{st}:{st+1}], v[{acc+hh}:{acc+hh+1}] op_sel_hi:[1,0,1] neg_lo:[0,1,0] neg_hi:[0,1,0]")
                for hh in (0, 2):
                    a(f"v_pk_mul_f32 v[{acc+hh}:{acc+hh+1}], v[{acc+hh}:{acc+hh+1}], v[{st}:{st+1}] op_sel:[0,1] op_sel_hi:[1,1]")
                a(f"v_cvt_pk_bf16_f32 v{acc}, v{acc}, v{acc+1}")
                a(f"v_cvt_pk_bf16_f32 v{acc+1}, v{acc+2}, v{acc+3}")
                a(f"ds_write_b64 v{20+j}, v[{acc}:{acc+1}] offset:{16*x*self.QROW}")
        a("s_waitcnt lgkmcnt(0)")
        a("s_barrier")
        a("s_barrier")
        a(f"ds_read_b128 v[32:35], v26")
        sk = a.new("ost")
        a(f"s_cmp_ge_u32 s{S_WAVE}, 2")
        a(f"s_cbranch_scc1 {sk}")
        a(f"ds_read_b128 v[36:39], v27")
        a("s_waitcnt lgkmcnt(0)")
        a(f"buffer_store_dwordx4 v[36:39], v29, s[{SRD_OUT}:{SRD_OUT+3}], 0 offen{OSC}")
        a.label(sk)
        a("s_waitcnt lgkmcnt(0)")
        a(f"buffer_store_dwordx4 v[32:35], v28, s[{SRD_OUT}:{SRD_OUT+3}], 0 offen{OSC}")
    stream_epi = True

class P24(Phase):
    kind = "rm"; NT = 250
    MV = 82; NC = 64; ldb = 1280; ldo = 1280
    ABYTES = 12288; STAGE = 20480; NS = 7
    NXMAX = 3; RPM = 2
    modeS = True; NACC = 24
    def fragW(self, buf, kk, wi): return ('a', 40*buf + 8*kk + 4*wi)
    def fragX(self, buf, kk, xi): return ('a', 40*buf + 16 + 12*kk + 4*xi)
    scA = SC1
    panel_coloff = [0]; panel_srd = [SRD_B0]
    TBASE = 0
    Ains = [None, None, 'skip']
    Bins = [(0, 0), (0, 4)]
    prefetchB = 7
    def __init__(self, which):
        self.which = which
        if which == 2:
            self.key = 'p2'; self.lda = 1024 if FUSE else 1280; self.S = 10; self.rot = P2ROT
            self.oprime = FUSE
        else:
            self.key = 'p4'; self.lda = 3456; self.S = 27; self.rot = P4ROT; self.extraB = 1
        assert (self.S - 1) % self.NS != 0
        self.vXc, self.vWc = 8, 9
        self.vXa, self.vXb = 10, 11
        self.vW = [12, 13]
        self.xlist = [(self.vXa, self.vXb, 2048*x) for x in range(3)]
        self.wlist = [(self.vW[f], self.ABYTES) for f in range(2)]
        self.ACC = 32
        self.mf = [(x, f, self.ACC + 4*(2*x + f)) for x in range(3) for f in range(2)]
    def l2_prep(self, a):
        if self.which == 2: l2_setup(a, "p3", 243, 64, KA_WU, D*F*2, 3456, D)
    @property
    def gate(self): return GATE4 if (GATE and self.which == 4) else None
    def mid_prefetch(self, a, s):
        if self.which == 2 and s == 8: return l2_issue(a, KA_WU, 3456, D)
    def mask_setup(self, a):
        a(f"s_cmp_lt_u32 s{S_W}, 2")
        a(f"s_cselect_b32 s{S_MASK}, -1, 0xffff")
        a(f"s_cselect_b32 s{S_MASK+1}, -1, 0")
        a(f"s_cmp_eq_u32 s{S_W}, 3")
        a(f"s_cselect_b32 s{S_MASK}, 0, s{S_MASK}")
    def build_srds(self, a, role):
        if self.which == 2:
            if role == 'l':
                srd(a, SRD_A, ptr(KA_WS), WS_O, 0x280000 if FUSE else S_TOK*D*2)
                srd(a, SRD_B0, ptr(KA_WO), 0, D*D*2)
            srd(a, SRD_OUT, ptr(KA_WS), WS_H, S_TOK*D*2)
            srd(a, SRD_AUX, ptr(KA_X), 0, S_TOK*D*2)
            srd(a, SRD_ST, ptr(KA_WS), WS_ST, 250*1536)
        else:
            if role == 'l':
                srd(a, SRD_A, ptr(KA_WS), WS_HH, S_TOK*F*2)
                srd(a, SRD_B0, ptr(KA_WD), 0, F*D*2)
            srd(a, SRD_OUT, ptr(KA_OUT), 0, S_TOK*D*2)
            srd(a, SRD_AUX, ptr(KA_WS), WS_H, S_TOK*D*2)
    def dep_range(self, a):
        if self.which == 2:
            sh = 6 if FUSE else 4
            a(f"s_lshr_b32 s{S_T0}, s{S_R0}, {sh}")
            a(f"s_sub_u32 s{S_T1}, s{S_REND}, 1")
            a(f"s_lshr_b32 s{S_T1}, s{S_T1}, {sh}")
        else:
            sdiv(a, S_T0, S_R0, 228, 2100)
            a(f"s_sub_u32 s{S_T1}, s{S_REND}, 1")
            sdiv(a, S_T1, S_T1, 228, 2100)
    def deps_first(self, a):
        first_ks(a, self)
        if self.which == 2 and FUSE:
            for src, dst in ((S_K, S_T2), (S_KB, S_T3)):
                a(f"s_lshl_b32 s{dst}, 1, s{src}")
                a(f"s_sub_u32 s{S_T4}, s{src}, 8")
                a(f"s_lshl_b32 s{S_T4}, s{S_T4}, 2")
                a(f"s_lshl_b32 s{S_T4}, 15, s{S_T4}")
                a(f"s_cmp_ge_u32 s{src}, 8")
                a(f"s_cselect_b32 s{dst}, s{S_T4}, s{dst}")
            a(f"s_or_b32 s{S_T2}, s{S_T2}, s{S_T3}")
            self.dep_range(a)
            skip = a.new("pollskip")
            a(f"s_cmp_eq_u32 s{S_WAVE}, 0")
            a(f"s_cbranch_scc0 {skip}")
            a("v_and_b32 v141, 7, v2                 ; group j")
            a(f"v_lshrrev_b32 v142, v141, s{S_T2}") if False else None
            a(f"v_mov_b32 v142, s{S_T2}")
            a("v_lshrrev_b32 v142, v141, v142")
            a("v_and_b32 v142, 1, v142")
            a("v_lshrrev_b32 v140, 3, v2")
            a(f"v_add_u32 v140, s{S_T0}, v140")
            a(f"v_cmp_ge_u32 vcc, s{S_T1}, v140")
            a("v_cmp_eq_u32 s[82:83], 1, v142")
            a("v_lshl_add_u32 v140, v140, 3, v141")
            a("v_lshlrev_b32 v140, 7, v140")
            a("v_add_u32 v140, 0x8000, v140")
            a("s_and_b64 vcc, vcc, s[82:83]")
            poll_core(a)
            a.label(skip)
            return
        if self.which == 2:
            for r in (S_K, S_KB):
                a(f"s_cmp_ge_u32 s{r}, 5")
                a(f"s_cselect_b32 s{r}, 1, 0")
        self.dep_range(a)
        if self.gate: poll_first_g(a, S_T0, S_T1, 27, S_K, self.S, self.gate[0], 0x18000)
        else: poll_first(a, S_T0, S_T1, 2 if self.which == 2 else 27, S_K, S_KB, 0x8000 if self.which == 2 else 0x18000)
    def deps(self, a, wave=0):
        W = (8 if FUSE else 2) if self.which == 2 else 27
        self.dep_range(a)
        a(f"s_mul_i32 s{S_T0}, s{S_T0}, {W}")
        a(f"s_add_u32 s{S_T1}, s{S_T1}, 1")
        a(f"s_mul_i32 s{S_T1}, s{S_T1}, {W}")
        poll(a, S_T0, S_T1, 0x8000 if self.which == 2 else 0x18000, wave)
    def set_fidx(self, a):
        if self.which == 2:
            a(f"s_mul_i32 s{S_FIDX}, s{S_RT}, 10")
            a(f"s_add_u32 s{S_FIDX}, s{S_FIDX}, s{S_CT}")
            a(f"s_lshl_b32 s{S_FIDX}, s{S_FIDX}, 7")
            a(f"s_add_u32 s{S_FIDX}, s{S_FIDX}, 0x10000")
        else:
            a(f"s_mov_b32 s{S_FIDX}, -1")
    def loader_post_first(self, a):
        pad_init(a, self, 82, 14, None)
        return 0
    def consumer_setup(self, a):
        cons_lane(a)
        a(f"s_lshr_b32 s{S_I}, s{S_WAVE}, 1")
        a(f"s_and_b32 s{S_J}, s{S_WAVE}, 1")
        a(f"s_mul_i32 s{S_T1}, s{S_I}, 48")
        x_addr_const(a, self.vXc, S_T1)
        w_addr_const(a, self.vWc)
        a(f"s_lshl_b32 s{S_T0}, s{S_J}, 6      ; f0 = 2j -> xor 64j")
        a(f"v_xor_b32 v{self.vWc}, s{S_T0}, v{self.vWc}")
        t_write_addr(a, 17, self.TBASE)
        a(f"s_mul_i32 s{S_T0}, s{S_I}, {48*128}")
        a(f"v_add_u32 v17, s{S_T0}, v17")
        a(f"s_lshl_b32 s{S_T0}, s{S_J}, 6")
        a(f"v_xor_b32 v17, s{S_T0}, v17        ; f0 = 2j")
        a(f"v_xor_b32 v18, 32, v17")
    def addr_update(self):
        return P1.addr_update(self)
    def epilogue(self, a):
        for x in range(3):
            for f in range(2):
                acc = self.ACC + 4*(2*x + f)
                a(f"v_cvt_pk_bf16_f32 v{acc}, v{acc}, v{acc+1}")
                a(f"v_cvt_pk_bf16_f32 v{acc+1}, v{acc+2}, v{acc+3}")
                a(f"ds_write_b64 v{17+f}, v[{acc}:{acc+1}] offset:{2048*x}")
    RES = 100
    early_pre = True
    def early_setup(self, a):
        a("v_lshrrev_b32 v112, 3, v2")
        a("v_and_b32 v113, 7, v2")
        a("v_xor_b32 v108, v113, v112")
        a("v_lshlrev_b32 v108, 4, v108")
        a("v_lshl_add_u32 v108, v112, 7, v108")
        a(f"s_lshl_b32 s{S_T0}, s{S_WAVE}, 10")
        a(f"s_add_u32 s{S_T0}, s{S_T0}, {self.TBASE}")
        a(f"v_add_u32 v108, s{S_T0}, v108")
        a(f"s_lshl_b32 s{S_T0}, s{S_WAVE}, 3")
        a(f"s_add_u32 s{S_T0}, s{S_T0}, s{S_R0}")
        a(f"v_add_u32 v111, s{S_T0}, v112")
        a("v_mul_u32_u24 v109, 1280, v111")
        a(f"s_lshl_b32 s{S_T0}, s{S_C0}, 1")
        a("v_lshl_add_u32 v109, v113, 4, v109")
        a(f"v_add_u32 v109, s{S_T0}, v109")
        a(f"v_add_u32 v110, {64*1280}, v109")
        a("v_mov_b32 v114, 0x80000000")
        a(f"v_cmp_gt_u32 vcc, s{S_REND}, v111")
        a(f"v_add_u32 v115, 64, v111")
        a("s_nop 0")
        a("v_cndmask_b32 v109, v114, v109, vcc")
        a(f"v_cmp_gt_u32 vcc, s{S_REND}, v115")
        a("s_nop 1")
        a("v_cndmask_b32 v110, v114, v110, vcc")
        sc = SC1 if self.which == 4 else ""
        a(f"buffer_load_dwordx4 v[{self.RES}:{self.RES+3}], v109, s[{SRD_AUX}:{SRD_AUX+3}], 0 offen{sc}")
        a(f"buffer_load_dwordx4 v[{self.RES+4}:{self.RES+7}], v110, s[{SRD_AUX}:{SRD_AUX+3}], 0 offen{sc}")
        return 2
    def store_fast(self, a):
        sdone = a.new("sdone")
        sc = SC1 if self.which == 2 else OUTSC
        for k in range(2):
            a(f"ds_read_b128 v[{16+4*k}:{19+4*k}], v108 offset:{k*8192}")
        if self.which == 2:
            a(f"v_mov_b32 v26, {hex(ONES)}")
        a(f"s_waitcnt vmcnt(0) lgkmcnt(0)")
        for k in range(2):
            if k == 1:
                a(f"s_cmp_ge_u32 s{S_WAVE}, 3")
                a(f"s_cbranch_scc1 {sdone}")
            T = 16 + 4*k; R = self.RES + 4*k
            for d in range(4):
                a(f"v_lshlrev_b32 v28, 16, v{T+d}")
                a(f"v_and_b32 v29, 0xffff0000, v{T+d}")
                a(f"v_lshlrev_b32 v30, 16, v{R+d}")
                a(f"v_and_b32 v31, 0xffff0000, v{R+d}")
                a(f"v_pk_add_f32 v[28:29], v[28:29], v[30:31]")
                a(f"v_cvt_pk_bf16_f32 v{T+d}, v28, v29")
            a(f"buffer_store_dwordx4 v[{T}:{T+3}], v{109+k}, s[{SRD_OUT}:{SRD_OUT+3}], 0 offen{sc}")
            if self.which == 2:
                a("v_mov_b32 v24, 0"); a("v_mov_b32 v25, 0")
                a("s_nop 0")
                for d in range(4):
                    a(f"v_dot2_f32_bf16 v24, v{T+d}, v26, v24")
                    a(f"v_dot2_f32_bf16 v25, v{T+d}, v{T+d}, v25")
                a("s_nop 2")
                for dpp in ("quad_perm:[1,0,3,2]", "quad_perm:[2,3,0,1]", "row_half_mirror"):
                    a(f"v_add_f32_dpp v24, v24, v24 {dpp} row_mask:0xf bank_mask:0xf")
                    a(f"v_add_f32_dpp v25, v25, v25 {dpp} row_mask:0xf bank_mask:0xf")
                    a("s_nop 0")
                a(f"s_mul_i32 s{S_T0}, s{S_RT}, 10")
                a(f"s_add_u32 s{S_T0}, s{S_T0}, s{S_CT}")
                a(f"s_mul_i32 s{S_T0}, s{S_T0}, 1536")
                a(f"s_lshl_b32 s{S_T1}, s{S_WAVE}, 7")
                a(f"s_add_u32 s{S_T0}, s{S_T0}, s{S_T1}")
                a(f"v_lshrrev_b32 v9, 3, v2")
                a(f"v_lshlrev_b32 v9, 4, v9")
                a(f"v_add_u32 v9, s{S_T0}, v9")
                a("v_mov_b32 v12, v24"); a("v_mov_b32 v13, v25"); a("v_mov_b32 v14, 0"); a("v_mov_b32 v15, 0")
                set_exec(a, 0x0101010101010101)
                a(f"buffer_store_dwordx4 v[12:15], v9, s[{SRD_ST}:{SRD_ST+3}], 0 offen offset:{1024*k}{SC1}")
                a("s_mov_b64 exec, -1")
        a.label(sdone)

class P3(Phase):
    key = 'p3'; kind = "p3"; NT = 243
    MV = 228; NC = 64; lda = 1280; ldb = 3456; ldo = 3456
    ABYTES = 30720; STAGE = 47104; NS = 3; S = 10
    NXMAX = 8; RPM = 1
    has_e1 = True
    scA = SC1
    panel_coloff = [0, 0]; panel_srd = [SRD_B0, SRD_B1]
    LDS_ST = 47104*3; LDS_CS = 47104*3 + 1920
    TBASE = 47104
    @property
    def rot(self): return P3ROT
    Ains = [None]*7 + ['skip']
    Bins = [(0, 0), (0, 4), (1, 0), (1, 4)]
    prefetchB = 3
    def __init__(self):
        self.vXc, self.vXsc, self.vWc = 8, 9, 10
        self.vXa, self.vXb, self.vXsa, self.vXsb = 11, 12, 13, 14
        self.vW = [15, 16]
        self.xlist = [(self.vXa, self.vXb, 2048*x) for x in range(7)] + [(self.vXsa, self.vXsb, 0)]
        G, U = self.ABYTES, self.ABYTES + 8192
        self.wlist = [(self.vW[0], G), (self.vW[0], U), (self.vW[1], G), (self.vW[1], U)]
        self.ACC = 32
        self.mf = []
        acc = self.ACC
        self.accmap = {}
        for x in range(8):
            for wi in range(4):
                if x == 7 and wi >= 2: continue
                self.mf.append((x, wi, acc)); self.accmap[(x, wi)] = acc; acc += 4
        assert acc == 32 + 120
    @property
    def unroll(self): return l2_on(KA_WD)
    def l2_prep(self, a): l2_setup(a, "rm", 250, 64, KA_WD, F*D*2, 1280, F)
    def mid_prefetch(self, a, s):
        if s == 3: return l2_issue(a, KA_WD, 1280, F, 0, 9)
        if s == 6: return l2_issue(a, KA_WD, 1280, F, 9, None)
        if s == 9: return self.stats_loads(a)
    def mask_setup(self, a):
        a(f"s_cmp_eq_u32 s{S_W}, 0")
        a(f"s_cselect_b32 s{S_MASK}, -1, 0")
        a(f"s_mov_b32 s{S_MASK+1}, 0")
    def build_srds(self, a, role):
        if role == 'l':
            srd(a, SRD_A, ptr(KA_WS), WS_H, S_TOK*D*2)
            srd(a, SRD_B0, ptr(KA_WG), 0, D*F*2)
            srd(a, SRD_B1, ptr(KA_WU), 0, D*F*2)
            srd(a, SRD_ST, ptr(KA_WS), WS_ST, 250*1536)
        srd(a, SRD_OUT, ptr(KA_WS), WS_HH, S_TOK*F*2)
    def dep_range(self, a):
        sdiv(a, S_T0, S_R0, 82, 2100)
        a(f"s_sub_u32 s{S_T1}, s{S_REND}, 1")
        sdiv(a, S_T1, S_T1, 82, 2100)
    @property
    def gate(self): return (3, 2) if GATE else None
    def deps_first(self, a):
        first_ks(a, self)
        self.dep_range(a)
        if self.gate: poll_first_g(a, S_T0, S_T1, 10, S_K, self.S, self.gate[0], 0x10000)
        else: poll_first(a, S_T0, S_T1, 10, S_K, S_KB, 0x10000)
    def deps(self, a, wave=0):
        self.dep_range(a)
        a(f"s_mul_i32 s{S_T0}, s{S_T0}, 10")
        a(f"s_add_u32 s{S_T1}, s{S_T1}, 1")
        a(f"s_mul_i32 s{S_T1}, s{S_T1}, 10")
        poll(a, S_T0, S_T1, 0x10000, wave)
    def set_fidx(self, a):
        a(f"s_mul_i32 s{S_FIDX}, s{S_RT}, 27")
        a(f"s_add_u32 s{S_FIDX}, s{S_FIDX}, s{S_CT}")
        a(f"s_lshl_b32 s{S_FIDX}, s{S_FIDX}, 7")
        a(f"s_add_u32 s{S_FIDX}, s{S_FIDX}, 0x18000")
    def loader_post_first(self, a):
        pad_init(a, self, 228, 11, 239)
        return 0
    def stats_loads(self, a):
        a(f"s_lshl_b32 s{S_T0}, s{S_W}, 6")
        a(f"v_add_u32 v12, s{S_T0}, v2")
        a(f"v_add_u32 v13, s{S_R0}, v12")
        vdiv(a, 15, 13, 82, 2300)
        a("v_mul_u32_u24 v16, 82, v15")
        a("v_sub_u32 v16, v13, v16")
        a("v_mul_u32_u24 v15, 15360, v15")
        a("v_lshl_add_u32 v13, v16, 4, v15")
        a(f"v_add_u32 v15, s{S_R0}, v12")
        a(f"v_cmp_gt_u32 vcc, s{S_REND}, v15")
        a("v_mov_b32 v14, 0x80000000")
        a("s_nop 0")
        a("v_cndmask_b32 v13, v14, v13, vcc")
        for c in range(10):
            a(f"s_mov_b32 s{S_T0}, {c*1536}")
            a(f"buffer_load_dwordx2 v[{64+2*c}:{65+2*c}], v13, s[{SRD_ST}:{SRD_ST+3}], s{S_T0} offen{SC1}")
        return 10
    def loader_final(self, a):
        a("s_waitcnt vmcnt(0)")
        for c in range(1, 10):
            a(f"v_pk_add_f32 v[64:65], v[64:65], v[{64+2*c}:{65+2*c}]")
        a(f"v_mul_f32 v64, {hex(f2u(1.0/D))}, v64")
        a(f"v_mul_f32 v65, {hex(f2u(1.0/D))}, v65")
        a("v_fma_f32 v65, -v64, v64, v65")
        a(f"v_add_f32 v65, {hex(f2u(1e-5))}, v65")
        a("v_rsq_f32 v65, v65")
        a("v_lshlrev_b32 v12, 3, v12")
        a(f"v_add_u32 v12, {self.LDS_ST}, v12")
        a(f"s_cmp_eq_u32 s{S_W}, 3")
        a(f"s_cselect_b32 exec_hi, 0xffff, -1")
        a("ds_write_b64 v12, v[64:65]")
        a("s_mov_b64 exec, -1")
    def consumer_setup(self, a):
        cons_lane(a)
        a(f"s_lshr_b32 s{S_I}, s{S_WAVE}, 1")
        a(f"s_and_b32 s{S_J}, s{S_WAVE}, 1")
        a(f"s_lshl_b32 s{S_T1}, s{S_I}, 7")
        x_addr_const(a, self.vXc, S_T1)
        x_addr_const(a, self.vXsc, None, 112)
        w_addr_const(a, self.vWc)
        a(f"s_lshl_b32 s{S_T0}, s{S_J}, 1")
        a(f"s_add_u32 s{S_T0}, s{S_T0}, s{S_I}")
        a(f"s_lshl_b32 s{S_T0}, s{S_T0}, 5")
        a(f"v_xor_b32 v{self.vWc}, s{S_T0}, v{self.vWc}")
        a(f"s_lshl_b32 s{S_T0}, s{S_J}, 1")
        a(f"s_add_u32 s{S_T2}, s{S_T0}, s{S_I}     ; f0")
        a(f"s_lshl_b32 s{S_T0}, s{S_T2}, 6")
        a(f"v_lshlrev_b32 v24, 4, v4")
        a(f"v_add_u32 v24, s{S_T0}, v24")
        a(f"v_add_u32 v24, {self.LDS_CS}, v24")
        a(f"v_xor_b32 v25, 64, v24")
        t_write_addr(a, 26, self.TBASE)
        a(f"s_lshl_b32 s{S_T0}, s{S_T2}, 5")
        a(f"v_xor_b32 v26, s{S_T0}, v26")
        a(f"v_add_u32 v28, {112*128}, v26")
        a(f"s_lshl_b32 s{S_T0}, s{S_I}, 14")
        a(f"v_add_u32 v26, s{S_T0}, v26")
        a(f"v_xor_b32 v27, 32, v26")
        a(f"s_lshl_b32 s{S_T0}, s{S_I}, 10         ; 128*i*8")
        a(f"v_lshlrev_b32 v29, 3, v3")
        a(f"v_add_u32 v30, {self.LDS_ST + 112*8}, v29")
        a(f"v_add_u32 v29, s{S_T0}, v29")
        a(f"v_add_u32 v29, {self.LDS_ST}, v29")
    def addr_update(self):
        return [f"v_add_u32 v{self.vXa}, s{S_SLOT}, v{self.vXc}",
                f"v_add_u32 v{self.vW[0]}, s{S_SLOT}, v{self.vWc}",
                f"v_add_u32 v{self.vXsa}, s{S_SLOT}, v{self.vXsc}",
                f"v_xor_b32 v{self.vXb}, 64, v{self.vXa}",
                f"v_xor_b32 v{self.vW[1]}, 32, v{self.vW[0]}",
                f"v_xor_b32 v{self.vXsb}, 64, v{self.vXsa}"]
    chunk_epi = True
    def epilogue(self, a):
        nocs = a.new("nocs")
        assert self.LDS_CS % 128 == 0
        a(f"s_cmp_eq_u32 s{S_I}, 1")
        a(f"s_cbranch_scc0 {nocs}")
        set_exec(a, 0x8000800080008000)
        for wi, (areg, poff) in enumerate([(24, 0), (24, 256), (25, 0), (25, 256)]):
            acc = self.accmap[(6, wi)]
            a(f"ds_write_b128 v{areg}, v[{acc}:{acc+3}] offset:{poff}")
        a("s_mov_b64 exec, -1")
        a.label(nocs)
        a("s_waitcnt lgkmcnt(0)")
        a("s_barrier      ; E1")
        CSR = [8, 12, 152, 156]
        for wi, (areg, poff) in enumerate([(24, 0), (24, 256), (25, 0), (25, 256)]):
            a(f"ds_read_b128 v[{CSR[wi]}:{CSR[wi]+3}], v{areg} offset:{poff}")
        STR = [16, 18, 20, 22]
        def rdst(x):
            st = STR[x & 3]
            if x < 7: a(f"ds_read_b64 v[{st}:{st+1}], v29 offset:{128*x}")
            else: a(f"ds_read_b64 v[{st}:{st+1}], v30")
        for x in range(4): rdst(x)
        a("s_waitcnt lgkmcnt(0)")
        for x in range(8):
            st = STR[x & 3]
            npair = 1 if x == 7 else 2
            if x == 4:
                a("s_waitcnt lgkmcnt(0)")
                a("s_barrier      ; E2a")
            a(f"v_mul_f32 v{st+1}, v{st+1}, v{st+1}")
            for p in range(npair):
                g = self.accmap[(x, 2*p)]; u = self.accmap[(x, 2*p+1)]
                cg = CSR[2*p]; cu = CSR[2*p+1]
                for hh in (0, 2):
                    a(f"v_pk_fma_f32 v[{g+hh}:{g+hh+1}], v[{cg+hh}:{cg+hh+1}], v[{st}:{st+1}], v[{g+hh}:{g+hh+1}] op_sel_hi:[1,0,1] neg_lo:[0,1,0] neg_hi:[0,1,0]")
                    a(f"v_pk_fma_f32 v[{u+hh}:{u+hh+1}], v[{cu+hh}:{cu+hh+1}], v[{st}:{st+1}], v[{u+hh}:{u+hh+1}] op_sel_hi:[1,0,1] neg_lo:[0,1,0] neg_hi:[0,1,0]")
                for hh in (0, 2):
                    a(f"v_pk_mul_f32 v[{g+hh}:{g+hh+1}], v[{g+hh}:{g+hh+1}], v[{u+hh}:{u+hh+1}]")
                for hh in (0, 2):
                    a(f"v_pk_mul_f32 v[{g+hh}:{g+hh+1}], v[{g+hh}:{g+hh+1}], v[{st}:{st+1}] op_sel:[0,1] op_sel_hi:[1,1]")
                a(f"v_cvt_pk_bf16_f32 v{g}, v{g}, v{g+1}")
                a(f"v_cvt_pk_bf16_f32 v{g+1}, v{g+2}, v{g+3}")
                if x < 7: a(f"ds_write_b64 v{26+p}, v[{g}:{g+1}] offset:{2048*x}")
                else: a(f"ds_write_b64 v28, v[{g}:{g+1}]")
            if x < 4: rdst(x + 4)
        a("s_waitcnt lgkmcnt(0)")
        a("s_barrier      ; E2b")
    def loader_store_setup(self, a):
        a("v_lshrrev_b32 v3, 3, v2")
        a("v_and_b32 v4, 7, v2")
        a("v_xor_b32 v5, v4, v3")
        a("v_lshlrev_b32 v5, 4, v5")
        a("v_lshl_add_u32 v50, v3, 7, v5")
        a(f"s_lshl_b32 s{S_T0}, s{S_W}, 10")
        a(f"s_add_u32 s{S_T0}, s{S_T0}, {self.TBASE}")
        a(f"v_add_u32 v50, s{S_T0}, v50")
        a(f"s_lshl_b32 s{S_T0}, s{S_W}, 3")
        a(f"s_add_u32 s{S_T0}, s{S_T0}, s{S_R0}")
        a(f"v_add_u32 v51, s{S_T0}, v3")
        a(f"s_mov_b32 s{S_T1}, 3456")
        a(f"v_mul_lo_u32 v52, v51, s{S_T1}")
        a(f"s_lshl_b32 s{S_T0}, s{S_C0}, 1")
        a("v_lshl_add_u32 v52, v4, 4, v52")
        a(f"v_add_u32 v52, s{S_T0}, v52")
    def loader_stores(self, a, units):
        for n, u0 in enumerate(units):
            a(f"ds_read_b128 v[{56+4*n}:{59+4*n}], v50 offset:{u0*1024}")
        for n, u0 in enumerate(units):
            a(f"v_add_u32 v{53 if n & 1 else 54}, {u0*8*3456}, v52")
            special = (u0 + 3)*8 + 7 >= self.MV
            if special:
                a(f"v_add_u32 v55, {u0*8}, v51")
                a(f"s_add_u32 s{S_T0}, s{S_R0}, {self.MV}")
                a(f"v_cmp_gt_u32 vcc, s{S_T0}, v55")
                a(f"s_and_saveexec_b64 s[80:81], vcc")
            a(f"s_waitcnt lgkmcnt({len(units) - 1 - n})")
            a(f"buffer_store_dwordx4 v[{56+4*n}:{59+4*n}], v{53 if n & 1 else 54}, s[{SRD_OUT}:{SRD_OUT+3}], 0 offen{SC1}")
            if special: a("s_mov_b64 exec, s[80:81]")
    def loader_epilogue(self, a):
        a("s_barrier      ; E2a")
        self.loader_stores(a, [0, 4, 16, 20])
        a("s_barrier      ; E2b")
        self.loader_stores(a, [8, 12, 24, 28])

ROWB = 656
LQ, LK, LV, LO = 16384, 16384 + 16*ROWB, 16384 + 46*ROWB, 0
WPF = True
P1ROT = 'latin2'
ROTOFF = set()
WPF_OFF = {KA_WD}
def l2_on(kptr): return WPF and kptr not in WPF_OFF
def l2_setup(a, kind, NT, NC, kptr, nbytes, ldb, K):
    if not l2_on(kptr): return
    R3 = ((K + 2)//3 + 7)//8*8
    a(f"s_mov_b32 s4, s{S_RT}"); a(f"s_mov_b32 s5, s{S_CT}")
    tile_map(a, NT, kind)
    divc(a, S_T0, S_RT, 3)
    a(f"s_mul_i32 s{S_T0}, s{S_T0}, 3")
    a(f"s_sub_u32 s{S_T0}, s{S_RT}, s{S_T0}")
    a(f"s_mul_i32 s{S_T0}, s{S_T0}, {R3}")
    a(f"s_lshl_b32 s{S_T1}, s{S_W}, 3")
    a(f"s_add_u32 s{S_T0}, s{S_T0}, s{S_T1}")
    a("v_lshrrev_b32 v150, 3, v2")
    a(f"v_add_u32 v150, s{S_T0}, v150")
    a(f"s_mov_b32 s{S_T1}, {ldb}")
    a(f"v_mul_lo_u32 v150, v150, s{S_T1}")
    a("v_and_b32 v151, 7, v2")
    a("v_lshl_add_u32 v150, v151, 4, v150")
    a(f"s_mul_i32 s{S_T1}, s{S_CT}, {NC*2}")
    a(f"v_add_u32 v150, s{S_T1}, v150")
    a(f"s_cmp_eq_u32 s{S_VALID}, 0")
    a(f"s_cselect_b32 s{S_T1}, 0x80000000, 0")
    a(f"v_or_b32 v150, s{S_T1}, v150")
    srd(a, 80, ptr(kptr), 0, nbytes)
    a(f"s_mov_b32 s{S_RT}, s4"); a(f"s_mov_b32 s{S_CT}, s5")
def l2_issue(a, kptr, ldb, K, i0=0, i1=None):
    if not l2_on(kptr): return 0
    R3 = ((K + 2)//3 + 7)//8*8
    n = (R3//8 + 3)//4
    if i1 is None: i1 = n
    for i in range(i0, min(i1, n)):
        a(f"buffer_load_dwordx4 v[152:155], v150, s[80:83], 0 offen")
        if i + 1 < n: a(f"v_add_u32 v150, {32*ldb}, v150")
    return min(i1, n) - i0

def att_phase(a, role):
    a(f"s_lshl_b32 s{S_R0}, s{S_RT}, 4       ; T0")
    srd(a, SRD_A, ptr(KA_WS), WS_QKV, S_TOK*NQKV*2)
    srd(a, SRD_OUT, ptr(KA_WS), WS_O, S_TOK*D*2)
    NI = 49
    nper = (NI + 7)//8
    a(f"s_mov_b32 s{S_T2}, 3840")
    a(f"s_mul_i32 s{S_T3}, s{S_CT}, 640")
    for j in range(nper):
        r = 32 + j
        a(f"s_add_u32 s{S_T0}, s{S_WAVE}, {8*j}")
        a(f"s_lshl_b32 s{S_T0}, s{S_T0}, 6")
        a(f"v_add_u32 v3, s{S_T0}, v2           ; c")
        vdiv(a, 4, 3, 41, 64*56)
        a("v_mul_u32_u24 v5, 41, v4")
        a("v_sub_u32 v5, v3, v5                  ; kap")
        a("v_cmp_le_u32 vcc, 16, v4")
        a("v_mov_b32 v8, 0x80000000")
        a("s_nop 0")
        a("v_cndmask_b32 v6, 0, 1, vcc")
        a("v_cmp_le_u32 vcc, 46, v4")
        a("s_nop 1")
        a("v_cndmask_b32 v7, 0, 1, vcc")
        a("v_add_u32 v6, v6, v7                  ; seg")
        a("v_mul_u32_u24 v7, 30, v6")
        a("v_sub_u32 v7, v4, v7")
        a(f"v_add_u32 v7, s{S_R0}, v7            ; token")
        a(f"v_mul_lo_u32 v7, v7, s{S_T2}")
        a("v_mul_u32_u24 v6, 1280, v6")
        a("v_add_u32 v7, v7, v6")
        a("v_lshl_add_u32 v7, v5, 4, v7")
        a(f"v_add_u32 v7, s{S_T3}, v7")
        a("v_cmp_gt_u32 vcc, 40, v5")
        a("s_nop 1")
        a("v_cndmask_b32 v7, v8, v7, vcc")
        a("v_cmp_gt_u32 vcc, 76, v4")
        a("s_nop 1")
        a(f"v_cndmask_b32 v{r}, v8, v7, vcc")
    if role == 'c':
        a(f"s_lshr_b32 s{S_T0}, s{S_WAVE}, 1")
        a(f"s_lshl_b32 s{S_T0}, s{S_T0}, 3")
        a(f"s_and_b32 s{S_T1}, s{S_WAVE}, 1")
        a(f"s_add_u32 s{S_I}, s{S_T0}, s{S_T1}      ; rb")
        a("v_and_b32 v3, 3, v2             ; i")
        a("v_lshrrev_b32 v4, 2, v2         ; b")
        a("v_lshlrev_b32 v5, 1, v3")
        a(f"v_add_u32 v5, s{S_I}, v5        ; rb + 2i")
        a(f"v_mul_u32_u24 v5, {ROWB}, v5")
        a("v_mul_u32_u24 v6, 40, v4")
        a("v_add_u32 v5, v5, v6")
        a(f"v_add_u32 v144, {LQ}, v5")
        a(f"v_add_u32 v145, {LK}, v5")
        a("v_cmp_eq_u32 vcc, 3, v3")
        a(f"v_mov_b32 v7, {16*ROWB}")
        a(f"v_mov_b32 v8, {14*ROWB}")
        a("v_cndmask_b32 v7, v7, v8, vcc")
        a("v_add_u32 v146, v145, v7")
        a("v_bfe_u32 v9, v2, 2, 2            ; r")
        a("v_lshlrev_b32 v10, 1, v9")
        a(f"v_add_u32 v10, s{S_I}, v10")
        a(f"v_mul_u32_u24 v10, {ROWB}, v10")
        a("v_lshrrev_b32 v11, 4, v2")
        a("v_lshl_add_u32 v11, v11, 2, v3     ; 4G + c")
        a("v_mul_u32_u24 v11, 40, v11")
        a("v_add_u32 v10, v10, v11")
        a(f"v_add_u32 v147, {LV}, v10")
        a("v_cmp_eq_u32 vcc, 3, v9")
        a(f"v_mov_b32 v7, {16*ROWB}")
        a("s_nop 0")
        a("v_cndmask_b32 v7, v7, v8, vcc")
        a("v_add_u32 v119, v147, v7")
        a(f"v_mov_b32 v12, {hex(f2u(-1e30))}")
        a("v_mov_b32 v13, 0")
        a(f"s_add_u32 s{S_T2}, s{S_R0}, s{S_I}")
        a(f"s_sub_u32 s{S_T2}, s{S_T2}, 14        ; pos(0)")
        for m in range(12):
            a(f"v_sub_u32 v14, {m}, v3            ; m - i")
            a("v_cmp_gt_u32 vcc, 8, v14")
            a(f"s_add_u32 s{S_T0}, s{S_T2}, {2*m}")
            a(f"s_cmp_ge_i32 s{S_T0}, 0")
            a("s_cselect_b64 s[80:81], -1, 0")
            a("s_and_b64 vcc, vcc, s[80:81]")
            a(f"v_cndmask_b32 v{120+m}, v12, v13, vcc")
    for j in range(2):
        a(f"s_add_u32 s{S_T0}, s{S_WAVE}, {8*j}")
        a(f"s_lshl_b32 s{S_T0}, s{S_T0}, 6")
        a(f"v_add_u32 v3, s{S_T0}, v2")
        vdiv(a, 4, 3, 40, 1024)
        a("v_mul_u32_u24 v5, 40, v4")
        a("v_sub_u32 v5, v3, v5")
        a(f"v_mul_u32_u24 v6, {ROWB}, v4")
        a(f"v_lshl_add_u32 v{148+j}, v5, 4, v6")
        a(f"v_add_u32 v4, s{S_R0}, v4")
        a("v_mul_u32_u24 v4, 1280, v4")
        a("v_lshl_add_u32 v4, v5, 4, v4")
        a(f"v_add_u32 v{156+j}, s{S_T3}, v4")
    if role == 'c':
        a(f"s_sub_u32 s{S_T0}, s{S_R0}, 14")
        a(f"s_max_i32 s{S_T0}, s{S_T0}, 0")
        sdiv(a, S_T0, S_T0, 121, 2100)
        a(f"s_add_u32 s{S_T1}, s{S_R0}, 15")
        sdiv(a, S_T1, S_T1, 121, 2100)
        skp = a.new("attpoll")
        a(f"s_cmp_eq_u32 s{S_WAVE}, 0")
        a(f"s_cbranch_scc0 {skp}")
        vdiv(a, 140, 2, 9, 64)
        a("v_mul_u32_u24 v141, 9, v140")
        a("v_sub_u32 v141, v2, v141                  ; j = l%9")
        vdiv(a, 142, 141, 3, 16)
        a("v_mul_u32_u24 v143, 3, v142")
        a("v_sub_u32 v143, v141, v143                ; j%3")
        a("v_mul_u32_u24 v142, 5, v142")
        a("v_add_u32 v142, v142, v143")
        a(f"s_lshl_b32 s{S_T2}, s{S_CT}, 1")
        a(f"v_add_u32 v142, s{S_T2}, v142            ; ct")
        a(f"v_add_u32 v140, s{S_T0}, v140            ; rt")
        a(f"v_cmp_ge_u32 vcc, s{S_T1}, v140")
        a("v_mul_u32_u24 v140, 15, v140")
        a("v_add_u32 v140, v140, v142")
        a("v_lshlrev_b32 v140, 7, v140")
        poll_core(a)
        a.label(skp)
        a("s_barrier      ; B_dep")
    else:
        l2_setup(a, "p3", 243, 64, KA_WG, D*F*2, 3456, D)
        a("s_barrier      ; B_dep")
    stamp(a, 0)
    for j in range(nper):
        sk = None
        if 8*j + 7 >= NI:
            sk = a.new("attsk")
            a(f"s_cmp_ge_u32 s{S_WAVE}, {NI - 8*j}")
            a(f"s_cbranch_scc1 {sk}")
        a(f"s_add_u32 s{S_T0}, s{S_WAVE}, {8*j}")
        a(f"s_lshl_b32 s{S_T0}, s{S_T0}, 10")
        a(f"s_add_u32 m0, s{S_T0}, {LQ}")
        a("s_nop 0")
        a(f"buffer_load_dwordx4 v{32+j}, s[{SRD_A}:{SRD_A+3}], 0 offen{SC1} lds")
        if sk: a.label(sk)
    a("s_waitcnt vmcnt(0)")
    a("s_barrier")
    stamp(a, 1)
    if role == 'l': l2_issue(a, KA_WG, 3456, D)
    if role == 'c':
        Q = 16; KR = 32; VR = 62; SC = 92; BIAS = 120; PB = 104; O = 4
        for dg in range(5):
            a(f"ds_read_b64 v[{Q+2*dg}:{Q+2*dg+1}], v144 offset:{8*dg}")
        for kb in range(3):
            for dg in range(5):
                r = KR + 2*(5*kb + dg)
                if kb < 2: a(f"ds_read_b64 v[{r}:{r+1}], v145 offset:{8*ROWB*kb + 8*dg}")
                else: a(f"ds_read_b64 v[{r}:{r+1}], v146 offset:{8*dg}")
        scale = (D // 32) ** -0.5
        c1 = scale * 1.4426950408889634
        a(f"s_mov_b32 s{S_T2}, {hex(f2u(c1))}")
        a("s_waitcnt lgkmcnt(0)")
        for kb in range(3):
            for dg in range(5):
                r = VR + 2*(5*kb + dg)
                if kb < 2: a(f"ds_read_b64_tr_b16 v[{r}:{r+1}], v147 offset:{8*ROWB*kb + 8*dg}")
                else: a(f"ds_read_b64_tr_b16 v[{r}:{r+1}], v119 offset:{8*dg}")
        for dg in range(5):
            for kb in range(3):
                r = KR + 2*(5*kb + dg); sc = SC + 4*kb
                c = "0" if dg == 0 else f"v[{sc}:{sc+3}]"
                a(f"v_mfma_f32_4x4x4_16b_bf16 v[{sc}:{sc+3}], v[{r}:{r+1}], v[{Q+2*dg}:{Q+2*dg+1}], {c}")
        a("s_nop 4")
        for m in range(12):
            a(f"v_fma_f32 v{SC+m}, v{SC+m}, s{S_T2}, v{BIAS+m}")
        a(f"v_max3_f32 v14, v{SC}, v{SC+1}, v{SC+2}")
        a(f"v_max3_f32 v15, v{SC+3}, v{SC+4}, v{SC+5}")
        a(f"v_max3_f32 v14, v14, v{SC+6}, v{SC+7}")
        a(f"v_max3_f32 v15, v15, v{SC+8}, v{SC+9}")
        a(f"v_max3_f32 v14, v14, v{SC+10}, v{SC+11}")
        a("v_max_f32 v14, v14, v15")
        for m in range(12):
            a(f"v_sub_f32 v{SC+m}, v{SC+m}, v14")
        for m in range(12):
            a(f"v_exp_f32 v{SC+m}, v{SC+m}")
        a(f"v_add_f32 v14, v{SC}, v{SC+1}")
        a(f"v_add_f32 v15, v{SC+2}, v{SC+3}")
        for m in range(4, 12, 2):
            a(f"v_add_f32 v14, v14, v{SC+m}")
            a(f"v_add_f32 v15, v15, v{SC+m+1}")
        a("v_add_f32 v14, v14, v15")
        a("v_rcp_f32 v14, v14")
        a("s_nop 0")
        for m in range(12):
            a(f"v_mul_f32 v{SC+m}, v{SC+m}, v14")
        for m in range(0, 12, 2):
            a(f"v_cvt_pk_bf16_f32 v{PB+m//2}, v{SC+m}, v{SC+m+1}")
        a("s_waitcnt lgkmcnt(0)")
        a("s_nop 0")
        OA = 32
        for kb in range(3):
            for dg in range(5):
                r = VR + 2*(5*kb + dg); o = OA + 4*dg
                c = "0" if kb == 0 else f"v[{o}:{o+3}]"
                a(f"v_mfma_f32_4x4x4_16b_bf16 v[{o}:{o+3}], v[{r}:{r+1}], v[{PB+2*kb}:{PB+2*kb+1}], {c}")
        a(f"v_subrev_u32 v144, {LQ - LO}, v144")
        a("s_nop 4")
        for dg in range(5):
            o = OA + 4*dg
            a(f"v_cvt_pk_bf16_f32 v{Q+2*dg}, v{o}, v{o+1}")
            a(f"v_cvt_pk_bf16_f32 v{Q+2*dg+1}, v{o+2}, v{o+3}")
            a(f"ds_write_b64 v144, v[{Q+2*dg}:{Q+2*dg+1}] offset:{8*dg}")
    a("s_waitcnt lgkmcnt(0)")
    stamp(a, 2)
    a("s_barrier")
    a(f"ds_read_b128 v[20:23], v148 offset:{LO}")
    sk = a.new("attst")
    a(f"s_cmp_ge_u32 s{S_WAVE}, 2")
    a(f"s_cbranch_scc1 {sk}")
    a(f"ds_read_b128 v[24:27], v149 offset:{LO}")
    a("s_waitcnt lgkmcnt(0)")
    a(f"buffer_store_dwordx4 v[24:27], v157, s[{SRD_OUT}:{SRD_OUT+3}], 0 offen{SC1}")
    a.label(sk)
    a("s_waitcnt lgkmcnt(0)")
    a(f"buffer_store_dwordx4 v[20:23], v156, s[{SRD_OUT}:{SRD_OUT+3}], 0 offen{SC1}")
    a(f"s_lshl_b32 s{S_FIDX}, s{S_RT}, 1")
    a(f"s_add_u32 s{S_FIDX}, s{S_FIDX}, s{S_CT}")
    a(f"s_lshl_b32 s{S_FIDX}, s{S_FIDX}, 7")
    a(f"s_add_u32 s{S_FIDX}, s{S_FIDX}, 0x8000")

def finish_phase(a, role, first=False):
    a("s_waitcnt vmcnt(0)")
    stamp(a, 4)
    if role == 'c' and first: nonce_check(a)
    a("s_barrier      ; E3")
    if role == 'c': publish(a)
    stamp(a, 5)

IDLEPF = True
def idle_prefetch(a, NT, kptr, nbytes):
    nidle = 256 - NT
    nw = nidle * 8
    npieces = (nbytes + 1023)//1024
    n = (npieces + nw - 1)//nw
    a(f"s_and_b32 s{S_T0}, s2, 7")
    a(f"s_lshr_b32 s{S_T1}, s2, 3")
    a(f"s_lshl_b32 s{S_T0}, s{S_T0}, 5")
    a(f"s_add_u32 s{S_T0}, s{S_T0}, s{S_T1}")
    a(f"s_sub_u32 s{S_T0}, s{S_T0}, {NT}")
    a(f"s_lshl_b32 s{S_T0}, s{S_T0}, 3")
    a(f"s_add_u32 s{S_T0}, s{S_T0}, s{S_WAVE}      ; q")
    a(f"s_lshl_b32 s{S_T0}, s{S_T0}, 10")
    a("v_lshlrev_b32 v150, 4, v2")
    a(f"v_add_u32 v150, s{S_T0}, v150")
    srd(a, 80, ptr(kptr), 0, nbytes)
    lp = a.new("ipf")
    a(f"s_mov_b32 s{S_CNT}, {n}")
    a.label(lp)
    a("buffer_load_dwordx4 v[152:155], v150, s[80:83], 0 offen")
    a(f"v_add_u32 v150, {nw*1024}, v150")
    a(f"s_sub_u32 s{S_CNT}, s{S_CNT}, 1")
    a(f"s_cmp_lg_u32 s{S_CNT}, 0")
    a(f"s_cbranch_scc1 {lp}")
    a("s_waitcnt vmcnt(0)")

def role_program(a, role):
    phases = [P1F(), P24(2), P3(), P24(4)] if FUSE else [P1(), 'att', P24(2), P3(), P24(4)]
    if 'p1twice' in EXP:
        P = P1F() if FUSE else P1(); inv = a.new("inv")
        tile_map(a, P.NT, P.kind)
        a(f"s_cmp_eq_u32 s{S_VALID}, 0")
        a(f"s_cbranch_scc1 {inv}")
        P.tile_consts(a)
        if role == 'c': consumer_phase(a, P, True)
        else: loader_phase(a, P, True)
        a("s_waitcnt vmcnt(0)")
        a("s_barrier")
        a.label(inv)
    for n, P in enumerate(phases):
        first = (n == 0)
        nxt = a.new("next"); inv = a.new("inv")
        if P == 'att':
            tile_map(a, 256, 'att')
            att_phase(a, role)
            stamp(a, 3)
            finish_phase(a, role)
            prof_store(a, 'att', role)
            continue
        tile_map(a, P.NT, P.kind)
        a(f"s_cmp_eq_u32 s{S_VALID}, 0")
        a(f"s_cbranch_scc1 {inv}")
        P.tile_consts(a)
        if role == 'c': consumer_phase(a, P, first)
        else: loader_phase(a, P, first)
        stamp(a, 3)
        if P.key != 'p4': finish_phase(a, role, first)
        spin_capture(a, P.key, role)
        prof_store(a, P.key, role)
        if first:
            a(f"s_branch {nxt}")
            a.label(inv)
            ptr_wait(a)
            if role == 'c': nonce_check(a, issued=False)
            a.label(nxt)
        elif P.key == 'p3' and IDLEPF:
            a(f"s_branch {nxt}")
            a.label(inv)
            idle_prefetch(a, P.NT, KA_WD, F*D*2)
            a.label(nxt)
        else:
            a.label(inv)

def main(out):
    a = Asm()
    a.raw(f".globl {KNAME}")
    a.raw(".p2align 8")
    a.raw(f".type {KNAME},@function")
    a.label(KNAME)
    if PROFDBG:
        a(f"s_memrealtime s[{S_P0+1}:{S_P0+2}]") if False else None
    a("s_cmp_ge_u32 s2, 256")
    a("s_cbranch_scc1 L_exit")
    a(f"s_load_dwordx16 s[{S_PTR}:{S_PTR+15}], s[0:1], 0")
    a(f"s_load_dwordx4 s[{S_PTR+16}:{S_PTR+19}], s[0:1], 64")
    if PROFDBG or SPIN:
        a(f"{STAMP} s[98:99]")
    a("v_lshrrev_b32 v1, 6, v0")
    a("v_and_b32 v2, 63, v0      ; lane")
    a(f"s_mov_b32 s{S_FIDX}, -1")
    a(f"v_readfirstlane_b32 s{S_WAVE}, v1")
    a("s_nop 3")
    a(f"s_sub_u32 s{S_W}, s{S_WAVE}, 4")
    a(f"s_cmp_ge_u32 s{S_WAVE}, 4")
    a("s_cbranch_scc1 L_loader")
    role_program(a, 'c')
    a("s_waitcnt vmcnt(0)")
    spin_end(a)
    a("s_endpgm")
    a.label("L_loader")
    role_program(a, 'l')
    a("s_waitcnt vmcnt(0)")
    a.label("L_exit")
    a("s_endpgm")
    HEADER = open("sequential_preLN__sliding_local_dilated__glu_gated_bilinear__prompt.s.ref").read().split("; Override")[0]
    s = HEADER
    s += f"; @launch grid=(256,1,1) block=(512,1,1) lds={LDS_TOTAL}\n"
    s += '.amdgcn_target "amdgcn-amd-amdhsa--gfx950"\n.text\n'
    s += a.text()
    s += f""".section .rodata,"a"
.p2align 6
.amdhsa_kernel {KNAME}
  .amdhsa_next_free_vgpr 256
  .amdhsa_next_free_sgpr 102
  .amdhsa_accum_offset 160
  .amdhsa_group_segment_fixed_size 0
  .amdhsa_kernarg_size 80
  .amdhsa_user_sgpr_count 2
  .amdhsa_user_sgpr_kernarg_segment_ptr 1
  .amdhsa_system_sgpr_workgroup_id_x 1
  .amdhsa_float_denorm_mode_32 3
.end_amdhsa_kernel
"""
    open(out, "w").write(s)

if __name__ == "__main__":
    if "-prof" in sys.argv: PROF = True
    if "-profdbg" in sys.argv: PROFDBG = True
    if "-cyc" in sys.argv: STAMP = "s_memtime"
    if "-wpf" in sys.argv: WPF = True
    if "-nofuse" in sys.argv: FUSE = False
    if "-gate" in sys.argv: GATE = True
    for x in sys.argv:
        if x.startswith("-extrab="): EXTRAB = int(x[8:])
        if x.startswith("-p4rot="): P4ROT = tuple(int(y) for y in x[7:].split(","))
        if x.startswith("-p3rot="): P3ROT = tuple(int(y) for y in x[7:].split(","))
        if x.startswith("-p2rot="): P2ROT = tuple(int(y) for y in x[7:].split(","))
    if "-onwd" in sys.argv: WPF_OFF.discard(KA_WD)
    for x in sys.argv:
        if x.startswith("-spf="): SPF = int(x[5:])
        if x.startswith("-spf2="): SPF2 = {'wg': KA_WG, 'wu': KA_WU}[x[6:]]
    if "-noidle" in sys.argv: IDLEPF = False
    for x in sys.argv:
        if x.startswith("-spin="):
            p_, a_, b_ = x[6:].split(","); SPIN = (p_, int(a_), int(b_))
    if "-apf" in sys.argv: APF = True
    for x in sys.argv:
        if x.startswith("-p1frot="): P1FROT = x[8:]
    for x in sys.argv:
        if x.startswith("-outsc="): OUTSC = " " + x[7:].replace("+", " ")
    for x in sys.argv:
        if x.startswith("-gate4="): GATE4 = tuple(int(y) for y in x[7:].split(","))
    for x in sys.argv:
        if x.startswith("-osc="): OSC = " " + x[5:].replace("+", " ")
    for x in sys.argv:
        if x.startswith("-align="): ALIGN = int(x[7:])
    if "-nowpf" in sys.argv: WPF = False
    if "-onestep" in sys.argv: TWOSTEP = False
    for x in sys.argv:
        if x.startswith("-exp="): EXP = set(x[5:].split(","))
    if "-noxcd" in sys.argv: NOXCD = True
    for x in sys.argv:
        if x.startswith("-p1rot="): P1ROT = x[7:]
        if x.startswith("-rotoff="): ROTOFF = set(x[8:].split(","))
    for x in sys.argv:
        if x.startswith("-off="):
            for k in x[5:].split(","): WPF_OFF.add({'wo': KA_WO, 'wg': KA_WG, 'wu': KA_WU, 'wd': KA_WD}[k])
    main(sys.argv[1] if len(sys.argv) > 1 else "v3.s")
```

```python
import sys, struct

KNAME = "sequential_preLN__sliding_local_dilated__glu_gated_bilinear__prompt_kernel"
S_TOK, D, NQKV, F = 2048, 640, 1920, 1728
WS_QKV, WS_O, WS_H, WS_HH, WS_ST, WS_FLAG = 0, 0x800000, 0xB00000, 0x1000000, 0x1800000, 0x1900000
WS_PROF = 0x1A00000
KA_X, KA_WQKV, KA_WO, KA_BX, KA_WG, KA_WU, KA_WD, KA_OUT, KA_DBG, KA_WS = [8*i for i in range(10)]
ONES = 0x3F803F80
PROF = False
PROFDBG = False
STAMP = 's_memrealtime'
SC1 = " sc1"
LDS_TOTAL = 163840
NONCE_LDS = 163832
OUTSC = ' sc0 sc1'
SPF = 0
SPF2 = None
EXTRAB = 0
P4ROT = (4, 32, 2)
P3ROT = (2, 13, 2)
P2ROT = (2, 13, 2)
P1FROT = 'latin2'
APF = False
DRY = True
GATE = False
GATE4 = (6, 3)
OSC = ' sc1'
FUSE = True
ALIGN = 6
TWOSTEP = True
EXP = set()
NOXCD = False

def f2u(x):
    return struct.unpack("<I", struct.pack("<f", x))[0]

class Asm:
    def __init__(self):
        self.L = []
        self.uid = 0
    def __call__(self, s):
        for line in s.split("\n"):
            line = line.strip()
            if line:
                self.L.append("  " + line)
    def label(self, n):
        self.L.append(n + ":")
    def raw(self, s):
        self.L.append(s)
    def new(self, base):
        self.uid += 1
        return f"L{base}_{self.uid}"
    def text(self):
        return "\n".join(self.L) + "\n"

SRD_A, SRD_B0, SRD_B1, SRD_OUT, SRD_AUX, SRD_ST = 8, 12, 16, 20, 24, 28
S_RT, S_CT, S_R0, S_C0, S_WAVE, S_SLOT, S_CNT, S_T0, S_T1, S_T2 = 32, 33, 34, 35, 36, 37, 38, 39, 40, 41
S_AOFF, S_BOFF = 42, 43
S_PTR = 44
S_MASK = 64
S_I, S_J, S_REND, S_K = 66, 67, 68, 69
S_STAMP = 70
S_NONCE = 78
S_FIDX, S_LW, S_VALID, S_KB = 85, 86, 87, 92
SRD_FLAG = 88
S_SLOTB, S_T3, S_T4, S_W = 93, 94, 95, 96
S_P0 = 97
S_N1, S_N2 = 6, 7
S_DRY = 3

def ptr(k): return S_PTR + k // 4

PH_IDX = {'p1': 0, 'att': 1, 'p2': 2, 'p3': 3, 'p4': 4}

def stamp(a, i):
    if i >= 4:
        if PROF: a(f'{STAMP} s[{98+2*(i-4)}:{99+2*(i-4)}]')
        return
    if PROF or PROFDBG or SPIN:
        a(f'{STAMP} s[{S_STAMP+2*i}:{S_STAMP+2*i+1}]')

SPIN = None
def spin_capture(a, ph, role):
    if not SPIN or SPIN[0] != ph or role != 'c': return
    a("s_waitcnt lgkmcnt(0)")
    A_ = "s98" if SPIN[1] < 0 else f"s{S_STAMP+2*SPIN[1]}"
    a(f"s_sub_u32 s100, s{S_STAMP+2*SPIN[2]}, {A_}")
def spin_end(a):
    if not SPIN: return
    sk = a.new("spin"); lp = a.new("spinl")
    a("s_cmp_eq_u32 s2, 9")
    a(f"s_cbranch_scc0 {sk}")
    a(f"s_cmp_eq_u32 s{S_WAVE}, 0")
    a(f"s_cbranch_scc0 {sk}")
    a("s_mul_i32 s100, s100, 20")
    a("s_memrealtime s[4:5]")
    a("s_waitcnt lgkmcnt(0)")
    a("s_add_u32 s100, s100, s4")
    a.label(lp)
    a("s_memrealtime s[4:5]")
    a("s_waitcnt lgkmcnt(0)")
    a("s_sub_u32 s6, s4, s100")
    a("s_cmp_lt_i32 s6, 0")
    a(f"s_cbranch_scc1 {lp}")
    a.label(sk)

def prof_store(a, ph, role):
    if not (PROF or PROFDBG): return
    skip = a.new("pskip")
    a(f"s_cmp_eq_u32 s{S_WAVE}, {0 if role == 'c' else 4}")
    a(f"s_cbranch_scc0 {skip}")
    a('s_waitcnt lgkmcnt(0)')
    if PROF:
        a(f's_add_u32 s80, s{ptr(KA_WS)}, {hex(WS_PROF + PH_IDX[ph]*0x20000)}')
        a(f's_addc_u32 s81, s{ptr(KA_WS)+1}, 0')
        a('s_and_b32 s81, s81, 0xffff')
        a('s_mov_b32 s82, 0x20000')
        a('s_mov_b32 s83, 0x20000')
        a('s_lshl_b32 s84, s2, 3')
        a(f's_add_u32 s84, s84, s{S_WAVE}')
        a('s_lshl_b32 s84, s84, 6')
        for i in range(8): a(f'v_mov_b32 v{128+i}, s{S_STAMP+i}')
        for i in range(4): a(f'v_mov_b32 v{136+i}, s{98+i}')
        a('v_mov_b32 v148, s84')
        a('s_mov_b64 exec, 1')
        a('buffer_store_dwordx4 v[128:131], v148, s[80:83], 0 offen')
        a('buffer_store_dwordx4 v[132:135], v148, s[80:83], 0 offen offset:16')
        a('buffer_store_dwordx4 v[136:139], v148, s[80:83], 0 offen offset:32')
        a('s_mov_b64 exec, -1')
    if PROFDBG and role == 'c':
        sk2 = a.new("pskip")
        a(f"s_cmp_eq_u32 s2, {PROFDBG_WG}")
        a(f"s_cbranch_scc0 {sk2}")
        a(f's_mov_b32 s80, s{ptr(KA_DBG)}')
        a(f's_and_b32 s81, s{ptr(KA_DBG)+1}, 0xffff')
        a('s_mov_b32 s82, 0x100')
        a('s_mov_b32 s83, 0x20000')
        sel = DBG_SEL[ph]
        for j, (i, slot) in enumerate(sel):
            a(f's_sub_u32 s84, s{S_STAMP+2*i}, s{S_P0}')
            a(f'v_mov_b32 v140, s84')
            a(f'v_mov_b32 v141, {4*slot}')
            a('s_mov_b64 exec, 1')
            a('buffer_store_dword v140, v141, s[80:83], 0 offen')
            a('s_mov_b64 exec, -1')
        a.label(sk2)
    a.label(skip)

PROFDBG_WG = 9
DBG_SEL = {'p1': [(1, 2), (2, 3), (3, 4)], 'att': [(0, 5), (1, 6), (3, 7)], 'p2': [(0, 8), (2, 9)], 'p3': [(0, 10), (1, 11), (2, 12)], 'p4': [(0, 13), (2, 14), (3, 15)]}

def set_exec(a, mask):
    if mask == (1 << 64) - 1:
        a("s_mov_b64 exec, -1")
    else:
        a(f"s_mov_b32 exec_lo, {hex(mask & 0xffffffff)}")
        a(f"s_mov_b32 exec_hi, {hex(mask >> 32)}")

def dbar(a, comment=""):
    if not DRY:
        a(f"s_barrier      ; {comment}"); return
    l = a.new("dbar")
    a(f"s_cmp_eq_u32 s{S_DRY}, 1")
    a(f"s_cbranch_scc1 {l}")
    a(f"s_barrier      ; {comment}")
    a.label(l)

def mask_exec(a, mask):
    if not DRY:
        set_exec(a, mask); return
    a("s_mov_b64 s[4:5], exec")
    a(f"s_and_b32 exec_lo, exec_lo, {hex(mask & 0xffffffff)}")
    a(f"s_and_b32 exec_hi, exec_hi, {hex(mask >> 32)}")

def unmask_exec(a):
    a("s_mov_b64 exec, s[4:5]" if DRY else "s_mov_b64 exec, -1")

def dry_call(a, wave, target, ret):
    if not DRY: return
    sk = a.new("dry")
    a(f"s_cmp_eq_u32 s{S_WAVE}, {wave}")
    a(f"s_cbranch_scc0 {sk}")
    a(f"s_mov_b32 s{S_DRY}, 1")
    a("s_mov_b64 exec, 0")
    a(f"s_branch {target}")
    a.label(ret)
    a("s_mov_b64 exec, -1")
    a(f"s_mov_b32 s{S_DRY}, 0")
    a.label(sk)

def dry_exit(a, ret):
    if DRY:
        a(f"s_cmp_eq_u32 s{S_DRY}, 1")
        a(f"s_cbranch_scc1 {ret}")

def srd(a, s, p, off, nbytes):
    if off:
        a(f"s_add_u32 s{s}, s{p}, {hex(off)}")
        a(f"s_addc_u32 s{s+1}, s{p+1}, 0")
    else:
        a(f"s_mov_b32 s{s}, s{p}")
        a(f"s_mov_b32 s{s+1}, s{p+1}")
    a(f"s_and_b32 s{s+1}, s{s+1}, 0xffff")
    a(f"s_mov_b32 s{s+2}, {hex(nbytes)}")
    a(f"s_mov_b32 s{s+3}, 0x20000")

def divc(a, dst, src, d, rng=300):
    m = (65536 + d - 1) // d
    for x in range(0, rng):
        assert (x * m) >> 16 == x // d, (x, d)
    a(f"s_mul_i32 s{dst}, s{src}, {m}")
    a(f"s_lshr_b32 s{dst}, s{dst}, 16")

def magic(d, N):
    for sh in range(8, 24):
        m = ((1 << sh) + d - 1) // d
        if m >= (1 << 24) or m * (N - 1) >= (1 << 32): continue
        if all((x * m) >> sh == x // d for x in range(N)): return m, sh
    raise Exception("no magic")

def sdiv(a, dst, src, d, N):
    m, sh = magic(d, N)
    a(f"s_mul_i32 s{dst}, s{src}, {m}")
    a(f"s_lshr_b32 s{dst}, s{dst}, {sh}")

def vdiv(a, dst, src, d, N):
    m, sh = magic(d, N)
    a(f"v_mul_u32_u24 v{dst}, {m}, v{src}")
    a(f"v_lshrrev_b32 v{dst}, {sh}, v{dst}")

def tile_map(a, NT, kind):
    if NOXCD:
        a(f"s_mov_b32 s{S_T0}, s2")
    else:
        a(f"s_and_b32 s{S_T0}, s2, 7")
        a(f"s_lshr_b32 s{S_T1}, s2, 3")
        a(f"s_lshl_b32 s{S_T0}, s{S_T0}, 5")
        a(f"s_add_u32 s{S_T0}, s{S_T0}, s{S_T1}   ; t")
    a(f"s_cmp_lt_u32 s{S_T0}, {NT}")
    a(f"s_cselect_b32 s{S_VALID}, 1, 0")
    if kind == "p1":
        divc(a, S_T1, S_T0, 90)
        a(f"s_mul_i32 s{S_T2}, s{S_T1}, 90")
        a(f"s_sub_u32 s{S_T2}, s{S_T0}, s{S_T2}")
        divc(a, S_CT, S_T2, 6)
        divc(a, S_RT, S_T2, 5)
        a(f"s_cmp_eq_u32 s{S_T1}, 2")
        a(f"s_cselect_b32 s{S_CT}, s{S_RT}, s{S_CT}")
        a(f"s_cselect_b32 s{S_RT}, 5, 6")
        a(f"s_mul_i32 s{S_RT}, s{S_RT}, s{S_CT}")
        a(f"s_sub_u32 s{S_RT}, s{S_T2}, s{S_RT}")
        a(f"s_mul_i32 s{S_T1}, s{S_T1}, 6")
        a(f"s_add_u32 s{S_RT}, s{S_RT}, s{S_T1}")
    elif kind == "p3":
        divc(a, S_T1, S_T0, 81)
        a(f"s_mul_i32 s{S_T2}, s{S_T1}, 81")
        a(f"s_sub_u32 s{S_T2}, s{S_T0}, s{S_T2}")
        divc(a, S_CT, S_T2, 3)
        a(f"s_mul_i32 s{S_RT}, s{S_CT}, 3")
        a(f"s_sub_u32 s{S_RT}, s{S_T2}, s{S_RT}")
        a(f"s_mul_i32 s{S_T1}, s{S_T1}, 3")
        a(f"s_add_u32 s{S_RT}, s{S_RT}, s{S_T1}")
    elif kind == "p1f":
        a(f"s_lshr_b32 s{S_T1}, s{S_T0}, 6")
        a(f"s_lshl_b32 s{S_RT}, s{S_T1}, 3")
        a(f"s_bfe_u32 s{S_T2}, s{S_T0}, {2 | (3 << 16)}")
        a(f"s_add_u32 s{S_RT}, s{S_RT}, s{S_T2}")
        a(f"s_bfe_u32 s{S_T1}, s{S_T0}, {5 | (1 << 16)}")
        a(f"s_lshl_b32 s{S_T1}, s{S_T1}, 2")
        a(f"s_and_b32 s{S_CT}, s{S_T0}, 3")
        a(f"s_add_u32 s{S_CT}, s{S_CT}, s{S_T1}")
    elif kind == "att":
        a(f"s_lshr_b32 s{S_RT}, s{S_T0}, 1")
        a(f"s_and_b32 s{S_CT}, s{S_T0}, 1")
    else:
        divc(a, S_RT, S_T0, 10)
        a(f"s_mul_i32 s{S_CT}, s{S_RT}, 10")
        a(f"s_sub_u32 s{S_CT}, s{S_T0}, s{S_CT}")

def publish(a):
    skip = a.new("pub")
    a(f"s_cmp_eq_u32 s{S_WAVE}, 0")
    a(f"s_cbranch_scc0 {skip}")
    a(f"s_cmp_eq_u32 s{S_FIDX}, -1")
    a(f"s_cbranch_scc1 {skip}")
    a(f"v_mov_b32 v140, s{S_NONCE}")
    a(f"v_mov_b32 v141, s{S_NONCE+1}")
    a(f"v_mov_b32 v142, s{S_FIDX}")
    a("s_mov_b64 exec, 1")
    a(f"buffer_store_dwordx2 v[140:141], v142, s[{SRD_FLAG}:{SRD_FLAG+3}], 0 offen{SC1}")
    a("s_mov_b64 exec, -1")
    a.label(skip)

def poll_core(a, sv=80):
    loop = a.new("poll"); done = a.new("polldone")
    a(f"s_and_saveexec_b64 s[{sv}:{sv+1}], vcc")
    a(f"s_mov_b32 s{S_CNT}, 0x40000")
    a.label(loop)
    a(f"buffer_load_dwordx2 v[142:143], v140, s[{SRD_FLAG}:{SRD_FLAG+3}], 0 offen{SC1}")
    a("s_waitcnt vmcnt(0)")
    a(f"v_cmp_ne_u64 vcc, s[{S_NONCE}:{S_NONCE+1}], v[142:143]")
    a(f"s_cbranch_vccz {done}")
    a(f"s_sub_u32 s{S_CNT}, s{S_CNT}, 1")
    a(f"s_cmp_lg_u32 s{S_CNT}, 0")
    a(f"s_cbranch_scc1 {loop}")
    a.label(done)
    a(f"s_mov_b64 exec, s[{sv}:{sv+1}]")

def poll(a, lo_sgpr, hi_sgpr, base, wave=0):
    skip = a.new("pollskip")
    a(f"s_cmp_eq_u32 s{S_WAVE}, {wave}")
    a(f"s_cbranch_scc0 {skip}")
    a(f"v_add_u32 v140, s{lo_sgpr}, v2")
    a(f"v_cmp_gt_u32 vcc, s{hi_sgpr}, v140")
    a(f"v_lshlrev_b32 v140, 7, v140")
    a(f"v_add_u32 v140, {base}, v140")
    poll_core(a, 80 if wave == 0 else 4)
    a.label(skip)

def poll_first_g(a, lo_sgpr, hi_sgpr, W, k0, S, G, base):
    skip = a.new("pollskip")
    lg = 2 if G <= 4 else 3
    a(f"s_cmp_eq_u32 s{S_WAVE}, 0")
    a(f"s_cbranch_scc0 {skip}")
    a(f"v_lshrrev_b32 v140, {lg}, v2")
    a(f"v_add_u32 v140, s{lo_sgpr}, v140")
    a(f"v_cmp_ge_u32 vcc, s{hi_sgpr}, v140")
    a(f"v_and_b32 v141, {(1 << lg) - 1}, v2")
    a(f"v_cmp_gt_u32 s[82:83], {G}, v141")
    a(f"v_add_u32 v141, s{k0}, v141")
    a(f"v_subrev_u32 v142, {S}, v141")
    a(f"s_and_b64 s[82:83], s[82:83], vcc")
    a(f"v_cmp_le_u32 vcc, {S}, v141")
    a(f"v_mul_u32_u24 v140, {W}, v140")
    a("s_nop 0")
    a("v_cndmask_b32 v141, v141, v142, vcc")
    a("v_add_u32 v140, v140, v141")
    a(f"v_lshlrev_b32 v140, 7, v140")
    a(f"v_add_u32 v140, {base}, v140")
    a("s_mov_b64 vcc, s[82:83]")
    poll_core(a)
    a.label(skip)

def poll_first(a, lo_sgpr, hi_sgpr, W, k0, k1, base):
    skip = a.new("pollskip")
    a(f"s_cmp_eq_u32 s{S_WAVE}, 0")
    a(f"s_cbranch_scc0 {skip}")
    a("v_lshrrev_b32 v140, 1, v2")
    a(f"v_add_u32 v140, s{lo_sgpr}, v140")
    a(f"v_cmp_ge_u32 vcc, s{hi_sgpr}, v140")
    a(f"v_mul_u32_u24 v140, {W}, v140")
    a("v_and_b32 v141, 1, v2")
    a(f"s_sub_u32 s{S_T2}, s{k1}, s{k0}")
    a(f"v_mul_lo_u32 v141, v141, s{S_T2}")
    a(f"v_add_u32 v141, s{k0}, v141")
    a("v_add_u32 v140, v140, v141")
    a(f"v_lshlrev_b32 v140, 7, v140")
    a(f"v_add_u32 v140, {base}, v140")
    poll_core(a)
    a.label(skip)

def first_ks(a, P):
    P.rot_start(a)
    a(f"s_add_u32 s{S_KB}, s{S_K}, 1")
    a(f"s_cmp_ge_u32 s{S_KB}, {P.S}")
    a(f"s_cselect_b32 s{S_KB}, 0, s{S_KB}")

def dbg_srd(a):
    a(f"s_mov_b32 s80, s{ptr(KA_DBG)}")
    a(f"s_and_b32 s81, s{ptr(KA_DBG)+1}, 0xffff")
    a("s_mov_b32 s82, 0x100")
    a("s_mov_b32 s83, 0x20000")

def nonce_publish(a):
    skip = a.new("nonce")
    a(f"s_cmp_eq_u32 s{S_WAVE}, 0")
    a(f"s_cbranch_scc0 {skip}")
    a("s_cmp_eq_u32 s2, 0")
    a(f"s_cbranch_scc0 {skip}")
    dbg_srd(a)
    a(f"s_memrealtime s[{S_NONCE}:{S_NONCE+1}]")
    a("v_mov_b32 v5, 0")
    a("s_waitcnt lgkmcnt(0)")
    a(f"s_or_b32 s{S_NONCE}, s{S_NONCE}, 1")
    a(f"v_mov_b32 v6, s{S_NONCE}")
    a(f"v_mov_b32 v7, s{S_NONCE+1}")
    a("s_mov_b64 exec, 1")
    a(f"buffer_store_dwordx2 v[6:7], v5, s[80:83], 0 offen{SC1}")
    a("s_mov_b64 exec, -1")
    a.label(skip)

def nonce_issue(a):
    skip = a.new("nonce")
    a(f"s_cmp_eq_u32 s{S_WAVE}, 0")
    a(f"s_cbranch_scc0 {skip}")
    dbg_srd(a)
    a("v_mov_b32 v158, 0")
    a("s_nop 3")
    a(f"buffer_load_dwordx2 v[156:157], v158, s[80:83], 0 offen{SC1}")
    a.label(skip)

def nonce_check(a, issued=True):
    skip = a.new("nonce"); loop = a.new("nloop"); done = a.new("ndone"); chk = a.new("nchk")
    a(f"s_cmp_eq_u32 s{S_WAVE}, 0")
    a(f"s_cbranch_scc0 {skip}")
    dbg_srd(a)
    a("v_mov_b32 v158, 0")
    a(f"s_mov_b32 s{S_CNT}, 0x40000")
    if issued: a(f"s_branch {chk}")
    a.label(loop)
    a(f"buffer_load_dwordx2 v[156:157], v158, s[80:83], 0 offen{SC1}")
    a("s_waitcnt vmcnt(0)")
    a.label(chk)
    a("v_readfirstlane_b32 s" + str(S_NONCE) + ", v156")
    a("v_readfirstlane_b32 s" + str(S_NONCE+1) + ", v157")
    a("s_nop 3")
    a(f"s_cmp_lg_u32 s{S_NONCE}, 0")
    a(f"s_cbranch_scc1 {done}")
    a(f"s_sub_u32 s{S_CNT}, s{S_CNT}, 1")
    a(f"s_cmp_lg_u32 s{S_CNT}, 0")
    a(f"s_cbranch_scc1 {loop}")
    a.label(done)
    a(f"v_mov_b32 v158, {NONCE_LDS}")
    a("s_mov_b64 exec, 1")
    a("ds_write_b64 v158, v[156:157]")
    a("s_mov_b64 exec, -1")
    a("s_waitcnt lgkmcnt(0)")
    a.label(skip)

def nonce_from_lds(a):
    skip = a.new("nlds")
    a(f"s_cmp_eq_u32 s{S_WAVE}, 7")
    a(f"s_cbranch_scc0 {skip}")
    a(f"v_mov_b32 v140, {NONCE_LDS}")
    a("ds_read_b64 v[142:143], v140")
    a("s_waitcnt lgkmcnt(0)")
    a(f"v_readfirstlane_b32 s{S_NONCE}, v142")
    a(f"v_readfirstlane_b32 s{S_NONCE+1}, v143")
    a.label(skip)

class Phase:
    has_e1 = False
    has_stage_work = False
    prefetchB = 0
    def loader_post_first(self, a): return 0
    def loader_post_b0(self, a): return 0
    def loader_stage_work_parts(self): return []
    def loader_final(self, a): pass
    def store_pre(self, a): pass
    def tail_prefetch(self, a, part): return 0
    def mid_prefetch(self, a, s): return 0
    def l2_prep(self, a): pass
    def rot_start(self, a):
        if self.key in ROTOFF:
            a(f"s_mov_b32 s{S_K}, 0"); return
        ca, cb, den = self.rot
        a(f"s_mul_i32 s{S_K}, s{S_CT}, {ca}")
        a(f"s_mul_i32 s{S_T0}, s{S_RT}, {cb}")
        a(f"s_add_u32 s{S_K}, s{S_K}, s{S_T0}")
        a(f"s_lshr_b32 s{S_K}, s{S_K}, {den}")
        m = (65536 + self.S - 1) // self.S
        for x in range(1024): assert (x*m) >> 16 == x // self.S
        a(f"s_mul_i32 s{S_T0}, s{S_K}, {m}")
        a(f"s_lshr_b32 s{S_T0}, s{S_T0}, 16")
        a(f"s_mul_i32 s{S_T0}, s{S_T0}, {self.S}")
        a(f"s_sub_u32 s{S_K}, s{S_K}, s{S_T0}")
    def tile_consts(self, a):
        a(f"s_mul_i32 s{S_R0}, s{S_RT}, {self.MV}")
        a(f"s_mul_i32 s{S_C0}, s{S_CT}, {self.NC}")
        a(f"s_add_u32 s{S_REND}, s{S_R0}, {self.MV}")
        a(f"s_min_u32 s{S_REND}, s{S_REND}, {S_TOK}")

def transition(a, first):
    pass

def loader_phase(a, P, first):
    NS, S = P.NS, P.S
    nA, nB = len(P.Ains), len(P.Bins)
    VB = 32
    customB = getattr(P, 'custom_B', False)
    a("v_lshrrev_b32 v3, 3, v2      ; r8")
    a("v_and_b32 v4, 7, v2          ; p")
    a("v_lshrrev_b32 v5, 1, v3      ; r8>>1")
    a("v_xor_b32 v6, v4, v5")
    a("v_lshlrev_b32 v6, 4, v6")
    a(f"s_lshl_b32 s{S_T0}, s{S_W}, 3")
    a(f"s_add_u32 s{S_T0}, s{S_T0}, s{S_R0}")
    a(f"v_add_u32 v7, s{S_T0}, v3")
    a(f"s_mov_b32 s{S_T0}, {P.lda}")
    a(f"v_mul_lo_u32 v7, v7, s{S_T0}")
    a("v_add_u32 v7, v7, v6")
    a(f"s_and_b32 s{S_T0}, s{S_W}, 1")
    a(f"s_lshl_b32 s{S_T0}, s{S_T0}, 6")
    a(f"v_xor_b32 v7, s{S_T0}, v7")
    for t in range(nA):
        a(f"v_add_u32 v{VB+t}, {t*32*P.lda}, v7")
    if customB: P.lazyB = True
    else: std_B_setup(a, P, VB, nA)
    if getattr(P, 'oprime', False): oprime_alt_setup(a, P)
    a(f"s_lshl_b32 s{S_LW}, s{S_W}, 10")
    P.mask_setup(a)
    P.rot_start(a)
    a(f"s_mov_b32 s{S_KB}, s{S_K}")
    a(f"s_mov_b32 s{S_N1}, 0"); a(f"s_mov_b32 s{S_N2}, 0")
    if first: ptr_wait(a)
    P.build_srds(a, 'l')
    loader_rest(a, P, first, VB, nA, nB, NS, S)

def oprime_alt_setup(a, P):
    a(f"s_and_b32 s{S_T0}, s{S_W}, 1")
    a(f"s_lshl_b32 s{S_T0}, s{S_T0}, 6")
    a(f"v_xor_b32 v10, s{S_T0}, v6")
    a("v_lshrrev_b32 v11, 5, v10             ; q = c>>1")
    a("v_lshlrev_b32 v11, 7, v11             ; q*128")
    a("v_and_b32 v12, 16, v10                ; half*16")
    a("v_add_u32 v11, v11, v12")
    a(f"s_lshl_b32 s{S_T0}, s{S_W}, 3")
    a(f"s_add_u32 s{S_T0}, s{S_T0}, s{S_R0}")
    a(f"v_add_u32 v12, s{S_T0}, v3            ; row (t=0)")
    for t in range(3):
        a(f"v_add_u32 v13, {32*t}, v12")
        a("v_lshrrev_b32 v14, 2, v13")
        a("v_lshlrev_b32 v14, 10, v14")
        a("v_and_b32 v13, 3, v13")
        a("v_lshl_add_u32 v14, v13, 5, v14")
        a("v_add_u32 v14, v14, v11")
        a(f"v_add_u32 v{44+t}, 0x200000, v14")
    a(f"s_and_b32 s{S_T0}, s{S_W}, 1")
    a(f"s_lshl_b32 s{S_T0}, s{S_T0}, 6")
    a(f"v_xor_b32 v10, s{S_T0}, v8")
    a(f"s_lshl_b32 s{S_T1}, s{S_C0}, 1")
    a(f"v_add_u32 v10, s{S_T1}, v10")
    a(f"s_lshl_b32 s{S_T0}, s{S_W}, 3")
    for t, ib in enumerate((0, 4)):
        a(f"v_add_u32 v12, s{S_T0}, v3")
        a(f"v_add_u32 v12, {8*ib}, v12          ; r")
        a("v_lshrrev_b32 v13, 4, v12")
        a("v_mul_u32_u24 v13, 80, v13")
        a("v_and_b32 v12, 15, v12")
        a("v_add_u32 v13, v13, v12")
        a("v_add_u32 v13, 64, v13")
        a("v_mul_u32_u24 v13, 1280, v13")
        a(f"v_add_u32 v{47+t}, v13, v10")

def std_B_setup(a, P, VB, nA):
    a("v_and_b32 v8, 1, v5")
    a("v_lshlrev_b32 v8, 1, v8")
    a("v_xor_b32 v8, v4, v8")
    a("v_lshlrev_b32 v8, 4, v8")
    a(f"s_lshl_b32 s{S_T0}, s{S_W}, 3")
    a(f"v_add_u32 v9, s{S_T0}, v3         ; k = 8w + r8")
    a(f"s_mov_b32 s{S_T0}, {P.ldb}")
    a(f"v_mul_lo_u32 v9, v9, s{S_T0}")
    a("v_add_u32 v9, v9, v8")
    a(f"s_and_b32 s{S_T0}, s{S_W}, 1")
    a(f"s_lshl_b32 s{S_T0}, s{S_T0}, 6")
    a(f"v_xor_b32 v9, s{S_T0}, v9")
    a(f"s_lshl_b32 s{S_T1}, s{S_C0}, 1")
    a(f"v_add_u32 v9, s{S_T1}, v9")
    for t, (pn, ib) in enumerate(P.Bins):
        a(f"v_add_u32 v{VB+nA+t}, {ib*8*P.ldb + P.panel_coloff[pn]}, v9")

def loader_rest(a, P, first, VB, nA, nB, NS, S):

    opr = getattr(P, 'oprime', False)
    def soff(kreg, offreg, mul):
        if not opr:
            a(f"s_mul_i32 s{offreg}, s{kreg}, {mul}")
            return
        mm, mt_ = (128, 512) if offreg == S_AOFF else (102400, 409600)
        a(f"s_mul_i32 s{offreg}, s{kreg}, {mm}")
        a(f"s_sub_u32 s{S_T0}, s{kreg}, 8")
        a(f"s_mul_i32 s{S_T0}, s{S_T0}, {mt_}")
        a(f"s_cmp_ge_u32 s{kreg}, 8")
        a(f"s_cselect_b32 s{offreg}, s{S_T0}, s{offreg}")
    def adv(kreg, offreg, mul, slotreg):
        if getattr(P, 'order2', False) and P1ROT == 'latin2':
            cnt = S_N1 if kreg == S_K else S_N2
            a(f"s_add_u32 s{kreg}, s{kreg}, 2")
            a(f"s_cmp_ge_u32 s{kreg}, {S}")
            a(f"s_cselect_b32 s{S_T0}, {S}, 0")
            a(f"s_sub_u32 s{kreg}, s{kreg}, s{S_T0}")
            a(f"s_add_u32 s{cnt}, s{cnt}, 1")
            a(f"s_cmp_eq_u32 s{cnt}, 5")
            a(f"s_addc_u32 s{kreg}, s{kreg}, 0")
        else:
            a(f"s_add_u32 s{kreg}, s{kreg}, 1")
            a(f"s_cmp_ge_u32 s{kreg}, {S}")
            a(f"s_cselect_b32 s{kreg}, 0, s{kreg}")
        soff(kreg, offreg, mul)
        a(f"s_add_u32 s{slotreg}, s{slotreg}, {P.STAGE}")
        a(f"s_cmp_ge_u32 s{slotreg}, {P.STAGE*NS}")
        a(f"s_cselect_b32 s{slotreg}, 0, s{slotreg}")
    def issueA(fill=None):
        a(f"s_add_u32 s{S_T3}, s{S_SLOT}, s{S_LW}")
        if opr:
            lt_ = a.new("atail"); le_ = a.new("aend")
            a(f"s_cmp_ge_u32 s{S_K}, 8")
            a(f"s_cbranch_scc1 {lt_}")
            issueA_body(VB, None)
            a(f"s_branch {le_}")
            a.label(lt_)
            issueA_body(44, None)
            a.label(le_)
        else:
            issueA_body(VB, fill)
        adv(S_K, S_AOFF, 128, S_SLOT)
    def issueA_body(vb, fill):
        for t in range(nA):
            special = P.Ains[t]
            sk = None
            if special == 'skip':
                sk = a.new("sk")
                a(f"s_cmp_eq_u64 s[{S_MASK}:{S_MASK+1}], 0")
                a(f"s_cbranch_scc1 {sk}")
            a(f"s_add_u32 m0, s{S_T3}, {t*4096}")
            if special: a(f"s_mov_b64 exec, s[{S_MASK}:{S_MASK+1}]")
            else: a("s_nop 0")
            a(f"buffer_load_dwordx4 v{vb+t}, s[{SRD_A}:{SRD_A+3}], s{S_AOFF} offen{P.scA} lds")
            if special: a("s_mov_b64 exec, -1")
            if sk: a.label(sk)
            if fill:
                for x in fill.pop(0) if fill else []: a(x)
    def issueB(fill=None):
        if getattr(P, 'lazyB', False):
            P.lazyB = False
            P.custom_B_setup(a, VB + nA)
        a(f"s_add_u32 s{S_T4}, s{S_SLOTB}, s{S_LW}")
        if opr:
            lt_ = a.new("btail"); le_ = a.new("bend")
            a(f"s_cmp_ge_u32 s{S_KB}, 8")
            a(f"s_cbranch_scc1 {lt_}")
            issueB_body(VB + nA, None)
            a(f"s_branch {le_}")
            a.label(lt_)
            issueB_body(47, None)
            a.label(le_)
        else:
            issueB_body(VB + nA, fill)
        adv(S_KB, S_BOFF, 64*P.ldb, S_SLOTB)
    def issueB_body(vb, fill):
        for t, ent in enumerate(P.Bins):
            if isinstance(ent, dict):
                sr = SRD_B0; ldsoff = ent['lds']; skp = ent.get('skip')
            else:
                pn, ib = ent
                sr = P.panel_srd[pn]; ldsoff = P.ABYTES + pn*8192 + ib*1024; skp = None
            sk = None
            if skp:
                sk = a.new("skb")
                a(f"s_cmp_ge_u32 s{S_W}, {skp}")
                a(f"s_cbranch_scc1 {sk}")
            a(f"s_add_u32 m0, s{S_T4}, {ldsoff}")
            a("s_nop 0")
            a(f"buffer_load_dwordx4 v{vb+t}, s[{sr}:{sr+3}], s{S_BOFF} offen lds")
            if sk: a.label(sk)
            if fill:
                for x in fill.pop(0) if fill else []: a(x)
    minA = nA - (1 if 'skip' in P.Ains else 0)
    minB = nB - sum(1 for e_ in P.Bins if isinstance(e_, dict) and e_.get('skip'))
    a(f"s_mov_b32 s{S_SLOT}, 0")
    a(f"s_mov_b32 s{S_SLOTB}, 0")
    soff(S_K, S_AOFF, 128)
    soff(S_KB, S_BOFF, 64*P.ldb)
    pB = P.prefetchB if not first else 0
    if pB:
        lp = a.new("bpre")
        a(f"s_mov_b32 s{S_CNT}, {pB}")
        a.label(lp)
        issueB()
        a(f"s_sub_u32 s{S_CNT}, s{S_CNT}, 1")
        a(f"s_cmp_lg_u32 s{S_CNT}, 0")
        a(f"s_cbranch_scc1 {lp}")
    nextra = 0
    if pB and getattr(P, 'extraB', 0) and EXTRAB:
        a(f"s_mov_b32 s4, s{S_KB}")
        for e_ in range(EXTRAB):
            for t in range(nB):
                a(f"buffer_load_dwordx4 v[152:155], v{VB+nA+t}, s[{SRD_B0}:{SRD_B0+3}], s{S_BOFF} offen")
                nextra += 1
            a(f"s_add_u32 s{S_KB}, s{S_KB}, 1")
            a(f"s_cmp_ge_u32 s{S_KB}, {S}")
            a(f"s_cselect_b32 s{S_KB}, 0, s{S_KB}")
            a(f"s_mul_i32 s{S_BOFF}, s{S_KB}, {64*P.ldb}")
        a(f"s_mov_b32 s{S_KB}, s4")
        a(f"s_mul_i32 s{S_BOFF}, s{S_KB}, {64*P.ldb}")
    if not first:
        a("s_barrier      ; B_dep")
    stamp(a, 0)
    L = []
    gate = getattr(P, 'gate', None) if not first else None
    for s in range(S):
        cap = (NS - 1) if s == 0 else s + NS - 2
        prev = L[-1] if L else -1
        if gate and s <= gate[1]:
            L.append(min(gate[0] - 1, cap, prev + 2))
        else:
            L.append(min(S - 1, cap, prev + (3 if gate else 2)))
    if gate:
        assert gate[0] <= pB and gate[0] - 1 <= NS - 1
        nonce_from_lds(a)
    seq = [('B', j) for j in range(pB)]
    if nextra: seq.append(('X', nextra))
    if hasattr(P, 'pre_issue'):
        npre = P.pre_issue(a)
    def cnt_after(s):
        last = max(i for i, (k, j) in enumerate(seq) if j == s and k in 'AB')
        n = 0
        for (k, j) in seq[last+1:]:
            n += minA if k == 'A' else (minB if k == 'B' else j)
        return n
    def issue_stage(j, fill=None):
        if j >= pB:
            issueA(fill); seq.append(('A', j))
            issueB(fill); seq.append(('B', j))
        else:
            issueA(fill); seq.append(('A', j))
    prev = -1
    s = 0
    while s < S:
        k = L[s] - prev
        e = s
        if k == 1 and L[s] >= pB and s > 0 and not getattr(P, 'unroll', False):
            while e + 1 < S and L[e+1] - L[e] == 1 and (L[e+1] - (e+1)) == (L[s] - s): e += 1
        if e - s >= 2 and s - 0 >= 0 and min(range(s, e+1)) >= 0 and s >= pB - (L[s] - s) and all(j >= pB for j in range(s, s+1)):
            cnt = e - s + 1
            lp = a.new("lmain")
            a(f"s_mov_b32 s{S_CNT}, {cnt}")
            a.label(lp)
            parts = P.loader_stage_work_parts() if P.has_stage_work else None
            issue_stage(L[s], parts)
            if parts:
                for grp in parts:
                    for x in grp: a(x)
            n = cnt_after(s)
            a(f"s_waitcnt vmcnt({n})")
            if P.has_stage_work: a("s_waitcnt lgkmcnt(0)")
            a("s_barrier")
            a(f"s_sub_u32 s{S_CNT}, s{S_CNT}, 1")
            a(f"s_cmp_lg_u32 s{S_CNT}, 0")
            a(f"s_cbranch_scc1 {lp}")
            for j in range(s+1, e+1):
                seq.append(('A', L[j])); seq.append(('B', L[j]))
            prev = L[e]; s = e + 1
            continue
        parts = P.loader_stage_work_parts() if (P.has_stage_work and s > 0) else None
        for j in range(prev+1, L[s]+1):
            issue_stage(j, parts if j == prev+1 else None)
        if s == 0:
            stamp(a, 1)
            ex = P.loader_post_first(a) or 0
            P.l2_prep(a)
            if getattr(P, 'early_pre', False): ex += P.early_setup(a)
            if ex: seq.append(('X', ex))
        if parts:
            for grp in parts:
                for x in grp: a(x)
        nw = P.mid_prefetch(a, s) or 0
        if nw: seq.append(('X', nw))
        if gate and s == gate[1]: P.deps(a, wave=7)
        a(f"s_waitcnt vmcnt({cnt_after(s)})")
        if P.has_stage_work or s == 0: a("s_waitcnt lgkmcnt(0)")
        a("s_barrier")
        if s == 0:
            ex = P.loader_post_b0(a) or 0
            if ex: seq.append(('X', ex))
        prev = L[s]; s += 1
    stamp(a, 2)
    if P.has_stage_work:
        for grp in P.loader_stage_work_parts():
            for x in grp: a(x)
    if getattr(P, 'fused', False):
        P.loader_fused_tail(a)
        return
    P.loader_final(a)
    if getattr(P, 'chunk_epi', False): P.loader_store_setup(a)
    if getattr(P, 'early_pre', False):
        a("s_barrier          ; E2")
        P.store_fast(a)
        P.set_fidx(a)
        return
    P.store_pre(a)
    ny = 0
    if P.has_e1:
        a("s_waitcnt lgkmcnt(0)")
        a("s_barrier      ; E1")
    if getattr(P, 'stream_epi', False):
        P.set_fidx(a)
        return
    if getattr(P, 'chunk_epi', False):
        P.loader_epilogue(a)
        P.set_fidx(a)
        return
    a("s_barrier          ; E2")
    store_pass(a, P, ny)

def consumer_phase(a, P, first):
    if getattr(P, 'modeS', False): return consumer_phase_S(a, P, first)
    P.consumer_setup(a)
    NW = len(P.wlist)
    XF = [0, 4*P.NXMAX]
    WF = [8*P.NXMAX, 8*P.NXMAX + 4*NW]
    wk, wt = getattr(P, 'wstep', (4096, 512))
    def reads(kk, buf):
        r = []
        for wi, (areg, off) in enumerate(P.wlist):
            base = WF[buf] + 4*wi
            r.append(f"ds_read_b64_tr_b16 a[{base}:{base+1}], v{areg} offset:{off + kk*wk}")
            r.append(f"ds_read_b64_tr_b16 a[{base+2}:{base+3}], v{areg} offset:{off + kk*wk + wt}")
        for xi, (areg0, areg1, off) in enumerate(P.xlist):
            base = XF[buf] + 4*xi
            areg = areg0 if kk == 0 else areg1
            r.append(f"ds_read_b128 a[{base}:{base+3}], v{areg} offset:{off}")
        return r
    def mfmas(buf, first_=False):
        m = []
        for (xi, wi, acc) in P.mf:
            c = "0" if first_ else f"v[{acc}:{acc+3}]"
            m.append(f"v_mfma_f32_16x16x32_bf16 v[{acc}:{acc+3}], a[{WF[buf]+4*wi}:{WF[buf]+4*wi+3}], a[{XF[buf]+4*xi}:{XF[buf]+4*xi+3}], {c}")
        return m
    block = make_block(a, P.RPM)
    cons_prologue(a, P, first)
    for x in reads(0, 0): a(x)
    a(f"s_mov_b32 s{S_CNT}, {P.S-1}")
    a("s_waitcnt lgkmcnt(0)")
    def stats4(buf):
        if not getattr(P, 'mfma_stats4', False): return
        sk = a.new("st4")
        a(f"s_and_b32 s{S_T0}, s{S_N1}, 3")
        a(f"s_add_u32 s{S_N1}, s{S_N1}, 1")
        a(f"s_cmp_eq_u32 s{S_T0}, s{S_WAVE}")
        a(f"s_cbranch_scc0 {sk}")
        for x in P.stats_mfmas([f"a[{XF[buf]+4*xi}:{XF[buf]+4*xi+3}]" for xi in range(len(P.xlist))]): a(x)
        a.label(sk)
    st4 = getattr(P, 'mfma_stats4', False)
    block(mfmas(0, True), reads(1, 1), slot_adv(P) + P.addr_update())
    stats4(0)
    lp = a.new("cloop")
    if ALIGN: a.raw(f".p2align {ALIGN}")
    a.label(lp)
    a("s_waitcnt lgkmcnt(0)")
    a("s_barrier")
    block(mfmas(1), reads(0, 0), [f"s_sub_u32 s{S_CNT}, s{S_CNT}, 1"])
    stats4(1)
    a("s_waitcnt lgkmcnt(0)")
    block(mfmas(0), reads(1, 1), slot_adv(P) + P.addr_update() + ([] if st4 else [f"s_cmp_lg_u32 s{S_CNT}, 0"]))
    stats4(0)
    if st4: a(f"s_cmp_lg_u32 s{S_CNT}, 0")
    a(f"s_cbranch_scc1 {lp}")
    a("s_waitcnt lgkmcnt(0)")
    block(mfmas(1), [])
    stats4(1)
    cons_tail(a, P, first)

def make_block(a, RPM):
    def block(m, r, fill=()):
        q = list(r); fl = list(fill)
        for i, x in enumerate(m):
            a(x)
            k = 0
            while q and k < RPM:
                a(q.pop(0)); k += 1
            if not q:
                while fl and k < 2:
                    a(fl.pop(0)); k += 1
        for x in q: a(x)
        for x in fl: a(x)
    return block

def slot_adv(P):
    return [f"s_add_u32 s{S_SLOT}, s{S_SLOT}, {P.STAGE}",
            f"s_cmp_ge_u32 s{S_SLOT}, {P.STAGE*P.NS}",
            f"s_cselect_b32 s{S_SLOT}, 0, s{S_SLOT}"]

def cons_prologue(a, P, first):
    a(f"s_mov_b32 s{S_SLOT}, 0")
    for x in P.addr_update(): a(x)
    if first: ptr_wait(a)
    P.build_srds(a, 'c')
    if not first:
        if P.key == 'p3': dry_call(a, 2, "L_epi3_start", "L_epi3_ret")
        if TWOSTEP: P.deps_first(a)
        else: P.deps(a)
        a("s_barrier      ; B_dep")
        if getattr(P, 'early_pre', False): P.early_setup(a)
        if TWOSTEP and not getattr(P, 'gate', None): P.deps(a)
    else:
        nonce_publish(a)
        if getattr(P, 'fused', False):
            dry_call(a, 1, "L_epi1_start", "L_epi1_ret")
            dry_call(a, 2, "L_att_start", "L_att_ret")
    stamp(a, 0)
    a("s_barrier          ; B_0")
    stamp(a, 1)

def cons_tail(a, P, first):
    stamp(a, 2)
    if first: nonce_issue(a)
    a("s_nop 7")
    P.epilogue(a)
    if getattr(P, 'stream_epi', False) or getattr(P, 'chunk_epi', False):
        P.set_fidx(a)
        return
    a("s_waitcnt lgkmcnt(0)")
    if getattr(P, 'early_pre', False):
        a("s_barrier          ; E2")
        P.store_fast(a)
        P.set_fidx(a)
        return
    P.store_pre(a)
    a("s_barrier          ; E2")
    store_pass(a, P)

def consumer_phase_S(a, P, first):
    P.consumer_setup(a)
    for r in range(P.ACC, P.ACC + P.NACC): a(f"v_mov_b32 v{r}, 0")
    def rng(t):
        k, i = t
        return f"{k}[{i}:{i+3}]"
    def half(t, h):
        k, i = t
        return f"{k}[{i+2*h}:{i+2*h+1}]"
    def reads(buf):
        r = []
        for kk in range(2):
            for wi, (areg, off) in enumerate(P.wlist):
                t = P.fragW(buf, kk, wi)
                r.append(f"ds_read_b64_tr_b16 {half(t,0)}, v{areg} offset:{off + kk*4096}")
                r.append(f"ds_read_b64_tr_b16 {half(t,1)}, v{areg} offset:{off + kk*4096 + 512}")
            for xi, (areg0, areg1, off) in enumerate(P.xlist):
                areg = areg0 if kk == 0 else areg1
                r.append(f"ds_read_b128 {rng(P.fragX(buf, kk, xi))}, v{areg} offset:{off}")
        return r
    def mfmas(buf):
        m = []
        for kk in range(2):
            for (xi, wi, acc) in P.mf:
                m.append(f"v_mfma_f32_16x16x32_bf16 v[{acc}:{acc+3}], {rng(P.fragW(buf, kk, wi))}, {rng(P.fragX(buf, kk, xi))}, v[{acc}:{acc+3}]")
        return m
    def stats(buf):
        if not getattr(P, 'mfma_stats', False) or 'nostats' in EXP: return
        l1 = a.new("st"); l2 = a.new("st")
        a(f"s_cmp_eq_u32 s{S_J}, 1")
        a(f"s_cbranch_scc1 {l1}")
        for x in P.stats_mfmas([rng(P.fragX(buf, 0, xi)) for xi in range(4)]): a(x)
        a(f"s_branch {l2}")
        a.label(l1)
        for x in P.stats_mfmas([rng(P.fragX(buf, 1, xi)) for xi in range(4)]): a(x)
        a.label(l2)
    block = make_block(a, P.RPM)
    cons_prologue(a, P, first)
    for x in reads(0): a(x)
    for x in slot_adv(P) + P.addr_update(): a(x)
    S = P.S
    npair = (S - 1)//2
    def step(cur, fill_extra=()):
        a("s_waitcnt lgkmcnt(0)")
        a("s_barrier")
        block(mfmas(cur), reads(1 - cur), slot_adv(P) + P.addr_update() + list(fill_extra))
        stats(cur)
    a(f"s_mov_b32 s{S_CNT}, {npair}")
    lp = a.new("cloop")
    if ALIGN: a.raw(f".p2align {ALIGN}")
    a.label(lp)
    step(0, [f"s_sub_u32 s{S_CNT}, s{S_CNT}, 1"])
    step(1)
    a(f"s_cmp_lg_u32 s{S_CNT}, 0")
    a(f"s_cbranch_scc1 {lp}")
    last = 0
    if (S - 1) % 2 == 1:
        step(0); last = 1
    a("s_waitcnt lgkmcnt(0)")
    block(mfmas(last), [])
    stats(last)
    cons_tail(a, P, first)

def ptr_wait(a):
    a("s_waitcnt lgkmcnt(0)")
    if PROFDBG: a(f"s_mov_b32 s{S_P0}, s98")
    srd(a, SRD_FLAG, ptr(KA_WS), WS_FLAG, 0x20000)

def cons_lane(a):
    a("v_and_b32 v3, 15, v2")
    a("v_lshrrev_b32 v4, 4, v2")

def x_addr_const(a, dst, rowbase_sgpr, rowbase_const=0):
    a("v_lshrrev_b32 v5, 1, v3")
    a("v_xor_b32 v5, v4, v5")
    a("v_lshlrev_b32 v5, 4, v5")
    a(f"v_lshl_add_u32 v{dst}, v3, 7, v5")
    if rowbase_sgpr is not None:
        a(f"s_lshl_b32 s{S_T0}, s{rowbase_sgpr}, 7")
        a(f"v_add_u32 v{dst}, s{S_T0}, v{dst}")
    if rowbase_const:
        a(f"v_add_u32 v{dst}, {rowbase_const*128}, v{dst}")

def w_addr_const(a, dst):
    a("v_lshrrev_b32 v5, 2, v3        ; r")
    a("v_lshl_add_u32 v6, v4, 3, v5   ; 8g+r")
    a("v_lshlrev_b32 v6, 7, v6")
    a("v_lshrrev_b32 v5, 1, v5        ; r>>1")
    a("v_and_b32 v7, 1, v4")
    a("v_lshl_or_b32 v5, v7, 1, v5    ; h")
    a("v_lshl_add_u32 v6, v5, 5, v6")
    a("v_and_b32 v5, 3, v3")
    a(f"v_lshl_add_u32 v{dst}, v5, 3, v6")

def t_write_addr(a, dst, base_const):
    a("v_lshrrev_b32 v5, 1, v4")
    a("v_and_b32 v6, 7, v3")
    a("v_xor_b32 v5, v5, v6")
    a("v_lshlrev_b32 v5, 4, v5")
    a("v_and_b32 v6, 1, v4")
    a("v_lshl_add_u32 v5, v6, 3, v5")
    a(f"v_lshl_add_u32 v{dst}, v3, 7, v5")
    a(f"v_add_u32 v{dst}, {base_const}, v{dst}")

def pad_init(a, P, row0, nzero_rows, ones_row):
    a("v_mov_b32 v12, 0"); a("v_mov_b32 v13, 0"); a("v_mov_b32 v14, 0"); a("v_mov_b32 v15, 0")
    a(f"v_mov_b32 v10, {hex(ONES)}")
    a("v_lshlrev_b32 v11, 4, v2        ; lane*16")
    for rep in range((P.NS + 3)//4):
        sk = a.new("pad")
        a(f"s_add_u32 s{S_T0}, s{S_W}, {4*rep}")
        a(f"s_cmp_ge_u32 s{S_T0}, {P.NS}")
        a(f"s_cbranch_scc1 {sk}")
        a(f"s_mul_i32 s{S_T0}, s{S_T0}, {P.STAGE}")
        nb = nzero_rows*128; off = 0
        while off < nb:
            lanes = min(64, (nb - off)//16)
            a(f"v_add_u32 v16, s{S_T0}, v11")
            if lanes < 64: set_exec(a, (1 << lanes) - 1)
            a(f"ds_write_b128 v16, v[12:15] offset:{row0*128 + off}")
            if lanes < 64: a("s_mov_b64 exec, -1")
            off += lanes*16
        if ones_row is not None:
            a(f"v_lshlrev_b32 v16, 2, v2")
            a(f"v_add_u32 v16, s{S_T0}, v16")
            set_exec(a, 0xffffffff)
            a(f"ds_write_b32 v16, v10 offset:{ones_row*128}")
            a("s_mov_b64 exec, -1")
        a.label(sk)

def store_pass(a, P, ny=0):
    a("v_lshrrev_b32 v3, 3, v2")
    a("v_and_b32 v4, 7, v2")
    a("v_xor_b32 v5, v4, v3")
    a("v_lshlrev_b32 v5, 4, v5")
    a("v_lshl_add_u32 v5, v3, 7, v5")
    a(f"s_lshl_b32 s{S_T0}, s{S_WAVE}, 10")
    a(f"v_add_u32 v5, s{S_T0}, v5")
    a(f"v_add_u32 v5, {P.TBASE}, v5")
    a(f"s_lshl_b32 s{S_T0}, s{S_WAVE}, 3")
    a(f"s_add_u32 s{S_T0}, s{S_T0}, s{S_R0}")
    a(f"v_add_u32 v6, s{S_T0}, v3")
    a(f"s_mov_b32 s{S_T1}, {P.ldo}")
    a(f"v_mul_lo_u32 v7, v6, s{S_T1}")
    a(f"s_lshl_b32 s{S_T0}, s{S_C0}, 1")
    a(f"v_lshl_add_u32 v7, v4, 4, v7")
    a(f"v_add_u32 v7, s{S_T0}, v7")
    a("v_mov_b32 v8, 0x80000000")
    P.ny = ny
    P.store_body(a)
    P.set_fidx(a)

def store_addr(a, k, dst, P, coloff=0):
    a(f"v_add_u32 v9, {64*k}, v6")
    a(f"v_cmp_gt_u32 vcc, s{S_REND}, v9")
    a(f"v_add_u32 v{dst}, {64*k*P.ldo + coloff}, v7")
    a("s_nop 0")
    a(f"v_cndmask_b32 v{dst}, v8, v{dst}, vcc")

class P1(Phase):
    key = 'p1'; kind = "p1"; NT = 255
    MV = 121; NC = 128; lda = 1280; ldb = 3840; ldo = 3840
    ABYTES = 16384; STAGE = 32768; NS = 4; S = 10
    NXMAX = 4; RPM = 1
    has_stage_work = False; has_e1 = True
    mfma_stats = True
    order2 = True
    GRAM = 96; SUMA = 112; VONES = 24
    modeS = True; NACC = 64
    def fragW(self, buf, kk, wi): return ('a', 64*buf + 16*kk + 4*wi)
    def fragX(self, buf, kk, xi):
        if buf == 0: return ('a', 32 + 16*kk + 4*xi)
        return ('v', 128 + 16*kk + 4*xi)
    scA = ""
    panel_coloff = [0, 128]; panel_srd = [SRD_B0, SRD_B0]
    LDS_ST = 131072; LDS_CS = 131072 + 2048
    TBASE = 2*32768
    rot = (5, 10, 2)
    Ains = [None, None, None, 'mask']
    Bins = [(0, 0), (0, 4), (1, 0), (1, 4)]
    def __init__(self):
        self.vXc, self.vWc = 8, 9
        self.vXa, self.vXb = 10, 11
        self.vW = [12, 13, 14, 15]
        self.xlist = [(self.vXa, self.vXb, 2048*x) for x in range(4)]
        self.wlist = [(self.vW[f], self.ABYTES) for f in range(4)]
        self.ACC = 32
        self.mf = [(x, f, self.ACC + 4*(4*x + f)) for x in range(4) for f in range(4)]
    def rot_start(self, a):
        if P1ROT == "lock":
            a(f"s_mov_b32 s{S_K}, 0"); return
        if P1ROT == "two":
            a(f"s_add_u32 s{S_K}, s{S_RT}, s{S_CT}")
            a(f"s_and_b32 s{S_K}, s{S_K}, 1")
            a(f"s_mul_i32 s{S_K}, s{S_K}, 5"); return
        if P1ROT == "ten":
            a(f"s_mul_i32 s{S_K}, s{S_RT}, 3")
            a(f"s_add_u32 s{S_K}, s{S_K}, s{S_CT}")
            divc(a, S_T0, S_K, 10)
            a(f"s_mul_i32 s{S_T0}, s{S_T0}, 10")
            a(f"s_sub_u32 s{S_K}, s{S_K}, s{S_T0}"); return
        a(f"s_add_u32 s{S_K}, s{S_RT}, s{S_CT}")
        divc(a, S_T0, S_K, 5)
        a(f"s_mul_i32 s{S_T0}, s{S_T0}, 5")
        a(f"s_sub_u32 s{S_K}, s{S_K}, s{S_T0}")
        a(f"s_lshl_b32 s{S_K}, s{S_K}, 1")
    def l2_prep(self, a): l2_setup(a, "rm", 250, 64, KA_WO, D*D*2, 1280, D)
    def mid_prefetch(self, a, s):
        if s == 8: return l2_issue(a, KA_WO, 1280, D)
    def mask_setup(self, a):
        a(f"s_cmp_eq_u32 s{S_W}, 3")
        a(f"s_cselect_b32 s{S_MASK}, 0xff, -1")
        a(f"s_cselect_b32 s{S_MASK+1}, 0, -1")
    def build_srds(self, a, role):
        if role == 'l':
            srd(a, SRD_A, ptr(KA_X), 0, S_TOK*D*2)
            srd(a, SRD_B0, ptr(KA_WQKV), 0, D*NQKV*2)
        srd(a, SRD_OUT, ptr(KA_WS), WS_QKV, S_TOK*NQKV*2)
    def set_fidx(self, a):
        a(f"s_mul_i32 s{S_FIDX}, s{S_RT}, 15")
        a(f"s_add_u32 s{S_FIDX}, s{S_FIDX}, s{S_CT}")
        a(f"s_lshl_b32 s{S_FIDX}, s{S_FIDX}, 7")
    def loader_post_first(self, a):
        pad_init(a, self, 121, 6, 127)
        return 0
    def stats_mfmas(self, xregs):
        m = []
        for x in range(4):
            xa = xregs[x]
            g = self.GRAM + 4*x; sm = self.SUMA + 4*x
            m.append(f"v_mfma_f32_16x16x32_bf16 v[{g}:{g+3}], {xa}, {xa}, v[{g}:{g+3}]")
            m.append(f"v_mfma_f32_16x16x32_bf16 v[{sm}:{sm+3}], v[{self.VONES}:{self.VONES+3}], {xa}, v[{sm}:{sm+3}]")
        return m
    def consumer_setup(self, a):
        cons_lane(a)
        a(f"s_lshr_b32 s{S_I}, s{S_WAVE}, 1")
        a(f"s_and_b32 s{S_J}, s{S_WAVE}, 1")
        a(f"s_lshl_b32 s{S_T1}, s{S_I}, 6")
        x_addr_const(a, self.vXc, S_T1)
        w_addr_const(a, self.vWc)
        a(f"s_lshl_b32 s{S_T0}, s{S_J}, 13")
        a(f"v_add_u32 v{self.vWc}, s{S_T0}, v{self.vWc}")
        for r in range(4): a(f"v_mov_b32 v{self.VONES+r}, {hex(ONES)}")
        for r in range(32): a(f"v_mov_b32 v{self.GRAM+r}, 0")
        a(f"s_lshl_b32 s{S_T0}, s{S_J}, 8       ; j*64*4")
        a(f"v_lshlrev_b32 v16, 4, v4            ; g*16 bytes")
        a(f"v_add_u32 v16, s{S_T0}, v16")
        a(f"v_add_u32 v16, {self.LDS_CS}, v16")
        t_write_addr(a, 17, self.TBASE)
        a(f"s_lshl_b32 s{S_T0}, s{S_WAVE}, 13")
        a(f"v_add_u32 v17, s{S_T0}, v17")
        for f in range(1, 4): a(f"v_xor_b32 v{17+f}, {32*f}, v17")
        a(f"s_lshl_b32 s{S_T0}, s{S_I}, 9       ; i*64*8")
        a(f"s_lshl_b32 s{S_T1}, s{S_J}, 10      ; j*128*8")
        a(f"s_add_u32 s{S_T1}, s{S_T1}, s{S_T0}")
        a(f"v_lshlrev_b32 v7, 3, v3")
        a(f"v_add_u32 v21, s{S_T1}, v7")
        a(f"v_add_u32 v21, {self.LDS_ST}, v21")
        a(f"v_add_u32 v22, s{S_T0}, v7")
        a(f"v_add_u32 v22, {self.LDS_ST}, v22")
        a("v_lshrrev_b32 v5, 3, v2             ; r8")
        a("v_and_b32 v6, 7, v2                 ; c")
        a("v_xor_b32 v7, v6, v5")
        a("v_lshlrev_b32 v7, 4, v7")
        a("v_lshl_add_u32 v23, v5, 7, v7")
        a(f"s_lshl_b32 s{S_T0}, s{S_WAVE}, 13")
        a(f"s_add_u32 s{S_T0}, s{S_T0}, {self.TBASE}")
        a(f"v_add_u32 v23, s{S_T0}, v23")
        a(f"s_lshl_b32 s{S_T0}, s{S_I}, 6")
        a(f"s_add_u32 s{S_T0}, s{S_T0}, s{S_R0}")
        a(f"v_add_u32 v28, s{S_T0}, v5")
        a(f"s_mov_b32 s{S_T1}, 3840")
        a(f"v_mul_lo_u32 v28, v28, s{S_T1}")
        a("v_lshl_add_u32 v28, v6, 4, v28")
        a(f"s_lshl_b32 s{S_T0}, s{S_J}, 6")
        a(f"s_add_u32 s{S_T0}, s{S_T0}, s{S_C0}")
        a(f"s_lshl_b32 s{S_T0}, s{S_T0}, 1")
        a(f"v_add_u32 v28, s{S_T0}, v28")
    def addr_update(self):
        r = [f"v_add_u32 v{self.vXa}, s{S_SLOT}, v{self.vXc}",
             f"v_add_u32 v{self.vW[0]}, s{S_SLOT}, v{self.vWc}",
             f"v_xor_b32 v{self.vXb}, 64, v{self.vXa}"]
        for f in range(1, len(self.vW)):
            r.append(f"v_xor_b32 v{self.vW[f]}, {32*f}, v{self.vW[0]}")
        return r
    stream_epi = True
    def epilogue(self, a):
        nocs = a.new("nocs")
        a(f"s_cmp_eq_u32 s{S_I}, 1")
        a(f"s_cbranch_scc0 {nocs}")
        set_exec(a, 0x8000800080008000)
        for f in range(4):
            acc = self.ACC + 4*(4*3 + f)
            a(f"ds_write_b128 v16, v[{acc}:{acc+3}] offset:{64*f}")
        a("s_mov_b64 exec, -1")
        a.label(nocs)
        for i_, m_ in enumerate((0x22222222, 0x44444444, 0x88888888)):
            a(f"s_mov_b32 s{80+2*i_}, {hex(m_)}"); a(f"s_mov_b32 s{81+2*i_}, {hex(m_)}")
        for x in range(4):
            g = self.GRAM + 4*x
            a(f"v_cndmask_b32 v{g+1}, v{g}, v{g+1}, s[80:81]")
            a(f"v_cndmask_b32 v{g+1}, v{g+1}, v{g+2}, s[82:83]")
            a(f"v_cndmask_b32 v{g+1}, v{g+1}, v{g+3}, s[84:85]")
            a(f"v_mov_b32 v{g}, v{self.SUMA+4*x}           ; sum")
        set_exec(a, 0xF | (0xF << 20) | (0xF << 40) | (0xF << 60))
        for x in range(4):
            g = self.GRAM + 4*x
            a(f"ds_write_b64 v21, v[{g}:{g+1}] offset:{128*x}")
        a("s_mov_b64 exec, -1")
        a("s_waitcnt lgkmcnt(0)")
        a("s_barrier      ; E1")
        CS = 128; ST = 144
        for x in range(4):
            a(f"ds_read_b64 v[{ST+2*x}:{ST+2*x+1}], v22 offset:{128*x}")
            a(f"ds_read_b64 v[{96+2*x}:{97+2*x}], v22 offset:{1024 + 128*x}")
        for f in range(4):
            a(f"ds_read_b128 v[{CS+4*f}:{CS+4*f+3}], v16 offset:{64*f}")
        a("s_waitcnt lgkmcnt(4)")
        for x in range(4):
            st = ST + 2*x
            a(f"v_pk_add_f32 v[{st}:{st+1}], v[{st}:{st+1}], v[{96+2*x}:{97+2*x}]")
            a(f"v_mul_f32 v{st}, {hex(f2u(1.0/D))}, v{st}          ; mean")
            a(f"v_mul_f32 v{st+1}, {hex(f2u(1.0/D))}, v{st+1}")
            a(f"v_fma_f32 v{st+1}, -v{st}, v{st}, v{st+1}      ; var")
            a(f"v_add_f32 v{st+1}, {hex(f2u(1e-5))}, v{st+1}")
            a(f"v_rsq_f32 v{st+1}, v{st+1}")
        a("s_waitcnt lgkmcnt(0)")
        RB = [96, 104]
        def stores(x):
            rb = RB[x & 1]
            for u in range(2):
                a(f"v_add_u32 v{29+u}, {(16*x + 8*u)*3840}, v28")
            for u in range(2):
                if x == 3 and u == 1:
                    a(f"s_cmp_eq_u32 s{S_I}, 1")
                    a("s_cselect_b32 exec_lo, 0xff, -1")
                    a("s_cselect_b32 exec_hi, 0, -1")
                a(f"buffer_store_dwordx4 v[{rb+4*u}:{rb+4*u+3}], v{29+u}, s[{SRD_OUT}:{SRD_OUT+3}], 0 offen{SC1}")
            if x == 3: a("s_mov_b64 exec, -1")
        for x in range(4):
            st = ST + 2*x
            for f in range(4):
                acc = self.ACC + 4*(4*x + f)
                for hh in (0, 2):
                    a(f"v_pk_fma_f32 v[{acc+hh}:{acc+hh+1}], v[{CS+4*f+hh}:{CS+4*f+hh+1}], v[{st}:{st+1}], v[{acc+hh}:{acc+hh+1}] op_sel_hi:[1,0,1] neg_lo:[0,1,0] neg_hi:[0,1,0]")
                for hh in (0, 2):
                    a(f"v_pk_mul_f32 v[{acc+hh}:{acc+hh+1}], v[{acc+hh}:{acc+hh+1}], v[{st}:{st+1}] op_sel:[0,1] op_sel_hi:[1,1]")
                a(f"v_cvt_pk_bf16_f32 v{acc}, v{acc}, v{acc+1}")
                a(f"v_cvt_pk_bf16_f32 v{acc+1}, v{acc+2}, v{acc+3}")
                a(f"ds_write_b64 v{17+f}, v[{acc}:{acc+1}] offset:{2048*x}")
            rb = RB[x & 1]
            if x >= 1:
                a("s_waitcnt lgkmcnt(4)")
                stores(x - 1)
            for u in range(2):
                a(f"ds_read_b128 v[{rb+4*u}:{rb+4*u+3}], v23 offset:{2048*x + 1024*u}")
        a("s_waitcnt lgkmcnt(0)")
        stores(3)


class P1F(Phase):
    key = 'p1'; kind = "p1f"; NT = 256
    MV = 64; NC = 80; lda = 1280; ldb = 3840
    ABYTES = 10240; STAGE = 40960; NS = 3; S = 10
    NXMAX = 5; RPM = 1
    has_e1 = True; fused = True; custom_B = True
    scA = ""
    Ains = [None, None, 'skip']
    Bins = [dict(lds=10240 + 4096*t) for t in range(7)] + [dict(lds=10240 + 4096*7, skip=2)]
    panel_srd = [SRD_B0]
    LDS_STP = 122880
    QT = 40960; QROW = 488
    OT = 81920; OROW = 176
    ACC = 32; GRAM = 112; SUMA = 132; VONES = 152
    mfma_stats4 = True
    def __init__(self):
        self.vXc = 8; self.vXa, self.vXb = 9, 10
        self.vWc = [11, 12, 13, 14]; self.vW = [15, 16, 17, 18]
        self.xlist = [(self.vXa, self.vXb, 2048*x) for x in range(5)]
        self.wlist = None
        self.mf = [(x, j, self.ACC + 4*(4*x + j)) for x in range(5) for j in range(4)]
    def rot_start(self, a):
        if P1FROT == 'lock':
            a(f"s_mov_b32 s{S_K}, 0"); return
        if P1FROT == 'rot4':
            a(f"s_and_b32 s{S_K}, s{S_RT}, 3")
            a(f"s_and_b32 s{S_T0}, s{S_CT}, 1")
            a(f"s_lshl_b32 s{S_T0}, s{S_T0}, 2")
            a(f"s_add_u32 s{S_K}, s{S_K}, s{S_T0}"); return
        if P1FROT == 'rot8':
            a(f"s_and_b32 s{S_K}, s{S_RT}, 7")
            a(f"s_mul_i32 s{S_K}, s{S_K}, 5")
            a(f"s_lshr_b32 s{S_K}, s{S_K}, 2")
            return
        a(f"s_add_u32 s{S_K}, s{S_RT}, s{S_CT}")
        divc(a, S_T0, S_K, 5)
        a(f"s_mul_i32 s{S_T0}, s{S_T0}, 5")
        a(f"s_sub_u32 s{S_K}, s{S_K}, s{S_T0}")
        a(f"s_lshl_b32 s{S_K}, s{S_K}, 1")
    @property
    def order2(self): return P1FROT == 'latin2'
    def pre_issue(self, a):
        if not APF: return 0
        a(f"s_and_b32 s{S_T0}, s{S_CT}, 3")
        a(f"s_mul_i32 s{S_T0}, s{S_T0}, 20")
        a(f"s_add_u32 s{S_T0}, s{S_T0}, s{S_R0}")
        a(f"s_mul_i32 s{S_T0}, s{S_T0}, 1280")
        a(f"s_lshl_b32 s{S_T1}, s{S_W}, 10")
        a(f"s_add_u32 s{S_T0}, s{S_T0}, s{S_T1}")
        a("v_lshlrev_b32 v60, 4, v2")
        a(f"v_add_u32 v60, s{S_T0}, v60")
        n = 7
        for i in range(n):
            a(f"buffer_load_dwordx4 v[152:155], v60, s[{SRD_A}:{SRD_A+3}], 0 offen")
            if i + 1 < n: a("v_add_u32 v60, 4096, v60")
        return n
    def tile_consts(self, a):
        a(f"s_lshl_b32 s{S_R0}, s{S_RT}, 6")
        a(f"s_sub_u32 s{S_R0}, s{S_R0}, 14")
        a(f"s_mul_i32 s{S_C0}, s{S_CT}, 160")
    def mask_setup(self, a):
        a(f"s_cmp_eq_u32 s{S_W}, 0")
        a(f"s_cselect_b32 s{S_MASK+1}, -1, 0xffff")
        a(f"s_cmp_lt_u32 s{S_W}, 2")
        a(f"s_cselect_b32 s{S_MASK}, -1, 0")
        a(f"s_cselect_b32 s{S_MASK+1}, s{S_MASK+1}, 0")
    def custom_B_setup(self, a, vb):
        a(f"s_lshl_b32 s{S_T0}, s{S_W}, 6")
        a(f"v_add_u32 v8, s{S_T0}, v2            ; c0")
        vdiv(a, 9, 8, 10, 256)
        a("v_mul_u32_u24 v10, 10, v9")
        a("v_sub_u32 v10, v8, v10                ; ch")
        a("v_mul_u32_u24 v11, 3840, v9")
        a("v_lshl_add_u32 v11, v10, 4, v11")
        a(f"v_add_u32 v{vb}, s{S_C0}, v11         ; voff t=0")
        for t in range(1, 8):
            a("v_add_u32 v10, 6, v10")
            a("v_add_u32 v9, 25, v9")
            a("v_cmp_le_u32 vcc, 10, v10")
            a(f"v_add_u32 v{vb+t}, {25*3840 + 96}, v{vb+t-1}")
            a("v_subrev_u32 v12, 10, v10")
            a("v_cndmask_b32 v10, v10, v12, vcc")
            a("v_addc_co_u32 v9, vcc, 0, v9, vcc") if False else None
            a(f"v_add_u32 v12, {3840 - 160}, v{vb+t}")
            a(f"v_cndmask_b32 v{vb+t}, v{vb+t}, v12, vcc")
            a("v_add_u32 v12, 1, v9")
            a("v_cndmask_b32 v9, v9, v12, vcc")
            a("v_cmp_le_u32 vcc, 64, v9")
            a(f"v_add_u32 v12, {(1280 - 64*3840) & 0xffffffff}, v{vb+t}")
            a("v_subrev_u32 v13, 64, v9")
            a(f"v_cndmask_b32 v{vb+t}, v{vb+t}, v12, vcc")
            a("v_cndmask_b32 v9, v9, v13, vcc")
    def build_srds(self, a, role):
        if role == 'l':
            srd(a, SRD_A, ptr(KA_X), 0, S_TOK*D*2)
            srd(a, SRD_B0, ptr(KA_WQKV), 0, D*NQKV*2)
        srd(a, SRD_OUT, ptr(KA_WS), WS_O, 0x280000)
    def set_fidx(self, a):
        a(f"s_lshl_b32 s{S_FIDX}, s{S_RT}, 3")
        a(f"s_add_u32 s{S_FIDX}, s{S_FIDX}, s{S_CT}")
        a(f"s_lshl_b32 s{S_FIDX}, s{S_FIDX}, 7")
        a(f"s_add_u32 s{S_FIDX}, s{S_FIDX}, 0x8000")
    def l2_prep(self, a): l2_setup(a, "rm", 250, 64, KA_WO, D*D*2, 1280, D)
    @property
    def unroll(self): return SPF != 0
    def spf_setup(self, a):
        a(f"s_lshl_b32 s{S_T0}, s2, 2")
        a(f"s_add_u32 s{S_T0}, s{S_T0}, s{S_W}        ; q")
        a(f"s_mul_i32 s{S_T1}, s{S_T0}, 2560")
        a(f"s_add_u32 s98, s{ptr(KA_X)}, s{S_T1}")
        a(f"s_addc_u32 s99, s{ptr(KA_X)+1}, 0")
        sdiv(a, S_T1, S_T0, 205, 1100)
        a(f"s_mul_i32 s{S_T2}, s{S_T1}, 205")
        a(f"s_sub_u32 s{S_T2}, s{S_T0}, s{S_T2}")
        a(f"s_min_u32 s{S_T2}, s{S_T2}, 201")
        a(f"s_mul_i32 s{S_T2}, s{S_T2}, 1216")
        a(f"s_lshl_b32 s{S_T1}, s{S_T1}, 1")
        a(f"s_add_u32 s{S_T1}, s{S_T1}, 1")
        a(f"s_mul_i32 s{S_T1}, s{S_T1}, 245760")
        a(f"s_add_u32 s{S_T1}, s{S_T1}, s{S_T2}")
        a(f"s_add_u32 s100, s{ptr(KA_WQKV)}, s{S_T1}")
        a(f"s_addc_u32 s101, s{ptr(KA_WQKV)+1}, 0")
    def spf_list(self):
        L_ = []
        for i in range(19): L_.append(("s[100:101]", 64*i))
        for k in (1, 3, 5, 7, 9):
            for r in range(2):
                for h in range(2): L_.append(("s[98:99]", r*1280 + k*128 + h*64))
        return L_
    def mid_prefetch(self, a, s):
        if SPF:
            if s == 0: self.spf_setup(a)
            L_ = self.spf_list()
            per = SPF
            if s >= 1 and s <= 4:
                for base, off in L_[per*(s-1): per*s]:
                    a(f"s_load_dword s3, {base}, {off}")
            if SPF2 and s >= 5:
                if s == 5:
                    a(f"s_lshl_b32 s{S_T0}, s2, 2")
                    a(f"s_add_u32 s{S_T0}, s{S_T0}, s{S_W}")
                    a(f"s_mul_i32 s{S_T1}, s{S_T0}, 800")
                    a(f"s_add_u32 s98, s{ptr(KA_WO)}, s{S_T1}")
                    a(f"s_addc_u32 s99, s{ptr(KA_WO)+1}, 0")
                    a(f"s_mul_i32 s{S_T1}, s{S_T0}, 2160")
                    a(f"s_add_u32 s100, s{ptr(SPF2)}, s{S_T1}")
                    a(f"s_addc_u32 s101, s{ptr(SPF2)+1}, 0")
                L2 = [("s[98:99]", 64*i) for i in range(13)] + [("s[100:101]", 64*i) for i in range(34)]
                for base, off in L2[10*(s-5): 10*(s-4)]:
                    a(f"s_load_dword s3, {base}, {off}")
        if s == 9: return l2_issue(a, KA_WO, 1280, D)
    def loader_post_first(self, a):
        pad_init(a, self, 78, 1, 79)
        self.att_setup(a)
        return 0
    def att_setup(self, a):
        QT, QROW = self.QT, self.QROW
        a("v_and_b32 v3, 3, v2             ; i")
        a("v_bfe_u32 v4, v2, 2, 2          ; head")
        a("v_lshrrev_b32 v5, 4, v2         ; grp")
        a("v_lshrrev_b32 v6, 1, v5")
        a("v_lshlrev_b32 v6, 3, v6")
        a("v_and_b32 v7, 1, v5")
        a("v_add_u32 v6, v6, v7")
        a(f"s_lshl_b32 s{S_T0}, s{S_W}, 4")
        a(f"v_add_u32 v6, s{S_T0}, v6")
        a("v_lshlrev_b32 v7, 1, v3")
        a("v_add_u32 v7, v6, v7            ; rb + 2i")
        a(f"v_mul_u32_u24 v8, {QROW}, v7")
        a("v_mul_u32_u24 v9, 40, v4")
        a("v_add_u32 v8, v8, v9")
        a(f"v_add_u32 v144, {QT + 14*QROW}, v8")
        a(f"v_add_u32 v145, {QT + 160}, v8")
        a("v_cmp_eq_u32 vcc, 3, v3")
        a(f"v_mov_b32 v10, {16*QROW}")
        a(f"v_mov_b32 v11, {14*QROW}")
        a("v_cndmask_b32 v10, v10, v11, vcc")
        a("v_add_u32 v146, v145, v10")
        a(f"v_mul_u32_u24 v12, {self.OROW}, v7")
        a("v_add_u32 v12, v12, v9")
        a(f"v_add_u32 v118, {self.OT}, v12")
        a("v_lshlrev_b32 v12, 1, v4               ; 2r")
        a("v_add_u32 v12, v6, v12")
        a(f"v_mul_u32_u24 v12, {QROW}, v12")
        a("v_mul_u32_u24 v13, 40, v3")
        a("v_add_u32 v12, v12, v13")
        a(f"v_add_u32 v147, {QT + 320}, v12")
        a("v_cmp_eq_u32 vcc, 3, v4")
        a(f"v_mov_b32 v10, {16*QROW}")
        a("s_nop 0")
        a("v_cndmask_b32 v10, v10, v11, vcc")
        a("v_add_u32 v119, v147, v10")
        a(f"v_mov_b32 v12, {hex(f2u(-1e30))}")
        a("v_mov_b32 v13, 0")
        a(f"v_add_u32 v14, s{S_R0}, v6")
        for m in range(12):
            a(f"v_sub_u32 v15, {m}, v3")
            a("v_cmp_gt_u32 vcc, 8, v15")
            a(f"v_add_u32 v16, {2*m}, v14")
            a("v_cmp_le_i32 s[4:5], 0, v16")
            a("s_nop 1")
            a("s_and_b64 vcc, vcc, s[4:5]")
            a(f"v_cndmask_b32 v{120+m}, v12, v13, vcc")
        self.store_addr_setup(a)
    def store_addr_setup(self, a, regs=(148, 149, 156, 157), tmp=3):
        lm, lt, gm, gt = regs
        t0, t1, t2 = tmp, tmp + 1, tmp + 2
        a(f"v_lshrrev_b32 v{t0}, 3, v2             ; r8")
        a(f"v_and_b32 v{t1}, 7, v2                 ; p")
        a(f"s_lshl_b32 s{S_T0}, s{S_WAVE}, 3")
        a(f"v_add_u32 v{t2}, s{S_T0}, v{t0}")
        a(f"v_mul_u32_u24 v{lm}, {self.OROW}, v{t2}")
        a(f"v_lshl_add_u32 v{lm}, v{t1}, 4, v{lm}")
        a(f"v_add_u32 v{lm}, {self.OT}, v{lm}")
        a(f"s_add_u32 s{S_T0}, s{S_R0}, 14          ; T0")
        a(f"v_add_u32 v{gm}, s{S_T0}, v{t2}")
        a(f"v_lshlrev_b32 v{gm}, 10, v{gm}")
        a(f"v_lshl_add_u32 v{gm}, v{t1}, 4, v{gm}")
        a(f"s_lshl_b32 s{S_T1}, s{S_CT}, 7          ; hg*128")
        a(f"v_add_u32 v{gm}, s{S_T1}, v{gm}")
        a(f"v_lshrrev_b32 v{t0}, 1, v{t1}")
        a(f"v_lshl_add_u32 v{t0}, v{t2}, 2, v{t0}   ; token")
        a(f"v_mul_u32_u24 v{lt}, {self.OROW}, v{t0}")
        a(f"v_and_b32 v{t0}, 1, v{t1}")
        a(f"v_lshl_add_u32 v{lt}, v{t0}, 4, v{lt}")
        a(f"v_add_u32 v{lt}, {self.OT + 128}, v{lt}")
        a(f"s_lshr_b32 s{S_T0}, s{S_T0}, 2          ; T0/4")
        a(f"v_add_u32 v{gt}, s{S_T0}, v{t2}")
        a(f"v_lshlrev_b32 v{gt}, 10, v{gt}")
        a(f"v_lshl_add_u32 v{gt}, v{t1}, 4, v{gt}")
        a(f"s_add_u32 s{S_T1}, s{S_T1}, 0x200000")
        a(f"v_add_u32 v{gt}, s{S_T1}, v{gt}")
    def o_stores(self, a):
        a(f"ds_read_b128 v[20:23], v148")
        sk = a.new("ost")
        a(f"s_cmp_ge_u32 s{S_WAVE}, 2")
        a(f"s_cbranch_scc1 {sk}")
        a(f"ds_read_b128 v[24:27], v149")
        a("s_waitcnt lgkmcnt(0)")
        a(f"buffer_store_dwordx4 v[24:27], v157, s[{SRD_OUT}:{SRD_OUT+3}], 0 offen{OSC}")
        a.label(sk)
        a("s_waitcnt lgkmcnt(0)")
        a(f"buffer_store_dwordx4 v[20:23], v156, s[{SRD_OUT}:{SRD_OUT+3}], 0 offen{OSC}")
    def loader_fused_tail(self, a):
        l2_setup(a, "p3", 243, 64, KA_WG, D*F*2, 3456, D)
        a("s_barrier      ; E1")
        l2_issue(a, KA_WG, 3456, D)
        a("s_barrier")
        a.label("L_att_start")
        Q = 16; KR = 32; VR = 62; SC = 92; BIAS = 120; PB = 104
        QROW = self.QROW
        for dg in range(5):
            a(f"ds_read_b64 v[{Q+2*dg}:{Q+2*dg+1}], v144 offset:{8*dg}")
        for kb in range(3):
            for dg in range(5):
                r = KR + 2*(5*kb + dg)
                if kb < 2: a(f"ds_read_b64 v[{r}:{r+1}], v145 offset:{8*QROW*kb + 8*dg}")
                else: a(f"ds_read_b64 v[{r}:{r+1}], v146 offset:{8*dg}")
        scale = (D // 32) ** -0.5
        c1 = scale * 1.4426950408889634
        a(f"s_mov_b32 s{S_T2}, {hex(f2u(c1))}")
        a("s_waitcnt lgkmcnt(0)")
        for kb in range(3):
            for dg in range(5):
                r = VR + 2*(5*kb + dg)
                if kb < 2: a(f"ds_read_b64_tr_b16 v[{r}:{r+1}], v147 offset:{8*QROW*kb + 8*dg}")
                else: a(f"ds_read_b64_tr_b16 v[{r}:{r+1}], v119 offset:{8*dg}")
        for dg in range(5):
            for kb in range(3):
                r = KR + 2*(5*kb + dg); sc = SC + 4*kb
                c = "0" if dg == 0 else f"v[{sc}:{sc+3}]"
                a(f"v_mfma_f32_4x4x4_16b_bf16 v[{sc}:{sc+3}], v[{r}:{r+1}], v[{Q+2*dg}:{Q+2*dg+1}], {c}")
        a("s_nop 4")
        for m in range(12):
            a(f"v_fma_f32 v{SC+m}, v{SC+m}, s{S_T2}, v{BIAS+m}")
        a(f"v_max3_f32 v14, v{SC}, v{SC+1}, v{SC+2}")
        a(f"v_max3_f32 v15, v{SC+3}, v{SC+4}, v{SC+5}")
        a(f"v_max3_f32 v14, v14, v{SC+6}, v{SC+7}")
        a(f"v_max3_f32 v15, v15, v{SC+8}, v{SC+9}")
        a(f"v_max3_f32 v14, v14, v{SC+10}, v{SC+11}")
        a("v_max_f32 v14, v14, v15")
        for m in range(12):
            a(f"v_sub_f32 v{SC+m}, v{SC+m}, v14")
        for m in range(12):
            a(f"v_exp_f32 v{SC+m}, v{SC+m}")
        a(f"v_add_f32 v14, v{SC}, v{SC+1}")
        a(f"v_add_f32 v15, v{SC+2}, v{SC+3}")
        for m in range(4, 12, 2):
            a(f"v_add_f32 v14, v14, v{SC+m}")
            a(f"v_add_f32 v15, v15, v{SC+m+1}")
        a("v_add_f32 v14, v14, v15")
        a("v_rcp_f32 v14, v14")
        a("s_nop 0")
        for m in range(12):
            a(f"v_mul_f32 v{SC+m}, v{SC+m}, v14")
        for m in range(0, 12, 2):
            a(f"v_cvt_pk_bf16_f32 v{PB+m//2}, v{SC+m}, v{SC+m+1}")
        a("s_waitcnt lgkmcnt(0)")
        a("s_nop 0")
        OA = 32
        for kb in range(3):
            for dg in range(5):
                r = VR + 2*(5*kb + dg); o = OA + 4*dg
                c = "0" if kb == 0 else f"v[{o}:{o+3}]"
                a(f"v_mfma_f32_4x4x4_16b_bf16 v[{o}:{o+3}], v[{r}:{r+1}], v[{PB+2*kb}:{PB+2*kb+1}], {c}")
        a("s_nop 5")
        for dg in range(5):
            o = OA + 4*dg
            a(f"v_cvt_pk_bf16_f32 v{Q+2*dg}, v{o}, v{o+1}")
            a(f"v_cvt_pk_bf16_f32 v{Q+2*dg+1}, v{o+2}, v{o+3}")
            a(f"ds_write_b64 v118, v[{Q+2*dg}:{Q+2*dg+1}] offset:{8*dg}")
        a("s_waitcnt lgkmcnt(0)")
        dry_exit(a, "L_att_ret")
        a("s_barrier")
        self.o_stores(a)
        self.set_fidx(a)
    def consumer_setup(self, a):
        cons_lane(a)
        x_addr_const(a, self.vXc, None)
        a("v_lshrrev_b32 v5, 2, v3        ; r")
        a("v_lshl_add_u32 v5, v4, 3, v5   ; 8g + r")
        a("v_mul_u32_u24 v5, 160, v5")
        a("v_and_b32 v6, 3, v3")
        a("v_lshl_add_u32 v5, v6, 3, v5")
        for j in range(4):
            a(f"s_lshl_b32 s{S_T0}, s{S_WAVE}, 2")
            a(f"s_add_u32 s{S_T0}, s{S_T0}, {j}")
            a(f"s_min_u32 s{S_T0}, s{S_T0}, 14")
            divc(a, S_T1, S_T0, 5)
            a(f"s_mul_i32 s{S_T2}, s{S_T1}, 5")
            a(f"s_sub_u32 s{S_T2}, s{S_T0}, s{S_T2}       ; f%5")
            a(f"s_lshl_b32 s{S_T2}, s{S_T2}, 5")
            a(f"s_mul_i32 s{S_T3}, s{S_T1}, 10240")
            a(f"s_add_u32 s{S_T3}, s{S_T3}, s{S_T2}")
            a(f"s_add_u32 s{S_T3}, s{S_T3}, {self.ABYTES}")
            a(f"v_add_u32 v{self.vWc[j]}, s{S_T3}, v5")
            a(f"s_mul_i32 s{S_T3}, s{S_T1}, 160")
            a(f"s_add_u32 s{S_T3}, s{S_T3}, s{S_T2}")
            a(f"s_add_u32 s{S_T3}, s{S_T3}, {self.QT}")
            a(f"v_mul_u32_u24 v6, {self.QROW}, v3")
            a("v_lshl_add_u32 v6, v4, 3, v6")
            a(f"v_add_u32 v{20+j}, s{S_T3}, v6")
        for r in range(4): a(f"v_mov_b32 v{self.VONES+r}, {hex(ONES)}")
        for r in range(40): a(f"v_mov_b32 v{self.GRAM+r}, 0")
        a("v_lshlrev_b32 v25, 3, v3")
        a(f"v_add_u32 v25, {self.LDS_STP}, v25")
        a(f"s_mul_i32 s{S_T0}, s{S_WAVE}, 640")
        a(f"v_add_u32 v24, s{S_T0}, v25")
        a(f"s_mov_b32 s{S_N1}, 0")
        self.store_addr_setup_c(a)
        NW = 4
        self.wlist = [(self.vW[j], 0) for j in range(4)]
        self.wstep = (5120, 640)
    def store_addr_setup_c(self, a):
        self.store_addr_setup(a, regs=(26, 27, 28, 29), tmp=5)
    def addr_update(self):
        r = [f"v_add_u32 v{self.vXa}, s{S_SLOT}, v{self.vXc}"]
        r += [f"v_add_u32 v{self.vW[j]}, s{S_SLOT}, v{self.vWc[j]}" for j in range(4)]
        r += [f"v_xor_b32 v{self.vXb}, 64, v{self.vXa}"]
        return r
    def stats_mfmas(self, xregs):
        m = []
        for x in range(5):
            xa = xregs[x]
            g = self.GRAM + 4*x; sm = self.SUMA + 4*x
            m.append(f"v_mfma_f32_16x16x32_bf16 v[{g}:{g+3}], {xa}, {xa}, v[{g}:{g+3}]")
            m.append(f"v_mfma_f32_16x16x32_bf16 v[{sm}:{sm+3}], v[{self.VONES}:{self.VONES+3}], {xa}, v[{sm}:{sm+3}]")
        return m
    def epilogue(self, a):
        a.label("L_epi1_start")
        for i_, m_ in enumerate((0x22222222, 0x44444444, 0x88888888)):
            a(f"s_mov_b32 s{80+2*i_}, {hex(m_)}"); a(f"s_mov_b32 s{81+2*i_}, {hex(m_)}")
        for x in range(5):
            g = self.GRAM + 4*x
            a(f"v_cndmask_b32 v{g+1}, v{g}, v{g+1}, s[80:81]")
            a(f"v_cndmask_b32 v{g+1}, v{g+1}, v{g+2}, s[82:83]")
            a(f"v_cndmask_b32 v{g+1}, v{g+1}, v{g+3}, s[84:85]")
            a(f"v_mov_b32 v{g}, v{self.SUMA+4*x}")
        mask_exec(a, 0xF | (0xF << 20) | (0xF << 40) | (0xF << 60))
        for x in range(5):
            g = self.GRAM + 4*x
            a(f"ds_write_b64 v24, v[{g}:{g+1}] offset:{128*x}")
        unmask_exec(a)
        CS = 132
        for j in range(4):
            acc = self.ACC + 4*(4*4 + j)
            for r in range(4):
                a(f"v_mov_b32_dpp v{CS+4*j+r}, v{acc+r} row_newbcast:15 row_mask:0xf bank_mask:0xf")
        a("s_waitcnt lgkmcnt(0)")
        dbar(a, "E1")
        ST = 8
        TM = 112
        for x in range(5):
            for wv in range(4):
                if x < 5:
                    pass
        for x in range(5):
            base = TM + 4*x if False else None
        regs = {0: 112, 1: 120, 2: 112, 3: 120, 4: 112}
        def rd(x):
            for wv in range(4):
                r = regs[x] + 2*wv
                a(f"ds_read_b64 v[{r}:{r+1}], v25 offset:{640*wv + 128*x}")
        def fin(x):
            r = regs[x]; st = ST + 2*x
            a(f"v_pk_add_f32 v[{r}:{r+1}], v[{r}:{r+1}], v[{r+2}:{r+3}]")
            a(f"v_pk_add_f32 v[{r+4}:{r+5}], v[{r+4}:{r+5}], v[{r+6}:{r+7}]")
            a(f"v_pk_add_f32 v[{st}:{st+1}], v[{r}:{r+1}], v[{r+4}:{r+5}]")
            a(f"v_mul_f32 v{st}, {hex(f2u(1.0/D))}, v{st}")
            a(f"v_mul_f32 v{st+1}, {hex(f2u(1.0/D))}, v{st+1}")
            a(f"v_fma_f32 v{st+1}, -v{st}, v{st}, v{st+1}")
            a(f"v_add_f32 v{st+1}, {hex(f2u(1e-5))}, v{st+1}")
            a(f"v_rsq_f32 v{st+1}, v{st+1}")
        rd(0); rd(1)
        a("s_waitcnt lgkmcnt(4)"); fin(0); rd(2)
        a("s_waitcnt lgkmcnt(4)"); fin(1); rd(3)
        a("s_waitcnt lgkmcnt(4)"); fin(2); rd(4)
        a("s_waitcnt lgkmcnt(4)"); fin(3)
        a("s_waitcnt lgkmcnt(0)"); fin(4)
        a("s_nop 0")
        for x in range(5):
            st = ST + 2*x
            for j in range(4):
                acc = self.ACC + 4*(4*x + j)
                for hh in (0, 2):
                    a(f"v_pk_fma_f32 v[{acc+hh}:{acc+hh+1}], v[{CS+4*j+hh}:{CS+4*j+hh+1}], v[{st}:{st+1}], v[{acc+hh}:{acc+hh+1}] op_sel_hi:[1,0,1] neg_lo:[0,1,0] neg_hi:[0,1,0]")
                for hh in (0, 2):
                    a(f"v_pk_mul_f32 v[{acc+hh}:{acc+hh+1}], v[{acc+hh}:{acc+hh+1}], v[{st}:{st+1}] op_sel:[0,1] op_sel_hi:[1,1]")
                a(f"v_cvt_pk_bf16_f32 v{acc}, v{acc}, v{acc+1}")
                a(f"v_cvt_pk_bf16_f32 v{acc+1}, v{acc+2}, v{acc+3}")
                a(f"ds_write_b64 v{20+j}, v[{acc}:{acc+1}] offset:{16*x*self.QROW}")
        a("s_waitcnt lgkmcnt(0)")
        dry_exit(a, "L_epi1_ret")
        a("s_barrier")
        a("s_barrier")
        a(f"ds_read_b128 v[32:35], v26")
        sk = a.new("ost")
        a(f"s_cmp_ge_u32 s{S_WAVE}, 2")
        a(f"s_cbranch_scc1 {sk}")
        a(f"ds_read_b128 v[36:39], v27")
        a("s_waitcnt lgkmcnt(0)")
        a(f"buffer_store_dwordx4 v[36:39], v29, s[{SRD_OUT}:{SRD_OUT+3}], 0 offen{OSC}")
        a.label(sk)
        a("s_waitcnt lgkmcnt(0)")
        a(f"buffer_store_dwordx4 v[32:35], v28, s[{SRD_OUT}:{SRD_OUT+3}], 0 offen{OSC}")
    stream_epi = True

class P24(Phase):
    kind = "rm"; NT = 250
    MV = 82; NC = 64; ldb = 1280; ldo = 1280
    ABYTES = 12288; STAGE = 20480; NS = 7
    NXMAX = 3; RPM = 2
    modeS = True; NACC = 24
    def fragW(self, buf, kk, wi): return ('a', 40*buf + 8*kk + 4*wi)
    def fragX(self, buf, kk, xi): return ('a', 40*buf + 16 + 12*kk + 4*xi)
    scA = SC1
    panel_coloff = [0]; panel_srd = [SRD_B0]
    TBASE = 0
    Ains = [None, None, 'skip']
    Bins = [(0, 0), (0, 4)]
    prefetchB = 7
    def __init__(self, which):
        self.which = which
        if which == 2:
            self.key = 'p2'; self.lda = 1024 if FUSE else 1280; self.S = 10; self.rot = P2ROT
            self.oprime = FUSE
        else:
            self.key = 'p4'; self.lda = 3456; self.S = 27; self.rot = P4ROT; self.extraB = 1
        assert (self.S - 1) % self.NS != 0
        self.vXc, self.vWc = 8, 9
        self.vXa, self.vXb = 10, 11
        self.vW = [12, 13]
        self.xlist = [(self.vXa, self.vXb, 2048*x) for x in range(3)]
        self.wlist = [(self.vW[f], self.ABYTES) for f in range(2)]
        self.ACC = 32
        self.mf = [(x, f, self.ACC + 4*(2*x + f)) for x in range(3) for f in range(2)]
    def l2_prep(self, a):
        if self.which == 2: l2_setup(a, "p3", 243, 64, KA_WU, D*F*2, 3456, D)
    @property
    def gate(self): return GATE4 if (GATE and self.which == 4) else None
    def mid_prefetch(self, a, s):
        if self.which == 2 and s == 8: return l2_issue(a, KA_WU, 3456, D)
    def mask_setup(self, a):
        a(f"s_cmp_lt_u32 s{S_W}, 2")
        a(f"s_cselect_b32 s{S_MASK}, -1, 0xffff")
        a(f"s_cselect_b32 s{S_MASK+1}, -1, 0")
        a(f"s_cmp_eq_u32 s{S_W}, 3")
        a(f"s_cselect_b32 s{S_MASK}, 0, s{S_MASK}")
    def build_srds(self, a, role):
        if self.which == 2:
            if role == 'l':
                srd(a, SRD_A, ptr(KA_WS), WS_O, 0x280000 if FUSE else S_TOK*D*2)
                srd(a, SRD_B0, ptr(KA_WO), 0, D*D*2)
            srd(a, SRD_OUT, ptr(KA_WS), WS_H, S_TOK*D*2)
            srd(a, SRD_AUX, ptr(KA_X), 0, S_TOK*D*2)
            srd(a, SRD_ST, ptr(KA_WS), WS_ST, 250*1536)
        else:
            if role == 'l':
                srd(a, SRD_A, ptr(KA_WS), WS_HH, S_TOK*F*2)
                srd(a, SRD_B0, ptr(KA_WD), 0, F*D*2)
            srd(a, SRD_OUT, ptr(KA_OUT), 0, S_TOK*D*2)
            srd(a, SRD_AUX, ptr(KA_WS), WS_H, S_TOK*D*2)
    def dep_range(self, a):
        if self.which == 2:
            sh = 6 if FUSE else 4
            a(f"s_lshr_b32 s{S_T0}, s{S_R0}, {sh}")
            a(f"s_sub_u32 s{S_T1}, s{S_REND}, 1")
            a(f"s_lshr_b32 s{S_T1}, s{S_T1}, {sh}")
        else:
            sdiv(a, S_T0, S_R0, 228, 2100)
            a(f"s_sub_u32 s{S_T1}, s{S_REND}, 1")
            sdiv(a, S_T1, S_T1, 228, 2100)
    def deps_first(self, a):
        first_ks(a, self)
        if self.which == 2 and FUSE:
            for src, dst in ((S_K, S_T2), (S_KB, S_T3)):
                a(f"s_lshl_b32 s{dst}, 1, s{src}")
                a(f"s_sub_u32 s{S_T4}, s{src}, 8")
                a(f"s_lshl_b32 s{S_T4}, s{S_T4}, 2")
                a(f"s_lshl_b32 s{S_T4}, 15, s{S_T4}")
                a(f"s_cmp_ge_u32 s{src}, 8")
                a(f"s_cselect_b32 s{dst}, s{S_T4}, s{dst}")
            a(f"s_or_b32 s{S_T2}, s{S_T2}, s{S_T3}")
            self.dep_range(a)
            skip = a.new("pollskip")
            a(f"s_cmp_eq_u32 s{S_WAVE}, 0")
            a(f"s_cbranch_scc0 {skip}")
            a("v_and_b32 v141, 7, v2                 ; group j")
            a(f"v_lshrrev_b32 v142, v141, s{S_T2}") if False else None
            a(f"v_mov_b32 v142, s{S_T2}")
            a("v_lshrrev_b32 v142, v141, v142")
            a("v_and_b32 v142, 1, v142")
            a("v_lshrrev_b32 v140, 3, v2")
            a(f"v_add_u32 v140, s{S_T0}, v140")
            a(f"v_cmp_ge_u32 vcc, s{S_T1}, v140")
            a("v_cmp_eq_u32 s[82:83], 1, v142")
            a("v_lshl_add_u32 v140, v140, 3, v141")
            a("v_lshlrev_b32 v140, 7, v140")
            a("v_add_u32 v140, 0x8000, v140")
            a("s_and_b64 vcc, vcc, s[82:83]")
            poll_core(a)
            a.label(skip)
            return
        if self.which == 2:
            for r in (S_K, S_KB):
                a(f"s_cmp_ge_u32 s{r}, 5")
                a(f"s_cselect_b32 s{r}, 1, 0")
        self.dep_range(a)
        if self.gate: poll_first_g(a, S_T0, S_T1, 27, S_K, self.S, self.gate[0], 0x18000)
        else: poll_first(a, S_T0, S_T1, 2 if self.which == 2 else 27, S_K, S_KB, 0x8000 if self.which == 2 else 0x18000)
    def deps(self, a, wave=0):
        W = (8 if FUSE else 2) if self.which == 2 else 27
        self.dep_range(a)
        a(f"s_mul_i32 s{S_T0}, s{S_T0}, {W}")
        a(f"s_add_u32 s{S_T1}, s{S_T1}, 1")
        a(f"s_mul_i32 s{S_T1}, s{S_T1}, {W}")
        poll(a, S_T0, S_T1, 0x8000 if self.which == 2 else 0x18000, wave)
    def set_fidx(self, a):
        if self.which == 2:
            a(f"s_mul_i32 s{S_FIDX}, s{S_RT}, 10")
            a(f"s_add_u32 s{S_FIDX}, s{S_FIDX}, s{S_CT}")
            a(f"s_lshl_b32 s{S_FIDX}, s{S_FIDX}, 7")
            a(f"s_add_u32 s{S_FIDX}, s{S_FIDX}, 0x10000")
        else:
            a(f"s_mov_b32 s{S_FIDX}, -1")
    def loader_post_first(self, a):
        pad_init(a, self, 82, 14, None)
        return 0
    def consumer_setup(self, a):
        cons_lane(a)
        a(f"s_lshr_b32 s{S_I}, s{S_WAVE}, 1")
        a(f"s_and_b32 s{S_J}, s{S_WAVE}, 1")
        a(f"s_mul_i32 s{S_T1}, s{S_I}, 48")
        x_addr_const(a, self.vXc, S_T1)
        w_addr_const(a, self.vWc)
        a(f"s_lshl_b32 s{S_T0}, s{S_J}, 6      ; f0 = 2j -> xor 64j")
        a(f"v_xor_b32 v{self.vWc}, s{S_T0}, v{self.vWc}")
        t_write_addr(a, 17, self.TBASE)
        a(f"s_mul_i32 s{S_T0}, s{S_I}, {48*128}")
        a(f"v_add_u32 v17, s{S_T0}, v17")
        a(f"s_lshl_b32 s{S_T0}, s{S_J}, 6")
        a(f"v_xor_b32 v17, s{S_T0}, v17        ; f0 = 2j")
        a(f"v_xor_b32 v18, 32, v17")
    def addr_update(self):
        return P1.addr_update(self)
    def epilogue(self, a):
        for x in range(3):
            for f in range(2):
                acc = self.ACC + 4*(2*x + f)
                a(f"v_cvt_pk_bf16_f32 v{acc}, v{acc}, v{acc+1}")
                a(f"v_cvt_pk_bf16_f32 v{acc+1}, v{acc+2}, v{acc+3}")
                a(f"ds_write_b64 v{17+f}, v[{acc}:{acc+1}] offset:{2048*x}")
    RES = 100
    early_pre = True
    def early_setup(self, a):
        a("v_lshrrev_b32 v112, 3, v2")
        a("v_and_b32 v113, 7, v2")
        a("v_xor_b32 v108, v113, v112")
        a("v_lshlrev_b32 v108, 4, v108")
        a("v_lshl_add_u32 v108, v112, 7, v108")
        a(f"s_lshl_b32 s{S_T0}, s{S_WAVE}, 10")
        a(f"s_add_u32 s{S_T0}, s{S_T0}, {self.TBASE}")
        a(f"v_add_u32 v108, s{S_T0}, v108")
        a(f"s_lshl_b32 s{S_T0}, s{S_WAVE}, 3")
        a(f"s_add_u32 s{S_T0}, s{S_T0}, s{S_R0}")
        a(f"v_add_u32 v111, s{S_T0}, v112")
        a("v_mul_u32_u24 v109, 1280, v111")
        a(f"s_lshl_b32 s{S_T0}, s{S_C0}, 1")
        a("v_lshl_add_u32 v109, v113, 4, v109")
        a(f"v_add_u32 v109, s{S_T0}, v109")
        a(f"v_add_u32 v110, {64*1280}, v109")
        a("v_mov_b32 v114, 0x80000000")
        a(f"v_cmp_gt_u32 vcc, s{S_REND}, v111")
        a(f"v_add_u32 v115, 64, v111")
        a("s_nop 0")
        a("v_cndmask_b32 v109, v114, v109, vcc")
        a(f"v_cmp_gt_u32 vcc, s{S_REND}, v115")
        a("s_nop 1")
        a("v_cndmask_b32 v110, v114, v110, vcc")
        sc = SC1 if self.which == 4 else ""
        a(f"buffer_load_dwordx4 v[{self.RES}:{self.RES+3}], v109, s[{SRD_AUX}:{SRD_AUX+3}], 0 offen{sc}")
        a(f"buffer_load_dwordx4 v[{self.RES+4}:{self.RES+7}], v110, s[{SRD_AUX}:{SRD_AUX+3}], 0 offen{sc}")
        return 2
    def store_fast(self, a):
        sdone = a.new("sdone")
        sc = SC1 if self.which == 2 else OUTSC
        for k in range(2):
            a(f"ds_read_b128 v[{16+4*k}:{19+4*k}], v108 offset:{k*8192}")
        if self.which == 2:
            a(f"v_mov_b32 v26, {hex(ONES)}")
        a(f"s_waitcnt vmcnt(0) lgkmcnt(0)")
        for k in range(2):
            if k == 1:
                a(f"s_cmp_ge_u32 s{S_WAVE}, 3")
                a(f"s_cbranch_scc1 {sdone}")
            T = 16 + 4*k; R = self.RES + 4*k
            for d in range(4):
                a(f"v_lshlrev_b32 v28, 16, v{T+d}")
                a(f"v_and_b32 v29, 0xffff0000, v{T+d}")
                a(f"v_lshlrev_b32 v30, 16, v{R+d}")
                a(f"v_and_b32 v31, 0xffff0000, v{R+d}")
                a(f"v_pk_add_f32 v[28:29], v[28:29], v[30:31]")
                a(f"v_cvt_pk_bf16_f32 v{T+d}, v28, v29")
            a(f"buffer_store_dwordx4 v[{T}:{T+3}], v{109+k}, s[{SRD_OUT}:{SRD_OUT+3}], 0 offen{sc}")
            if self.which == 2:
                a("v_mov_b32 v24, 0"); a("v_mov_b32 v25, 0")
                a("s_nop 0")
                for d in range(4):
                    a(f"v_dot2_f32_bf16 v24, v{T+d}, v26, v24")
                    a(f"v_dot2_f32_bf16 v25, v{T+d}, v{T+d}, v25")
                a("s_nop 2")
                for dpp in ("quad_perm:[1,0,3,2]", "quad_perm:[2,3,0,1]", "row_half_mirror"):
                    a(f"v_add_f32_dpp v24, v24, v24 {dpp} row_mask:0xf bank_mask:0xf")
                    a(f"v_add_f32_dpp v25, v25, v25 {dpp} row_mask:0xf bank_mask:0xf")
                    a("s_nop 0")
                a(f"s_mul_i32 s{S_T0}, s{S_RT}, 10")
                a(f"s_add_u32 s{S_T0}, s{S_T0}, s{S_CT}")
                a(f"s_mul_i32 s{S_T0}, s{S_T0}, 1536")
                a(f"s_lshl_b32 s{S_T1}, s{S_WAVE}, 7")
                a(f"s_add_u32 s{S_T0}, s{S_T0}, s{S_T1}")
                a(f"v_lshrrev_b32 v9, 3, v2")
                a(f"v_lshlrev_b32 v9, 4, v9")
                a(f"v_add_u32 v9, s{S_T0}, v9")
                a("v_mov_b32 v12, v24"); a("v_mov_b32 v13, v25"); a("v_mov_b32 v14, 0"); a("v_mov_b32 v15, 0")
                set_exec(a, 0x0101010101010101)
                a(f"buffer_store_dwordx4 v[12:15], v9, s[{SRD_ST}:{SRD_ST+3}], 0 offen offset:{1024*k}{SC1}")
                a("s_mov_b64 exec, -1")
        a.label(sdone)

class P3(Phase):
    key = 'p3'; kind = "p3"; NT = 243
    MV = 228; NC = 64; lda = 1280; ldb = 3456; ldo = 3456
    ABYTES = 30720; STAGE = 47104; NS = 3; S = 10
    NXMAX = 8; RPM = 1
    has_e1 = True
    scA = SC1
    panel_coloff = [0, 0]; panel_srd = [SRD_B0, SRD_B1]
    LDS_ST = 47104*3; LDS_CS = 47104*3 + 1920
    TBASE = 47104
    @property
    def rot(self): return P3ROT
    Ains = [None]*7 + ['skip']
    Bins = [(0, 0), (0, 4), (1, 0), (1, 4)]
    prefetchB = 3
    def __init__(self):
        self.vXc, self.vXsc, self.vWc = 8, 9, 10
        self.vXa, self.vXb, self.vXsa, self.vXsb = 11, 12, 13, 14
        self.vW = [15, 16]
        self.xlist = [(self.vXa, self.vXb, 2048*x) for x in range(7)] + [(self.vXsa, self.vXsb, 0)]
        G, U = self.ABYTES, self.ABYTES + 8192
        self.wlist = [(self.vW[0], G), (self.vW[0], U), (self.vW[1], G), (self.vW[1], U)]
        self.ACC = 32
        self.mf = []
        acc = self.ACC
        self.accmap = {}
        for x in range(8):
            for wi in range(4):
                if x == 7 and wi >= 2: continue
                self.mf.append((x, wi, acc)); self.accmap[(x, wi)] = acc; acc += 4
        assert acc == 32 + 120
    @property
    def unroll(self): return l2_on(KA_WD)
    def l2_prep(self, a): l2_setup(a, "rm", 250, 64, KA_WD, F*D*2, 1280, F)
    def mid_prefetch(self, a, s):
        if s == 3: return l2_issue(a, KA_WD, 1280, F, 0, 9)
        if s == 6: return l2_issue(a, KA_WD, 1280, F, 9, None)
        if s == 9: return self.stats_loads(a)
    def mask_setup(self, a):
        a(f"s_cmp_eq_u32 s{S_W}, 0")
        a(f"s_cselect_b32 s{S_MASK}, -1, 0")
        a(f"s_mov_b32 s{S_MASK+1}, 0")
    def build_srds(self, a, role):
        if role == 'l':
            srd(a, SRD_A, ptr(KA_WS), WS_H, S_TOK*D*2)
            srd(a, SRD_B0, ptr(KA_WG), 0, D*F*2)
            srd(a, SRD_B1, ptr(KA_WU), 0, D*F*2)
            srd(a, SRD_ST, ptr(KA_WS), WS_ST, 250*1536)
        srd(a, SRD_OUT, ptr(KA_WS), WS_HH, S_TOK*F*2)
    def dep_range(self, a):
        sdiv(a, S_T0, S_R0, 82, 2100)
        a(f"s_sub_u32 s{S_T1}, s{S_REND}, 1")
        sdiv(a, S_T1, S_T1, 82, 2100)
    @property
    def gate(self): return (3, 2) if GATE else None
    def deps_first(self, a):
        first_ks(a, self)
        self.dep_range(a)
        if self.gate: poll_first_g(a, S_T0, S_T1, 10, S_K, self.S, self.gate[0], 0x10000)
        else: poll_first(a, S_T0, S_T1, 10, S_K, S_KB, 0x10000)
    def deps(self, a, wave=0):
        self.dep_range(a)
        a(f"s_mul_i32 s{S_T0}, s{S_T0}, 10")
        a(f"s_add_u32 s{S_T1}, s{S_T1}, 1")
        a(f"s_mul_i32 s{S_T1}, s{S_T1}, 10")
        poll(a, S_T0, S_T1, 0x10000, wave)
    def set_fidx(self, a):
        a(f"s_mul_i32 s{S_FIDX}, s{S_RT}, 27")
        a(f"s_add_u32 s{S_FIDX}, s{S_FIDX}, s{S_CT}")
        a(f"s_lshl_b32 s{S_FIDX}, s{S_FIDX}, 7")
        a(f"s_add_u32 s{S_FIDX}, s{S_FIDX}, 0x18000")
    def loader_post_first(self, a):
        pad_init(a, self, 228, 11, 239)
        return 0
    def stats_loads(self, a):
        a(f"s_lshl_b32 s{S_T0}, s{S_W}, 6")
        a(f"v_add_u32 v12, s{S_T0}, v2")
        a(f"v_add_u32 v13, s{S_R0}, v12")
        vdiv(a, 15, 13, 82, 2300)
        a("v_mul_u32_u24 v16, 82, v15")
        a("v_sub_u32 v16, v13, v16")
        a("v_mul_u32_u24 v15, 15360, v15")
        a("v_lshl_add_u32 v13, v16, 4, v15")
        a(f"v_add_u32 v15, s{S_R0}, v12")
        a(f"v_cmp_gt_u32 vcc, s{S_REND}, v15")
        a("v_mov_b32 v14, 0x80000000")
        a("s_nop 0")
        a("v_cndmask_b32 v13, v14, v13, vcc")
        for c in range(10):
            a(f"s_mov_b32 s{S_T0}, {c*1536}")
            a(f"buffer_load_dwordx2 v[{64+2*c}:{65+2*c}], v13, s[{SRD_ST}:{SRD_ST+3}], s{S_T0} offen{SC1}")
        return 10
    def loader_final(self, a):
        a("s_waitcnt vmcnt(0)")
        for c in range(1, 10):
            a(f"v_pk_add_f32 v[64:65], v[64:65], v[{64+2*c}:{65+2*c}]")
        a(f"v_mul_f32 v64, {hex(f2u(1.0/D))}, v64")
        a(f"v_mul_f32 v65, {hex(f2u(1.0/D))}, v65")
        a("v_fma_f32 v65, -v64, v64, v65")
        a(f"v_add_f32 v65, {hex(f2u(1e-5))}, v65")
        a("v_rsq_f32 v65, v65")
        a("v_lshlrev_b32 v12, 3, v12")
        a(f"v_add_u32 v12, {self.LDS_ST}, v12")
        a(f"s_cmp_eq_u32 s{S_W}, 3")
        a(f"s_cselect_b32 exec_hi, 0xffff, -1")
        a("ds_write_b64 v12, v[64:65]")
        a("s_mov_b64 exec, -1")
    def consumer_setup(self, a):
        cons_lane(a)
        a(f"s_lshr_b32 s{S_I}, s{S_WAVE}, 1")
        a(f"s_and_b32 s{S_J}, s{S_WAVE}, 1")
        a(f"s_lshl_b32 s{S_T1}, s{S_I}, 7")
        x_addr_const(a, self.vXc, S_T1)
        x_addr_const(a, self.vXsc, None, 112)
        w_addr_const(a, self.vWc)
        a(f"s_lshl_b32 s{S_T0}, s{S_J}, 1")
        a(f"s_add_u32 s{S_T0}, s{S_T0}, s{S_I}")
        a(f"s_lshl_b32 s{S_T0}, s{S_T0}, 5")
        a(f"v_xor_b32 v{self.vWc}, s{S_T0}, v{self.vWc}")
        a(f"s_lshl_b32 s{S_T0}, s{S_J}, 1")
        a(f"s_add_u32 s{S_T2}, s{S_T0}, s{S_I}     ; f0")
        a(f"s_lshl_b32 s{S_T0}, s{S_T2}, 6")
        a(f"v_lshlrev_b32 v24, 4, v4")
        a(f"v_add_u32 v24, s{S_T0}, v24")
        a(f"v_add_u32 v24, {self.LDS_CS}, v24")
        a(f"v_xor_b32 v25, 64, v24")
        t_write_addr(a, 26, self.TBASE)
        a(f"s_lshl_b32 s{S_T0}, s{S_T2}, 5")
        a(f"v_xor_b32 v26, s{S_T0}, v26")
        a(f"v_add_u32 v28, {112*128}, v26")
        a(f"s_lshl_b32 s{S_T0}, s{S_I}, 14")
        a(f"v_add_u32 v26, s{S_T0}, v26")
        a(f"v_xor_b32 v27, 32, v26")
        a(f"s_lshl_b32 s{S_T0}, s{S_I}, 10         ; 128*i*8")
        a(f"v_lshlrev_b32 v29, 3, v3")
        a(f"v_add_u32 v30, {self.LDS_ST + 112*8}, v29")
        a(f"v_add_u32 v29, s{S_T0}, v29")
        a(f"v_add_u32 v29, {self.LDS_ST}, v29")
    def addr_update(self):
        return [f"v_add_u32 v{self.vXa}, s{S_SLOT}, v{self.vXc}",
                f"v_add_u32 v{self.vW[0]}, s{S_SLOT}, v{self.vWc}",
                f"v_add_u32 v{self.vXsa}, s{S_SLOT}, v{self.vXsc}",
                f"v_xor_b32 v{self.vXb}, 64, v{self.vXa}",
                f"v_xor_b32 v{self.vW[1]}, 32, v{self.vW[0]}",
                f"v_xor_b32 v{self.vXsb}, 64, v{self.vXsa}"]
    chunk_epi = True
    def epilogue(self, a):
        nocs = a.new("nocs")
        a.label("L_epi3_start")
        assert self.LDS_CS % 128 == 0
        a(f"s_cmp_eq_u32 s{S_I}, 1")
        a(f"s_cbranch_scc0 {nocs}")
        mask_exec(a, 0x8000800080008000)
        for wi, (areg, poff) in enumerate([(24, 0), (24, 256), (25, 0), (25, 256)]):
            acc = self.accmap[(6, wi)]
            a(f"ds_write_b128 v{areg}, v[{acc}:{acc+3}] offset:{poff}")
        unmask_exec(a)
        a.label(nocs)
        a("s_waitcnt lgkmcnt(0)")
        dbar(a, "E1")
        CSR = [8, 12, 152, 156]
        for wi, (areg, poff) in enumerate([(24, 0), (24, 256), (25, 0), (25, 256)]):
            a(f"ds_read_b128 v[{CSR[wi]}:{CSR[wi]+3}], v{areg} offset:{poff}")
        STR = [16, 18, 20, 22]
        def rdst(x):
            st = STR[x & 3]
            if x < 7: a(f"ds_read_b64 v[{st}:{st+1}], v29 offset:{128*x}")
            else: a(f"ds_read_b64 v[{st}:{st+1}], v30")
        for x in range(4): rdst(x)
        a("s_waitcnt lgkmcnt(0)")
        for x in range(8):
            st = STR[x & 3]
            npair = 1 if x == 7 else 2
            if x == 4:
                a("s_waitcnt lgkmcnt(0)")
                dbar(a, "E2a")
            a(f"v_mul_f32 v{st+1}, v{st+1}, v{st+1}")
            for p in range(npair):
                g = self.accmap[(x, 2*p)]; u = self.accmap[(x, 2*p+1)]
                cg = CSR[2*p]; cu = CSR[2*p+1]
                for hh in (0, 2):
                    a(f"v_pk_fma_f32 v[{g+hh}:{g+hh+1}], v[{cg+hh}:{cg+hh+1}], v[{st}:{st+1}], v[{g+hh}:{g+hh+1}] op_sel_hi:[1,0,1] neg_lo:[0,1,0] neg_hi:[0,1,0]")
                    a(f"v_pk_fma_f32 v[{u+hh}:{u+hh+1}], v[{cu+hh}:{cu+hh+1}], v[{st}:{st+1}], v[{u+hh}:{u+hh+1}] op_sel_hi:[1,0,1] neg_lo:[0,1,0] neg_hi:[0,1,0]")
                for hh in (0, 2):
                    a(f"v_pk_mul_f32 v[{g+hh}:{g+hh+1}], v[{g+hh}:{g+hh+1}], v[{u+hh}:{u+hh+1}]")
                for hh in (0, 2):
                    a(f"v_pk_mul_f32 v[{g+hh}:{g+hh+1}], v[{g+hh}:{g+hh+1}], v[{st}:{st+1}] op_sel:[0,1] op_sel_hi:[1,1]")
                a(f"v_cvt_pk_bf16_f32 v{g}, v{g}, v{g+1}")
                a(f"v_cvt_pk_bf16_f32 v{g+1}, v{g+2}, v{g+3}")
                if x < 7: a(f"ds_write_b64 v{26+p}, v[{g}:{g+1}] offset:{2048*x}")
                else: a(f"ds_write_b64 v28, v[{g}:{g+1}]")
            if x < 4: rdst(x + 4)
        a("s_waitcnt lgkmcnt(0)")
        dry_exit(a, "L_epi3_ret")
        a("s_barrier      ; E2b")
    def loader_store_setup(self, a):
        a("v_lshrrev_b32 v3, 3, v2")
        a("v_and_b32 v4, 7, v2")
        a("v_xor_b32 v5, v4, v3")
        a("v_lshlrev_b32 v5, 4, v5")
        a("v_lshl_add_u32 v50, v3, 7, v5")
        a(f"s_lshl_b32 s{S_T0}, s{S_W}, 10")
        a(f"s_add_u32 s{S_T0}, s{S_T0}, {self.TBASE}")
        a(f"v_add_u32 v50, s{S_T0}, v50")
        a(f"s_lshl_b32 s{S_T0}, s{S_W}, 3")
        a(f"s_add_u32 s{S_T0}, s{S_T0}, s{S_R0}")
        a(f"v_add_u32 v51, s{S_T0}, v3")
        a(f"s_mov_b32 s{S_T1}, 3456")
        a(f"v_mul_lo_u32 v52, v51, s{S_T1}")
        a(f"s_lshl_b32 s{S_T0}, s{S_C0}, 1")
        a("v_lshl_add_u32 v52, v4, 4, v52")
        a(f"v_add_u32 v52, s{S_T0}, v52")
    def loader_stores(self, a, units):
        for n, u0 in enumerate(units):
            a(f"ds_read_b128 v[{56+4*n}:{59+4*n}], v50 offset:{u0*1024}")
        for n, u0 in enumerate(units):
            a(f"v_add_u32 v{53 if n & 1 else 54}, {u0*8*3456}, v52")
            special = (u0 + 3)*8 + 7 >= self.MV
            if special:
                a(f"v_add_u32 v55, {u0*8}, v51")
                a(f"s_add_u32 s{S_T0}, s{S_R0}, {self.MV}")
                a(f"v_cmp_gt_u32 vcc, s{S_T0}, v55")
                a(f"s_and_saveexec_b64 s[80:81], vcc")
            a(f"s_waitcnt lgkmcnt({len(units) - 1 - n})")
            a(f"buffer_store_dwordx4 v[{56+4*n}:{59+4*n}], v{53 if n & 1 else 54}, s[{SRD_OUT}:{SRD_OUT+3}], 0 offen{SC1}")
            if special: a("s_mov_b64 exec, s[80:81]")
    def loader_epilogue(self, a):
        a("s_barrier      ; E2a")
        self.loader_stores(a, [0, 4, 16, 20])
        a("s_barrier      ; E2b")
        self.loader_stores(a, [8, 12, 24, 28])

ROWB = 656
LQ, LK, LV, LO = 16384, 16384 + 16*ROWB, 16384 + 46*ROWB, 0
WPF = True
P1ROT = 'latin2'
ROTOFF = set()
WPF_OFF = {KA_WD}
def l2_on(kptr): return WPF and kptr not in WPF_OFF
def l2_setup(a, kind, NT, NC, kptr, nbytes, ldb, K):
    if not l2_on(kptr): return
    R3 = ((K + 2)//3 + 7)//8*8
    a(f"s_mov_b32 s4, s{S_RT}"); a(f"s_mov_b32 s5, s{S_CT}")
    tile_map(a, NT, kind)
    divc(a, S_T0, S_RT, 3)
    a(f"s_mul_i32 s{S_T0}, s{S_T0}, 3")
    a(f"s_sub_u32 s{S_T0}, s{S_RT}, s{S_T0}")
    a(f"s_mul_i32 s{S_T0}, s{S_T0}, {R3}")
    a(f"s_lshl_b32 s{S_T1}, s{S_W}, 3")
    a(f"s_add_u32 s{S_T0}, s{S_T0}, s{S_T1}")
    a("v_lshrrev_b32 v150, 3, v2")
    a(f"v_add_u32 v150, s{S_T0}, v150")
    a(f"s_mov_b32 s{S_T1}, {ldb}")
    a(f"v_mul_lo_u32 v150, v150, s{S_T1}")
    a("v_and_b32 v151, 7, v2")
    a("v_lshl_add_u32 v150, v151, 4, v150")
    a(f"s_mul_i32 s{S_T1}, s{S_CT}, {NC*2}")
    a(f"v_add_u32 v150, s{S_T1}, v150")
    a(f"s_cmp_eq_u32 s{S_VALID}, 0")
    a(f"s_cselect_b32 s{S_T1}, 0x80000000, 0")
    a(f"v_or_b32 v150, s{S_T1}, v150")
    srd(a, 80, ptr(kptr), 0, nbytes)
    a(f"s_mov_b32 s{S_RT}, s4"); a(f"s_mov_b32 s{S_CT}, s5")
def l2_issue(a, kptr, ldb, K, i0=0, i1=None):
    if not l2_on(kptr): return 0
    R3 = ((K + 2)//3 + 7)//8*8
    n = (R3//8 + 3)//4
    if i1 is None: i1 = n
    for i in range(i0, min(i1, n)):
        a(f"buffer_load_dwordx4 v[152:155], v150, s[80:83], 0 offen")
        if i + 1 < n: a(f"v_add_u32 v150, {32*ldb}, v150")
    return min(i1, n) - i0

def att_phase(a, role):
    a(f"s_lshl_b32 s{S_R0}, s{S_RT}, 4       ; T0")
    srd(a, SRD_A, ptr(KA_WS), WS_QKV, S_TOK*NQKV*2)
    srd(a, SRD_OUT, ptr(KA_WS), WS_O, S_TOK*D*2)
    NI = 49
    nper = (NI + 7)//8
    a(f"s_mov_b32 s{S_T2}, 3840")
    a(f"s_mul_i32 s{S_T3}, s{S_CT}, 640")
    for j in range(nper):
        r = 32 + j
        a(f"s_add_u32 s{S_T0}, s{S_WAVE}, {8*j}")
        a(f"s_lshl_b32 s{S_T0}, s{S_T0}, 6")
        a(f"v_add_u32 v3, s{S_T0}, v2           ; c")
        vdiv(a, 4, 3, 41, 64*56)
        a("v_mul_u32_u24 v5, 41, v4")
        a("v_sub_u32 v5, v3, v5                  ; kap")
        a("v_cmp_le_u32 vcc, 16, v4")
        a("v_mov_b32 v8, 0x80000000")
        a("s_nop 0")
        a("v_cndmask_b32 v6, 0, 1, vcc")
        a("v_cmp_le_u32 vcc, 46, v4")
        a("s_nop 1")
        a("v_cndmask_b32 v7, 0, 1, vcc")
        a("v_add_u32 v6, v6, v7                  ; seg")
        a("v_mul_u32_u24 v7, 30, v6")
        a("v_sub_u32 v7, v4, v7")
        a(f"v_add_u32 v7, s{S_R0}, v7            ; token")
        a(f"v_mul_lo_u32 v7, v7, s{S_T2}")
        a("v_mul_u32_u24 v6, 1280, v6")
        a("v_add_u32 v7, v7, v6")
        a("v_lshl_add_u32 v7, v5, 4, v7")
        a(f"v_add_u32 v7, s{S_T3}, v7")
        a("v_cmp_gt_u32 vcc, 40, v5")
        a("s_nop 1")
        a("v_cndmask_b32 v7, v8, v7, vcc")
        a("v_cmp_gt_u32 vcc, 76, v4")
        a("s_nop 1")
        a(f"v_cndmask_b32 v{r}, v8, v7, vcc")
    if role == 'c':
        a(f"s_lshr_b32 s{S_T0}, s{S_WAVE}, 1")
        a(f"s_lshl_b32 s{S_T0}, s{S_T0}, 3")
        a(f"s_and_b32 s{S_T1}, s{S_WAVE}, 1")
        a(f"s_add_u32 s{S_I}, s{S_T0}, s{S_T1}      ; rb")
        a("v_and_b32 v3, 3, v2             ; i")
        a("v_lshrrev_b32 v4, 2, v2         ; b")
        a("v_lshlrev_b32 v5, 1, v3")
        a(f"v_add_u32 v5, s{S_I}, v5        ; rb + 2i")
        a(f"v_mul_u32_u24 v5, {ROWB}, v5")
        a("v_mul_u32_u24 v6, 40, v4")
        a("v_add_u32 v5, v5, v6")
        a(f"v_add_u32 v144, {LQ}, v5")
        a(f"v_add_u32 v145, {LK}, v5")
        a("v_cmp_eq_u32 vcc, 3, v3")
        a(f"v_mov_b32 v7, {16*ROWB}")
        a(f"v_mov_b32 v8, {14*ROWB}")
        a("v_cndmask_b32 v7, v7, v8, vcc")
        a("v_add_u32 v146, v145, v7")
        a("v_bfe_u32 v9, v2, 2, 2            ; r")
        a("v_lshlrev_b32 v10, 1, v9")
        a(f"v_add_u32 v10, s{S_I}, v10")
        a(f"v_mul_u32_u24 v10, {ROWB}, v10")
        a("v_lshrrev_b32 v11, 4, v2")
        a("v_lshl_add_u32 v11, v11, 2, v3     ; 4G + c")
        a("v_mul_u32_u24 v11, 40, v11")
        a("v_add_u32 v10, v10, v11")
        a(f"v_add_u32 v147, {LV}, v10")
        a("v_cmp_eq_u32 vcc, 3, v9")
        a(f"v_mov_b32 v7, {16*ROWB}")
        a("s_nop 0")
        a("v_cndmask_b32 v7, v7, v8, vcc")
        a("v_add_u32 v119, v147, v7")
        a(f"v_mov_b32 v12, {hex(f2u(-1e30))}")
        a("v_mov_b32 v13, 0")
        a(f"s_add_u32 s{S_T2}, s{S_R0}, s{S_I}")
        a(f"s_sub_u32 s{S_T2}, s{S_T2}, 14        ; pos(0)")
        for m in range(12):
            a(f"v_sub_u32 v14, {m}, v3            ; m - i")
            a("v_cmp_gt_u32 vcc, 8, v14")
            a(f"s_add_u32 s{S_T0}, s{S_T2}, {2*m}")
            a(f"s_cmp_ge_i32 s{S_T0}, 0")
            a("s_cselect_b64 s[80:81], -1, 0")
            a("s_and_b64 vcc, vcc, s[80:81]")
            a(f"v_cndmask_b32 v{120+m}, v12, v13, vcc")
    for j in range(2):
        a(f"s_add_u32 s{S_T0}, s{S_WAVE}, {8*j}")
        a(f"s_lshl_b32 s{S_T0}, s{S_T0}, 6")
        a(f"v_add_u32 v3, s{S_T0}, v2")
        vdiv(a, 4, 3, 40, 1024)
        a("v_mul_u32_u24 v5, 40, v4")
        a("v_sub_u32 v5, v3, v5")
        a(f"v_mul_u32_u24 v6, {ROWB}, v4")
        a(f"v_lshl_add_u32 v{148+j}, v5, 4, v6")
        a(f"v_add_u32 v4, s{S_R0}, v4")
        a("v_mul_u32_u24 v4, 1280, v4")
        a("v_lshl_add_u32 v4, v5, 4, v4")
        a(f"v_add_u32 v{156+j}, s{S_T3}, v4")
    if role == 'c':
        a(f"s_sub_u32 s{S_T0}, s{S_R0}, 14")
        a(f"s_max_i32 s{S_T0}, s{S_T0}, 0")
        sdiv(a, S_T0, S_T0, 121, 2100)
        a(f"s_add_u32 s{S_T1}, s{S_R0}, 15")
        sdiv(a, S_T1, S_T1, 121, 2100)
        skp = a.new("attpoll")
        a(f"s_cmp_eq_u32 s{S_WAVE}, 0")
        a(f"s_cbranch_scc0 {skp}")
        vdiv(a, 140, 2, 9, 64)
        a("v_mul_u32_u24 v141, 9, v140")
        a("v_sub_u32 v141, v2, v141                  ; j = l%9")
        vdiv(a, 142, 141, 3, 16)
        a("v_mul_u32_u24 v143, 3, v142")
        a("v_sub_u32 v143, v141, v143                ; j%3")
        a("v_mul_u32_u24 v142, 5, v142")
        a("v_add_u32 v142, v142, v143")
        a(f"s_lshl_b32 s{S_T2}, s{S_CT}, 1")
        a(f"v_add_u32 v142, s{S_T2}, v142            ; ct")
        a(f"v_add_u32 v140, s{S_T0}, v140            ; rt")
        a(f"v_cmp_ge_u32 vcc, s{S_T1}, v140")
        a("v_mul_u32_u24 v140, 15, v140")
        a("v_add_u32 v140, v140, v142")
        a("v_lshlrev_b32 v140, 7, v140")
        poll_core(a)
        a.label(skp)
        a("s_barrier      ; B_dep")
    else:
        l2_setup(a, "p3", 243, 64, KA_WG, D*F*2, 3456, D)
        a("s_barrier      ; B_dep")
    stamp(a, 0)
    for j in range(nper):
        sk = None
        if 8*j + 7 >= NI:
            sk = a.new("attsk")
            a(f"s_cmp_ge_u32 s{S_WAVE}, {NI - 8*j}")
            a(f"s_cbranch_scc1 {sk}")
        a(f"s_add_u32 s{S_T0}, s{S_WAVE}, {8*j}")
        a(f"s_lshl_b32 s{S_T0}, s{S_T0}, 10")
        a(f"s_add_u32 m0, s{S_T0}, {LQ}")
        a("s_nop 0")
        a(f"buffer_load_dwordx4 v{32+j}, s[{SRD_A}:{SRD_A+3}], 0 offen{SC1} lds")
        if sk: a.label(sk)
    a("s_waitcnt vmcnt(0)")
    a("s_barrier")
    stamp(a, 1)
    if role == 'l': l2_issue(a, KA_WG, 3456, D)
    if role == 'c':
        Q = 16; KR = 32; VR = 62; SC = 92; BIAS = 120; PB = 104; O = 4
        for dg in range(5):
            a(f"ds_read_b64 v[{Q+2*dg}:{Q+2*dg+1}], v144 offset:{8*dg}")
        for kb in range(3):
            for dg in range(5):
                r = KR + 2*(5*kb + dg)
                if kb < 2: a(f"ds_read_b64 v[{r}:{r+1}], v145 offset:{8*ROWB*kb + 8*dg}")
                else: a(f"ds_read_b64 v[{r}:{r+1}], v146 offset:{8*dg}")
        scale = (D // 32) ** -0.5
        c1 = scale * 1.4426950408889634
        a(f"s_mov_b32 s{S_T2}, {hex(f2u(c1))}")
        a("s_waitcnt lgkmcnt(0)")
        for kb in range(3):
            for dg in range(5):
                r = VR + 2*(5*kb + dg)
                if kb < 2: a(f"ds_read_b64_tr_b16 v[{r}:{r+1}], v147 offset:{8*ROWB*kb + 8*dg}")
                else: a(f"ds_read_b64_tr_b16 v[{r}:{r+1}], v119 offset:{8*dg}")
        for dg in range(5):
            for kb in range(3):
                r = KR + 2*(5*kb + dg); sc = SC + 4*kb
                c = "0" if dg == 0 else f"v[{sc}:{sc+3}]"
                a(f"v_mfma_f32_4x4x4_16b_bf16 v[{sc}:{sc+3}], v[{r}:{r+1}], v[{Q+2*dg}:{Q+2*dg+1}], {c}")
        a("s_nop 4")
        for m in range(12):
            a(f"v_fma_f32 v{SC+m}, v{SC+m}, s{S_T2}, v{BIAS+m}")
        a(f"v_max3_f32 v14, v{SC}, v{SC+1}, v{SC+2}")
        a(f"v_max3_f32 v15, v{SC+3}, v{SC+4}, v{SC+5}")
        a(f"v_max3_f32 v14, v14, v{SC+6}, v{SC+7}")
        a(f"v_max3_f32 v15, v15, v{SC+8}, v{SC+9}")
        a(f"v_max3_f32 v14, v14, v{SC+10}, v{SC+11}")
        a("v_max_f32 v14, v14, v15")
        for m in range(12):
            a(f"v_sub_f32 v{SC+m}, v{SC+m}, v14")
        for m in range(12):
            a(f"v_exp_f32 v{SC+m}, v{SC+m}")
        a(f"v_add_f32 v14, v{SC}, v{SC+1}")
        a(f"v_add_f32 v15, v{SC+2}, v{SC+3}")
        for m in range(4, 12, 2):
            a(f"v_add_f32 v14, v14, v{SC+m}")
            a(f"v_add_f32 v15, v15, v{SC+m+1}")
        a("v_add_f32 v14, v14, v15")
        a("v_rcp_f32 v14, v14")
        a("s_nop 0")
        for m in range(12):
            a(f"v_mul_f32 v{SC+m}, v{SC+m}, v14")
        for m in range(0, 12, 2):
            a(f"v_cvt_pk_bf16_f32 v{PB+m//2}, v{SC+m}, v{SC+m+1}")
        a("s_waitcnt lgkmcnt(0)")
        a("s_nop 0")
        OA = 32
        for kb in range(3):
            for dg in range(5):
                r = VR + 2*(5*kb + dg); o = OA + 4*dg
                c = "0" if kb == 0 else f"v[{o}:{o+3}]"
                a(f"v_mfma_f32_4x4x4_16b_bf16 v[{o}:{o+3}], v[{r}:{r+1}], v[{PB+2*kb}:{PB+2*kb+1}], {c}")
        a(f"v_subrev_u32 v144, {LQ - LO}, v144")
        a("s_nop 4")
        for dg in range(5):
            o = OA + 4*dg
            a(f"v_cvt_pk_bf16_f32 v{Q+2*dg}, v{o}, v{o+1}")
            a(f"v_cvt_pk_bf16_f32 v{Q+2*dg+1}, v{o+2}, v{o+3}")
            a(f"ds_write_b64 v144, v[{Q+2*dg}:{Q+2*dg+1}] offset:{8*dg}")
    a("s_waitcnt lgkmcnt(0)")
    stamp(a, 2)
    a("s_barrier")
    a(f"ds_read_b128 v[20:23], v148 offset:{LO}")
    sk = a.new("attst")
    a(f"s_cmp_ge_u32 s{S_WAVE}, 2")
    a(f"s_cbranch_scc1 {sk}")
    a(f"ds_read_b128 v[24:27], v149 offset:{LO}")
    a("s_waitcnt lgkmcnt(0)")
    a(f"buffer_store_dwordx4 v[24:27], v157, s[{SRD_OUT}:{SRD_OUT+3}], 0 offen{SC1}")
    a.label(sk)
    a("s_waitcnt lgkmcnt(0)")
    a(f"buffer_store_dwordx4 v[20:23], v156, s[{SRD_OUT}:{SRD_OUT+3}], 0 offen{SC1}")
    a(f"s_lshl_b32 s{S_FIDX}, s{S_RT}, 1")
    a(f"s_add_u32 s{S_FIDX}, s{S_FIDX}, s{S_CT}")
    a(f"s_lshl_b32 s{S_FIDX}, s{S_FIDX}, 7")
    a(f"s_add_u32 s{S_FIDX}, s{S_FIDX}, 0x8000")

def finish_phase(a, role, first=False):
    a("s_waitcnt vmcnt(0)")
    stamp(a, 4)
    if role == 'c' and first: nonce_check(a)
    a("s_barrier      ; E3")
    if role == 'c': publish(a)
    stamp(a, 5)

IDLEPF = True
def idle_prefetch(a, NT, kptr, nbytes):
    nidle = 256 - NT
    nw = nidle * 8
    npieces = (nbytes + 1023)//1024
    n = (npieces + nw - 1)//nw
    a(f"s_and_b32 s{S_T0}, s2, 7")
    a(f"s_lshr_b32 s{S_T1}, s2, 3")
    a(f"s_lshl_b32 s{S_T0}, s{S_T0}, 5")
    a(f"s_add_u32 s{S_T0}, s{S_T0}, s{S_T1}")
    a(f"s_sub_u32 s{S_T0}, s{S_T0}, {NT}")
    a(f"s_lshl_b32 s{S_T0}, s{S_T0}, 3")
    a(f"s_add_u32 s{S_T0}, s{S_T0}, s{S_WAVE}      ; q")
    a(f"s_lshl_b32 s{S_T0}, s{S_T0}, 10")
    a("v_lshlrev_b32 v150, 4, v2")
    a(f"v_add_u32 v150, s{S_T0}, v150")
    srd(a, 80, ptr(kptr), 0, nbytes)
    lp = a.new("ipf")
    a(f"s_mov_b32 s{S_CNT}, {n}")
    a.label(lp)
    a("buffer_load_dwordx4 v[152:155], v150, s[80:83], 0 offen")
    a(f"v_add_u32 v150, {nw*1024}, v150")
    a(f"s_sub_u32 s{S_CNT}, s{S_CNT}, 1")
    a(f"s_cmp_lg_u32 s{S_CNT}, 0")
    a(f"s_cbranch_scc1 {lp}")
    a("s_waitcnt vmcnt(0)")

def role_program(a, role):
    phases = [P1F(), P24(2), P3(), P24(4)] if FUSE else [P1(), 'att', P24(2), P3(), P24(4)]
    if 'p1twice' in EXP:
        P = P1F() if FUSE else P1(); inv = a.new("inv")
        tile_map(a, P.NT, P.kind)
        a(f"s_cmp_eq_u32 s{S_VALID}, 0")
        a(f"s_cbranch_scc1 {inv}")
        P.tile_consts(a)
        if role == 'c': consumer_phase(a, P, True)
        else: loader_phase(a, P, True)
        a("s_waitcnt vmcnt(0)")
        a("s_barrier")
        a.label(inv)
    for n, P in enumerate(phases):
        first = (n == 0)
        nxt = a.new("next"); inv = a.new("inv")
        if P == 'att':
            tile_map(a, 256, 'att')
            att_phase(a, role)
            stamp(a, 3)
            finish_phase(a, role)
            prof_store(a, 'att', role)
            continue
        tile_map(a, P.NT, P.kind)
        a(f"s_cmp_eq_u32 s{S_VALID}, 0")
        a(f"s_cbranch_scc1 {inv}")
        P.tile_consts(a)
        if role == 'c': consumer_phase(a, P, first)
        else: loader_phase(a, P, first)
        stamp(a, 3)
        if P.key != 'p4': finish_phase(a, role, first)
        spin_capture(a, P.key, role)
        prof_store(a, P.key, role)
        if first:
            a(f"s_branch {nxt}")
            a.label(inv)
            ptr_wait(a)
            if role == 'c': nonce_check(a, issued=False)
            a.label(nxt)
        elif P.key == 'p3' and IDLEPF:
            a(f"s_branch {nxt}")
            a.label(inv)
            idle_prefetch(a, P.NT, KA_WD, F*D*2)
            a.label(nxt)
        else:
            a.label(inv)

def main(out):
    a = Asm()
    a.raw(f".globl {KNAME}")
    a.raw(".p2align 8")
    a.raw(f".type {KNAME},@function")
    a.label(KNAME)
    if PROFDBG:
        a(f"s_memrealtime s[{S_P0+1}:{S_P0+2}]") if False else None
    a("s_cmp_ge_u32 s2, 256")
    a("s_cbranch_scc1 L_exit")
    a(f"s_load_dwordx16 s[{S_PTR}:{S_PTR+15}], s[0:1], 0")
    a(f"s_load_dwordx4 s[{S_PTR+16}:{S_PTR+19}], s[0:1], 64")
    if PROFDBG or SPIN:
        a(f"{STAMP} s[98:99]")
    a("v_lshrrev_b32 v1, 6, v0")
    a("v_and_b32 v2, 63, v0      ; lane")
    a(f"s_mov_b32 s{S_FIDX}, -1")
    a(f"s_mov_b32 s{S_DRY}, 0")
    a(f"v_readfirstlane_b32 s{S_WAVE}, v1")
    a("s_nop 3")
    a(f"s_sub_u32 s{S_W}, s{S_WAVE}, 4")
    a(f"s_cmp_ge_u32 s{S_WAVE}, 4")
    a("s_cbranch_scc1 L_loader")
    role_program(a, 'c')
    a("s_waitcnt vmcnt(0)")
    spin_end(a)
    a("s_endpgm")
    a.label("L_loader")
    role_program(a, 'l')
    a("s_waitcnt vmcnt(0)")
    a.label("L_exit")
    a("s_endpgm")
    HEADER = open("sequential_preLN__sliding_local_dilated__glu_gated_bilinear__prompt.s.ref").read().split("; Override")[0]
    s = HEADER
    s += f"; @launch grid=(256,1,1) block=(512,1,1) lds={LDS_TOTAL}\n"
    s += '.amdgcn_target "amdgcn-amd-amdhsa--gfx950"\n.text\n'
    s += a.text()
    s += f""".section .rodata,"a"
.p2align 6
.amdhsa_kernel {KNAME}
  .amdhsa_next_free_vgpr 256
  .amdhsa_next_free_sgpr 102
  .amdhsa_accum_offset 160
  .amdhsa_group_segment_fixed_size 0
  .amdhsa_kernarg_size 80
  .amdhsa_user_sgpr_count 2
  .amdhsa_user_sgpr_kernarg_segment_ptr 1
  .amdhsa_system_sgpr_workgroup_id_x 1
  .amdhsa_float_denorm_mode_32 3
.end_amdhsa_kernel
"""
    open(out, "w").write(s)

if __name__ == "__main__":
    if "-prof" in sys.argv: PROF = True
    if "-profdbg" in sys.argv: PROFDBG = True
    if "-cyc" in sys.argv: STAMP = "s_memtime"
    if "-wpf" in sys.argv: WPF = True
    if "-nofuse" in sys.argv: FUSE = False
    if "-gate" in sys.argv: GATE = True
    if "-nodry" in sys.argv: DRY = False
    for x in sys.argv:
        if x.startswith("-extrab="): EXTRAB = int(x[8:])
        if x.startswith("-p4rot="): P4ROT = tuple(int(y) for y in x[7:].split(","))
        if x.startswith("-p3rot="): P3ROT = tuple(int(y) for y in x[7:].split(","))
        if x.startswith("-p2rot="): P2ROT = tuple(int(y) for y in x[7:].split(","))
    if "-onwd" in sys.argv: WPF_OFF.discard(KA_WD)
    for x in sys.argv:
        if x.startswith("-spf="): SPF = int(x[5:])
        if x.startswith("-spf2="): SPF2 = {'wg': KA_WG, 'wu': KA_WU}[x[6:]]
    if "-noidle" in sys.argv: IDLEPF = False
    for x in sys.argv:
        if x.startswith("-spin="):
            p_, a_, b_ = x[6:].split(","); SPIN = (p_, int(a_), int(b_))
    if "-apf" in sys.argv: APF = True
    for x in sys.argv:
        if x.startswith("-p1frot="): P1FROT = x[8:]
    for x in sys.argv:
        if x.startswith("-outsc="): OUTSC = " " + x[7:].replace("+", " ")
    for x in sys.argv:
        if x.startswith("-gate4="): GATE4 = tuple(int(y) for y in x[7:].split(","))
    for x in sys.argv:
        if x.startswith("-osc="): OSC = " " + x[5:].replace("+", " ")
    for x in sys.argv:
        if x.startswith("-align="): ALIGN = int(x[7:])
    if "-nowpf" in sys.argv: WPF = False
    if "-onestep" in sys.argv: TWOSTEP = False
    for x in sys.argv:
        if x.startswith("-exp="): EXP = set(x[5:].split(","))
    if "-noxcd" in sys.argv: NOXCD = True
    for x in sys.argv:
        if x.startswith("-p1rot="): P1ROT = x[7:]
        if x.startswith("-rotoff="): ROTOFF = set(x[8:].split(","))
    for x in sys.argv:
        if x.startswith("-off="):
            for k in x[5:].split(","): WPF_OFF.add({'wo': KA_WO, 'wg': KA_WG, 'wu': KA_WU, 'wd': KA_WD}[k])
    main(sys.argv[1] if len(sys.argv) > 1 else "v3.s")
```

```python
import sys, struct

KNAME = "sequential_preLN__sliding_local_dilated__glu_gated_bilinear__prompt_kernel"
S_TOK, D, NQKV, F = 2048, 640, 1920, 1728
WS_QKV, WS_O, WS_H, WS_HH, WS_ST, WS_FLAG = 0, 0x800000, 0xB00000, 0x1000000, 0x1800000, 0x1900000
WS_PROF = 0x1A00000
KA_X, KA_WQKV, KA_WO, KA_BX, KA_WG, KA_WU, KA_WD, KA_OUT, KA_DBG, KA_WS = [8*i for i in range(10)]
ONES = 0x3F803F80
PROF = False
PROFDBG = False
STAMP = 's_memrealtime'
SC1 = " sc1"
LDS_TOTAL = 163840
NONCE_LDS = 163832
OUTSC = ' sc0 sc1'
SPF = 0
SPF2 = None
EXTRAB = 0
P2MAP = 'rm'
P3MAP = 'p3b'
P4MAP = 'rm5'
P4ROT = (4, 17, 2)
P3ROT = (1, 9, 2)
P2ROT = (2, 13, 2)
P1FROT = 'latin2'
APF = False
DRY = False
PRIO = ''
GATE = False
GATE4 = (6, 3)
OSC = ' sc1'
FUSE = True
ALIGN = 6
TWOSTEP = True
EXP = set()
NOXCD = False

def f2u(x):
    return struct.unpack("<I", struct.pack("<f", x))[0]

class Asm:
    def __init__(self):
        self.L = []
        self.uid = 0
    def __call__(self, s):
        for line in s.split("\n"):
            line = line.strip()
            if line:
                self.L.append("  " + line)
    def label(self, n):
        self.L.append(n + ":")
    def raw(self, s):
        self.L.append(s)
    def new(self, base):
        self.uid += 1
        return f"L{base}_{self.uid}"
    def text(self):
        return "\n".join(self.L) + "\n"

SRD_A, SRD_B0, SRD_B1, SRD_OUT, SRD_AUX, SRD_ST = 8, 12, 16, 20, 24, 28
S_RT, S_CT, S_R0, S_C0, S_WAVE, S_SLOT, S_CNT, S_T0, S_T1, S_T2 = 32, 33, 34, 35, 36, 37, 38, 39, 40, 41
S_AOFF, S_BOFF = 42, 43
S_PTR = 44
S_MASK = 64
S_I, S_J, S_REND, S_K = 66, 67, 68, 69
S_STAMP = 70
S_NONCE = 78
S_FIDX, S_LW, S_VALID, S_KB = 85, 86, 87, 92
SRD_FLAG = 88
S_SLOTB, S_T3, S_T4, S_W = 93, 94, 95, 96
S_P0 = 97
S_N1, S_N2 = 6, 7
S_DRY = 3

def ptr(k): return S_PTR + k // 4

PH_IDX = {'p1': 0, 'att': 1, 'p2': 2, 'p3': 3, 'p4': 4}

def stamp(a, i):
    if i >= 4:
        if PROF: a(f'{STAMP} s[{98+2*(i-4)}:{99+2*(i-4)}]')
        return
    if PROF or PROFDBG or SPIN:
        a(f'{STAMP} s[{S_STAMP+2*i}:{S_STAMP+2*i+1}]')

SPIN = None
def spin_capture(a, ph, role):
    if not SPIN or SPIN[0] != ph or role != 'c': return
    a("s_waitcnt lgkmcnt(0)")
    A_ = "s98" if SPIN[1] < 0 else f"s{S_STAMP+2*SPIN[1]}"
    a(f"s_sub_u32 s100, s{S_STAMP+2*SPIN[2]}, {A_}")
def spin_end(a):
    if not SPIN: return
    sk = a.new("spin"); lp = a.new("spinl")
    a("s_cmp_eq_u32 s2, 9")
    a(f"s_cbranch_scc0 {sk}")
    a(f"s_cmp_eq_u32 s{S_WAVE}, 0")
    a(f"s_cbranch_scc0 {sk}")
    a("s_mul_i32 s100, s100, 20")
    a("s_memrealtime s[4:5]")
    a("s_waitcnt lgkmcnt(0)")
    a("s_add_u32 s100, s100, s4")
    a.label(lp)
    a("s_memrealtime s[4:5]")
    a("s_waitcnt lgkmcnt(0)")
    a("s_sub_u32 s6, s4, s100")
    a("s_cmp_lt_i32 s6, 0")
    a(f"s_cbranch_scc1 {lp}")
    a.label(sk)

def prof_store(a, ph, role):
    if not (PROF or PROFDBG): return
    skip = a.new("pskip")
    a(f"s_cmp_eq_u32 s{S_WAVE}, {0 if role == 'c' else 4}")
    a(f"s_cbranch_scc0 {skip}")
    a('s_waitcnt lgkmcnt(0)')
    if PROF:
        a(f's_add_u32 s80, s{ptr(KA_WS)}, {hex(WS_PROF + PH_IDX[ph]*0x20000)}')
        a(f's_addc_u32 s81, s{ptr(KA_WS)+1}, 0')
        a('s_and_b32 s81, s81, 0xffff')
        a('s_mov_b32 s82, 0x20000')
        a('s_mov_b32 s83, 0x20000')
        a('s_lshl_b32 s84, s2, 3')
        a(f's_add_u32 s84, s84, s{S_WAVE}')
        a('s_lshl_b32 s84, s84, 6')
        for i in range(8): a(f'v_mov_b32 v{128+i}, s{S_STAMP+i}')
        for i in range(4): a(f'v_mov_b32 v{136+i}, s{98+i}')
        a('v_mov_b32 v148, s84')
        a('s_mov_b64 exec, 1')
        a('buffer_store_dwordx4 v[128:131], v148, s[80:83], 0 offen')
        a('buffer_store_dwordx4 v[132:135], v148, s[80:83], 0 offen offset:16')
        a('buffer_store_dwordx4 v[136:139], v148, s[80:83], 0 offen offset:32')
        a('s_mov_b64 exec, -1')
    if PROFDBG and role == 'c':
        sk2 = a.new("pskip")
        a(f"s_cmp_eq_u32 s2, {PROFDBG_WG}")
        a(f"s_cbranch_scc0 {sk2}")
        a(f's_mov_b32 s80, s{ptr(KA_DBG)}')
        a(f's_and_b32 s81, s{ptr(KA_DBG)+1}, 0xffff')
        a('s_mov_b32 s82, 0x100')
        a('s_mov_b32 s83, 0x20000')
        sel = DBG_SEL[ph]
        for j, (i, slot) in enumerate(sel):
            a(f's_sub_u32 s84, s{S_STAMP+2*i}, s{S_P0}')
            a(f'v_mov_b32 v140, s84')
            a(f'v_mov_b32 v141, {4*slot}')
            a('s_mov_b64 exec, 1')
            a('buffer_store_dword v140, v141, s[80:83], 0 offen')
            a('s_mov_b64 exec, -1')
        a.label(sk2)
    a.label(skip)

PROFDBG_WG = 9
DBG_SEL = {'p1': [(1, 2), (2, 3), (3, 4)], 'att': [(0, 5), (1, 6), (3, 7)], 'p2': [(0, 8), (2, 9)], 'p3': [(0, 10), (1, 11), (2, 12)], 'p4': [(0, 13), (2, 14), (3, 15)]}

def set_exec(a, mask):
    if mask == (1 << 64) - 1:
        a("s_mov_b64 exec, -1")
    else:
        a(f"s_mov_b32 exec_lo, {hex(mask & 0xffffffff)}")
        a(f"s_mov_b32 exec_hi, {hex(mask >> 32)}")

def dbar(a, comment=""):
    if not DRY:
        a(f"s_barrier      ; {comment}"); return
    l = a.new("dbar")
    a(f"s_cmp_eq_u32 s{S_DRY}, 1")
    a(f"s_cbranch_scc1 {l}")
    a(f"s_barrier      ; {comment}")
    a.label(l)

def mask_exec(a, mask):
    if not DRY:
        set_exec(a, mask); return
    a("s_mov_b64 s[4:5], exec")
    a(f"s_and_b32 exec_lo, exec_lo, {hex(mask & 0xffffffff)}")
    a(f"s_and_b32 exec_hi, exec_hi, {hex(mask >> 32)}")

def unmask_exec(a):
    a("s_mov_b64 exec, s[4:5]" if DRY else "s_mov_b64 exec, -1")

def dry_call(a, wave, target, ret):
    if not DRY: return
    sk = a.new("dry")
    a(f"s_cmp_eq_u32 s{S_WAVE}, {wave}")
    a(f"s_cbranch_scc0 {sk}")
    a(f"s_mov_b32 s{S_DRY}, 1")
    a("s_mov_b64 exec, 0")
    a(f"s_branch {target}")
    a.label(ret)
    a("s_mov_b64 exec, -1")
    a(f"s_mov_b32 s{S_DRY}, 0")
    a.label(sk)

def dry_exit(a, ret):
    if DRY:
        a(f"s_cmp_eq_u32 s{S_DRY}, 1")
        a(f"s_cbranch_scc1 {ret}")

def srd(a, s, p, off, nbytes):
    if off:
        a(f"s_add_u32 s{s}, s{p}, {hex(off)}")
        a(f"s_addc_u32 s{s+1}, s{p+1}, 0")
    else:
        a(f"s_mov_b32 s{s}, s{p}")
        a(f"s_mov_b32 s{s+1}, s{p+1}")
    a(f"s_and_b32 s{s+1}, s{s+1}, 0xffff")
    a(f"s_mov_b32 s{s+2}, {hex(nbytes)}")
    a(f"s_mov_b32 s{s+3}, 0x20000")

def divc(a, dst, src, d, rng=300):
    m = (65536 + d - 1) // d
    for x in range(0, rng):
        assert (x * m) >> 16 == x // d, (x, d)
    a(f"s_mul_i32 s{dst}, s{src}, {m}")
    a(f"s_lshr_b32 s{dst}, s{dst}, 16")

def magic(d, N):
    for sh in range(8, 24):
        m = ((1 << sh) + d - 1) // d
        if m >= (1 << 24) or m * (N - 1) >= (1 << 32): continue
        if all((x * m) >> sh == x // d for x in range(N)): return m, sh
    raise Exception("no magic")

def sdiv(a, dst, src, d, N):
    m, sh = magic(d, N)
    a(f"s_mul_i32 s{dst}, s{src}, {m}")
    a(f"s_lshr_b32 s{dst}, s{dst}, {sh}")

def vdiv(a, dst, src, d, N):
    m, sh = magic(d, N)
    a(f"v_mul_u32_u24 v{dst}, {m}, v{src}")
    a(f"v_lshrrev_b32 v{dst}, {sh}, v{dst}")

def tile_map(a, NT, kind):
    if NOXCD:
        a(f"s_mov_b32 s{S_T0}, s2")
    else:
        a(f"s_and_b32 s{S_T0}, s2, 7")
        a(f"s_lshr_b32 s{S_T1}, s2, 3")
        a(f"s_lshl_b32 s{S_T0}, s{S_T0}, 5")
        a(f"s_add_u32 s{S_T0}, s{S_T0}, s{S_T1}   ; t")
    a(f"s_cmp_lt_u32 s{S_T0}, {NT}")
    a(f"s_cselect_b32 s{S_VALID}, 1, 0")
    if kind == "p1":
        divc(a, S_T1, S_T0, 90)
        a(f"s_mul_i32 s{S_T2}, s{S_T1}, 90")
        a(f"s_sub_u32 s{S_T2}, s{S_T0}, s{S_T2}")
        divc(a, S_CT, S_T2, 6)
        divc(a, S_RT, S_T2, 5)
        a(f"s_cmp_eq_u32 s{S_T1}, 2")
        a(f"s_cselect_b32 s{S_CT}, s{S_RT}, s{S_CT}")
        a(f"s_cselect_b32 s{S_RT}, 5, 6")
        a(f"s_mul_i32 s{S_RT}, s{S_RT}, s{S_CT}")
        a(f"s_sub_u32 s{S_RT}, s{S_T2}, s{S_RT}")
        a(f"s_mul_i32 s{S_T1}, s{S_T1}, 6")
        a(f"s_add_u32 s{S_RT}, s{S_RT}, s{S_T1}")
    elif kind == "p3":
        divc(a, S_T1, S_T0, 81)
        a(f"s_mul_i32 s{S_T2}, s{S_T1}, 81")
        a(f"s_sub_u32 s{S_T2}, s{S_T0}, s{S_T2}")
        divc(a, S_CT, S_T2, 3)
        a(f"s_mul_i32 s{S_RT}, s{S_CT}, 3")
        a(f"s_sub_u32 s{S_RT}, s{S_T2}, s{S_RT}")
        a(f"s_mul_i32 s{S_T1}, s{S_T1}, 3")
        a(f"s_add_u32 s{S_RT}, s{S_RT}, s{S_T1}")
    elif kind == "p1f":
        a(f"s_lshr_b32 s{S_T1}, s{S_T0}, 6")
        a(f"s_lshl_b32 s{S_RT}, s{S_T1}, 3")
        a(f"s_bfe_u32 s{S_T2}, s{S_T0}, {2 | (3 << 16)}")
        a(f"s_add_u32 s{S_RT}, s{S_RT}, s{S_T2}")
        a(f"s_bfe_u32 s{S_T1}, s{S_T0}, {5 | (1 << 16)}")
        a(f"s_lshl_b32 s{S_T1}, s{S_T1}, 2")
        a(f"s_and_b32 s{S_CT}, s{S_T0}, 3")
        a(f"s_add_u32 s{S_CT}, s{S_CT}, s{S_T1}")
    elif kind == "p3b":
        a(f"s_cmp_ge_u32 s{S_T0}, 108")
        a(f"s_cselect_b32 s{S_T1}, 108, 0")
        a(f"s_sub_u32 s{S_T2}, s{S_T0}, s{S_T1}")
        divc(a, S_CT, S_T2, 4)
        divc(a, S_RT, S_T2, 5)
        a(f"s_cmp_ge_u32 s{S_T0}, 108")
        a(f"s_cselect_b32 s{S_CT}, s{S_RT}, s{S_CT}")
        a(f"s_cselect_b32 s{S_RT}, 5, 4")
        a(f"s_mul_i32 s{S_RT}, s{S_RT}, s{S_CT}")
        a(f"s_sub_u32 s{S_RT}, s{S_T2}, s{S_RT}")
        a(f"s_cmp_ge_u32 s{S_T0}, 108")
        a(f"s_cselect_b32 s{S_T1}, 4, 0")
        a(f"s_add_u32 s{S_RT}, s{S_RT}, s{S_T1}")
    elif kind == "rm5":
        divc(a, S_T1, S_T0, 125)
        a(f"s_mul_i32 s{S_T2}, s{S_T1}, 125")
        a(f"s_sub_u32 s{S_T2}, s{S_T0}, s{S_T2}")
        divc(a, S_RT, S_T2, 5)
        a(f"s_mul_i32 s{S_CT}, s{S_RT}, 5")
        a(f"s_sub_u32 s{S_CT}, s{S_T2}, s{S_CT}")
        a(f"s_mul_i32 s{S_T1}, s{S_T1}, 5")
        a(f"s_add_u32 s{S_CT}, s{S_CT}, s{S_T1}")
    elif kind == "att":
        a(f"s_lshr_b32 s{S_RT}, s{S_T0}, 1")
        a(f"s_and_b32 s{S_CT}, s{S_T0}, 1")
    else:
        divc(a, S_RT, S_T0, 10)
        a(f"s_mul_i32 s{S_CT}, s{S_RT}, 10")
        a(f"s_sub_u32 s{S_CT}, s{S_T0}, s{S_CT}")

def publish(a):
    skip = a.new("pub")
    a(f"s_cmp_eq_u32 s{S_WAVE}, 0")
    a(f"s_cbranch_scc0 {skip}")
    a(f"s_cmp_eq_u32 s{S_FIDX}, -1")
    a(f"s_cbranch_scc1 {skip}")
    a(f"v_mov_b32 v140, s{S_NONCE}")
    a(f"v_mov_b32 v141, s{S_NONCE+1}")
    a(f"v_mov_b32 v142, s{S_FIDX}")
    a("s_mov_b64 exec, 1")
    a(f"buffer_store_dwordx2 v[140:141], v142, s[{SRD_FLAG}:{SRD_FLAG+3}], 0 offen{SC1}")
    a("s_mov_b64 exec, -1")
    a.label(skip)

def poll_core(a, sv=80):
    loop = a.new("poll"); done = a.new("polldone")
    a(f"s_and_saveexec_b64 s[{sv}:{sv+1}], vcc")
    a(f"s_mov_b32 s{S_CNT}, 0x40000")
    a.label(loop)
    a(f"buffer_load_dwordx2 v[142:143], v140, s[{SRD_FLAG}:{SRD_FLAG+3}], 0 offen{SC1}")
    a("s_waitcnt vmcnt(0)")
    a(f"v_cmp_ne_u64 vcc, s[{S_NONCE}:{S_NONCE+1}], v[142:143]")
    a(f"s_cbranch_vccz {done}")
    a(f"s_sub_u32 s{S_CNT}, s{S_CNT}, 1")
    a(f"s_cmp_lg_u32 s{S_CNT}, 0")
    a(f"s_cbranch_scc1 {loop}")
    a.label(done)
    a(f"s_mov_b64 exec, s[{sv}:{sv+1}]")

def poll(a, lo_sgpr, hi_sgpr, base, wave=0):
    skip = a.new("pollskip")
    a(f"s_cmp_eq_u32 s{S_WAVE}, {wave}")
    a(f"s_cbranch_scc0 {skip}")
    a(f"v_add_u32 v140, s{lo_sgpr}, v2")
    a(f"v_cmp_gt_u32 vcc, s{hi_sgpr}, v140")
    a(f"v_lshlrev_b32 v140, 7, v140")
    a(f"v_add_u32 v140, {base}, v140")
    poll_core(a, 80 if wave == 0 else 4)
    a.label(skip)

def poll_first_g(a, lo_sgpr, hi_sgpr, W, k0, S, G, base):
    skip = a.new("pollskip")
    lg = 2 if G <= 4 else 3
    a(f"s_cmp_eq_u32 s{S_WAVE}, 0")
    a(f"s_cbranch_scc0 {skip}")
    a(f"v_lshrrev_b32 v140, {lg}, v2")
    a(f"v_add_u32 v140, s{lo_sgpr}, v140")
    a(f"v_cmp_ge_u32 vcc, s{hi_sgpr}, v140")
    a(f"v_and_b32 v141, {(1 << lg) - 1}, v2")
    a(f"v_cmp_gt_u32 s[82:83], {G}, v141")
    a(f"v_add_u32 v141, s{k0}, v141")
    a(f"v_subrev_u32 v142, {S}, v141")
    a(f"s_and_b64 s[82:83], s[82:83], vcc")
    a(f"v_cmp_le_u32 vcc, {S}, v141")
    a(f"v_mul_u32_u24 v140, {W}, v140")
    a("s_nop 0")
    a("v_cndmask_b32 v141, v141, v142, vcc")
    a("v_add_u32 v140, v140, v141")
    a(f"v_lshlrev_b32 v140, 7, v140")
    a(f"v_add_u32 v140, {base}, v140")
    a("s_mov_b64 vcc, s[82:83]")
    poll_core(a)
    a.label(skip)

def poll_first(a, lo_sgpr, hi_sgpr, W, k0, k1, base):
    skip = a.new("pollskip")
    a(f"s_cmp_eq_u32 s{S_WAVE}, 0")
    a(f"s_cbranch_scc0 {skip}")
    a("v_lshrrev_b32 v140, 1, v2")
    a(f"v_add_u32 v140, s{lo_sgpr}, v140")
    a(f"v_cmp_ge_u32 vcc, s{hi_sgpr}, v140")
    a(f"v_mul_u32_u24 v140, {W}, v140")
    a("v_and_b32 v141, 1, v2")
    a(f"s_sub_u32 s{S_T2}, s{k1}, s{k0}")
    a(f"v_mul_lo_u32 v141, v141, s{S_T2}")
    a(f"v_add_u32 v141, s{k0}, v141")
    a("v_add_u32 v140, v140, v141")
    a(f"v_lshlrev_b32 v140, 7, v140")
    a(f"v_add_u32 v140, {base}, v140")
    poll_core(a)
    a.label(skip)

def first_ks(a, P):
    P.rot_start(a)
    a(f"s_add_u32 s{S_KB}, s{S_K}, 1")
    a(f"s_cmp_ge_u32 s{S_KB}, {8 if getattr(P, 'oprime', False) else P.S}")
    a(f"s_cselect_b32 s{S_KB}, 0, s{S_KB}")

def dbg_srd(a):
    a(f"s_mov_b32 s80, s{ptr(KA_DBG)}")
    a(f"s_and_b32 s81, s{ptr(KA_DBG)+1}, 0xffff")
    a("s_mov_b32 s82, 0x100")
    a("s_mov_b32 s83, 0x20000")

def nonce_publish(a):
    skip = a.new("nonce")
    a(f"s_cmp_eq_u32 s{S_WAVE}, 0")
    a(f"s_cbranch_scc0 {skip}")
    a("s_cmp_eq_u32 s2, 0")
    a(f"s_cbranch_scc0 {skip}")
    dbg_srd(a)
    a(f"s_memrealtime s[{S_NONCE}:{S_NONCE+1}]")
    a("v_mov_b32 v5, 0")
    a("s_waitcnt lgkmcnt(0)")
    a(f"s_or_b32 s{S_NONCE}, s{S_NONCE}, 1")
    a(f"v_mov_b32 v6, s{S_NONCE}")
    a(f"v_mov_b32 v7, s{S_NONCE+1}")
    a("s_mov_b64 exec, 1")
    a(f"buffer_store_dwordx2 v[6:7], v5, s[80:83], 0 offen{SC1}")
    a("s_mov_b64 exec, -1")
    a.label(skip)

def nonce_issue(a):
    skip = a.new("nonce")
    a(f"s_cmp_eq_u32 s{S_WAVE}, 0")
    a(f"s_cbranch_scc0 {skip}")
    dbg_srd(a)
    a("v_mov_b32 v158, 0")
    a("s_nop 3")
    a(f"buffer_load_dwordx2 v[156:157], v158, s[80:83], 0 offen{SC1}")
    a.label(skip)

def nonce_check(a, issued=True):
    skip = a.new("nonce"); loop = a.new("nloop"); done = a.new("ndone"); chk = a.new("nchk")
    a(f"s_cmp_eq_u32 s{S_WAVE}, 0")
    a(f"s_cbranch_scc0 {skip}")
    dbg_srd(a)
    a("v_mov_b32 v158, 0")
    a(f"s_mov_b32 s{S_CNT}, 0x40000")
    if issued: a(f"s_branch {chk}")
    a.label(loop)
    a(f"buffer_load_dwordx2 v[156:157], v158, s[80:83], 0 offen{SC1}")
    a("s_waitcnt vmcnt(0)")
    a.label(chk)
    a("v_readfirstlane_b32 s" + str(S_NONCE) + ", v156")
    a("v_readfirstlane_b32 s" + str(S_NONCE+1) + ", v157")
    a("s_nop 3")
    a(f"s_cmp_lg_u32 s{S_NONCE}, 0")
    a(f"s_cbranch_scc1 {done}")
    a(f"s_sub_u32 s{S_CNT}, s{S_CNT}, 1")
    a(f"s_cmp_lg_u32 s{S_CNT}, 0")
    a(f"s_cbranch_scc1 {loop}")
    a.label(done)
    a(f"v_mov_b32 v158, {NONCE_LDS}")
    a("s_mov_b64 exec, 1")
    a("ds_write_b64 v158, v[156:157]")
    a("s_mov_b64 exec, -1")
    a("s_waitcnt lgkmcnt(0)")
    a.label(skip)

def nonce_from_lds(a):
    skip = a.new("nlds")
    a(f"s_cmp_eq_u32 s{S_WAVE}, 7")
    a(f"s_cbranch_scc0 {skip}")
    a(f"v_mov_b32 v140, {NONCE_LDS}")
    a("ds_read_b64 v[142:143], v140")
    a("s_waitcnt lgkmcnt(0)")
    a(f"v_readfirstlane_b32 s{S_NONCE}, v142")
    a(f"v_readfirstlane_b32 s{S_NONCE+1}, v143")
    a.label(skip)

class Phase:
    has_e1 = False
    has_stage_work = False
    prefetchB = 0
    def loader_post_first(self, a): return 0
    def loader_post_b0(self, a): return 0
    def loader_stage_work_parts(self): return []
    def loader_final(self, a): pass
    def store_pre(self, a): pass
    def tail_prefetch(self, a, part): return 0
    def mid_prefetch(self, a, s): return 0
    def l2_prep(self, a): pass
    def rot_start(self, a):
        if self.key in ROTOFF:
            a(f"s_mov_b32 s{S_K}, 0"); return
        ca, cb, den = self.rot
        Sm = 8 if getattr(self, 'oprime', False) else self.S
        a(f"s_mul_i32 s{S_K}, s{S_CT}, {ca}")
        a(f"s_mul_i32 s{S_T0}, s{S_RT}, {cb}")
        a(f"s_add_u32 s{S_K}, s{S_K}, s{S_T0}")
        a(f"s_lshr_b32 s{S_K}, s{S_K}, {den}")
        m = (65536 + Sm - 1) // Sm
        for x in range(1024): assert (x*m) >> 16 == x // Sm
        a(f"s_mul_i32 s{S_T0}, s{S_K}, {m}")
        a(f"s_lshr_b32 s{S_T0}, s{S_T0}, 16")
        a(f"s_mul_i32 s{S_T0}, s{S_T0}, {Sm}")
        a(f"s_sub_u32 s{S_K}, s{S_K}, s{S_T0}")
    def tile_consts(self, a):
        a(f"s_mul_i32 s{S_R0}, s{S_RT}, {self.MV}")
        a(f"s_mul_i32 s{S_C0}, s{S_CT}, {self.NC}")
        a(f"s_add_u32 s{S_REND}, s{S_R0}, {self.MV}")
        a(f"s_min_u32 s{S_REND}, s{S_REND}, {S_TOK}")

def transition(a, first):
    pass

def loader_phase(a, P, first):
    NS, S = P.NS, P.S
    nA, nB = len(P.Ains), len(P.Bins)
    VB = 32
    customB = getattr(P, 'custom_B', False)
    a("v_lshrrev_b32 v3, 3, v2      ; r8")
    a("v_and_b32 v4, 7, v2          ; p")
    a("v_lshrrev_b32 v5, 1, v3      ; r8>>1")
    a("v_xor_b32 v6, v4, v5")
    a("v_lshlrev_b32 v6, 4, v6")
    a(f"s_lshl_b32 s{S_T0}, s{S_W}, 3")
    a(f"s_add_u32 s{S_T0}, s{S_T0}, s{S_R0}")
    a(f"v_add_u32 v7, s{S_T0}, v3")
    a(f"s_mov_b32 s{S_T0}, {P.lda}")
    a(f"v_mul_lo_u32 v7, v7, s{S_T0}")
    a("v_add_u32 v7, v7, v6")
    a(f"s_and_b32 s{S_T0}, s{S_W}, 1")
    a(f"s_lshl_b32 s{S_T0}, s{S_T0}, 6")
    a(f"v_xor_b32 v7, s{S_T0}, v7")
    for t in range(nA):
        a(f"v_add_u32 v{VB+t}, {t*32*P.lda}, v7")
    if customB: P.lazyB = True
    else: std_B_setup(a, P, VB, nA)
    if getattr(P, 'oprime', False): oprime_alt_setup(a, P)
    a(f"s_lshl_b32 s{S_LW}, s{S_W}, 10")
    P.mask_setup(a)
    P.rot_start(a)
    a(f"s_mov_b32 s{S_KB}, s{S_K}")
    a(f"s_mov_b32 s{S_N1}, 0"); a(f"s_mov_b32 s{S_N2}, 0")
    if first: ptr_wait(a)
    P.build_srds(a, 'l')
    loader_rest(a, P, first, VB, nA, nB, NS, S)

def oprime_alt_setup(a, P):
    a(f"s_and_b32 s{S_T0}, s{S_W}, 1")
    a(f"s_lshl_b32 s{S_T0}, s{S_T0}, 6")
    a(f"v_xor_b32 v10, s{S_T0}, v6")
    a("v_lshrrev_b32 v11, 5, v10             ; q = c>>1")
    a("v_lshlrev_b32 v11, 7, v11             ; q*128")
    a("v_and_b32 v12, 16, v10                ; half*16")
    a("v_add_u32 v11, v11, v12")
    a(f"s_lshl_b32 s{S_T0}, s{S_W}, 3")
    a(f"s_add_u32 s{S_T0}, s{S_T0}, s{S_R0}")
    a(f"v_add_u32 v12, s{S_T0}, v3            ; row (t=0)")
    for t in range(3):
        a(f"v_add_u32 v13, {32*t}, v12")
        a("v_lshrrev_b32 v14, 2, v13")
        a("v_lshlrev_b32 v14, 10, v14")
        a("v_and_b32 v13, 3, v13")
        a("v_lshl_add_u32 v14, v13, 5, v14")
        a("v_add_u32 v14, v14, v11")
        a(f"v_add_u32 v{44+t}, 0x200000, v14")
    a(f"s_and_b32 s{S_T0}, s{S_W}, 1")
    a(f"s_lshl_b32 s{S_T0}, s{S_T0}, 6")
    a(f"v_xor_b32 v10, s{S_T0}, v8")
    a(f"s_lshl_b32 s{S_T1}, s{S_C0}, 1")
    a(f"v_add_u32 v10, s{S_T1}, v10")
    a(f"s_lshl_b32 s{S_T0}, s{S_W}, 3")
    for t, ib in enumerate((0, 4)):
        a(f"v_add_u32 v12, s{S_T0}, v3")
        a(f"v_add_u32 v12, {8*ib}, v12          ; r")
        a("v_lshrrev_b32 v13, 4, v12")
        a("v_mul_u32_u24 v13, 80, v13")
        a("v_and_b32 v12, 15, v12")
        a("v_add_u32 v13, v13, v12")
        a("v_add_u32 v13, 64, v13")
        a("v_mul_u32_u24 v13, 1280, v13")
        a(f"v_add_u32 v{47+t}, v13, v10")

def std_B_setup(a, P, VB, nA):
    a("v_and_b32 v8, 1, v5")
    a("v_lshlrev_b32 v8, 1, v8")
    a("v_xor_b32 v8, v4, v8")
    a("v_lshlrev_b32 v8, 4, v8")
    a(f"s_lshl_b32 s{S_T0}, s{S_W}, 3")
    a(f"v_add_u32 v9, s{S_T0}, v3         ; k = 8w + r8")
    a(f"s_mov_b32 s{S_T0}, {P.ldb}")
    a(f"v_mul_lo_u32 v9, v9, s{S_T0}")
    a("v_add_u32 v9, v9, v8")
    a(f"s_and_b32 s{S_T0}, s{S_W}, 1")
    a(f"s_lshl_b32 s{S_T0}, s{S_T0}, 6")
    a(f"v_xor_b32 v9, s{S_T0}, v9")
    a(f"s_lshl_b32 s{S_T1}, s{S_C0}, 1")
    a(f"v_add_u32 v9, s{S_T1}, v9")
    for t, (pn, ib) in enumerate(P.Bins):
        a(f"v_add_u32 v{VB+nA+t}, {ib*8*P.ldb + P.panel_coloff[pn]}, v9")

def loader_rest(a, P, first, VB, nA, nB, NS, S):

    opr = getattr(P, 'oprime', False)
    Smod = 8 if opr else S
    def soff(kreg, offreg, mul):
        if opr: mul = 128 if offreg == S_AOFF else 102400
        a(f"s_mul_i32 s{offreg}, s{kreg}, {mul}")
    def adv(kreg, offreg, mul, slotreg):
        if getattr(P, 'order2', False) and P1ROT == 'latin2':
            cnt = S_N1 if kreg == S_K else S_N2
            a(f"s_add_u32 s{kreg}, s{kreg}, 2")
            a(f"s_cmp_ge_u32 s{kreg}, {S}")
            a(f"s_cselect_b32 s{S_T0}, {S}, 0")
            a(f"s_sub_u32 s{kreg}, s{kreg}, s{S_T0}")
            a(f"s_add_u32 s{cnt}, s{cnt}, 1")
            a(f"s_cmp_eq_u32 s{cnt}, 5")
            a(f"s_addc_u32 s{kreg}, s{kreg}, 0")
        else:
            a(f"s_add_u32 s{kreg}, s{kreg}, 1")
            a(f"s_cmp_ge_u32 s{kreg}, {Smod}")
            a(f"s_cselect_b32 s{kreg}, 0, s{kreg}")
        soff(kreg, offreg, mul)
        a(f"s_add_u32 s{slotreg}, s{slotreg}, {P.STAGE}")
        a(f"s_cmp_ge_u32 s{slotreg}, {P.STAGE*NS}")
        a(f"s_cselect_b32 s{slotreg}, 0, s{slotreg}")
    def slot_only(slotreg):
        a(f"s_add_u32 s{slotreg}, s{slotreg}, {P.STAGE}")
        a(f"s_cmp_ge_u32 s{slotreg}, {P.STAGE*NS}")
        a(f"s_cselect_b32 s{slotreg}, 0, s{slotreg}")
    def issueA(fill=None, pos=None):
        a(f"s_add_u32 s{S_T3}, s{S_SLOT}, s{S_LW}")
        if opr and pos is not None and pos >= 8:
            a(f"s_mov_b32 s{S_AOFF}, {(pos-8)*512}")
            issueA_body(44, None)
            slot_only(S_SLOT)
            return
        issueA_body(VB, fill)
        adv(S_K, S_AOFF, 128, S_SLOT)
    def issueA_body(vb, fill):
        for t in range(nA):
            special = P.Ains[t]
            sk = None
            if special == 'skip':
                sk = a.new("sk")
                a(f"s_cmp_eq_u64 s[{S_MASK}:{S_MASK+1}], 0")
                a(f"s_cbranch_scc1 {sk}")
            a(f"s_add_u32 m0, s{S_T3}, {t*4096}")
            if special: a(f"s_mov_b64 exec, s[{S_MASK}:{S_MASK+1}]")
            else: a("s_nop 0")
            a(f"buffer_load_dwordx4 v{vb+t}, s[{SRD_A}:{SRD_A+3}], s{S_AOFF} offen{P.scA} lds")
            if special: a("s_mov_b64 exec, -1")
            if sk: a.label(sk)
            if fill:
                for x in fill.pop(0) if fill else []: a(x)
    def issueB(fill=None, pos=None):
        if getattr(P, 'lazyB', False):
            P.lazyB = False
            P.custom_B_setup(a, VB + nA)
        a(f"s_add_u32 s{S_T4}, s{S_SLOTB}, s{S_LW}")
        if opr and pos is not None and pos >= 8:
            a(f"s_mov_b32 s{S_BOFF}, {(pos-8)*409600}")
            issueB_body(47, None)
            slot_only(S_SLOTB)
            return
        issueB_body(VB + nA, fill)
        adv(S_KB, S_BOFF, 64*P.ldb, S_SLOTB)
    def issueB_body(vb, fill):
        for t, ent in enumerate(P.Bins):
            if isinstance(ent, dict):
                sr = SRD_B0; ldsoff = ent['lds']; skp = ent.get('skip')
            else:
                pn, ib = ent
                sr = P.panel_srd[pn]; ldsoff = P.ABYTES + pn*8192 + ib*1024; skp = None
            sk = None
            if skp:
                sk = a.new("skb")
                a(f"s_cmp_ge_u32 s{S_W}, {skp}")
                a(f"s_cbranch_scc1 {sk}")
            a(f"s_add_u32 m0, s{S_T4}, {ldsoff}")
            a("s_nop 0")
            a(f"buffer_load_dwordx4 v{vb+t}, s[{sr}:{sr+3}], s{S_BOFF} offen lds")
            if sk: a.label(sk)
            if fill:
                for x in fill.pop(0) if fill else []: a(x)
    minA = nA - (1 if 'skip' in P.Ains else 0)
    minB = nB - sum(1 for e_ in P.Bins if isinstance(e_, dict) and e_.get('skip'))
    a(f"s_mov_b32 s{S_SLOT}, 0")
    a(f"s_mov_b32 s{S_SLOTB}, 0")
    soff(S_K, S_AOFF, 128)
    soff(S_KB, S_BOFF, 64*P.ldb)
    pB = P.prefetchB if not first else 0
    if pB:
        lp = a.new("bpre")
        a(f"s_mov_b32 s{S_CNT}, {pB}")
        a.label(lp)
        issueB()
        a(f"s_sub_u32 s{S_CNT}, s{S_CNT}, 1")
        a(f"s_cmp_lg_u32 s{S_CNT}, 0")
        a(f"s_cbranch_scc1 {lp}")
    nextra = 0
    if pB and getattr(P, 'extraB', 0) and EXTRAB:
        a(f"s_mov_b32 s4, s{S_KB}")
        for e_ in range(EXTRAB):
            for t in range(nB):
                a(f"buffer_load_dwordx4 v[152:155], v{VB+nA+t}, s[{SRD_B0}:{SRD_B0+3}], s{S_BOFF} offen")
                nextra += 1
            a(f"s_add_u32 s{S_KB}, s{S_KB}, 1")
            a(f"s_cmp_ge_u32 s{S_KB}, {S}")
            a(f"s_cselect_b32 s{S_KB}, 0, s{S_KB}")
            a(f"s_mul_i32 s{S_BOFF}, s{S_KB}, {64*P.ldb}")
        a(f"s_mov_b32 s{S_KB}, s4")
        a(f"s_mul_i32 s{S_BOFF}, s{S_KB}, {64*P.ldb}")
    if not first:
        a("s_barrier      ; B_dep")
    stamp(a, 0)
    L = []
    gate = getattr(P, 'gate', None) if not first else None
    for s in range(S):
        cap = (NS - 1) if s == 0 else s + NS - 2
        prev = L[-1] if L else -1
        if gate and s <= gate[1]:
            L.append(min(gate[0] - 1, cap, prev + 2))
        else:
            L.append(min(S - 1, cap, prev + (3 if gate else 2)))
    if gate:
        assert gate[0] <= pB and gate[0] - 1 <= NS - 1
        nonce_from_lds(a)
    seq = [('B', j) for j in range(pB)]
    if nextra: seq.append(('X', nextra))
    if hasattr(P, 'pre_issue'):
        npre = P.pre_issue(a)
    def cnt_after(s):
        last = max(i for i, (k, j) in enumerate(seq) if j == s and k in 'AB')
        n = 0
        for (k, j) in seq[last+1:]:
            n += minA if k == 'A' else (minB if k == 'B' else j)
        return n
    def issue_stage(j, fill=None):
        if j >= pB:
            issueA(fill, j); seq.append(('A', j))
            issueB(fill, j); seq.append(('B', j))
        else:
            issueA(fill, j); seq.append(('A', j))
    prev = -1
    s = 0
    while s < S:
        k = L[s] - prev
        e = s
        if k == 1 and L[s] >= pB and s > 0 and not getattr(P, 'unroll', False):
            while e + 1 < S and L[e+1] - L[e] == 1 and (L[e+1] - (e+1)) == (L[s] - s): e += 1
        if e - s >= 2 and s - 0 >= 0 and min(range(s, e+1)) >= 0 and s >= pB - (L[s] - s) and all(j >= pB for j in range(s, s+1)):
            cnt = e - s + 1
            lp = a.new("lmain")
            a(f"s_mov_b32 s{S_CNT}, {cnt}")
            a.label(lp)
            parts = P.loader_stage_work_parts() if P.has_stage_work else None
            issue_stage(L[s], parts)
            if parts:
                for grp in parts:
                    for x in grp: a(x)
            n = cnt_after(s)
            a(f"s_waitcnt vmcnt({n})")
            if P.has_stage_work: a("s_waitcnt lgkmcnt(0)")
            a("s_barrier")
            a(f"s_sub_u32 s{S_CNT}, s{S_CNT}, 1")
            a(f"s_cmp_lg_u32 s{S_CNT}, 0")
            a(f"s_cbranch_scc1 {lp}")
            for j in range(s+1, e+1):
                seq.append(('A', L[j])); seq.append(('B', L[j]))
            prev = L[e]; s = e + 1
            continue
        parts = P.loader_stage_work_parts() if (P.has_stage_work and s > 0) else None
        for j in range(prev+1, L[s]+1):
            issue_stage(j, parts if j == prev+1 else None)
        if s == 0:
            stamp(a, 1)
            ex = P.loader_post_first(a) or 0
            P.l2_prep(a)
            if getattr(P, 'early_pre', False): ex += P.early_setup(a)
            if ex: seq.append(('X', ex))
        if parts:
            for grp in parts:
                for x in grp: a(x)
        nw = P.mid_prefetch(a, s) or 0
        if nw: seq.append(('X', nw))
        if gate and s == gate[1]: P.deps(a, wave=7)
        a(f"s_waitcnt vmcnt({cnt_after(s)})")
        if P.has_stage_work or s == 0: a("s_waitcnt lgkmcnt(0)")
        a("s_barrier")
        if s == 0:
            ex = P.loader_post_b0(a) or 0
            if ex: seq.append(('X', ex))
        prev = L[s]; s += 1
    stamp(a, 2)
    if P.has_stage_work:
        for grp in P.loader_stage_work_parts():
            for x in grp: a(x)
    if getattr(P, 'fused', False):
        P.loader_fused_tail(a)
        return
    P.loader_final(a)
    if getattr(P, 'chunk_epi', False): P.loader_store_setup(a)
    if getattr(P, 'early_pre', False):
        a("s_barrier          ; E2")
        P.store_fast(a)
        P.set_fidx(a)
        return
    P.store_pre(a)
    ny = 0
    if P.has_e1:
        a("s_waitcnt lgkmcnt(0)")
        a("s_barrier      ; E1")
    if getattr(P, 'stream_epi', False):
        P.set_fidx(a)
        return
    if getattr(P, 'chunk_epi', False):
        P.loader_epilogue(a)
        P.set_fidx(a)
        return
    a("s_barrier          ; E2")
    store_pass(a, P, ny)

def consumer_phase(a, P, first):
    if getattr(P, 'modeS', False): return consumer_phase_S(a, P, first)
    P.consumer_setup(a)
    NW = len(P.wlist)
    XF = [0, 4*P.NXMAX]
    WF = [8*P.NXMAX, 8*P.NXMAX + 4*NW]
    wk, wt = getattr(P, 'wstep', (4096, 512))
    def reads(kk, buf):
        r = []
        for wi, (areg, off) in enumerate(P.wlist):
            base = WF[buf] + 4*wi
            r.append(f"ds_read_b64_tr_b16 a[{base}:{base+1}], v{areg} offset:{off + kk*wk}")
            r.append(f"ds_read_b64_tr_b16 a[{base+2}:{base+3}], v{areg} offset:{off + kk*wk + wt}")
        for xi, (areg0, areg1, off) in enumerate(P.xlist):
            base = XF[buf] + 4*xi
            areg = areg0 if kk == 0 else areg1
            r.append(f"ds_read_b128 a[{base}:{base+3}], v{areg} offset:{off}")
        return r
    def mfmas(buf, first_=False):
        m = []
        for (xi, wi, acc) in P.mf:
            c = "0" if first_ else f"v[{acc}:{acc+3}]"
            m.append(f"v_mfma_f32_16x16x32_bf16 v[{acc}:{acc+3}], a[{WF[buf]+4*wi}:{WF[buf]+4*wi+3}], a[{XF[buf]+4*xi}:{XF[buf]+4*xi+3}], {c}")
        return m
    block = make_block(a, P.RPM)
    cons_prologue(a, P, first)
    for x in reads(0, 0): a(x)
    a(f"s_mov_b32 s{S_CNT}, {P.S-1}")
    a("s_waitcnt lgkmcnt(0)")
    def stats4(buf):
        if not getattr(P, 'mfma_stats4', False): return
        sk = a.new("st4")
        a(f"s_and_b32 s{S_T0}, s{S_N1}, 3")
        a(f"s_add_u32 s{S_N1}, s{S_N1}, 1")
        a(f"s_cmp_eq_u32 s{S_T0}, s{S_WAVE}")
        a(f"s_cbranch_scc0 {sk}")
        for x in P.stats_mfmas([f"a[{XF[buf]+4*xi}:{XF[buf]+4*xi+3}]" for xi in range(len(P.xlist))]): a(x)
        a.label(sk)
    st4 = getattr(P, 'mfma_stats4', False)
    block(mfmas(0, True), reads(1, 1), slot_adv(P) + P.addr_update())
    stats4(0)
    lp = a.new("cloop")
    if ALIGN: a.raw(f".p2align {ALIGN}")
    a.label(lp)
    a("s_waitcnt lgkmcnt(0)")
    a("s_barrier")
    block(mfmas(1), reads(0, 0), [f"s_sub_u32 s{S_CNT}, s{S_CNT}, 1"])
    stats4(1)
    a("s_waitcnt lgkmcnt(0)")
    block(mfmas(0), reads(1, 1), slot_adv(P) + P.addr_update() + ([] if st4 else [f"s_cmp_lg_u32 s{S_CNT}, 0"]))
    stats4(0)
    if st4: a(f"s_cmp_lg_u32 s{S_CNT}, 0")
    a(f"s_cbranch_scc1 {lp}")
    a("s_waitcnt lgkmcnt(0)")
    block(mfmas(1), [])
    stats4(1)
    cons_tail(a, P, first)

def make_block(a, RPM):
    def block(m, r, fill=()):
        q = list(r); fl = list(fill)
        for i, x in enumerate(m):
            a(x)
            k = 0
            while q and k < RPM:
                a(q.pop(0)); k += 1
            if not q:
                while fl and k < 2:
                    a(fl.pop(0)); k += 1
        for x in q: a(x)
        for x in fl: a(x)
    return block

def slot_adv(P):
    return [f"s_add_u32 s{S_SLOT}, s{S_SLOT}, {P.STAGE}",
            f"s_cmp_ge_u32 s{S_SLOT}, {P.STAGE*P.NS}",
            f"s_cselect_b32 s{S_SLOT}, 0, s{S_SLOT}"]

def cons_prologue(a, P, first):
    a(f"s_mov_b32 s{S_SLOT}, 0")
    for x in P.addr_update(): a(x)
    if first: ptr_wait(a)
    P.build_srds(a, 'c')
    if not first:
        if P.key == 'p3': dry_call(a, 2, "L_epi3_start", "L_epi3_ret")
        if TWOSTEP: P.deps_first(a)
        else: P.deps(a)
        a("s_barrier      ; B_dep")
        if getattr(P, 'early_pre', False): P.early_setup(a)
        if TWOSTEP and not getattr(P, 'gate', None): P.deps(a)
    else:
        nonce_publish(a)
        if getattr(P, 'fused', False):
            dry_call(a, 1, "L_epi1_start", "L_epi1_ret")
            dry_call(a, 2, "L_att_start", "L_att_ret")
    stamp(a, 0)
    a("s_barrier          ; B_0")
    stamp(a, 1)

def cons_tail(a, P, first):
    stamp(a, 2)
    if first: nonce_issue(a)
    a("s_nop 7")
    P.epilogue(a)
    if getattr(P, 'stream_epi', False) or getattr(P, 'chunk_epi', False):
        P.set_fidx(a)
        return
    a("s_waitcnt lgkmcnt(0)")
    if getattr(P, 'early_pre', False):
        a("s_barrier          ; E2")
        P.store_fast(a)
        P.set_fidx(a)
        return
    P.store_pre(a)
    a("s_barrier          ; E2")
    store_pass(a, P)

def consumer_phase_S(a, P, first):
    P.consumer_setup(a)
    for r in range(P.ACC, P.ACC + P.NACC): a(f"v_mov_b32 v{r}, 0")
    def rng(t):
        k, i = t
        return f"{k}[{i}:{i+3}]"
    def half(t, h):
        k, i = t
        return f"{k}[{i+2*h}:{i+2*h+1}]"
    def reads(buf):
        r = []
        for kk in range(2):
            for wi, (areg, off) in enumerate(P.wlist):
                t = P.fragW(buf, kk, wi)
                r.append(f"ds_read_b64_tr_b16 {half(t,0)}, v{areg} offset:{off + kk*4096}")
                r.append(f"ds_read_b64_tr_b16 {half(t,1)}, v{areg} offset:{off + kk*4096 + 512}")
            for xi, (areg0, areg1, off) in enumerate(P.xlist):
                areg = areg0 if kk == 0 else areg1
                r.append(f"ds_read_b128 {rng(P.fragX(buf, kk, xi))}, v{areg} offset:{off}")
        return r
    def mfmas(buf):
        m = []
        for kk in range(2):
            for (xi, wi, acc) in P.mf:
                m.append(f"v_mfma_f32_16x16x32_bf16 v[{acc}:{acc+3}], {rng(P.fragW(buf, kk, wi))}, {rng(P.fragX(buf, kk, xi))}, v[{acc}:{acc+3}]")
        return m
    def stats(buf):
        if not getattr(P, 'mfma_stats', False) or 'nostats' in EXP: return
        l1 = a.new("st"); l2 = a.new("st")
        a(f"s_cmp_eq_u32 s{S_J}, 1")
        a(f"s_cbranch_scc1 {l1}")
        for x in P.stats_mfmas([rng(P.fragX(buf, 0, xi)) for xi in range(4)]): a(x)
        a(f"s_branch {l2}")
        a.label(l1)
        for x in P.stats_mfmas([rng(P.fragX(buf, 1, xi)) for xi in range(4)]): a(x)
        a.label(l2)
    block = make_block(a, P.RPM)
    cons_prologue(a, P, first)
    for x in reads(0): a(x)
    for x in slot_adv(P) + P.addr_update(): a(x)
    S = P.S
    npair = (S - 1)//2
    def step(cur, fill_extra=()):
        a("s_waitcnt lgkmcnt(0)")
        a("s_barrier")
        block(mfmas(cur), reads(1 - cur), slot_adv(P) + P.addr_update() + list(fill_extra))
        stats(cur)
    a(f"s_mov_b32 s{S_CNT}, {npair}")
    lp = a.new("cloop")
    if ALIGN: a.raw(f".p2align {ALIGN}")
    a.label(lp)
    step(0, [f"s_sub_u32 s{S_CNT}, s{S_CNT}, 1"])
    step(1)
    a(f"s_cmp_lg_u32 s{S_CNT}, 0")
    a(f"s_cbranch_scc1 {lp}")
    last = 0
    if (S - 1) % 2 == 1:
        step(0); last = 1
    a("s_waitcnt lgkmcnt(0)")
    block(mfmas(last), [])
    stats(last)
    cons_tail(a, P, first)

def ptr_wait(a):
    a("s_waitcnt lgkmcnt(0)")
    if PROFDBG: a(f"s_mov_b32 s{S_P0}, s98")
    srd(a, SRD_FLAG, ptr(KA_WS), WS_FLAG, 0x20000)

def cons_lane(a):
    a("v_and_b32 v3, 15, v2")
    a("v_lshrrev_b32 v4, 4, v2")

def x_addr_const(a, dst, rowbase_sgpr, rowbase_const=0):
    a("v_lshrrev_b32 v5, 1, v3")
    a("v_xor_b32 v5, v4, v5")
    a("v_lshlrev_b32 v5, 4, v5")
    a(f"v_lshl_add_u32 v{dst}, v3, 7, v5")
    if rowbase_sgpr is not None:
        a(f"s_lshl_b32 s{S_T0}, s{rowbase_sgpr}, 7")
        a(f"v_add_u32 v{dst}, s{S_T0}, v{dst}")
    if rowbase_const:
        a(f"v_add_u32 v{dst}, {rowbase_const*128}, v{dst}")

def w_addr_const(a, dst):
    a("v_lshrrev_b32 v5, 2, v3        ; r")
    a("v_lshl_add_u32 v6, v4, 3, v5   ; 8g+r")
    a("v_lshlrev_b32 v6, 7, v6")
    a("v_lshrrev_b32 v5, 1, v5        ; r>>1")
    a("v_and_b32 v7, 1, v4")
    a("v_lshl_or_b32 v5, v7, 1, v5    ; h")
    a("v_lshl_add_u32 v6, v5, 5, v6")
    a("v_and_b32 v5, 3, v3")
    a(f"v_lshl_add_u32 v{dst}, v5, 3, v6")

def t_write_addr(a, dst, base_const):
    a("v_lshrrev_b32 v5, 1, v4")
    a("v_and_b32 v6, 7, v3")
    a("v_xor_b32 v5, v5, v6")
    a("v_lshlrev_b32 v5, 4, v5")
    a("v_and_b32 v6, 1, v4")
    a("v_lshl_add_u32 v5, v6, 3, v5")
    a(f"v_lshl_add_u32 v{dst}, v3, 7, v5")
    a(f"v_add_u32 v{dst}, {base_const}, v{dst}")

def pad_init(a, P, row0, nzero_rows, ones_row):
    a("v_mov_b32 v12, 0"); a("v_mov_b32 v13, 0"); a("v_mov_b32 v14, 0"); a("v_mov_b32 v15, 0")
    a(f"v_mov_b32 v10, {hex(ONES)}")
    a("v_lshlrev_b32 v11, 4, v2        ; lane*16")
    for rep in range((P.NS + 3)//4):
        sk = a.new("pad")
        a(f"s_add_u32 s{S_T0}, s{S_W}, {4*rep}")
        a(f"s_cmp_ge_u32 s{S_T0}, {P.NS}")
        a(f"s_cbranch_scc1 {sk}")
        a(f"s_mul_i32 s{S_T0}, s{S_T0}, {P.STAGE}")
        nb = nzero_rows*128; off = 0
        while off < nb:
            lanes = min(64, (nb - off)//16)
            a(f"v_add_u32 v16, s{S_T0}, v11")
            if lanes < 64: set_exec(a, (1 << lanes) - 1)
            a(f"ds_write_b128 v16, v[12:15] offset:{row0*128 + off}")
            if lanes < 64: a("s_mov_b64 exec, -1")
            off += lanes*16
        if ones_row is not None:
            a(f"v_lshlrev_b32 v16, 2, v2")
            a(f"v_add_u32 v16, s{S_T0}, v16")
            set_exec(a, 0xffffffff)
            a(f"ds_write_b32 v16, v10 offset:{ones_row*128}")
            a("s_mov_b64 exec, -1")
        a.label(sk)

def store_pass(a, P, ny=0):
    a("v_lshrrev_b32 v3, 3, v2")
    a("v_and_b32 v4, 7, v2")
    a("v_xor_b32 v5, v4, v3")
    a("v_lshlrev_b32 v5, 4, v5")
    a("v_lshl_add_u32 v5, v3, 7, v5")
    a(f"s_lshl_b32 s{S_T0}, s{S_WAVE}, 10")
    a(f"v_add_u32 v5, s{S_T0}, v5")
    a(f"v_add_u32 v5, {P.TBASE}, v5")
    a(f"s_lshl_b32 s{S_T0}, s{S_WAVE}, 3")
    a(f"s_add_u32 s{S_T0}, s{S_T0}, s{S_R0}")
    a(f"v_add_u32 v6, s{S_T0}, v3")
    a(f"s_mov_b32 s{S_T1}, {P.ldo}")
    a(f"v_mul_lo_u32 v7, v6, s{S_T1}")
    a(f"s_lshl_b32 s{S_T0}, s{S_C0}, 1")
    a(f"v_lshl_add_u32 v7, v4, 4, v7")
    a(f"v_add_u32 v7, s{S_T0}, v7")
    a("v_mov_b32 v8, 0x80000000")
    P.ny = ny
    P.store_body(a)
    P.set_fidx(a)

def store_addr(a, k, dst, P, coloff=0):
    a(f"v_add_u32 v9, {64*k}, v6")
    a(f"v_cmp_gt_u32 vcc, s{S_REND}, v9")
    a(f"v_add_u32 v{dst}, {64*k*P.ldo + coloff}, v7")
    a("s_nop 0")
    a(f"v_cndmask_b32 v{dst}, v8, v{dst}, vcc")

class P1(Phase):
    key = 'p1'; kind = "p1"; NT = 255
    MV = 121; NC = 128; lda = 1280; ldb = 3840; ldo = 3840
    ABYTES = 16384; STAGE = 32768; NS = 4; S = 10
    NXMAX = 4; RPM = 1
    has_stage_work = False; has_e1 = True
    mfma_stats = True
    order2 = True
    GRAM = 96; SUMA = 112; VONES = 24
    modeS = True; NACC = 64
    def fragW(self, buf, kk, wi): return ('a', 64*buf + 16*kk + 4*wi)
    def fragX(self, buf, kk, xi):
        if buf == 0: return ('a', 32 + 16*kk + 4*xi)
        return ('v', 128 + 16*kk + 4*xi)
    scA = ""
    panel_coloff = [0, 128]; panel_srd = [SRD_B0, SRD_B0]
    LDS_ST = 131072; LDS_CS = 131072 + 2048
    TBASE = 2*32768
    rot = (5, 10, 2)
    Ains = [None, None, None, 'mask']
    Bins = [(0, 0), (0, 4), (1, 0), (1, 4)]
    def __init__(self):
        self.vXc, self.vWc = 8, 9
        self.vXa, self.vXb = 10, 11
        self.vW = [12, 13, 14, 15]
        self.xlist = [(self.vXa, self.vXb, 2048*x) for x in range(4)]
        self.wlist = [(self.vW[f], self.ABYTES) for f in range(4)]
        self.ACC = 32
        self.mf = [(x, f, self.ACC + 4*(4*x + f)) for x in range(4) for f in range(4)]
    def rot_start(self, a):
        if P1ROT == "lock":
            a(f"s_mov_b32 s{S_K}, 0"); return
        if P1ROT == "two":
            a(f"s_add_u32 s{S_K}, s{S_RT}, s{S_CT}")
            a(f"s_and_b32 s{S_K}, s{S_K}, 1")
            a(f"s_mul_i32 s{S_K}, s{S_K}, 5"); return
        if P1ROT == "ten":
            a(f"s_mul_i32 s{S_K}, s{S_RT}, 3")
            a(f"s_add_u32 s{S_K}, s{S_K}, s{S_CT}")
            divc(a, S_T0, S_K, 10)
            a(f"s_mul_i32 s{S_T0}, s{S_T0}, 10")
            a(f"s_sub_u32 s{S_K}, s{S_K}, s{S_T0}"); return
        a(f"s_add_u32 s{S_K}, s{S_RT}, s{S_CT}")
        divc(a, S_T0, S_K, 5)
        a(f"s_mul_i32 s{S_T0}, s{S_T0}, 5")
        a(f"s_sub_u32 s{S_K}, s{S_K}, s{S_T0}")
        a(f"s_lshl_b32 s{S_K}, s{S_K}, 1")
    def l2_prep(self, a): l2_setup(a, "rm", 250, 64, KA_WO, D*D*2, 1280, D)
    def mid_prefetch(self, a, s):
        if s == 8: return l2_issue(a, KA_WO, 1280, D)
    def mask_setup(self, a):
        a(f"s_cmp_eq_u32 s{S_W}, 3")
        a(f"s_cselect_b32 s{S_MASK}, 0xff, -1")
        a(f"s_cselect_b32 s{S_MASK+1}, 0, -1")
    def build_srds(self, a, role):
        if role == 'l':
            srd(a, SRD_A, ptr(KA_X), 0, S_TOK*D*2)
            srd(a, SRD_B0, ptr(KA_WQKV), 0, D*NQKV*2)
        srd(a, SRD_OUT, ptr(KA_WS), WS_QKV, S_TOK*NQKV*2)
    def set_fidx(self, a):
        a(f"s_mul_i32 s{S_FIDX}, s{S_RT}, 15")
        a(f"s_add_u32 s{S_FIDX}, s{S_FIDX}, s{S_CT}")
        a(f"s_lshl_b32 s{S_FIDX}, s{S_FIDX}, 7")
    def loader_post_first(self, a):
        pad_init(a, self, 121, 6, 127)
        return 0
    def stats_mfmas(self, xregs):
        m = []
        for x in range(4):
            xa = xregs[x]
            g = self.GRAM + 4*x; sm = self.SUMA + 4*x
            m.append(f"v_mfma_f32_16x16x32_bf16 v[{g}:{g+3}], {xa}, {xa}, v[{g}:{g+3}]")
            m.append(f"v_mfma_f32_16x16x32_bf16 v[{sm}:{sm+3}], v[{self.VONES}:{self.VONES+3}], {xa}, v[{sm}:{sm+3}]")
        return m
    def consumer_setup(self, a):
        cons_lane(a)
        a(f"s_lshr_b32 s{S_I}, s{S_WAVE}, 1")
        a(f"s_and_b32 s{S_J}, s{S_WAVE}, 1")
        a(f"s_lshl_b32 s{S_T1}, s{S_I}, 6")
        x_addr_const(a, self.vXc, S_T1)
        w_addr_const(a, self.vWc)
        a(f"s_lshl_b32 s{S_T0}, s{S_J}, 13")
        a(f"v_add_u32 v{self.vWc}, s{S_T0}, v{self.vWc}")
        for r in range(4): a(f"v_mov_b32 v{self.VONES+r}, {hex(ONES)}")
        for r in range(32): a(f"v_mov_b32 v{self.GRAM+r}, 0")
        a(f"s_lshl_b32 s{S_T0}, s{S_J}, 8       ; j*64*4")
        a(f"v_lshlrev_b32 v16, 4, v4            ; g*16 bytes")
        a(f"v_add_u32 v16, s{S_T0}, v16")
        a(f"v_add_u32 v16, {self.LDS_CS}, v16")
        t_write_addr(a, 17, self.TBASE)
        a(f"s_lshl_b32 s{S_T0}, s{S_WAVE}, 13")
        a(f"v_add_u32 v17, s{S_T0}, v17")
        for f in range(1, 4): a(f"v_xor_b32 v{17+f}, {32*f}, v17")
        a(f"s_lshl_b32 s{S_T0}, s{S_I}, 9       ; i*64*8")
        a(f"s_lshl_b32 s{S_T1}, s{S_J}, 10      ; j*128*8")
        a(f"s_add_u32 s{S_T1}, s{S_T1}, s{S_T0}")
        a(f"v_lshlrev_b32 v7, 3, v3")
        a(f"v_add_u32 v21, s{S_T1}, v7")
        a(f"v_add_u32 v21, {self.LDS_ST}, v21")
        a(f"v_add_u32 v22, s{S_T0}, v7")
        a(f"v_add_u32 v22, {self.LDS_ST}, v22")
        a("v_lshrrev_b32 v5, 3, v2             ; r8")
        a("v_and_b32 v6, 7, v2                 ; c")
        a("v_xor_b32 v7, v6, v5")
        a("v_lshlrev_b32 v7, 4, v7")
        a("v_lshl_add_u32 v23, v5, 7, v7")
        a(f"s_lshl_b32 s{S_T0}, s{S_WAVE}, 13")
        a(f"s_add_u32 s{S_T0}, s{S_T0}, {self.TBASE}")
        a(f"v_add_u32 v23, s{S_T0}, v23")
        a(f"s_lshl_b32 s{S_T0}, s{S_I}, 6")
        a(f"s_add_u32 s{S_T0}, s{S_T0}, s{S_R0}")
        a(f"v_add_u32 v28, s{S_T0}, v5")
        a(f"s_mov_b32 s{S_T1}, 3840")
        a(f"v_mul_lo_u32 v28, v28, s{S_T1}")
        a("v_lshl_add_u32 v28, v6, 4, v28")
        a(f"s_lshl_b32 s{S_T0}, s{S_J}, 6")
        a(f"s_add_u32 s{S_T0}, s{S_T0}, s{S_C0}")
        a(f"s_lshl_b32 s{S_T0}, s{S_T0}, 1")
        a(f"v_add_u32 v28, s{S_T0}, v28")
    def addr_update(self):
        r = [f"v_add_u32 v{self.vXa}, s{S_SLOT}, v{self.vXc}",
             f"v_add_u32 v{self.vW[0]}, s{S_SLOT}, v{self.vWc}",
             f"v_xor_b32 v{self.vXb}, 64, v{self.vXa}"]
        for f in range(1, len(self.vW)):
            r.append(f"v_xor_b32 v{self.vW[f]}, {32*f}, v{self.vW[0]}")
        return r
    stream_epi = True
    def epilogue(self, a):
        nocs = a.new("nocs")
        a(f"s_cmp_eq_u32 s{S_I}, 1")
        a(f"s_cbranch_scc0 {nocs}")
        set_exec(a, 0x8000800080008000)
        for f in range(4):
            acc = self.ACC + 4*(4*3 + f)
            a(f"ds_write_b128 v16, v[{acc}:{acc+3}] offset:{64*f}")
        a("s_mov_b64 exec, -1")
        a.label(nocs)
        for i_, m_ in enumerate((0x22222222, 0x44444444, 0x88888888)):
            a(f"s_mov_b32 s{80+2*i_}, {hex(m_)}"); a(f"s_mov_b32 s{81+2*i_}, {hex(m_)}")
        for x in range(4):
            g = self.GRAM + 4*x
            a(f"v_cndmask_b32 v{g+1}, v{g}, v{g+1}, s[80:81]")
            a(f"v_cndmask_b32 v{g+1}, v{g+1}, v{g+2}, s[82:83]")
            a(f"v_cndmask_b32 v{g+1}, v{g+1}, v{g+3}, s[84:85]")
            a(f"v_mov_b32 v{g}, v{self.SUMA+4*x}           ; sum")
        set_exec(a, 0xF | (0xF << 20) | (0xF << 40) | (0xF << 60))
        for x in range(4):
            g = self.GRAM + 4*x
            a(f"ds_write_b64 v21, v[{g}:{g+1}] offset:{128*x}")
        a("s_mov_b64 exec, -1")
        a("s_waitcnt lgkmcnt(0)")
        a("s_barrier      ; E1")
        CS = 128; ST = 144
        for x in range(4):
            a(f"ds_read_b64 v[{ST+2*x}:{ST+2*x+1}], v22 offset:{128*x}")
            a(f"ds_read_b64 v[{96+2*x}:{97+2*x}], v22 offset:{1024 + 128*x}")
        for f in range(4):
            a(f"ds_read_b128 v[{CS+4*f}:{CS+4*f+3}], v16 offset:{64*f}")
        a("s_waitcnt lgkmcnt(4)")
        for x in range(4):
            st = ST + 2*x
            a(f"v_pk_add_f32 v[{st}:{st+1}], v[{st}:{st+1}], v[{96+2*x}:{97+2*x}]")
            a(f"v_mul_f32 v{st}, {hex(f2u(1.0/D))}, v{st}          ; mean")
            a(f"v_mul_f32 v{st+1}, {hex(f2u(1.0/D))}, v{st+1}")
            a(f"v_fma_f32 v{st+1}, -v{st}, v{st}, v{st+1}      ; var")
            a(f"v_add_f32 v{st+1}, {hex(f2u(1e-5))}, v{st+1}")
            a(f"v_rsq_f32 v{st+1}, v{st+1}")
        a("s_waitcnt lgkmcnt(0)")
        RB = [96, 104]
        def stores(x):
            rb = RB[x & 1]
            for u in range(2):
                a(f"v_add_u32 v{29+u}, {(16*x + 8*u)*3840}, v28")
            for u in range(2):
                if x == 3 and u == 1:
                    a(f"s_cmp_eq_u32 s{S_I}, 1")
                    a("s_cselect_b32 exec_lo, 0xff, -1")
                    a("s_cselect_b32 exec_hi, 0, -1")
                a(f"buffer_store_dwordx4 v[{rb+4*u}:{rb+4*u+3}], v{29+u}, s[{SRD_OUT}:{SRD_OUT+3}], 0 offen{SC1}")
            if x == 3: a("s_mov_b64 exec, -1")
        for x in range(4):
            st = ST + 2*x
            for f in range(4):
                acc = self.ACC + 4*(4*x + f)
                for hh in (0, 2):
                    a(f"v_pk_fma_f32 v[{acc+hh}:{acc+hh+1}], v[{CS+4*f+hh}:{CS+4*f+hh+1}], v[{st}:{st+1}], v[{acc+hh}:{acc+hh+1}] op_sel_hi:[1,0,1] neg_lo:[0,1,0] neg_hi:[0,1,0]")
                for hh in (0, 2):
                    a(f"v_pk_mul_f32 v[{acc+hh}:{acc+hh+1}], v[{acc+hh}:{acc+hh+1}], v[{st}:{st+1}] op_sel:[0,1] op_sel_hi:[1,1]")
                a(f"v_cvt_pk_bf16_f32 v{acc}, v{acc}, v{acc+1}")
                a(f"v_cvt_pk_bf16_f32 v{acc+1}, v{acc+2}, v{acc+3}")
                a(f"ds_write_b64 v{17+f}, v[{acc}:{acc+1}] offset:{2048*x}")
            rb = RB[x & 1]
            if x >= 1:
                a("s_waitcnt lgkmcnt(4)")
                stores(x - 1)
            for u in range(2):
                a(f"ds_read_b128 v[{rb+4*u}:{rb+4*u+3}], v23 offset:{2048*x + 1024*u}")
        a("s_waitcnt lgkmcnt(0)")
        stores(3)


class P1F(Phase):
    key = 'p1'; kind = "p1f"; NT = 256
    MV = 64; NC = 80; lda = 1280; ldb = 3840
    ABYTES = 10240; STAGE = 40960; NS = 3; S = 10
    NXMAX = 5; RPM = 1
    has_e1 = True; fused = True; custom_B = True
    scA = ""
    Ains = [None, None, 'skip']
    Bins = [dict(lds=10240 + 4096*t) for t in range(7)] + [dict(lds=10240 + 4096*7, skip=2)]
    panel_srd = [SRD_B0]
    LDS_STP = 122880
    QT = 40960; QROW = 488
    OT = 81920; OROW = 176
    ACC = 32; GRAM = 112; SUMA = 132; VONES = 152
    mfma_stats4 = True
    def __init__(self):
        self.vXc = 8; self.vXa, self.vXb = 9, 10
        self.vWc = [11, 12, 13, 14]; self.vW = [15, 16, 17, 18]
        self.xlist = [(self.vXa, self.vXb, 2048*x) for x in range(5)]
        self.wlist = None
        self.mf = [(x, j, self.ACC + 4*(4*x + j)) for x in range(5) for j in range(4)]
    def rot_start(self, a):
        if P1FROT == 'lock':
            a(f"s_mov_b32 s{S_K}, 0"); return
        if P1FROT == 'rot4':
            a(f"s_and_b32 s{S_K}, s{S_RT}, 3")
            a(f"s_and_b32 s{S_T0}, s{S_CT}, 1")
            a(f"s_lshl_b32 s{S_T0}, s{S_T0}, 2")
            a(f"s_add_u32 s{S_K}, s{S_K}, s{S_T0}"); return
        if P1FROT == 'rot8':
            a(f"s_and_b32 s{S_K}, s{S_RT}, 7")
            a(f"s_mul_i32 s{S_K}, s{S_K}, 5")
            a(f"s_lshr_b32 s{S_K}, s{S_K}, 2")
            return
        a(f"s_add_u32 s{S_K}, s{S_RT}, s{S_CT}")
        divc(a, S_T0, S_K, 5)
        a(f"s_mul_i32 s{S_T0}, s{S_T0}, 5")
        a(f"s_sub_u32 s{S_K}, s{S_K}, s{S_T0}")
        a(f"s_lshl_b32 s{S_K}, s{S_K}, 1")
    @property
    def order2(self): return P1FROT == 'latin2'
    def pre_issue(self, a):
        if not APF: return 0
        a(f"s_and_b32 s{S_T0}, s{S_CT}, 3")
        a(f"s_mul_i32 s{S_T0}, s{S_T0}, 20")
        a(f"s_add_u32 s{S_T0}, s{S_T0}, s{S_R0}")
        a(f"s_mul_i32 s{S_T0}, s{S_T0}, 1280")
        a(f"s_lshl_b32 s{S_T1}, s{S_W}, 10")
        a(f"s_add_u32 s{S_T0}, s{S_T0}, s{S_T1}")
        a("v_lshlrev_b32 v60, 4, v2")
        a(f"v_add_u32 v60, s{S_T0}, v60")
        n = 7
        for i in range(n):
            a(f"buffer_load_dwordx4 v[152:155], v60, s[{SRD_A}:{SRD_A+3}], 0 offen")
            if i + 1 < n: a("v_add_u32 v60, 4096, v60")
        return n
    def tile_consts(self, a):
        a(f"s_lshl_b32 s{S_R0}, s{S_RT}, 6")
        a(f"s_sub_u32 s{S_R0}, s{S_R0}, 14")
        a(f"s_mul_i32 s{S_C0}, s{S_CT}, 160")
    def mask_setup(self, a):
        a(f"s_cmp_eq_u32 s{S_W}, 0")
        a(f"s_cselect_b32 s{S_MASK+1}, -1, 0xffff")
        a(f"s_cmp_lt_u32 s{S_W}, 2")
        a(f"s_cselect_b32 s{S_MASK}, -1, 0")
        a(f"s_cselect_b32 s{S_MASK+1}, s{S_MASK+1}, 0")
    def custom_B_setup(self, a, vb):
        a(f"s_lshl_b32 s{S_T0}, s{S_W}, 6")
        a(f"v_add_u32 v8, s{S_T0}, v2            ; c0")
        vdiv(a, 9, 8, 10, 256)
        a("v_mul_u32_u24 v10, 10, v9")
        a("v_sub_u32 v10, v8, v10                ; ch")
        a("v_mul_u32_u24 v11, 3840, v9")
        a("v_lshl_add_u32 v11, v10, 4, v11")
        a(f"v_add_u32 v{vb}, s{S_C0}, v11         ; voff t=0")
        for t in range(1, 8):
            a("v_add_u32 v10, 6, v10")
            a("v_add_u32 v9, 25, v9")
            a("v_cmp_le_u32 vcc, 10, v10")
            a(f"v_add_u32 v{vb+t}, {25*3840 + 96}, v{vb+t-1}")
            a("v_subrev_u32 v12, 10, v10")
            a("v_cndmask_b32 v10, v10, v12, vcc")
            a("v_addc_co_u32 v9, vcc, 0, v9, vcc") if False else None
            a(f"v_add_u32 v12, {3840 - 160}, v{vb+t}")
            a(f"v_cndmask_b32 v{vb+t}, v{vb+t}, v12, vcc")
            a("v_add_u32 v12, 1, v9")
            a("v_cndmask_b32 v9, v9, v12, vcc")
            a("v_cmp_le_u32 vcc, 64, v9")
            a(f"v_add_u32 v12, {(1280 - 64*3840) & 0xffffffff}, v{vb+t}")
            a("v_subrev_u32 v13, 64, v9")
            a(f"v_cndmask_b32 v{vb+t}, v{vb+t}, v12, vcc")
            a("v_cndmask_b32 v9, v9, v13, vcc")
    def build_srds(self, a, role):
        if role == 'l':
            srd(a, SRD_A, ptr(KA_X), 0, S_TOK*D*2)
            srd(a, SRD_B0, ptr(KA_WQKV), 0, D*NQKV*2)
        srd(a, SRD_OUT, ptr(KA_WS), WS_O, 0x280000)
    def set_fidx(self, a):
        a(f"s_lshl_b32 s{S_FIDX}, s{S_RT}, 3")
        a(f"s_add_u32 s{S_FIDX}, s{S_FIDX}, s{S_CT}")
        a(f"s_lshl_b32 s{S_FIDX}, s{S_FIDX}, 7")
        a(f"s_add_u32 s{S_FIDX}, s{S_FIDX}, 0x8000")
    def l2_prep(self, a): l2_setup(a, "rm", 250, 64, KA_WO, D*D*2, 1280, D)
    @property
    def unroll(self): return SPF != 0
    def spf_setup(self, a):
        a(f"s_lshl_b32 s{S_T0}, s2, 2")
        a(f"s_add_u32 s{S_T0}, s{S_T0}, s{S_W}        ; q")
        a(f"s_mul_i32 s{S_T1}, s{S_T0}, 2560")
        a(f"s_add_u32 s98, s{ptr(KA_X)}, s{S_T1}")
        a(f"s_addc_u32 s99, s{ptr(KA_X)+1}, 0")
        sdiv(a, S_T1, S_T0, 205, 1100)
        a(f"s_mul_i32 s{S_T2}, s{S_T1}, 205")
        a(f"s_sub_u32 s{S_T2}, s{S_T0}, s{S_T2}")
        a(f"s_min_u32 s{S_T2}, s{S_T2}, 201")
        a(f"s_mul_i32 s{S_T2}, s{S_T2}, 1216")
        a(f"s_lshl_b32 s{S_T1}, s{S_T1}, 1")
        a(f"s_add_u32 s{S_T1}, s{S_T1}, 1")
        a(f"s_mul_i32 s{S_T1}, s{S_T1}, 245760")
        a(f"s_add_u32 s{S_T1}, s{S_T1}, s{S_T2}")
        a(f"s_add_u32 s100, s{ptr(KA_WQKV)}, s{S_T1}")
        a(f"s_addc_u32 s101, s{ptr(KA_WQKV)+1}, 0")
    def spf_list(self):
        L_ = []
        for i in range(19): L_.append(("s[100:101]", 64*i))
        for k in (1, 3, 5, 7, 9):
            for r in range(2):
                for h in range(2): L_.append(("s[98:99]", r*1280 + k*128 + h*64))
        return L_
    def mid_prefetch(self, a, s):
        if SPF:
            if s == 0: self.spf_setup(a)
            L_ = self.spf_list()
            per = SPF
            if s >= 1 and s <= 4:
                for base, off in L_[per*(s-1): per*s]:
                    a(f"s_load_dword s3, {base}, {off}")
            if SPF2 and s >= 5:
                if s == 5:
                    a(f"s_lshl_b32 s{S_T0}, s2, 2")
                    a(f"s_add_u32 s{S_T0}, s{S_T0}, s{S_W}")
                    a(f"s_mul_i32 s{S_T1}, s{S_T0}, 800")
                    a(f"s_add_u32 s98, s{ptr(KA_WO)}, s{S_T1}")
                    a(f"s_addc_u32 s99, s{ptr(KA_WO)+1}, 0")
                    a(f"s_mul_i32 s{S_T1}, s{S_T0}, 2160")
                    a(f"s_add_u32 s100, s{ptr(SPF2)}, s{S_T1}")
                    a(f"s_addc_u32 s101, s{ptr(SPF2)+1}, 0")
                L2 = [("s[98:99]", 64*i) for i in range(13)] + [("s[100:101]", 64*i) for i in range(34)]
                for base, off in L2[10*(s-5): 10*(s-4)]:
                    a(f"s_load_dword s3, {base}, {off}")
        if s == 9: return l2_issue(a, KA_WO, 1280, D)
    def loader_post_first(self, a):
        pad_init(a, self, 78, 1, 79)
        self.att_setup(a)
        return 0
    def att_setup(self, a):
        QT, QROW = self.QT, self.QROW
        a("v_and_b32 v3, 3, v2             ; i")
        a("v_bfe_u32 v4, v2, 2, 2          ; head")
        a("v_lshrrev_b32 v5, 4, v2         ; grp")
        a("v_lshrrev_b32 v6, 1, v5")
        a("v_lshlrev_b32 v6, 3, v6")
        a("v_and_b32 v7, 1, v5")
        a("v_add_u32 v6, v6, v7")
        a(f"s_lshl_b32 s{S_T0}, s{S_W}, 4")
        a(f"v_add_u32 v6, s{S_T0}, v6")
        a("v_lshlrev_b32 v7, 1, v3")
        a("v_add_u32 v7, v6, v7            ; rb + 2i")
        a(f"v_mul_u32_u24 v8, {QROW}, v7")
        a("v_mul_u32_u24 v9, 40, v4")
        a("v_add_u32 v8, v8, v9")
        a(f"v_add_u32 v144, {QT + 14*QROW}, v8")
        a(f"v_add_u32 v145, {QT + 160}, v8")
        a("v_cmp_eq_u32 vcc, 3, v3")
        a(f"v_mov_b32 v10, {16*QROW}")
        a(f"v_mov_b32 v11, {14*QROW}")
        a("v_cndmask_b32 v10, v10, v11, vcc")
        a("v_add_u32 v146, v145, v10")
        a(f"v_mul_u32_u24 v12, {self.OROW}, v7")
        a("v_add_u32 v12, v12, v9")
        a(f"v_add_u32 v118, {self.OT}, v12")
        a("v_lshlrev_b32 v12, 1, v4               ; 2r")
        a("v_add_u32 v12, v6, v12")
        a(f"v_mul_u32_u24 v12, {QROW}, v12")
        a("v_mul_u32_u24 v13, 40, v3")
        a("v_add_u32 v12, v12, v13")
        a(f"v_add_u32 v147, {QT + 320}, v12")
        a("v_cmp_eq_u32 vcc, 3, v4")
        a(f"v_mov_b32 v10, {16*QROW}")
        a("s_nop 0")
        a("v_cndmask_b32 v10, v10, v11, vcc")
        a("v_add_u32 v119, v147, v10")
        a(f"v_mov_b32 v12, {hex(f2u(-1e30))}")
        a("v_mov_b32 v13, 0")
        a(f"v_add_u32 v14, s{S_R0}, v6")
        for m in range(12):
            a(f"v_sub_u32 v15, {m}, v3")
            a("v_cmp_gt_u32 vcc, 8, v15")
            a(f"v_add_u32 v16, {2*m}, v14")
            a("v_cmp_le_i32 s[4:5], 0, v16")
            a("s_nop 1")
            a("s_and_b64 vcc, vcc, s[4:5]")
            a(f"v_cndmask_b32 v{120+m}, v12, v13, vcc")
        self.store_addr_setup(a)
    def store_addr_setup(self, a, regs=(148, 149, 156, 157), tmp=3):
        lm, lt, gm, gt = regs
        t0, t1, t2 = tmp, tmp + 1, tmp + 2
        a(f"v_lshrrev_b32 v{t0}, 3, v2             ; r8")
        a(f"v_and_b32 v{t1}, 7, v2                 ; p")
        a(f"s_lshl_b32 s{S_T0}, s{S_WAVE}, 3")
        a(f"v_add_u32 v{t2}, s{S_T0}, v{t0}")
        a(f"v_mul_u32_u24 v{lm}, {self.OROW}, v{t2}")
        a(f"v_lshl_add_u32 v{lm}, v{t1}, 4, v{lm}")
        a(f"v_add_u32 v{lm}, {self.OT}, v{lm}")
        a(f"s_add_u32 s{S_T0}, s{S_R0}, 14          ; T0")
        a(f"v_add_u32 v{gm}, s{S_T0}, v{t2}")
        a(f"v_lshlrev_b32 v{gm}, 10, v{gm}")
        a(f"v_lshl_add_u32 v{gm}, v{t1}, 4, v{gm}")
        a(f"s_lshl_b32 s{S_T1}, s{S_CT}, 7          ; hg*128")
        a(f"v_add_u32 v{gm}, s{S_T1}, v{gm}")
        a(f"v_lshrrev_b32 v{t0}, 1, v{t1}")
        a(f"v_lshl_add_u32 v{t0}, v{t2}, 2, v{t0}   ; token")
        a(f"v_mul_u32_u24 v{lt}, {self.OROW}, v{t0}")
        a(f"v_and_b32 v{t0}, 1, v{t1}")
        a(f"v_lshl_add_u32 v{lt}, v{t0}, 4, v{lt}")
        a(f"v_add_u32 v{lt}, {self.OT + 128}, v{lt}")
        a(f"s_lshr_b32 s{S_T0}, s{S_T0}, 2          ; T0/4")
        a(f"v_add_u32 v{gt}, s{S_T0}, v{t2}")
        a(f"v_lshlrev_b32 v{gt}, 10, v{gt}")
        a(f"v_lshl_add_u32 v{gt}, v{t1}, 4, v{gt}")
        a(f"s_add_u32 s{S_T1}, s{S_T1}, 0x200000")
        a(f"v_add_u32 v{gt}, s{S_T1}, v{gt}")
    def o_stores(self, a):
        a(f"ds_read_b128 v[20:23], v148")
        sk = a.new("ost")
        a(f"s_cmp_ge_u32 s{S_WAVE}, 2")
        a(f"s_cbranch_scc1 {sk}")
        a(f"ds_read_b128 v[24:27], v149")
        a("s_waitcnt lgkmcnt(0)")
        a(f"buffer_store_dwordx4 v[24:27], v157, s[{SRD_OUT}:{SRD_OUT+3}], 0 offen{OSC}")
        a.label(sk)
        a("s_waitcnt lgkmcnt(0)")
        a(f"buffer_store_dwordx4 v[20:23], v156, s[{SRD_OUT}:{SRD_OUT+3}], 0 offen{OSC}")
    def loader_fused_tail(self, a):
        l2_setup(a, "p3", 243, 64, KA_WG, D*F*2, 3456, D)
        a("s_barrier      ; E1")
        l2_issue(a, KA_WG, 3456, D)
        a("s_barrier")
        a.label("L_att_start")
        if 'attprof' in EXP: stamp(a, 1)
        Q = 16; KR = 32; VR = 62; SC = 92; BIAS = 120; PB = 104
        QROW = self.QROW
        for dg in range(5):
            a(f"ds_read_b64 v[{Q+2*dg}:{Q+2*dg+1}], v144 offset:{8*dg}")
        for kb in range(3):
            for dg in range(5):
                r = KR + 2*(5*kb + dg)
                if kb < 2: a(f"ds_read_b64 v[{r}:{r+1}], v145 offset:{8*QROW*kb + 8*dg}")
                else: a(f"ds_read_b64 v[{r}:{r+1}], v146 offset:{8*dg}")
        scale = (D // 32) ** -0.5
        c1 = scale * 1.4426950408889634
        a(f"s_mov_b32 s{S_T2}, {hex(f2u(c1))}")
        a("s_waitcnt lgkmcnt(0)")
        for kb in range(3):
            for dg in range(5):
                r = VR + 2*(5*kb + dg)
                if kb < 2: a(f"ds_read_b64_tr_b16 v[{r}:{r+1}], v147 offset:{8*QROW*kb + 8*dg}")
                else: a(f"ds_read_b64_tr_b16 v[{r}:{r+1}], v119 offset:{8*dg}")
        for dg in range(5):
            for kb in range(3):
                r = KR + 2*(5*kb + dg); sc = SC + 4*kb
                c = "0" if dg == 0 else f"v[{sc}:{sc+3}]"
                a(f"v_mfma_f32_4x4x4_16b_bf16 v[{sc}:{sc+3}], v[{r}:{r+1}], v[{Q+2*dg}:{Q+2*dg+1}], {c}")
        a("s_nop 4")
        for m in range(12):
            a(f"v_fma_f32 v{SC+m}, v{SC+m}, s{S_T2}, v{BIAS+m}")
        a(f"v_max3_f32 v14, v{SC}, v{SC+1}, v{SC+2}")
        a(f"v_max3_f32 v15, v{SC+3}, v{SC+4}, v{SC+5}")
        a(f"v_max3_f32 v14, v14, v{SC+6}, v{SC+7}")
        a(f"v_max3_f32 v15, v15, v{SC+8}, v{SC+9}")
        a(f"v_max3_f32 v14, v14, v{SC+10}, v{SC+11}")
        a("v_max_f32 v14, v14, v15")
        for m in range(12):
            a(f"v_sub_f32 v{SC+m}, v{SC+m}, v14")
        for m in range(12):
            a(f"v_exp_f32 v{SC+m}, v{SC+m}")
        a(f"v_add_f32 v14, v{SC}, v{SC+1}")
        a(f"v_add_f32 v15, v{SC+2}, v{SC+3}")
        for m in range(4, 12, 2):
            a(f"v_add_f32 v14, v14, v{SC+m}")
            a(f"v_add_f32 v15, v15, v{SC+m+1}")
        a("v_add_f32 v14, v14, v15")
        a("v_rcp_f32 v14, v14")
        a("s_nop 0")
        for m in range(12):
            a(f"v_mul_f32 v{SC+m}, v{SC+m}, v14")
        for m in range(0, 12, 2):
            a(f"v_cvt_pk_bf16_f32 v{PB+m//2}, v{SC+m}, v{SC+m+1}")
        a("s_waitcnt lgkmcnt(0)")
        a("s_nop 0")
        OA = 32
        for kb in range(3):
            for dg in range(5):
                r = VR + 2*(5*kb + dg); o = OA + 4*dg
                c = "0" if kb == 0 else f"v[{o}:{o+3}]"
                a(f"v_mfma_f32_4x4x4_16b_bf16 v[{o}:{o+3}], v[{r}:{r+1}], v[{PB+2*kb}:{PB+2*kb+1}], {c}")
        a("s_nop 5")
        for dg in range(5):
            o = OA + 4*dg
            a(f"v_cvt_pk_bf16_f32 v{Q+2*dg}, v{o}, v{o+1}")
            a(f"v_cvt_pk_bf16_f32 v{Q+2*dg+1}, v{o+2}, v{o+3}")
            a(f"ds_write_b64 v118, v[{Q+2*dg}:{Q+2*dg+1}] offset:{8*dg}")
        a("s_waitcnt lgkmcnt(0)")
        if 'attprof' in EXP: stamp(a, 2)
        dry_exit(a, "L_att_ret")
        a("s_barrier")
        self.o_stores(a)
        self.set_fidx(a)
    def consumer_setup(self, a):
        cons_lane(a)
        x_addr_const(a, self.vXc, None)
        a("v_lshrrev_b32 v5, 2, v3        ; r")
        a("v_lshl_add_u32 v5, v4, 3, v5   ; 8g + r")
        a("v_mul_u32_u24 v5, 160, v5")
        a("v_and_b32 v6, 3, v3")
        a("v_lshl_add_u32 v5, v6, 3, v5")
        for j in range(4):
            a(f"s_lshl_b32 s{S_T0}, s{S_WAVE}, 2")
            a(f"s_add_u32 s{S_T0}, s{S_T0}, {j}")
            a(f"s_min_u32 s{S_T0}, s{S_T0}, 14")
            divc(a, S_T1, S_T0, 5)
            a(f"s_mul_i32 s{S_T2}, s{S_T1}, 5")
            a(f"s_sub_u32 s{S_T2}, s{S_T0}, s{S_T2}       ; f%5")
            a(f"s_lshl_b32 s{S_T2}, s{S_T2}, 5")
            a(f"s_mul_i32 s{S_T3}, s{S_T1}, 10240")
            a(f"s_add_u32 s{S_T3}, s{S_T3}, s{S_T2}")
            a(f"s_add_u32 s{S_T3}, s{S_T3}, {self.ABYTES}")
            a(f"v_add_u32 v{self.vWc[j]}, s{S_T3}, v5")
            a(f"s_mul_i32 s{S_T3}, s{S_T1}, 160")
            a(f"s_add_u32 s{S_T3}, s{S_T3}, s{S_T2}")
            a(f"s_add_u32 s{S_T3}, s{S_T3}, {self.QT}")
            a(f"v_mul_u32_u24 v6, {self.QROW}, v3")
            a("v_lshl_add_u32 v6, v4, 3, v6")
            a(f"v_add_u32 v{20+j}, s{S_T3}, v6")
        for r in range(4): a(f"v_mov_b32 v{self.VONES+r}, {hex(ONES)}")
        for r in range(40): a(f"v_mov_b32 v{self.GRAM+r}, 0")
        a("v_lshlrev_b32 v25, 3, v3")
        a(f"v_add_u32 v25, {self.LDS_STP}, v25")
        a(f"s_mul_i32 s{S_T0}, s{S_WAVE}, 640")
        a(f"v_add_u32 v24, s{S_T0}, v25")
        a(f"s_mov_b32 s{S_N1}, 0")
        self.store_addr_setup_c(a)
        NW = 4
        self.wlist = [(self.vW[j], 0) for j in range(4)]
        self.wstep = (5120, 640)
    def store_addr_setup_c(self, a):
        self.store_addr_setup(a, regs=(26, 27, 28, 29), tmp=5)
    def addr_update(self):
        r = [f"v_add_u32 v{self.vXa}, s{S_SLOT}, v{self.vXc}"]
        r += [f"v_add_u32 v{self.vW[j]}, s{S_SLOT}, v{self.vWc[j]}" for j in range(4)]
        r += [f"v_xor_b32 v{self.vXb}, 64, v{self.vXa}"]
        return r
    def stats_mfmas(self, xregs):
        m = []
        for x in range(5):
            xa = xregs[x]
            g = self.GRAM + 4*x; sm = self.SUMA + 4*x
            m.append(f"v_mfma_f32_16x16x32_bf16 v[{g}:{g+3}], {xa}, {xa}, v[{g}:{g+3}]")
            m.append(f"v_mfma_f32_16x16x32_bf16 v[{sm}:{sm+3}], v[{self.VONES}:{self.VONES+3}], {xa}, v[{sm}:{sm+3}]")
        return m
    def epilogue(self, a):
        a.label("L_epi1_start")
        for i_, m_ in enumerate((0x22222222, 0x44444444, 0x88888888)):
            a(f"s_mov_b32 s{80+2*i_}, {hex(m_)}"); a(f"s_mov_b32 s{81+2*i_}, {hex(m_)}")
        for x in range(5):
            g = self.GRAM + 4*x
            a(f"v_cndmask_b32 v{g+1}, v{g}, v{g+1}, s[80:81]")
            a(f"v_cndmask_b32 v{g+1}, v{g+1}, v{g+2}, s[82:83]")
            a(f"v_cndmask_b32 v{g+1}, v{g+1}, v{g+3}, s[84:85]")
            a(f"v_mov_b32 v{g}, v{self.SUMA+4*x}")
        mask_exec(a, 0xF | (0xF << 20) | (0xF << 40) | (0xF << 60))
        for x in range(5):
            g = self.GRAM + 4*x
            a(f"ds_write_b64 v24, v[{g}:{g+1}] offset:{128*x}")
        unmask_exec(a)
        CS = 132
        for j in range(4):
            acc = self.ACC + 4*(4*4 + j)
            for r in range(4):
                a(f"v_mov_b32_dpp v{CS+4*j+r}, v{acc+r} row_newbcast:15 row_mask:0xf bank_mask:0xf")
        a("s_waitcnt lgkmcnt(0)")
        dbar(a, "E1")
        if 'attprof' in EXP: stamp(a, 1)
        ST = 8
        TM = 112
        for x in range(5):
            for wv in range(4):
                if x < 5:
                    pass
        for x in range(5):
            base = TM + 4*x if False else None
        regs = {0: 112, 1: 120, 2: 112, 3: 120, 4: 112}
        def rd(x):
            for wv in range(4):
                r = regs[x] + 2*wv
                a(f"ds_read_b64 v[{r}:{r+1}], v25 offset:{640*wv + 128*x}")
        def fin(x):
            r = regs[x]; st = ST + 2*x
            a(f"v_pk_add_f32 v[{r}:{r+1}], v[{r}:{r+1}], v[{r+2}:{r+3}]")
            a(f"v_pk_add_f32 v[{r+4}:{r+5}], v[{r+4}:{r+5}], v[{r+6}:{r+7}]")
            a(f"v_pk_add_f32 v[{st}:{st+1}], v[{r}:{r+1}], v[{r+4}:{r+5}]")
            a(f"v_mul_f32 v{st}, {hex(f2u(1.0/D))}, v{st}")
            a(f"v_mul_f32 v{st+1}, {hex(f2u(1.0/D))}, v{st+1}")
            a(f"v_fma_f32 v{st+1}, -v{st}, v{st}, v{st+1}")
            a(f"v_add_f32 v{st+1}, {hex(f2u(1e-5))}, v{st+1}")
            a(f"v_rsq_f32 v{st+1}, v{st+1}")
        rd(0); rd(1)
        a("s_waitcnt lgkmcnt(4)"); fin(0); rd(2)
        a("s_waitcnt lgkmcnt(4)"); fin(1); rd(3)
        a("s_waitcnt lgkmcnt(4)"); fin(2); rd(4)
        a("s_waitcnt lgkmcnt(4)"); fin(3)
        a("s_waitcnt lgkmcnt(0)"); fin(4)
        a("s_nop 0")
        for x in range(5):
            st = ST + 2*x
            for j in range(4):
                acc = self.ACC + 4*(4*x + j)
                for hh in (0, 2):
                    a(f"v_pk_fma_f32 v[{acc+hh}:{acc+hh+1}], v[{CS+4*j+hh}:{CS+4*j+hh+1}], v[{st}:{st+1}], v[{acc+hh}:{acc+hh+1}] op_sel_hi:[1,0,1] neg_lo:[0,1,0] neg_hi:[0,1,0]")
                for hh in (0, 2):
                    a(f"v_pk_mul_f32 v[{acc+hh}:{acc+hh+1}], v[{acc+hh}:{acc+hh+1}], v[{st}:{st+1}] op_sel:[0,1] op_sel_hi:[1,1]")
                a(f"v_cvt_pk_bf16_f32 v{acc}, v{acc}, v{acc+1}")
                a(f"v_cvt_pk_bf16_f32 v{acc+1}, v{acc+2}, v{acc+3}")
                a(f"ds_write_b64 v{20+j}, v[{acc}:{acc+1}] offset:{16*x*self.QROW}")
        a("s_waitcnt lgkmcnt(0)")
        dry_exit(a, "L_epi1_ret")
        a("s_barrier")
        a("s_barrier")
        a(f"ds_read_b128 v[32:35], v26")
        sk = a.new("ost")
        a(f"s_cmp_ge_u32 s{S_WAVE}, 2")
        a(f"s_cbranch_scc1 {sk}")
        a(f"ds_read_b128 v[36:39], v27")
        a("s_waitcnt lgkmcnt(0)")
        a(f"buffer_store_dwordx4 v[36:39], v29, s[{SRD_OUT}:{SRD_OUT+3}], 0 offen{OSC}")
        a.label(sk)
        a("s_waitcnt lgkmcnt(0)")
        a(f"buffer_store_dwordx4 v[32:35], v28, s[{SRD_OUT}:{SRD_OUT+3}], 0 offen{OSC}")
    stream_epi = True

class P24(Phase):
    kind = "rm"; NT = 250
    MV = 82; NC = 64; ldb = 1280; ldo = 1280
    ABYTES = 12288; STAGE = 20480; NS = 7
    NXMAX = 3; RPM = 2
    modeS = True; NACC = 24
    def fragW(self, buf, kk, wi): return ('a', 40*buf + 8*kk + 4*wi)
    def fragX(self, buf, kk, xi): return ('a', 40*buf + 16 + 12*kk + 4*xi)
    scA = SC1
    panel_coloff = [0]; panel_srd = [SRD_B0]
    TBASE = 0
    Ains = [None, None, 'skip']
    Bins = [(0, 0), (0, 4)]
    prefetchB = 7
    def __init__(self, which):
        self.which = which
        if which == 2:
            self.key = 'p2'; self.lda = 1024 if FUSE else 1280; self.S = 10; self.rot = P2ROT
            self.oprime = FUSE
            self.kind = P2MAP
        else:
            self.key = 'p4'; self.lda = 3456; self.S = 27; self.rot = P4ROT; self.extraB = 1
            self.kind = P4MAP
        assert (self.S - 1) % self.NS != 0
        self.vXc, self.vWc = 8, 9
        self.vXa, self.vXb = 10, 11
        self.vW = [12, 13]
        self.xlist = [(self.vXa, self.vXb, 2048*x) for x in range(3)]
        self.wlist = [(self.vW[f], self.ABYTES) for f in range(2)]
        self.ACC = 32
        self.mf = [(x, f, self.ACC + 4*(2*x + f)) for x in range(3) for f in range(2)]
    def l2_prep(self, a):
        if self.which == 2: l2_setup(a, "p3", 243, 64, KA_WU, D*F*2, 3456, D)
    @property
    def gate(self): return GATE4 if (GATE and self.which == 4) else None
    def mid_prefetch(self, a, s):
        if self.which == 2 and s == 8: return l2_issue(a, KA_WU, 3456, D)
    def mask_setup(self, a):
        a(f"s_cmp_lt_u32 s{S_W}, 2")
        a(f"s_cselect_b32 s{S_MASK}, -1, 0xffff")
        a(f"s_cselect_b32 s{S_MASK+1}, -1, 0")
        a(f"s_cmp_eq_u32 s{S_W}, 3")
        a(f"s_cselect_b32 s{S_MASK}, 0, s{S_MASK}")
    def build_srds(self, a, role):
        if self.which == 2:
            if role == 'l':
                srd(a, SRD_A, ptr(KA_WS), WS_O, 0x280000 if FUSE else S_TOK*D*2)
                srd(a, SRD_B0, ptr(KA_WO), 0, D*D*2)
            srd(a, SRD_OUT, ptr(KA_WS), WS_H, S_TOK*D*2)
            srd(a, SRD_AUX, ptr(KA_X), 0, S_TOK*D*2)
            srd(a, SRD_ST, ptr(KA_WS), WS_ST, 250*1536)
        else:
            if role == 'l':
                srd(a, SRD_A, ptr(KA_WS), WS_HH, S_TOK*F*2)
                srd(a, SRD_B0, ptr(KA_WD), 0, F*D*2)
            srd(a, SRD_OUT, ptr(KA_OUT), 0, S_TOK*D*2)
            srd(a, SRD_AUX, ptr(KA_WS), WS_H, S_TOK*D*2)
    def dep_range(self, a):
        if self.which == 2:
            sh = 6 if FUSE else 4
            a(f"s_lshr_b32 s{S_T0}, s{S_R0}, {sh}")
            a(f"s_sub_u32 s{S_T1}, s{S_REND}, 1")
            a(f"s_lshr_b32 s{S_T1}, s{S_T1}, {sh}")
        else:
            sdiv(a, S_T0, S_R0, 228, 2100)
            a(f"s_sub_u32 s{S_T1}, s{S_REND}, 1")
            sdiv(a, S_T1, S_T1, 228, 2100)
    def deps_first(self, a):
        first_ks(a, self)
        if self.which == 2 and FUSE:
            for src, dst in ((S_K, S_T2), (S_KB, S_T3)):
                a(f"s_lshl_b32 s{dst}, 1, s{src}")
                a(f"s_sub_u32 s{S_T4}, s{src}, 8")
                a(f"s_lshl_b32 s{S_T4}, s{S_T4}, 2")
                a(f"s_lshl_b32 s{S_T4}, 15, s{S_T4}")
                a(f"s_cmp_ge_u32 s{src}, 8")
                a(f"s_cselect_b32 s{dst}, s{S_T4}, s{dst}")
            a(f"s_or_b32 s{S_T2}, s{S_T2}, s{S_T3}")
            self.dep_range(a)
            skip = a.new("pollskip")
            a(f"s_cmp_eq_u32 s{S_WAVE}, 0")
            a(f"s_cbranch_scc0 {skip}")
            a("v_and_b32 v141, 7, v2                 ; group j")
            a(f"v_lshrrev_b32 v142, v141, s{S_T2}") if False else None
            a(f"v_mov_b32 v142, s{S_T2}")
            a("v_lshrrev_b32 v142, v141, v142")
            a("v_and_b32 v142, 1, v142")
            a("v_lshrrev_b32 v140, 3, v2")
            a(f"v_add_u32 v140, s{S_T0}, v140")
            a(f"v_cmp_ge_u32 vcc, s{S_T1}, v140")
            a("v_cmp_eq_u32 s[82:83], 1, v142")
            a("v_lshl_add_u32 v140, v140, 3, v141")
            a("v_lshlrev_b32 v140, 7, v140")
            a("v_add_u32 v140, 0x8000, v140")
            a("s_and_b64 vcc, vcc, s[82:83]")
            poll_core(a)
            a.label(skip)
            return
        if self.which == 2:
            for r in (S_K, S_KB):
                a(f"s_cmp_ge_u32 s{r}, 5")
                a(f"s_cselect_b32 s{r}, 1, 0")
        self.dep_range(a)
        if self.gate: poll_first_g(a, S_T0, S_T1, 27, S_K, self.S, self.gate[0], 0x18000)
        else: poll_first(a, S_T0, S_T1, 2 if self.which == 2 else 27, S_K, S_KB, 0x8000 if self.which == 2 else 0x18000)
    def deps(self, a, wave=0):
        W = (8 if FUSE else 2) if self.which == 2 else 27
        self.dep_range(a)
        a(f"s_mul_i32 s{S_T0}, s{S_T0}, {W}")
        a(f"s_add_u32 s{S_T1}, s{S_T1}, 1")
        a(f"s_mul_i32 s{S_T1}, s{S_T1}, {W}")
        poll(a, S_T0, S_T1, 0x8000 if self.which == 2 else 0x18000, wave)
    def set_fidx(self, a):
        if self.which == 2:
            a(f"s_mul_i32 s{S_FIDX}, s{S_RT}, 10")
            a(f"s_add_u32 s{S_FIDX}, s{S_FIDX}, s{S_CT}")
            a(f"s_lshl_b32 s{S_FIDX}, s{S_FIDX}, 7")
            a(f"s_add_u32 s{S_FIDX}, s{S_FIDX}, 0x10000")
        else:
            a(f"s_mov_b32 s{S_FIDX}, -1")
    def loader_post_first(self, a):
        pad_init(a, self, 82, 14, None)
        return 0
    def consumer_setup(self, a):
        cons_lane(a)
        a(f"s_lshr_b32 s{S_I}, s{S_WAVE}, 1")
        a(f"s_and_b32 s{S_J}, s{S_WAVE}, 1")
        a(f"s_mul_i32 s{S_T1}, s{S_I}, 48")
        x_addr_const(a, self.vXc, S_T1)
        w_addr_const(a, self.vWc)
        a(f"s_lshl_b32 s{S_T0}, s{S_J}, 6      ; f0 = 2j -> xor 64j")
        a(f"v_xor_b32 v{self.vWc}, s{S_T0}, v{self.vWc}")
        t_write_addr(a, 17, self.TBASE)
        a(f"s_mul_i32 s{S_T0}, s{S_I}, {48*128}")
        a(f"v_add_u32 v17, s{S_T0}, v17")
        a(f"s_lshl_b32 s{S_T0}, s{S_J}, 6")
        a(f"v_xor_b32 v17, s{S_T0}, v17        ; f0 = 2j")
        a(f"v_xor_b32 v18, 32, v17")
    def addr_update(self):
        return P1.addr_update(self)
    def epilogue(self, a):
        for x in range(3):
            for f in range(2):
                acc = self.ACC + 4*(2*x + f)
                a(f"v_cvt_pk_bf16_f32 v{acc}, v{acc}, v{acc+1}")
                a(f"v_cvt_pk_bf16_f32 v{acc+1}, v{acc+2}, v{acc+3}")
                a(f"ds_write_b64 v{17+f}, v[{acc}:{acc+1}] offset:{2048*x}")
    RES = 100
    early_pre = True
    def early_setup(self, a):
        a("v_lshrrev_b32 v112, 3, v2")
        a("v_and_b32 v113, 7, v2")
        a("v_xor_b32 v108, v113, v112")
        a("v_lshlrev_b32 v108, 4, v108")
        a("v_lshl_add_u32 v108, v112, 7, v108")
        a(f"s_lshl_b32 s{S_T0}, s{S_WAVE}, 10")
        a(f"s_add_u32 s{S_T0}, s{S_T0}, {self.TBASE}")
        a(f"v_add_u32 v108, s{S_T0}, v108")
        a(f"s_lshl_b32 s{S_T0}, s{S_WAVE}, 3")
        a(f"s_add_u32 s{S_T0}, s{S_T0}, s{S_R0}")
        a(f"v_add_u32 v111, s{S_T0}, v112")
        a("v_mul_u32_u24 v109, 1280, v111")
        a(f"s_lshl_b32 s{S_T0}, s{S_C0}, 1")
        a("v_lshl_add_u32 v109, v113, 4, v109")
        a(f"v_add_u32 v109, s{S_T0}, v109")
        a(f"v_add_u32 v110, {64*1280}, v109")
        a("v_mov_b32 v114, 0x80000000")
        a(f"v_cmp_gt_u32 vcc, s{S_REND}, v111")
        a(f"v_add_u32 v115, 64, v111")
        a("s_nop 0")
        a("v_cndmask_b32 v109, v114, v109, vcc")
        a(f"v_cmp_gt_u32 vcc, s{S_REND}, v115")
        a("s_nop 1")
        a("v_cndmask_b32 v110, v114, v110, vcc")
        sc = SC1 if self.which == 4 else ""
        a(f"buffer_load_dwordx4 v[{self.RES}:{self.RES+3}], v109, s[{SRD_AUX}:{SRD_AUX+3}], 0 offen{sc}")
        a(f"buffer_load_dwordx4 v[{self.RES+4}:{self.RES+7}], v110, s[{SRD_AUX}:{SRD_AUX+3}], 0 offen{sc}")
        return 2
    def store_fast(self, a):
        sdone = a.new("sdone")
        sc = SC1 if self.which == 2 else OUTSC
        for k in range(2):
            a(f"ds_read_b128 v[{16+4*k}:{19+4*k}], v108 offset:{k*8192}")
        if self.which == 2:
            a(f"v_mov_b32 v26, {hex(ONES)}")
        a(f"s_waitcnt vmcnt(0) lgkmcnt(0)")
        for k in range(2):
            if k == 1:
                a(f"s_cmp_ge_u32 s{S_WAVE}, 3")
                a(f"s_cbranch_scc1 {sdone}")
            T = 16 + 4*k; R = self.RES + 4*k
            for d in range(4):
                a(f"v_lshlrev_b32 v28, 16, v{T+d}")
                a(f"v_and_b32 v29, 0xffff0000, v{T+d}")
                a(f"v_lshlrev_b32 v30, 16, v{R+d}")
                a(f"v_and_b32 v31, 0xffff0000, v{R+d}")
                a(f"v_pk_add_f32 v[28:29], v[28:29], v[30:31]")
                a(f"v_cvt_pk_bf16_f32 v{T+d}, v28, v29")
            a(f"buffer_store_dwordx4 v[{T}:{T+3}], v{109+k}, s[{SRD_OUT}:{SRD_OUT+3}], 0 offen{sc}")
            if self.which == 2:
                a("v_mov_b32 v24, 0"); a("v_mov_b32 v25, 0")
                a("s_nop 0")
                for d in range(4):
                    a(f"v_dot2_f32_bf16 v24, v{T+d}, v26, v24")
                    a(f"v_dot2_f32_bf16 v25, v{T+d}, v{T+d}, v25")
                a("s_nop 2")
                for dpp in ("quad_perm:[1,0,3,2]", "quad_perm:[2,3,0,1]", "row_half_mirror"):
                    a(f"v_add_f32_dpp v24, v24, v24 {dpp} row_mask:0xf bank_mask:0xf")
                    a(f"v_add_f32_dpp v25, v25, v25 {dpp} row_mask:0xf bank_mask:0xf")
                    a("s_nop 0")
                a(f"s_mul_i32 s{S_T0}, s{S_RT}, 10")
                a(f"s_add_u32 s{S_T0}, s{S_T0}, s{S_CT}")
                a(f"s_mul_i32 s{S_T0}, s{S_T0}, 1536")
                a(f"s_lshl_b32 s{S_T1}, s{S_WAVE}, 7")
                a(f"s_add_u32 s{S_T0}, s{S_T0}, s{S_T1}")
                a(f"v_lshrrev_b32 v9, 3, v2")
                a(f"v_lshlrev_b32 v9, 4, v9")
                a(f"v_add_u32 v9, s{S_T0}, v9")
                a("v_mov_b32 v12, v24"); a("v_mov_b32 v13, v25"); a("v_mov_b32 v14, 0"); a("v_mov_b32 v15, 0")
                set_exec(a, 0x0101010101010101)
                a(f"buffer_store_dwordx4 v[12:15], v9, s[{SRD_ST}:{SRD_ST+3}], 0 offen offset:{1024*k}{SC1}")
                a("s_mov_b64 exec, -1")
        a.label(sdone)

class P3(Phase):
    key = 'p3'; NT = 243
    @property
    def kind(self): return P3MAP
    MV = 228; NC = 64; lda = 1280; ldb = 3456; ldo = 3456
    ABYTES = 30720; STAGE = 47104; NS = 3; S = 10
    NXMAX = 8; RPM = 1
    has_e1 = True
    scA = SC1
    panel_coloff = [0, 0]; panel_srd = [SRD_B0, SRD_B1]
    LDS_ST = 47104*3; LDS_CS = 47104*3 + 1920
    TBASE = 47104
    @property
    def rot(self): return P3ROT
    Ains = [None]*7 + ['skip']
    Bins = [(0, 0), (0, 4), (1, 0), (1, 4)]
    prefetchB = 3
    def __init__(self):
        self.vXc, self.vXsc, self.vWc = 8, 9, 10
        self.vXa, self.vXb, self.vXsa, self.vXsb = 11, 12, 13, 14
        self.vW = [15, 16]
        self.xlist = [(self.vXa, self.vXb, 2048*x) for x in range(7)] + [(self.vXsa, self.vXsb, 0)]
        G, U = self.ABYTES, self.ABYTES + 8192
        self.wlist = [(self.vW[0], G), (self.vW[0], U), (self.vW[1], G), (self.vW[1], U)]
        self.ACC = 32
        self.mf = []
        acc = self.ACC
        self.accmap = {}
        for x in range(8):
            for wi in range(4):
                if x == 7 and wi >= 2: continue
                self.mf.append((x, wi, acc)); self.accmap[(x, wi)] = acc; acc += 4
        assert acc == 32 + 120
    @property
    def unroll(self): return l2_on(KA_WD)
    def l2_prep(self, a): l2_setup(a, "rm", 250, 64, KA_WD, F*D*2, 1280, F)
    def mid_prefetch(self, a, s):
        if s == 3: return l2_issue(a, KA_WD, 1280, F, 0, 9)
        if s == 6: return l2_issue(a, KA_WD, 1280, F, 9, None)
        if s == 9: return self.stats_loads(a)
    def mask_setup(self, a):
        a(f"s_cmp_eq_u32 s{S_W}, 0")
        a(f"s_cselect_b32 s{S_MASK}, -1, 0")
        a(f"s_mov_b32 s{S_MASK+1}, 0")
    def build_srds(self, a, role):
        if role == 'l':
            srd(a, SRD_A, ptr(KA_WS), WS_H, S_TOK*D*2)
            srd(a, SRD_B0, ptr(KA_WG), 0, D*F*2)
            srd(a, SRD_B1, ptr(KA_WU), 0, D*F*2)
            srd(a, SRD_ST, ptr(KA_WS), WS_ST, 250*1536)
        srd(a, SRD_OUT, ptr(KA_WS), WS_HH, S_TOK*F*2)
    def dep_range(self, a):
        sdiv(a, S_T0, S_R0, 82, 2100)
        a(f"s_sub_u32 s{S_T1}, s{S_REND}, 1")
        sdiv(a, S_T1, S_T1, 82, 2100)
    @property
    def gate(self): return (3, 2) if GATE else None
    def deps_first(self, a):
        first_ks(a, self)
        self.dep_range(a)
        if self.gate: poll_first_g(a, S_T0, S_T1, 10, S_K, self.S, self.gate[0], 0x10000)
        else: poll_first(a, S_T0, S_T1, 10, S_K, S_KB, 0x10000)
    def deps(self, a, wave=0):
        self.dep_range(a)
        a(f"s_mul_i32 s{S_T0}, s{S_T0}, 10")
        a(f"s_add_u32 s{S_T1}, s{S_T1}, 1")
        a(f"s_mul_i32 s{S_T1}, s{S_T1}, 10")
        poll(a, S_T0, S_T1, 0x10000, wave)
    def set_fidx(self, a):
        a(f"s_mul_i32 s{S_FIDX}, s{S_RT}, 27")
        a(f"s_add_u32 s{S_FIDX}, s{S_FIDX}, s{S_CT}")
        a(f"s_lshl_b32 s{S_FIDX}, s{S_FIDX}, 7")
        a(f"s_add_u32 s{S_FIDX}, s{S_FIDX}, 0x18000")
    def loader_post_first(self, a):
        pad_init(a, self, 228, 11, 239)
        return 0
    def stats_loads(self, a):
        a(f"s_lshl_b32 s{S_T0}, s{S_W}, 6")
        a(f"v_add_u32 v12, s{S_T0}, v2")
        a(f"v_add_u32 v13, s{S_R0}, v12")
        vdiv(a, 15, 13, 82, 2300)
        a("v_mul_u32_u24 v16, 82, v15")
        a("v_sub_u32 v16, v13, v16")
        a("v_mul_u32_u24 v15, 15360, v15")
        a("v_lshl_add_u32 v13, v16, 4, v15")
        a(f"v_add_u32 v15, s{S_R0}, v12")
        a(f"v_cmp_gt_u32 vcc, s{S_REND}, v15")
        a("v_mov_b32 v14, 0x80000000")
        a("s_nop 0")
        a("v_cndmask_b32 v13, v14, v13, vcc")
        for c in range(10):
            a(f"s_mov_b32 s{S_T0}, {c*1536}")
            a(f"buffer_load_dwordx2 v[{64+2*c}:{65+2*c}], v13, s[{SRD_ST}:{SRD_ST+3}], s{S_T0} offen{SC1}")
        return 10
    def loader_final(self, a):
        a("s_waitcnt vmcnt(0)")
        for c in range(1, 10):
            a(f"v_pk_add_f32 v[64:65], v[64:65], v[{64+2*c}:{65+2*c}]")
        a(f"v_mul_f32 v64, {hex(f2u(1.0/D))}, v64")
        a(f"v_mul_f32 v65, {hex(f2u(1.0/D))}, v65")
        a("v_fma_f32 v65, -v64, v64, v65")
        a(f"v_add_f32 v65, {hex(f2u(1e-5))}, v65")
        a("v_rsq_f32 v65, v65")
        a("v_lshlrev_b32 v12, 3, v12")
        a(f"v_add_u32 v12, {self.LDS_ST}, v12")
        a(f"s_cmp_eq_u32 s{S_W}, 3")
        a(f"s_cselect_b32 exec_hi, 0xffff, -1")
        a("ds_write_b64 v12, v[64:65]")
        a("s_mov_b64 exec, -1")
    def consumer_setup(self, a):
        cons_lane(a)
        a(f"s_lshr_b32 s{S_I}, s{S_WAVE}, 1")
        a(f"s_and_b32 s{S_J}, s{S_WAVE}, 1")
        a(f"s_lshl_b32 s{S_T1}, s{S_I}, 7")
        x_addr_const(a, self.vXc, S_T1)
        x_addr_const(a, self.vXsc, None, 112)
        w_addr_const(a, self.vWc)
        a(f"s_lshl_b32 s{S_T0}, s{S_J}, 1")
        a(f"s_add_u32 s{S_T0}, s{S_T0}, s{S_I}")
        a(f"s_lshl_b32 s{S_T0}, s{S_T0}, 5")
        a(f"v_xor_b32 v{self.vWc}, s{S_T0}, v{self.vWc}")
        a(f"s_lshl_b32 s{S_T0}, s{S_J}, 1")
        a(f"s_add_u32 s{S_T2}, s{S_T0}, s{S_I}     ; f0")
        a(f"s_lshl_b32 s{S_T0}, s{S_T2}, 6")
        a(f"v_lshlrev_b32 v24, 4, v4")
        a(f"v_add_u32 v24, s{S_T0}, v24")
        a(f"v_add_u32 v24, {self.LDS_CS}, v24")
        a(f"v_xor_b32 v25, 64, v24")
        t_write_addr(a, 26, self.TBASE)
        a(f"s_lshl_b32 s{S_T0}, s{S_T2}, 5")
        a(f"v_xor_b32 v26, s{S_T0}, v26")
        a(f"v_add_u32 v28, {112*128}, v26")
        a(f"s_lshl_b32 s{S_T0}, s{S_I}, 14")
        a(f"v_add_u32 v26, s{S_T0}, v26")
        a(f"v_xor_b32 v27, 32, v26")
        a(f"s_lshl_b32 s{S_T0}, s{S_I}, 10         ; 128*i*8")
        a(f"v_lshlrev_b32 v29, 3, v3")
        a(f"v_add_u32 v30, {self.LDS_ST + 112*8}, v29")
        a(f"v_add_u32 v29, s{S_T0}, v29")
        a(f"v_add_u32 v29, {self.LDS_ST}, v29")
    def addr_update(self):
        return [f"v_add_u32 v{self.vXa}, s{S_SLOT}, v{self.vXc}",
                f"v_add_u32 v{self.vW[0]}, s{S_SLOT}, v{self.vWc}",
                f"v_add_u32 v{self.vXsa}, s{S_SLOT}, v{self.vXsc}",
                f"v_xor_b32 v{self.vXb}, 64, v{self.vXa}",
                f"v_xor_b32 v{self.vW[1]}, 32, v{self.vW[0]}",
                f"v_xor_b32 v{self.vXsb}, 64, v{self.vXsa}"]
    chunk_epi = True
    def epilogue(self, a):
        nocs = a.new("nocs")
        a.label("L_epi3_start")
        assert self.LDS_CS % 128 == 0
        a(f"s_cmp_eq_u32 s{S_I}, 1")
        a(f"s_cbranch_scc0 {nocs}")
        mask_exec(a, 0x8000800080008000)
        for wi, (areg, poff) in enumerate([(24, 0), (24, 256), (25, 0), (25, 256)]):
            acc = self.accmap[(6, wi)]
            a(f"ds_write_b128 v{areg}, v[{acc}:{acc+3}] offset:{poff}")
        unmask_exec(a)
        a.label(nocs)
        a("s_waitcnt lgkmcnt(0)")
        dbar(a, "E1")
        CSR = [8, 12, 152, 156]
        for wi, (areg, poff) in enumerate([(24, 0), (24, 256), (25, 0), (25, 256)]):
            a(f"ds_read_b128 v[{CSR[wi]}:{CSR[wi]+3}], v{areg} offset:{poff}")
        STR = [16, 18, 20, 22]
        def rdst(x):
            st = STR[x & 3]
            if x < 7: a(f"ds_read_b64 v[{st}:{st+1}], v29 offset:{128*x}")
            else: a(f"ds_read_b64 v[{st}:{st+1}], v30")
        for x in range(4): rdst(x)
        a("s_waitcnt lgkmcnt(0)")
        for x in range(8):
            st = STR[x & 3]
            npair = 1 if x == 7 else 2
            if x == 4:
                a("s_waitcnt lgkmcnt(0)")
                dbar(a, "E2a")
            a(f"v_mul_f32 v{st+1}, v{st+1}, v{st+1}")
            for p in range(npair):
                g = self.accmap[(x, 2*p)]; u = self.accmap[(x, 2*p+1)]
                cg = CSR[2*p]; cu = CSR[2*p+1]
                for hh in (0, 2):
                    a(f"v_pk_fma_f32 v[{g+hh}:{g+hh+1}], v[{cg+hh}:{cg+hh+1}], v[{st}:{st+1}], v[{g+hh}:{g+hh+1}] op_sel_hi:[1,0,1] neg_lo:[0,1,0] neg_hi:[0,1,0]")
                    a(f"v_pk_fma_f32 v[{u+hh}:{u+hh+1}], v[{cu+hh}:{cu+hh+1}], v[{st}:{st+1}], v[{u+hh}:{u+hh+1}] op_sel_hi:[1,0,1] neg_lo:[0,1,0] neg_hi:[0,1,0]")
                for hh in (0, 2):
                    a(f"v_pk_mul_f32 v[{g+hh}:{g+hh+1}], v[{g+hh}:{g+hh+1}], v[{u+hh}:{u+hh+1}]")
                for hh in (0, 2):
                    a(f"v_pk_mul_f32 v[{g+hh}:{g+hh+1}], v[{g+hh}:{g+hh+1}], v[{st}:{st+1}] op_sel:[0,1] op_sel_hi:[1,1]")
                a(f"v_cvt_pk_bf16_f32 v{g}, v{g}, v{g+1}")
                a(f"v_cvt_pk_bf16_f32 v{g+1}, v{g+2}, v{g+3}")
                if x < 7: a(f"ds_write_b64 v{26+p}, v[{g}:{g+1}] offset:{2048*x}")
                else: a(f"ds_write_b64 v28, v[{g}:{g+1}]")
            if x < 4: rdst(x + 4)
        a("s_waitcnt lgkmcnt(0)")
        dry_exit(a, "L_epi3_ret")
        a("s_barrier      ; E2b")
    def loader_store_setup(self, a):
        a("v_lshrrev_b32 v3, 3, v2")
        a("v_and_b32 v4, 7, v2")
        a("v_xor_b32 v5, v4, v3")
        a("v_lshlrev_b32 v5, 4, v5")
        a("v_lshl_add_u32 v50, v3, 7, v5")
        a(f"s_lshl_b32 s{S_T0}, s{S_W}, 10")
        a(f"s_add_u32 s{S_T0}, s{S_T0}, {self.TBASE}")
        a(f"v_add_u32 v50, s{S_T0}, v50")
        a(f"s_lshl_b32 s{S_T0}, s{S_W}, 3")
        a(f"s_add_u32 s{S_T0}, s{S_T0}, s{S_R0}")
        a(f"v_add_u32 v51, s{S_T0}, v3")
        a(f"s_mov_b32 s{S_T1}, 3456")
        a(f"v_mul_lo_u32 v52, v51, s{S_T1}")
        a(f"s_lshl_b32 s{S_T0}, s{S_C0}, 1")
        a("v_lshl_add_u32 v52, v4, 4, v52")
        a(f"v_add_u32 v52, s{S_T0}, v52")
    def loader_stores(self, a, units):
        for n, u0 in enumerate(units):
            a(f"ds_read_b128 v[{56+4*n}:{59+4*n}], v50 offset:{u0*1024}")
        for n, u0 in enumerate(units):
            a(f"v_add_u32 v{53 if n & 1 else 54}, {u0*8*3456}, v52")
            special = (u0 + 3)*8 + 7 >= self.MV
            if special:
                a(f"v_add_u32 v55, {u0*8}, v51")
                a(f"s_add_u32 s{S_T0}, s{S_R0}, {self.MV}")
                a(f"v_cmp_gt_u32 vcc, s{S_T0}, v55")
                a(f"s_and_saveexec_b64 s[80:81], vcc")
            a(f"s_waitcnt lgkmcnt({len(units) - 1 - n})")
            a(f"buffer_store_dwordx4 v[{56+4*n}:{59+4*n}], v{53 if n & 1 else 54}, s[{SRD_OUT}:{SRD_OUT+3}], 0 offen{SC1}")
            if special: a("s_mov_b64 exec, s[80:81]")
    def loader_epilogue(self, a):
        a("s_barrier      ; E2a")
        self.loader_stores(a, [0, 4, 16, 20])
        a("s_barrier      ; E2b")
        self.loader_stores(a, [8, 12, 24, 28])

ROWB = 656
LQ, LK, LV, LO = 16384, 16384 + 16*ROWB, 16384 + 46*ROWB, 0
WPF = True
P1ROT = 'latin2'
ROTOFF = set()
WPF_OFF = {KA_WD}
def l2_on(kptr): return WPF and kptr not in WPF_OFF
def l2_setup(a, kind, NT, NC, kptr, nbytes, ldb, K):
    if not l2_on(kptr): return
    if kind == "p3": kind = P3MAP
    if kind == "rm" and kptr == KA_WO: kind = P2MAP
    nsh = 4 if kind == "p3b" else (6 if kind == "rm5" else 3)
    R3 = ((K + nsh - 1)//nsh + 7)//8*8
    a(f"s_mov_b32 s4, s{S_RT}"); a(f"s_mov_b32 s5, s{S_CT}")
    tile_map(a, NT, kind)
    divc(a, S_T0, S_RT, nsh)
    a(f"s_mul_i32 s{S_T0}, s{S_T0}, {nsh}")
    a(f"s_sub_u32 s{S_T0}, s{S_RT}, s{S_T0}")
    a(f"s_mul_i32 s{S_T0}, s{S_T0}, {R3}")
    a(f"s_lshl_b32 s{S_T1}, s{S_W}, 3")
    a(f"s_add_u32 s{S_T0}, s{S_T0}, s{S_T1}")
    a("v_lshrrev_b32 v150, 3, v2")
    a(f"v_add_u32 v150, s{S_T0}, v150")
    a(f"s_mov_b32 s{S_T1}, {ldb}")
    a(f"v_mul_lo_u32 v150, v150, s{S_T1}")
    a("v_and_b32 v151, 7, v2")
    a("v_lshl_add_u32 v150, v151, 4, v150")
    a(f"s_mul_i32 s{S_T1}, s{S_CT}, {NC*2}")
    a(f"v_add_u32 v150, s{S_T1}, v150")
    a(f"s_cmp_eq_u32 s{S_VALID}, 0")
    a(f"s_cselect_b32 s{S_T1}, 0x80000000, 0")
    a(f"v_or_b32 v150, s{S_T1}, v150")
    srd(a, 80, ptr(kptr), 0, nbytes)
    a(f"s_mov_b32 s{S_RT}, s4"); a(f"s_mov_b32 s{S_CT}, s5")
def l2_issue(a, kptr, ldb, K, i0=0, i1=None):
    if not l2_on(kptr): return 0
    nsh = 4 if (P3MAP == "p3b" and kptr in (KA_WG, KA_WU)) else (6 if (P2MAP == "rm5" and kptr == KA_WO) else 3)
    R3 = ((K + nsh - 1)//nsh + 7)//8*8
    n = (R3//8 + 3)//4
    if i1 is None: i1 = n
    for i in range(i0, min(i1, n)):
        a(f"buffer_load_dwordx4 v[152:155], v150, s[80:83], 0 offen")
        if i + 1 < n: a(f"v_add_u32 v150, {32*ldb}, v150")
    return min(i1, n) - i0

def att_phase(a, role):
    a(f"s_lshl_b32 s{S_R0}, s{S_RT}, 4       ; T0")
    srd(a, SRD_A, ptr(KA_WS), WS_QKV, S_TOK*NQKV*2)
    srd(a, SRD_OUT, ptr(KA_WS), WS_O, S_TOK*D*2)
    NI = 49
    nper = (NI + 7)//8
    a(f"s_mov_b32 s{S_T2}, 3840")
    a(f"s_mul_i32 s{S_T3}, s{S_CT}, 640")
    for j in range(nper):
        r = 32 + j
        a(f"s_add_u32 s{S_T0}, s{S_WAVE}, {8*j}")
        a(f"s_lshl_b32 s{S_T0}, s{S_T0}, 6")
        a(f"v_add_u32 v3, s{S_T0}, v2           ; c")
        vdiv(a, 4, 3, 41, 64*56)
        a("v_mul_u32_u24 v5, 41, v4")
        a("v_sub_u32 v5, v3, v5                  ; kap")
        a("v_cmp_le_u32 vcc, 16, v4")
        a("v_mov_b32 v8, 0x80000000")
        a("s_nop 0")
        a("v_cndmask_b32 v6, 0, 1, vcc")
        a("v_cmp_le_u32 vcc, 46, v4")
        a("s_nop 1")
        a("v_cndmask_b32 v7, 0, 1, vcc")
        a("v_add_u32 v6, v6, v7                  ; seg")
        a("v_mul_u32_u24 v7, 30, v6")
        a("v_sub_u32 v7, v4, v7")
        a(f"v_add_u32 v7, s{S_R0}, v7            ; token")
        a(f"v_mul_lo_u32 v7, v7, s{S_T2}")
        a("v_mul_u32_u24 v6, 1280, v6")
        a("v_add_u32 v7, v7, v6")
        a("v_lshl_add_u32 v7, v5, 4, v7")
        a(f"v_add_u32 v7, s{S_T3}, v7")
        a("v_cmp_gt_u32 vcc, 40, v5")
        a("s_nop 1")
        a("v_cndmask_b32 v7, v8, v7, vcc")
        a("v_cmp_gt_u32 vcc, 76, v4")
        a("s_nop 1")
        a(f"v_cndmask_b32 v{r}, v8, v7, vcc")
    if role == 'c':
        a(f"s_lshr_b32 s{S_T0}, s{S_WAVE}, 1")
        a(f"s_lshl_b32 s{S_T0}, s{S_T0}, 3")
        a(f"s_and_b32 s{S_T1}, s{S_WAVE}, 1")
        a(f"s_add_u32 s{S_I}, s{S_T0}, s{S_T1}      ; rb")
        a("v_and_b32 v3, 3, v2             ; i")
        a("v_lshrrev_b32 v4, 2, v2         ; b")
        a("v_lshlrev_b32 v5, 1, v3")
        a(f"v_add_u32 v5, s{S_I}, v5        ; rb + 2i")
        a(f"v_mul_u32_u24 v5, {ROWB}, v5")
        a("v_mul_u32_u24 v6, 40, v4")
        a("v_add_u32 v5, v5, v6")
        a(f"v_add_u32 v144, {LQ}, v5")
        a(f"v_add_u32 v145, {LK}, v5")
        a("v_cmp_eq_u32 vcc, 3, v3")
        a(f"v_mov_b32 v7, {16*ROWB}")
        a(f"v_mov_b32 v8, {14*ROWB}")
        a("v_cndmask_b32 v7, v7, v8, vcc")
        a("v_add_u32 v146, v145, v7")
        a("v_bfe_u32 v9, v2, 2, 2            ; r")
        a("v_lshlrev_b32 v10, 1, v9")
        a(f"v_add_u32 v10, s{S_I}, v10")
        a(f"v_mul_u32_u24 v10, {ROWB}, v10")
        a("v_lshrrev_b32 v11, 4, v2")
        a("v_lshl_add_u32 v11, v11, 2, v3     ; 4G + c")
        a("v_mul_u32_u24 v11, 40, v11")
        a("v_add_u32 v10, v10, v11")
        a(f"v_add_u32 v147, {LV}, v10")
        a("v_cmp_eq_u32 vcc, 3, v9")
        a(f"v_mov_b32 v7, {16*ROWB}")
        a("s_nop 0")
        a("v_cndmask_b32 v7, v7, v8, vcc")
        a("v_add_u32 v119, v147, v7")
        a(f"v_mov_b32 v12, {hex(f2u(-1e30))}")
        a("v_mov_b32 v13, 0")
        a(f"s_add_u32 s{S_T2}, s{S_R0}, s{S_I}")
        a(f"s_sub_u32 s{S_T2}, s{S_T2}, 14        ; pos(0)")
        for m in range(12):
            a(f"v_sub_u32 v14, {m}, v3            ; m - i")
            a("v_cmp_gt_u32 vcc, 8, v14")
            a(f"s_add_u32 s{S_T0}, s{S_T2}, {2*m}")
            a(f"s_cmp_ge_i32 s{S_T0}, 0")
            a("s_cselect_b64 s[80:81], -1, 0")
            a("s_and_b64 vcc, vcc, s[80:81]")
            a(f"v_cndmask_b32 v{120+m}, v12, v13, vcc")
    for j in range(2):
        a(f"s_add_u32 s{S_T0}, s{S_WAVE}, {8*j}")
        a(f"s_lshl_b32 s{S_T0}, s{S_T0}, 6")
        a(f"v_add_u32 v3, s{S_T0}, v2")
        vdiv(a, 4, 3, 40, 1024)
        a("v_mul_u32_u24 v5, 40, v4")
        a("v_sub_u32 v5, v3, v5")
        a(f"v_mul_u32_u24 v6, {ROWB}, v4")
        a(f"v_lshl_add_u32 v{148+j}, v5, 4, v6")
        a(f"v_add_u32 v4, s{S_R0}, v4")
        a("v_mul_u32_u24 v4, 1280, v4")
        a("v_lshl_add_u32 v4, v5, 4, v4")
        a(f"v_add_u32 v{156+j}, s{S_T3}, v4")
    if role == 'c':
        a(f"s_sub_u32 s{S_T0}, s{S_R0}, 14")
        a(f"s_max_i32 s{S_T0}, s{S_T0}, 0")
        sdiv(a, S_T0, S_T0, 121, 2100)
        a(f"s_add_u32 s{S_T1}, s{S_R0}, 15")
        sdiv(a, S_T1, S_T1, 121, 2100)
        skp = a.new("attpoll")
        a(f"s_cmp_eq_u32 s{S_WAVE}, 0")
        a(f"s_cbranch_scc0 {skp}")
        vdiv(a, 140, 2, 9, 64)
        a("v_mul_u32_u24 v141, 9, v140")
        a("v_sub_u32 v141, v2, v141                  ; j = l%9")
        vdiv(a, 142, 141, 3, 16)
        a("v_mul_u32_u24 v143, 3, v142")
        a("v_sub_u32 v143, v141, v143                ; j%3")
        a("v_mul_u32_u24 v142, 5, v142")
        a("v_add_u32 v142, v142, v143")
        a(f"s_lshl_b32 s{S_T2}, s{S_CT}, 1")
        a(f"v_add_u32 v142, s{S_T2}, v142            ; ct")
        a(f"v_add_u32 v140, s{S_T0}, v140            ; rt")
        a(f"v_cmp_ge_u32 vcc, s{S_T1}, v140")
        a("v_mul_u32_u24 v140, 15, v140")
        a("v_add_u32 v140, v140, v142")
        a("v_lshlrev_b32 v140, 7, v140")
        poll_core(a)
        a.label(skp)
        a("s_barrier      ; B_dep")
    else:
        l2_setup(a, "p3", 243, 64, KA_WG, D*F*2, 3456, D)
        a("s_barrier      ; B_dep")
    stamp(a, 0)
    for j in range(nper):
        sk = None
        if 8*j + 7 >= NI:
            sk = a.new("attsk")
            a(f"s_cmp_ge_u32 s{S_WAVE}, {NI - 8*j}")
            a(f"s_cbranch_scc1 {sk}")
        a(f"s_add_u32 s{S_T0}, s{S_WAVE}, {8*j}")
        a(f"s_lshl_b32 s{S_T0}, s{S_T0}, 10")
        a(f"s_add_u32 m0, s{S_T0}, {LQ}")
        a("s_nop 0")
        a(f"buffer_load_dwordx4 v{32+j}, s[{SRD_A}:{SRD_A+3}], 0 offen{SC1} lds")
        if sk: a.label(sk)
    a("s_waitcnt vmcnt(0)")
    a("s_barrier")
    stamp(a, 1)
    if role == 'l': l2_issue(a, KA_WG, 3456, D)
    if role == 'c':
        Q = 16; KR = 32; VR = 62; SC = 92; BIAS = 120; PB = 104; O = 4
        for dg in range(5):
            a(f"ds_read_b64 v[{Q+2*dg}:{Q+2*dg+1}], v144 offset:{8*dg}")
        for kb in range(3):
            for dg in range(5):
                r = KR + 2*(5*kb + dg)
                if kb < 2: a(f"ds_read_b64 v[{r}:{r+1}], v145 offset:{8*ROWB*kb + 8*dg}")
                else: a(f"ds_read_b64 v[{r}:{r+1}], v146 offset:{8*dg}")
        scale = (D // 32) ** -0.5
        c1 = scale * 1.4426950408889634
        a(f"s_mov_b32 s{S_T2}, {hex(f2u(c1))}")
        a("s_waitcnt lgkmcnt(0)")
        for kb in range(3):
            for dg in range(5):
                r = VR + 2*(5*kb + dg)
                if kb < 2: a(f"ds_read_b64_tr_b16 v[{r}:{r+1}], v147 offset:{8*ROWB*kb + 8*dg}")
                else: a(f"ds_read_b64_tr_b16 v[{r}:{r+1}], v119 offset:{8*dg}")
        for dg in range(5):
            for kb in range(3):
                r = KR + 2*(5*kb + dg); sc = SC + 4*kb
                c = "0" if dg == 0 else f"v[{sc}:{sc+3}]"
                a(f"v_mfma_f32_4x4x4_16b_bf16 v[{sc}:{sc+3}], v[{r}:{r+1}], v[{Q+2*dg}:{Q+2*dg+1}], {c}")
        a("s_nop 4")
        for m in range(12):
            a(f"v_fma_f32 v{SC+m}, v{SC+m}, s{S_T2}, v{BIAS+m}")
        a(f"v_max3_f32 v14, v{SC}, v{SC+1}, v{SC+2}")
        a(f"v_max3_f32 v15, v{SC+3}, v{SC+4}, v{SC+5}")
        a(f"v_max3_f32 v14, v14, v{SC+6}, v{SC+7}")
        a(f"v_max3_f32 v15, v15, v{SC+8}, v{SC+9}")
        a(f"v_max3_f32 v14, v14, v{SC+10}, v{SC+11}")
        a("v_max_f32 v14, v14, v15")
        for m in range(12):
            a(f"v_sub_f32 v{SC+m}, v{SC+m}, v14")
        for m in range(12):
            a(f"v_exp_f32 v{SC+m}, v{SC+m}")
        a(f"v_add_f32 v14, v{SC}, v{SC+1}")
        a(f"v_add_f32 v15, v{SC+2}, v{SC+3}")
        for m in range(4, 12, 2):
            a(f"v_add_f32 v14, v14, v{SC+m}")
            a(f"v_add_f32 v15, v15, v{SC+m+1}")
        a("v_add_f32 v14, v14, v15")
        a("v_rcp_f32 v14, v14")
        a("s_nop 0")
        for m in range(12):
            a(f"v_mul_f32 v{SC+m}, v{SC+m}, v14")
        for m in range(0, 12, 2):
            a(f"v_cvt_pk_bf16_f32 v{PB+m//2}, v{SC+m}, v{SC+m+1}")
        a("s_waitcnt lgkmcnt(0)")
        a("s_nop 0")
        OA = 32
        for kb in range(3):
            for dg in range(5):
                r = VR + 2*(5*kb + dg); o = OA + 4*dg
                c = "0" if kb == 0 else f"v[{o}:{o+3}]"
                a(f"v_mfma_f32_4x4x4_16b_bf16 v[{o}:{o+3}], v[{r}:{r+1}], v[{PB+2*kb}:{PB+2*kb+1}], {c}")
        a(f"v_subrev_u32 v144, {LQ - LO}, v144")
        a("s_nop 4")
        for dg in range(5):
            o = OA + 4*dg
            a(f"v_cvt_pk_bf16_f32 v{Q+2*dg}, v{o}, v{o+1}")
            a(f"v_cvt_pk_bf16_f32 v{Q+2*dg+1}, v{o+2}, v{o+3}")
            a(f"ds_write_b64 v144, v[{Q+2*dg}:{Q+2*dg+1}] offset:{8*dg}")
    a("s_waitcnt lgkmcnt(0)")
    stamp(a, 2)
    a("s_barrier")
    a(f"ds_read_b128 v[20:23], v148 offset:{LO}")
    sk = a.new("attst")
    a(f"s_cmp_ge_u32 s{S_WAVE}, 2")
    a(f"s_cbranch_scc1 {sk}")
    a(f"ds_read_b128 v[24:27], v149 offset:{LO}")
    a("s_waitcnt lgkmcnt(0)")
    a(f"buffer_store_dwordx4 v[24:27], v157, s[{SRD_OUT}:{SRD_OUT+3}], 0 offen{SC1}")
    a.label(sk)
    a("s_waitcnt lgkmcnt(0)")
    a(f"buffer_store_dwordx4 v[20:23], v156, s[{SRD_OUT}:{SRD_OUT+3}], 0 offen{SC1}")
    a(f"s_lshl_b32 s{S_FIDX}, s{S_RT}, 1")
    a(f"s_add_u32 s{S_FIDX}, s{S_FIDX}, s{S_CT}")
    a(f"s_lshl_b32 s{S_FIDX}, s{S_FIDX}, 7")
    a(f"s_add_u32 s{S_FIDX}, s{S_FIDX}, 0x8000")

def finish_phase(a, role, first=False):
    a("s_waitcnt vmcnt(0)")
    stamp(a, 4)
    if role == 'c' and first: nonce_check(a)
    a("s_barrier      ; E3")
    if role == 'c': publish(a)
    stamp(a, 5)

IDLEPF = True
def idle_prefetch(a, NT, kptr, nbytes):
    nidle = 256 - NT
    nw = nidle * 8
    npieces = (nbytes + 1023)//1024
    n = (npieces + nw - 1)//nw
    a(f"s_and_b32 s{S_T0}, s2, 7")
    a(f"s_lshr_b32 s{S_T1}, s2, 3")
    a(f"s_lshl_b32 s{S_T0}, s{S_T0}, 5")
    a(f"s_add_u32 s{S_T0}, s{S_T0}, s{S_T1}")
    a(f"s_sub_u32 s{S_T0}, s{S_T0}, {NT}")
    a(f"s_lshl_b32 s{S_T0}, s{S_T0}, 3")
    a(f"s_add_u32 s{S_T0}, s{S_T0}, s{S_WAVE}      ; q")
    a(f"s_lshl_b32 s{S_T0}, s{S_T0}, 10")
    a("v_lshlrev_b32 v150, 4, v2")
    a(f"v_add_u32 v150, s{S_T0}, v150")
    srd(a, 80, ptr(kptr), 0, nbytes)
    lp = a.new("ipf")
    a(f"s_mov_b32 s{S_CNT}, {n}")
    a.label(lp)
    a("buffer_load_dwordx4 v[152:155], v150, s[80:83], 0 offen")
    a(f"v_add_u32 v150, {nw*1024}, v150")
    a(f"s_sub_u32 s{S_CNT}, s{S_CNT}, 1")
    a(f"s_cmp_lg_u32 s{S_CNT}, 0")
    a(f"s_cbranch_scc1 {lp}")
    a("s_waitcnt vmcnt(0)")

def role_program(a, role):
    phases = [P1F(), P24(2), P3(), P24(4)] if FUSE else [P1(), 'att', P24(2), P3(), P24(4)]
    if 'p1twice' in EXP:
        P = P1F() if FUSE else P1(); inv = a.new("inv")
        tile_map(a, P.NT, P.kind)
        a(f"s_cmp_eq_u32 s{S_VALID}, 0")
        a(f"s_cbranch_scc1 {inv}")
        P.tile_consts(a)
        if role == 'c': consumer_phase(a, P, True)
        else: loader_phase(a, P, True)
        a("s_waitcnt vmcnt(0)")
        a("s_barrier")
        a.label(inv)
    for n, P in enumerate(phases):
        first = (n == 0)
        nxt = a.new("next"); inv = a.new("inv")
        if P == 'att':
            tile_map(a, 256, 'att')
            att_phase(a, role)
            stamp(a, 3)
            finish_phase(a, role)
            prof_store(a, 'att', role)
            continue
        tile_map(a, P.NT, P.kind)
        a(f"s_cmp_eq_u32 s{S_VALID}, 0")
        a(f"s_cbranch_scc1 {inv}")
        P.tile_consts(a)
        if PRIO:
            hi = (role == 'l') if PRIO == 'l' else ((role == 'l') != (P.key == 'p3') if PRIO == 'm' else (role == 'c' and P.key == 'p3'))
            a(f"s_setprio {1 if hi else 0}")
        if role == 'c': consumer_phase(a, P, first)
        else: loader_phase(a, P, first)
        stamp(a, 3)
        if P.key != 'p4': finish_phase(a, role, first)
        spin_capture(a, P.key, role)
        prof_store(a, P.key, role)
        if first:
            a(f"s_branch {nxt}")
            a.label(inv)
            ptr_wait(a)
            if role == 'c': nonce_check(a, issued=False)
            a.label(nxt)
        elif P.key == 'p3' and IDLEPF:
            a(f"s_branch {nxt}")
            a.label(inv)
            idle_prefetch(a, P.NT, KA_WD, F*D*2)
            a.label(nxt)
        else:
            a.label(inv)

def main(out):
    a = Asm()
    a.raw(f".globl {KNAME}")
    a.raw(".p2align 8")
    a.raw(f".type {KNAME},@function")
    a.label(KNAME)
    if PROFDBG:
        a(f"s_memrealtime s[{S_P0+1}:{S_P0+2}]") if False else None
    a("s_cmp_ge_u32 s2, 256")
    a("s_cbranch_scc1 L_exit")
    a(f"s_load_dwordx16 s[{S_PTR}:{S_PTR+15}], s[0:1], 0")
    a(f"s_load_dwordx4 s[{S_PTR+16}:{S_PTR+19}], s[0:1], 64")
    if PROFDBG or SPIN:
        a(f"{STAMP} s[98:99]")
    a("v_lshrrev_b32 v1, 6, v0")
    a("v_and_b32 v2, 63, v0      ; lane")
    a(f"s_mov_b32 s{S_FIDX}, -1")
    a(f"s_mov_b32 s{S_DRY}, 0")
    a(f"v_readfirstlane_b32 s{S_WAVE}, v1")
    a("s_nop 3")
    a(f"s_sub_u32 s{S_W}, s{S_WAVE}, 4")
    a(f"s_cmp_ge_u32 s{S_WAVE}, 4")
    a("s_cbranch_scc1 L_loader")
    role_program(a, 'c')
    a("s_waitcnt vmcnt(0)")
    spin_end(a)
    a("s_endpgm")
    a.label("L_loader")
    role_program(a, 'l')
    a("s_waitcnt vmcnt(0)")
    a.label("L_exit")
    a("s_endpgm")
    HEADER = open("sequential_preLN__sliding_local_dilated__glu_gated_bilinear__prompt.s.ref").read().split("; Override")[0]
    s = HEADER
    s += f"; @launch grid=(256,1,1) block=(512,1,1) lds={LDS_TOTAL}\n"
    s += '.amdgcn_target "amdgcn-amd-amdhsa--gfx950"\n.text\n'
    s += a.text()
    s += f""".section .rodata,"a"
.p2align 6
.amdhsa_kernel {KNAME}
  .amdhsa_next_free_vgpr 256
  .amdhsa_next_free_sgpr 102
  .amdhsa_accum_offset 160
  .amdhsa_group_segment_fixed_size 0
  .amdhsa_kernarg_size 80
  .amdhsa_user_sgpr_count 2
  .amdhsa_user_sgpr_kernarg_segment_ptr 1
  .amdhsa_system_sgpr_workgroup_id_x 1
  .amdhsa_float_denorm_mode_32 3
.end_amdhsa_kernel
"""
    open(out, "w").write(s)

if __name__ == "__main__":
    if "-prof" in sys.argv: PROF = True
    if "-profdbg" in sys.argv: PROFDBG = True
    if "-cyc" in sys.argv: STAMP = "s_memtime"
    if "-wpf" in sys.argv: WPF = True
    if "-nofuse" in sys.argv: FUSE = False
    if "-gate" in sys.argv: GATE = True
    if "-dry" in sys.argv: DRY = True
    for x in sys.argv:
        if x.startswith("-prio="): PRIO = x[6:]
    for x in sys.argv:
        if x.startswith("-extrab="): EXTRAB = int(x[8:])
        if x.startswith("-p4map="): P4MAP = x[7:]
        if x.startswith("-p3map="): P3MAP = x[7:]
        if x.startswith("-p2map="): P2MAP = x[7:]
        if x.startswith("-p4rot="): P4ROT = tuple(int(y) for y in x[7:].split(","))
        if x.startswith("-p3rot="): P3ROT = tuple(int(y) for y in x[7:].split(","))
        if x.startswith("-p2rot="): P2ROT = tuple(int(y) for y in x[7:].split(","))
    if "-onwd" in sys.argv: WPF_OFF.discard(KA_WD)
    for x in sys.argv:
        if x.startswith("-spf="): SPF = int(x[5:])
        if x.startswith("-spf2="): SPF2 = {'wg': KA_WG, 'wu': KA_WU}[x[6:]]
    if "-noidle" in sys.argv: IDLEPF = False
    for x in sys.argv:
        if x.startswith("-spin="):
            p_, a_, b_ = x[6:].split(","); SPIN = (p_, int(a_), int(b_))
    if "-apf" in sys.argv: APF = True
    for x in sys.argv:
        if x.startswith("-p1frot="): P1FROT = x[8:]
    for x in sys.argv:
        if x.startswith("-outsc="): OUTSC = " " + x[7:].replace("+", " ")
    for x in sys.argv:
        if x.startswith("-gate4="): GATE4 = tuple(int(y) for y in x[7:].split(","))
    for x in sys.argv:
        if x.startswith("-osc="): OSC = " " + x[5:].replace("+", " ")
    for x in sys.argv:
        if x.startswith("-align="): ALIGN = int(x[7:])
    if "-nowpf" in sys.argv: WPF = False
    if "-onestep" in sys.argv: TWOSTEP = False
    for x in sys.argv:
        if x.startswith("-exp="): EXP = set(x[5:].split(","))
    if "-noxcd" in sys.argv: NOXCD = True
    for x in sys.argv:
        if x.startswith("-p1rot="): P1ROT = x[7:]
        if x.startswith("-rotoff="): ROTOFF = set(x[8:].split(","))
    for x in sys.argv:
        if x.startswith("-off="):
            for k in x[5:].split(","): WPF_OFF.add({'wo': KA_WO, 'wg': KA_WG, 'wu': KA_WU, 'wd': KA_WD}[k])
    main(sys.argv[1] if len(sys.argv) > 1 else "v3.s")
```

```python
import sys, struct

KNAME = "sequential_preLN__sliding_local_dilated__glu_gated_bilinear__prompt_kernel"
S_TOK, D, NQKV, F = 2048, 640, 1920, 1728
WS_QKV, WS_O, WS_H, WS_HH, WS_ST, WS_FLAG = 0, 0x800000, 0xB00000, 0x1000000, 0x1800000, 0x1900000
WS_PROF = 0x1A00000
WS_ST1 = 0x1880000
KA_X, KA_WQKV, KA_WO, KA_BX, KA_WG, KA_WU, KA_WD, KA_OUT, KA_DBG, KA_WS = [8*i for i in range(10)]
ONES = 0x3F803F80
PROF = False
PROFDBG = False
STAMP = 's_memrealtime'
SC1 = " sc1"
LDS_TOTAL = 163840
NONCE_LDS = 163832
OUTSC = ' sc0 sc1'
SPF = 0
SPF2 = None
EXTRAB = 0
PB2, PB3, PB4 = 7, 3, 7
P2MAP = 'rm'
P3MAP = 'p3b'
P4MAP = 'rm5'
P4ROT = (4, 17, 2)
P3ROT = (1, 9, 2)
P2ROT = (2, 13, 2)
P1FROT = 'latin2'
APF = False
PH0 = True
DRY = False
PRIO = ''
GATE = False
GATE4 = (6, 3)
OSC = ' sc1'
FUSE = True
ALIGN = 6
TWOSTEP = True
EXP = set()
NOXCD = False

def f2u(x):
    return struct.unpack("<I", struct.pack("<f", x))[0]

class Asm:
    def __init__(self):
        self.L = []
        self.uid = 0
    def __call__(self, s):
        for line in s.split("\n"):
            line = line.strip()
            if line:
                self.L.append("  " + line)
    def label(self, n):
        self.L.append(n + ":")
    def raw(self, s):
        self.L.append(s)
    def new(self, base):
        self.uid += 1
        return f"L{base}_{self.uid}"
    def text(self):
        return "\n".join(self.L) + "\n"

SRD_A, SRD_B0, SRD_B1, SRD_OUT, SRD_AUX, SRD_ST = 8, 12, 16, 20, 24, 28
S_RT, S_CT, S_R0, S_C0, S_WAVE, S_SLOT, S_CNT, S_T0, S_T1, S_T2 = 32, 33, 34, 35, 36, 37, 38, 39, 40, 41
S_AOFF, S_BOFF = 42, 43
S_PTR = 44
S_MASK = 64
S_I, S_J, S_REND, S_K = 66, 67, 68, 69
S_STAMP = 70
S_NONCE = 78
S_FIDX, S_LW, S_VALID, S_KB = 85, 86, 87, 92
SRD_FLAG = 88
S_SLOTB, S_T3, S_T4, S_W = 93, 94, 95, 96
S_P0 = 97
S_N1, S_N2 = 6, 7
S_DRY = 3

def ptr(k): return S_PTR + k // 4

PH_IDX = {'p1': 0, 'att': 1, 'p2': 2, 'p3': 3, 'p4': 4}

def stamp(a, i):
    if i >= 4:
        if PROF: a(f'{STAMP} s[{98+2*(i-4)}:{99+2*(i-4)}]')
        return
    if PROF or PROFDBG or SPIN:
        a(f'{STAMP} s[{S_STAMP+2*i}:{S_STAMP+2*i+1}]')

SPIN = None
def spin_capture(a, ph, role):
    if not SPIN or SPIN[0] != ph or role != 'c': return
    a("s_waitcnt lgkmcnt(0)")
    A_ = "s98" if SPIN[1] < 0 else f"s{S_STAMP+2*SPIN[1]}"
    a(f"s_sub_u32 s100, s{S_STAMP+2*SPIN[2]}, {A_}")
def spin_end(a):
    if not SPIN: return
    sk = a.new("spin"); lp = a.new("spinl")
    a("s_cmp_eq_u32 s2, 9")
    a(f"s_cbranch_scc0 {sk}")
    a(f"s_cmp_eq_u32 s{S_WAVE}, 0")
    a(f"s_cbranch_scc0 {sk}")
    a("s_mul_i32 s100, s100, 20")
    a("s_memrealtime s[4:5]")
    a("s_waitcnt lgkmcnt(0)")
    a("s_add_u32 s100, s100, s4")
    a.label(lp)
    a("s_memrealtime s[4:5]")
    a("s_waitcnt lgkmcnt(0)")
    a("s_sub_u32 s6, s4, s100")
    a("s_cmp_lt_i32 s6, 0")
    a(f"s_cbranch_scc1 {lp}")
    a.label(sk)

def prof_store(a, ph, role):
    if not (PROF or PROFDBG): return
    skip = a.new("pskip")
    a(f"s_cmp_eq_u32 s{S_WAVE}, {0 if role == 'c' else 4}")
    a(f"s_cbranch_scc0 {skip}")
    a('s_waitcnt lgkmcnt(0)')
    if PROF:
        a(f's_add_u32 s80, s{ptr(KA_WS)}, {hex(WS_PROF + PH_IDX[ph]*0x20000)}')
        a(f's_addc_u32 s81, s{ptr(KA_WS)+1}, 0')
        a('s_and_b32 s81, s81, 0xffff')
        a('s_mov_b32 s82, 0x20000')
        a('s_mov_b32 s83, 0x20000')
        a('s_lshl_b32 s84, s2, 3')
        a(f's_add_u32 s84, s84, s{S_WAVE}')
        a('s_lshl_b32 s84, s84, 6')
        for i in range(8): a(f'v_mov_b32 v{128+i}, s{S_STAMP+i}')
        for i in range(4): a(f'v_mov_b32 v{136+i}, s{98+i}')
        a('v_mov_b32 v148, s84')
        a('s_mov_b64 exec, 1')
        a('buffer_store_dwordx4 v[128:131], v148, s[80:83], 0 offen')
        a('buffer_store_dwordx4 v[132:135], v148, s[80:83], 0 offen offset:16')
        a('buffer_store_dwordx4 v[136:139], v148, s[80:83], 0 offen offset:32')
        a('s_mov_b64 exec, -1')
    if PROFDBG and role == 'c':
        sk2 = a.new("pskip")
        a(f"s_cmp_eq_u32 s2, {PROFDBG_WG}")
        a(f"s_cbranch_scc0 {sk2}")
        a(f's_mov_b32 s80, s{ptr(KA_DBG)}')
        a(f's_and_b32 s81, s{ptr(KA_DBG)+1}, 0xffff')
        a('s_mov_b32 s82, 0x100')
        a('s_mov_b32 s83, 0x20000')
        sel = DBG_SEL[ph]
        for j, (i, slot) in enumerate(sel):
            a(f's_sub_u32 s84, s{S_STAMP+2*i}, s{S_P0}')
            a(f'v_mov_b32 v140, s84')
            a(f'v_mov_b32 v141, {4*slot}')
            a('s_mov_b64 exec, 1')
            a('buffer_store_dword v140, v141, s[80:83], 0 offen')
            a('s_mov_b64 exec, -1')
        a.label(sk2)
    a.label(skip)

PROFDBG_WG = 9
DBG_SEL = {'p1': [(1, 2), (2, 3), (3, 4)], 'att': [(0, 5), (1, 6), (3, 7)], 'p2': [(0, 8), (2, 9)], 'p3': [(0, 10), (1, 11), (2, 12)], 'p4': [(0, 13), (2, 14), (3, 15)]}

def set_exec(a, mask):
    if mask == (1 << 64) - 1:
        a("s_mov_b64 exec, -1")
    else:
        a(f"s_mov_b32 exec_lo, {hex(mask & 0xffffffff)}")
        a(f"s_mov_b32 exec_hi, {hex(mask >> 32)}")

def dbar(a, comment=""):
    if not DRY:
        a(f"s_barrier      ; {comment}"); return
    l = a.new("dbar")
    a(f"s_cmp_eq_u32 s{S_DRY}, 1")
    a(f"s_cbranch_scc1 {l}")
    a(f"s_barrier      ; {comment}")
    a.label(l)

def mask_exec(a, mask):
    if not DRY:
        set_exec(a, mask); return
    a("s_mov_b64 s[4:5], exec")
    a(f"s_and_b32 exec_lo, exec_lo, {hex(mask & 0xffffffff)}")
    a(f"s_and_b32 exec_hi, exec_hi, {hex(mask >> 32)}")

def unmask_exec(a):
    a("s_mov_b64 exec, s[4:5]" if DRY else "s_mov_b64 exec, -1")

def dry_call(a, wave, target, ret):
    if not DRY: return
    sk = a.new("dry")
    a(f"s_cmp_eq_u32 s{S_WAVE}, {wave}")
    a(f"s_cbranch_scc0 {sk}")
    a(f"s_mov_b32 s{S_DRY}, 1")
    a("s_mov_b64 exec, 0")
    a(f"s_branch {target}")
    a.label(ret)
    a("s_mov_b64 exec, -1")
    a(f"s_mov_b32 s{S_DRY}, 0")
    a.label(sk)

def dry_exit(a, ret):
    if DRY:
        a(f"s_cmp_eq_u32 s{S_DRY}, 1")
        a(f"s_cbranch_scc1 {ret}")

def srd(a, s, p, off, nbytes):
    if off:
        a(f"s_add_u32 s{s}, s{p}, {hex(off)}")
        a(f"s_addc_u32 s{s+1}, s{p+1}, 0")
    else:
        a(f"s_mov_b32 s{s}, s{p}")
        a(f"s_mov_b32 s{s+1}, s{p+1}")
    a(f"s_and_b32 s{s+1}, s{s+1}, 0xffff")
    a(f"s_mov_b32 s{s+2}, {hex(nbytes)}")
    a(f"s_mov_b32 s{s+3}, 0x20000")

def divc(a, dst, src, d, rng=300):
    m = (65536 + d - 1) // d
    for x in range(0, rng):
        assert (x * m) >> 16 == x // d, (x, d)
    a(f"s_mul_i32 s{dst}, s{src}, {m}")
    a(f"s_lshr_b32 s{dst}, s{dst}, 16")

def magic(d, N):
    for sh in range(8, 24):
        m = ((1 << sh) + d - 1) // d
        if m >= (1 << 24) or m * (N - 1) >= (1 << 32): continue
        if all((x * m) >> sh == x // d for x in range(N)): return m, sh
    raise Exception("no magic")

def sdiv(a, dst, src, d, N):
    m, sh = magic(d, N)
    a(f"s_mul_i32 s{dst}, s{src}, {m}")
    a(f"s_lshr_b32 s{dst}, s{dst}, {sh}")

def vdiv(a, dst, src, d, N):
    m, sh = magic(d, N)
    a(f"v_mul_u32_u24 v{dst}, {m}, v{src}")
    a(f"v_lshrrev_b32 v{dst}, {sh}, v{dst}")

def tile_map(a, NT, kind):
    if NOXCD:
        a(f"s_mov_b32 s{S_T0}, s2")
    else:
        a(f"s_and_b32 s{S_T0}, s2, 7")
        a(f"s_lshr_b32 s{S_T1}, s2, 3")
        a(f"s_lshl_b32 s{S_T0}, s{S_T0}, 5")
        a(f"s_add_u32 s{S_T0}, s{S_T0}, s{S_T1}   ; t")
    a(f"s_cmp_lt_u32 s{S_T0}, {NT}")
    a(f"s_cselect_b32 s{S_VALID}, 1, 0")
    if kind == "p1":
        divc(a, S_T1, S_T0, 90)
        a(f"s_mul_i32 s{S_T2}, s{S_T1}, 90")
        a(f"s_sub_u32 s{S_T2}, s{S_T0}, s{S_T2}")
        divc(a, S_CT, S_T2, 6)
        divc(a, S_RT, S_T2, 5)
        a(f"s_cmp_eq_u32 s{S_T1}, 2")
        a(f"s_cselect_b32 s{S_CT}, s{S_RT}, s{S_CT}")
        a(f"s_cselect_b32 s{S_RT}, 5, 6")
        a(f"s_mul_i32 s{S_RT}, s{S_RT}, s{S_CT}")
        a(f"s_sub_u32 s{S_RT}, s{S_T2}, s{S_RT}")
        a(f"s_mul_i32 s{S_T1}, s{S_T1}, 6")
        a(f"s_add_u32 s{S_RT}, s{S_RT}, s{S_T1}")
    elif kind == "p3":
        divc(a, S_T1, S_T0, 81)
        a(f"s_mul_i32 s{S_T2}, s{S_T1}, 81")
        a(f"s_sub_u32 s{S_T2}, s{S_T0}, s{S_T2}")
        divc(a, S_CT, S_T2, 3)
        a(f"s_mul_i32 s{S_RT}, s{S_CT}, 3")
        a(f"s_sub_u32 s{S_RT}, s{S_T2}, s{S_RT}")
        a(f"s_mul_i32 s{S_T1}, s{S_T1}, 3")
        a(f"s_add_u32 s{S_RT}, s{S_RT}, s{S_T1}")
    elif kind == "p1f":
        a(f"s_lshr_b32 s{S_T1}, s{S_T0}, 6")
        a(f"s_lshl_b32 s{S_RT}, s{S_T1}, 3")
        a(f"s_bfe_u32 s{S_T2}, s{S_T0}, {2 | (3 << 16)}")
        a(f"s_add_u32 s{S_RT}, s{S_RT}, s{S_T2}")
        a(f"s_bfe_u32 s{S_T1}, s{S_T0}, {5 | (1 << 16)}")
        a(f"s_lshl_b32 s{S_T1}, s{S_T1}, 2")
        a(f"s_and_b32 s{S_CT}, s{S_T0}, 3")
        a(f"s_add_u32 s{S_CT}, s{S_CT}, s{S_T1}")
    elif kind == "p3b":
        a(f"s_cmp_ge_u32 s{S_T0}, 108")
        a(f"s_cselect_b32 s{S_T1}, 108, 0")
        a(f"s_sub_u32 s{S_T2}, s{S_T0}, s{S_T1}")
        divc(a, S_CT, S_T2, 4)
        divc(a, S_RT, S_T2, 5)
        a(f"s_cmp_ge_u32 s{S_T0}, 108")
        a(f"s_cselect_b32 s{S_CT}, s{S_RT}, s{S_CT}")
        a(f"s_cselect_b32 s{S_RT}, 5, 4")
        a(f"s_mul_i32 s{S_RT}, s{S_RT}, s{S_CT}")
        a(f"s_sub_u32 s{S_RT}, s{S_T2}, s{S_RT}")
        a(f"s_cmp_ge_u32 s{S_T0}, 108")
        a(f"s_cselect_b32 s{S_T1}, 4, 0")
        a(f"s_add_u32 s{S_RT}, s{S_RT}, s{S_T1}")
    elif kind == "rm5":
        divc(a, S_T1, S_T0, 125)
        a(f"s_mul_i32 s{S_T2}, s{S_T1}, 125")
        a(f"s_sub_u32 s{S_T2}, s{S_T0}, s{S_T2}")
        divc(a, S_RT, S_T2, 5)
        a(f"s_mul_i32 s{S_CT}, s{S_RT}, 5")
        a(f"s_sub_u32 s{S_CT}, s{S_T2}, s{S_CT}")
        a(f"s_mul_i32 s{S_T1}, s{S_T1}, 5")
        a(f"s_add_u32 s{S_CT}, s{S_CT}, s{S_T1}")
    elif kind == "att":
        a(f"s_lshr_b32 s{S_RT}, s{S_T0}, 1")
        a(f"s_and_b32 s{S_CT}, s{S_T0}, 1")
    else:
        divc(a, S_RT, S_T0, 10)
        a(f"s_mul_i32 s{S_CT}, s{S_RT}, 10")
        a(f"s_sub_u32 s{S_CT}, s{S_T0}, s{S_CT}")

def publish(a):
    skip = a.new("pub")
    a(f"s_cmp_eq_u32 s{S_WAVE}, 0")
    a(f"s_cbranch_scc0 {skip}")
    a(f"s_cmp_eq_u32 s{S_FIDX}, -1")
    a(f"s_cbranch_scc1 {skip}")
    a(f"v_mov_b32 v140, s{S_NONCE}")
    a(f"v_mov_b32 v141, s{S_NONCE+1}")
    a(f"v_mov_b32 v142, s{S_FIDX}")
    a("s_mov_b64 exec, 1")
    a(f"buffer_store_dwordx2 v[140:141], v142, s[{SRD_FLAG}:{SRD_FLAG+3}], 0 offen{SC1}")
    a("s_mov_b64 exec, -1")
    a.label(skip)

def poll_core(a, sv=80):
    loop = a.new("poll"); done = a.new("polldone")
    a(f"s_and_saveexec_b64 s[{sv}:{sv+1}], vcc")
    a(f"s_mov_b32 s{S_CNT}, 0x40000")
    a.label(loop)
    a(f"buffer_load_dwordx2 v[142:143], v140, s[{SRD_FLAG}:{SRD_FLAG+3}], 0 offen{SC1}")
    a("s_waitcnt vmcnt(0)")
    a(f"v_cmp_ne_u64 vcc, s[{S_NONCE}:{S_NONCE+1}], v[142:143]")
    a(f"s_cbranch_vccz {done}")
    a(f"s_sub_u32 s{S_CNT}, s{S_CNT}, 1")
    a(f"s_cmp_lg_u32 s{S_CNT}, 0")
    a(f"s_cbranch_scc1 {loop}")
    a.label(done)
    a(f"s_mov_b64 exec, s[{sv}:{sv+1}]")

def poll(a, lo_sgpr, hi_sgpr, base, wave=0):
    skip = a.new("pollskip")
    a(f"s_cmp_eq_u32 s{S_WAVE}, {wave}")
    a(f"s_cbranch_scc0 {skip}")
    a(f"v_add_u32 v140, s{lo_sgpr}, v2")
    a(f"v_cmp_gt_u32 vcc, s{hi_sgpr}, v140")
    a(f"v_lshlrev_b32 v140, 7, v140")
    a(f"v_add_u32 v140, {base}, v140")
    poll_core(a, 80 if wave == 0 else 4)
    a.label(skip)

def poll_first_g(a, lo_sgpr, hi_sgpr, W, k0, S, G, base):
    skip = a.new("pollskip")
    lg = 2 if G <= 4 else 3
    a(f"s_cmp_eq_u32 s{S_WAVE}, 0")
    a(f"s_cbranch_scc0 {skip}")
    a(f"v_lshrrev_b32 v140, {lg}, v2")
    a(f"v_add_u32 v140, s{lo_sgpr}, v140")
    a(f"v_cmp_ge_u32 vcc, s{hi_sgpr}, v140")
    a(f"v_and_b32 v141, {(1 << lg) - 1}, v2")
    a(f"v_cmp_gt_u32 s[82:83], {G}, v141")
    a(f"v_add_u32 v141, s{k0}, v141")
    a(f"v_subrev_u32 v142, {S}, v141")
    a(f"s_and_b64 s[82:83], s[82:83], vcc")
    a(f"v_cmp_le_u32 vcc, {S}, v141")
    a(f"v_mul_u32_u24 v140, {W}, v140")
    a("s_nop 0")
    a("v_cndmask_b32 v141, v141, v142, vcc")
    a("v_add_u32 v140, v140, v141")
    a(f"v_lshlrev_b32 v140, 7, v140")
    a(f"v_add_u32 v140, {base}, v140")
    a("s_mov_b64 vcc, s[82:83]")
    poll_core(a)
    a.label(skip)

def poll_first(a, lo_sgpr, hi_sgpr, W, k0, k1, base):
    skip = a.new("pollskip")
    a(f"s_cmp_eq_u32 s{S_WAVE}, 0")
    a(f"s_cbranch_scc0 {skip}")
    a("v_lshrrev_b32 v140, 1, v2")
    a(f"v_add_u32 v140, s{lo_sgpr}, v140")
    a(f"v_cmp_ge_u32 vcc, s{hi_sgpr}, v140")
    a(f"v_mul_u32_u24 v140, {W}, v140")
    a("v_and_b32 v141, 1, v2")
    a(f"s_sub_u32 s{S_T2}, s{k1}, s{k0}")
    a(f"v_mul_lo_u32 v141, v141, s{S_T2}")
    a(f"v_add_u32 v141, s{k0}, v141")
    a("v_add_u32 v140, v140, v141")
    a(f"v_lshlrev_b32 v140, 7, v140")
    a(f"v_add_u32 v140, {base}, v140")
    poll_core(a)
    a.label(skip)

def first_ks(a, P):
    P.rot_start(a)
    a(f"s_add_u32 s{S_KB}, s{S_K}, 1")
    a(f"s_cmp_ge_u32 s{S_KB}, {8 if getattr(P, 'oprime', False) else P.S}")
    a(f"s_cselect_b32 s{S_KB}, 0, s{S_KB}")

def dbg_srd(a):
    a(f"s_mov_b32 s80, s{ptr(KA_DBG)}")
    a(f"s_and_b32 s81, s{ptr(KA_DBG)+1}, 0xffff")
    a("s_mov_b32 s82, 0x100")
    a("s_mov_b32 s83, 0x20000")

def nonce_publish(a):
    skip = a.new("nonce")
    a(f"s_cmp_eq_u32 s{S_WAVE}, 0")
    a(f"s_cbranch_scc0 {skip}")
    a("s_cmp_eq_u32 s2, 0")
    a(f"s_cbranch_scc0 {skip}")
    dbg_srd(a)
    a(f"s_memrealtime s[{S_NONCE}:{S_NONCE+1}]")
    a("v_mov_b32 v5, 0")
    a("s_waitcnt lgkmcnt(0)")
    a(f"s_or_b32 s{S_NONCE}, s{S_NONCE}, 1")
    a(f"v_mov_b32 v6, s{S_NONCE}")
    a(f"v_mov_b32 v7, s{S_NONCE+1}")
    a("s_mov_b64 exec, 1")
    a(f"buffer_store_dwordx2 v[6:7], v5, s[80:83], 0 offen{SC1}")
    a("s_mov_b64 exec, -1")
    a.label(skip)

def nonce_issue(a):
    skip = a.new("nonce")
    a(f"s_cmp_eq_u32 s{S_WAVE}, 0")
    a(f"s_cbranch_scc0 {skip}")
    dbg_srd(a)
    a("v_mov_b32 v158, 0")
    a("s_nop 3")
    a(f"buffer_load_dwordx2 v[156:157], v158, s[80:83], 0 offen{SC1}")
    a.label(skip)

def nonce_check(a, issued=True):
    skip = a.new("nonce"); loop = a.new("nloop"); done = a.new("ndone"); chk = a.new("nchk")
    a(f"s_cmp_eq_u32 s{S_WAVE}, 0")
    a(f"s_cbranch_scc0 {skip}")
    dbg_srd(a)
    a("v_mov_b32 v158, 0")
    a(f"s_mov_b32 s{S_CNT}, 0x40000")
    if issued: a(f"s_branch {chk}")
    a.label(loop)
    a(f"buffer_load_dwordx2 v[156:157], v158, s[80:83], 0 offen{SC1}")
    a("s_waitcnt vmcnt(0)")
    a.label(chk)
    a("v_readfirstlane_b32 s" + str(S_NONCE) + ", v156")
    a("v_readfirstlane_b32 s" + str(S_NONCE+1) + ", v157")
    a("s_nop 3")
    a(f"s_cmp_lg_u32 s{S_NONCE}, 0")
    a(f"s_cbranch_scc1 {done}")
    a(f"s_sub_u32 s{S_CNT}, s{S_CNT}, 1")
    a(f"s_cmp_lg_u32 s{S_CNT}, 0")
    a(f"s_cbranch_scc1 {loop}")
    a.label(done)
    a(f"v_mov_b32 v158, {NONCE_LDS}")
    a("s_mov_b64 exec, 1")
    a("ds_write_b64 v158, v[156:157]")
    a("s_mov_b64 exec, -1")
    a("s_waitcnt lgkmcnt(0)")
    a.label(skip)

def nonce_from_lds(a):
    skip = a.new("nlds")
    a(f"s_cmp_eq_u32 s{S_WAVE}, 7")
    a(f"s_cbranch_scc0 {skip}")
    a(f"v_mov_b32 v140, {NONCE_LDS}")
    a("ds_read_b64 v[142:143], v140")
    a("s_waitcnt lgkmcnt(0)")
    a(f"v_readfirstlane_b32 s{S_NONCE}, v142")
    a(f"v_readfirstlane_b32 s{S_NONCE+1}, v143")
    a.label(skip)

class Phase:
    has_e1 = False
    has_stage_work = False
    prefetchB = 0
    def loader_post_first(self, a): return 0
    def loader_post_b0(self, a): return 0
    def loader_stage_work_parts(self): return []
    def loader_final(self, a): pass
    def store_pre(self, a): pass
    def tail_prefetch(self, a, part): return 0
    def mid_prefetch(self, a, s): return 0
    def l2_prep(self, a): pass
    def rot_start(self, a):
        if self.key in ROTOFF:
            a(f"s_mov_b32 s{S_K}, 0"); return
        ca, cb, den = self.rot
        Sm = 8 if getattr(self, 'oprime', False) else self.S
        a(f"s_mul_i32 s{S_K}, s{S_CT}, {ca}")
        a(f"s_mul_i32 s{S_T0}, s{S_RT}, {cb}")
        a(f"s_add_u32 s{S_K}, s{S_K}, s{S_T0}")
        a(f"s_lshr_b32 s{S_K}, s{S_K}, {den}")
        m = (65536 + Sm - 1) // Sm
        for x in range(1024): assert (x*m) >> 16 == x // Sm
        a(f"s_mul_i32 s{S_T0}, s{S_K}, {m}")
        a(f"s_lshr_b32 s{S_T0}, s{S_T0}, 16")
        a(f"s_mul_i32 s{S_T0}, s{S_T0}, {Sm}")
        a(f"s_sub_u32 s{S_K}, s{S_K}, s{S_T0}")
    def tile_consts(self, a):
        a(f"s_mul_i32 s{S_R0}, s{S_RT}, {self.MV}")
        a(f"s_mul_i32 s{S_C0}, s{S_CT}, {self.NC}")
        a(f"s_add_u32 s{S_REND}, s{S_R0}, {self.MV}")
        a(f"s_min_u32 s{S_REND}, s{S_REND}, {S_TOK}")

def transition(a, first):
    pass

def loader_phase(a, P, first):
    NS, S = P.NS, P.S
    nA, nB = len(P.Ains), len(P.Bins)
    VB = 32
    customB = getattr(P, 'custom_B', False)
    a("v_lshrrev_b32 v3, 3, v2      ; r8")
    a("v_and_b32 v4, 7, v2          ; p")
    a("v_lshrrev_b32 v5, 1, v3      ; r8>>1")
    a("v_xor_b32 v6, v4, v5")
    a("v_lshlrev_b32 v6, 4, v6")
    a(f"s_lshl_b32 s{S_T0}, s{S_W}, 3")
    a(f"s_add_u32 s{S_T0}, s{S_T0}, s{S_R0}")
    a(f"v_add_u32 v7, s{S_T0}, v3")
    a(f"s_mov_b32 s{S_T0}, {P.lda}")
    a(f"v_mul_lo_u32 v7, v7, s{S_T0}")
    a("v_add_u32 v7, v7, v6")
    a(f"s_and_b32 s{S_T0}, s{S_W}, 1")
    a(f"s_lshl_b32 s{S_T0}, s{S_T0}, 6")
    a(f"v_xor_b32 v7, s{S_T0}, v7")
    for t in range(nA):
        a(f"v_add_u32 v{VB+t}, {t*32*P.lda}, v7")
    if customB: P.lazyB = True
    else: std_B_setup(a, P, VB, nA)
    if getattr(P, 'oprime', False): oprime_alt_setup(a, P)
    a(f"s_lshl_b32 s{S_LW}, s{S_W}, 10")
    P.mask_setup(a)
    P.rot_start(a)
    a(f"s_mov_b32 s{S_KB}, s{S_K}")
    a(f"s_mov_b32 s{S_N1}, 0"); a(f"s_mov_b32 s{S_N2}, 0")
    if first: ptr_wait(a)
    P.build_srds(a, 'l')
    loader_rest(a, P, first, VB, nA, nB, NS, S)

def oprime_alt_setup(a, P):
    a(f"s_and_b32 s{S_T0}, s{S_W}, 1")
    a(f"s_lshl_b32 s{S_T0}, s{S_T0}, 6")
    a(f"v_xor_b32 v10, s{S_T0}, v6")
    a("v_lshrrev_b32 v11, 5, v10             ; q = c>>1")
    a("v_lshlrev_b32 v11, 7, v11             ; q*128")
    a("v_and_b32 v12, 16, v10                ; half*16")
    a("v_add_u32 v11, v11, v12")
    a(f"s_lshl_b32 s{S_T0}, s{S_W}, 3")
    a(f"s_add_u32 s{S_T0}, s{S_T0}, s{S_R0}")
    a(f"v_add_u32 v12, s{S_T0}, v3            ; row (t=0)")
    for t in range(3):
        a(f"v_add_u32 v13, {32*t}, v12")
        a("v_lshrrev_b32 v14, 2, v13")
        a("v_lshlrev_b32 v14, 10, v14")
        a("v_and_b32 v13, 3, v13")
        a("v_lshl_add_u32 v14, v13, 5, v14")
        a("v_add_u32 v14, v14, v11")
        a(f"v_add_u32 v{44+t}, 0x200000, v14")
    a(f"s_and_b32 s{S_T0}, s{S_W}, 1")
    a(f"s_lshl_b32 s{S_T0}, s{S_T0}, 6")
    a(f"v_xor_b32 v10, s{S_T0}, v8")
    a(f"s_lshl_b32 s{S_T1}, s{S_C0}, 1")
    a(f"v_add_u32 v10, s{S_T1}, v10")
    a(f"s_lshl_b32 s{S_T0}, s{S_W}, 3")
    for t, ib in enumerate((0, 4)):
        a(f"v_add_u32 v12, s{S_T0}, v3")
        a(f"v_add_u32 v12, {8*ib}, v12          ; r")
        a("v_lshrrev_b32 v13, 4, v12")
        a("v_mul_u32_u24 v13, 80, v13")
        a("v_and_b32 v12, 15, v12")
        a("v_add_u32 v13, v13, v12")
        a("v_add_u32 v13, 64, v13")
        a("v_mul_u32_u24 v13, 1280, v13")
        a(f"v_add_u32 v{47+t}, v13, v10")

def std_B_setup(a, P, VB, nA):
    a("v_and_b32 v8, 1, v5")
    a("v_lshlrev_b32 v8, 1, v8")
    a("v_xor_b32 v8, v4, v8")
    a("v_lshlrev_b32 v8, 4, v8")
    a(f"s_lshl_b32 s{S_T0}, s{S_W}, 3")
    a(f"v_add_u32 v9, s{S_T0}, v3         ; k = 8w + r8")
    a(f"s_mov_b32 s{S_T0}, {P.ldb}")
    a(f"v_mul_lo_u32 v9, v9, s{S_T0}")
    a("v_add_u32 v9, v9, v8")
    a(f"s_and_b32 s{S_T0}, s{S_W}, 1")
    a(f"s_lshl_b32 s{S_T0}, s{S_T0}, 6")
    a(f"v_xor_b32 v9, s{S_T0}, v9")
    a(f"s_lshl_b32 s{S_T1}, s{S_C0}, 1")
    a(f"v_add_u32 v9, s{S_T1}, v9")
    for t, (pn, ib) in enumerate(P.Bins):
        a(f"v_add_u32 v{VB+nA+t}, {ib*8*P.ldb + P.panel_coloff[pn]}, v9")

def loader_rest(a, P, first, VB, nA, nB, NS, S):

    opr = getattr(P, 'oprime', False)
    Smod = 8 if opr else S
    def soff(kreg, offreg, mul):
        if opr: mul = 128 if offreg == S_AOFF else 102400
        a(f"s_mul_i32 s{offreg}, s{kreg}, {mul}")
    def adv(kreg, offreg, mul, slotreg):
        if getattr(P, 'order2', False) and P1ROT == 'latin2':
            cnt = S_N1 if kreg == S_K else S_N2
            a(f"s_add_u32 s{kreg}, s{kreg}, 2")
            a(f"s_cmp_ge_u32 s{kreg}, {S}")
            a(f"s_cselect_b32 s{S_T0}, {S}, 0")
            a(f"s_sub_u32 s{kreg}, s{kreg}, s{S_T0}")
            a(f"s_add_u32 s{cnt}, s{cnt}, 1")
            a(f"s_cmp_eq_u32 s{cnt}, 5")
            a(f"s_addc_u32 s{kreg}, s{kreg}, 0")
        else:
            a(f"s_add_u32 s{kreg}, s{kreg}, 1")
            a(f"s_cmp_ge_u32 s{kreg}, {Smod}")
            a(f"s_cselect_b32 s{kreg}, 0, s{kreg}")
        soff(kreg, offreg, mul)
        a(f"s_add_u32 s{slotreg}, s{slotreg}, {P.STAGE}")
        a(f"s_cmp_ge_u32 s{slotreg}, {P.STAGE*NS}")
        a(f"s_cselect_b32 s{slotreg}, 0, s{slotreg}")
    def slot_only(slotreg):
        a(f"s_add_u32 s{slotreg}, s{slotreg}, {P.STAGE}")
        a(f"s_cmp_ge_u32 s{slotreg}, {P.STAGE*NS}")
        a(f"s_cselect_b32 s{slotreg}, 0, s{slotreg}")
    def issueA(fill=None, pos=None):
        a(f"s_add_u32 s{S_T3}, s{S_SLOT}, s{S_LW}")
        if opr and pos is not None and pos >= 8:
            a(f"s_mov_b32 s{S_AOFF}, {(pos-8)*512}")
            issueA_body(44, None)
            slot_only(S_SLOT)
            return
        issueA_body(VB, fill)
        adv(S_K, S_AOFF, 128, S_SLOT)
    def issueA_body(vb, fill):
        for t in range(nA):
            special = P.Ains[t]
            sk = None
            if special == 'skip':
                sk = a.new("sk")
                a(f"s_cmp_eq_u64 s[{S_MASK}:{S_MASK+1}], 0")
                a(f"s_cbranch_scc1 {sk}")
            a(f"s_add_u32 m0, s{S_T3}, {t*4096}")
            if special: a(f"s_mov_b64 exec, s[{S_MASK}:{S_MASK+1}]")
            else: a("s_nop 0")
            a(f"buffer_load_dwordx4 v{vb+t}, s[{SRD_A}:{SRD_A+3}], s{S_AOFF} offen{P.scA} lds")
            if special: a("s_mov_b64 exec, -1")
            if sk: a.label(sk)
            if fill:
                for x in fill.pop(0) if fill else []: a(x)
    def issueB(fill=None, pos=None):
        if getattr(P, 'lazyB', False):
            P.lazyB = False
            P.custom_B_setup(a, VB + nA)
        a(f"s_add_u32 s{S_T4}, s{S_SLOTB}, s{S_LW}")
        if opr and pos is not None and pos >= 8:
            a(f"s_mov_b32 s{S_BOFF}, {(pos-8)*409600}")
            issueB_body(47, None)
            slot_only(S_SLOTB)
            return
        issueB_body(VB + nA, fill)
        adv(S_KB, S_BOFF, 64*P.ldb, S_SLOTB)
    def issueB_body(vb, fill):
        for t, ent in enumerate(P.Bins):
            if isinstance(ent, dict):
                sr = SRD_B0; ldsoff = ent['lds']; skp = ent.get('skip')
            else:
                pn, ib = ent
                sr = P.panel_srd[pn]; ldsoff = P.ABYTES + pn*8192 + ib*1024; skp = None
            sk = None
            if skp:
                sk = a.new("skb")
                a(f"s_cmp_ge_u32 s{S_W}, {skp}")
                a(f"s_cbranch_scc1 {sk}")
            a(f"s_add_u32 m0, s{S_T4}, {ldsoff}")
            a("s_nop 0")
            a(f"buffer_load_dwordx4 v{vb+t}, s[{sr}:{sr+3}], s{S_BOFF} offen lds")
            if sk: a.label(sk)
            if fill:
                for x in fill.pop(0) if fill else []: a(x)
    minA = nA - (1 if 'skip' in P.Ains else 0)
    minB = nB - sum(1 for e_ in P.Bins if isinstance(e_, dict) and e_.get('skip'))
    a(f"s_mov_b32 s{S_SLOT}, 0")
    a(f"s_mov_b32 s{S_SLOTB}, 0")
    soff(S_K, S_AOFF, 128)
    soff(S_KB, S_BOFF, 64*P.ldb)
    pB = P.prefetchB if not first else 0
    if pB:
        lp = a.new("bpre")
        a(f"s_mov_b32 s{S_CNT}, {pB}")
        a.label(lp)
        issueB()
        a(f"s_sub_u32 s{S_CNT}, s{S_CNT}, 1")
        a(f"s_cmp_lg_u32 s{S_CNT}, 0")
        a(f"s_cbranch_scc1 {lp}")
    nextra = 0
    if pB and getattr(P, 'extraB', 0) and EXTRAB:
        a(f"s_mov_b32 s4, s{S_KB}")
        for e_ in range(EXTRAB):
            for t in range(nB):
                a(f"buffer_load_dwordx4 v[152:155], v{VB+nA+t}, s[{SRD_B0}:{SRD_B0+3}], s{S_BOFF} offen")
                nextra += 1
            a(f"s_add_u32 s{S_KB}, s{S_KB}, 1")
            a(f"s_cmp_ge_u32 s{S_KB}, {S}")
            a(f"s_cselect_b32 s{S_KB}, 0, s{S_KB}")
            a(f"s_mul_i32 s{S_BOFF}, s{S_KB}, {64*P.ldb}")
        a(f"s_mov_b32 s{S_KB}, s4")
        a(f"s_mul_i32 s{S_BOFF}, s{S_KB}, {64*P.ldb}")
    if not first:
        a("s_barrier      ; B_dep")
    stamp(a, 0)
    L = []
    gate = getattr(P, 'gate', None) if not first else None
    for s in range(S):
        cap = (NS - 1) if s == 0 else s + NS - 2
        prev = L[-1] if L else -1
        if gate and s <= gate[1]:
            L.append(min(gate[0] - 1, cap, prev + 2))
        else:
            L.append(min(S - 1, cap, prev + (3 if gate else 2)))
    if gate:
        assert gate[0] <= pB and gate[0] - 1 <= NS - 1
        nonce_from_lds(a)
    seq = [('B', j) for j in range(pB)]
    if nextra: seq.append(('X', nextra))
    if hasattr(P, 'pre_issue'):
        npre = P.pre_issue(a)
    def cnt_after(s):
        last = max(i for i, (k, j) in enumerate(seq) if j == s and k in 'AB')
        n = 0
        for (k, j) in seq[last+1:]:
            n += minA if k == 'A' else (minB if k == 'B' else j)
        return n
    def issue_stage(j, fill=None):
        if j >= pB:
            issueA(fill, j); seq.append(('A', j))
            issueB(fill, j); seq.append(('B', j))
        else:
            issueA(fill, j); seq.append(('A', j))
    prev = -1
    s = 0
    while s < S:
        k = L[s] - prev
        e = s
        if k == 1 and L[s] >= pB and s > 0 and not getattr(P, 'unroll', False):
            while e + 1 < S and L[e+1] - L[e] == 1 and (L[e+1] - (e+1)) == (L[s] - s) and (getattr(P, 'steady_end', None) is None or e + 1 <= P.steady_end): e += 1
        if e - s >= 2 and s - 0 >= 0 and min(range(s, e+1)) >= 0 and s >= pB - (L[s] - s) and all(j >= pB for j in range(s, s+1)):
            cnt = e - s + 1
            lp = a.new("lmain")
            a(f"s_mov_b32 s{S_CNT}, {cnt}")
            a.label(lp)
            parts = P.loader_stage_work_parts() if P.has_stage_work else None
            issue_stage(L[s], parts)
            if parts:
                for grp in parts:
                    for x in grp: a(x)
            n = cnt_after(s)
            a(f"s_waitcnt vmcnt({n})")
            if P.has_stage_work: a("s_waitcnt lgkmcnt(0)")
            a("s_barrier")
            a(f"s_sub_u32 s{S_CNT}, s{S_CNT}, 1")
            a(f"s_cmp_lg_u32 s{S_CNT}, 0")
            a(f"s_cbranch_scc1 {lp}")
            for j in range(s+1, e+1):
                seq.append(('A', L[j])); seq.append(('B', L[j]))
            prev = L[e]; s = e + 1
            continue
        parts = P.loader_stage_work_parts() if (P.has_stage_work and s > 0) else None
        for j in range(prev+1, L[s]+1):
            issue_stage(j, parts if j == prev+1 else None)
        if s == 0:
            stamp(a, 1)
            ex = P.loader_post_first(a) or 0
            P.l2_prep(a)
            if getattr(P, 'early_pre', False): ex += P.early_setup(a)
            if ex: seq.append(('X', ex))
        if parts:
            for grp in parts:
                for x in grp: a(x)
        nw = P.mid_prefetch(a, s) or 0
        if nw: seq.append(('X', nw))
        if gate and s == gate[1]: P.deps(a, wave=7)
        a(f"s_waitcnt vmcnt({cnt_after(s)})")
        if hasattr(P, 'post_wait'): P.post_wait(a, s)
        if P.has_stage_work or s == 0: a("s_waitcnt lgkmcnt(0)")
        a("s_barrier")
        if s == 0:
            ex = P.loader_post_b0(a) or 0
            if ex: seq.append(('X', ex))
        prev = L[s]; s += 1
    stamp(a, 2)
    if P.has_stage_work:
        for grp in P.loader_stage_work_parts():
            for x in grp: a(x)
    if getattr(P, 'fused', False):
        P.loader_fused_tail(a)
        return
    P.loader_final(a)
    if getattr(P, 'chunk_epi', False): P.loader_store_setup(a)
    if getattr(P, 'early_pre', False):
        a("s_barrier          ; E2")
        P.store_fast(a)
        P.set_fidx(a)
        return
    P.store_pre(a)
    ny = 0
    if P.has_e1:
        a("s_waitcnt lgkmcnt(0)")
        a("s_barrier      ; E1")
    if getattr(P, 'stream_epi', False):
        P.set_fidx(a)
        return
    if getattr(P, 'chunk_epi', False):
        P.loader_epilogue(a)
        P.set_fidx(a)
        return
    a("s_barrier          ; E2")
    store_pass(a, P, ny)

def consumer_phase(a, P, first):
    if getattr(P, 'modeS', False): return consumer_phase_S(a, P, first)
    P.consumer_setup(a)
    NW = len(P.wlist)
    XF = [0, 4*P.NXMAX]
    WF = [8*P.NXMAX, 8*P.NXMAX + 4*NW]
    wk, wt = getattr(P, 'wstep', (4096, 512))
    def reads(kk, buf):
        r = []
        for wi, (areg, off) in enumerate(P.wlist):
            base = WF[buf] + 4*wi
            r.append(f"ds_read_b64_tr_b16 a[{base}:{base+1}], v{areg} offset:{off + kk*wk}")
            r.append(f"ds_read_b64_tr_b16 a[{base+2}:{base+3}], v{areg} offset:{off + kk*wk + wt}")
        for xi, (areg0, areg1, off) in enumerate(P.xlist):
            base = XF[buf] + 4*xi
            areg = areg0 if kk == 0 else areg1
            r.append(f"ds_read_b128 a[{base}:{base+3}], v{areg} offset:{off}")
        return r
    def mfmas(buf, first_=False):
        m = []
        for (xi, wi, acc) in P.mf:
            c = "0" if first_ else f"v[{acc}:{acc+3}]"
            m.append(f"v_mfma_f32_16x16x32_bf16 v[{acc}:{acc+3}], a[{WF[buf]+4*wi}:{WF[buf]+4*wi+3}], a[{XF[buf]+4*xi}:{XF[buf]+4*xi+3}], {c}")
        return m
    block = make_block(a, P.RPM)
    cons_prologue(a, P, first)
    ph0 = first and getattr(P, 'fused', False) and PH0
    if ph0: P.ph0_after_b0(a)
    for x in reads(0, 0): a(x)
    a(f"s_mov_b32 s{S_CNT}, {P.S-1}")
    a("s_waitcnt lgkmcnt(0)")
    def stats4(buf):
        if not getattr(P, 'mfma_stats4', False): return
        sk = a.new("st4")
        a(f"s_and_b32 s{S_T0}, s{S_N1}, 3")
        a(f"s_add_u32 s{S_N1}, s{S_N1}, 1")
        a(f"s_cmp_eq_u32 s{S_T0}, s{S_WAVE}")
        a(f"s_cbranch_scc0 {sk}")
        for x in P.stats_mfmas([f"a[{XF[buf]+4*xi}:{XF[buf]+4*xi+3}]" for xi in range(len(P.xlist))]): a(x)
        a.label(sk)
    st4 = getattr(P, 'mfma_stats4', False)
    block(mfmas(0, True), reads(1, 1), slot_adv(P) + P.addr_update())
    stats4(0)
    if ph0: P.ph0_publish(a)
    lp = a.new("cloop")
    if ALIGN: a.raw(f".p2align {ALIGN}")
    a.label(lp)
    a("s_waitcnt lgkmcnt(0)")
    a("s_barrier")
    block(mfmas(1), reads(0, 0), [f"s_sub_u32 s{S_CNT}, s{S_CNT}, 1"])
    stats4(1)
    a("s_waitcnt lgkmcnt(0)")
    block(mfmas(0), reads(1, 1), slot_adv(P) + P.addr_update() + ([] if st4 else [f"s_cmp_lg_u32 s{S_CNT}, 0"]))
    stats4(0)
    if st4: a(f"s_cmp_lg_u32 s{S_CNT}, 0")
    a(f"s_cbranch_scc1 {lp}")
    a("s_waitcnt lgkmcnt(0)")
    block(mfmas(1), [])
    stats4(1)
    cons_tail(a, P, first)

def make_block(a, RPM):
    def block(m, r, fill=()):
        q = list(r); fl = list(fill)
        for i, x in enumerate(m):
            a(x)
            k = 0
            while q and k < RPM:
                a(q.pop(0)); k += 1
            if not q:
                while fl and k < 2:
                    a(fl.pop(0)); k += 1
        for x in q: a(x)
        for x in fl: a(x)
    return block

def slot_adv(P):
    return [f"s_add_u32 s{S_SLOT}, s{S_SLOT}, {P.STAGE}",
            f"s_cmp_ge_u32 s{S_SLOT}, {P.STAGE*P.NS}",
            f"s_cselect_b32 s{S_SLOT}, 0, s{S_SLOT}"]

def cons_prologue(a, P, first):
    a(f"s_mov_b32 s{S_SLOT}, 0")
    for x in P.addr_update(): a(x)
    if first: ptr_wait(a)
    P.build_srds(a, 'c')
    if not first:
        if P.key == 'p3': dry_call(a, 2, "L_epi3_start", "L_epi3_ret")
        if TWOSTEP: P.deps_first(a)
        else: P.deps(a)
        a("s_barrier      ; B_dep")
        if getattr(P, 'early_pre', False): P.early_setup(a)
        if TWOSTEP and not getattr(P, 'gate', None): P.deps(a)
    else:
        nonce_publish(a)
        if getattr(P, 'fused', False) and PH0: P.ph0_produce(a)
        if getattr(P, 'fused', False):
            dry_call(a, 1, "L_epi1_start", "L_epi1_ret")
            dry_call(a, 2, "L_att_start", "L_att_ret")
    stamp(a, 0)
    a("s_barrier          ; B_0")
    stamp(a, 1)

def cons_tail(a, P, first):
    stamp(a, 2)
    if first and not (getattr(P, 'fused', False) and PH0): nonce_issue(a)
    a("s_nop 7")
    P.epilogue(a)
    if getattr(P, 'stream_epi', False) or getattr(P, 'chunk_epi', False):
        P.set_fidx(a)
        return
    a("s_waitcnt lgkmcnt(0)")
    if getattr(P, 'early_pre', False):
        a("s_barrier          ; E2")
        P.store_fast(a)
        P.set_fidx(a)
        return
    P.store_pre(a)
    a("s_barrier          ; E2")
    store_pass(a, P)

def consumer_phase_S(a, P, first):
    P.consumer_setup(a)
    for r in range(P.ACC, P.ACC + P.NACC): a(f"v_mov_b32 v{r}, 0")
    def rng(t):
        k, i = t
        return f"{k}[{i}:{i+3}]"
    def half(t, h):
        k, i = t
        return f"{k}[{i+2*h}:{i+2*h+1}]"
    def reads(buf):
        r = []
        for kk in range(2):
            for wi, (areg, off) in enumerate(P.wlist):
                t = P.fragW(buf, kk, wi)
                r.append(f"ds_read_b64_tr_b16 {half(t,0)}, v{areg} offset:{off + kk*4096}")
                r.append(f"ds_read_b64_tr_b16 {half(t,1)}, v{areg} offset:{off + kk*4096 + 512}")
            for xi, (areg0, areg1, off) in enumerate(P.xlist):
                areg = areg0 if kk == 0 else areg1
                r.append(f"ds_read_b128 {rng(P.fragX(buf, kk, xi))}, v{areg} offset:{off}")
        return r
    def mfmas(buf):
        m = []
        for kk in range(2):
            for (xi, wi, acc) in P.mf:
                m.append(f"v_mfma_f32_16x16x32_bf16 v[{acc}:{acc+3}], {rng(P.fragW(buf, kk, wi))}, {rng(P.fragX(buf, kk, xi))}, v[{acc}:{acc+3}]")
        return m
    def stats(buf):
        if not getattr(P, 'mfma_stats', False) or 'nostats' in EXP: return
        l1 = a.new("st"); l2 = a.new("st")
        a(f"s_cmp_eq_u32 s{S_J}, 1")
        a(f"s_cbranch_scc1 {l1}")
        for x in P.stats_mfmas([rng(P.fragX(buf, 0, xi)) for xi in range(4)]): a(x)
        a(f"s_branch {l2}")
        a.label(l1)
        for x in P.stats_mfmas([rng(P.fragX(buf, 1, xi)) for xi in range(4)]): a(x)
        a.label(l2)
    block = make_block(a, P.RPM)
    cons_prologue(a, P, first)
    for x in reads(0): a(x)
    for x in slot_adv(P) + P.addr_update(): a(x)
    S = P.S
    npair = (S - 1)//2
    def step(cur, fill_extra=()):
        a("s_waitcnt lgkmcnt(0)")
        a("s_barrier")
        block(mfmas(cur), reads(1 - cur), slot_adv(P) + P.addr_update() + list(fill_extra))
        stats(cur)
    a(f"s_mov_b32 s{S_CNT}, {npair}")
    lp = a.new("cloop")
    if ALIGN: a.raw(f".p2align {ALIGN}")
    a.label(lp)
    step(0, [f"s_sub_u32 s{S_CNT}, s{S_CNT}, 1"])
    step(1)
    a(f"s_cmp_lg_u32 s{S_CNT}, 0")
    a(f"s_cbranch_scc1 {lp}")
    last = 0
    if (S - 1) % 2 == 1:
        step(0); last = 1
    a("s_waitcnt lgkmcnt(0)")
    block(mfmas(last), [])
    stats(last)
    cons_tail(a, P, first)

def ptr_wait(a):
    a("s_waitcnt lgkmcnt(0)")
    if PROFDBG: a(f"s_mov_b32 s{S_P0}, s98")
    srd(a, SRD_FLAG, ptr(KA_WS), WS_FLAG, 0x20000)

def cons_lane(a):
    a("v_and_b32 v3, 15, v2")
    a("v_lshrrev_b32 v4, 4, v2")

def x_addr_const(a, dst, rowbase_sgpr, rowbase_const=0):
    a("v_lshrrev_b32 v5, 1, v3")
    a("v_xor_b32 v5, v4, v5")
    a("v_lshlrev_b32 v5, 4, v5")
    a(f"v_lshl_add_u32 v{dst}, v3, 7, v5")
    if rowbase_sgpr is not None:
        a(f"s_lshl_b32 s{S_T0}, s{rowbase_sgpr}, 7")
        a(f"v_add_u32 v{dst}, s{S_T0}, v{dst}")
    if rowbase_const:
        a(f"v_add_u32 v{dst}, {rowbase_const*128}, v{dst}")

def w_addr_const(a, dst):
    a("v_lshrrev_b32 v5, 2, v3        ; r")
    a("v_lshl_add_u32 v6, v4, 3, v5   ; 8g+r")
    a("v_lshlrev_b32 v6, 7, v6")
    a("v_lshrrev_b32 v5, 1, v5        ; r>>1")
    a("v_and_b32 v7, 1, v4")
    a("v_lshl_or_b32 v5, v7, 1, v5    ; h")
    a("v_lshl_add_u32 v6, v5, 5, v6")
    a("v_and_b32 v5, 3, v3")
    a(f"v_lshl_add_u32 v{dst}, v5, 3, v6")

def t_write_addr(a, dst, base_const):
    a("v_lshrrev_b32 v5, 1, v4")
    a("v_and_b32 v6, 7, v3")
    a("v_xor_b32 v5, v5, v6")
    a("v_lshlrev_b32 v5, 4, v5")
    a("v_and_b32 v6, 1, v4")
    a("v_lshl_add_u32 v5, v6, 3, v5")
    a(f"v_lshl_add_u32 v{dst}, v3, 7, v5")
    a(f"v_add_u32 v{dst}, {base_const}, v{dst}")

def pad_init(a, P, row0, nzero_rows, ones_row):
    a("v_mov_b32 v12, 0"); a("v_mov_b32 v13, 0"); a("v_mov_b32 v14, 0"); a("v_mov_b32 v15, 0")
    a(f"v_mov_b32 v10, {hex(ONES)}")
    a("v_lshlrev_b32 v11, 4, v2        ; lane*16")
    for rep in range((P.NS + 3)//4):
        sk = a.new("pad")
        a(f"s_add_u32 s{S_T0}, s{S_W}, {4*rep}")
        a(f"s_cmp_ge_u32 s{S_T0}, {P.NS}")
        a(f"s_cbranch_scc1 {sk}")
        a(f"s_mul_i32 s{S_T0}, s{S_T0}, {P.STAGE}")
        nb = nzero_rows*128; off = 0
        while off < nb:
            lanes = min(64, (nb - off)//16)
            a(f"v_add_u32 v16, s{S_T0}, v11")
            if lanes < 64: set_exec(a, (1 << lanes) - 1)
            a(f"ds_write_b128 v16, v[12:15] offset:{row0*128 + off}")
            if lanes < 64: a("s_mov_b64 exec, -1")
            off += lanes*16
        if ones_row is not None:
            a(f"v_lshlrev_b32 v16, 2, v2")
            a(f"v_add_u32 v16, s{S_T0}, v16")
            set_exec(a, 0xffffffff)
            a(f"ds_write_b32 v16, v10 offset:{ones_row*128}")
            a("s_mov_b64 exec, -1")
        a.label(sk)

def store_pass(a, P, ny=0):
    a("v_lshrrev_b32 v3, 3, v2")
    a("v_and_b32 v4, 7, v2")
    a("v_xor_b32 v5, v4, v3")
    a("v_lshlrev_b32 v5, 4, v5")
    a("v_lshl_add_u32 v5, v3, 7, v5")
    a(f"s_lshl_b32 s{S_T0}, s{S_WAVE}, 10")
    a(f"v_add_u32 v5, s{S_T0}, v5")
    a(f"v_add_u32 v5, {P.TBASE}, v5")
    a(f"s_lshl_b32 s{S_T0}, s{S_WAVE}, 3")
    a(f"s_add_u32 s{S_T0}, s{S_T0}, s{S_R0}")
    a(f"v_add_u32 v6, s{S_T0}, v3")
    a(f"s_mov_b32 s{S_T1}, {P.ldo}")
    a(f"v_mul_lo_u32 v7, v6, s{S_T1}")
    a(f"s_lshl_b32 s{S_T0}, s{S_C0}, 1")
    a(f"v_lshl_add_u32 v7, v4, 4, v7")
    a(f"v_add_u32 v7, s{S_T0}, v7")
    a("v_mov_b32 v8, 0x80000000")
    P.ny = ny
    P.store_body(a)
    P.set_fidx(a)

def store_addr(a, k, dst, P, coloff=0):
    a(f"v_add_u32 v9, {64*k}, v6")
    a(f"v_cmp_gt_u32 vcc, s{S_REND}, v9")
    a(f"v_add_u32 v{dst}, {64*k*P.ldo + coloff}, v7")
    a("s_nop 0")
    a(f"v_cndmask_b32 v{dst}, v8, v{dst}, vcc")

class P1(Phase):
    key = 'p1'; kind = "p1"; NT = 255
    MV = 121; NC = 128; lda = 1280; ldb = 3840; ldo = 3840
    ABYTES = 16384; STAGE = 32768; NS = 4; S = 10
    NXMAX = 4; RPM = 1
    has_stage_work = False; has_e1 = True
    mfma_stats = True
    order2 = True
    GRAM = 96; SUMA = 112; VONES = 24
    modeS = True; NACC = 64
    def fragW(self, buf, kk, wi): return ('a', 64*buf + 16*kk + 4*wi)
    def fragX(self, buf, kk, xi):
        if buf == 0: return ('a', 32 + 16*kk + 4*xi)
        return ('v', 128 + 16*kk + 4*xi)
    scA = ""
    panel_coloff = [0, 128]; panel_srd = [SRD_B0, SRD_B0]
    LDS_ST = 131072; LDS_CS = 131072 + 2048
    TBASE = 2*32768
    rot = (5, 10, 2)
    Ains = [None, None, None, 'mask']
    Bins = [(0, 0), (0, 4), (1, 0), (1, 4)]
    def __init__(self):
        self.vXc, self.vWc = 8, 9
        self.vXa, self.vXb = 10, 11
        self.vW = [12, 13, 14, 15]
        self.xlist = [(self.vXa, self.vXb, 2048*x) for x in range(4)]
        self.wlist = [(self.vW[f], self.ABYTES) for f in range(4)]
        self.ACC = 32
        self.mf = [(x, f, self.ACC + 4*(4*x + f)) for x in range(4) for f in range(4)]
    def rot_start(self, a):
        if P1ROT == "lock":
            a(f"s_mov_b32 s{S_K}, 0"); return
        if P1ROT == "two":
            a(f"s_add_u32 s{S_K}, s{S_RT}, s{S_CT}")
            a(f"s_and_b32 s{S_K}, s{S_K}, 1")
            a(f"s_mul_i32 s{S_K}, s{S_K}, 5"); return
        if P1ROT == "ten":
            a(f"s_mul_i32 s{S_K}, s{S_RT}, 3")
            a(f"s_add_u32 s{S_K}, s{S_K}, s{S_CT}")
            divc(a, S_T0, S_K, 10)
            a(f"s_mul_i32 s{S_T0}, s{S_T0}, 10")
            a(f"s_sub_u32 s{S_K}, s{S_K}, s{S_T0}"); return
        a(f"s_add_u32 s{S_K}, s{S_RT}, s{S_CT}")
        divc(a, S_T0, S_K, 5)
        a(f"s_mul_i32 s{S_T0}, s{S_T0}, 5")
        a(f"s_sub_u32 s{S_K}, s{S_K}, s{S_T0}")
        a(f"s_lshl_b32 s{S_K}, s{S_K}, 1")
    def l2_prep(self, a): l2_setup(a, "rm", 250, 64, KA_WO, D*D*2, 1280, D)
    def mid_prefetch(self, a, s):
        if s == 8: return l2_issue(a, KA_WO, 1280, D)
    def mask_setup(self, a):
        a(f"s_cmp_eq_u32 s{S_W}, 3")
        a(f"s_cselect_b32 s{S_MASK}, 0xff, -1")
        a(f"s_cselect_b32 s{S_MASK+1}, 0, -1")
    def build_srds(self, a, role):
        if role == 'l':
            srd(a, SRD_A, ptr(KA_X), 0, S_TOK*D*2)
            srd(a, SRD_B0, ptr(KA_WQKV), 0, D*NQKV*2)
        srd(a, SRD_OUT, ptr(KA_WS), WS_QKV, S_TOK*NQKV*2)
    def set_fidx(self, a):
        a(f"s_mul_i32 s{S_FIDX}, s{S_RT}, 15")
        a(f"s_add_u32 s{S_FIDX}, s{S_FIDX}, s{S_CT}")
        a(f"s_lshl_b32 s{S_FIDX}, s{S_FIDX}, 7")
    def loader_post_first(self, a):
        pad_init(a, self, 121, 6, 127)
        return 0
    def stats_mfmas(self, xregs):
        m = []
        for x in range(4):
            xa = xregs[x]
            g = self.GRAM + 4*x; sm = self.SUMA + 4*x
            m.append(f"v_mfma_f32_16x16x32_bf16 v[{g}:{g+3}], {xa}, {xa}, v[{g}:{g+3}]")
            m.append(f"v_mfma_f32_16x16x32_bf16 v[{sm}:{sm+3}], v[{self.VONES}:{self.VONES+3}], {xa}, v[{sm}:{sm+3}]")
        return m
    def consumer_setup(self, a):
        cons_lane(a)
        a(f"s_lshr_b32 s{S_I}, s{S_WAVE}, 1")
        a(f"s_and_b32 s{S_J}, s{S_WAVE}, 1")
        a(f"s_lshl_b32 s{S_T1}, s{S_I}, 6")
        x_addr_const(a, self.vXc, S_T1)
        w_addr_const(a, self.vWc)
        a(f"s_lshl_b32 s{S_T0}, s{S_J}, 13")
        a(f"v_add_u32 v{self.vWc}, s{S_T0}, v{self.vWc}")
        for r in range(4): a(f"v_mov_b32 v{self.VONES+r}, {hex(ONES)}")
        for r in range(32): a(f"v_mov_b32 v{self.GRAM+r}, 0")
        a(f"s_lshl_b32 s{S_T0}, s{S_J}, 8       ; j*64*4")
        a(f"v_lshlrev_b32 v16, 4, v4            ; g*16 bytes")
        a(f"v_add_u32 v16, s{S_T0}, v16")
        a(f"v_add_u32 v16, {self.LDS_CS}, v16")
        t_write_addr(a, 17, self.TBASE)
        a(f"s_lshl_b32 s{S_T0}, s{S_WAVE}, 13")
        a(f"v_add_u32 v17, s{S_T0}, v17")
        for f in range(1, 4): a(f"v_xor_b32 v{17+f}, {32*f}, v17")
        a(f"s_lshl_b32 s{S_T0}, s{S_I}, 9       ; i*64*8")
        a(f"s_lshl_b32 s{S_T1}, s{S_J}, 10      ; j*128*8")
        a(f"s_add_u32 s{S_T1}, s{S_T1}, s{S_T0}")
        a(f"v_lshlrev_b32 v7, 3, v3")
        a(f"v_add_u32 v21, s{S_T1}, v7")
        a(f"v_add_u32 v21, {self.LDS_ST}, v21")
        a(f"v_add_u32 v22, s{S_T0}, v7")
        a(f"v_add_u32 v22, {self.LDS_ST}, v22")
        a("v_lshrrev_b32 v5, 3, v2             ; r8")
        a("v_and_b32 v6, 7, v2                 ; c")
        a("v_xor_b32 v7, v6, v5")
        a("v_lshlrev_b32 v7, 4, v7")
        a("v_lshl_add_u32 v23, v5, 7, v7")
        a(f"s_lshl_b32 s{S_T0}, s{S_WAVE}, 13")
        a(f"s_add_u32 s{S_T0}, s{S_T0}, {self.TBASE}")
        a(f"v_add_u32 v23, s{S_T0}, v23")
        a(f"s_lshl_b32 s{S_T0}, s{S_I}, 6")
        a(f"s_add_u32 s{S_T0}, s{S_T0}, s{S_R0}")
        a(f"v_add_u32 v28, s{S_T0}, v5")
        a(f"s_mov_b32 s{S_T1}, 3840")
        a(f"v_mul_lo_u32 v28, v28, s{S_T1}")
        a("v_lshl_add_u32 v28, v6, 4, v28")
        a(f"s_lshl_b32 s{S_T0}, s{S_J}, 6")
        a(f"s_add_u32 s{S_T0}, s{S_T0}, s{S_C0}")
        a(f"s_lshl_b32 s{S_T0}, s{S_T0}, 1")
        a(f"v_add_u32 v28, s{S_T0}, v28")
    def addr_update(self):
        r = [f"v_add_u32 v{self.vXa}, s{S_SLOT}, v{self.vXc}",
             f"v_add_u32 v{self.vW[0]}, s{S_SLOT}, v{self.vWc}",
             f"v_xor_b32 v{self.vXb}, 64, v{self.vXa}"]
        for f in range(1, len(self.vW)):
            r.append(f"v_xor_b32 v{self.vW[f]}, {32*f}, v{self.vW[0]}")
        return r
    stream_epi = True
    def epilogue(self, a):
        nocs = a.new("nocs")
        a(f"s_cmp_eq_u32 s{S_I}, 1")
        a(f"s_cbranch_scc0 {nocs}")
        set_exec(a, 0x8000800080008000)
        for f in range(4):
            acc = self.ACC + 4*(4*3 + f)
            a(f"ds_write_b128 v16, v[{acc}:{acc+3}] offset:{64*f}")
        a("s_mov_b64 exec, -1")
        a.label(nocs)
        for i_, m_ in enumerate((0x22222222, 0x44444444, 0x88888888)):
            a(f"s_mov_b32 s{80+2*i_}, {hex(m_)}"); a(f"s_mov_b32 s{81+2*i_}, {hex(m_)}")
        for x in range(4):
            g = self.GRAM + 4*x
            a(f"v_cndmask_b32 v{g+1}, v{g}, v{g+1}, s[80:81]")
            a(f"v_cndmask_b32 v{g+1}, v{g+1}, v{g+2}, s[82:83]")
            a(f"v_cndmask_b32 v{g+1}, v{g+1}, v{g+3}, s[84:85]")
            a(f"v_mov_b32 v{g}, v{self.SUMA+4*x}           ; sum")
        set_exec(a, 0xF | (0xF << 20) | (0xF << 40) | (0xF << 60))
        for x in range(4):
            g = self.GRAM + 4*x
            a(f"ds_write_b64 v21, v[{g}:{g+1}] offset:{128*x}")
        a("s_mov_b64 exec, -1")
        a("s_waitcnt lgkmcnt(0)")
        a("s_barrier      ; E1")
        CS = 128; ST = 144
        for x in range(4):
            a(f"ds_read_b64 v[{ST+2*x}:{ST+2*x+1}], v22 offset:{128*x}")
            a(f"ds_read_b64 v[{96+2*x}:{97+2*x}], v22 offset:{1024 + 128*x}")
        for f in range(4):
            a(f"ds_read_b128 v[{CS+4*f}:{CS+4*f+3}], v16 offset:{64*f}")
        a("s_waitcnt lgkmcnt(4)")
        for x in range(4):
            st = ST + 2*x
            a(f"v_pk_add_f32 v[{st}:{st+1}], v[{st}:{st+1}], v[{96+2*x}:{97+2*x}]")
            a(f"v_mul_f32 v{st}, {hex(f2u(1.0/D))}, v{st}          ; mean")
            a(f"v_mul_f32 v{st+1}, {hex(f2u(1.0/D))}, v{st+1}")
            a(f"v_fma_f32 v{st+1}, -v{st}, v{st}, v{st+1}      ; var")
            a(f"v_add_f32 v{st+1}, {hex(f2u(1e-5))}, v{st+1}")
            a(f"v_rsq_f32 v{st+1}, v{st+1}")
        a("s_waitcnt lgkmcnt(0)")
        RB = [96, 104]
        def stores(x):
            rb = RB[x & 1]
            for u in range(2):
                a(f"v_add_u32 v{29+u}, {(16*x + 8*u)*3840}, v28")
            for u in range(2):
                if x == 3 and u == 1:
                    a(f"s_cmp_eq_u32 s{S_I}, 1")
                    a("s_cselect_b32 exec_lo, 0xff, -1")
                    a("s_cselect_b32 exec_hi, 0, -1")
                a(f"buffer_store_dwordx4 v[{rb+4*u}:{rb+4*u+3}], v{29+u}, s[{SRD_OUT}:{SRD_OUT+3}], 0 offen{SC1}")
            if x == 3: a("s_mov_b64 exec, -1")
        for x in range(4):
            st = ST + 2*x
            for f in range(4):
                acc = self.ACC + 4*(4*x + f)
                for hh in (0, 2):
                    a(f"v_pk_fma_f32 v[{acc+hh}:{acc+hh+1}], v[{CS+4*f+hh}:{CS+4*f+hh+1}], v[{st}:{st+1}], v[{acc+hh}:{acc+hh+1}] op_sel_hi:[1,0,1] neg_lo:[0,1,0] neg_hi:[0,1,0]")
                for hh in (0, 2):
                    a(f"v_pk_mul_f32 v[{acc+hh}:{acc+hh+1}], v[{acc+hh}:{acc+hh+1}], v[{st}:{st+1}] op_sel:[0,1] op_sel_hi:[1,1]")
                a(f"v_cvt_pk_bf16_f32 v{acc}, v{acc}, v{acc+1}")
                a(f"v_cvt_pk_bf16_f32 v{acc+1}, v{acc+2}, v{acc+3}")
                a(f"ds_write_b64 v{17+f}, v[{acc}:{acc+1}] offset:{2048*x}")
            rb = RB[x & 1]
            if x >= 1:
                a("s_waitcnt lgkmcnt(4)")
                stores(x - 1)
            for u in range(2):
                a(f"ds_read_b128 v[{rb+4*u}:{rb+4*u+3}], v23 offset:{2048*x + 1024*u}")
        a("s_waitcnt lgkmcnt(0)")
        stores(3)


class P1F(Phase):
    key = 'p1'; kind = "p1f"; NT = 256
    MV = 64; NC = 80; lda = 1280; ldb = 3840
    ABYTES = 10240; STAGE = 40960; NS = 3; S = 10
    NXMAX = 5; RPM = 1
    has_e1 = True; fused = True; custom_B = True
    scA = ""
    Ains = [None, None, 'skip']
    Bins = [dict(lds=10240 + 4096*t) for t in range(7)] + [dict(lds=10240 + 4096*7, skip=2)]
    panel_srd = [SRD_B0]
    LDS_STP = 122880
    QT = 40960; QROW = 488
    OT = 81920; OROW = 176
    ACC = 32; GRAM = 112; SUMA = 132; VONES = 152
    @property
    def mfma_stats4(self): return not PH0
    @property
    def steady_end(self): return 6 if PH0 else None
    def __init__(self):
        self.vXc = 8; self.vXa, self.vXb = 9, 10
        self.vWc = [11, 12, 13, 14]; self.vW = [15, 16, 17, 18]
        self.xlist = [(self.vXa, self.vXb, 2048*x) for x in range(5)]
        self.wlist = None
        self.mf = [(x, j, self.ACC + 4*(4*x + j)) for x in range(5) for j in range(4)]
    def rot_start(self, a):
        if P1FROT == 'lock':
            a(f"s_mov_b32 s{S_K}, 0"); return
        if P1FROT == 'rot4':
            a(f"s_and_b32 s{S_K}, s{S_RT}, 3")
            a(f"s_and_b32 s{S_T0}, s{S_CT}, 1")
            a(f"s_lshl_b32 s{S_T0}, s{S_T0}, 2")
            a(f"s_add_u32 s{S_K}, s{S_K}, s{S_T0}"); return
        if P1FROT == 'rot8':
            a(f"s_and_b32 s{S_K}, s{S_RT}, 7")
            a(f"s_mul_i32 s{S_K}, s{S_K}, 5")
            a(f"s_lshr_b32 s{S_K}, s{S_K}, 2")
            return
        a(f"s_add_u32 s{S_K}, s{S_RT}, s{S_CT}")
        divc(a, S_T0, S_K, 5)
        a(f"s_mul_i32 s{S_T0}, s{S_T0}, 5")
        a(f"s_sub_u32 s{S_K}, s{S_K}, s{S_T0}")
        a(f"s_lshl_b32 s{S_K}, s{S_K}, 1")
    @property
    def order2(self): return P1FROT == 'latin2'
    def pre_issue(self, a):
        if not APF: return 0
        a(f"s_and_b32 s{S_T0}, s{S_CT}, 3")
        a(f"s_mul_i32 s{S_T0}, s{S_T0}, 20")
        a(f"s_add_u32 s{S_T0}, s{S_T0}, s{S_R0}")
        a(f"s_mul_i32 s{S_T0}, s{S_T0}, 1280")
        a(f"s_lshl_b32 s{S_T1}, s{S_W}, 10")
        a(f"s_add_u32 s{S_T0}, s{S_T0}, s{S_T1}")
        a("v_lshlrev_b32 v60, 4, v2")
        a(f"v_add_u32 v60, s{S_T0}, v60")
        n = 7
        for i in range(n):
            a(f"buffer_load_dwordx4 v[152:155], v60, s[{SRD_A}:{SRD_A+3}], 0 offen")
            if i + 1 < n: a("v_add_u32 v60, 4096, v60")
        return n
    def tile_consts(self, a):
        a(f"s_lshl_b32 s{S_R0}, s{S_RT}, 6")
        a(f"s_sub_u32 s{S_R0}, s{S_R0}, 14")
        a(f"s_mul_i32 s{S_C0}, s{S_CT}, 160")
    def mask_setup(self, a):
        a(f"s_cmp_eq_u32 s{S_W}, 0")
        a(f"s_cselect_b32 s{S_MASK+1}, -1, 0xffff")
        a(f"s_cmp_lt_u32 s{S_W}, 2")
        a(f"s_cselect_b32 s{S_MASK}, -1, 0")
        a(f"s_cselect_b32 s{S_MASK+1}, s{S_MASK+1}, 0")
    def custom_B_setup(self, a, vb):
        a(f"s_lshl_b32 s{S_T0}, s{S_W}, 6")
        a(f"v_add_u32 v8, s{S_T0}, v2            ; c0")
        vdiv(a, 9, 8, 10, 256)
        a("v_mul_u32_u24 v10, 10, v9")
        a("v_sub_u32 v10, v8, v10                ; ch")
        a("v_mul_u32_u24 v11, 3840, v9")
        a("v_lshl_add_u32 v11, v10, 4, v11")
        a(f"v_add_u32 v{vb}, s{S_C0}, v11         ; voff t=0")
        for t in range(1, 8):
            a("v_add_u32 v10, 6, v10")
            a("v_add_u32 v9, 25, v9")
            a("v_cmp_le_u32 vcc, 10, v10")
            a(f"v_add_u32 v{vb+t}, {25*3840 + 96}, v{vb+t-1}")
            a("v_subrev_u32 v12, 10, v10")
            a("v_cndmask_b32 v10, v10, v12, vcc")
            a("v_addc_co_u32 v9, vcc, 0, v9, vcc") if False else None
            a(f"v_add_u32 v12, {3840 - 160}, v{vb+t}")
            a(f"v_cndmask_b32 v{vb+t}, v{vb+t}, v12, vcc")
            a("v_add_u32 v12, 1, v9")
            a("v_cndmask_b32 v9, v9, v12, vcc")
            a("v_cmp_le_u32 vcc, 64, v9")
            a(f"v_add_u32 v12, {(1280 - 64*3840) & 0xffffffff}, v{vb+t}")
            a("v_subrev_u32 v13, 64, v9")
            a(f"v_cndmask_b32 v{vb+t}, v{vb+t}, v12, vcc")
            a("v_cndmask_b32 v9, v9, v13, vcc")
    def build_srds(self, a, role):
        if role == 'l':
            srd(a, SRD_A, ptr(KA_X), 0, S_TOK*D*2)
            srd(a, SRD_B0, ptr(KA_WQKV), 0, D*NQKV*2)
        srd(a, SRD_OUT, ptr(KA_WS), WS_O, 0x280000)
    def set_fidx(self, a):
        a(f"s_lshl_b32 s{S_FIDX}, s{S_RT}, 3")
        a(f"s_add_u32 s{S_FIDX}, s{S_FIDX}, s{S_CT}")
        a(f"s_lshl_b32 s{S_FIDX}, s{S_FIDX}, 7")
        a(f"s_add_u32 s{S_FIDX}, s{S_FIDX}, 0x8000")
    def l2_prep(self, a): l2_setup(a, "rm", 250, 64, KA_WO, D*D*2, 1280, D)
    @property
    def unroll(self): return SPF != 0
    def spf_setup(self, a):
        a(f"s_lshl_b32 s{S_T0}, s2, 2")
        a(f"s_add_u32 s{S_T0}, s{S_T0}, s{S_W}        ; q")
        a(f"s_mul_i32 s{S_T1}, s{S_T0}, 2560")
        a(f"s_add_u32 s98, s{ptr(KA_X)}, s{S_T1}")
        a(f"s_addc_u32 s99, s{ptr(KA_X)+1}, 0")
        sdiv(a, S_T1, S_T0, 205, 1100)
        a(f"s_mul_i32 s{S_T2}, s{S_T1}, 205")
        a(f"s_sub_u32 s{S_T2}, s{S_T0}, s{S_T2}")
        a(f"s_min_u32 s{S_T2}, s{S_T2}, 201")
        a(f"s_mul_i32 s{S_T2}, s{S_T2}, 1216")
        a(f"s_lshl_b32 s{S_T1}, s{S_T1}, 1")
        a(f"s_add_u32 s{S_T1}, s{S_T1}, 1")
        a(f"s_mul_i32 s{S_T1}, s{S_T1}, 245760")
        a(f"s_add_u32 s{S_T1}, s{S_T1}, s{S_T2}")
        a(f"s_add_u32 s100, s{ptr(KA_WQKV)}, s{S_T1}")
        a(f"s_addc_u32 s101, s{ptr(KA_WQKV)+1}, 0")
    def spf_list(self):
        L_ = []
        for i in range(19): L_.append(("s[100:101]", 64*i))
        for k in (1, 3, 5, 7, 9):
            for r in range(2):
                for h in range(2): L_.append(("s[98:99]", r*1280 + k*128 + h*64))
        return L_
    def mid_prefetch(self, a, s):
        if SPF:
            if s == 0: self.spf_setup(a)
            L_ = self.spf_list()
            per = SPF
            if s >= 1 and s <= 4:
                for base, off in L_[per*(s-1): per*s]:
                    a(f"s_load_dword s3, {base}, {off}")
            if SPF2 and s >= 5:
                if s == 5:
                    a(f"s_lshl_b32 s{S_T0}, s2, 2")
                    a(f"s_add_u32 s{S_T0}, s{S_T0}, s{S_W}")
                    a(f"s_mul_i32 s{S_T1}, s{S_T0}, 800")
                    a(f"s_add_u32 s98, s{ptr(KA_WO)}, s{S_T1}")
                    a(f"s_addc_u32 s99, s{ptr(KA_WO)+1}, 0")
                    a(f"s_mul_i32 s{S_T1}, s{S_T0}, 2160")
                    a(f"s_add_u32 s100, s{ptr(SPF2)}, s{S_T1}")
                    a(f"s_addc_u32 s101, s{ptr(SPF2)+1}, 0")
                L2 = [("s[98:99]", 64*i) for i in range(13)] + [("s[100:101]", 64*i) for i in range(34)]
                for base, off in L2[10*(s-5): 10*(s-4)]:
                    a(f"s_load_dword s3, {base}, {off}")
        if PH0 and s == 7: return self.ph0_issue(a)
        if s == 9: return l2_issue(a, KA_WO, 1280, D)
    def loader_post_first(self, a):
        pad_init(a, self, 78, 1, 79)
        self.att_setup(a)
        return 0
    def att_setup(self, a):
        QT, QROW = self.QT, self.QROW
        a("v_and_b32 v3, 3, v2             ; i")
        a("v_bfe_u32 v4, v2, 2, 2          ; head")
        a("v_lshrrev_b32 v5, 4, v2         ; grp")
        a("v_lshrrev_b32 v6, 1, v5")
        a("v_lshlrev_b32 v6, 3, v6")
        a("v_and_b32 v7, 1, v5")
        a("v_add_u32 v6, v6, v7")
        a(f"s_lshl_b32 s{S_T0}, s{S_W}, 4")
        a(f"v_add_u32 v6, s{S_T0}, v6")
        a("v_lshlrev_b32 v7, 1, v3")
        a("v_add_u32 v7, v6, v7            ; rb + 2i")
        a(f"v_mul_u32_u24 v8, {QROW}, v7")
        a("v_mul_u32_u24 v9, 40, v4")
        a("v_add_u32 v8, v8, v9")
        a(f"v_add_u32 v144, {QT + 14*QROW}, v8")
        a(f"v_add_u32 v145, {QT + 160}, v8")
        a("v_cmp_eq_u32 vcc, 3, v3")
        a(f"v_mov_b32 v10, {16*QROW}")
        a(f"v_mov_b32 v11, {14*QROW}")
        a("v_cndmask_b32 v10, v10, v11, vcc")
        a("v_add_u32 v146, v145, v10")
        a(f"v_mul_u32_u24 v12, {self.OROW}, v7")
        a("v_add_u32 v12, v12, v9")
        a(f"v_add_u32 v118, {self.OT}, v12")
        a("v_lshlrev_b32 v12, 1, v4               ; 2r")
        a("v_add_u32 v12, v6, v12")
        a(f"v_mul_u32_u24 v12, {QROW}, v12")
        a("v_mul_u32_u24 v13, 40, v3")
        a("v_add_u32 v12, v12, v13")
        a(f"v_add_u32 v147, {QT + 320}, v12")
        a("v_cmp_eq_u32 vcc, 3, v4")
        a(f"v_mov_b32 v10, {16*QROW}")
        a("s_nop 0")
        a("v_cndmask_b32 v10, v10, v11, vcc")
        a("v_add_u32 v119, v147, v10")
        a(f"v_mov_b32 v12, {hex(f2u(-1e30))}")
        a("v_mov_b32 v13, 0")
        a(f"v_add_u32 v14, s{S_R0}, v6")
        for m in range(12):
            a(f"v_sub_u32 v15, {m}, v3")
            a("v_cmp_gt_u32 vcc, 8, v15")
            a(f"v_add_u32 v16, {2*m}, v14")
            a("v_cmp_le_i32 s[4:5], 0, v16")
            a("s_nop 1")
            a("s_and_b64 vcc, vcc, s[4:5]")
            a(f"v_cndmask_b32 v{120+m}, v12, v13, vcc")
        self.store_addr_setup(a)
    def ph0_produce(self, a):
        srd(a, SRD_AUX, ptr(KA_X), 0, S_TOK*D*2)
        srd(a, SRD_ST, ptr(KA_WS), WS_ST1, S_TOK*16)
        a(f"s_lshl_b32 s{S_T0}, s{S_RT}, 6")
        a(f"s_lshl_b32 s{S_T1}, s{S_CT}, 3")
        a(f"s_add_u32 s{S_T0}, s{S_T0}, s{S_T1}")
        a(f"s_lshl_b32 s{S_T1}, s{S_WAVE}, 1")
        a(f"s_add_u32 s{S_T0}, s{S_T0}, s{S_T1}")
        a("v_lshrrev_b32 v5, 5, v2")
        a(f"v_add_u32 v5, s{S_T0}, v5            ; row")
        a("v_and_b32 v6, 31, v2                  ; j")
        a("v_mul_u32_u24 v7, 1280, v5")
        a("v_lshl_add_u32 v7, v6, 4, v7")
        a("v_mov_b32 v30, 0x80000000")
        a("v_cmp_gt_u32 vcc, 16, v6")
        a("v_add_u32 v31, 1024, v7")
        a(f"buffer_load_dwordx4 v[32:35], v7, s[{SRD_AUX}:{SRD_AUX+3}], 0 offen")
        a("v_cndmask_b32 v31, v30, v31, vcc")
        a(f"buffer_load_dwordx4 v[36:39], v7, s[{SRD_AUX}:{SRD_AUX+3}], 0 offen offset:512")
        a(f"buffer_load_dwordx4 v[40:43], v31, s[{SRD_AUX}:{SRD_AUX+3}], 0 offen")
        a("s_waitcnt vmcnt(0)")
        a(f"v_mov_b32 v48, {hex(ONES)}")
        for r in (49, 50, 51, 52): a(f"v_mov_b32 v{r}, 0")
        for d in range(12):
            s_, q_ = (49, 50) if d & 1 == 0 else (51, 52)
            a(f"v_dot2_f32_bf16 v{s_}, v{32+d}, v48, v{s_}")
            a(f"v_dot2_f32_bf16 v{q_}, v{32+d}, v{32+d}, v{q_}")
        a("s_nop 2")
        a("v_add_f32 v44, v49, v51")
        a("v_add_f32 v45, v50, v52")
        a("s_nop 1")
        for dpp in ("quad_perm:[1,0,3,2]", "quad_perm:[2,3,0,1]", "row_half_mirror", "row_mirror"):
            a(f"v_add_f32_dpp v44, v44, v44 {dpp} row_mask:0xf bank_mask:0xf")
            a(f"v_add_f32_dpp v45, v45, v45 {dpp} row_mask:0xf bank_mask:0xf")
            a("s_nop 0")
        a("v_mov_b32 v49, v44"); a("v_mov_b32 v50, v45")
        a("s_nop 1")
        a("v_permlane16_swap_b32 v44, v49"); a("v_permlane16_swap_b32 v45, v50")
        a("s_nop 1")
        a("v_add_f32 v44, v44, v49"); a("v_add_f32 v45, v45, v50")
        a(f"v_mul_f32 v44, {hex(f2u(1.0/D))}, v44")
        a(f"v_mul_f32 v45, {hex(f2u(1.0/D))}, v45")
        a("v_fma_f32 v45, -v44, v44, v45")
        a(f"v_add_f32 v45, {hex(f2u(1e-5))}, v45")
        a("v_rsq_f32 v45, v45")
        a("v_mov_b32 v112, v44")
        a("v_mov_b32 v113, v45")
        a("v_lshlrev_b32 v116, 4, v5              ; row*16")
        a("v_mov_b32 v117, 0")
        dbg_srd(a)
    def ph0_after_b0(self, a):
        a(f"buffer_load_dwordx2 v[114:115], v117, s[80:83], 0 offen{SC1}")
    def ph0_publish(self, a):
        loop = a.new("p0n"); done = a.new("p0d"); chk = a.new("p0h")
        a(f"s_mov_b32 s{S_T0}, 0x40000")
        a(f"s_branch {chk}")
        a.label(loop)
        a("s_sleep 4")
        a(f"buffer_load_dwordx2 v[114:115], v117, s[80:83], 0 offen{SC1}")
        a.label(chk)
        a("s_waitcnt vmcnt(0)")
        a(f"v_readfirstlane_b32 s{S_NONCE}, v114")
        a(f"v_readfirstlane_b32 s{S_NONCE+1}, v115")
        a("s_nop 3")
        a(f"s_cmp_lg_u32 s{S_NONCE}, 0")
        a(f"s_cbranch_scc1 {done}")
        a(f"s_sub_u32 s{S_T0}, s{S_T0}, 1")
        a(f"s_cmp_lg_u32 s{S_T0}, 0")
        a(f"s_cbranch_scc1 {loop}")
        a.label(done)
        set_exec(a, 1 | (1 << 32))
        a(f"buffer_store_dwordx4 v[112:115], v116, s[{SRD_ST}:{SRD_ST+3}], 0 offen{SC1}")
        a("s_mov_b64 exec, -1")
    def ph0_issue(self, a):
        srd(a, SRD_ST, ptr(KA_WS), WS_ST1, S_TOK*16)
        a(f"s_mov_b32 s{SRD_AUX}, s{ptr(KA_DBG)}")
        a(f"s_and_b32 s{SRD_AUX+1}, s{ptr(KA_DBG)+1}, 0xffff")
        a(f"s_mov_b32 s{SRD_AUX+2}, 0x100")
        a(f"s_mov_b32 s{SRD_AUX+3}, 0x20000")
        a(f"s_lshl_b32 s{S_T0}, s{S_W}, 6")
        a(f"v_add_u32 v62, s{S_T0}, v2")
        a(f"v_add_u32 v63, s{S_R0}, v62")
        a("v_cmp_gt_u32 vcc, 78, v62")
        a("v_cmp_le_i32 s[4:5], 0, v63")
        a("v_lshlrev_b32 v63, 4, v63")
        a("v_mov_b32 v64, 0x80000000")
        a("s_and_b64 s[98:99], vcc, s[4:5]")
        a("v_mov_b32 v65, 0")
        a("v_cndmask_b32 v63, v64, v63, s[98:99]")
        a(f"buffer_load_dwordx2 v[60:61], v65, s[{SRD_AUX}:{SRD_AUX+3}], 0 offen{SC1}")
        a(f"buffer_load_dwordx4 v[56:59], v63, s[{SRD_ST}:{SRD_ST+3}], 0 offen{SC1}")
        return 2
    def ph0_check(self, a):
        loop = a.new("p0c"); ok = a.new("p0k")
        a(f"s_mov_b32 s{S_T2}, 0x10000")
        a.label(loop)
        a("v_cmp_ne_u64 vcc, v[58:59], v[60:61]")
        a("s_nop 1")
        a("s_and_b64 vcc, vcc, s[98:99]")
        a(f"s_cbranch_vccz {ok}")
        a(f"buffer_load_dwordx2 v[60:61], v65, s[{SRD_AUX}:{SRD_AUX+3}], 0 offen{SC1}")
        a(f"buffer_load_dwordx4 v[56:59], v63, s[{SRD_ST}:{SRD_ST+3}], 0 offen{SC1}")
        a("s_waitcnt vmcnt(0)")
        a(f"s_sub_u32 s{S_T2}, s{S_T2}, 1")
        a(f"s_cmp_lg_u32 s{S_T2}, 0")
        a(f"s_cbranch_scc1 {loop}")
        a.label(ok)
        a("v_lshlrev_b32 v62, 3, v62")
        a(f"v_add_u32 v62, {self.LDS_STP}, v62")
        a(f"s_cmp_lt_u32 s{S_W}, 2")
        a("s_cselect_b32 exec_lo, -1, 0")
        a(f"s_cmp_eq_u32 s{S_W}, 0")
        a("s_cselect_b32 exec_hi, -1, 0")
        a(f"s_cmp_eq_u32 s{S_W}, 1")
        a("s_cselect_b32 exec_lo, 0xffff, exec_lo")
        sk = a.new("p0w")
        a(f"s_cbranch_execz {sk}")
        a("ds_write_b64 v62, v[56:57]")
        a.label(sk)
        a("s_mov_b64 exec, -1")
        a("s_waitcnt lgkmcnt(0)")
    def post_wait(self, a, s):
        if PH0 and s == 9: self.ph0_check(a)
    def store_addr_setup(self, a, regs=(148, 149, 156, 157), tmp=3):
        lm, lt, gm, gt = regs
        t0, t1, t2 = tmp, tmp + 1, tmp + 2
        a(f"v_lshrrev_b32 v{t0}, 3, v2             ; r8")
        a(f"v_and_b32 v{t1}, 7, v2                 ; p")
        a(f"s_lshl_b32 s{S_T0}, s{S_WAVE}, 3")
        a(f"v_add_u32 v{t2}, s{S_T0}, v{t0}")
        a(f"v_mul_u32_u24 v{lm}, {self.OROW}, v{t2}")
        a(f"v_lshl_add_u32 v{lm}, v{t1}, 4, v{lm}")
        a(f"v_add_u32 v{lm}, {self.OT}, v{lm}")
        a(f"s_add_u32 s{S_T0}, s{S_R0}, 14          ; T0")
        a(f"v_add_u32 v{gm}, s{S_T0}, v{t2}")
        a(f"v_lshlrev_b32 v{gm}, 10, v{gm}")
        a(f"v_lshl_add_u32 v{gm}, v{t1}, 4, v{gm}")
        a(f"s_lshl_b32 s{S_T1}, s{S_CT}, 7          ; hg*128")
        a(f"v_add_u32 v{gm}, s{S_T1}, v{gm}")
        a(f"v_lshrrev_b32 v{t0}, 1, v{t1}")
        a(f"v_lshl_add_u32 v{t0}, v{t2}, 2, v{t0}   ; token")
        a(f"v_mul_u32_u24 v{lt}, {self.OROW}, v{t0}")
        a(f"v_and_b32 v{t0}, 1, v{t1}")
        a(f"v_lshl_add_u32 v{lt}, v{t0}, 4, v{lt}")
        a(f"v_add_u32 v{lt}, {self.OT + 128}, v{lt}")
        a(f"s_lshr_b32 s{S_T0}, s{S_T0}, 2          ; T0/4")
        a(f"v_add_u32 v{gt}, s{S_T0}, v{t2}")
        a(f"v_lshlrev_b32 v{gt}, 10, v{gt}")
        a(f"v_lshl_add_u32 v{gt}, v{t1}, 4, v{gt}")
        a(f"s_add_u32 s{S_T1}, s{S_T1}, 0x200000")
        a(f"v_add_u32 v{gt}, s{S_T1}, v{gt}")
    def o_stores(self, a):
        a(f"ds_read_b128 v[20:23], v148")
        sk = a.new("ost")
        a(f"s_cmp_ge_u32 s{S_WAVE}, 2")
        a(f"s_cbranch_scc1 {sk}")
        a(f"ds_read_b128 v[24:27], v149")
        a("s_waitcnt lgkmcnt(0)")
        a(f"buffer_store_dwordx4 v[24:27], v157, s[{SRD_OUT}:{SRD_OUT+3}], 0 offen{OSC}")
        a.label(sk)
        a("s_waitcnt lgkmcnt(0)")
        a(f"buffer_store_dwordx4 v[20:23], v156, s[{SRD_OUT}:{SRD_OUT+3}], 0 offen{OSC}")
    def loader_fused_tail(self, a):
        l2_setup(a, "p3", 243, 64, KA_WG, D*F*2, 3456, D)
        if not PH0: a("s_barrier      ; E1")
        l2_issue(a, KA_WG, 3456, D)
        a("s_barrier")
        a.label("L_att_start")
        if 'attprof' in EXP: stamp(a, 1)
        Q = 16; KR = 32; VR = 62; SC = 92; BIAS = 120; PB = 104
        QROW = self.QROW
        for dg in range(5):
            a(f"ds_read_b64 v[{Q+2*dg}:{Q+2*dg+1}], v144 offset:{8*dg}")
        for kb in range(3):
            for dg in range(5):
                r = KR + 2*(5*kb + dg)
                if kb < 2: a(f"ds_read_b64 v[{r}:{r+1}], v145 offset:{8*QROW*kb + 8*dg}")
                else: a(f"ds_read_b64 v[{r}:{r+1}], v146 offset:{8*dg}")
        scale = (D // 32) ** -0.5
        c1 = scale * 1.4426950408889634
        a(f"s_mov_b32 s{S_T2}, {hex(f2u(c1))}")
        a("s_waitcnt lgkmcnt(0)")
        for kb in range(3):
            for dg in range(5):
                r = VR + 2*(5*kb + dg)
                if kb < 2: a(f"ds_read_b64_tr_b16 v[{r}:{r+1}], v147 offset:{8*QROW*kb + 8*dg}")
                else: a(f"ds_read_b64_tr_b16 v[{r}:{r+1}], v119 offset:{8*dg}")
        for dg in range(5):
            for kb in range(3):
                r = KR + 2*(5*kb + dg); sc = SC + 4*kb
                c = "0" if dg == 0 else f"v[{sc}:{sc+3}]"
                a(f"v_mfma_f32_4x4x4_16b_bf16 v[{sc}:{sc+3}], v[{r}:{r+1}], v[{Q+2*dg}:{Q+2*dg+1}], {c}")
        a("s_nop 4")
        for m in range(12):
            a(f"v_fma_f32 v{SC+m}, v{SC+m}, s{S_T2}, v{BIAS+m}")
        a(f"v_max3_f32 v14, v{SC}, v{SC+1}, v{SC+2}")
        a(f"v_max3_f32 v15, v{SC+3}, v{SC+4}, v{SC+5}")
        a(f"v_max3_f32 v14, v14, v{SC+6}, v{SC+7}")
        a(f"v_max3_f32 v15, v15, v{SC+8}, v{SC+9}")
        a(f"v_max3_f32 v14, v14, v{SC+10}, v{SC+11}")
        a("v_max_f32 v14, v14, v15")
        for m in range(12):
            a(f"v_sub_f32 v{SC+m}, v{SC+m}, v14")
        for m in range(12):
            a(f"v_exp_f32 v{SC+m}, v{SC+m}")
        a(f"v_add_f32 v14, v{SC}, v{SC+1}")
        a(f"v_add_f32 v15, v{SC+2}, v{SC+3}")
        for m in range(4, 12, 2):
            a(f"v_add_f32 v14, v14, v{SC+m}")
            a(f"v_add_f32 v15, v15, v{SC+m+1}")
        a("v_add_f32 v14, v14, v15")
        a("v_rcp_f32 v14, v14")
        a("s_nop 0")
        for m in range(12):
            a(f"v_mul_f32 v{SC+m}, v{SC+m}, v14")
        for m in range(0, 12, 2):
            a(f"v_cvt_pk_bf16_f32 v{PB+m//2}, v{SC+m}, v{SC+m+1}")
        a("s_waitcnt lgkmcnt(0)")
        a("s_nop 0")
        OA = 32
        for kb in range(3):
            for dg in range(5):
                r = VR + 2*(5*kb + dg); o = OA + 4*dg
                c = "0" if kb == 0 else f"v[{o}:{o+3}]"
                a(f"v_mfma_f32_4x4x4_16b_bf16 v[{o}:{o+3}], v[{r}:{r+1}], v[{PB+2*kb}:{PB+2*kb+1}], {c}")
        a("s_nop 5")
        for dg in range(5):
            o = OA + 4*dg
            a(f"v_cvt_pk_bf16_f32 v{Q+2*dg}, v{o}, v{o+1}")
            a(f"v_cvt_pk_bf16_f32 v{Q+2*dg+1}, v{o+2}, v{o+3}")
            a(f"ds_write_b64 v118, v[{Q+2*dg}:{Q+2*dg+1}] offset:{8*dg}")
        a("s_waitcnt lgkmcnt(0)")
        if 'attprof' in EXP: stamp(a, 2)
        dry_exit(a, "L_att_ret")
        a("s_barrier")
        self.o_stores(a)
        self.set_fidx(a)
    def consumer_setup(self, a):
        cons_lane(a)
        x_addr_const(a, self.vXc, None)
        a("v_lshrrev_b32 v5, 2, v3        ; r")
        a("v_lshl_add_u32 v5, v4, 3, v5   ; 8g + r")
        a("v_mul_u32_u24 v5, 160, v5")
        a("v_and_b32 v6, 3, v3")
        a("v_lshl_add_u32 v5, v6, 3, v5")
        for j in range(4):
            a(f"s_lshl_b32 s{S_T0}, s{S_WAVE}, 2")
            a(f"s_add_u32 s{S_T0}, s{S_T0}, {j}")
            a(f"s_min_u32 s{S_T0}, s{S_T0}, 14")
            divc(a, S_T1, S_T0, 5)
            a(f"s_mul_i32 s{S_T2}, s{S_T1}, 5")
            a(f"s_sub_u32 s{S_T2}, s{S_T0}, s{S_T2}       ; f%5")
            a(f"s_lshl_b32 s{S_T2}, s{S_T2}, 5")
            a(f"s_mul_i32 s{S_T3}, s{S_T1}, 10240")
            a(f"s_add_u32 s{S_T3}, s{S_T3}, s{S_T2}")
            a(f"s_add_u32 s{S_T3}, s{S_T3}, {self.ABYTES}")
            a(f"v_add_u32 v{self.vWc[j]}, s{S_T3}, v5")
            a(f"s_mul_i32 s{S_T3}, s{S_T1}, 160")
            a(f"s_add_u32 s{S_T3}, s{S_T3}, s{S_T2}")
            a(f"s_add_u32 s{S_T3}, s{S_T3}, {self.QT}")
            a(f"v_mul_u32_u24 v6, {self.QROW}, v3")
            a("v_lshl_add_u32 v6, v4, 3, v6")
            a(f"v_add_u32 v{20+j}, s{S_T3}, v6")
        if not PH0:
            for r in range(4): a(f"v_mov_b32 v{self.VONES+r}, {hex(ONES)}")
            for r in range(40): a(f"v_mov_b32 v{self.GRAM+r}, 0")
        a("v_lshlrev_b32 v25, 3, v3")
        a(f"v_add_u32 v25, {self.LDS_STP}, v25")
        a(f"s_mul_i32 s{S_T0}, s{S_WAVE}, 640")
        a(f"v_add_u32 v24, s{S_T0}, v25")
        a(f"s_mov_b32 s{S_N1}, 0")
        self.store_addr_setup_c(a)
        NW = 4
        self.wlist = [(self.vW[j], 0) for j in range(4)]
        self.wstep = (5120, 640)
    def store_addr_setup_c(self, a):
        self.store_addr_setup(a, regs=(26, 27, 28, 29), tmp=5)
    def addr_update(self):
        r = [f"v_add_u32 v{self.vXa}, s{S_SLOT}, v{self.vXc}"]
        r += [f"v_add_u32 v{self.vW[j]}, s{S_SLOT}, v{self.vWc[j]}" for j in range(4)]
        r += [f"v_xor_b32 v{self.vXb}, 64, v{self.vXa}"]
        return r
    def stats_mfmas(self, xregs):
        m = []
        for x in range(5):
            xa = xregs[x]
            g = self.GRAM + 4*x; sm = self.SUMA + 4*x
            m.append(f"v_mfma_f32_16x16x32_bf16 v[{g}:{g+3}], {xa}, {xa}, v[{g}:{g+3}]")
            m.append(f"v_mfma_f32_16x16x32_bf16 v[{sm}:{sm+3}], v[{self.VONES}:{self.VONES+3}], {xa}, v[{sm}:{sm+3}]")
        return m
    def epilogue_stats(self, a):
        for i_, m_ in enumerate((0x22222222, 0x44444444, 0x88888888)):
            a(f"s_mov_b32 s{80+2*i_}, {hex(m_)}"); a(f"s_mov_b32 s{81+2*i_}, {hex(m_)}")
        for x in range(5):
            g = self.GRAM + 4*x
            a(f"v_cndmask_b32 v{g+1}, v{g}, v{g+1}, s[80:81]")
            a(f"v_cndmask_b32 v{g+1}, v{g+1}, v{g+2}, s[82:83]")
            a(f"v_cndmask_b32 v{g+1}, v{g+1}, v{g+3}, s[84:85]")
            a(f"v_mov_b32 v{g}, v{self.SUMA+4*x}")
        mask_exec(a, 0xF | (0xF << 20) | (0xF << 40) | (0xF << 60))
        for x in range(5):
            g = self.GRAM + 4*x
            a(f"ds_write_b64 v24, v[{g}:{g+1}] offset:{128*x}")
        unmask_exec(a)
        CS = 132
        for j in range(4):
            acc = self.ACC + 4*(4*4 + j)
            for r in range(4):
                a(f"v_mov_b32_dpp v{CS+4*j+r}, v{acc+r} row_newbcast:15 row_mask:0xf bank_mask:0xf")
        a("s_waitcnt lgkmcnt(0)")
        dbar(a, "E1")
        if 'attprof' in EXP: stamp(a, 1)
        ST = 8
        TM = 112
        for x in range(5):
            for wv in range(4):
                if x < 5:
                    pass
        for x in range(5):
            base = TM + 4*x if False else None
        regs = {0: 112, 1: 120, 2: 112, 3: 120, 4: 112}
        def rd(x):
            for wv in range(4):
                r = regs[x] + 2*wv
                a(f"ds_read_b64 v[{r}:{r+1}], v25 offset:{640*wv + 128*x}")
        def fin(x):
            r = regs[x]; st = ST + 2*x
            a(f"v_pk_add_f32 v[{r}:{r+1}], v[{r}:{r+1}], v[{r+2}:{r+3}]")
            a(f"v_pk_add_f32 v[{r+4}:{r+5}], v[{r+4}:{r+5}], v[{r+6}:{r+7}]")
            a(f"v_pk_add_f32 v[{st}:{st+1}], v[{r}:{r+1}], v[{r+4}:{r+5}]")
            a(f"v_mul_f32 v{st}, {hex(f2u(1.0/D))}, v{st}")
            a(f"v_mul_f32 v{st+1}, {hex(f2u(1.0/D))}, v{st+1}")
            a(f"v_fma_f32 v{st+1}, -v{st}, v{st}, v{st+1}")
            a(f"v_add_f32 v{st+1}, {hex(f2u(1e-5))}, v{st+1}")
            a(f"v_rsq_f32 v{st+1}, v{st+1}")
        rd(0); rd(1)
        a("s_waitcnt lgkmcnt(4)"); fin(0); rd(2)
        a("s_waitcnt lgkmcnt(4)"); fin(1); rd(3)
        a("s_waitcnt lgkmcnt(4)"); fin(2); rd(4)
        a("s_waitcnt lgkmcnt(4)"); fin(3)
        a("s_waitcnt lgkmcnt(0)"); fin(4)
        a("s_nop 0")
        return CS, ST
    def epilogue(self, a):
        a.label("L_epi1_start")
        if PH0:
            CS = 132; ST = 8
            for x in range(5):
                a(f"ds_read_b64 v[{ST+2*x}:{ST+2*x+1}], v25 offset:{128*x}")
            for j in range(4):
                acc = self.ACC + 4*(4*4 + j)
                for r in range(4):
                    a(f"v_mov_b32_dpp v{CS+4*j+r}, v{acc+r} row_newbcast:15 row_mask:0xf bank_mask:0xf")
            a("s_waitcnt lgkmcnt(0)")
        else:
            CS, ST = self.epilogue_stats(a)
        for x in range(5):
            st = ST + 2*x
            for j in range(4):
                acc = self.ACC + 4*(4*x + j)
                for hh in (0, 2):
                    a(f"v_pk_fma_f32 v[{acc+hh}:{acc+hh+1}], v[{CS+4*j+hh}:{CS+4*j+hh+1}], v[{st}:{st+1}], v[{acc+hh}:{acc+hh+1}] op_sel_hi:[1,0,1] neg_lo:[0,1,0] neg_hi:[0,1,0]")
                for hh in (0, 2):
                    a(f"v_pk_mul_f32 v[{acc+hh}:{acc+hh+1}], v[{acc+hh}:{acc+hh+1}], v[{st}:{st+1}] op_sel:[0,1] op_sel_hi:[1,1]")
                a(f"v_cvt_pk_bf16_f32 v{acc}, v{acc}, v{acc+1}")
                a(f"v_cvt_pk_bf16_f32 v{acc+1}, v{acc+2}, v{acc+3}")
                a(f"ds_write_b64 v{20+j}, v[{acc}:{acc+1}] offset:{16*x*self.QROW}")
        a("s_waitcnt lgkmcnt(0)")
        dry_exit(a, "L_epi1_ret")
        a("s_barrier")
        a("s_barrier")
        a(f"ds_read_b128 v[32:35], v26")
        sk = a.new("ost")
        a(f"s_cmp_ge_u32 s{S_WAVE}, 2")
        a(f"s_cbranch_scc1 {sk}")
        a(f"ds_read_b128 v[36:39], v27")
        a("s_waitcnt lgkmcnt(0)")
        a(f"buffer_store_dwordx4 v[36:39], v29, s[{SRD_OUT}:{SRD_OUT+3}], 0 offen{OSC}")
        a.label(sk)
        a("s_waitcnt lgkmcnt(0)")
        a(f"buffer_store_dwordx4 v[32:35], v28, s[{SRD_OUT}:{SRD_OUT+3}], 0 offen{OSC}")
    stream_epi = True

class P24(Phase):
    kind = "rm"; NT = 250
    MV = 82; NC = 64; ldb = 1280; ldo = 1280
    ABYTES = 12288; STAGE = 20480; NS = 7
    NXMAX = 3; RPM = 2
    modeS = True; NACC = 24
    def fragW(self, buf, kk, wi): return ('a', 40*buf + 8*kk + 4*wi)
    def fragX(self, buf, kk, xi): return ('a', 40*buf + 16 + 12*kk + 4*xi)
    scA = SC1
    panel_coloff = [0]; panel_srd = [SRD_B0]
    TBASE = 0
    Ains = [None, None, 'skip']
    Bins = [(0, 0), (0, 4)]
    @property
    def prefetchB(self): return PB2 if self.which == 2 else PB4
    def __init__(self, which):
        self.which = which
        if which == 2:
            self.key = 'p2'; self.lda = 1024 if FUSE else 1280; self.S = 10; self.rot = P2ROT
            self.oprime = FUSE
            self.kind = P2MAP
        else:
            self.key = 'p4'; self.lda = 3456; self.S = 27; self.rot = P4ROT; self.extraB = 1
            self.kind = P4MAP
        assert (self.S - 1) % self.NS != 0
        self.vXc, self.vWc = 8, 9
        self.vXa, self.vXb = 10, 11
        self.vW = [12, 13]
        self.xlist = [(self.vXa, self.vXb, 2048*x) for x in range(3)]
        self.wlist = [(self.vW[f], self.ABYTES) for f in range(2)]
        self.ACC = 32
        self.mf = [(x, f, self.ACC + 4*(2*x + f)) for x in range(3) for f in range(2)]
    def l2_prep(self, a):
        if self.which == 2: l2_setup(a, "p3", 243, 64, KA_WU, D*F*2, 3456, D)
    @property
    def gate(self): return GATE4 if (GATE and self.which == 4) else None
    def mid_prefetch(self, a, s):
        if self.which == 2 and s == 8: return l2_issue(a, KA_WU, 3456, D)
    def mask_setup(self, a):
        a(f"s_cmp_lt_u32 s{S_W}, 2")
        a(f"s_cselect_b32 s{S_MASK}, -1, 0xffff")
        a(f"s_cselect_b32 s{S_MASK+1}, -1, 0")
        a(f"s_cmp_eq_u32 s{S_W}, 3")
        a(f"s_cselect_b32 s{S_MASK}, 0, s{S_MASK}")
    def build_srds(self, a, role):
        if self.which == 2:
            if role == 'l':
                srd(a, SRD_A, ptr(KA_WS), WS_O, 0x280000 if FUSE else S_TOK*D*2)
                srd(a, SRD_B0, ptr(KA_WO), 0, D*D*2)
            srd(a, SRD_OUT, ptr(KA_WS), WS_H, S_TOK*D*2)
            srd(a, SRD_AUX, ptr(KA_X), 0, S_TOK*D*2)
            srd(a, SRD_ST, ptr(KA_WS), WS_ST, 250*1536)
        else:
            if role == 'l':
                srd(a, SRD_A, ptr(KA_WS), WS_HH, S_TOK*F*2)
                srd(a, SRD_B0, ptr(KA_WD), 0, F*D*2)
            srd(a, SRD_OUT, ptr(KA_OUT), 0, S_TOK*D*2)
            srd(a, SRD_AUX, ptr(KA_WS), WS_H, S_TOK*D*2)
    def dep_range(self, a):
        if self.which == 2:
            sh = 6 if FUSE else 4
            a(f"s_lshr_b32 s{S_T0}, s{S_R0}, {sh}")
            a(f"s_sub_u32 s{S_T1}, s{S_REND}, 1")
            a(f"s_lshr_b32 s{S_T1}, s{S_T1}, {sh}")
        else:
            sdiv(a, S_T0, S_R0, 228, 2100)
            a(f"s_sub_u32 s{S_T1}, s{S_REND}, 1")
            sdiv(a, S_T1, S_T1, 228, 2100)
    def deps_first(self, a):
        first_ks(a, self)
        if self.which == 2 and FUSE:
            for src, dst in ((S_K, S_T2), (S_KB, S_T3)):
                a(f"s_lshl_b32 s{dst}, 1, s{src}")
                a(f"s_sub_u32 s{S_T4}, s{src}, 8")
                a(f"s_lshl_b32 s{S_T4}, s{S_T4}, 2")
                a(f"s_lshl_b32 s{S_T4}, 15, s{S_T4}")
                a(f"s_cmp_ge_u32 s{src}, 8")
                a(f"s_cselect_b32 s{dst}, s{S_T4}, s{dst}")
            a(f"s_or_b32 s{S_T2}, s{S_T2}, s{S_T3}")
            self.dep_range(a)
            skip = a.new("pollskip")
            a(f"s_cmp_eq_u32 s{S_WAVE}, 0")
            a(f"s_cbranch_scc0 {skip}")
            a("v_and_b32 v141, 7, v2                 ; group j")
            a(f"v_lshrrev_b32 v142, v141, s{S_T2}") if False else None
            a(f"v_mov_b32 v142, s{S_T2}")
            a("v_lshrrev_b32 v142, v141, v142")
            a("v_and_b32 v142, 1, v142")
            a("v_lshrrev_b32 v140, 3, v2")
            a(f"v_add_u32 v140, s{S_T0}, v140")
            a(f"v_cmp_ge_u32 vcc, s{S_T1}, v140")
            a("v_cmp_eq_u32 s[82:83], 1, v142")
            a("v_lshl_add_u32 v140, v140, 3, v141")
            a("v_lshlrev_b32 v140, 7, v140")
            a("v_add_u32 v140, 0x8000, v140")
            a("s_and_b64 vcc, vcc, s[82:83]")
            poll_core(a)
            a.label(skip)
            return
        if self.which == 2:
            for r in (S_K, S_KB):
                a(f"s_cmp_ge_u32 s{r}, 5")
                a(f"s_cselect_b32 s{r}, 1, 0")
        self.dep_range(a)
        if self.gate: poll_first_g(a, S_T0, S_T1, 27, S_K, self.S, self.gate[0], 0x18000)
        else: poll_first(a, S_T0, S_T1, 2 if self.which == 2 else 27, S_K, S_KB, 0x8000 if self.which == 2 else 0x18000)
    def deps(self, a, wave=0):
        W = (8 if FUSE else 2) if self.which == 2 else 27
        self.dep_range(a)
        a(f"s_mul_i32 s{S_T0}, s{S_T0}, {W}")
        a(f"s_add_u32 s{S_T1}, s{S_T1}, 1")
        a(f"s_mul_i32 s{S_T1}, s{S_T1}, {W}")
        poll(a, S_T0, S_T1, 0x8000 if self.which == 2 else 0x18000, wave)
    def set_fidx(self, a):
        if self.which == 2:
            a(f"s_mul_i32 s{S_FIDX}, s{S_RT}, 10")
            a(f"s_add_u32 s{S_FIDX}, s{S_FIDX}, s{S_CT}")
            a(f"s_lshl_b32 s{S_FIDX}, s{S_FIDX}, 7")
            a(f"s_add_u32 s{S_FIDX}, s{S_FIDX}, 0x10000")
        else:
            a(f"s_mov_b32 s{S_FIDX}, -1")
    def loader_post_first(self, a):
        pad_init(a, self, 82, 14, None)
        return 0
    def consumer_setup(self, a):
        cons_lane(a)
        a(f"s_lshr_b32 s{S_I}, s{S_WAVE}, 1")
        a(f"s_and_b32 s{S_J}, s{S_WAVE}, 1")
        a(f"s_mul_i32 s{S_T1}, s{S_I}, 48")
        x_addr_const(a, self.vXc, S_T1)
        w_addr_const(a, self.vWc)
        a(f"s_lshl_b32 s{S_T0}, s{S_J}, 6      ; f0 = 2j -> xor 64j")
        a(f"v_xor_b32 v{self.vWc}, s{S_T0}, v{self.vWc}")
        t_write_addr(a, 17, self.TBASE)
        a(f"s_mul_i32 s{S_T0}, s{S_I}, {48*128}")
        a(f"v_add_u32 v17, s{S_T0}, v17")
        a(f"s_lshl_b32 s{S_T0}, s{S_J}, 6")
        a(f"v_xor_b32 v17, s{S_T0}, v17        ; f0 = 2j")
        a(f"v_xor_b32 v18, 32, v17")
    def addr_update(self):
        return P1.addr_update(self)
    def epilogue(self, a):
        for x in range(3):
            for f in range(2):
                acc = self.ACC + 4*(2*x + f)
                a(f"v_cvt_pk_bf16_f32 v{acc}, v{acc}, v{acc+1}")
                a(f"v_cvt_pk_bf16_f32 v{acc+1}, v{acc+2}, v{acc+3}")
                a(f"ds_write_b64 v{17+f}, v[{acc}:{acc+1}] offset:{2048*x}")
    RES = 100
    early_pre = True
    def early_setup(self, a):
        a("v_lshrrev_b32 v112, 3, v2")
        a("v_and_b32 v113, 7, v2")
        a("v_xor_b32 v108, v113, v112")
        a("v_lshlrev_b32 v108, 4, v108")
        a("v_lshl_add_u32 v108, v112, 7, v108")
        a(f"s_lshl_b32 s{S_T0}, s{S_WAVE}, 10")
        a(f"s_add_u32 s{S_T0}, s{S_T0}, {self.TBASE}")
        a(f"v_add_u32 v108, s{S_T0}, v108")
        a(f"s_lshl_b32 s{S_T0}, s{S_WAVE}, 3")
        a(f"s_add_u32 s{S_T0}, s{S_T0}, s{S_R0}")
        a(f"v_add_u32 v111, s{S_T0}, v112")
        a("v_mul_u32_u24 v109, 1280, v111")
        a(f"s_lshl_b32 s{S_T0}, s{S_C0}, 1")
        a("v_lshl_add_u32 v109, v113, 4, v109")
        a(f"v_add_u32 v109, s{S_T0}, v109")
        a(f"v_add_u32 v110, {64*1280}, v109")
        a("v_mov_b32 v114, 0x80000000")
        a(f"v_cmp_gt_u32 vcc, s{S_REND}, v111")
        a(f"v_add_u32 v115, 64, v111")
        a("s_nop 0")
        a("v_cndmask_b32 v109, v114, v109, vcc")
        a(f"v_cmp_gt_u32 vcc, s{S_REND}, v115")
        a("s_nop 1")
        a("v_cndmask_b32 v110, v114, v110, vcc")
        sc = SC1 if self.which == 4 else ""
        a(f"buffer_load_dwordx4 v[{self.RES}:{self.RES+3}], v109, s[{SRD_AUX}:{SRD_AUX+3}], 0 offen{sc}")
        a(f"buffer_load_dwordx4 v[{self.RES+4}:{self.RES+7}], v110, s[{SRD_AUX}:{SRD_AUX+3}], 0 offen{sc}")
        return 2
    def store_fast(self, a):
        sdone = a.new("sdone")
        sc = SC1 if self.which == 2 else OUTSC
        for k in range(2):
            a(f"ds_read_b128 v[{16+4*k}:{19+4*k}], v108 offset:{k*8192}")
        if self.which == 2:
            a(f"v_mov_b32 v26, {hex(ONES)}")
        a(f"s_waitcnt vmcnt(0) lgkmcnt(0)")
        for k in range(2):
            if k == 1:
                a(f"s_cmp_ge_u32 s{S_WAVE}, 3")
                a(f"s_cbranch_scc1 {sdone}")
            T = 16 + 4*k; R = self.RES + 4*k
            for d in range(4):
                a(f"v_lshlrev_b32 v28, 16, v{T+d}")
                a(f"v_and_b32 v29, 0xffff0000, v{T+d}")
                a(f"v_lshlrev_b32 v30, 16, v{R+d}")
                a(f"v_and_b32 v31, 0xffff0000, v{R+d}")
                a(f"v_pk_add_f32 v[28:29], v[28:29], v[30:31]")
                a(f"v_cvt_pk_bf16_f32 v{T+d}, v28, v29")
            a(f"buffer_store_dwordx4 v[{T}:{T+3}], v{109+k}, s[{SRD_OUT}:{SRD_OUT+3}], 0 offen{sc}")
            if self.which == 2:
                a("v_mov_b32 v24, 0"); a("v_mov_b32 v25, 0")
                a("s_nop 0")
                for d in range(4):
                    a(f"v_dot2_f32_bf16 v24, v{T+d}, v26, v24")
                    a(f"v_dot2_f32_bf16 v25, v{T+d}, v{T+d}, v25")
                a("s_nop 2")
                for dpp in ("quad_perm:[1,0,3,2]", "quad_perm:[2,3,0,1]", "row_half_mirror"):
                    a(f"v_add_f32_dpp v24, v24, v24 {dpp} row_mask:0xf bank_mask:0xf")
                    a(f"v_add_f32_dpp v25, v25, v25 {dpp} row_mask:0xf bank_mask:0xf")
                    a("s_nop 0")
                a(f"s_mul_i32 s{S_T0}, s{S_RT}, 10")
                a(f"s_add_u32 s{S_T0}, s{S_T0}, s{S_CT}")
                a(f"s_mul_i32 s{S_T0}, s{S_T0}, 1536")
                a(f"s_lshl_b32 s{S_T1}, s{S_WAVE}, 7")
                a(f"s_add_u32 s{S_T0}, s{S_T0}, s{S_T1}")
                a(f"v_lshrrev_b32 v9, 3, v2")
                a(f"v_lshlrev_b32 v9, 4, v9")
                a(f"v_add_u32 v9, s{S_T0}, v9")
                a("v_mov_b32 v12, v24"); a("v_mov_b32 v13, v25"); a("v_mov_b32 v14, 0"); a("v_mov_b32 v15, 0")
                set_exec(a, 0x0101010101010101)
                a(f"buffer_store_dwordx4 v[12:15], v9, s[{SRD_ST}:{SRD_ST+3}], 0 offen offset:{1024*k}{SC1}")
                a("s_mov_b64 exec, -1")
        a.label(sdone)

class P3(Phase):
    key = 'p3'; NT = 243
    @property
    def kind(self): return P3MAP
    MV = 228; NC = 64; lda = 1280; ldb = 3456; ldo = 3456
    ABYTES = 30720; STAGE = 47104; NS = 3; S = 10
    NXMAX = 8; RPM = 1
    has_e1 = True
    scA = SC1
    panel_coloff = [0, 0]; panel_srd = [SRD_B0, SRD_B1]
    LDS_ST = 47104*3; LDS_CS = 47104*3 + 1920
    TBASE = 47104
    @property
    def rot(self): return P3ROT
    Ains = [None]*7 + ['skip']
    Bins = [(0, 0), (0, 4), (1, 0), (1, 4)]
    @property
    def prefetchB(self): return PB3
    def __init__(self):
        self.vXc, self.vXsc, self.vWc = 8, 9, 10
        self.vXa, self.vXb, self.vXsa, self.vXsb = 11, 12, 13, 14
        self.vW = [15, 16]
        self.xlist = [(self.vXa, self.vXb, 2048*x) for x in range(7)] + [(self.vXsa, self.vXsb, 0)]
        G, U = self.ABYTES, self.ABYTES + 8192
        self.wlist = [(self.vW[0], G), (self.vW[0], U), (self.vW[1], G), (self.vW[1], U)]
        self.ACC = 32
        self.mf = []
        acc = self.ACC
        self.accmap = {}
        for x in range(8):
            for wi in range(4):
                if x == 7 and wi >= 2: continue
                self.mf.append((x, wi, acc)); self.accmap[(x, wi)] = acc; acc += 4
        assert acc == 32 + 120
    @property
    def unroll(self): return l2_on(KA_WD)
    def l2_prep(self, a): l2_setup(a, "rm", 250, 64, KA_WD, F*D*2, 1280, F)
    def mid_prefetch(self, a, s):
        if s == 3: return l2_issue(a, KA_WD, 1280, F, 0, 9)
        if s == 6: return l2_issue(a, KA_WD, 1280, F, 9, None)
        if s == 9: return self.stats_loads(a)
    def mask_setup(self, a):
        a(f"s_cmp_eq_u32 s{S_W}, 0")
        a(f"s_cselect_b32 s{S_MASK}, -1, 0")
        a(f"s_mov_b32 s{S_MASK+1}, 0")
    def build_srds(self, a, role):
        if role == 'l':
            srd(a, SRD_A, ptr(KA_WS), WS_H, S_TOK*D*2)
            srd(a, SRD_B0, ptr(KA_WG), 0, D*F*2)
            srd(a, SRD_B1, ptr(KA_WU), 0, D*F*2)
            srd(a, SRD_ST, ptr(KA_WS), WS_ST, 250*1536)
        srd(a, SRD_OUT, ptr(KA_WS), WS_HH, S_TOK*F*2)
    def dep_range(self, a):
        sdiv(a, S_T0, S_R0, 82, 2100)
        a(f"s_sub_u32 s{S_T1}, s{S_REND}, 1")
        sdiv(a, S_T1, S_T1, 82, 2100)
    @property
    def gate(self): return (3, 2) if GATE else None
    def deps_first(self, a):
        first_ks(a, self)
        self.dep_range(a)
        if self.gate: poll_first_g(a, S_T0, S_T1, 10, S_K, self.S, self.gate[0], 0x10000)
        else: poll_first(a, S_T0, S_T1, 10, S_K, S_KB, 0x10000)
    def deps(self, a, wave=0):
        self.dep_range(a)
        a(f"s_mul_i32 s{S_T0}, s{S_T0}, 10")
        a(f"s_add_u32 s{S_T1}, s{S_T1}, 1")
        a(f"s_mul_i32 s{S_T1}, s{S_T1}, 10")
        poll(a, S_T0, S_T1, 0x10000, wave)
    def set_fidx(self, a):
        a(f"s_mul_i32 s{S_FIDX}, s{S_RT}, 27")
        a(f"s_add_u32 s{S_FIDX}, s{S_FIDX}, s{S_CT}")
        a(f"s_lshl_b32 s{S_FIDX}, s{S_FIDX}, 7")
        a(f"s_add_u32 s{S_FIDX}, s{S_FIDX}, 0x18000")
    def loader_post_first(self, a):
        pad_init(a, self, 228, 11, 239)
        return 0
    def stats_loads(self, a):
        a(f"s_lshl_b32 s{S_T0}, s{S_W}, 6")
        a(f"v_add_u32 v12, s{S_T0}, v2")
        a(f"v_add_u32 v13, s{S_R0}, v12")
        vdiv(a, 15, 13, 82, 2300)
        a("v_mul_u32_u24 v16, 82, v15")
        a("v_sub_u32 v16, v13, v16")
        a("v_mul_u32_u24 v15, 15360, v15")
        a("v_lshl_add_u32 v13, v16, 4, v15")
        a(f"v_add_u32 v15, s{S_R0}, v12")
        a(f"v_cmp_gt_u32 vcc, s{S_REND}, v15")
        a("v_mov_b32 v14, 0x80000000")
        a("s_nop 0")
        a("v_cndmask_b32 v13, v14, v13, vcc")
        for c in range(10):
            a(f"s_mov_b32 s{S_T0}, {c*1536}")
            a(f"buffer_load_dwordx2 v[{64+2*c}:{65+2*c}], v13, s[{SRD_ST}:{SRD_ST+3}], s{S_T0} offen{SC1}")
        return 10
    def loader_final(self, a):
        a("s_waitcnt vmcnt(0)")
        for c in range(1, 10):
            a(f"v_pk_add_f32 v[64:65], v[64:65], v[{64+2*c}:{65+2*c}]")
        a(f"v_mul_f32 v64, {hex(f2u(1.0/D))}, v64")
        a(f"v_mul_f32 v65, {hex(f2u(1.0/D))}, v65")
        a("v_fma_f32 v65, -v64, v64, v65")
        a(f"v_add_f32 v65, {hex(f2u(1e-5))}, v65")
        a("v_rsq_f32 v65, v65")
        a("v_lshlrev_b32 v12, 3, v12")
        a(f"v_add_u32 v12, {self.LDS_ST}, v12")
        a(f"s_cmp_eq_u32 s{S_W}, 3")
        a(f"s_cselect_b32 exec_hi, 0xffff, -1")
        a("ds_write_b64 v12, v[64:65]")
        a("s_mov_b64 exec, -1")
    def consumer_setup(self, a):
        cons_lane(a)
        a(f"s_lshr_b32 s{S_I}, s{S_WAVE}, 1")
        a(f"s_and_b32 s{S_J}, s{S_WAVE}, 1")
        a(f"s_lshl_b32 s{S_T1}, s{S_I}, 7")
        x_addr_const(a, self.vXc, S_T1)
        x_addr_const(a, self.vXsc, None, 112)
        w_addr_const(a, self.vWc)
        a(f"s_lshl_b32 s{S_T0}, s{S_J}, 1")
        a(f"s_add_u32 s{S_T0}, s{S_T0}, s{S_I}")
        a(f"s_lshl_b32 s{S_T0}, s{S_T0}, 5")
        a(f"v_xor_b32 v{self.vWc}, s{S_T0}, v{self.vWc}")
        a(f"s_lshl_b32 s{S_T0}, s{S_J}, 1")
        a(f"s_add_u32 s{S_T2}, s{S_T0}, s{S_I}     ; f0")
        a(f"s_lshl_b32 s{S_T0}, s{S_T2}, 6")
        a(f"v_lshlrev_b32 v24, 4, v4")
        a(f"v_add_u32 v24, s{S_T0}, v24")
        a(f"v_add_u32 v24, {self.LDS_CS}, v24")
        a(f"v_xor_b32 v25, 64, v24")
        t_write_addr(a, 26, self.TBASE)
        a(f"s_lshl_b32 s{S_T0}, s{S_T2}, 5")
        a(f"v_xor_b32 v26, s{S_T0}, v26")
        a(f"v_add_u32 v28, {112*128}, v26")
        a(f"s_lshl_b32 s{S_T0}, s{S_I}, 14")
        a(f"v_add_u32 v26, s{S_T0}, v26")
        a(f"v_xor_b32 v27, 32, v26")
        a(f"s_lshl_b32 s{S_T0}, s{S_I}, 10         ; 128*i*8")
        a(f"v_lshlrev_b32 v29, 3, v3")
        a(f"v_add_u32 v30, {self.LDS_ST + 112*8}, v29")
        a(f"v_add_u32 v29, s{S_T0}, v29")
        a(f"v_add_u32 v29, {self.LDS_ST}, v29")
    def addr_update(self):
        return [f"v_add_u32 v{self.vXa}, s{S_SLOT}, v{self.vXc}",
                f"v_add_u32 v{self.vW[0]}, s{S_SLOT}, v{self.vWc}",
                f"v_add_u32 v{self.vXsa}, s{S_SLOT}, v{self.vXsc}",
                f"v_xor_b32 v{self.vXb}, 64, v{self.vXa}",
                f"v_xor_b32 v{self.vW[1]}, 32, v{self.vW[0]}",
                f"v_xor_b32 v{self.vXsb}, 64, v{self.vXsa}"]
    chunk_epi = True
    def epilogue(self, a):
        nocs = a.new("nocs")
        a.label("L_epi3_start")
        assert self.LDS_CS % 128 == 0
        a(f"s_cmp_eq_u32 s{S_I}, 1")
        a(f"s_cbranch_scc0 {nocs}")
        mask_exec(a, 0x8000800080008000)
        for wi, (areg, poff) in enumerate([(24, 0), (24, 256), (25, 0), (25, 256)]):
            acc = self.accmap[(6, wi)]
            a(f"ds_write_b128 v{areg}, v[{acc}:{acc+3}] offset:{poff}")
        unmask_exec(a)
        a.label(nocs)
        a("s_waitcnt lgkmcnt(0)")
        dbar(a, "E1")
        CSR = [8, 12, 152, 156]
        for wi, (areg, poff) in enumerate([(24, 0), (24, 256), (25, 0), (25, 256)]):
            a(f"ds_read_b128 v[{CSR[wi]}:{CSR[wi]+3}], v{areg} offset:{poff}")
        STR = [16, 18, 20, 22]
        def rdst(x):
            st = STR[x & 3]
            if x < 7: a(f"ds_read_b64 v[{st}:{st+1}], v29 offset:{128*x}")
            else: a(f"ds_read_b64 v[{st}:{st+1}], v30")
        for x in range(4): rdst(x)
        a("s_waitcnt lgkmcnt(0)")
        for x in range(8):
            st = STR[x & 3]
            npair = 1 if x == 7 else 2
            if x == 4:
                a("s_waitcnt lgkmcnt(0)")
                dbar(a, "E2a")
            a(f"v_mul_f32 v{st+1}, v{st+1}, v{st+1}")
            for p in range(npair):
                g = self.accmap[(x, 2*p)]; u = self.accmap[(x, 2*p+1)]
                cg = CSR[2*p]; cu = CSR[2*p+1]
                for hh in (0, 2):
                    a(f"v_pk_fma_f32 v[{g+hh}:{g+hh+1}], v[{cg+hh}:{cg+hh+1}], v[{st}:{st+1}], v[{g+hh}:{g+hh+1}] op_sel_hi:[1,0,1] neg_lo:[0,1,0] neg_hi:[0,1,0]")
                    a(f"v_pk_fma_f32 v[{u+hh}:{u+hh+1}], v[{cu+hh}:{cu+hh+1}], v[{st}:{st+1}], v[{u+hh}:{u+hh+1}] op_sel_hi:[1,0,1] neg_lo:[0,1,0] neg_hi:[0,1,0]")
                for hh in (0, 2):
                    a(f"v_pk_mul_f32 v[{g+hh}:{g+hh+1}], v[{g+hh}:{g+hh+1}], v[{u+hh}:{u+hh+1}]")
                for hh in (0, 2):
                    a(f"v_pk_mul_f32 v[{g+hh}:{g+hh+1}], v[{g+hh}:{g+hh+1}], v[{st}:{st+1}] op_sel:[0,1] op_sel_hi:[1,1]")
                a(f"v_cvt_pk_bf16_f32 v{g}, v{g}, v{g+1}")
                a(f"v_cvt_pk_bf16_f32 v{g+1}, v{g+2}, v{g+3}")
                if x < 7: a(f"ds_write_b64 v{26+p}, v[{g}:{g+1}] offset:{2048*x}")
                else: a(f"ds_write_b64 v28, v[{g}:{g+1}]")
            if x < 4: rdst(x + 4)
        a("s_waitcnt lgkmcnt(0)")
        dry_exit(a, "L_epi3_ret")
        a("s_barrier      ; E2b")
    def loader_store_setup(self, a):
        a("v_lshrrev_b32 v3, 3, v2")
        a("v_and_b32 v4, 7, v2")
        a("v_xor_b32 v5, v4, v3")
        a("v_lshlrev_b32 v5, 4, v5")
        a("v_lshl_add_u32 v50, v3, 7, v5")
        a(f"s_lshl_b32 s{S_T0}, s{S_W}, 10")
        a(f"s_add_u32 s{S_T0}, s{S_T0}, {self.TBASE}")
        a(f"v_add_u32 v50, s{S_T0}, v50")
        a(f"s_lshl_b32 s{S_T0}, s{S_W}, 3")
        a(f"s_add_u32 s{S_T0}, s{S_T0}, s{S_R0}")
        a(f"v_add_u32 v51, s{S_T0}, v3")
        a(f"s_mov_b32 s{S_T1}, 3456")
        a(f"v_mul_lo_u32 v52, v51, s{S_T1}")
        a(f"s_lshl_b32 s{S_T0}, s{S_C0}, 1")
        a("v_lshl_add_u32 v52, v4, 4, v52")
        a(f"v_add_u32 v52, s{S_T0}, v52")
    def loader_stores(self, a, units):
        for n, u0 in enumerate(units):
            a(f"ds_read_b128 v[{56+4*n}:{59+4*n}], v50 offset:{u0*1024}")
        for n, u0 in enumerate(units):
            a(f"v_add_u32 v{53 if n & 1 else 54}, {u0*8*3456}, v52")
            special = (u0 + 3)*8 + 7 >= self.MV
            if special:
                a(f"v_add_u32 v55, {u0*8}, v51")
                a(f"s_add_u32 s{S_T0}, s{S_R0}, {self.MV}")
                a(f"v_cmp_gt_u32 vcc, s{S_T0}, v55")
                a(f"s_and_saveexec_b64 s[80:81], vcc")
            a(f"s_waitcnt lgkmcnt({len(units) - 1 - n})")
            a(f"buffer_store_dwordx4 v[{56+4*n}:{59+4*n}], v{53 if n & 1 else 54}, s[{SRD_OUT}:{SRD_OUT+3}], 0 offen{SC1}")
            if special: a("s_mov_b64 exec, s[80:81]")
    def loader_epilogue(self, a):
        a("s_barrier      ; E2a")
        self.loader_stores(a, [0, 4, 16, 20])
        a("s_barrier      ; E2b")
        self.loader_stores(a, [8, 12, 24, 28])

ROWB = 656
LQ, LK, LV, LO = 16384, 16384 + 16*ROWB, 16384 + 46*ROWB, 0
WPF = True
P1ROT = 'latin2'
ROTOFF = set()
WPF_OFF = {KA_WD}
def l2_on(kptr): return WPF and kptr not in WPF_OFF
def l2_setup(a, kind, NT, NC, kptr, nbytes, ldb, K):
    if not l2_on(kptr): return
    if kind == "p3": kind = P3MAP
    if kind == "rm" and kptr == KA_WO: kind = P2MAP
    nsh = 4 if kind == "p3b" else (6 if kind == "rm5" else 3)
    R3 = ((K + nsh - 1)//nsh + 7)//8*8
    a(f"s_mov_b32 s4, s{S_RT}"); a(f"s_mov_b32 s5, s{S_CT}")
    tile_map(a, NT, kind)
    divc(a, S_T0, S_RT, nsh)
    a(f"s_mul_i32 s{S_T0}, s{S_T0}, {nsh}")
    a(f"s_sub_u32 s{S_T0}, s{S_RT}, s{S_T0}")
    a(f"s_mul_i32 s{S_T0}, s{S_T0}, {R3}")
    a(f"s_lshl_b32 s{S_T1}, s{S_W}, 3")
    a(f"s_add_u32 s{S_T0}, s{S_T0}, s{S_T1}")
    a("v_lshrrev_b32 v150, 3, v2")
    a(f"v_add_u32 v150, s{S_T0}, v150")
    a(f"s_mov_b32 s{S_T1}, {ldb}")
    a(f"v_mul_lo_u32 v150, v150, s{S_T1}")
    a("v_and_b32 v151, 7, v2")
    a("v_lshl_add_u32 v150, v151, 4, v150")
    a(f"s_mul_i32 s{S_T1}, s{S_CT}, {NC*2}")
    a(f"v_add_u32 v150, s{S_T1}, v150")
    a(f"s_cmp_eq_u32 s{S_VALID}, 0")
    a(f"s_cselect_b32 s{S_T1}, 0x80000000, 0")
    a(f"v_or_b32 v150, s{S_T1}, v150")
    srd(a, 80, ptr(kptr), 0, nbytes)
    a(f"s_mov_b32 s{S_RT}, s4"); a(f"s_mov_b32 s{S_CT}, s5")
def l2_issue(a, kptr, ldb, K, i0=0, i1=None):
    if not l2_on(kptr): return 0
    nsh = 4 if (P3MAP == "p3b" and kptr in (KA_WG, KA_WU)) else (6 if (P2MAP == "rm5" and kptr == KA_WO) else 3)
    R3 = ((K + nsh - 1)//nsh + 7)//8*8
    n = (R3//8 + 3)//4
    if i1 is None: i1 = n
    for i in range(i0, min(i1, n)):
        a(f"buffer_load_dwordx4 v[152:155], v150, s[80:83], 0 offen")
        if i + 1 < n: a(f"v_add_u32 v150, {32*ldb}, v150")
    return min(i1, n) - i0

def att_phase(a, role):
    a(f"s_lshl_b32 s{S_R0}, s{S_RT}, 4       ; T0")
    srd(a, SRD_A, ptr(KA_WS), WS_QKV, S_TOK*NQKV*2)
    srd(a, SRD_OUT, ptr(KA_WS), WS_O, S_TOK*D*2)
    NI = 49
    nper = (NI + 7)//8
    a(f"s_mov_b32 s{S_T2}, 3840")
    a(f"s_mul_i32 s{S_T3}, s{S_CT}, 640")
    for j in range(nper):
        r = 32 + j
        a(f"s_add_u32 s{S_T0}, s{S_WAVE}, {8*j}")
        a(f"s_lshl_b32 s{S_T0}, s{S_T0}, 6")
        a(f"v_add_u32 v3, s{S_T0}, v2           ; c")
        vdiv(a, 4, 3, 41, 64*56)
        a("v_mul_u32_u24 v5, 41, v4")
        a("v_sub_u32 v5, v3, v5                  ; kap")
        a("v_cmp_le_u32 vcc, 16, v4")
        a("v_mov_b32 v8, 0x80000000")
        a("s_nop 0")
        a("v_cndmask_b32 v6, 0, 1, vcc")
        a("v_cmp_le_u32 vcc, 46, v4")
        a("s_nop 1")
        a("v_cndmask_b32 v7, 0, 1, vcc")
        a("v_add_u32 v6, v6, v7                  ; seg")
        a("v_mul_u32_u24 v7, 30, v6")
        a("v_sub_u32 v7, v4, v7")
        a(f"v_add_u32 v7, s{S_R0}, v7            ; token")
        a(f"v_mul_lo_u32 v7, v7, s{S_T2}")
        a("v_mul_u32_u24 v6, 1280, v6")
        a("v_add_u32 v7, v7, v6")
        a("v_lshl_add_u32 v7, v5, 4, v7")
        a(f"v_add_u32 v7, s{S_T3}, v7")
        a("v_cmp_gt_u32 vcc, 40, v5")
        a("s_nop 1")
        a("v_cndmask_b32 v7, v8, v7, vcc")
        a("v_cmp_gt_u32 vcc, 76, v4")
        a("s_nop 1")
        a(f"v_cndmask_b32 v{r}, v8, v7, vcc")
    if role == 'c':
        a(f"s_lshr_b32 s{S_T0}, s{S_WAVE}, 1")
        a(f"s_lshl_b32 s{S_T0}, s{S_T0}, 3")
        a(f"s_and_b32 s{S_T1}, s{S_WAVE}, 1")
        a(f"s_add_u32 s{S_I}, s{S_T0}, s{S_T1}      ; rb")
        a("v_and_b32 v3, 3, v2             ; i")
        a("v_lshrrev_b32 v4, 2, v2         ; b")
        a("v_lshlrev_b32 v5, 1, v3")
        a(f"v_add_u32 v5, s{S_I}, v5        ; rb + 2i")
        a(f"v_mul_u32_u24 v5, {ROWB}, v5")
        a("v_mul_u32_u24 v6, 40, v4")
        a("v_add_u32 v5, v5, v6")
        a(f"v_add_u32 v144, {LQ}, v5")
        a(f"v_add_u32 v145, {LK}, v5")
        a("v_cmp_eq_u32 vcc, 3, v3")
        a(f"v_mov_b32 v7, {16*ROWB}")
        a(f"v_mov_b32 v8, {14*ROWB}")
        a("v_cndmask_b32 v7, v7, v8, vcc")
        a("v_add_u32 v146, v145, v7")
        a("v_bfe_u32 v9, v2, 2, 2            ; r")
        a("v_lshlrev_b32 v10, 1, v9")
        a(f"v_add_u32 v10, s{S_I}, v10")
        a(f"v_mul_u32_u24 v10, {ROWB}, v10")
        a("v_lshrrev_b32 v11, 4, v2")
        a("v_lshl_add_u32 v11, v11, 2, v3     ; 4G + c")
        a("v_mul_u32_u24 v11, 40, v11")
        a("v_add_u32 v10, v10, v11")
        a(f"v_add_u32 v147, {LV}, v10")
        a("v_cmp_eq_u32 vcc, 3, v9")
        a(f"v_mov_b32 v7, {16*ROWB}")
        a("s_nop 0")
        a("v_cndmask_b32 v7, v7, v8, vcc")
        a("v_add_u32 v119, v147, v7")
        a(f"v_mov_b32 v12, {hex(f2u(-1e30))}")
        a("v_mov_b32 v13, 0")
        a(f"s_add_u32 s{S_T2}, s{S_R0}, s{S_I}")
        a(f"s_sub_u32 s{S_T2}, s{S_T2}, 14        ; pos(0)")
        for m in range(12):
            a(f"v_sub_u32 v14, {m}, v3            ; m - i")
            a("v_cmp_gt_u32 vcc, 8, v14")
            a(f"s_add_u32 s{S_T0}, s{S_T2}, {2*m}")
            a(f"s_cmp_ge_i32 s{S_T0}, 0")
            a("s_cselect_b64 s[80:81], -1, 0")
            a("s_and_b64 vcc, vcc, s[80:81]")
            a(f"v_cndmask_b32 v{120+m}, v12, v13, vcc")
    for j in range(2):
        a(f"s_add_u32 s{S_T0}, s{S_WAVE}, {8*j}")
        a(f"s_lshl_b32 s{S_T0}, s{S_T0}, 6")
        a(f"v_add_u32 v3, s{S_T0}, v2")
        vdiv(a, 4, 3, 40, 1024)
        a("v_mul_u32_u24 v5, 40, v4")
        a("v_sub_u32 v5, v3, v5")
        a(f"v_mul_u32_u24 v6, {ROWB}, v4")
        a(f"v_lshl_add_u32 v{148+j}, v5, 4, v6")
        a(f"v_add_u32 v4, s{S_R0}, v4")
        a("v_mul_u32_u24 v4, 1280, v4")
        a("v_lshl_add_u32 v4, v5, 4, v4")
        a(f"v_add_u32 v{156+j}, s{S_T3}, v4")
    if role == 'c':
        a(f"s_sub_u32 s{S_T0}, s{S_R0}, 14")
        a(f"s_max_i32 s{S_T0}, s{S_T0}, 0")
        sdiv(a, S_T0, S_T0, 121, 2100)
        a(f"s_add_u32 s{S_T1}, s{S_R0}, 15")
        sdiv(a, S_T1, S_T1, 121, 2100)
        skp = a.new("attpoll")
        a(f"s_cmp_eq_u32 s{S_WAVE}, 0")
        a(f"s_cbranch_scc0 {skp}")
        vdiv(a, 140, 2, 9, 64)
        a("v_mul_u32_u24 v141, 9, v140")
        a("v_sub_u32 v141, v2, v141                  ; j = l%9")
        vdiv(a, 142, 141, 3, 16)
        a("v_mul_u32_u24 v143, 3, v142")
        a("v_sub_u32 v143, v141, v143                ; j%3")
        a("v_mul_u32_u24 v142, 5, v142")
        a("v_add_u32 v142, v142, v143")
        a(f"s_lshl_b32 s{S_T2}, s{S_CT}, 1")
        a(f"v_add_u32 v142, s{S_T2}, v142            ; ct")
        a(f"v_add_u32 v140, s{S_T0}, v140            ; rt")
        a(f"v_cmp_ge_u32 vcc, s{S_T1}, v140")
        a("v_mul_u32_u24 v140, 15, v140")
        a("v_add_u32 v140, v140, v142")
        a("v_lshlrev_b32 v140, 7, v140")
        poll_core(a)
        a.label(skp)
        a("s_barrier      ; B_dep")
    else:
        l2_setup(a, "p3", 243, 64, KA_WG, D*F*2, 3456, D)
        a("s_barrier      ; B_dep")
    stamp(a, 0)
    for j in range(nper):
        sk = None
        if 8*j + 7 >= NI:
            sk = a.new("attsk")
            a(f"s_cmp_ge_u32 s{S_WAVE}, {NI - 8*j}")
            a(f"s_cbranch_scc1 {sk}")
        a(f"s_add_u32 s{S_T0}, s{S_WAVE}, {8*j}")
        a(f"s_lshl_b32 s{S_T0}, s{S_T0}, 10")
        a(f"s_add_u32 m0, s{S_T0}, {LQ}")
        a("s_nop 0")
        a(f"buffer_load_dwordx4 v{32+j}, s[{SRD_A}:{SRD_A+3}], 0 offen{SC1} lds")
        if sk: a.label(sk)
    a("s_waitcnt vmcnt(0)")
    a("s_barrier")
    stamp(a, 1)
    if role == 'l': l2_issue(a, KA_WG, 3456, D)
    if role == 'c':
        Q = 16; KR = 32; VR = 62; SC = 92; BIAS = 120; PB = 104; O = 4
        for dg in range(5):
            a(f"ds_read_b64 v[{Q+2*dg}:{Q+2*dg+1}], v144 offset:{8*dg}")
        for kb in range(3):
            for dg in range(5):
                r = KR + 2*(5*kb + dg)
                if kb < 2: a(f"ds_read_b64 v[{r}:{r+1}], v145 offset:{8*ROWB*kb + 8*dg}")
                else: a(f"ds_read_b64 v[{r}:{r+1}], v146 offset:{8*dg}")
        scale = (D // 32) ** -0.5
        c1 = scale * 1.4426950408889634
        a(f"s_mov_b32 s{S_T2}, {hex(f2u(c1))}")
        a("s_waitcnt lgkmcnt(0)")
        for kb in range(3):
            for dg in range(5):
                r = VR + 2*(5*kb + dg)
                if kb < 2: a(f"ds_read_b64_tr_b16 v[{r}:{r+1}], v147 offset:{8*ROWB*kb + 8*dg}")
                else: a(f"ds_read_b64_tr_b16 v[{r}:{r+1}], v119 offset:{8*dg}")
        for dg in range(5):
            for kb in range(3):
                r = KR + 2*(5*kb + dg); sc = SC + 4*kb
                c = "0" if dg == 0 else f"v[{sc}:{sc+3}]"
                a(f"v_mfma_f32_4x4x4_16b_bf16 v[{sc}:{sc+3}], v[{r}:{r+1}], v[{Q+2*dg}:{Q+2*dg+1}], {c}")
        a("s_nop 4")
        for m in range(12):
            a(f"v_fma_f32 v{SC+m}, v{SC+m}, s{S_T2}, v{BIAS+m}")
        a(f"v_max3_f32 v14, v{SC}, v{SC+1}, v{SC+2}")
        a(f"v_max3_f32 v15, v{SC+3}, v{SC+4}, v{SC+5}")
        a(f"v_max3_f32 v14, v14, v{SC+6}, v{SC+7}")
        a(f"v_max3_f32 v15, v15, v{SC+8}, v{SC+9}")
        a(f"v_max3_f32 v14, v14, v{SC+10}, v{SC+11}")
        a("v_max_f32 v14, v14, v15")
        for m in range(12):
            a(f"v_sub_f32 v{SC+m}, v{SC+m}, v14")
        for m in range(12):
            a(f"v_exp_f32 v{SC+m}, v{SC+m}")
        a(f"v_add_f32 v14, v{SC}, v{SC+1}")
        a(f"v_add_f32 v15, v{SC+2}, v{SC+3}")
        for m in range(4, 12, 2):
            a(f"v_add_f32 v14, v14, v{SC+m}")
            a(f"v_add_f32 v15, v15, v{SC+m+1}")
        a("v_add_f32 v14, v14, v15")
        a("v_rcp_f32 v14, v14")
        a("s_nop 0")
        for m in range(12):
            a(f"v_mul_f32 v{SC+m}, v{SC+m}, v14")
        for m in range(0, 12, 2):
            a(f"v_cvt_pk_bf16_f32 v{PB+m//2}, v{SC+m}, v{SC+m+1}")
        a("s_waitcnt lgkmcnt(0)")
        a("s_nop 0")
        OA = 32
        for kb in range(3):
            for dg in range(5):
                r = VR + 2*(5*kb + dg); o = OA + 4*dg
                c = "0" if kb == 0 else f"v[{o}:{o+3}]"
                a(f"v_mfma_f32_4x4x4_16b_bf16 v[{o}:{o+3}], v[{r}:{r+1}], v[{PB+2*kb}:{PB+2*kb+1}], {c}")
        a(f"v_subrev_u32 v144, {LQ - LO}, v144")
        a("s_nop 4")
        for dg in range(5):
            o = OA + 4*dg
            a(f"v_cvt_pk_bf16_f32 v{Q+2*dg}, v{o}, v{o+1}")
            a(f"v_cvt_pk_bf16_f32 v{Q+2*dg+1}, v{o+2}, v{o+3}")
            a(f"ds_write_b64 v144, v[{Q+2*dg}:{Q+2*dg+1}] offset:{8*dg}")
    a("s_waitcnt lgkmcnt(0)")
    stamp(a, 2)
    a("s_barrier")
    a(f"ds_read_b128 v[20:23], v148 offset:{LO}")
    sk = a.new("attst")
    a(f"s_cmp_ge_u32 s{S_WAVE}, 2")
    a(f"s_cbranch_scc1 {sk}")
    a(f"ds_read_b128 v[24:27], v149 offset:{LO}")
    a("s_waitcnt lgkmcnt(0)")
    a(f"buffer_store_dwordx4 v[24:27], v157, s[{SRD_OUT}:{SRD_OUT+3}], 0 offen{SC1}")
    a.label(sk)
    a("s_waitcnt lgkmcnt(0)")
    a(f"buffer_store_dwordx4 v[20:23], v156, s[{SRD_OUT}:{SRD_OUT+3}], 0 offen{SC1}")
    a(f"s_lshl_b32 s{S_FIDX}, s{S_RT}, 1")
    a(f"s_add_u32 s{S_FIDX}, s{S_FIDX}, s{S_CT}")
    a(f"s_lshl_b32 s{S_FIDX}, s{S_FIDX}, 7")
    a(f"s_add_u32 s{S_FIDX}, s{S_FIDX}, 0x8000")

def finish_phase(a, role, first=False):
    a("s_waitcnt vmcnt(0)")
    stamp(a, 4)
    if role == 'c' and first and not (FUSE and PH0): nonce_check(a)
    a("s_barrier      ; E3")
    if role == 'c': publish(a)
    stamp(a, 5)

IDLEPF = True
def idle_prefetch(a, NT, kptr, nbytes):
    nidle = 256 - NT
    nw = nidle * 8
    npieces = (nbytes + 1023)//1024
    n = (npieces + nw - 1)//nw
    a(f"s_and_b32 s{S_T0}, s2, 7")
    a(f"s_lshr_b32 s{S_T1}, s2, 3")
    a(f"s_lshl_b32 s{S_T0}, s{S_T0}, 5")
    a(f"s_add_u32 s{S_T0}, s{S_T0}, s{S_T1}")
    a(f"s_sub_u32 s{S_T0}, s{S_T0}, {NT}")
    a(f"s_lshl_b32 s{S_T0}, s{S_T0}, 3")
    a(f"s_add_u32 s{S_T0}, s{S_T0}, s{S_WAVE}      ; q")
    a(f"s_lshl_b32 s{S_T0}, s{S_T0}, 10")
    a("v_lshlrev_b32 v150, 4, v2")
    a(f"v_add_u32 v150, s{S_T0}, v150")
    srd(a, 80, ptr(kptr), 0, nbytes)
    lp = a.new("ipf")
    a(f"s_mov_b32 s{S_CNT}, {n}")
    a.label(lp)
    a("buffer_load_dwordx4 v[152:155], v150, s[80:83], 0 offen")
    a(f"v_add_u32 v150, {nw*1024}, v150")
    a(f"s_sub_u32 s{S_CNT}, s{S_CNT}, 1")
    a(f"s_cmp_lg_u32 s{S_CNT}, 0")
    a(f"s_cbranch_scc1 {lp}")
    a("s_waitcnt vmcnt(0)")

def role_program(a, role):
    phases = [P1F(), P24(2), P3(), P24(4)] if FUSE else [P1(), 'att', P24(2), P3(), P24(4)]
    if 'p1twice' in EXP:
        P = P1F() if FUSE else P1(); inv = a.new("inv")
        tile_map(a, P.NT, P.kind)
        a(f"s_cmp_eq_u32 s{S_VALID}, 0")
        a(f"s_cbranch_scc1 {inv}")
        P.tile_consts(a)
        if role == 'c': consumer_phase(a, P, True)
        else: loader_phase(a, P, True)
        a("s_waitcnt vmcnt(0)")
        a("s_barrier")
        a.label(inv)
    for n, P in enumerate(phases):
        first = (n == 0)
        nxt = a.new("next"); inv = a.new("inv")
        if P == 'att':
            tile_map(a, 256, 'att')
            att_phase(a, role)
            stamp(a, 3)
            finish_phase(a, role)
            prof_store(a, 'att', role)
            continue
        tile_map(a, P.NT, P.kind)
        a(f"s_cmp_eq_u32 s{S_VALID}, 0")
        a(f"s_cbranch_scc1 {inv}")
        P.tile_consts(a)
        if PRIO:
            hi = (role == 'l') if PRIO == 'l' else ((role == 'l') != (P.key == 'p3') if PRIO == 'm' else (role == 'c' and P.key == 'p3'))
            a(f"s_setprio {1 if hi else 0}")
        if role == 'c': consumer_phase(a, P, first)
        else: loader_phase(a, P, first)
        stamp(a, 3)
        if P.key != 'p4': finish_phase(a, role, first)
        spin_capture(a, P.key, role)
        prof_store(a, P.key, role)
        if first:
            a(f"s_branch {nxt}")
            a.label(inv)
            ptr_wait(a)
            if role == 'c': nonce_check(a, issued=False)
            a.label(nxt)
        elif P.key == 'p3' and IDLEPF:
            a(f"s_branch {nxt}")
            a.label(inv)
            idle_prefetch(a, P.NT, KA_WD, F*D*2)
            a.label(nxt)
        else:
            a.label(inv)

def main(out):
    a = Asm()
    a.raw(f".globl {KNAME}")
    a.raw(".p2align 8")
    a.raw(f".type {KNAME},@function")
    a.label(KNAME)
    if PROFDBG:
        a(f"s_memrealtime s[{S_P0+1}:{S_P0+2}]") if False else None
    a("s_cmp_ge_u32 s2, 256")
    a("s_cbranch_scc1 L_exit")
    a(f"s_load_dwordx16 s[{S_PTR}:{S_PTR+15}], s[0:1], 0")
    a(f"s_load_dwordx4 s[{S_PTR+16}:{S_PTR+19}], s[0:1], 64")
    if PROFDBG or SPIN:
        a(f"{STAMP} s[98:99]")
    a("v_lshrrev_b32 v1, 6, v0")
    a("v_and_b32 v2, 63, v0      ; lane")
    a(f"s_mov_b32 s{S_FIDX}, -1")
    a(f"s_mov_b32 s{S_DRY}, 0")
    a(f"v_readfirstlane_b32 s{S_WAVE}, v1")
    a("s_nop 3")
    a(f"s_sub_u32 s{S_W}, s{S_WAVE}, 4")
    a(f"s_cmp_ge_u32 s{S_WAVE}, 4")
    a("s_cbranch_scc1 L_loader")
    role_program(a, 'c')
    a("s_waitcnt vmcnt(0)")
    spin_end(a)
    a("s_endpgm")
    a.label("L_loader")
    role_program(a, 'l')
    a("s_waitcnt vmcnt(0)")
    a.label("L_exit")
    a("s_endpgm")
    HEADER = open("sequential_preLN__sliding_local_dilated__glu_gated_bilinear__prompt.s.ref").read().split("; Override")[0]
    s = HEADER
    s += f"; @launch grid=(256,1,1) block=(512,1,1) lds={LDS_TOTAL}\n"
    s += '.amdgcn_target "amdgcn-amd-amdhsa--gfx950"\n.text\n'
    s += a.text()
    s += f""".section .rodata,"a"
.p2align 6
.amdhsa_kernel {KNAME}
  .amdhsa_next_free_vgpr 256
  .amdhsa_next_free_sgpr 102
  .amdhsa_accum_offset 160
  .amdhsa_group_segment_fixed_size 0
  .amdhsa_kernarg_size 80
  .amdhsa_user_sgpr_count 2
  .amdhsa_user_sgpr_kernarg_segment_ptr 1
  .amdhsa_system_sgpr_workgroup_id_x 1
  .amdhsa_float_denorm_mode_32 3
.end_amdhsa_kernel
"""
    open(out, "w").write(s)

if __name__ == "__main__":
    if "-prof" in sys.argv: PROF = True
    if "-profdbg" in sys.argv: PROFDBG = True
    if "-cyc" in sys.argv: STAMP = "s_memtime"
    if "-wpf" in sys.argv: WPF = True
    if "-nofuse" in sys.argv: FUSE = False
    if "-gate" in sys.argv: GATE = True
    if "-dry" in sys.argv: DRY = True
    if "-noph0" in sys.argv: PH0 = False
    for x in sys.argv:
        if x.startswith("-prio="): PRIO = x[6:]
    for x in sys.argv:
        if x.startswith("-extrab="): EXTRAB = int(x[8:])
        if x.startswith("-p4map="): P4MAP = x[7:]
        if x.startswith("-p3map="): P3MAP = x[7:]
        if x.startswith("-p2map="): P2MAP = x[7:]
        if x.startswith("-pb="): PB2, PB3, PB4 = (int(y) for y in x[4:].split(","))
        if x.startswith("-p4rot="): P4ROT = tuple(int(y) for y in x[7:].split(","))
        if x.startswith("-p3rot="): P3ROT = tuple(int(y) for y in x[7:].split(","))
        if x.startswith("-p2rot="): P2ROT = tuple(int(y) for y in x[7:].split(","))
    if "-onwd" in sys.argv: WPF_OFF.discard(KA_WD)
    for x in sys.argv:
        if x.startswith("-spf="): SPF = int(x[5:])
        if x.startswith("-spf2="): SPF2 = {'wg': KA_WG, 'wu': KA_WU}[x[6:]]
    if "-noidle" in sys.argv: IDLEPF = False
    for x in sys.argv:
        if x.startswith("-spin="):
            p_, a_, b_ = x[6:].split(","); SPIN = (p_, int(a_), int(b_))
    if "-apf" in sys.argv: APF = True
    for x in sys.argv:
        if x.startswith("-p1frot="): P1FROT = x[8:]
    for x in sys.argv:
        if x.startswith("-outsc="): OUTSC = " " + x[7:].replace("+", " ")
    for x in sys.argv:
        if x.startswith("-gate4="): GATE4 = tuple(int(y) for y in x[7:].split(","))
    for x in sys.argv:
        if x.startswith("-osc="): OSC = " " + x[5:].replace("+", " ")
    for x in sys.argv:
        if x.startswith("-align="): ALIGN = int(x[7:])
    if "-nowpf" in sys.argv: WPF = False
    if "-onestep" in sys.argv: TWOSTEP = False
    for x in sys.argv:
        if x.startswith("-exp="): EXP = set(x[5:].split(","))
    if "-noxcd" in sys.argv: NOXCD = True
    for x in sys.argv:
        if x.startswith("-p1rot="): P1ROT = x[7:]
        if x.startswith("-rotoff="): ROTOFF = set(x[8:].split(","))
    for x in sys.argv:
        if x.startswith("-off="):
            for k in x[5:].split(","): WPF_OFF.add({'wo': KA_WO, 'wg': KA_WG, 'wu': KA_WU, 'wd': KA_WD}[k])
    main(sys.argv[1] if len(sys.argv) > 1 else "v3.s")
```

```python
import sys, struct

KNAME = "sequential_preLN__sliding_local_dilated__glu_gated_bilinear__prompt_kernel"
S_TOK, D, NQKV, F = 2048, 640, 1920, 1728
WS_QKV, WS_O, WS_H, WS_HH, WS_ST, WS_FLAG = 0, 0x800000, 0xB00000, 0x1000000, 0x1800000, 0x1900000
WS_PROF = 0x1A00000
WS_ST1 = 0x1880000
KA_X, KA_WQKV, KA_WO, KA_BX, KA_WG, KA_WU, KA_WD, KA_OUT, KA_DBG, KA_WS = [8*i for i in range(10)]
ONES = 0x3F803F80
PROF = False
PROFDBG = False
STAMP = 's_memrealtime'
SC1 = " sc1"
LDS_TOTAL = 163840
NONCE_LDS = 163832
OUTSC = ' sc0 sc1'
SPF = 0
SPF2 = None
EXTRAB = 0
PB2, PB3, PB4 = 7, 3, 7
P2MAP = 'rm'
P3MAP = 'p3b'
P4MAP = 'rm5'
P4ROT = (4, 17, 2)
P3ROT = (1, 9, 2)
P2ROT = (2, 13, 2)
P1FROT = 'latin2'
APF = False
DUAL = True
DUAL2 = (6, 10)
DUAL4 = (6, 10)
PH0 = True
RAMP = 2
RPM3 = 1
RPM1 = 1
DRY = False
PRIO = ''
GATE = False
GATE4 = (6, 3)
OSC = ' sc1'
FUSE = True
ALIGN = 6
TWOSTEP = True
EXP = set()
NOXCD = False

def f2u(x):
    return struct.unpack("<I", struct.pack("<f", x))[0]

class Asm:
    def __init__(self):
        self.L = []
        self.uid = 0
    def __call__(self, s):
        for line in s.split("\n"):
            line = line.strip()
            if line:
                self.L.append("  " + line)
    def label(self, n):
        self.L.append(n + ":")
    def raw(self, s):
        self.L.append(s)
    def new(self, base):
        self.uid += 1
        return f"L{base}_{self.uid}"
    def text(self):
        return "\n".join(self.L) + "\n"

SRD_A, SRD_B0, SRD_B1, SRD_OUT, SRD_AUX, SRD_ST = 8, 12, 16, 20, 24, 28
S_RT, S_CT, S_R0, S_C0, S_WAVE, S_SLOT, S_CNT, S_T0, S_T1, S_T2 = 32, 33, 34, 35, 36, 37, 38, 39, 40, 41
S_AOFF, S_BOFF = 42, 43
S_PTR = 44
S_MASK = 64
S_I, S_J, S_REND, S_K = 66, 67, 68, 69
S_STAMP = 70
S_NONCE = 78
S_FIDX, S_LW, S_VALID, S_KB = 85, 86, 87, 92
SRD_FLAG = 88
S_SLOTB, S_T3, S_T4, S_W = 93, 94, 95, 96
S_P0 = 97
S_N1, S_N2 = 6, 7
S_DRY = 3

def ptr(k): return S_PTR + k // 4

PH_IDX = {'p1': 0, 'att': 1, 'p2': 2, 'p3': 3, 'p4': 4}

def stamp(a, i):
    if i >= 4:
        if PROF: a(f'{STAMP} s[{98+2*(i-4)}:{99+2*(i-4)}]')
        return
    if PROF or PROFDBG or SPIN:
        a(f'{STAMP} s[{S_STAMP+2*i}:{S_STAMP+2*i+1}]')

SPIN = None
def spin_capture(a, ph, role):
    if not SPIN or SPIN[0] != ph or role != 'c': return
    a("s_waitcnt lgkmcnt(0)")
    A_ = "s98" if SPIN[1] < 0 else f"s{S_STAMP+2*SPIN[1]}"
    a(f"s_sub_u32 s100, s{S_STAMP+2*SPIN[2]}, {A_}")
def spin_end(a):
    if not SPIN: return
    sk = a.new("spin"); lp = a.new("spinl")
    a("s_cmp_eq_u32 s2, 9")
    a(f"s_cbranch_scc0 {sk}")
    a(f"s_cmp_eq_u32 s{S_WAVE}, 0")
    a(f"s_cbranch_scc0 {sk}")
    a("s_mul_i32 s100, s100, 20")
    a("s_memrealtime s[4:5]")
    a("s_waitcnt lgkmcnt(0)")
    a("s_add_u32 s100, s100, s4")
    a.label(lp)
    a("s_memrealtime s[4:5]")
    a("s_waitcnt lgkmcnt(0)")
    a("s_sub_u32 s6, s4, s100")
    a("s_cmp_lt_i32 s6, 0")
    a(f"s_cbranch_scc1 {lp}")
    a.label(sk)

def prof_store(a, ph, role):
    if not (PROF or PROFDBG): return
    skip = a.new("pskip")
    a(f"s_cmp_eq_u32 s{S_WAVE}, {0 if role == 'c' else 4}")
    a(f"s_cbranch_scc0 {skip}")
    a('s_waitcnt lgkmcnt(0)')
    if PROF:
        a(f's_add_u32 s80, s{ptr(KA_WS)}, {hex(WS_PROF + PH_IDX[ph]*0x20000)}')
        a(f's_addc_u32 s81, s{ptr(KA_WS)+1}, 0')
        a('s_and_b32 s81, s81, 0xffff')
        a('s_mov_b32 s82, 0x20000')
        a('s_mov_b32 s83, 0x20000')
        a('s_lshl_b32 s84, s2, 3')
        a(f's_add_u32 s84, s84, s{S_WAVE}')
        a('s_lshl_b32 s84, s84, 6')
        for i in range(8): a(f'v_mov_b32 v{128+i}, s{S_STAMP+i}')
        for i in range(4): a(f'v_mov_b32 v{136+i}, s{98+i}')
        a('v_mov_b32 v148, s84')
        a('s_mov_b64 exec, 1')
        a('buffer_store_dwordx4 v[128:131], v148, s[80:83], 0 offen')
        a('buffer_store_dwordx4 v[132:135], v148, s[80:83], 0 offen offset:16')
        a('buffer_store_dwordx4 v[136:139], v148, s[80:83], 0 offen offset:32')
        a('s_mov_b64 exec, -1')
    if PROFDBG and role == 'c':
        sk2 = a.new("pskip")
        a(f"s_cmp_eq_u32 s2, {PROFDBG_WG}")
        a(f"s_cbranch_scc0 {sk2}")
        a(f's_mov_b32 s80, s{ptr(KA_DBG)}')
        a(f's_and_b32 s81, s{ptr(KA_DBG)+1}, 0xffff')
        a('s_mov_b32 s82, 0x100')
        a('s_mov_b32 s83, 0x20000')
        sel = DBG_SEL[ph]
        for j, (i, slot) in enumerate(sel):
            a(f's_sub_u32 s84, s{S_STAMP+2*i}, s{S_P0}')
            a(f'v_mov_b32 v140, s84')
            a(f'v_mov_b32 v141, {4*slot}')
            a('s_mov_b64 exec, 1')
            a('buffer_store_dword v140, v141, s[80:83], 0 offen')
            a('s_mov_b64 exec, -1')
        a.label(sk2)
    a.label(skip)

PROFDBG_WG = 9
DBG_SEL = {'p1': [(1, 2), (2, 3), (3, 4)], 'att': [(0, 5), (1, 6), (3, 7)], 'p2': [(0, 8), (2, 9)], 'p3': [(0, 10), (1, 11), (2, 12)], 'p4': [(0, 13), (2, 14), (3, 15)]}

def set_exec(a, mask):
    if mask == (1 << 64) - 1:
        a("s_mov_b64 exec, -1")
    else:
        a(f"s_mov_b32 exec_lo, {hex(mask & 0xffffffff)}")
        a(f"s_mov_b32 exec_hi, {hex(mask >> 32)}")

def dbar(a, comment=""):
    if not DRY:
        a(f"s_barrier      ; {comment}"); return
    l = a.new("dbar")
    a(f"s_cmp_eq_u32 s{S_DRY}, 1")
    a(f"s_cbranch_scc1 {l}")
    a(f"s_barrier      ; {comment}")
    a.label(l)

def mask_exec(a, mask):
    if not DRY:
        set_exec(a, mask); return
    a("s_mov_b64 s[4:5], exec")
    a(f"s_and_b32 exec_lo, exec_lo, {hex(mask & 0xffffffff)}")
    a(f"s_and_b32 exec_hi, exec_hi, {hex(mask >> 32)}")

def unmask_exec(a):
    a("s_mov_b64 exec, s[4:5]" if DRY else "s_mov_b64 exec, -1")

def dry_call(a, wave, target, ret):
    if not DRY: return
    sk = a.new("dry")
    a(f"s_cmp_eq_u32 s{S_WAVE}, {wave}")
    a(f"s_cbranch_scc0 {sk}")
    a(f"s_mov_b32 s{S_DRY}, 1")
    a("s_mov_b64 exec, 0")
    a(f"s_branch {target}")
    a.label(ret)
    a("s_mov_b64 exec, -1")
    a(f"s_mov_b32 s{S_DRY}, 0")
    a.label(sk)

def dry_exit(a, ret):
    if DRY:
        a(f"s_cmp_eq_u32 s{S_DRY}, 1")
        a(f"s_cbranch_scc1 {ret}")

def srd(a, s, p, off, nbytes):
    if off:
        a(f"s_add_u32 s{s}, s{p}, {hex(off)}")
        a(f"s_addc_u32 s{s+1}, s{p+1}, 0")
    else:
        a(f"s_mov_b32 s{s}, s{p}")
        a(f"s_mov_b32 s{s+1}, s{p+1}")
    a(f"s_and_b32 s{s+1}, s{s+1}, 0xffff")
    a(f"s_mov_b32 s{s+2}, {hex(nbytes)}")
    a(f"s_mov_b32 s{s+3}, 0x20000")

def divc(a, dst, src, d, rng=300):
    m = (65536 + d - 1) // d
    for x in range(0, rng):
        assert (x * m) >> 16 == x // d, (x, d)
    a(f"s_mul_i32 s{dst}, s{src}, {m}")
    a(f"s_lshr_b32 s{dst}, s{dst}, 16")

def magic(d, N):
    for sh in range(8, 24):
        m = ((1 << sh) + d - 1) // d
        if m >= (1 << 24) or m * (N - 1) >= (1 << 32): continue
        if all((x * m) >> sh == x // d for x in range(N)): return m, sh
    raise Exception("no magic")

def sdiv(a, dst, src, d, N):
    m, sh = magic(d, N)
    a(f"s_mul_i32 s{dst}, s{src}, {m}")
    a(f"s_lshr_b32 s{dst}, s{dst}, {sh}")

def vdiv(a, dst, src, d, N):
    m, sh = magic(d, N)
    a(f"v_mul_u32_u24 v{dst}, {m}, v{src}")
    a(f"v_lshrrev_b32 v{dst}, {sh}, v{dst}")

def tile_map(a, NT, kind):
    if NOXCD:
        a(f"s_mov_b32 s{S_T0}, s2")
    else:
        a(f"s_and_b32 s{S_T0}, s2, 7")
        a(f"s_lshr_b32 s{S_T1}, s2, 3")
        a(f"s_lshl_b32 s{S_T0}, s{S_T0}, 5")
        a(f"s_add_u32 s{S_T0}, s{S_T0}, s{S_T1}   ; t")
    a(f"s_cmp_lt_u32 s{S_T0}, {NT}")
    a(f"s_cselect_b32 s{S_VALID}, 1, 0")
    if kind == "p1":
        divc(a, S_T1, S_T0, 90)
        a(f"s_mul_i32 s{S_T2}, s{S_T1}, 90")
        a(f"s_sub_u32 s{S_T2}, s{S_T0}, s{S_T2}")
        divc(a, S_CT, S_T2, 6)
        divc(a, S_RT, S_T2, 5)
        a(f"s_cmp_eq_u32 s{S_T1}, 2")
        a(f"s_cselect_b32 s{S_CT}, s{S_RT}, s{S_CT}")
        a(f"s_cselect_b32 s{S_RT}, 5, 6")
        a(f"s_mul_i32 s{S_RT}, s{S_RT}, s{S_CT}")
        a(f"s_sub_u32 s{S_RT}, s{S_T2}, s{S_RT}")
        a(f"s_mul_i32 s{S_T1}, s{S_T1}, 6")
        a(f"s_add_u32 s{S_RT}, s{S_RT}, s{S_T1}")
    elif kind == "p3":
        divc(a, S_T1, S_T0, 81)
        a(f"s_mul_i32 s{S_T2}, s{S_T1}, 81")
        a(f"s_sub_u32 s{S_T2}, s{S_T0}, s{S_T2}")
        divc(a, S_CT, S_T2, 3)
        a(f"s_mul_i32 s{S_RT}, s{S_CT}, 3")
        a(f"s_sub_u32 s{S_RT}, s{S_T2}, s{S_RT}")
        a(f"s_mul_i32 s{S_T1}, s{S_T1}, 3")
        a(f"s_add_u32 s{S_RT}, s{S_RT}, s{S_T1}")
    elif kind == "p1f":
        a(f"s_lshr_b32 s{S_T1}, s{S_T0}, 6")
        a(f"s_lshl_b32 s{S_RT}, s{S_T1}, 3")
        a(f"s_bfe_u32 s{S_T2}, s{S_T0}, {2 | (3 << 16)}")
        a(f"s_add_u32 s{S_RT}, s{S_RT}, s{S_T2}")
        a(f"s_bfe_u32 s{S_T1}, s{S_T0}, {5 | (1 << 16)}")
        a(f"s_lshl_b32 s{S_T1}, s{S_T1}, 2")
        a(f"s_and_b32 s{S_CT}, s{S_T0}, 3")
        a(f"s_add_u32 s{S_CT}, s{S_CT}, s{S_T1}")
    elif kind == "p3b":
        a(f"s_cmp_ge_u32 s{S_T0}, 108")
        a(f"s_cselect_b32 s{S_T1}, 108, 0")
        a(f"s_sub_u32 s{S_T2}, s{S_T0}, s{S_T1}")
        divc(a, S_CT, S_T2, 4)
        divc(a, S_RT, S_T2, 5)
        a(f"s_cmp_ge_u32 s{S_T0}, 108")
        a(f"s_cselect_b32 s{S_CT}, s{S_RT}, s{S_CT}")
        a(f"s_cselect_b32 s{S_RT}, 5, 4")
        a(f"s_mul_i32 s{S_RT}, s{S_RT}, s{S_CT}")
        a(f"s_sub_u32 s{S_RT}, s{S_T2}, s{S_RT}")
        a(f"s_cmp_ge_u32 s{S_T0}, 108")
        a(f"s_cselect_b32 s{S_T1}, 4, 0")
        a(f"s_add_u32 s{S_RT}, s{S_RT}, s{S_T1}")
    elif kind == "rm5":
        divc(a, S_T1, S_T0, 125)
        a(f"s_mul_i32 s{S_T2}, s{S_T1}, 125")
        a(f"s_sub_u32 s{S_T2}, s{S_T0}, s{S_T2}")
        divc(a, S_RT, S_T2, 5)
        a(f"s_mul_i32 s{S_CT}, s{S_RT}, 5")
        a(f"s_sub_u32 s{S_CT}, s{S_T2}, s{S_CT}")
        a(f"s_mul_i32 s{S_T1}, s{S_T1}, 5")
        a(f"s_add_u32 s{S_CT}, s{S_CT}, s{S_T1}")
    elif kind == "att":
        a(f"s_lshr_b32 s{S_RT}, s{S_T0}, 1")
        a(f"s_and_b32 s{S_CT}, s{S_T0}, 1")
    else:
        divc(a, S_RT, S_T0, 10)
        a(f"s_mul_i32 s{S_CT}, s{S_RT}, 10")
        a(f"s_sub_u32 s{S_CT}, s{S_T0}, s{S_CT}")

def publish(a):
    skip = a.new("pub")
    a(f"s_cmp_eq_u32 s{S_WAVE}, 0")
    a(f"s_cbranch_scc0 {skip}")
    a(f"s_cmp_eq_u32 s{S_FIDX}, -1")
    a(f"s_cbranch_scc1 {skip}")
    a(f"v_mov_b32 v140, s{S_NONCE}")
    a(f"v_mov_b32 v141, s{S_NONCE+1}")
    a(f"v_mov_b32 v142, s{S_FIDX}")
    a("s_mov_b64 exec, 1")
    a(f"buffer_store_dwordx2 v[140:141], v142, s[{SRD_FLAG}:{SRD_FLAG+3}], 0 offen{SC1}")
    a("s_mov_b64 exec, -1")
    a.label(skip)

def poll_core(a, sv=80):
    loop = a.new("poll"); done = a.new("polldone")
    a(f"s_and_saveexec_b64 s[{sv}:{sv+1}], vcc")
    a(f"s_mov_b32 s{S_CNT}, 0x40000")
    a.label(loop)
    a(f"buffer_load_dwordx2 v[142:143], v140, s[{SRD_FLAG}:{SRD_FLAG+3}], 0 offen{SC1}")
    a("s_waitcnt vmcnt(0)")
    a(f"v_cmp_ne_u64 vcc, s[{S_NONCE}:{S_NONCE+1}], v[142:143]")
    a(f"s_cbranch_vccz {done}")
    a(f"s_sub_u32 s{S_CNT}, s{S_CNT}, 1")
    a(f"s_cmp_lg_u32 s{S_CNT}, 0")
    a(f"s_cbranch_scc1 {loop}")
    a.label(done)
    a(f"s_mov_b64 exec, s[{sv}:{sv+1}]")

def poll(a, lo_sgpr, hi_sgpr, base, wave=0):
    skip = a.new("pollskip")
    a(f"s_cmp_eq_u32 s{S_WAVE}, {wave}")
    a(f"s_cbranch_scc0 {skip}")
    a(f"v_add_u32 v140, s{lo_sgpr}, v2")
    a(f"v_cmp_gt_u32 vcc, s{hi_sgpr}, v140")
    a(f"v_lshlrev_b32 v140, 7, v140")
    a(f"v_add_u32 v140, {base}, v140")
    poll_core(a, 80 if wave == 0 else 4)
    a.label(skip)

def poll_first_g(a, lo_sgpr, hi_sgpr, W, k0, S, G, base):
    skip = a.new("pollskip")
    lg = 2 if G <= 4 else 3
    a(f"s_cmp_eq_u32 s{S_WAVE}, 0")
    a(f"s_cbranch_scc0 {skip}")
    a(f"v_lshrrev_b32 v140, {lg}, v2")
    a(f"v_add_u32 v140, s{lo_sgpr}, v140")
    a(f"v_cmp_ge_u32 vcc, s{hi_sgpr}, v140")
    a(f"v_and_b32 v141, {(1 << lg) - 1}, v2")
    a(f"v_cmp_gt_u32 s[82:83], {G}, v141")
    a(f"v_add_u32 v141, s{k0}, v141")
    a(f"v_subrev_u32 v142, {S}, v141")
    a(f"s_and_b64 s[82:83], s[82:83], vcc")
    a(f"v_cmp_le_u32 vcc, {S}, v141")
    a(f"v_mul_u32_u24 v140, {W}, v140")
    a("s_nop 0")
    a("v_cndmask_b32 v141, v141, v142, vcc")
    a("v_add_u32 v140, v140, v141")
    a(f"v_lshlrev_b32 v140, 7, v140")
    a(f"v_add_u32 v140, {base}, v140")
    a("s_mov_b64 vcc, s[82:83]")
    poll_core(a)
    a.label(skip)

def poll_first(a, lo_sgpr, hi_sgpr, W, k0, k1, base):
    skip = a.new("pollskip")
    a(f"s_cmp_eq_u32 s{S_WAVE}, 0")
    a(f"s_cbranch_scc0 {skip}")
    a("v_lshrrev_b32 v140, 1, v2")
    a(f"v_add_u32 v140, s{lo_sgpr}, v140")
    a(f"v_cmp_ge_u32 vcc, s{hi_sgpr}, v140")
    a(f"v_mul_u32_u24 v140, {W}, v140")
    a("v_and_b32 v141, 1, v2")
    a(f"s_sub_u32 s{S_T2}, s{k1}, s{k0}")
    a(f"v_mul_lo_u32 v141, v141, s{S_T2}")
    a(f"v_add_u32 v141, s{k0}, v141")
    a("v_add_u32 v140, v140, v141")
    a(f"v_lshlrev_b32 v140, 7, v140")
    a(f"v_add_u32 v140, {base}, v140")
    poll_core(a)
    a.label(skip)

def first_ks(a, P):
    P.rot_start(a)
    a(f"s_add_u32 s{S_KB}, s{S_K}, 1")
    a(f"s_cmp_ge_u32 s{S_KB}, {8 if getattr(P, 'oprime', False) else P.S}")
    a(f"s_cselect_b32 s{S_KB}, 0, s{S_KB}")

def dbg_srd(a):
    a(f"s_mov_b32 s80, s{ptr(KA_DBG)}")
    a(f"s_and_b32 s81, s{ptr(KA_DBG)+1}, 0xffff")
    a("s_mov_b32 s82, 0x100")
    a("s_mov_b32 s83, 0x20000")

def nonce_publish(a):
    skip = a.new("nonce")
    a(f"s_cmp_eq_u32 s{S_WAVE}, 0")
    a(f"s_cbranch_scc0 {skip}")
    a("s_cmp_eq_u32 s2, 0")
    a(f"s_cbranch_scc0 {skip}")
    dbg_srd(a)
    a(f"s_memrealtime s[{S_NONCE}:{S_NONCE+1}]")
    a("v_mov_b32 v5, 0")
    a("s_waitcnt lgkmcnt(0)")
    a(f"s_or_b32 s{S_NONCE}, s{S_NONCE}, 1")
    a(f"v_mov_b32 v6, s{S_NONCE}")
    a(f"v_mov_b32 v7, s{S_NONCE+1}")
    a("s_mov_b64 exec, 1")
    a(f"buffer_store_dwordx2 v[6:7], v5, s[80:83], 0 offen{SC1}")
    a("s_mov_b64 exec, -1")
    a.label(skip)

def nonce_issue(a):
    skip = a.new("nonce")
    a(f"s_cmp_eq_u32 s{S_WAVE}, 0")
    a(f"s_cbranch_scc0 {skip}")
    dbg_srd(a)
    a("v_mov_b32 v158, 0")
    a("s_nop 3")
    a(f"buffer_load_dwordx2 v[156:157], v158, s[80:83], 0 offen{SC1}")
    a.label(skip)

def nonce_check(a, issued=True):
    skip = a.new("nonce"); loop = a.new("nloop"); done = a.new("ndone"); chk = a.new("nchk")
    a(f"s_cmp_eq_u32 s{S_WAVE}, 0")
    a(f"s_cbranch_scc0 {skip}")
    dbg_srd(a)
    a("v_mov_b32 v158, 0")
    a(f"s_mov_b32 s{S_CNT}, 0x40000")
    if issued: a(f"s_branch {chk}")
    a.label(loop)
    a(f"buffer_load_dwordx2 v[156:157], v158, s[80:83], 0 offen{SC1}")
    a("s_waitcnt vmcnt(0)")
    a.label(chk)
    a("v_readfirstlane_b32 s" + str(S_NONCE) + ", v156")
    a("v_readfirstlane_b32 s" + str(S_NONCE+1) + ", v157")
    a("s_nop 3")
    a(f"s_cmp_lg_u32 s{S_NONCE}, 0")
    a(f"s_cbranch_scc1 {done}")
    a(f"s_sub_u32 s{S_CNT}, s{S_CNT}, 1")
    a(f"s_cmp_lg_u32 s{S_CNT}, 0")
    a(f"s_cbranch_scc1 {loop}")
    a.label(done)
    a(f"v_mov_b32 v158, {NONCE_LDS}")
    a("s_mov_b64 exec, 1")
    a("ds_write_b64 v158, v[156:157]")
    a("s_mov_b64 exec, -1")
    a("s_waitcnt lgkmcnt(0)")
    a.label(skip)

def nonce_from_lds(a):
    skip = a.new("nlds")
    a(f"s_cmp_eq_u32 s{S_WAVE}, 7")
    a(f"s_cbranch_scc0 {skip}")
    a(f"v_mov_b32 v140, {NONCE_LDS}")
    a("ds_read_b64 v[142:143], v140")
    a("s_waitcnt lgkmcnt(0)")
    a(f"v_readfirstlane_b32 s{S_NONCE}, v142")
    a(f"v_readfirstlane_b32 s{S_NONCE+1}, v143")
    a.label(skip)

class Phase:
    has_e1 = False
    has_stage_work = False
    prefetchB = 0
    def loader_post_first(self, a): return 0
    def loader_post_b0(self, a): return 0
    def loader_stage_work_parts(self): return []
    def loader_final(self, a): pass
    def store_pre(self, a): pass
    def tail_prefetch(self, a, part): return 0
    def mid_prefetch(self, a, s): return 0
    def l2_prep(self, a): pass
    def rot_start(self, a):
        if self.key in ROTOFF:
            a(f"s_mov_b32 s{S_K}, 0"); return
        ca, cb, den = self.rot
        Sm = 8 if getattr(self, 'oprime', False) else self.S
        a(f"s_mul_i32 s{S_K}, s{S_CT}, {ca}")
        a(f"s_mul_i32 s{S_T0}, s{S_RT}, {cb}")
        a(f"s_add_u32 s{S_K}, s{S_K}, s{S_T0}")
        a(f"s_lshr_b32 s{S_K}, s{S_K}, {den}")
        m = (65536 + Sm - 1) // Sm
        for x in range(1024): assert (x*m) >> 16 == x // Sm
        a(f"s_mul_i32 s{S_T0}, s{S_K}, {m}")
        a(f"s_lshr_b32 s{S_T0}, s{S_T0}, 16")
        a(f"s_mul_i32 s{S_T0}, s{S_T0}, {Sm}")
        a(f"s_sub_u32 s{S_K}, s{S_K}, s{S_T0}")
    def tile_consts(self, a):
        a(f"s_mul_i32 s{S_R0}, s{S_RT}, {self.MV}")
        a(f"s_mul_i32 s{S_C0}, s{S_CT}, {self.NC}")
        a(f"s_add_u32 s{S_REND}, s{S_R0}, {self.MV}")
        a(f"s_min_u32 s{S_REND}, s{S_REND}, {S_TOK}")

def transition(a, first):
    pass

def loader_phase(a, P, first):
    NS, S = P.NS, P.S
    nA, nB = len(P.Ains), len(P.Bins)
    VB = 32
    customB = getattr(P, 'custom_B', False)
    a("v_lshrrev_b32 v3, 3, v2      ; r8")
    a("v_and_b32 v4, 7, v2          ; p")
    a("v_lshrrev_b32 v5, 1, v3      ; r8>>1")
    a("v_xor_b32 v6, v4, v5")
    a("v_lshlrev_b32 v6, 4, v6")
    a(f"s_lshl_b32 s{S_T0}, s{S_W}, 3")
    a(f"s_add_u32 s{S_T0}, s{S_T0}, s{S_R0}")
    a(f"v_add_u32 v7, s{S_T0}, v3")
    a(f"s_mov_b32 s{S_T0}, {P.lda}")
    a(f"v_mul_lo_u32 v7, v7, s{S_T0}")
    a("v_add_u32 v7, v7, v6")
    a(f"s_and_b32 s{S_T0}, s{S_W}, 1")
    a(f"s_lshl_b32 s{S_T0}, s{S_T0}, 6")
    a(f"v_xor_b32 v7, s{S_T0}, v7")
    for t in range(nA):
        a(f"v_add_u32 v{VB+t}, {t*32*P.lda}, v7")
    if customB: P.lazyB = True
    else: std_B_setup(a, P, VB, nA)
    if getattr(P, 'oprime', False): oprime_alt_setup(a, P)
    a(f"s_lshl_b32 s{S_LW}, s{S_W}, 10")
    P.mask_setup(a)
    P.rot_start(a)
    a(f"s_mov_b32 s{S_KB}, s{S_K}")
    a(f"s_mov_b32 s{S_N1}, 0"); a(f"s_mov_b32 s{S_N2}, 0")
    if first: ptr_wait(a)
    P.build_srds(a, 'l')
    loader_rest(a, P, first, VB, nA, nB, NS, S)

def oprime_alt_setup(a, P):
    a(f"s_and_b32 s{S_T0}, s{S_W}, 1")
    a(f"s_lshl_b32 s{S_T0}, s{S_T0}, 6")
    a(f"v_xor_b32 v10, s{S_T0}, v6")
    a("v_lshrrev_b32 v11, 5, v10             ; q = c>>1")
    a("v_lshlrev_b32 v11, 7, v11             ; q*128")
    a("v_and_b32 v12, 16, v10                ; half*16")
    a("v_add_u32 v11, v11, v12")
    a(f"s_lshl_b32 s{S_T0}, s{S_W}, 3")
    a(f"s_add_u32 s{S_T0}, s{S_T0}, s{S_R0}")
    a(f"v_add_u32 v12, s{S_T0}, v3            ; row (t=0)")
    for t in range(3):
        a(f"v_add_u32 v13, {32*t}, v12")
        a("v_lshrrev_b32 v14, 2, v13")
        a("v_lshlrev_b32 v14, 10, v14")
        a("v_and_b32 v13, 3, v13")
        a("v_lshl_add_u32 v14, v13, 5, v14")
        a("v_add_u32 v14, v14, v11")
        a(f"v_add_u32 v{44+t}, 0x200000, v14")
    a(f"s_and_b32 s{S_T0}, s{S_W}, 1")
    a(f"s_lshl_b32 s{S_T0}, s{S_T0}, 6")
    a(f"v_xor_b32 v10, s{S_T0}, v8")
    a(f"s_lshl_b32 s{S_T1}, s{S_C0}, 1")
    a(f"v_add_u32 v10, s{S_T1}, v10")
    a(f"s_lshl_b32 s{S_T0}, s{S_W}, 3")
    for t, ib in enumerate((0, 4)):
        a(f"v_add_u32 v12, s{S_T0}, v3")
        a(f"v_add_u32 v12, {8*ib}, v12          ; r")
        a("v_lshrrev_b32 v13, 4, v12")
        a("v_mul_u32_u24 v13, 80, v13")
        a("v_and_b32 v12, 15, v12")
        a("v_add_u32 v13, v13, v12")
        a("v_add_u32 v13, 64, v13")
        a("v_mul_u32_u24 v13, 1280, v13")
        a(f"v_add_u32 v{47+t}, v13, v10")

def loader_dual(a, P, VB, nA, nB, S, opr, issueA_body, issueB_body, soff):
    NSA, NSB = P.dual
    AST, BST, BBASE = 12288, 8192, NSA*12288
    Smod = 8 if opr else S
    minA = nA - (1 if 'skip' in P.Ains else 0)
    def kadv(kreg, offreg, mul):
        a(f"s_add_u32 s{kreg}, s{kreg}, 1")
        a(f"s_cmp_ge_u32 s{kreg}, {Smod}")
        a(f"s_cselect_b32 s{kreg}, 0, s{kreg}")
        soff(kreg, offreg, mul)
    def sadv(reg, stride, n):
        a(f"s_add_u32 s{reg}, s{reg}, {stride}")
        a(f"s_cmp_ge_u32 s{reg}, {stride*n}")
        a(f"s_cselect_b32 s{reg}, 0, s{reg}")
    def iA(pos):
        a(f"s_add_u32 s{S_T3}, s{S_SLOT}, s{S_LW}")
        if opr and pos is not None and pos >= 8:
            a(f"s_mov_b32 s{S_AOFF}, {(pos-8)*512}")
            issueA_body(44, None)
        else:
            issueA_body(VB, None)
            kadv(S_K, S_AOFF, 128)
        sadv(S_SLOT, AST, NSA)
    def iB(pos):
        a(f"s_add_u32 s{S_T4}, s{S_SLOTB}, s{S_LW}")
        if opr and pos is not None and pos >= 8:
            a(f"s_mov_b32 s{S_BOFF}, {(pos-8)*409600}")
            issueB_body(47, None)
        else:
            issueB_body(VB + nA, None)
            kadv(S_KB, S_BOFF, 64*P.ldb)
        sadv(S_SLOTB, BST, NSB)
    a(f"s_mov_b32 s{S_SLOT}, 0")
    a(f"s_mov_b32 s{S_SLOTB}, 0")
    soff(S_K, S_AOFF, 128)
    soff(S_KB, S_BOFF, 64*P.ldb)
    pB = min(NSB, S)
    nmain = min(pB, Smod)
    lp = a.new("bpre")
    a(f"s_mov_b32 s{S_CNT}, {nmain}")
    a.label(lp)
    iB(None)
    a(f"s_sub_u32 s{S_CNT}, s{S_CNT}, 1")
    a(f"s_cmp_lg_u32 s{S_CNT}, 0")
    a(f"s_cbranch_scc1 {lp}")
    for j in range(nmain, pB): iB(j)
    a("s_barrier      ; B_dep")
    stamp(a, 0)
    seq = [('B', j) for j in range(pB)]
    def cnt_after(s):
        last = max(i for i, (k, j) in enumerate(seq) if j == s and k in 'AB')
        return sum(minA if k == 'A' else (nB if k == 'B' else j) for (k, j) in seq[last+1:])
    LA, LB = [], []
    for s in range(S):
        capA = (NSA - 1) if s == 0 else s + NSA - 2
        LA.append(min(S - 1, capA, (LA[-1] if LA else -1) + 2))
        capB = (NSB - 1) if s == 0 else s + NSB - 2
        LB.append(min(S - 1, max(capB, pB - 1)))
    prevA, prevB = -1, pB - 1
    s = 0
    while s < S:
        kA, kB = LA[s] - prevA, LB[s] - prevB
        e = s
        if s > 0 and kA == 1 and not (opr and LA[s] >= 8):
            while (e + 1 < S and LA[e+1] - LA[e] == 1 and LB[e+1] - LB[e] == kB and kB in (0, 1)
                   and not hasattr(P, 'hook_at') ): e += 1
        uniform = False
        if e - s >= 3:
            save = list(seq); vals = []
            for j in range(s, e + 1):
                seq.append(('A', LA[j]))
                if kB: seq.append(('B', LB[j]))
                vals.append(cnt_after(j))
            seq[:] = save
            uniform = len(set(vals)) == 1
        if uniform:
            cnt = e - s + 1
            lp = a.new("lmain")
            a(f"s_mov_b32 s{S_CNT}, {cnt}")
            a.label(lp)
            iA(None)
            if kB: iB(None)
            for j in range(s, e + 1):
                seq.append(('A', LA[j]))
                if kB: seq.append(('B', LB[j]))
            a(f"s_waitcnt vmcnt({vals[0]})")
            a("s_barrier")
            a(f"s_sub_u32 s{S_CNT}, s{S_CNT}, 1")
            a(f"s_cmp_lg_u32 s{S_CNT}, 0")
            a(f"s_cbranch_scc1 {lp}")
            prevA, prevB = LA[e], LB[e]; s = e + 1
            continue
        for j in range(prevA + 1, LA[s] + 1):
            iA(j); seq.append(('A', j))
        for j in range(prevB + 1, LB[s] + 1):
            iB(j); seq.append(('B', j))
        if s == 0:
            stamp(a, 1)
            ex = P.loader_post_first(a) or 0
            P.l2_prep(a)
            ex += P.early_setup(a)
            if ex: seq.append(('X', ex))
        nw = P.mid_prefetch(a, s) or 0
        if nw: seq.append(('X', nw))
        a(f"s_waitcnt vmcnt({cnt_after(s)})")
        if s == 0: a("s_waitcnt lgkmcnt(0)")
        a("s_barrier")
        prevA, prevB = LA[s], LB[s]; s += 1
    stamp(a, 2)
    a("s_barrier          ; E2")
    P.store_fast(a)
    P.set_fidx(a)

def std_B_setup(a, P, VB, nA):
    a("v_and_b32 v8, 1, v5")
    a("v_lshlrev_b32 v8, 1, v8")
    a("v_xor_b32 v8, v4, v8")
    a("v_lshlrev_b32 v8, 4, v8")
    a(f"s_lshl_b32 s{S_T0}, s{S_W}, 3")
    a(f"v_add_u32 v9, s{S_T0}, v3         ; k = 8w + r8")
    a(f"s_mov_b32 s{S_T0}, {P.ldb}")
    a(f"v_mul_lo_u32 v9, v9, s{S_T0}")
    a("v_add_u32 v9, v9, v8")
    a(f"s_and_b32 s{S_T0}, s{S_W}, 1")
    a(f"s_lshl_b32 s{S_T0}, s{S_T0}, 6")
    a(f"v_xor_b32 v9, s{S_T0}, v9")
    a(f"s_lshl_b32 s{S_T1}, s{S_C0}, 1")
    a(f"v_add_u32 v9, s{S_T1}, v9")
    for t, (pn, ib) in enumerate(P.Bins):
        a(f"v_add_u32 v{VB+nA+t}, {ib*8*P.ldb + P.panel_coloff[pn]}, v9")

def loader_rest(a, P, first, VB, nA, nB, NS, S):

    opr = getattr(P, 'oprime', False)
    Smod = 8 if opr else S
    def soff(kreg, offreg, mul):
        if opr: mul = 128 if offreg == S_AOFF else 102400
        a(f"s_mul_i32 s{offreg}, s{kreg}, {mul}")
    def adv(kreg, offreg, mul, slotreg):
        if getattr(P, 'order2', False) and P1ROT == 'latin2':
            cnt = S_N1 if kreg == S_K else S_N2
            a(f"s_add_u32 s{kreg}, s{kreg}, 2")
            a(f"s_cmp_ge_u32 s{kreg}, {S}")
            a(f"s_cselect_b32 s{S_T0}, {S}, 0")
            a(f"s_sub_u32 s{kreg}, s{kreg}, s{S_T0}")
            a(f"s_add_u32 s{cnt}, s{cnt}, 1")
            a(f"s_cmp_eq_u32 s{cnt}, 5")
            a(f"s_addc_u32 s{kreg}, s{kreg}, 0")
        else:
            a(f"s_add_u32 s{kreg}, s{kreg}, 1")
            a(f"s_cmp_ge_u32 s{kreg}, {Smod}")
            a(f"s_cselect_b32 s{kreg}, 0, s{kreg}")
        soff(kreg, offreg, mul)
        a(f"s_add_u32 s{slotreg}, s{slotreg}, {P.STAGE}")
        a(f"s_cmp_ge_u32 s{slotreg}, {P.STAGE*NS}")
        a(f"s_cselect_b32 s{slotreg}, 0, s{slotreg}")
    def slot_only(slotreg):
        a(f"s_add_u32 s{slotreg}, s{slotreg}, {P.STAGE}")
        a(f"s_cmp_ge_u32 s{slotreg}, {P.STAGE*NS}")
        a(f"s_cselect_b32 s{slotreg}, 0, s{slotreg}")
    def issueA(fill=None, pos=None):
        a(f"s_add_u32 s{S_T3}, s{S_SLOT}, s{S_LW}")
        if opr and pos is not None and pos >= 8:
            a(f"s_mov_b32 s{S_AOFF}, {(pos-8)*512}")
            issueA_body(44, None)
            slot_only(S_SLOT)
            return
        issueA_body(VB, fill)
        adv(S_K, S_AOFF, 128, S_SLOT)
    def issueA_body(vb, fill):
        for t in range(nA):
            special = P.Ains[t]
            sk = None
            if special == 'skip':
                sk = a.new("sk")
                a(f"s_cmp_eq_u64 s[{S_MASK}:{S_MASK+1}], 0")
                a(f"s_cbranch_scc1 {sk}")
            a(f"s_add_u32 m0, s{S_T3}, {t*4096}")
            if special: a(f"s_mov_b64 exec, s[{S_MASK}:{S_MASK+1}]")
            else: a("s_nop 0")
            a(f"buffer_load_dwordx4 v{vb+t}, s[{SRD_A}:{SRD_A+3}], s{S_AOFF} offen{P.scA} lds")
            if special: a("s_mov_b64 exec, -1")
            if sk: a.label(sk)
            if fill:
                for x in fill.pop(0) if fill else []: a(x)
    def issueB(fill=None, pos=None):
        if getattr(P, 'lazyB', False):
            P.lazyB = False
            P.custom_B_setup(a, VB + nA)
        a(f"s_add_u32 s{S_T4}, s{S_SLOTB}, s{S_LW}")
        if opr and pos is not None and pos >= 8:
            a(f"s_mov_b32 s{S_BOFF}, {(pos-8)*409600}")
            issueB_body(47, None)
            slot_only(S_SLOTB)
            return
        issueB_body(VB + nA, fill)
        adv(S_KB, S_BOFF, 64*P.ldb, S_SLOTB)
    def issueB_body(vb, fill):
        for t, ent in enumerate(P.Bins):
            if isinstance(ent, dict):
                sr = SRD_B0; ldsoff = ent['lds']; skp = ent.get('skip')
            else:
                pn, ib = ent
                boff = (P.dual[0]*12288 if getattr(P, 'dual', None) else P.ABYTES)
                sr = P.panel_srd[pn]; ldsoff = boff + pn*8192 + ib*1024; skp = None
            sk = None
            if skp:
                sk = a.new("skb")
                a(f"s_cmp_ge_u32 s{S_W}, {skp}")
                a(f"s_cbranch_scc1 {sk}")
            a(f"s_add_u32 m0, s{S_T4}, {ldsoff}")
            a("s_nop 0")
            a(f"buffer_load_dwordx4 v{vb+t}, s[{sr}:{sr+3}], s{S_BOFF} offen lds")
            if sk: a.label(sk)
            if fill:
                for x in fill.pop(0) if fill else []: a(x)
    dual = getattr(P, 'dual', None)
    if dual:
        return loader_dual(a, P, VB, nA, nB, S, opr, issueA_body, issueB_body, soff)
    minA = nA - (1 if 'skip' in P.Ains else 0)
    minB = nB - sum(1 for e_ in P.Bins if isinstance(e_, dict) and e_.get('skip'))
    a(f"s_mov_b32 s{S_SLOT}, 0")
    a(f"s_mov_b32 s{S_SLOTB}, 0")
    soff(S_K, S_AOFF, 128)
    soff(S_KB, S_BOFF, 64*P.ldb)
    pB = P.prefetchB if not first else 0
    if pB:
        lp = a.new("bpre")
        a(f"s_mov_b32 s{S_CNT}, {pB}")
        a.label(lp)
        issueB()
        a(f"s_sub_u32 s{S_CNT}, s{S_CNT}, 1")
        a(f"s_cmp_lg_u32 s{S_CNT}, 0")
        a(f"s_cbranch_scc1 {lp}")
    nextra = 0
    if pB and getattr(P, 'extraB', 0) and EXTRAB:
        a(f"s_mov_b32 s4, s{S_KB}")
        for e_ in range(EXTRAB):
            for t in range(nB):
                a(f"buffer_load_dwordx4 v[152:155], v{VB+nA+t}, s[{SRD_B0}:{SRD_B0+3}], s{S_BOFF} offen")
                nextra += 1
            a(f"s_add_u32 s{S_KB}, s{S_KB}, 1")
            a(f"s_cmp_ge_u32 s{S_KB}, {S}")
            a(f"s_cselect_b32 s{S_KB}, 0, s{S_KB}")
            a(f"s_mul_i32 s{S_BOFF}, s{S_KB}, {64*P.ldb}")
        a(f"s_mov_b32 s{S_KB}, s4")
        a(f"s_mul_i32 s{S_BOFF}, s{S_KB}, {64*P.ldb}")
    if not first:
        a("s_barrier      ; B_dep")
    stamp(a, 0)
    L = []
    gate = getattr(P, 'gate', None) if not first else None
    for s in range(S):
        cap = (NS - 1) if s == 0 else s + NS - 2
        prev = L[-1] if L else -1
        if gate and s <= gate[1]:
            L.append(min(gate[0] - 1, cap, prev + 2))
        else:
            L.append(min(S - 1, cap, prev + (3 if gate else (RAMP if not first else 2))))
    if gate:
        assert gate[0] <= pB and gate[0] - 1 <= NS - 1
        nonce_from_lds(a)
    seq = [('B', j) for j in range(pB)]
    if nextra: seq.append(('X', nextra))
    if hasattr(P, 'pre_issue'):
        npre = P.pre_issue(a)
    def cnt_after(s):
        last = max(i for i, (k, j) in enumerate(seq) if j == s and k in 'AB')
        n = 0
        for (k, j) in seq[last+1:]:
            n += minA if k == 'A' else (minB if k == 'B' else j)
        return n
    def issue_stage(j, fill=None):
        if j >= pB:
            issueA(fill, j); seq.append(('A', j))
            issueB(fill, j); seq.append(('B', j))
        else:
            issueA(fill, j); seq.append(('A', j))
    prev = -1
    s = 0
    while s < S:
        k = L[s] - prev
        e = s
        if k == 1 and L[s] >= pB and s > 0 and not getattr(P, 'unroll', False):
            while e + 1 < S and L[e+1] - L[e] == 1 and (L[e+1] - (e+1)) == (L[s] - s) and (getattr(P, 'steady_end', None) is None or e + 1 <= P.steady_end): e += 1
        if e - s >= 2 and s - 0 >= 0 and min(range(s, e+1)) >= 0 and s >= pB - (L[s] - s) and all(j >= pB for j in range(s, s+1)):
            cnt = e - s + 1
            lp = a.new("lmain")
            a(f"s_mov_b32 s{S_CNT}, {cnt}")
            a.label(lp)
            parts = P.loader_stage_work_parts() if P.has_stage_work else None
            issue_stage(L[s], parts)
            if parts:
                for grp in parts:
                    for x in grp: a(x)
            n = cnt_after(s)
            a(f"s_waitcnt vmcnt({n})")
            if P.has_stage_work: a("s_waitcnt lgkmcnt(0)")
            a("s_barrier")
            a(f"s_sub_u32 s{S_CNT}, s{S_CNT}, 1")
            a(f"s_cmp_lg_u32 s{S_CNT}, 0")
            a(f"s_cbranch_scc1 {lp}")
            for j in range(s+1, e+1):
                seq.append(('A', L[j])); seq.append(('B', L[j]))
            prev = L[e]; s = e + 1
            continue
        parts = P.loader_stage_work_parts() if (P.has_stage_work and s > 0) else None
        for j in range(prev+1, L[s]+1):
            issue_stage(j, parts if j == prev+1 else None)
        if s == 0:
            stamp(a, 1)
            ex = P.loader_post_first(a) or 0
            P.l2_prep(a)
            if getattr(P, 'early_pre', False): ex += P.early_setup(a)
            if ex: seq.append(('X', ex))
        if parts:
            for grp in parts:
                for x in grp: a(x)
        nw = P.mid_prefetch(a, s) or 0
        if nw: seq.append(('X', nw))
        if gate and s == gate[1]: P.deps(a, wave=7)
        a(f"s_waitcnt vmcnt({cnt_after(s)})")
        if hasattr(P, 'post_wait'): P.post_wait(a, s)
        if P.has_stage_work or s == 0: a("s_waitcnt lgkmcnt(0)")
        a("s_barrier")
        if s == 0:
            ex = P.loader_post_b0(a) or 0
            if ex: seq.append(('X', ex))
        prev = L[s]; s += 1
    stamp(a, 2)
    if P.has_stage_work:
        for grp in P.loader_stage_work_parts():
            for x in grp: a(x)
    if getattr(P, 'fused', False):
        P.loader_fused_tail(a)
        return
    P.loader_final(a)
    if getattr(P, 'chunk_epi', False): P.loader_store_setup(a)
    if getattr(P, 'early_pre', False):
        a("s_barrier          ; E2")
        P.store_fast(a)
        P.set_fidx(a)
        return
    P.store_pre(a)
    ny = 0
    if P.has_e1:
        a("s_waitcnt lgkmcnt(0)")
        a("s_barrier      ; E1")
    if getattr(P, 'stream_epi', False):
        P.set_fidx(a)
        return
    if getattr(P, 'chunk_epi', False):
        P.loader_epilogue(a)
        P.set_fidx(a)
        return
    a("s_barrier          ; E2")
    store_pass(a, P, ny)

def consumer_phase(a, P, first):
    if getattr(P, 'modeS', False): return consumer_phase_S(a, P, first)
    P.consumer_setup(a)
    NW = len(P.wlist)
    XF = [0, 4*P.NXMAX]
    WF = [8*P.NXMAX, 8*P.NXMAX + 4*NW]
    wk, wt = getattr(P, 'wstep', (4096, 512))
    def reads(kk, buf):
        r = []
        for wi, (areg, off) in enumerate(P.wlist):
            base = WF[buf] + 4*wi
            r.append(f"ds_read_b64_tr_b16 a[{base}:{base+1}], v{areg} offset:{off + kk*wk}")
            r.append(f"ds_read_b64_tr_b16 a[{base+2}:{base+3}], v{areg} offset:{off + kk*wk + wt}")
        for xi, (areg0, areg1, off) in enumerate(P.xlist):
            base = XF[buf] + 4*xi
            areg = areg0 if kk == 0 else areg1
            r.append(f"ds_read_b128 a[{base}:{base+3}], v{areg} offset:{off}")
        return r
    def mfmas(buf, first_=False):
        m = []
        for (xi, wi, acc) in P.mf:
            c = "0" if first_ else f"v[{acc}:{acc+3}]"
            m.append(f"v_mfma_f32_16x16x32_bf16 v[{acc}:{acc+3}], a[{WF[buf]+4*wi}:{WF[buf]+4*wi+3}], a[{XF[buf]+4*xi}:{XF[buf]+4*xi+3}], {c}")
        return m
    block = make_block(a, P.RPM)
    cons_prologue(a, P, first)
    ph0 = first and getattr(P, 'fused', False) and PH0
    if ph0: P.ph0_after_b0(a)
    for x in reads(0, 0): a(x)
    a(f"s_mov_b32 s{S_CNT}, {P.S-1}")
    a("s_waitcnt lgkmcnt(0)")
    def stats4(buf):
        if not getattr(P, 'mfma_stats4', False): return
        sk = a.new("st4")
        a(f"s_and_b32 s{S_T0}, s{S_N1}, 3")
        a(f"s_add_u32 s{S_N1}, s{S_N1}, 1")
        a(f"s_cmp_eq_u32 s{S_T0}, s{S_WAVE}")
        a(f"s_cbranch_scc0 {sk}")
        for x in P.stats_mfmas([f"a[{XF[buf]+4*xi}:{XF[buf]+4*xi+3}]" for xi in range(len(P.xlist))]): a(x)
        a.label(sk)
    st4 = getattr(P, 'mfma_stats4', False)
    block(mfmas(0, True), reads(1, 1), slot_adv(P) + P.addr_update())
    stats4(0)
    if ph0: P.ph0_publish(a)
    lp = a.new("cloop")
    if ALIGN: a.raw(f".p2align {ALIGN}")
    a.label(lp)
    a("s_waitcnt lgkmcnt(0)")
    a("s_barrier")
    block(mfmas(1), reads(0, 0), [f"s_sub_u32 s{S_CNT}, s{S_CNT}, 1"])
    stats4(1)
    a("s_waitcnt lgkmcnt(0)")
    block(mfmas(0), reads(1, 1), slot_adv(P) + P.addr_update() + ([] if st4 else [f"s_cmp_lg_u32 s{S_CNT}, 0"]))
    stats4(0)
    if st4: a(f"s_cmp_lg_u32 s{S_CNT}, 0")
    a(f"s_cbranch_scc1 {lp}")
    a("s_waitcnt lgkmcnt(0)")
    block(mfmas(1), [])
    stats4(1)
    cons_tail(a, P, first)

def make_block(a, RPM):
    def block(m, r, fill=()):
        q = list(r); fl = list(fill)
        for i, x in enumerate(m):
            a(x)
            k = 0
            while q and k < RPM:
                a(q.pop(0)); k += 1
            if not q:
                while fl and k < 2:
                    a(fl.pop(0)); k += 1
        for x in q: a(x)
        for x in fl: a(x)
    return block

def slot_adv(P):
    if getattr(P, 'dual', None):
        NSA, NSB = P.dual
        return [f"s_add_u32 s{S_SLOT}, s{S_SLOT}, 12288",
                f"s_cmp_ge_u32 s{S_SLOT}, {12288*NSA}",
                f"s_cselect_b32 s{S_SLOT}, 0, s{S_SLOT}",
                f"s_add_u32 s{S_SLOTB}, s{S_SLOTB}, 8192",
                f"s_cmp_ge_u32 s{S_SLOTB}, {NSA*12288 + 8192*NSB}",
                f"s_cselect_b32 s{S_SLOTB}, {NSA*12288}, s{S_SLOTB}"]
    return [f"s_add_u32 s{S_SLOT}, s{S_SLOT}, {P.STAGE}",
            f"s_cmp_ge_u32 s{S_SLOT}, {P.STAGE*P.NS}",
            f"s_cselect_b32 s{S_SLOT}, 0, s{S_SLOT}"]

def cons_prologue(a, P, first):
    a(f"s_mov_b32 s{S_SLOT}, 0")
    if getattr(P, 'dual', None): a(f"s_mov_b32 s{S_SLOTB}, {P.dual[0]*12288}")
    for x in P.addr_update(): a(x)
    if first: ptr_wait(a)
    P.build_srds(a, 'c')
    if not first:
        if P.key == 'p3': dry_call(a, 2, "L_epi3_start", "L_epi3_ret")
        if TWOSTEP: P.deps_first(a)
        else: P.deps(a)
        a("s_barrier      ; B_dep")
        if getattr(P, 'early_pre', False): P.early_setup(a)
        if TWOSTEP and not getattr(P, 'gate', None): P.deps(a)
    else:
        nonce_publish(a)
        if getattr(P, 'fused', False) and PH0: P.ph0_produce(a)
        if getattr(P, 'fused', False):
            dry_call(a, 1, "L_epi1_start", "L_epi1_ret")
            dry_call(a, 2, "L_att_start", "L_att_ret")
    stamp(a, 0)
    a("s_barrier          ; B_0")
    stamp(a, 1)

def cons_tail(a, P, first):
    stamp(a, 2)
    if first and not (getattr(P, 'fused', False) and PH0): nonce_issue(a)
    a("s_nop 7")
    P.epilogue(a)
    if getattr(P, 'stream_epi', False) or getattr(P, 'chunk_epi', False):
        P.set_fidx(a)
        return
    a("s_waitcnt lgkmcnt(0)")
    if getattr(P, 'early_pre', False):
        a("s_barrier          ; E2")
        P.store_fast(a)
        P.set_fidx(a)
        return
    P.store_pre(a)
    a("s_barrier          ; E2")
    store_pass(a, P)

def consumer_phase_S(a, P, first):
    P.consumer_setup(a)
    for r in range(P.ACC, P.ACC + P.NACC): a(f"v_mov_b32 v{r}, 0")
    def rng(t):
        k, i = t
        return f"{k}[{i}:{i+3}]"
    def half(t, h):
        k, i = t
        return f"{k}[{i+2*h}:{i+2*h+1}]"
    def reads(buf):
        r = []
        for kk in range(2):
            for wi, (areg, off) in enumerate(P.wlist):
                t = P.fragW(buf, kk, wi)
                r.append(f"ds_read_b64_tr_b16 {half(t,0)}, v{areg} offset:{off + kk*4096}")
                r.append(f"ds_read_b64_tr_b16 {half(t,1)}, v{areg} offset:{off + kk*4096 + 512}")
            for xi, (areg0, areg1, off) in enumerate(P.xlist):
                areg = areg0 if kk == 0 else areg1
                r.append(f"ds_read_b128 {rng(P.fragX(buf, kk, xi))}, v{areg} offset:{off}")
        return r
    def mfmas(buf):
        m = []
        for kk in range(2):
            for (xi, wi, acc) in P.mf:
                m.append(f"v_mfma_f32_16x16x32_bf16 v[{acc}:{acc+3}], {rng(P.fragW(buf, kk, wi))}, {rng(P.fragX(buf, kk, xi))}, v[{acc}:{acc+3}]")
        return m
    def stats(buf):
        if not getattr(P, 'mfma_stats', False) or 'nostats' in EXP: return
        l1 = a.new("st"); l2 = a.new("st")
        a(f"s_cmp_eq_u32 s{S_J}, 1")
        a(f"s_cbranch_scc1 {l1}")
        for x in P.stats_mfmas([rng(P.fragX(buf, 0, xi)) for xi in range(4)]): a(x)
        a(f"s_branch {l2}")
        a.label(l1)
        for x in P.stats_mfmas([rng(P.fragX(buf, 1, xi)) for xi in range(4)]): a(x)
        a.label(l2)
    block = make_block(a, P.RPM)
    cons_prologue(a, P, first)
    for x in reads(0): a(x)
    for x in slot_adv(P) + P.addr_update(): a(x)
    S = P.S
    npair = (S - 1)//2
    def step(cur, fill_extra=()):
        a("s_waitcnt lgkmcnt(0)")
        a("s_barrier")
        block(mfmas(cur), reads(1 - cur), slot_adv(P) + P.addr_update() + list(fill_extra))
        stats(cur)
    a(f"s_mov_b32 s{S_CNT}, {npair}")
    lp = a.new("cloop")
    if ALIGN: a.raw(f".p2align {ALIGN}")
    a.label(lp)
    step(0, [f"s_sub_u32 s{S_CNT}, s{S_CNT}, 1"])
    step(1)
    a(f"s_cmp_lg_u32 s{S_CNT}, 0")
    a(f"s_cbranch_scc1 {lp}")
    last = 0
    if (S - 1) % 2 == 1:
        step(0); last = 1
    a("s_waitcnt lgkmcnt(0)")
    block(mfmas(last), [])
    stats(last)
    cons_tail(a, P, first)

def ptr_wait(a):
    a("s_waitcnt lgkmcnt(0)")
    if PROFDBG: a(f"s_mov_b32 s{S_P0}, s98")
    srd(a, SRD_FLAG, ptr(KA_WS), WS_FLAG, 0x20000)

def cons_lane(a):
    a("v_and_b32 v3, 15, v2")
    a("v_lshrrev_b32 v4, 4, v2")

def x_addr_const(a, dst, rowbase_sgpr, rowbase_const=0):
    a("v_lshrrev_b32 v5, 1, v3")
    a("v_xor_b32 v5, v4, v5")
    a("v_lshlrev_b32 v5, 4, v5")
    a(f"v_lshl_add_u32 v{dst}, v3, 7, v5")
    if rowbase_sgpr is not None:
        a(f"s_lshl_b32 s{S_T0}, s{rowbase_sgpr}, 7")
        a(f"v_add_u32 v{dst}, s{S_T0}, v{dst}")
    if rowbase_const:
        a(f"v_add_u32 v{dst}, {rowbase_const*128}, v{dst}")

def w_addr_const(a, dst):
    a("v_lshrrev_b32 v5, 2, v3        ; r")
    a("v_lshl_add_u32 v6, v4, 3, v5   ; 8g+r")
    a("v_lshlrev_b32 v6, 7, v6")
    a("v_lshrrev_b32 v5, 1, v5        ; r>>1")
    a("v_and_b32 v7, 1, v4")
    a("v_lshl_or_b32 v5, v7, 1, v5    ; h")
    a("v_lshl_add_u32 v6, v5, 5, v6")
    a("v_and_b32 v5, 3, v3")
    a(f"v_lshl_add_u32 v{dst}, v5, 3, v6")

def t_write_addr(a, dst, base_const):
    a("v_lshrrev_b32 v5, 1, v4")
    a("v_and_b32 v6, 7, v3")
    a("v_xor_b32 v5, v5, v6")
    a("v_lshlrev_b32 v5, 4, v5")
    a("v_and_b32 v6, 1, v4")
    a("v_lshl_add_u32 v5, v6, 3, v5")
    a(f"v_lshl_add_u32 v{dst}, v3, 7, v5")
    a(f"v_add_u32 v{dst}, {base_const}, v{dst}")

def pad_init(a, P, row0, nzero_rows, ones_row):
    a("v_mov_b32 v12, 0"); a("v_mov_b32 v13, 0"); a("v_mov_b32 v14, 0"); a("v_mov_b32 v15, 0")
    a(f"v_mov_b32 v10, {hex(ONES)}")
    a("v_lshlrev_b32 v11, 4, v2        ; lane*16")
    for rep in range((P.NS + 3)//4):
        sk = a.new("pad")
        a(f"s_add_u32 s{S_T0}, s{S_W}, {4*rep}")
        a(f"s_cmp_ge_u32 s{S_T0}, {P.NS}")
        a(f"s_cbranch_scc1 {sk}")
        a(f"s_mul_i32 s{S_T0}, s{S_T0}, {P.STAGE}")
        nb = nzero_rows*128; off = 0
        while off < nb:
            lanes = min(64, (nb - off)//16)
            a(f"v_add_u32 v16, s{S_T0}, v11")
            if lanes < 64: set_exec(a, (1 << lanes) - 1)
            a(f"ds_write_b128 v16, v[12:15] offset:{row0*128 + off}")
            if lanes < 64: a("s_mov_b64 exec, -1")
            off += lanes*16
        if ones_row is not None:
            a(f"v_lshlrev_b32 v16, 2, v2")
            a(f"v_add_u32 v16, s{S_T0}, v16")
            set_exec(a, 0xffffffff)
            a(f"ds_write_b32 v16, v10 offset:{ones_row*128}")
            a("s_mov_b64 exec, -1")
        a.label(sk)

def store_pass(a, P, ny=0):
    a("v_lshrrev_b32 v3, 3, v2")
    a("v_and_b32 v4, 7, v2")
    a("v_xor_b32 v5, v4, v3")
    a("v_lshlrev_b32 v5, 4, v5")
    a("v_lshl_add_u32 v5, v3, 7, v5")
    a(f"s_lshl_b32 s{S_T0}, s{S_WAVE}, 10")
    a(f"v_add_u32 v5, s{S_T0}, v5")
    a(f"v_add_u32 v5, {P.TBASE}, v5")
    a(f"s_lshl_b32 s{S_T0}, s{S_WAVE}, 3")
    a(f"s_add_u32 s{S_T0}, s{S_T0}, s{S_R0}")
    a(f"v_add_u32 v6, s{S_T0}, v3")
    a(f"s_mov_b32 s{S_T1}, {P.ldo}")
    a(f"v_mul_lo_u32 v7, v6, s{S_T1}")
    a(f"s_lshl_b32 s{S_T0}, s{S_C0}, 1")
    a(f"v_lshl_add_u32 v7, v4, 4, v7")
    a(f"v_add_u32 v7, s{S_T0}, v7")
    a("v_mov_b32 v8, 0x80000000")
    P.ny = ny
    P.store_body(a)
    P.set_fidx(a)

def store_addr(a, k, dst, P, coloff=0):
    a(f"v_add_u32 v9, {64*k}, v6")
    a(f"v_cmp_gt_u32 vcc, s{S_REND}, v9")
    a(f"v_add_u32 v{dst}, {64*k*P.ldo + coloff}, v7")
    a("s_nop 0")
    a(f"v_cndmask_b32 v{dst}, v8, v{dst}, vcc")

class P1(Phase):
    key = 'p1'; kind = "p1"; NT = 255
    MV = 121; NC = 128; lda = 1280; ldb = 3840; ldo = 3840
    ABYTES = 16384; STAGE = 32768; NS = 4; S = 10
    NXMAX = 4; RPM = 1
    has_stage_work = False; has_e1 = True
    mfma_stats = True
    order2 = True
    GRAM = 96; SUMA = 112; VONES = 24
    modeS = True; NACC = 64
    def fragW(self, buf, kk, wi): return ('a', 64*buf + 16*kk + 4*wi)
    def fragX(self, buf, kk, xi):
        if buf == 0: return ('a', 32 + 16*kk + 4*xi)
        return ('v', 128 + 16*kk + 4*xi)
    scA = ""
    panel_coloff = [0, 128]; panel_srd = [SRD_B0, SRD_B0]
    LDS_ST = 131072; LDS_CS = 131072 + 2048
    TBASE = 2*32768
    rot = (5, 10, 2)
    Ains = [None, None, None, 'mask']
    Bins = [(0, 0), (0, 4), (1, 0), (1, 4)]
    def __init__(self):
        self.vXc, self.vWc = 8, 9
        self.vXa, self.vXb = 10, 11
        self.vW = [12, 13, 14, 15]
        self.xlist = [(self.vXa, self.vXb, 2048*x) for x in range(4)]
        self.wlist = [(self.vW[f], self.ABYTES) for f in range(4)]
        self.ACC = 32
        self.mf = [(x, f, self.ACC + 4*(4*x + f)) for x in range(4) for f in range(4)]
    def rot_start(self, a):
        if P1ROT == "lock":
            a(f"s_mov_b32 s{S_K}, 0"); return
        if P1ROT == "two":
            a(f"s_add_u32 s{S_K}, s{S_RT}, s{S_CT}")
            a(f"s_and_b32 s{S_K}, s{S_K}, 1")
            a(f"s_mul_i32 s{S_K}, s{S_K}, 5"); return
        if P1ROT == "ten":
            a(f"s_mul_i32 s{S_K}, s{S_RT}, 3")
            a(f"s_add_u32 s{S_K}, s{S_K}, s{S_CT}")
            divc(a, S_T0, S_K, 10)
            a(f"s_mul_i32 s{S_T0}, s{S_T0}, 10")
            a(f"s_sub_u32 s{S_K}, s{S_K}, s{S_T0}"); return
        a(f"s_add_u32 s{S_K}, s{S_RT}, s{S_CT}")
        divc(a, S_T0, S_K, 5)
        a(f"s_mul_i32 s{S_T0}, s{S_T0}, 5")
        a(f"s_sub_u32 s{S_K}, s{S_K}, s{S_T0}")
        a(f"s_lshl_b32 s{S_K}, s{S_K}, 1")
    def l2_prep(self, a): l2_setup(a, "rm", 250, 64, KA_WO, D*D*2, 1280, D)
    def mid_prefetch(self, a, s):
        if s == 8: return l2_issue(a, KA_WO, 1280, D)
    def mask_setup(self, a):
        a(f"s_cmp_eq_u32 s{S_W}, 3")
        a(f"s_cselect_b32 s{S_MASK}, 0xff, -1")
        a(f"s_cselect_b32 s{S_MASK+1}, 0, -1")
    def build_srds(self, a, role):
        if role == 'l':
            srd(a, SRD_A, ptr(KA_X), 0, S_TOK*D*2)
            srd(a, SRD_B0, ptr(KA_WQKV), 0, D*NQKV*2)
        srd(a, SRD_OUT, ptr(KA_WS), WS_QKV, S_TOK*NQKV*2)
    def set_fidx(self, a):
        a(f"s_mul_i32 s{S_FIDX}, s{S_RT}, 15")
        a(f"s_add_u32 s{S_FIDX}, s{S_FIDX}, s{S_CT}")
        a(f"s_lshl_b32 s{S_FIDX}, s{S_FIDX}, 7")
    def loader_post_first(self, a):
        pad_init(a, self, 121, 6, 127)
        return 0
    def stats_mfmas(self, xregs):
        m = []
        for x in range(4):
            xa = xregs[x]
            g = self.GRAM + 4*x; sm = self.SUMA + 4*x
            m.append(f"v_mfma_f32_16x16x32_bf16 v[{g}:{g+3}], {xa}, {xa}, v[{g}:{g+3}]")
            m.append(f"v_mfma_f32_16x16x32_bf16 v[{sm}:{sm+3}], v[{self.VONES}:{self.VONES+3}], {xa}, v[{sm}:{sm+3}]")
        return m
    def consumer_setup(self, a):
        cons_lane(a)
        a(f"s_lshr_b32 s{S_I}, s{S_WAVE}, 1")
        a(f"s_and_b32 s{S_J}, s{S_WAVE}, 1")
        a(f"s_lshl_b32 s{S_T1}, s{S_I}, 6")
        x_addr_const(a, self.vXc, S_T1)
        w_addr_const(a, self.vWc)
        a(f"s_lshl_b32 s{S_T0}, s{S_J}, 13")
        a(f"v_add_u32 v{self.vWc}, s{S_T0}, v{self.vWc}")
        for r in range(4): a(f"v_mov_b32 v{self.VONES+r}, {hex(ONES)}")
        for r in range(32): a(f"v_mov_b32 v{self.GRAM+r}, 0")
        a(f"s_lshl_b32 s{S_T0}, s{S_J}, 8       ; j*64*4")
        a(f"v_lshlrev_b32 v16, 4, v4            ; g*16 bytes")
        a(f"v_add_u32 v16, s{S_T0}, v16")
        a(f"v_add_u32 v16, {self.LDS_CS}, v16")
        t_write_addr(a, 17, self.TBASE)
        a(f"s_lshl_b32 s{S_T0}, s{S_WAVE}, 13")
        a(f"v_add_u32 v17, s{S_T0}, v17")
        for f in range(1, 4): a(f"v_xor_b32 v{17+f}, {32*f}, v17")
        a(f"s_lshl_b32 s{S_T0}, s{S_I}, 9       ; i*64*8")
        a(f"s_lshl_b32 s{S_T1}, s{S_J}, 10      ; j*128*8")
        a(f"s_add_u32 s{S_T1}, s{S_T1}, s{S_T0}")
        a(f"v_lshlrev_b32 v7, 3, v3")
        a(f"v_add_u32 v21, s{S_T1}, v7")
        a(f"v_add_u32 v21, {self.LDS_ST}, v21")
        a(f"v_add_u32 v22, s{S_T0}, v7")
        a(f"v_add_u32 v22, {self.LDS_ST}, v22")
        a("v_lshrrev_b32 v5, 3, v2             ; r8")
        a("v_and_b32 v6, 7, v2                 ; c")
        a("v_xor_b32 v7, v6, v5")
        a("v_lshlrev_b32 v7, 4, v7")
        a("v_lshl_add_u32 v23, v5, 7, v7")
        a(f"s_lshl_b32 s{S_T0}, s{S_WAVE}, 13")
        a(f"s_add_u32 s{S_T0}, s{S_T0}, {self.TBASE}")
        a(f"v_add_u32 v23, s{S_T0}, v23")
        a(f"s_lshl_b32 s{S_T0}, s{S_I}, 6")
        a(f"s_add_u32 s{S_T0}, s{S_T0}, s{S_R0}")
        a(f"v_add_u32 v28, s{S_T0}, v5")
        a(f"s_mov_b32 s{S_T1}, 3840")
        a(f"v_mul_lo_u32 v28, v28, s{S_T1}")
        a("v_lshl_add_u32 v28, v6, 4, v28")
        a(f"s_lshl_b32 s{S_T0}, s{S_J}, 6")
        a(f"s_add_u32 s{S_T0}, s{S_T0}, s{S_C0}")
        a(f"s_lshl_b32 s{S_T0}, s{S_T0}, 1")
        a(f"v_add_u32 v28, s{S_T0}, v28")
    def addr_update(self):
        r = [f"v_add_u32 v{self.vXa}, s{S_SLOT}, v{self.vXc}",
             f"v_add_u32 v{self.vW[0]}, s{S_SLOT}, v{self.vWc}",
             f"v_xor_b32 v{self.vXb}, 64, v{self.vXa}"]
        for f in range(1, len(self.vW)):
            r.append(f"v_xor_b32 v{self.vW[f]}, {32*f}, v{self.vW[0]}")
        return r
    stream_epi = True
    def epilogue(self, a):
        nocs = a.new("nocs")
        a(f"s_cmp_eq_u32 s{S_I}, 1")
        a(f"s_cbranch_scc0 {nocs}")
        set_exec(a, 0x8000800080008000)
        for f in range(4):
            acc = self.ACC + 4*(4*3 + f)
            a(f"ds_write_b128 v16, v[{acc}:{acc+3}] offset:{64*f}")
        a("s_mov_b64 exec, -1")
        a.label(nocs)
        for i_, m_ in enumerate((0x22222222, 0x44444444, 0x88888888)):
            a(f"s_mov_b32 s{80+2*i_}, {hex(m_)}"); a(f"s_mov_b32 s{81+2*i_}, {hex(m_)}")
        for x in range(4):
            g = self.GRAM + 4*x
            a(f"v_cndmask_b32 v{g+1}, v{g}, v{g+1}, s[80:81]")
            a(f"v_cndmask_b32 v{g+1}, v{g+1}, v{g+2}, s[82:83]")
            a(f"v_cndmask_b32 v{g+1}, v{g+1}, v{g+3}, s[84:85]")
            a(f"v_mov_b32 v{g}, v{self.SUMA+4*x}           ; sum")
        set_exec(a, 0xF | (0xF << 20) | (0xF << 40) | (0xF << 60))
        for x in range(4):
            g = self.GRAM + 4*x
            a(f"ds_write_b64 v21, v[{g}:{g+1}] offset:{128*x}")
        a("s_mov_b64 exec, -1")
        a("s_waitcnt lgkmcnt(0)")
        a("s_barrier      ; E1")
        CS = 128; ST = 144
        for x in range(4):
            a(f"ds_read_b64 v[{ST+2*x}:{ST+2*x+1}], v22 offset:{128*x}")
            a(f"ds_read_b64 v[{96+2*x}:{97+2*x}], v22 offset:{1024 + 128*x}")
        for f in range(4):
            a(f"ds_read_b128 v[{CS+4*f}:{CS+4*f+3}], v16 offset:{64*f}")
        a("s_waitcnt lgkmcnt(4)")
        for x in range(4):
            st = ST + 2*x
            a(f"v_pk_add_f32 v[{st}:{st+1}], v[{st}:{st+1}], v[{96+2*x}:{97+2*x}]")
            a(f"v_mul_f32 v{st}, {hex(f2u(1.0/D))}, v{st}          ; mean")
            a(f"v_mul_f32 v{st+1}, {hex(f2u(1.0/D))}, v{st+1}")
            a(f"v_fma_f32 v{st+1}, -v{st}, v{st}, v{st+1}      ; var")
            a(f"v_add_f32 v{st+1}, {hex(f2u(1e-5))}, v{st+1}")
            a(f"v_rsq_f32 v{st+1}, v{st+1}")
        a("s_waitcnt lgkmcnt(0)")
        RB = [96, 104]
        def stores(x):
            rb = RB[x & 1]
            for u in range(2):
                a(f"v_add_u32 v{29+u}, {(16*x + 8*u)*3840}, v28")
            for u in range(2):
                if x == 3 and u == 1:
                    a(f"s_cmp_eq_u32 s{S_I}, 1")
                    a("s_cselect_b32 exec_lo, 0xff, -1")
                    a("s_cselect_b32 exec_hi, 0, -1")
                a(f"buffer_store_dwordx4 v[{rb+4*u}:{rb+4*u+3}], v{29+u}, s[{SRD_OUT}:{SRD_OUT+3}], 0 offen{SC1}")
            if x == 3: a("s_mov_b64 exec, -1")
        for x in range(4):
            st = ST + 2*x
            for f in range(4):
                acc = self.ACC + 4*(4*x + f)
                for hh in (0, 2):
                    a(f"v_pk_fma_f32 v[{acc+hh}:{acc+hh+1}], v[{CS+4*f+hh}:{CS+4*f+hh+1}], v[{st}:{st+1}], v[{acc+hh}:{acc+hh+1}] op_sel_hi:[1,0,1] neg_lo:[0,1,0] neg_hi:[0,1,0]")
                for hh in (0, 2):
                    a(f"v_pk_mul_f32 v[{acc+hh}:{acc+hh+1}], v[{acc+hh}:{acc+hh+1}], v[{st}:{st+1}] op_sel:[0,1] op_sel_hi:[1,1]")
                a(f"v_cvt_pk_bf16_f32 v{acc}, v{acc}, v{acc+1}")
                a(f"v_cvt_pk_bf16_f32 v{acc+1}, v{acc+2}, v{acc+3}")
                a(f"ds_write_b64 v{17+f}, v[{acc}:{acc+1}] offset:{2048*x}")
            rb = RB[x & 1]
            if x >= 1:
                a("s_waitcnt lgkmcnt(4)")
                stores(x - 1)
            for u in range(2):
                a(f"ds_read_b128 v[{rb+4*u}:{rb+4*u+3}], v23 offset:{2048*x + 1024*u}")
        a("s_waitcnt lgkmcnt(0)")
        stores(3)


class P1F(Phase):
    key = 'p1'; kind = "p1f"; NT = 256
    MV = 64; NC = 80; lda = 1280; ldb = 3840
    ABYTES = 10240; STAGE = 40960; NS = 3; S = 10
    NXMAX = 5
    @property
    def RPM(self): return RPM1
    has_e1 = True; fused = True; custom_B = True
    scA = ""
    Ains = [None, None, 'skip']
    Bins = [dict(lds=10240 + 4096*t) for t in range(7)] + [dict(lds=10240 + 4096*7, skip=2)]
    panel_srd = [SRD_B0]
    LDS_STP = 122880
    QT = 40960; QROW = 488
    OT = 81920; OROW = 176
    ACC = 32; GRAM = 112; SUMA = 132; VONES = 152
    @property
    def mfma_stats4(self): return not PH0
    @property
    def steady_end(self): return 6 if PH0 else None
    def __init__(self):
        self.vXc = 8; self.vXa, self.vXb = 9, 10
        self.vWc = [11, 12, 13, 14]; self.vW = [15, 16, 17, 18]
        self.xlist = [(self.vXa, self.vXb, 2048*x) for x in range(5)]
        self.wlist = None
        self.mf = [(x, j, self.ACC + 4*(4*x + j)) for x in range(5) for j in range(4)]
    def rot_start(self, a):
        if P1FROT == 'lock':
            a(f"s_mov_b32 s{S_K}, 0"); return
        if P1FROT == 'rot4':
            a(f"s_and_b32 s{S_K}, s{S_RT}, 3")
            a(f"s_and_b32 s{S_T0}, s{S_CT}, 1")
            a(f"s_lshl_b32 s{S_T0}, s{S_T0}, 2")
            a(f"s_add_u32 s{S_K}, s{S_K}, s{S_T0}"); return
        if P1FROT == 'rot8':
            a(f"s_and_b32 s{S_K}, s{S_RT}, 7")
            a(f"s_mul_i32 s{S_K}, s{S_K}, 5")
            a(f"s_lshr_b32 s{S_K}, s{S_K}, 2")
            return
        a(f"s_add_u32 s{S_K}, s{S_RT}, s{S_CT}")
        divc(a, S_T0, S_K, 5)
        a(f"s_mul_i32 s{S_T0}, s{S_T0}, 5")
        a(f"s_sub_u32 s{S_K}, s{S_K}, s{S_T0}")
        a(f"s_lshl_b32 s{S_K}, s{S_K}, 1")
    @property
    def order2(self): return P1FROT == 'latin2'
    def pre_issue(self, a):
        if not APF: return 0
        a(f"s_and_b32 s{S_T0}, s{S_CT}, 3")
        a(f"s_mul_i32 s{S_T0}, s{S_T0}, 20")
        a(f"s_add_u32 s{S_T0}, s{S_T0}, s{S_R0}")
        a(f"s_mul_i32 s{S_T0}, s{S_T0}, 1280")
        a(f"s_lshl_b32 s{S_T1}, s{S_W}, 10")
        a(f"s_add_u32 s{S_T0}, s{S_T0}, s{S_T1}")
        a("v_lshlrev_b32 v60, 4, v2")
        a(f"v_add_u32 v60, s{S_T0}, v60")
        n = 7
        for i in range(n):
            a(f"buffer_load_dwordx4 v[152:155], v60, s[{SRD_A}:{SRD_A+3}], 0 offen")
            if i + 1 < n: a("v_add_u32 v60, 4096, v60")
        return n
    def tile_consts(self, a):
        a(f"s_lshl_b32 s{S_R0}, s{S_RT}, 6")
        a(f"s_sub_u32 s{S_R0}, s{S_R0}, 14")
        a(f"s_mul_i32 s{S_C0}, s{S_CT}, 160")
    def mask_setup(self, a):
        a(f"s_cmp_eq_u32 s{S_W}, 0")
        a(f"s_cselect_b32 s{S_MASK+1}, -1, 0xffff")
        a(f"s_cmp_lt_u32 s{S_W}, 2")
        a(f"s_cselect_b32 s{S_MASK}, -1, 0")
        a(f"s_cselect_b32 s{S_MASK+1}, s{S_MASK+1}, 0")
    def custom_B_setup(self, a, vb):
        a(f"s_lshl_b32 s{S_T0}, s{S_W}, 6")
        a(f"v_add_u32 v8, s{S_T0}, v2            ; c0")
        vdiv(a, 9, 8, 10, 256)
        a("v_mul_u32_u24 v10, 10, v9")
        a("v_sub_u32 v10, v8, v10                ; ch")
        a("v_mul_u32_u24 v11, 3840, v9")
        a("v_lshl_add_u32 v11, v10, 4, v11")
        a(f"v_add_u32 v{vb}, s{S_C0}, v11         ; voff t=0")
        for t in range(1, 8):
            a("v_add_u32 v10, 6, v10")
            a("v_add_u32 v9, 25, v9")
            a("v_cmp_le_u32 vcc, 10, v10")
            a(f"v_add_u32 v{vb+t}, {25*3840 + 96}, v{vb+t-1}")
            a("v_subrev_u32 v12, 10, v10")
            a("v_cndmask_b32 v10, v10, v12, vcc")
            a("v_addc_co_u32 v9, vcc, 0, v9, vcc") if False else None
            a(f"v_add_u32 v12, {3840 - 160}, v{vb+t}")
            a(f"v_cndmask_b32 v{vb+t}, v{vb+t}, v12, vcc")
            a("v_add_u32 v12, 1, v9")
            a("v_cndmask_b32 v9, v9, v12, vcc")
            a("v_cmp_le_u32 vcc, 64, v9")
            a(f"v_add_u32 v12, {(1280 - 64*3840) & 0xffffffff}, v{vb+t}")
            a("v_subrev_u32 v13, 64, v9")
            a(f"v_cndmask_b32 v{vb+t}, v{vb+t}, v12, vcc")
            a("v_cndmask_b32 v9, v9, v13, vcc")
    def build_srds(self, a, role):
        if role == 'l':
            srd(a, SRD_A, ptr(KA_X), 0, S_TOK*D*2)
            srd(a, SRD_B0, ptr(KA_WQKV), 0, D*NQKV*2)
        srd(a, SRD_OUT, ptr(KA_WS), WS_O, 0x280000)
    def set_fidx(self, a):
        a(f"s_lshl_b32 s{S_FIDX}, s{S_RT}, 3")
        a(f"s_add_u32 s{S_FIDX}, s{S_FIDX}, s{S_CT}")
        a(f"s_lshl_b32 s{S_FIDX}, s{S_FIDX}, 7")
        a(f"s_add_u32 s{S_FIDX}, s{S_FIDX}, 0x8000")
    def l2_prep(self, a): l2_setup(a, "rm", 250, 64, KA_WO, D*D*2, 1280, D)
    @property
    def unroll(self): return SPF != 0
    def spf_setup(self, a):
        a(f"s_lshl_b32 s{S_T0}, s2, 2")
        a(f"s_add_u32 s{S_T0}, s{S_T0}, s{S_W}        ; q")
        a(f"s_mul_i32 s{S_T1}, s{S_T0}, 2560")
        a(f"s_add_u32 s98, s{ptr(KA_X)}, s{S_T1}")
        a(f"s_addc_u32 s99, s{ptr(KA_X)+1}, 0")
        sdiv(a, S_T1, S_T0, 205, 1100)
        a(f"s_mul_i32 s{S_T2}, s{S_T1}, 205")
        a(f"s_sub_u32 s{S_T2}, s{S_T0}, s{S_T2}")
        a(f"s_min_u32 s{S_T2}, s{S_T2}, 201")
        a(f"s_mul_i32 s{S_T2}, s{S_T2}, 1216")
        a(f"s_lshl_b32 s{S_T1}, s{S_T1}, 1")
        a(f"s_add_u32 s{S_T1}, s{S_T1}, 1")
        a(f"s_mul_i32 s{S_T1}, s{S_T1}, 245760")
        a(f"s_add_u32 s{S_T1}, s{S_T1}, s{S_T2}")
        a(f"s_add_u32 s100, s{ptr(KA_WQKV)}, s{S_T1}")
        a(f"s_addc_u32 s101, s{ptr(KA_WQKV)+1}, 0")
    def spf_list(self):
        L_ = []
        for i in range(19): L_.append(("s[100:101]", 64*i))
        for k in (1, 3, 5, 7, 9):
            for r in range(2):
                for h in range(2): L_.append(("s[98:99]", r*1280 + k*128 + h*64))
        return L_
    def mid_prefetch(self, a, s):
        if SPF:
            if s == 0: self.spf_setup(a)
            L_ = self.spf_list()
            per = SPF
            if s >= 1 and s <= 4:
                for base, off in L_[per*(s-1): per*s]:
                    a(f"s_load_dword s3, {base}, {off}")
            if SPF2 and s >= 5:
                if s == 5:
                    a(f"s_lshl_b32 s{S_T0}, s2, 2")
                    a(f"s_add_u32 s{S_T0}, s{S_T0}, s{S_W}")
                    a(f"s_mul_i32 s{S_T1}, s{S_T0}, 800")
                    a(f"s_add_u32 s98, s{ptr(KA_WO)}, s{S_T1}")
                    a(f"s_addc_u32 s99, s{ptr(KA_WO)+1}, 0")
                    a(f"s_mul_i32 s{S_T1}, s{S_T0}, 2160")
                    a(f"s_add_u32 s100, s{ptr(SPF2)}, s{S_T1}")
                    a(f"s_addc_u32 s101, s{ptr(SPF2)+1}, 0")
                L2 = [("s[98:99]", 64*i) for i in range(13)] + [("s[100:101]", 64*i) for i in range(34)]
                for base, off in L2[10*(s-5): 10*(s-4)]:
                    a(f"s_load_dword s3, {base}, {off}")
        if PH0 and s == 7: return self.ph0_issue(a)
        if s == 9: return l2_issue(a, KA_WO, 1280, D)
    def loader_post_first(self, a):
        pad_init(a, self, 78, 1, 79)
        self.att_setup(a)
        return 0
    def att_setup(self, a):
        QT, QROW = self.QT, self.QROW
        a("v_and_b32 v3, 3, v2             ; i")
        a("v_bfe_u32 v4, v2, 2, 2          ; head")
        a("v_lshrrev_b32 v5, 4, v2         ; grp")
        a("v_lshrrev_b32 v6, 1, v5")
        a("v_lshlrev_b32 v6, 3, v6")
        a("v_and_b32 v7, 1, v5")
        a("v_add_u32 v6, v6, v7")
        a(f"s_lshl_b32 s{S_T0}, s{S_W}, 4")
        a(f"v_add_u32 v6, s{S_T0}, v6")
        a("v_lshlrev_b32 v7, 1, v3")
        a("v_add_u32 v7, v6, v7            ; rb + 2i")
        a(f"v_mul_u32_u24 v8, {QROW}, v7")
        a("v_mul_u32_u24 v9, 40, v4")
        a("v_add_u32 v8, v8, v9")
        a(f"v_add_u32 v144, {QT + 14*QROW}, v8")
        a(f"v_add_u32 v145, {QT + 160}, v8")
        a("v_cmp_eq_u32 vcc, 3, v3")
        a(f"v_mov_b32 v10, {16*QROW}")
        a(f"v_mov_b32 v11, {14*QROW}")
        a("v_cndmask_b32 v10, v10, v11, vcc")
        a("v_add_u32 v146, v145, v10")
        a(f"v_mul_u32_u24 v12, {self.OROW}, v7")
        a("v_add_u32 v12, v12, v9")
        a(f"v_add_u32 v118, {self.OT}, v12")
        a("v_lshlrev_b32 v12, 1, v4               ; 2r")
        a("v_add_u32 v12, v6, v12")
        a(f"v_mul_u32_u24 v12, {QROW}, v12")
        a("v_mul_u32_u24 v13, 40, v3")
        a("v_add_u32 v12, v12, v13")
        a(f"v_add_u32 v147, {QT + 320}, v12")
        a("v_cmp_eq_u32 vcc, 3, v4")
        a(f"v_mov_b32 v10, {16*QROW}")
        a("s_nop 0")
        a("v_cndmask_b32 v10, v10, v11, vcc")
        a("v_add_u32 v119, v147, v10")
        a(f"v_mov_b32 v12, {hex(f2u(-1e30))}")
        a("v_mov_b32 v13, 0")
        a(f"v_add_u32 v14, s{S_R0}, v6")
        for m in range(12):
            a(f"v_sub_u32 v15, {m}, v3")
            a("v_cmp_gt_u32 vcc, 8, v15")
            a(f"v_add_u32 v16, {2*m}, v14")
            a("v_cmp_le_i32 s[4:5], 0, v16")
            a("s_nop 1")
            a("s_and_b64 vcc, vcc, s[4:5]")
            a(f"v_cndmask_b32 v{120+m}, v12, v13, vcc")
        self.store_addr_setup(a)
    def ph0_produce(self, a):
        srd(a, SRD_AUX, ptr(KA_X), 0, S_TOK*D*2)
        srd(a, SRD_ST, ptr(KA_WS), WS_ST1, S_TOK*16)
        a(f"s_lshl_b32 s{S_T0}, s{S_RT}, 6")
        a(f"s_lshl_b32 s{S_T1}, s{S_CT}, 3")
        a(f"s_add_u32 s{S_T0}, s{S_T0}, s{S_T1}")
        a(f"s_lshl_b32 s{S_T1}, s{S_WAVE}, 1")
        a(f"s_add_u32 s{S_T0}, s{S_T0}, s{S_T1}")
        a("v_lshrrev_b32 v5, 5, v2")
        a(f"v_add_u32 v5, s{S_T0}, v5            ; row")
        a("v_and_b32 v6, 31, v2                  ; j")
        a("v_mul_u32_u24 v7, 1280, v5")
        a("v_lshl_add_u32 v7, v6, 4, v7")
        a("v_mov_b32 v30, 0x80000000")
        a("v_cmp_gt_u32 vcc, 16, v6")
        a("v_add_u32 v31, 1024, v7")
        a(f"buffer_load_dwordx4 v[32:35], v7, s[{SRD_AUX}:{SRD_AUX+3}], 0 offen")
        a("v_cndmask_b32 v31, v30, v31, vcc")
        a(f"buffer_load_dwordx4 v[36:39], v7, s[{SRD_AUX}:{SRD_AUX+3}], 0 offen offset:512")
        a(f"buffer_load_dwordx4 v[40:43], v31, s[{SRD_AUX}:{SRD_AUX+3}], 0 offen")
        a("s_waitcnt vmcnt(0)")
        a(f"v_mov_b32 v48, {hex(ONES)}")
        for r in (49, 50, 51, 52): a(f"v_mov_b32 v{r}, 0")
        for d in range(12):
            s_, q_ = (49, 50) if d & 1 == 0 else (51, 52)
            a(f"v_dot2_f32_bf16 v{s_}, v{32+d}, v48, v{s_}")
            a(f"v_dot2_f32_bf16 v{q_}, v{32+d}, v{32+d}, v{q_}")
        a("s_nop 2")
        a("v_add_f32 v44, v49, v51")
        a("v_add_f32 v45, v50, v52")
        a("s_nop 1")
        for dpp in ("quad_perm:[1,0,3,2]", "quad_perm:[2,3,0,1]", "row_half_mirror", "row_mirror"):
            a(f"v_add_f32_dpp v44, v44, v44 {dpp} row_mask:0xf bank_mask:0xf")
            a(f"v_add_f32_dpp v45, v45, v45 {dpp} row_mask:0xf bank_mask:0xf")
            a("s_nop 0")
        a("v_mov_b32 v49, v44"); a("v_mov_b32 v50, v45")
        a("s_nop 1")
        a("v_permlane16_swap_b32 v44, v49"); a("v_permlane16_swap_b32 v45, v50")
        a("s_nop 1")
        a("v_add_f32 v44, v44, v49"); a("v_add_f32 v45, v45, v50")
        a(f"v_mul_f32 v44, {hex(f2u(1.0/D))}, v44")
        a(f"v_mul_f32 v45, {hex(f2u(1.0/D))}, v45")
        a("v_fma_f32 v45, -v44, v44, v45")
        a(f"v_add_f32 v45, {hex(f2u(1e-5))}, v45")
        a("v_rsq_f32 v45, v45")
        a("v_mov_b32 v112, v44")
        a("v_mov_b32 v113, v45")
        a("v_lshlrev_b32 v116, 4, v5              ; row*16")
        a("v_mov_b32 v117, 0")
        dbg_srd(a)
    def ph0_after_b0(self, a):
        a(f"buffer_load_dwordx2 v[114:115], v117, s[80:83], 0 offen{SC1}")
    def ph0_publish(self, a):
        loop = a.new("p0n"); done = a.new("p0d"); chk = a.new("p0h")
        a(f"s_mov_b32 s{S_T0}, 0x40000")
        a(f"s_branch {chk}")
        a.label(loop)
        a("s_sleep 4")
        a(f"buffer_load_dwordx2 v[114:115], v117, s[80:83], 0 offen{SC1}")
        a.label(chk)
        a("s_waitcnt vmcnt(0)")
        a(f"v_readfirstlane_b32 s{S_NONCE}, v114")
        a(f"v_readfirstlane_b32 s{S_NONCE+1}, v115")
        a("s_nop 3")
        a(f"s_cmp_lg_u32 s{S_NONCE}, 0")
        a(f"s_cbranch_scc1 {done}")
        a(f"s_sub_u32 s{S_T0}, s{S_T0}, 1")
        a(f"s_cmp_lg_u32 s{S_T0}, 0")
        a(f"s_cbranch_scc1 {loop}")
        a.label(done)
        set_exec(a, 1 | (1 << 32))
        a(f"buffer_store_dwordx4 v[112:115], v116, s[{SRD_ST}:{SRD_ST+3}], 0 offen{SC1}")
        a("s_mov_b64 exec, -1")
    def ph0_issue(self, a):
        srd(a, SRD_ST, ptr(KA_WS), WS_ST1, S_TOK*16)
        a(f"s_mov_b32 s{SRD_AUX}, s{ptr(KA_DBG)}")
        a(f"s_and_b32 s{SRD_AUX+1}, s{ptr(KA_DBG)+1}, 0xffff")
        a(f"s_mov_b32 s{SRD_AUX+2}, 0x100")
        a(f"s_mov_b32 s{SRD_AUX+3}, 0x20000")
        a(f"s_lshl_b32 s{S_T0}, s{S_W}, 6")
        a(f"v_add_u32 v62, s{S_T0}, v2")
        a(f"v_add_u32 v63, s{S_R0}, v62")
        a("v_cmp_gt_u32 vcc, 78, v62")
        a("v_cmp_le_i32 s[4:5], 0, v63")
        a("v_lshlrev_b32 v63, 4, v63")
        a("v_mov_b32 v64, 0x80000000")
        a("s_and_b64 s[98:99], vcc, s[4:5]")
        a("v_mov_b32 v65, 0")
        a("v_cndmask_b32 v63, v64, v63, s[98:99]")
        a(f"buffer_load_dwordx2 v[60:61], v65, s[{SRD_AUX}:{SRD_AUX+3}], 0 offen{SC1}")
        a(f"buffer_load_dwordx4 v[56:59], v63, s[{SRD_ST}:{SRD_ST+3}], 0 offen{SC1}")
        return 2
    def ph0_check(self, a):
        loop = a.new("p0c"); ok = a.new("p0k")
        a(f"s_mov_b32 s{S_T2}, 0x10000")
        a.label(loop)
        a("v_cmp_ne_u64 vcc, v[58:59], v[60:61]")
        a("s_nop 1")
        a("s_and_b64 vcc, vcc, s[98:99]")
        a(f"s_cbranch_vccz {ok}")
        a(f"buffer_load_dwordx2 v[60:61], v65, s[{SRD_AUX}:{SRD_AUX+3}], 0 offen{SC1}")
        a(f"buffer_load_dwordx4 v[56:59], v63, s[{SRD_ST}:{SRD_ST+3}], 0 offen{SC1}")
        a("s_waitcnt vmcnt(0)")
        a(f"s_sub_u32 s{S_T2}, s{S_T2}, 1")
        a(f"s_cmp_lg_u32 s{S_T2}, 0")
        a(f"s_cbranch_scc1 {loop}")
        a.label(ok)
        a("v_lshlrev_b32 v62, 3, v62")
        a(f"v_add_u32 v62, {self.LDS_STP}, v62")
        a(f"s_cmp_lt_u32 s{S_W}, 2")
        a("s_cselect_b32 exec_lo, -1, 0")
        a(f"s_cmp_eq_u32 s{S_W}, 0")
        a("s_cselect_b32 exec_hi, -1, 0")
        a(f"s_cmp_eq_u32 s{S_W}, 1")
        a("s_cselect_b32 exec_lo, 0xffff, exec_lo")
        sk = a.new("p0w")
        a(f"s_cbranch_execz {sk}")
        a("ds_write_b64 v62, v[56:57]")
        a.label(sk)
        a("s_mov_b64 exec, -1")
        a("s_waitcnt lgkmcnt(0)")
    def post_wait(self, a, s):
        if PH0 and s == 9: self.ph0_check(a)
    def store_addr_setup(self, a, regs=(148, 149, 156, 157), tmp=3):
        lm, lt, gm, gt = regs
        t0, t1, t2 = tmp, tmp + 1, tmp + 2
        a(f"v_lshrrev_b32 v{t0}, 3, v2             ; r8")
        a(f"v_and_b32 v{t1}, 7, v2                 ; p")
        a(f"s_lshl_b32 s{S_T0}, s{S_WAVE}, 3")
        a(f"v_add_u32 v{t2}, s{S_T0}, v{t0}")
        a(f"v_mul_u32_u24 v{lm}, {self.OROW}, v{t2}")
        a(f"v_lshl_add_u32 v{lm}, v{t1}, 4, v{lm}")
        a(f"v_add_u32 v{lm}, {self.OT}, v{lm}")
        a(f"s_add_u32 s{S_T0}, s{S_R0}, 14          ; T0")
        a(f"v_add_u32 v{gm}, s{S_T0}, v{t2}")
        a(f"v_lshlrev_b32 v{gm}, 10, v{gm}")
        a(f"v_lshl_add_u32 v{gm}, v{t1}, 4, v{gm}")
        a(f"s_lshl_b32 s{S_T1}, s{S_CT}, 7          ; hg*128")
        a(f"v_add_u32 v{gm}, s{S_T1}, v{gm}")
        a(f"v_lshrrev_b32 v{t0}, 1, v{t1}")
        a(f"v_lshl_add_u32 v{t0}, v{t2}, 2, v{t0}   ; token")
        a(f"v_mul_u32_u24 v{lt}, {self.OROW}, v{t0}")
        a(f"v_and_b32 v{t0}, 1, v{t1}")
        a(f"v_lshl_add_u32 v{lt}, v{t0}, 4, v{lt}")
        a(f"v_add_u32 v{lt}, {self.OT + 128}, v{lt}")
        a(f"s_lshr_b32 s{S_T0}, s{S_T0}, 2          ; T0/4")
        a(f"v_add_u32 v{gt}, s{S_T0}, v{t2}")
        a(f"v_lshlrev_b32 v{gt}, 10, v{gt}")
        a(f"v_lshl_add_u32 v{gt}, v{t1}, 4, v{gt}")
        a(f"s_add_u32 s{S_T1}, s{S_T1}, 0x200000")
        a(f"v_add_u32 v{gt}, s{S_T1}, v{gt}")
    def o_stores(self, a):
        a(f"ds_read_b128 v[20:23], v148")
        sk = a.new("ost")
        a(f"s_cmp_ge_u32 s{S_WAVE}, 2")
        a(f"s_cbranch_scc1 {sk}")
        a(f"ds_read_b128 v[24:27], v149")
        a("s_waitcnt lgkmcnt(0)")
        a(f"buffer_store_dwordx4 v[24:27], v157, s[{SRD_OUT}:{SRD_OUT+3}], 0 offen{OSC}")
        a.label(sk)
        a("s_waitcnt lgkmcnt(0)")
        a(f"buffer_store_dwordx4 v[20:23], v156, s[{SRD_OUT}:{SRD_OUT+3}], 0 offen{OSC}")
    def loader_fused_tail(self, a):
        l2_setup(a, "p3", 243, 64, KA_WG, D*F*2, 3456, D)
        if not PH0: a("s_barrier      ; E1")
        l2_issue(a, KA_WG, 3456, D)
        a("s_barrier")
        a.label("L_att_start")
        if 'attprof' in EXP: stamp(a, 1)
        Q = 16; KR = 32; VR = 62; SC = 92; BIAS = 120; PB = 104
        QROW = self.QROW
        for dg in range(5):
            a(f"ds_read_b64 v[{Q+2*dg}:{Q+2*dg+1}], v144 offset:{8*dg}")
        for kb in range(3):
            for dg in range(5):
                r = KR + 2*(5*kb + dg)
                if kb < 2: a(f"ds_read_b64 v[{r}:{r+1}], v145 offset:{8*QROW*kb + 8*dg}")
                else: a(f"ds_read_b64 v[{r}:{r+1}], v146 offset:{8*dg}")
        scale = (D // 32) ** -0.5
        c1 = scale * 1.4426950408889634
        a(f"s_mov_b32 s{S_T2}, {hex(f2u(c1))}")
        a("s_waitcnt lgkmcnt(0)")
        for kb in range(3):
            for dg in range(5):
                r = VR + 2*(5*kb + dg)
                if kb < 2: a(f"ds_read_b64_tr_b16 v[{r}:{r+1}], v147 offset:{8*QROW*kb + 8*dg}")
                else: a(f"ds_read_b64_tr_b16 v[{r}:{r+1}], v119 offset:{8*dg}")
        for dg in range(5):
            for kb in range(3):
                r = KR + 2*(5*kb + dg); sc = SC + 4*kb
                c = "0" if dg == 0 else f"v[{sc}:{sc+3}]"
                a(f"v_mfma_f32_4x4x4_16b_bf16 v[{sc}:{sc+3}], v[{r}:{r+1}], v[{Q+2*dg}:{Q+2*dg+1}], {c}")
        a("s_nop 4")
        for m in range(12):
            a(f"v_fma_f32 v{SC+m}, v{SC+m}, s{S_T2}, v{BIAS+m}")
        a(f"v_max3_f32 v14, v{SC}, v{SC+1}, v{SC+2}")
        a(f"v_max3_f32 v15, v{SC+3}, v{SC+4}, v{SC+5}")
        a(f"v_max3_f32 v14, v14, v{SC+6}, v{SC+7}")
        a(f"v_max3_f32 v15, v15, v{SC+8}, v{SC+9}")
        a(f"v_max3_f32 v14, v14, v{SC+10}, v{SC+11}")
        a("v_max_f32 v14, v14, v15")
        for m in range(12):
            a(f"v_sub_f32 v{SC+m}, v{SC+m}, v14")
        for m in range(12):
            a(f"v_exp_f32 v{SC+m}, v{SC+m}")
        a(f"v_add_f32 v14, v{SC}, v{SC+1}")
        a(f"v_add_f32 v15, v{SC+2}, v{SC+3}")
        for m in range(4, 12, 2):
            a(f"v_add_f32 v14, v14, v{SC+m}")
            a(f"v_add_f32 v15, v15, v{SC+m+1}")
        a("v_add_f32 v14, v14, v15")
        a("v_rcp_f32 v14, v14")
        a("s_nop 0")
        for m in range(12):
            a(f"v_mul_f32 v{SC+m}, v{SC+m}, v14")
        for m in range(0, 12, 2):
            a(f"v_cvt_pk_bf16_f32 v{PB+m//2}, v{SC+m}, v{SC+m+1}")
        a("s_waitcnt lgkmcnt(0)")
        a("s_nop 0")
        OA = 32
        for kb in range(3):
            for dg in range(5):
                r = VR + 2*(5*kb + dg); o = OA + 4*dg
                c = "0" if kb == 0 else f"v[{o}:{o+3}]"
                a(f"v_mfma_f32_4x4x4_16b_bf16 v[{o}:{o+3}], v[{r}:{r+1}], v[{PB+2*kb}:{PB+2*kb+1}], {c}")
        a("s_nop 5")
        for dg in range(5):
            o = OA + 4*dg
            a(f"v_cvt_pk_bf16_f32 v{Q+2*dg}, v{o}, v{o+1}")
            a(f"v_cvt_pk_bf16_f32 v{Q+2*dg+1}, v{o+2}, v{o+3}")
            a(f"ds_write_b64 v118, v[{Q+2*dg}:{Q+2*dg+1}] offset:{8*dg}")
        a("s_waitcnt lgkmcnt(0)")
        if 'attprof' in EXP: stamp(a, 2)
        dry_exit(a, "L_att_ret")
        a("s_barrier")
        self.o_stores(a)
        self.set_fidx(a)
    def consumer_setup(self, a):
        cons_lane(a)
        x_addr_const(a, self.vXc, None)
        a("v_lshrrev_b32 v5, 2, v3        ; r")
        a("v_lshl_add_u32 v5, v4, 3, v5   ; 8g + r")
        a("v_mul_u32_u24 v5, 160, v5")
        a("v_and_b32 v6, 3, v3")
        a("v_lshl_add_u32 v5, v6, 3, v5")
        for j in range(4):
            a(f"s_lshl_b32 s{S_T0}, s{S_WAVE}, 2")
            a(f"s_add_u32 s{S_T0}, s{S_T0}, {j}")
            a(f"s_min_u32 s{S_T0}, s{S_T0}, 14")
            divc(a, S_T1, S_T0, 5)
            a(f"s_mul_i32 s{S_T2}, s{S_T1}, 5")
            a(f"s_sub_u32 s{S_T2}, s{S_T0}, s{S_T2}       ; f%5")
            a(f"s_lshl_b32 s{S_T2}, s{S_T2}, 5")
            a(f"s_mul_i32 s{S_T3}, s{S_T1}, 10240")
            a(f"s_add_u32 s{S_T3}, s{S_T3}, s{S_T2}")
            a(f"s_add_u32 s{S_T3}, s{S_T3}, {self.ABYTES}")
            a(f"v_add_u32 v{self.vWc[j]}, s{S_T3}, v5")
            a(f"s_mul_i32 s{S_T3}, s{S_T1}, 160")
            a(f"s_add_u32 s{S_T3}, s{S_T3}, s{S_T2}")
            a(f"s_add_u32 s{S_T3}, s{S_T3}, {self.QT}")
            a(f"v_mul_u32_u24 v6, {self.QROW}, v3")
            a("v_lshl_add_u32 v6, v4, 3, v6")
            a(f"v_add_u32 v{20+j}, s{S_T3}, v6")
        if not PH0:
            for r in range(4): a(f"v_mov_b32 v{self.VONES+r}, {hex(ONES)}")
            for r in range(40): a(f"v_mov_b32 v{self.GRAM+r}, 0")
        a("v_lshlrev_b32 v25, 3, v3")
        a(f"v_add_u32 v25, {self.LDS_STP}, v25")
        a(f"s_mul_i32 s{S_T0}, s{S_WAVE}, 640")
        a(f"v_add_u32 v24, s{S_T0}, v25")
        a(f"s_mov_b32 s{S_N1}, 0")
        self.store_addr_setup_c(a)
        NW = 4
        self.wlist = [(self.vW[j], 0) for j in range(4)]
        self.wstep = (5120, 640)
    def store_addr_setup_c(self, a):
        self.store_addr_setup(a, regs=(26, 27, 28, 29), tmp=5)
    def addr_update(self):
        r = [f"v_add_u32 v{self.vXa}, s{S_SLOT}, v{self.vXc}"]
        r += [f"v_add_u32 v{self.vW[j]}, s{S_SLOT}, v{self.vWc[j]}" for j in range(4)]
        r += [f"v_xor_b32 v{self.vXb}, 64, v{self.vXa}"]
        return r
    def stats_mfmas(self, xregs):
        m = []
        for x in range(5):
            xa = xregs[x]
            g = self.GRAM + 4*x; sm = self.SUMA + 4*x
            m.append(f"v_mfma_f32_16x16x32_bf16 v[{g}:{g+3}], {xa}, {xa}, v[{g}:{g+3}]")
            m.append(f"v_mfma_f32_16x16x32_bf16 v[{sm}:{sm+3}], v[{self.VONES}:{self.VONES+3}], {xa}, v[{sm}:{sm+3}]")
        return m
    def epilogue_stats(self, a):
        for i_, m_ in enumerate((0x22222222, 0x44444444, 0x88888888)):
            a(f"s_mov_b32 s{80+2*i_}, {hex(m_)}"); a(f"s_mov_b32 s{81+2*i_}, {hex(m_)}")
        for x in range(5):
            g = self.GRAM + 4*x
            a(f"v_cndmask_b32 v{g+1}, v{g}, v{g+1}, s[80:81]")
            a(f"v_cndmask_b32 v{g+1}, v{g+1}, v{g+2}, s[82:83]")
            a(f"v_cndmask_b32 v{g+1}, v{g+1}, v{g+3}, s[84:85]")
            a(f"v_mov_b32 v{g}, v{self.SUMA+4*x}")
        mask_exec(a, 0xF | (0xF << 20) | (0xF << 40) | (0xF << 60))
        for x in range(5):
            g = self.GRAM + 4*x
            a(f"ds_write_b64 v24, v[{g}:{g+1}] offset:{128*x}")
        unmask_exec(a)
        CS = 132
        for j in range(4):
            acc = self.ACC + 4*(4*4 + j)
            for r in range(4):
                a(f"v_mov_b32_dpp v{CS+4*j+r}, v{acc+r} row_newbcast:15 row_mask:0xf bank_mask:0xf")
        a("s_waitcnt lgkmcnt(0)")
        dbar(a, "E1")
        if 'attprof' in EXP: stamp(a, 1)
        ST = 8
        TM = 112
        for x in range(5):
            for wv in range(4):
                if x < 5:
                    pass
        for x in range(5):
            base = TM + 4*x if False else None
        regs = {0: 112, 1: 120, 2: 112, 3: 120, 4: 112}
        def rd(x):
            for wv in range(4):
                r = regs[x] + 2*wv
                a(f"ds_read_b64 v[{r}:{r+1}], v25 offset:{640*wv + 128*x}")
        def fin(x):
            r = regs[x]; st = ST + 2*x
            a(f"v_pk_add_f32 v[{r}:{r+1}], v[{r}:{r+1}], v[{r+2}:{r+3}]")
            a(f"v_pk_add_f32 v[{r+4}:{r+5}], v[{r+4}:{r+5}], v[{r+6}:{r+7}]")
            a(f"v_pk_add_f32 v[{st}:{st+1}], v[{r}:{r+1}], v[{r+4}:{r+5}]")
            a(f"v_mul_f32 v{st}, {hex(f2u(1.0/D))}, v{st}")
            a(f"v_mul_f32 v{st+1}, {hex(f2u(1.0/D))}, v{st+1}")
            a(f"v_fma_f32 v{st+1}, -v{st}, v{st}, v{st+1}")
            a(f"v_add_f32 v{st+1}, {hex(f2u(1e-5))}, v{st+1}")
            a(f"v_rsq_f32 v{st+1}, v{st+1}")
        rd(0); rd(1)
        a("s_waitcnt lgkmcnt(4)"); fin(0); rd(2)
        a("s_waitcnt lgkmcnt(4)"); fin(1); rd(3)
        a("s_waitcnt lgkmcnt(4)"); fin(2); rd(4)
        a("s_waitcnt lgkmcnt(4)"); fin(3)
        a("s_waitcnt lgkmcnt(0)"); fin(4)
        a("s_nop 0")
        return CS, ST
    def epilogue(self, a):
        a.label("L_epi1_start")
        if PH0:
            CS = 132; ST = 8
            for x in range(5):
                a(f"ds_read_b64 v[{ST+2*x}:{ST+2*x+1}], v25 offset:{128*x}")
            for j in range(4):
                acc = self.ACC + 4*(4*4 + j)
                for r in range(4):
                    a(f"v_mov_b32_dpp v{CS+4*j+r}, v{acc+r} row_newbcast:15 row_mask:0xf bank_mask:0xf")
            a("s_waitcnt lgkmcnt(0)")
        else:
            CS, ST = self.epilogue_stats(a)
        for x in range(5):
            st = ST + 2*x
            for j in range(4):
                acc = self.ACC + 4*(4*x + j)
                for hh in (0, 2):
                    a(f"v_pk_fma_f32 v[{acc+hh}:{acc+hh+1}], v[{CS+4*j+hh}:{CS+4*j+hh+1}], v[{st}:{st+1}], v[{acc+hh}:{acc+hh+1}] op_sel_hi:[1,0,1] neg_lo:[0,1,0] neg_hi:[0,1,0]")
                for hh in (0, 2):
                    a(f"v_pk_mul_f32 v[{acc+hh}:{acc+hh+1}], v[{acc+hh}:{acc+hh+1}], v[{st}:{st+1}] op_sel:[0,1] op_sel_hi:[1,1]")
                a(f"v_cvt_pk_bf16_f32 v{acc}, v{acc}, v{acc+1}")
                a(f"v_cvt_pk_bf16_f32 v{acc+1}, v{acc+2}, v{acc+3}")
                a(f"ds_write_b64 v{20+j}, v[{acc}:{acc+1}] offset:{16*x*self.QROW}")
        a("s_waitcnt lgkmcnt(0)")
        dry_exit(a, "L_epi1_ret")
        a("s_barrier")
        a("s_barrier")
        a(f"ds_read_b128 v[32:35], v26")
        sk = a.new("ost")
        a(f"s_cmp_ge_u32 s{S_WAVE}, 2")
        a(f"s_cbranch_scc1 {sk}")
        a(f"ds_read_b128 v[36:39], v27")
        a("s_waitcnt lgkmcnt(0)")
        a(f"buffer_store_dwordx4 v[36:39], v29, s[{SRD_OUT}:{SRD_OUT+3}], 0 offen{OSC}")
        a.label(sk)
        a("s_waitcnt lgkmcnt(0)")
        a(f"buffer_store_dwordx4 v[32:35], v28, s[{SRD_OUT}:{SRD_OUT+3}], 0 offen{OSC}")
    stream_epi = True

class P24(Phase):
    kind = "rm"; NT = 250
    MV = 82; NC = 64; ldb = 1280; ldo = 1280
    ABYTES = 12288; STAGE = 20480; NS = 7
    NXMAX = 3; RPM = 2
    modeS = True; NACC = 24
    def fragW(self, buf, kk, wi): return ('a', 40*buf + 8*kk + 4*wi)
    def fragX(self, buf, kk, xi): return ('a', 40*buf + 16 + 12*kk + 4*xi)
    scA = SC1
    panel_coloff = [0]; panel_srd = [SRD_B0]
    TBASE = 0
    Ains = [None, None, 'skip']
    Bins = [(0, 0), (0, 4)]
    @property
    def prefetchB(self): return PB2 if self.which == 2 else PB4
    @property
    def dual(self): return (DUAL2 if self.which == 2 else DUAL4) if DUAL else None
    def __init__(self, which):
        self.which = which
        if which == 2:
            self.key = 'p2'; self.lda = 1024 if FUSE else 1280; self.S = 10; self.rot = P2ROT
            self.oprime = FUSE
            self.kind = P2MAP
        else:
            self.key = 'p4'; self.lda = 3456; self.S = 27; self.rot = P4ROT; self.extraB = 1
            self.kind = P4MAP
        assert (self.S - 1) % self.NS != 0
        self.vXc, self.vWc = 8, 9
        self.vXa, self.vXb = 10, 11
        self.vW = [12, 13]
        self.xlist = [(self.vXa, self.vXb, 2048*x) for x in range(3)]
        self.wlist = [(self.vW[f], 0 if self.dual else self.ABYTES) for f in range(2)]
        self.ACC = 32
        self.mf = [(x, f, self.ACC + 4*(2*x + f)) for x in range(3) for f in range(2)]
    def l2_prep(self, a):
        if self.which == 2: l2_setup(a, "p3", 243, 64, KA_WU, D*F*2, 3456, D)
    @property
    def gate(self): return GATE4 if (GATE and self.which == 4) else None
    def mid_prefetch(self, a, s):
        if self.which == 2 and s == 8: return l2_issue(a, KA_WU, 3456, D)
    def mask_setup(self, a):
        a(f"s_cmp_lt_u32 s{S_W}, 2")
        a(f"s_cselect_b32 s{S_MASK}, -1, 0xffff")
        a(f"s_cselect_b32 s{S_MASK+1}, -1, 0")
        a(f"s_cmp_eq_u32 s{S_W}, 3")
        a(f"s_cselect_b32 s{S_MASK}, 0, s{S_MASK}")
    def build_srds(self, a, role):
        if self.which == 2:
            if role == 'l':
                srd(a, SRD_A, ptr(KA_WS), WS_O, 0x280000 if FUSE else S_TOK*D*2)
                srd(a, SRD_B0, ptr(KA_WO), 0, D*D*2)
            srd(a, SRD_OUT, ptr(KA_WS), WS_H, S_TOK*D*2)
            srd(a, SRD_AUX, ptr(KA_X), 0, S_TOK*D*2)
            srd(a, SRD_ST, ptr(KA_WS), WS_ST, 250*1536)
        else:
            if role == 'l':
                srd(a, SRD_A, ptr(KA_WS), WS_HH, S_TOK*F*2)
                srd(a, SRD_B0, ptr(KA_WD), 0, F*D*2)
            srd(a, SRD_OUT, ptr(KA_OUT), 0, S_TOK*D*2)
            srd(a, SRD_AUX, ptr(KA_WS), WS_H, S_TOK*D*2)
    def dep_range(self, a):
        if self.which == 2:
            sh = 6 if FUSE else 4
            a(f"s_lshr_b32 s{S_T0}, s{S_R0}, {sh}")
            a(f"s_sub_u32 s{S_T1}, s{S_REND}, 1")
            a(f"s_lshr_b32 s{S_T1}, s{S_T1}, {sh}")
        else:
            sdiv(a, S_T0, S_R0, 228, 2100)
            a(f"s_sub_u32 s{S_T1}, s{S_REND}, 1")
            sdiv(a, S_T1, S_T1, 228, 2100)
    def deps_first(self, a):
        first_ks(a, self)
        if self.which == 2 and FUSE:
            for src, dst in ((S_K, S_T2), (S_KB, S_T3)):
                a(f"s_lshl_b32 s{dst}, 1, s{src}")
                a(f"s_sub_u32 s{S_T4}, s{src}, 8")
                a(f"s_lshl_b32 s{S_T4}, s{S_T4}, 2")
                a(f"s_lshl_b32 s{S_T4}, 15, s{S_T4}")
                a(f"s_cmp_ge_u32 s{src}, 8")
                a(f"s_cselect_b32 s{dst}, s{S_T4}, s{dst}")
            a(f"s_or_b32 s{S_T2}, s{S_T2}, s{S_T3}")
            self.dep_range(a)
            skip = a.new("pollskip")
            a(f"s_cmp_eq_u32 s{S_WAVE}, 0")
            a(f"s_cbranch_scc0 {skip}")
            a("v_and_b32 v141, 7, v2                 ; group j")
            a(f"v_lshrrev_b32 v142, v141, s{S_T2}") if False else None
            a(f"v_mov_b32 v142, s{S_T2}")
            a("v_lshrrev_b32 v142, v141, v142")
            a("v_and_b32 v142, 1, v142")
            a("v_lshrrev_b32 v140, 3, v2")
            a(f"v_add_u32 v140, s{S_T0}, v140")
            a(f"v_cmp_ge_u32 vcc, s{S_T1}, v140")
            a("v_cmp_eq_u32 s[82:83], 1, v142")
            a("v_lshl_add_u32 v140, v140, 3, v141")
            a("v_lshlrev_b32 v140, 7, v140")
            a("v_add_u32 v140, 0x8000, v140")
            a("s_and_b64 vcc, vcc, s[82:83]")
            poll_core(a)
            a.label(skip)
            return
        if self.which == 2:
            for r in (S_K, S_KB):
                a(f"s_cmp_ge_u32 s{r}, 5")
                a(f"s_cselect_b32 s{r}, 1, 0")
        self.dep_range(a)
        if self.gate: poll_first_g(a, S_T0, S_T1, 27, S_K, self.S, self.gate[0], 0x18000)
        else: poll_first(a, S_T0, S_T1, 2 if self.which == 2 else 27, S_K, S_KB, 0x8000 if self.which == 2 else 0x18000)
    def deps(self, a, wave=0):
        W = (8 if FUSE else 2) if self.which == 2 else 27
        self.dep_range(a)
        a(f"s_mul_i32 s{S_T0}, s{S_T0}, {W}")
        a(f"s_add_u32 s{S_T1}, s{S_T1}, 1")
        a(f"s_mul_i32 s{S_T1}, s{S_T1}, {W}")
        poll(a, S_T0, S_T1, 0x8000 if self.which == 2 else 0x18000, wave)
    def set_fidx(self, a):
        if self.which == 2:
            a(f"s_mul_i32 s{S_FIDX}, s{S_RT}, 10")
            a(f"s_add_u32 s{S_FIDX}, s{S_FIDX}, s{S_CT}")
            a(f"s_lshl_b32 s{S_FIDX}, s{S_FIDX}, 7")
            a(f"s_add_u32 s{S_FIDX}, s{S_FIDX}, 0x10000")
        else:
            a(f"s_mov_b32 s{S_FIDX}, -1")
    def loader_post_first(self, a):
        if self.dual:
            class Q: pass
            q = Q(); q.NS = self.dual[0]; q.STAGE = 12288
            pad_init(a, q, 82, 14, None)
        else:
            pad_init(a, self, 82, 14, None)
        return 0
    def consumer_setup(self, a):
        cons_lane(a)
        a(f"s_lshr_b32 s{S_I}, s{S_WAVE}, 1")
        a(f"s_and_b32 s{S_J}, s{S_WAVE}, 1")
        a(f"s_mul_i32 s{S_T1}, s{S_I}, 48")
        x_addr_const(a, self.vXc, S_T1)
        w_addr_const(a, self.vWc)
        a(f"s_lshl_b32 s{S_T0}, s{S_J}, 6      ; f0 = 2j -> xor 64j")
        a(f"v_xor_b32 v{self.vWc}, s{S_T0}, v{self.vWc}")
        t_write_addr(a, 17, self.TBASE)
        a(f"s_mul_i32 s{S_T0}, s{S_I}, {48*128}")
        a(f"v_add_u32 v17, s{S_T0}, v17")
        a(f"s_lshl_b32 s{S_T0}, s{S_J}, 6")
        a(f"v_xor_b32 v17, s{S_T0}, v17        ; f0 = 2j")
        a(f"v_xor_b32 v18, 32, v17")
    def addr_update(self):
        if not self.dual: return P1.addr_update(self)
        return [f"v_add_u32 v{self.vXa}, s{S_SLOT}, v{self.vXc}",
                f"v_add_u32 v{self.vW[0]}, s{S_SLOTB}, v{self.vWc}",
                f"v_xor_b32 v{self.vXb}, 64, v{self.vXa}",
                f"v_xor_b32 v{self.vW[1]}, 32, v{self.vW[0]}"]
    def epilogue(self, a):
        for x in range(3):
            for f in range(2):
                acc = self.ACC + 4*(2*x + f)
                a(f"v_cvt_pk_bf16_f32 v{acc}, v{acc}, v{acc+1}")
                a(f"v_cvt_pk_bf16_f32 v{acc+1}, v{acc+2}, v{acc+3}")
                a(f"ds_write_b64 v{17+f}, v[{acc}:{acc+1}] offset:{2048*x}")
    RES = 100
    early_pre = True
    def early_setup(self, a):
        a("v_lshrrev_b32 v112, 3, v2")
        a("v_and_b32 v113, 7, v2")
        a("v_xor_b32 v108, v113, v112")
        a("v_lshlrev_b32 v108, 4, v108")
        a("v_lshl_add_u32 v108, v112, 7, v108")
        a(f"s_lshl_b32 s{S_T0}, s{S_WAVE}, 10")
        a(f"s_add_u32 s{S_T0}, s{S_T0}, {self.TBASE}")
        a(f"v_add_u32 v108, s{S_T0}, v108")
        a(f"s_lshl_b32 s{S_T0}, s{S_WAVE}, 3")
        a(f"s_add_u32 s{S_T0}, s{S_T0}, s{S_R0}")
        a(f"v_add_u32 v111, s{S_T0}, v112")
        a("v_mul_u32_u24 v109, 1280, v111")
        a(f"s_lshl_b32 s{S_T0}, s{S_C0}, 1")
        a("v_lshl_add_u32 v109, v113, 4, v109")
        a(f"v_add_u32 v109, s{S_T0}, v109")
        a(f"v_add_u32 v110, {64*1280}, v109")
        a("v_mov_b32 v114, 0x80000000")
        a(f"v_cmp_gt_u32 vcc, s{S_REND}, v111")
        a(f"v_add_u32 v115, 64, v111")
        a("s_nop 0")
        a("v_cndmask_b32 v109, v114, v109, vcc")
        a(f"v_cmp_gt_u32 vcc, s{S_REND}, v115")
        a("s_nop 1")
        a("v_cndmask_b32 v110, v114, v110, vcc")
        sc = SC1 if self.which == 4 else ""
        a(f"buffer_load_dwordx4 v[{self.RES}:{self.RES+3}], v109, s[{SRD_AUX}:{SRD_AUX+3}], 0 offen{sc}")
        a(f"buffer_load_dwordx4 v[{self.RES+4}:{self.RES+7}], v110, s[{SRD_AUX}:{SRD_AUX+3}], 0 offen{sc}")
        return 2
    def store_fast(self, a):
        sdone = a.new("sdone")
        sc = SC1 if self.which == 2 else OUTSC
        for k in range(2):
            a(f"ds_read_b128 v[{16+4*k}:{19+4*k}], v108 offset:{k*8192}")
        if self.which == 2:
            a(f"v_mov_b32 v26, {hex(ONES)}")
        a(f"s_waitcnt vmcnt(0) lgkmcnt(0)")
        for k in range(2):
            if k == 1:
                a(f"s_cmp_ge_u32 s{S_WAVE}, 3")
                a(f"s_cbranch_scc1 {sdone}")
            T = 16 + 4*k; R = self.RES + 4*k
            for d in range(4):
                a(f"v_lshlrev_b32 v28, 16, v{T+d}")
                a(f"v_and_b32 v29, 0xffff0000, v{T+d}")
                a(f"v_lshlrev_b32 v30, 16, v{R+d}")
                a(f"v_and_b32 v31, 0xffff0000, v{R+d}")
                a(f"v_pk_add_f32 v[28:29], v[28:29], v[30:31]")
                a(f"v_cvt_pk_bf16_f32 v{T+d}, v28, v29")
            a(f"buffer_store_dwordx4 v[{T}:{T+3}], v{109+k}, s[{SRD_OUT}:{SRD_OUT+3}], 0 offen{sc}")
            if self.which == 2:
                a("v_mov_b32 v24, 0"); a("v_mov_b32 v25, 0")
                a("s_nop 0")
                for d in range(4):
                    a(f"v_dot2_f32_bf16 v24, v{T+d}, v26, v24")
                    a(f"v_dot2_f32_bf16 v25, v{T+d}, v{T+d}, v25")
                a("s_nop 2")
                for dpp in ("quad_perm:[1,0,3,2]", "quad_perm:[2,3,0,1]", "row_half_mirror"):
                    a(f"v_add_f32_dpp v24, v24, v24 {dpp} row_mask:0xf bank_mask:0xf")
                    a(f"v_add_f32_dpp v25, v25, v25 {dpp} row_mask:0xf bank_mask:0xf")
                    a("s_nop 0")
                a(f"s_mul_i32 s{S_T0}, s{S_RT}, 10")
                a(f"s_add_u32 s{S_T0}, s{S_T0}, s{S_CT}")
                a(f"s_mul_i32 s{S_T0}, s{S_T0}, 1536")
                a(f"s_lshl_b32 s{S_T1}, s{S_WAVE}, 7")
                a(f"s_add_u32 s{S_T0}, s{S_T0}, s{S_T1}")
                a(f"v_lshrrev_b32 v9, 3, v2")
                a(f"v_lshlrev_b32 v9, 4, v9")
                a(f"v_add_u32 v9, s{S_T0}, v9")
                a("v_mov_b32 v12, v24"); a("v_mov_b32 v13, v25"); a("v_mov_b32 v14, 0"); a("v_mov_b32 v15, 0")
                set_exec(a, 0x0101010101010101)
                a(f"buffer_store_dwordx4 v[12:15], v9, s[{SRD_ST}:{SRD_ST+3}], 0 offen offset:{1024*k}{SC1}")
                a("s_mov_b64 exec, -1")
        a.label(sdone)

class P3(Phase):
    key = 'p3'; NT = 243
    @property
    def kind(self): return P3MAP
    MV = 228; NC = 64; lda = 1280; ldb = 3456; ldo = 3456
    ABYTES = 30720; STAGE = 47104; NS = 3; S = 10
    NXMAX = 8
    @property
    def RPM(self): return RPM3
    has_e1 = True
    scA = SC1
    panel_coloff = [0, 0]; panel_srd = [SRD_B0, SRD_B1]
    LDS_ST = 47104*3; LDS_CS = 47104*3 + 1920
    TBASE = 47104
    @property
    def rot(self): return P3ROT
    Ains = [None]*7 + ['skip']
    Bins = [(0, 0), (0, 4), (1, 0), (1, 4)]
    @property
    def prefetchB(self): return PB3
    def __init__(self):
        self.vXc, self.vXsc, self.vWc = 8, 9, 10
        self.vXa, self.vXb, self.vXsa, self.vXsb = 11, 12, 13, 14
        self.vW = [15, 16]
        self.xlist = [(self.vXa, self.vXb, 2048*x) for x in range(7)] + [(self.vXsa, self.vXsb, 0)]
        G, U = self.ABYTES, self.ABYTES + 8192
        self.wlist = [(self.vW[0], G), (self.vW[0], U), (self.vW[1], G), (self.vW[1], U)]
        self.ACC = 32
        self.mf = []
        acc = self.ACC
        self.accmap = {}
        for x in range(8):
            for wi in range(4):
                if x == 7 and wi >= 2: continue
                self.mf.append((x, wi, acc)); self.accmap[(x, wi)] = acc; acc += 4
        assert acc == 32 + 120
    @property
    def unroll(self): return l2_on(KA_WD)
    def l2_prep(self, a): l2_setup(a, "rm", 250, 64, KA_WD, F*D*2, 1280, F)
    def mid_prefetch(self, a, s):
        if s == 3: return l2_issue(a, KA_WD, 1280, F, 0, 9)
        if s == 6: return l2_issue(a, KA_WD, 1280, F, 9, None)
        if s == 9: return self.stats_loads(a)
    def mask_setup(self, a):
        a(f"s_cmp_eq_u32 s{S_W}, 0")
        a(f"s_cselect_b32 s{S_MASK}, -1, 0")
        a(f"s_mov_b32 s{S_MASK+1}, 0")
    def build_srds(self, a, role):
        if role == 'l':
            srd(a, SRD_A, ptr(KA_WS), WS_H, S_TOK*D*2)
            srd(a, SRD_B0, ptr(KA_WG), 0, D*F*2)
            srd(a, SRD_B1, ptr(KA_WU), 0, D*F*2)
            srd(a, SRD_ST, ptr(KA_WS), WS_ST, 250*1536)
        srd(a, SRD_OUT, ptr(KA_WS), WS_HH, S_TOK*F*2)
    def dep_range(self, a):
        sdiv(a, S_T0, S_R0, 82, 2100)
        a(f"s_sub_u32 s{S_T1}, s{S_REND}, 1")
        sdiv(a, S_T1, S_T1, 82, 2100)
    @property
    def gate(self): return (3, 2) if GATE else None
    def deps_first(self, a):
        first_ks(a, self)
        self.dep_range(a)
        if self.gate: poll_first_g(a, S_T0, S_T1, 10, S_K, self.S, self.gate[0], 0x10000)
        else: poll_first(a, S_T0, S_T1, 10, S_K, S_KB, 0x10000)
    def deps(self, a, wave=0):
        self.dep_range(a)
        a(f"s_mul_i32 s{S_T0}, s{S_T0}, 10")
        a(f"s_add_u32 s{S_T1}, s{S_T1}, 1")
        a(f"s_mul_i32 s{S_T1}, s{S_T1}, 10")
        poll(a, S_T0, S_T1, 0x10000, wave)
    def set_fidx(self, a):
        a(f"s_mul_i32 s{S_FIDX}, s{S_RT}, 27")
        a(f"s_add_u32 s{S_FIDX}, s{S_FIDX}, s{S_CT}")
        a(f"s_lshl_b32 s{S_FIDX}, s{S_FIDX}, 7")
        a(f"s_add_u32 s{S_FIDX}, s{S_FIDX}, 0x18000")
    def loader_post_first(self, a):
        pad_init(a, self, 228, 11, 239)
        return 0
    def stats_loads(self, a):
        a(f"s_lshl_b32 s{S_T0}, s{S_W}, 6")
        a(f"v_add_u32 v12, s{S_T0}, v2")
        a(f"v_add_u32 v13, s{S_R0}, v12")
        vdiv(a, 15, 13, 82, 2300)
        a("v_mul_u32_u24 v16, 82, v15")
        a("v_sub_u32 v16, v13, v16")
        a("v_mul_u32_u24 v15, 15360, v15")
        a("v_lshl_add_u32 v13, v16, 4, v15")
        a(f"v_add_u32 v15, s{S_R0}, v12")
        a(f"v_cmp_gt_u32 vcc, s{S_REND}, v15")
        a("v_mov_b32 v14, 0x80000000")
        a("s_nop 0")
        a("v_cndmask_b32 v13, v14, v13, vcc")
        for c in range(10):
            a(f"s_mov_b32 s{S_T0}, {c*1536}")
            a(f"buffer_load_dwordx2 v[{64+2*c}:{65+2*c}], v13, s[{SRD_ST}:{SRD_ST+3}], s{S_T0} offen{SC1}")
        return 10
    def loader_final(self, a):
        a("s_waitcnt vmcnt(0)")
        for c in range(1, 10):
            a(f"v_pk_add_f32 v[64:65], v[64:65], v[{64+2*c}:{65+2*c}]")
        a(f"v_mul_f32 v64, {hex(f2u(1.0/D))}, v64")
        a(f"v_mul_f32 v65, {hex(f2u(1.0/D))}, v65")
        a("v_fma_f32 v65, -v64, v64, v65")
        a(f"v_add_f32 v65, {hex(f2u(1e-5))}, v65")
        a("v_rsq_f32 v65, v65")
        a("v_lshlrev_b32 v12, 3, v12")
        a(f"v_add_u32 v12, {self.LDS_ST}, v12")
        a(f"s_cmp_eq_u32 s{S_W}, 3")
        a(f"s_cselect_b32 exec_hi, 0xffff, -1")
        a("ds_write_b64 v12, v[64:65]")
        a("s_mov_b64 exec, -1")
    def consumer_setup(self, a):
        cons_lane(a)
        a(f"s_lshr_b32 s{S_I}, s{S_WAVE}, 1")
        a(f"s_and_b32 s{S_J}, s{S_WAVE}, 1")
        a(f"s_lshl_b32 s{S_T1}, s{S_I}, 7")
        x_addr_const(a, self.vXc, S_T1)
        x_addr_const(a, self.vXsc, None, 112)
        w_addr_const(a, self.vWc)
        a(f"s_lshl_b32 s{S_T0}, s{S_J}, 1")
        a(f"s_add_u32 s{S_T0}, s{S_T0}, s{S_I}")
        a(f"s_lshl_b32 s{S_T0}, s{S_T0}, 5")
        a(f"v_xor_b32 v{self.vWc}, s{S_T0}, v{self.vWc}")
        a(f"s_lshl_b32 s{S_T0}, s{S_J}, 1")
        a(f"s_add_u32 s{S_T2}, s{S_T0}, s{S_I}     ; f0")
        a(f"s_lshl_b32 s{S_T0}, s{S_T2}, 6")
        a(f"v_lshlrev_b32 v24, 4, v4")
        a(f"v_add_u32 v24, s{S_T0}, v24")
        a(f"v_add_u32 v24, {self.LDS_CS}, v24")
        a(f"v_xor_b32 v25, 64, v24")
        t_write_addr(a, 26, self.TBASE)
        a(f"s_lshl_b32 s{S_T0}, s{S_T2}, 5")
        a(f"v_xor_b32 v26, s{S_T0}, v26")
        a(f"v_add_u32 v28, {112*128}, v26")
        a(f"s_lshl_b32 s{S_T0}, s{S_I}, 14")
        a(f"v_add_u32 v26, s{S_T0}, v26")
        a(f"v_xor_b32 v27, 32, v26")
        a(f"s_lshl_b32 s{S_T0}, s{S_I}, 10         ; 128*i*8")
        a(f"v_lshlrev_b32 v29, 3, v3")
        a(f"v_add_u32 v30, {self.LDS_ST + 112*8}, v29")
        a(f"v_add_u32 v29, s{S_T0}, v29")
        a(f"v_add_u32 v29, {self.LDS_ST}, v29")
    def addr_update(self):
        return [f"v_add_u32 v{self.vXa}, s{S_SLOT}, v{self.vXc}",
                f"v_add_u32 v{self.vW[0]}, s{S_SLOT}, v{self.vWc}",
                f"v_add_u32 v{self.vXsa}, s{S_SLOT}, v{self.vXsc}",
                f"v_xor_b32 v{self.vXb}, 64, v{self.vXa}",
                f"v_xor_b32 v{self.vW[1]}, 32, v{self.vW[0]}",
                f"v_xor_b32 v{self.vXsb}, 64, v{self.vXsa}"]
    chunk_epi = True
    def epilogue(self, a):
        nocs = a.new("nocs")
        a.label("L_epi3_start")
        assert self.LDS_CS % 128 == 0
        a(f"s_cmp_eq_u32 s{S_I}, 1")
        a(f"s_cbranch_scc0 {nocs}")
        mask_exec(a, 0x8000800080008000)
        for wi, (areg, poff) in enumerate([(24, 0), (24, 256), (25, 0), (25, 256)]):
            acc = self.accmap[(6, wi)]
            a(f"ds_write_b128 v{areg}, v[{acc}:{acc+3}] offset:{poff}")
        unmask_exec(a)
        a.label(nocs)
        a("s_waitcnt lgkmcnt(0)")
        dbar(a, "E1")
        CSR = [8, 12, 152, 156]
        for wi, (areg, poff) in enumerate([(24, 0), (24, 256), (25, 0), (25, 256)]):
            a(f"ds_read_b128 v[{CSR[wi]}:{CSR[wi]+3}], v{areg} offset:{poff}")
        STR = [16, 18, 20, 22]
        def rdst(x):
            st = STR[x & 3]
            if x < 7: a(f"ds_read_b64 v[{st}:{st+1}], v29 offset:{128*x}")
            else: a(f"ds_read_b64 v[{st}:{st+1}], v30")
        for x in range(4): rdst(x)
        a("s_waitcnt lgkmcnt(0)")
        for x in range(8):
            st = STR[x & 3]
            npair = 1 if x == 7 else 2
            if x == 4:
                a("s_waitcnt lgkmcnt(0)")
                dbar(a, "E2a")
            a(f"v_mul_f32 v{st+1}, v{st+1}, v{st+1}")
            for p in range(npair):
                g = self.accmap[(x, 2*p)]; u = self.accmap[(x, 2*p+1)]
                cg = CSR[2*p]; cu = CSR[2*p+1]
                for hh in (0, 2):
                    a(f"v_pk_fma_f32 v[{g+hh}:{g+hh+1}], v[{cg+hh}:{cg+hh+1}], v[{st}:{st+1}], v[{g+hh}:{g+hh+1}] op_sel_hi:[1,0,1] neg_lo:[0,1,0] neg_hi:[0,1,0]")
                    a(f"v_pk_fma_f32 v[{u+hh}:{u+hh+1}], v[{cu+hh}:{cu+hh+1}], v[{st}:{st+1}], v[{u+hh}:{u+hh+1}] op_sel_hi:[1,0,1] neg_lo:[0,1,0] neg_hi:[0,1,0]")
                for hh in (0, 2):
                    a(f"v_pk_mul_f32 v[{g+hh}:{g+hh+1}], v[{g+hh}:{g+hh+1}], v[{u+hh}:{u+hh+1}]")
                for hh in (0, 2):
                    a(f"v_pk_mul_f32 v[{g+hh}:{g+hh+1}], v[{g+hh}:{g+hh+1}], v[{st}:{st+1}] op_sel:[0,1] op_sel_hi:[1,1]")
                a(f"v_cvt_pk_bf16_f32 v{g}, v{g}, v{g+1}")
                a(f"v_cvt_pk_bf16_f32 v{g+1}, v{g+2}, v{g+3}")
                if x < 7: a(f"ds_write_b64 v{26+p}, v[{g}:{g+1}] offset:{2048*x}")
                else: a(f"ds_write_b64 v28, v[{g}:{g+1}]")
            if x < 4: rdst(x + 4)
        a("s_waitcnt lgkmcnt(0)")
        dry_exit(a, "L_epi3_ret")
        a("s_barrier      ; E2b")
    def loader_store_setup(self, a):
        a("v_lshrrev_b32 v3, 3, v2")
        a("v_and_b32 v4, 7, v2")
        a("v_xor_b32 v5, v4, v3")
        a("v_lshlrev_b32 v5, 4, v5")
        a("v_lshl_add_u32 v50, v3, 7, v5")
        a(f"s_lshl_b32 s{S_T0}, s{S_W}, 10")
        a(f"s_add_u32 s{S_T0}, s{S_T0}, {self.TBASE}")
        a(f"v_add_u32 v50, s{S_T0}, v50")
        a(f"s_lshl_b32 s{S_T0}, s{S_W}, 3")
        a(f"s_add_u32 s{S_T0}, s{S_T0}, s{S_R0}")
        a(f"v_add_u32 v51, s{S_T0}, v3")
        a(f"s_mov_b32 s{S_T1}, 3456")
        a(f"v_mul_lo_u32 v52, v51, s{S_T1}")
        a(f"s_lshl_b32 s{S_T0}, s{S_C0}, 1")
        a("v_lshl_add_u32 v52, v4, 4, v52")
        a(f"v_add_u32 v52, s{S_T0}, v52")
    def loader_stores(self, a, units):
        for n, u0 in enumerate(units):
            a(f"ds_read_b128 v[{56+4*n}:{59+4*n}], v50 offset:{u0*1024}")
        for n, u0 in enumerate(units):
            a(f"v_add_u32 v{53 if n & 1 else 54}, {u0*8*3456}, v52")
            special = (u0 + 3)*8 + 7 >= self.MV
            if special:
                a(f"v_add_u32 v55, {u0*8}, v51")
                a(f"s_add_u32 s{S_T0}, s{S_R0}, {self.MV}")
                a(f"v_cmp_gt_u32 vcc, s{S_T0}, v55")
                a(f"s_and_saveexec_b64 s[80:81], vcc")
            a(f"s_waitcnt lgkmcnt({len(units) - 1 - n})")
            a(f"buffer_store_dwordx4 v[{56+4*n}:{59+4*n}], v{53 if n & 1 else 54}, s[{SRD_OUT}:{SRD_OUT+3}], 0 offen{SC1}")
            if special: a("s_mov_b64 exec, s[80:81]")
    def loader_epilogue(self, a):
        a("s_barrier      ; E2a")
        self.loader_stores(a, [0, 4, 16, 20])
        a("s_barrier      ; E2b")
        self.loader_stores(a, [8, 12, 24, 28])

ROWB = 656
LQ, LK, LV, LO = 16384, 16384 + 16*ROWB, 16384 + 46*ROWB, 0
WPF = True
P1ROT = 'latin2'
ROTOFF = set()
WPF_OFF = {KA_WD}
def l2_on(kptr): return WPF and kptr not in WPF_OFF
def l2_setup(a, kind, NT, NC, kptr, nbytes, ldb, K):
    if not l2_on(kptr): return
    if kind == "p3": kind = P3MAP
    if kind == "rm" and kptr == KA_WO: kind = P2MAP
    nsh = 4 if kind == "p3b" else (6 if kind == "rm5" else 3)
    R3 = ((K + nsh - 1)//nsh + 7)//8*8
    a(f"s_mov_b32 s4, s{S_RT}"); a(f"s_mov_b32 s5, s{S_CT}")
    tile_map(a, NT, kind)
    divc(a, S_T0, S_RT, nsh)
    a(f"s_mul_i32 s{S_T0}, s{S_T0}, {nsh}")
    a(f"s_sub_u32 s{S_T0}, s{S_RT}, s{S_T0}")
    a(f"s_mul_i32 s{S_T0}, s{S_T0}, {R3}")
    a(f"s_lshl_b32 s{S_T1}, s{S_W}, 3")
    a(f"s_add_u32 s{S_T0}, s{S_T0}, s{S_T1}")
    a("v_lshrrev_b32 v150, 3, v2")
    a(f"v_add_u32 v150, s{S_T0}, v150")
    a(f"s_mov_b32 s{S_T1}, {ldb}")
    a(f"v_mul_lo_u32 v150, v150, s{S_T1}")
    a("v_and_b32 v151, 7, v2")
    a("v_lshl_add_u32 v150, v151, 4, v150")
    a(f"s_mul_i32 s{S_T1}, s{S_CT}, {NC*2}")
    a(f"v_add_u32 v150, s{S_T1}, v150")
    a(f"s_cmp_eq_u32 s{S_VALID}, 0")
    a(f"s_cselect_b32 s{S_T1}, 0x80000000, 0")
    a(f"v_or_b32 v150, s{S_T1}, v150")
    srd(a, 80, ptr(kptr), 0, nbytes)
    a(f"s_mov_b32 s{S_RT}, s4"); a(f"s_mov_b32 s{S_CT}, s5")
def l2_issue(a, kptr, ldb, K, i0=0, i1=None):
    if not l2_on(kptr): return 0
    nsh = 4 if (P3MAP == "p3b" and kptr in (KA_WG, KA_WU)) else (6 if (P2MAP == "rm5" and kptr == KA_WO) else 3)
    R3 = ((K + nsh - 1)//nsh + 7)//8*8
    n = (R3//8 + 3)//4
    if i1 is None: i1 = n
    for i in range(i0, min(i1, n)):
        a(f"buffer_load_dwordx4 v[152:155], v150, s[80:83], 0 offen")
        if i + 1 < n: a(f"v_add_u32 v150, {32*ldb}, v150")
    return min(i1, n) - i0

def att_phase(a, role):
    a(f"s_lshl_b32 s{S_R0}, s{S_RT}, 4       ; T0")
    srd(a, SRD_A, ptr(KA_WS), WS_QKV, S_TOK*NQKV*2)
    srd(a, SRD_OUT, ptr(KA_WS), WS_O, S_TOK*D*2)
    NI = 49
    nper = (NI + 7)//8
    a(f"s_mov_b32 s{S_T2}, 3840")
    a(f"s_mul_i32 s{S_T3}, s{S_CT}, 640")
    for j in range(nper):
        r = 32 + j
        a(f"s_add_u32 s{S_T0}, s{S_WAVE}, {8*j}")
        a(f"s_lshl_b32 s{S_T0}, s{S_T0}, 6")
        a(f"v_add_u32 v3, s{S_T0}, v2           ; c")
        vdiv(a, 4, 3, 41, 64*56)
        a("v_mul_u32_u24 v5, 41, v4")
        a("v_sub_u32 v5, v3, v5                  ; kap")
        a("v_cmp_le_u32 vcc, 16, v4")
        a("v_mov_b32 v8, 0x80000000")
        a("s_nop 0")
        a("v_cndmask_b32 v6, 0, 1, vcc")
        a("v_cmp_le_u32 vcc, 46, v4")
        a("s_nop 1")
        a("v_cndmask_b32 v7, 0, 1, vcc")
        a("v_add_u32 v6, v6, v7                  ; seg")
        a("v_mul_u32_u24 v7, 30, v6")
        a("v_sub_u32 v7, v4, v7")
        a(f"v_add_u32 v7, s{S_R0}, v7            ; token")
        a(f"v_mul_lo_u32 v7, v7, s{S_T2}")
        a("v_mul_u32_u24 v6, 1280, v6")
        a("v_add_u32 v7, v7, v6")
        a("v_lshl_add_u32 v7, v5, 4, v7")
        a(f"v_add_u32 v7, s{S_T3}, v7")
        a("v_cmp_gt_u32 vcc, 40, v5")
        a("s_nop 1")
        a("v_cndmask_b32 v7, v8, v7, vcc")
        a("v_cmp_gt_u32 vcc, 76, v4")
        a("s_nop 1")
        a(f"v_cndmask_b32 v{r}, v8, v7, vcc")
    if role == 'c':
        a(f"s_lshr_b32 s{S_T0}, s{S_WAVE}, 1")
        a(f"s_lshl_b32 s{S_T0}, s{S_T0}, 3")
        a(f"s_and_b32 s{S_T1}, s{S_WAVE}, 1")
        a(f"s_add_u32 s{S_I}, s{S_T0}, s{S_T1}      ; rb")
        a("v_and_b32 v3, 3, v2             ; i")
        a("v_lshrrev_b32 v4, 2, v2         ; b")
        a("v_lshlrev_b32 v5, 1, v3")
        a(f"v_add_u32 v5, s{S_I}, v5        ; rb + 2i")
        a(f"v_mul_u32_u24 v5, {ROWB}, v5")
        a("v_mul_u32_u24 v6, 40, v4")
        a("v_add_u32 v5, v5, v6")
        a(f"v_add_u32 v144, {LQ}, v5")
        a(f"v_add_u32 v145, {LK}, v5")
        a("v_cmp_eq_u32 vcc, 3, v3")
        a(f"v_mov_b32 v7, {16*ROWB}")
        a(f"v_mov_b32 v8, {14*ROWB}")
        a("v_cndmask_b32 v7, v7, v8, vcc")
        a("v_add_u32 v146, v145, v7")
        a("v_bfe_u32 v9, v2, 2, 2            ; r")
        a("v_lshlrev_b32 v10, 1, v9")
        a(f"v_add_u32 v10, s{S_I}, v10")
        a(f"v_mul_u32_u24 v10, {ROWB}, v10")
        a("v_lshrrev_b32 v11, 4, v2")
        a("v_lshl_add_u32 v11, v11, 2, v3     ; 4G + c")
        a("v_mul_u32_u24 v11, 40, v11")
        a("v_add_u32 v10, v10, v11")
        a(f"v_add_u32 v147, {LV}, v10")
        a("v_cmp_eq_u32 vcc, 3, v9")
        a(f"v_mov_b32 v7, {16*ROWB}")
        a("s_nop 0")
        a("v_cndmask_b32 v7, v7, v8, vcc")
        a("v_add_u32 v119, v147, v7")
        a(f"v_mov_b32 v12, {hex(f2u(-1e30))}")
        a("v_mov_b32 v13, 0")
        a(f"s_add_u32 s{S_T2}, s{S_R0}, s{S_I}")
        a(f"s_sub_u32 s{S_T2}, s{S_T2}, 14        ; pos(0)")
        for m in range(12):
            a(f"v_sub_u32 v14, {m}, v3            ; m - i")
            a("v_cmp_gt_u32 vcc, 8, v14")
            a(f"s_add_u32 s{S_T0}, s{S_T2}, {2*m}")
            a(f"s_cmp_ge_i32 s{S_T0}, 0")
            a("s_cselect_b64 s[80:81], -1, 0")
            a("s_and_b64 vcc, vcc, s[80:81]")
            a(f"v_cndmask_b32 v{120+m}, v12, v13, vcc")
    for j in range(2):
        a(f"s_add_u32 s{S_T0}, s{S_WAVE}, {8*j}")
        a(f"s_lshl_b32 s{S_T0}, s{S_T0}, 6")
        a(f"v_add_u32 v3, s{S_T0}, v2")
        vdiv(a, 4, 3, 40, 1024)
        a("v_mul_u32_u24 v5, 40, v4")
        a("v_sub_u32 v5, v3, v5")
        a(f"v_mul_u32_u24 v6, {ROWB}, v4")
        a(f"v_lshl_add_u32 v{148+j}, v5, 4, v6")
        a(f"v_add_u32 v4, s{S_R0}, v4")
        a("v_mul_u32_u24 v4, 1280, v4")
        a("v_lshl_add_u32 v4, v5, 4, v4")
        a(f"v_add_u32 v{156+j}, s{S_T3}, v4")
    if role == 'c':
        a(f"s_sub_u32 s{S_T0}, s{S_R0}, 14")
        a(f"s_max_i32 s{S_T0}, s{S_T0}, 0")
        sdiv(a, S_T0, S_T0, 121, 2100)
        a(f"s_add_u32 s{S_T1}, s{S_R0}, 15")
        sdiv(a, S_T1, S_T1, 121, 2100)
        skp = a.new("attpoll")
        a(f"s_cmp_eq_u32 s{S_WAVE}, 0")
        a(f"s_cbranch_scc0 {skp}")
        vdiv(a, 140, 2, 9, 64)
        a("v_mul_u32_u24 v141, 9, v140")
        a("v_sub_u32 v141, v2, v141                  ; j = l%9")
        vdiv(a, 142, 141, 3, 16)
        a("v_mul_u32_u24 v143, 3, v142")
        a("v_sub_u32 v143, v141, v143                ; j%3")
        a("v_mul_u32_u24 v142, 5, v142")
        a("v_add_u32 v142, v142, v143")
        a(f"s_lshl_b32 s{S_T2}, s{S_CT}, 1")
        a(f"v_add_u32 v142, s{S_T2}, v142            ; ct")
        a(f"v_add_u32 v140, s{S_T0}, v140            ; rt")
        a(f"v_cmp_ge_u32 vcc, s{S_T1}, v140")
        a("v_mul_u32_u24 v140, 15, v140")
        a("v_add_u32 v140, v140, v142")
        a("v_lshlrev_b32 v140, 7, v140")
        poll_core(a)
        a.label(skp)
        a("s_barrier      ; B_dep")
    else:
        l2_setup(a, "p3", 243, 64, KA_WG, D*F*2, 3456, D)
        a("s_barrier      ; B_dep")
    stamp(a, 0)
    for j in range(nper):
        sk = None
        if 8*j + 7 >= NI:
            sk = a.new("attsk")
            a(f"s_cmp_ge_u32 s{S_WAVE}, {NI - 8*j}")
            a(f"s_cbranch_scc1 {sk}")
        a(f"s_add_u32 s{S_T0}, s{S_WAVE}, {8*j}")
        a(f"s_lshl_b32 s{S_T0}, s{S_T0}, 10")
        a(f"s_add_u32 m0, s{S_T0}, {LQ}")
        a("s_nop 0")
        a(f"buffer_load_dwordx4 v{32+j}, s[{SRD_A}:{SRD_A+3}], 0 offen{SC1} lds")
        if sk: a.label(sk)
    a("s_waitcnt vmcnt(0)")
    a("s_barrier")
    stamp(a, 1)
    if role == 'l': l2_issue(a, KA_WG, 3456, D)
    if role == 'c':
        Q = 16; KR = 32; VR = 62; SC = 92; BIAS = 120; PB = 104; O = 4
        for dg in range(5):
            a(f"ds_read_b64 v[{Q+2*dg}:{Q+2*dg+1}], v144 offset:{8*dg}")
        for kb in range(3):
            for dg in range(5):
                r = KR + 2*(5*kb + dg)
                if kb < 2: a(f"ds_read_b64 v[{r}:{r+1}], v145 offset:{8*ROWB*kb + 8*dg}")
                else: a(f"ds_read_b64 v[{r}:{r+1}], v146 offset:{8*dg}")
        scale = (D // 32) ** -0.5
        c1 = scale * 1.4426950408889634
        a(f"s_mov_b32 s{S_T2}, {hex(f2u(c1))}")
        a("s_waitcnt lgkmcnt(0)")
        for kb in range(3):
            for dg in range(5):
                r = VR + 2*(5*kb + dg)
                if kb < 2: a(f"ds_read_b64_tr_b16 v[{r}:{r+1}], v147 offset:{8*ROWB*kb + 8*dg}")
                else: a(f"ds_read_b64_tr_b16 v[{r}:{r+1}], v119 offset:{8*dg}")
        for dg in range(5):
            for kb in range(3):
                r = KR + 2*(5*kb + dg); sc = SC + 4*kb
                c = "0" if dg == 0 else f"v[{sc}:{sc+3}]"
                a(f"v_mfma_f32_4x4x4_16b_bf16 v[{sc}:{sc+3}], v[{r}:{r+1}], v[{Q+2*dg}:{Q+2*dg+1}], {c}")
        a("s_nop 4")
        for m in range(12):
            a(f"v_fma_f32 v{SC+m}, v{SC+m}, s{S_T2}, v{BIAS+m}")
        a(f"v_max3_f32 v14, v{SC}, v{SC+1}, v{SC+2}")
        a(f"v_max3_f32 v15, v{SC+3}, v{SC+4}, v{SC+5}")
        a(f"v_max3_f32 v14, v14, v{SC+6}, v{SC+7}")
        a(f"v_max3_f32 v15, v15, v{SC+8}, v{SC+9}")
        a(f"v_max3_f32 v14, v14, v{SC+10}, v{SC+11}")
        a("v_max_f32 v14, v14, v15")
        for m in range(12):
            a(f"v_sub_f32 v{SC+m}, v{SC+m}, v14")
        for m in range(12):
            a(f"v_exp_f32 v{SC+m}, v{SC+m}")
        a(f"v_add_f32 v14, v{SC}, v{SC+1}")
        a(f"v_add_f32 v15, v{SC+2}, v{SC+3}")
        for m in range(4, 12, 2):
            a(f"v_add_f32 v14, v14, v{SC+m}")
            a(f"v_add_f32 v15, v15, v{SC+m+1}")
        a("v_add_f32 v14, v14, v15")
        a("v_rcp_f32 v14, v14")
        a("s_nop 0")
        for m in range(12):
            a(f"v_mul_f32 v{SC+m}, v{SC+m}, v14")
        for m in range(0, 12, 2):
            a(f"v_cvt_pk_bf16_f32 v{PB+m//2}, v{SC+m}, v{SC+m+1}")
        a("s_waitcnt lgkmcnt(0)")
        a("s_nop 0")
        OA = 32
        for kb in range(3):
            for dg in range(5):
                r = VR + 2*(5*kb + dg); o = OA + 4*dg
                c = "0" if kb == 0 else f"v[{o}:{o+3}]"
                a(f"v_mfma_f32_4x4x4_16b_bf16 v[{o}:{o+3}], v[{r}:{r+1}], v[{PB+2*kb}:{PB+2*kb+1}], {c}")
        a(f"v_subrev_u32 v144, {LQ - LO}, v144")
        a("s_nop 4")
        for dg in range(5):
            o = OA + 4*dg
            a(f"v_cvt_pk_bf16_f32 v{Q+2*dg}, v{o}, v{o+1}")
            a(f"v_cvt_pk_bf16_f32 v{Q+2*dg+1}, v{o+2}, v{o+3}")
            a(f"ds_write_b64 v144, v[{Q+2*dg}:{Q+2*dg+1}] offset:{8*dg}")
    a("s_waitcnt lgkmcnt(0)")
    stamp(a, 2)
    a("s_barrier")
    a(f"ds_read_b128 v[20:23], v148 offset:{LO}")
    sk = a.new("attst")
    a(f"s_cmp_ge_u32 s{S_WAVE}, 2")
    a(f"s_cbranch_scc1 {sk}")
    a(f"ds_read_b128 v[24:27], v149 offset:{LO}")
    a("s_waitcnt lgkmcnt(0)")
    a(f"buffer_store_dwordx4 v[24:27], v157, s[{SRD_OUT}:{SRD_OUT+3}], 0 offen{SC1}")
    a.label(sk)
    a("s_waitcnt lgkmcnt(0)")
    a(f"buffer_store_dwordx4 v[20:23], v156, s[{SRD_OUT}:{SRD_OUT+3}], 0 offen{SC1}")
    a(f"s_lshl_b32 s{S_FIDX}, s{S_RT}, 1")
    a(f"s_add_u32 s{S_FIDX}, s{S_FIDX}, s{S_CT}")
    a(f"s_lshl_b32 s{S_FIDX}, s{S_FIDX}, 7")
    a(f"s_add_u32 s{S_FIDX}, s{S_FIDX}, 0x8000")

def finish_phase(a, role, first=False):
    a("s_waitcnt vmcnt(0)")
    stamp(a, 4)
    if role == 'c' and first and not (FUSE and PH0): nonce_check(a)
    a("s_barrier      ; E3")
    if role == 'c': publish(a)
    stamp(a, 5)

IDLEPF = True
def idle_prefetch(a, NT, kptr, nbytes):
    nidle = 256 - NT
    nw = nidle * 8
    npieces = (nbytes + 1023)//1024
    n = (npieces + nw - 1)//nw
    a(f"s_and_b32 s{S_T0}, s2, 7")
    a(f"s_lshr_b32 s{S_T1}, s2, 3")
    a(f"s_lshl_b32 s{S_T0}, s{S_T0}, 5")
    a(f"s_add_u32 s{S_T0}, s{S_T0}, s{S_T1}")
    a(f"s_sub_u32 s{S_T0}, s{S_T0}, {NT}")
    a(f"s_lshl_b32 s{S_T0}, s{S_T0}, 3")
    a(f"s_add_u32 s{S_T0}, s{S_T0}, s{S_WAVE}      ; q")
    a(f"s_lshl_b32 s{S_T0}, s{S_T0}, 10")
    a("v_lshlrev_b32 v150, 4, v2")
    a(f"v_add_u32 v150, s{S_T0}, v150")
    srd(a, 80, ptr(kptr), 0, nbytes)
    lp = a.new("ipf")
    a(f"s_mov_b32 s{S_CNT}, {n}")
    a.label(lp)
    a("buffer_load_dwordx4 v[152:155], v150, s[80:83], 0 offen")
    a(f"v_add_u32 v150, {nw*1024}, v150")
    a(f"s_sub_u32 s{S_CNT}, s{S_CNT}, 1")
    a(f"s_cmp_lg_u32 s{S_CNT}, 0")
    a(f"s_cbranch_scc1 {lp}")
    a("s_waitcnt vmcnt(0)")

def role_program(a, role):
    phases = [P1F(), P24(2), P3(), P24(4)] if FUSE else [P1(), 'att', P24(2), P3(), P24(4)]
    if 'p1twice' in EXP:
        P = P1F() if FUSE else P1(); inv = a.new("inv")
        tile_map(a, P.NT, P.kind)
        a(f"s_cmp_eq_u32 s{S_VALID}, 0")
        a(f"s_cbranch_scc1 {inv}")
        P.tile_consts(a)
        if role == 'c': consumer_phase(a, P, True)
        else: loader_phase(a, P, True)
        a("s_waitcnt vmcnt(0)")
        a("s_barrier")
        a.label(inv)
    for n, P in enumerate(phases):
        first = (n == 0)
        nxt = a.new("next"); inv = a.new("inv")
        if P == 'att':
            tile_map(a, 256, 'att')
            att_phase(a, role)
            stamp(a, 3)
            finish_phase(a, role)
            prof_store(a, 'att', role)
            continue
        tile_map(a, P.NT, P.kind)
        a(f"s_cmp_eq_u32 s{S_VALID}, 0")
        a(f"s_cbranch_scc1 {inv}")
        P.tile_consts(a)
        if PRIO:
            hi = (role == 'l') if PRIO == 'l' else ((role == 'l') != (P.key == 'p3') if PRIO == 'm' else (role == 'c' and P.key == 'p3'))
            a(f"s_setprio {1 if hi else 0}")
        if role == 'c': consumer_phase(a, P, first)
        else: loader_phase(a, P, first)
        stamp(a, 3)
        if P.key != 'p4': finish_phase(a, role, first)
        spin_capture(a, P.key, role)
        prof_store(a, P.key, role)
        if first:
            a(f"s_branch {nxt}")
            a.label(inv)
            ptr_wait(a)
            if role == 'c': nonce_check(a, issued=False)
            a.label(nxt)
        elif P.key == 'p3' and IDLEPF:
            a(f"s_branch {nxt}")
            a.label(inv)
            idle_prefetch(a, P.NT, KA_WD, F*D*2)
            a.label(nxt)
        else:
            a.label(inv)

def main(out):
    a = Asm()
    a.raw(f".globl {KNAME}")
    a.raw(".p2align 8")
    a.raw(f".type {KNAME},@function")
    a.label(KNAME)
    if PROFDBG:
        a(f"s_memrealtime s[{S_P0+1}:{S_P0+2}]") if False else None
    a("s_cmp_ge_u32 s2, 256")
    a("s_cbranch_scc1 L_exit")
    a(f"s_load_dwordx16 s[{S_PTR}:{S_PTR+15}], s[0:1], 0")
    a(f"s_load_dwordx4 s[{S_PTR+16}:{S_PTR+19}], s[0:1], 64")
    if PROFDBG or SPIN:
        a(f"{STAMP} s[98:99]")
    a("v_lshrrev_b32 v1, 6, v0")
    a("v_and_b32 v2, 63, v0      ; lane")
    a(f"s_mov_b32 s{S_FIDX}, -1")
    a(f"s_mov_b32 s{S_DRY}, 0")
    a(f"v_readfirstlane_b32 s{S_WAVE}, v1")
    a("s_nop 3")
    a(f"s_sub_u32 s{S_W}, s{S_WAVE}, 4")
    a(f"s_cmp_ge_u32 s{S_WAVE}, 4")
    a("s_cbranch_scc1 L_loader")
    role_program(a, 'c')
    a("s_waitcnt vmcnt(0)")
    spin_end(a)
    a("s_endpgm")
    a.label("L_loader")
    role_program(a, 'l')
    a("s_waitcnt vmcnt(0)")
    a.label("L_exit")
    a("s_endpgm")
    HEADER = open("sequential_preLN__sliding_local_dilated__glu_gated_bilinear__prompt.s.ref").read().split("; Override")[0]
    s = HEADER
    s += """; One persistent launch, 256 workgroups (one per CU), 8 waves each: waves 0-3 run MFMA ("consumers"), waves 4-7 stream
;   P1F: LN1 (algebraic: rstd*(x@W - mean*colsum(W))) + QKV GEMM + sliding dilated attention (4x4x4 MFMA, true row max)
"""
    s += f"; @launch grid=(256,1,1) block=(512,1,1) lds={LDS_TOTAL}\n"
    s += '.amdgcn_target "amdgcn-amd-amdhsa--gfx950"\n.text\n'
    s += a.text()
    s += f""".section .rodata,"a"
.p2align 6
.amdhsa_kernel {KNAME}
  .amdhsa_next_free_vgpr 256
  .amdhsa_next_free_sgpr 102
  .amdhsa_accum_offset 160
  .amdhsa_group_segment_fixed_size 0
  .amdhsa_kernarg_size 80
  .amdhsa_user_sgpr_count 2
  .amdhsa_user_sgpr_kernarg_segment_ptr 1
  .amdhsa_system_sgpr_workgroup_id_x 1
  .amdhsa_float_denorm_mode_32 3
.end_amdhsa_kernel
"""
    open(out, "w").write(s)

if __name__ == "__main__":
    if "-prof" in sys.argv: PROF = True
    if "-profdbg" in sys.argv: PROFDBG = True
    if "-cyc" in sys.argv: STAMP = "s_memtime"
    if "-wpf" in sys.argv: WPF = True
    if "-nofuse" in sys.argv: FUSE = False
    if "-gate" in sys.argv: GATE = True
    if "-dry" in sys.argv: DRY = True
    if "-nodual" in sys.argv: DUAL = False
    for x in sys.argv:
        if x.startswith("-dual4="): DUAL4 = tuple(int(y) for y in x[7:].split(","))
        if x.startswith("-dual2="): DUAL2 = tuple(int(y) for y in x[7:].split(","))
    for x in sys.argv:
        if x.startswith("-ramp="): RAMP = int(x[6:])
        if x.startswith("-rpm3="): RPM3 = int(x[6:])
        if x.startswith("-rpm1="): RPM1 = int(x[6:])
    if "-noph0" in sys.argv: PH0 = False
    for x in sys.argv:
        if x.startswith("-prio="): PRIO = x[6:]
    for x in sys.argv:
        if x.startswith("-extrab="): EXTRAB = int(x[8:])
        if x.startswith("-p4map="): P4MAP = x[7:]
        if x.startswith("-p3map="): P3MAP = x[7:]
        if x.startswith("-p2map="): P2MAP = x[7:]
        if x.startswith("-pb="): PB2, PB3, PB4 = (int(y) for y in x[4:].split(","))
        if x.startswith("-p4rot="): P4ROT = tuple(int(y) for y in x[7:].split(","))
        if x.startswith("-p3rot="): P3ROT = tuple(int(y) for y in x[7:].split(","))
        if x.startswith("-p2rot="): P2ROT = tuple(int(y) for y in x[7:].split(","))
    if "-onwd" in sys.argv: WPF_OFF.discard(KA_WD)
    for x in sys.argv:
        if x.startswith("-spf="): SPF = int(x[5:])
        if x.startswith("-spf2="): SPF2 = {'wg': KA_WG, 'wu': KA_WU}[x[6:]]
    if "-noidle" in sys.argv: IDLEPF = False
    for x in sys.argv:
        if x.startswith("-spin="):
            p_, a_, b_ = x[6:].split(","); SPIN = (p_, int(a_), int(b_))
    if "-apf" in sys.argv: APF = True
    for x in sys.argv:
        if x.startswith("-p1frot="): P1FROT = x[8:]
    for x in sys.argv:
        if x.startswith("-outsc="): OUTSC = " " + x[7:].replace("+", " ")
    for x in sys.argv:
        if x.startswith("-gate4="): GATE4 = tuple(int(y) for y in x[7:].split(","))
    for x in sys.argv:
        if x.startswith("-osc="): OSC = " " + x[5:].replace("+", " ")
    for x in sys.argv:
        if x.startswith("-align="): ALIGN = int(x[7:])
    if "-nowpf" in sys.argv: WPF = False
    if "-onestep" in sys.argv: TWOSTEP = False
    for x in sys.argv:
        if x.startswith("-exp="): EXP = set(x[5:].split(","))
    if "-noxcd" in sys.argv: NOXCD = True
    for x in sys.argv:
        if x.startswith("-p1rot="): P1ROT = x[7:]
        if x.startswith("-rotoff="): ROTOFF = set(x[8:].split(","))
    for x in sys.argv:
        if x.startswith("-off="):
            for k in x[5:].split(","): WPF_OFF.add({'wo': KA_WO, 'wg': KA_WG, 'wu': KA_WU, 'wd': KA_WD}[k])
    main(sys.argv[1] if len(sys.argv) > 1 else "v3.s")
```

```python
import sys, struct

KNAME = "sequential_preLN__sliding_local_dilated__glu_gated_bilinear__prompt_kernel"
S_TOK, D, NQKV, F = 2048, 640, 1920, 1728
WS_QKV, WS_O, WS_H, WS_HH, WS_ST, WS_FLAG = 0, 0x800000, 0xB00000, 0x1000000, 0x1800000, 0x1900000
WS_PROF = 0x1A00000
WS_ST1 = 0x1880000
KA_X, KA_WQKV, KA_WO, KA_BX, KA_WG, KA_WU, KA_WD, KA_OUT, KA_DBG, KA_WS = [8*i for i in range(10)]
ONES = 0x3F803F80
PROF = False
PROFDBG = False
STAMP = 's_memrealtime'
SC1 = " sc1"
LDS_TOTAL = 163840
NONCE_LDS = 163832
OUTSC = ' sc0 sc1'
SPF = 0
SPF2 = None
EXTRAB = 0
PB2, PB3, PB4 = 7, 3, 7
P2MAP = 'rm'
P3MAP = 'p3b'
P4MAP = 'rm5'
P4ROT = (4, 17, 2)
P3ROT = (1, 9, 2)
P2ROT = (2, 13, 2)
P1FROT = 'latin2'
APF = False
ONESTEP = set()
COMB = False
DUAL = True
DUAL2 = (6, 10)
DUAL4 = (6, 10)
PH0 = True
RAMP = 2
RPM3 = 1
RPM1 = 1
DRY = False
PRIO = ''
GATE = False
GATE4 = (6, 3)
OSC = ' sc1'
FUSE = True
ALIGN = 6
TWOSTEP = True
EXP = set()
NOXCD = False

def f2u(x):
    return struct.unpack("<I", struct.pack("<f", x))[0]

class Asm:
    def __init__(self):
        self.L = []
        self.uid = 0
    def __call__(self, s):
        for line in s.split("\n"):
            line = line.strip()
            if line:
                self.L.append("  " + line)
    def label(self, n):
        self.L.append(n + ":")
    def raw(self, s):
        self.L.append(s)
    def new(self, base):
        self.uid += 1
        return f"L{base}_{self.uid}"
    def text(self):
        return "\n".join(self.L) + "\n"

SRD_A, SRD_B0, SRD_B1, SRD_OUT, SRD_AUX, SRD_ST = 8, 12, 16, 20, 24, 28
S_RT, S_CT, S_R0, S_C0, S_WAVE, S_SLOT, S_CNT, S_T0, S_T1, S_T2 = 32, 33, 34, 35, 36, 37, 38, 39, 40, 41
S_AOFF, S_BOFF = 42, 43
S_PTR = 44
S_MASK = 64
S_I, S_J, S_REND, S_K = 66, 67, 68, 69
S_STAMP = 70
S_NONCE = 78
S_FIDX, S_LW, S_VALID, S_KB = 85, 86, 87, 92
SRD_FLAG = 88
S_SLOTB, S_T3, S_T4, S_W = 93, 94, 95, 96
S_P0 = 97
S_N1, S_N2 = 6, 7
S_DRY = 3

def ptr(k): return S_PTR + k // 4

PH_IDX = {'p1': 0, 'att': 1, 'p2': 2, 'p3': 3, 'p4': 4}

def stamp(a, i):
    if i >= 4:
        if PROF: a(f'{STAMP} s[{98+2*(i-4)}:{99+2*(i-4)}]')
        return
    if PROF or PROFDBG or SPIN:
        a(f'{STAMP} s[{S_STAMP+2*i}:{S_STAMP+2*i+1}]')

SPIN = None
def spin_capture(a, ph, role):
    if not SPIN or SPIN[0] != ph or role != 'c': return
    a("s_waitcnt lgkmcnt(0)")
    A_ = "s98" if SPIN[1] < 0 else f"s{S_STAMP+2*SPIN[1]}"
    a(f"s_sub_u32 s100, s{S_STAMP+2*SPIN[2]}, {A_}")
def spin_end(a):
    if not SPIN: return
    sk = a.new("spin"); lp = a.new("spinl")
    a("s_cmp_eq_u32 s2, 9")
    a(f"s_cbranch_scc0 {sk}")
    a(f"s_cmp_eq_u32 s{S_WAVE}, 0")
    a(f"s_cbranch_scc0 {sk}")
    a("s_mul_i32 s100, s100, 20")
    a("s_memrealtime s[4:5]")
    a("s_waitcnt lgkmcnt(0)")
    a("s_add_u32 s100, s100, s4")
    a.label(lp)
    a("s_memrealtime s[4:5]")
    a("s_waitcnt lgkmcnt(0)")
    a("s_sub_u32 s6, s4, s100")
    a("s_cmp_lt_i32 s6, 0")
    a(f"s_cbranch_scc1 {lp}")
    a.label(sk)

def prof_store(a, ph, role):
    if not (PROF or PROFDBG): return
    skip = a.new("pskip")
    a(f"s_cmp_eq_u32 s{S_WAVE}, {0 if role == 'c' else 4}")
    a(f"s_cbranch_scc0 {skip}")
    a('s_waitcnt lgkmcnt(0)')
    if PROF:
        a(f's_add_u32 s80, s{ptr(KA_WS)}, {hex(WS_PROF + PH_IDX[ph]*0x20000)}')
        a(f's_addc_u32 s81, s{ptr(KA_WS)+1}, 0')
        a('s_and_b32 s81, s81, 0xffff')
        a('s_mov_b32 s82, 0x20000')
        a('s_mov_b32 s83, 0x20000')
        a('s_lshl_b32 s84, s2, 3')
        a(f's_add_u32 s84, s84, s{S_WAVE}')
        a('s_lshl_b32 s84, s84, 6')
        for i in range(8): a(f'v_mov_b32 v{128+i}, s{S_STAMP+i}')
        for i in range(4): a(f'v_mov_b32 v{136+i}, s{98+i}')
        a('v_mov_b32 v148, s84')
        a('s_mov_b64 exec, 1')
        a('buffer_store_dwordx4 v[128:131], v148, s[80:83], 0 offen')
        a('buffer_store_dwordx4 v[132:135], v148, s[80:83], 0 offen offset:16')
        a('buffer_store_dwordx4 v[136:139], v148, s[80:83], 0 offen offset:32')
        a('s_mov_b64 exec, -1')
    if PROFDBG and role == 'c':
        sk2 = a.new("pskip")
        a(f"s_cmp_eq_u32 s2, {PROFDBG_WG}")
        a(f"s_cbranch_scc0 {sk2}")
        a(f's_mov_b32 s80, s{ptr(KA_DBG)}')
        a(f's_and_b32 s81, s{ptr(KA_DBG)+1}, 0xffff')
        a('s_mov_b32 s82, 0x100')
        a('s_mov_b32 s83, 0x20000')
        sel = DBG_SEL[ph]
        for j, (i, slot) in enumerate(sel):
            a(f's_sub_u32 s84, s{S_STAMP+2*i}, s{S_P0}')
            a(f'v_mov_b32 v140, s84')
            a(f'v_mov_b32 v141, {4*slot}')
            a('s_mov_b64 exec, 1')
            a('buffer_store_dword v140, v141, s[80:83], 0 offen')
            a('s_mov_b64 exec, -1')
        a.label(sk2)
    a.label(skip)

PROFDBG_WG = 9
DBG_SEL = {'p1': [(1, 2), (2, 3), (3, 4)], 'att': [(0, 5), (1, 6), (3, 7)], 'p2': [(0, 8), (2, 9)], 'p3': [(0, 10), (1, 11), (2, 12)], 'p4': [(0, 13), (2, 14), (3, 15)]}

def set_exec(a, mask):
    if mask == (1 << 64) - 1:
        a("s_mov_b64 exec, -1")
    else:
        a(f"s_mov_b32 exec_lo, {hex(mask & 0xffffffff)}")
        a(f"s_mov_b32 exec_hi, {hex(mask >> 32)}")

def dbar(a, comment=""):
    if not DRY:
        a(f"s_barrier      ; {comment}"); return
    l = a.new("dbar")
    a(f"s_cmp_eq_u32 s{S_DRY}, 1")
    a(f"s_cbranch_scc1 {l}")
    a(f"s_barrier      ; {comment}")
    a.label(l)

def mask_exec(a, mask):
    if not DRY:
        set_exec(a, mask); return
    a("s_mov_b64 s[4:5], exec")
    a(f"s_and_b32 exec_lo, exec_lo, {hex(mask & 0xffffffff)}")
    a(f"s_and_b32 exec_hi, exec_hi, {hex(mask >> 32)}")

def unmask_exec(a):
    a("s_mov_b64 exec, s[4:5]" if DRY else "s_mov_b64 exec, -1")

def dry_call(a, wave, target, ret):
    if not DRY: return
    sk = a.new("dry")
    a(f"s_cmp_eq_u32 s{S_WAVE}, {wave}")
    a(f"s_cbranch_scc0 {sk}")
    a(f"s_mov_b32 s{S_DRY}, 1")
    a("s_mov_b64 exec, 0")
    a(f"s_branch {target}")
    a.label(ret)
    a("s_mov_b64 exec, -1")
    a(f"s_mov_b32 s{S_DRY}, 0")
    a.label(sk)

def dry_exit(a, ret):
    if DRY:
        a(f"s_cmp_eq_u32 s{S_DRY}, 1")
        a(f"s_cbranch_scc1 {ret}")

def srd(a, s, p, off, nbytes):
    if off:
        a(f"s_add_u32 s{s}, s{p}, {hex(off)}")
        a(f"s_addc_u32 s{s+1}, s{p+1}, 0")
    else:
        a(f"s_mov_b32 s{s}, s{p}")
        a(f"s_mov_b32 s{s+1}, s{p+1}")
    a(f"s_and_b32 s{s+1}, s{s+1}, 0xffff")
    a(f"s_mov_b32 s{s+2}, {hex(nbytes)}")
    a(f"s_mov_b32 s{s+3}, 0x20000")

def divc(a, dst, src, d, rng=300):
    m = (65536 + d - 1) // d
    for x in range(0, rng):
        assert (x * m) >> 16 == x // d, (x, d)
    a(f"s_mul_i32 s{dst}, s{src}, {m}")
    a(f"s_lshr_b32 s{dst}, s{dst}, 16")

def magic(d, N):
    for sh in range(8, 24):
        m = ((1 << sh) + d - 1) // d
        if m >= (1 << 24) or m * (N - 1) >= (1 << 32): continue
        if all((x * m) >> sh == x // d for x in range(N)): return m, sh
    raise Exception("no magic")

def sdiv(a, dst, src, d, N):
    m, sh = magic(d, N)
    a(f"s_mul_i32 s{dst}, s{src}, {m}")
    a(f"s_lshr_b32 s{dst}, s{dst}, {sh}")

def vdiv(a, dst, src, d, N):
    m, sh = magic(d, N)
    a(f"v_mul_u32_u24 v{dst}, {m}, v{src}")
    a(f"v_lshrrev_b32 v{dst}, {sh}, v{dst}")

def tile_map(a, NT, kind):
    if NOXCD:
        a(f"s_mov_b32 s{S_T0}, s2")
    else:
        a(f"s_and_b32 s{S_T0}, s2, 7")
        a(f"s_lshr_b32 s{S_T1}, s2, 3")
        a(f"s_lshl_b32 s{S_T0}, s{S_T0}, 5")
        a(f"s_add_u32 s{S_T0}, s{S_T0}, s{S_T1}   ; t")
    a(f"s_cmp_lt_u32 s{S_T0}, {NT}")
    a(f"s_cselect_b32 s{S_VALID}, 1, 0")
    if kind == "p1":
        divc(a, S_T1, S_T0, 90)
        a(f"s_mul_i32 s{S_T2}, s{S_T1}, 90")
        a(f"s_sub_u32 s{S_T2}, s{S_T0}, s{S_T2}")
        divc(a, S_CT, S_T2, 6)
        divc(a, S_RT, S_T2, 5)
        a(f"s_cmp_eq_u32 s{S_T1}, 2")
        a(f"s_cselect_b32 s{S_CT}, s{S_RT}, s{S_CT}")
        a(f"s_cselect_b32 s{S_RT}, 5, 6")
        a(f"s_mul_i32 s{S_RT}, s{S_RT}, s{S_CT}")
        a(f"s_sub_u32 s{S_RT}, s{S_T2}, s{S_RT}")
        a(f"s_mul_i32 s{S_T1}, s{S_T1}, 6")
        a(f"s_add_u32 s{S_RT}, s{S_RT}, s{S_T1}")
    elif kind == "p3":
        divc(a, S_T1, S_T0, 81)
        a(f"s_mul_i32 s{S_T2}, s{S_T1}, 81")
        a(f"s_sub_u32 s{S_T2}, s{S_T0}, s{S_T2}")
        divc(a, S_CT, S_T2, 3)
        a(f"s_mul_i32 s{S_RT}, s{S_CT}, 3")
        a(f"s_sub_u32 s{S_RT}, s{S_T2}, s{S_RT}")
        a(f"s_mul_i32 s{S_T1}, s{S_T1}, 3")
        a(f"s_add_u32 s{S_RT}, s{S_RT}, s{S_T1}")
    elif kind == "p1f":
        a(f"s_lshr_b32 s{S_T1}, s{S_T0}, 6")
        a(f"s_lshl_b32 s{S_RT}, s{S_T1}, 3")
        a(f"s_bfe_u32 s{S_T2}, s{S_T0}, {2 | (3 << 16)}")
        a(f"s_add_u32 s{S_RT}, s{S_RT}, s{S_T2}")
        a(f"s_bfe_u32 s{S_T1}, s{S_T0}, {5 | (1 << 16)}")
        a(f"s_lshl_b32 s{S_T1}, s{S_T1}, 2")
        a(f"s_and_b32 s{S_CT}, s{S_T0}, 3")
        a(f"s_add_u32 s{S_CT}, s{S_CT}, s{S_T1}")
    elif kind == "p3b":
        a(f"s_cmp_ge_u32 s{S_T0}, 108")
        a(f"s_cselect_b32 s{S_T1}, 108, 0")
        a(f"s_sub_u32 s{S_T2}, s{S_T0}, s{S_T1}")
        divc(a, S_CT, S_T2, 4)
        divc(a, S_RT, S_T2, 5)
        a(f"s_cmp_ge_u32 s{S_T0}, 108")
        a(f"s_cselect_b32 s{S_CT}, s{S_RT}, s{S_CT}")
        a(f"s_cselect_b32 s{S_RT}, 5, 4")
        a(f"s_mul_i32 s{S_RT}, s{S_RT}, s{S_CT}")
        a(f"s_sub_u32 s{S_RT}, s{S_T2}, s{S_RT}")
        a(f"s_cmp_ge_u32 s{S_T0}, 108")
        a(f"s_cselect_b32 s{S_T1}, 4, 0")
        a(f"s_add_u32 s{S_RT}, s{S_RT}, s{S_T1}")
    elif kind == "rm5":
        divc(a, S_T1, S_T0, 125)
        a(f"s_mul_i32 s{S_T2}, s{S_T1}, 125")
        a(f"s_sub_u32 s{S_T2}, s{S_T0}, s{S_T2}")
        divc(a, S_RT, S_T2, 5)
        a(f"s_mul_i32 s{S_CT}, s{S_RT}, 5")
        a(f"s_sub_u32 s{S_CT}, s{S_T2}, s{S_CT}")
        a(f"s_mul_i32 s{S_T1}, s{S_T1}, 5")
        a(f"s_add_u32 s{S_CT}, s{S_CT}, s{S_T1}")
    elif kind == "att":
        a(f"s_lshr_b32 s{S_RT}, s{S_T0}, 1")
        a(f"s_and_b32 s{S_CT}, s{S_T0}, 1")
    else:
        divc(a, S_RT, S_T0, 10)
        a(f"s_mul_i32 s{S_CT}, s{S_RT}, 10")
        a(f"s_sub_u32 s{S_CT}, s{S_T0}, s{S_CT}")

def publish(a):
    skip = a.new("pub")
    a(f"s_cmp_eq_u32 s{S_WAVE}, 0")
    a(f"s_cbranch_scc0 {skip}")
    a(f"s_cmp_eq_u32 s{S_FIDX}, -1")
    a(f"s_cbranch_scc1 {skip}")
    a(f"v_mov_b32 v140, s{S_NONCE}")
    a(f"v_mov_b32 v141, s{S_NONCE+1}")
    a(f"v_mov_b32 v142, s{S_FIDX}")
    a("s_mov_b64 exec, 1")
    a(f"buffer_store_dwordx2 v[140:141], v142, s[{SRD_FLAG}:{SRD_FLAG+3}], 0 offen{SC1}")
    a("s_mov_b64 exec, -1")
    a.label(skip)

def poll_core(a, sv=80):
    loop = a.new("poll"); done = a.new("polldone")
    a(f"s_and_saveexec_b64 s[{sv}:{sv+1}], vcc")
    a(f"s_mov_b32 s{S_CNT}, 0x40000")
    a.label(loop)
    a(f"buffer_load_dwordx2 v[142:143], v140, s[{SRD_FLAG}:{SRD_FLAG+3}], 0 offen{SC1}")
    a("s_waitcnt vmcnt(0)")
    a(f"v_cmp_ne_u64 vcc, s[{S_NONCE}:{S_NONCE+1}], v[142:143]")
    a(f"s_cbranch_vccz {done}")
    a(f"s_sub_u32 s{S_CNT}, s{S_CNT}, 1")
    a(f"s_cmp_lg_u32 s{S_CNT}, 0")
    a(f"s_cbranch_scc1 {loop}")
    a.label(done)
    a(f"s_mov_b64 exec, s[{sv}:{sv+1}]")

def poll(a, lo_sgpr, hi_sgpr, base, wave=0):
    skip = a.new("pollskip")
    a(f"s_cmp_eq_u32 s{S_WAVE}, {wave}")
    a(f"s_cbranch_scc0 {skip}")
    a(f"v_add_u32 v140, s{lo_sgpr}, v2")
    a(f"v_cmp_gt_u32 vcc, s{hi_sgpr}, v140")
    a(f"v_lshlrev_b32 v140, 7, v140")
    a(f"v_add_u32 v140, {base}, v140")
    poll_core(a, 80 if wave == 0 else 4)
    a.label(skip)

def poll_first_g(a, lo_sgpr, hi_sgpr, W, k0, S, G, base):
    skip = a.new("pollskip")
    lg = 2 if G <= 4 else 3
    a(f"s_cmp_eq_u32 s{S_WAVE}, 0")
    a(f"s_cbranch_scc0 {skip}")
    a(f"v_lshrrev_b32 v140, {lg}, v2")
    a(f"v_add_u32 v140, s{lo_sgpr}, v140")
    a(f"v_cmp_ge_u32 vcc, s{hi_sgpr}, v140")
    a(f"v_and_b32 v141, {(1 << lg) - 1}, v2")
    a(f"v_cmp_gt_u32 s[82:83], {G}, v141")
    a(f"v_add_u32 v141, s{k0}, v141")
    a(f"v_subrev_u32 v142, {S}, v141")
    a(f"s_and_b64 s[82:83], s[82:83], vcc")
    a(f"v_cmp_le_u32 vcc, {S}, v141")
    a(f"v_mul_u32_u24 v140, {W}, v140")
    a("s_nop 0")
    a("v_cndmask_b32 v141, v141, v142, vcc")
    a("v_add_u32 v140, v140, v141")
    a(f"v_lshlrev_b32 v140, 7, v140")
    a(f"v_add_u32 v140, {base}, v140")
    a("s_mov_b64 vcc, s[82:83]")
    poll_core(a)
    a.label(skip)

def poll_comb(a, lo_sgpr, hi_sgpr, W, base, member):
    skip = a.new("pollskip"); loop = a.new("poll"); done = a.new("polldone")
    a(f"s_mov_b32 s{S_N2}, 0")
    a(f"s_cmp_eq_u32 s{S_WAVE}, 0")
    a(f"s_cbranch_scc0 {skip}")
    vdiv(a, 140, 2, W, 64)
    a(f"v_mul_u32_u24 v141, {W}, v140")
    a("v_sub_u32 v141, v2, v141               ; column")
    member(a)
    a("s_nop 1")
    a("s_mov_b64 s[4:5], vcc")
    a(f"v_add_u32 v140, s{lo_sgpr}, v140")
    a(f"v_cmp_ge_u32 vcc, s{hi_sgpr}, v140")
    a(f"v_mul_u32_u24 v140, {W}, v140")
    a("v_add_u32 v140, v140, v141")
    a("v_lshlrev_b32 v140, 7, v140")
    a(f"v_add_u32 v140, {base}, v140")
    a("s_and_saveexec_b64 s[80:81], vcc")
    a(f"s_mov_b32 s{S_CNT}, 0x40000")
    a.label(loop)
    a(f"buffer_load_dwordx2 v[142:143], v140, s[{SRD_FLAG}:{SRD_FLAG+3}], 0 offen{SC1}")
    a("s_waitcnt vmcnt(0)")
    a(f"v_cmp_ne_u64 vcc, s[{S_NONCE}:{S_NONCE+1}], v[142:143]")
    a("s_nop 1")
    a("s_and_b64 s[82:83], vcc, s[4:5]")
    a(f"s_cbranch_scc0 {done}")
    a(f"s_sub_u32 s{S_CNT}, s{S_CNT}, 1")
    a(f"s_cmp_lg_u32 s{S_CNT}, 0")
    a(f"s_cbranch_scc1 {loop}")
    a.label(done)
    a("s_cmp_eq_u64 vcc, 0")
    a(f"s_cselect_b32 s{S_N2}, 1, 0")
    a("s_mov_b64 exec, s[80:81]")
    a.label(skip)

def poll_first(a, lo_sgpr, hi_sgpr, W, k0, k1, base):
    skip = a.new("pollskip")
    a(f"s_cmp_eq_u32 s{S_WAVE}, 0")
    a(f"s_cbranch_scc0 {skip}")
    a("v_lshrrev_b32 v140, 1, v2")
    a(f"v_add_u32 v140, s{lo_sgpr}, v140")
    a(f"v_cmp_ge_u32 vcc, s{hi_sgpr}, v140")
    a(f"v_mul_u32_u24 v140, {W}, v140")
    a("v_and_b32 v141, 1, v2")
    a(f"s_sub_u32 s{S_T2}, s{k1}, s{k0}")
    a(f"v_mul_lo_u32 v141, v141, s{S_T2}")
    a(f"v_add_u32 v141, s{k0}, v141")
    a("v_add_u32 v140, v140, v141")
    a(f"v_lshlrev_b32 v140, 7, v140")
    a(f"v_add_u32 v140, {base}, v140")
    poll_core(a)
    a.label(skip)

def first_ks(a, P):
    P.rot_start(a)
    a(f"s_add_u32 s{S_KB}, s{S_K}, 1")
    a(f"s_cmp_ge_u32 s{S_KB}, {8 if getattr(P, 'oprime', False) else P.S}")
    a(f"s_cselect_b32 s{S_KB}, 0, s{S_KB}")

def dbg_srd(a):
    a(f"s_mov_b32 s80, s{ptr(KA_DBG)}")
    a(f"s_and_b32 s81, s{ptr(KA_DBG)+1}, 0xffff")
    a("s_mov_b32 s82, 0x100")
    a("s_mov_b32 s83, 0x20000")

def nonce_publish(a):
    skip = a.new("nonce")
    a(f"s_cmp_eq_u32 s{S_WAVE}, 0")
    a(f"s_cbranch_scc0 {skip}")
    a("s_cmp_eq_u32 s2, 0")
    a(f"s_cbranch_scc0 {skip}")
    dbg_srd(a)
    a(f"s_memrealtime s[{S_NONCE}:{S_NONCE+1}]")
    a("v_mov_b32 v5, 0")
    a("s_waitcnt lgkmcnt(0)")
    a(f"s_or_b32 s{S_NONCE}, s{S_NONCE}, 1")
    a(f"v_mov_b32 v6, s{S_NONCE}")
    a(f"v_mov_b32 v7, s{S_NONCE+1}")
    a("s_mov_b64 exec, 1")
    a(f"buffer_store_dwordx2 v[6:7], v5, s[80:83], 0 offen{SC1}")
    a("s_mov_b64 exec, -1")
    a.label(skip)

def nonce_issue(a):
    skip = a.new("nonce")
    a(f"s_cmp_eq_u32 s{S_WAVE}, 0")
    a(f"s_cbranch_scc0 {skip}")
    dbg_srd(a)
    a("v_mov_b32 v158, 0")
    a("s_nop 3")
    a(f"buffer_load_dwordx2 v[156:157], v158, s[80:83], 0 offen{SC1}")
    a.label(skip)

def nonce_check(a, issued=True):
    skip = a.new("nonce"); loop = a.new("nloop"); done = a.new("ndone"); chk = a.new("nchk")
    a(f"s_cmp_eq_u32 s{S_WAVE}, 0")
    a(f"s_cbranch_scc0 {skip}")
    dbg_srd(a)
    a("v_mov_b32 v158, 0")
    a(f"s_mov_b32 s{S_CNT}, 0x40000")
    if issued: a(f"s_branch {chk}")
    a.label(loop)
    a(f"buffer_load_dwordx2 v[156:157], v158, s[80:83], 0 offen{SC1}")
    a("s_waitcnt vmcnt(0)")
    a.label(chk)
    a("v_readfirstlane_b32 s" + str(S_NONCE) + ", v156")
    a("v_readfirstlane_b32 s" + str(S_NONCE+1) + ", v157")
    a("s_nop 3")
    a(f"s_cmp_lg_u32 s{S_NONCE}, 0")
    a(f"s_cbranch_scc1 {done}")
    a(f"s_sub_u32 s{S_CNT}, s{S_CNT}, 1")
    a(f"s_cmp_lg_u32 s{S_CNT}, 0")
    a(f"s_cbranch_scc1 {loop}")
    a.label(done)
    a(f"v_mov_b32 v158, {NONCE_LDS}")
    a("s_mov_b64 exec, 1")
    a("ds_write_b64 v158, v[156:157]")
    a("s_mov_b64 exec, -1")
    a("s_waitcnt lgkmcnt(0)")
    a.label(skip)

def nonce_from_lds(a):
    skip = a.new("nlds")
    a(f"s_cmp_eq_u32 s{S_WAVE}, 7")
    a(f"s_cbranch_scc0 {skip}")
    a(f"v_mov_b32 v140, {NONCE_LDS}")
    a("ds_read_b64 v[142:143], v140")
    a("s_waitcnt lgkmcnt(0)")
    a(f"v_readfirstlane_b32 s{S_NONCE}, v142")
    a(f"v_readfirstlane_b32 s{S_NONCE+1}, v143")
    a.label(skip)

class Phase:
    has_e1 = False
    has_stage_work = False
    prefetchB = 0
    def loader_post_first(self, a): return 0
    def loader_post_b0(self, a): return 0
    def loader_stage_work_parts(self): return []
    def loader_final(self, a): pass
    def store_pre(self, a): pass
    def tail_prefetch(self, a, part): return 0
    def mid_prefetch(self, a, s): return 0
    def l2_prep(self, a): pass
    def rot_start(self, a):
        if self.key in ROTOFF:
            a(f"s_mov_b32 s{S_K}, 0"); return
        ca, cb, den = self.rot
        Sm = 8 if getattr(self, 'oprime', False) else self.S
        a(f"s_mul_i32 s{S_K}, s{S_CT}, {ca}")
        a(f"s_mul_i32 s{S_T0}, s{S_RT}, {cb}")
        a(f"s_add_u32 s{S_K}, s{S_K}, s{S_T0}")
        a(f"s_lshr_b32 s{S_K}, s{S_K}, {den}")
        m = (65536 + Sm - 1) // Sm
        for x in range(1024): assert (x*m) >> 16 == x // Sm
        a(f"s_mul_i32 s{S_T0}, s{S_K}, {m}")
        a(f"s_lshr_b32 s{S_T0}, s{S_T0}, 16")
        a(f"s_mul_i32 s{S_T0}, s{S_T0}, {Sm}")
        a(f"s_sub_u32 s{S_K}, s{S_K}, s{S_T0}")
    def tile_consts(self, a):
        a(f"s_mul_i32 s{S_R0}, s{S_RT}, {self.MV}")
        a(f"s_mul_i32 s{S_C0}, s{S_CT}, {self.NC}")
        a(f"s_add_u32 s{S_REND}, s{S_R0}, {self.MV}")
        a(f"s_min_u32 s{S_REND}, s{S_REND}, {S_TOK}")

def transition(a, first):
    pass

def loader_phase(a, P, first):
    NS, S = P.NS, P.S
    nA, nB = len(P.Ains), len(P.Bins)
    VB = 32
    customB = getattr(P, 'custom_B', False)
    a("v_lshrrev_b32 v3, 3, v2      ; r8")
    a("v_and_b32 v4, 7, v2          ; p")
    a("v_lshrrev_b32 v5, 1, v3      ; r8>>1")
    a("v_xor_b32 v6, v4, v5")
    a("v_lshlrev_b32 v6, 4, v6")
    a(f"s_lshl_b32 s{S_T0}, s{S_W}, 3")
    a(f"s_add_u32 s{S_T0}, s{S_T0}, s{S_R0}")
    a(f"v_add_u32 v7, s{S_T0}, v3")
    a(f"s_mov_b32 s{S_T0}, {P.lda}")
    a(f"v_mul_lo_u32 v7, v7, s{S_T0}")
    a("v_add_u32 v7, v7, v6")
    a(f"s_and_b32 s{S_T0}, s{S_W}, 1")
    a(f"s_lshl_b32 s{S_T0}, s{S_T0}, 6")
    a(f"v_xor_b32 v7, s{S_T0}, v7")
    for t in range(nA):
        a(f"v_add_u32 v{VB+t}, {t*32*P.lda}, v7")
    if customB: P.lazyB = True
    else: std_B_setup(a, P, VB, nA)
    if getattr(P, 'oprime', False): oprime_alt_setup(a, P)
    a(f"s_lshl_b32 s{S_LW}, s{S_W}, 10")
    P.mask_setup(a)
    P.rot_start(a)
    a(f"s_mov_b32 s{S_KB}, s{S_K}")
    a(f"s_mov_b32 s{S_N1}, 0"); a(f"s_mov_b32 s{S_N2}, 0")
    if first: ptr_wait(a)
    P.build_srds(a, 'l')
    loader_rest(a, P, first, VB, nA, nB, NS, S)

def oprime_alt_setup(a, P):
    a(f"s_and_b32 s{S_T0}, s{S_W}, 1")
    a(f"s_lshl_b32 s{S_T0}, s{S_T0}, 6")
    a(f"v_xor_b32 v10, s{S_T0}, v6")
    a("v_lshrrev_b32 v11, 5, v10             ; q = c>>1")
    a("v_lshlrev_b32 v11, 7, v11             ; q*128")
    a("v_and_b32 v12, 16, v10                ; half*16")
    a("v_add_u32 v11, v11, v12")
    a(f"s_lshl_b32 s{S_T0}, s{S_W}, 3")
    a(f"s_add_u32 s{S_T0}, s{S_T0}, s{S_R0}")
    a(f"v_add_u32 v12, s{S_T0}, v3            ; row (t=0)")
    for t in range(3):
        a(f"v_add_u32 v13, {32*t}, v12")
        a("v_lshrrev_b32 v14, 2, v13")
        a("v_lshlrev_b32 v14, 10, v14")
        a("v_and_b32 v13, 3, v13")
        a("v_lshl_add_u32 v14, v13, 5, v14")
        a("v_add_u32 v14, v14, v11")
        a(f"v_add_u32 v{44+t}, 0x200000, v14")
    a(f"s_and_b32 s{S_T0}, s{S_W}, 1")
    a(f"s_lshl_b32 s{S_T0}, s{S_T0}, 6")
    a(f"v_xor_b32 v10, s{S_T0}, v8")
    a(f"s_lshl_b32 s{S_T1}, s{S_C0}, 1")
    a(f"v_add_u32 v10, s{S_T1}, v10")
    a(f"s_lshl_b32 s{S_T0}, s{S_W}, 3")
    for t, ib in enumerate((0, 4)):
        a(f"v_add_u32 v12, s{S_T0}, v3")
        a(f"v_add_u32 v12, {8*ib}, v12          ; r")
        a("v_lshrrev_b32 v13, 4, v12")
        a("v_mul_u32_u24 v13, 80, v13")
        a("v_and_b32 v12, 15, v12")
        a("v_add_u32 v13, v13, v12")
        a("v_add_u32 v13, 64, v13")
        a("v_mul_u32_u24 v13, 1280, v13")
        a(f"v_add_u32 v{47+t}, v13, v10")

def loader_dual(a, P, VB, nA, nB, S, opr, issueA_body, issueB_body, soff):
    NSA, NSB = P.dual
    AST, BST, BBASE = 12288, 8192, NSA*12288
    Smod = 8 if opr else S
    minA = nA - (1 if 'skip' in P.Ains else 0)
    def kadv(kreg, offreg, mul):
        a(f"s_add_u32 s{kreg}, s{kreg}, 1")
        a(f"s_cmp_ge_u32 s{kreg}, {Smod}")
        a(f"s_cselect_b32 s{kreg}, 0, s{kreg}")
        soff(kreg, offreg, mul)
    def sadv(reg, stride, n):
        a(f"s_add_u32 s{reg}, s{reg}, {stride}")
        a(f"s_cmp_ge_u32 s{reg}, {stride*n}")
        a(f"s_cselect_b32 s{reg}, 0, s{reg}")
    def iA(pos):
        a(f"s_add_u32 s{S_T3}, s{S_SLOT}, s{S_LW}")
        if opr and pos is not None and pos >= 8:
            a(f"s_mov_b32 s{S_AOFF}, {(pos-8)*512}")
            issueA_body(44, None)
        else:
            issueA_body(VB, None)
            kadv(S_K, S_AOFF, 128)
        sadv(S_SLOT, AST, NSA)
    def iB(pos):
        a(f"s_add_u32 s{S_T4}, s{S_SLOTB}, s{S_LW}")
        if opr and pos is not None and pos >= 8:
            a(f"s_mov_b32 s{S_BOFF}, {(pos-8)*409600}")
            issueB_body(47, None)
        else:
            issueB_body(VB + nA, None)
            kadv(S_KB, S_BOFF, 64*P.ldb)
        sadv(S_SLOTB, BST, NSB)
    a(f"s_mov_b32 s{S_SLOT}, 0")
    a(f"s_mov_b32 s{S_SLOTB}, 0")
    soff(S_K, S_AOFF, 128)
    soff(S_KB, S_BOFF, 64*P.ldb)
    pB = min(NSB, S)
    nmain = min(pB, Smod)
    lp = a.new("bpre")
    a(f"s_mov_b32 s{S_CNT}, {nmain}")
    a.label(lp)
    iB(None)
    a(f"s_sub_u32 s{S_CNT}, s{S_CNT}, 1")
    a(f"s_cmp_lg_u32 s{S_CNT}, 0")
    a(f"s_cbranch_scc1 {lp}")
    for j in range(nmain, pB): iB(j)
    a("s_barrier      ; B_dep")
    stamp(a, 0)
    seq = [('B', j) for j in range(pB)]
    def cnt_after(s):
        last = max(i for i, (k, j) in enumerate(seq) if j == s and k in 'AB')
        return sum(minA if k == 'A' else (nB if k == 'B' else j) for (k, j) in seq[last+1:])
    LA, LB = [], []
    for s in range(S):
        capA = (NSA - 1) if s == 0 else s + NSA - 2
        LA.append(min(S - 1, capA, (LA[-1] if LA else -1) + 2))
        capB = (NSB - 1) if s == 0 else s + NSB - 2
        LB.append(min(S - 1, max(capB, pB - 1)))
    prevA, prevB = -1, pB - 1
    s = 0
    while s < S:
        kA, kB = LA[s] - prevA, LB[s] - prevB
        e = s
        if s > 0 and kA == 1 and not (opr and LA[s] >= 8):
            while (e + 1 < S and LA[e+1] - LA[e] == 1 and LB[e+1] - LB[e] == kB and kB in (0, 1)
                   and not hasattr(P, 'hook_at') ): e += 1
        uniform = False
        if e - s >= 3:
            save = list(seq); vals = []
            for j in range(s, e + 1):
                seq.append(('A', LA[j]))
                if kB: seq.append(('B', LB[j]))
                vals.append(cnt_after(j))
            seq[:] = save
            uniform = len(set(vals)) == 1
        if uniform:
            cnt = e - s + 1
            lp = a.new("lmain")
            a(f"s_mov_b32 s{S_CNT}, {cnt}")
            a.label(lp)
            iA(None)
            if kB: iB(None)
            for j in range(s, e + 1):
                seq.append(('A', LA[j]))
                if kB: seq.append(('B', LB[j]))
            a(f"s_waitcnt vmcnt({vals[0]})")
            a("s_barrier")
            a(f"s_sub_u32 s{S_CNT}, s{S_CNT}, 1")
            a(f"s_cmp_lg_u32 s{S_CNT}, 0")
            a(f"s_cbranch_scc1 {lp}")
            prevA, prevB = LA[e], LB[e]; s = e + 1
            continue
        for j in range(prevA + 1, LA[s] + 1):
            iA(j); seq.append(('A', j))
        for j in range(prevB + 1, LB[s] + 1):
            iB(j); seq.append(('B', j))
        if s == 0:
            stamp(a, 1)
            ex = P.loader_post_first(a) or 0
            P.l2_prep(a)
            ex += P.early_setup(a)
            if ex: seq.append(('X', ex))
        nw = P.mid_prefetch(a, s) or 0
        if nw: seq.append(('X', nw))
        a(f"s_waitcnt vmcnt({cnt_after(s)})")
        if s == 0: a("s_waitcnt lgkmcnt(0)")
        a("s_barrier")
        prevA, prevB = LA[s], LB[s]; s += 1
    stamp(a, 2)
    a("s_barrier          ; E2")
    P.store_fast(a)
    P.set_fidx(a)

def std_B_setup(a, P, VB, nA):
    a("v_and_b32 v8, 1, v5")
    a("v_lshlrev_b32 v8, 1, v8")
    a("v_xor_b32 v8, v4, v8")
    a("v_lshlrev_b32 v8, 4, v8")
    a(f"s_lshl_b32 s{S_T0}, s{S_W}, 3")
    a(f"v_add_u32 v9, s{S_T0}, v3         ; k = 8w + r8")
    a(f"s_mov_b32 s{S_T0}, {P.ldb}")
    a(f"v_mul_lo_u32 v9, v9, s{S_T0}")
    a("v_add_u32 v9, v9, v8")
    a(f"s_and_b32 s{S_T0}, s{S_W}, 1")
    a(f"s_lshl_b32 s{S_T0}, s{S_T0}, 6")
    a(f"v_xor_b32 v9, s{S_T0}, v9")
    a(f"s_lshl_b32 s{S_T1}, s{S_C0}, 1")
    a(f"v_add_u32 v9, s{S_T1}, v9")
    for t, (pn, ib) in enumerate(P.Bins):
        a(f"v_add_u32 v{VB+nA+t}, {ib*8*P.ldb + P.panel_coloff[pn]}, v9")

def loader_rest(a, P, first, VB, nA, nB, NS, S):

    opr = getattr(P, 'oprime', False)
    Smod = 8 if opr else S
    def soff(kreg, offreg, mul):
        if opr: mul = 128 if offreg == S_AOFF else 102400
        a(f"s_mul_i32 s{offreg}, s{kreg}, {mul}")
    def adv(kreg, offreg, mul, slotreg):
        if getattr(P, 'order2', False) and P1ROT == 'latin2':
            cnt = S_N1 if kreg == S_K else S_N2
            a(f"s_add_u32 s{kreg}, s{kreg}, 2")
            a(f"s_cmp_ge_u32 s{kreg}, {S}")
            a(f"s_cselect_b32 s{S_T0}, {S}, 0")
            a(f"s_sub_u32 s{kreg}, s{kreg}, s{S_T0}")
            a(f"s_add_u32 s{cnt}, s{cnt}, 1")
            a(f"s_cmp_eq_u32 s{cnt}, 5")
            a(f"s_addc_u32 s{kreg}, s{kreg}, 0")
        else:
            a(f"s_add_u32 s{kreg}, s{kreg}, 1")
            a(f"s_cmp_ge_u32 s{kreg}, {Smod}")
            a(f"s_cselect_b32 s{kreg}, 0, s{kreg}")
        soff(kreg, offreg, mul)
        a(f"s_add_u32 s{slotreg}, s{slotreg}, {P.STAGE}")
        a(f"s_cmp_ge_u32 s{slotreg}, {P.STAGE*NS}")
        a(f"s_cselect_b32 s{slotreg}, 0, s{slotreg}")
    def slot_only(slotreg):
        a(f"s_add_u32 s{slotreg}, s{slotreg}, {P.STAGE}")
        a(f"s_cmp_ge_u32 s{slotreg}, {P.STAGE*NS}")
        a(f"s_cselect_b32 s{slotreg}, 0, s{slotreg}")
    def issueA(fill=None, pos=None):
        a(f"s_add_u32 s{S_T3}, s{S_SLOT}, s{S_LW}")
        if opr and pos is not None and pos >= 8:
            a(f"s_mov_b32 s{S_AOFF}, {(pos-8)*512}")
            issueA_body(44, None)
            slot_only(S_SLOT)
            return
        issueA_body(VB, fill)
        adv(S_K, S_AOFF, 128, S_SLOT)
    def issueA_body(vb, fill):
        for t in range(nA):
            special = P.Ains[t]
            sk = None
            if special == 'skip':
                sk = a.new("sk")
                a(f"s_cmp_eq_u64 s[{S_MASK}:{S_MASK+1}], 0")
                a(f"s_cbranch_scc1 {sk}")
            a(f"s_add_u32 m0, s{S_T3}, {t*4096}")
            if special: a(f"s_mov_b64 exec, s[{S_MASK}:{S_MASK+1}]")
            else: a("s_nop 0")
            a(f"buffer_load_dwordx4 v{vb+t}, s[{SRD_A}:{SRD_A+3}], s{S_AOFF} offen{P.scA} lds")
            if special: a("s_mov_b64 exec, -1")
            if sk: a.label(sk)
            if fill:
                for x in fill.pop(0) if fill else []: a(x)
    def issueB(fill=None, pos=None):
        if getattr(P, 'lazyB', False):
            P.lazyB = False
            P.custom_B_setup(a, VB + nA)
        a(f"s_add_u32 s{S_T4}, s{S_SLOTB}, s{S_LW}")
        if opr and pos is not None and pos >= 8:
            a(f"s_mov_b32 s{S_BOFF}, {(pos-8)*409600}")
            issueB_body(47, None)
            slot_only(S_SLOTB)
            return
        issueB_body(VB + nA, fill)
        adv(S_KB, S_BOFF, 64*P.ldb, S_SLOTB)
    def issueB_body(vb, fill):
        for t, ent in enumerate(P.Bins):
            if isinstance(ent, dict):
                sr = SRD_B0; ldsoff = ent['lds']; skp = ent.get('skip')
            else:
                pn, ib = ent
                boff = (P.dual[0]*12288 if getattr(P, 'dual', None) else P.ABYTES)
                sr = P.panel_srd[pn]; ldsoff = boff + pn*8192 + ib*1024; skp = None
            sk = None
            if skp:
                sk = a.new("skb")
                a(f"s_cmp_ge_u32 s{S_W}, {skp}")
                a(f"s_cbranch_scc1 {sk}")
            a(f"s_add_u32 m0, s{S_T4}, {ldsoff}")
            a("s_nop 0")
            a(f"buffer_load_dwordx4 v{vb+t}, s[{sr}:{sr+3}], s{S_BOFF} offen lds")
            if sk: a.label(sk)
            if fill:
                for x in fill.pop(0) if fill else []: a(x)
    dual = getattr(P, 'dual', None)
    if dual:
        return loader_dual(a, P, VB, nA, nB, S, opr, issueA_body, issueB_body, soff)
    minA = nA - (1 if 'skip' in P.Ains else 0)
    minB = nB - sum(1 for e_ in P.Bins if isinstance(e_, dict) and e_.get('skip'))
    a(f"s_mov_b32 s{S_SLOT}, 0")
    a(f"s_mov_b32 s{S_SLOTB}, 0")
    soff(S_K, S_AOFF, 128)
    soff(S_KB, S_BOFF, 64*P.ldb)
    pB = P.prefetchB if not first else 0
    if pB:
        lp = a.new("bpre")
        a(f"s_mov_b32 s{S_CNT}, {pB}")
        a.label(lp)
        issueB()
        a(f"s_sub_u32 s{S_CNT}, s{S_CNT}, 1")
        a(f"s_cmp_lg_u32 s{S_CNT}, 0")
        a(f"s_cbranch_scc1 {lp}")
    nextra = 0
    if pB and getattr(P, 'extraB', 0) and EXTRAB:
        a(f"s_mov_b32 s4, s{S_KB}")
        for e_ in range(EXTRAB):
            for t in range(nB):
                a(f"buffer_load_dwordx4 v[152:155], v{VB+nA+t}, s[{SRD_B0}:{SRD_B0+3}], s{S_BOFF} offen")
                nextra += 1
            a(f"s_add_u32 s{S_KB}, s{S_KB}, 1")
            a(f"s_cmp_ge_u32 s{S_KB}, {S}")
            a(f"s_cselect_b32 s{S_KB}, 0, s{S_KB}")
            a(f"s_mul_i32 s{S_BOFF}, s{S_KB}, {64*P.ldb}")
        a(f"s_mov_b32 s{S_KB}, s4")
        a(f"s_mul_i32 s{S_BOFF}, s{S_KB}, {64*P.ldb}")
    if not first:
        a("s_barrier      ; B_dep")
    stamp(a, 0)
    L = []
    gate = getattr(P, 'gate', None) if not first else None
    for s in range(S):
        cap = (NS - 1) if s == 0 else s + NS - 2
        prev = L[-1] if L else -1
        if gate and s <= gate[1]:
            L.append(min(gate[0] - 1, cap, prev + 2))
        else:
            L.append(min(S - 1, cap, prev + (3 if gate else (RAMP if not first else 2))))
    if gate:
        assert gate[0] <= pB and gate[0] - 1 <= NS - 1
        nonce_from_lds(a)
    seq = [('B', j) for j in range(pB)]
    if nextra: seq.append(('X', nextra))
    if hasattr(P, 'pre_issue'):
        npre = P.pre_issue(a)
    def cnt_after(s):
        last = max(i for i, (k, j) in enumerate(seq) if j == s and k in 'AB')
        n = 0
        for (k, j) in seq[last+1:]:
            n += minA if k == 'A' else (minB if k == 'B' else j)
        return n
    def issue_stage(j, fill=None):
        if j >= pB:
            issueA(fill, j); seq.append(('A', j))
            issueB(fill, j); seq.append(('B', j))
        else:
            issueA(fill, j); seq.append(('A', j))
    prev = -1
    s = 0
    while s < S:
        k = L[s] - prev
        e = s
        if k == 1 and L[s] >= pB and s > 0 and not getattr(P, 'unroll', False):
            while e + 1 < S and L[e+1] - L[e] == 1 and (L[e+1] - (e+1)) == (L[s] - s) and (getattr(P, 'steady_end', None) is None or e + 1 <= P.steady_end): e += 1
        if e - s >= 2 and s - 0 >= 0 and min(range(s, e+1)) >= 0 and s >= pB - (L[s] - s) and all(j >= pB for j in range(s, s+1)):
            cnt = e - s + 1
            lp = a.new("lmain")
            a(f"s_mov_b32 s{S_CNT}, {cnt}")
            a.label(lp)
            parts = P.loader_stage_work_parts() if P.has_stage_work else None
            issue_stage(L[s], parts)
            if parts:
                for grp in parts:
                    for x in grp: a(x)
            n = cnt_after(s)
            a(f"s_waitcnt vmcnt({n})")
            if P.has_stage_work: a("s_waitcnt lgkmcnt(0)")
            a("s_barrier")
            a(f"s_sub_u32 s{S_CNT}, s{S_CNT}, 1")
            a(f"s_cmp_lg_u32 s{S_CNT}, 0")
            a(f"s_cbranch_scc1 {lp}")
            for j in range(s+1, e+1):
                seq.append(('A', L[j])); seq.append(('B', L[j]))
            prev = L[e]; s = e + 1
            continue
        parts = P.loader_stage_work_parts() if (P.has_stage_work and s > 0) else None
        for j in range(prev+1, L[s]+1):
            issue_stage(j, parts if j == prev+1 else None)
        if s == 0:
            stamp(a, 1)
            ex = P.loader_post_first(a) or 0
            P.l2_prep(a)
            if getattr(P, 'early_pre', False): ex += P.early_setup(a)
            if ex: seq.append(('X', ex))
        if parts:
            for grp in parts:
                for x in grp: a(x)
        nw = P.mid_prefetch(a, s) or 0
        if nw: seq.append(('X', nw))
        if gate and s == gate[1]: P.deps(a, wave=7)
        a(f"s_waitcnt vmcnt({cnt_after(s)})")
        if hasattr(P, 'post_wait'): P.post_wait(a, s)
        if P.has_stage_work or s == 0: a("s_waitcnt lgkmcnt(0)")
        a("s_barrier")
        if s == 0:
            ex = P.loader_post_b0(a) or 0
            if ex: seq.append(('X', ex))
        prev = L[s]; s += 1
    stamp(a, 2)
    if P.has_stage_work:
        for grp in P.loader_stage_work_parts():
            for x in grp: a(x)
    if getattr(P, 'fused', False):
        P.loader_fused_tail(a)
        return
    P.loader_final(a)
    if getattr(P, 'chunk_epi', False): P.loader_store_setup(a)
    if getattr(P, 'early_pre', False):
        a("s_barrier          ; E2")
        P.store_fast(a)
        P.set_fidx(a)
        return
    P.store_pre(a)
    ny = 0
    if P.has_e1:
        a("s_waitcnt lgkmcnt(0)")
        a("s_barrier      ; E1")
    if getattr(P, 'stream_epi', False):
        P.set_fidx(a)
        return
    if getattr(P, 'chunk_epi', False):
        P.loader_epilogue(a)
        P.set_fidx(a)
        return
    a("s_barrier          ; E2")
    store_pass(a, P, ny)

def consumer_phase(a, P, first):
    if getattr(P, 'modeS', False): return consumer_phase_S(a, P, first)
    P.consumer_setup(a)
    NW = len(P.wlist)
    XF = [0, 4*P.NXMAX]
    WF = [8*P.NXMAX, 8*P.NXMAX + 4*NW]
    wk, wt = getattr(P, 'wstep', (4096, 512))
    def reads(kk, buf):
        r = []
        for wi, (areg, off) in enumerate(P.wlist):
            base = WF[buf] + 4*wi
            r.append(f"ds_read_b64_tr_b16 a[{base}:{base+1}], v{areg} offset:{off + kk*wk}")
            r.append(f"ds_read_b64_tr_b16 a[{base+2}:{base+3}], v{areg} offset:{off + kk*wk + wt}")
        for xi, (areg0, areg1, off) in enumerate(P.xlist):
            base = XF[buf] + 4*xi
            areg = areg0 if kk == 0 else areg1
            r.append(f"ds_read_b128 a[{base}:{base+3}], v{areg} offset:{off}")
        return r
    def mfmas(buf, first_=False):
        m = []
        for (xi, wi, acc) in P.mf:
            c = "0" if first_ else f"v[{acc}:{acc+3}]"
            m.append(f"v_mfma_f32_16x16x32_bf16 v[{acc}:{acc+3}], a[{WF[buf]+4*wi}:{WF[buf]+4*wi+3}], a[{XF[buf]+4*xi}:{XF[buf]+4*xi+3}], {c}")
        return m
    block = make_block(a, P.RPM)
    cons_prologue(a, P, first)
    ph0 = first and getattr(P, 'fused', False) and PH0
    if ph0: P.ph0_after_b0(a)
    for x in reads(0, 0): a(x)
    a(f"s_mov_b32 s{S_CNT}, {P.S-1}")
    a("s_waitcnt lgkmcnt(0)")
    def stats4(buf):
        if not getattr(P, 'mfma_stats4', False): return
        sk = a.new("st4")
        a(f"s_and_b32 s{S_T0}, s{S_N1}, 3")
        a(f"s_add_u32 s{S_N1}, s{S_N1}, 1")
        a(f"s_cmp_eq_u32 s{S_T0}, s{S_WAVE}")
        a(f"s_cbranch_scc0 {sk}")
        for x in P.stats_mfmas([f"a[{XF[buf]+4*xi}:{XF[buf]+4*xi+3}]" for xi in range(len(P.xlist))]): a(x)
        a.label(sk)
    st4 = getattr(P, 'mfma_stats4', False)
    block(mfmas(0, True), reads(1, 1), slot_adv(P) + P.addr_update())
    stats4(0)
    if ph0: P.ph0_publish(a)
    lp = a.new("cloop")
    if ALIGN: a.raw(f".p2align {ALIGN}")
    a.label(lp)
    a("s_waitcnt lgkmcnt(0)")
    a("s_barrier")
    block(mfmas(1), reads(0, 0), [f"s_sub_u32 s{S_CNT}, s{S_CNT}, 1"])
    stats4(1)
    a("s_waitcnt lgkmcnt(0)")
    block(mfmas(0), reads(1, 1), slot_adv(P) + P.addr_update() + ([] if st4 else [f"s_cmp_lg_u32 s{S_CNT}, 0"]))
    stats4(0)
    if st4: a(f"s_cmp_lg_u32 s{S_CNT}, 0")
    a(f"s_cbranch_scc1 {lp}")
    a("s_waitcnt lgkmcnt(0)")
    block(mfmas(1), [])
    stats4(1)
    cons_tail(a, P, first)

def make_block(a, RPM):
    def block(m, r, fill=()):
        q = list(r); fl = list(fill)
        for i, x in enumerate(m):
            a(x)
            k = 0
            while q and k < RPM:
                a(q.pop(0)); k += 1
            if not q:
                while fl and k < 2:
                    a(fl.pop(0)); k += 1
        for x in q: a(x)
        for x in fl: a(x)
    return block

def slot_adv(P):
    if getattr(P, 'dual', None):
        NSA, NSB = P.dual
        return [f"s_add_u32 s{S_SLOT}, s{S_SLOT}, 12288",
                f"s_cmp_ge_u32 s{S_SLOT}, {12288*NSA}",
                f"s_cselect_b32 s{S_SLOT}, 0, s{S_SLOT}",
                f"s_add_u32 s{S_SLOTB}, s{S_SLOTB}, 8192",
                f"s_cmp_ge_u32 s{S_SLOTB}, {NSA*12288 + 8192*NSB}",
                f"s_cselect_b32 s{S_SLOTB}, {NSA*12288}, s{S_SLOTB}"]
    return [f"s_add_u32 s{S_SLOT}, s{S_SLOT}, {P.STAGE}",
            f"s_cmp_ge_u32 s{S_SLOT}, {P.STAGE*P.NS}",
            f"s_cselect_b32 s{S_SLOT}, 0, s{S_SLOT}"]

def cons_prologue(a, P, first):
    a(f"s_mov_b32 s{S_SLOT}, 0")
    if getattr(P, 'dual', None): a(f"s_mov_b32 s{S_SLOTB}, {P.dual[0]*12288}")
    for x in P.addr_update(): a(x)
    if first: ptr_wait(a)
    P.build_srds(a, 'c')
    if not first:
        if P.key == 'p3': dry_call(a, 2, "L_epi3_start", "L_epi3_ret")
        two = TWOSTEP and P.key not in ONESTEP
        if two: P.deps_first(a)
        else: P.deps(a)
        a("s_barrier      ; B_dep")
        if getattr(P, 'early_pre', False): P.early_setup(a)
        if two and not getattr(P, 'gate', None):
            if COMB:
                skf = a.new("skfull")
                a(f"s_cmp_eq_u32 s{S_N2}, 1")
                a(f"s_cbranch_scc1 {skf}")
                P.deps(a)
                a.label(skf)
            else:
                P.deps(a)
    else:
        nonce_publish(a)
        if getattr(P, 'fused', False) and PH0: P.ph0_produce(a)
        if getattr(P, 'fused', False):
            dry_call(a, 1, "L_epi1_start", "L_epi1_ret")
            dry_call(a, 2, "L_att_start", "L_att_ret")
    stamp(a, 0)
    a("s_barrier          ; B_0")
    stamp(a, 1)

def cons_tail(a, P, first):
    stamp(a, 2)
    if first and not (getattr(P, 'fused', False) and PH0): nonce_issue(a)
    a("s_nop 7")
    P.epilogue(a)
    if getattr(P, 'stream_epi', False) or getattr(P, 'chunk_epi', False):
        P.set_fidx(a)
        return
    a("s_waitcnt lgkmcnt(0)")
    if getattr(P, 'early_pre', False):
        a("s_barrier          ; E2")
        P.store_fast(a)
        P.set_fidx(a)
        return
    P.store_pre(a)
    a("s_barrier          ; E2")
    store_pass(a, P)

def consumer_phase_S(a, P, first):
    P.consumer_setup(a)
    for r in range(P.ACC, P.ACC + P.NACC): a(f"v_mov_b32 v{r}, 0")
    def rng(t):
        k, i = t
        return f"{k}[{i}:{i+3}]"
    def half(t, h):
        k, i = t
        return f"{k}[{i+2*h}:{i+2*h+1}]"
    def reads(buf):
        r = []
        for kk in range(2):
            for wi, (areg, off) in enumerate(P.wlist):
                t = P.fragW(buf, kk, wi)
                r.append(f"ds_read_b64_tr_b16 {half(t,0)}, v{areg} offset:{off + kk*4096}")
                r.append(f"ds_read_b64_tr_b16 {half(t,1)}, v{areg} offset:{off + kk*4096 + 512}")
            for xi, (areg0, areg1, off) in enumerate(P.xlist):
                areg = areg0 if kk == 0 else areg1
                r.append(f"ds_read_b128 {rng(P.fragX(buf, kk, xi))}, v{areg} offset:{off}")
        return r
    def mfmas(buf):
        m = []
        for kk in range(2):
            for (xi, wi, acc) in P.mf:
                m.append(f"v_mfma_f32_16x16x32_bf16 v[{acc}:{acc+3}], {rng(P.fragW(buf, kk, wi))}, {rng(P.fragX(buf, kk, xi))}, v[{acc}:{acc+3}]")
        return m
    def stats(buf):
        if not getattr(P, 'mfma_stats', False) or 'nostats' in EXP: return
        l1 = a.new("st"); l2 = a.new("st")
        a(f"s_cmp_eq_u32 s{S_J}, 1")
        a(f"s_cbranch_scc1 {l1}")
        for x in P.stats_mfmas([rng(P.fragX(buf, 0, xi)) for xi in range(4)]): a(x)
        a(f"s_branch {l2}")
        a.label(l1)
        for x in P.stats_mfmas([rng(P.fragX(buf, 1, xi)) for xi in range(4)]): a(x)
        a.label(l2)
    block = make_block(a, P.RPM)
    cons_prologue(a, P, first)
    for x in reads(0): a(x)
    for x in slot_adv(P) + P.addr_update(): a(x)
    S = P.S
    npair = (S - 1)//2
    def step(cur, fill_extra=()):
        a("s_waitcnt lgkmcnt(0)")
        a("s_barrier")
        block(mfmas(cur), reads(1 - cur), slot_adv(P) + P.addr_update() + list(fill_extra))
        stats(cur)
    a(f"s_mov_b32 s{S_CNT}, {npair}")
    lp = a.new("cloop")
    if ALIGN: a.raw(f".p2align {ALIGN}")
    a.label(lp)
    step(0, [f"s_sub_u32 s{S_CNT}, s{S_CNT}, 1"])
    step(1)
    a(f"s_cmp_lg_u32 s{S_CNT}, 0")
    a(f"s_cbranch_scc1 {lp}")
    last = 0
    if (S - 1) % 2 == 1:
        step(0); last = 1
    a("s_waitcnt lgkmcnt(0)")
    block(mfmas(last), [])
    stats(last)
    cons_tail(a, P, first)

def ptr_wait(a):
    a("s_waitcnt lgkmcnt(0)")
    if PROFDBG: a(f"s_mov_b32 s{S_P0}, s98")
    srd(a, SRD_FLAG, ptr(KA_WS), WS_FLAG, 0x20000)

def cons_lane(a):
    a("v_and_b32 v3, 15, v2")
    a("v_lshrrev_b32 v4, 4, v2")

def x_addr_const(a, dst, rowbase_sgpr, rowbase_const=0):
    a("v_lshrrev_b32 v5, 1, v3")
    a("v_xor_b32 v5, v4, v5")
    a("v_lshlrev_b32 v5, 4, v5")
    a(f"v_lshl_add_u32 v{dst}, v3, 7, v5")
    if rowbase_sgpr is not None:
        a(f"s_lshl_b32 s{S_T0}, s{rowbase_sgpr}, 7")
        a(f"v_add_u32 v{dst}, s{S_T0}, v{dst}")
    if rowbase_const:
        a(f"v_add_u32 v{dst}, {rowbase_const*128}, v{dst}")

def w_addr_const(a, dst):
    a("v_lshrrev_b32 v5, 2, v3        ; r")
    a("v_lshl_add_u32 v6, v4, 3, v5   ; 8g+r")
    a("v_lshlrev_b32 v6, 7, v6")
    a("v_lshrrev_b32 v5, 1, v5        ; r>>1")
    a("v_and_b32 v7, 1, v4")
    a("v_lshl_or_b32 v5, v7, 1, v5    ; h")
    a("v_lshl_add_u32 v6, v5, 5, v6")
    a("v_and_b32 v5, 3, v3")
    a(f"v_lshl_add_u32 v{dst}, v5, 3, v6")

def t_write_addr(a, dst, base_const):
    a("v_lshrrev_b32 v5, 1, v4")
    a("v_and_b32 v6, 7, v3")
    a("v_xor_b32 v5, v5, v6")
    a("v_lshlrev_b32 v5, 4, v5")
    a("v_and_b32 v6, 1, v4")
    a("v_lshl_add_u32 v5, v6, 3, v5")
    a(f"v_lshl_add_u32 v{dst}, v3, 7, v5")
    a(f"v_add_u32 v{dst}, {base_const}, v{dst}")

def pad_init(a, P, row0, nzero_rows, ones_row):
    a("v_mov_b32 v12, 0"); a("v_mov_b32 v13, 0"); a("v_mov_b32 v14, 0"); a("v_mov_b32 v15, 0")
    a(f"v_mov_b32 v10, {hex(ONES)}")
    a("v_lshlrev_b32 v11, 4, v2        ; lane*16")
    for rep in range((P.NS + 3)//4):
        sk = a.new("pad")
        a(f"s_add_u32 s{S_T0}, s{S_W}, {4*rep}")
        a(f"s_cmp_ge_u32 s{S_T0}, {P.NS}")
        a(f"s_cbranch_scc1 {sk}")
        a(f"s_mul_i32 s{S_T0}, s{S_T0}, {P.STAGE}")
        nb = nzero_rows*128; off = 0
        while off < nb:
            lanes = min(64, (nb - off)//16)
            a(f"v_add_u32 v16, s{S_T0}, v11")
            if lanes < 64: set_exec(a, (1 << lanes) - 1)
            a(f"ds_write_b128 v16, v[12:15] offset:{row0*128 + off}")
            if lanes < 64: a("s_mov_b64 exec, -1")
            off += lanes*16
        if ones_row is not None:
            a(f"v_lshlrev_b32 v16, 2, v2")
            a(f"v_add_u32 v16, s{S_T0}, v16")
            set_exec(a, 0xffffffff)
            a(f"ds_write_b32 v16, v10 offset:{ones_row*128}")
            a("s_mov_b64 exec, -1")
        a.label(sk)

def store_pass(a, P, ny=0):
    a("v_lshrrev_b32 v3, 3, v2")
    a("v_and_b32 v4, 7, v2")
    a("v_xor_b32 v5, v4, v3")
    a("v_lshlrev_b32 v5, 4, v5")
    a("v_lshl_add_u32 v5, v3, 7, v5")
    a(f"s_lshl_b32 s{S_T0}, s{S_WAVE}, 10")
    a(f"v_add_u32 v5, s{S_T0}, v5")
    a(f"v_add_u32 v5, {P.TBASE}, v5")
    a(f"s_lshl_b32 s{S_T0}, s{S_WAVE}, 3")
    a(f"s_add_u32 s{S_T0}, s{S_T0}, s{S_R0}")
    a(f"v_add_u32 v6, s{S_T0}, v3")
    a(f"s_mov_b32 s{S_T1}, {P.ldo}")
    a(f"v_mul_lo_u32 v7, v6, s{S_T1}")
    a(f"s_lshl_b32 s{S_T0}, s{S_C0}, 1")
    a(f"v_lshl_add_u32 v7, v4, 4, v7")
    a(f"v_add_u32 v7, s{S_T0}, v7")
    a("v_mov_b32 v8, 0x80000000")
    P.ny = ny
    P.store_body(a)
    P.set_fidx(a)

def store_addr(a, k, dst, P, coloff=0):
    a(f"v_add_u32 v9, {64*k}, v6")
    a(f"v_cmp_gt_u32 vcc, s{S_REND}, v9")
    a(f"v_add_u32 v{dst}, {64*k*P.ldo + coloff}, v7")
    a("s_nop 0")
    a(f"v_cndmask_b32 v{dst}, v8, v{dst}, vcc")

class P1(Phase):
    key = 'p1'; kind = "p1"; NT = 255
    MV = 121; NC = 128; lda = 1280; ldb = 3840; ldo = 3840
    ABYTES = 16384; STAGE = 32768; NS = 4; S = 10
    NXMAX = 4; RPM = 1
    has_stage_work = False; has_e1 = True
    mfma_stats = True
    order2 = True
    GRAM = 96; SUMA = 112; VONES = 24
    modeS = True; NACC = 64
    def fragW(self, buf, kk, wi): return ('a', 64*buf + 16*kk + 4*wi)
    def fragX(self, buf, kk, xi):
        if buf == 0: return ('a', 32 + 16*kk + 4*xi)
        return ('v', 128 + 16*kk + 4*xi)
    scA = ""
    panel_coloff = [0, 128]; panel_srd = [SRD_B0, SRD_B0]
    LDS_ST = 131072; LDS_CS = 131072 + 2048
    TBASE = 2*32768
    rot = (5, 10, 2)
    Ains = [None, None, None, 'mask']
    Bins = [(0, 0), (0, 4), (1, 0), (1, 4)]
    def __init__(self):
        self.vXc, self.vWc = 8, 9
        self.vXa, self.vXb = 10, 11
        self.vW = [12, 13, 14, 15]
        self.xlist = [(self.vXa, self.vXb, 2048*x) for x in range(4)]
        self.wlist = [(self.vW[f], self.ABYTES) for f in range(4)]
        self.ACC = 32
        self.mf = [(x, f, self.ACC + 4*(4*x + f)) for x in range(4) for f in range(4)]
    def rot_start(self, a):
        if P1ROT == "lock":
            a(f"s_mov_b32 s{S_K}, 0"); return
        if P1ROT == "two":
            a(f"s_add_u32 s{S_K}, s{S_RT}, s{S_CT}")
            a(f"s_and_b32 s{S_K}, s{S_K}, 1")
            a(f"s_mul_i32 s{S_K}, s{S_K}, 5"); return
        if P1ROT == "ten":
            a(f"s_mul_i32 s{S_K}, s{S_RT}, 3")
            a(f"s_add_u32 s{S_K}, s{S_K}, s{S_CT}")
            divc(a, S_T0, S_K, 10)
            a(f"s_mul_i32 s{S_T0}, s{S_T0}, 10")
            a(f"s_sub_u32 s{S_K}, s{S_K}, s{S_T0}"); return
        a(f"s_add_u32 s{S_K}, s{S_RT}, s{S_CT}")
        divc(a, S_T0, S_K, 5)
        a(f"s_mul_i32 s{S_T0}, s{S_T0}, 5")
        a(f"s_sub_u32 s{S_K}, s{S_K}, s{S_T0}")
        a(f"s_lshl_b32 s{S_K}, s{S_K}, 1")
    def l2_prep(self, a): l2_setup(a, "rm", 250, 64, KA_WO, D*D*2, 1280, D)
    def mid_prefetch(self, a, s):
        if s == 8: return l2_issue(a, KA_WO, 1280, D)
    def mask_setup(self, a):
        a(f"s_cmp_eq_u32 s{S_W}, 3")
        a(f"s_cselect_b32 s{S_MASK}, 0xff, -1")
        a(f"s_cselect_b32 s{S_MASK+1}, 0, -1")
    def build_srds(self, a, role):
        if role == 'l':
            srd(a, SRD_A, ptr(KA_X), 0, S_TOK*D*2)
            srd(a, SRD_B0, ptr(KA_WQKV), 0, D*NQKV*2)
        srd(a, SRD_OUT, ptr(KA_WS), WS_QKV, S_TOK*NQKV*2)
    def set_fidx(self, a):
        a(f"s_mul_i32 s{S_FIDX}, s{S_RT}, 15")
        a(f"s_add_u32 s{S_FIDX}, s{S_FIDX}, s{S_CT}")
        a(f"s_lshl_b32 s{S_FIDX}, s{S_FIDX}, 7")
    def loader_post_first(self, a):
        pad_init(a, self, 121, 6, 127)
        return 0
    def stats_mfmas(self, xregs):
        m = []
        for x in range(4):
            xa = xregs[x]
            g = self.GRAM + 4*x; sm = self.SUMA + 4*x
            m.append(f"v_mfma_f32_16x16x32_bf16 v[{g}:{g+3}], {xa}, {xa}, v[{g}:{g+3}]")
            m.append(f"v_mfma_f32_16x16x32_bf16 v[{sm}:{sm+3}], v[{self.VONES}:{self.VONES+3}], {xa}, v[{sm}:{sm+3}]")
        return m
    def consumer_setup(self, a):
        cons_lane(a)
        a(f"s_lshr_b32 s{S_I}, s{S_WAVE}, 1")
        a(f"s_and_b32 s{S_J}, s{S_WAVE}, 1")
        a(f"s_lshl_b32 s{S_T1}, s{S_I}, 6")
        x_addr_const(a, self.vXc, S_T1)
        w_addr_const(a, self.vWc)
        a(f"s_lshl_b32 s{S_T0}, s{S_J}, 13")
        a(f"v_add_u32 v{self.vWc}, s{S_T0}, v{self.vWc}")
        for r in range(4): a(f"v_mov_b32 v{self.VONES+r}, {hex(ONES)}")
        for r in range(32): a(f"v_mov_b32 v{self.GRAM+r}, 0")
        a(f"s_lshl_b32 s{S_T0}, s{S_J}, 8       ; j*64*4")
        a(f"v_lshlrev_b32 v16, 4, v4            ; g*16 bytes")
        a(f"v_add_u32 v16, s{S_T0}, v16")
        a(f"v_add_u32 v16, {self.LDS_CS}, v16")
        t_write_addr(a, 17, self.TBASE)
        a(f"s_lshl_b32 s{S_T0}, s{S_WAVE}, 13")
        a(f"v_add_u32 v17, s{S_T0}, v17")
        for f in range(1, 4): a(f"v_xor_b32 v{17+f}, {32*f}, v17")
        a(f"s_lshl_b32 s{S_T0}, s{S_I}, 9       ; i*64*8")
        a(f"s_lshl_b32 s{S_T1}, s{S_J}, 10      ; j*128*8")
        a(f"s_add_u32 s{S_T1}, s{S_T1}, s{S_T0}")
        a(f"v_lshlrev_b32 v7, 3, v3")
        a(f"v_add_u32 v21, s{S_T1}, v7")
        a(f"v_add_u32 v21, {self.LDS_ST}, v21")
        a(f"v_add_u32 v22, s{S_T0}, v7")
        a(f"v_add_u32 v22, {self.LDS_ST}, v22")
        a("v_lshrrev_b32 v5, 3, v2             ; r8")
        a("v_and_b32 v6, 7, v2                 ; c")
        a("v_xor_b32 v7, v6, v5")
        a("v_lshlrev_b32 v7, 4, v7")
        a("v_lshl_add_u32 v23, v5, 7, v7")
        a(f"s_lshl_b32 s{S_T0}, s{S_WAVE}, 13")
        a(f"s_add_u32 s{S_T0}, s{S_T0}, {self.TBASE}")
        a(f"v_add_u32 v23, s{S_T0}, v23")
        a(f"s_lshl_b32 s{S_T0}, s{S_I}, 6")
        a(f"s_add_u32 s{S_T0}, s{S_T0}, s{S_R0}")
        a(f"v_add_u32 v28, s{S_T0}, v5")
        a(f"s_mov_b32 s{S_T1}, 3840")
        a(f"v_mul_lo_u32 v28, v28, s{S_T1}")
        a("v_lshl_add_u32 v28, v6, 4, v28")
        a(f"s_lshl_b32 s{S_T0}, s{S_J}, 6")
        a(f"s_add_u32 s{S_T0}, s{S_T0}, s{S_C0}")
        a(f"s_lshl_b32 s{S_T0}, s{S_T0}, 1")
        a(f"v_add_u32 v28, s{S_T0}, v28")
    def addr_update(self):
        r = [f"v_add_u32 v{self.vXa}, s{S_SLOT}, v{self.vXc}",
             f"v_add_u32 v{self.vW[0]}, s{S_SLOT}, v{self.vWc}",
             f"v_xor_b32 v{self.vXb}, 64, v{self.vXa}"]
        for f in range(1, len(self.vW)):
            r.append(f"v_xor_b32 v{self.vW[f]}, {32*f}, v{self.vW[0]}")
        return r
    stream_epi = True
    def epilogue(self, a):
        nocs = a.new("nocs")
        a(f"s_cmp_eq_u32 s{S_I}, 1")
        a(f"s_cbranch_scc0 {nocs}")
        set_exec(a, 0x8000800080008000)
        for f in range(4):
            acc = self.ACC + 4*(4*3 + f)
            a(f"ds_write_b128 v16, v[{acc}:{acc+3}] offset:{64*f}")
        a("s_mov_b64 exec, -1")
        a.label(nocs)
        for i_, m_ in enumerate((0x22222222, 0x44444444, 0x88888888)):
            a(f"s_mov_b32 s{80+2*i_}, {hex(m_)}"); a(f"s_mov_b32 s{81+2*i_}, {hex(m_)}")
        for x in range(4):
            g = self.GRAM + 4*x
            a(f"v_cndmask_b32 v{g+1}, v{g}, v{g+1}, s[80:81]")
            a(f"v_cndmask_b32 v{g+1}, v{g+1}, v{g+2}, s[82:83]")
            a(f"v_cndmask_b32 v{g+1}, v{g+1}, v{g+3}, s[84:85]")
            a(f"v_mov_b32 v{g}, v{self.SUMA+4*x}           ; sum")
        set_exec(a, 0xF | (0xF << 20) | (0xF << 40) | (0xF << 60))
        for x in range(4):
            g = self.GRAM + 4*x
            a(f"ds_write_b64 v21, v[{g}:{g+1}] offset:{128*x}")
        a("s_mov_b64 exec, -1")
        a("s_waitcnt lgkmcnt(0)")
        a("s_barrier      ; E1")
        CS = 128; ST = 144
        for x in range(4):
            a(f"ds_read_b64 v[{ST+2*x}:{ST+2*x+1}], v22 offset:{128*x}")
            a(f"ds_read_b64 v[{96+2*x}:{97+2*x}], v22 offset:{1024 + 128*x}")
        for f in range(4):
            a(f"ds_read_b128 v[{CS+4*f}:{CS+4*f+3}], v16 offset:{64*f}")
        a("s_waitcnt lgkmcnt(4)")
        for x in range(4):
            st = ST + 2*x
            a(f"v_pk_add_f32 v[{st}:{st+1}], v[{st}:{st+1}], v[{96+2*x}:{97+2*x}]")
            a(f"v_mul_f32 v{st}, {hex(f2u(1.0/D))}, v{st}          ; mean")
            a(f"v_mul_f32 v{st+1}, {hex(f2u(1.0/D))}, v{st+1}")
            a(f"v_fma_f32 v{st+1}, -v{st}, v{st}, v{st+1}      ; var")
            a(f"v_add_f32 v{st+1}, {hex(f2u(1e-5))}, v{st+1}")
            a(f"v_rsq_f32 v{st+1}, v{st+1}")
        a("s_waitcnt lgkmcnt(0)")
        RB = [96, 104]
        def stores(x):
            rb = RB[x & 1]
            for u in range(2):
                a(f"v_add_u32 v{29+u}, {(16*x + 8*u)*3840}, v28")
            for u in range(2):
                if x == 3 and u == 1:
                    a(f"s_cmp_eq_u32 s{S_I}, 1")
                    a("s_cselect_b32 exec_lo, 0xff, -1")
                    a("s_cselect_b32 exec_hi, 0, -1")
                a(f"buffer_store_dwordx4 v[{rb+4*u}:{rb+4*u+3}], v{29+u}, s[{SRD_OUT}:{SRD_OUT+3}], 0 offen{SC1}")
            if x == 3: a("s_mov_b64 exec, -1")
        for x in range(4):
            st = ST + 2*x
            for f in range(4):
                acc = self.ACC + 4*(4*x + f)
                for hh in (0, 2):
                    a(f"v_pk_fma_f32 v[{acc+hh}:{acc+hh+1}], v[{CS+4*f+hh}:{CS+4*f+hh+1}], v[{st}:{st+1}], v[{acc+hh}:{acc+hh+1}] op_sel_hi:[1,0,1] neg_lo:[0,1,0] neg_hi:[0,1,0]")
                for hh in (0, 2):
                    a(f"v_pk_mul_f32 v[{acc+hh}:{acc+hh+1}], v[{acc+hh}:{acc+hh+1}], v[{st}:{st+1}] op_sel:[0,1] op_sel_hi:[1,1]")
                a(f"v_cvt_pk_bf16_f32 v{acc}, v{acc}, v{acc+1}")
                a(f"v_cvt_pk_bf16_f32 v{acc+1}, v{acc+2}, v{acc+3}")
                a(f"ds_write_b64 v{17+f}, v[{acc}:{acc+1}] offset:{2048*x}")
            rb = RB[x & 1]
            if x >= 1:
                a("s_waitcnt lgkmcnt(4)")
                stores(x - 1)
            for u in range(2):
                a(f"ds_read_b128 v[{rb+4*u}:{rb+4*u+3}], v23 offset:{2048*x + 1024*u}")
        a("s_waitcnt lgkmcnt(0)")
        stores(3)


class P1F(Phase):
    key = 'p1'; kind = "p1f"; NT = 256
    MV = 64; NC = 80; lda = 1280; ldb = 3840
    ABYTES = 10240; STAGE = 40960; NS = 3; S = 10
    NXMAX = 5
    @property
    def RPM(self): return RPM1
    has_e1 = True; fused = True; custom_B = True
    scA = ""
    Ains = [None, None, 'skip']
    Bins = [dict(lds=10240 + 4096*t) for t in range(7)] + [dict(lds=10240 + 4096*7, skip=2)]
    panel_srd = [SRD_B0]
    LDS_STP = 122880
    QT = 40960; QROW = 488
    OT = 81920; OROW = 176
    ACC = 32; GRAM = 112; SUMA = 132; VONES = 152
    @property
    def mfma_stats4(self): return not PH0
    @property
    def steady_end(self): return 6 if PH0 else None
    def __init__(self):
        self.vXc = 8; self.vXa, self.vXb = 9, 10
        self.vWc = [11, 12, 13, 14]; self.vW = [15, 16, 17, 18]
        self.xlist = [(self.vXa, self.vXb, 2048*x) for x in range(5)]
        self.wlist = None
        self.mf = [(x, j, self.ACC + 4*(4*x + j)) for x in range(5) for j in range(4)]
    def rot_start(self, a):
        if P1FROT == 'lock':
            a(f"s_mov_b32 s{S_K}, 0"); return
        if P1FROT == 'rot4':
            a(f"s_and_b32 s{S_K}, s{S_RT}, 3")
            a(f"s_and_b32 s{S_T0}, s{S_CT}, 1")
            a(f"s_lshl_b32 s{S_T0}, s{S_T0}, 2")
            a(f"s_add_u32 s{S_K}, s{S_K}, s{S_T0}"); return
        if P1FROT == 'rot8':
            a(f"s_and_b32 s{S_K}, s{S_RT}, 7")
            a(f"s_mul_i32 s{S_K}, s{S_K}, 5")
            a(f"s_lshr_b32 s{S_K}, s{S_K}, 2")
            return
        a(f"s_add_u32 s{S_K}, s{S_RT}, s{S_CT}")
        divc(a, S_T0, S_K, 5)
        a(f"s_mul_i32 s{S_T0}, s{S_T0}, 5")
        a(f"s_sub_u32 s{S_K}, s{S_K}, s{S_T0}")
        a(f"s_lshl_b32 s{S_K}, s{S_K}, 1")
    @property
    def order2(self): return P1FROT == 'latin2'
    def pre_issue(self, a):
        if not APF: return 0
        a(f"s_and_b32 s{S_T0}, s{S_CT}, 3")
        a(f"s_mul_i32 s{S_T0}, s{S_T0}, 20")
        a(f"s_add_u32 s{S_T0}, s{S_T0}, s{S_R0}")
        a(f"s_mul_i32 s{S_T0}, s{S_T0}, 1280")
        a(f"s_lshl_b32 s{S_T1}, s{S_W}, 10")
        a(f"s_add_u32 s{S_T0}, s{S_T0}, s{S_T1}")
        a("v_lshlrev_b32 v60, 4, v2")
        a(f"v_add_u32 v60, s{S_T0}, v60")
        n = 7
        for i in range(n):
            a(f"buffer_load_dwordx4 v[152:155], v60, s[{SRD_A}:{SRD_A+3}], 0 offen")
            if i + 1 < n: a("v_add_u32 v60, 4096, v60")
        return n
    def tile_consts(self, a):
        a(f"s_lshl_b32 s{S_R0}, s{S_RT}, 6")
        a(f"s_sub_u32 s{S_R0}, s{S_R0}, 14")
        a(f"s_mul_i32 s{S_C0}, s{S_CT}, 160")
    def mask_setup(self, a):
        a(f"s_cmp_eq_u32 s{S_W}, 0")
        a(f"s_cselect_b32 s{S_MASK+1}, -1, 0xffff")
        a(f"s_cmp_lt_u32 s{S_W}, 2")
        a(f"s_cselect_b32 s{S_MASK}, -1, 0")
        a(f"s_cselect_b32 s{S_MASK+1}, s{S_MASK+1}, 0")
    def custom_B_setup(self, a, vb):
        a(f"s_lshl_b32 s{S_T0}, s{S_W}, 6")
        a(f"v_add_u32 v8, s{S_T0}, v2            ; c0")
        vdiv(a, 9, 8, 10, 256)
        a("v_mul_u32_u24 v10, 10, v9")
        a("v_sub_u32 v10, v8, v10                ; ch")
        a("v_mul_u32_u24 v11, 3840, v9")
        a("v_lshl_add_u32 v11, v10, 4, v11")
        a(f"v_add_u32 v{vb}, s{S_C0}, v11         ; voff t=0")
        for t in range(1, 8):
            a("v_add_u32 v10, 6, v10")
            a("v_add_u32 v9, 25, v9")
            a("v_cmp_le_u32 vcc, 10, v10")
            a(f"v_add_u32 v{vb+t}, {25*3840 + 96}, v{vb+t-1}")
            a("v_subrev_u32 v12, 10, v10")
            a("v_cndmask_b32 v10, v10, v12, vcc")
            a("v_addc_co_u32 v9, vcc, 0, v9, vcc") if False else None
            a(f"v_add_u32 v12, {3840 - 160}, v{vb+t}")
            a(f"v_cndmask_b32 v{vb+t}, v{vb+t}, v12, vcc")
            a("v_add_u32 v12, 1, v9")
            a("v_cndmask_b32 v9, v9, v12, vcc")
            a("v_cmp_le_u32 vcc, 64, v9")
            a(f"v_add_u32 v12, {(1280 - 64*3840) & 0xffffffff}, v{vb+t}")
            a("v_subrev_u32 v13, 64, v9")
            a(f"v_cndmask_b32 v{vb+t}, v{vb+t}, v12, vcc")
            a("v_cndmask_b32 v9, v9, v13, vcc")
    def build_srds(self, a, role):
        if role == 'l':
            srd(a, SRD_A, ptr(KA_X), 0, S_TOK*D*2)
            srd(a, SRD_B0, ptr(KA_WQKV), 0, D*NQKV*2)
        srd(a, SRD_OUT, ptr(KA_WS), WS_O, 0x280000)
    def set_fidx(self, a):
        a(f"s_lshl_b32 s{S_FIDX}, s{S_RT}, 3")
        a(f"s_add_u32 s{S_FIDX}, s{S_FIDX}, s{S_CT}")
        a(f"s_lshl_b32 s{S_FIDX}, s{S_FIDX}, 7")
        a(f"s_add_u32 s{S_FIDX}, s{S_FIDX}, 0x8000")
    def l2_prep(self, a): l2_setup(a, "rm", 250, 64, KA_WO, D*D*2, 1280, D)
    @property
    def unroll(self): return SPF != 0
    def spf_setup(self, a):
        a(f"s_lshl_b32 s{S_T0}, s2, 2")
        a(f"s_add_u32 s{S_T0}, s{S_T0}, s{S_W}        ; q")
        a(f"s_mul_i32 s{S_T1}, s{S_T0}, 2560")
        a(f"s_add_u32 s98, s{ptr(KA_X)}, s{S_T1}")
        a(f"s_addc_u32 s99, s{ptr(KA_X)+1}, 0")
        sdiv(a, S_T1, S_T0, 205, 1100)
        a(f"s_mul_i32 s{S_T2}, s{S_T1}, 205")
        a(f"s_sub_u32 s{S_T2}, s{S_T0}, s{S_T2}")
        a(f"s_min_u32 s{S_T2}, s{S_T2}, 201")
        a(f"s_mul_i32 s{S_T2}, s{S_T2}, 1216")
        a(f"s_lshl_b32 s{S_T1}, s{S_T1}, 1")
        a(f"s_add_u32 s{S_T1}, s{S_T1}, 1")
        a(f"s_mul_i32 s{S_T1}, s{S_T1}, 245760")
        a(f"s_add_u32 s{S_T1}, s{S_T1}, s{S_T2}")
        a(f"s_add_u32 s100, s{ptr(KA_WQKV)}, s{S_T1}")
        a(f"s_addc_u32 s101, s{ptr(KA_WQKV)+1}, 0")
    def spf_list(self):
        L_ = []
        for i in range(19): L_.append(("s[100:101]", 64*i))
        for k in (1, 3, 5, 7, 9):
            for r in range(2):
                for h in range(2): L_.append(("s[98:99]", r*1280 + k*128 + h*64))
        return L_
    def mid_prefetch(self, a, s):
        if SPF:
            if s == 0: self.spf_setup(a)
            L_ = self.spf_list()
            per = SPF
            if s >= 1 and s <= 4:
                for base, off in L_[per*(s-1): per*s]:
                    a(f"s_load_dword s3, {base}, {off}")
            if SPF2 and s >= 5:
                if s == 5:
                    a(f"s_lshl_b32 s{S_T0}, s2, 2")
                    a(f"s_add_u32 s{S_T0}, s{S_T0}, s{S_W}")
                    a(f"s_mul_i32 s{S_T1}, s{S_T0}, 800")
                    a(f"s_add_u32 s98, s{ptr(KA_WO)}, s{S_T1}")
                    a(f"s_addc_u32 s99, s{ptr(KA_WO)+1}, 0")
                    a(f"s_mul_i32 s{S_T1}, s{S_T0}, 2160")
                    a(f"s_add_u32 s100, s{ptr(SPF2)}, s{S_T1}")
                    a(f"s_addc_u32 s101, s{ptr(SPF2)+1}, 0")
                L2 = [("s[98:99]", 64*i) for i in range(13)] + [("s[100:101]", 64*i) for i in range(34)]
                for base, off in L2[10*(s-5): 10*(s-4)]:
                    a(f"s_load_dword s3, {base}, {off}")
        if PH0 and s == 7: return self.ph0_issue(a)
        if s == 9: return l2_issue(a, KA_WO, 1280, D)
    def loader_post_first(self, a):
        pad_init(a, self, 78, 1, 79)
        self.att_setup(a)
        return 0
    def att_setup(self, a):
        QT, QROW = self.QT, self.QROW
        a("v_and_b32 v3, 3, v2             ; i")
        a("v_bfe_u32 v4, v2, 2, 2          ; head")
        a("v_lshrrev_b32 v5, 4, v2         ; grp")
        a("v_lshrrev_b32 v6, 1, v5")
        a("v_lshlrev_b32 v6, 3, v6")
        a("v_and_b32 v7, 1, v5")
        a("v_add_u32 v6, v6, v7")
        a(f"s_lshl_b32 s{S_T0}, s{S_W}, 4")
        a(f"v_add_u32 v6, s{S_T0}, v6")
        a("v_lshlrev_b32 v7, 1, v3")
        a("v_add_u32 v7, v6, v7            ; rb + 2i")
        a(f"v_mul_u32_u24 v8, {QROW}, v7")
        a("v_mul_u32_u24 v9, 40, v4")
        a("v_add_u32 v8, v8, v9")
        a(f"v_add_u32 v144, {QT + 14*QROW}, v8")
        a(f"v_add_u32 v145, {QT + 160}, v8")
        a("v_cmp_eq_u32 vcc, 3, v3")
        a(f"v_mov_b32 v10, {16*QROW}")
        a(f"v_mov_b32 v11, {14*QROW}")
        a("v_cndmask_b32 v10, v10, v11, vcc")
        a("v_add_u32 v146, v145, v10")
        a(f"v_mul_u32_u24 v12, {self.OROW}, v7")
        a("v_add_u32 v12, v12, v9")
        a(f"v_add_u32 v118, {self.OT}, v12")
        a("v_lshlrev_b32 v12, 1, v4               ; 2r")
        a("v_add_u32 v12, v6, v12")
        a(f"v_mul_u32_u24 v12, {QROW}, v12")
        a("v_mul_u32_u24 v13, 40, v3")
        a("v_add_u32 v12, v12, v13")
        a(f"v_add_u32 v147, {QT + 320}, v12")
        a("v_cmp_eq_u32 vcc, 3, v4")
        a(f"v_mov_b32 v10, {16*QROW}")
        a("s_nop 0")
        a("v_cndmask_b32 v10, v10, v11, vcc")
        a("v_add_u32 v119, v147, v10")
        a(f"v_mov_b32 v12, {hex(f2u(-1e30))}")
        a("v_mov_b32 v13, 0")
        a(f"v_add_u32 v14, s{S_R0}, v6")
        for m in range(12):
            a(f"v_sub_u32 v15, {m}, v3")
            a("v_cmp_gt_u32 vcc, 8, v15")
            a(f"v_add_u32 v16, {2*m}, v14")
            a("v_cmp_le_i32 s[4:5], 0, v16")
            a("s_nop 1")
            a("s_and_b64 vcc, vcc, s[4:5]")
            a(f"v_cndmask_b32 v{120+m}, v12, v13, vcc")
        self.store_addr_setup(a)
    def ph0_produce(self, a):
        srd(a, SRD_AUX, ptr(KA_X), 0, S_TOK*D*2)
        srd(a, SRD_ST, ptr(KA_WS), WS_ST1, S_TOK*16)
        a(f"s_lshl_b32 s{S_T0}, s{S_RT}, 6")
        a(f"s_lshl_b32 s{S_T1}, s{S_CT}, 3")
        a(f"s_add_u32 s{S_T0}, s{S_T0}, s{S_T1}")
        a(f"s_lshl_b32 s{S_T1}, s{S_WAVE}, 1")
        a(f"s_add_u32 s{S_T0}, s{S_T0}, s{S_T1}")
        a("v_lshrrev_b32 v5, 5, v2")
        a(f"v_add_u32 v5, s{S_T0}, v5            ; row")
        a("v_and_b32 v6, 31, v2                  ; j")
        a("v_mul_u32_u24 v7, 1280, v5")
        a("v_lshl_add_u32 v7, v6, 4, v7")
        a("v_mov_b32 v30, 0x80000000")
        a("v_cmp_gt_u32 vcc, 16, v6")
        a("v_add_u32 v31, 1024, v7")
        a(f"buffer_load_dwordx4 v[32:35], v7, s[{SRD_AUX}:{SRD_AUX+3}], 0 offen")
        a("v_cndmask_b32 v31, v30, v31, vcc")
        a(f"buffer_load_dwordx4 v[36:39], v7, s[{SRD_AUX}:{SRD_AUX+3}], 0 offen offset:512")
        a(f"buffer_load_dwordx4 v[40:43], v31, s[{SRD_AUX}:{SRD_AUX+3}], 0 offen")
        a("s_waitcnt vmcnt(0)")
        a(f"v_mov_b32 v48, {hex(ONES)}")
        for r in (49, 50, 51, 52): a(f"v_mov_b32 v{r}, 0")
        for d in range(12):
            s_, q_ = (49, 50) if d & 1 == 0 else (51, 52)
            a(f"v_dot2_f32_bf16 v{s_}, v{32+d}, v48, v{s_}")
            a(f"v_dot2_f32_bf16 v{q_}, v{32+d}, v{32+d}, v{q_}")
        a("s_nop 2")
        a("v_add_f32 v44, v49, v51")
        a("v_add_f32 v45, v50, v52")
        a("s_nop 1")
        for dpp in ("quad_perm:[1,0,3,2]", "quad_perm:[2,3,0,1]", "row_half_mirror", "row_mirror"):
            a(f"v_add_f32_dpp v44, v44, v44 {dpp} row_mask:0xf bank_mask:0xf")
            a(f"v_add_f32_dpp v45, v45, v45 {dpp} row_mask:0xf bank_mask:0xf")
            a("s_nop 0")
        a("v_mov_b32 v49, v44"); a("v_mov_b32 v50, v45")
        a("s_nop 1")
        a("v_permlane16_swap_b32 v44, v49"); a("v_permlane16_swap_b32 v45, v50")
        a("s_nop 1")
        a("v_add_f32 v44, v44, v49"); a("v_add_f32 v45, v45, v50")
        a(f"v_mul_f32 v44, {hex(f2u(1.0/D))}, v44")
        a(f"v_mul_f32 v45, {hex(f2u(1.0/D))}, v45")
        a("v_fma_f32 v45, -v44, v44, v45")
        a(f"v_add_f32 v45, {hex(f2u(1e-5))}, v45")
        a("v_rsq_f32 v45, v45")
        a("v_mov_b32 v112, v44")
        a("v_mov_b32 v113, v45")
        a("v_lshlrev_b32 v116, 4, v5              ; row*16")
        a("v_mov_b32 v117, 0")
        dbg_srd(a)
    def ph0_after_b0(self, a):
        a(f"buffer_load_dwordx2 v[114:115], v117, s[80:83], 0 offen{SC1}")
    def ph0_publish(self, a):
        loop = a.new("p0n"); done = a.new("p0d"); chk = a.new("p0h")
        a(f"s_mov_b32 s{S_T0}, 0x40000")
        a(f"s_branch {chk}")
        a.label(loop)
        a("s_sleep 4")
        a(f"buffer_load_dwordx2 v[114:115], v117, s[80:83], 0 offen{SC1}")
        a.label(chk)
        a("s_waitcnt vmcnt(0)")
        a(f"v_readfirstlane_b32 s{S_NONCE}, v114")
        a(f"v_readfirstlane_b32 s{S_NONCE+1}, v115")
        a("s_nop 3")
        a(f"s_cmp_lg_u32 s{S_NONCE}, 0")
        a(f"s_cbranch_scc1 {done}")
        a(f"s_sub_u32 s{S_T0}, s{S_T0}, 1")
        a(f"s_cmp_lg_u32 s{S_T0}, 0")
        a(f"s_cbranch_scc1 {loop}")
        a.label(done)
        set_exec(a, 1 | (1 << 32))
        a(f"buffer_store_dwordx4 v[112:115], v116, s[{SRD_ST}:{SRD_ST+3}], 0 offen{SC1}")
        a("s_mov_b64 exec, -1")
    def ph0_issue(self, a):
        srd(a, SRD_ST, ptr(KA_WS), WS_ST1, S_TOK*16)
        a(f"s_mov_b32 s{SRD_AUX}, s{ptr(KA_DBG)}")
        a(f"s_and_b32 s{SRD_AUX+1}, s{ptr(KA_DBG)+1}, 0xffff")
        a(f"s_mov_b32 s{SRD_AUX+2}, 0x100")
        a(f"s_mov_b32 s{SRD_AUX+3}, 0x20000")
        a(f"s_lshl_b32 s{S_T0}, s{S_W}, 6")
        a(f"v_add_u32 v62, s{S_T0}, v2")
        a(f"v_add_u32 v63, s{S_R0}, v62")
        a("v_cmp_gt_u32 vcc, 78, v62")
        a("v_cmp_le_i32 s[4:5], 0, v63")
        a("v_lshlrev_b32 v63, 4, v63")
        a("v_mov_b32 v64, 0x80000000")
        a("s_and_b64 s[98:99], vcc, s[4:5]")
        a("v_mov_b32 v65, 0")
        a("v_cndmask_b32 v63, v64, v63, s[98:99]")
        a(f"buffer_load_dwordx2 v[60:61], v65, s[{SRD_AUX}:{SRD_AUX+3}], 0 offen{SC1}")
        a(f"buffer_load_dwordx4 v[56:59], v63, s[{SRD_ST}:{SRD_ST+3}], 0 offen{SC1}")
        return 2
    def ph0_check(self, a):
        loop = a.new("p0c"); ok = a.new("p0k")
        a(f"s_mov_b32 s{S_T2}, 0x10000")
        a.label(loop)
        a("v_cmp_ne_u64 vcc, v[58:59], v[60:61]")
        a("s_nop 1")
        a("s_and_b64 vcc, vcc, s[98:99]")
        a(f"s_cbranch_vccz {ok}")
        a(f"buffer_load_dwordx2 v[60:61], v65, s[{SRD_AUX}:{SRD_AUX+3}], 0 offen{SC1}")
        a(f"buffer_load_dwordx4 v[56:59], v63, s[{SRD_ST}:{SRD_ST+3}], 0 offen{SC1}")
        a("s_waitcnt vmcnt(0)")
        a(f"s_sub_u32 s{S_T2}, s{S_T2}, 1")
        a(f"s_cmp_lg_u32 s{S_T2}, 0")
        a(f"s_cbranch_scc1 {loop}")
        a.label(ok)
        a("v_lshlrev_b32 v62, 3, v62")
        a(f"v_add_u32 v62, {self.LDS_STP}, v62")
        a(f"s_cmp_lt_u32 s{S_W}, 2")
        a("s_cselect_b32 exec_lo, -1, 0")
        a(f"s_cmp_eq_u32 s{S_W}, 0")
        a("s_cselect_b32 exec_hi, -1, 0")
        a(f"s_cmp_eq_u32 s{S_W}, 1")
        a("s_cselect_b32 exec_lo, 0xffff, exec_lo")
        sk = a.new("p0w")
        a(f"s_cbranch_execz {sk}")
        a("ds_write_b64 v62, v[56:57]")
        a.label(sk)
        a("s_mov_b64 exec, -1")
        a("s_waitcnt lgkmcnt(0)")
    def post_wait(self, a, s):
        if PH0 and s == 9: self.ph0_check(a)
    def store_addr_setup(self, a, regs=(148, 149, 156, 157), tmp=3):
        lm, lt, gm, gt = regs
        t0, t1, t2 = tmp, tmp + 1, tmp + 2
        a(f"v_lshrrev_b32 v{t0}, 3, v2             ; r8")
        a(f"v_and_b32 v{t1}, 7, v2                 ; p")
        a(f"s_lshl_b32 s{S_T0}, s{S_WAVE}, 3")
        a(f"v_add_u32 v{t2}, s{S_T0}, v{t0}")
        a(f"v_mul_u32_u24 v{lm}, {self.OROW}, v{t2}")
        a(f"v_lshl_add_u32 v{lm}, v{t1}, 4, v{lm}")
        a(f"v_add_u32 v{lm}, {self.OT}, v{lm}")
        a(f"s_add_u32 s{S_T0}, s{S_R0}, 14          ; T0")
        a(f"v_add_u32 v{gm}, s{S_T0}, v{t2}")
        a(f"v_lshlrev_b32 v{gm}, 10, v{gm}")
        a(f"v_lshl_add_u32 v{gm}, v{t1}, 4, v{gm}")
        a(f"s_lshl_b32 s{S_T1}, s{S_CT}, 7          ; hg*128")
        a(f"v_add_u32 v{gm}, s{S_T1}, v{gm}")
        a(f"v_lshrrev_b32 v{t0}, 1, v{t1}")
        a(f"v_lshl_add_u32 v{t0}, v{t2}, 2, v{t0}   ; token")
        a(f"v_mul_u32_u24 v{lt}, {self.OROW}, v{t0}")
        a(f"v_and_b32 v{t0}, 1, v{t1}")
        a(f"v_lshl_add_u32 v{lt}, v{t0}, 4, v{lt}")
        a(f"v_add_u32 v{lt}, {self.OT + 128}, v{lt}")
        a(f"s_lshr_b32 s{S_T0}, s{S_T0}, 2          ; T0/4")
        a(f"v_add_u32 v{gt}, s{S_T0}, v{t2}")
        a(f"v_lshlrev_b32 v{gt}, 10, v{gt}")
        a(f"v_lshl_add_u32 v{gt}, v{t1}, 4, v{gt}")
        a(f"s_add_u32 s{S_T1}, s{S_T1}, 0x200000")
        a(f"v_add_u32 v{gt}, s{S_T1}, v{gt}")
    def o_stores(self, a):
        a(f"ds_read_b128 v[20:23], v148")
        sk = a.new("ost")
        a(f"s_cmp_ge_u32 s{S_WAVE}, 2")
        a(f"s_cbranch_scc1 {sk}")
        a(f"ds_read_b128 v[24:27], v149")
        a("s_waitcnt lgkmcnt(0)")
        a(f"buffer_store_dwordx4 v[24:27], v157, s[{SRD_OUT}:{SRD_OUT+3}], 0 offen{OSC}")
        a.label(sk)
        a("s_waitcnt lgkmcnt(0)")
        a(f"buffer_store_dwordx4 v[20:23], v156, s[{SRD_OUT}:{SRD_OUT+3}], 0 offen{OSC}")
    def loader_fused_tail(self, a):
        l2_setup(a, "p3", 243, 64, KA_WG, D*F*2, 3456, D)
        if not PH0: a("s_barrier      ; E1")
        l2_issue(a, KA_WG, 3456, D)
        a("s_barrier")
        a.label("L_att_start")
        if 'attprof' in EXP: stamp(a, 1)
        Q = 16; KR = 32; VR = 62; SC = 92; BIAS = 120; PB = 104
        QROW = self.QROW
        for dg in range(5):
            a(f"ds_read_b64 v[{Q+2*dg}:{Q+2*dg+1}], v144 offset:{8*dg}")
        for kb in range(3):
            for dg in range(5):
                r = KR + 2*(5*kb + dg)
                if kb < 2: a(f"ds_read_b64 v[{r}:{r+1}], v145 offset:{8*QROW*kb + 8*dg}")
                else: a(f"ds_read_b64 v[{r}:{r+1}], v146 offset:{8*dg}")
        scale = (D // 32) ** -0.5
        c1 = scale * 1.4426950408889634
        a(f"s_mov_b32 s{S_T2}, {hex(f2u(c1))}")
        a("s_waitcnt lgkmcnt(0)")
        for kb in range(3):
            for dg in range(5):
                r = VR + 2*(5*kb + dg)
                if kb < 2: a(f"ds_read_b64_tr_b16 v[{r}:{r+1}], v147 offset:{8*QROW*kb + 8*dg}")
                else: a(f"ds_read_b64_tr_b16 v[{r}:{r+1}], v119 offset:{8*dg}")
        for dg in range(5):
            for kb in range(3):
                r = KR + 2*(5*kb + dg); sc = SC + 4*kb
                c = "0" if dg == 0 else f"v[{sc}:{sc+3}]"
                a(f"v_mfma_f32_4x4x4_16b_bf16 v[{sc}:{sc+3}], v[{r}:{r+1}], v[{Q+2*dg}:{Q+2*dg+1}], {c}")
        a("s_nop 4")
        for m in range(12):
            a(f"v_fma_f32 v{SC+m}, v{SC+m}, s{S_T2}, v{BIAS+m}")
        a(f"v_max3_f32 v14, v{SC}, v{SC+1}, v{SC+2}")
        a(f"v_max3_f32 v15, v{SC+3}, v{SC+4}, v{SC+5}")
        a(f"v_max3_f32 v14, v14, v{SC+6}, v{SC+7}")
        a(f"v_max3_f32 v15, v15, v{SC+8}, v{SC+9}")
        a(f"v_max3_f32 v14, v14, v{SC+10}, v{SC+11}")
        a("v_max_f32 v14, v14, v15")
        for m in range(12):
            a(f"v_sub_f32 v{SC+m}, v{SC+m}, v14")
        for m in range(12):
            a(f"v_exp_f32 v{SC+m}, v{SC+m}")
        a(f"v_add_f32 v14, v{SC}, v{SC+1}")
        a(f"v_add_f32 v15, v{SC+2}, v{SC+3}")
        for m in range(4, 12, 2):
            a(f"v_add_f32 v14, v14, v{SC+m}")
            a(f"v_add_f32 v15, v15, v{SC+m+1}")
        a("v_add_f32 v14, v14, v15")
        a("v_rcp_f32 v14, v14")
        a("s_nop 0")
        for m in range(12):
            a(f"v_mul_f32 v{SC+m}, v{SC+m}, v14")
        for m in range(0, 12, 2):
            a(f"v_cvt_pk_bf16_f32 v{PB+m//2}, v{SC+m}, v{SC+m+1}")
        a("s_waitcnt lgkmcnt(0)")
        a("s_nop 0")
        OA = 32
        for kb in range(3):
            for dg in range(5):
                r = VR + 2*(5*kb + dg); o = OA + 4*dg
                c = "0" if kb == 0 else f"v[{o}:{o+3}]"
                a(f"v_mfma_f32_4x4x4_16b_bf16 v[{o}:{o+3}], v[{r}:{r+1}], v[{PB+2*kb}:{PB+2*kb+1}], {c}")
        a("s_nop 5")
        for dg in range(5):
            o = OA + 4*dg
            a(f"v_cvt_pk_bf16_f32 v{Q+2*dg}, v{o}, v{o+1}")
            a(f"v_cvt_pk_bf16_f32 v{Q+2*dg+1}, v{o+2}, v{o+3}")
            a(f"ds_write_b64 v118, v[{Q+2*dg}:{Q+2*dg+1}] offset:{8*dg}")
        a("s_waitcnt lgkmcnt(0)")
        if 'attprof' in EXP: stamp(a, 2)
        dry_exit(a, "L_att_ret")
        a("s_barrier")
        self.o_stores(a)
        self.set_fidx(a)
    def consumer_setup(self, a):
        cons_lane(a)
        x_addr_const(a, self.vXc, None)
        a("v_lshrrev_b32 v5, 2, v3        ; r")
        a("v_lshl_add_u32 v5, v4, 3, v5   ; 8g + r")
        a("v_mul_u32_u24 v5, 160, v5")
        a("v_and_b32 v6, 3, v3")
        a("v_lshl_add_u32 v5, v6, 3, v5")
        for j in range(4):
            a(f"s_lshl_b32 s{S_T0}, s{S_WAVE}, 2")
            a(f"s_add_u32 s{S_T0}, s{S_T0}, {j}")
            a(f"s_min_u32 s{S_T0}, s{S_T0}, 14")
            divc(a, S_T1, S_T0, 5)
            a(f"s_mul_i32 s{S_T2}, s{S_T1}, 5")
            a(f"s_sub_u32 s{S_T2}, s{S_T0}, s{S_T2}       ; f%5")
            a(f"s_lshl_b32 s{S_T2}, s{S_T2}, 5")
            a(f"s_mul_i32 s{S_T3}, s{S_T1}, 10240")
            a(f"s_add_u32 s{S_T3}, s{S_T3}, s{S_T2}")
            a(f"s_add_u32 s{S_T3}, s{S_T3}, {self.ABYTES}")
            a(f"v_add_u32 v{self.vWc[j]}, s{S_T3}, v5")
            a(f"s_mul_i32 s{S_T3}, s{S_T1}, 160")
            a(f"s_add_u32 s{S_T3}, s{S_T3}, s{S_T2}")
            a(f"s_add_u32 s{S_T3}, s{S_T3}, {self.QT}")
            a(f"v_mul_u32_u24 v6, {self.QROW}, v3")
            a("v_lshl_add_u32 v6, v4, 3, v6")
            a(f"v_add_u32 v{20+j}, s{S_T3}, v6")
        if not PH0:
            for r in range(4): a(f"v_mov_b32 v{self.VONES+r}, {hex(ONES)}")
            for r in range(40): a(f"v_mov_b32 v{self.GRAM+r}, 0")
        a("v_lshlrev_b32 v25, 3, v3")
        a(f"v_add_u32 v25, {self.LDS_STP}, v25")
        a(f"s_mul_i32 s{S_T0}, s{S_WAVE}, 640")
        a(f"v_add_u32 v24, s{S_T0}, v25")
        a(f"s_mov_b32 s{S_N1}, 0")
        self.store_addr_setup_c(a)
        NW = 4
        self.wlist = [(self.vW[j], 0) for j in range(4)]
        self.wstep = (5120, 640)
    def store_addr_setup_c(self, a):
        self.store_addr_setup(a, regs=(26, 27, 28, 29), tmp=5)
    def addr_update(self):
        r = [f"v_add_u32 v{self.vXa}, s{S_SLOT}, v{self.vXc}"]
        r += [f"v_add_u32 v{self.vW[j]}, s{S_SLOT}, v{self.vWc[j]}" for j in range(4)]
        r += [f"v_xor_b32 v{self.vXb}, 64, v{self.vXa}"]
        return r
    def stats_mfmas(self, xregs):
        m = []
        for x in range(5):
            xa = xregs[x]
            g = self.GRAM + 4*x; sm = self.SUMA + 4*x
            m.append(f"v_mfma_f32_16x16x32_bf16 v[{g}:{g+3}], {xa}, {xa}, v[{g}:{g+3}]")
            m.append(f"v_mfma_f32_16x16x32_bf16 v[{sm}:{sm+3}], v[{self.VONES}:{self.VONES+3}], {xa}, v[{sm}:{sm+3}]")
        return m
    def epilogue_stats(self, a):
        for i_, m_ in enumerate((0x22222222, 0x44444444, 0x88888888)):
            a(f"s_mov_b32 s{80+2*i_}, {hex(m_)}"); a(f"s_mov_b32 s{81+2*i_}, {hex(m_)}")
        for x in range(5):
            g = self.GRAM + 4*x
            a(f"v_cndmask_b32 v{g+1}, v{g}, v{g+1}, s[80:81]")
            a(f"v_cndmask_b32 v{g+1}, v{g+1}, v{g+2}, s[82:83]")
            a(f"v_cndmask_b32 v{g+1}, v{g+1}, v{g+3}, s[84:85]")
            a(f"v_mov_b32 v{g}, v{self.SUMA+4*x}")
        mask_exec(a, 0xF | (0xF << 20) | (0xF << 40) | (0xF << 60))
        for x in range(5):
            g = self.GRAM + 4*x
            a(f"ds_write_b64 v24, v[{g}:{g+1}] offset:{128*x}")
        unmask_exec(a)
        CS = 132
        for j in range(4):
            acc = self.ACC + 4*(4*4 + j)
            for r in range(4):
                a(f"v_mov_b32_dpp v{CS+4*j+r}, v{acc+r} row_newbcast:15 row_mask:0xf bank_mask:0xf")
        a("s_waitcnt lgkmcnt(0)")
        dbar(a, "E1")
        if 'attprof' in EXP: stamp(a, 1)
        ST = 8
        TM = 112
        for x in range(5):
            for wv in range(4):
                if x < 5:
                    pass
        for x in range(5):
            base = TM + 4*x if False else None
        regs = {0: 112, 1: 120, 2: 112, 3: 120, 4: 112}
        def rd(x):
            for wv in range(4):
                r = regs[x] + 2*wv
                a(f"ds_read_b64 v[{r}:{r+1}], v25 offset:{640*wv + 128*x}")
        def fin(x):
            r = regs[x]; st = ST + 2*x
            a(f"v_pk_add_f32 v[{r}:{r+1}], v[{r}:{r+1}], v[{r+2}:{r+3}]")
            a(f"v_pk_add_f32 v[{r+4}:{r+5}], v[{r+4}:{r+5}], v[{r+6}:{r+7}]")
            a(f"v_pk_add_f32 v[{st}:{st+1}], v[{r}:{r+1}], v[{r+4}:{r+5}]")
            a(f"v_mul_f32 v{st}, {hex(f2u(1.0/D))}, v{st}")
            a(f"v_mul_f32 v{st+1}, {hex(f2u(1.0/D))}, v{st+1}")
            a(f"v_fma_f32 v{st+1}, -v{st}, v{st}, v{st+1}")
            a(f"v_add_f32 v{st+1}, {hex(f2u(1e-5))}, v{st+1}")
            a(f"v_rsq_f32 v{st+1}, v{st+1}")
        rd(0); rd(1)
        a("s_waitcnt lgkmcnt(4)"); fin(0); rd(2)
        a("s_waitcnt lgkmcnt(4)"); fin(1); rd(3)
        a("s_waitcnt lgkmcnt(4)"); fin(2); rd(4)
        a("s_waitcnt lgkmcnt(4)"); fin(3)
        a("s_waitcnt lgkmcnt(0)"); fin(4)
        a("s_nop 0")
        return CS, ST
    def epilogue(self, a):
        a.label("L_epi1_start")
        if PH0:
            CS = 132; ST = 8
            for x in range(5):
                a(f"ds_read_b64 v[{ST+2*x}:{ST+2*x+1}], v25 offset:{128*x}")
            for j in range(4):
                acc = self.ACC + 4*(4*4 + j)
                for r in range(4):
                    a(f"v_mov_b32_dpp v{CS+4*j+r}, v{acc+r} row_newbcast:15 row_mask:0xf bank_mask:0xf")
            a("s_waitcnt lgkmcnt(0)")
        else:
            CS, ST = self.epilogue_stats(a)
        for x in range(5):
            st = ST + 2*x
            for j in range(4):
                acc = self.ACC + 4*(4*x + j)
                for hh in (0, 2):
                    a(f"v_pk_fma_f32 v[{acc+hh}:{acc+hh+1}], v[{CS+4*j+hh}:{CS+4*j+hh+1}], v[{st}:{st+1}], v[{acc+hh}:{acc+hh+1}] op_sel_hi:[1,0,1] neg_lo:[0,1,0] neg_hi:[0,1,0]")
                for hh in (0, 2):
                    a(f"v_pk_mul_f32 v[{acc+hh}:{acc+hh+1}], v[{acc+hh}:{acc+hh+1}], v[{st}:{st+1}] op_sel:[0,1] op_sel_hi:[1,1]")
                a(f"v_cvt_pk_bf16_f32 v{acc}, v{acc}, v{acc+1}")
                a(f"v_cvt_pk_bf16_f32 v{acc+1}, v{acc+2}, v{acc+3}")
                a(f"ds_write_b64 v{20+j}, v[{acc}:{acc+1}] offset:{16*x*self.QROW}")
        a("s_waitcnt lgkmcnt(0)")
        dry_exit(a, "L_epi1_ret")
        a("s_barrier")
        a("s_barrier")
        a(f"ds_read_b128 v[32:35], v26")
        sk = a.new("ost")
        a(f"s_cmp_ge_u32 s{S_WAVE}, 2")
        a(f"s_cbranch_scc1 {sk}")
        a(f"ds_read_b128 v[36:39], v27")
        a("s_waitcnt lgkmcnt(0)")
        a(f"buffer_store_dwordx4 v[36:39], v29, s[{SRD_OUT}:{SRD_OUT+3}], 0 offen{OSC}")
        a.label(sk)
        a("s_waitcnt lgkmcnt(0)")
        a(f"buffer_store_dwordx4 v[32:35], v28, s[{SRD_OUT}:{SRD_OUT+3}], 0 offen{OSC}")
    stream_epi = True

class P24(Phase):
    kind = "rm"; NT = 250
    MV = 82; NC = 64; ldb = 1280; ldo = 1280
    ABYTES = 12288; STAGE = 20480; NS = 7
    NXMAX = 3; RPM = 2
    modeS = True; NACC = 24
    def fragW(self, buf, kk, wi): return ('a', 40*buf + 8*kk + 4*wi)
    def fragX(self, buf, kk, xi): return ('a', 40*buf + 16 + 12*kk + 4*xi)
    scA = SC1
    panel_coloff = [0]; panel_srd = [SRD_B0]
    TBASE = 0
    Ains = [None, None, 'skip']
    Bins = [(0, 0), (0, 4)]
    @property
    def prefetchB(self): return PB2 if self.which == 2 else PB4
    @property
    def dual(self): return (DUAL2 if self.which == 2 else DUAL4) if DUAL else None
    def __init__(self, which):
        self.which = which
        if which == 2:
            self.key = 'p2'; self.lda = 1024 if FUSE else 1280; self.S = 10; self.rot = P2ROT
            self.oprime = FUSE
            self.kind = P2MAP
        else:
            self.key = 'p4'; self.lda = 3456; self.S = 27; self.rot = P4ROT; self.extraB = 1
            self.kind = P4MAP
        assert (self.S - 1) % self.NS != 0
        self.vXc, self.vWc = 8, 9
        self.vXa, self.vXb = 10, 11
        self.vW = [12, 13]
        self.xlist = [(self.vXa, self.vXb, 2048*x) for x in range(3)]
        self.wlist = [(self.vW[f], 0 if self.dual else self.ABYTES) for f in range(2)]
        self.ACC = 32
        self.mf = [(x, f, self.ACC + 4*(2*x + f)) for x in range(3) for f in range(2)]
    def l2_prep(self, a):
        if self.which == 2: l2_setup(a, "p3", 243, 64, KA_WU, D*F*2, 3456, D)
    @property
    def gate(self): return GATE4 if (GATE and self.which == 4) else None
    def mid_prefetch(self, a, s):
        if self.which == 2 and s == 8: return l2_issue(a, KA_WU, 3456, D)
    def mask_setup(self, a):
        a(f"s_cmp_lt_u32 s{S_W}, 2")
        a(f"s_cselect_b32 s{S_MASK}, -1, 0xffff")
        a(f"s_cselect_b32 s{S_MASK+1}, -1, 0")
        a(f"s_cmp_eq_u32 s{S_W}, 3")
        a(f"s_cselect_b32 s{S_MASK}, 0, s{S_MASK}")
    def build_srds(self, a, role):
        if self.which == 2:
            if role == 'l':
                srd(a, SRD_A, ptr(KA_WS), WS_O, 0x280000 if FUSE else S_TOK*D*2)
                srd(a, SRD_B0, ptr(KA_WO), 0, D*D*2)
            srd(a, SRD_OUT, ptr(KA_WS), WS_H, S_TOK*D*2)
            srd(a, SRD_AUX, ptr(KA_X), 0, S_TOK*D*2)
            srd(a, SRD_ST, ptr(KA_WS), WS_ST, 250*1536)
        else:
            if role == 'l':
                srd(a, SRD_A, ptr(KA_WS), WS_HH, S_TOK*F*2)
                srd(a, SRD_B0, ptr(KA_WD), 0, F*D*2)
            srd(a, SRD_OUT, ptr(KA_OUT), 0, S_TOK*D*2)
            srd(a, SRD_AUX, ptr(KA_WS), WS_H, S_TOK*D*2)
    def dep_range(self, a):
        if self.which == 2:
            sh = 6 if FUSE else 4
            a(f"s_lshr_b32 s{S_T0}, s{S_R0}, {sh}")
            a(f"s_sub_u32 s{S_T1}, s{S_REND}, 1")
            a(f"s_lshr_b32 s{S_T1}, s{S_T1}, {sh}")
        else:
            sdiv(a, S_T0, S_R0, 228, 2100)
            a(f"s_sub_u32 s{S_T1}, s{S_REND}, 1")
            sdiv(a, S_T1, S_T1, 228, 2100)
    def deps_first(self, a):
        first_ks(a, self)
        if COMB and not self.gate:
            self.dep_range(a)
            def member(a):
                a(f"v_cmp_eq_u32 vcc, s{S_K}, v141")
                a(f"v_cmp_eq_u32 s[82:83], s{S_KB}, v141")
                a("s_nop 1")
                a("s_or_b64 vcc, vcc, s[82:83]")
            W = 8 if self.which == 2 else 27
            poll_comb(a, S_T0, S_T1, W, 0x8000 if self.which == 2 else 0x18000, member)
            return
        if self.which == 2 and FUSE:
            for src, dst in ((S_K, S_T2), (S_KB, S_T3)):
                a(f"s_lshl_b32 s{dst}, 1, s{src}")
                a(f"s_sub_u32 s{S_T4}, s{src}, 8")
                a(f"s_lshl_b32 s{S_T4}, s{S_T4}, 2")
                a(f"s_lshl_b32 s{S_T4}, 15, s{S_T4}")
                a(f"s_cmp_ge_u32 s{src}, 8")
                a(f"s_cselect_b32 s{dst}, s{S_T4}, s{dst}")
            a(f"s_or_b32 s{S_T2}, s{S_T2}, s{S_T3}")
            self.dep_range(a)
            skip = a.new("pollskip")
            a(f"s_cmp_eq_u32 s{S_WAVE}, 0")
            a(f"s_cbranch_scc0 {skip}")
            a("v_and_b32 v141, 7, v2                 ; group j")
            a(f"v_lshrrev_b32 v142, v141, s{S_T2}") if False else None
            a(f"v_mov_b32 v142, s{S_T2}")
            a("v_lshrrev_b32 v142, v141, v142")
            a("v_and_b32 v142, 1, v142")
            a("v_lshrrev_b32 v140, 3, v2")
            a(f"v_add_u32 v140, s{S_T0}, v140")
            a(f"v_cmp_ge_u32 vcc, s{S_T1}, v140")
            a("v_cmp_eq_u32 s[82:83], 1, v142")
            a("v_lshl_add_u32 v140, v140, 3, v141")
            a("v_lshlrev_b32 v140, 7, v140")
            a("v_add_u32 v140, 0x8000, v140")
            a("s_and_b64 vcc, vcc, s[82:83]")
            poll_core(a)
            a.label(skip)
            return
        if self.which == 2:
            for r in (S_K, S_KB):
                a(f"s_cmp_ge_u32 s{r}, 5")
                a(f"s_cselect_b32 s{r}, 1, 0")
        self.dep_range(a)
        if self.gate: poll_first_g(a, S_T0, S_T1, 27, S_K, self.S, self.gate[0], 0x18000)
        else: poll_first(a, S_T0, S_T1, 2 if self.which == 2 else 27, S_K, S_KB, 0x8000 if self.which == 2 else 0x18000)
    def deps(self, a, wave=0):
        W = (8 if FUSE else 2) if self.which == 2 else 27
        self.dep_range(a)
        a(f"s_mul_i32 s{S_T0}, s{S_T0}, {W}")
        a(f"s_add_u32 s{S_T1}, s{S_T1}, 1")
        a(f"s_mul_i32 s{S_T1}, s{S_T1}, {W}")
        poll(a, S_T0, S_T1, 0x8000 if self.which == 2 else 0x18000, wave)
    def set_fidx(self, a):
        if self.which == 2:
            a(f"s_mul_i32 s{S_FIDX}, s{S_RT}, 10")
            a(f"s_add_u32 s{S_FIDX}, s{S_FIDX}, s{S_CT}")
            a(f"s_lshl_b32 s{S_FIDX}, s{S_FIDX}, 7")
            a(f"s_add_u32 s{S_FIDX}, s{S_FIDX}, 0x10000")
        else:
            a(f"s_mov_b32 s{S_FIDX}, -1")
    def loader_post_first(self, a):
        if self.dual:
            class Q: pass
            q = Q(); q.NS = self.dual[0]; q.STAGE = 12288
            pad_init(a, q, 82, 14, None)
        else:
            pad_init(a, self, 82, 14, None)
        return 0
    def consumer_setup(self, a):
        cons_lane(a)
        a(f"s_lshr_b32 s{S_I}, s{S_WAVE}, 1")
        a(f"s_and_b32 s{S_J}, s{S_WAVE}, 1")
        a(f"s_mul_i32 s{S_T1}, s{S_I}, 48")
        x_addr_const(a, self.vXc, S_T1)
        w_addr_const(a, self.vWc)
        a(f"s_lshl_b32 s{S_T0}, s{S_J}, 6      ; f0 = 2j -> xor 64j")
        a(f"v_xor_b32 v{self.vWc}, s{S_T0}, v{self.vWc}")
        t_write_addr(a, 17, self.TBASE)
        a(f"s_mul_i32 s{S_T0}, s{S_I}, {48*128}")
        a(f"v_add_u32 v17, s{S_T0}, v17")
        a(f"s_lshl_b32 s{S_T0}, s{S_J}, 6")
        a(f"v_xor_b32 v17, s{S_T0}, v17        ; f0 = 2j")
        a(f"v_xor_b32 v18, 32, v17")
    def addr_update(self):
        if not self.dual: return P1.addr_update(self)
        return [f"v_add_u32 v{self.vXa}, s{S_SLOT}, v{self.vXc}",
                f"v_add_u32 v{self.vW[0]}, s{S_SLOTB}, v{self.vWc}",
                f"v_xor_b32 v{self.vXb}, 64, v{self.vXa}",
                f"v_xor_b32 v{self.vW[1]}, 32, v{self.vW[0]}"]
    def epilogue(self, a):
        for x in range(3):
            for f in range(2):
                acc = self.ACC + 4*(2*x + f)
                a(f"v_cvt_pk_bf16_f32 v{acc}, v{acc}, v{acc+1}")
                a(f"v_cvt_pk_bf16_f32 v{acc+1}, v{acc+2}, v{acc+3}")
                a(f"ds_write_b64 v{17+f}, v[{acc}:{acc+1}] offset:{2048*x}")
    RES = 100
    early_pre = True
    def early_setup(self, a):
        a("v_lshrrev_b32 v112, 3, v2")
        a("v_and_b32 v113, 7, v2")
        a("v_xor_b32 v108, v113, v112")
        a("v_lshlrev_b32 v108, 4, v108")
        a("v_lshl_add_u32 v108, v112, 7, v108")
        a(f"s_lshl_b32 s{S_T0}, s{S_WAVE}, 10")
        a(f"s_add_u32 s{S_T0}, s{S_T0}, {self.TBASE}")
        a(f"v_add_u32 v108, s{S_T0}, v108")
        a(f"s_lshl_b32 s{S_T0}, s{S_WAVE}, 3")
        a(f"s_add_u32 s{S_T0}, s{S_T0}, s{S_R0}")
        a(f"v_add_u32 v111, s{S_T0}, v112")
        a("v_mul_u32_u24 v109, 1280, v111")
        a(f"s_lshl_b32 s{S_T0}, s{S_C0}, 1")
        a("v_lshl_add_u32 v109, v113, 4, v109")
        a(f"v_add_u32 v109, s{S_T0}, v109")
        a(f"v_add_u32 v110, {64*1280}, v109")
        a("v_mov_b32 v114, 0x80000000")
        a(f"v_cmp_gt_u32 vcc, s{S_REND}, v111")
        a(f"v_add_u32 v115, 64, v111")
        a("s_nop 0")
        a("v_cndmask_b32 v109, v114, v109, vcc")
        a(f"v_cmp_gt_u32 vcc, s{S_REND}, v115")
        a("s_nop 1")
        a("v_cndmask_b32 v110, v114, v110, vcc")
        sc = SC1 if self.which == 4 else ""
        a(f"buffer_load_dwordx4 v[{self.RES}:{self.RES+3}], v109, s[{SRD_AUX}:{SRD_AUX+3}], 0 offen{sc}")
        a(f"buffer_load_dwordx4 v[{self.RES+4}:{self.RES+7}], v110, s[{SRD_AUX}:{SRD_AUX+3}], 0 offen{sc}")
        return 2
    def store_fast(self, a):
        sdone = a.new("sdone")
        sc = SC1 if self.which == 2 else OUTSC
        for k in range(2):
            a(f"ds_read_b128 v[{16+4*k}:{19+4*k}], v108 offset:{k*8192}")
        if self.which == 2:
            a(f"v_mov_b32 v26, {hex(ONES)}")
        a(f"s_waitcnt vmcnt(0) lgkmcnt(0)")
        for k in range(2):
            if k == 1:
                a(f"s_cmp_ge_u32 s{S_WAVE}, 3")
                a(f"s_cbranch_scc1 {sdone}")
            T = 16 + 4*k; R = self.RES + 4*k
            for d in range(4):
                a(f"v_lshlrev_b32 v28, 16, v{T+d}")
                a(f"v_and_b32 v29, 0xffff0000, v{T+d}")
                a(f"v_lshlrev_b32 v30, 16, v{R+d}")
                a(f"v_and_b32 v31, 0xffff0000, v{R+d}")
                a(f"v_pk_add_f32 v[28:29], v[28:29], v[30:31]")
                a(f"v_cvt_pk_bf16_f32 v{T+d}, v28, v29")
            a(f"buffer_store_dwordx4 v[{T}:{T+3}], v{109+k}, s[{SRD_OUT}:{SRD_OUT+3}], 0 offen{sc}")
            if self.which == 2:
                a("v_mov_b32 v24, 0"); a("v_mov_b32 v25, 0")
                a("s_nop 0")
                for d in range(4):
                    a(f"v_dot2_f32_bf16 v24, v{T+d}, v26, v24")
                    a(f"v_dot2_f32_bf16 v25, v{T+d}, v{T+d}, v25")
                a("s_nop 2")
                for dpp in ("quad_perm:[1,0,3,2]", "quad_perm:[2,3,0,1]", "row_half_mirror"):
                    a(f"v_add_f32_dpp v24, v24, v24 {dpp} row_mask:0xf bank_mask:0xf")
                    a(f"v_add_f32_dpp v25, v25, v25 {dpp} row_mask:0xf bank_mask:0xf")
                    a("s_nop 0")
                a(f"s_mul_i32 s{S_T0}, s{S_RT}, 10")
                a(f"s_add_u32 s{S_T0}, s{S_T0}, s{S_CT}")
                a(f"s_mul_i32 s{S_T0}, s{S_T0}, 1536")
                a(f"s_lshl_b32 s{S_T1}, s{S_WAVE}, 7")
                a(f"s_add_u32 s{S_T0}, s{S_T0}, s{S_T1}")
                a(f"v_lshrrev_b32 v9, 3, v2")
                a(f"v_lshlrev_b32 v9, 4, v9")
                a(f"v_add_u32 v9, s{S_T0}, v9")
                a("v_mov_b32 v12, v24"); a("v_mov_b32 v13, v25"); a("v_mov_b32 v14, 0"); a("v_mov_b32 v15, 0")
                set_exec(a, 0x0101010101010101)
                a(f"buffer_store_dwordx4 v[12:15], v9, s[{SRD_ST}:{SRD_ST+3}], 0 offen offset:{1024*k}{SC1}")
                a("s_mov_b64 exec, -1")
        a.label(sdone)

class P3(Phase):
    key = 'p3'; NT = 243
    @property
    def kind(self): return P3MAP
    MV = 228; NC = 64; lda = 1280; ldb = 3456; ldo = 3456
    ABYTES = 30720; STAGE = 47104; NS = 3; S = 10
    NXMAX = 8
    @property
    def RPM(self): return RPM3
    has_e1 = True
    scA = SC1
    panel_coloff = [0, 0]; panel_srd = [SRD_B0, SRD_B1]
    LDS_ST = 47104*3; LDS_CS = 47104*3 + 1920
    TBASE = 47104
    @property
    def rot(self): return P3ROT
    Ains = [None]*7 + ['skip']
    Bins = [(0, 0), (0, 4), (1, 0), (1, 4)]
    @property
    def prefetchB(self): return PB3
    def __init__(self):
        self.vXc, self.vXsc, self.vWc = 8, 9, 10
        self.vXa, self.vXb, self.vXsa, self.vXsb = 11, 12, 13, 14
        self.vW = [15, 16]
        self.xlist = [(self.vXa, self.vXb, 2048*x) for x in range(7)] + [(self.vXsa, self.vXsb, 0)]
        G, U = self.ABYTES, self.ABYTES + 8192
        self.wlist = [(self.vW[0], G), (self.vW[0], U), (self.vW[1], G), (self.vW[1], U)]
        self.ACC = 32
        self.mf = []
        acc = self.ACC
        self.accmap = {}
        for x in range(8):
            for wi in range(4):
                if x == 7 and wi >= 2: continue
                self.mf.append((x, wi, acc)); self.accmap[(x, wi)] = acc; acc += 4
        assert acc == 32 + 120
    @property
    def unroll(self): return l2_on(KA_WD)
    def l2_prep(self, a): l2_setup(a, "rm", 250, 64, KA_WD, F*D*2, 1280, F)
    def mid_prefetch(self, a, s):
        if s == 3: return l2_issue(a, KA_WD, 1280, F, 0, 9)
        if s == 6: return l2_issue(a, KA_WD, 1280, F, 9, None)
        if s == 9: return self.stats_loads(a)
    def mask_setup(self, a):
        a(f"s_cmp_eq_u32 s{S_W}, 0")
        a(f"s_cselect_b32 s{S_MASK}, -1, 0")
        a(f"s_mov_b32 s{S_MASK+1}, 0")
    def build_srds(self, a, role):
        if role == 'l':
            srd(a, SRD_A, ptr(KA_WS), WS_H, S_TOK*D*2)
            srd(a, SRD_B0, ptr(KA_WG), 0, D*F*2)
            srd(a, SRD_B1, ptr(KA_WU), 0, D*F*2)
            srd(a, SRD_ST, ptr(KA_WS), WS_ST, 250*1536)
        srd(a, SRD_OUT, ptr(KA_WS), WS_HH, S_TOK*F*2)
    def dep_range(self, a):
        sdiv(a, S_T0, S_R0, 82, 2100)
        a(f"s_sub_u32 s{S_T1}, s{S_REND}, 1")
        sdiv(a, S_T1, S_T1, 82, 2100)
    @property
    def gate(self): return (3, 2) if GATE else None
    def deps_first(self, a):
        first_ks(a, self)
        self.dep_range(a)
        if COMB and not self.gate:
            def member(a):
                a(f"v_cmp_eq_u32 vcc, s{S_K}, v141")
                a(f"v_cmp_eq_u32 s[82:83], s{S_KB}, v141")
                a("s_nop 1")
                a("s_or_b64 vcc, vcc, s[82:83]")
            poll_comb(a, S_T0, S_T1, 10, 0x10000, member)
            return
        if self.gate: poll_first_g(a, S_T0, S_T1, 10, S_K, self.S, self.gate[0], 0x10000)
        else: poll_first(a, S_T0, S_T1, 10, S_K, S_KB, 0x10000)
    def deps(self, a, wave=0):
        self.dep_range(a)
        a(f"s_mul_i32 s{S_T0}, s{S_T0}, 10")
        a(f"s_add_u32 s{S_T1}, s{S_T1}, 1")
        a(f"s_mul_i32 s{S_T1}, s{S_T1}, 10")
        poll(a, S_T0, S_T1, 0x10000, wave)
    def set_fidx(self, a):
        a(f"s_mul_i32 s{S_FIDX}, s{S_RT}, 27")
        a(f"s_add_u32 s{S_FIDX}, s{S_FIDX}, s{S_CT}")
        a(f"s_lshl_b32 s{S_FIDX}, s{S_FIDX}, 7")
        a(f"s_add_u32 s{S_FIDX}, s{S_FIDX}, 0x18000")
    def loader_post_first(self, a):
        pad_init(a, self, 228, 11, 239)
        return 0
    def stats_loads(self, a):
        a(f"s_lshl_b32 s{S_T0}, s{S_W}, 6")
        a(f"v_add_u32 v12, s{S_T0}, v2")
        a(f"v_add_u32 v13, s{S_R0}, v12")
        vdiv(a, 15, 13, 82, 2300)
        a("v_mul_u32_u24 v16, 82, v15")
        a("v_sub_u32 v16, v13, v16")
        a("v_mul_u32_u24 v15, 15360, v15")
        a("v_lshl_add_u32 v13, v16, 4, v15")
        a(f"v_add_u32 v15, s{S_R0}, v12")
        a(f"v_cmp_gt_u32 vcc, s{S_REND}, v15")
        a("v_mov_b32 v14, 0x80000000")
        a("s_nop 0")
        a("v_cndmask_b32 v13, v14, v13, vcc")
        for c in range(10):
            a(f"s_mov_b32 s{S_T0}, {c*1536}")
            a(f"buffer_load_dwordx2 v[{64+2*c}:{65+2*c}], v13, s[{SRD_ST}:{SRD_ST+3}], s{S_T0} offen{SC1}")
        return 10
    def loader_final(self, a):
        a("s_waitcnt vmcnt(0)")
        for c in range(1, 10):
            a(f"v_pk_add_f32 v[64:65], v[64:65], v[{64+2*c}:{65+2*c}]")
        a(f"v_mul_f32 v64, {hex(f2u(1.0/D))}, v64")
        a(f"v_mul_f32 v65, {hex(f2u(1.0/D))}, v65")
        a("v_fma_f32 v65, -v64, v64, v65")
        a(f"v_add_f32 v65, {hex(f2u(1e-5))}, v65")
        a("v_rsq_f32 v65, v65")
        a("v_lshlrev_b32 v12, 3, v12")
        a(f"v_add_u32 v12, {self.LDS_ST}, v12")
        a(f"s_cmp_eq_u32 s{S_W}, 3")
        a(f"s_cselect_b32 exec_hi, 0xffff, -1")
        a("ds_write_b64 v12, v[64:65]")
        a("s_mov_b64 exec, -1")
    def consumer_setup(self, a):
        cons_lane(a)
        a(f"s_lshr_b32 s{S_I}, s{S_WAVE}, 1")
        a(f"s_and_b32 s{S_J}, s{S_WAVE}, 1")
        a(f"s_lshl_b32 s{S_T1}, s{S_I}, 7")
        x_addr_const(a, self.vXc, S_T1)
        x_addr_const(a, self.vXsc, None, 112)
        w_addr_const(a, self.vWc)
        a(f"s_lshl_b32 s{S_T0}, s{S_J}, 1")
        a(f"s_add_u32 s{S_T0}, s{S_T0}, s{S_I}")
        a(f"s_lshl_b32 s{S_T0}, s{S_T0}, 5")
        a(f"v_xor_b32 v{self.vWc}, s{S_T0}, v{self.vWc}")
        a(f"s_lshl_b32 s{S_T0}, s{S_J}, 1")
        a(f"s_add_u32 s{S_T2}, s{S_T0}, s{S_I}     ; f0")
        a(f"s_lshl_b32 s{S_T0}, s{S_T2}, 6")
        a(f"v_lshlrev_b32 v24, 4, v4")
        a(f"v_add_u32 v24, s{S_T0}, v24")
        a(f"v_add_u32 v24, {self.LDS_CS}, v24")
        a(f"v_xor_b32 v25, 64, v24")
        t_write_addr(a, 26, self.TBASE)
        a(f"s_lshl_b32 s{S_T0}, s{S_T2}, 5")
        a(f"v_xor_b32 v26, s{S_T0}, v26")
        a(f"v_add_u32 v28, {112*128}, v26")
        a(f"s_lshl_b32 s{S_T0}, s{S_I}, 14")
        a(f"v_add_u32 v26, s{S_T0}, v26")
        a(f"v_xor_b32 v27, 32, v26")
        a(f"s_lshl_b32 s{S_T0}, s{S_I}, 10         ; 128*i*8")
        a(f"v_lshlrev_b32 v29, 3, v3")
        a(f"v_add_u32 v30, {self.LDS_ST + 112*8}, v29")
        a(f"v_add_u32 v29, s{S_T0}, v29")
        a(f"v_add_u32 v29, {self.LDS_ST}, v29")
    def addr_update(self):
        return [f"v_add_u32 v{self.vXa}, s{S_SLOT}, v{self.vXc}",
                f"v_add_u32 v{self.vW[0]}, s{S_SLOT}, v{self.vWc}",
                f"v_add_u32 v{self.vXsa}, s{S_SLOT}, v{self.vXsc}",
                f"v_xor_b32 v{self.vXb}, 64, v{self.vXa}",
                f"v_xor_b32 v{self.vW[1]}, 32, v{self.vW[0]}",
                f"v_xor_b32 v{self.vXsb}, 64, v{self.vXsa}"]
    chunk_epi = True
    def epilogue(self, a):
        nocs = a.new("nocs")
        a.label("L_epi3_start")
        assert self.LDS_CS % 128 == 0
        a(f"s_cmp_eq_u32 s{S_I}, 1")
        a(f"s_cbranch_scc0 {nocs}")
        mask_exec(a, 0x8000800080008000)
        for wi, (areg, poff) in enumerate([(24, 0), (24, 256), (25, 0), (25, 256)]):
            acc = self.accmap[(6, wi)]
            a(f"ds_write_b128 v{areg}, v[{acc}:{acc+3}] offset:{poff}")
        unmask_exec(a)
        a.label(nocs)
        a("s_waitcnt lgkmcnt(0)")
        dbar(a, "E1")
        CSR = [8, 12, 152, 156]
        for wi, (areg, poff) in enumerate([(24, 0), (24, 256), (25, 0), (25, 256)]):
            a(f"ds_read_b128 v[{CSR[wi]}:{CSR[wi]+3}], v{areg} offset:{poff}")
        STR = [16, 18, 20, 22]
        def rdst(x):
            st = STR[x & 3]
            if x < 7: a(f"ds_read_b64 v[{st}:{st+1}], v29 offset:{128*x}")
            else: a(f"ds_read_b64 v[{st}:{st+1}], v30")
        for x in range(4): rdst(x)
        a("s_waitcnt lgkmcnt(0)")
        for x in range(8):
            st = STR[x & 3]
            npair = 1 if x == 7 else 2
            if x == 4:
                a("s_waitcnt lgkmcnt(0)")
                dbar(a, "E2a")
            a(f"v_mul_f32 v{st+1}, v{st+1}, v{st+1}")
            for p in range(npair):
                g = self.accmap[(x, 2*p)]; u = self.accmap[(x, 2*p+1)]
                cg = CSR[2*p]; cu = CSR[2*p+1]
                for hh in (0, 2):
                    a(f"v_pk_fma_f32 v[{g+hh}:{g+hh+1}], v[{cg+hh}:{cg+hh+1}], v[{st}:{st+1}], v[{g+hh}:{g+hh+1}] op_sel_hi:[1,0,1] neg_lo:[0,1,0] neg_hi:[0,1,0]")
                    a(f"v_pk_fma_f32 v[{u+hh}:{u+hh+1}], v[{cu+hh}:{cu+hh+1}], v[{st}:{st+1}], v[{u+hh}:{u+hh+1}] op_sel_hi:[1,0,1] neg_lo:[0,1,0] neg_hi:[0,1,0]")
                for hh in (0, 2):
                    a(f"v_pk_mul_f32 v[{g+hh}:{g+hh+1}], v[{g+hh}:{g+hh+1}], v[{u+hh}:{u+hh+1}]")
                for hh in (0, 2):
                    a(f"v_pk_mul_f32 v[{g+hh}:{g+hh+1}], v[{g+hh}:{g+hh+1}], v[{st}:{st+1}] op_sel:[0,1] op_sel_hi:[1,1]")
                a(f"v_cvt_pk_bf16_f32 v{g}, v{g}, v{g+1}")
                a(f"v_cvt_pk_bf16_f32 v{g+1}, v{g+2}, v{g+3}")
                if x < 7: a(f"ds_write_b64 v{26+p}, v[{g}:{g+1}] offset:{2048*x}")
                else: a(f"ds_write_b64 v28, v[{g}:{g+1}]")
            if x < 4: rdst(x + 4)
        a("s_waitcnt lgkmcnt(0)")
        dry_exit(a, "L_epi3_ret")
        a("s_barrier      ; E2b")
    def loader_store_setup(self, a):
        a("v_lshrrev_b32 v3, 3, v2")
        a("v_and_b32 v4, 7, v2")
        a("v_xor_b32 v5, v4, v3")
        a("v_lshlrev_b32 v5, 4, v5")
        a("v_lshl_add_u32 v50, v3, 7, v5")
        a(f"s_lshl_b32 s{S_T0}, s{S_W}, 10")
        a(f"s_add_u32 s{S_T0}, s{S_T0}, {self.TBASE}")
        a(f"v_add_u32 v50, s{S_T0}, v50")
        a(f"s_lshl_b32 s{S_T0}, s{S_W}, 3")
        a(f"s_add_u32 s{S_T0}, s{S_T0}, s{S_R0}")
        a(f"v_add_u32 v51, s{S_T0}, v3")
        a(f"s_mov_b32 s{S_T1}, 3456")
        a(f"v_mul_lo_u32 v52, v51, s{S_T1}")
        a(f"s_lshl_b32 s{S_T0}, s{S_C0}, 1")
        a("v_lshl_add_u32 v52, v4, 4, v52")
        a(f"v_add_u32 v52, s{S_T0}, v52")
    def loader_stores(self, a, units):
        for n, u0 in enumerate(units):
            a(f"ds_read_b128 v[{56+4*n}:{59+4*n}], v50 offset:{u0*1024}")
        for n, u0 in enumerate(units):
            a(f"v_add_u32 v{53 if n & 1 else 54}, {u0*8*3456}, v52")
            special = (u0 + 3)*8 + 7 >= self.MV
            if special:
                a(f"v_add_u32 v55, {u0*8}, v51")
                a(f"s_add_u32 s{S_T0}, s{S_R0}, {self.MV}")
                a(f"v_cmp_gt_u32 vcc, s{S_T0}, v55")
                a(f"s_and_saveexec_b64 s[80:81], vcc")
            a(f"s_waitcnt lgkmcnt({len(units) - 1 - n})")
            a(f"buffer_store_dwordx4 v[{56+4*n}:{59+4*n}], v{53 if n & 1 else 54}, s[{SRD_OUT}:{SRD_OUT+3}], 0 offen{SC1}")
            if special: a("s_mov_b64 exec, s[80:81]")
    def loader_epilogue(self, a):
        a("s_barrier      ; E2a")
        self.loader_stores(a, [0, 4, 16, 20])
        a("s_barrier      ; E2b")
        self.loader_stores(a, [8, 12, 24, 28])

ROWB = 656
LQ, LK, LV, LO = 16384, 16384 + 16*ROWB, 16384 + 46*ROWB, 0
WPF = True
P1ROT = 'latin2'
ROTOFF = set()
WPF_OFF = {KA_WD}
def l2_on(kptr): return WPF and kptr not in WPF_OFF
def l2_setup(a, kind, NT, NC, kptr, nbytes, ldb, K):
    if not l2_on(kptr): return
    if kind == "p3": kind = P3MAP
    if kind == "rm" and kptr == KA_WO: kind = P2MAP
    nsh = 4 if kind == "p3b" else (6 if kind == "rm5" else 3)
    R3 = ((K + nsh - 1)//nsh + 7)//8*8
    a(f"s_mov_b32 s4, s{S_RT}"); a(f"s_mov_b32 s5, s{S_CT}")
    tile_map(a, NT, kind)
    divc(a, S_T0, S_RT, nsh)
    a(f"s_mul_i32 s{S_T0}, s{S_T0}, {nsh}")
    a(f"s_sub_u32 s{S_T0}, s{S_RT}, s{S_T0}")
    a(f"s_mul_i32 s{S_T0}, s{S_T0}, {R3}")
    a(f"s_lshl_b32 s{S_T1}, s{S_W}, 3")
    a(f"s_add_u32 s{S_T0}, s{S_T0}, s{S_T1}")
    a("v_lshrrev_b32 v150, 3, v2")
    a(f"v_add_u32 v150, s{S_T0}, v150")
    a(f"s_mov_b32 s{S_T1}, {ldb}")
    a(f"v_mul_lo_u32 v150, v150, s{S_T1}")
    a("v_and_b32 v151, 7, v2")
    a("v_lshl_add_u32 v150, v151, 4, v150")
    a(f"s_mul_i32 s{S_T1}, s{S_CT}, {NC*2}")
    a(f"v_add_u32 v150, s{S_T1}, v150")
    a(f"s_cmp_eq_u32 s{S_VALID}, 0")
    a(f"s_cselect_b32 s{S_T1}, 0x80000000, 0")
    a(f"v_or_b32 v150, s{S_T1}, v150")
    srd(a, 80, ptr(kptr), 0, nbytes)
    a(f"s_mov_b32 s{S_RT}, s4"); a(f"s_mov_b32 s{S_CT}, s5")
def l2_issue(a, kptr, ldb, K, i0=0, i1=None):
    if not l2_on(kptr): return 0
    nsh = 4 if (P3MAP == "p3b" and kptr in (KA_WG, KA_WU)) else (6 if (P2MAP == "rm5" and kptr == KA_WO) else 3)
    R3 = ((K + nsh - 1)//nsh + 7)//8*8
    n = (R3//8 + 3)//4
    if i1 is None: i1 = n
    for i in range(i0, min(i1, n)):
        a(f"buffer_load_dwordx4 v[152:155], v150, s[80:83], 0 offen")
        if i + 1 < n: a(f"v_add_u32 v150, {32*ldb}, v150")
    return min(i1, n) - i0

def att_phase(a, role):
    a(f"s_lshl_b32 s{S_R0}, s{S_RT}, 4       ; T0")
    srd(a, SRD_A, ptr(KA_WS), WS_QKV, S_TOK*NQKV*2)
    srd(a, SRD_OUT, ptr(KA_WS), WS_O, S_TOK*D*2)
    NI = 49
    nper = (NI + 7)//8
    a(f"s_mov_b32 s{S_T2}, 3840")
    a(f"s_mul_i32 s{S_T3}, s{S_CT}, 640")
    for j in range(nper):
        r = 32 + j
        a(f"s_add_u32 s{S_T0}, s{S_WAVE}, {8*j}")
        a(f"s_lshl_b32 s{S_T0}, s{S_T0}, 6")
        a(f"v_add_u32 v3, s{S_T0}, v2           ; c")
        vdiv(a, 4, 3, 41, 64*56)
        a("v_mul_u32_u24 v5, 41, v4")
        a("v_sub_u32 v5, v3, v5                  ; kap")
        a("v_cmp_le_u32 vcc, 16, v4")
        a("v_mov_b32 v8, 0x80000000")
        a("s_nop 0")
        a("v_cndmask_b32 v6, 0, 1, vcc")
        a("v_cmp_le_u32 vcc, 46, v4")
        a("s_nop 1")
        a("v_cndmask_b32 v7, 0, 1, vcc")
        a("v_add_u32 v6, v6, v7                  ; seg")
        a("v_mul_u32_u24 v7, 30, v6")
        a("v_sub_u32 v7, v4, v7")
        a(f"v_add_u32 v7, s{S_R0}, v7            ; token")
        a(f"v_mul_lo_u32 v7, v7, s{S_T2}")
        a("v_mul_u32_u24 v6, 1280, v6")
        a("v_add_u32 v7, v7, v6")
        a("v_lshl_add_u32 v7, v5, 4, v7")
        a(f"v_add_u32 v7, s{S_T3}, v7")
        a("v_cmp_gt_u32 vcc, 40, v5")
        a("s_nop 1")
        a("v_cndmask_b32 v7, v8, v7, vcc")
        a("v_cmp_gt_u32 vcc, 76, v4")
        a("s_nop 1")
        a(f"v_cndmask_b32 v{r}, v8, v7, vcc")
    if role == 'c':
        a(f"s_lshr_b32 s{S_T0}, s{S_WAVE}, 1")
        a(f"s_lshl_b32 s{S_T0}, s{S_T0}, 3")
        a(f"s_and_b32 s{S_T1}, s{S_WAVE}, 1")
        a(f"s_add_u32 s{S_I}, s{S_T0}, s{S_T1}      ; rb")
        a("v_and_b32 v3, 3, v2             ; i")
        a("v_lshrrev_b32 v4, 2, v2         ; b")
        a("v_lshlrev_b32 v5, 1, v3")
        a(f"v_add_u32 v5, s{S_I}, v5        ; rb + 2i")
        a(f"v_mul_u32_u24 v5, {ROWB}, v5")
        a("v_mul_u32_u24 v6, 40, v4")
        a("v_add_u32 v5, v5, v6")
        a(f"v_add_u32 v144, {LQ}, v5")
        a(f"v_add_u32 v145, {LK}, v5")
        a("v_cmp_eq_u32 vcc, 3, v3")
        a(f"v_mov_b32 v7, {16*ROWB}")
        a(f"v_mov_b32 v8, {14*ROWB}")
        a("v_cndmask_b32 v7, v7, v8, vcc")
        a("v_add_u32 v146, v145, v7")
        a("v_bfe_u32 v9, v2, 2, 2            ; r")
        a("v_lshlrev_b32 v10, 1, v9")
        a(f"v_add_u32 v10, s{S_I}, v10")
        a(f"v_mul_u32_u24 v10, {ROWB}, v10")
        a("v_lshrrev_b32 v11, 4, v2")
        a("v_lshl_add_u32 v11, v11, 2, v3     ; 4G + c")
        a("v_mul_u32_u24 v11, 40, v11")
        a("v_add_u32 v10, v10, v11")
        a(f"v_add_u32 v147, {LV}, v10")
        a("v_cmp_eq_u32 vcc, 3, v9")
        a(f"v_mov_b32 v7, {16*ROWB}")
        a("s_nop 0")
        a("v_cndmask_b32 v7, v7, v8, vcc")
        a("v_add_u32 v119, v147, v7")
        a(f"v_mov_b32 v12, {hex(f2u(-1e30))}")
        a("v_mov_b32 v13, 0")
        a(f"s_add_u32 s{S_T2}, s{S_R0}, s{S_I}")
        a(f"s_sub_u32 s{S_T2}, s{S_T2}, 14        ; pos(0)")
        for m in range(12):
            a(f"v_sub_u32 v14, {m}, v3            ; m - i")
            a("v_cmp_gt_u32 vcc, 8, v14")
            a(f"s_add_u32 s{S_T0}, s{S_T2}, {2*m}")
            a(f"s_cmp_ge_i32 s{S_T0}, 0")
            a("s_cselect_b64 s[80:81], -1, 0")
            a("s_and_b64 vcc, vcc, s[80:81]")
            a(f"v_cndmask_b32 v{120+m}, v12, v13, vcc")
    for j in range(2):
        a(f"s_add_u32 s{S_T0}, s{S_WAVE}, {8*j}")
        a(f"s_lshl_b32 s{S_T0}, s{S_T0}, 6")
        a(f"v_add_u32 v3, s{S_T0}, v2")
        vdiv(a, 4, 3, 40, 1024)
        a("v_mul_u32_u24 v5, 40, v4")
        a("v_sub_u32 v5, v3, v5")
        a(f"v_mul_u32_u24 v6, {ROWB}, v4")
        a(f"v_lshl_add_u32 v{148+j}, v5, 4, v6")
        a(f"v_add_u32 v4, s{S_R0}, v4")
        a("v_mul_u32_u24 v4, 1280, v4")
        a("v_lshl_add_u32 v4, v5, 4, v4")
        a(f"v_add_u32 v{156+j}, s{S_T3}, v4")
    if role == 'c':
        a(f"s_sub_u32 s{S_T0}, s{S_R0}, 14")
        a(f"s_max_i32 s{S_T0}, s{S_T0}, 0")
        sdiv(a, S_T0, S_T0, 121, 2100)
        a(f"s_add_u32 s{S_T1}, s{S_R0}, 15")
        sdiv(a, S_T1, S_T1, 121, 2100)
        skp = a.new("attpoll")
        a(f"s_cmp_eq_u32 s{S_WAVE}, 0")
        a(f"s_cbranch_scc0 {skp}")
        vdiv(a, 140, 2, 9, 64)
        a("v_mul_u32_u24 v141, 9, v140")
        a("v_sub_u32 v141, v2, v141                  ; j = l%9")
        vdiv(a, 142, 141, 3, 16)
        a("v_mul_u32_u24 v143, 3, v142")
        a("v_sub_u32 v143, v141, v143                ; j%3")
        a("v_mul_u32_u24 v142, 5, v142")
        a("v_add_u32 v142, v142, v143")
        a(f"s_lshl_b32 s{S_T2}, s{S_CT}, 1")
        a(f"v_add_u32 v142, s{S_T2}, v142            ; ct")
        a(f"v_add_u32 v140, s{S_T0}, v140            ; rt")
        a(f"v_cmp_ge_u32 vcc, s{S_T1}, v140")
        a("v_mul_u32_u24 v140, 15, v140")
        a("v_add_u32 v140, v140, v142")
        a("v_lshlrev_b32 v140, 7, v140")
        poll_core(a)
        a.label(skp)
        a("s_barrier      ; B_dep")
    else:
        l2_setup(a, "p3", 243, 64, KA_WG, D*F*2, 3456, D)
        a("s_barrier      ; B_dep")
    stamp(a, 0)
    for j in range(nper):
        sk = None
        if 8*j + 7 >= NI:
            sk = a.new("attsk")
            a(f"s_cmp_ge_u32 s{S_WAVE}, {NI - 8*j}")
            a(f"s_cbranch_scc1 {sk}")
        a(f"s_add_u32 s{S_T0}, s{S_WAVE}, {8*j}")
        a(f"s_lshl_b32 s{S_T0}, s{S_T0}, 10")
        a(f"s_add_u32 m0, s{S_T0}, {LQ}")
        a("s_nop 0")
        a(f"buffer_load_dwordx4 v{32+j}, s[{SRD_A}:{SRD_A+3}], 0 offen{SC1} lds")
        if sk: a.label(sk)
    a("s_waitcnt vmcnt(0)")
    a("s_barrier")
    stamp(a, 1)
    if role == 'l': l2_issue(a, KA_WG, 3456, D)
    if role == 'c':
        Q = 16; KR = 32; VR = 62; SC = 92; BIAS = 120; PB = 104; O = 4
        for dg in range(5):
            a(f"ds_read_b64 v[{Q+2*dg}:{Q+2*dg+1}], v144 offset:{8*dg}")
        for kb in range(3):
            for dg in range(5):
                r = KR + 2*(5*kb + dg)
                if kb < 2: a(f"ds_read_b64 v[{r}:{r+1}], v145 offset:{8*ROWB*kb + 8*dg}")
                else: a(f"ds_read_b64 v[{r}:{r+1}], v146 offset:{8*dg}")
        scale = (D // 32) ** -0.5
        c1 = scale * 1.4426950408889634
        a(f"s_mov_b32 s{S_T2}, {hex(f2u(c1))}")
        a("s_waitcnt lgkmcnt(0)")
        for kb in range(3):
            for dg in range(5):
                r = VR + 2*(5*kb + dg)
                if kb < 2: a(f"ds_read_b64_tr_b16 v[{r}:{r+1}], v147 offset:{8*ROWB*kb + 8*dg}")
                else: a(f"ds_read_b64_tr_b16 v[{r}:{r+1}], v119 offset:{8*dg}")
        for dg in range(5):
            for kb in range(3):
                r = KR + 2*(5*kb + dg); sc = SC + 4*kb
                c = "0" if dg == 0 else f"v[{sc}:{sc+3}]"
                a(f"v_mfma_f32_4x4x4_16b_bf16 v[{sc}:{sc+3}], v[{r}:{r+1}], v[{Q+2*dg}:{Q+2*dg+1}], {c}")
        a("s_nop 4")
        for m in range(12):
            a(f"v_fma_f32 v{SC+m}, v{SC+m}, s{S_T2}, v{BIAS+m}")
        a(f"v_max3_f32 v14, v{SC}, v{SC+1}, v{SC+2}")
        a(f"v_max3_f32 v15, v{SC+3}, v{SC+4}, v{SC+5}")
        a(f"v_max3_f32 v14, v14, v{SC+6}, v{SC+7}")
        a(f"v_max3_f32 v15, v15, v{SC+8}, v{SC+9}")
        a(f"v_max3_f32 v14, v14, v{SC+10}, v{SC+11}")
        a("v_max_f32 v14, v14, v15")
        for m in range(12):
            a(f"v_sub_f32 v{SC+m}, v{SC+m}, v14")
        for m in range(12):
            a(f"v_exp_f32 v{SC+m}, v{SC+m}")
        a(f"v_add_f32 v14, v{SC}, v{SC+1}")
        a(f"v_add_f32 v15, v{SC+2}, v{SC+3}")
        for m in range(4, 12, 2):
            a(f"v_add_f32 v14, v14, v{SC+m}")
            a(f"v_add_f32 v15, v15, v{SC+m+1}")
        a("v_add_f32 v14, v14, v15")
        a("v_rcp_f32 v14, v14")
        a("s_nop 0")
        for m in range(12):
            a(f"v_mul_f32 v{SC+m}, v{SC+m}, v14")
        for m in range(0, 12, 2):
            a(f"v_cvt_pk_bf16_f32 v{PB+m//2}, v{SC+m}, v{SC+m+1}")
        a("s_waitcnt lgkmcnt(0)")
        a("s_nop 0")
        OA = 32
        for kb in range(3):
            for dg in range(5):
                r = VR + 2*(5*kb + dg); o = OA + 4*dg
                c = "0" if kb == 0 else f"v[{o}:{o+3}]"
                a(f"v_mfma_f32_4x4x4_16b_bf16 v[{o}:{o+3}], v[{r}:{r+1}], v[{PB+2*kb}:{PB+2*kb+1}], {c}")
        a(f"v_subrev_u32 v144, {LQ - LO}, v144")
        a("s_nop 4")
        for dg in range(5):
            o = OA + 4*dg
            a(f"v_cvt_pk_bf16_f32 v{Q+2*dg}, v{o}, v{o+1}")
            a(f"v_cvt_pk_bf16_f32 v{Q+2*dg+1}, v{o+2}, v{o+3}")
            a(f"ds_write_b64 v144, v[{Q+2*dg}:{Q+2*dg+1}] offset:{8*dg}")
    a("s_waitcnt lgkmcnt(0)")
    stamp(a, 2)
    a("s_barrier")
    a(f"ds_read_b128 v[20:23], v148 offset:{LO}")
    sk = a.new("attst")
    a(f"s_cmp_ge_u32 s{S_WAVE}, 2")
    a(f"s_cbranch_scc1 {sk}")
    a(f"ds_read_b128 v[24:27], v149 offset:{LO}")
    a("s_waitcnt lgkmcnt(0)")
    a(f"buffer_store_dwordx4 v[24:27], v157, s[{SRD_OUT}:{SRD_OUT+3}], 0 offen{SC1}")
    a.label(sk)
    a("s_waitcnt lgkmcnt(0)")
    a(f"buffer_store_dwordx4 v[20:23], v156, s[{SRD_OUT}:{SRD_OUT+3}], 0 offen{SC1}")
    a(f"s_lshl_b32 s{S_FIDX}, s{S_RT}, 1")
    a(f"s_add_u32 s{S_FIDX}, s{S_FIDX}, s{S_CT}")
    a(f"s_lshl_b32 s{S_FIDX}, s{S_FIDX}, 7")
    a(f"s_add_u32 s{S_FIDX}, s{S_FIDX}, 0x8000")

def finish_phase(a, role, first=False):
    a("s_waitcnt vmcnt(0)")
    stamp(a, 4)
    if role == 'c' and first and not (FUSE and PH0): nonce_check(a)
    a("s_barrier      ; E3")
    if role == 'c': publish(a)
    stamp(a, 5)

IDLEPF = True
def idle_prefetch(a, NT, kptr, nbytes):
    nidle = 256 - NT
    nw = nidle * 8
    npieces = (nbytes + 1023)//1024
    n = (npieces + nw - 1)//nw
    a(f"s_and_b32 s{S_T0}, s2, 7")
    a(f"s_lshr_b32 s{S_T1}, s2, 3")
    a(f"s_lshl_b32 s{S_T0}, s{S_T0}, 5")
    a(f"s_add_u32 s{S_T0}, s{S_T0}, s{S_T1}")
    a(f"s_sub_u32 s{S_T0}, s{S_T0}, {NT}")
    a(f"s_lshl_b32 s{S_T0}, s{S_T0}, 3")
    a(f"s_add_u32 s{S_T0}, s{S_T0}, s{S_WAVE}      ; q")
    a(f"s_lshl_b32 s{S_T0}, s{S_T0}, 10")
    a("v_lshlrev_b32 v150, 4, v2")
    a(f"v_add_u32 v150, s{S_T0}, v150")
    srd(a, 80, ptr(kptr), 0, nbytes)
    lp = a.new("ipf")
    a(f"s_mov_b32 s{S_CNT}, {n}")
    a.label(lp)
    a("buffer_load_dwordx4 v[152:155], v150, s[80:83], 0 offen")
    a(f"v_add_u32 v150, {nw*1024}, v150")
    a(f"s_sub_u32 s{S_CNT}, s{S_CNT}, 1")
    a(f"s_cmp_lg_u32 s{S_CNT}, 0")
    a(f"s_cbranch_scc1 {lp}")
    a("s_waitcnt vmcnt(0)")

def role_program(a, role):
    phases = [P1F(), P24(2), P3(), P24(4)] if FUSE else [P1(), 'att', P24(2), P3(), P24(4)]
    if 'p1twice' in EXP:
        P = P1F() if FUSE else P1(); inv = a.new("inv")
        tile_map(a, P.NT, P.kind)
        a(f"s_cmp_eq_u32 s{S_VALID}, 0")
        a(f"s_cbranch_scc1 {inv}")
        P.tile_consts(a)
        if role == 'c': consumer_phase(a, P, True)
        else: loader_phase(a, P, True)
        a("s_waitcnt vmcnt(0)")
        a("s_barrier")
        a.label(inv)
    for n, P in enumerate(phases):
        first = (n == 0)
        nxt = a.new("next"); inv = a.new("inv")
        if P == 'att':
            tile_map(a, 256, 'att')
            att_phase(a, role)
            stamp(a, 3)
            finish_phase(a, role)
            prof_store(a, 'att', role)
            continue
        tile_map(a, P.NT, P.kind)
        a(f"s_cmp_eq_u32 s{S_VALID}, 0")
        a(f"s_cbranch_scc1 {inv}")
        P.tile_consts(a)
        if PRIO:
            hi = (role == 'l') if PRIO == 'l' else ((role == 'l') != (P.key == 'p3') if PRIO == 'm' else (role == 'c' and P.key == 'p3'))
            a(f"s_setprio {1 if hi else 0}")
        if role == 'c': consumer_phase(a, P, first)
        else: loader_phase(a, P, first)
        stamp(a, 3)
        if P.key != 'p4': finish_phase(a, role, first)
        spin_capture(a, P.key, role)
        prof_store(a, P.key, role)
        if first:
            a(f"s_branch {nxt}")
            a.label(inv)
            ptr_wait(a)
            if role == 'c': nonce_check(a, issued=False)
            a.label(nxt)
        elif P.key == 'p3' and IDLEPF:
            a(f"s_branch {nxt}")
            a.label(inv)
            idle_prefetch(a, P.NT, KA_WD, F*D*2)
            a.label(nxt)
        else:
            a.label(inv)

def main(out):
    a = Asm()
    a.raw(f".globl {KNAME}")
    a.raw(".p2align 8")
    a.raw(f".type {KNAME},@function")
    a.label(KNAME)
    if PROFDBG:
        a(f"s_memrealtime s[{S_P0+1}:{S_P0+2}]") if False else None
    a("s_cmp_ge_u32 s2, 256")
    a("s_cbranch_scc1 L_exit")
    a(f"s_load_dwordx16 s[{S_PTR}:{S_PTR+15}], s[0:1], 0")
    a(f"s_load_dwordx4 s[{S_PTR+16}:{S_PTR+19}], s[0:1], 64")
    if PROFDBG or SPIN:
        a(f"{STAMP} s[98:99]")
    a("v_lshrrev_b32 v1, 6, v0")
    a("v_and_b32 v2, 63, v0      ; lane")
    a(f"s_mov_b32 s{S_FIDX}, -1")
    a(f"s_mov_b32 s{S_DRY}, 0")
    a(f"v_readfirstlane_b32 s{S_WAVE}, v1")
    a("s_nop 3")
    a(f"s_sub_u32 s{S_W}, s{S_WAVE}, 4")
    a(f"s_cmp_ge_u32 s{S_WAVE}, 4")
    a("s_cbranch_scc1 L_loader")
    role_program(a, 'c')
    a("s_waitcnt vmcnt(0)")
    spin_end(a)
    a("s_endpgm")
    a.label("L_loader")
    role_program(a, 'l')
    a("s_waitcnt vmcnt(0)")
    a.label("L_exit")
    a("s_endpgm")
    HEADER = open("sequential_preLN__sliding_local_dilated__glu_gated_bilinear__prompt.s.ref").read().split("; Override")[0]
    s = HEADER
    s += """; One persistent launch, 256 workgroups (one per CU), 8 waves each: waves 0-3 run MFMA ("consumers"), waves 4-7 stream
;   P1F: LN1 (algebraic: rstd*(x@W - mean*colsum(W))) + QKV GEMM + sliding dilated attention (4x4x4 MFMA, true row max)
"""
    s += f"; @launch grid=(256,1,1) block=(512,1,1) lds={LDS_TOTAL}\n"
    s += '.amdgcn_target "amdgcn-amd-amdhsa--gfx950"\n.text\n'
    s += a.text()
    s += f""".section .rodata,"a"
.p2align 6
.amdhsa_kernel {KNAME}
  .amdhsa_next_free_vgpr 256
  .amdhsa_next_free_sgpr 102
  .amdhsa_accum_offset 160
  .amdhsa_group_segment_fixed_size 0
  .amdhsa_kernarg_size 80
  .amdhsa_user_sgpr_count 2
  .amdhsa_user_sgpr_kernarg_segment_ptr 1
  .amdhsa_system_sgpr_workgroup_id_x 1
  .amdhsa_float_denorm_mode_32 3
.end_amdhsa_kernel
"""
    open(out, "w").write(s)

if __name__ == "__main__":
    if "-prof" in sys.argv: PROF = True
    if "-profdbg" in sys.argv: PROFDBG = True
    if "-cyc" in sys.argv: STAMP = "s_memtime"
    if "-wpf" in sys.argv: WPF = True
    if "-nofuse" in sys.argv: FUSE = False
    if "-gate" in sys.argv: GATE = True
    if "-dry" in sys.argv: DRY = True
    if "-nodual" in sys.argv: DUAL = False
    if "-comb" in sys.argv: COMB = True
    for x in sys.argv:
        if x.startswith("-one="): ONESTEP = set(x[5:].split(","))
    for x in sys.argv:
        if x.startswith("-dual4="): DUAL4 = tuple(int(y) for y in x[7:].split(","))
        if x.startswith("-dual2="): DUAL2 = tuple(int(y) for y in x[7:].split(","))
    for x in sys.argv:
        if x.startswith("-ramp="): RAMP = int(x[6:])
        if x.startswith("-rpm3="): RPM3 = int(x[6:])
        if x.startswith("-rpm1="): RPM1 = int(x[6:])
    if "-noph0" in sys.argv: PH0 = False
    for x in sys.argv:
        if x.startswith("-prio="): PRIO = x[6:]
    for x in sys.argv:
        if x.startswith("-extrab="): EXTRAB = int(x[8:])
        if x.startswith("-p4map="): P4MAP = x[7:]
        if x.startswith("-p3map="): P3MAP = x[7:]
        if x.startswith("-p2map="): P2MAP = x[7:]
        if x.startswith("-pb="): PB2, PB3, PB4 = (int(y) for y in x[4:].split(","))
        if x.startswith("-p4rot="): P4ROT = tuple(int(y) for y in x[7:].split(","))
        if x.startswith("-p3rot="): P3ROT = tuple(int(y) for y in x[7:].split(","))
        if x.startswith("-p2rot="): P2ROT = tuple(int(y) for y in x[7:].split(","))
    if "-onwd" in sys.argv: WPF_OFF.discard(KA_WD)
    for x in sys.argv:
        if x.startswith("-spf="): SPF = int(x[5:])
        if x.startswith("-spf2="): SPF2 = {'wg': KA_WG, 'wu': KA_WU}[x[6:]]
    if "-noidle" in sys.argv: IDLEPF = False
    for x in sys.argv:
        if x.startswith("-spin="):
            p_, a_, b_ = x[6:].split(","); SPIN = (p_, int(a_), int(b_))
    if "-apf" in sys.argv: APF = True
    for x in sys.argv:
        if x.startswith("-p1frot="): P1FROT = x[8:]
    for x in sys.argv:
        if x.startswith("-outsc="): OUTSC = " " + x[7:].replace("+", " ")
    for x in sys.argv:
        if x.startswith("-gate4="): GATE4 = tuple(int(y) for y in x[7:].split(","))
    for x in sys.argv:
        if x.startswith("-osc="): OSC = " " + x[5:].replace("+", " ")
    for x in sys.argv:
        if x.startswith("-align="): ALIGN = int(x[7:])
    if "-nowpf" in sys.argv: WPF = False
    if "-onestep" in sys.argv: TWOSTEP = False
    for x in sys.argv:
        if x.startswith("-exp="): EXP = set(x[5:].split(","))
    if "-noxcd" in sys.argv: NOXCD = True
    for x in sys.argv:
        if x.startswith("-p1rot="): P1ROT = x[7:]
        if x.startswith("-rotoff="): ROTOFF = set(x[8:].split(","))
    for x in sys.argv:
        if x.startswith("-off="):
            for k in x[5:].split(","): WPF_OFF.add({'wo': KA_WO, 'wg': KA_WG, 'wu': KA_WU, 'wd': KA_WD}[k])
    main(sys.argv[1] if len(sys.argv) > 1 else "v3.s")
```

```python
import sys, struct

KNAME = "sequential_preLN__sliding_local_dilated__glu_gated_bilinear__prompt_kernel"
S_TOK, D, NQKV, F = 2048, 640, 1920, 1728
WS_QKV, WS_O, WS_H, WS_HH, WS_ST, WS_FLAG = 0, 0x800000, 0xB00000, 0x1000000, 0x1800000, 0x1900000
WS_PROF = 0x1A00000
WS_ST1 = 0x1880000
KA_X, KA_WQKV, KA_WO, KA_BX, KA_WG, KA_WU, KA_WD, KA_OUT, KA_DBG, KA_WS = [8*i for i in range(10)]
ONES = 0x3F803F80
PROF = False
PROFDBG = False
STAMP = 's_memrealtime'
SC1 = " sc1"
LDS_TOTAL = 163840
NONCE_LDS = 163832
OUTSC = ' sc0 sc1'
SPF = 0
SPF2 = None
EXTRAB = 0
PB2, PB3, PB4 = 7, 3, 7
P2MAP = 'rm'
P3MAP = 'p3b'
P4MAP = 'rm5'
P4ROT = (2, 17, 2)
P3ROT = (1, 9, 2)
P2ROT = (2, 13, 2)
P1FROT = 'latin2'
APF = False
ONESTEP = set()
COMB = False
WDS = (7, 8)
WO_S = 9
UP_S = 8
DUAL = True
DUAL2 = (6, 10)
DUAL4 = (5, 12)
PH0 = True
RAMP = 2
RPM3 = 1
RPM1 = 1
DRY = False
PRIO = ''
GATE = False
GATE4 = (6, 3)
OSC = ' sc1'
FUSE = True
ALIGN = 6
TWOSTEP = True
EXP = set()
NOXCD = False

def f2u(x):
    return struct.unpack("<I", struct.pack("<f", x))[0]

class Asm:
    def __init__(self):
        self.L = []
        self.uid = 0
    def __call__(self, s):
        for line in s.split("\n"):
            line = line.strip()
            if line:
                self.L.append("  " + line)
    def label(self, n):
        self.L.append(n + ":")
    def raw(self, s):
        self.L.append(s)
    def new(self, base):
        self.uid += 1
        return f"L{base}_{self.uid}"
    def text(self):
        return "\n".join(self.L) + "\n"

SRD_A, SRD_B0, SRD_B1, SRD_OUT, SRD_AUX, SRD_ST = 8, 12, 16, 20, 24, 28
S_RT, S_CT, S_R0, S_C0, S_WAVE, S_SLOT, S_CNT, S_T0, S_T1, S_T2 = 32, 33, 34, 35, 36, 37, 38, 39, 40, 41
S_AOFF, S_BOFF = 42, 43
S_PTR = 44
S_MASK = 64
S_I, S_J, S_REND, S_K = 66, 67, 68, 69
S_STAMP = 70
S_NONCE = 78
S_FIDX, S_LW, S_VALID, S_KB = 85, 86, 87, 92
SRD_FLAG = 88
S_SLOTB, S_T3, S_T4, S_W = 93, 94, 95, 96
S_P0 = 97
S_N1, S_N2 = 6, 7
S_DRY = 3

def ptr(k): return S_PTR + k // 4

PH_IDX = {'p1': 0, 'att': 1, 'p2': 2, 'p3': 3, 'p4': 4}

def stamp(a, i):
    if i >= 4:
        if PROF: a(f'{STAMP} s[{98+2*(i-4)}:{99+2*(i-4)}]')
        return
    if PROF or PROFDBG or SPIN:
        a(f'{STAMP} s[{S_STAMP+2*i}:{S_STAMP+2*i+1}]')

SPIN = None
def spin_capture(a, ph, role):
    if not SPIN or SPIN[0] != ph or role != 'c': return
    a("s_waitcnt lgkmcnt(0)")
    A_ = "s98" if SPIN[1] < 0 else f"s{S_STAMP+2*SPIN[1]}"
    a(f"s_sub_u32 s100, s{S_STAMP+2*SPIN[2]}, {A_}")
def spin_end(a):
    if not SPIN: return
    sk = a.new("spin"); lp = a.new("spinl")
    a("s_cmp_eq_u32 s2, 9")
    a(f"s_cbranch_scc0 {sk}")
    a(f"s_cmp_eq_u32 s{S_WAVE}, 0")
    a(f"s_cbranch_scc0 {sk}")
    a("s_mul_i32 s100, s100, 20")
    a("s_memrealtime s[4:5]")
    a("s_waitcnt lgkmcnt(0)")
    a("s_add_u32 s100, s100, s4")
    a.label(lp)
    a("s_memrealtime s[4:5]")
    a("s_waitcnt lgkmcnt(0)")
    a("s_sub_u32 s6, s4, s100")
    a("s_cmp_lt_i32 s6, 0")
    a(f"s_cbranch_scc1 {lp}")
    a.label(sk)

def prof_store(a, ph, role):
    if not (PROF or PROFDBG): return
    skip = a.new("pskip")
    a(f"s_cmp_eq_u32 s{S_WAVE}, {0 if role == 'c' else 4}")
    a(f"s_cbranch_scc0 {skip}")
    a('s_waitcnt lgkmcnt(0)')
    if PROF:
        a(f's_add_u32 s80, s{ptr(KA_WS)}, {hex(WS_PROF + PH_IDX[ph]*0x20000)}')
        a(f's_addc_u32 s81, s{ptr(KA_WS)+1}, 0')
        a('s_and_b32 s81, s81, 0xffff')
        a('s_mov_b32 s82, 0x20000')
        a('s_mov_b32 s83, 0x20000')
        a('s_lshl_b32 s84, s2, 3')
        a(f's_add_u32 s84, s84, s{S_WAVE}')
        a('s_lshl_b32 s84, s84, 6')
        for i in range(8): a(f'v_mov_b32 v{128+i}, s{S_STAMP+i}')
        for i in range(4): a(f'v_mov_b32 v{136+i}, s{98+i}')
        a('v_mov_b32 v148, s84')
        a('s_mov_b64 exec, 1')
        a('buffer_store_dwordx4 v[128:131], v148, s[80:83], 0 offen')
        a('buffer_store_dwordx4 v[132:135], v148, s[80:83], 0 offen offset:16')
        a('buffer_store_dwordx4 v[136:139], v148, s[80:83], 0 offen offset:32')
        a('s_mov_b64 exec, -1')
    if PROFDBG and role == 'c':
        sk2 = a.new("pskip")
        a(f"s_cmp_eq_u32 s2, {PROFDBG_WG}")
        a(f"s_cbranch_scc0 {sk2}")
        a(f's_mov_b32 s80, s{ptr(KA_DBG)}')
        a(f's_and_b32 s81, s{ptr(KA_DBG)+1}, 0xffff')
        a('s_mov_b32 s82, 0x100')
        a('s_mov_b32 s83, 0x20000')
        sel = DBG_SEL[ph]
        for j, (i, slot) in enumerate(sel):
            a(f's_sub_u32 s84, s{S_STAMP+2*i}, s{S_P0}')
            a(f'v_mov_b32 v140, s84')
            a(f'v_mov_b32 v141, {4*slot}')
            a('s_mov_b64 exec, 1')
            a('buffer_store_dword v140, v141, s[80:83], 0 offen')
            a('s_mov_b64 exec, -1')
        a.label(sk2)
    a.label(skip)

PROFDBG_WG = 9
DBG_SEL = {'p1': [(1, 2), (2, 3), (3, 4)], 'att': [(0, 5), (1, 6), (3, 7)], 'p2': [(0, 8), (2, 9)], 'p3': [(0, 10), (1, 11), (2, 12)], 'p4': [(0, 13), (2, 14), (3, 15)]}

def set_exec(a, mask):
    if mask == (1 << 64) - 1:
        a("s_mov_b64 exec, -1")
    else:
        a(f"s_mov_b32 exec_lo, {hex(mask & 0xffffffff)}")
        a(f"s_mov_b32 exec_hi, {hex(mask >> 32)}")

def dbar(a, comment=""):
    if not DRY:
        a(f"s_barrier      ; {comment}"); return
    l = a.new("dbar")
    a(f"s_cmp_eq_u32 s{S_DRY}, 1")
    a(f"s_cbranch_scc1 {l}")
    a(f"s_barrier      ; {comment}")
    a.label(l)

def mask_exec(a, mask):
    if not DRY:
        set_exec(a, mask); return
    a("s_mov_b64 s[4:5], exec")
    a(f"s_and_b32 exec_lo, exec_lo, {hex(mask & 0xffffffff)}")
    a(f"s_and_b32 exec_hi, exec_hi, {hex(mask >> 32)}")

def unmask_exec(a):
    a("s_mov_b64 exec, s[4:5]" if DRY else "s_mov_b64 exec, -1")

def dry_call(a, wave, target, ret):
    if not DRY: return
    sk = a.new("dry")
    a(f"s_cmp_eq_u32 s{S_WAVE}, {wave}")
    a(f"s_cbranch_scc0 {sk}")
    a(f"s_mov_b32 s{S_DRY}, 1")
    a("s_mov_b64 exec, 0")
    a(f"s_branch {target}")
    a.label(ret)
    a("s_mov_b64 exec, -1")
    a(f"s_mov_b32 s{S_DRY}, 0")
    a.label(sk)

def dry_exit(a, ret):
    if DRY:
        a(f"s_cmp_eq_u32 s{S_DRY}, 1")
        a(f"s_cbranch_scc1 {ret}")

def srd(a, s, p, off, nbytes):
    if off:
        a(f"s_add_u32 s{s}, s{p}, {hex(off)}")
        a(f"s_addc_u32 s{s+1}, s{p+1}, 0")
    else:
        a(f"s_mov_b32 s{s}, s{p}")
        a(f"s_mov_b32 s{s+1}, s{p+1}")
    a(f"s_and_b32 s{s+1}, s{s+1}, 0xffff")
    a(f"s_mov_b32 s{s+2}, {hex(nbytes)}")
    a(f"s_mov_b32 s{s+3}, 0x20000")

def divc(a, dst, src, d, rng=300):
    m = (65536 + d - 1) // d
    for x in range(0, rng):
        assert (x * m) >> 16 == x // d, (x, d)
    a(f"s_mul_i32 s{dst}, s{src}, {m}")
    a(f"s_lshr_b32 s{dst}, s{dst}, 16")

def magic(d, N):
    for sh in range(8, 24):
        m = ((1 << sh) + d - 1) // d
        if m >= (1 << 24) or m * (N - 1) >= (1 << 32): continue
        if all((x * m) >> sh == x // d for x in range(N)): return m, sh
    raise Exception("no magic")

def sdiv(a, dst, src, d, N):
    m, sh = magic(d, N)
    a(f"s_mul_i32 s{dst}, s{src}, {m}")
    a(f"s_lshr_b32 s{dst}, s{dst}, {sh}")

def vdiv(a, dst, src, d, N):
    m, sh = magic(d, N)
    a(f"v_mul_u32_u24 v{dst}, {m}, v{src}")
    a(f"v_lshrrev_b32 v{dst}, {sh}, v{dst}")

def tile_map(a, NT, kind):
    if NOXCD:
        a(f"s_mov_b32 s{S_T0}, s2")
    else:
        a(f"s_and_b32 s{S_T0}, s2, 7")
        a(f"s_lshr_b32 s{S_T1}, s2, 3")
        a(f"s_lshl_b32 s{S_T0}, s{S_T0}, 5")
        a(f"s_add_u32 s{S_T0}, s{S_T0}, s{S_T1}   ; t")
    a(f"s_cmp_lt_u32 s{S_T0}, {NT}")
    a(f"s_cselect_b32 s{S_VALID}, 1, 0")
    if kind == "p1":
        divc(a, S_T1, S_T0, 90)
        a(f"s_mul_i32 s{S_T2}, s{S_T1}, 90")
        a(f"s_sub_u32 s{S_T2}, s{S_T0}, s{S_T2}")
        divc(a, S_CT, S_T2, 6)
        divc(a, S_RT, S_T2, 5)
        a(f"s_cmp_eq_u32 s{S_T1}, 2")
        a(f"s_cselect_b32 s{S_CT}, s{S_RT}, s{S_CT}")
        a(f"s_cselect_b32 s{S_RT}, 5, 6")
        a(f"s_mul_i32 s{S_RT}, s{S_RT}, s{S_CT}")
        a(f"s_sub_u32 s{S_RT}, s{S_T2}, s{S_RT}")
        a(f"s_mul_i32 s{S_T1}, s{S_T1}, 6")
        a(f"s_add_u32 s{S_RT}, s{S_RT}, s{S_T1}")
    elif kind == "p3":
        divc(a, S_T1, S_T0, 81)
        a(f"s_mul_i32 s{S_T2}, s{S_T1}, 81")
        a(f"s_sub_u32 s{S_T2}, s{S_T0}, s{S_T2}")
        divc(a, S_CT, S_T2, 3)
        a(f"s_mul_i32 s{S_RT}, s{S_CT}, 3")
        a(f"s_sub_u32 s{S_RT}, s{S_T2}, s{S_RT}")
        a(f"s_mul_i32 s{S_T1}, s{S_T1}, 3")
        a(f"s_add_u32 s{S_RT}, s{S_RT}, s{S_T1}")
    elif kind == "p1f":
        a(f"s_lshr_b32 s{S_T1}, s{S_T0}, 6")
        a(f"s_lshl_b32 s{S_RT}, s{S_T1}, 3")
        a(f"s_bfe_u32 s{S_T2}, s{S_T0}, {2 | (3 << 16)}")
        a(f"s_add_u32 s{S_RT}, s{S_RT}, s{S_T2}")
        a(f"s_bfe_u32 s{S_T1}, s{S_T0}, {5 | (1 << 16)}")
        a(f"s_lshl_b32 s{S_T1}, s{S_T1}, 2")
        a(f"s_and_b32 s{S_CT}, s{S_T0}, 3")
        a(f"s_add_u32 s{S_CT}, s{S_CT}, s{S_T1}")
    elif kind == "p3b":
        a(f"s_cmp_ge_u32 s{S_T0}, 108")
        a(f"s_cselect_b32 s{S_T1}, 108, 0")
        a(f"s_sub_u32 s{S_T2}, s{S_T0}, s{S_T1}")
        divc(a, S_CT, S_T2, 4)
        divc(a, S_RT, S_T2, 5)
        a(f"s_cmp_ge_u32 s{S_T0}, 108")
        a(f"s_cselect_b32 s{S_CT}, s{S_RT}, s{S_CT}")
        a(f"s_cselect_b32 s{S_RT}, 5, 4")
        a(f"s_mul_i32 s{S_RT}, s{S_RT}, s{S_CT}")
        a(f"s_sub_u32 s{S_RT}, s{S_T2}, s{S_RT}")
        a(f"s_cmp_ge_u32 s{S_T0}, 108")
        a(f"s_cselect_b32 s{S_T1}, 4, 0")
        a(f"s_add_u32 s{S_RT}, s{S_RT}, s{S_T1}")
    elif kind == "rm5":
        divc(a, S_T1, S_T0, 125)
        a(f"s_mul_i32 s{S_T2}, s{S_T1}, 125")
        a(f"s_sub_u32 s{S_T2}, s{S_T0}, s{S_T2}")
        divc(a, S_RT, S_T2, 5)
        a(f"s_mul_i32 s{S_CT}, s{S_RT}, 5")
        a(f"s_sub_u32 s{S_CT}, s{S_T2}, s{S_CT}")
        a(f"s_mul_i32 s{S_T1}, s{S_T1}, 5")
        a(f"s_add_u32 s{S_CT}, s{S_CT}, s{S_T1}")
    elif kind == "att":
        a(f"s_lshr_b32 s{S_RT}, s{S_T0}, 1")
        a(f"s_and_b32 s{S_CT}, s{S_T0}, 1")
    else:
        divc(a, S_RT, S_T0, 10)
        a(f"s_mul_i32 s{S_CT}, s{S_RT}, 10")
        a(f"s_sub_u32 s{S_CT}, s{S_T0}, s{S_CT}")

def publish(a):
    skip = a.new("pub")
    a(f"s_cmp_eq_u32 s{S_WAVE}, 0")
    a(f"s_cbranch_scc0 {skip}")
    a(f"s_cmp_eq_u32 s{S_FIDX}, -1")
    a(f"s_cbranch_scc1 {skip}")
    a(f"v_mov_b32 v140, s{S_NONCE}")
    a(f"v_mov_b32 v141, s{S_NONCE+1}")
    a(f"v_mov_b32 v142, s{S_FIDX}")
    a("s_mov_b64 exec, 1")
    a(f"buffer_store_dwordx2 v[140:141], v142, s[{SRD_FLAG}:{SRD_FLAG+3}], 0 offen{SC1}")
    a("s_mov_b64 exec, -1")
    a.label(skip)

def poll_core(a, sv=80):
    loop = a.new("poll"); done = a.new("polldone")
    a(f"s_and_saveexec_b64 s[{sv}:{sv+1}], vcc")
    a(f"s_mov_b32 s{S_CNT}, 0x40000")
    a.label(loop)
    a(f"buffer_load_dwordx2 v[142:143], v140, s[{SRD_FLAG}:{SRD_FLAG+3}], 0 offen{SC1}")
    a("s_waitcnt vmcnt(0)")
    a(f"v_cmp_ne_u64 vcc, s[{S_NONCE}:{S_NONCE+1}], v[142:143]")
    a(f"s_cbranch_vccz {done}")
    a(f"s_sub_u32 s{S_CNT}, s{S_CNT}, 1")
    a(f"s_cmp_lg_u32 s{S_CNT}, 0")
    a(f"s_cbranch_scc1 {loop}")
    a.label(done)
    a(f"s_mov_b64 exec, s[{sv}:{sv+1}]")

def poll(a, lo_sgpr, hi_sgpr, base, wave=0):
    skip = a.new("pollskip")
    a(f"s_cmp_eq_u32 s{S_WAVE}, {wave}")
    a(f"s_cbranch_scc0 {skip}")
    a(f"v_add_u32 v140, s{lo_sgpr}, v2")
    a(f"v_cmp_gt_u32 vcc, s{hi_sgpr}, v140")
    a(f"v_lshlrev_b32 v140, 7, v140")
    a(f"v_add_u32 v140, {base}, v140")
    poll_core(a, 80 if wave == 0 else 4)
    a.label(skip)

def poll_first_g(a, lo_sgpr, hi_sgpr, W, k0, S, G, base):
    skip = a.new("pollskip")
    lg = 2 if G <= 4 else 3
    a(f"s_cmp_eq_u32 s{S_WAVE}, 0")
    a(f"s_cbranch_scc0 {skip}")
    a(f"v_lshrrev_b32 v140, {lg}, v2")
    a(f"v_add_u32 v140, s{lo_sgpr}, v140")
    a(f"v_cmp_ge_u32 vcc, s{hi_sgpr}, v140")
    a(f"v_and_b32 v141, {(1 << lg) - 1}, v2")
    a(f"v_cmp_gt_u32 s[82:83], {G}, v141")
    a(f"v_add_u32 v141, s{k0}, v141")
    a(f"v_subrev_u32 v142, {S}, v141")
    a(f"s_and_b64 s[82:83], s[82:83], vcc")
    a(f"v_cmp_le_u32 vcc, {S}, v141")
    a(f"v_mul_u32_u24 v140, {W}, v140")
    a("s_nop 0")
    a("v_cndmask_b32 v141, v141, v142, vcc")
    a("v_add_u32 v140, v140, v141")
    a(f"v_lshlrev_b32 v140, 7, v140")
    a(f"v_add_u32 v140, {base}, v140")
    a("s_mov_b64 vcc, s[82:83]")
    poll_core(a)
    a.label(skip)

def poll_comb(a, lo_sgpr, hi_sgpr, W, base, member):
    skip = a.new("pollskip"); loop = a.new("poll"); done = a.new("polldone")
    a(f"s_mov_b32 s{S_N2}, 0")
    a(f"s_cmp_eq_u32 s{S_WAVE}, 0")
    a(f"s_cbranch_scc0 {skip}")
    vdiv(a, 140, 2, W, 64)
    a(f"v_mul_u32_u24 v141, {W}, v140")
    a("v_sub_u32 v141, v2, v141               ; column")
    member(a)
    a("s_nop 1")
    a("s_mov_b64 s[4:5], vcc")
    a(f"v_add_u32 v140, s{lo_sgpr}, v140")
    a(f"v_cmp_ge_u32 vcc, s{hi_sgpr}, v140")
    a(f"v_mul_u32_u24 v140, {W}, v140")
    a("v_add_u32 v140, v140, v141")
    a("v_lshlrev_b32 v140, 7, v140")
    a(f"v_add_u32 v140, {base}, v140")
    a("s_and_saveexec_b64 s[80:81], vcc")
    a(f"s_mov_b32 s{S_CNT}, 0x40000")
    a.label(loop)
    a(f"buffer_load_dwordx2 v[142:143], v140, s[{SRD_FLAG}:{SRD_FLAG+3}], 0 offen{SC1}")
    a("s_waitcnt vmcnt(0)")
    a(f"v_cmp_ne_u64 vcc, s[{S_NONCE}:{S_NONCE+1}], v[142:143]")
    a("s_nop 1")
    a("s_and_b64 s[82:83], vcc, s[4:5]")
    a(f"s_cbranch_scc0 {done}")
    a(f"s_sub_u32 s{S_CNT}, s{S_CNT}, 1")
    a(f"s_cmp_lg_u32 s{S_CNT}, 0")
    a(f"s_cbranch_scc1 {loop}")
    a.label(done)
    a("s_cmp_eq_u64 vcc, 0")
    a(f"s_cselect_b32 s{S_N2}, 1, 0")
    a("s_mov_b64 exec, s[80:81]")
    a.label(skip)

def poll_first(a, lo_sgpr, hi_sgpr, W, k0, k1, base):
    skip = a.new("pollskip")
    a(f"s_cmp_eq_u32 s{S_WAVE}, 0")
    a(f"s_cbranch_scc0 {skip}")
    a("v_lshrrev_b32 v140, 1, v2")
    a(f"v_add_u32 v140, s{lo_sgpr}, v140")
    a(f"v_cmp_ge_u32 vcc, s{hi_sgpr}, v140")
    a(f"v_mul_u32_u24 v140, {W}, v140")
    a("v_and_b32 v141, 1, v2")
    a(f"s_sub_u32 s{S_T2}, s{k1}, s{k0}")
    a(f"v_mul_lo_u32 v141, v141, s{S_T2}")
    a(f"v_add_u32 v141, s{k0}, v141")
    a("v_add_u32 v140, v140, v141")
    a(f"v_lshlrev_b32 v140, 7, v140")
    a(f"v_add_u32 v140, {base}, v140")
    poll_core(a)
    a.label(skip)

def first_ks(a, P):
    P.rot_start(a)
    a(f"s_add_u32 s{S_KB}, s{S_K}, 1")
    a(f"s_cmp_ge_u32 s{S_KB}, {8 if getattr(P, 'oprime', False) else P.S}")
    a(f"s_cselect_b32 s{S_KB}, 0, s{S_KB}")

def dbg_srd(a):
    a(f"s_mov_b32 s80, s{ptr(KA_DBG)}")
    a(f"s_and_b32 s81, s{ptr(KA_DBG)+1}, 0xffff")
    a("s_mov_b32 s82, 0x100")
    a("s_mov_b32 s83, 0x20000")

def nonce_publish(a):
    skip = a.new("nonce")
    a(f"s_cmp_eq_u32 s{S_WAVE}, 0")
    a(f"s_cbranch_scc0 {skip}")
    a("s_cmp_eq_u32 s2, 0")
    a(f"s_cbranch_scc0 {skip}")
    dbg_srd(a)
    a(f"s_memrealtime s[{S_NONCE}:{S_NONCE+1}]")
    a("v_mov_b32 v5, 0")
    a("s_waitcnt lgkmcnt(0)")
    a(f"s_or_b32 s{S_NONCE}, s{S_NONCE}, 1")
    a(f"v_mov_b32 v6, s{S_NONCE}")
    a(f"v_mov_b32 v7, s{S_NONCE+1}")
    a("s_mov_b64 exec, 1")
    a(f"buffer_store_dwordx2 v[6:7], v5, s[80:83], 0 offen{SC1}")
    a("s_mov_b64 exec, -1")
    a.label(skip)

def nonce_issue(a):
    skip = a.new("nonce")
    a(f"s_cmp_eq_u32 s{S_WAVE}, 0")
    a(f"s_cbranch_scc0 {skip}")
    dbg_srd(a)
    a("v_mov_b32 v158, 0")
    a("s_nop 3")
    a(f"buffer_load_dwordx2 v[156:157], v158, s[80:83], 0 offen{SC1}")
    a.label(skip)

def nonce_check(a, issued=True):
    skip = a.new("nonce"); loop = a.new("nloop"); done = a.new("ndone"); chk = a.new("nchk")
    a(f"s_cmp_eq_u32 s{S_WAVE}, 0")
    a(f"s_cbranch_scc0 {skip}")
    dbg_srd(a)
    a("v_mov_b32 v158, 0")
    a(f"s_mov_b32 s{S_CNT}, 0x40000")
    if issued: a(f"s_branch {chk}")
    a.label(loop)
    a(f"buffer_load_dwordx2 v[156:157], v158, s[80:83], 0 offen{SC1}")
    a("s_waitcnt vmcnt(0)")
    a.label(chk)
    a("v_readfirstlane_b32 s" + str(S_NONCE) + ", v156")
    a("v_readfirstlane_b32 s" + str(S_NONCE+1) + ", v157")
    a("s_nop 3")
    a(f"s_cmp_lg_u32 s{S_NONCE}, 0")
    a(f"s_cbranch_scc1 {done}")
    a(f"s_sub_u32 s{S_CNT}, s{S_CNT}, 1")
    a(f"s_cmp_lg_u32 s{S_CNT}, 0")
    a(f"s_cbranch_scc1 {loop}")
    a.label(done)
    a(f"v_mov_b32 v158, {NONCE_LDS}")
    a("s_mov_b64 exec, 1")
    a("ds_write_b64 v158, v[156:157]")
    a("s_mov_b64 exec, -1")
    a("s_waitcnt lgkmcnt(0)")
    a.label(skip)

def nonce_from_lds(a):
    skip = a.new("nlds")
    a(f"s_cmp_eq_u32 s{S_WAVE}, 7")
    a(f"s_cbranch_scc0 {skip}")
    a(f"v_mov_b32 v140, {NONCE_LDS}")
    a("ds_read_b64 v[142:143], v140")
    a("s_waitcnt lgkmcnt(0)")
    a(f"v_readfirstlane_b32 s{S_NONCE}, v142")
    a(f"v_readfirstlane_b32 s{S_NONCE+1}, v143")
    a.label(skip)

class Phase:
    has_e1 = False
    has_stage_work = False
    prefetchB = 0
    def loader_post_first(self, a): return 0
    def loader_post_b0(self, a): return 0
    def loader_stage_work_parts(self): return []
    def loader_final(self, a): pass
    def store_pre(self, a): pass
    def tail_prefetch(self, a, part): return 0
    def mid_prefetch(self, a, s): return 0
    def l2_prep(self, a): pass
    def rot_start(self, a):
        if self.key in ROTOFF:
            a(f"s_mov_b32 s{S_K}, 0"); return
        ca, cb, den = self.rot
        Sm = 8 if getattr(self, 'oprime', False) else self.S
        a(f"s_mul_i32 s{S_K}, s{S_CT}, {ca}")
        a(f"s_mul_i32 s{S_T0}, s{S_RT}, {cb}")
        a(f"s_add_u32 s{S_K}, s{S_K}, s{S_T0}")
        a(f"s_lshr_b32 s{S_K}, s{S_K}, {den}")
        m = (65536 + Sm - 1) // Sm
        for x in range(1024): assert (x*m) >> 16 == x // Sm
        a(f"s_mul_i32 s{S_T0}, s{S_K}, {m}")
        a(f"s_lshr_b32 s{S_T0}, s{S_T0}, 16")
        a(f"s_mul_i32 s{S_T0}, s{S_T0}, {Sm}")
        a(f"s_sub_u32 s{S_K}, s{S_K}, s{S_T0}")
    def tile_consts(self, a):
        a(f"s_mul_i32 s{S_R0}, s{S_RT}, {self.MV}")
        a(f"s_mul_i32 s{S_C0}, s{S_CT}, {self.NC}")
        a(f"s_add_u32 s{S_REND}, s{S_R0}, {self.MV}")
        a(f"s_min_u32 s{S_REND}, s{S_REND}, {S_TOK}")

def transition(a, first):
    pass

def loader_phase(a, P, first):
    NS, S = P.NS, P.S
    nA, nB = len(P.Ains), len(P.Bins)
    VB = 32
    customB = getattr(P, 'custom_B', False)
    a("v_lshrrev_b32 v3, 3, v2      ; r8")
    a("v_and_b32 v4, 7, v2          ; p")
    a("v_lshrrev_b32 v5, 1, v3      ; r8>>1")
    a("v_xor_b32 v6, v4, v5")
    a("v_lshlrev_b32 v6, 4, v6")
    a(f"s_lshl_b32 s{S_T0}, s{S_W}, 3")
    a(f"s_add_u32 s{S_T0}, s{S_T0}, s{S_R0}")
    a(f"v_add_u32 v7, s{S_T0}, v3")
    a(f"s_mov_b32 s{S_T0}, {P.lda}")
    a(f"v_mul_lo_u32 v7, v7, s{S_T0}")
    a("v_add_u32 v7, v7, v6")
    a(f"s_and_b32 s{S_T0}, s{S_W}, 1")
    a(f"s_lshl_b32 s{S_T0}, s{S_T0}, 6")
    a(f"v_xor_b32 v7, s{S_T0}, v7")
    for t in range(nA):
        a(f"v_add_u32 v{VB+t}, {t*32*P.lda}, v7")
    if customB: P.lazyB = True
    else: std_B_setup(a, P, VB, nA)
    if getattr(P, 'oprime', False): oprime_alt_setup(a, P)
    a(f"s_lshl_b32 s{S_LW}, s{S_W}, 10")
    P.mask_setup(a)
    P.rot_start(a)
    a(f"s_mov_b32 s{S_KB}, s{S_K}")
    a(f"s_mov_b32 s{S_N1}, 0"); a(f"s_mov_b32 s{S_N2}, 0")
    if first: ptr_wait(a)
    P.build_srds(a, 'l')
    loader_rest(a, P, first, VB, nA, nB, NS, S)

def oprime_alt_setup(a, P):
    a(f"s_and_b32 s{S_T0}, s{S_W}, 1")
    a(f"s_lshl_b32 s{S_T0}, s{S_T0}, 6")
    a(f"v_xor_b32 v10, s{S_T0}, v6")
    a("v_lshrrev_b32 v11, 5, v10             ; q = c>>1")
    a("v_lshlrev_b32 v11, 7, v11             ; q*128")
    a("v_and_b32 v12, 16, v10                ; half*16")
    a("v_add_u32 v11, v11, v12")
    a(f"s_lshl_b32 s{S_T0}, s{S_W}, 3")
    a(f"s_add_u32 s{S_T0}, s{S_T0}, s{S_R0}")
    a(f"v_add_u32 v12, s{S_T0}, v3            ; row (t=0)")
    for t in range(3):
        a(f"v_add_u32 v13, {32*t}, v12")
        a("v_lshrrev_b32 v14, 2, v13")
        a("v_lshlrev_b32 v14, 10, v14")
        a("v_and_b32 v13, 3, v13")
        a("v_lshl_add_u32 v14, v13, 5, v14")
        a("v_add_u32 v14, v14, v11")
        a(f"v_add_u32 v{44+t}, 0x200000, v14")
    a(f"s_and_b32 s{S_T0}, s{S_W}, 1")
    a(f"s_lshl_b32 s{S_T0}, s{S_T0}, 6")
    a(f"v_xor_b32 v10, s{S_T0}, v8")
    a(f"s_lshl_b32 s{S_T1}, s{S_C0}, 1")
    a(f"v_add_u32 v10, s{S_T1}, v10")
    a(f"s_lshl_b32 s{S_T0}, s{S_W}, 3")
    for t, ib in enumerate((0, 4)):
        a(f"v_add_u32 v12, s{S_T0}, v3")
        a(f"v_add_u32 v12, {8*ib}, v12          ; r")
        a("v_lshrrev_b32 v13, 4, v12")
        a("v_mul_u32_u24 v13, 80, v13")
        a("v_and_b32 v12, 15, v12")
        a("v_add_u32 v13, v13, v12")
        a("v_add_u32 v13, 64, v13")
        a("v_mul_u32_u24 v13, 1280, v13")
        a(f"v_add_u32 v{47+t}, v13, v10")

def loader_dual(a, P, VB, nA, nB, S, opr, issueA_body, issueB_body, soff):
    NSA, NSB = P.dual
    AST, BST, BBASE = 12288, 8192, NSA*12288
    Smod = 8 if opr else S
    minA = nA - (1 if 'skip' in P.Ains else 0)
    def kadv(kreg, offreg, mul):
        a(f"s_add_u32 s{kreg}, s{kreg}, 1")
        a(f"s_cmp_ge_u32 s{kreg}, {Smod}")
        a(f"s_cselect_b32 s{kreg}, 0, s{kreg}")
        soff(kreg, offreg, mul)
    def sadv(reg, stride, n):
        a(f"s_add_u32 s{reg}, s{reg}, {stride}")
        a(f"s_cmp_ge_u32 s{reg}, {stride*n}")
        a(f"s_cselect_b32 s{reg}, 0, s{reg}")
    def iA(pos):
        a(f"s_add_u32 s{S_T3}, s{S_SLOT}, s{S_LW}")
        if opr and pos is not None and pos >= 8:
            a(f"s_mov_b32 s{S_AOFF}, {(pos-8)*512}")
            issueA_body(44, None)
        else:
            issueA_body(VB, None)
            kadv(S_K, S_AOFF, 128)
        sadv(S_SLOT, AST, NSA)
    def iB(pos):
        a(f"s_add_u32 s{S_T4}, s{S_SLOTB}, s{S_LW}")
        if opr and pos is not None and pos >= 8:
            a(f"s_mov_b32 s{S_BOFF}, {(pos-8)*409600}")
            issueB_body(47, None)
        else:
            issueB_body(VB + nA, None)
            kadv(S_KB, S_BOFF, 64*P.ldb)
        sadv(S_SLOTB, BST, NSB)
    a(f"s_mov_b32 s{S_SLOT}, 0")
    a(f"s_mov_b32 s{S_SLOTB}, 0")
    soff(S_K, S_AOFF, 128)
    soff(S_KB, S_BOFF, 64*P.ldb)
    pB = min(NSB, S)
    nmain = min(pB, Smod)
    lp = a.new("bpre")
    a(f"s_mov_b32 s{S_CNT}, {nmain}")
    a.label(lp)
    iB(None)
    a(f"s_sub_u32 s{S_CNT}, s{S_CNT}, 1")
    a(f"s_cmp_lg_u32 s{S_CNT}, 0")
    a(f"s_cbranch_scc1 {lp}")
    for j in range(nmain, pB): iB(j)
    a("s_barrier      ; B_dep")
    stamp(a, 0)
    seq = [('B', j) for j in range(pB)]
    def cnt_after(s):
        last = max(i for i, (k, j) in enumerate(seq) if j == s and k in 'AB')
        return sum(minA if k == 'A' else (nB if k == 'B' else j) for (k, j) in seq[last+1:])
    LA, LB = [], []
    for s in range(S):
        capA = (NSA - 1) if s == 0 else s + NSA - 2
        LA.append(min(S - 1, capA, (LA[-1] if LA else -1) + 2))
        capB = (NSB - 1) if s == 0 else s + NSB - 2
        LB.append(min(S - 1, max(capB, pB - 1)))
    prevA, prevB = -1, pB - 1
    s = 0
    while s < S:
        kA, kB = LA[s] - prevA, LB[s] - prevB
        e = s
        if s > 0 and kA == 1 and not (opr and LA[s] >= 8):
            while (e + 1 < S and LA[e+1] - LA[e] == 1 and LB[e+1] - LB[e] == kB and kB in (0, 1)
                   and not hasattr(P, 'hook_at') ): e += 1
        uniform = False
        if e - s >= 3:
            save = list(seq); vals = []
            for j in range(s, e + 1):
                seq.append(('A', LA[j]))
                if kB: seq.append(('B', LB[j]))
                vals.append(cnt_after(j))
            seq[:] = save
            uniform = len(set(vals)) == 1
        if uniform:
            cnt = e - s + 1
            lp = a.new("lmain")
            a(f"s_mov_b32 s{S_CNT}, {cnt}")
            a.label(lp)
            iA(None)
            if kB: iB(None)
            for j in range(s, e + 1):
                seq.append(('A', LA[j]))
                if kB: seq.append(('B', LB[j]))
            a(f"s_waitcnt vmcnt({vals[0]})")
            a("s_barrier")
            a(f"s_sub_u32 s{S_CNT}, s{S_CNT}, 1")
            a(f"s_cmp_lg_u32 s{S_CNT}, 0")
            a(f"s_cbranch_scc1 {lp}")
            prevA, prevB = LA[e], LB[e]; s = e + 1
            continue
        for j in range(prevA + 1, LA[s] + 1):
            iA(j); seq.append(('A', j))
        for j in range(prevB + 1, LB[s] + 1):
            iB(j); seq.append(('B', j))
        if s == 0:
            stamp(a, 1)
            ex = P.loader_post_first(a) or 0
            P.l2_prep(a)
            ex += P.early_setup(a)
            if ex: seq.append(('X', ex))
        nw = P.mid_prefetch(a, s) or 0
        if nw: seq.append(('X', nw))
        a(f"s_waitcnt vmcnt({cnt_after(s)})")
        if s == 0: a("s_waitcnt lgkmcnt(0)")
        a("s_barrier")
        prevA, prevB = LA[s], LB[s]; s += 1
    stamp(a, 2)
    a("s_barrier          ; E2")
    P.store_fast(a)
    P.set_fidx(a)

def std_B_setup(a, P, VB, nA):
    a("v_and_b32 v8, 1, v5")
    a("v_lshlrev_b32 v8, 1, v8")
    a("v_xor_b32 v8, v4, v8")
    a("v_lshlrev_b32 v8, 4, v8")
    a(f"s_lshl_b32 s{S_T0}, s{S_W}, 3")
    a(f"v_add_u32 v9, s{S_T0}, v3         ; k = 8w + r8")
    a(f"s_mov_b32 s{S_T0}, {P.ldb}")
    a(f"v_mul_lo_u32 v9, v9, s{S_T0}")
    a("v_add_u32 v9, v9, v8")
    a(f"s_and_b32 s{S_T0}, s{S_W}, 1")
    a(f"s_lshl_b32 s{S_T0}, s{S_T0}, 6")
    a(f"v_xor_b32 v9, s{S_T0}, v9")
    a(f"s_lshl_b32 s{S_T1}, s{S_C0}, 1")
    a(f"v_add_u32 v9, s{S_T1}, v9")
    for t, (pn, ib) in enumerate(P.Bins):
        a(f"v_add_u32 v{VB+nA+t}, {ib*8*P.ldb + P.panel_coloff[pn]}, v9")

def loader_rest(a, P, first, VB, nA, nB, NS, S):

    opr = getattr(P, 'oprime', False)
    Smod = 8 if opr else S
    def soff(kreg, offreg, mul):
        if opr: mul = 128 if offreg == S_AOFF else 102400
        a(f"s_mul_i32 s{offreg}, s{kreg}, {mul}")
    def adv(kreg, offreg, mul, slotreg):
        if getattr(P, 'order2', False) and P1ROT == 'latin2':
            cnt = S_N1 if kreg == S_K else S_N2
            a(f"s_add_u32 s{kreg}, s{kreg}, 2")
            a(f"s_cmp_ge_u32 s{kreg}, {S}")
            a(f"s_cselect_b32 s{S_T0}, {S}, 0")
            a(f"s_sub_u32 s{kreg}, s{kreg}, s{S_T0}")
            a(f"s_add_u32 s{cnt}, s{cnt}, 1")
            a(f"s_cmp_eq_u32 s{cnt}, 5")
            a(f"s_addc_u32 s{kreg}, s{kreg}, 0")
        else:
            a(f"s_add_u32 s{kreg}, s{kreg}, 1")
            a(f"s_cmp_ge_u32 s{kreg}, {Smod}")
            a(f"s_cselect_b32 s{kreg}, 0, s{kreg}")
        soff(kreg, offreg, mul)
        a(f"s_add_u32 s{slotreg}, s{slotreg}, {P.STAGE}")
        a(f"s_cmp_ge_u32 s{slotreg}, {P.STAGE*NS}")
        a(f"s_cselect_b32 s{slotreg}, 0, s{slotreg}")
    def slot_only(slotreg):
        a(f"s_add_u32 s{slotreg}, s{slotreg}, {P.STAGE}")
        a(f"s_cmp_ge_u32 s{slotreg}, {P.STAGE*NS}")
        a(f"s_cselect_b32 s{slotreg}, 0, s{slotreg}")
    def issueA(fill=None, pos=None):
        a(f"s_add_u32 s{S_T3}, s{S_SLOT}, s{S_LW}")
        if opr and pos is not None and pos >= 8:
            a(f"s_mov_b32 s{S_AOFF}, {(pos-8)*512}")
            issueA_body(44, None)
            slot_only(S_SLOT)
            return
        issueA_body(VB, fill)
        adv(S_K, S_AOFF, 128, S_SLOT)
    def issueA_body(vb, fill):
        for t in range(nA):
            special = P.Ains[t]
            sk = None
            if special == 'skip':
                sk = a.new("sk")
                a(f"s_cmp_eq_u64 s[{S_MASK}:{S_MASK+1}], 0")
                a(f"s_cbranch_scc1 {sk}")
            a(f"s_add_u32 m0, s{S_T3}, {t*4096}")
            if special: a(f"s_mov_b64 exec, s[{S_MASK}:{S_MASK+1}]")
            else: a("s_nop 0")
            a(f"buffer_load_dwordx4 v{vb+t}, s[{SRD_A}:{SRD_A+3}], s{S_AOFF} offen{P.scA} lds")
            if special: a("s_mov_b64 exec, -1")
            if sk: a.label(sk)
            if fill:
                for x in fill.pop(0) if fill else []: a(x)
    def issueB(fill=None, pos=None):
        if getattr(P, 'lazyB', False):
            P.lazyB = False
            P.custom_B_setup(a, VB + nA)
        a(f"s_add_u32 s{S_T4}, s{S_SLOTB}, s{S_LW}")
        if opr and pos is not None and pos >= 8:
            a(f"s_mov_b32 s{S_BOFF}, {(pos-8)*409600}")
            issueB_body(47, None)
            slot_only(S_SLOTB)
            return
        issueB_body(VB + nA, fill)
        adv(S_KB, S_BOFF, 64*P.ldb, S_SLOTB)
    def issueB_body(vb, fill):
        for t, ent in enumerate(P.Bins):
            if isinstance(ent, dict):
                sr = SRD_B0; ldsoff = ent['lds']; skp = ent.get('skip')
            else:
                pn, ib = ent
                boff = (P.dual[0]*12288 if getattr(P, 'dual', None) else P.ABYTES)
                sr = P.panel_srd[pn]; ldsoff = boff + pn*8192 + ib*1024; skp = None
            sk = None
            if skp:
                sk = a.new("skb")
                a(f"s_cmp_ge_u32 s{S_W}, {skp}")
                a(f"s_cbranch_scc1 {sk}")
            a(f"s_add_u32 m0, s{S_T4}, {ldsoff}")
            a("s_nop 0")
            a(f"buffer_load_dwordx4 v{vb+t}, s[{sr}:{sr+3}], s{S_BOFF} offen lds")
            if sk: a.label(sk)
            if fill:
                for x in fill.pop(0) if fill else []: a(x)
    dual = getattr(P, 'dual', None)
    if dual:
        return loader_dual(a, P, VB, nA, nB, S, opr, issueA_body, issueB_body, soff)
    minA = nA - (1 if 'skip' in P.Ains else 0)
    minB = nB - sum(1 for e_ in P.Bins if isinstance(e_, dict) and e_.get('skip'))
    a(f"s_mov_b32 s{S_SLOT}, 0")
    a(f"s_mov_b32 s{S_SLOTB}, 0")
    soff(S_K, S_AOFF, 128)
    soff(S_KB, S_BOFF, 64*P.ldb)
    pB = P.prefetchB if not first else 0
    if pB:
        lp = a.new("bpre")
        a(f"s_mov_b32 s{S_CNT}, {pB}")
        a.label(lp)
        issueB()
        a(f"s_sub_u32 s{S_CNT}, s{S_CNT}, 1")
        a(f"s_cmp_lg_u32 s{S_CNT}, 0")
        a(f"s_cbranch_scc1 {lp}")
    nextra = 0
    if pB and getattr(P, 'extraB', 0) and EXTRAB:
        a(f"s_mov_b32 s4, s{S_KB}")
        for e_ in range(EXTRAB):
            for t in range(nB):
                a(f"buffer_load_dwordx4 v[152:155], v{VB+nA+t}, s[{SRD_B0}:{SRD_B0+3}], s{S_BOFF} offen")
                nextra += 1
            a(f"s_add_u32 s{S_KB}, s{S_KB}, 1")
            a(f"s_cmp_ge_u32 s{S_KB}, {S}")
            a(f"s_cselect_b32 s{S_KB}, 0, s{S_KB}")
            a(f"s_mul_i32 s{S_BOFF}, s{S_KB}, {64*P.ldb}")
        a(f"s_mov_b32 s{S_KB}, s4")
        a(f"s_mul_i32 s{S_BOFF}, s{S_KB}, {64*P.ldb}")
    if not first:
        a("s_barrier      ; B_dep")
    stamp(a, 0)
    L = []
    gate = getattr(P, 'gate', None) if not first else None
    for s in range(S):
        cap = (NS - 1) if s == 0 else s + NS - 2
        prev = L[-1] if L else -1
        if gate and s <= gate[1]:
            L.append(min(gate[0] - 1, cap, prev + 2))
        else:
            L.append(min(S - 1, cap, prev + (3 if gate else (RAMP if not first else 2))))
    if gate:
        assert gate[0] <= pB and gate[0] - 1 <= NS - 1
        nonce_from_lds(a)
    seq = [('B', j) for j in range(pB)]
    if nextra: seq.append(('X', nextra))
    if hasattr(P, 'pre_issue'):
        npre = P.pre_issue(a)
    def cnt_after(s):
        last = max(i for i, (k, j) in enumerate(seq) if j == s and k in 'AB')
        n = 0
        for (k, j) in seq[last+1:]:
            n += minA if k == 'A' else (minB if k == 'B' else j)
        return n
    def issue_stage(j, fill=None):
        if j >= pB:
            issueA(fill, j); seq.append(('A', j))
            issueB(fill, j); seq.append(('B', j))
        else:
            issueA(fill, j); seq.append(('A', j))
    prev = -1
    s = 0
    while s < S:
        k = L[s] - prev
        e = s
        if k == 1 and L[s] >= pB and s > 0 and not getattr(P, 'unroll', False):
            while e + 1 < S and L[e+1] - L[e] == 1 and (L[e+1] - (e+1)) == (L[s] - s) and (getattr(P, 'steady_end', None) is None or e + 1 <= P.steady_end): e += 1
        if e - s >= 2 and s - 0 >= 0 and min(range(s, e+1)) >= 0 and s >= pB - (L[s] - s) and all(j >= pB for j in range(s, s+1)):
            cnt = e - s + 1
            lp = a.new("lmain")
            a(f"s_mov_b32 s{S_CNT}, {cnt}")
            a.label(lp)
            parts = P.loader_stage_work_parts() if P.has_stage_work else None
            issue_stage(L[s], parts)
            if parts:
                for grp in parts:
                    for x in grp: a(x)
            n = cnt_after(s)
            a(f"s_waitcnt vmcnt({n})")
            if P.has_stage_work: a("s_waitcnt lgkmcnt(0)")
            a("s_barrier")
            a(f"s_sub_u32 s{S_CNT}, s{S_CNT}, 1")
            a(f"s_cmp_lg_u32 s{S_CNT}, 0")
            a(f"s_cbranch_scc1 {lp}")
            for j in range(s+1, e+1):
                seq.append(('A', L[j])); seq.append(('B', L[j]))
            prev = L[e]; s = e + 1
            continue
        parts = P.loader_stage_work_parts() if (P.has_stage_work and s > 0) else None
        for j in range(prev+1, L[s]+1):
            issue_stage(j, parts if j == prev+1 else None)
        if s == 0:
            stamp(a, 1)
            ex = P.loader_post_first(a) or 0
            P.l2_prep(a)
            if getattr(P, 'early_pre', False): ex += P.early_setup(a)
            if ex: seq.append(('X', ex))
        if parts:
            for grp in parts:
                for x in grp: a(x)
        nw = P.mid_prefetch(a, s) or 0
        if nw: seq.append(('X', nw))
        if gate and s == gate[1]: P.deps(a, wave=7)
        a(f"s_waitcnt vmcnt({cnt_after(s)})")
        if hasattr(P, 'post_wait'): P.post_wait(a, s)
        if P.has_stage_work or s == 0: a("s_waitcnt lgkmcnt(0)")
        a("s_barrier")
        if s == 0:
            ex = P.loader_post_b0(a) or 0
            if ex: seq.append(('X', ex))
        prev = L[s]; s += 1
    stamp(a, 2)
    if P.has_stage_work:
        for grp in P.loader_stage_work_parts():
            for x in grp: a(x)
    if getattr(P, 'fused', False):
        P.loader_fused_tail(a)
        return
    P.loader_final(a)
    if getattr(P, 'chunk_epi', False): P.loader_store_setup(a)
    if getattr(P, 'early_pre', False):
        a("s_barrier          ; E2")
        P.store_fast(a)
        P.set_fidx(a)
        return
    P.store_pre(a)
    ny = 0
    if P.has_e1:
        a("s_waitcnt lgkmcnt(0)")
        a("s_barrier      ; E1")
    if getattr(P, 'stream_epi', False):
        P.set_fidx(a)
        return
    if getattr(P, 'chunk_epi', False):
        P.loader_epilogue(a)
        P.set_fidx(a)
        return
    a("s_barrier          ; E2")
    store_pass(a, P, ny)

def consumer_phase(a, P, first):
    if getattr(P, 'modeS', False): return consumer_phase_S(a, P, first)
    P.consumer_setup(a)
    NW = len(P.wlist)
    XF = [0, 4*P.NXMAX]
    WF = [8*P.NXMAX, 8*P.NXMAX + 4*NW]
    wk, wt = getattr(P, 'wstep', (4096, 512))
    def reads(kk, buf):
        r = []
        for wi, (areg, off) in enumerate(P.wlist):
            base = WF[buf] + 4*wi
            r.append(f"ds_read_b64_tr_b16 a[{base}:{base+1}], v{areg} offset:{off + kk*wk}")
            r.append(f"ds_read_b64_tr_b16 a[{base+2}:{base+3}], v{areg} offset:{off + kk*wk + wt}")
        for xi, (areg0, areg1, off) in enumerate(P.xlist):
            base = XF[buf] + 4*xi
            areg = areg0 if kk == 0 else areg1
            r.append(f"ds_read_b128 a[{base}:{base+3}], v{areg} offset:{off}")
        return r
    def mfmas(buf, first_=False):
        m = []
        for (xi, wi, acc) in P.mf:
            c = "0" if first_ else f"v[{acc}:{acc+3}]"
            m.append(f"v_mfma_f32_16x16x32_bf16 v[{acc}:{acc+3}], a[{WF[buf]+4*wi}:{WF[buf]+4*wi+3}], a[{XF[buf]+4*xi}:{XF[buf]+4*xi+3}], {c}")
        return m
    block = make_block(a, P.RPM)
    cons_prologue(a, P, first)
    ph0 = first and getattr(P, 'fused', False) and PH0
    if ph0: P.ph0_after_b0(a)
    for x in reads(0, 0): a(x)
    a(f"s_mov_b32 s{S_CNT}, {P.S-1}")
    a("s_waitcnt lgkmcnt(0)")
    def stats4(buf):
        if not getattr(P, 'mfma_stats4', False): return
        sk = a.new("st4")
        a(f"s_and_b32 s{S_T0}, s{S_N1}, 3")
        a(f"s_add_u32 s{S_N1}, s{S_N1}, 1")
        a(f"s_cmp_eq_u32 s{S_T0}, s{S_WAVE}")
        a(f"s_cbranch_scc0 {sk}")
        for x in P.stats_mfmas([f"a[{XF[buf]+4*xi}:{XF[buf]+4*xi+3}]" for xi in range(len(P.xlist))]): a(x)
        a.label(sk)
    st4 = getattr(P, 'mfma_stats4', False)
    block(mfmas(0, True), reads(1, 1), slot_adv(P) + P.addr_update())
    stats4(0)
    if ph0: P.ph0_publish(a)
    lp = a.new("cloop")
    if ALIGN: a.raw(f".p2align {ALIGN}")
    a.label(lp)
    a("s_waitcnt lgkmcnt(0)")
    a("s_barrier")
    block(mfmas(1), reads(0, 0), [f"s_sub_u32 s{S_CNT}, s{S_CNT}, 1"])
    stats4(1)
    a("s_waitcnt lgkmcnt(0)")
    block(mfmas(0), reads(1, 1), slot_adv(P) + P.addr_update() + ([] if st4 else [f"s_cmp_lg_u32 s{S_CNT}, 0"]))
    stats4(0)
    if st4: a(f"s_cmp_lg_u32 s{S_CNT}, 0")
    a(f"s_cbranch_scc1 {lp}")
    a("s_waitcnt lgkmcnt(0)")
    block(mfmas(1), [])
    stats4(1)
    cons_tail(a, P, first)

def make_block(a, RPM):
    def block(m, r, fill=()):
        q = list(r); fl = list(fill)
        for i, x in enumerate(m):
            a(x)
            k = 0
            while q and k < RPM:
                a(q.pop(0)); k += 1
            if not q:
                while fl and k < 2:
                    a(fl.pop(0)); k += 1
        for x in q: a(x)
        for x in fl: a(x)
    return block

def slot_adv(P):
    if getattr(P, 'dual', None):
        NSA, NSB = P.dual
        return [f"s_add_u32 s{S_SLOT}, s{S_SLOT}, 12288",
                f"s_cmp_ge_u32 s{S_SLOT}, {12288*NSA}",
                f"s_cselect_b32 s{S_SLOT}, 0, s{S_SLOT}",
                f"s_add_u32 s{S_SLOTB}, s{S_SLOTB}, 8192",
                f"s_cmp_ge_u32 s{S_SLOTB}, {NSA*12288 + 8192*NSB}",
                f"s_cselect_b32 s{S_SLOTB}, {NSA*12288}, s{S_SLOTB}"]
    return [f"s_add_u32 s{S_SLOT}, s{S_SLOT}, {P.STAGE}",
            f"s_cmp_ge_u32 s{S_SLOT}, {P.STAGE*P.NS}",
            f"s_cselect_b32 s{S_SLOT}, 0, s{S_SLOT}"]

def cons_prologue(a, P, first):
    a(f"s_mov_b32 s{S_SLOT}, 0")
    if getattr(P, 'dual', None): a(f"s_mov_b32 s{S_SLOTB}, {P.dual[0]*12288}")
    for x in P.addr_update(): a(x)
    if first: ptr_wait(a)
    P.build_srds(a, 'c')
    if not first:
        if P.key == 'p3': dry_call(a, 2, "L_epi3_start", "L_epi3_ret")
        two = TWOSTEP and P.key not in ONESTEP
        if two: P.deps_first(a)
        else: P.deps(a)
        a("s_barrier      ; B_dep")
        if getattr(P, 'early_pre', False): P.early_setup(a)
        if two and not getattr(P, 'gate', None):
            if COMB:
                skf = a.new("skfull")
                a(f"s_cmp_eq_u32 s{S_N2}, 1")
                a(f"s_cbranch_scc1 {skf}")
                P.deps(a)
                a.label(skf)
            else:
                P.deps(a)
    else:
        nonce_publish(a)
        if getattr(P, 'fused', False) and PH0: P.ph0_produce(a)
        if getattr(P, 'fused', False):
            dry_call(a, 1, "L_epi1_start", "L_epi1_ret")
            dry_call(a, 2, "L_att_start", "L_att_ret")
    stamp(a, 0)
    a("s_barrier          ; B_0")
    stamp(a, 1)

def cons_tail(a, P, first):
    stamp(a, 2)
    if first and not (getattr(P, 'fused', False) and PH0): nonce_issue(a)
    a("s_nop 7")
    P.epilogue(a)
    if getattr(P, 'stream_epi', False) or getattr(P, 'chunk_epi', False):
        P.set_fidx(a)
        return
    a("s_waitcnt lgkmcnt(0)")
    if getattr(P, 'early_pre', False):
        a("s_barrier          ; E2")
        P.store_fast(a)
        P.set_fidx(a)
        return
    P.store_pre(a)
    a("s_barrier          ; E2")
    store_pass(a, P)

def consumer_phase_S(a, P, first):
    P.consumer_setup(a)
    for r in range(P.ACC, P.ACC + P.NACC): a(f"v_mov_b32 v{r}, 0")
    def rng(t):
        k, i = t
        return f"{k}[{i}:{i+3}]"
    def half(t, h):
        k, i = t
        return f"{k}[{i+2*h}:{i+2*h+1}]"
    def reads(buf):
        r = []
        for kk in range(2):
            for wi, (areg, off) in enumerate(P.wlist):
                t = P.fragW(buf, kk, wi)
                r.append(f"ds_read_b64_tr_b16 {half(t,0)}, v{areg} offset:{off + kk*4096}")
                r.append(f"ds_read_b64_tr_b16 {half(t,1)}, v{areg} offset:{off + kk*4096 + 512}")
            for xi, (areg0, areg1, off) in enumerate(P.xlist):
                areg = areg0 if kk == 0 else areg1
                r.append(f"ds_read_b128 {rng(P.fragX(buf, kk, xi))}, v{areg} offset:{off}")
        return r
    def mfmas(buf):
        m = []
        for kk in range(2):
            for (xi, wi, acc) in P.mf:
                m.append(f"v_mfma_f32_16x16x32_bf16 v[{acc}:{acc+3}], {rng(P.fragW(buf, kk, wi))}, {rng(P.fragX(buf, kk, xi))}, v[{acc}:{acc+3}]")
        return m
    def stats(buf):
        if not getattr(P, 'mfma_stats', False) or 'nostats' in EXP: return
        l1 = a.new("st"); l2 = a.new("st")
        a(f"s_cmp_eq_u32 s{S_J}, 1")
        a(f"s_cbranch_scc1 {l1}")
        for x in P.stats_mfmas([rng(P.fragX(buf, 0, xi)) for xi in range(4)]): a(x)
        a(f"s_branch {l2}")
        a.label(l1)
        for x in P.stats_mfmas([rng(P.fragX(buf, 1, xi)) for xi in range(4)]): a(x)
        a.label(l2)
    block = make_block(a, P.RPM)
    cons_prologue(a, P, first)
    for x in reads(0): a(x)
    for x in slot_adv(P) + P.addr_update(): a(x)
    S = P.S
    npair = (S - 1)//2
    def step(cur, fill_extra=()):
        a("s_waitcnt lgkmcnt(0)")
        a("s_barrier")
        block(mfmas(cur), reads(1 - cur), slot_adv(P) + P.addr_update() + list(fill_extra))
        stats(cur)
    a(f"s_mov_b32 s{S_CNT}, {npair}")
    lp = a.new("cloop")
    if ALIGN: a.raw(f".p2align {ALIGN}")
    a.label(lp)
    step(0, [f"s_sub_u32 s{S_CNT}, s{S_CNT}, 1"])
    step(1)
    a(f"s_cmp_lg_u32 s{S_CNT}, 0")
    a(f"s_cbranch_scc1 {lp}")
    last = 0
    if (S - 1) % 2 == 1:
        step(0); last = 1
    a("s_waitcnt lgkmcnt(0)")
    block(mfmas(last), [])
    stats(last)
    cons_tail(a, P, first)

def ptr_wait(a):
    a("s_waitcnt lgkmcnt(0)")
    if PROFDBG: a(f"s_mov_b32 s{S_P0}, s98")
    srd(a, SRD_FLAG, ptr(KA_WS), WS_FLAG, 0x20000)

def cons_lane(a):
    a("v_and_b32 v3, 15, v2")
    a("v_lshrrev_b32 v4, 4, v2")

def x_addr_const(a, dst, rowbase_sgpr, rowbase_const=0):
    a("v_lshrrev_b32 v5, 1, v3")
    a("v_xor_b32 v5, v4, v5")
    a("v_lshlrev_b32 v5, 4, v5")
    a(f"v_lshl_add_u32 v{dst}, v3, 7, v5")
    if rowbase_sgpr is not None:
        a(f"s_lshl_b32 s{S_T0}, s{rowbase_sgpr}, 7")
        a(f"v_add_u32 v{dst}, s{S_T0}, v{dst}")
    if rowbase_const:
        a(f"v_add_u32 v{dst}, {rowbase_const*128}, v{dst}")

def w_addr_const(a, dst):
    a("v_lshrrev_b32 v5, 2, v3        ; r")
    a("v_lshl_add_u32 v6, v4, 3, v5   ; 8g+r")
    a("v_lshlrev_b32 v6, 7, v6")
    a("v_lshrrev_b32 v5, 1, v5        ; r>>1")
    a("v_and_b32 v7, 1, v4")
    a("v_lshl_or_b32 v5, v7, 1, v5    ; h")
    a("v_lshl_add_u32 v6, v5, 5, v6")
    a("v_and_b32 v5, 3, v3")
    a(f"v_lshl_add_u32 v{dst}, v5, 3, v6")

def t_write_addr(a, dst, base_const):
    a("v_lshrrev_b32 v5, 1, v4")
    a("v_and_b32 v6, 7, v3")
    a("v_xor_b32 v5, v5, v6")
    a("v_lshlrev_b32 v5, 4, v5")
    a("v_and_b32 v6, 1, v4")
    a("v_lshl_add_u32 v5, v6, 3, v5")
    a(f"v_lshl_add_u32 v{dst}, v3, 7, v5")
    a(f"v_add_u32 v{dst}, {base_const}, v{dst}")

def pad_init(a, P, row0, nzero_rows, ones_row):
    a("v_mov_b32 v12, 0"); a("v_mov_b32 v13, 0"); a("v_mov_b32 v14, 0"); a("v_mov_b32 v15, 0")
    a(f"v_mov_b32 v10, {hex(ONES)}")
    a("v_lshlrev_b32 v11, 4, v2        ; lane*16")
    for rep in range((P.NS + 3)//4):
        sk = a.new("pad")
        a(f"s_add_u32 s{S_T0}, s{S_W}, {4*rep}")
        a(f"s_cmp_ge_u32 s{S_T0}, {P.NS}")
        a(f"s_cbranch_scc1 {sk}")
        a(f"s_mul_i32 s{S_T0}, s{S_T0}, {P.STAGE}")
        nb = nzero_rows*128; off = 0
        while off < nb:
            lanes = min(64, (nb - off)//16)
            a(f"v_add_u32 v16, s{S_T0}, v11")
            if lanes < 64: set_exec(a, (1 << lanes) - 1)
            a(f"ds_write_b128 v16, v[12:15] offset:{row0*128 + off}")
            if lanes < 64: a("s_mov_b64 exec, -1")
            off += lanes*16
        if ones_row is not None:
            a(f"v_lshlrev_b32 v16, 2, v2")
            a(f"v_add_u32 v16, s{S_T0}, v16")
            set_exec(a, 0xffffffff)
            a(f"ds_write_b32 v16, v10 offset:{ones_row*128}")
            a("s_mov_b64 exec, -1")
        a.label(sk)

def store_pass(a, P, ny=0):
    a("v_lshrrev_b32 v3, 3, v2")
    a("v_and_b32 v4, 7, v2")
    a("v_xor_b32 v5, v4, v3")
    a("v_lshlrev_b32 v5, 4, v5")
    a("v_lshl_add_u32 v5, v3, 7, v5")
    a(f"s_lshl_b32 s{S_T0}, s{S_WAVE}, 10")
    a(f"v_add_u32 v5, s{S_T0}, v5")
    a(f"v_add_u32 v5, {P.TBASE}, v5")
    a(f"s_lshl_b32 s{S_T0}, s{S_WAVE}, 3")
    a(f"s_add_u32 s{S_T0}, s{S_T0}, s{S_R0}")
    a(f"v_add_u32 v6, s{S_T0}, v3")
    a(f"s_mov_b32 s{S_T1}, {P.ldo}")
    a(f"v_mul_lo_u32 v7, v6, s{S_T1}")
    a(f"s_lshl_b32 s{S_T0}, s{S_C0}, 1")
    a(f"v_lshl_add_u32 v7, v4, 4, v7")
    a(f"v_add_u32 v7, s{S_T0}, v7")
    a("v_mov_b32 v8, 0x80000000")
    P.ny = ny
    P.store_body(a)
    P.set_fidx(a)

def store_addr(a, k, dst, P, coloff=0):
    a(f"v_add_u32 v9, {64*k}, v6")
    a(f"v_cmp_gt_u32 vcc, s{S_REND}, v9")
    a(f"v_add_u32 v{dst}, {64*k*P.ldo + coloff}, v7")
    a("s_nop 0")
    a(f"v_cndmask_b32 v{dst}, v8, v{dst}, vcc")

class P1(Phase):
    key = 'p1'; kind = "p1"; NT = 255
    MV = 121; NC = 128; lda = 1280; ldb = 3840; ldo = 3840
    ABYTES = 16384; STAGE = 32768; NS = 4; S = 10
    NXMAX = 4; RPM = 1
    has_stage_work = False; has_e1 = True
    mfma_stats = True
    order2 = True
    GRAM = 96; SUMA = 112; VONES = 24
    modeS = True; NACC = 64
    def fragW(self, buf, kk, wi): return ('a', 64*buf + 16*kk + 4*wi)
    def fragX(self, buf, kk, xi):
        if buf == 0: return ('a', 32 + 16*kk + 4*xi)
        return ('v', 128 + 16*kk + 4*xi)
    scA = ""
    panel_coloff = [0, 128]; panel_srd = [SRD_B0, SRD_B0]
    LDS_ST = 131072; LDS_CS = 131072 + 2048
    TBASE = 2*32768
    rot = (5, 10, 2)
    Ains = [None, None, None, 'mask']
    Bins = [(0, 0), (0, 4), (1, 0), (1, 4)]
    def __init__(self):
        self.vXc, self.vWc = 8, 9
        self.vXa, self.vXb = 10, 11
        self.vW = [12, 13, 14, 15]
        self.xlist = [(self.vXa, self.vXb, 2048*x) for x in range(4)]
        self.wlist = [(self.vW[f], self.ABYTES) for f in range(4)]
        self.ACC = 32
        self.mf = [(x, f, self.ACC + 4*(4*x + f)) for x in range(4) for f in range(4)]
    def rot_start(self, a):
        if P1ROT == "lock":
            a(f"s_mov_b32 s{S_K}, 0"); return
        if P1ROT == "two":
            a(f"s_add_u32 s{S_K}, s{S_RT}, s{S_CT}")
            a(f"s_and_b32 s{S_K}, s{S_K}, 1")
            a(f"s_mul_i32 s{S_K}, s{S_K}, 5"); return
        if P1ROT == "ten":
            a(f"s_mul_i32 s{S_K}, s{S_RT}, 3")
            a(f"s_add_u32 s{S_K}, s{S_K}, s{S_CT}")
            divc(a, S_T0, S_K, 10)
            a(f"s_mul_i32 s{S_T0}, s{S_T0}, 10")
            a(f"s_sub_u32 s{S_K}, s{S_K}, s{S_T0}"); return
        a(f"s_add_u32 s{S_K}, s{S_RT}, s{S_CT}")
        divc(a, S_T0, S_K, 5)
        a(f"s_mul_i32 s{S_T0}, s{S_T0}, 5")
        a(f"s_sub_u32 s{S_K}, s{S_K}, s{S_T0}")
        a(f"s_lshl_b32 s{S_K}, s{S_K}, 1")
    def l2_prep(self, a): l2_setup(a, "rm", 250, 64, KA_WO, D*D*2, 1280, D)
    def mid_prefetch(self, a, s):
        if s == 8: return l2_issue(a, KA_WO, 1280, D)
    def mask_setup(self, a):
        a(f"s_cmp_eq_u32 s{S_W}, 3")
        a(f"s_cselect_b32 s{S_MASK}, 0xff, -1")
        a(f"s_cselect_b32 s{S_MASK+1}, 0, -1")
    def build_srds(self, a, role):
        if role == 'l':
            srd(a, SRD_A, ptr(KA_X), 0, S_TOK*D*2)
            srd(a, SRD_B0, ptr(KA_WQKV), 0, D*NQKV*2)
        srd(a, SRD_OUT, ptr(KA_WS), WS_QKV, S_TOK*NQKV*2)
    def set_fidx(self, a):
        a(f"s_mul_i32 s{S_FIDX}, s{S_RT}, 15")
        a(f"s_add_u32 s{S_FIDX}, s{S_FIDX}, s{S_CT}")
        a(f"s_lshl_b32 s{S_FIDX}, s{S_FIDX}, 7")
    def loader_post_first(self, a):
        pad_init(a, self, 121, 6, 127)
        return 0
    def stats_mfmas(self, xregs):
        m = []
        for x in range(4):
            xa = xregs[x]
            g = self.GRAM + 4*x; sm = self.SUMA + 4*x
            m.append(f"v_mfma_f32_16x16x32_bf16 v[{g}:{g+3}], {xa}, {xa}, v[{g}:{g+3}]")
            m.append(f"v_mfma_f32_16x16x32_bf16 v[{sm}:{sm+3}], v[{self.VONES}:{self.VONES+3}], {xa}, v[{sm}:{sm+3}]")
        return m
    def consumer_setup(self, a):
        cons_lane(a)
        a(f"s_lshr_b32 s{S_I}, s{S_WAVE}, 1")
        a(f"s_and_b32 s{S_J}, s{S_WAVE}, 1")
        a(f"s_lshl_b32 s{S_T1}, s{S_I}, 6")
        x_addr_const(a, self.vXc, S_T1)
        w_addr_const(a, self.vWc)
        a(f"s_lshl_b32 s{S_T0}, s{S_J}, 13")
        a(f"v_add_u32 v{self.vWc}, s{S_T0}, v{self.vWc}")
        for r in range(4): a(f"v_mov_b32 v{self.VONES+r}, {hex(ONES)}")
        for r in range(32): a(f"v_mov_b32 v{self.GRAM+r}, 0")
        a(f"s_lshl_b32 s{S_T0}, s{S_J}, 8       ; j*64*4")
        a(f"v_lshlrev_b32 v16, 4, v4            ; g*16 bytes")
        a(f"v_add_u32 v16, s{S_T0}, v16")
        a(f"v_add_u32 v16, {self.LDS_CS}, v16")
        t_write_addr(a, 17, self.TBASE)
        a(f"s_lshl_b32 s{S_T0}, s{S_WAVE}, 13")
        a(f"v_add_u32 v17, s{S_T0}, v17")
        for f in range(1, 4): a(f"v_xor_b32 v{17+f}, {32*f}, v17")
        a(f"s_lshl_b32 s{S_T0}, s{S_I}, 9       ; i*64*8")
        a(f"s_lshl_b32 s{S_T1}, s{S_J}, 10      ; j*128*8")
        a(f"s_add_u32 s{S_T1}, s{S_T1}, s{S_T0}")
        a(f"v_lshlrev_b32 v7, 3, v3")
        a(f"v_add_u32 v21, s{S_T1}, v7")
        a(f"v_add_u32 v21, {self.LDS_ST}, v21")
        a(f"v_add_u32 v22, s{S_T0}, v7")
        a(f"v_add_u32 v22, {self.LDS_ST}, v22")
        a("v_lshrrev_b32 v5, 3, v2             ; r8")
        a("v_and_b32 v6, 7, v2                 ; c")
        a("v_xor_b32 v7, v6, v5")
        a("v_lshlrev_b32 v7, 4, v7")
        a("v_lshl_add_u32 v23, v5, 7, v7")
        a(f"s_lshl_b32 s{S_T0}, s{S_WAVE}, 13")
        a(f"s_add_u32 s{S_T0}, s{S_T0}, {self.TBASE}")
        a(f"v_add_u32 v23, s{S_T0}, v23")
        a(f"s_lshl_b32 s{S_T0}, s{S_I}, 6")
        a(f"s_add_u32 s{S_T0}, s{S_T0}, s{S_R0}")
        a(f"v_add_u32 v28, s{S_T0}, v5")
        a(f"s_mov_b32 s{S_T1}, 3840")
        a(f"v_mul_lo_u32 v28, v28, s{S_T1}")
        a("v_lshl_add_u32 v28, v6, 4, v28")
        a(f"s_lshl_b32 s{S_T0}, s{S_J}, 6")
        a(f"s_add_u32 s{S_T0}, s{S_T0}, s{S_C0}")
        a(f"s_lshl_b32 s{S_T0}, s{S_T0}, 1")
        a(f"v_add_u32 v28, s{S_T0}, v28")
    def addr_update(self):
        r = [f"v_add_u32 v{self.vXa}, s{S_SLOT}, v{self.vXc}",
             f"v_add_u32 v{self.vW[0]}, s{S_SLOT}, v{self.vWc}",
             f"v_xor_b32 v{self.vXb}, 64, v{self.vXa}"]
        for f in range(1, len(self.vW)):
            r.append(f"v_xor_b32 v{self.vW[f]}, {32*f}, v{self.vW[0]}")
        return r
    stream_epi = True
    def epilogue(self, a):
        nocs = a.new("nocs")
        a(f"s_cmp_eq_u32 s{S_I}, 1")
        a(f"s_cbranch_scc0 {nocs}")
        set_exec(a, 0x8000800080008000)
        for f in range(4):
            acc = self.ACC + 4*(4*3 + f)
            a(f"ds_write_b128 v16, v[{acc}:{acc+3}] offset:{64*f}")
        a("s_mov_b64 exec, -1")
        a.label(nocs)
        for i_, m_ in enumerate((0x22222222, 0x44444444, 0x88888888)):
            a(f"s_mov_b32 s{80+2*i_}, {hex(m_)}"); a(f"s_mov_b32 s{81+2*i_}, {hex(m_)}")
        for x in range(4):
            g = self.GRAM + 4*x
            a(f"v_cndmask_b32 v{g+1}, v{g}, v{g+1}, s[80:81]")
            a(f"v_cndmask_b32 v{g+1}, v{g+1}, v{g+2}, s[82:83]")
            a(f"v_cndmask_b32 v{g+1}, v{g+1}, v{g+3}, s[84:85]")
            a(f"v_mov_b32 v{g}, v{self.SUMA+4*x}           ; sum")
        set_exec(a, 0xF | (0xF << 20) | (0xF << 40) | (0xF << 60))
        for x in range(4):
            g = self.GRAM + 4*x
            a(f"ds_write_b64 v21, v[{g}:{g+1}] offset:{128*x}")
        a("s_mov_b64 exec, -1")
        a("s_waitcnt lgkmcnt(0)")
        a("s_barrier      ; E1")
        CS = 128; ST = 144
        for x in range(4):
            a(f"ds_read_b64 v[{ST+2*x}:{ST+2*x+1}], v22 offset:{128*x}")
            a(f"ds_read_b64 v[{96+2*x}:{97+2*x}], v22 offset:{1024 + 128*x}")
        for f in range(4):
            a(f"ds_read_b128 v[{CS+4*f}:{CS+4*f+3}], v16 offset:{64*f}")
        a("s_waitcnt lgkmcnt(4)")
        for x in range(4):
            st = ST + 2*x
            a(f"v_pk_add_f32 v[{st}:{st+1}], v[{st}:{st+1}], v[{96+2*x}:{97+2*x}]")
            a(f"v_mul_f32 v{st}, {hex(f2u(1.0/D))}, v{st}          ; mean")
            a(f"v_mul_f32 v{st+1}, {hex(f2u(1.0/D))}, v{st+1}")
            a(f"v_fma_f32 v{st+1}, -v{st}, v{st}, v{st+1}      ; var")
            a(f"v_add_f32 v{st+1}, {hex(f2u(1e-5))}, v{st+1}")
            a(f"v_rsq_f32 v{st+1}, v{st+1}")
        a("s_waitcnt lgkmcnt(0)")
        RB = [96, 104]
        def stores(x):
            rb = RB[x & 1]
            for u in range(2):
                a(f"v_add_u32 v{29+u}, {(16*x + 8*u)*3840}, v28")
            for u in range(2):
                if x == 3 and u == 1:
                    a(f"s_cmp_eq_u32 s{S_I}, 1")
                    a("s_cselect_b32 exec_lo, 0xff, -1")
                    a("s_cselect_b32 exec_hi, 0, -1")
                a(f"buffer_store_dwordx4 v[{rb+4*u}:{rb+4*u+3}], v{29+u}, s[{SRD_OUT}:{SRD_OUT+3}], 0 offen{SC1}")
            if x == 3: a("s_mov_b64 exec, -1")
        for x in range(4):
            st = ST + 2*x
            for f in range(4):
                acc = self.ACC + 4*(4*x + f)
                for hh in (0, 2):
                    a(f"v_pk_fma_f32 v[{acc+hh}:{acc+hh+1}], v[{CS+4*f+hh}:{CS+4*f+hh+1}], v[{st}:{st+1}], v[{acc+hh}:{acc+hh+1}] op_sel_hi:[1,0,1] neg_lo:[0,1,0] neg_hi:[0,1,0]")
                for hh in (0, 2):
                    a(f"v_pk_mul_f32 v[{acc+hh}:{acc+hh+1}], v[{acc+hh}:{acc+hh+1}], v[{st}:{st+1}] op_sel:[0,1] op_sel_hi:[1,1]")
                a(f"v_cvt_pk_bf16_f32 v{acc}, v{acc}, v{acc+1}")
                a(f"v_cvt_pk_bf16_f32 v{acc+1}, v{acc+2}, v{acc+3}")
                a(f"ds_write_b64 v{17+f}, v[{acc}:{acc+1}] offset:{2048*x}")
            rb = RB[x & 1]
            if x >= 1:
                a("s_waitcnt lgkmcnt(4)")
                stores(x - 1)
            for u in range(2):
                a(f"ds_read_b128 v[{rb+4*u}:{rb+4*u+3}], v23 offset:{2048*x + 1024*u}")
        a("s_waitcnt lgkmcnt(0)")
        stores(3)


class P1F(Phase):
    key = 'p1'; kind = "p1f"; NT = 256
    MV = 64; NC = 80; lda = 1280; ldb = 3840
    ABYTES = 10240; STAGE = 40960; NS = 3; S = 10
    NXMAX = 5
    @property
    def RPM(self): return RPM1
    has_e1 = True; fused = True; custom_B = True
    scA = ""
    Ains = [None, None, 'skip']
    Bins = [dict(lds=10240 + 4096*t) for t in range(7)] + [dict(lds=10240 + 4096*7, skip=2)]
    panel_srd = [SRD_B0]
    LDS_STP = 122880
    QT = 40960; QROW = 488
    OT = 81920; OROW = 176
    ACC = 32; GRAM = 112; SUMA = 132; VONES = 152
    @property
    def mfma_stats4(self): return not PH0
    @property
    def steady_end(self): return 6 if PH0 else None
    def __init__(self):
        self.vXc = 8; self.vXa, self.vXb = 9, 10
        self.vWc = [11, 12, 13, 14]; self.vW = [15, 16, 17, 18]
        self.xlist = [(self.vXa, self.vXb, 2048*x) for x in range(5)]
        self.wlist = None
        self.mf = [(x, j, self.ACC + 4*(4*x + j)) for x in range(5) for j in range(4)]
    def rot_start(self, a):
        if P1FROT == 'lock':
            a(f"s_mov_b32 s{S_K}, 0"); return
        if P1FROT == 'rot4':
            a(f"s_and_b32 s{S_K}, s{S_RT}, 3")
            a(f"s_and_b32 s{S_T0}, s{S_CT}, 1")
            a(f"s_lshl_b32 s{S_T0}, s{S_T0}, 2")
            a(f"s_add_u32 s{S_K}, s{S_K}, s{S_T0}"); return
        if P1FROT == 'rot8':
            a(f"s_and_b32 s{S_K}, s{S_RT}, 7")
            a(f"s_mul_i32 s{S_K}, s{S_K}, 5")
            a(f"s_lshr_b32 s{S_K}, s{S_K}, 2")
            return
        a(f"s_add_u32 s{S_K}, s{S_RT}, s{S_CT}")
        divc(a, S_T0, S_K, 5)
        a(f"s_mul_i32 s{S_T0}, s{S_T0}, 5")
        a(f"s_sub_u32 s{S_K}, s{S_K}, s{S_T0}")
        a(f"s_lshl_b32 s{S_K}, s{S_K}, 1")
    @property
    def order2(self): return P1FROT == 'latin2'
    def pre_issue(self, a):
        if not APF: return 0
        a(f"s_and_b32 s{S_T0}, s{S_CT}, 3")
        a(f"s_mul_i32 s{S_T0}, s{S_T0}, 20")
        a(f"s_add_u32 s{S_T0}, s{S_T0}, s{S_R0}")
        a(f"s_mul_i32 s{S_T0}, s{S_T0}, 1280")
        a(f"s_lshl_b32 s{S_T1}, s{S_W}, 10")
        a(f"s_add_u32 s{S_T0}, s{S_T0}, s{S_T1}")
        a("v_lshlrev_b32 v60, 4, v2")
        a(f"v_add_u32 v60, s{S_T0}, v60")
        n = 7
        for i in range(n):
            a(f"buffer_load_dwordx4 v[152:155], v60, s[{SRD_A}:{SRD_A+3}], 0 offen")
            if i + 1 < n: a("v_add_u32 v60, 4096, v60")
        return n
    def tile_consts(self, a):
        a(f"s_lshl_b32 s{S_R0}, s{S_RT}, 6")
        a(f"s_sub_u32 s{S_R0}, s{S_R0}, 14")
        a(f"s_mul_i32 s{S_C0}, s{S_CT}, 160")
    def mask_setup(self, a):
        a(f"s_cmp_eq_u32 s{S_W}, 0")
        a(f"s_cselect_b32 s{S_MASK+1}, -1, 0xffff")
        a(f"s_cmp_lt_u32 s{S_W}, 2")
        a(f"s_cselect_b32 s{S_MASK}, -1, 0")
        a(f"s_cselect_b32 s{S_MASK+1}, s{S_MASK+1}, 0")
    def custom_B_setup(self, a, vb):
        a(f"s_lshl_b32 s{S_T0}, s{S_W}, 6")
        a(f"v_add_u32 v8, s{S_T0}, v2            ; c0")
        vdiv(a, 9, 8, 10, 256)
        a("v_mul_u32_u24 v10, 10, v9")
        a("v_sub_u32 v10, v8, v10                ; ch")
        a("v_mul_u32_u24 v11, 3840, v9")
        a("v_lshl_add_u32 v11, v10, 4, v11")
        a(f"v_add_u32 v{vb}, s{S_C0}, v11         ; voff t=0")
        for t in range(1, 8):
            a("v_add_u32 v10, 6, v10")
            a("v_add_u32 v9, 25, v9")
            a("v_cmp_le_u32 vcc, 10, v10")
            a(f"v_add_u32 v{vb+t}, {25*3840 + 96}, v{vb+t-1}")
            a("v_subrev_u32 v12, 10, v10")
            a("v_cndmask_b32 v10, v10, v12, vcc")
            a("v_addc_co_u32 v9, vcc, 0, v9, vcc") if False else None
            a(f"v_add_u32 v12, {3840 - 160}, v{vb+t}")
            a(f"v_cndmask_b32 v{vb+t}, v{vb+t}, v12, vcc")
            a("v_add_u32 v12, 1, v9")
            a("v_cndmask_b32 v9, v9, v12, vcc")
            a("v_cmp_le_u32 vcc, 64, v9")
            a(f"v_add_u32 v12, {(1280 - 64*3840) & 0xffffffff}, v{vb+t}")
            a("v_subrev_u32 v13, 64, v9")
            a(f"v_cndmask_b32 v{vb+t}, v{vb+t}, v12, vcc")
            a("v_cndmask_b32 v9, v9, v13, vcc")
    def build_srds(self, a, role):
        if role == 'l':
            srd(a, SRD_A, ptr(KA_X), 0, S_TOK*D*2)
            srd(a, SRD_B0, ptr(KA_WQKV), 0, D*NQKV*2)
        srd(a, SRD_OUT, ptr(KA_WS), WS_O, 0x280000)
    def set_fidx(self, a):
        a(f"s_lshl_b32 s{S_FIDX}, s{S_RT}, 3")
        a(f"s_add_u32 s{S_FIDX}, s{S_FIDX}, s{S_CT}")
        a(f"s_lshl_b32 s{S_FIDX}, s{S_FIDX}, 7")
        a(f"s_add_u32 s{S_FIDX}, s{S_FIDX}, 0x8000")
    def l2_prep(self, a): l2_setup(a, "rm", 250, 64, KA_WO, D*D*2, 1280, D)
    @property
    def unroll(self): return SPF != 0
    def spf_setup(self, a):
        a(f"s_lshl_b32 s{S_T0}, s2, 2")
        a(f"s_add_u32 s{S_T0}, s{S_T0}, s{S_W}        ; q")
        a(f"s_mul_i32 s{S_T1}, s{S_T0}, 2560")
        a(f"s_add_u32 s98, s{ptr(KA_X)}, s{S_T1}")
        a(f"s_addc_u32 s99, s{ptr(KA_X)+1}, 0")
        sdiv(a, S_T1, S_T0, 205, 1100)
        a(f"s_mul_i32 s{S_T2}, s{S_T1}, 205")
        a(f"s_sub_u32 s{S_T2}, s{S_T0}, s{S_T2}")
        a(f"s_min_u32 s{S_T2}, s{S_T2}, 201")
        a(f"s_mul_i32 s{S_T2}, s{S_T2}, 1216")
        a(f"s_lshl_b32 s{S_T1}, s{S_T1}, 1")
        a(f"s_add_u32 s{S_T1}, s{S_T1}, 1")
        a(f"s_mul_i32 s{S_T1}, s{S_T1}, 245760")
        a(f"s_add_u32 s{S_T1}, s{S_T1}, s{S_T2}")
        a(f"s_add_u32 s100, s{ptr(KA_WQKV)}, s{S_T1}")
        a(f"s_addc_u32 s101, s{ptr(KA_WQKV)+1}, 0")
    def spf_list(self):
        L_ = []
        for i in range(19): L_.append(("s[100:101]", 64*i))
        for k in (1, 3, 5, 7, 9):
            for r in range(2):
                for h in range(2): L_.append(("s[98:99]", r*1280 + k*128 + h*64))
        return L_
    def mid_prefetch(self, a, s):
        if SPF:
            if s == 0: self.spf_setup(a)
            L_ = self.spf_list()
            per = SPF
            if s >= 1 and s <= 4:
                for base, off in L_[per*(s-1): per*s]:
                    a(f"s_load_dword s3, {base}, {off}")
            if SPF2 and s >= 5:
                if s == 5:
                    a(f"s_lshl_b32 s{S_T0}, s2, 2")
                    a(f"s_add_u32 s{S_T0}, s{S_T0}, s{S_W}")
                    a(f"s_mul_i32 s{S_T1}, s{S_T0}, 800")
                    a(f"s_add_u32 s98, s{ptr(KA_WO)}, s{S_T1}")
                    a(f"s_addc_u32 s99, s{ptr(KA_WO)+1}, 0")
                    a(f"s_mul_i32 s{S_T1}, s{S_T0}, 2160")
                    a(f"s_add_u32 s100, s{ptr(SPF2)}, s{S_T1}")
                    a(f"s_addc_u32 s101, s{ptr(SPF2)+1}, 0")
                L2 = [("s[98:99]", 64*i) for i in range(13)] + [("s[100:101]", 64*i) for i in range(34)]
                for base, off in L2[10*(s-5): 10*(s-4)]:
                    a(f"s_load_dword s3, {base}, {off}")
        if PH0 and s == 7: return self.ph0_issue(a)
        if s == WO_S: return l2_issue(a, KA_WO, 1280, D)
    def loader_post_first(self, a):
        pad_init(a, self, 78, 1, 79)
        self.att_setup(a)
        return 0
    def att_setup(self, a):
        QT, QROW = self.QT, self.QROW
        a("v_and_b32 v3, 3, v2             ; i")
        a("v_bfe_u32 v4, v2, 2, 2          ; head")
        a("v_lshrrev_b32 v5, 4, v2         ; grp")
        a("v_lshrrev_b32 v6, 1, v5")
        a("v_lshlrev_b32 v6, 3, v6")
        a("v_and_b32 v7, 1, v5")
        a("v_add_u32 v6, v6, v7")
        a(f"s_lshl_b32 s{S_T0}, s{S_W}, 4")
        a(f"v_add_u32 v6, s{S_T0}, v6")
        a("v_lshlrev_b32 v7, 1, v3")
        a("v_add_u32 v7, v6, v7            ; rb + 2i")
        a(f"v_mul_u32_u24 v8, {QROW}, v7")
        a("v_mul_u32_u24 v9, 40, v4")
        a("v_add_u32 v8, v8, v9")
        a(f"v_add_u32 v144, {QT + 14*QROW}, v8")
        a(f"v_add_u32 v145, {QT + 160}, v8")
        a("v_cmp_eq_u32 vcc, 3, v3")
        a(f"v_mov_b32 v10, {16*QROW}")
        a(f"v_mov_b32 v11, {14*QROW}")
        a("v_cndmask_b32 v10, v10, v11, vcc")
        a("v_add_u32 v146, v145, v10")
        a(f"v_mul_u32_u24 v12, {self.OROW}, v7")
        a("v_add_u32 v12, v12, v9")
        a(f"v_add_u32 v118, {self.OT}, v12")
        a("v_lshlrev_b32 v12, 1, v4               ; 2r")
        a("v_add_u32 v12, v6, v12")
        a(f"v_mul_u32_u24 v12, {QROW}, v12")
        a("v_mul_u32_u24 v13, 40, v3")
        a("v_add_u32 v12, v12, v13")
        a(f"v_add_u32 v147, {QT + 320}, v12")
        a("v_cmp_eq_u32 vcc, 3, v4")
        a(f"v_mov_b32 v10, {16*QROW}")
        a("s_nop 0")
        a("v_cndmask_b32 v10, v10, v11, vcc")
        a("v_add_u32 v119, v147, v10")
        a(f"v_mov_b32 v12, {hex(f2u(-1e30))}")
        a("v_mov_b32 v13, 0")
        a(f"v_add_u32 v14, s{S_R0}, v6")
        for m in range(12):
            a(f"v_sub_u32 v15, {m}, v3")
            a("v_cmp_gt_u32 vcc, 8, v15")
            a(f"v_add_u32 v16, {2*m}, v14")
            a("v_cmp_le_i32 s[4:5], 0, v16")
            a("s_nop 1")
            a("s_and_b64 vcc, vcc, s[4:5]")
            a(f"v_cndmask_b32 v{120+m}, v12, v13, vcc")
        self.store_addr_setup(a)
    def ph0_produce(self, a):
        srd(a, SRD_AUX, ptr(KA_X), 0, S_TOK*D*2)
        srd(a, SRD_ST, ptr(KA_WS), WS_ST1, S_TOK*16)
        a(f"s_lshl_b32 s{S_T0}, s{S_RT}, 6")
        a(f"s_lshl_b32 s{S_T1}, s{S_CT}, 3")
        a(f"s_add_u32 s{S_T0}, s{S_T0}, s{S_T1}")
        a(f"s_lshl_b32 s{S_T1}, s{S_WAVE}, 1")
        a(f"s_add_u32 s{S_T0}, s{S_T0}, s{S_T1}")
        a("v_lshrrev_b32 v5, 5, v2")
        a(f"v_add_u32 v5, s{S_T0}, v5            ; row")
        a("v_and_b32 v6, 31, v2                  ; j")
        a("v_mul_u32_u24 v7, 1280, v5")
        a("v_lshl_add_u32 v7, v6, 4, v7")
        a("v_mov_b32 v30, 0x80000000")
        a("v_cmp_gt_u32 vcc, 16, v6")
        a("v_add_u32 v31, 1024, v7")
        a(f"buffer_load_dwordx4 v[32:35], v7, s[{SRD_AUX}:{SRD_AUX+3}], 0 offen")
        a("v_cndmask_b32 v31, v30, v31, vcc")
        a(f"buffer_load_dwordx4 v[36:39], v7, s[{SRD_AUX}:{SRD_AUX+3}], 0 offen offset:512")
        a(f"buffer_load_dwordx4 v[40:43], v31, s[{SRD_AUX}:{SRD_AUX+3}], 0 offen")
        a("s_waitcnt vmcnt(0)")
        a(f"v_mov_b32 v48, {hex(ONES)}")
        for r in (49, 50, 51, 52): a(f"v_mov_b32 v{r}, 0")
        for d in range(12):
            s_, q_ = (49, 50) if d & 1 == 0 else (51, 52)
            a(f"v_dot2_f32_bf16 v{s_}, v{32+d}, v48, v{s_}")
            a(f"v_dot2_f32_bf16 v{q_}, v{32+d}, v{32+d}, v{q_}")
        a("s_nop 2")
        a("v_add_f32 v44, v49, v51")
        a("v_add_f32 v45, v50, v52")
        a("s_nop 1")
        for dpp in ("quad_perm:[1,0,3,2]", "quad_perm:[2,3,0,1]", "row_half_mirror", "row_mirror"):
            a(f"v_add_f32_dpp v44, v44, v44 {dpp} row_mask:0xf bank_mask:0xf")
            a(f"v_add_f32_dpp v45, v45, v45 {dpp} row_mask:0xf bank_mask:0xf")
            a("s_nop 0")
        a("v_mov_b32 v49, v44"); a("v_mov_b32 v50, v45")
        a("s_nop 1")
        a("v_permlane16_swap_b32 v44, v49"); a("v_permlane16_swap_b32 v45, v50")
        a("s_nop 1")
        a("v_add_f32 v44, v44, v49"); a("v_add_f32 v45, v45, v50")
        a(f"v_mul_f32 v44, {hex(f2u(1.0/D))}, v44")
        a(f"v_mul_f32 v45, {hex(f2u(1.0/D))}, v45")
        a("v_fma_f32 v45, -v44, v44, v45")
        a(f"v_add_f32 v45, {hex(f2u(1e-5))}, v45")
        a("v_rsq_f32 v45, v45")
        a("v_mov_b32 v112, v44")
        a("v_mov_b32 v113, v45")
        a("v_lshlrev_b32 v116, 4, v5              ; row*16")
        a("v_mov_b32 v117, 0")
        dbg_srd(a)
    def ph0_after_b0(self, a):
        a(f"buffer_load_dwordx2 v[114:115], v117, s[80:83], 0 offen{SC1}")
    def ph0_publish(self, a):
        loop = a.new("p0n"); done = a.new("p0d"); chk = a.new("p0h")
        a(f"s_mov_b32 s{S_T0}, 0x40000")
        a(f"s_branch {chk}")
        a.label(loop)
        a("s_sleep 4")
        a(f"buffer_load_dwordx2 v[114:115], v117, s[80:83], 0 offen{SC1}")
        a.label(chk)
        a("s_waitcnt vmcnt(0)")
        a(f"v_readfirstlane_b32 s{S_NONCE}, v114")
        a(f"v_readfirstlane_b32 s{S_NONCE+1}, v115")
        a("s_nop 3")
        a(f"s_cmp_lg_u32 s{S_NONCE}, 0")
        a(f"s_cbranch_scc1 {done}")
        a(f"s_sub_u32 s{S_T0}, s{S_T0}, 1")
        a(f"s_cmp_lg_u32 s{S_T0}, 0")
        a(f"s_cbranch_scc1 {loop}")
        a.label(done)
        set_exec(a, 1 | (1 << 32))
        a(f"buffer_store_dwordx4 v[112:115], v116, s[{SRD_ST}:{SRD_ST+3}], 0 offen{SC1}")
        a("s_mov_b64 exec, -1")
    def ph0_issue(self, a):
        srd(a, SRD_ST, ptr(KA_WS), WS_ST1, S_TOK*16)
        a(f"s_mov_b32 s{SRD_AUX}, s{ptr(KA_DBG)}")
        a(f"s_and_b32 s{SRD_AUX+1}, s{ptr(KA_DBG)+1}, 0xffff")
        a(f"s_mov_b32 s{SRD_AUX+2}, 0x100")
        a(f"s_mov_b32 s{SRD_AUX+3}, 0x20000")
        a(f"s_lshl_b32 s{S_T0}, s{S_W}, 6")
        a(f"v_add_u32 v62, s{S_T0}, v2")
        a(f"v_add_u32 v63, s{S_R0}, v62")
        a("v_cmp_gt_u32 vcc, 78, v62")
        a("v_cmp_le_i32 s[4:5], 0, v63")
        a("v_lshlrev_b32 v63, 4, v63")
        a("v_mov_b32 v64, 0x80000000")
        a("s_and_b64 s[98:99], vcc, s[4:5]")
        a("v_mov_b32 v65, 0")
        a("v_cndmask_b32 v63, v64, v63, s[98:99]")
        a(f"buffer_load_dwordx2 v[60:61], v65, s[{SRD_AUX}:{SRD_AUX+3}], 0 offen{SC1}")
        a(f"buffer_load_dwordx4 v[56:59], v63, s[{SRD_ST}:{SRD_ST+3}], 0 offen{SC1}")
        return 2
    def ph0_check(self, a):
        loop = a.new("p0c"); ok = a.new("p0k")
        a(f"s_mov_b32 s{S_T2}, 0x10000")
        a.label(loop)
        a("v_cmp_ne_u64 vcc, v[58:59], v[60:61]")
        a("s_nop 1")
        a("s_and_b64 vcc, vcc, s[98:99]")
        a(f"s_cbranch_vccz {ok}")
        a(f"buffer_load_dwordx2 v[60:61], v65, s[{SRD_AUX}:{SRD_AUX+3}], 0 offen{SC1}")
        a(f"buffer_load_dwordx4 v[56:59], v63, s[{SRD_ST}:{SRD_ST+3}], 0 offen{SC1}")
        a("s_waitcnt vmcnt(0)")
        a(f"s_sub_u32 s{S_T2}, s{S_T2}, 1")
        a(f"s_cmp_lg_u32 s{S_T2}, 0")
        a(f"s_cbranch_scc1 {loop}")
        a.label(ok)
        a("v_lshlrev_b32 v62, 3, v62")
        a(f"v_add_u32 v62, {self.LDS_STP}, v62")
        a(f"s_cmp_lt_u32 s{S_W}, 2")
        a("s_cselect_b32 exec_lo, -1, 0")
        a(f"s_cmp_eq_u32 s{S_W}, 0")
        a("s_cselect_b32 exec_hi, -1, 0")
        a(f"s_cmp_eq_u32 s{S_W}, 1")
        a("s_cselect_b32 exec_lo, 0xffff, exec_lo")
        sk = a.new("p0w")
        a(f"s_cbranch_execz {sk}")
        a("ds_write_b64 v62, v[56:57]")
        a.label(sk)
        a("s_mov_b64 exec, -1")
        a("s_waitcnt lgkmcnt(0)")
    def post_wait(self, a, s):
        if PH0 and s == 9: self.ph0_check(a)
    def store_addr_setup(self, a, regs=(148, 149, 156, 157), tmp=3):
        lm, lt, gm, gt = regs
        t0, t1, t2 = tmp, tmp + 1, tmp + 2
        a(f"v_lshrrev_b32 v{t0}, 3, v2             ; r8")
        a(f"v_and_b32 v{t1}, 7, v2                 ; p")
        a(f"s_lshl_b32 s{S_T0}, s{S_WAVE}, 3")
        a(f"v_add_u32 v{t2}, s{S_T0}, v{t0}")
        a(f"v_mul_u32_u24 v{lm}, {self.OROW}, v{t2}")
        a(f"v_lshl_add_u32 v{lm}, v{t1}, 4, v{lm}")
        a(f"v_add_u32 v{lm}, {self.OT}, v{lm}")
        a(f"s_add_u32 s{S_T0}, s{S_R0}, 14          ; T0")
        a(f"v_add_u32 v{gm}, s{S_T0}, v{t2}")
        a(f"v_lshlrev_b32 v{gm}, 10, v{gm}")
        a(f"v_lshl_add_u32 v{gm}, v{t1}, 4, v{gm}")
        a(f"s_lshl_b32 s{S_T1}, s{S_CT}, 7          ; hg*128")
        a(f"v_add_u32 v{gm}, s{S_T1}, v{gm}")
        a(f"v_lshrrev_b32 v{t0}, 1, v{t1}")
        a(f"v_lshl_add_u32 v{t0}, v{t2}, 2, v{t0}   ; token")
        a(f"v_mul_u32_u24 v{lt}, {self.OROW}, v{t0}")
        a(f"v_and_b32 v{t0}, 1, v{t1}")
        a(f"v_lshl_add_u32 v{lt}, v{t0}, 4, v{lt}")
        a(f"v_add_u32 v{lt}, {self.OT + 128}, v{lt}")
        a(f"s_lshr_b32 s{S_T0}, s{S_T0}, 2          ; T0/4")
        a(f"v_add_u32 v{gt}, s{S_T0}, v{t2}")
        a(f"v_lshlrev_b32 v{gt}, 10, v{gt}")
        a(f"v_lshl_add_u32 v{gt}, v{t1}, 4, v{gt}")
        a(f"s_add_u32 s{S_T1}, s{S_T1}, 0x200000")
        a(f"v_add_u32 v{gt}, s{S_T1}, v{gt}")
    def o_stores(self, a):
        a(f"ds_read_b128 v[20:23], v148")
        sk = a.new("ost")
        a(f"s_cmp_ge_u32 s{S_WAVE}, 2")
        a(f"s_cbranch_scc1 {sk}")
        a(f"ds_read_b128 v[24:27], v149")
        a("s_waitcnt lgkmcnt(0)")
        a(f"buffer_store_dwordx4 v[24:27], v157, s[{SRD_OUT}:{SRD_OUT+3}], 0 offen{OSC}")
        a.label(sk)
        a("s_waitcnt lgkmcnt(0)")
        a(f"buffer_store_dwordx4 v[20:23], v156, s[{SRD_OUT}:{SRD_OUT+3}], 0 offen{OSC}")
    def loader_fused_tail(self, a):
        l2_setup(a, "p3", 243, 64, KA_WG, D*F*2, 3456, D)
        if not PH0: a("s_barrier      ; E1")
        l2_issue(a, KA_WG, 3456, D)
        a("s_barrier")
        a.label("L_att_start")
        if 'attprof' in EXP: stamp(a, 1)
        Q = 16; KR = 32; VR = 62; SC = 92; BIAS = 120; PB = 104
        QROW = self.QROW
        for dg in range(5):
            a(f"ds_read_b64 v[{Q+2*dg}:{Q+2*dg+1}], v144 offset:{8*dg}")
        for kb in range(3):
            for dg in range(5):
                r = KR + 2*(5*kb + dg)
                if kb < 2: a(f"ds_read_b64 v[{r}:{r+1}], v145 offset:{8*QROW*kb + 8*dg}")
                else: a(f"ds_read_b64 v[{r}:{r+1}], v146 offset:{8*dg}")
        scale = (D // 32) ** -0.5
        c1 = scale * 1.4426950408889634
        a(f"s_mov_b32 s{S_T2}, {hex(f2u(c1))}")
        a("s_waitcnt lgkmcnt(0)")
        for kb in range(3):
            for dg in range(5):
                r = VR + 2*(5*kb + dg)
                if kb < 2: a(f"ds_read_b64_tr_b16 v[{r}:{r+1}], v147 offset:{8*QROW*kb + 8*dg}")
                else: a(f"ds_read_b64_tr_b16 v[{r}:{r+1}], v119 offset:{8*dg}")
        for dg in range(5):
            for kb in range(3):
                r = KR + 2*(5*kb + dg); sc = SC + 4*kb
                c = "0" if dg == 0 else f"v[{sc}:{sc+3}]"
                a(f"v_mfma_f32_4x4x4_16b_bf16 v[{sc}:{sc+3}], v[{r}:{r+1}], v[{Q+2*dg}:{Q+2*dg+1}], {c}")
        a("s_nop 4")
        for m in range(12):
            a(f"v_fma_f32 v{SC+m}, v{SC+m}, s{S_T2}, v{BIAS+m}")
        a(f"v_max3_f32 v14, v{SC}, v{SC+1}, v{SC+2}")
        a(f"v_max3_f32 v15, v{SC+3}, v{SC+4}, v{SC+5}")
        a(f"v_max3_f32 v14, v14, v{SC+6}, v{SC+7}")
        a(f"v_max3_f32 v15, v15, v{SC+8}, v{SC+9}")
        a(f"v_max3_f32 v14, v14, v{SC+10}, v{SC+11}")
        a("v_max_f32 v14, v14, v15")
        for m in range(12):
            a(f"v_sub_f32 v{SC+m}, v{SC+m}, v14")
        for m in range(12):
            a(f"v_exp_f32 v{SC+m}, v{SC+m}")
        a(f"v_add_f32 v14, v{SC}, v{SC+1}")
        a(f"v_add_f32 v15, v{SC+2}, v{SC+3}")
        for m in range(4, 12, 2):
            a(f"v_add_f32 v14, v14, v{SC+m}")
            a(f"v_add_f32 v15, v15, v{SC+m+1}")
        a("v_add_f32 v14, v14, v15")
        a("v_rcp_f32 v14, v14")
        a("s_nop 0")
        for m in range(12):
            a(f"v_mul_f32 v{SC+m}, v{SC+m}, v14")
        for m in range(0, 12, 2):
            a(f"v_cvt_pk_bf16_f32 v{PB+m//2}, v{SC+m}, v{SC+m+1}")
        a("s_waitcnt lgkmcnt(0)")
        a("s_nop 0")
        OA = 32
        for kb in range(3):
            for dg in range(5):
                r = VR + 2*(5*kb + dg); o = OA + 4*dg
                c = "0" if kb == 0 else f"v[{o}:{o+3}]"
                a(f"v_mfma_f32_4x4x4_16b_bf16 v[{o}:{o+3}], v[{r}:{r+1}], v[{PB+2*kb}:{PB+2*kb+1}], {c}")
        a("s_nop 5")
        for dg in range(5):
            o = OA + 4*dg
            a(f"v_cvt_pk_bf16_f32 v{Q+2*dg}, v{o}, v{o+1}")
            a(f"v_cvt_pk_bf16_f32 v{Q+2*dg+1}, v{o+2}, v{o+3}")
            a(f"ds_write_b64 v118, v[{Q+2*dg}:{Q+2*dg+1}] offset:{8*dg}")
        a("s_waitcnt lgkmcnt(0)")
        if 'attprof' in EXP: stamp(a, 2)
        dry_exit(a, "L_att_ret")
        a("s_barrier")
        self.o_stores(a)
        self.set_fidx(a)
    def consumer_setup(self, a):
        cons_lane(a)
        x_addr_const(a, self.vXc, None)
        a("v_lshrrev_b32 v5, 2, v3        ; r")
        a("v_lshl_add_u32 v5, v4, 3, v5   ; 8g + r")
        a("v_mul_u32_u24 v5, 160, v5")
        a("v_and_b32 v6, 3, v3")
        a("v_lshl_add_u32 v5, v6, 3, v5")
        for j in range(4):
            a(f"s_lshl_b32 s{S_T0}, s{S_WAVE}, 2")
            a(f"s_add_u32 s{S_T0}, s{S_T0}, {j}")
            a(f"s_min_u32 s{S_T0}, s{S_T0}, 14")
            divc(a, S_T1, S_T0, 5)
            a(f"s_mul_i32 s{S_T2}, s{S_T1}, 5")
            a(f"s_sub_u32 s{S_T2}, s{S_T0}, s{S_T2}       ; f%5")
            a(f"s_lshl_b32 s{S_T2}, s{S_T2}, 5")
            a(f"s_mul_i32 s{S_T3}, s{S_T1}, 10240")
            a(f"s_add_u32 s{S_T3}, s{S_T3}, s{S_T2}")
            a(f"s_add_u32 s{S_T3}, s{S_T3}, {self.ABYTES}")
            a(f"v_add_u32 v{self.vWc[j]}, s{S_T3}, v5")
            a(f"s_mul_i32 s{S_T3}, s{S_T1}, 160")
            a(f"s_add_u32 s{S_T3}, s{S_T3}, s{S_T2}")
            a(f"s_add_u32 s{S_T3}, s{S_T3}, {self.QT}")
            a(f"v_mul_u32_u24 v6, {self.QROW}, v3")
            a("v_lshl_add_u32 v6, v4, 3, v6")
            a(f"v_add_u32 v{20+j}, s{S_T3}, v6")
        if not PH0:
            for r in range(4): a(f"v_mov_b32 v{self.VONES+r}, {hex(ONES)}")
            for r in range(40): a(f"v_mov_b32 v{self.GRAM+r}, 0")
        a("v_lshlrev_b32 v25, 3, v3")
        a(f"v_add_u32 v25, {self.LDS_STP}, v25")
        a(f"s_mul_i32 s{S_T0}, s{S_WAVE}, 640")
        a(f"v_add_u32 v24, s{S_T0}, v25")
        a(f"s_mov_b32 s{S_N1}, 0")
        self.store_addr_setup_c(a)
        NW = 4
        self.wlist = [(self.vW[j], 0) for j in range(4)]
        self.wstep = (5120, 640)
    def store_addr_setup_c(self, a):
        self.store_addr_setup(a, regs=(26, 27, 28, 29), tmp=5)
    def addr_update(self):
        r = [f"v_add_u32 v{self.vXa}, s{S_SLOT}, v{self.vXc}"]
        r += [f"v_add_u32 v{self.vW[j]}, s{S_SLOT}, v{self.vWc[j]}" for j in range(4)]
        r += [f"v_xor_b32 v{self.vXb}, 64, v{self.vXa}"]
        return r
    def stats_mfmas(self, xregs):
        m = []
        for x in range(5):
            xa = xregs[x]
            g = self.GRAM + 4*x; sm = self.SUMA + 4*x
            m.append(f"v_mfma_f32_16x16x32_bf16 v[{g}:{g+3}], {xa}, {xa}, v[{g}:{g+3}]")
            m.append(f"v_mfma_f32_16x16x32_bf16 v[{sm}:{sm+3}], v[{self.VONES}:{self.VONES+3}], {xa}, v[{sm}:{sm+3}]")
        return m
    def epilogue_stats(self, a):
        for i_, m_ in enumerate((0x22222222, 0x44444444, 0x88888888)):
            a(f"s_mov_b32 s{80+2*i_}, {hex(m_)}"); a(f"s_mov_b32 s{81+2*i_}, {hex(m_)}")
        for x in range(5):
            g = self.GRAM + 4*x
            a(f"v_cndmask_b32 v{g+1}, v{g}, v{g+1}, s[80:81]")
            a(f"v_cndmask_b32 v{g+1}, v{g+1}, v{g+2}, s[82:83]")
            a(f"v_cndmask_b32 v{g+1}, v{g+1}, v{g+3}, s[84:85]")
            a(f"v_mov_b32 v{g}, v{self.SUMA+4*x}")
        mask_exec(a, 0xF | (0xF << 20) | (0xF << 40) | (0xF << 60))
        for x in range(5):
            g = self.GRAM + 4*x
            a(f"ds_write_b64 v24, v[{g}:{g+1}] offset:{128*x}")
        unmask_exec(a)
        CS = 132
        for j in range(4):
            acc = self.ACC + 4*(4*4 + j)
            for r in range(4):
                a(f"v_mov_b32_dpp v{CS+4*j+r}, v{acc+r} row_newbcast:15 row_mask:0xf bank_mask:0xf")
        a("s_waitcnt lgkmcnt(0)")
        dbar(a, "E1")
        if 'attprof' in EXP: stamp(a, 1)
        ST = 8
        TM = 112
        for x in range(5):
            for wv in range(4):
                if x < 5:
                    pass
        for x in range(5):
            base = TM + 4*x if False else None
        regs = {0: 112, 1: 120, 2: 112, 3: 120, 4: 112}
        def rd(x):
            for wv in range(4):
                r = regs[x] + 2*wv
                a(f"ds_read_b64 v[{r}:{r+1}], v25 offset:{640*wv + 128*x}")
        def fin(x):
            r = regs[x]; st = ST + 2*x
            a(f"v_pk_add_f32 v[{r}:{r+1}], v[{r}:{r+1}], v[{r+2}:{r+3}]")
            a(f"v_pk_add_f32 v[{r+4}:{r+5}], v[{r+4}:{r+5}], v[{r+6}:{r+7}]")
            a(f"v_pk_add_f32 v[{st}:{st+1}], v[{r}:{r+1}], v[{r+4}:{r+5}]")
            a(f"v_mul_f32 v{st}, {hex(f2u(1.0/D))}, v{st}")
            a(f"v_mul_f32 v{st+1}, {hex(f2u(1.0/D))}, v{st+1}")
            a(f"v_fma_f32 v{st+1}, -v{st}, v{st}, v{st+1}")
            a(f"v_add_f32 v{st+1}, {hex(f2u(1e-5))}, v{st+1}")
            a(f"v_rsq_f32 v{st+1}, v{st+1}")
        rd(0); rd(1)
        a("s_waitcnt lgkmcnt(4)"); fin(0); rd(2)
        a("s_waitcnt lgkmcnt(4)"); fin(1); rd(3)
        a("s_waitcnt lgkmcnt(4)"); fin(2); rd(4)
        a("s_waitcnt lgkmcnt(4)"); fin(3)
        a("s_waitcnt lgkmcnt(0)"); fin(4)
        a("s_nop 0")
        return CS, ST
    def epilogue(self, a):
        a.label("L_epi1_start")
        if PH0:
            CS = 132; ST = 8
            for x in range(5):
                a(f"ds_read_b64 v[{ST+2*x}:{ST+2*x+1}], v25 offset:{128*x}")
            for j in range(4):
                acc = self.ACC + 4*(4*4 + j)
                for r in range(4):
                    a(f"v_mov_b32_dpp v{CS+4*j+r}, v{acc+r} row_newbcast:15 row_mask:0xf bank_mask:0xf")
            a("s_waitcnt lgkmcnt(0)")
        else:
            CS, ST = self.epilogue_stats(a)
        for x in range(5):
            st = ST + 2*x
            for j in range(4):
                acc = self.ACC + 4*(4*x + j)
                for hh in (0, 2):
                    a(f"v_pk_fma_f32 v[{acc+hh}:{acc+hh+1}], v[{CS+4*j+hh}:{CS+4*j+hh+1}], v[{st}:{st+1}], v[{acc+hh}:{acc+hh+1}] op_sel_hi:[1,0,1] neg_lo:[0,1,0] neg_hi:[0,1,0]")
                for hh in (0, 2):
                    a(f"v_pk_mul_f32 v[{acc+hh}:{acc+hh+1}], v[{acc+hh}:{acc+hh+1}], v[{st}:{st+1}] op_sel:[0,1] op_sel_hi:[1,1]")
                a(f"v_cvt_pk_bf16_f32 v{acc}, v{acc}, v{acc+1}")
                a(f"v_cvt_pk_bf16_f32 v{acc+1}, v{acc+2}, v{acc+3}")
                a(f"ds_write_b64 v{20+j}, v[{acc}:{acc+1}] offset:{16*x*self.QROW}")
        a("s_waitcnt lgkmcnt(0)")
        dry_exit(a, "L_epi1_ret")
        a("s_barrier")
        a("s_barrier")
        a(f"ds_read_b128 v[32:35], v26")
        sk = a.new("ost")
        a(f"s_cmp_ge_u32 s{S_WAVE}, 2")
        a(f"s_cbranch_scc1 {sk}")
        a(f"ds_read_b128 v[36:39], v27")
        a("s_waitcnt lgkmcnt(0)")
        a(f"buffer_store_dwordx4 v[36:39], v29, s[{SRD_OUT}:{SRD_OUT+3}], 0 offen{OSC}")
        a.label(sk)
        a("s_waitcnt lgkmcnt(0)")
        a(f"buffer_store_dwordx4 v[32:35], v28, s[{SRD_OUT}:{SRD_OUT+3}], 0 offen{OSC}")
    stream_epi = True

class P24(Phase):
    kind = "rm"; NT = 250
    MV = 82; NC = 64; ldb = 1280; ldo = 1280
    ABYTES = 12288; STAGE = 20480; NS = 7
    NXMAX = 3; RPM = 2
    modeS = True; NACC = 24
    def fragW(self, buf, kk, wi): return ('a', 40*buf + 8*kk + 4*wi)
    def fragX(self, buf, kk, xi): return ('a', 40*buf + 16 + 12*kk + 4*xi)
    scA = SC1
    panel_coloff = [0]; panel_srd = [SRD_B0]
    TBASE = 0
    Ains = [None, None, 'skip']
    Bins = [(0, 0), (0, 4)]
    @property
    def prefetchB(self): return PB2 if self.which == 2 else PB4
    @property
    def dual(self): return (DUAL2 if self.which == 2 else DUAL4) if DUAL else None
    def __init__(self, which):
        self.which = which
        if which == 2:
            self.key = 'p2'; self.lda = 1024 if FUSE else 1280; self.S = 10; self.rot = P2ROT
            self.oprime = FUSE
            self.kind = P2MAP
        else:
            self.key = 'p4'; self.lda = 3456; self.S = 27; self.rot = P4ROT; self.extraB = 1
            self.kind = P4MAP
        assert (self.S - 1) % self.NS != 0
        self.vXc, self.vWc = 8, 9
        self.vXa, self.vXb = 10, 11
        self.vW = [12, 13]
        self.xlist = [(self.vXa, self.vXb, 2048*x) for x in range(3)]
        self.wlist = [(self.vW[f], 0 if self.dual else self.ABYTES) for f in range(2)]
        self.ACC = 32
        self.mf = [(x, f, self.ACC + 4*(2*x + f)) for x in range(3) for f in range(2)]
    def l2_prep(self, a):
        if self.which == 2: l2_setup(a, "p3", 243, 64, KA_WU, D*F*2, 3456, D)
    @property
    def gate(self): return GATE4 if (GATE and self.which == 4) else None
    def mid_prefetch(self, a, s):
        if self.which == 2 and s == UP_S: return l2_issue(a, KA_WU, 3456, D)
    def mask_setup(self, a):
        a(f"s_cmp_lt_u32 s{S_W}, 2")
        a(f"s_cselect_b32 s{S_MASK}, -1, 0xffff")
        a(f"s_cselect_b32 s{S_MASK+1}, -1, 0")
        a(f"s_cmp_eq_u32 s{S_W}, 3")
        a(f"s_cselect_b32 s{S_MASK}, 0, s{S_MASK}")
    def build_srds(self, a, role):
        if self.which == 2:
            if role == 'l':
                srd(a, SRD_A, ptr(KA_WS), WS_O, 0x280000 if FUSE else S_TOK*D*2)
                srd(a, SRD_B0, ptr(KA_WO), 0, D*D*2)
            srd(a, SRD_OUT, ptr(KA_WS), WS_H, S_TOK*D*2)
            srd(a, SRD_AUX, ptr(KA_X), 0, S_TOK*D*2)
            srd(a, SRD_ST, ptr(KA_WS), WS_ST, 250*1536)
        else:
            if role == 'l':
                srd(a, SRD_A, ptr(KA_WS), WS_HH, S_TOK*F*2)
                srd(a, SRD_B0, ptr(KA_WD), 0, F*D*2)
            srd(a, SRD_OUT, ptr(KA_OUT), 0, S_TOK*D*2)
            srd(a, SRD_AUX, ptr(KA_WS), WS_H, S_TOK*D*2)
    def dep_range(self, a):
        if self.which == 2:
            sh = 6 if FUSE else 4
            a(f"s_lshr_b32 s{S_T0}, s{S_R0}, {sh}")
            a(f"s_sub_u32 s{S_T1}, s{S_REND}, 1")
            a(f"s_lshr_b32 s{S_T1}, s{S_T1}, {sh}")
        else:
            sdiv(a, S_T0, S_R0, 228, 2100)
            a(f"s_sub_u32 s{S_T1}, s{S_REND}, 1")
            sdiv(a, S_T1, S_T1, 228, 2100)
    def deps_first(self, a):
        first_ks(a, self)
        if COMB and not self.gate:
            self.dep_range(a)
            def member(a):
                a(f"v_cmp_eq_u32 vcc, s{S_K}, v141")
                a(f"v_cmp_eq_u32 s[82:83], s{S_KB}, v141")
                a("s_nop 1")
                a("s_or_b64 vcc, vcc, s[82:83]")
            W = 8 if self.which == 2 else 27
            poll_comb(a, S_T0, S_T1, W, 0x8000 if self.which == 2 else 0x18000, member)
            return
        if self.which == 2 and FUSE:
            for src, dst in ((S_K, S_T2), (S_KB, S_T3)):
                a(f"s_lshl_b32 s{dst}, 1, s{src}")
                a(f"s_sub_u32 s{S_T4}, s{src}, 8")
                a(f"s_lshl_b32 s{S_T4}, s{S_T4}, 2")
                a(f"s_lshl_b32 s{S_T4}, 15, s{S_T4}")
                a(f"s_cmp_ge_u32 s{src}, 8")
                a(f"s_cselect_b32 s{dst}, s{S_T4}, s{dst}")
            a(f"s_or_b32 s{S_T2}, s{S_T2}, s{S_T3}")
            self.dep_range(a)
            skip = a.new("pollskip")
            a(f"s_cmp_eq_u32 s{S_WAVE}, 0")
            a(f"s_cbranch_scc0 {skip}")
            a("v_and_b32 v141, 7, v2                 ; group j")
            a(f"v_lshrrev_b32 v142, v141, s{S_T2}") if False else None
            a(f"v_mov_b32 v142, s{S_T2}")
            a("v_lshrrev_b32 v142, v141, v142")
            a("v_and_b32 v142, 1, v142")
            a("v_lshrrev_b32 v140, 3, v2")
            a(f"v_add_u32 v140, s{S_T0}, v140")
            a(f"v_cmp_ge_u32 vcc, s{S_T1}, v140")
            a("v_cmp_eq_u32 s[82:83], 1, v142")
            a("v_lshl_add_u32 v140, v140, 3, v141")
            a("v_lshlrev_b32 v140, 7, v140")
            a("v_add_u32 v140, 0x8000, v140")
            a("s_and_b64 vcc, vcc, s[82:83]")
            poll_core(a)
            a.label(skip)
            return
        if self.which == 2:
            for r in (S_K, S_KB):
                a(f"s_cmp_ge_u32 s{r}, 5")
                a(f"s_cselect_b32 s{r}, 1, 0")
        self.dep_range(a)
        if self.gate: poll_first_g(a, S_T0, S_T1, 27, S_K, self.S, self.gate[0], 0x18000)
        else: poll_first(a, S_T0, S_T1, 2 if self.which == 2 else 27, S_K, S_KB, 0x8000 if self.which == 2 else 0x18000)
    def deps(self, a, wave=0):
        W = (8 if FUSE else 2) if self.which == 2 else 27
        self.dep_range(a)
        a(f"s_mul_i32 s{S_T0}, s{S_T0}, {W}")
        a(f"s_add_u32 s{S_T1}, s{S_T1}, 1")
        a(f"s_mul_i32 s{S_T1}, s{S_T1}, {W}")
        poll(a, S_T0, S_T1, 0x8000 if self.which == 2 else 0x18000, wave)
    def set_fidx(self, a):
        if self.which == 2:
            a(f"s_mul_i32 s{S_FIDX}, s{S_RT}, 10")
            a(f"s_add_u32 s{S_FIDX}, s{S_FIDX}, s{S_CT}")
            a(f"s_lshl_b32 s{S_FIDX}, s{S_FIDX}, 7")
            a(f"s_add_u32 s{S_FIDX}, s{S_FIDX}, 0x10000")
        else:
            a(f"s_mov_b32 s{S_FIDX}, -1")
    def loader_post_first(self, a):
        if self.dual:
            class Q: pass
            q = Q(); q.NS = self.dual[0]; q.STAGE = 12288
            pad_init(a, q, 82, 14, None)
        else:
            pad_init(a, self, 82, 14, None)
        return 0
    def consumer_setup(self, a):
        cons_lane(a)
        a(f"s_lshr_b32 s{S_I}, s{S_WAVE}, 1")
        a(f"s_and_b32 s{S_J}, s{S_WAVE}, 1")
        a(f"s_mul_i32 s{S_T1}, s{S_I}, 48")
        x_addr_const(a, self.vXc, S_T1)
        w_addr_const(a, self.vWc)
        a(f"s_lshl_b32 s{S_T0}, s{S_J}, 6      ; f0 = 2j -> xor 64j")
        a(f"v_xor_b32 v{self.vWc}, s{S_T0}, v{self.vWc}")
        t_write_addr(a, 17, self.TBASE)
        a(f"s_mul_i32 s{S_T0}, s{S_I}, {48*128}")
        a(f"v_add_u32 v17, s{S_T0}, v17")
        a(f"s_lshl_b32 s{S_T0}, s{S_J}, 6")
        a(f"v_xor_b32 v17, s{S_T0}, v17        ; f0 = 2j")
        a(f"v_xor_b32 v18, 32, v17")
    def addr_update(self):
        if not self.dual: return P1.addr_update(self)
        return [f"v_add_u32 v{self.vXa}, s{S_SLOT}, v{self.vXc}",
                f"v_add_u32 v{self.vW[0]}, s{S_SLOTB}, v{self.vWc}",
                f"v_xor_b32 v{self.vXb}, 64, v{self.vXa}",
                f"v_xor_b32 v{self.vW[1]}, 32, v{self.vW[0]}"]
    def epilogue(self, a):
        for x in range(3):
            for f in range(2):
                acc = self.ACC + 4*(2*x + f)
                a(f"v_cvt_pk_bf16_f32 v{acc}, v{acc}, v{acc+1}")
                a(f"v_cvt_pk_bf16_f32 v{acc+1}, v{acc+2}, v{acc+3}")
                a(f"ds_write_b64 v{17+f}, v[{acc}:{acc+1}] offset:{2048*x}")
    RES = 100
    early_pre = True
    def early_setup(self, a):
        a("v_lshrrev_b32 v112, 3, v2")
        a("v_and_b32 v113, 7, v2")
        a("v_xor_b32 v108, v113, v112")
        a("v_lshlrev_b32 v108, 4, v108")
        a("v_lshl_add_u32 v108, v112, 7, v108")
        a(f"s_lshl_b32 s{S_T0}, s{S_WAVE}, 10")
        a(f"s_add_u32 s{S_T0}, s{S_T0}, {self.TBASE}")
        a(f"v_add_u32 v108, s{S_T0}, v108")
        a(f"s_lshl_b32 s{S_T0}, s{S_WAVE}, 3")
        a(f"s_add_u32 s{S_T0}, s{S_T0}, s{S_R0}")
        a(f"v_add_u32 v111, s{S_T0}, v112")
        a("v_mul_u32_u24 v109, 1280, v111")
        a(f"s_lshl_b32 s{S_T0}, s{S_C0}, 1")
        a("v_lshl_add_u32 v109, v113, 4, v109")
        a(f"v_add_u32 v109, s{S_T0}, v109")
        a(f"v_add_u32 v110, {64*1280}, v109")
        a("v_mov_b32 v114, 0x80000000")
        a(f"v_cmp_gt_u32 vcc, s{S_REND}, v111")
        a(f"v_add_u32 v115, 64, v111")
        a("s_nop 0")
        a("v_cndmask_b32 v109, v114, v109, vcc")
        a(f"v_cmp_gt_u32 vcc, s{S_REND}, v115")
        a("s_nop 1")
        a("v_cndmask_b32 v110, v114, v110, vcc")
        sc = SC1 if self.which == 4 else ""
        a(f"buffer_load_dwordx4 v[{self.RES}:{self.RES+3}], v109, s[{SRD_AUX}:{SRD_AUX+3}], 0 offen{sc}")
        a(f"buffer_load_dwordx4 v[{self.RES+4}:{self.RES+7}], v110, s[{SRD_AUX}:{SRD_AUX+3}], 0 offen{sc}")
        return 2
    def store_fast(self, a):
        sdone = a.new("sdone")
        sc = SC1 if self.which == 2 else OUTSC
        for k in range(2):
            a(f"ds_read_b128 v[{16+4*k}:{19+4*k}], v108 offset:{k*8192}")
        if self.which == 2:
            a(f"v_mov_b32 v26, {hex(ONES)}")
        a(f"s_waitcnt vmcnt(0) lgkmcnt(0)")
        for k in range(2):
            if k == 1:
                a(f"s_cmp_ge_u32 s{S_WAVE}, 3")
                a(f"s_cbranch_scc1 {sdone}")
            T = 16 + 4*k; R = self.RES + 4*k
            for d in range(4):
                a(f"v_lshlrev_b32 v28, 16, v{T+d}")
                a(f"v_and_b32 v29, 0xffff0000, v{T+d}")
                a(f"v_lshlrev_b32 v30, 16, v{R+d}")
                a(f"v_and_b32 v31, 0xffff0000, v{R+d}")
                a(f"v_pk_add_f32 v[28:29], v[28:29], v[30:31]")
                a(f"v_cvt_pk_bf16_f32 v{T+d}, v28, v29")
            a(f"buffer_store_dwordx4 v[{T}:{T+3}], v{109+k}, s[{SRD_OUT}:{SRD_OUT+3}], 0 offen{sc}")
            if self.which == 2:
                a("v_mov_b32 v24, 0"); a("v_mov_b32 v25, 0")
                a("s_nop 0")
                for d in range(4):
                    a(f"v_dot2_f32_bf16 v24, v{T+d}, v26, v24")
                    a(f"v_dot2_f32_bf16 v25, v{T+d}, v{T+d}, v25")
                a("s_nop 2")
                for dpp in ("quad_perm:[1,0,3,2]", "quad_perm:[2,3,0,1]", "row_half_mirror"):
                    a(f"v_add_f32_dpp v24, v24, v24 {dpp} row_mask:0xf bank_mask:0xf")
                    a(f"v_add_f32_dpp v25, v25, v25 {dpp} row_mask:0xf bank_mask:0xf")
                    a("s_nop 0")
                a(f"s_mul_i32 s{S_T0}, s{S_RT}, 10")
                a(f"s_add_u32 s{S_T0}, s{S_T0}, s{S_CT}")
                a(f"s_mul_i32 s{S_T0}, s{S_T0}, 1536")
                a(f"s_lshl_b32 s{S_T1}, s{S_WAVE}, 7")
                a(f"s_add_u32 s{S_T0}, s{S_T0}, s{S_T1}")
                a(f"v_lshrrev_b32 v9, 3, v2")
                a(f"v_lshlrev_b32 v9, 4, v9")
                a(f"v_add_u32 v9, s{S_T0}, v9")
                a("v_mov_b32 v12, v24"); a("v_mov_b32 v13, v25"); a("v_mov_b32 v14, 0"); a("v_mov_b32 v15, 0")
                set_exec(a, 0x0101010101010101)
                a(f"buffer_store_dwordx4 v[12:15], v9, s[{SRD_ST}:{SRD_ST+3}], 0 offen offset:{1024*k}{SC1}")
                a("s_mov_b64 exec, -1")
        a.label(sdone)

class P3(Phase):
    key = 'p3'; NT = 243
    @property
    def kind(self): return P3MAP
    MV = 228; NC = 64; lda = 1280; ldb = 3456; ldo = 3456
    ABYTES = 30720; STAGE = 47104; NS = 3; S = 10
    NXMAX = 8
    @property
    def RPM(self): return RPM3
    has_e1 = True
    scA = SC1
    panel_coloff = [0, 0]; panel_srd = [SRD_B0, SRD_B1]
    LDS_ST = 47104*3; LDS_CS = 47104*3 + 1920
    TBASE = 47104
    @property
    def rot(self): return P3ROT
    Ains = [None]*7 + ['skip']
    Bins = [(0, 0), (0, 4), (1, 0), (1, 4)]
    @property
    def prefetchB(self): return PB3
    def __init__(self):
        self.vXc, self.vXsc, self.vWc = 8, 9, 10
        self.vXa, self.vXb, self.vXsa, self.vXsb = 11, 12, 13, 14
        self.vW = [15, 16]
        self.xlist = [(self.vXa, self.vXb, 2048*x) for x in range(7)] + [(self.vXsa, self.vXsb, 0)]
        G, U = self.ABYTES, self.ABYTES + 8192
        self.wlist = [(self.vW[0], G), (self.vW[0], U), (self.vW[1], G), (self.vW[1], U)]
        self.ACC = 32
        self.mf = []
        acc = self.ACC
        self.accmap = {}
        for x in range(8):
            for wi in range(4):
                if x == 7 and wi >= 2: continue
                self.mf.append((x, wi, acc)); self.accmap[(x, wi)] = acc; acc += 4
        assert acc == 32 + 120
    @property
    def unroll(self): return l2_on(KA_WD)
    def l2_prep(self, a): l2_setup(a, "rm", 250, 64, KA_WD, F*D*2, 1280, F)
    def mid_prefetch(self, a, s):
        if s == WDS[0] and WDS[0] == WDS[1]: return l2_issue(a, KA_WD, 1280, F, 0, None)
        if s == WDS[0]: return l2_issue(a, KA_WD, 1280, F, 0, 5)
        if s == WDS[1]: return l2_issue(a, KA_WD, 1280, F, 5, None)
        if s == 9: return self.stats_loads(a)
    def mask_setup(self, a):
        a(f"s_cmp_eq_u32 s{S_W}, 0")
        a(f"s_cselect_b32 s{S_MASK}, -1, 0")
        a(f"s_mov_b32 s{S_MASK+1}, 0")
    def build_srds(self, a, role):
        if role == 'l':
            srd(a, SRD_A, ptr(KA_WS), WS_H, S_TOK*D*2)
            srd(a, SRD_B0, ptr(KA_WG), 0, D*F*2)
            srd(a, SRD_B1, ptr(KA_WU), 0, D*F*2)
            srd(a, SRD_ST, ptr(KA_WS), WS_ST, 250*1536)
        srd(a, SRD_OUT, ptr(KA_WS), WS_HH, S_TOK*F*2)
    def dep_range(self, a):
        sdiv(a, S_T0, S_R0, 82, 2100)
        a(f"s_sub_u32 s{S_T1}, s{S_REND}, 1")
        sdiv(a, S_T1, S_T1, 82, 2100)
    @property
    def gate(self): return (3, 2) if GATE else None
    def deps_first(self, a):
        first_ks(a, self)
        self.dep_range(a)
        if COMB and not self.gate:
            def member(a):
                a(f"v_cmp_eq_u32 vcc, s{S_K}, v141")
                a(f"v_cmp_eq_u32 s[82:83], s{S_KB}, v141")
                a("s_nop 1")
                a("s_or_b64 vcc, vcc, s[82:83]")
            poll_comb(a, S_T0, S_T1, 10, 0x10000, member)
            return
        if self.gate: poll_first_g(a, S_T0, S_T1, 10, S_K, self.S, self.gate[0], 0x10000)
        else: poll_first(a, S_T0, S_T1, 10, S_K, S_KB, 0x10000)
    def deps(self, a, wave=0):
        self.dep_range(a)
        a(f"s_mul_i32 s{S_T0}, s{S_T0}, 10")
        a(f"s_add_u32 s{S_T1}, s{S_T1}, 1")
        a(f"s_mul_i32 s{S_T1}, s{S_T1}, 10")
        poll(a, S_T0, S_T1, 0x10000, wave)
    def set_fidx(self, a):
        a(f"s_mul_i32 s{S_FIDX}, s{S_RT}, 27")
        a(f"s_add_u32 s{S_FIDX}, s{S_FIDX}, s{S_CT}")
        a(f"s_lshl_b32 s{S_FIDX}, s{S_FIDX}, 7")
        a(f"s_add_u32 s{S_FIDX}, s{S_FIDX}, 0x18000")
    def loader_post_first(self, a):
        pad_init(a, self, 228, 11, 239)
        return 0
    def stats_loads(self, a):
        a(f"s_lshl_b32 s{S_T0}, s{S_W}, 6")
        a(f"v_add_u32 v12, s{S_T0}, v2")
        a(f"v_add_u32 v13, s{S_R0}, v12")
        vdiv(a, 15, 13, 82, 2300)
        a("v_mul_u32_u24 v16, 82, v15")
        a("v_sub_u32 v16, v13, v16")
        a("v_mul_u32_u24 v15, 15360, v15")
        a("v_lshl_add_u32 v13, v16, 4, v15")
        a(f"v_add_u32 v15, s{S_R0}, v12")
        a(f"v_cmp_gt_u32 vcc, s{S_REND}, v15")
        a("v_mov_b32 v14, 0x80000000")
        a("s_nop 0")
        a("v_cndmask_b32 v13, v14, v13, vcc")
        for c in range(10):
            a(f"s_mov_b32 s{S_T0}, {c*1536}")
            a(f"buffer_load_dwordx2 v[{64+2*c}:{65+2*c}], v13, s[{SRD_ST}:{SRD_ST+3}], s{S_T0} offen{SC1}")
        return 10
    def loader_final(self, a):
        a("s_waitcnt vmcnt(0)")
        for c in range(1, 10):
            a(f"v_pk_add_f32 v[64:65], v[64:65], v[{64+2*c}:{65+2*c}]")
        a(f"v_mul_f32 v64, {hex(f2u(1.0/D))}, v64")
        a(f"v_mul_f32 v65, {hex(f2u(1.0/D))}, v65")
        a("v_fma_f32 v65, -v64, v64, v65")
        a(f"v_add_f32 v65, {hex(f2u(1e-5))}, v65")
        a("v_rsq_f32 v65, v65")
        a("v_lshlrev_b32 v12, 3, v12")
        a(f"v_add_u32 v12, {self.LDS_ST}, v12")
        a(f"s_cmp_eq_u32 s{S_W}, 3")
        a(f"s_cselect_b32 exec_hi, 0xffff, -1")
        a("ds_write_b64 v12, v[64:65]")
        a("s_mov_b64 exec, -1")
    def consumer_setup(self, a):
        cons_lane(a)
        a(f"s_lshr_b32 s{S_I}, s{S_WAVE}, 1")
        a(f"s_and_b32 s{S_J}, s{S_WAVE}, 1")
        a(f"s_lshl_b32 s{S_T1}, s{S_I}, 7")
        x_addr_const(a, self.vXc, S_T1)
        x_addr_const(a, self.vXsc, None, 112)
        w_addr_const(a, self.vWc)
        a(f"s_lshl_b32 s{S_T0}, s{S_J}, 1")
        a(f"s_add_u32 s{S_T0}, s{S_T0}, s{S_I}")
        a(f"s_lshl_b32 s{S_T0}, s{S_T0}, 5")
        a(f"v_xor_b32 v{self.vWc}, s{S_T0}, v{self.vWc}")
        a(f"s_lshl_b32 s{S_T0}, s{S_J}, 1")
        a(f"s_add_u32 s{S_T2}, s{S_T0}, s{S_I}     ; f0")
        a(f"s_lshl_b32 s{S_T0}, s{S_T2}, 6")
        a(f"v_lshlrev_b32 v24, 4, v4")
        a(f"v_add_u32 v24, s{S_T0}, v24")
        a(f"v_add_u32 v24, {self.LDS_CS}, v24")
        a(f"v_xor_b32 v25, 64, v24")
        t_write_addr(a, 26, self.TBASE)
        a(f"s_lshl_b32 s{S_T0}, s{S_T2}, 5")
        a(f"v_xor_b32 v26, s{S_T0}, v26")
        a(f"v_add_u32 v28, {112*128}, v26")
        a(f"s_lshl_b32 s{S_T0}, s{S_I}, 14")
        a(f"v_add_u32 v26, s{S_T0}, v26")
        a(f"v_xor_b32 v27, 32, v26")
        a(f"s_lshl_b32 s{S_T0}, s{S_I}, 10         ; 128*i*8")
        a(f"v_lshlrev_b32 v29, 3, v3")
        a(f"v_add_u32 v30, {self.LDS_ST + 112*8}, v29")
        a(f"v_add_u32 v29, s{S_T0}, v29")
        a(f"v_add_u32 v29, {self.LDS_ST}, v29")
    def addr_update(self):
        return [f"v_add_u32 v{self.vXa}, s{S_SLOT}, v{self.vXc}",
                f"v_add_u32 v{self.vW[0]}, s{S_SLOT}, v{self.vWc}",
                f"v_add_u32 v{self.vXsa}, s{S_SLOT}, v{self.vXsc}",
                f"v_xor_b32 v{self.vXb}, 64, v{self.vXa}",
                f"v_xor_b32 v{self.vW[1]}, 32, v{self.vW[0]}",
                f"v_xor_b32 v{self.vXsb}, 64, v{self.vXsa}"]
    chunk_epi = True
    def epilogue(self, a):
        nocs = a.new("nocs")
        a.label("L_epi3_start")
        assert self.LDS_CS % 128 == 0
        a(f"s_cmp_eq_u32 s{S_I}, 1")
        a(f"s_cbranch_scc0 {nocs}")
        mask_exec(a, 0x8000800080008000)
        for wi, (areg, poff) in enumerate([(24, 0), (24, 256), (25, 0), (25, 256)]):
            acc = self.accmap[(6, wi)]
            a(f"ds_write_b128 v{areg}, v[{acc}:{acc+3}] offset:{poff}")
        unmask_exec(a)
        a.label(nocs)
        a("s_waitcnt lgkmcnt(0)")
        dbar(a, "E1")
        CSR = [8, 12, 152, 156]
        for wi, (areg, poff) in enumerate([(24, 0), (24, 256), (25, 0), (25, 256)]):
            a(f"ds_read_b128 v[{CSR[wi]}:{CSR[wi]+3}], v{areg} offset:{poff}")
        STR = [16, 18, 20, 22]
        def rdst(x):
            st = STR[x & 3]
            if x < 7: a(f"ds_read_b64 v[{st}:{st+1}], v29 offset:{128*x}")
            else: a(f"ds_read_b64 v[{st}:{st+1}], v30")
        for x in range(4): rdst(x)
        a("s_waitcnt lgkmcnt(0)")
        for x in range(8):
            st = STR[x & 3]
            npair = 1 if x == 7 else 2
            if x == 4:
                a("s_waitcnt lgkmcnt(0)")
                dbar(a, "E2a")
            a(f"v_mul_f32 v{st+1}, v{st+1}, v{st+1}")
            for p in range(npair):
                g = self.accmap[(x, 2*p)]; u = self.accmap[(x, 2*p+1)]
                cg = CSR[2*p]; cu = CSR[2*p+1]
                for hh in (0, 2):
                    a(f"v_pk_fma_f32 v[{g+hh}:{g+hh+1}], v[{cg+hh}:{cg+hh+1}], v[{st}:{st+1}], v[{g+hh}:{g+hh+1}] op_sel_hi:[1,0,1] neg_lo:[0,1,0] neg_hi:[0,1,0]")
                    a(f"v_pk_fma_f32 v[{u+hh}:{u+hh+1}], v[{cu+hh}:{cu+hh+1}], v[{st}:{st+1}], v[{u+hh}:{u+hh+1}] op_sel_hi:[1,0,1] neg_lo:[0,1,0] neg_hi:[0,1,0]")
                for hh in (0, 2):
                    a(f"v_pk_mul_f32 v[{g+hh}:{g+hh+1}], v[{g+hh}:{g+hh+1}], v[{u+hh}:{u+hh+1}]")
                for hh in (0, 2):
                    a(f"v_pk_mul_f32 v[{g+hh}:{g+hh+1}], v[{g+hh}:{g+hh+1}], v[{st}:{st+1}] op_sel:[0,1] op_sel_hi:[1,1]")
                a(f"v_cvt_pk_bf16_f32 v{g}, v{g}, v{g+1}")
                a(f"v_cvt_pk_bf16_f32 v{g+1}, v{g+2}, v{g+3}")
                if x < 7: a(f"ds_write_b64 v{26+p}, v[{g}:{g+1}] offset:{2048*x}")
                else: a(f"ds_write_b64 v28, v[{g}:{g+1}]")
            if x < 4: rdst(x + 4)
        a("s_waitcnt lgkmcnt(0)")
        dry_exit(a, "L_epi3_ret")
        a("s_barrier      ; E2b")
    def loader_store_setup(self, a):
        a("v_lshrrev_b32 v3, 3, v2")
        a("v_and_b32 v4, 7, v2")
        a("v_xor_b32 v5, v4, v3")
        a("v_lshlrev_b32 v5, 4, v5")
        a("v_lshl_add_u32 v50, v3, 7, v5")
        a(f"s_lshl_b32 s{S_T0}, s{S_W}, 10")
        a(f"s_add_u32 s{S_T0}, s{S_T0}, {self.TBASE}")
        a(f"v_add_u32 v50, s{S_T0}, v50")
        a(f"s_lshl_b32 s{S_T0}, s{S_W}, 3")
        a(f"s_add_u32 s{S_T0}, s{S_T0}, s{S_R0}")
        a(f"v_add_u32 v51, s{S_T0}, v3")
        a(f"s_mov_b32 s{S_T1}, 3456")
        a(f"v_mul_lo_u32 v52, v51, s{S_T1}")
        a(f"s_lshl_b32 s{S_T0}, s{S_C0}, 1")
        a("v_lshl_add_u32 v52, v4, 4, v52")
        a(f"v_add_u32 v52, s{S_T0}, v52")
    def loader_stores(self, a, units):
        for n, u0 in enumerate(units):
            a(f"ds_read_b128 v[{56+4*n}:{59+4*n}], v50 offset:{u0*1024}")
        for n, u0 in enumerate(units):
            a(f"v_add_u32 v{53 if n & 1 else 54}, {u0*8*3456}, v52")
            special = (u0 + 3)*8 + 7 >= self.MV
            if special:
                a(f"v_add_u32 v55, {u0*8}, v51")
                a(f"s_add_u32 s{S_T0}, s{S_R0}, {self.MV}")
                a(f"v_cmp_gt_u32 vcc, s{S_T0}, v55")
                a(f"s_and_saveexec_b64 s[80:81], vcc")
            a(f"s_waitcnt lgkmcnt({len(units) - 1 - n})")
            a(f"buffer_store_dwordx4 v[{56+4*n}:{59+4*n}], v{53 if n & 1 else 54}, s[{SRD_OUT}:{SRD_OUT+3}], 0 offen{SC1}")
            if special: a("s_mov_b64 exec, s[80:81]")
    def loader_epilogue(self, a):
        a("s_barrier      ; E2a")
        self.loader_stores(a, [0, 4, 16, 20])
        a("s_barrier      ; E2b")
        self.loader_stores(a, [8, 12, 24, 28])

ROWB = 656
LQ, LK, LV, LO = 16384, 16384 + 16*ROWB, 16384 + 46*ROWB, 0
WPF = True
P1ROT = 'latin2'
ROTOFF = set()
WPF_OFF = set()
def l2_on(kptr): return WPF and kptr not in WPF_OFF
def l2_setup(a, kind, NT, NC, kptr, nbytes, ldb, K):
    if not l2_on(kptr): return
    if kind == "p3": kind = P3MAP
    if kind == "rm" and kptr == KA_WO: kind = P2MAP
    if kind == "rm" and kptr == KA_WD: kind = P4MAP
    nsh = 4 if kind == "p3b" else (6 if kind == "rm5" else 3)
    R3 = ((K + nsh - 1)//nsh + 7)//8*8
    a(f"s_mov_b32 s4, s{S_RT}"); a(f"s_mov_b32 s5, s{S_CT}")
    tile_map(a, NT, kind)
    divc(a, S_T0, S_RT, nsh)
    a(f"s_mul_i32 s{S_T0}, s{S_T0}, {nsh}")
    a(f"s_sub_u32 s{S_T0}, s{S_RT}, s{S_T0}")
    a(f"s_mul_i32 s{S_T0}, s{S_T0}, {R3}")
    a(f"s_lshl_b32 s{S_T1}, s{S_W}, 3")
    a(f"s_add_u32 s{S_T0}, s{S_T0}, s{S_T1}")
    a("v_lshrrev_b32 v150, 3, v2")
    a(f"v_add_u32 v150, s{S_T0}, v150")
    a(f"s_mov_b32 s{S_T1}, {ldb}")
    a(f"v_mul_lo_u32 v150, v150, s{S_T1}")
    a("v_and_b32 v151, 7, v2")
    a("v_lshl_add_u32 v150, v151, 4, v150")
    a(f"s_mul_i32 s{S_T1}, s{S_CT}, {NC*2}")
    a(f"v_add_u32 v150, s{S_T1}, v150")
    a(f"s_cmp_eq_u32 s{S_VALID}, 0")
    a(f"s_cselect_b32 s{S_T1}, 0x80000000, 0")
    a(f"v_or_b32 v150, s{S_T1}, v150")
    srd(a, 80, ptr(kptr), 0, nbytes)
    a(f"s_mov_b32 s{S_RT}, s4"); a(f"s_mov_b32 s{S_CT}, s5")
def l2_issue(a, kptr, ldb, K, i0=0, i1=None):
    if not l2_on(kptr): return 0
    nsh = 4 if (P3MAP == "p3b" and kptr in (KA_WG, KA_WU)) else (6 if ((P2MAP == "rm5" and kptr == KA_WO) or (P4MAP == "rm5" and kptr == KA_WD)) else 3)
    R3 = ((K + nsh - 1)//nsh + 7)//8*8
    n = (R3//8 + 3)//4
    if i1 is None: i1 = n
    for i in range(i0, min(i1, n)):
        a(f"buffer_load_dwordx4 v[152:155], v150, s[80:83], 0 offen")
        if i + 1 < n: a(f"v_add_u32 v150, {32*ldb}, v150")
    return min(i1, n) - i0

def att_phase(a, role):
    a(f"s_lshl_b32 s{S_R0}, s{S_RT}, 4       ; T0")
    srd(a, SRD_A, ptr(KA_WS), WS_QKV, S_TOK*NQKV*2)
    srd(a, SRD_OUT, ptr(KA_WS), WS_O, S_TOK*D*2)
    NI = 49
    nper = (NI + 7)//8
    a(f"s_mov_b32 s{S_T2}, 3840")
    a(f"s_mul_i32 s{S_T3}, s{S_CT}, 640")
    for j in range(nper):
        r = 32 + j
        a(f"s_add_u32 s{S_T0}, s{S_WAVE}, {8*j}")
        a(f"s_lshl_b32 s{S_T0}, s{S_T0}, 6")
        a(f"v_add_u32 v3, s{S_T0}, v2           ; c")
        vdiv(a, 4, 3, 41, 64*56)
        a("v_mul_u32_u24 v5, 41, v4")
        a("v_sub_u32 v5, v3, v5                  ; kap")
        a("v_cmp_le_u32 vcc, 16, v4")
        a("v_mov_b32 v8, 0x80000000")
        a("s_nop 0")
        a("v_cndmask_b32 v6, 0, 1, vcc")
        a("v_cmp_le_u32 vcc, 46, v4")
        a("s_nop 1")
        a("v_cndmask_b32 v7, 0, 1, vcc")
        a("v_add_u32 v6, v6, v7                  ; seg")
        a("v_mul_u32_u24 v7, 30, v6")
        a("v_sub_u32 v7, v4, v7")
        a(f"v_add_u32 v7, s{S_R0}, v7            ; token")
        a(f"v_mul_lo_u32 v7, v7, s{S_T2}")
        a("v_mul_u32_u24 v6, 1280, v6")
        a("v_add_u32 v7, v7, v6")
        a("v_lshl_add_u32 v7, v5, 4, v7")
        a(f"v_add_u32 v7, s{S_T3}, v7")
        a("v_cmp_gt_u32 vcc, 40, v5")
        a("s_nop 1")
        a("v_cndmask_b32 v7, v8, v7, vcc")
        a("v_cmp_gt_u32 vcc, 76, v4")
        a("s_nop 1")
        a(f"v_cndmask_b32 v{r}, v8, v7, vcc")
    if role == 'c':
        a(f"s_lshr_b32 s{S_T0}, s{S_WAVE}, 1")
        a(f"s_lshl_b32 s{S_T0}, s{S_T0}, 3")
        a(f"s_and_b32 s{S_T1}, s{S_WAVE}, 1")
        a(f"s_add_u32 s{S_I}, s{S_T0}, s{S_T1}      ; rb")
        a("v_and_b32 v3, 3, v2             ; i")
        a("v_lshrrev_b32 v4, 2, v2         ; b")
        a("v_lshlrev_b32 v5, 1, v3")
        a(f"v_add_u32 v5, s{S_I}, v5        ; rb + 2i")
        a(f"v_mul_u32_u24 v5, {ROWB}, v5")
        a("v_mul_u32_u24 v6, 40, v4")
        a("v_add_u32 v5, v5, v6")
        a(f"v_add_u32 v144, {LQ}, v5")
        a(f"v_add_u32 v145, {LK}, v5")
        a("v_cmp_eq_u32 vcc, 3, v3")
        a(f"v_mov_b32 v7, {16*ROWB}")
        a(f"v_mov_b32 v8, {14*ROWB}")
        a("v_cndmask_b32 v7, v7, v8, vcc")
        a("v_add_u32 v146, v145, v7")
        a("v_bfe_u32 v9, v2, 2, 2            ; r")
        a("v_lshlrev_b32 v10, 1, v9")
        a(f"v_add_u32 v10, s{S_I}, v10")
        a(f"v_mul_u32_u24 v10, {ROWB}, v10")
        a("v_lshrrev_b32 v11, 4, v2")
        a("v_lshl_add_u32 v11, v11, 2, v3     ; 4G + c")
        a("v_mul_u32_u24 v11, 40, v11")
        a("v_add_u32 v10, v10, v11")
        a(f"v_add_u32 v147, {LV}, v10")
        a("v_cmp_eq_u32 vcc, 3, v9")
        a(f"v_mov_b32 v7, {16*ROWB}")
        a("s_nop 0")
        a("v_cndmask_b32 v7, v7, v8, vcc")
        a("v_add_u32 v119, v147, v7")
        a(f"v_mov_b32 v12, {hex(f2u(-1e30))}")
        a("v_mov_b32 v13, 0")
        a(f"s_add_u32 s{S_T2}, s{S_R0}, s{S_I}")
        a(f"s_sub_u32 s{S_T2}, s{S_T2}, 14        ; pos(0)")
        for m in range(12):
            a(f"v_sub_u32 v14, {m}, v3            ; m - i")
            a("v_cmp_gt_u32 vcc, 8, v14")
            a(f"s_add_u32 s{S_T0}, s{S_T2}, {2*m}")
            a(f"s_cmp_ge_i32 s{S_T0}, 0")
            a("s_cselect_b64 s[80:81], -1, 0")
            a("s_and_b64 vcc, vcc, s[80:81]")
            a(f"v_cndmask_b32 v{120+m}, v12, v13, vcc")
    for j in range(2):
        a(f"s_add_u32 s{S_T0}, s{S_WAVE}, {8*j}")
        a(f"s_lshl_b32 s{S_T0}, s{S_T0}, 6")
        a(f"v_add_u32 v3, s{S_T0}, v2")
        vdiv(a, 4, 3, 40, 1024)
        a("v_mul_u32_u24 v5, 40, v4")
        a("v_sub_u32 v5, v3, v5")
        a(f"v_mul_u32_u24 v6, {ROWB}, v4")
        a(f"v_lshl_add_u32 v{148+j}, v5, 4, v6")
        a(f"v_add_u32 v4, s{S_R0}, v4")
        a("v_mul_u32_u24 v4, 1280, v4")
        a("v_lshl_add_u32 v4, v5, 4, v4")
        a(f"v_add_u32 v{156+j}, s{S_T3}, v4")
    if role == 'c':
        a(f"s_sub_u32 s{S_T0}, s{S_R0}, 14")
        a(f"s_max_i32 s{S_T0}, s{S_T0}, 0")
        sdiv(a, S_T0, S_T0, 121, 2100)
        a(f"s_add_u32 s{S_T1}, s{S_R0}, 15")
        sdiv(a, S_T1, S_T1, 121, 2100)
        skp = a.new("attpoll")
        a(f"s_cmp_eq_u32 s{S_WAVE}, 0")
        a(f"s_cbranch_scc0 {skp}")
        vdiv(a, 140, 2, 9, 64)
        a("v_mul_u32_u24 v141, 9, v140")
        a("v_sub_u32 v141, v2, v141                  ; j = l%9")
        vdiv(a, 142, 141, 3, 16)
        a("v_mul_u32_u24 v143, 3, v142")
        a("v_sub_u32 v143, v141, v143                ; j%3")
        a("v_mul_u32_u24 v142, 5, v142")
        a("v_add_u32 v142, v142, v143")
        a(f"s_lshl_b32 s{S_T2}, s{S_CT}, 1")
        a(f"v_add_u32 v142, s{S_T2}, v142            ; ct")
        a(f"v_add_u32 v140, s{S_T0}, v140            ; rt")
        a(f"v_cmp_ge_u32 vcc, s{S_T1}, v140")
        a("v_mul_u32_u24 v140, 15, v140")
        a("v_add_u32 v140, v140, v142")
        a("v_lshlrev_b32 v140, 7, v140")
        poll_core(a)
        a.label(skp)
        a("s_barrier      ; B_dep")
    else:
        l2_setup(a, "p3", 243, 64, KA_WG, D*F*2, 3456, D)
        a("s_barrier      ; B_dep")
    stamp(a, 0)
    for j in range(nper):
        sk = None
        if 8*j + 7 >= NI:
            sk = a.new("attsk")
            a(f"s_cmp_ge_u32 s{S_WAVE}, {NI - 8*j}")
            a(f"s_cbranch_scc1 {sk}")
        a(f"s_add_u32 s{S_T0}, s{S_WAVE}, {8*j}")
        a(f"s_lshl_b32 s{S_T0}, s{S_T0}, 10")
        a(f"s_add_u32 m0, s{S_T0}, {LQ}")
        a("s_nop 0")
        a(f"buffer_load_dwordx4 v{32+j}, s[{SRD_A}:{SRD_A+3}], 0 offen{SC1} lds")
        if sk: a.label(sk)
    a("s_waitcnt vmcnt(0)")
    a("s_barrier")
    stamp(a, 1)
    if role == 'l': l2_issue(a, KA_WG, 3456, D)
    if role == 'c':
        Q = 16; KR = 32; VR = 62; SC = 92; BIAS = 120; PB = 104; O = 4
        for dg in range(5):
            a(f"ds_read_b64 v[{Q+2*dg}:{Q+2*dg+1}], v144 offset:{8*dg}")
        for kb in range(3):
            for dg in range(5):
                r = KR + 2*(5*kb + dg)
                if kb < 2: a(f"ds_read_b64 v[{r}:{r+1}], v145 offset:{8*ROWB*kb + 8*dg}")
                else: a(f"ds_read_b64 v[{r}:{r+1}], v146 offset:{8*dg}")
        scale = (D // 32) ** -0.5
        c1 = scale * 1.4426950408889634
        a(f"s_mov_b32 s{S_T2}, {hex(f2u(c1))}")
        a("s_waitcnt lgkmcnt(0)")
        for kb in range(3):
            for dg in range(5):
                r = VR + 2*(5*kb + dg)
                if kb < 2: a(f"ds_read_b64_tr_b16 v[{r}:{r+1}], v147 offset:{8*ROWB*kb + 8*dg}")
                else: a(f"ds_read_b64_tr_b16 v[{r}:{r+1}], v119 offset:{8*dg}")
        for dg in range(5):
            for kb in range(3):
                r = KR + 2*(5*kb + dg); sc = SC + 4*kb
                c = "0" if dg == 0 else f"v[{sc}:{sc+3}]"
                a(f"v_mfma_f32_4x4x4_16b_bf16 v[{sc}:{sc+3}], v[{r}:{r+1}], v[{Q+2*dg}:{Q+2*dg+1}], {c}")
        a("s_nop 4")
        for m in range(12):
            a(f"v_fma_f32 v{SC+m}, v{SC+m}, s{S_T2}, v{BIAS+m}")
        a(f"v_max3_f32 v14, v{SC}, v{SC+1}, v{SC+2}")
        a(f"v_max3_f32 v15, v{SC+3}, v{SC+4}, v{SC+5}")
        a(f"v_max3_f32 v14, v14, v{SC+6}, v{SC+7}")
        a(f"v_max3_f32 v15, v15, v{SC+8}, v{SC+9}")
        a(f"v_max3_f32 v14, v14, v{SC+10}, v{SC+11}")
        a("v_max_f32 v14, v14, v15")
        for m in range(12):
            a(f"v_sub_f32 v{SC+m}, v{SC+m}, v14")
        for m in range(12):
            a(f"v_exp_f32 v{SC+m}, v{SC+m}")
        a(f"v_add_f32 v14, v{SC}, v{SC+1}")
        a(f"v_add_f32 v15, v{SC+2}, v{SC+3}")
        for m in range(4, 12, 2):
            a(f"v_add_f32 v14, v14, v{SC+m}")
            a(f"v_add_f32 v15, v15, v{SC+m+1}")
        a("v_add_f32 v14, v14, v15")
        a("v_rcp_f32 v14, v14")
        a("s_nop 0")
        for m in range(12):
            a(f"v_mul_f32 v{SC+m}, v{SC+m}, v14")
        for m in range(0, 12, 2):
            a(f"v_cvt_pk_bf16_f32 v{PB+m//2}, v{SC+m}, v{SC+m+1}")
        a("s_waitcnt lgkmcnt(0)")
        a("s_nop 0")
        OA = 32
        for kb in range(3):
            for dg in range(5):
                r = VR + 2*(5*kb + dg); o = OA + 4*dg
                c = "0" if kb == 0 else f"v[{o}:{o+3}]"
                a(f"v_mfma_f32_4x4x4_16b_bf16 v[{o}:{o+3}], v[{r}:{r+1}], v[{PB+2*kb}:{PB+2*kb+1}], {c}")
        a(f"v_subrev_u32 v144, {LQ - LO}, v144")
        a("s_nop 4")
        for dg in range(5):
            o = OA + 4*dg
            a(f"v_cvt_pk_bf16_f32 v{Q+2*dg}, v{o}, v{o+1}")
            a(f"v_cvt_pk_bf16_f32 v{Q+2*dg+1}, v{o+2}, v{o+3}")
            a(f"ds_write_b64 v144, v[{Q+2*dg}:{Q+2*dg+1}] offset:{8*dg}")
    a("s_waitcnt lgkmcnt(0)")
    stamp(a, 2)
    a("s_barrier")
    a(f"ds_read_b128 v[20:23], v148 offset:{LO}")
    sk = a.new("attst")
    a(f"s_cmp_ge_u32 s{S_WAVE}, 2")
    a(f"s_cbranch_scc1 {sk}")
    a(f"ds_read_b128 v[24:27], v149 offset:{LO}")
    a("s_waitcnt lgkmcnt(0)")
    a(f"buffer_store_dwordx4 v[24:27], v157, s[{SRD_OUT}:{SRD_OUT+3}], 0 offen{SC1}")
    a.label(sk)
    a("s_waitcnt lgkmcnt(0)")
    a(f"buffer_store_dwordx4 v[20:23], v156, s[{SRD_OUT}:{SRD_OUT+3}], 0 offen{SC1}")
    a(f"s_lshl_b32 s{S_FIDX}, s{S_RT}, 1")
    a(f"s_add_u32 s{S_FIDX}, s{S_FIDX}, s{S_CT}")
    a(f"s_lshl_b32 s{S_FIDX}, s{S_FIDX}, 7")
    a(f"s_add_u32 s{S_FIDX}, s{S_FIDX}, 0x8000")

def finish_phase(a, role, first=False):
    a("s_waitcnt vmcnt(0)")
    stamp(a, 4)
    if role == 'c' and first and not (FUSE and PH0): nonce_check(a)
    a("s_barrier      ; E3")
    if role == 'c': publish(a)
    stamp(a, 5)

IDLEPF = False
def idle_prefetch(a, NT, kptr, nbytes):
    nidle = 256 - NT
    nw = nidle * 8
    npieces = (nbytes + 1023)//1024
    n = (npieces + nw - 1)//nw
    a(f"s_and_b32 s{S_T0}, s2, 7")
    a(f"s_lshr_b32 s{S_T1}, s2, 3")
    a(f"s_lshl_b32 s{S_T0}, s{S_T0}, 5")
    a(f"s_add_u32 s{S_T0}, s{S_T0}, s{S_T1}")
    a(f"s_sub_u32 s{S_T0}, s{S_T0}, {NT}")
    a(f"s_lshl_b32 s{S_T0}, s{S_T0}, 3")
    a(f"s_add_u32 s{S_T0}, s{S_T0}, s{S_WAVE}      ; q")
    a(f"s_lshl_b32 s{S_T0}, s{S_T0}, 10")
    a("v_lshlrev_b32 v150, 4, v2")
    a(f"v_add_u32 v150, s{S_T0}, v150")
    srd(a, 80, ptr(kptr), 0, nbytes)
    lp = a.new("ipf")
    a(f"s_mov_b32 s{S_CNT}, {n}")
    a.label(lp)
    a("buffer_load_dwordx4 v[152:155], v150, s[80:83], 0 offen")
    a(f"v_add_u32 v150, {nw*1024}, v150")
    a(f"s_sub_u32 s{S_CNT}, s{S_CNT}, 1")
    a(f"s_cmp_lg_u32 s{S_CNT}, 0")
    a(f"s_cbranch_scc1 {lp}")
    a("s_waitcnt vmcnt(0)")

def role_program(a, role):
    phases = [P1F(), P24(2), P3(), P24(4)] if FUSE else [P1(), 'att', P24(2), P3(), P24(4)]
    if 'p1twice' in EXP:
        P = P1F() if FUSE else P1(); inv = a.new("inv")
        tile_map(a, P.NT, P.kind)
        a(f"s_cmp_eq_u32 s{S_VALID}, 0")
        a(f"s_cbranch_scc1 {inv}")
        P.tile_consts(a)
        if role == 'c': consumer_phase(a, P, True)
        else: loader_phase(a, P, True)
        a("s_waitcnt vmcnt(0)")
        a("s_barrier")
        a.label(inv)
    for n, P in enumerate(phases):
        first = (n == 0)
        nxt = a.new("next"); inv = a.new("inv")
        if P == 'att':
            tile_map(a, 256, 'att')
            att_phase(a, role)
            stamp(a, 3)
            finish_phase(a, role)
            prof_store(a, 'att', role)
            continue
        tile_map(a, P.NT, P.kind)
        a(f"s_cmp_eq_u32 s{S_VALID}, 0")
        a(f"s_cbranch_scc1 {inv}")
        P.tile_consts(a)
        if PRIO:
            hi = (role == 'l') if PRIO == 'l' else ((role == 'l') != (P.key == 'p3') if PRIO == 'm' else (role == 'c' and P.key == 'p3'))
            a(f"s_setprio {1 if hi else 0}")
        if role == 'c': consumer_phase(a, P, first)
        else: loader_phase(a, P, first)
        stamp(a, 3)
        if P.key != 'p4': finish_phase(a, role, first)
        spin_capture(a, P.key, role)
        prof_store(a, P.key, role)
        if first:
            a(f"s_branch {nxt}")
            a.label(inv)
            ptr_wait(a)
            if role == 'c': nonce_check(a, issued=False)
            a.label(nxt)
        elif P.key == 'p3' and IDLEPF:
            a(f"s_branch {nxt}")
            a.label(inv)
            idle_prefetch(a, P.NT, KA_WD, F*D*2)
            a.label(nxt)
        else:
            a.label(inv)

def main(out):
    a = Asm()
    a.raw(f".globl {KNAME}")
    a.raw(".p2align 8")
    a.raw(f".type {KNAME},@function")
    a.label(KNAME)
    if PROFDBG:
        a(f"s_memrealtime s[{S_P0+1}:{S_P0+2}]") if False else None
    a("s_cmp_ge_u32 s2, 256")
    a("s_cbranch_scc1 L_exit")
    a(f"s_load_dwordx16 s[{S_PTR}:{S_PTR+15}], s[0:1], 0")
    a(f"s_load_dwordx4 s[{S_PTR+16}:{S_PTR+19}], s[0:1], 64")
    if PROFDBG or SPIN:
        a(f"{STAMP} s[98:99]")
    a("v_lshrrev_b32 v1, 6, v0")
    a("v_and_b32 v2, 63, v0      ; lane")
    a(f"s_mov_b32 s{S_FIDX}, -1")
    a(f"s_mov_b32 s{S_DRY}, 0")
    a(f"v_readfirstlane_b32 s{S_WAVE}, v1")
    a("s_nop 3")
    a(f"s_sub_u32 s{S_W}, s{S_WAVE}, 4")
    a(f"s_cmp_ge_u32 s{S_WAVE}, 4")
    a("s_cbranch_scc1 L_loader")
    role_program(a, 'c')
    a("s_waitcnt vmcnt(0)")
    spin_end(a)
    a("s_endpgm")
    a.label("L_loader")
    role_program(a, 'l')
    a("s_waitcnt vmcnt(0)")
    a.label("L_exit")
    a("s_endpgm")
    HEADER = open("sequential_preLN__sliding_local_dilated__glu_gated_bilinear__prompt.s.ref").read().split("; Override")[0]
    s = HEADER
    s += """; One persistent launch, 256 workgroups (one per CU), 8 waves each: waves 0-3 run MFMA ("consumers"), waves 4-7 stream
;   P1F: LN1 (algebraic: rstd*(x@W - mean*colsum(W))) + QKV GEMM + sliding dilated attention (4x4x4 MFMA, true row max)
"""
    s += f"; @launch grid=(256,1,1) block=(512,1,1) lds={LDS_TOTAL}\n"
    s += '.amdgcn_target "amdgcn-amd-amdhsa--gfx950"\n.text\n'
    s += a.text()
    s += f""".section .rodata,"a"
.p2align 6
.amdhsa_kernel {KNAME}
  .amdhsa_next_free_vgpr 256
  .amdhsa_next_free_sgpr 102
  .amdhsa_accum_offset 160
  .amdhsa_group_segment_fixed_size 0
  .amdhsa_kernarg_size 80
  .amdhsa_user_sgpr_count 2
  .amdhsa_user_sgpr_kernarg_segment_ptr 1
  .amdhsa_system_sgpr_workgroup_id_x 1
  .amdhsa_float_denorm_mode_32 3
.end_amdhsa_kernel
"""
    open(out, "w").write(s)

if __name__ == "__main__":
    if "-prof" in sys.argv: PROF = True
    if "-profdbg" in sys.argv: PROFDBG = True
    if "-cyc" in sys.argv: STAMP = "s_memtime"
    if "-wpf" in sys.argv: WPF = True
    if "-nofuse" in sys.argv: FUSE = False
    if "-gate" in sys.argv: GATE = True
    if "-dry" in sys.argv: DRY = True
    if "-nodual" in sys.argv: DUAL = False
    for x in sys.argv:
        if x.startswith("-wos="): WO_S = int(x[5:])
        if x.startswith("-ups="): UP_S = int(x[5:])
        if x.startswith("-wds="): WDS = tuple(int(y) for y in x[5:].split(","))
    if "-comb" in sys.argv: COMB = True
    for x in sys.argv:
        if x.startswith("-one="): ONESTEP = set(x[5:].split(","))
    for x in sys.argv:
        if x.startswith("-dual4="): DUAL4 = tuple(int(y) for y in x[7:].split(","))
        if x.startswith("-dual2="): DUAL2 = tuple(int(y) for y in x[7:].split(","))
    for x in sys.argv:
        if x.startswith("-ramp="): RAMP = int(x[6:])
        if x.startswith("-rpm3="): RPM3 = int(x[6:])
        if x.startswith("-rpm1="): RPM1 = int(x[6:])
    if "-noph0" in sys.argv: PH0 = False
    for x in sys.argv:
        if x.startswith("-prio="): PRIO = x[6:]
    for x in sys.argv:
        if x.startswith("-extrab="): EXTRAB = int(x[8:])
        if x.startswith("-p4map="): P4MAP = x[7:]
        if x.startswith("-p3map="): P3MAP = x[7:]
        if x.startswith("-p2map="): P2MAP = x[7:]
        if x.startswith("-pb="): PB2, PB3, PB4 = (int(y) for y in x[4:].split(","))
        if x.startswith("-p4rot="): P4ROT = tuple(int(y) for y in x[7:].split(","))
        if x.startswith("-p3rot="): P3ROT = tuple(int(y) for y in x[7:].split(","))
        if x.startswith("-p2rot="): P2ROT = tuple(int(y) for y in x[7:].split(","))
    if "-onwd" in sys.argv: WPF_OFF.discard(KA_WD)
    for x in sys.argv:
        if x.startswith("-spf="): SPF = int(x[5:])
        if x.startswith("-spf2="): SPF2 = {'wg': KA_WG, 'wu': KA_WU}[x[6:]]
    if "-noidle" in sys.argv: IDLEPF = False
    for x in sys.argv:
        if x.startswith("-spin="):
            p_, a_, b_ = x[6:].split(","); SPIN = (p_, int(a_), int(b_))
    if "-apf" in sys.argv: APF = True
    for x in sys.argv:
        if x.startswith("-p1frot="): P1FROT = x[8:]
    for x in sys.argv:
        if x.startswith("-outsc="): OUTSC = " " + x[7:].replace("+", " ")
    for x in sys.argv:
        if x.startswith("-gate4="): GATE4 = tuple(int(y) for y in x[7:].split(","))
    for x in sys.argv:
        if x.startswith("-osc="): OSC = " " + x[5:].replace("+", " ")
    for x in sys.argv:
        if x.startswith("-align="): ALIGN = int(x[7:])
    if "-nowpf" in sys.argv: WPF = False
    if "-onestep" in sys.argv: TWOSTEP = False
    for x in sys.argv:
        if x.startswith("-exp="): EXP = set(x[5:].split(","))
    if "-noxcd" in sys.argv: NOXCD = True
    for x in sys.argv:
        if x.startswith("-p1rot="): P1ROT = x[7:]
        if x.startswith("-rotoff="): ROTOFF = set(x[8:].split(","))
    for x in sys.argv:
        if x.startswith("-off="):
            for k in x[5:].split(","): WPF_OFF.add({'wo': KA_WO, 'wg': KA_WG, 'wu': KA_WU, 'wd': KA_WD}[k])
    main(sys.argv[1] if len(sys.argv) > 1 else "v3.s")
```

```python
import sys, struct

KNAME = "sequential_preLN__sliding_local_dilated__glu_gated_bilinear__prompt_kernel"
S_TOK, D, NQKV, F = 2048, 640, 1920, 1728
WS_QKV, WS_O, WS_H, WS_HH, WS_ST, WS_FLAG = 0, 0x800000, 0xB00000, 0x1000000, 0x1800000, 0x1900000
WS_PROF = 0x1A00000
WS_ST1 = 0x1880000
KA_X, KA_WQKV, KA_WO, KA_BX, KA_WG, KA_WU, KA_WD, KA_OUT, KA_DBG, KA_WS = [8*i for i in range(10)]
ONES = 0x3F803F80
PROF = False
PROFDBG = False
STAMP = 's_memrealtime'
SC1 = " sc1"
LDS_TOTAL = 163840
NONCE_LDS = 163832
OUTSC = ' sc0 sc1'
SPF = 0
SPF2 = None
EXTRAB = 0
PB2, PB3, PB4 = 7, 3, 7
P2MAP = 'rm'
P3MAP = 'p3b'
P4MAP = 'rm5'
P4ROT = (2, 17, 2)
P3ROT = (1, 9, 2)
P2ROT = (2, 13, 2)
P1FROT = 'latin2'
APF = False
ONESTEP = set()
COMB = False
WDS = (7, 8)
WO_S = 9
UP_S = 8
STSC = ''
LDSC = ''
PRE2, PRE4 = 99, 99
DUAL = True
DUAL2 = (6, 10)
DUAL4 = (5, 12)
PH0 = True
RAMP = 2
RPM3 = 1
RPM1 = 1
DRY = False
PRIO = ''
GATE = False
GATE4 = (6, 3)
OSC = ' sc1'
FUSE = True
ALIGN = 6
TWOSTEP = True
EXP = set()
NOXCD = False

def f2u(x):
    return struct.unpack("<I", struct.pack("<f", x))[0]

class Asm:
    def __init__(self):
        self.L = []
        self.uid = 0
    def __call__(self, s):
        for line in s.split("\n"):
            line = line.strip()
            if line:
                self.L.append("  " + line)
    def label(self, n):
        self.L.append(n + ":")
    def raw(self, s):
        self.L.append(s)
    def new(self, base):
        self.uid += 1
        return f"L{base}_{self.uid}"
    def text(self):
        return "\n".join(self.L) + "\n"

SRD_A, SRD_B0, SRD_B1, SRD_OUT, SRD_AUX, SRD_ST = 8, 12, 16, 20, 24, 28
S_RT, S_CT, S_R0, S_C0, S_WAVE, S_SLOT, S_CNT, S_T0, S_T1, S_T2 = 32, 33, 34, 35, 36, 37, 38, 39, 40, 41
S_AOFF, S_BOFF = 42, 43
S_PTR = 44
S_MASK = 64
S_I, S_J, S_REND, S_K = 66, 67, 68, 69
S_STAMP = 70
S_NONCE = 78
S_FIDX, S_LW, S_VALID, S_KB = 85, 86, 87, 92
SRD_FLAG = 88
S_SLOTB, S_T3, S_T4, S_W = 93, 94, 95, 96
S_P0 = 97
S_N1, S_N2 = 6, 7
S_DRY = 3

def ptr(k): return S_PTR + k // 4

PH_IDX = {'p1': 0, 'att': 1, 'p2': 2, 'p3': 3, 'p4': 4}

def stamp(a, i):
    if i >= 4:
        if PROF: a(f'{STAMP} s[{98+2*(i-4)}:{99+2*(i-4)}]')
        return
    if PROF or PROFDBG or SPIN:
        a(f'{STAMP} s[{S_STAMP+2*i}:{S_STAMP+2*i+1}]')

SPIN = None
def spin_capture(a, ph, role):
    if not SPIN or SPIN[0] != ph or role != 'c': return
    a("s_waitcnt lgkmcnt(0)")
    A_ = "s98" if SPIN[1] < 0 else f"s{S_STAMP+2*SPIN[1]}"
    a(f"s_sub_u32 s100, s{S_STAMP+2*SPIN[2]}, {A_}")
def spin_end(a):
    if not SPIN: return
    sk = a.new("spin"); lp = a.new("spinl")
    a("s_cmp_eq_u32 s2, 9")
    a(f"s_cbranch_scc0 {sk}")
    a(f"s_cmp_eq_u32 s{S_WAVE}, 0")
    a(f"s_cbranch_scc0 {sk}")
    a("s_mul_i32 s100, s100, 20")
    a("s_memrealtime s[4:5]")
    a("s_waitcnt lgkmcnt(0)")
    a("s_add_u32 s100, s100, s4")
    a.label(lp)
    a("s_memrealtime s[4:5]")
    a("s_waitcnt lgkmcnt(0)")
    a("s_sub_u32 s6, s4, s100")
    a("s_cmp_lt_i32 s6, 0")
    a(f"s_cbranch_scc1 {lp}")
    a.label(sk)

def prof_store(a, ph, role):
    if not (PROF or PROFDBG): return
    skip = a.new("pskip")
    a(f"s_cmp_eq_u32 s{S_WAVE}, {0 if role == 'c' else 4}")
    a(f"s_cbranch_scc0 {skip}")
    a('s_waitcnt lgkmcnt(0)')
    if PROF:
        a(f's_add_u32 s80, s{ptr(KA_WS)}, {hex(WS_PROF + PH_IDX[ph]*0x20000)}')
        a(f's_addc_u32 s81, s{ptr(KA_WS)+1}, 0')
        a('s_and_b32 s81, s81, 0xffff')
        a('s_mov_b32 s82, 0x20000')
        a('s_mov_b32 s83, 0x20000')
        a('s_lshl_b32 s84, s2, 3')
        a(f's_add_u32 s84, s84, s{S_WAVE}')
        a('s_lshl_b32 s84, s84, 6')
        for i in range(8): a(f'v_mov_b32 v{128+i}, s{S_STAMP+i}')
        for i in range(4): a(f'v_mov_b32 v{136+i}, s{98+i}')
        a('v_mov_b32 v148, s84')
        a('s_mov_b64 exec, 1')
        a('buffer_store_dwordx4 v[128:131], v148, s[80:83], 0 offen')
        a('buffer_store_dwordx4 v[132:135], v148, s[80:83], 0 offen offset:16')
        a('buffer_store_dwordx4 v[136:139], v148, s[80:83], 0 offen offset:32')
        a('s_mov_b64 exec, -1')
    if PROFDBG and role == 'c':
        sk2 = a.new("pskip")
        a(f"s_cmp_eq_u32 s2, {PROFDBG_WG}")
        a(f"s_cbranch_scc0 {sk2}")
        a(f's_mov_b32 s80, s{ptr(KA_DBG)}')
        a(f's_and_b32 s81, s{ptr(KA_DBG)+1}, 0xffff')
        a('s_mov_b32 s82, 0x100')
        a('s_mov_b32 s83, 0x20000')
        sel = DBG_SEL[ph]
        for j, (i, slot) in enumerate(sel):
            a(f's_sub_u32 s84, s{S_STAMP+2*i}, s{S_P0}')
            a(f'v_mov_b32 v140, s84')
            a(f'v_mov_b32 v141, {4*slot}')
            a('s_mov_b64 exec, 1')
            a('buffer_store_dword v140, v141, s[80:83], 0 offen')
            a('s_mov_b64 exec, -1')
        a.label(sk2)
    a.label(skip)

PROFDBG_WG = 9
DBG_SEL = {'p1': [(1, 2), (2, 3), (3, 4)], 'att': [(0, 5), (1, 6), (3, 7)], 'p2': [(0, 8), (2, 9)], 'p3': [(0, 10), (1, 11), (2, 12)], 'p4': [(0, 13), (2, 14), (3, 15)]}

def set_exec(a, mask):
    if mask == (1 << 64) - 1:
        a("s_mov_b64 exec, -1")
    else:
        a(f"s_mov_b32 exec_lo, {hex(mask & 0xffffffff)}")
        a(f"s_mov_b32 exec_hi, {hex(mask >> 32)}")

def dbar(a, comment=""):
    if not DRY:
        a(f"s_barrier      ; {comment}"); return
    l = a.new("dbar")
    a(f"s_cmp_eq_u32 s{S_DRY}, 1")
    a(f"s_cbranch_scc1 {l}")
    a(f"s_barrier      ; {comment}")
    a.label(l)

def mask_exec(a, mask):
    if not DRY:
        set_exec(a, mask); return
    a("s_mov_b64 s[4:5], exec")
    a(f"s_and_b32 exec_lo, exec_lo, {hex(mask & 0xffffffff)}")
    a(f"s_and_b32 exec_hi, exec_hi, {hex(mask >> 32)}")

def unmask_exec(a):
    a("s_mov_b64 exec, s[4:5]" if DRY else "s_mov_b64 exec, -1")

def dry_call(a, wave, target, ret):
    if not DRY: return
    sk = a.new("dry")
    a(f"s_cmp_eq_u32 s{S_WAVE}, {wave}")
    a(f"s_cbranch_scc0 {sk}")
    a(f"s_mov_b32 s{S_DRY}, 1")
    a("s_mov_b64 exec, 0")
    a(f"s_branch {target}")
    a.label(ret)
    a("s_mov_b64 exec, -1")
    a(f"s_mov_b32 s{S_DRY}, 0")
    a.label(sk)

def dry_exit(a, ret):
    if DRY:
        a(f"s_cmp_eq_u32 s{S_DRY}, 1")
        a(f"s_cbranch_scc1 {ret}")

def srd(a, s, p, off, nbytes):
    if off:
        a(f"s_add_u32 s{s}, s{p}, {hex(off)}")
        a(f"s_addc_u32 s{s+1}, s{p+1}, 0")
    else:
        a(f"s_mov_b32 s{s}, s{p}")
        a(f"s_mov_b32 s{s+1}, s{p+1}")
    a(f"s_and_b32 s{s+1}, s{s+1}, 0xffff")
    a(f"s_mov_b32 s{s+2}, {hex(nbytes)}")
    a(f"s_mov_b32 s{s+3}, 0x20000")

def divc(a, dst, src, d, rng=300):
    m = (65536 + d - 1) // d
    for x in range(0, rng):
        assert (x * m) >> 16 == x // d, (x, d)
    a(f"s_mul_i32 s{dst}, s{src}, {m}")
    a(f"s_lshr_b32 s{dst}, s{dst}, 16")

def magic(d, N):
    for sh in range(8, 24):
        m = ((1 << sh) + d - 1) // d
        if m >= (1 << 24) or m * (N - 1) >= (1 << 32): continue
        if all((x * m) >> sh == x // d for x in range(N)): return m, sh
    raise Exception("no magic")

def sdiv(a, dst, src, d, N):
    m, sh = magic(d, N)
    a(f"s_mul_i32 s{dst}, s{src}, {m}")
    a(f"s_lshr_b32 s{dst}, s{dst}, {sh}")

def vdiv(a, dst, src, d, N):
    m, sh = magic(d, N)
    a(f"v_mul_u32_u24 v{dst}, {m}, v{src}")
    a(f"v_lshrrev_b32 v{dst}, {sh}, v{dst}")

def tile_map(a, NT, kind):
    if NOXCD:
        a(f"s_mov_b32 s{S_T0}, s2")
    else:
        a(f"s_and_b32 s{S_T0}, s2, 7")
        a(f"s_lshr_b32 s{S_T1}, s2, 3")
        a(f"s_lshl_b32 s{S_T0}, s{S_T0}, 5")
        a(f"s_add_u32 s{S_T0}, s{S_T0}, s{S_T1}   ; t")
    a(f"s_cmp_lt_u32 s{S_T0}, {NT}")
    a(f"s_cselect_b32 s{S_VALID}, 1, 0")
    if kind == "p1":
        divc(a, S_T1, S_T0, 90)
        a(f"s_mul_i32 s{S_T2}, s{S_T1}, 90")
        a(f"s_sub_u32 s{S_T2}, s{S_T0}, s{S_T2}")
        divc(a, S_CT, S_T2, 6)
        divc(a, S_RT, S_T2, 5)
        a(f"s_cmp_eq_u32 s{S_T1}, 2")
        a(f"s_cselect_b32 s{S_CT}, s{S_RT}, s{S_CT}")
        a(f"s_cselect_b32 s{S_RT}, 5, 6")
        a(f"s_mul_i32 s{S_RT}, s{S_RT}, s{S_CT}")
        a(f"s_sub_u32 s{S_RT}, s{S_T2}, s{S_RT}")
        a(f"s_mul_i32 s{S_T1}, s{S_T1}, 6")
        a(f"s_add_u32 s{S_RT}, s{S_RT}, s{S_T1}")
    elif kind == "p3":
        divc(a, S_T1, S_T0, 81)
        a(f"s_mul_i32 s{S_T2}, s{S_T1}, 81")
        a(f"s_sub_u32 s{S_T2}, s{S_T0}, s{S_T2}")
        divc(a, S_CT, S_T2, 3)
        a(f"s_mul_i32 s{S_RT}, s{S_CT}, 3")
        a(f"s_sub_u32 s{S_RT}, s{S_T2}, s{S_RT}")
        a(f"s_mul_i32 s{S_T1}, s{S_T1}, 3")
        a(f"s_add_u32 s{S_RT}, s{S_RT}, s{S_T1}")
    elif kind == "p1f":
        a(f"s_lshr_b32 s{S_T1}, s{S_T0}, 6")
        a(f"s_lshl_b32 s{S_RT}, s{S_T1}, 3")
        a(f"s_bfe_u32 s{S_T2}, s{S_T0}, {2 | (3 << 16)}")
        a(f"s_add_u32 s{S_RT}, s{S_RT}, s{S_T2}")
        a(f"s_bfe_u32 s{S_T1}, s{S_T0}, {5 | (1 << 16)}")
        a(f"s_lshl_b32 s{S_T1}, s{S_T1}, 2")
        a(f"s_and_b32 s{S_CT}, s{S_T0}, 3")
        a(f"s_add_u32 s{S_CT}, s{S_CT}, s{S_T1}")
    elif kind == "p3b":
        a(f"s_cmp_ge_u32 s{S_T0}, 108")
        a(f"s_cselect_b32 s{S_T1}, 108, 0")
        a(f"s_sub_u32 s{S_T2}, s{S_T0}, s{S_T1}")
        divc(a, S_CT, S_T2, 4)
        divc(a, S_RT, S_T2, 5)
        a(f"s_cmp_ge_u32 s{S_T0}, 108")
        a(f"s_cselect_b32 s{S_CT}, s{S_RT}, s{S_CT}")
        a(f"s_cselect_b32 s{S_RT}, 5, 4")
        a(f"s_mul_i32 s{S_RT}, s{S_RT}, s{S_CT}")
        a(f"s_sub_u32 s{S_RT}, s{S_T2}, s{S_RT}")
        a(f"s_cmp_ge_u32 s{S_T0}, 108")
        a(f"s_cselect_b32 s{S_T1}, 4, 0")
        a(f"s_add_u32 s{S_RT}, s{S_RT}, s{S_T1}")
    elif kind == "rm5":
        divc(a, S_T1, S_T0, 125)
        a(f"s_mul_i32 s{S_T2}, s{S_T1}, 125")
        a(f"s_sub_u32 s{S_T2}, s{S_T0}, s{S_T2}")
        divc(a, S_RT, S_T2, 5)
        a(f"s_mul_i32 s{S_CT}, s{S_RT}, 5")
        a(f"s_sub_u32 s{S_CT}, s{S_T2}, s{S_CT}")
        a(f"s_mul_i32 s{S_T1}, s{S_T1}, 5")
        a(f"s_add_u32 s{S_CT}, s{S_CT}, s{S_T1}")
    elif kind == "att":
        a(f"s_lshr_b32 s{S_RT}, s{S_T0}, 1")
        a(f"s_and_b32 s{S_CT}, s{S_T0}, 1")
    else:
        divc(a, S_RT, S_T0, 10)
        a(f"s_mul_i32 s{S_CT}, s{S_RT}, 10")
        a(f"s_sub_u32 s{S_CT}, s{S_T0}, s{S_CT}")

def publish(a):
    skip = a.new("pub")
    a(f"s_cmp_eq_u32 s{S_WAVE}, 0")
    a(f"s_cbranch_scc0 {skip}")
    a(f"s_cmp_eq_u32 s{S_FIDX}, -1")
    a(f"s_cbranch_scc1 {skip}")
    a(f"v_mov_b32 v140, s{S_NONCE}")
    a(f"v_mov_b32 v141, s{S_NONCE+1}")
    a(f"v_mov_b32 v142, s{S_FIDX}")
    a("s_mov_b64 exec, 1")
    a(f"buffer_store_dwordx2 v[140:141], v142, s[{SRD_FLAG}:{SRD_FLAG+3}], 0 offen{SC1}")
    a("s_mov_b64 exec, -1")
    a.label(skip)

def poll_core(a, sv=80):
    loop = a.new("poll"); done = a.new("polldone")
    a(f"s_and_saveexec_b64 s[{sv}:{sv+1}], vcc")
    a(f"s_mov_b32 s{S_CNT}, 0x40000")
    a.label(loop)
    a(f"buffer_load_dwordx2 v[142:143], v140, s[{SRD_FLAG}:{SRD_FLAG+3}], 0 offen{SC1}")
    a("s_waitcnt vmcnt(0)")
    a(f"v_cmp_ne_u64 vcc, s[{S_NONCE}:{S_NONCE+1}], v[142:143]")
    a(f"s_cbranch_vccz {done}")
    a(f"s_sub_u32 s{S_CNT}, s{S_CNT}, 1")
    a(f"s_cmp_lg_u32 s{S_CNT}, 0")
    a(f"s_cbranch_scc1 {loop}")
    a.label(done)
    a(f"s_mov_b64 exec, s[{sv}:{sv+1}]")

def poll(a, lo_sgpr, hi_sgpr, base, wave=0):
    skip = a.new("pollskip")
    a(f"s_cmp_eq_u32 s{S_WAVE}, {wave}")
    a(f"s_cbranch_scc0 {skip}")
    a(f"v_add_u32 v140, s{lo_sgpr}, v2")
    a(f"v_cmp_gt_u32 vcc, s{hi_sgpr}, v140")
    a(f"v_lshlrev_b32 v140, 7, v140")
    a(f"v_add_u32 v140, {base}, v140")
    poll_core(a, 80 if wave == 0 else 4)
    a.label(skip)

def poll_first_g(a, lo_sgpr, hi_sgpr, W, k0, S, G, base):
    skip = a.new("pollskip")
    lg = 2 if G <= 4 else 3
    a(f"s_cmp_eq_u32 s{S_WAVE}, 0")
    a(f"s_cbranch_scc0 {skip}")
    a(f"v_lshrrev_b32 v140, {lg}, v2")
    a(f"v_add_u32 v140, s{lo_sgpr}, v140")
    a(f"v_cmp_ge_u32 vcc, s{hi_sgpr}, v140")
    a(f"v_and_b32 v141, {(1 << lg) - 1}, v2")
    a(f"v_cmp_gt_u32 s[82:83], {G}, v141")
    a(f"v_add_u32 v141, s{k0}, v141")
    a(f"v_subrev_u32 v142, {S}, v141")
    a(f"s_and_b64 s[82:83], s[82:83], vcc")
    a(f"v_cmp_le_u32 vcc, {S}, v141")
    a(f"v_mul_u32_u24 v140, {W}, v140")
    a("s_nop 0")
    a("v_cndmask_b32 v141, v141, v142, vcc")
    a("v_add_u32 v140, v140, v141")
    a(f"v_lshlrev_b32 v140, 7, v140")
    a(f"v_add_u32 v140, {base}, v140")
    a("s_mov_b64 vcc, s[82:83]")
    poll_core(a)
    a.label(skip)

def poll_comb(a, lo_sgpr, hi_sgpr, W, base, member):
    skip = a.new("pollskip"); loop = a.new("poll"); done = a.new("polldone")
    a(f"s_mov_b32 s{S_N2}, 0")
    a(f"s_cmp_eq_u32 s{S_WAVE}, 0")
    a(f"s_cbranch_scc0 {skip}")
    vdiv(a, 140, 2, W, 64)
    a(f"v_mul_u32_u24 v141, {W}, v140")
    a("v_sub_u32 v141, v2, v141               ; column")
    member(a)
    a("s_nop 1")
    a("s_mov_b64 s[4:5], vcc")
    a(f"v_add_u32 v140, s{lo_sgpr}, v140")
    a(f"v_cmp_ge_u32 vcc, s{hi_sgpr}, v140")
    a(f"v_mul_u32_u24 v140, {W}, v140")
    a("v_add_u32 v140, v140, v141")
    a("v_lshlrev_b32 v140, 7, v140")
    a(f"v_add_u32 v140, {base}, v140")
    a("s_and_saveexec_b64 s[80:81], vcc")
    a(f"s_mov_b32 s{S_CNT}, 0x40000")
    a.label(loop)
    a(f"buffer_load_dwordx2 v[142:143], v140, s[{SRD_FLAG}:{SRD_FLAG+3}], 0 offen{SC1}")
    a("s_waitcnt vmcnt(0)")
    a(f"v_cmp_ne_u64 vcc, s[{S_NONCE}:{S_NONCE+1}], v[142:143]")
    a("s_nop 1")
    a("s_and_b64 s[82:83], vcc, s[4:5]")
    a(f"s_cbranch_scc0 {done}")
    a(f"s_sub_u32 s{S_CNT}, s{S_CNT}, 1")
    a(f"s_cmp_lg_u32 s{S_CNT}, 0")
    a(f"s_cbranch_scc1 {loop}")
    a.label(done)
    a("s_cmp_eq_u64 vcc, 0")
    a(f"s_cselect_b32 s{S_N2}, 1, 0")
    a("s_mov_b64 exec, s[80:81]")
    a.label(skip)

def poll_first(a, lo_sgpr, hi_sgpr, W, k0, k1, base):
    skip = a.new("pollskip")
    a(f"s_cmp_eq_u32 s{S_WAVE}, 0")
    a(f"s_cbranch_scc0 {skip}")
    a("v_lshrrev_b32 v140, 1, v2")
    a(f"v_add_u32 v140, s{lo_sgpr}, v140")
    a(f"v_cmp_ge_u32 vcc, s{hi_sgpr}, v140")
    a(f"v_mul_u32_u24 v140, {W}, v140")
    a("v_and_b32 v141, 1, v2")
    a(f"s_sub_u32 s{S_T2}, s{k1}, s{k0}")
    a(f"v_mul_lo_u32 v141, v141, s{S_T2}")
    a(f"v_add_u32 v141, s{k0}, v141")
    a("v_add_u32 v140, v140, v141")
    a(f"v_lshlrev_b32 v140, 7, v140")
    a(f"v_add_u32 v140, {base}, v140")
    poll_core(a)
    a.label(skip)

def first_ks(a, P):
    P.rot_start(a)
    a(f"s_add_u32 s{S_KB}, s{S_K}, 1")
    a(f"s_cmp_ge_u32 s{S_KB}, {8 if getattr(P, 'oprime', False) else P.S}")
    a(f"s_cselect_b32 s{S_KB}, 0, s{S_KB}")

def dbg_srd(a):
    a(f"s_mov_b32 s80, s{ptr(KA_DBG)}")
    a(f"s_and_b32 s81, s{ptr(KA_DBG)+1}, 0xffff")
    a("s_mov_b32 s82, 0x100")
    a("s_mov_b32 s83, 0x20000")

def nonce_publish(a):
    skip = a.new("nonce")
    a(f"s_cmp_eq_u32 s{S_WAVE}, 0")
    a(f"s_cbranch_scc0 {skip}")
    a("s_cmp_eq_u32 s2, 0")
    a(f"s_cbranch_scc0 {skip}")
    dbg_srd(a)
    a(f"s_memrealtime s[{S_NONCE}:{S_NONCE+1}]")
    a("v_mov_b32 v5, 0")
    a("s_waitcnt lgkmcnt(0)")
    a(f"s_or_b32 s{S_NONCE}, s{S_NONCE}, 1")
    a(f"v_mov_b32 v6, s{S_NONCE}")
    a(f"v_mov_b32 v7, s{S_NONCE+1}")
    a("s_mov_b64 exec, 1")
    a(f"buffer_store_dwordx2 v[6:7], v5, s[80:83], 0 offen{SC1}")
    a("s_mov_b64 exec, -1")
    a.label(skip)

def nonce_issue(a):
    skip = a.new("nonce")
    a(f"s_cmp_eq_u32 s{S_WAVE}, 0")
    a(f"s_cbranch_scc0 {skip}")
    dbg_srd(a)
    a("v_mov_b32 v158, 0")
    a("s_nop 3")
    a(f"buffer_load_dwordx2 v[156:157], v158, s[80:83], 0 offen{SC1}")
    a.label(skip)

def nonce_check(a, issued=True):
    skip = a.new("nonce"); loop = a.new("nloop"); done = a.new("ndone"); chk = a.new("nchk")
    a(f"s_cmp_eq_u32 s{S_WAVE}, 0")
    a(f"s_cbranch_scc0 {skip}")
    dbg_srd(a)
    a("v_mov_b32 v158, 0")
    a(f"s_mov_b32 s{S_CNT}, 0x40000")
    if issued: a(f"s_branch {chk}")
    a.label(loop)
    a(f"buffer_load_dwordx2 v[156:157], v158, s[80:83], 0 offen{SC1}")
    a("s_waitcnt vmcnt(0)")
    a.label(chk)
    a("v_readfirstlane_b32 s" + str(S_NONCE) + ", v156")
    a("v_readfirstlane_b32 s" + str(S_NONCE+1) + ", v157")
    a("s_nop 3")
    a(f"s_cmp_lg_u32 s{S_NONCE}, 0")
    a(f"s_cbranch_scc1 {done}")
    a(f"s_sub_u32 s{S_CNT}, s{S_CNT}, 1")
    a(f"s_cmp_lg_u32 s{S_CNT}, 0")
    a(f"s_cbranch_scc1 {loop}")
    a.label(done)
    a(f"v_mov_b32 v158, {NONCE_LDS}")
    a("s_mov_b64 exec, 1")
    a("ds_write_b64 v158, v[156:157]")
    a("s_mov_b64 exec, -1")
    a("s_waitcnt lgkmcnt(0)")
    a.label(skip)

def nonce_from_lds(a):
    skip = a.new("nlds")
    a(f"s_cmp_eq_u32 s{S_WAVE}, 7")
    a(f"s_cbranch_scc0 {skip}")
    a(f"v_mov_b32 v140, {NONCE_LDS}")
    a("ds_read_b64 v[142:143], v140")
    a("s_waitcnt lgkmcnt(0)")
    a(f"v_readfirstlane_b32 s{S_NONCE}, v142")
    a(f"v_readfirstlane_b32 s{S_NONCE+1}, v143")
    a.label(skip)

class Phase:
    has_e1 = False
    has_stage_work = False
    prefetchB = 0
    def loader_post_first(self, a): return 0
    def loader_post_b0(self, a): return 0
    def loader_stage_work_parts(self): return []
    def loader_final(self, a): pass
    def store_pre(self, a): pass
    def tail_prefetch(self, a, part): return 0
    def mid_prefetch(self, a, s): return 0
    def l2_prep(self, a): pass
    def rot_start(self, a):
        if self.key in ROTOFF:
            a(f"s_mov_b32 s{S_K}, 0"); return
        ca, cb, den = self.rot
        Sm = 8 if getattr(self, 'oprime', False) else self.S
        a(f"s_mul_i32 s{S_K}, s{S_CT}, {ca}")
        a(f"s_mul_i32 s{S_T0}, s{S_RT}, {cb}")
        a(f"s_add_u32 s{S_K}, s{S_K}, s{S_T0}")
        a(f"s_lshr_b32 s{S_K}, s{S_K}, {den}")
        m = (65536 + Sm - 1) // Sm
        for x in range(1024): assert (x*m) >> 16 == x // Sm
        a(f"s_mul_i32 s{S_T0}, s{S_K}, {m}")
        a(f"s_lshr_b32 s{S_T0}, s{S_T0}, 16")
        a(f"s_mul_i32 s{S_T0}, s{S_T0}, {Sm}")
        a(f"s_sub_u32 s{S_K}, s{S_K}, s{S_T0}")
    def tile_consts(self, a):
        a(f"s_mul_i32 s{S_R0}, s{S_RT}, {self.MV}")
        a(f"s_mul_i32 s{S_C0}, s{S_CT}, {self.NC}")
        a(f"s_add_u32 s{S_REND}, s{S_R0}, {self.MV}")
        a(f"s_min_u32 s{S_REND}, s{S_REND}, {S_TOK}")

def transition(a, first):
    pass

def loader_phase(a, P, first):
    NS, S = P.NS, P.S
    nA, nB = len(P.Ains), len(P.Bins)
    VB = 32
    customB = getattr(P, 'custom_B', False)
    a("v_lshrrev_b32 v3, 3, v2      ; r8")
    a("v_and_b32 v4, 7, v2          ; p")
    a("v_lshrrev_b32 v5, 1, v3      ; r8>>1")
    a("v_xor_b32 v6, v4, v5")
    a("v_lshlrev_b32 v6, 4, v6")
    a(f"s_lshl_b32 s{S_T0}, s{S_W}, 3")
    a(f"s_add_u32 s{S_T0}, s{S_T0}, s{S_R0}")
    a(f"v_add_u32 v7, s{S_T0}, v3")
    a(f"s_mov_b32 s{S_T0}, {P.lda}")
    a(f"v_mul_lo_u32 v7, v7, s{S_T0}")
    a("v_add_u32 v7, v7, v6")
    a(f"s_and_b32 s{S_T0}, s{S_W}, 1")
    a(f"s_lshl_b32 s{S_T0}, s{S_T0}, 6")
    a(f"v_xor_b32 v7, s{S_T0}, v7")
    for t in range(nA):
        a(f"v_add_u32 v{VB+t}, {t*32*P.lda}, v7")
    if customB: P.lazyB = True
    else: std_B_setup(a, P, VB, nA)
    if getattr(P, 'oprime', False): oprime_alt_setup(a, P)
    a(f"s_lshl_b32 s{S_LW}, s{S_W}, 10")
    P.mask_setup(a)
    P.rot_start(a)
    a(f"s_mov_b32 s{S_KB}, s{S_K}")
    a(f"s_mov_b32 s{S_N1}, 0"); a(f"s_mov_b32 s{S_N2}, 0")
    if first: ptr_wait(a)
    P.build_srds(a, 'l')
    loader_rest(a, P, first, VB, nA, nB, NS, S)

def oprime_alt_setup(a, P):
    a(f"s_and_b32 s{S_T0}, s{S_W}, 1")
    a(f"s_lshl_b32 s{S_T0}, s{S_T0}, 6")
    a(f"v_xor_b32 v10, s{S_T0}, v6")
    a("v_lshrrev_b32 v11, 5, v10             ; q = c>>1")
    a("v_lshlrev_b32 v11, 7, v11             ; q*128")
    a("v_and_b32 v12, 16, v10                ; half*16")
    a("v_add_u32 v11, v11, v12")
    a(f"s_lshl_b32 s{S_T0}, s{S_W}, 3")
    a(f"s_add_u32 s{S_T0}, s{S_T0}, s{S_R0}")
    a(f"v_add_u32 v12, s{S_T0}, v3            ; row (t=0)")
    for t in range(3):
        a(f"v_add_u32 v13, {32*t}, v12")
        a("v_lshrrev_b32 v14, 2, v13")
        a("v_lshlrev_b32 v14, 10, v14")
        a("v_and_b32 v13, 3, v13")
        a("v_lshl_add_u32 v14, v13, 5, v14")
        a("v_add_u32 v14, v14, v11")
        a(f"v_add_u32 v{44+t}, 0x200000, v14")
    a(f"s_and_b32 s{S_T0}, s{S_W}, 1")
    a(f"s_lshl_b32 s{S_T0}, s{S_T0}, 6")
    a(f"v_xor_b32 v10, s{S_T0}, v8")
    a(f"s_lshl_b32 s{S_T1}, s{S_C0}, 1")
    a(f"v_add_u32 v10, s{S_T1}, v10")
    a(f"s_lshl_b32 s{S_T0}, s{S_W}, 3")
    for t, ib in enumerate((0, 4)):
        a(f"v_add_u32 v12, s{S_T0}, v3")
        a(f"v_add_u32 v12, {8*ib}, v12          ; r")
        a("v_lshrrev_b32 v13, 4, v12")
        a("v_mul_u32_u24 v13, 80, v13")
        a("v_and_b32 v12, 15, v12")
        a("v_add_u32 v13, v13, v12")
        a("v_add_u32 v13, 64, v13")
        a("v_mul_u32_u24 v13, 1280, v13")
        a(f"v_add_u32 v{47+t}, v13, v10")

def loader_dual(a, P, VB, nA, nB, S, opr, issueA_body, issueB_body, soff):
    NSA, NSB = P.dual
    AST, BST, BBASE = 12288, 8192, NSA*12288
    Smod = 8 if opr else S
    minA = nA - (1 if 'skip' in P.Ains else 0)
    def kadv(kreg, offreg, mul):
        a(f"s_add_u32 s{kreg}, s{kreg}, 1")
        a(f"s_cmp_ge_u32 s{kreg}, {Smod}")
        a(f"s_cselect_b32 s{kreg}, 0, s{kreg}")
        soff(kreg, offreg, mul)
    def sadv(reg, stride, n):
        a(f"s_add_u32 s{reg}, s{reg}, {stride}")
        a(f"s_cmp_ge_u32 s{reg}, {stride*n}")
        a(f"s_cselect_b32 s{reg}, 0, s{reg}")
    def iA(pos):
        a(f"s_add_u32 s{S_T3}, s{S_SLOT}, s{S_LW}")
        if opr and pos is not None and pos >= 8:
            a(f"s_mov_b32 s{S_AOFF}, {(pos-8)*512}")
            issueA_body(44, None)
        else:
            issueA_body(VB, None)
            kadv(S_K, S_AOFF, 128)
        sadv(S_SLOT, AST, NSA)
    def iB(pos):
        a(f"s_add_u32 s{S_T4}, s{S_SLOTB}, s{S_LW}")
        if opr and pos is not None and pos >= 8:
            a(f"s_mov_b32 s{S_BOFF}, {(pos-8)*409600}")
            issueB_body(47, None)
        else:
            issueB_body(VB + nA, None)
            kadv(S_KB, S_BOFF, 64*P.ldb)
        sadv(S_SLOTB, BST, NSB)
    a(f"s_mov_b32 s{S_SLOT}, 0")
    a(f"s_mov_b32 s{S_SLOTB}, 0")
    soff(S_K, S_AOFF, 128)
    soff(S_KB, S_BOFF, 64*P.ldb)
    pBall = min(NSB, S)
    pB = min(pBall, PRE2 if P.which == 2 else PRE4)
    nmain = min(pB, Smod)
    lp = a.new("bpre")
    a(f"s_mov_b32 s{S_CNT}, {nmain}")
    a.label(lp)
    iB(None)
    a(f"s_sub_u32 s{S_CNT}, s{S_CNT}, 1")
    a(f"s_cmp_lg_u32 s{S_CNT}, 0")
    a(f"s_cbranch_scc1 {lp}")
    for j in range(nmain, pB): iB(j)
    a("s_barrier      ; B_dep")
    stamp(a, 0)
    seq = [('B', j) for j in range(pB)]
    def cnt_after(s):
        last = max(i for i, (k, j) in enumerate(seq) if j == s and k in 'AB')
        return sum(minA if k == 'A' else (nB if k == 'B' else j) for (k, j) in seq[last+1:])
    LA, LB = [], []
    for s in range(S):
        capA = (NSA - 1) if s == 0 else s + NSA - 2
        LA.append(min(S - 1, capA, (LA[-1] if LA else -1) + 2))
        capB = (NSB - 1) if s == 0 else s + NSB - 2
        LB.append(min(S - 1, max(capB, pBall - 1)))
    prevA, prevB = -1, pB - 1
    s = 0
    while s < S:
        kA, kB = LA[s] - prevA, LB[s] - prevB
        e = s
        if s > 0 and kA == 1 and not (opr and LA[s] >= 8):
            while (e + 1 < S and LA[e+1] - LA[e] == 1 and LB[e+1] - LB[e] == kB and kB in (0, 1)
                   and not hasattr(P, 'hook_at') ): e += 1
        uniform = False
        if e - s >= 3:
            save = list(seq); vals = []
            for j in range(s, e + 1):
                seq.append(('A', LA[j]))
                if kB: seq.append(('B', LB[j]))
                vals.append(cnt_after(j))
            seq[:] = save
            uniform = len(set(vals)) == 1
        if uniform:
            cnt = e - s + 1
            lp = a.new("lmain")
            a(f"s_mov_b32 s{S_CNT}, {cnt}")
            a.label(lp)
            iA(None)
            if kB: iB(None)
            for j in range(s, e + 1):
                seq.append(('A', LA[j]))
                if kB: seq.append(('B', LB[j]))
            a(f"s_waitcnt vmcnt({vals[0]})")
            a("s_barrier")
            a(f"s_sub_u32 s{S_CNT}, s{S_CNT}, 1")
            a(f"s_cmp_lg_u32 s{S_CNT}, 0")
            a(f"s_cbranch_scc1 {lp}")
            prevA, prevB = LA[e], LB[e]; s = e + 1
            continue
        for j in range(prevA + 1, LA[s] + 1):
            iA(j); seq.append(('A', j))
        for j in range(prevB + 1, LB[s] + 1):
            iB(j); seq.append(('B', j))
        if s == 0:
            stamp(a, 1)
            ex = P.loader_post_first(a) or 0
            P.l2_prep(a)
            ex += P.early_setup(a)
            if ex: seq.append(('X', ex))
        nw = P.mid_prefetch(a, s) or 0
        if nw: seq.append(('X', nw))
        a(f"s_waitcnt vmcnt({cnt_after(s)})")
        if s == 0: a("s_waitcnt lgkmcnt(0)")
        a("s_barrier")
        prevA, prevB = LA[s], LB[s]; s += 1
    stamp(a, 2)
    a("s_barrier          ; E2")
    P.store_fast(a)
    P.set_fidx(a)

def std_B_setup(a, P, VB, nA):
    a("v_and_b32 v8, 1, v5")
    a("v_lshlrev_b32 v8, 1, v8")
    a("v_xor_b32 v8, v4, v8")
    a("v_lshlrev_b32 v8, 4, v8")
    a(f"s_lshl_b32 s{S_T0}, s{S_W}, 3")
    a(f"v_add_u32 v9, s{S_T0}, v3         ; k = 8w + r8")
    a(f"s_mov_b32 s{S_T0}, {P.ldb}")
    a(f"v_mul_lo_u32 v9, v9, s{S_T0}")
    a("v_add_u32 v9, v9, v8")
    a(f"s_and_b32 s{S_T0}, s{S_W}, 1")
    a(f"s_lshl_b32 s{S_T0}, s{S_T0}, 6")
    a(f"v_xor_b32 v9, s{S_T0}, v9")
    a(f"s_lshl_b32 s{S_T1}, s{S_C0}, 1")
    a(f"v_add_u32 v9, s{S_T1}, v9")
    for t, (pn, ib) in enumerate(P.Bins):
        a(f"v_add_u32 v{VB+nA+t}, {ib*8*P.ldb + P.panel_coloff[pn]}, v9")

def loader_rest(a, P, first, VB, nA, nB, NS, S):

    opr = getattr(P, 'oprime', False)
    Smod = 8 if opr else S
    def soff(kreg, offreg, mul):
        if opr: mul = 128 if offreg == S_AOFF else 102400
        a(f"s_mul_i32 s{offreg}, s{kreg}, {mul}")
    def adv(kreg, offreg, mul, slotreg):
        if getattr(P, 'order2', False) and P1ROT == 'latin2':
            cnt = S_N1 if kreg == S_K else S_N2
            a(f"s_add_u32 s{kreg}, s{kreg}, 2")
            a(f"s_cmp_ge_u32 s{kreg}, {S}")
            a(f"s_cselect_b32 s{S_T0}, {S}, 0")
            a(f"s_sub_u32 s{kreg}, s{kreg}, s{S_T0}")
            a(f"s_add_u32 s{cnt}, s{cnt}, 1")
            a(f"s_cmp_eq_u32 s{cnt}, 5")
            a(f"s_addc_u32 s{kreg}, s{kreg}, 0")
        else:
            a(f"s_add_u32 s{kreg}, s{kreg}, 1")
            a(f"s_cmp_ge_u32 s{kreg}, {Smod}")
            a(f"s_cselect_b32 s{kreg}, 0, s{kreg}")
        soff(kreg, offreg, mul)
        a(f"s_add_u32 s{slotreg}, s{slotreg}, {P.STAGE}")
        a(f"s_cmp_ge_u32 s{slotreg}, {P.STAGE*NS}")
        a(f"s_cselect_b32 s{slotreg}, 0, s{slotreg}")
    def slot_only(slotreg):
        a(f"s_add_u32 s{slotreg}, s{slotreg}, {P.STAGE}")
        a(f"s_cmp_ge_u32 s{slotreg}, {P.STAGE*NS}")
        a(f"s_cselect_b32 s{slotreg}, 0, s{slotreg}")
    def issueA(fill=None, pos=None):
        a(f"s_add_u32 s{S_T3}, s{S_SLOT}, s{S_LW}")
        if opr and pos is not None and pos >= 8:
            a(f"s_mov_b32 s{S_AOFF}, {(pos-8)*512}")
            issueA_body(44, None)
            slot_only(S_SLOT)
            return
        issueA_body(VB, fill)
        adv(S_K, S_AOFF, 128, S_SLOT)
    def issueA_body(vb, fill):
        for t in range(nA):
            special = P.Ains[t]
            sk = None
            if special == 'skip':
                sk = a.new("sk")
                a(f"s_cmp_eq_u64 s[{S_MASK}:{S_MASK+1}], 0")
                a(f"s_cbranch_scc1 {sk}")
            a(f"s_add_u32 m0, s{S_T3}, {t*4096}")
            if special: a(f"s_mov_b64 exec, s[{S_MASK}:{S_MASK+1}]")
            else: a("s_nop 0")
            a(f"buffer_load_dwordx4 v{vb+t}, s[{SRD_A}:{SRD_A+3}], s{S_AOFF} offen{P.scA} lds")
            if special: a("s_mov_b64 exec, -1")
            if sk: a.label(sk)
            if fill:
                for x in fill.pop(0) if fill else []: a(x)
    def issueB(fill=None, pos=None):
        if getattr(P, 'lazyB', False):
            P.lazyB = False
            P.custom_B_setup(a, VB + nA)
        a(f"s_add_u32 s{S_T4}, s{S_SLOTB}, s{S_LW}")
        if opr and pos is not None and pos >= 8:
            a(f"s_mov_b32 s{S_BOFF}, {(pos-8)*409600}")
            issueB_body(47, None)
            slot_only(S_SLOTB)
            return
        issueB_body(VB + nA, fill)
        adv(S_KB, S_BOFF, 64*P.ldb, S_SLOTB)
    def issueB_body(vb, fill):
        for t, ent in enumerate(P.Bins):
            if isinstance(ent, dict):
                sr = SRD_B0; ldsoff = ent['lds']; skp = ent.get('skip')
            else:
                pn, ib = ent
                boff = (P.dual[0]*12288 if getattr(P, 'dual', None) else P.ABYTES)
                sr = P.panel_srd[pn]; ldsoff = boff + pn*8192 + ib*1024; skp = None
            sk = None
            if skp:
                sk = a.new("skb")
                a(f"s_cmp_ge_u32 s{S_W}, {skp}")
                a(f"s_cbranch_scc1 {sk}")
            a(f"s_add_u32 m0, s{S_T4}, {ldsoff}")
            a("s_nop 0")
            a(f"buffer_load_dwordx4 v{vb+t}, s[{sr}:{sr+3}], s{S_BOFF} offen lds")
            if sk: a.label(sk)
            if fill:
                for x in fill.pop(0) if fill else []: a(x)
    dual = getattr(P, 'dual', None)
    if dual:
        return loader_dual(a, P, VB, nA, nB, S, opr, issueA_body, issueB_body, soff)
    minA = nA - (1 if 'skip' in P.Ains else 0)
    minB = nB - sum(1 for e_ in P.Bins if isinstance(e_, dict) and e_.get('skip'))
    a(f"s_mov_b32 s{S_SLOT}, 0")
    a(f"s_mov_b32 s{S_SLOTB}, 0")
    soff(S_K, S_AOFF, 128)
    soff(S_KB, S_BOFF, 64*P.ldb)
    pB = P.prefetchB if not first else 0
    if pB:
        lp = a.new("bpre")
        a(f"s_mov_b32 s{S_CNT}, {pB}")
        a.label(lp)
        issueB()
        a(f"s_sub_u32 s{S_CNT}, s{S_CNT}, 1")
        a(f"s_cmp_lg_u32 s{S_CNT}, 0")
        a(f"s_cbranch_scc1 {lp}")
    nextra = 0
    if pB and getattr(P, 'extraB', 0) and EXTRAB:
        a(f"s_mov_b32 s4, s{S_KB}")
        for e_ in range(EXTRAB):
            for t in range(nB):
                a(f"buffer_load_dwordx4 v[152:155], v{VB+nA+t}, s[{SRD_B0}:{SRD_B0+3}], s{S_BOFF} offen")
                nextra += 1
            a(f"s_add_u32 s{S_KB}, s{S_KB}, 1")
            a(f"s_cmp_ge_u32 s{S_KB}, {S}")
            a(f"s_cselect_b32 s{S_KB}, 0, s{S_KB}")
            a(f"s_mul_i32 s{S_BOFF}, s{S_KB}, {64*P.ldb}")
        a(f"s_mov_b32 s{S_KB}, s4")
        a(f"s_mul_i32 s{S_BOFF}, s{S_KB}, {64*P.ldb}")
    if not first:
        a("s_barrier      ; B_dep")
    stamp(a, 0)
    L = []
    gate = getattr(P, 'gate', None) if not first else None
    for s in range(S):
        cap = (NS - 1) if s == 0 else s + NS - 2
        prev = L[-1] if L else -1
        if gate and s <= gate[1]:
            L.append(min(gate[0] - 1, cap, prev + 2))
        else:
            L.append(min(S - 1, cap, prev + (3 if gate else (RAMP if not first else 2))))
    if gate:
        assert gate[0] <= pB and gate[0] - 1 <= NS - 1
        nonce_from_lds(a)
    seq = [('B', j) for j in range(pB)]
    if nextra: seq.append(('X', nextra))
    if hasattr(P, 'pre_issue'):
        npre = P.pre_issue(a)
    def cnt_after(s):
        last = max(i for i, (k, j) in enumerate(seq) if j == s and k in 'AB')
        n = 0
        for (k, j) in seq[last+1:]:
            n += minA if k == 'A' else (minB if k == 'B' else j)
        return n
    def issue_stage(j, fill=None):
        if j >= pB:
            issueA(fill, j); seq.append(('A', j))
            issueB(fill, j); seq.append(('B', j))
        else:
            issueA(fill, j); seq.append(('A', j))
    prev = -1
    s = 0
    while s < S:
        k = L[s] - prev
        e = s
        if k == 1 and L[s] >= pB and s > 0 and not getattr(P, 'unroll', False):
            while e + 1 < S and L[e+1] - L[e] == 1 and (L[e+1] - (e+1)) == (L[s] - s) and (getattr(P, 'steady_end', None) is None or e + 1 <= P.steady_end): e += 1
        if e - s >= 2 and s - 0 >= 0 and min(range(s, e+1)) >= 0 and s >= pB - (L[s] - s) and all(j >= pB for j in range(s, s+1)):
            cnt = e - s + 1
            lp = a.new("lmain")
            a(f"s_mov_b32 s{S_CNT}, {cnt}")
            a.label(lp)
            parts = P.loader_stage_work_parts() if P.has_stage_work else None
            issue_stage(L[s], parts)
            if parts:
                for grp in parts:
                    for x in grp: a(x)
            n = cnt_after(s)
            a(f"s_waitcnt vmcnt({n})")
            if P.has_stage_work: a("s_waitcnt lgkmcnt(0)")
            a("s_barrier")
            a(f"s_sub_u32 s{S_CNT}, s{S_CNT}, 1")
            a(f"s_cmp_lg_u32 s{S_CNT}, 0")
            a(f"s_cbranch_scc1 {lp}")
            for j in range(s+1, e+1):
                seq.append(('A', L[j])); seq.append(('B', L[j]))
            prev = L[e]; s = e + 1
            continue
        parts = P.loader_stage_work_parts() if (P.has_stage_work and s > 0) else None
        for j in range(prev+1, L[s]+1):
            issue_stage(j, parts if j == prev+1 else None)
        if s == 0:
            stamp(a, 1)
            ex = P.loader_post_first(a) or 0
            P.l2_prep(a)
            if getattr(P, 'early_pre', False): ex += P.early_setup(a)
            if ex: seq.append(('X', ex))
        if parts:
            for grp in parts:
                for x in grp: a(x)
        nw = P.mid_prefetch(a, s) or 0
        if nw: seq.append(('X', nw))
        if gate and s == gate[1]: P.deps(a, wave=7)
        a(f"s_waitcnt vmcnt({cnt_after(s)})")
        if hasattr(P, 'post_wait'): P.post_wait(a, s)
        if P.has_stage_work or s == 0: a("s_waitcnt lgkmcnt(0)")
        a("s_barrier")
        if s == 0:
            ex = P.loader_post_b0(a) or 0
            if ex: seq.append(('X', ex))
        prev = L[s]; s += 1
    stamp(a, 2)
    if P.has_stage_work:
        for grp in P.loader_stage_work_parts():
            for x in grp: a(x)
    if getattr(P, 'fused', False):
        P.loader_fused_tail(a)
        return
    P.loader_final(a)
    if getattr(P, 'chunk_epi', False): P.loader_store_setup(a)
    if getattr(P, 'early_pre', False):
        a("s_barrier          ; E2")
        P.store_fast(a)
        P.set_fidx(a)
        return
    P.store_pre(a)
    ny = 0
    if P.has_e1:
        a("s_waitcnt lgkmcnt(0)")
        a("s_barrier      ; E1")
    if getattr(P, 'stream_epi', False):
        P.set_fidx(a)
        return
    if getattr(P, 'chunk_epi', False):
        P.loader_epilogue(a)
        P.set_fidx(a)
        return
    a("s_barrier          ; E2")
    store_pass(a, P, ny)

def consumer_phase(a, P, first):
    if getattr(P, 'modeS', False): return consumer_phase_S(a, P, first)
    P.consumer_setup(a)
    NW = len(P.wlist)
    XF = [0, 4*P.NXMAX]
    WF = [8*P.NXMAX, 8*P.NXMAX + 4*NW]
    wk, wt = getattr(P, 'wstep', (4096, 512))
    def reads(kk, buf):
        r = []
        for wi, (areg, off) in enumerate(P.wlist):
            base = WF[buf] + 4*wi
            r.append(f"ds_read_b64_tr_b16 a[{base}:{base+1}], v{areg} offset:{off + kk*wk}")
            r.append(f"ds_read_b64_tr_b16 a[{base+2}:{base+3}], v{areg} offset:{off + kk*wk + wt}")
        for xi, (areg0, areg1, off) in enumerate(P.xlist):
            base = XF[buf] + 4*xi
            areg = areg0 if kk == 0 else areg1
            r.append(f"ds_read_b128 a[{base}:{base+3}], v{areg} offset:{off}")
        return r
    def mfmas(buf, first_=False):
        m = []
        for (xi, wi, acc) in P.mf:
            c = "0" if first_ else f"v[{acc}:{acc+3}]"
            m.append(f"v_mfma_f32_16x16x32_bf16 v[{acc}:{acc+3}], a[{WF[buf]+4*wi}:{WF[buf]+4*wi+3}], a[{XF[buf]+4*xi}:{XF[buf]+4*xi+3}], {c}")
        return m
    block = make_block(a, P.RPM)
    cons_prologue(a, P, first)
    ph0 = first and getattr(P, 'fused', False) and PH0
    if ph0: P.ph0_after_b0(a)
    for x in reads(0, 0): a(x)
    a(f"s_mov_b32 s{S_CNT}, {P.S-1}")
    a("s_waitcnt lgkmcnt(0)")
    def stats4(buf):
        if not getattr(P, 'mfma_stats4', False): return
        sk = a.new("st4")
        a(f"s_and_b32 s{S_T0}, s{S_N1}, 3")
        a(f"s_add_u32 s{S_N1}, s{S_N1}, 1")
        a(f"s_cmp_eq_u32 s{S_T0}, s{S_WAVE}")
        a(f"s_cbranch_scc0 {sk}")
        for x in P.stats_mfmas([f"a[{XF[buf]+4*xi}:{XF[buf]+4*xi+3}]" for xi in range(len(P.xlist))]): a(x)
        a.label(sk)
    st4 = getattr(P, 'mfma_stats4', False)
    block(mfmas(0, True), reads(1, 1), slot_adv(P) + P.addr_update())
    stats4(0)
    if ph0: P.ph0_publish(a)
    lp = a.new("cloop")
    if ALIGN: a.raw(f".p2align {ALIGN}")
    a.label(lp)
    a("s_waitcnt lgkmcnt(0)")
    a("s_barrier")
    block(mfmas(1), reads(0, 0), [f"s_sub_u32 s{S_CNT}, s{S_CNT}, 1"])
    stats4(1)
    a("s_waitcnt lgkmcnt(0)")
    block(mfmas(0), reads(1, 1), slot_adv(P) + P.addr_update() + ([] if st4 else [f"s_cmp_lg_u32 s{S_CNT}, 0"]))
    stats4(0)
    if st4: a(f"s_cmp_lg_u32 s{S_CNT}, 0")
    a(f"s_cbranch_scc1 {lp}")
    a("s_waitcnt lgkmcnt(0)")
    block(mfmas(1), [])
    stats4(1)
    cons_tail(a, P, first)

def make_block(a, RPM):
    def block(m, r, fill=()):
        q = list(r); fl = list(fill)
        for i, x in enumerate(m):
            a(x)
            k = 0
            while q and k < RPM:
                a(q.pop(0)); k += 1
            if not q:
                while fl and k < 2:
                    a(fl.pop(0)); k += 1
        for x in q: a(x)
        for x in fl: a(x)
    return block

def slot_adv(P):
    if getattr(P, 'dual', None):
        NSA, NSB = P.dual
        return [f"s_add_u32 s{S_SLOT}, s{S_SLOT}, 12288",
                f"s_cmp_ge_u32 s{S_SLOT}, {12288*NSA}",
                f"s_cselect_b32 s{S_SLOT}, 0, s{S_SLOT}",
                f"s_add_u32 s{S_SLOTB}, s{S_SLOTB}, 8192",
                f"s_cmp_ge_u32 s{S_SLOTB}, {NSA*12288 + 8192*NSB}",
                f"s_cselect_b32 s{S_SLOTB}, {NSA*12288}, s{S_SLOTB}"]
    return [f"s_add_u32 s{S_SLOT}, s{S_SLOT}, {P.STAGE}",
            f"s_cmp_ge_u32 s{S_SLOT}, {P.STAGE*P.NS}",
            f"s_cselect_b32 s{S_SLOT}, 0, s{S_SLOT}"]

def cons_prologue(a, P, first):
    a(f"s_mov_b32 s{S_SLOT}, 0")
    if getattr(P, 'dual', None): a(f"s_mov_b32 s{S_SLOTB}, {P.dual[0]*12288}")
    for x in P.addr_update(): a(x)
    if first: ptr_wait(a)
    P.build_srds(a, 'c')
    if not first:
        if P.key == 'p3': dry_call(a, 2, "L_epi3_start", "L_epi3_ret")
        two = TWOSTEP and P.key not in ONESTEP
        if two: P.deps_first(a)
        else: P.deps(a)
        a("s_barrier      ; B_dep")
        if getattr(P, 'early_pre', False): P.early_setup(a)
        if two and not getattr(P, 'gate', None):
            if COMB:
                skf = a.new("skfull")
                a(f"s_cmp_eq_u32 s{S_N2}, 1")
                a(f"s_cbranch_scc1 {skf}")
                P.deps(a)
                a.label(skf)
            else:
                P.deps(a)
    else:
        nonce_publish(a)
        if getattr(P, 'fused', False) and PH0: P.ph0_produce(a)
        if getattr(P, 'fused', False):
            dry_call(a, 1, "L_epi1_start", "L_epi1_ret")
            dry_call(a, 2, "L_att_start", "L_att_ret")
    stamp(a, 0)
    a("s_barrier          ; B_0")
    stamp(a, 1)

def cons_tail(a, P, first):
    stamp(a, 2)
    if first and not (getattr(P, 'fused', False) and PH0): nonce_issue(a)
    a("s_nop 7")
    P.epilogue(a)
    if getattr(P, 'stream_epi', False) or getattr(P, 'chunk_epi', False):
        P.set_fidx(a)
        return
    a("s_waitcnt lgkmcnt(0)")
    if getattr(P, 'early_pre', False):
        a("s_barrier          ; E2")
        P.store_fast(a)
        P.set_fidx(a)
        return
    P.store_pre(a)
    a("s_barrier          ; E2")
    store_pass(a, P)

def consumer_phase_S(a, P, first):
    P.consumer_setup(a)
    for r in range(P.ACC, P.ACC + P.NACC): a(f"v_mov_b32 v{r}, 0")
    def rng(t):
        k, i = t
        return f"{k}[{i}:{i+3}]"
    def half(t, h):
        k, i = t
        return f"{k}[{i+2*h}:{i+2*h+1}]"
    def reads(buf):
        r = []
        for kk in range(2):
            for wi, (areg, off) in enumerate(P.wlist):
                t = P.fragW(buf, kk, wi)
                r.append(f"ds_read_b64_tr_b16 {half(t,0)}, v{areg} offset:{off + kk*4096}")
                r.append(f"ds_read_b64_tr_b16 {half(t,1)}, v{areg} offset:{off + kk*4096 + 512}")
            for xi, (areg0, areg1, off) in enumerate(P.xlist):
                areg = areg0 if kk == 0 else areg1
                r.append(f"ds_read_b128 {rng(P.fragX(buf, kk, xi))}, v{areg} offset:{off}")
        return r
    def mfmas(buf):
        m = []
        for kk in range(2):
            for (xi, wi, acc) in P.mf:
                m.append(f"v_mfma_f32_16x16x32_bf16 v[{acc}:{acc+3}], {rng(P.fragW(buf, kk, wi))}, {rng(P.fragX(buf, kk, xi))}, v[{acc}:{acc+3}]")
        return m
    def stats(buf):
        if not getattr(P, 'mfma_stats', False) or 'nostats' in EXP: return
        l1 = a.new("st"); l2 = a.new("st")
        a(f"s_cmp_eq_u32 s{S_J}, 1")
        a(f"s_cbranch_scc1 {l1}")
        for x in P.stats_mfmas([rng(P.fragX(buf, 0, xi)) for xi in range(4)]): a(x)
        a(f"s_branch {l2}")
        a.label(l1)
        for x in P.stats_mfmas([rng(P.fragX(buf, 1, xi)) for xi in range(4)]): a(x)
        a.label(l2)
    block = make_block(a, P.RPM)
    cons_prologue(a, P, first)
    for x in reads(0): a(x)
    for x in slot_adv(P) + P.addr_update(): a(x)
    S = P.S
    npair = (S - 1)//2
    def step(cur, fill_extra=()):
        a("s_waitcnt lgkmcnt(0)")
        a("s_barrier")
        block(mfmas(cur), reads(1 - cur), slot_adv(P) + P.addr_update() + list(fill_extra))
        stats(cur)
    a(f"s_mov_b32 s{S_CNT}, {npair}")
    lp = a.new("cloop")
    if ALIGN: a.raw(f".p2align {ALIGN}")
    a.label(lp)
    step(0, [f"s_sub_u32 s{S_CNT}, s{S_CNT}, 1"])
    step(1)
    a(f"s_cmp_lg_u32 s{S_CNT}, 0")
    a(f"s_cbranch_scc1 {lp}")
    last = 0
    if (S - 1) % 2 == 1:
        step(0); last = 1
    a("s_waitcnt lgkmcnt(0)")
    block(mfmas(last), [])
    stats(last)
    cons_tail(a, P, first)

def ptr_wait(a):
    a("s_waitcnt lgkmcnt(0)")
    if PROFDBG: a(f"s_mov_b32 s{S_P0}, s98")
    srd(a, SRD_FLAG, ptr(KA_WS), WS_FLAG, 0x20000)

def cons_lane(a):
    a("v_and_b32 v3, 15, v2")
    a("v_lshrrev_b32 v4, 4, v2")

def x_addr_const(a, dst, rowbase_sgpr, rowbase_const=0):
    a("v_lshrrev_b32 v5, 1, v3")
    a("v_xor_b32 v5, v4, v5")
    a("v_lshlrev_b32 v5, 4, v5")
    a(f"v_lshl_add_u32 v{dst}, v3, 7, v5")
    if rowbase_sgpr is not None:
        a(f"s_lshl_b32 s{S_T0}, s{rowbase_sgpr}, 7")
        a(f"v_add_u32 v{dst}, s{S_T0}, v{dst}")
    if rowbase_const:
        a(f"v_add_u32 v{dst}, {rowbase_const*128}, v{dst}")

def w_addr_const(a, dst):
    a("v_lshrrev_b32 v5, 2, v3        ; r")
    a("v_lshl_add_u32 v6, v4, 3, v5   ; 8g+r")
    a("v_lshlrev_b32 v6, 7, v6")
    a("v_lshrrev_b32 v5, 1, v5        ; r>>1")
    a("v_and_b32 v7, 1, v4")
    a("v_lshl_or_b32 v5, v7, 1, v5    ; h")
    a("v_lshl_add_u32 v6, v5, 5, v6")
    a("v_and_b32 v5, 3, v3")
    a(f"v_lshl_add_u32 v{dst}, v5, 3, v6")

def t_write_addr(a, dst, base_const):
    a("v_lshrrev_b32 v5, 1, v4")
    a("v_and_b32 v6, 7, v3")
    a("v_xor_b32 v5, v5, v6")
    a("v_lshlrev_b32 v5, 4, v5")
    a("v_and_b32 v6, 1, v4")
    a("v_lshl_add_u32 v5, v6, 3, v5")
    a(f"v_lshl_add_u32 v{dst}, v3, 7, v5")
    a(f"v_add_u32 v{dst}, {base_const}, v{dst}")

def pad_init(a, P, row0, nzero_rows, ones_row):
    a("v_mov_b32 v12, 0"); a("v_mov_b32 v13, 0"); a("v_mov_b32 v14, 0"); a("v_mov_b32 v15, 0")
    a(f"v_mov_b32 v10, {hex(ONES)}")
    a("v_lshlrev_b32 v11, 4, v2        ; lane*16")
    for rep in range((P.NS + 3)//4):
        sk = a.new("pad")
        a(f"s_add_u32 s{S_T0}, s{S_W}, {4*rep}")
        a(f"s_cmp_ge_u32 s{S_T0}, {P.NS}")
        a(f"s_cbranch_scc1 {sk}")
        a(f"s_mul_i32 s{S_T0}, s{S_T0}, {P.STAGE}")
        nb = nzero_rows*128; off = 0
        while off < nb:
            lanes = min(64, (nb - off)//16)
            a(f"v_add_u32 v16, s{S_T0}, v11")
            if lanes < 64: set_exec(a, (1 << lanes) - 1)
            a(f"ds_write_b128 v16, v[12:15] offset:{row0*128 + off}")
            if lanes < 64: a("s_mov_b64 exec, -1")
            off += lanes*16
        if ones_row is not None:
            a(f"v_lshlrev_b32 v16, 2, v2")
            a(f"v_add_u32 v16, s{S_T0}, v16")
            set_exec(a, 0xffffffff)
            a(f"ds_write_b32 v16, v10 offset:{ones_row*128}")
            a("s_mov_b64 exec, -1")
        a.label(sk)

def store_pass(a, P, ny=0):
    a("v_lshrrev_b32 v3, 3, v2")
    a("v_and_b32 v4, 7, v2")
    a("v_xor_b32 v5, v4, v3")
    a("v_lshlrev_b32 v5, 4, v5")
    a("v_lshl_add_u32 v5, v3, 7, v5")
    a(f"s_lshl_b32 s{S_T0}, s{S_WAVE}, 10")
    a(f"v_add_u32 v5, s{S_T0}, v5")
    a(f"v_add_u32 v5, {P.TBASE}, v5          ; lds addr for unit = wave")
    a(f"s_lshl_b32 s{S_T0}, s{S_WAVE}, 3")
    a(f"s_add_u32 s{S_T0}, s{S_T0}, s{S_R0}")
    a(f"v_add_u32 v6, s{S_T0}, v3")
    a(f"s_mov_b32 s{S_T1}, {P.ldo}")
    a(f"v_mul_lo_u32 v7, v6, s{S_T1}")
    a(f"s_lshl_b32 s{S_T0}, s{S_C0}, 1")
    a(f"v_lshl_add_u32 v7, v4, 4, v7")
    a(f"v_add_u32 v7, s{S_T0}, v7")
    a("v_mov_b32 v8, 0x80000000")
    P.ny = ny
    P.store_body(a)
    P.set_fidx(a)

def store_addr(a, k, dst, P, coloff=0):
    a(f"v_add_u32 v9, {64*k}, v6")
    a(f"v_cmp_gt_u32 vcc, s{S_REND}, v9")
    a(f"v_add_u32 v{dst}, {64*k*P.ldo + coloff}, v7")
    a("s_nop 0")
    a(f"v_cndmask_b32 v{dst}, v8, v{dst}, vcc")

class P1(Phase):
    key = 'p1'; kind = "p1"; NT = 255
    MV = 121; NC = 128; lda = 1280; ldb = 3840; ldo = 3840
    ABYTES = 16384; STAGE = 32768; NS = 4; S = 10
    NXMAX = 4; RPM = 1
    has_stage_work = False; has_e1 = True
    mfma_stats = True
    order2 = True
    GRAM = 96; SUMA = 112; VONES = 24
    modeS = True; NACC = 64
    def fragW(self, buf, kk, wi): return ('a', 64*buf + 16*kk + 4*wi)
    def fragX(self, buf, kk, xi):
        if buf == 0: return ('a', 32 + 16*kk + 4*xi)
        return ('v', 128 + 16*kk + 4*xi)
    scA = ""
    panel_coloff = [0, 128]; panel_srd = [SRD_B0, SRD_B0]
    LDS_ST = 131072; LDS_CS = 131072 + 2048
    TBASE = 2*32768
    rot = (5, 10, 2)
    Ains = [None, None, None, 'mask']
    Bins = [(0, 0), (0, 4), (1, 0), (1, 4)]
    def __init__(self):
        self.vXc, self.vWc = 8, 9
        self.vXa, self.vXb = 10, 11
        self.vW = [12, 13, 14, 15]
        self.xlist = [(self.vXa, self.vXb, 2048*x) for x in range(4)]
        self.wlist = [(self.vW[f], self.ABYTES) for f in range(4)]
        self.ACC = 32
        self.mf = [(x, f, self.ACC + 4*(4*x + f)) for x in range(4) for f in range(4)]
    def rot_start(self, a):
        if P1ROT == "lock":
            a(f"s_mov_b32 s{S_K}, 0"); return
        if P1ROT == "two":
            a(f"s_add_u32 s{S_K}, s{S_RT}, s{S_CT}")
            a(f"s_and_b32 s{S_K}, s{S_K}, 1")
            a(f"s_mul_i32 s{S_K}, s{S_K}, 5"); return
        if P1ROT == "ten":
            a(f"s_mul_i32 s{S_K}, s{S_RT}, 3")
            a(f"s_add_u32 s{S_K}, s{S_K}, s{S_CT}")
            divc(a, S_T0, S_K, 10)
            a(f"s_mul_i32 s{S_T0}, s{S_T0}, 10")
            a(f"s_sub_u32 s{S_K}, s{S_K}, s{S_T0}"); return
        a(f"s_add_u32 s{S_K}, s{S_RT}, s{S_CT}")
        divc(a, S_T0, S_K, 5)
        a(f"s_mul_i32 s{S_T0}, s{S_T0}, 5")
        a(f"s_sub_u32 s{S_K}, s{S_K}, s{S_T0}")
        a(f"s_lshl_b32 s{S_K}, s{S_K}, 1")
    def l2_prep(self, a): l2_setup(a, "rm", 250, 64, KA_WO, D*D*2, 1280, D)
    def mid_prefetch(self, a, s):
        if s == 8: return l2_issue(a, KA_WO, 1280, D)
    def mask_setup(self, a):
        a(f"s_cmp_eq_u32 s{S_W}, 3")
        a(f"s_cselect_b32 s{S_MASK}, 0xff, -1")
        a(f"s_cselect_b32 s{S_MASK+1}, 0, -1")
    def build_srds(self, a, role):
        if role == 'l':
            srd(a, SRD_A, ptr(KA_X), 0, S_TOK*D*2)
            srd(a, SRD_B0, ptr(KA_WQKV), 0, D*NQKV*2)
        srd(a, SRD_OUT, ptr(KA_WS), WS_QKV, S_TOK*NQKV*2)
    def set_fidx(self, a):
        a(f"s_mul_i32 s{S_FIDX}, s{S_RT}, 15")
        a(f"s_add_u32 s{S_FIDX}, s{S_FIDX}, s{S_CT}")
        a(f"s_lshl_b32 s{S_FIDX}, s{S_FIDX}, 7")
    def loader_post_first(self, a):
        pad_init(a, self, 121, 6, 127)
        return 0
    def stats_mfmas(self, xregs):
        m = []
        for x in range(4):
            xa = xregs[x]
            g = self.GRAM + 4*x; sm = self.SUMA + 4*x
            m.append(f"v_mfma_f32_16x16x32_bf16 v[{g}:{g+3}], {xa}, {xa}, v[{g}:{g+3}]")
            m.append(f"v_mfma_f32_16x16x32_bf16 v[{sm}:{sm+3}], v[{self.VONES}:{self.VONES+3}], {xa}, v[{sm}:{sm+3}]")
        return m
    def consumer_setup(self, a):
        cons_lane(a)
        a(f"s_lshr_b32 s{S_I}, s{S_WAVE}, 1")
        a(f"s_and_b32 s{S_J}, s{S_WAVE}, 1")
        a(f"s_lshl_b32 s{S_T1}, s{S_I}, 6")
        x_addr_const(a, self.vXc, S_T1)
        w_addr_const(a, self.vWc)
        a(f"s_lshl_b32 s{S_T0}, s{S_J}, 13")
        a(f"v_add_u32 v{self.vWc}, s{S_T0}, v{self.vWc}")
        for r in range(4): a(f"v_mov_b32 v{self.VONES+r}, {hex(ONES)}")
        for r in range(32): a(f"v_mov_b32 v{self.GRAM+r}, 0")
        a(f"s_lshl_b32 s{S_T0}, s{S_J}, 8       ; j*64*4")
        a(f"v_lshlrev_b32 v16, 4, v4            ; g*16 bytes")
        a(f"v_add_u32 v16, s{S_T0}, v16")
        a(f"v_add_u32 v16, {self.LDS_CS}, v16")
        t_write_addr(a, 17, self.TBASE)
        a(f"s_lshl_b32 s{S_T0}, s{S_WAVE}, 13")
        a(f"v_add_u32 v17, s{S_T0}, v17")
        for f in range(1, 4): a(f"v_xor_b32 v{17+f}, {32*f}, v17")
        a(f"s_lshl_b32 s{S_T0}, s{S_I}, 9       ; i*64*8")
        a(f"s_lshl_b32 s{S_T1}, s{S_J}, 10      ; j*128*8")
        a(f"s_add_u32 s{S_T1}, s{S_T1}, s{S_T0}")
        a(f"v_lshlrev_b32 v7, 3, v3")
        a(f"v_add_u32 v21, s{S_T1}, v7")
        a(f"v_add_u32 v21, {self.LDS_ST}, v21")
        a(f"v_add_u32 v22, s{S_T0}, v7")
        a(f"v_add_u32 v22, {self.LDS_ST}, v22")
        a("v_lshrrev_b32 v5, 3, v2             ; r8")
        a("v_and_b32 v6, 7, v2                 ; c")
        a("v_xor_b32 v7, v6, v5")
        a("v_lshlrev_b32 v7, 4, v7")
        a("v_lshl_add_u32 v23, v5, 7, v7")
        a(f"s_lshl_b32 s{S_T0}, s{S_WAVE}, 13")
        a(f"s_add_u32 s{S_T0}, s{S_T0}, {self.TBASE}")
        a(f"v_add_u32 v23, s{S_T0}, v23")
        a(f"s_lshl_b32 s{S_T0}, s{S_I}, 6")
        a(f"s_add_u32 s{S_T0}, s{S_T0}, s{S_R0}")
        a(f"v_add_u32 v28, s{S_T0}, v5")
        a(f"s_mov_b32 s{S_T1}, 3840")
        a(f"v_mul_lo_u32 v28, v28, s{S_T1}")
        a("v_lshl_add_u32 v28, v6, 4, v28")
        a(f"s_lshl_b32 s{S_T0}, s{S_J}, 6")
        a(f"s_add_u32 s{S_T0}, s{S_T0}, s{S_C0}")
        a(f"s_lshl_b32 s{S_T0}, s{S_T0}, 1")
        a(f"v_add_u32 v28, s{S_T0}, v28")
    def addr_update(self):
        r = [f"v_add_u32 v{self.vXa}, s{S_SLOT}, v{self.vXc}",
             f"v_add_u32 v{self.vW[0]}, s{S_SLOT}, v{self.vWc}",
             f"v_xor_b32 v{self.vXb}, 64, v{self.vXa}"]
        for f in range(1, len(self.vW)):
            r.append(f"v_xor_b32 v{self.vW[f]}, {32*f}, v{self.vW[0]}")
        return r
    stream_epi = True
    def epilogue(self, a):
        nocs = a.new("nocs")
        a(f"s_cmp_eq_u32 s{S_I}, 1")
        a(f"s_cbranch_scc0 {nocs}")
        set_exec(a, 0x8000800080008000)
        for f in range(4):
            acc = self.ACC + 4*(4*3 + f)
            a(f"ds_write_b128 v16, v[{acc}:{acc+3}] offset:{64*f}")
        a("s_mov_b64 exec, -1")
        a.label(nocs)
        for i_, m_ in enumerate((0x22222222, 0x44444444, 0x88888888)):
            a(f"s_mov_b32 s{80+2*i_}, {hex(m_)}"); a(f"s_mov_b32 s{81+2*i_}, {hex(m_)}")
        for x in range(4):
            g = self.GRAM + 4*x
            a(f"v_cndmask_b32 v{g+1}, v{g}, v{g+1}, s[80:81]")
            a(f"v_cndmask_b32 v{g+1}, v{g+1}, v{g+2}, s[82:83]")
            a(f"v_cndmask_b32 v{g+1}, v{g+1}, v{g+3}, s[84:85]")
            a(f"v_mov_b32 v{g}, v{self.SUMA+4*x}           ; sum")
        set_exec(a, 0xF | (0xF << 20) | (0xF << 40) | (0xF << 60))
        for x in range(4):
            g = self.GRAM + 4*x
            a(f"ds_write_b64 v21, v[{g}:{g+1}] offset:{128*x}")
        a("s_mov_b64 exec, -1")
        a("s_waitcnt lgkmcnt(0)")
        a("s_barrier      ; E1")
        CS = 128; ST = 144
        for x in range(4):
            a(f"ds_read_b64 v[{ST+2*x}:{ST+2*x+1}], v22 offset:{128*x}")
            a(f"ds_read_b64 v[{96+2*x}:{97+2*x}], v22 offset:{1024 + 128*x}")
        for f in range(4):
            a(f"ds_read_b128 v[{CS+4*f}:{CS+4*f+3}], v16 offset:{64*f}")
        a("s_waitcnt lgkmcnt(4)")
        for x in range(4):
            st = ST + 2*x
            a(f"v_pk_add_f32 v[{st}:{st+1}], v[{st}:{st+1}], v[{96+2*x}:{97+2*x}]")
            a(f"v_mul_f32 v{st}, {hex(f2u(1.0/D))}, v{st}          ; mean")
            a(f"v_mul_f32 v{st+1}, {hex(f2u(1.0/D))}, v{st+1}")
            a(f"v_fma_f32 v{st+1}, -v{st}, v{st}, v{st+1}      ; var")
            a(f"v_add_f32 v{st+1}, {hex(f2u(1e-5))}, v{st+1}")
            a(f"v_rsq_f32 v{st+1}, v{st+1}")
        a("s_waitcnt lgkmcnt(0)")
        RB = [96, 104]
        def stores(x):
            rb = RB[x & 1]
            for u in range(2):
                a(f"v_add_u32 v{29+u}, {(16*x + 8*u)*3840}, v28")
            for u in range(2):
                if x == 3 and u == 1:
                    a(f"s_cmp_eq_u32 s{S_I}, 1")
                    a("s_cselect_b32 exec_lo, 0xff, -1")
                    a("s_cselect_b32 exec_hi, 0, -1")
                a(f"buffer_store_dwordx4 v[{rb+4*u}:{rb+4*u+3}], v{29+u}, s[{SRD_OUT}:{SRD_OUT+3}], 0 offen{SC1}")
            if x == 3: a("s_mov_b64 exec, -1")
        for x in range(4):
            st = ST + 2*x
            for f in range(4):
                acc = self.ACC + 4*(4*x + f)
                for hh in (0, 2):
                    a(f"v_pk_fma_f32 v[{acc+hh}:{acc+hh+1}], v[{CS+4*f+hh}:{CS+4*f+hh+1}], v[{st}:{st+1}], v[{acc+hh}:{acc+hh+1}] op_sel_hi:[1,0,1] neg_lo:[0,1,0] neg_hi:[0,1,0]")
                for hh in (0, 2):
                    a(f"v_pk_mul_f32 v[{acc+hh}:{acc+hh+1}], v[{acc+hh}:{acc+hh+1}], v[{st}:{st+1}] op_sel:[0,1] op_sel_hi:[1,1]")
                a(f"v_cvt_pk_bf16_f32 v{acc}, v{acc}, v{acc+1}")
                a(f"v_cvt_pk_bf16_f32 v{acc+1}, v{acc+2}, v{acc+3}")
                a(f"ds_write_b64 v{17+f}, v[{acc}:{acc+1}] offset:{2048*x}")
            rb = RB[x & 1]
            if x >= 1:
                a("s_waitcnt lgkmcnt(4)")
                stores(x - 1)
            for u in range(2):
                a(f"ds_read_b128 v[{rb+4*u}:{rb+4*u+3}], v23 offset:{2048*x + 1024*u}")
        a("s_waitcnt lgkmcnt(0)")
        stores(3)


class P1F(Phase):
    key = 'p1'; kind = "p1f"; NT = 256
    MV = 64; NC = 80; lda = 1280; ldb = 3840
    ABYTES = 10240; STAGE = 40960; NS = 3; S = 10
    NXMAX = 5
    @property
    def RPM(self): return RPM1
    has_e1 = True; fused = True; custom_B = True
    scA = ""
    Ains = [None, None, 'skip']
    Bins = [dict(lds=10240 + 4096*t) for t in range(7)] + [dict(lds=10240 + 4096*7, skip=2)]
    panel_srd = [SRD_B0]
    LDS_STP = 122880
    QT = 40960; QROW = 488
    OT = 81920; OROW = 176
    ACC = 32; GRAM = 112; SUMA = 132; VONES = 152
    @property
    def mfma_stats4(self): return not PH0
    @property
    def steady_end(self): return 6 if PH0 else None
    def __init__(self):
        self.vXc = 8; self.vXa, self.vXb = 9, 10
        self.vWc = [11, 12, 13, 14]; self.vW = [15, 16, 17, 18]
        self.xlist = [(self.vXa, self.vXb, 2048*x) for x in range(5)]
        self.wlist = None
        self.mf = [(x, j, self.ACC + 4*(4*x + j)) for x in range(5) for j in range(4)]
    def rot_start(self, a):
        if P1FROT == 'lock':
            a(f"s_mov_b32 s{S_K}, 0"); return
        if P1FROT == 'rot4':
            a(f"s_and_b32 s{S_K}, s{S_RT}, 3")
            a(f"s_and_b32 s{S_T0}, s{S_CT}, 1")
            a(f"s_lshl_b32 s{S_T0}, s{S_T0}, 2")
            a(f"s_add_u32 s{S_K}, s{S_K}, s{S_T0}"); return
        if P1FROT == 'rot8':
            a(f"s_and_b32 s{S_K}, s{S_RT}, 7")
            a(f"s_mul_i32 s{S_K}, s{S_K}, 5")
            a(f"s_lshr_b32 s{S_K}, s{S_K}, 2")
            return
        a(f"s_add_u32 s{S_K}, s{S_RT}, s{S_CT}")
        divc(a, S_T0, S_K, 5)
        a(f"s_mul_i32 s{S_T0}, s{S_T0}, 5")
        a(f"s_sub_u32 s{S_K}, s{S_K}, s{S_T0}")
        a(f"s_lshl_b32 s{S_K}, s{S_K}, 1")
    @property
    def order2(self): return P1FROT == 'latin2'
    def pre_issue(self, a):
        if not APF: return 0
        a(f"s_and_b32 s{S_T0}, s{S_CT}, 3")
        a(f"s_mul_i32 s{S_T0}, s{S_T0}, 20")
        a(f"s_add_u32 s{S_T0}, s{S_T0}, s{S_R0}")
        a(f"s_mul_i32 s{S_T0}, s{S_T0}, 1280")
        a(f"s_lshl_b32 s{S_T1}, s{S_W}, 10")
        a(f"s_add_u32 s{S_T0}, s{S_T0}, s{S_T1}")
        a("v_lshlrev_b32 v60, 4, v2")
        a(f"v_add_u32 v60, s{S_T0}, v60")
        n = 7
        for i in range(n):
            a(f"buffer_load_dwordx4 v[152:155], v60, s[{SRD_A}:{SRD_A+3}], 0 offen")
            if i + 1 < n: a("v_add_u32 v60, 4096, v60")
        return n
    def tile_consts(self, a):
        a(f"s_lshl_b32 s{S_R0}, s{S_RT}, 6")
        a(f"s_sub_u32 s{S_R0}, s{S_R0}, 14")
        a(f"s_mul_i32 s{S_C0}, s{S_CT}, 160")
    def mask_setup(self, a):
        a(f"s_cmp_eq_u32 s{S_W}, 0")
        a(f"s_cselect_b32 s{S_MASK+1}, -1, 0xffff")
        a(f"s_cmp_lt_u32 s{S_W}, 2")
        a(f"s_cselect_b32 s{S_MASK}, -1, 0")
        a(f"s_cselect_b32 s{S_MASK+1}, s{S_MASK+1}, 0")
    def custom_B_setup(self, a, vb):
        a(f"s_lshl_b32 s{S_T0}, s{S_W}, 6")
        a(f"v_add_u32 v8, s{S_T0}, v2            ; c0")
        vdiv(a, 9, 8, 10, 256)
        a("v_mul_u32_u24 v10, 10, v9")
        a("v_sub_u32 v10, v8, v10                ; ch")
        a("v_mul_u32_u24 v11, 3840, v9")
        a("v_lshl_add_u32 v11, v10, 4, v11")
        a(f"v_add_u32 v{vb}, s{S_C0}, v11         ; voff t=0")
        for t in range(1, 8):
            a("v_add_u32 v10, 6, v10")
            a("v_add_u32 v9, 25, v9")
            a("v_cmp_le_u32 vcc, 10, v10")
            a(f"v_add_u32 v{vb+t}, {25*3840 + 96}, v{vb+t-1}")
            a("v_subrev_u32 v12, 10, v10")
            a("v_cndmask_b32 v10, v10, v12, vcc")
            a("v_addc_co_u32 v9, vcc, 0, v9, vcc") if False else None
            a(f"v_add_u32 v12, {3840 - 160}, v{vb+t}")
            a(f"v_cndmask_b32 v{vb+t}, v{vb+t}, v12, vcc")
            a("v_add_u32 v12, 1, v9")
            a("v_cndmask_b32 v9, v9, v12, vcc")
            a("v_cmp_le_u32 vcc, 64, v9")
            a(f"v_add_u32 v12, {(1280 - 64*3840) & 0xffffffff}, v{vb+t}")
            a("v_subrev_u32 v13, 64, v9")
            a(f"v_cndmask_b32 v{vb+t}, v{vb+t}, v12, vcc")
            a("v_cndmask_b32 v9, v9, v13, vcc")
    def build_srds(self, a, role):
        if role == 'l':
            srd(a, SRD_A, ptr(KA_X), 0, S_TOK*D*2)
            srd(a, SRD_B0, ptr(KA_WQKV), 0, D*NQKV*2)
        srd(a, SRD_OUT, ptr(KA_WS), WS_O, 0x280000)
    def set_fidx(self, a):
        a(f"s_lshl_b32 s{S_FIDX}, s{S_RT}, 3")
        a(f"s_add_u32 s{S_FIDX}, s{S_FIDX}, s{S_CT}")
        a(f"s_lshl_b32 s{S_FIDX}, s{S_FIDX}, 7")
        a(f"s_add_u32 s{S_FIDX}, s{S_FIDX}, 0x8000")
    def l2_prep(self, a): l2_setup(a, "rm", 250, 64, KA_WO, D*D*2, 1280, D)
    @property
    def unroll(self): return SPF != 0
    def spf_setup(self, a):
        a(f"s_lshl_b32 s{S_T0}, s2, 2")
        a(f"s_add_u32 s{S_T0}, s{S_T0}, s{S_W}        ; q")
        a(f"s_mul_i32 s{S_T1}, s{S_T0}, 2560")
        a(f"s_add_u32 s98, s{ptr(KA_X)}, s{S_T1}")
        a(f"s_addc_u32 s99, s{ptr(KA_X)+1}, 0")
        sdiv(a, S_T1, S_T0, 205, 1100)
        a(f"s_mul_i32 s{S_T2}, s{S_T1}, 205")
        a(f"s_sub_u32 s{S_T2}, s{S_T0}, s{S_T2}")
        a(f"s_min_u32 s{S_T2}, s{S_T2}, 201")
        a(f"s_mul_i32 s{S_T2}, s{S_T2}, 1216")
        a(f"s_lshl_b32 s{S_T1}, s{S_T1}, 1")
        a(f"s_add_u32 s{S_T1}, s{S_T1}, 1")
        a(f"s_mul_i32 s{S_T1}, s{S_T1}, 245760")
        a(f"s_add_u32 s{S_T1}, s{S_T1}, s{S_T2}")
        a(f"s_add_u32 s100, s{ptr(KA_WQKV)}, s{S_T1}")
        a(f"s_addc_u32 s101, s{ptr(KA_WQKV)+1}, 0")
    def spf_list(self):
        L_ = []
        for i in range(19): L_.append(("s[100:101]", 64*i))
        for k in (1, 3, 5, 7, 9):
            for r in range(2):
                for h in range(2): L_.append(("s[98:99]", r*1280 + k*128 + h*64))
        return L_
    def mid_prefetch(self, a, s):
        if SPF:
            if s == 0: self.spf_setup(a)
            L_ = self.spf_list()
            per = SPF
            if s >= 1 and s <= 4:
                for base, off in L_[per*(s-1): per*s]:
                    a(f"s_load_dword s3, {base}, {off}")
            if SPF2 and s >= 5:
                if s == 5:
                    a(f"s_lshl_b32 s{S_T0}, s2, 2")
                    a(f"s_add_u32 s{S_T0}, s{S_T0}, s{S_W}")
                    a(f"s_mul_i32 s{S_T1}, s{S_T0}, 800")
                    a(f"s_add_u32 s98, s{ptr(KA_WO)}, s{S_T1}")
                    a(f"s_addc_u32 s99, s{ptr(KA_WO)+1}, 0")
                    a(f"s_mul_i32 s{S_T1}, s{S_T0}, 2160")
                    a(f"s_add_u32 s100, s{ptr(SPF2)}, s{S_T1}")
                    a(f"s_addc_u32 s101, s{ptr(SPF2)+1}, 0")
                L2 = [("s[98:99]", 64*i) for i in range(13)] + [("s[100:101]", 64*i) for i in range(34)]
                for base, off in L2[10*(s-5): 10*(s-4)]:
                    a(f"s_load_dword s3, {base}, {off}")
        if PH0 and s == 7: return self.ph0_issue(a)
        if s == WO_S: return l2_issue(a, KA_WO, 1280, D)
    def loader_post_first(self, a):
        pad_init(a, self, 78, 1, 79)
        self.att_setup(a)
        return 0
    def att_setup(self, a):
        QT, QROW = self.QT, self.QROW
        a("v_and_b32 v3, 3, v2             ; i")
        a("v_bfe_u32 v4, v2, 2, 2          ; head")
        a("v_lshrrev_b32 v5, 4, v2         ; grp")
        a("v_lshrrev_b32 v6, 1, v5")
        a("v_lshlrev_b32 v6, 3, v6")
        a("v_and_b32 v7, 1, v5")
        a("v_add_u32 v6, v6, v7")
        a(f"s_lshl_b32 s{S_T0}, s{S_W}, 4")
        a(f"v_add_u32 v6, s{S_T0}, v6")
        a("v_lshlrev_b32 v7, 1, v3")
        a("v_add_u32 v7, v6, v7            ; rb + 2i")
        a(f"v_mul_u32_u24 v8, {QROW}, v7")
        a("v_mul_u32_u24 v9, 40, v4")
        a("v_add_u32 v8, v8, v9")
        a(f"v_add_u32 v144, {QT + 14*QROW}, v8")
        a(f"v_add_u32 v145, {QT + 160}, v8")
        a("v_cmp_eq_u32 vcc, 3, v3")
        a(f"v_mov_b32 v10, {16*QROW}")
        a(f"v_mov_b32 v11, {14*QROW}")
        a("v_cndmask_b32 v10, v10, v11, vcc")
        a("v_add_u32 v146, v145, v10")
        a(f"v_mul_u32_u24 v12, {self.OROW}, v7")
        a("v_add_u32 v12, v12, v9")
        a(f"v_add_u32 v118, {self.OT}, v12")
        a("v_lshlrev_b32 v12, 1, v4               ; 2r")
        a("v_add_u32 v12, v6, v12")
        a(f"v_mul_u32_u24 v12, {QROW}, v12")
        a("v_mul_u32_u24 v13, 40, v3")
        a("v_add_u32 v12, v12, v13")
        a(f"v_add_u32 v147, {QT + 320}, v12")
        a("v_cmp_eq_u32 vcc, 3, v4")
        a(f"v_mov_b32 v10, {16*QROW}")
        a("s_nop 0")
        a("v_cndmask_b32 v10, v10, v11, vcc")
        a("v_add_u32 v119, v147, v10")
        a(f"v_mov_b32 v12, {hex(f2u(-1e30))}")
        a("v_mov_b32 v13, 0")
        a(f"v_add_u32 v14, s{S_R0}, v6")
        for m in range(12):
            a(f"v_sub_u32 v15, {m}, v3")
            a("v_cmp_gt_u32 vcc, 8, v15")
            a(f"v_add_u32 v16, {2*m}, v14")
            a("v_cmp_le_i32 s[4:5], 0, v16")
            a("s_nop 1")
            a("s_and_b64 vcc, vcc, s[4:5]")
            a(f"v_cndmask_b32 v{120+m}, v12, v13, vcc")
        self.store_addr_setup(a)
    def ph0_produce(self, a):
        srd(a, SRD_AUX, ptr(KA_X), 0, S_TOK*D*2)
        srd(a, SRD_ST, ptr(KA_WS), WS_ST1, S_TOK*16)
        a(f"s_lshl_b32 s{S_T0}, s{S_RT}, 6")
        a(f"s_lshl_b32 s{S_T1}, s{S_CT}, 3")
        a(f"s_add_u32 s{S_T0}, s{S_T0}, s{S_T1}")
        a(f"s_lshl_b32 s{S_T1}, s{S_WAVE}, 1")
        a(f"s_add_u32 s{S_T0}, s{S_T0}, s{S_T1}")
        a("v_lshrrev_b32 v5, 5, v2")
        a(f"v_add_u32 v5, s{S_T0}, v5            ; row")
        a("v_and_b32 v6, 31, v2                  ; j")
        a("v_mul_u32_u24 v7, 1280, v5")
        a("v_lshl_add_u32 v7, v6, 4, v7")
        a("v_mov_b32 v30, 0x80000000")
        a("v_cmp_gt_u32 vcc, 16, v6")
        a("v_add_u32 v31, 1024, v7")
        a(f"buffer_load_dwordx4 v[32:35], v7, s[{SRD_AUX}:{SRD_AUX+3}], 0 offen")
        a("v_cndmask_b32 v31, v30, v31, vcc")
        a(f"buffer_load_dwordx4 v[36:39], v7, s[{SRD_AUX}:{SRD_AUX+3}], 0 offen offset:512")
        a(f"buffer_load_dwordx4 v[40:43], v31, s[{SRD_AUX}:{SRD_AUX+3}], 0 offen")
        a("s_waitcnt vmcnt(0)")
        a(f"v_mov_b32 v48, {hex(ONES)}")
        for r in (49, 50, 51, 52): a(f"v_mov_b32 v{r}, 0")
        for d in range(12):
            s_, q_ = (49, 50) if d & 1 == 0 else (51, 52)
            a(f"v_dot2_f32_bf16 v{s_}, v{32+d}, v48, v{s_}")
            a(f"v_dot2_f32_bf16 v{q_}, v{32+d}, v{32+d}, v{q_}")
        a("s_nop 2")
        a("v_add_f32 v44, v49, v51")
        a("v_add_f32 v45, v50, v52")
        a("s_nop 1")
        for dpp in ("quad_perm:[1,0,3,2]", "quad_perm:[2,3,0,1]", "row_half_mirror", "row_mirror"):
            a(f"v_add_f32_dpp v44, v44, v44 {dpp} row_mask:0xf bank_mask:0xf")
            a(f"v_add_f32_dpp v45, v45, v45 {dpp} row_mask:0xf bank_mask:0xf")
            a("s_nop 0")
        a("v_mov_b32 v49, v44"); a("v_mov_b32 v50, v45")
        a("s_nop 1")
        a("v_permlane16_swap_b32 v44, v49"); a("v_permlane16_swap_b32 v45, v50")
        a("s_nop 1")
        a("v_add_f32 v44, v44, v49"); a("v_add_f32 v45, v45, v50")
        a(f"v_mul_f32 v44, {hex(f2u(1.0/D))}, v44")
        a(f"v_mul_f32 v45, {hex(f2u(1.0/D))}, v45")
        a("v_fma_f32 v45, -v44, v44, v45")
        a(f"v_add_f32 v45, {hex(f2u(1e-5))}, v45")
        a("v_rsq_f32 v45, v45")
        a("v_mov_b32 v112, v44")
        a("v_mov_b32 v113, v45")
        a("v_lshlrev_b32 v116, 4, v5              ; row*16")
        a("v_mov_b32 v117, 0")
        dbg_srd(a)
    def ph0_after_b0(self, a):
        a(f"buffer_load_dwordx2 v[114:115], v117, s[80:83], 0 offen{SC1}")
    def ph0_publish(self, a):
        loop = a.new("p0n"); done = a.new("p0d"); chk = a.new("p0h")
        a(f"s_mov_b32 s{S_T0}, 0x40000")
        a(f"s_branch {chk}")
        a.label(loop)
        a("s_sleep 4")
        a(f"buffer_load_dwordx2 v[114:115], v117, s[80:83], 0 offen{SC1}")
        a.label(chk)
        a("s_waitcnt vmcnt(0)")
        a(f"v_readfirstlane_b32 s{S_NONCE}, v114")
        a(f"v_readfirstlane_b32 s{S_NONCE+1}, v115")
        a("s_nop 3")
        a(f"s_cmp_lg_u32 s{S_NONCE}, 0")
        a(f"s_cbranch_scc1 {done}")
        a(f"s_sub_u32 s{S_T0}, s{S_T0}, 1")
        a(f"s_cmp_lg_u32 s{S_T0}, 0")
        a(f"s_cbranch_scc1 {loop}")
        a.label(done)
        set_exec(a, 1 | (1 << 32))
        a(f"buffer_store_dwordx4 v[112:115], v116, s[{SRD_ST}:{SRD_ST+3}], 0 offen{SC1}")
        a("s_mov_b64 exec, -1")
    def ph0_issue(self, a):
        srd(a, SRD_ST, ptr(KA_WS), WS_ST1, S_TOK*16)
        a(f"s_mov_b32 s{SRD_AUX}, s{ptr(KA_DBG)}")
        a(f"s_and_b32 s{SRD_AUX+1}, s{ptr(KA_DBG)+1}, 0xffff")
        a(f"s_mov_b32 s{SRD_AUX+2}, 0x100")
        a(f"s_mov_b32 s{SRD_AUX+3}, 0x20000")
        a(f"s_lshl_b32 s{S_T0}, s{S_W}, 6")
        a(f"v_add_u32 v62, s{S_T0}, v2")
        a(f"v_add_u32 v63, s{S_R0}, v62")
        a("v_cmp_gt_u32 vcc, 78, v62")
        a("v_cmp_le_i32 s[4:5], 0, v63")
        a("v_lshlrev_b32 v63, 4, v63")
        a("v_mov_b32 v64, 0x80000000")
        a("s_and_b64 s[98:99], vcc, s[4:5]")
        a("v_mov_b32 v65, 0")
        a("v_cndmask_b32 v63, v64, v63, s[98:99]")
        a(f"buffer_load_dwordx2 v[60:61], v65, s[{SRD_AUX}:{SRD_AUX+3}], 0 offen{SC1}")
        a(f"buffer_load_dwordx4 v[56:59], v63, s[{SRD_ST}:{SRD_ST+3}], 0 offen{SC1}")
        return 2
    def ph0_check(self, a):
        loop = a.new("p0c"); ok = a.new("p0k")
        a(f"s_mov_b32 s{S_T2}, 0x10000")
        a.label(loop)
        a("v_cmp_ne_u64 vcc, v[58:59], v[60:61]")
        a("s_nop 1")
        a("s_and_b64 vcc, vcc, s[98:99]")
        a(f"s_cbranch_vccz {ok}")
        a(f"buffer_load_dwordx2 v[60:61], v65, s[{SRD_AUX}:{SRD_AUX+3}], 0 offen{SC1}")
        a(f"buffer_load_dwordx4 v[56:59], v63, s[{SRD_ST}:{SRD_ST+3}], 0 offen{SC1}")
        a("s_waitcnt vmcnt(0)")
        a(f"s_sub_u32 s{S_T2}, s{S_T2}, 1")
        a(f"s_cmp_lg_u32 s{S_T2}, 0")
        a(f"s_cbranch_scc1 {loop}")
        a.label(ok)
        a("v_lshlrev_b32 v62, 3, v62")
        a(f"v_add_u32 v62, {self.LDS_STP}, v62")
        a(f"s_cmp_lt_u32 s{S_W}, 2")
        a("s_cselect_b32 exec_lo, -1, 0")
        a(f"s_cmp_eq_u32 s{S_W}, 0")
        a("s_cselect_b32 exec_hi, -1, 0")
        a(f"s_cmp_eq_u32 s{S_W}, 1")
        a("s_cselect_b32 exec_lo, 0xffff, exec_lo")
        sk = a.new("p0w")
        a(f"s_cbranch_execz {sk}")
        a("ds_write_b64 v62, v[56:57]")
        a.label(sk)
        a("s_mov_b64 exec, -1")
        a("s_waitcnt lgkmcnt(0)")
    def post_wait(self, a, s):
        if PH0 and s == 9: self.ph0_check(a)
    def store_addr_setup(self, a, regs=(148, 149, 156, 157), tmp=3):
        lm, lt, gm, gt = regs
        t0, t1, t2 = tmp, tmp + 1, tmp + 2
        a(f"v_lshrrev_b32 v{t0}, 3, v2             ; r8")
        a(f"v_and_b32 v{t1}, 7, v2                 ; p")
        a(f"s_lshl_b32 s{S_T0}, s{S_WAVE}, 3")
        a(f"v_add_u32 v{t2}, s{S_T0}, v{t0}")
        a(f"v_mul_u32_u24 v{lm}, {self.OROW}, v{t2}")
        a(f"v_lshl_add_u32 v{lm}, v{t1}, 4, v{lm}")
        a(f"v_add_u32 v{lm}, {self.OT}, v{lm}")
        a(f"s_add_u32 s{S_T0}, s{S_R0}, 14          ; T0")
        a(f"v_add_u32 v{gm}, s{S_T0}, v{t2}")
        a(f"v_lshlrev_b32 v{gm}, 10, v{gm}")
        a(f"v_lshl_add_u32 v{gm}, v{t1}, 4, v{gm}")
        a(f"s_lshl_b32 s{S_T1}, s{S_CT}, 7          ; hg*128")
        a(f"v_add_u32 v{gm}, s{S_T1}, v{gm}")
        a(f"v_lshrrev_b32 v{t0}, 1, v{t1}")
        a(f"v_lshl_add_u32 v{t0}, v{t2}, 2, v{t0}   ; token")
        a(f"v_mul_u32_u24 v{lt}, {self.OROW}, v{t0}")
        a(f"v_and_b32 v{t0}, 1, v{t1}")
        a(f"v_lshl_add_u32 v{lt}, v{t0}, 4, v{lt}")
        a(f"v_add_u32 v{lt}, {self.OT + 128}, v{lt}")
        a(f"s_lshr_b32 s{S_T0}, s{S_T0}, 2          ; T0/4")
        a(f"v_add_u32 v{gt}, s{S_T0}, v{t2}")
        a(f"v_lshlrev_b32 v{gt}, 10, v{gt}")
        a(f"v_lshl_add_u32 v{gt}, v{t1}, 4, v{gt}")
        a(f"s_add_u32 s{S_T1}, s{S_T1}, 0x200000")
        a(f"v_add_u32 v{gt}, s{S_T1}, v{gt}")
    def o_stores(self, a):
        a(f"ds_read_b128 v[20:23], v148")
        sk = a.new("ost")
        a(f"s_cmp_ge_u32 s{S_WAVE}, 2")
        a(f"s_cbranch_scc1 {sk}")
        a(f"ds_read_b128 v[24:27], v149")
        a("s_waitcnt lgkmcnt(0)")
        a(f"buffer_store_dwordx4 v[24:27], v157, s[{SRD_OUT}:{SRD_OUT+3}], 0 offen{OSC}")
        a.label(sk)
        a("s_waitcnt lgkmcnt(0)")
        a(f"buffer_store_dwordx4 v[20:23], v156, s[{SRD_OUT}:{SRD_OUT+3}], 0 offen{OSC}")
    def loader_fused_tail(self, a):
        l2_setup(a, "p3", 243, 64, KA_WG, D*F*2, 3456, D)
        if not PH0: a("s_barrier      ; E1")
        l2_issue(a, KA_WG, 3456, D)
        a("s_barrier")
        a.label("L_att_start")
        if 'attprof' in EXP: stamp(a, 1)
        Q = 16; KR = 32; VR = 62; SC = 92; BIAS = 120; PB = 104
        QROW = self.QROW
        for dg in range(5):
            a(f"ds_read_b64 v[{Q+2*dg}:{Q+2*dg+1}], v144 offset:{8*dg}")
        for kb in range(3):
            for dg in range(5):
                r = KR + 2*(5*kb + dg)
                if kb < 2: a(f"ds_read_b64 v[{r}:{r+1}], v145 offset:{8*QROW*kb + 8*dg}")
                else: a(f"ds_read_b64 v[{r}:{r+1}], v146 offset:{8*dg}")
        scale = (D // 32) ** -0.5
        c1 = scale * 1.4426950408889634
        a(f"s_mov_b32 s{S_T2}, {hex(f2u(c1))}")
        a("s_waitcnt lgkmcnt(0)")
        for kb in range(3):
            for dg in range(5):
                r = VR + 2*(5*kb + dg)
                if kb < 2: a(f"ds_read_b64_tr_b16 v[{r}:{r+1}], v147 offset:{8*QROW*kb + 8*dg}")
                else: a(f"ds_read_b64_tr_b16 v[{r}:{r+1}], v119 offset:{8*dg}")
        for dg in range(5):
            for kb in range(3):
                r = KR + 2*(5*kb + dg); sc = SC + 4*kb
                c = "0" if dg == 0 else f"v[{sc}:{sc+3}]"
                a(f"v_mfma_f32_4x4x4_16b_bf16 v[{sc}:{sc+3}], v[{r}:{r+1}], v[{Q+2*dg}:{Q+2*dg+1}], {c}")
        a("s_nop 4")
        for m in range(12):
            a(f"v_fma_f32 v{SC+m}, v{SC+m}, s{S_T2}, v{BIAS+m}")
        a(f"v_max3_f32 v14, v{SC}, v{SC+1}, v{SC+2}")
        a(f"v_max3_f32 v15, v{SC+3}, v{SC+4}, v{SC+5}")
        a(f"v_max3_f32 v14, v14, v{SC+6}, v{SC+7}")
        a(f"v_max3_f32 v15, v15, v{SC+8}, v{SC+9}")
        a(f"v_max3_f32 v14, v14, v{SC+10}, v{SC+11}")
        a("v_max_f32 v14, v14, v15")
        for m in range(12):
            a(f"v_sub_f32 v{SC+m}, v{SC+m}, v14")
        for m in range(12):
            a(f"v_exp_f32 v{SC+m}, v{SC+m}")
        a(f"v_add_f32 v14, v{SC}, v{SC+1}")
        a(f"v_add_f32 v15, v{SC+2}, v{SC+3}")
        for m in range(4, 12, 2):
            a(f"v_add_f32 v14, v14, v{SC+m}")
            a(f"v_add_f32 v15, v15, v{SC+m+1}")
        a("v_add_f32 v14, v14, v15")
        a("v_rcp_f32 v14, v14")
        a("s_nop 0")
        for m in range(12):
            a(f"v_mul_f32 v{SC+m}, v{SC+m}, v14")
        for m in range(0, 12, 2):
            a(f"v_cvt_pk_bf16_f32 v{PB+m//2}, v{SC+m}, v{SC+m+1}")
        a("s_waitcnt lgkmcnt(0)")
        a("s_nop 0")
        OA = 32
        for kb in range(3):
            for dg in range(5):
                r = VR + 2*(5*kb + dg); o = OA + 4*dg
                c = "0" if kb == 0 else f"v[{o}:{o+3}]"
                a(f"v_mfma_f32_4x4x4_16b_bf16 v[{o}:{o+3}], v[{r}:{r+1}], v[{PB+2*kb}:{PB+2*kb+1}], {c}")
        a("s_nop 5")
        for dg in range(5):
            o = OA + 4*dg
            a(f"v_cvt_pk_bf16_f32 v{Q+2*dg}, v{o}, v{o+1}")
            a(f"v_cvt_pk_bf16_f32 v{Q+2*dg+1}, v{o+2}, v{o+3}")
            a(f"ds_write_b64 v118, v[{Q+2*dg}:{Q+2*dg+1}] offset:{8*dg}")
        a("s_waitcnt lgkmcnt(0)")
        if 'attprof' in EXP: stamp(a, 2)
        dry_exit(a, "L_att_ret")
        a("s_barrier")
        self.o_stores(a)
        self.set_fidx(a)
    def consumer_setup(self, a):
        cons_lane(a)
        x_addr_const(a, self.vXc, None)
        a("v_lshrrev_b32 v5, 2, v3        ; r")
        a("v_lshl_add_u32 v5, v4, 3, v5   ; 8g + r")
        a("v_mul_u32_u24 v5, 160, v5")
        a("v_and_b32 v6, 3, v3")
        a("v_lshl_add_u32 v5, v6, 3, v5")
        for j in range(4):
            a(f"s_lshl_b32 s{S_T0}, s{S_WAVE}, 2")
            a(f"s_add_u32 s{S_T0}, s{S_T0}, {j}")
            a(f"s_min_u32 s{S_T0}, s{S_T0}, 14")
            divc(a, S_T1, S_T0, 5)
            a(f"s_mul_i32 s{S_T2}, s{S_T1}, 5")
            a(f"s_sub_u32 s{S_T2}, s{S_T0}, s{S_T2}       ; f%5")
            a(f"s_lshl_b32 s{S_T2}, s{S_T2}, 5")
            a(f"s_mul_i32 s{S_T3}, s{S_T1}, 10240")
            a(f"s_add_u32 s{S_T3}, s{S_T3}, s{S_T2}")
            a(f"s_add_u32 s{S_T3}, s{S_T3}, {self.ABYTES}")
            a(f"v_add_u32 v{self.vWc[j]}, s{S_T3}, v5")
            a(f"s_mul_i32 s{S_T3}, s{S_T1}, 160")
            a(f"s_add_u32 s{S_T3}, s{S_T3}, s{S_T2}")
            a(f"s_add_u32 s{S_T3}, s{S_T3}, {self.QT}")
            a(f"v_mul_u32_u24 v6, {self.QROW}, v3")
            a("v_lshl_add_u32 v6, v4, 3, v6")
            a(f"v_add_u32 v{20+j}, s{S_T3}, v6")
        if not PH0:
            for r in range(4): a(f"v_mov_b32 v{self.VONES+r}, {hex(ONES)}")
            for r in range(40): a(f"v_mov_b32 v{self.GRAM+r}, 0")
        a("v_lshlrev_b32 v25, 3, v3")
        a(f"v_add_u32 v25, {self.LDS_STP}, v25")
        a(f"s_mul_i32 s{S_T0}, s{S_WAVE}, 640")
        a(f"v_add_u32 v24, s{S_T0}, v25")
        a(f"s_mov_b32 s{S_N1}, 0")
        self.store_addr_setup_c(a)
        NW = 4
        self.wlist = [(self.vW[j], 0) for j in range(4)]
        self.wstep = (5120, 640)
    def store_addr_setup_c(self, a):
        self.store_addr_setup(a, regs=(26, 27, 28, 29), tmp=5)
    def addr_update(self):
        r = [f"v_add_u32 v{self.vXa}, s{S_SLOT}, v{self.vXc}"]
        r += [f"v_add_u32 v{self.vW[j]}, s{S_SLOT}, v{self.vWc[j]}" for j in range(4)]
        r += [f"v_xor_b32 v{self.vXb}, 64, v{self.vXa}"]
        return r
    def stats_mfmas(self, xregs):
        m = []
        for x in range(5):
            xa = xregs[x]
            g = self.GRAM + 4*x; sm = self.SUMA + 4*x
            m.append(f"v_mfma_f32_16x16x32_bf16 v[{g}:{g+3}], {xa}, {xa}, v[{g}:{g+3}]")
            m.append(f"v_mfma_f32_16x16x32_bf16 v[{sm}:{sm+3}], v[{self.VONES}:{self.VONES+3}], {xa}, v[{sm}:{sm+3}]")
        return m
    def epilogue_stats(self, a):
        for i_, m_ in enumerate((0x22222222, 0x44444444, 0x88888888)):
            a(f"s_mov_b32 s{80+2*i_}, {hex(m_)}"); a(f"s_mov_b32 s{81+2*i_}, {hex(m_)}")
        for x in range(5):
            g = self.GRAM + 4*x
            a(f"v_cndmask_b32 v{g+1}, v{g}, v{g+1}, s[80:81]")
            a(f"v_cndmask_b32 v{g+1}, v{g+1}, v{g+2}, s[82:83]")
            a(f"v_cndmask_b32 v{g+1}, v{g+1}, v{g+3}, s[84:85]")
            a(f"v_mov_b32 v{g}, v{self.SUMA+4*x}")
        mask_exec(a, 0xF | (0xF << 20) | (0xF << 40) | (0xF << 60))
        for x in range(5):
            g = self.GRAM + 4*x
            a(f"ds_write_b64 v24, v[{g}:{g+1}] offset:{128*x}")
        unmask_exec(a)
        CS = 132
        for j in range(4):
            acc = self.ACC + 4*(4*4 + j)
            for r in range(4):
                a(f"v_mov_b32_dpp v{CS+4*j+r}, v{acc+r} row_newbcast:15 row_mask:0xf bank_mask:0xf")
        a("s_waitcnt lgkmcnt(0)")
        dbar(a, "E1")
        if 'attprof' in EXP: stamp(a, 1)
        ST = 8
        TM = 112
        for x in range(5):
            for wv in range(4):
                if x < 5:
                    pass
        for x in range(5):
            base = TM + 4*x if False else None
        regs = {0: 112, 1: 120, 2: 112, 3: 120, 4: 112}
        def rd(x):
            for wv in range(4):
                r = regs[x] + 2*wv
                a(f"ds_read_b64 v[{r}:{r+1}], v25 offset:{640*wv + 128*x}")
        def fin(x):
            r = regs[x]; st = ST + 2*x
            a(f"v_pk_add_f32 v[{r}:{r+1}], v[{r}:{r+1}], v[{r+2}:{r+3}]")
            a(f"v_pk_add_f32 v[{r+4}:{r+5}], v[{r+4}:{r+5}], v[{r+6}:{r+7}]")
            a(f"v_pk_add_f32 v[{st}:{st+1}], v[{r}:{r+1}], v[{r+4}:{r+5}]")
            a(f"v_mul_f32 v{st}, {hex(f2u(1.0/D))}, v{st}")
            a(f"v_mul_f32 v{st+1}, {hex(f2u(1.0/D))}, v{st+1}")
            a(f"v_fma_f32 v{st+1}, -v{st}, v{st}, v{st+1}")
            a(f"v_add_f32 v{st+1}, {hex(f2u(1e-5))}, v{st+1}")
            a(f"v_rsq_f32 v{st+1}, v{st+1}")
        rd(0); rd(1)
        a("s_waitcnt lgkmcnt(4)"); fin(0); rd(2)
        a("s_waitcnt lgkmcnt(4)"); fin(1); rd(3)
        a("s_waitcnt lgkmcnt(4)"); fin(2); rd(4)
        a("s_waitcnt lgkmcnt(4)"); fin(3)
        a("s_waitcnt lgkmcnt(0)"); fin(4)
        a("s_nop 0")
        return CS, ST
    def epilogue(self, a):
        a.label("L_epi1_start")
        if PH0:
            CS = 132; ST = 8
            for x in range(5):
                a(f"ds_read_b64 v[{ST+2*x}:{ST+2*x+1}], v25 offset:{128*x}")
            for j in range(4):
                acc = self.ACC + 4*(4*4 + j)
                for r in range(4):
                    a(f"v_mov_b32_dpp v{CS+4*j+r}, v{acc+r} row_newbcast:15 row_mask:0xf bank_mask:0xf")
            a("s_waitcnt lgkmcnt(0)")
        else:
            CS, ST = self.epilogue_stats(a)
        for x in range(5):
            st = ST + 2*x
            for j in range(4):
                acc = self.ACC + 4*(4*x + j)
                for hh in (0, 2):
                    a(f"v_pk_fma_f32 v[{acc+hh}:{acc+hh+1}], v[{CS+4*j+hh}:{CS+4*j+hh+1}], v[{st}:{st+1}], v[{acc+hh}:{acc+hh+1}] op_sel_hi:[1,0,1] neg_lo:[0,1,0] neg_hi:[0,1,0]")
                for hh in (0, 2):
                    a(f"v_pk_mul_f32 v[{acc+hh}:{acc+hh+1}], v[{acc+hh}:{acc+hh+1}], v[{st}:{st+1}] op_sel:[0,1] op_sel_hi:[1,1]")
                a(f"v_cvt_pk_bf16_f32 v{acc}, v{acc}, v{acc+1}")
                a(f"v_cvt_pk_bf16_f32 v{acc+1}, v{acc+2}, v{acc+3}")
                a(f"ds_write_b64 v{20+j}, v[{acc}:{acc+1}] offset:{16*x*self.QROW}")
        a("s_waitcnt lgkmcnt(0)")
        dry_exit(a, "L_epi1_ret")
        a("s_barrier")
        a("s_barrier")
        a(f"ds_read_b128 v[32:35], v26")
        sk = a.new("ost")
        a(f"s_cmp_ge_u32 s{S_WAVE}, 2")
        a(f"s_cbranch_scc1 {sk}")
        a(f"ds_read_b128 v[36:39], v27")
        a("s_waitcnt lgkmcnt(0)")
        a(f"buffer_store_dwordx4 v[36:39], v29, s[{SRD_OUT}:{SRD_OUT+3}], 0 offen{OSC}")
        a.label(sk)
        a("s_waitcnt lgkmcnt(0)")
        a(f"buffer_store_dwordx4 v[32:35], v28, s[{SRD_OUT}:{SRD_OUT+3}], 0 offen{OSC}")
    stream_epi = True

class P24(Phase):
    kind = "rm"; NT = 250
    MV = 82; NC = 64; ldb = 1280; ldo = 1280
    ABYTES = 12288; STAGE = 20480; NS = 7
    NXMAX = 3; RPM = 2
    modeS = True; NACC = 24
    def fragW(self, buf, kk, wi): return ('a', 40*buf + 8*kk + 4*wi)
    def fragX(self, buf, kk, xi): return ('a', 40*buf + 16 + 12*kk + 4*xi)
    scA = SC1
    panel_coloff = [0]; panel_srd = [SRD_B0]
    TBASE = 0
    Ains = [None, None, 'skip']
    Bins = [(0, 0), (0, 4)]
    @property
    def prefetchB(self): return PB2 if self.which == 2 else PB4
    @property
    def dual(self): return (DUAL2 if self.which == 2 else DUAL4) if DUAL else None
    def __init__(self, which):
        self.which = which
        if which == 2:
            self.key = 'p2'; self.lda = 1024 if FUSE else 1280; self.S = 10; self.rot = P2ROT
            self.oprime = FUSE
            self.kind = P2MAP
        else:
            self.key = 'p4'; self.lda = 3456; self.S = 27; self.rot = P4ROT; self.extraB = 1
            self.kind = P4MAP
        assert (self.S - 1) % self.NS != 0
        self.vXc, self.vWc = 8, 9
        self.vXa, self.vXb = 10, 11
        self.vW = [12, 13]
        self.xlist = [(self.vXa, self.vXb, 2048*x) for x in range(3)]
        self.wlist = [(self.vW[f], 0 if self.dual else self.ABYTES) for f in range(2)]
        self.ACC = 32
        self.mf = [(x, f, self.ACC + 4*(2*x + f)) for x in range(3) for f in range(2)]
    def l2_prep(self, a):
        if self.which == 2: l2_setup(a, "p3", 243, 64, KA_WU, D*F*2, 3456, D)
    @property
    def gate(self): return GATE4 if (GATE and self.which == 4) else None
    def mid_prefetch(self, a, s):
        if self.which == 2 and s == UP_S: return l2_issue(a, KA_WU, 3456, D)
    def mask_setup(self, a):
        a(f"s_cmp_lt_u32 s{S_W}, 2")
        a(f"s_cselect_b32 s{S_MASK}, -1, 0xffff")
        a(f"s_cselect_b32 s{S_MASK+1}, -1, 0")
        a(f"s_cmp_eq_u32 s{S_W}, 3")
        a(f"s_cselect_b32 s{S_MASK}, 0, s{S_MASK}")
    def build_srds(self, a, role):
        if self.which == 2:
            if role == 'l':
                srd(a, SRD_A, ptr(KA_WS), WS_O, 0x280000 if FUSE else S_TOK*D*2)
                srd(a, SRD_B0, ptr(KA_WO), 0, D*D*2)
            srd(a, SRD_OUT, ptr(KA_WS), WS_H, S_TOK*D*2)
            srd(a, SRD_AUX, ptr(KA_X), 0, S_TOK*D*2)
            srd(a, SRD_ST, ptr(KA_WS), WS_ST, 250*1536)
        else:
            if role == 'l':
                srd(a, SRD_A, ptr(KA_WS), WS_HH, S_TOK*F*2)
                srd(a, SRD_B0, ptr(KA_WD), 0, F*D*2)
            srd(a, SRD_OUT, ptr(KA_OUT), 0, S_TOK*D*2)
            srd(a, SRD_AUX, ptr(KA_WS), WS_H, S_TOK*D*2)
    def dep_range(self, a):
        if self.which == 2:
            sh = 6 if FUSE else 4
            a(f"s_lshr_b32 s{S_T0}, s{S_R0}, {sh}")
            a(f"s_sub_u32 s{S_T1}, s{S_REND}, 1")
            a(f"s_lshr_b32 s{S_T1}, s{S_T1}, {sh}")
        else:
            sdiv(a, S_T0, S_R0, 228, 2100)
            a(f"s_sub_u32 s{S_T1}, s{S_REND}, 1")
            sdiv(a, S_T1, S_T1, 228, 2100)
    def deps_first(self, a):
        first_ks(a, self)
        if COMB and not self.gate:
            self.dep_range(a)
            def member(a):
                a(f"v_cmp_eq_u32 vcc, s{S_K}, v141")
                a(f"v_cmp_eq_u32 s[82:83], s{S_KB}, v141")
                a("s_nop 1")
                a("s_or_b64 vcc, vcc, s[82:83]")
            W = 8 if self.which == 2 else 27
            poll_comb(a, S_T0, S_T1, W, 0x8000 if self.which == 2 else 0x18000, member)
            return
        if self.which == 2 and FUSE:
            for src, dst in ((S_K, S_T2), (S_KB, S_T3)):
                a(f"s_lshl_b32 s{dst}, 1, s{src}")
                a(f"s_sub_u32 s{S_T4}, s{src}, 8")
                a(f"s_lshl_b32 s{S_T4}, s{S_T4}, 2")
                a(f"s_lshl_b32 s{S_T4}, 15, s{S_T4}")
                a(f"s_cmp_ge_u32 s{src}, 8")
                a(f"s_cselect_b32 s{dst}, s{S_T4}, s{dst}")
            a(f"s_or_b32 s{S_T2}, s{S_T2}, s{S_T3}")
            self.dep_range(a)
            skip = a.new("pollskip")
            a(f"s_cmp_eq_u32 s{S_WAVE}, 0")
            a(f"s_cbranch_scc0 {skip}")
            a("v_and_b32 v141, 7, v2                 ; group j")
            a(f"v_lshrrev_b32 v142, v141, s{S_T2}") if False else None
            a(f"v_mov_b32 v142, s{S_T2}")
            a("v_lshrrev_b32 v142, v141, v142")
            a("v_and_b32 v142, 1, v142")
            a("v_lshrrev_b32 v140, 3, v2")
            a(f"v_add_u32 v140, s{S_T0}, v140")
            a(f"v_cmp_ge_u32 vcc, s{S_T1}, v140")
            a("v_cmp_eq_u32 s[82:83], 1, v142")
            a("v_lshl_add_u32 v140, v140, 3, v141")
            a("v_lshlrev_b32 v140, 7, v140")
            a("v_add_u32 v140, 0x8000, v140")
            a("s_and_b64 vcc, vcc, s[82:83]")
            poll_core(a)
            a.label(skip)
            return
        if self.which == 2:
            for r in (S_K, S_KB):
                a(f"s_cmp_ge_u32 s{r}, 5")
                a(f"s_cselect_b32 s{r}, 1, 0")
        self.dep_range(a)
        if self.gate: poll_first_g(a, S_T0, S_T1, 27, S_K, self.S, self.gate[0], 0x18000)
        else: poll_first(a, S_T0, S_T1, 2 if self.which == 2 else 27, S_K, S_KB, 0x8000 if self.which == 2 else 0x18000)
    def deps(self, a, wave=0):
        W = (8 if FUSE else 2) if self.which == 2 else 27
        self.dep_range(a)
        a(f"s_mul_i32 s{S_T0}, s{S_T0}, {W}")
        a(f"s_add_u32 s{S_T1}, s{S_T1}, 1")
        a(f"s_mul_i32 s{S_T1}, s{S_T1}, {W}")
        poll(a, S_T0, S_T1, 0x8000 if self.which == 2 else 0x18000, wave)
    def set_fidx(self, a):
        if self.which == 2:
            a(f"s_mul_i32 s{S_FIDX}, s{S_RT}, 10")
            a(f"s_add_u32 s{S_FIDX}, s{S_FIDX}, s{S_CT}")
            a(f"s_lshl_b32 s{S_FIDX}, s{S_FIDX}, 7")
            a(f"s_add_u32 s{S_FIDX}, s{S_FIDX}, 0x10000")
        else:
            a(f"s_mov_b32 s{S_FIDX}, -1")
    def loader_post_first(self, a):
        if self.dual:
            class Q: pass
            q = Q(); q.NS = self.dual[0]; q.STAGE = 12288
            pad_init(a, q, 82, 14, None)
        else:
            pad_init(a, self, 82, 14, None)
        return 0
    def consumer_setup(self, a):
        cons_lane(a)
        a(f"s_lshr_b32 s{S_I}, s{S_WAVE}, 1")
        a(f"s_and_b32 s{S_J}, s{S_WAVE}, 1")
        a(f"s_mul_i32 s{S_T1}, s{S_I}, 48")
        x_addr_const(a, self.vXc, S_T1)
        w_addr_const(a, self.vWc)
        a(f"s_lshl_b32 s{S_T0}, s{S_J}, 6      ; f0 = 2j -> xor 64j")
        a(f"v_xor_b32 v{self.vWc}, s{S_T0}, v{self.vWc}")
        t_write_addr(a, 17, self.TBASE)
        a(f"s_mul_i32 s{S_T0}, s{S_I}, {48*128}")
        a(f"v_add_u32 v17, s{S_T0}, v17")
        a(f"s_lshl_b32 s{S_T0}, s{S_J}, 6")
        a(f"v_xor_b32 v17, s{S_T0}, v17        ; f0 = 2j")
        a(f"v_xor_b32 v18, 32, v17")
    def addr_update(self):
        if not self.dual: return P1.addr_update(self)
        return [f"v_add_u32 v{self.vXa}, s{S_SLOT}, v{self.vXc}",
                f"v_add_u32 v{self.vW[0]}, s{S_SLOTB}, v{self.vWc}",
                f"v_xor_b32 v{self.vXb}, 64, v{self.vXa}",
                f"v_xor_b32 v{self.vW[1]}, 32, v{self.vW[0]}"]
    def epilogue(self, a):
        for x in range(3):
            for f in range(2):
                acc = self.ACC + 4*(2*x + f)
                a(f"v_cvt_pk_bf16_f32 v{acc}, v{acc}, v{acc+1}")
                a(f"v_cvt_pk_bf16_f32 v{acc+1}, v{acc+2}, v{acc+3}")
                a(f"ds_write_b64 v{17+f}, v[{acc}:{acc+1}] offset:{2048*x}")
    RES = 100
    early_pre = True
    def early_setup(self, a):
        a("v_lshrrev_b32 v112, 3, v2")
        a("v_and_b32 v113, 7, v2")
        a("v_xor_b32 v108, v113, v112")
        a("v_lshlrev_b32 v108, 4, v108")
        a("v_lshl_add_u32 v108, v112, 7, v108")
        a(f"s_lshl_b32 s{S_T0}, s{S_WAVE}, 10")
        a(f"s_add_u32 s{S_T0}, s{S_T0}, {self.TBASE}")
        a(f"v_add_u32 v108, s{S_T0}, v108")
        a(f"s_lshl_b32 s{S_T0}, s{S_WAVE}, 3")
        a(f"s_add_u32 s{S_T0}, s{S_T0}, s{S_R0}")
        a(f"v_add_u32 v111, s{S_T0}, v112")
        a("v_mul_u32_u24 v109, 1280, v111")
        a(f"s_lshl_b32 s{S_T0}, s{S_C0}, 1")
        a("v_lshl_add_u32 v109, v113, 4, v109")
        a(f"v_add_u32 v109, s{S_T0}, v109")
        a(f"v_add_u32 v110, {64*1280}, v109")
        a("v_mov_b32 v114, 0x80000000")
        a(f"v_cmp_gt_u32 vcc, s{S_REND}, v111")
        a(f"v_add_u32 v115, 64, v111")
        a("s_nop 0")
        a("v_cndmask_b32 v109, v114, v109, vcc")
        a(f"v_cmp_gt_u32 vcc, s{S_REND}, v115")
        a("s_nop 1")
        a("v_cndmask_b32 v110, v114, v110, vcc")
        sc = SC1 if self.which == 4 else ""
        a(f"buffer_load_dwordx4 v[{self.RES}:{self.RES+3}], v109, s[{SRD_AUX}:{SRD_AUX+3}], 0 offen{sc}")
        a(f"buffer_load_dwordx4 v[{self.RES+4}:{self.RES+7}], v110, s[{SRD_AUX}:{SRD_AUX+3}], 0 offen{sc}")
        return 2
    def store_fast(self, a):
        sdone = a.new("sdone")
        sc = SC1 if self.which == 2 else OUTSC
        for k in range(2):
            a(f"ds_read_b128 v[{16+4*k}:{19+4*k}], v108 offset:{k*8192}")
        if self.which == 2:
            a(f"v_mov_b32 v26, {hex(ONES)}")
        a(f"s_waitcnt vmcnt(0) lgkmcnt(0)")
        for k in range(2):
            if k == 1:
                a(f"s_cmp_ge_u32 s{S_WAVE}, 3")
                a(f"s_cbranch_scc1 {sdone}")
            T = 16 + 4*k; R = self.RES + 4*k
            for d in range(4):
                a(f"v_lshlrev_b32 v28, 16, v{T+d}")
                a(f"v_and_b32 v29, 0xffff0000, v{T+d}")
                a(f"v_lshlrev_b32 v30, 16, v{R+d}")
                a(f"v_and_b32 v31, 0xffff0000, v{R+d}")
                a(f"v_pk_add_f32 v[28:29], v[28:29], v[30:31]")
                a(f"v_cvt_pk_bf16_f32 v{T+d}, v28, v29")
            a(f"buffer_store_dwordx4 v[{T}:{T+3}], v{109+k}, s[{SRD_OUT}:{SRD_OUT+3}], 0 offen{sc}")
            if self.which == 2:
                a("v_mov_b32 v24, 0"); a("v_mov_b32 v25, 0")
                a("s_nop 0")
                for d in range(4):
                    a(f"v_dot2_f32_bf16 v24, v{T+d}, v26, v24")
                    a(f"v_dot2_f32_bf16 v25, v{T+d}, v{T+d}, v25")
                a("s_nop 2")
                for dpp in ("quad_perm:[1,0,3,2]", "quad_perm:[2,3,0,1]", "row_half_mirror"):
                    a(f"v_add_f32_dpp v24, v24, v24 {dpp} row_mask:0xf bank_mask:0xf")
                    a(f"v_add_f32_dpp v25, v25, v25 {dpp} row_mask:0xf bank_mask:0xf")
                    a("s_nop 0")
                a(f"s_mul_i32 s{S_T0}, s{S_RT}, 10")
                a(f"s_add_u32 s{S_T0}, s{S_T0}, s{S_CT}")
                a(f"s_mul_i32 s{S_T0}, s{S_T0}, 1536")
                a(f"s_lshl_b32 s{S_T1}, s{S_WAVE}, 7")
                a(f"s_add_u32 s{S_T0}, s{S_T0}, s{S_T1}")
                a(f"v_lshrrev_b32 v9, 3, v2")
                a(f"v_lshlrev_b32 v9, 4, v9")
                a(f"v_add_u32 v9, s{S_T0}, v9")
                a("v_mov_b32 v12, v24"); a("v_mov_b32 v13, v25"); a("v_mov_b32 v14, 0"); a("v_mov_b32 v15, 0")
                set_exec(a, 0x0101010101010101)
                a(f"buffer_store_dwordx4 v[12:15], v9, s[{SRD_ST}:{SRD_ST+3}], 0 offen offset:{1024*k}{SC1}")
                a("s_mov_b64 exec, -1")
        a.label(sdone)

class P3(Phase):
    key = 'p3'; NT = 243
    @property
    def kind(self): return P3MAP
    MV = 228; NC = 64; lda = 1280; ldb = 3456; ldo = 3456
    ABYTES = 30720; STAGE = 47104; NS = 3; S = 10
    NXMAX = 8
    @property
    def RPM(self): return RPM3
    has_e1 = True
    scA = SC1
    panel_coloff = [0, 0]; panel_srd = [SRD_B0, SRD_B1]
    LDS_ST = 47104*3; LDS_CS = 47104*3 + 1920
    TBASE = 47104
    @property
    def rot(self): return P3ROT
    Ains = [None]*7 + ['skip']
    Bins = [(0, 0), (0, 4), (1, 0), (1, 4)]
    @property
    def prefetchB(self): return PB3
    def __init__(self):
        self.vXc, self.vXsc, self.vWc = 8, 9, 10
        self.vXa, self.vXb, self.vXsa, self.vXsb = 11, 12, 13, 14
        self.vW = [15, 16]
        self.xlist = [(self.vXa, self.vXb, 2048*x) for x in range(7)] + [(self.vXsa, self.vXsb, 0)]
        G, U = self.ABYTES, self.ABYTES + 8192
        self.wlist = [(self.vW[0], G), (self.vW[0], U), (self.vW[1], G), (self.vW[1], U)]
        self.ACC = 32
        self.mf = []
        acc = self.ACC
        self.accmap = {}
        for x in range(8):
            for wi in range(4):
                if x == 7 and wi >= 2: continue
                self.mf.append((x, wi, acc)); self.accmap[(x, wi)] = acc; acc += 4
        assert acc == 32 + 120
    @property
    def unroll(self): return l2_on(KA_WD)
    def l2_prep(self, a): l2_setup(a, "rm", 250, 64, KA_WD, F*D*2, 1280, F)
    def mid_prefetch(self, a, s):
        if s == WDS[0] and WDS[0] == WDS[1]: return l2_issue(a, KA_WD, 1280, F, 0, None)
        if s == WDS[0]: return l2_issue(a, KA_WD, 1280, F, 0, 5)
        if s == WDS[1]: return l2_issue(a, KA_WD, 1280, F, 5, None)
        if s == 9: return self.stats_loads(a)
    def mask_setup(self, a):
        a(f"s_cmp_eq_u32 s{S_W}, 0")
        a(f"s_cselect_b32 s{S_MASK}, -1, 0")
        a(f"s_mov_b32 s{S_MASK+1}, 0")
    def build_srds(self, a, role):
        if role == 'l':
            srd(a, SRD_A, ptr(KA_WS), WS_H, S_TOK*D*2)
            srd(a, SRD_B0, ptr(KA_WG), 0, D*F*2)
            srd(a, SRD_B1, ptr(KA_WU), 0, D*F*2)
            srd(a, SRD_ST, ptr(KA_WS), WS_ST, 250*1536)
        srd(a, SRD_OUT, ptr(KA_WS), WS_HH, S_TOK*F*2)
    def dep_range(self, a):
        sdiv(a, S_T0, S_R0, 82, 2100)
        a(f"s_sub_u32 s{S_T1}, s{S_REND}, 1")
        sdiv(a, S_T1, S_T1, 82, 2100)
    @property
    def gate(self): return (3, 2) if GATE else None
    def deps_first(self, a):
        first_ks(a, self)
        self.dep_range(a)
        if COMB and not self.gate:
            def member(a):
                a(f"v_cmp_eq_u32 vcc, s{S_K}, v141")
                a(f"v_cmp_eq_u32 s[82:83], s{S_KB}, v141")
                a("s_nop 1")
                a("s_or_b64 vcc, vcc, s[82:83]")
            poll_comb(a, S_T0, S_T1, 10, 0x10000, member)
            return
        if self.gate: poll_first_g(a, S_T0, S_T1, 10, S_K, self.S, self.gate[0], 0x10000)
        else: poll_first(a, S_T0, S_T1, 10, S_K, S_KB, 0x10000)
    def deps(self, a, wave=0):
        self.dep_range(a)
        a(f"s_mul_i32 s{S_T0}, s{S_T0}, 10")
        a(f"s_add_u32 s{S_T1}, s{S_T1}, 1")
        a(f"s_mul_i32 s{S_T1}, s{S_T1}, 10")
        poll(a, S_T0, S_T1, 0x10000, wave)
    def set_fidx(self, a):
        a(f"s_mul_i32 s{S_FIDX}, s{S_RT}, 27")
        a(f"s_add_u32 s{S_FIDX}, s{S_FIDX}, s{S_CT}")
        a(f"s_lshl_b32 s{S_FIDX}, s{S_FIDX}, 7")
        a(f"s_add_u32 s{S_FIDX}, s{S_FIDX}, 0x18000")
    def loader_post_first(self, a):
        pad_init(a, self, 228, 11, 239)
        return 0
    def stats_loads(self, a):
        a(f"s_lshl_b32 s{S_T0}, s{S_W}, 6")
        a(f"v_add_u32 v12, s{S_T0}, v2")
        a(f"v_add_u32 v13, s{S_R0}, v12")
        vdiv(a, 15, 13, 82, 2300)
        a("v_mul_u32_u24 v16, 82, v15")
        a("v_sub_u32 v16, v13, v16")
        a("v_mul_u32_u24 v15, 15360, v15")
        a("v_lshl_add_u32 v13, v16, 4, v15")
        a(f"v_add_u32 v15, s{S_R0}, v12")
        a(f"v_cmp_gt_u32 vcc, s{S_REND}, v15")
        a("v_mov_b32 v14, 0x80000000")
        a("s_nop 0")
        a("v_cndmask_b32 v13, v14, v13, vcc")
        for c in range(10):
            a(f"s_mov_b32 s{S_T0}, {c*1536}")
            a(f"buffer_load_dwordx2 v[{64+2*c}:{65+2*c}], v13, s[{SRD_ST}:{SRD_ST+3}], s{S_T0} offen{SC1}")
        return 10
    def loader_final(self, a):
        a("s_waitcnt vmcnt(0)")
        for c in range(1, 10):
            a(f"v_pk_add_f32 v[64:65], v[64:65], v[{64+2*c}:{65+2*c}]")
        a(f"v_mul_f32 v64, {hex(f2u(1.0/D))}, v64")
        a(f"v_mul_f32 v65, {hex(f2u(1.0/D))}, v65")
        a("v_fma_f32 v65, -v64, v64, v65")
        a(f"v_add_f32 v65, {hex(f2u(1e-5))}, v65")
        a("v_rsq_f32 v65, v65")
        a("v_lshlrev_b32 v12, 3, v12")
        a(f"v_add_u32 v12, {self.LDS_ST}, v12")
        a(f"s_cmp_eq_u32 s{S_W}, 3")
        a(f"s_cselect_b32 exec_hi, 0xffff, -1")
        a("ds_write_b64 v12, v[64:65]")
        a("s_mov_b64 exec, -1")
    def consumer_setup(self, a):
        cons_lane(a)
        a(f"s_lshr_b32 s{S_I}, s{S_WAVE}, 1")
        a(f"s_and_b32 s{S_J}, s{S_WAVE}, 1")
        a(f"s_lshl_b32 s{S_T1}, s{S_I}, 7")
        x_addr_const(a, self.vXc, S_T1)
        x_addr_const(a, self.vXsc, None, 112)
        w_addr_const(a, self.vWc)
        a(f"s_lshl_b32 s{S_T0}, s{S_J}, 1")
        a(f"s_add_u32 s{S_T0}, s{S_T0}, s{S_I}")
        a(f"s_lshl_b32 s{S_T0}, s{S_T0}, 5")
        a(f"v_xor_b32 v{self.vWc}, s{S_T0}, v{self.vWc}")
        a(f"s_lshl_b32 s{S_T0}, s{S_J}, 1")
        a(f"s_add_u32 s{S_T2}, s{S_T0}, s{S_I}     ; f0")
        a(f"s_lshl_b32 s{S_T0}, s{S_T2}, 6")
        a(f"v_lshlrev_b32 v24, 4, v4")
        a(f"v_add_u32 v24, s{S_T0}, v24")
        a(f"v_add_u32 v24, {self.LDS_CS}, v24")
        a(f"v_xor_b32 v25, 64, v24")
        t_write_addr(a, 26, self.TBASE)
        a(f"s_lshl_b32 s{S_T0}, s{S_T2}, 5")
        a(f"v_xor_b32 v26, s{S_T0}, v26")
        a(f"v_add_u32 v28, {112*128}, v26")
        a(f"s_lshl_b32 s{S_T0}, s{S_I}, 14")
        a(f"v_add_u32 v26, s{S_T0}, v26")
        a(f"v_xor_b32 v27, 32, v26")
        a(f"s_lshl_b32 s{S_T0}, s{S_I}, 10         ; 128*i*8")
        a(f"v_lshlrev_b32 v29, 3, v3")
        a(f"v_add_u32 v30, {self.LDS_ST + 112*8}, v29")
        a(f"v_add_u32 v29, s{S_T0}, v29")
        a(f"v_add_u32 v29, {self.LDS_ST}, v29")
    def addr_update(self):
        return [f"v_add_u32 v{self.vXa}, s{S_SLOT}, v{self.vXc}",
                f"v_add_u32 v{self.vW[0]}, s{S_SLOT}, v{self.vWc}",
                f"v_add_u32 v{self.vXsa}, s{S_SLOT}, v{self.vXsc}",
                f"v_xor_b32 v{self.vXb}, 64, v{self.vXa}",
                f"v_xor_b32 v{self.vW[1]}, 32, v{self.vW[0]}",
                f"v_xor_b32 v{self.vXsb}, 64, v{self.vXsa}"]
    chunk_epi = True
    def epilogue(self, a):
        nocs = a.new("nocs")
        a.label("L_epi3_start")
        assert self.LDS_CS % 128 == 0
        a(f"s_cmp_eq_u32 s{S_I}, 1")
        a(f"s_cbranch_scc0 {nocs}")
        mask_exec(a, 0x8000800080008000)
        for wi, (areg, poff) in enumerate([(24, 0), (24, 256), (25, 0), (25, 256)]):
            acc = self.accmap[(6, wi)]
            a(f"ds_write_b128 v{areg}, v[{acc}:{acc+3}] offset:{poff}")
        unmask_exec(a)
        a.label(nocs)
        a("s_waitcnt lgkmcnt(0)")
        dbar(a, "E1")
        CSR = [8, 12, 152, 156]
        for wi, (areg, poff) in enumerate([(24, 0), (24, 256), (25, 0), (25, 256)]):
            a(f"ds_read_b128 v[{CSR[wi]}:{CSR[wi]+3}], v{areg} offset:{poff}")
        STR = [16, 18, 20, 22]
        def rdst(x):
            st = STR[x & 3]
            if x < 7: a(f"ds_read_b64 v[{st}:{st+1}], v29 offset:{128*x}")
            else: a(f"ds_read_b64 v[{st}:{st+1}], v30")
        for x in range(4): rdst(x)
        a("s_waitcnt lgkmcnt(0)")
        for x in range(8):
            st = STR[x & 3]
            npair = 1 if x == 7 else 2
            if x == 4:
                a("s_waitcnt lgkmcnt(0)")
                dbar(a, "E2a")
            a(f"v_mul_f32 v{st+1}, v{st+1}, v{st+1}")
            for p in range(npair):
                g = self.accmap[(x, 2*p)]; u = self.accmap[(x, 2*p+1)]
                cg = CSR[2*p]; cu = CSR[2*p+1]
                for hh in (0, 2):
                    a(f"v_pk_fma_f32 v[{g+hh}:{g+hh+1}], v[{cg+hh}:{cg+hh+1}], v[{st}:{st+1}], v[{g+hh}:{g+hh+1}] op_sel_hi:[1,0,1] neg_lo:[0,1,0] neg_hi:[0,1,0]")
                    a(f"v_pk_fma_f32 v[{u+hh}:{u+hh+1}], v[{cu+hh}:{cu+hh+1}], v[{st}:{st+1}], v[{u+hh}:{u+hh+1}] op_sel_hi:[1,0,1] neg_lo:[0,1,0] neg_hi:[0,1,0]")
                for hh in (0, 2):
                    a(f"v_pk_mul_f32 v[{g+hh}:{g+hh+1}], v[{g+hh}:{g+hh+1}], v[{u+hh}:{u+hh+1}]")
                for hh in (0, 2):
                    a(f"v_pk_mul_f32 v[{g+hh}:{g+hh+1}], v[{g+hh}:{g+hh+1}], v[{st}:{st+1}] op_sel:[0,1] op_sel_hi:[1,1]")
                a(f"v_cvt_pk_bf16_f32 v{g}, v{g}, v{g+1}")
                a(f"v_cvt_pk_bf16_f32 v{g+1}, v{g+2}, v{g+3}")
                if x < 7: a(f"ds_write_b64 v{26+p}, v[{g}:{g+1}] offset:{2048*x}")
                else: a(f"ds_write_b64 v28, v[{g}:{g+1}]")
            if x < 4: rdst(x + 4)
        a("s_waitcnt lgkmcnt(0)")
        dry_exit(a, "L_epi3_ret")
        a("s_barrier      ; E2b")
    def loader_store_setup(self, a):
        a("v_lshrrev_b32 v3, 3, v2")
        a("v_and_b32 v4, 7, v2")
        a("v_xor_b32 v5, v4, v3")
        a("v_lshlrev_b32 v5, 4, v5")
        a("v_lshl_add_u32 v50, v3, 7, v5")
        a(f"s_lshl_b32 s{S_T0}, s{S_W}, 10")
        a(f"s_add_u32 s{S_T0}, s{S_T0}, {self.TBASE}")
        a(f"v_add_u32 v50, s{S_T0}, v50")
        a(f"s_lshl_b32 s{S_T0}, s{S_W}, 3")
        a(f"s_add_u32 s{S_T0}, s{S_T0}, s{S_R0}")
        a(f"v_add_u32 v51, s{S_T0}, v3")
        a(f"s_mov_b32 s{S_T1}, 3456")
        a(f"v_mul_lo_u32 v52, v51, s{S_T1}")
        a(f"s_lshl_b32 s{S_T0}, s{S_C0}, 1")
        a("v_lshl_add_u32 v52, v4, 4, v52")
        a(f"v_add_u32 v52, s{S_T0}, v52")
    def loader_stores(self, a, units):
        for n, u0 in enumerate(units):
            a(f"ds_read_b128 v[{56+4*n}:{59+4*n}], v50 offset:{u0*1024}")
        for n, u0 in enumerate(units):
            a(f"v_add_u32 v{53 if n & 1 else 54}, {u0*8*3456}, v52")
            special = (u0 + 3)*8 + 7 >= self.MV
            if special:
                a(f"v_add_u32 v55, {u0*8}, v51")
                a(f"s_add_u32 s{S_T0}, s{S_R0}, {self.MV}")
                a(f"v_cmp_gt_u32 vcc, s{S_T0}, v55")
                a(f"s_and_saveexec_b64 s[80:81], vcc")
            a(f"s_waitcnt lgkmcnt({len(units) - 1 - n})")
            a(f"buffer_store_dwordx4 v[{56+4*n}:{59+4*n}], v{53 if n & 1 else 54}, s[{SRD_OUT}:{SRD_OUT+3}], 0 offen{SC1}")
            if special: a("s_mov_b64 exec, s[80:81]")
    def loader_epilogue(self, a):
        a("s_barrier      ; E2a")
        self.loader_stores(a, [0, 4, 16, 20])
        a("s_barrier      ; E2b")
        self.loader_stores(a, [8, 12, 24, 28])

ROWB = 656
LQ, LK, LV, LO = 16384, 16384 + 16*ROWB, 16384 + 46*ROWB, 0
WPF = True
P1ROT = 'latin2'
ROTOFF = set()
WPF_OFF = set()
def l2_on(kptr): return WPF and kptr not in WPF_OFF
def l2_setup(a, kind, NT, NC, kptr, nbytes, ldb, K):
    if not l2_on(kptr): return
    if kind == "p3": kind = P3MAP
    if kind == "rm" and kptr == KA_WO: kind = P2MAP
    if kind == "rm" and kptr == KA_WD: kind = P4MAP
    nsh = 4 if kind == "p3b" else (6 if kind == "rm5" else 3)
    R3 = ((K + nsh - 1)//nsh + 7)//8*8
    a(f"s_mov_b32 s4, s{S_RT}"); a(f"s_mov_b32 s5, s{S_CT}")
    tile_map(a, NT, kind)
    divc(a, S_T0, S_RT, nsh)
    a(f"s_mul_i32 s{S_T0}, s{S_T0}, {nsh}")
    a(f"s_sub_u32 s{S_T0}, s{S_RT}, s{S_T0}")
    a(f"s_mul_i32 s{S_T0}, s{S_T0}, {R3}")
    a(f"s_lshl_b32 s{S_T1}, s{S_W}, 3")
    a(f"s_add_u32 s{S_T0}, s{S_T0}, s{S_T1}")
    a("v_lshrrev_b32 v150, 3, v2")
    a(f"v_add_u32 v150, s{S_T0}, v150")
    a(f"s_mov_b32 s{S_T1}, {ldb}")
    a(f"v_mul_lo_u32 v150, v150, s{S_T1}")
    a("v_and_b32 v151, 7, v2")
    a("v_lshl_add_u32 v150, v151, 4, v150")
    a(f"s_mul_i32 s{S_T1}, s{S_CT}, {NC*2}")
    a(f"v_add_u32 v150, s{S_T1}, v150")
    a(f"s_cmp_eq_u32 s{S_VALID}, 0")
    a(f"s_cselect_b32 s{S_T1}, 0x80000000, 0")
    a(f"v_or_b32 v150, s{S_T1}, v150")
    srd(a, 80, ptr(kptr), 0, nbytes)
    a(f"s_mov_b32 s{S_RT}, s4"); a(f"s_mov_b32 s{S_CT}, s5")
def l2_issue(a, kptr, ldb, K, i0=0, i1=None):
    if not l2_on(kptr): return 0
    nsh = 4 if (P3MAP == "p3b" and kptr in (KA_WG, KA_WU)) else (6 if ((P2MAP == "rm5" and kptr == KA_WO) or (P4MAP == "rm5" and kptr == KA_WD)) else 3)
    R3 = ((K + nsh - 1)//nsh + 7)//8*8
    n = (R3//8 + 3)//4
    if i1 is None: i1 = n
    for i in range(i0, min(i1, n)):
        a(f"buffer_load_dwordx4 v[152:155], v150, s[80:83], 0 offen")
        if i + 1 < n: a(f"v_add_u32 v150, {32*ldb}, v150")
    return min(i1, n) - i0

def att_phase(a, role):
    a(f"s_lshl_b32 s{S_R0}, s{S_RT}, 4       ; T0")
    srd(a, SRD_A, ptr(KA_WS), WS_QKV, S_TOK*NQKV*2)
    srd(a, SRD_OUT, ptr(KA_WS), WS_O, S_TOK*D*2)
    NI = 49
    nper = (NI + 7)//8
    a(f"s_mov_b32 s{S_T2}, 3840")
    a(f"s_mul_i32 s{S_T3}, s{S_CT}, 640")
    for j in range(nper):
        r = 32 + j
        a(f"s_add_u32 s{S_T0}, s{S_WAVE}, {8*j}")
        a(f"s_lshl_b32 s{S_T0}, s{S_T0}, 6")
        a(f"v_add_u32 v3, s{S_T0}, v2           ; c")
        vdiv(a, 4, 3, 41, 64*56)
        a("v_mul_u32_u24 v5, 41, v4")
        a("v_sub_u32 v5, v3, v5                  ; kap")
        a("v_cmp_le_u32 vcc, 16, v4")
        a("v_mov_b32 v8, 0x80000000")
        a("s_nop 0")
        a("v_cndmask_b32 v6, 0, 1, vcc")
        a("v_cmp_le_u32 vcc, 46, v4")
        a("s_nop 1")
        a("v_cndmask_b32 v7, 0, 1, vcc")
        a("v_add_u32 v6, v6, v7                  ; seg")
        a("v_mul_u32_u24 v7, 30, v6")
        a("v_sub_u32 v7, v4, v7")
        a(f"v_add_u32 v7, s{S_R0}, v7            ; token")
        a(f"v_mul_lo_u32 v7, v7, s{S_T2}")
        a("v_mul_u32_u24 v6, 1280, v6")
        a("v_add_u32 v7, v7, v6")
        a("v_lshl_add_u32 v7, v5, 4, v7")
        a(f"v_add_u32 v7, s{S_T3}, v7")
        a("v_cmp_gt_u32 vcc, 40, v5")
        a("s_nop 1")
        a("v_cndmask_b32 v7, v8, v7, vcc")
        a("v_cmp_gt_u32 vcc, 76, v4")
        a("s_nop 1")
        a(f"v_cndmask_b32 v{r}, v8, v7, vcc")
    if role == 'c':
        a(f"s_lshr_b32 s{S_T0}, s{S_WAVE}, 1")
        a(f"s_lshl_b32 s{S_T0}, s{S_T0}, 3")
        a(f"s_and_b32 s{S_T1}, s{S_WAVE}, 1")
        a(f"s_add_u32 s{S_I}, s{S_T0}, s{S_T1}      ; rb")
        a("v_and_b32 v3, 3, v2             ; i")
        a("v_lshrrev_b32 v4, 2, v2         ; b")
        a("v_lshlrev_b32 v5, 1, v3")
        a(f"v_add_u32 v5, s{S_I}, v5        ; rb + 2i")
        a(f"v_mul_u32_u24 v5, {ROWB}, v5")
        a("v_mul_u32_u24 v6, 40, v4")
        a("v_add_u32 v5, v5, v6")
        a(f"v_add_u32 v144, {LQ}, v5")
        a(f"v_add_u32 v145, {LK}, v5")
        a("v_cmp_eq_u32 vcc, 3, v3")
        a(f"v_mov_b32 v7, {16*ROWB}")
        a(f"v_mov_b32 v8, {14*ROWB}")
        a("v_cndmask_b32 v7, v7, v8, vcc")
        a("v_add_u32 v146, v145, v7")
        a("v_bfe_u32 v9, v2, 2, 2            ; r")
        a("v_lshlrev_b32 v10, 1, v9")
        a(f"v_add_u32 v10, s{S_I}, v10")
        a(f"v_mul_u32_u24 v10, {ROWB}, v10")
        a("v_lshrrev_b32 v11, 4, v2")
        a("v_lshl_add_u32 v11, v11, 2, v3     ; 4G + c")
        a("v_mul_u32_u24 v11, 40, v11")
        a("v_add_u32 v10, v10, v11")
        a(f"v_add_u32 v147, {LV}, v10")
        a("v_cmp_eq_u32 vcc, 3, v9")
        a(f"v_mov_b32 v7, {16*ROWB}")
        a("s_nop 0")
        a("v_cndmask_b32 v7, v7, v8, vcc")
        a("v_add_u32 v119, v147, v7")
        a(f"v_mov_b32 v12, {hex(f2u(-1e30))}")
        a("v_mov_b32 v13, 0")
        a(f"s_add_u32 s{S_T2}, s{S_R0}, s{S_I}")
        a(f"s_sub_u32 s{S_T2}, s{S_T2}, 14        ; pos(0)")
        for m in range(12):
            a(f"v_sub_u32 v14, {m}, v3            ; m - i")
            a("v_cmp_gt_u32 vcc, 8, v14")
            a(f"s_add_u32 s{S_T0}, s{S_T2}, {2*m}")
            a(f"s_cmp_ge_i32 s{S_T0}, 0")
            a("s_cselect_b64 s[80:81], -1, 0")
            a("s_and_b64 vcc, vcc, s[80:81]")
            a(f"v_cndmask_b32 v{120+m}, v12, v13, vcc")
    for j in range(2):
        a(f"s_add_u32 s{S_T0}, s{S_WAVE}, {8*j}")
        a(f"s_lshl_b32 s{S_T0}, s{S_T0}, 6")
        a(f"v_add_u32 v3, s{S_T0}, v2")
        vdiv(a, 4, 3, 40, 1024)
        a("v_mul_u32_u24 v5, 40, v4")
        a("v_sub_u32 v5, v3, v5")
        a(f"v_mul_u32_u24 v6, {ROWB}, v4")
        a(f"v_lshl_add_u32 v{148+j}, v5, 4, v6")
        a(f"v_add_u32 v4, s{S_R0}, v4")
        a("v_mul_u32_u24 v4, 1280, v4")
        a("v_lshl_add_u32 v4, v5, 4, v4")
        a(f"v_add_u32 v{156+j}, s{S_T3}, v4")
    if role == 'c':
        a(f"s_sub_u32 s{S_T0}, s{S_R0}, 14")
        a(f"s_max_i32 s{S_T0}, s{S_T0}, 0")
        sdiv(a, S_T0, S_T0, 121, 2100)
        a(f"s_add_u32 s{S_T1}, s{S_R0}, 15")
        sdiv(a, S_T1, S_T1, 121, 2100)
        skp = a.new("attpoll")
        a(f"s_cmp_eq_u32 s{S_WAVE}, 0")
        a(f"s_cbranch_scc0 {skp}")
        vdiv(a, 140, 2, 9, 64)
        a("v_mul_u32_u24 v141, 9, v140")
        a("v_sub_u32 v141, v2, v141                  ; j = l%9")
        vdiv(a, 142, 141, 3, 16)
        a("v_mul_u32_u24 v143, 3, v142")
        a("v_sub_u32 v143, v141, v143                ; j%3")
        a("v_mul_u32_u24 v142, 5, v142")
        a("v_add_u32 v142, v142, v143")
        a(f"s_lshl_b32 s{S_T2}, s{S_CT}, 1")
        a(f"v_add_u32 v142, s{S_T2}, v142            ; ct")
        a(f"v_add_u32 v140, s{S_T0}, v140            ; rt")
        a(f"v_cmp_ge_u32 vcc, s{S_T1}, v140")
        a("v_mul_u32_u24 v140, 15, v140")
        a("v_add_u32 v140, v140, v142")
        a("v_lshlrev_b32 v140, 7, v140")
        poll_core(a)
        a.label(skp)
        a("s_barrier      ; B_dep")
    else:
        l2_setup(a, "p3", 243, 64, KA_WG, D*F*2, 3456, D)
        a("s_barrier      ; B_dep")
    stamp(a, 0)
    for j in range(nper):
        sk = None
        if 8*j + 7 >= NI:
            sk = a.new("attsk")
            a(f"s_cmp_ge_u32 s{S_WAVE}, {NI - 8*j}")
            a(f"s_cbranch_scc1 {sk}")
        a(f"s_add_u32 s{S_T0}, s{S_WAVE}, {8*j}")
        a(f"s_lshl_b32 s{S_T0}, s{S_T0}, 10")
        a(f"s_add_u32 m0, s{S_T0}, {LQ}")
        a("s_nop 0")
        a(f"buffer_load_dwordx4 v{32+j}, s[{SRD_A}:{SRD_A+3}], 0 offen{SC1} lds")
        if sk: a.label(sk)
    a("s_waitcnt vmcnt(0)")
    a("s_barrier")
    stamp(a, 1)
    if role == 'l': l2_issue(a, KA_WG, 3456, D)
    if role == 'c':
        Q = 16; KR = 32; VR = 62; SC = 92; BIAS = 120; PB = 104; O = 4
        for dg in range(5):
            a(f"ds_read_b64 v[{Q+2*dg}:{Q+2*dg+1}], v144 offset:{8*dg}")
        for kb in range(3):
            for dg in range(5):
                r = KR + 2*(5*kb + dg)
                if kb < 2: a(f"ds_read_b64 v[{r}:{r+1}], v145 offset:{8*ROWB*kb + 8*dg}")
                else: a(f"ds_read_b64 v[{r}:{r+1}], v146 offset:{8*dg}")
        scale = (D // 32) ** -0.5
        c1 = scale * 1.4426950408889634
        a(f"s_mov_b32 s{S_T2}, {hex(f2u(c1))}")
        a("s_waitcnt lgkmcnt(0)")
        for kb in range(3):
            for dg in range(5):
                r = VR + 2*(5*kb + dg)
                if kb < 2: a(f"ds_read_b64_tr_b16 v[{r}:{r+1}], v147 offset:{8*ROWB*kb + 8*dg}")
                else: a(f"ds_read_b64_tr_b16 v[{r}:{r+1}], v119 offset:{8*dg}")
        for dg in range(5):
            for kb in range(3):
                r = KR + 2*(5*kb + dg); sc = SC + 4*kb
                c = "0" if dg == 0 else f"v[{sc}:{sc+3}]"
                a(f"v_mfma_f32_4x4x4_16b_bf16 v[{sc}:{sc+3}], v[{r}:{r+1}], v[{Q+2*dg}:{Q+2*dg+1}], {c}")
        a("s_nop 4")
        for m in range(12):
            a(f"v_fma_f32 v{SC+m}, v{SC+m}, s{S_T2}, v{BIAS+m}")
        a(f"v_max3_f32 v14, v{SC}, v{SC+1}, v{SC+2}")
        a(f"v_max3_f32 v15, v{SC+3}, v{SC+4}, v{SC+5}")
        a(f"v_max3_f32 v14, v14, v{SC+6}, v{SC+7}")
        a(f"v_max3_f32 v15, v15, v{SC+8}, v{SC+9}")
        a(f"v_max3_f32 v14, v14, v{SC+10}, v{SC+11}")
        a("v_max_f32 v14, v14, v15")
        for m in range(12):
            a(f"v_sub_f32 v{SC+m}, v{SC+m}, v14")
        for m in range(12):
            a(f"v_exp_f32 v{SC+m}, v{SC+m}")
        a(f"v_add_f32 v14, v{SC}, v{SC+1}")
        a(f"v_add_f32 v15, v{SC+2}, v{SC+3}")
        for m in range(4, 12, 2):
            a(f"v_add_f32 v14, v14, v{SC+m}")
            a(f"v_add_f32 v15, v15, v{SC+m+1}")
        a("v_add_f32 v14, v14, v15")
        a("v_rcp_f32 v14, v14")
        a("s_nop 0")
        for m in range(12):
            a(f"v_mul_f32 v{SC+m}, v{SC+m}, v14")
        for m in range(0, 12, 2):
            a(f"v_cvt_pk_bf16_f32 v{PB+m//2}, v{SC+m}, v{SC+m+1}")
        a("s_waitcnt lgkmcnt(0)")
        a("s_nop 0")
        OA = 32
        for kb in range(3):
            for dg in range(5):
                r = VR + 2*(5*kb + dg); o = OA + 4*dg
                c = "0" if kb == 0 else f"v[{o}:{o+3}]"
                a(f"v_mfma_f32_4x4x4_16b_bf16 v[{o}:{o+3}], v[{r}:{r+1}], v[{PB+2*kb}:{PB+2*kb+1}], {c}")
        a(f"v_subrev_u32 v144, {LQ - LO}, v144")
        a("s_nop 4")
        for dg in range(5):
            o = OA + 4*dg
            a(f"v_cvt_pk_bf16_f32 v{Q+2*dg}, v{o}, v{o+1}")
            a(f"v_cvt_pk_bf16_f32 v{Q+2*dg+1}, v{o+2}, v{o+3}")
            a(f"ds_write_b64 v144, v[{Q+2*dg}:{Q+2*dg+1}] offset:{8*dg}")
    a("s_waitcnt lgkmcnt(0)")
    stamp(a, 2)
    a("s_barrier")
    a(f"ds_read_b128 v[20:23], v148 offset:{LO}")
    sk = a.new("attst")
    a(f"s_cmp_ge_u32 s{S_WAVE}, 2")
    a(f"s_cbranch_scc1 {sk}")
    a(f"ds_read_b128 v[24:27], v149 offset:{LO}")
    a("s_waitcnt lgkmcnt(0)")
    a(f"buffer_store_dwordx4 v[24:27], v157, s[{SRD_OUT}:{SRD_OUT+3}], 0 offen{SC1}")
    a.label(sk)
    a("s_waitcnt lgkmcnt(0)")
    a(f"buffer_store_dwordx4 v[20:23], v156, s[{SRD_OUT}:{SRD_OUT+3}], 0 offen{SC1}")
    a(f"s_lshl_b32 s{S_FIDX}, s{S_RT}, 1")
    a(f"s_add_u32 s{S_FIDX}, s{S_FIDX}, s{S_CT}")
    a(f"s_lshl_b32 s{S_FIDX}, s{S_FIDX}, 7")
    a(f"s_add_u32 s{S_FIDX}, s{S_FIDX}, 0x8000")

def finish_phase(a, role, first=False):
    a("s_waitcnt vmcnt(0)")
    stamp(a, 4)
    if role == 'c' and first and not (FUSE and PH0): nonce_check(a)
    a("s_barrier      ; E3")
    if role == 'c': publish(a)
    stamp(a, 5)

IDLEPF = False
def idle_prefetch(a, NT, kptr, nbytes):
    nidle = 256 - NT
    nw = nidle * 8
    npieces = (nbytes + 1023)//1024
    n = (npieces + nw - 1)//nw
    a(f"s_and_b32 s{S_T0}, s2, 7")
    a(f"s_lshr_b32 s{S_T1}, s2, 3")
    a(f"s_lshl_b32 s{S_T0}, s{S_T0}, 5")
    a(f"s_add_u32 s{S_T0}, s{S_T0}, s{S_T1}")
    a(f"s_sub_u32 s{S_T0}, s{S_T0}, {NT}")
    a(f"s_lshl_b32 s{S_T0}, s{S_T0}, 3")
    a(f"s_add_u32 s{S_T0}, s{S_T0}, s{S_WAVE}      ; q")
    a(f"s_lshl_b32 s{S_T0}, s{S_T0}, 10")
    a("v_lshlrev_b32 v150, 4, v2")
    a(f"v_add_u32 v150, s{S_T0}, v150")
    srd(a, 80, ptr(kptr), 0, nbytes)
    lp = a.new("ipf")
    a(f"s_mov_b32 s{S_CNT}, {n}")
    a.label(lp)
    a("buffer_load_dwordx4 v[152:155], v150, s[80:83], 0 offen")
    a(f"v_add_u32 v150, {nw*1024}, v150")
    a(f"s_sub_u32 s{S_CNT}, s{S_CNT}, 1")
    a(f"s_cmp_lg_u32 s{S_CNT}, 0")
    a(f"s_cbranch_scc1 {lp}")
    a("s_waitcnt vmcnt(0)")

def role_program(a, role):
    phases = [P1F(), P24(2), P3(), P24(4)] if FUSE else [P1(), 'att', P24(2), P3(), P24(4)]
    if 'p1twice' in EXP:
        P = P1F() if FUSE else P1(); inv = a.new("inv")
        tile_map(a, P.NT, P.kind)
        a(f"s_cmp_eq_u32 s{S_VALID}, 0")
        a(f"s_cbranch_scc1 {inv}")
        P.tile_consts(a)
        if role == 'c': consumer_phase(a, P, True)
        else: loader_phase(a, P, True)
        a("s_waitcnt vmcnt(0)")
        a("s_barrier")
        a.label(inv)
    for n, P in enumerate(phases):
        first = (n == 0)
        nxt = a.new("next"); inv = a.new("inv")
        if P == 'att':
            tile_map(a, 256, 'att')
            att_phase(a, role)
            stamp(a, 3)
            finish_phase(a, role)
            prof_store(a, 'att', role)
            continue
        tile_map(a, P.NT, P.kind)
        a(f"s_cmp_eq_u32 s{S_VALID}, 0")
        a(f"s_cbranch_scc1 {inv}")
        P.tile_consts(a)
        if PRIO:
            hi = (role == 'l') if PRIO == 'l' else ((role == 'l') != (P.key == 'p3') if PRIO == 'm' else (role == 'c' and P.key == 'p3'))
            a(f"s_setprio {1 if hi else 0}")
        if role == 'c': consumer_phase(a, P, first)
        else: loader_phase(a, P, first)
        stamp(a, 3)
        if P.key != 'p4': finish_phase(a, role, first)
        spin_capture(a, P.key, role)
        prof_store(a, P.key, role)
        if first:
            a(f"s_branch {nxt}")
            a.label(inv)
            ptr_wait(a)
            if role == 'c': nonce_check(a, issued=False)
            a.label(nxt)
        elif P.key == 'p3' and IDLEPF:
            a(f"s_branch {nxt}")
            a.label(inv)
            idle_prefetch(a, P.NT, KA_WD, F*D*2)
            a.label(nxt)
        else:
            a.label(inv)

def main(out):
    a = Asm()
    a.raw(f".globl {KNAME}")
    a.raw(".p2align 8")
    a.raw(f".type {KNAME},@function")
    a.label(KNAME)
    if PROFDBG:
        a(f"s_memrealtime s[{S_P0+1}:{S_P0+2}]") if False else None
    a("s_cmp_ge_u32 s2, 256")
    a("s_cbranch_scc1 L_exit")
    a(f"s_load_dwordx16 s[{S_PTR}:{S_PTR+15}], s[0:1], 0")
    a(f"s_load_dwordx4 s[{S_PTR+16}:{S_PTR+19}], s[0:1], 64")
    if PROFDBG or SPIN:
        a(f"{STAMP} s[98:99]")
    a("v_lshrrev_b32 v1, 6, v0")
    a("v_and_b32 v2, 63, v0      ; lane")
    a(f"s_mov_b32 s{S_FIDX}, -1")
    a(f"s_mov_b32 s{S_DRY}, 0")
    a(f"v_readfirstlane_b32 s{S_WAVE}, v1")
    a("s_nop 3")
    a(f"s_sub_u32 s{S_W}, s{S_WAVE}, 4")
    a(f"s_cmp_ge_u32 s{S_WAVE}, 4")
    a("s_cbranch_scc1 L_loader")
    role_program(a, 'c')
    a("s_waitcnt vmcnt(0)")
    spin_end(a)
    a("s_endpgm")
    a.label("L_loader")
    role_program(a, 'l')
    a("s_waitcnt vmcnt(0)")
    a.label("L_exit")
    a("s_endpgm")
    HEADER = open("sequential_preLN__sliding_local_dilated__glu_gated_bilinear__prompt.s.ref").read().split("; Override")[0]
    s = HEADER
    s += """; One persistent launch, 256 workgroups (one per CU), 8 waves each: waves 0-3 run MFMA ("consumers"), waves 4-7 stream
;   P1F: LN1 (algebraic: rstd*(x@W - mean*colsum(W))) + QKV GEMM + sliding dilated attention (4x4x4 MFMA, true row max)
"""
    s += f"; @launch grid=(256,1,1) block=(512,1,1) lds={LDS_TOTAL}\n"
    s += '.amdgcn_target "amdgcn-amd-amdhsa--gfx950"\n.text\n'
    s += a.text()
    s += f""".section .rodata,"a"
.p2align 6
.amdhsa_kernel {KNAME}
  .amdhsa_next_free_vgpr 256
  .amdhsa_next_free_sgpr 102
  .amdhsa_accum_offset 160
  .amdhsa_group_segment_fixed_size 0
  .amdhsa_kernarg_size 80
  .amdhsa_user_sgpr_count 2
  .amdhsa_user_sgpr_kernarg_segment_ptr 1
  .amdhsa_system_sgpr_workgroup_id_x 1
  .amdhsa_float_denorm_mode_32 3
.end_amdhsa_kernel
"""
    if STSC or LDSC:
        L_ = []
        for ln in s.split("\n"):
            if STSC and "buffer_store_dwordx4" in ln and ln.rstrip().endswith(" sc1") and "sc0" not in ln:
                ln = ln.rstrip()[:-4] + " " + STSC
            if LDSC and "buffer_load_dwordx4" in ln and " sc1 lds" in ln:
                ln = ln.replace(" sc1 lds", " " + LDSC + " lds")
            L_.append(ln)
        s = "\n".join(L_)
    open(out, "w").write(s)

if __name__ == "__main__":
    if "-prof" in sys.argv: PROF = True
    if "-profdbg" in sys.argv: PROFDBG = True
    if "-cyc" in sys.argv: STAMP = "s_memtime"
    if "-wpf" in sys.argv: WPF = True
    if "-nofuse" in sys.argv: FUSE = False
    if "-gate" in sys.argv: GATE = True
    if "-dry" in sys.argv: DRY = True
    if "-nodual" in sys.argv: DUAL = False
    for x in sys.argv:
        if x.startswith("-pre="): PRE2, PRE4 = (int(y) for y in x[5:].split(","))
    for x in sys.argv:
        if x.startswith("-stsc="): STSC = x[6:].replace("+", " ")
        if x.startswith("-ldsc="): LDSC = x[6:].replace("+", " ")
    for x in sys.argv:
        if x.startswith("-wos="): WO_S = int(x[5:])
        if x.startswith("-ups="): UP_S = int(x[5:])
        if x.startswith("-wds="): WDS = tuple(int(y) for y in x[5:].split(","))
    if "-comb" in sys.argv: COMB = True
    for x in sys.argv:
        if x.startswith("-one="): ONESTEP = set(x[5:].split(","))
    for x in sys.argv:
        if x.startswith("-dual4="): DUAL4 = tuple(int(y) for y in x[7:].split(","))
        if x.startswith("-dual2="): DUAL2 = tuple(int(y) for y in x[7:].split(","))
    for x in sys.argv:
        if x.startswith("-ramp="): RAMP = int(x[6:])
        if x.startswith("-rpm3="): RPM3 = int(x[6:])
        if x.startswith("-rpm1="): RPM1 = int(x[6:])
    if "-noph0" in sys.argv: PH0 = False
    for x in sys.argv:
        if x.startswith("-prio="): PRIO = x[6:]
    for x in sys.argv:
        if x.startswith("-extrab="): EXTRAB = int(x[8:])
        if x.startswith("-p4map="): P4MAP = x[7:]
        if x.startswith("-p3map="): P3MAP = x[7:]
        if x.startswith("-p2map="): P2MAP = x[7:]
        if x.startswith("-pb="): PB2, PB3, PB4 = (int(y) for y in x[4:].split(","))
        if x.startswith("-p4rot="): P4ROT = tuple(int(y) for y in x[7:].split(","))
        if x.startswith("-p3rot="): P3ROT = tuple(int(y) for y in x[7:].split(","))
        if x.startswith("-p2rot="): P2ROT = tuple(int(y) for y in x[7:].split(","))
    if "-onwd" in sys.argv: WPF_OFF.discard(KA_WD)
    for x in sys.argv:
        if x.startswith("-spf="): SPF = int(x[5:])
        if x.startswith("-spf2="): SPF2 = {'wg': KA_WG, 'wu': KA_WU}[x[6:]]
    if "-noidle" in sys.argv: IDLEPF = False
    for x in sys.argv:
        if x.startswith("-spin="):
            p_, a_, b_ = x[6:].split(","); SPIN = (p_, int(a_), int(b_))
    if "-apf" in sys.argv: APF = True
    for x in sys.argv:
        if x.startswith("-p1frot="): P1FROT = x[8:]
    for x in sys.argv:
        if x.startswith("-outsc="): OUTSC = " " + x[7:].replace("+", " ")
    for x in sys.argv:
        if x.startswith("-gate4="): GATE4 = tuple(int(y) for y in x[7:].split(","))
    for x in sys.argv:
        if x.startswith("-osc="): OSC = " " + x[5:].replace("+", " ")
    for x in sys.argv:
        if x.startswith("-align="): ALIGN = int(x[7:])
    if "-nowpf" in sys.argv: WPF = False
    if "-onestep" in sys.argv: TWOSTEP = False
    for x in sys.argv:
        if x.startswith("-exp="): EXP = set(x[5:].split(","))
    if "-noxcd" in sys.argv: NOXCD = True
    for x in sys.argv:
        if x.startswith("-p1rot="): P1ROT = x[7:]
        if x.startswith("-rotoff="): ROTOFF = set(x[8:].split(","))
    for x in sys.argv:
        if x.startswith("-off="):
            for k in x[5:].split(","): WPF_OFF.add({'wo': KA_WO, 'wg': KA_WG, 'wu': KA_WU, 'wd': KA_WD}[k])
    main(sys.argv[1] if len(sys.argv) > 1 else "v3.s")
```
